```python
import torch

def _softmax(x, axis=-1):
    return torch.softmax(x, dim=axis)
def _gelu(x):
    return torch.nn.functional.gelu(x, approximate="tanh")
def _silu(x):
    return torch.nn.functional.silu(x)
def _sigmoid(x):
    return torch.sigmoid(x)
def _layernorm(x, axis=-1, eps=1e-5):
    m = x.mean(dim=axis, keepdim=True)
    v = x.var(dim=axis, keepdim=True, unbiased=False)
    return (x - m) / torch.sqrt(v + eps)
def _scatter_add(tgt, idx, src, axis=0):
    return tgt.clone().index_add_(axis, idx, src)
def _segment_sum(src, seg, n):
    out = torch.zeros((n,) + src.shape[1:], dtype=src.dtype)
    return out.index_add_(0, seg, src)
def _pad(x, pw):
    flat = tuple(v for pair in reversed(pw) for v in pair)
    return torch.nn.functional.pad(x, flat)

kernel_name = 'concat_heads__mha_block_cached__mha_block_cached__near_ridge'

def setup_inputs():

    _w = (lambda a: (lambda t: t.to(torch.bfloat16) if t.is_floating_point() else t)(torch.as_tensor(a)))
    def _A_setup():
        B, Sq, D = 8, 256, 576
        H, Sk, Dh = 32, 1024, 128
        return {
            "x": _w((lambda *s: torch.randn(*s, dtype=torch.bfloat16) * 0.8)(B, Sq, D)),
            "k_cache": _w((lambda *s: torch.randn(*s, dtype=torch.bfloat16) * 0.8)(B, H, Sk, Dh)),
            "v_cache": _w((lambda *s: torch.randn(*s, dtype=torch.bfloat16) * 0.05)(B, H, Sk, Dh)),
            "wq": _w((lambda *s: torch.randn(*s, dtype=torch.bfloat16) * 0.8)(D, H * Dh) * (D ** -0.5)),
            "wo": _w((lambda *s: torch.randn(*s, dtype=torch.bfloat16) * 0.05)(H * Dh, D) * ((H * Dh) ** -0.5)),
        }
    _A_in = _A_setup()

    def _B_setup():
        B, Sq, D = 8, 256, 576
        H, Sk, Dh = 32, 1024, 128
        return {
            "x": _w((lambda *s: torch.randn(*s, dtype=torch.bfloat16) * 0.8)(B, Sq, D)),
            "k_cache": _w((lambda *s: torch.randn(*s, dtype=torch.bfloat16) * 0.8)(B, H, Sk, Dh)),
            "v_cache": _w((lambda *s: torch.randn(*s, dtype=torch.bfloat16) * 0.05)(B, H, Sk, Dh)),
            "wq": _w((lambda *s: torch.randn(*s, dtype=torch.bfloat16) * 0.8)(D, H * Dh) * (D ** -0.5)),
            "wo": _w((lambda *s: torch.randn(*s, dtype=torch.bfloat16) * 0.05)(H * Dh, D) * ((H * Dh) ** -0.5)),
        }
    _B_in = _B_setup()

    return {
        "A_x": _A_in["x"],
        "A_k_cache": _A_in["k_cache"],
        "A_v_cache": _A_in["v_cache"],
        "A_wq": _A_in["wq"],
        "A_wo": _A_in["wo"],
        "B_x": _B_in["x"],
        "B_k_cache": _B_in["k_cache"],
        "B_v_cache": _B_in["v_cache"],
        "B_wq": _B_in["wq"],
        "B_wo": _B_in["wo"],
    }

def reference(A_x, A_k_cache, A_v_cache, A_wq, A_wo, B_x, B_k_cache, B_v_cache, B_wq, B_wo):
    def _A_ref(x, k_cache, v_cache, wq, wo):
        B, Sq, D = x.shape
        H, Dh = 32, 128
        q = (lambda x, *d: x.permute(*d))((x @ wq).reshape(B, Sq, H, Dh), 0, 2, 1, 3)
        scores = torch.einsum("bhqd,bhkd->bhqk", q, k_cache) * (Dh ** -0.5)
        p = _softmax(scores, axis=-1)
        o = torch.einsum("bhqk,bhkd->bhqd", p, v_cache)
        return (lambda x, *d: x.permute(*d))(o, 0, 2, 1, 3).reshape(B, Sq, H * Dh) @ wo

    def _B_ref(x, k_cache, v_cache, wq, wo):
        B, Sq, D = x.shape
        H, Dh = 32, 128
        q = (lambda x, *d: x.permute(*d))((x @ wq).reshape(B, Sq, H, Dh), 0, 2, 1, 3)
        scores = torch.einsum("bhqd,bhkd->bhqk", q, k_cache) * (Dh ** -0.5)
        p = _softmax(scores, axis=-1)
        o = torch.einsum("bhqk,bhkd->bhqd", p, v_cache)
        return (lambda x, *d: x.permute(*d))(o, 0, 2, 1, 3).reshape(B, Sq, H * Dh) @ wo

    a = _A_ref(A_x, A_k_cache, A_v_cache, A_wq, A_wo)
    b = _B_ref(B_x, B_k_cache, B_v_cache, B_wq, B_wo)
    return torch.concatenate([a, b], axis=-1)
```

```python
import re

_REG = re.compile(r'^-?(?:abs\()?([vas])(?:(\d+)|\[(\d+):(\d+)\])\)?$')
def regs_of(tok):
    tok = tok.strip()
    m = _REG.match(tok)
    if m:
        f = m.group(1)
        if m.group(2) is not None:
            return [(f, int(m.group(2)))]
        return [(f, i) for i in range(int(m.group(3)), int(m.group(4)) + 1)]
    if tok == 'vcc': return [('s', 'vcc')]
    if tok == 'm0': return [('s', 'm0')]
    if tok == 'exec': return [('s', 'exec')]
    return []

TRANS = ('v_exp_f32', 'v_rcp_f32', 'v_log_f32', 'v_rsq_f32', 'v_sqrt_f32')
class Ins:
    __slots__ = ('text', 'mn', 'kind', 'rd', 'wr', 'tag', 'srcC', 'srcAB', 'meta')
    def __init__(self, text, tag=None, meta=None):
        self.text = text; self.tag = tag; self.meta = meta
        self.srcC = set(); self.srcAB = set()
        t = text.split(';')[0].strip()
        if t.endswith(':'):
            self.mn = 'label'; self.kind = 'label'; self.rd = set(); self.wr = set(); return
        if t.startswith('.'):
            self.mn = 'dir'; self.kind = 'dir'; self.rd = set(); self.wr = set(); return
        parts = t.split(None, 1)
        mn = parts[0]; self.mn = mn
        ops = []
        if len(parts) > 1:
            ops = [o.strip() for o in parts[1].split(',')]
            last = ops[-1].split()
            mods = last[1:]
            ops[-1] = last[0] if last else ''
        else:
            mods = []
        R = [regs_of(o) for o in ops]
        rd = set(); wr = set()
        if mn.startswith('v_mfma'):
            self.kind = 'mfma'; wr.update(R[0]); rd.update(R[1] + R[2] + R[3])
            self.srcAB = set(R[1] + R[2]); self.srcC = set(R[3])
        elif mn.startswith('v_cmp'):
            self.kind = 'valu'; wr.update(R[0]); rd.update(sum(R[1:], []))
        elif mn.startswith('v_permlane') and 'swap' in mn:
            self.kind = 'valu'; wr.update(R[0] + R[1]); rd.update(R[0] + R[1])
        elif mn.startswith('v_'):
            self.kind = 'trans' if mn.replace('_e32', '').replace('_e64', '') in TRANS else 'valu'
            wr.update(R[0]); rd.update(sum(R[1:], []))
            if mn.startswith('v_cndmask') and len(ops) == 3: rd.add(('s', 'vcc'))
        elif mn.startswith('ds_read'):
            self.kind = 'dsr'; wr.update(R[0]); rd.update(R[1])
        elif mn.startswith('ds_write'):
            self.kind = 'dsw'; rd.update(sum(R, []))
        elif mn.startswith('buffer_load'):
            if 'lds' in mods:
                self.kind = 'dma'; rd.update(sum(R, [])); rd.add(('s', 'm0'))
            else:
                self.kind = 'vld'; wr.update(R[0]); rd.update(sum(R[1:], []))
        elif mn.startswith('buffer_store') or mn.startswith('buffer_atomic'):
            self.kind = 'vst'; rd.update(sum(R, []))
        elif mn in ('s_waitcnt', 's_nop', 's_barrier', 's_endpgm', 's_setprio', 's_sleep', 'WAITVM', 'WAITLG'):
            self.kind = {'s_waitcnt': 'wait', 's_nop': 'nop', 's_barrier': 'barrier', 'WAITVM': 'waitvm', 'WAITLG': 'waitlg'}.get(mn, 'smisc')
        elif mn.startswith('s_cbranch') or mn in ('s_branch', 's_setpc_b64', 's_call_b64'):
            self.kind = 'branch'
            if 'vcc' in mn: rd.add(('s', 'vcc'))
        elif mn.startswith('s_cmp'):
            self.kind = 'salu'; rd.update(sum(R, []))
        elif mn.startswith('s_load') or mn.startswith('s_mem'):
            self.kind = 'smem'; wr.update(R[0]); rd.update(sum(R[1:], []))
        elif mn.startswith('s_'):
            self.kind = 'salu'; wr.update(R[0]); rd.update(sum(R[1:], []))
        else:
            raise ValueError('unknown instr: ' + text)
        self.rd = rd; self.wr = wr
    def states(self):
        if self.kind in ('label', 'dir'): return 0
        if self.kind == 'nop': return int(self.text.split()[1]) + 1
        return 1

def isv(r): return r[0] in ('v', 'a')

class Prog:
    def __init__(self):
        self.L = []
    def __call__(self, text, tag=None, meta=None):
        for line in text.strip().split('\n'):
            line = line.strip()
            if line: self.L.append(Ins(line, tag, meta))
    def add(self, ins): self.L.append(ins)
    def extend(self, lst):
        for x in lst:
            if isinstance(x, Ins): self.L.append(x)
            else: self(x)

    def resolve_waits(self, hoist=True):
        out = []
        lg = []
        vm = []
        def emit_wait(vmn=None, lgn=None, consumer=None):
            nonlocal lg, vm
            parts = []
            if vmn is not None: parts.append(f'vmcnt({min(vmn,63)})')
            if lgn is not None: parts.append(f'lgkmcnt({min(lgn,15)})')
            w = Ins('s_waitcnt ' + ' '.join(parts))
            if vmn is not None: vm = vm[len(vm) - vmn:] if vmn > 0 else []
            if lgn is not None: lg = lg[len(lg) - lgn:] if lgn > 0 else []
            return w
        for ins in self.L:
            if ins.kind == 'waitvm':
                toks = ins.text.split()
                tags = toks[1].split('+')
                idx = -1
                for i, o in enumerate(vm):
                    if o.tag in tags: idx = i
                vmn = len(vm) - 1 - idx if idx >= 0 else None
                lgn = 0 if ('lg0' in toks and lg) else None
                if vmn is not None or lgn is not None:
                    out.append(emit_wait(vmn, lgn))
                continue
            if ins.kind == 'waitlg':
                tags = ins.text.split()[1].split('+')
                idx = -1
                for i, o in enumerate(lg):
                    if o.tag in tags: idx = i
                if idx >= 0:
                    out.append(emit_wait(None, len(lg) - 1 - idx))
                continue
            if ins.kind == 'wait':
                m = re.search(r'vmcnt\((\d+)\)', ins.text)
                if m:
                    n = int(m.group(1)); vm = vm[len(vm) - n:] if 0 < n < len(vm) else ([] if n == 0 else vm)
                m = re.search(r'lgkmcnt\((\d+)\)', ins.text)
                if m:
                    n = int(m.group(1)); lg = lg[len(lg) - n:] if 0 < n < len(lg) else ([] if n == 0 else lg)
                out.append(ins); continue
            touched = ins.rd | ins.wr
            li = -1
            for i, o in enumerate(lg):
                if o.wr & touched: li = i
            vi = -1
            for i, o in enumerate(vm):
                if o.wr & touched: vi = i
            if li >= 0 or vi >= 0:
                pos = len(out)
                lgn = len(lg) - 1 - li if li >= 0 else None
                vmn = len(vm) - 1 - vi if vi >= 0 else None
                if hoist and ins.kind == 'mfma':
                    k = len(out) - 1; nl = 0; nv = 0; ok = True
                    while k >= 0 and out[k].kind != 'mfma':
                        o = out[k]
                        if o.kind in ('label', 'branch', 'barrier', 'wait'): ok = False; break
                        if (li >= 0 and o is lg[li]) or (vi >= 0 and o is vm[vi]): ok = False; break
                        if o.kind in ('dsr', 'dsw'): nl += 1
                        if o.kind in ('dma', 'vld', 'vst'): nv += 1
                        k -= 1
                    if ok and k >= 0 and len(out) - 1 - k <= 6 and (k + 1 >= len(out) or out[k + 1].kind not in ('salu', 'wait', 'smisc', 'nop')):
                        parts = []
                        if vmn is not None: parts.append(f'vmcnt({min(vmn - nv, 63)})')
                        if lgn is not None: parts.append(f'lgkmcnt({min(lgn - nl, 15)})')
                        out.insert(k + 1, Ins('s_waitcnt ' + ' '.join(parts)))
                        if vmn is not None: vm = vm[len(vm) - vmn:] if vmn > 0 else []
                        if lgn is not None: lg = lg[len(lg) - lgn:] if lgn > 0 else []
                    else:
                        out.append(emit_wait(vmn, lgn))
                else:
                    out.append(emit_wait(vmn, lgn))
            if ins.kind in ('dsr', 'dsw'): lg.append(ins)
            if ins.kind in ('dma', 'vld', 'vst'): vm.append(ins)
            if ins.kind == 'smem': raise_smem = True
            out.append(ins)
        self.L = out

    def fix_hazards(self, report=None):
        out = []
        npad = 0
        for ins in self.L:
            need = 0
            if ins.kind not in ('label', 'dir', 'nop', 'wait', 'barrier'):
                d = 0
                for k in range(len(out) - 1, -1, -1):
                    p = out[k]
                    if d >= 12: break
                    req = 0
                    pv = p.kind in ('valu', 'trans')
                    iv = ins.kind in ('valu', 'trans')
                    if p.kind == 'mfma':
                        D = p.wr
                        if ins.kind == 'mfma':
                            if D & ins.srcAB: req = max(req, 8)
                            if D & ins.srcC and ins.srcC != D: req = max(req, 6)
                            if D & ins.wr and ins.srcC != D: req = max(req, 6)
                        elif iv:
                            if D & (ins.rd | ins.wr): req = max(req, 8)
                            if p.srcC & ins.wr: req = max(req, 3)
                        elif ins.kind in ('dsr', 'dsw', 'vld', 'vst', 'dma'):
                            if D & (ins.rd | ins.wr): req = max(req, 8)
                    if pv:
                        vw = {r for r in p.wr if isv(r)}
                        sw = {r for r in p.wr if not isv(r)}
                        if ins.kind == 'mfma' and vw & ins.rd: req = max(req, 2)
                        if p.kind == 'trans' and iv and ins.kind != 'trans' and vw & ins.rd: req = max(req, 1)
                        if p.kind == 'trans' and ins.kind == 'trans' and vw & ins.rd: req = max(req, 1)
                        if ins.mn.startswith('v_permlane') and vw & ins.rd: req = max(req, 2)
                        if ins.mn.startswith(('v_readfirstlane', 'v_readlane')) and vw & ins.rd: req = max(req, 1)
                        if 'dpp' in ins.text and vw & ins.rd: req = max(req, 2)
                        if iv and sw & ins.rd: req = max(req, 2)
                        if ins.kind in ('vld', 'vst', 'dma') and sw & ins.rd: req = max(req, 5)
                        if ins.kind in ('salu', 'branch') and sw & ins.rd: req = max(req, 1)
                    if p.kind == 'salu' and ('s', 'm0') in p.wr and ins.kind == 'dma': req = max(req, 1)
                    if p.kind == 'vst' and ('x4' in p.mn or 'x3' in p.mn):
                        if {r for r in p.rd if isv(r)} & ins.wr: req = max(req, 2)
                    if p.kind == 'dsw' and False: pass
                    if req > d: need = max(need, req - d)
                    d += p.states()
            if need > 0:
                out.append(Ins(f's_nop {need - 1}')); npad += 1
                if report is not None: report.append((need, ins.text))
            out.append(ins)
        self.L = out
        return npad

    def text(self, macros=True):
        lines = []
        for i in self.L:
            lines.append(compact(i.text) if macros else i.text)
        return '\n'.join(lines) + '\n'

MACROS = r"""
.macro MV d,a,b,c
v_mfma_f32_16x16x32_bf16 v[\d:\d+3],v[\a:\a+3],a[\b:\b+3],v[\c:\c+3]
.endm
.macro MA d,a,b
v_mfma_f32_16x16x32_bf16 a[\d:\d+3],v[\a:\a+3],v[\b:\b+3],a[\d:\d+3]
.endm
.macro MQV d,a,b
v_mfma_f32_16x16x32_bf16 v[\d:\d+3],a[\a:\a+3],a[\b:\b+3],v[\d:\d+3]
.endm
.macro MQA d,a,b
v_mfma_f32_16x16x32_bf16 a[\d:\d+3],a[\a:\a+3],a[\b:\b+3],a[\d:\d+3]
.endm
.macro TR d,a,o
ds_read_b64_tr_b16 v[\d:\d+1],v\a offset:\o
.endm
.macro TRA d,a,o
ds_read_b64_tr_b16 a[\d:\d+1],v\a offset:\o
.endm
.macro RD d,a,o
ds_read_b128 v[\d:\d+3],v\a offset:\o
.endm
.macro CV d,a,b
v_cvt_pk_bf16_f32 v\d,v\a,v\b
.endm
"""
_P = [
 (re.compile(r'^v_mfma_f32_16x16x32_bf16 v\[(\d+):\d+\], v\[(\d+):\d+\], a\[(\d+):\d+\], v\[(\d+):\d+\]$'), lambda m: f'MV {m[1]},{m[2]},{m[3]},{m[4]}'),
 (re.compile(r'^v_mfma_f32_16x16x32_bf16 a\[(\d+):\d+\], v\[(\d+):\d+\], v\[(\d+):\d+\], a\[(\d+):\d+\]$'), lambda m: f'MA {m[1]},{m[2]},{m[3]}' if m[1] == m[4] else None),
 (re.compile(r'^v_mfma_f32_16x16x32_bf16 v\[(\d+):\d+\], a\[(\d+):\d+\], a\[(\d+):\d+\], v\[(\d+):\d+\]$'), lambda m: f'MQV {m[1]},{m[2]},{m[3]}' if m[1] == m[4] else None),
 (re.compile(r'^v_mfma_f32_16x16x32_bf16 a\[(\d+):\d+\], a\[(\d+):\d+\], a\[(\d+):\d+\], a\[(\d+):\d+\]$'), lambda m: f'MQA {m[1]},{m[2]},{m[3]}' if m[1] == m[4] else None),
 (re.compile(r'^ds_read_b64_tr_b16 v\[(\d+):\d+\], v(\d+) offset:(\d+)$'), lambda m: f'TR {m[1]},{m[2]},{m[3]}'),
 (re.compile(r'^ds_read_b64_tr_b16 a\[(\d+):\d+\], v(\d+) offset:(\d+)$'), lambda m: f'TRA {m[1]},{m[2]},{m[3]}'),
 (re.compile(r'^ds_read_b128 v\[(\d+):\d+\], v(\d+) offset:(\d+)$'), lambda m: f'RD {m[1]},{m[2]},{m[3]}'),
 (re.compile(r'^v_cvt_pk_bf16_f32 v(\d+), v(\d+), v(\d+)$'), lambda m: f'CV {m[1]},{m[2]},{m[3]}'),
]
def compact(t):
    for rx, f in _P:
        m = rx.match(t)
        if m:
            r = f(m)
            if r: return r
    return t.replace(', ', ',')

def mfma(d, a, b, c):
    def rg(x): return f'{x[0]}[{int(x[1:])}:{int(x[1:]) + 3}]'
    return f'v_mfma_f32_16x16x32_bf16 {rg(d)}, {rg(a)}, {rg(b)}, {"0" if c == "0" else rg(c)}'

def weave(mf, gaps):
    out = []
    for i, m in enumerate(mf):
        out.append(m)
        out.extend(gaps.get(i, []))
    return out
```

```python
NAME = "concat_heads__mha_block_cached__mha_block_cached__near_ridge"
HEADER = """; Kernarg layout (104 bytes, ptrs only, base s[0:1]):
"""
def kd(name, vgpr, sgpr, accum):
    return f""".section .rodata,"a"
.p2align 6
.amdhsa_kernel {name}
  .amdhsa_next_free_vgpr {vgpr}
  .amdhsa_next_free_sgpr {sgpr}
  .amdhsa_accum_offset {accum}
  .amdhsa_group_segment_fixed_size 0
  .amdhsa_kernarg_size 104
  .amdhsa_user_sgpr_count 2
  .amdhsa_user_sgpr_kernarg_segment_ptr 1
  .amdhsa_system_sgpr_workgroup_id_x 1
.end_amdhsa_kernel
"""
def prolog(name):
    return f""".globl {name}
.p2align 8
.type {name},@function
{name}:
"""
```

```python
import sys, math
from common import *
from asmlib import *

OPT = dict(nt_kv='nt', nt_x='', nt_w='', o_store='', stamps=False, k2_o='', k2_w='')
WS_O = 0
WS_WO = 33554432
WS_STAMP = 64 << 20
SCALE = math.log2(math.e) / math.sqrt(128.0)
import struct
def f2i(x): return struct.unpack('<I', struct.pack('<f', x))[0]

SK, SV, SX, SW, SO, SWS, SWD = 4, 8, 12, 16, 20, 24, 28
sW, sW2K, sW4K, sT0, sT1, sSC, sTHR, sRET, sMODE = 32, 33, 34, 35, 36, 38, 40, 42, 44
def srd(n): return f's[{n}:{n+3}]'
KADDR, VADDR, VOFFK, VOFFV, LREG, ETMP, CT, NEGM = 4, 8, 16, 18, 20, 28, 40, 44
VOFFO = 60
KF, VF, SB, PB, EP = 64, 96, 128, 192, 224
NE = 12
def S(p, kt, qt): return SB + p * 32 + (kt * 4 + qt) * 4
def P(p, qt): return PB + p * 16 + qt * 4
def Lr(p, qt): return LREG + p * 4 + qt
def O(T, qt): return (T * 4 + qt) * 4
def Q(h, qt, u): return 128 + h * 64 + (qt * 4 + u) * 4
WADDR, XADDR, VOFFW, VOFFX = 64, 80, 84, 88
def QACC(h, T, qt): return (f'v{128 + (T * 4 + qt) * 4}' if h == 0 else f'a{(T * 4 + qt) * 4}')
def XF(par, qt): return 128 + par * 16 + qt * 4
def WF(slot): return 160 + slot * 4
BLK = 16384
def wblock(t): return (4 + (t >> 1) % 3) if t % 2 == 0 else (1 + (t >> 1) % 3)
def xblock(t): return 7 + t % 3

def dma_kv(which, tile):
    base = (0 if which == 'K' else 65536) + (tile % 8) * 8192
    s = SK if which == 'K' else SV
    vo = VOFFK if which == 'K' else VOFFV
    st = sT0 if which == 'K' else sT1
    tag = f'{which}{tile}'
    nt = OPT['nt_kv']
    return [([f's_mov_b32 s{st}, {tile * 8192}', f's_add_u32 m0, s{sW2K}, {base}'],
             Ins(f'buffer_load_dwordx4 v{vo}, {srd(s)}, s{st} offen {nt} lds'.replace('  ', ' '), tag)),
            ([], Ins(f'buffer_load_dwordx4 v{vo + 1}, {srd(s)}, s{st} offen offset:1024 {nt} lds'.replace('  ', ' '), tag))]
def dma_w(t):
    r = []
    for n in range(4):
        pre = [f's_mov_b32 s{sT0}, {t * 32 * 8192}', f's_add_u32 m0, s{sW4K}, {wblock(t) * BLK}'] if n == 0 else []
        r.append((pre, Ins(f'buffer_load_dwordx4 v{VOFFW + n}, {srd(SW)}, s{sT0} offen offset:{n * 1024} {OPT["nt_w"]} lds'.replace('  ', ' '), f'W{t}')))
    return r
def dma_x(t):
    r = []
    for n in range(4):
        pre = [f's_mov_b32 s{sT1}, {t * 64}', f's_add_u32 m0, s{sW4K}, {xblock(t) * BLK}'] if n == 0 else []
        r.append((pre, Ins(f'buffer_load_dwordx4 v{VOFFX + n}, {srd(SX)}, s{sT1} offen offset:{n * 1024} {OPT["nt_x"]} lds'.replace('  ', ' '), f'X{t}')))
    return r
def flat(dl):
    out = []
    for pre, ins in dl: out += pre + [ins]
    return out

class Gaps:
    def __init__(self, n):
        self.n = n; self.sc = [[] for _ in range(n)]; self.mem = [[] for _ in range(n)]; self.v = [[] for _ in range(n)]
    def place_dma(self, dl, gaps):
        for (pre, ins), g in zip(dl, gaps):
            for k, s in enumerate(pre):
                self.sc[g - len(pre) + k].append(s)
            self.mem[g].append(ins)
    def weave(self, mf):
        out = []
        for i in range(self.n):
            if i < len(mf) and mf[i] is not None: out.append(mf[i])
            out += self.sc[i] + self.mem[i] + self.v[i]
        return out

def k_reads(tile):
    return [Ins(f'ds_read_b128 v[{KF + (kt * 4 + u) * 4}:{KF + (kt * 4 + u) * 4 + 3}], v{KADDR + u} offset:{(tile % 8) * 8192 + kt * 4096}', f'rK{tile}')
            for kt in range(2) for u in range(4)]
def v_reads(tile):
    return [Ins(f'ds_read_b64_tr_b16 v[{VF + T * 4 + s * 2}:{VF + T * 4 + s * 2 + 1}], v{VADDR + T} offset:{(tile % 8) * 8192 + s * 4096}', f'rV{tile}')
            for T in range(8) for s in range(2)]
def qk_mfmas(j):
    h = j >> 5; p = j & 1; first = (j & 31) == 0
    out = []
    for kt in range(2):
        for u in range(4):
            for qt in range(4):
                c = f'v{S(p, kt, qt)}' if u else ('0' if first else f'v{NEGM + qt * 4}')
                out.append(mfma(f'v{S(p, kt, qt)}', f'v{KF + (kt * 4 + u) * 4}', f'a{Q(h, qt, u)}', c))
    return out
def pv_mfmas(j):
    p = j & 1; first = (j & 31) == 0
    return [mfma(f'a{O(T, qt)}', f'v{VF + T * 4}', f'v{P(p, qt)}', '0' if first else f'a{O(T, qt)}') for T in range(8) for qt in range(4)]

def softmax_stream(j, qts):
    p = j & 1; first = (j & 31) == 0
    out = []
    for qt in qts:
        for k in range(8):
            e = ETMP + (qt * 8 + k) % NE
            src = S(p, k >> 2, qt) + (k & 3)
            out.append([f'v_exp_f32 v{e}, v{src}'])
            l = Lr(p, qt)
            if k == 0: a = f'v_mov_b32 v{l}, v{e}' if first else f'v_add_f32 v{l}, v{Lr(1 - p, qt)}, v{e}'
            else: a = f'v_add_f32 v{l}, v{l}, v{e}'
            g = [a]
            if k & 1:
                e0 = ETMP + (qt * 8 + k - 1) % NE
                g.append(f'v_cvt_pk_bf16_f32 v{P(p, qt) + (k >> 1)}, v{e0}, v{e}')
            out.append(g)
    return out

def rowmax(p, qt, dst, tmp):
    s0 = S(p, 0, qt); s1 = S(p, 1, qt)
    return [f'v_max3_f32 v{dst}, v{s0}, v{s0 + 1}, v{s0 + 2}', f'v_max3_f32 v{dst}, v{dst}, v{s0 + 3}, v{s1}',
            f'v_max3_f32 v{dst}, v{dst}, v{s1 + 1}, v{s1 + 2}', f'v_max_f32 v{dst}, v{dst}, v{s1 + 3}']
def xlane(op, regs, tmps):
    out = []
    for sw in ('v_permlane16_swap_b32', 'v_permlane32_swap_b32'):
        out += [f'v_mov_b32 v{t}, v{r}' for r, t in zip(regs, tmps)]
        out += [f'{sw} v{t}, v{r}' for r, t in zip(regs, tmps)]
        out += [f'{op} v{r}, v{r}, v{t}' for r, t in zip(regs, tmps)]
    return out
def init_stream(j):
    p = j & 1
    m = [EP + i for i in range(4)]; t = [EP + 4 + i for i in range(4)]
    out = []
    rm = [rowmax(p, qt, m[qt], None) for qt in range(4)]
    for k in range(4): out += [rm[qt][k] for qt in range(4)]
    out += xlane('v_max_f32', m, t)
    for qt in range(4):
        for k in range(8):
            s = S(p, k >> 2, qt) + (k & 3)
            out.append(f'v_sub_f32 v{s}, v{s}, v{m[qt]}')
    for qt in range(4):
        for r in range(4): out.append(f'v_sub_f32 v{NEGM + qt * 4 + r}, 0, v{m[qt]}')
    return out

def epilogue(A, h):
    l = [Lr(1, qt) for qt in range(4)]
    t = [EP + i for i in range(4)]
    A.extend(xlane('v_add_f32', l, t))
    rc = [EP + 2 * i for i in range(4)]
    for qt in range(4): A(f'v_rcp_f32 v{rc[qt]}, v{l[qt]}')
    k = 0
    for u in range(4):
        A(f's_mov_b32 s{sT0}, {(h * 4 + u) * 4096}')
        for qt in range(4):
            b = EP + 8 + (k % 2) * 12; k += 1
            for i in range(8):
                A(f'v_accvgpr_read_b32 v{b + i}, a{O(2 * u + (i >> 2), qt) + (i & 3)}')
            for i in range(4):
                A(f'v_pk_mul_f32 v[{b + 2 * i}:{b + 2 * i + 1}], v[{b + 2 * i}:{b + 2 * i + 1}], v[{rc[qt]}:{rc[qt] + 1}] op_sel_hi:[1,0]')
            for i in range(4):
                A(f'v_cvt_pk_bf16_f32 v{b + 8 + i}, v{b + 2 * i}, v{b + 2 * i + 1}')
            A(f'buffer_store_dwordx4 v[{b + 8}:{b + 11}], v{VOFFO}, {srd(SO)}, s{sT0} offen offset:{qt * 1024} {OPT["o_store"]}'.rstrip(), tag='Ost')

def fallback(p):
    A = Prog()
    A(f'L_fb{p}:')
    A('s_nop 7\ns_nop 7')
    m = [EP + i for i in range(4)]; t = [EP + 4 + i for i in range(4)]; f = [EP + 8 + i for i in range(4)]
    rm = [rowmax(p, qt, m[qt], None) for qt in range(4)]
    for k in range(4): A.extend([rm[qt][k] for qt in range(4)])
    A.extend(xlane('v_max_f32', m, t))
    for qt in range(4): A(f'v_max_f32 v{m[qt]}, 0, v{m[qt]}')
    for qt in range(4): A(f'v_exp_f32 v{f[qt]}, -v{m[qt]}')
    for qt in range(4):
        for k in range(8):
            s = S(p, k >> 2, qt) + (k & 3)
            A(f'v_sub_f32 v{s}, v{s}, v{m[qt]}')
        for r in range(4): A(f'v_sub_f32 v{NEGM + qt * 4 + r}, v{NEGM + qt * 4 + r}, v{m[qt]}')
        A(f'v_mul_f32 v{Lr(1 - p, qt)}, v{Lr(1 - p, qt)}, v{f[qt]}')
    A(f's_cmp_lg_u32 s{sMODE}, 0')
    A(f's_cbranch_scc1 L_fb{p}_b')
    for qt in range(4):
        for k in range(8):
            s = S(1 - p, k >> 2, qt) + (k & 3)
            A(f'v_sub_f32 v{s}, v{s}, v{m[qt]}')
    A(f'L_fb{p}_b:')
    for T in range(8):
        for qt in range(4):
            b = EP + 12 + ((T * 4 + qt) % 2) * 4
            for r in range(4): A(f'v_accvgpr_read_b32 v{b + r}, a{O(T, qt) + r}')
            for r in range(4): A(f'v_mul_f32 v{b + r}, v{b + r}, v{f[qt]}')
            for r in range(4): A(f'v_accvgpr_write_b32 a{O(T, qt) + r}, v{b + r}')
    for g in softmax_stream(2 + p, range(4)):
        A.extend(g)
    A('s_nop 3')
    A(f's_setpc_b64 s[{sRET}:{sRET + 1}]')
    A.fix_hazards()
    return A

def stamp(A, idx, base=64):
    if not OPT['stamps']: return
    A(f's_memtime s[{base + idx * 2}:{base + idx * 2 + 1}]')

def gen_k1():
    A = Prog()
    A('s_cmp_ge_u32 s2, 256\ns_cbranch_scc1 L_k1_end')
    if OPT['stamps']: A('s_memrealtime s[60:61]')
    stamp(A, 0)
    A('''s_and_b32 s46, s2, 7
s_lshr_b32 s47, s2, 3
s_lshr_b32 s48, s47, 4
s_lshl_b32 s46, s46, 1
s_add_u32 s46, s46, s48
s_and_b32 s47, s47, 15
s_lshr_b32 s48, s46, 3
s_and_b32 s49, s46, 7
s_mul_i32 s50, s48, 40
s_add_u32 s52, s0, s50
s_addc_u32 s53, s1, 0
s_lshr_b32 s51, s2, 7
s_mul_i32 s51, s51, 40
s_add_u32 s54, s0, s51
s_addc_u32 s55, s1, 0''')
    A(f'''s_load_dwordx2 s[{SX}:{SX+1}], s[52:53], 0
s_load_dwordx2 s[{SK}:{SK+1}], s[52:53], 8
s_load_dwordx2 s[{SV}:{SV+1}], s[52:53], 16
s_load_dwordx2 s[{SW}:{SW+1}], s[52:53], 24
s_load_dwordx2 s[{SWS}:{SWS+1}], s[54:55], 32
s_load_dwordx2 s[{SO}:{SO+1}], s[0:1], 96''')
    A(f'''v_lshrrev_b32 v1, 6, v0
v_and_b32 v2, 63, v0
v_readfirstlane_b32 s{sW}, v1
v_and_b32 v96, 15, v2
v_lshrrev_b32 v97, 4, v2
v_and_b32 v98, 3, v2
v_bfe_u32 v99, v2, 2, 2''')
    A(f's_lshl_b32 s{sW2K}, s{sW}, 11\ns_lshl_b32 s{sW4K}, s{sW}, 12')
    A(f'''v_and_b32 v100, 1, v97
v_lshlrev_b32 v100, 1, v100
v_lshrrev_b32 v101, 1, v97
v_mul_u32_u24 v101, 3, v101
v_xor_b32 v100, v100, v101
v_xor_b32 v101, v100, v98
v_lshrrev_b32 v102, 2, v2
v_lshl_add_u32 v102, v1, 6, v102
v_mul_u32_u24 v102, 1152, v102
v_lshl_add_u32 v{VOFFX}, v101, 4, v102''')
    for n in range(1, 4): A(f'v_add_u32 v{VOFFX + n}, {n * (18432 - 1024)}, v{VOFFX}')
    A(f'''v_lshrrev_b32 v100, 5, v2
v_and_b32 v101, 31, v2
v_and_b32 v102, 1, v1
v_lshl_add_u32 v102, v102, 2, v100
v_lshl_add_u32 v103, v1, 3, v100
v_lshlrev_b32 v103, 13, v103''')
    for n in range(4):
        A(f'v_add_u32 v104, {2 * (n & 1)}, v102\nv_lshlrev_b32 v104, 1, v104\nv_xor_b32 v104, v104, v101\nv_lshl_add_u32 v104, v104, 4, v103')
        A(f'v_add_u32 v{VOFFW + n}, {n * (16384 - 1024)}, v104')
    A(f'v_lshlrev_b32 v100, 11, v1\nv_lshl_add_u32 v100, v97, 8, v100')
    A(f'v_lshl_add_u32 v101, v1, 3, v97')
    for o in range(2):
        A(f'v_add_u32 v102, {4 * o}, v101\nv_and_b32 v103, 15, v102\nv_xor_b32 v103, v103, v96\nv_lshl_add_u32 v{VOFFK + o}, v103, 4, v100')
        A(f'v_and_b32 v103, 7, v102\nv_lshlrev_b32 v103, 1, v103\nv_xor_b32 v103, v103, v96\nv_lshl_add_u32 v{VOFFV + o}, v103, 4, v100')
    A('s_waitcnt lgkmcnt(0)')
    A(f'''s_mul_i32 s50, s49, 294912
s_add_u32 s{SX}, s{SX}, s50
s_addc_u32 s{SX+1}, s{SX+1}, 0
s_mov_b32 s{SX+2}, 294912
s_mov_b32 s{SX+3}, 0x20000
s_lshl_b32 s50, s47, 9
s_add_u32 s{SW}, s{SW}, s50
s_addc_u32 s{SW+1}, s{SW+1}, 0
s_sub_u32 s{SW+2}, {576 * 8192}, s50
s_mov_b32 s{SW+3}, 0x20000''')
    A.extend(flat(dma_x(0)) + flat(dma_w(0)) + flat(dma_w(1)) + flat(dma_x(1)))
    A(f'''s_lshl_b32 s50, s49, 23
s_lshl_b32 s51, s47, 19
s_add_u32 s50, s50, s51
s_add_u32 s{SK}, s{SK}, s50
s_addc_u32 s{SK+1}, s{SK+1}, 0
s_mov_b32 s{SK+2}, 0x80000
s_mov_b32 s{SK+3}, 0x20000
s_add_u32 s{SV}, s{SV}, s50
s_addc_u32 s{SV+1}, s{SV+1}, 0
s_mov_b32 s{SV+2}, 0x80000
s_mov_b32 s{SV+3}, 0x20000''')
    A.extend(flat(dma_x(2)) + flat(dma_w(2)) + flat(dma_w(3)) + flat(dma_w(4)) + flat(dma_w(5)) + flat(dma_kv('K', 0)) + flat(dma_kv('K', 1)))
    A(f'''s_add_u32 s{SWD}, s{SO}, {WS_WO}
s_addc_u32 s{SWD+1}, s{SO+1}, 0
s_mul_i32 s50, s2, 36864
s_add_u32 s{SWD}, s{SWD}, s50
s_addc_u32 s{SWD+1}, s{SWD+1}, 0
s_mov_b32 s{SWD+2}, 36864
s_mov_b32 s{SWD+3}, 0x20000
s_and_b32 s50, s2, 127
s_mul_i32 s50, s50, 36864
s_add_u32 s{SWS}, s{SWS}, s50
s_addc_u32 s{SWS+1}, s{SWS+1}, 0
s_mov_b32 s{SWS+2}, 36864
s_mov_b32 s{SWS+3}, 0x20000''')
    if OPT['stamps']:
        A(f's_add_u32 s56, s{SO}, {WS_STAMP}\ns_addc_u32 s57, s{SO+1}, 0\ns_mov_b32 s58, 0x100000\ns_mov_b32 s59, 0x20000')
    A(f'''s_lshl_b32 s50, s46, 2
s_add_u32 s50, s50, s{sW}
s_lshl_b32 s50, s50, 19
s_lshl_b32 s51, s47, 15
s_add_u32 s50, s50, s51
s_add_u32 s{SO}, s{SO}, s50
s_addc_u32 s{SO+1}, s{SO+1}, 0
s_mov_b32 s{SO+2}, 32768
s_mov_b32 s{SO+3}, 0x20000
s_mov_b32 s{sSC}, {f2i(SCALE):#x}
s_mov_b32 s{sSC+1}, {f2i(SCALE):#x}
s_mov_b32 s{sTHR}, {f2i(2.0 ** 24):#x}
v_lshlrev_b32 v{VOFFO}, 4, v2''')
    A('v_xor_b32 v100, v97, v96\nv_lshlrev_b32 v100, 4, v100\nv_lshl_add_u32 v100, v96, 8, v100')
    for u in range(4): A(f'v_xor_b32 v{KADDR + u}, {u * 64}, v100')
    A('v_lshl_add_u32 v100, v97, 2, v99\nv_and_b32 v101, 7, v100\nv_lshlrev_b32 v101, 5, v101\nv_lshl_add_u32 v101, v100, 8, v101\nv_lshl_add_u32 v101, v98, 3, v101\nv_add_u32 v101, 0x10000, v101')
    for T in range(8): A(f'v_xor_b32 v{VADDR + T}, {T * 32}, v101')
    A('v_lshl_add_u32 v100, v97, 3, v99\nv_and_b32 v101, 1, v97\nv_lshl_add_u32 v101, v101, 2, v99\nv_lshlrev_b32 v101, 5, v101\nv_lshl_add_u32 v101, v100, 9, v101\nv_lshl_add_u32 v101, v98, 3, v101')
    for T in range(8):
        A(f'v_xor_b32 v{WADDR + 8 + T}, {T * 32}, v101')
        A(f'v_add_u32 v{WADDR + T}, 0x10000, v{WADDR + 8 + T}')
    A(f'''v_and_b32 v100, 1, v99
v_lshlrev_b32 v100, 1, v100
v_lshrrev_b32 v101, 1, v99
v_mul_u32_u24 v101, 3, v101
v_xor_b32 v100, v100, v101
v_xor_b32 v100, v100, v97
v_lshlrev_b32 v100, 4, v100
v_lshl_add_u32 v100, v96, 6, v100
v_lshl_add_u32 v100, v1, 12, v100
v_add_u32 v{XADDR}, {7 * BLK}, v100''')
    def x_reads(t):
        return [Ins(f'ds_read_b128 a[{XF(t & 1, qt)}:{XF(t & 1, qt) + 3}], v{XADDR} offset:{(xblock(t) - 7) * BLK + qt * 1024}', f'rX{t}') for qt in range(4)]
    def w_reads(t):
        out = []
        for f in range(16):
            h, T = f >> 3, f & 7
            slot = (16 * t + f) % 24
            blk = wblock(t)
            ad = WADDR + T if blk >= 4 else WADDR + 8 + T
            off = (blk - 4 if blk >= 4 else blk) * BLK + h * 256
            for s in range(2):
                out.append(Ins(f'ds_read_b64_tr_b16 a[{WF(slot) + 2 * s}:{WF(slot) + 2 * s + 1}], v{ad} offset:{off + s * 2048}', f'rW{t}'))
        return out
    stamp(A, 1)
    A('WAITVM X0+W0+W1\ns_barrier')
    stamp(A, 2)
    A.extend(x_reads(0) + w_reads(0))
    A('WAITLG rX0')
    A.extend(flat(dma_x(3)))
    pend = []
    for t in range(18):
        mf = []
        for f in range(16):
            h, T = f >> 3, f & 7
            for qt in range(4):
                acc = QACC(h, T, qt)
                mf.append(mfma(acc, f'a{WF((16 * t + f) % 24)}', f'a{XF(t & 1, qt)}', '0' if t == 0 else acc))
        G = Gaps(64)
        if t + 1 < 18:
            G.sc[0].append(f'WAITVM X{t + 1}')
            for i, r in enumerate(x_reads(t + 1)): G.mem[i].append(r)
            for i, r in enumerate(w_reads(t + 1)): G.mem[4 + i].append(r)
        jobs = []
        if t + 4 < 18:
            G.sc[36].append(f'WAITLG rX{t + 1}')
            jobs += dma_x(t + 4)
        take = pend[:4] if t % 2 == 1 else pend[:]
        if t % 2 == 1 and len(pend) > 4: take = pend[:len(pend) // 2]
        pend = pend[len(take):]
        jobs += take
        gl = [39 + 3 * i for i in range(len(jobs))]
        assert not gl or gl[-1] <= 60, gl
        G.place_dma(jobs, gl)
        if t % 2 == 0 and t <= 16:
            c = t // 2 + 1
            tags = f'W{2 * c}+W{2 * c + 1}' if c <= 8 else 'K0+K1'
            G.sc[62].append(f'WAITVM {tags} lg0'); G.sc[62].append('s_barrier')
            assert not pend
            if c + 2 <= 8: pend = dma_w(2 * c + 4) + dma_w(2 * c + 5)
            else:
                i = c - 7
                pend = dma_kv('V', 2 * i) + dma_kv('K', 2 * i + 2) + dma_kv('V', 2 * i + 1) + dma_kv('K', 2 * i + 3)
        if t == 17:
            for i, r in enumerate(k_reads(0)): G.mem[4 + 2 * i].append(r)
        A.extend(G.weave(mf))
    A.extend(flat(pend)); pend = []
    stamp(A, 3)
    A(f'v_lshlrev_b32 v100, 12, v1\nv_add_u32 v100, {8 * BLK}, v100')
    for u in range(4): A(f'v_add_u32 v{104 + u}, v100, v{KADDR + u}')
    A('v_lshrrev_b32 v101, 1, v97\nv_xor_b32 v101, v101, v96\nv_lshlrev_b32 v101, 4, v101\nv_lshl_add_u32 v101, v96, 8, v101\nv_and_b32 v102, 1, v97\nv_lshl_add_u32 v101, v102, 3, v101\nv_add_u32 v101, v101, v100')
    for T in range(8): A(f'v_xor_b32 v{108 + T}, {T * 32}, v101')
    for h in range(2):
        for qt in range(4):
            for T in range(8):
                acc = QACC(h, T, qt)
                if h == 0: b = int(acc[1:])
                else:
                    b = 116 + (T % 2) * 4
                    for r in range(4): A(f'v_accvgpr_read_b32 v{b + r}, a{int(acc[1:]) + r}')
                for i in range(2): A(f'v_pk_mul_f32 v[{b + 2 * i}:{b + 2 * i + 1}], v[{b + 2 * i}:{b + 2 * i + 1}], s[{sSC}:{sSC + 1}]')
                d = 124 + (T % 2) * 2
                for i in range(2): A(f'v_cvt_pk_bf16_f32 v{d + i}, v{b + 2 * i}, v{b + 2 * i + 1}')
                A(f'ds_write_b64 v{108 + T}, v[{d}:{d + 1}]')
            for u in range(4):
                A(f'ds_read_b128 a[{Q(h, qt, u)}:{Q(h, qt, u) + 3}], v{104 + u}')
    stamp(A, 4)
    G = Gaps(32)
    kr = k_reads(1)
    for i in range(7): G.mem[4 * i + 4].append(kr[i])
    A.extend(G.weave(qk_mfmas(0)))
    A.add(kr[7])
    A.extend(init_stream(0))
    st = softmax_stream(0, range(4))
    SH = 2
    for g in st[:32 + SH]: A.extend(g)
    carry = st[32 + SH:]
    stubs = []
    stamp(A, 5)
    for j in range(64):
        jj = j & 31
        G = Gaps(64)
        mf = (qk_mfmas(j + 1) if j + 1 < 64 else [None] * 32) + pv_mfmas(j)
        if j % 2 == 0:
            tags = '+'.join([f'V{j}', f'V{j + 1}', f'K{j + 2}', f'K{j + 3}'])
            G.sc[0] += [f'WAITVM {tags} lg0', 's_barrier']
        for i, g in enumerate(carry): G.v[i] += g
        last = len(carry) - 1
        p = j & 1
        if jj != 0:
            G.v[17].append(f'v_max3_f32 v{CT}, v{Lr(p, 0)}, v{Lr(p, 1)}, v{Lr(p, 2)}')
            G.v[last].append(f'v_max_f32 v{CT}, v{CT}, v{Lr(p, 3)}')
            G.v[last].append(f'v_cmp_lt_f32 vcc, s{sTHR}, v{CT}')
            G.sc[last + 1] += [f's_cbranch_vccnz L_st{j}', f'L_bk{j}:']
            stubs.append(j)
        if j + 1 < 64:
            st = softmax_stream(j + 1, range(4))
            if (j + 1) & 31:
                for i, g in enumerate(st[:32 + SH]): G.v[32 - SH + i] += g
            else:
                fl = init_stream(j + 1) + [x for g in st[:32 + SH] for x in g]
                for i, x in enumerate(fl): G.v[34 + (i * 30) // len(fl)].append(x)
            carry = st[32 + SH:]
        vg = sorted([3 + 4 * i for i in range(8)] + [4 + 4 * i for i in range(8)])
        for r, g in zip(v_reads(j), vg): G.mem[g].append(r)
        if j + 2 < 64:
            for r, g in zip(k_reads(j + 2), [35, 36, 39, 40, 43, 47, 51, 55]): G.mem[g].append(r)
        jobs = []
        if j + 8 < 64: jobs += dma_kv('K', j + 8)
        if j + 6 < 64: jobs += dma_kv('V', j + 6)
        G.place_dma(jobs, [46, 50, 59, 63][:len(jobs)])
        if j in (60, 61):
            ns = range(0, 4) if j == 60 else range(4, 9)
            jobs = []
            for n in ns:
                pre = [f's_mul_i32 s{sT0}, s{sW}, 9216', f's_add_u32 s{sT0}, s{sT0}, {(n // 4) * 4096}', f's_mov_b32 m0, s{sT0}'] if n % 4 == 0 else []
                jobs.append((pre, Ins(f'buffer_load_dwordx4 v{VOFFO}, {srd(SWS)}, s{sT0} offen offset:{(n % 4) * 1024} lds', 'WO')))
            G.place_dma(jobs, [44, 48, 52, 56, 62][:len(jobs)])
        A.extend(G.weave(mf))
        if jj == 31:
            stamp(A, 6 + 2 * (j >> 5))
            epilogue(A, j >> 5)
            stamp(A, 7 + 2 * (j >> 5))
    A('WAITVM WO\ns_barrier')
    A(f'''v_lshrrev_b32 v1, 6, v0
v_bfe_u32 v2, v0, 2, 4
v_mul_u32_u24 v2, 1152, v2
v_mul_u32_u24 v3, 288, v1
v_add_u32 v2, v2, v3
v_and_b32 v3, 3, v0
v_lshl_add_u32 v2, v3, 3, v2''')
    for n in range(9):
        for s in range(2): A(f'ds_read_b64_tr_b16 v[{64 + 4 * n + 2 * s}:{64 + 4 * n + 2 * s + 1}], v2 offset:{n * 32 + s * 16 * 1152}')
    A(f's_mul_i32 s{sT0}, s{sW}, 9216')
    for n in range(9):
        if n in (4, 8): A(f's_add_u32 s{sT0}, s{sT0}, 4096')
        A(f'buffer_store_dwordx4 v[{64 + 4 * n}:{64 + 4 * n + 3}], v{VOFFO}, {srd(SWD)}, s{sT0} offen offset:{(n % 4) * 1024} {OPT["o_store"]}'.rstrip())
    if OPT['stamps']:
        A('s_waitcnt vmcnt(0)')
        stamp(A, 10)
        A('s_memrealtime s[62:63]\ns_waitcnt lgkmcnt(0)')
        A('v_lshrrev_b32 v1, 6, v0\ns_lshl_b32 s50, s2, 2\nv_add_u32 v1, s50, v1\nv_lshlrev_b32 v1, 7, v1')
        A('v_and_b32 v2, 63, v0\nv_cmp_eq_u32 vcc, 0, v2\ns_and_saveexec_b64 s[50:51], vcc')
        for i in range(7):
            for k in range(4): A(f'v_mov_b32 v{4 + k}, s{60 + i * 4 + k}')
            A(f'buffer_store_dwordx4 v[4:7], v1, s[56:59], 0 offen offset:{i * 16}')
            A('s_nop 1')
    A('L_k1_end:\ns_endpgm')
    A.resolve_waits()
    rep = []
    n = A.fix_hazards(rep)
    B = Prog()
    for j in stubs:
        B(f'L_st{j}:\ns_mov_b32 s{sMODE}, {1 if (j & 31) == 31 else 0}\ns_call_b64 s[{sRET}:{sRET + 1}], L_fb{j & 1}\ns_branch L_bk{j}')
    return A, B, rep

def gen_k2():
    A = Prog()
    A('s_cmp_ge_u32 s2, 256\ns_cbranch_scc1 L_k2_end')
    if OPT['stamps']: A('s_memrealtime s[60:61]')
    stamp(A, 0)
    A('s_load_dwordx2 s[4:5], s[0:1], 96\ns_load_dwordx2 s[12:13], s[0:1], 80')
    A('''s_and_b32 s20, s2, 7
s_lshr_b32 s21, s2, 3
s_lshl_b32 s20, s20, 3
s_lshr_b32 s22, s21, 2
s_add_u32 s20, s20, s22
s_and_b32 s21, s21, 3
s_lshr_b32 s22, s20, 5
v_lshrrev_b32 v1, 6, v0
v_and_b32 v2, 63, v0
v_readfirstlane_b32 s23, v1
v_lshlrev_b32 v4, 4, v2
v_add_u32 v5, 0x1000, v4
v_add_u32 v6, 0x2000, v4
s_waitcnt lgkmcnt(0)''')
    A(f'''s_lshl_b32 s24, s22, 7
s_lshl_b32 s25, s23, 5
s_add_u32 s24, s24, s25
s_mul_i32 s24, s24, 36864
s_mul_i32 s25, s21, 9216
s_add_u32 s24, s24, s25
s_add_u32 s24, s24, {WS_WO}
s_add_u32 s8, s4, s24
s_addc_u32 s9, s5, 0
s_mov_b32 s10, {31 * 36864 + 9216}
s_mov_b32 s11, 0x20000''')
    if OPT['stamps']:
        A(f's_add_u32 s56, s4, {WS_STAMP + (1 << 18)}\ns_addc_u32 s57, s5, 0\ns_mov_b32 s58, 0x100000\ns_mov_b32 s59, 0x20000')
    A('''s_lshl_b32 s24, s20, 19
s_lshl_b32 s25, s23, 17
s_add_u32 s24, s24, s25
s_add_u32 s4, s4, s24
s_addc_u32 s5, s5, 0
s_mov_b32 s6, 0x20000
s_mov_b32 s7, 0x20000''')
    NB = 4
    def OFr(t, m): return 16 + (t % NB) * 52 + m * 4
    def WFr(t, n): return 16 + (t % NB) * 52 + 16 + n * 4
    def ldo(t, m): return f'buffer_load_dwordx4 v[{OFr(t, m)}:{OFr(t, m) + 3}], v4, s[4:7], s26 offen offset:{m * 1024} {OPT["k2_o"]}'.rstrip()
    def ldw(t, n): return f'buffer_load_dwordx4 v[{WFr(t, n)}:{WFr(t, n) + 3}], v{4 + n // 4}, s[8:11], s27 offen offset:{(n % 4) * 1024} {OPT["k2_w"]}'.rstrip()
    for t in range(NB):
        A(f's_mov_b32 s26, {t * 4096}\ns_mov_b32 s27, {t * 36864}')
        for m in range(4): A(ldo(t, m))
        for n in range(9): A(ldw(t, n))
    A(f'''s_and_b32 s24, s20, 31
s_mul_i32 s24, s24, {64 * 2304}
s_mul_i32 s25, s22, 1152
s_add_u32 s24, s24, s25
s_mul_i32 s25, s21, 288
s_add_u32 s24, s24, s25
s_add_u32 s12, s12, s24
s_addc_u32 s13, s13, 0
s_mov_b32 s14, {63 * 2304 + 288}
s_mov_b32 s15, 0x20000''')
    stamp(A, 1)
    for t in range(32):
        mf = [mfma(f'a{(n * 4 + m) * 4}', f'v{WFr(t, n)}', f'v{OFr(t, m)}', '0' if t == 0 else f'a{(n * 4 + m) * 4}') for n in range(9) for m in range(4)]
        G = Gaps(36)
        if t + NB < 32:
            G.sc[1].append(f's_mov_b32 s27, {(t + NB) * 36864}')
            G.sc[29].append(f's_mov_b32 s26, {(t + NB) * 4096}')
            for n in range(8): G.mem[4 * n + 4].append(ldw(t + NB, n))
            for m in range(3): G.mem[33 + m].append(ldo(t + NB, m))
            G.mem[35].append(ldo(t + NB, 3)); G.mem[35].append(ldw(t + NB, 8))
        A.extend(G.weave(mf))
    stamp(A, 2)
    A('v_mul_u32_u24 v7, 36864, v1\nv_add_u32 v7, v7, v4')
    for i in range(36):
        A(f'ds_write_b128 v7, a[{i * 4}:{i * 4 + 3}] offset:{i * 1024}')
    for k in range(5):
        b = 16 + k * 4
        A(f'v_add_u32 v8, {256 * k}, v0')
        A('v_mul_u32_u24 v9, 3641, v8\nv_lshrrev_b32 v9, 16, v9')
        A('v_mul_u32_u24 v10, 18, v9\nv_sub_u32 v10, v8, v10')
        A(f'v_mul_u32_u24 v{b + 1}, 2304, v9\nv_lshl_add_u32 v{b + 1}, v10, 4, v{b + 1}')
        A('v_lshrrev_b32 v11, 1, v10\nv_lshlrev_b32 v11, 12, v11')
        A('v_lshrrev_b32 v12, 4, v9\nv_lshl_add_u32 v11, v12, 10, v11')
        A('v_and_b32 v12, 1, v10\nv_lshl_add_u32 v11, v12, 9, v11')
        A(f'v_and_b32 v12, 15, v9\nv_lshl_add_u32 v{b}, v12, 4, v11')
        A(f'v_add_u32 v{b + 2}, {2 * 36864}, v{b}')
    A('s_waitcnt lgkmcnt(0)\ns_barrier')
    for k in range(5):
        b = 16 + k * 4; d = 40 + k * 32
        if k == 4:
            A('v_cmp_gt_u32 vcc, 128, v0\ns_and_saveexec_b64 s[30:31], vcc\ns_cbranch_execz L_k2_skip')
        for w in range(4):
            for hh in range(2):
                A(f'ds_read_b128 v[{d + w * 8 + hh * 4}:{d + w * 8 + hh * 4 + 3}], v{b + (w >> 1) * 2} offset:{(w & 1) * 36864 + hh * 256}')
        if k == 4 or k == 3:
            for kk in ([0, 1, 2, 3] if k == 3 else [4]):
                bb = 16 + kk * 4; dd = 40 + kk * 32
                for i in range(8): A(f'v_add_f32 v{dd + i}, v{dd + i}, v{dd + 8 + i}')
                for i in range(8): A(f'v_add_f32 v{dd + 16 + i}, v{dd + 16 + i}, v{dd + 24 + i}')
                for i in range(8): A(f'v_add_f32 v{dd + i}, v{dd + i}, v{dd + 16 + i}')
                for i in range(4): A(f'v_cvt_pk_bf16_f32 v{dd + 8 + i}, v{dd + 2 * i}, v{dd + 2 * i + 1}')
                A(f'buffer_store_dwordx4 v[{dd + 8}:{dd + 11}], v{bb + 1}, s[12:15], 0 offen')
    A('L_k2_skip:')
    if OPT['stamps']:
        A('s_mov_b64 exec, -1\ns_waitcnt vmcnt(0)')
        stamp(A, 3)
        A('s_memrealtime s[62:63]\ns_waitcnt lgkmcnt(0)')
        A('v_lshrrev_b32 v1, 6, v0\ns_lshl_b32 s50, s2, 2\nv_add_u32 v1, s50, v1\nv_lshlrev_b32 v1, 7, v1')
        A('v_and_b32 v2, 63, v0\nv_cmp_eq_u32 vcc, 0, v2\ns_and_saveexec_b64 s[50:51], vcc')
        for i in range(3):
            for k in range(4): A(f'v_mov_b32 v{4 + k}, s{60 + i * 4 + k}')
            A(f'buffer_store_dwordx4 v[4:7], v1, s[56:59], 0 offen offset:{i * 16}')
            A('s_nop 1')
    A('L_k2_end:\ns_endpgm')
    A.resolve_waits()
    rep = []
    A.fix_hazards(rep)
    return A, rep

def build(path):
    A, B, rep = gen_k1()
    K2, rep2 = gen_k2()
    hdr = open('cdna_kernels/' + NAME + '.s.ref').read().split('; Override launch')[0]
    t = hdr + '; @launch kernel=attn_kernel grid=(256,1,1) block=(256,1,1) lds=163840\n; @launch kernel=oproj_kernel grid=(256,1,1) block=(256,1,1) lds=147456\n'
    t += '.amdgcn_target "amdgcn-amd-amdhsa--gfx950"\n.text\n' + MACROS
    t += prolog('attn_kernel') + A.text() + B.text() + fallback(0).text() + fallback(1).text()
    t += prolog('oproj_kernel') + K2.text()
    t += kd('attn_kernel', 512, 96, 256) + kd('oproj_kernel', 512, 96, 256)
    open(path, 'w').write(t)
    return rep, rep2, len(t)

if __name__ == '__main__':
    path = sys.argv[1]
    for kv in sys.argv[2:]:
        k, v = kv.split('=')
        OPT[k] = (v == '1') if isinstance(OPT.get(k), bool) else v
    rep, rep2, n = build(path)
    print('bytes', n, 'pads k1', len(rep), 'k2', len(rep2))
    from collections import Counter
    print(Counter((a, b.split()[0]) for a, b in rep).most_common(20))
    print(Counter((a, b.split()[0]) for a, b in rep2).most_common(20))
```

```python
import re

_REG = re.compile(r'^-?(?:abs\()?([vas])(?:(\d+)|\[(\d+):(\d+)\])\)?$')
def regs_of(tok):
    tok = tok.strip()
    m = _REG.match(tok)
    if m:
        f = m.group(1)
        if m.group(2) is not None:
            return [(f, int(m.group(2)))]
        return [(f, i) for i in range(int(m.group(3)), int(m.group(4)) + 1)]
    if tok == 'vcc': return [('s', 'vcc')]
    if tok == 'm0': return [('s', 'm0')]
    if tok == 'exec': return [('s', 'exec')]
    return []

TRANS = ('v_exp_f32', 'v_rcp_f32', 'v_log_f32', 'v_rsq_f32', 'v_sqrt_f32')
class Ins:
    __slots__ = ('text', 'mn', 'kind', 'rd', 'wr', 'tag', 'srcC', 'srcAB', 'meta')
    def __init__(self, text, tag=None, meta=None):
        self.text = text; self.tag = tag; self.meta = meta
        self.srcC = set(); self.srcAB = set()
        t = text.split(';')[0].strip()
        if t.endswith(':'):
            self.mn = 'label'; self.kind = 'label'; self.rd = set(); self.wr = set(); return
        if t.startswith('.'):
            self.mn = 'dir'; self.kind = 'dir'; self.rd = set(); self.wr = set(); return
        parts = t.split(None, 1)
        mn = parts[0]; self.mn = mn
        ops = []
        if len(parts) > 1:
            ops = [o.strip() for o in parts[1].split(',')]
            last = ops[-1].split()
            mods = last[1:]
            ops[-1] = last[0] if last else ''
        else:
            mods = []
        R = [regs_of(o) for o in ops]
        rd = set(); wr = set()
        if mn.startswith('v_mfma'):
            self.kind = 'mfma'; wr.update(R[0]); rd.update(R[1] + R[2] + R[3])
            self.srcAB = set(R[1] + R[2]); self.srcC = set(R[3])
        elif mn.startswith('v_cmp'):
            self.kind = 'valu'; wr.update(R[0]); rd.update(sum(R[1:], []))
        elif mn.startswith('v_permlane') and 'swap' in mn:
            self.kind = 'valu'; wr.update(R[0] + R[1]); rd.update(R[0] + R[1])
        elif mn.startswith('v_'):
            self.kind = 'trans' if mn.replace('_e32', '').replace('_e64', '') in TRANS else 'valu'
            wr.update(R[0]); rd.update(sum(R[1:], []))
            if mn.startswith('v_cndmask') and len(ops) == 3: rd.add(('s', 'vcc'))
        elif mn.startswith('ds_read'):
            self.kind = 'dsr'; wr.update(R[0]); rd.update(R[1])
        elif mn.startswith('ds_write'):
            self.kind = 'dsw'; rd.update(sum(R, []))
        elif mn.startswith('buffer_load'):
            if 'lds' in mods:
                self.kind = 'dma'; rd.update(sum(R, [])); rd.add(('s', 'm0'))
            else:
                self.kind = 'vld'; wr.update(R[0]); rd.update(sum(R[1:], []))
        elif mn.startswith('global_load'):
            self.kind = 'vld'; wr.update(R[0]); rd.update(sum(R[1:], []))
        elif mn.startswith('buffer_store') or mn.startswith('buffer_atomic'):
            self.kind = 'vst'; rd.update(sum(R, []))
        elif mn in ('s_waitcnt', 's_nop', 's_barrier', 's_endpgm', 's_setprio', 's_sleep', 'WAITVM', 'WAITLG'):
            self.kind = {'s_waitcnt': 'wait', 's_nop': 'nop', 's_barrier': 'barrier', 'WAITVM': 'waitvm', 'WAITLG': 'waitlg'}.get(mn, 'smisc')
        elif mn.startswith('s_cbranch') or mn in ('s_branch', 's_setpc_b64', 's_call_b64'):
            self.kind = 'branch'
            if 'vcc' in mn: rd.add(('s', 'vcc'))
        elif mn.startswith('s_cmp'):
            self.kind = 'salu'; rd.update(sum(R, []))
        elif mn.startswith('s_load') or mn.startswith('s_mem'):
            self.kind = 'smem'; wr.update(R[0]); rd.update(sum(R[1:], []))
        elif mn.startswith('s_'):
            self.kind = 'salu'; wr.update(R[0]); rd.update(sum(R[1:], []))
        else:
            raise ValueError('unknown instr: ' + text)
        self.rd = rd; self.wr = wr
    def states(self):
        if self.kind in ('label', 'dir'): return 0
        if self.kind == 'nop': return int(self.text.split()[1]) + 1
        return 1

def isv(r): return r[0] in ('v', 'a')

class Prog:
    def __init__(self):
        self.L = []
    def __call__(self, text, tag=None, meta=None):
        for line in text.strip().split('\n'):
            line = line.strip()
            if line: self.L.append(Ins(line, tag, meta))
    def add(self, ins): self.L.append(ins)
    def extend(self, lst):
        for x in lst:
            if isinstance(x, Ins): self.L.append(x)
            else: self(x)

    def resolve_waits(self, hoist=True):
        out = []
        lg = []
        vm = []
        def emit_wait(vmn=None, lgn=None, consumer=None):
            nonlocal lg, vm
            parts = []
            if vmn is not None: vmn = min(vmn, 62); parts.append(f'vmcnt({vmn})')
            if lgn is not None: lgn = min(lgn, 14); parts.append(f'lgkmcnt({lgn})')
            w = Ins('s_waitcnt ' + ' '.join(parts))
            if vmn is not None: vm = vm[len(vm) - vmn:] if vmn > 0 else []
            if lgn is not None: lg = lg[len(lg) - lgn:] if lgn > 0 else []
            return w
        for ins in self.L:
            if ins.kind == 'waitvm':
                toks = ins.text.split()
                tags = toks[1].split('+')
                idx = -1
                for i, o in enumerate(vm):
                    if o.tag in tags: idx = i
                vmn = len(vm) - 1 - idx if idx >= 0 else None
                lgn = 0 if ('lg0' in toks and lg) else None
                if vmn is not None or lgn is not None:
                    out.append(emit_wait(vmn, lgn))
                continue
            if ins.kind == 'waitlg':
                tags = ins.text.split()[1].split('+')
                idx = -1
                for i, o in enumerate(lg):
                    if o.tag in tags: idx = i
                if idx >= 0:
                    out.append(emit_wait(None, len(lg) - 1 - idx))
                continue
            if ins.kind == 'wait':
                m = re.search(r'vmcnt\((\d+)\)', ins.text)
                if m:
                    n = int(m.group(1)); vm = vm[len(vm) - n:] if 0 < n < len(vm) else ([] if n == 0 else vm)
                m = re.search(r'lgkmcnt\((\d+)\)', ins.text)
                if m:
                    n = int(m.group(1)); lg = lg[len(lg) - n:] if 0 < n < len(lg) else ([] if n == 0 else lg)
                out.append(ins); continue
            touched = ins.rd | ins.wr
            li = -1
            for i, o in enumerate(lg):
                if o.wr & touched: li = i
            vi = -1
            for i, o in enumerate(vm):
                if o.wr & touched: vi = i
            if li >= 0 or vi >= 0:
                pos = len(out)
                lgn = len(lg) - 1 - li if li >= 0 else None
                vmn = len(vm) - 1 - vi if vi >= 0 else None
                if hoist and ins.kind == 'mfma':
                    k = len(out) - 1; nl = 0; nv = 0; ok = True
                    while k >= 0 and out[k].kind != 'mfma':
                        o = out[k]
                        if o.kind in ('label', 'branch', 'barrier', 'wait') or (o.kind == 'dir' and not o.text.startswith('.mark')): ok = False; break
                        if (li >= 0 and o is lg[li]) or (vi >= 0 and o is vm[vi]): ok = False; break
                        if o.kind in ('dsr', 'dsw'): nl += 1
                        if o.kind in ('dma', 'vld', 'vst'): nv += 1
                        k -= 1
                    if ok and k >= 0 and len(out) - 1 - k <= 6 and (k + 1 >= len(out) or out[k + 1].kind not in ('salu', 'wait', 'smisc', 'nop')):
                        parts = []
                        if vmn is not None: vmn = min(vmn - nv, 62) + nv; parts.append(f'vmcnt({vmn - nv})')
                        if lgn is not None: lgn = min(lgn - nl, 14) + nl; parts.append(f'lgkmcnt({lgn - nl})')
                        out.insert(k + 1, Ins('s_waitcnt ' + ' '.join(parts)))
                        if vmn is not None: vm = vm[len(vm) - vmn:] if vmn > 0 else []
                        if lgn is not None: lg = lg[len(lg) - lgn:] if lgn > 0 else []
                    else:
                        out.append(emit_wait(vmn, lgn))
                else:
                    out.append(emit_wait(vmn, lgn))
            if ins.kind in ('dsr', 'dsw'): lg.append(ins)
            if ins.kind in ('dma', 'vld', 'vst'): vm.append(ins)
            if ins.kind == 'smem': raise_smem = True
            out.append(ins)
        self.L = out

    def fix_hazards(self, report=None):
        out = []
        npad = 0
        for ins in self.L:
            need = 0
            if ins.kind not in ('label', 'dir', 'nop', 'wait', 'barrier'):
                d = 0
                for k in range(len(out) - 1, -1, -1):
                    p = out[k]
                    if d >= 12: break
                    req = 0
                    pv = p.kind in ('valu', 'trans')
                    iv = ins.kind in ('valu', 'trans')
                    if p.kind == 'mfma':
                        D = p.wr
                        if ins.kind == 'mfma':
                            if D & ins.srcAB: req = max(req, 8)
                            if D & ins.srcC and ins.srcC != D: req = max(req, 6)
                            if D & ins.wr and ins.srcC != D: req = max(req, 6)
                        elif iv:
                            if D & (ins.rd | ins.wr): req = max(req, 8)
                            if p.srcC & ins.wr: req = max(req, 3)
                        elif ins.kind in ('dsr', 'dsw', 'vld', 'vst', 'dma'):
                            if D & (ins.rd | ins.wr): req = max(req, 8)
                    if pv:
                        vw = {r for r in p.wr if isv(r)}
                        sw = {r for r in p.wr if not isv(r)}
                        if ins.kind == 'mfma' and vw & ins.rd: req = max(req, 2)
                        if p.kind == 'trans' and iv and ins.kind != 'trans' and vw & ins.rd: req = max(req, 1)
                        if p.kind == 'trans' and ins.kind == 'trans' and vw & ins.rd: req = max(req, 1)
                        if ins.mn.startswith('v_permlane') and vw & ins.rd: req = max(req, 2)
                        if ins.mn.startswith(('v_readfirstlane', 'v_readlane')) and vw & ins.rd: req = max(req, 1)
                        if 'dpp' in ins.text and vw & ins.rd: req = max(req, 2)
                        if iv and sw & ins.rd: req = max(req, 2)
                        if ins.kind in ('vld', 'vst', 'dma') and sw & ins.rd: req = max(req, 5)
                        if ins.kind in ('salu', 'branch') and sw & ins.rd: req = max(req, 1)
                    if p.kind == 'salu' and ('s', 'm0') in p.wr and ins.kind == 'dma': req = max(req, 1)
                    if p.kind == 'vst' and ('x4' in p.mn or 'x3' in p.mn):
                        if {r for r in p.rd if isv(r)} & ins.wr: req = max(req, 2)
                    if p.kind == 'dsw' and False: pass
                    if req > d: need = max(need, req - d)
                    d += p.states()
            if need > 0:
                out.append(Ins(f's_nop {need - 1}')); npad += 1
                if report is not None: report.append((need, ins.text))
            out.append(ins)
        self.L = out
        return npad

    def text(self, macros=True):
        lines = []
        for i in self.L:
            lines.append(compact(i.text) if macros else i.text)
        return '\n'.join(lines) + '\n'

MACROS = r"""
.macro MV d,a,b,c
v_mfma_f32_16x16x32_bf16 v[\d:\d+3],v[\a:\a+3],a[\b:\b+3],v[\c:\c+3]
.endm
.macro MA d,a,b
v_mfma_f32_16x16x32_bf16 a[\d:\d+3],v[\a:\a+3],v[\b:\b+3],a[\d:\d+3]
.endm
.macro MQV d,a,b
v_mfma_f32_16x16x32_bf16 v[\d:\d+3],a[\a:\a+3],a[\b:\b+3],v[\d:\d+3]
.endm
.macro MQA d,a,b
v_mfma_f32_16x16x32_bf16 a[\d:\d+3],a[\a:\a+3],a[\b:\b+3],a[\d:\d+3]
.endm
.macro TR d,a,o
ds_read_b64_tr_b16 v[\d:\d+1],v\a offset:\o
.endm
.macro TRA d,a,o
ds_read_b64_tr_b16 a[\d:\d+1],v\a offset:\o
.endm
.macro RD d,a,o
ds_read_b128 v[\d:\d+3],v\a offset:\o
.endm
.macro CV d,a,b
v_cvt_pk_bf16_f32 v\d,v\a,v\b
.endm
"""
_P = [
 (re.compile(r'^v_mfma_f32_16x16x32_bf16 v\[(\d+):\d+\], v\[(\d+):\d+\], a\[(\d+):\d+\], v\[(\d+):\d+\]$'), lambda m: f'MV {m[1]},{m[2]},{m[3]},{m[4]}'),
 (re.compile(r'^v_mfma_f32_16x16x32_bf16 a\[(\d+):\d+\], v\[(\d+):\d+\], v\[(\d+):\d+\], a\[(\d+):\d+\]$'), lambda m: f'MA {m[1]},{m[2]},{m[3]}' if m[1] == m[4] else None),
 (re.compile(r'^v_mfma_f32_16x16x32_bf16 v\[(\d+):\d+\], a\[(\d+):\d+\], a\[(\d+):\d+\], v\[(\d+):\d+\]$'), lambda m: f'MQV {m[1]},{m[2]},{m[3]}' if m[1] == m[4] else None),
 (re.compile(r'^v_mfma_f32_16x16x32_bf16 a\[(\d+):\d+\], a\[(\d+):\d+\], a\[(\d+):\d+\], a\[(\d+):\d+\]$'), lambda m: f'MQA {m[1]},{m[2]},{m[3]}' if m[1] == m[4] else None),
 (re.compile(r'^ds_read_b64_tr_b16 v\[(\d+):\d+\], v(\d+) offset:(\d+)$'), lambda m: f'TR {m[1]},{m[2]},{m[3]}'),
 (re.compile(r'^ds_read_b64_tr_b16 a\[(\d+):\d+\], v(\d+) offset:(\d+)$'), lambda m: f'TRA {m[1]},{m[2]},{m[3]}'),
 (re.compile(r'^ds_read_b128 v\[(\d+):\d+\], v(\d+) offset:(\d+)$'), lambda m: f'RD {m[1]},{m[2]},{m[3]}'),
 (re.compile(r'^v_cvt_pk_bf16_f32 v(\d+), v(\d+), v(\d+)$'), lambda m: f'CV {m[1]},{m[2]},{m[3]}'),
]
def compact(t):
    for rx, f in _P:
        m = rx.match(t)
        if m:
            r = f(m)
            if r: return r
    return t.replace(', ', ',')

def mfma(d, a, b, c):
    def rg(x): return f'{x[0]}[{int(x[1:])}:{int(x[1:]) + 3}]'
    return f'v_mfma_f32_16x16x32_bf16 {rg(d)}, {rg(a)}, {rg(b)}, {"0" if c == "0" else rg(c)}'

def weave(mf, gaps):
    out = []
    for i, m in enumerate(mf):
        out.append(m)
        out.extend(gaps.get(i, []))
    return out


def split_marks(L):
    out = [('_start', [])]
    for i in L:
        if i.kind == 'dir' and i.text.startswith('.mark'):
            out.append((i.text.split()[1], []))
        else:
            out[-1][1].append(i)
    return out

def _wparse(t):
    vm = re.search(r'vmcnt\((\d+)\)', t); lg = re.search(r'lgkmcnt\((\d+)\)', t)
    return (int(vm.group(1)) if vm else None, int(lg.group(1)) if lg else None)
def _wmerge(a, b):
    r = []
    for x, y in zip(a, b):
        r.append(y if x is None else (x if y is None else min(x, y)))
    return tuple(r)
def _wtext(w):
    parts = []
    if w[0] is not None: parts.append(f'vmcnt({w[0]})')
    if w[1] is not None: parts.append(f'lgkmcnt({w[1]})')
    return 's_waitcnt ' + ' '.join(parts)

def merge_segments(segs):
    def canon(seg):
        core = []; pre = []; w = None; nop = 0
        for i in seg:
            if i.kind == 'wait':
                w = _wparse(i.text) if w is None else _wmerge(w, _wparse(i.text))
            elif i.kind == 'nop':
                nop += i.states()
            else:
                core.append(i); pre.append((w, nop)); w = None; nop = 0
        pre.append((w, nop))
        return core, pre
    cs = [canon(s) for s in segs]
    core0 = cs[0][0]
    for c, _ in cs[1:]:
        assert len(c) == len(core0), (len(c), len(core0))
        for a, b in zip(core0, c):
            assert a.text == b.text, (a.text, b.text)
    out = []
    for k in range(len(core0) + 1):
        w = None; nop = 0
        for _, pre in cs:
            pw, pn = pre[k]
            if pw is not None: w = pw if w is None else _wmerge(w, pw)
            nop = max(nop, pn)
        if w is not None: out.append(Ins(_wtext(w)))
        if nop: out.append(Ins(f's_nop {nop - 1}'))
        if k < len(core0): out.append(core0[k])
    return out
```

```python
import sys, math, struct
from common import *
from asmlib import *

OPT = dict(nt_kv='nt', nt_x='', nt_w='nt', o_store='', stamps=False, k2_o='', k2_w='', cpf=True,
           nodma=False, nobar=False, dbgs=False, early=True, map='q', q_nodma=False, q_nods=False, q_nobar=False, a_nods='', tl=False, noswz=False)
WS_O = 0
WS_WO = 33554432
WS_STAMP = 64 << 20
SCALE = math.log2(math.e) / math.sqrt(128.0)
def f2i(x): return struct.unpack('<I', struct.pack('<f', x))[0]

SK, SV, SX, SWE, SO, SWS, SWD, SWO = 4, 8, 12, 16, 20, 24, 28, 88
sW, sW2K, sW4K, sT0, sSC, sTHR, sRET, sMODE = 32, 33, 34, 35, 38, 40, 42, 44
sKo, sVo, sXo, sWe, sWo, sInc, sCnt, sHead, sOo = 36, 37, 41, 45, 92, 93, 94, 95, 96
def srd(n): return f's[{n}:{n+3}]'
KADDR, VADDR, VOFFK, VOFFV, LREG, ETMP, CT, NEGM = 4, 8, 16, 18, 20, 28, 40, 44
VOFFO = 60
KF, VF, SB, PB, EP = 64, 96, 128, 192, 224
NE = 12
def S(p, kt, qt): return SB + p * 32 + (kt * 4 + qt) * 4
def P(p, qt): return PB + p * 16 + qt * 4
def Lr(p, qt): return LREG + p * 4 + qt
def O(T, qt): return (T * 4 + qt) * 4
def Q(h, qt, u): return 128 + h * 64 + (qt * 4 + u) * 4
WADDR, XADDR, VOFFWE, VOFFWO, VOFFX, VSWE, VSWO = 64, 80, 84, 92, 88, 20, 24
def QACC(h, T, qt): return (f'v{128 + (T * 4 + qt) * 4}' if h == 0 else f'a{(T * 4 + qt) * 4}')
def XF(par, qt): return 128 + par * 16 + qt * 4
def WF(slot): return 160 + slot * 4
BLK = 16384
def wblock(t): return (4 + (t >> 1) % 3) if t % 2 == 0 else (1 + (t >> 1) % 3)
def xblock(t): return 7 + t % 3
def cl(s): return ' '.join(s.split())

def dma_kv(which, tile):
    base = (0 if which == 'K' else 65536) + (tile % 8) * 8192
    s, vo, so = (SK, VOFFK, sKo) if which == 'K' else (SV, VOFFV, sVo)
    tag = f'{which}{tile}'; nt = OPT['nt_kv']
    return [([f's_add_u32 m0, s{sW2K}, {base}'], Ins(cl(f'buffer_load_dwordx4 v{vo}, {srd(s)}, s{so} offen {nt} lds'), tag), []),
            ([], Ins(cl(f'buffer_load_dwordx4 v{vo + 1}, {srd(s)}, s{so} offen offset:1024 {nt} lds'), tag), [f's_add_u32 s{so}, s{so}, 8192'])]
def dma_w(t):
    if t < 18:
        s, vo, off, tag, nt = SWE, VOFFWE, t * 32 * 8192, f'W{t}', OPT['nt_w']
    elif t % 2 == 0:
        s, vo, off, tag, nt = SV, VSWE, (t - 18) // 2 * 16384, f'VV{(t - 18) // 2}', OPT['nt_kv']
    else:
        s, vo, off, tag, nt = SK, VSWO, ((t - 18) // 2 + 1) * 16384, f'KK{(t - 18) // 2 + 1}', OPT['nt_kv']
    blk = wblock(t)
    if t == 99: s, vo, off, tag, nt, blk = SK, VSWO, 0, 'KK0', OPT['nt_kv'], 0
    return [([f's_mov_b32 s{sWe}, {off}', f's_add_u32 m0, s{sW4K}, {blk * BLK}'] if n == 0 else [],
             Ins(cl(f'buffer_load_dwordx4 v{vo + n}, {srd(s)}, s{sWe} offen offset:{n * 1024} {nt} lds'), tag), []) for n in range(4)]
def dma_x(t):
    return [([f's_mov_b32 s{sXo}, {t * 64}', f's_add_u32 m0, s{sW4K}, {xblock(t) * BLK}'] if n == 0 else [],
             Ins(cl(f'buffer_load_dwordx4 v{VOFFX + n}, {srd(SX)}, s{sXo} offen offset:{n * 1024} {OPT["nt_x"]} lds'), f'X{t}'), []) for n in range(4)]
def flat(dl):
    out = []
    for pre, ins, post in dl: out += pre + [ins] + post
    return out

class Gaps:
    def __init__(self, n):
        self.n = n; self.sc = [[] for _ in range(n + 1)]; self.mem = [[] for _ in range(n)]; self.v = [[] for _ in range(n)]
    def place_dma(self, dl, gaps):
        for (pre, ins, post), g in zip(dl, gaps):
            for k, s in enumerate(pre): self.sc[g - len(pre) + k].append(s)
            self.mem[g].append(ins)
            for k, s in enumerate(post): self.sc[g + 1 + k].append(s)
    def weave(self, mf):
        out = []
        for i in range(self.n):
            if i < len(mf) and mf[i] is not None: out.append(mf[i])
            out += self.sc[i] + self.mem[i] + self.v[i]
        out += self.sc[self.n]
        return out

def k_reads(tile):
    return [Ins(f'ds_read_b128 v[{KF + (kt * 4 + u) * 4}:{KF + (kt * 4 + u) * 4 + 3}], v{KADDR + u} offset:{(tile % 8) * 8192 + kt * 4096}', f'rK{tile}')
            for kt in range(2) for u in range(4)]
def v_reads(tile):
    return [Ins(f'ds_read_b64_tr_b16 v[{VF + T * 4 + s * 2}:{VF + T * 4 + s * 2 + 1}], v{VADDR + T} offset:{(tile % 8) * 8192 + s * 4096}', f'rV{tile}')
            for T in range(8) for s in range(2)]
def qk_mfmas(j):
    h = 1 if j == 32 else 0
    p = j & 1; first = (j & 31) == 0
    out = []
    for kt in range(2):
        for u in range(4):
            for qt in range(4):
                c = f'v{S(p, kt, qt)}' if u else ('0' if first else f'v{NEGM + qt * 4}')
                out.append(mfma(f'v{S(p, kt, qt)}', f'v{KF + (kt * 4 + u) * 4}', f'a{Q(h, qt, u)}', c))
    return out
def pv_mfmas(j):
    p = j & 1; first = (j & 31) == 0
    return [mfma(f'a{O(T, qt)}', f'v{VF + T * 4}', f'v{P(p, qt)}', '0' if first else f'a{O(T, qt)}') for T in range(8) for qt in range(4)]

def softmax_stream(j, qts):
    p = j & 1; first = (j & 31) == 0
    out = []
    for qt in qts:
        for k in range(8):
            e = ETMP + (qt * 8 + k) % NE
            src = S(p, k >> 2, qt) + (k & 3)
            out.append([f'v_exp_f32 v{e}, v{src}'])
            l = Lr(p, qt)
            if k == 0: a = f'v_mov_b32 v{l}, v{e}' if first else f'v_add_f32 v{l}, v{Lr(1 - p, qt)}, v{e}'
            else: a = f'v_add_f32 v{l}, v{l}, v{e}'
            g = [a]
            if k & 1:
                e0 = ETMP + (qt * 8 + k - 1) % NE
                g.append(f'v_cvt_pk_bf16_f32 v{P(p, qt) + (k >> 1)}, v{e0}, v{e}')
            out.append(g)
    return out
def dense(stream):
    out = []; prev = []
    for i in range(0, len(stream), 2):
        out += stream[i]; out += prev; prev = stream[i + 1] if i + 1 < len(stream) else []
    return out + prev

def rowmax(p, qt, dst):
    s0 = S(p, 0, qt); s1 = S(p, 1, qt)
    return [f'v_max3_f32 v{dst}, v{s0}, v{s0 + 1}, v{s0 + 2}', f'v_max3_f32 v{dst}, v{dst}, v{s0 + 3}, v{s1}',
            f'v_max3_f32 v{dst}, v{dst}, v{s1 + 1}, v{s1 + 2}', f'v_max_f32 v{dst}, v{dst}, v{s1 + 3}']
def xlane(op, regs, tmps):
    out = []
    for sw in ('v_permlane16_swap_b32', 'v_permlane32_swap_b32'):
        out += [f'v_mov_b32 v{t}, v{r}' for r, t in zip(regs, tmps)]
        out += [f'{sw} v{t}, v{r}' for r, t in zip(regs, tmps)]
        out += [f'{op} v{r}, v{r}, v{t}' for r, t in zip(regs, tmps)]
    return out
def init_stream(j):
    p = j & 1
    m = [EP + i for i in range(4)]; t = [EP + 4 + i for i in range(4)]
    out = []
    rm = [rowmax(p, qt, m[qt]) for qt in range(4)]
    for k in range(4): out += [rm[qt][k] for qt in range(4)]
    out += xlane('v_max_f32', m, t)
    for qt in range(4):
        for k in range(8):
            s = S(p, k >> 2, qt) + (k & 3)
            out.append(f'v_sub_f32 v{s}, v{s}, v{m[qt]}')
    for qt in range(4):
        for r in range(4): out.append(f'v_sub_f32 v{NEGM + qt * 4 + r}, 0, v{m[qt]}')
    return out

def epilogue(A):
    l = [Lr(1, qt) for qt in range(4)]
    t = [EP + i for i in range(4)]
    A.extend(xlane('v_add_f32', l, t))
    rc = [EP + 2 * i for i in range(4)]
    for qt in range(4): A(f'v_rcp_f32 v{rc[qt]}, v{l[qt]}')
    k = 0
    for u in range(4):
        for qt in range(4):
            b = EP + 8 + (k % 2) * 12; k += 1
            for i in range(8):
                A(f'v_accvgpr_read_b32 v{b + i}, a{O(2 * u + (i >> 2), qt) + (i & 3)}')
            for i in range(4):
                A(f'v_pk_mul_f32 v[{b + 2 * i}:{b + 2 * i + 1}], v[{b + 2 * i}:{b + 2 * i + 1}], v[{rc[qt]}:{rc[qt] + 1}] op_sel_hi:[1,0]')
            for i in range(4):
                A(f'v_cvt_pk_bf16_f32 v{b + 8 + i}, v{b + 2 * i}, v{b + 2 * i + 1}')
            A(cl(f'buffer_store_dwordx4 v[{b + 8}:{b + 11}], v{VOFFO}, {srd(SO)}, s{sOo} offen offset:{qt * 1024} {OPT["o_store"]}'), tag='Ost')
        A(f's_add_u32 s{sOo}, s{sOo}, 4096')

def fallback(p):
    A = Prog()
    A(f'L_fb{p}:')
    A('s_nop 7\ns_nop 7')
    m = [EP + i for i in range(4)]; t = [EP + 4 + i for i in range(4)]; f = [EP + 8 + i for i in range(4)]
    rm = [rowmax(p, qt, m[qt]) for qt in range(4)]
    for k in range(4): A.extend([rm[qt][k] for qt in range(4)])
    A.extend(xlane('v_max_f32', m, t))
    for qt in range(4): A(f'v_max_f32 v{m[qt]}, 0, v{m[qt]}')
    for qt in range(4): A(f'v_exp_f32 v{f[qt]}, -v{m[qt]}')
    for qt in range(4):
        for k in range(8):
            s = S(p, k >> 2, qt) + (k & 3)
            A(f'v_sub_f32 v{s}, v{s}, v{m[qt]}')
        for r in range(4): A(f'v_sub_f32 v{NEGM + qt * 4 + r}, v{NEGM + qt * 4 + r}, v{m[qt]}')
        A(f'v_mul_f32 v{Lr(1 - p, qt)}, v{Lr(1 - p, qt)}, v{f[qt]}')
    A(f's_cmp_lg_u32 s{sMODE}, 0')
    A(f's_cbranch_scc1 L_fb{p}_b')
    for qt in range(4):
        for k in range(8):
            s = S(1 - p, k >> 2, qt) + (k & 3)
            A(f'v_sub_f32 v{s}, v{s}, v{m[qt]}')
    A(f'L_fb{p}_b:')
    for T in range(8):
        for qt in range(4):
            b = EP + 12 + ((T * 4 + qt) % 2) * 4
            for r in range(4): A(f'v_accvgpr_read_b32 v{b + r}, a{O(T, qt) + r}')
            for r in range(4): A(f'v_mul_f32 v{b + r}, v{b + r}, v{f[qt]}')
            for r in range(4): A(f'v_accvgpr_write_b32 a{O(T, qt) + r}, v{b + r}')
    A.extend(dense(softmax_stream(2 + p, range(4))))
    A('s_nop 3')
    A(f's_setpc_b64 s[{sRET}:{sRET + 1}]')
    A.fix_hazards()
    return A

def stamp(A, idx, base=64, dbg=False):
    if OPT['dbgs'] and A is not None and getattr(A, 'k1', False) and (dbg != (idx not in (0, 10))): return
    if dbg and not OPT['dbgs']: return
    if OPT['stamps']: A(f's_memtime s[{base + idx * 2}:{base + idx * 2 + 1}]')
def store_stamps(A, n):
    A('s_memrealtime s[62:63]\ns_waitcnt lgkmcnt(0)')
    A('v_lshrrev_b32 v1, 6, v0\ns_lshl_b32 s50, s2, 2\nv_add_u32 v1, s50, v1\nv_lshlrev_b32 v1, 7, v1')
    A('v_and_b32 v2, 63, v0\nv_cmp_eq_u32 vcc, 0, v2\ns_and_saveexec_b64 s[50:51], vcc')
    for i in range(n):
        for k in range(4): A(f'v_mov_b32 v{4 + k}, s{60 + i * 4 + k}')
        A(f'buffer_store_dwordx4 v[4:7], v1, s[56:59], 0 offen offset:{i * 16}')
        A('s_nop 1')

def code_prefetch(A, start, end, va, vd, n):
    A(f's_getpc_b64 s[50:51]')
    A(f'L_pc_{start}:')
    A(f's_sub_u32 s50, s50, L_pc_{start}-{start}')
    A(f's_subb_u32 s51, s51, 0')
    A(f'v_lshlrev_b32 v{va}, 7, v0')
    for i in range(n):
        A(f'v_min_u32 v{vd + 1}, {end}-{start}-4, v{va}')
        ins = Ins(f'global_load_dword v{vd}, v{vd + 1}, s[50:51]', 'pf')
        ins.wr = set()
        A.add(ins)
        if i + 1 < n: A(f'v_add_u32 v{va}, 0x8000, v{va}')

def seg_name(j):
    jj = j & 31
    if jj == 0: return 's0'
    if j == 31: return 'sp31'
    if j == 63: return 'fin31'
    return f'r{j % 8}'

def gen_k1():
    A = Prog(); A.k1 = True
    A('s_cmp_ge_u32 s2, 256\ns_cbranch_scc1 L_k1_end')
    if OPT['cpf'] and OPT['early']: code_prefetch(A, 'attn_kernel', 'L_code_end', 61, 62, 2)
    if OPT['stamps']: A('s_memrealtime s[60:61]')
    stamp(A, 0)
    if OPT['map'] == 'o':
        A('''s_and_b32 s46, s2, 7
s_lshr_b32 s47, s2, 3
s_lshr_b32 s48, s47, 4
s_lshl_b32 s46, s46, 1
s_add_u32 s46, s46, s48
s_and_b32 s47, s47, 15''')
    else:
        A('''s_and_b32 s46, s2, 6
s_lshl_b32 s46, s46, 1
s_lshr_b32 s48, s2, 6
s_add_u32 s46, s46, s48
s_and_b32 s47, s2, 1
s_lshl_b32 s47, s47, 3
s_bfe_u32 s48, s2, 0x30003
s_add_u32 s47, s47, s48''')
    A('''s_lshr_b32 s48, s46, 3
s_and_b32 s49, s46, 7
s_mul_i32 s50, s48, 40
s_add_u32 s52, s0, s50
s_addc_u32 s53, s1, 0
s_lshr_b32 s51, s2, 7
s_mul_i32 s51, s51, 40
s_add_u32 s54, s0, s51
s_addc_u32 s55, s1, 0''')
    A(f'''s_load_dwordx2 s[{SX}:{SX+1}], s[52:53], 0
s_load_dwordx2 s[{SWE}:{SWE+1}], s[52:53], 24
s_load_dwordx2 s[{SK}:{SK+1}], s[52:53], 8
s_load_dwordx2 s[{SV}:{SV+1}], s[52:53], 16
s_load_dwordx2 s[{SWS}:{SWS+1}], s[54:55], 32
s_load_dwordx2 s[{SO}:{SO+1}], s[0:1], 96''')
    A(f'''v_lshrrev_b32 v1, 6, v0
v_and_b32 v2, 63, v0
v_readfirstlane_b32 s{sW}, v1
v_and_b32 v96, 15, v2
v_lshrrev_b32 v97, 4, v2
v_and_b32 v98, 3, v2
v_bfe_u32 v99, v2, 2, 2''')
    A(f's_lshl_b32 s{sW2K}, s{sW}, 11\ns_lshl_b32 s{sW4K}, s{sW}, 12')
    A(f'''v_and_b32 v100, 1, v97
v_lshlrev_b32 v100, 1, v100
v_lshrrev_b32 v101, 1, v97
v_mul_u32_u24 v101, 3, v101
v_xor_b32 v100, v100, v101
v_xor_b32 v101, v100, v98
v_lshrrev_b32 v102, 2, v2
v_lshl_add_u32 v102, v1, 6, v102
v_mul_u32_u24 v102, 1152, v102
v_lshl_add_u32 v{VOFFX}, v101, 4, v102''')
    for n in range(1, 4): A(f'v_add_u32 v{VOFFX + n}, {n * (18432 - 1024)}, v{VOFFX}')
    A(f'''v_lshrrev_b32 v100, 5, v2
v_and_b32 v101, 31, v2
v_and_b32 v102, 1, v1
v_lshl_add_u32 v102, v102, 2, v100
v_lshl_add_u32 v103, v1, 3, v100
v_lshlrev_b32 v103, 13, v103''')
    for n in range(4):
        A(f'v_add_u32 v104, {2 * (n & 1)}, v102\nv_lshlrev_b32 v104, 1, v104\nv_xor_b32 v104, v104, v101\nv_lshl_add_u32 v104, v104, 4, v103')
        A(f'v_add_u32 v{VOFFWE + n}, {n * (16384 - 1024)}, v104')
    A(f'''s_mul_i32 s50, s49, 294912
s_lshl_b32 s51, s47, 9
s_waitcnt lgkmcnt(0)''')
    stamp(A, 1); stamp(A, 1, dbg=True)
    A(f'''s_add_u32 s{SX}, s{SX}, s50
s_addc_u32 s{SX+1}, s{SX+1}, 0
s_mov_b32 s{SX+2}, 294912
s_mov_b32 s{SX+3}, 0x20000
s_add_u32 s{SWE}, s{SWE}, s51
s_addc_u32 s{SWE+1}, s{SWE+1}, 0
s_sub_u32 s{SWE+2}, {576 * 8192}, s51
s_mov_b32 s{SWE+3}, 0x20000''')
    A.extend(flat(dma_x(0)) + flat(dma_w(0)))
    stamp(A, 2, dbg=True)
    A.extend(flat(dma_w(1)) + flat(dma_x(1)))
    stamp(A, 3, dbg=True)
    if OPT['cpf'] and not OPT['early']: code_prefetch(A, 'attn_kernel', 'L_code_end', 61, 62, 2)
    stamp(A, 4, dbg=True)
    A(f'v_lshlrev_b32 v100, 11, v1\nv_lshl_add_u32 v100, v97, 8, v100')
    A(f'v_lshl_add_u32 v101, v1, 3, v97')
    for o in range(2):
        A(f'v_add_u32 v102, {4 * o}, v101\nv_and_b32 v103, 15, v102\nv_xor_b32 v103, v103, v96\nv_lshl_add_u32 v{VOFFK + o}, v103, 4, v100')
        A(f'v_and_b32 v103, 7, v102\nv_lshlrev_b32 v103, 1, v103\nv_xor_b32 v103, v103, v96\nv_lshl_add_u32 v{VOFFV + o}, v103, 4, v100')
    if OPT['noswz']:
        for r in (VOFFK, VOFFK + 1, VOFFV, VOFFV + 1): A(f'v_lshl_add_u32 v{r}, v96, 4, v100')
    A(f'v_lshlrev_b32 v100, 12, v1\nv_lshl_add_u32 v100, v97, 8, v100')
    for n in range(4):
        A(f'v_add_u32 v102, {4 * n}, v97\nv_xor_b32 v103, v102, v96\nv_lshl_add_u32 v{VSWO + n}, v103, 4, v100')
        A(f'v_and_b32 v103, 7, v102\nv_lshlrev_b32 v103, 1, v103\nv_xor_b32 v103, v103, v96\nv_lshl_add_u32 v{VSWE + n}, v103, 4, v100')
    A(f'''s_lshl_b32 s50, s49, 23
s_lshl_b32 s51, s47, 19
s_add_u32 s50, s50, s51
s_add_u32 s{SK}, s{SK}, s50
s_addc_u32 s{SK+1}, s{SK+1}, 0
s_mov_b32 s{SK+2}, 0x80000
s_mov_b32 s{SK+3}, 0x20000
s_add_u32 s{SV}, s{SV}, s50
s_addc_u32 s{SV+1}, s{SV+1}, 0
s_mov_b32 s{SV+2}, 0x80000
s_mov_b32 s{SV+3}, 0x20000''')
    A(f'''s_add_u32 s{SWD}, s{SO}, {WS_WO}
s_addc_u32 s{SWD+1}, s{SO+1}, 0
s_mul_i32 s50, s2, 36864
s_add_u32 s{SWD}, s{SWD}, s50
s_addc_u32 s{SWD+1}, s{SWD+1}, 0
s_mov_b32 s{SWD+2}, 36864
s_mov_b32 s{SWD+3}, 0x20000
s_and_b32 s50, s2, 127
s_mul_i32 s50, s50, 36864
s_add_u32 s{SWS}, s{SWS}, s50
s_addc_u32 s{SWS+1}, s{SWS+1}, 0''')
    if OPT['stamps']:
        A(f's_add_u32 s56, s{SO}, {WS_STAMP}\ns_addc_u32 s57, s{SO+1}, 0\ns_mov_b32 s58, 0x100000\ns_mov_b32 s59, 0x20000')
    A(f'''s_lshl_b32 s50, s46, 2
s_add_u32 s50, s50, s{sW}
s_lshl_b32 s50, s50, 19
s_lshl_b32 s51, s47, 15
s_add_u32 s50, s50, s51
s_add_u32 s{SO}, s{SO}, s50
s_addc_u32 s{SO+1}, s{SO+1}, 0
s_mov_b32 s{SO+2}, 32768
s_mov_b32 s{SO+3}, 0x20000
s_mov_b32 s{sSC}, {f2i(SCALE):#x}
s_mov_b32 s{sSC+1}, {f2i(SCALE):#x}
s_mov_b32 s{sTHR}, {f2i(2.0 ** 24):#x}
s_mov_b32 s{sOo}, 0
s_mov_b32 s{sCnt}, 2
v_lshlrev_b32 v{VOFFO}, 4, v2''')
    A('v_xor_b32 v100, v97, v96\nv_lshlrev_b32 v100, 4, v100\nv_lshl_add_u32 v100, v96, 8, v100')
    for u in range(4): A(f'v_xor_b32 v{KADDR + u}, {u * 64}, v100')
    A('v_lshl_add_u32 v100, v97, 2, v99\nv_and_b32 v101, 7, v100\nv_lshlrev_b32 v101, 5, v101\nv_lshl_add_u32 v101, v100, 8, v101\nv_lshl_add_u32 v101, v98, 3, v101\nv_add_u32 v101, 0x10000, v101')
    for T in range(8): A(f'v_xor_b32 v{VADDR + T}, {T * 32}, v101')
    A('v_lshl_add_u32 v100, v97, 3, v99\nv_and_b32 v101, 1, v97\nv_lshl_add_u32 v101, v101, 2, v99\nv_lshlrev_b32 v101, 5, v101\nv_lshl_add_u32 v101, v100, 9, v101\nv_lshl_add_u32 v101, v98, 3, v101')
    for T in range(8):
        A(f'v_xor_b32 v{WADDR + 8 + T}, {T * 32}, v101')
        A(f'v_add_u32 v{WADDR + T}, 0x10000, v{WADDR + 8 + T}')
    A(f'''v_and_b32 v100, 1, v99
v_lshlrev_b32 v100, 1, v100
v_lshrrev_b32 v101, 1, v99
v_mul_u32_u24 v101, 3, v101
v_xor_b32 v100, v100, v101
v_xor_b32 v100, v100, v97
v_lshlrev_b32 v100, 4, v100
v_lshl_add_u32 v100, v96, 6, v100
v_lshl_add_u32 v100, v1, 12, v100
v_add_u32 v{XADDR}, {7 * BLK}, v100''')
    stamp(A, 5, dbg=True)
    stamp(A, 6, dbg=True)
    A.extend(flat(dma_w(2)) + flat(dma_w(3)) + flat(dma_x(2)))
    stamp(A, 7, dbg=True)
    def x_reads(t):
        return [Ins(f'ds_read_b128 a[{XF(t & 1, qt)}:{XF(t & 1, qt) + 3}], v{XADDR} offset:{(xblock(t) - 7) * BLK + qt * 1024}', f'rX{t}') for qt in range(4)]
    def w_reads(t):
        out = []
        for f in range(16):
            h, T = f >> 3, f & 7
            slot = (16 * t + f) % 24
            blk = wblock(t)
            ad = WADDR + T if blk >= 4 else WADDR + 8 + T
            off = (blk - 4 if blk >= 4 else blk) * BLK + h * 256
            for s in range(2):
                out.append(Ins(f'ds_read_b64_tr_b16 a[{WF(slot) + 2 * s}:{WF(slot) + 2 * s + 1}], v{ad} offset:{off + s * 2048}', f'rW{t}'))
        return out
    stamp(A, 2)
    A('WAITVM X0+W0+W1\ns_barrier')
    stamp(A, 3); stamp(A, 8, dbg=True)
    A.extend(x_reads(0) + w_reads(0))
    for t in range(18):
        mf = []
        for f in range(16):
            h, T = f >> 3, f & 7
            for qt in range(4):
                acc = QACC(h, T, qt)
                mf.append(mfma(acc, f'a{WF((16 * t + f) % 24)}', f'a{XF(t & 1, qt)}', acc if t else '0'))
        G = Gaps(64)
        groups = []
        if t == 0: groups += [dma_w(4), dma_w(5), dma_x(3)]
        if t >= 1: groups += [dma_w(t + 5)]
        if t == 17: groups += [dma_w(23)]
        if t == 8: groups += [dma_w(99)]
        if t + 4 < 18: groups += [dma_x(t + 4)]
        ng = len(groups) * 4
        step = {16: 4, 12: 5, 8: 8, 4: 16}[ng]
        dg = [2 + i * step for i in range(ng)]
        if ng == 16: dg = [2, 5, 8, 11, 16, 20, 24, 28, 33, 37, 41, 45, 50, 53, 56, 59]
        gl = [dg[4 * i:4 * i + 4] for i in range(len(groups))]
        free = [g for g in range(64) if g not in dg]
        if t + 1 < 18:
            G.sc[0].append(f'WAITVM X{t + 1}')
            for r, g in zip(x_reads(t + 1) + w_reads(t + 1), free): G.mem[g].append(r)
            if t + 4 < 18: G.sc[gl[-1][0] - 3].append(f'WAITLG rX{t + 1}')
        else:
            for r, g in zip(k_reads(0), free[::2]): G.mem[g].append(r)
        if OPT['q_nods']: G.mem = [[] for _ in range(64)]
        if OPT['q_nodma'] and t < 13: groups = []
        for gr, g in zip(groups, gl): G.place_dma(gr, g)
        if t % 2 == 0:
            c = t // 2 + 1
            tags = f'W{2 * c}+W{2 * c + 1}' if c <= 8 else 'KK0'
            G.sc[62].append(f'WAITVM {tags} lg0'); G.sc[62].append('s_nop 0' if OPT['q_nobar'] else 's_barrier')
        A.extend(G.weave(mf))
    A('.mark conv')
    stamp(A, 4); stamp(A, 9, dbg=True)
    A(f's_mov_b32 s{sKo}, {8 * 8192}\ns_mov_b32 s{sVo}, {6 * 8192}\ns_mov_b32 s{sCnt}, 3\ns_mov_b32 s{sHead}, 0')
    A(f'v_lshlrev_b32 v100, 12, v1\nv_add_u32 v100, {8 * BLK}, v100')
    for u in range(4): A(f'v_add_u32 v{104 + u}, v100, v{KADDR + u}')
    A('v_lshrrev_b32 v101, 1, v97\nv_xor_b32 v101, v101, v96\nv_lshlrev_b32 v101, 4, v101\nv_lshl_add_u32 v101, v96, 8, v101\nv_and_b32 v102, 1, v97\nv_lshl_add_u32 v101, v102, 3, v101\nv_add_u32 v101, v101, v100')
    for T in range(8): A(f'v_xor_b32 v{108 + T}, {T * 32}, v101')
    for h in range(2):
        for qt in range(4):
            for T in range(8):
                acc = QACC(h, T, qt)
                if h == 0: b = int(acc[1:])
                else:
                    b = 116 + (T % 2) * 4
                    for r in range(4): A(f'v_accvgpr_read_b32 v{b + r}, a{int(acc[1:]) + r}')
                for i in range(2): A(f'v_pk_mul_f32 v[{b + 2 * i}:{b + 2 * i + 1}], v[{b + 2 * i}:{b + 2 * i + 1}], s[{sSC}:{sSC + 1}]')
                d = 124 + (T % 2) * 2
                for i in range(2): A(f'v_cvt_pk_bf16_f32 v{d + i}, v{b + 2 * i}, v{b + 2 * i + 1}')
                A(f'ds_write_b64 v{108 + T}, v[{d}:{d + 1}]')
            for u in range(4):
                A(f'ds_read_b128 a[{Q(h, qt, u)}:{Q(h, qt, u) + 3}], v{104 + u}')
    stamp(A, 5)
    G = Gaps(32)
    kr = k_reads(1)
    for i in range(7): G.mem[4 * i + 4].append(kr[i])
    A.extend(G.weave(qk_mfmas(0)))
    A.add(kr[7])
    A.extend(init_stream(0))
    SH = 2
    st = softmax_stream(0, range(4))
    A.extend(dense(st[:32 + SH]))
    carry = st[32 + SH:]
    stamp(A, 6)
    if OPT['tl']: A('s_mov_b32 s97, 0\nv_and_b32 v41, 63, v0\nv_mov_b32 v43, 0')
    def tagsof(which, t):
        if which == 'V' and t < 6: return f'VV{t // 2}'
        if which == 'K' and 2 <= t < 8: return f'KK{t // 2}'
        return f'{which}{t}'
    for j in range(64):
        jj = j & 31; nm = seg_name(j)
        A(f'.mark {nm}')
        G = Gaps(64)
        mf = (qk_mfmas(j + 1) if j + 1 < 64 else [None] * 32) + pv_mfmas(j)
        if j % 2 == 0:
            tags = '+'.join([tagsof('V', j), tagsof('V', j + 1), tagsof('K', j + 2), tagsof('K', j + 3)])
            G.sc[0] += [f'WAITVM {tags} lg0'] + ([] if OPT['nobar'] else ['s_barrier'])
        p = j & 1
        last = len(carry) - 1
        if j < 63:
            for i, g in enumerate(carry): G.v[i] += g
        else:
            G.v[0] += dense(carry)
        if jj != 0:
            G.v[17].append(f'v_max3_f32 v{CT}, v{Lr(p, 0)}, v{Lr(p, 1)}, v{Lr(p, 2)}')
            G.v[last].append(f'v_max_f32 v{CT}, v{CT}, v{Lr(p, 3)}')
            G.v[last].append(f'v_cmp_lt_f32 vcc, s{sTHR}, v{CT}')
            G.sc[last + 1] += [f's_cbranch_vccnz L_st_{nm}', f'L_bk_{nm}:']
        if j + 1 < 64:
            st = softmax_stream(j + 1, range(4))
            if (j + 1) & 31:
                for i, g in enumerate(st[:32 + SH]): G.v[32 - SH + i] += g
            else:
                fl = init_stream(j + 1) + dense(st[:32 + SH]) + [f'v_accvgpr_mov_b32 a{128 + i}, a{192 + i}' for i in range(64)]
                for i, x in enumerate(fl): G.v[34 + (i * 30) // len(fl)].append(x)
            carry = st[32 + SH:]
        if j < 63:
            vg = sorted([3 + 4 * i for i in range(8)] + [4 + 4 * i for i in range(8)])
            if 'v' not in OPT['a_nods']:
                for r, g in zip(v_reads(j), vg): G.mem[g].append(r)
            if 'k' not in OPT['a_nods']:
                for r, g in zip(k_reads(j + 2), [35, 36, 39, 40, 43, 47, 51, 55]): G.mem[g].append(r)
            jobs = dma_kv('K', j + 8) + dma_kv('V', j + 6)
            if not OPT['nodma']: G.place_dma(jobs, [10, 26, 42, 59])
        else:
            G.mem[0] += v_reads(j)
        if OPT['tl']:
            G.sc[5].append('s_memtime s[98:99]')
            G.sc[52].append('s_waitcnt lgkmcnt(0)')
            G.v[52] += ['v_cmp_eq_u32 s[86:87], s97, v41', 'v_mov_b32 v42, s98']
            G.v[53] += ['v_cndmask_b32 v43, v43, v42, s[86:87]']
            G.sc[54].append('s_add_u32 s97, s97, 1')
        if nm == 'r6':
            G.sc[62].append(f's_sub_u32 s{sCnt}, s{sCnt}, 1')
        if nm == 'r7':
            G.sc[62].append(f's_cmp_lg_u32 s{sKo}, 0x80000')
        A.extend(G.weave(mf))
        if jj == 31:
            A('.mark epi')
            epilogue(A)
    A('.mark tail')
    stamp(A, 9)
    A('WAITVM K64+K65+K66+K67+K68\ns_barrier')
    A(f'''v_lshrrev_b32 v1, 6, v0
v_bfe_u32 v2, v0, 2, 4
v_mul_u32_u24 v2, 1152, v2
v_mul_u32_u24 v3, 288, v1
v_add_u32 v2, v2, v3
v_and_b32 v3, 3, v0
v_lshl_add_u32 v2, v3, 3, v2''')
    for n in range(9):
        for s in range(2): A(f'ds_read_b64_tr_b16 v[{64 + 4 * n + 2 * s}:{64 + 4 * n + 2 * s + 1}], v2 offset:{n * 32 + s * 16 * 1152}')
    A(f's_mul_i32 s{sT0}, s{sW}, 9216')
    for n in range(9):
        if n in (4, 8): A(f's_add_u32 s{sT0}, s{sT0}, 4096')
        A(cl(f'buffer_store_dwordx4 v[{64 + 4 * n}:{64 + 4 * n + 3}], v{VOFFO}, {srd(SWD)}, s{sT0} offen offset:{(n % 4) * 1024} {OPT["o_store"]}'))
    if OPT['stamps']:
        A('s_waitcnt vmcnt(0)')
        stamp(A, 10)
        if OPT['tl']:
            A('s_lshl_b32 s50, s2, 10\ns_add_u32 s50, s50, 0x80000\nv_lshlrev_b32 v42, 2, v0\nbuffer_store_dword v43, v42, s[56:59], s50 offen')
        store_stamps(A, 7)
    A('L_k1_end:\ns_endpgm')
    A.resolve_waits()
    rep = []
    A.fix_hazards(rep)
    segs = {}
    for n, L in split_marks(A.L): segs.setdefault(n, []).append(L)
    M = {n: merge_segments(v) for n, v in segs.items()}
    F = Prog(); F.k1 = True
    F.extend(M['_start'])
    F.extend(M['conv'])
    F('L_s0:')
    F.extend(M['s0'])
    F('s_branch L_r1\n.p2align 6\nL_r0:')
    F.extend(M['r0'])
    F('L_r1:')
    for k in range(1, 7): F.extend(M[f'r{k}'])
    F('s_cbranch_scc1 L_sp')
    F.extend(M['r7'])
    F('s_cbranch_scc1 L_r0')
    F(f'''s_mov_b32 s{SK}, s{SWS}
s_mov_b32 s{SK+1}, s{SWS+1}
s_mov_b32 s{SK+2}, 36864
s_mov_b32 s{sKo}, 0
v_add_u32 v{VOFFK}, s{sW2K}, v{VOFFO}
v_add_u32 v{VOFFK + 1}, s{sW2K}, v{VOFFO}
s_branch L_r0
L_sp:
s_cmp_lg_u32 s{sHead}, 0
s_cbranch_scc1 L_fin''')
    F.extend(M['sp31'])
    stamp(F, 7)
    F('L_epi:')
    F.extend(M['epi'])
    F(f's_cmp_lg_u32 s{sHead}, 0\ns_cbranch_scc1 L_tail\ns_mov_b32 s{sHead}, 1\ns_mov_b32 s{sCnt}, 3')
    stamp(F, 8)
    F('s_branch L_s0\nL_fin:')
    F.extend(M['fin31'])
    F('s_branch L_epi\nL_tail:')
    F.extend(M['tail'])
    for nm, p, mode in [(f'r{k}', k & 1, 0) for k in range(8)] + [('sp31', 1, 1), ('fin31', 1, 1)]:
        F(f'L_st_{nm}:\ns_mov_b32 s{sMODE}, {mode}\ns_call_b64 s[{sRET}:{sRET + 1}], L_fb{p}\ns_branch L_bk_{nm}')
    return F, rep

def gen_k2():
    A = Prog()
    A('s_cmp_ge_u32 s2, 256\ns_cbranch_scc1 L_k2_end')
    if OPT['stamps']: A('s_memrealtime s[60:61]')
    stamp(A, 0)
    A('s_load_dwordx2 s[4:5], s[0:1], 96\ns_load_dwordx2 s[12:13], s[0:1], 80')
    A(f'''s_and_b32 s20, s2, 7
s_lshr_b32 s21, s2, 3
s_lshl_b32 s20, s20, 3
s_lshr_b32 s22, s21, 2
s_add_u32 s20, s20, s22
s_and_b32 s21, s21, 3
s_lshr_b32 s22, s20, 5
v_lshrrev_b32 v1, 6, v0
v_and_b32 v2, 63, v0
v_readfirstlane_b32 s23, v1
v_lshlrev_b32 v4, 4, v2
v_add_u32 v5, 0x1000, v4
v_add_u32 v6, 0x2000, v4
s_lshl_b32 s24, s22, 7
s_lshl_b32 s25, s23, 5
s_add_u32 s24, s24, s25
s_mul_i32 s24, s24, 36864
s_mul_i32 s25, s21, 9216
s_add_u32 s24, s24, s25
s_add_u32 s24, s24, {WS_WO}
s_lshl_b32 s28, s20, 19
s_lshl_b32 s25, s23, 17
s_add_u32 s28, s28, s25
s_mov_b32 s26, 0
s_mov_b32 s27, 0
s_waitcnt lgkmcnt(0)
s_add_u32 s8, s4, s24
s_addc_u32 s9, s5, 0
s_mov_b32 s10, {31 * 36864 + 9216}
s_mov_b32 s11, 0x20000''')
    if OPT['stamps']:
        A(f's_add_u32 s56, s4, {WS_STAMP + (1 << 18)}\ns_addc_u32 s57, s5, 0\ns_mov_b32 s58, 0x100000\ns_mov_b32 s59, 0x20000')
    A('''s_add_u32 s4, s4, s28
s_addc_u32 s5, s5, 0
s_mov_b32 s6, 0x20000
s_mov_b32 s7, 0x20000''')
    NB = 4
    def OFr(t, m): return 40 + (t % NB) * 52 + m * 4
    def WFr(t, n): return 40 + (t % NB) * 52 + 16 + n * 4
    def ldo(t, m): return cl(f'buffer_load_dwordx4 v[{OFr(t, m)}:{OFr(t, m) + 3}], v4, s[4:7], s26 offen offset:{m * 1024} {OPT["k2_o"]}')
    def ldw(t, n): return cl(f'buffer_load_dwordx4 v[{WFr(t, n)}:{WFr(t, n) + 3}], v{4 + n // 4}, s[8:11], s27 offen offset:{(n % 4) * 1024} {OPT["k2_w"]}')
    for t in range(NB):
        for n in range(8): A(ldw(t, n))
        for m in range(4): A(ldo(t, m))
        A(ldw(t, 8))
        A('s_add_u32 s26, s26, 4096\ns_add_u32 s27, s27, 36864')
        if t == 0 and OPT['cpf']: code_prefetch(A, 'oproj_kernel', 'L_code_end', 13, 14, 1)
    A(f'''s_and_b32 s24, s20, 31
s_mul_i32 s24, s24, {64 * 2304}
s_mul_i32 s25, s22, 1152
s_add_u32 s24, s24, s25
s_mul_i32 s25, s21, 288
s_add_u32 s24, s24, s25
s_add_u32 s12, s12, s24
s_addc_u32 s13, s13, 0
s_mov_b32 s14, {63 * 2304 + 288}
s_mov_b32 s15, 0x20000
s_mov_b32 s29, 7''')
    for i in range(144): A(f'v_accvgpr_write_b32 a{i}, 0')
    A('v_mul_u32_u24 v7, 36864, v1\nv_and_b32 v8, 0x300, v4\nv_add_u32 v7, v7, v8')
    A('v_and_b32 v8, 15, v2\nv_mul_u32_u24 v8, 3, v8\nv_lshrrev_b32 v9, 5, v2\nv_add_u32 v8, v8, v9')
    for n in range(8):
        A(f'v_add_u32 v9, {2 * n}, v8\nv_and_b32 v9, 15, v9\nv_lshl_add_u32 v{248 + n}, v9, 4, v7')
    for k in range(5):
        b = 16 + k * 4
        A(f'v_add_u32 v8, {256 * k}, v0')
        A('v_mul_u32_u24 v9, 3641, v8\nv_lshrrev_b32 v9, 16, v9')
        A('v_mul_u32_u24 v10, 18, v9\nv_sub_u32 v10, v8, v10')
        A(f'v_mul_u32_u24 v{b + 1}, 2304, v9\nv_lshl_add_u32 v{b + 1}, v10, 4, v{b + 1}')
        A('v_lshrrev_b32 v11, 1, v10\nv_lshlrev_b32 v11, 12, v11')
        A('v_lshrrev_b32 v12, 4, v9\nv_lshl_add_u32 v11, v12, 10, v11')
        A('v_and_b32 v12, 1, v10\nv_lshl_add_u32 v11, v12, 9, v11')
        A(f'v_mul_u32_u24 v12, 3, v9\nv_add_u32 v12, v12, v10\nv_and_b32 v12, 15, v12\nv_lshl_add_u32 v{b}, v12, 4, v11')
        A(f'v_add_u32 v{b + 2}, {2 * 36864}, v{b}')
    stamp(A, 1)
    for t in range(32):
        A(f'.mark k{t % NB}')
        mf = [mfma(f'a{(n * 4 + m) * 4}', f'v{WFr(t, n)}', f'v{OFr(t, m)}', f'a{(n * 4 + m) * 4}') for n in range(9) for m in range(4)]
        G = Gaps(36)
        for n in range(8): G.mem[4 * n + 4].append(ldw(t + NB, n))
        for m in range(3): G.mem[33 + m].append(ldo(t + NB, m))
        G.mem[35].append(ldo(t + NB, 3)); G.mem[35].append(ldw(t + NB, 8))
        G.sc[36] += ['s_add_u32 s26, s26, 4096', 's_add_u32 s27, s27, 36864']
        A.extend(G.weave(mf))
    A('.mark end')
    stamp(A, 2)
    for i in range(36):
        A(f'ds_write_b128 v{248 + (i // 4) % 8}, a[{i * 4}:{i * 4 + 3}] offset:{i * 1024}')
    A('s_waitcnt vmcnt(0) lgkmcnt(0)\ns_barrier')
    for k in range(5):
        b = 16 + k * 4; d = 40 + k * 32
        if k == 4:
            A('v_cmp_gt_u32 vcc, 128, v0\ns_and_saveexec_b64 s[30:31], vcc\ns_cbranch_execz L_k2_skip')
        for w in range(4):
            for hh in range(2):
                A(f'ds_read_b128 v[{d + w * 8 + hh * 4}:{d + w * 8 + hh * 4 + 3}], v{b + (w >> 1) * 2} offset:{(w & 1) * 36864 + hh * 256}')
        if k == 4 or k == 3:
            for kk in ([0, 1, 2, 3] if k == 3 else [4]):
                bb = 16 + kk * 4; dd = 40 + kk * 32
                for i in range(8): A(f'v_add_f32 v{dd + i}, v{dd + i}, v{dd + 8 + i}')
                for i in range(8): A(f'v_add_f32 v{dd + 16 + i}, v{dd + 16 + i}, v{dd + 24 + i}')
                for i in range(8): A(f'v_add_f32 v{dd + i}, v{dd + i}, v{dd + 16 + i}')
                for i in range(4): A(f'v_cvt_pk_bf16_f32 v{dd + 8 + i}, v{dd + 2 * i}, v{dd + 2 * i + 1}')
                A(f'buffer_store_dwordx4 v[{dd + 8}:{dd + 11}], v{bb + 1}, s[12:15], 0 offen')
    A('L_k2_skip:')
    if OPT['stamps']:
        A('s_mov_b64 exec, -1\ns_waitcnt vmcnt(0)')
        stamp(A, 3)
        store_stamps(A, 3)
    A('L_k2_end:\ns_endpgm')
    A.resolve_waits()
    rep = []
    A.fix_hazards(rep)
    segs = {}
    for n, L in split_marks(A.L): segs.setdefault(n, []).append(L)
    M = {n: merge_segments(v) for n, v in segs.items()}
    F = Prog()
    F.extend(M['_start'])
    F('.p2align 6\nL_k2:')
    for k in range(NB): F.extend(M[f'k{k}'])
    F('s_sub_u32 s29, s29, 1\ns_cbranch_scc0 L_k2')
    F.extend(M['end'])
    return F, rep

def build(path):
    A, rep = gen_k1()
    K2, rep2 = gen_k2()
    hdr = open('cdna_kernels/' + NAME + '.s.ref').read().split('; Override launch')[0]
    t = hdr + '; @launch kernel=attn_kernel grid=(256,1,1) block=(256,1,1) lds=163840\n; @launch kernel=oproj_kernel grid=(256,1,1) block=(256,1,1) lds=147456\n'
    t += '.amdgcn_target "amdgcn-amd-amdhsa--gfx950"\n.text\n' + MACROS
    t += prolog('attn_kernel') + A.text() + fallback(0).text() + fallback(1).text()
    t += prolog('oproj_kernel') + K2.text() + 'L_code_end:\n'
    t += kd('attn_kernel', 512, 100, 256) + kd('oproj_kernel', 512, 96, 256)
    open(path, 'w').write(t)
    return rep, rep2, len(t)

if __name__ == '__main__':
    path = sys.argv[1]
    for kv in sys.argv[2:]:
        k, v = kv.split('=')
        assert k in OPT, k
        OPT[k] = (v == '1') if isinstance(OPT.get(k), bool) else v
    rep, rep2, n = build(path)
    from collections import Counter
    print('bytes', n, 'pads k1', Counter((a, b.split()[0]) for a, b in rep).most_common(8), 'k2', Counter((a, b.split()[0]) for a, b in rep2).most_common(8))
```

```python
import re

_REG = re.compile(r'^-?(?:abs\()?([vas])(?:(\d+)|\[(\d+):(\d+)\])\)?$')
def regs_of(tok):
    tok = tok.strip()
    m = _REG.match(tok)
    if m:
        f = m.group(1)
        if m.group(2) is not None:
            return [(f, int(m.group(2)))]
        return [(f, i) for i in range(int(m.group(3)), int(m.group(4)) + 1)]
    if tok == 'vcc': return [('s', 'vcc')]
    if tok == 'm0': return [('s', 'm0')]
    if tok == 'exec': return [('s', 'exec')]
    return []

TRANS = ('v_exp_f32', 'v_rcp_f32', 'v_log_f32', 'v_rsq_f32', 'v_sqrt_f32')
class Ins:
    __slots__ = ('text', 'mn', 'kind', 'rd', 'wr', 'tag', 'srcC', 'srcAB', 'meta')
    def __init__(self, text, tag=None, meta=None):
        self.text = text; self.tag = tag; self.meta = meta
        self.srcC = set(); self.srcAB = set()
        t = text.split(';')[0].strip()
        if t.endswith(':'):
            self.mn = 'label'; self.kind = 'label'; self.rd = set(); self.wr = set(); return
        if t.startswith('.'):
            self.mn = 'dir'; self.kind = 'dir'; self.rd = set(); self.wr = set(); return
        parts = t.split(None, 1)
        mn = parts[0]; self.mn = mn
        ops = []
        if len(parts) > 1:
            ops = [o.strip() for o in parts[1].split(',')]
            last = ops[-1].split()
            mods = last[1:]
            ops[-1] = last[0] if last else ''
        else:
            mods = []
        R = [regs_of(o) for o in ops]
        rd = set(); wr = set()
        if mn.startswith('v_mfma'):
            self.kind = 'mfma'; wr.update(R[0]); rd.update(R[1] + R[2] + R[3])
            self.srcAB = set(R[1] + R[2]); self.srcC = set(R[3])
        elif mn.startswith('v_cmp'):
            self.kind = 'valu'; wr.update(R[0]); rd.update(sum(R[1:], []))
        elif mn.startswith('v_permlane') and 'swap' in mn:
            self.kind = 'valu'; wr.update(R[0] + R[1]); rd.update(R[0] + R[1])
        elif mn.startswith('v_'):
            self.kind = 'trans' if mn.replace('_e32', '').replace('_e64', '') in TRANS else 'valu'
            wr.update(R[0]); rd.update(sum(R[1:], []))
            if mn.startswith('v_cndmask') and len(ops) == 3: rd.add(('s', 'vcc'))
        elif mn.startswith('ds_read'):
            self.kind = 'dsr'; wr.update(R[0]); rd.update(R[1])
        elif mn.startswith('ds_write'):
            self.kind = 'dsw'; rd.update(sum(R, []))
        elif mn.startswith('buffer_load'):
            if 'lds' in mods:
                self.kind = 'dma'; rd.update(sum(R, [])); rd.add(('s', 'm0'))
            else:
                self.kind = 'vld'; wr.update(R[0]); rd.update(sum(R[1:], []))
        elif mn in ('buffer_inv', 'buffer_wbl2'):
            self.kind = 'vst'
        elif mn.startswith('global_load'):
            self.kind = 'vld'; wr.update(R[0]); rd.update(sum(R[1:], []))
        elif mn.startswith('buffer_store') or mn.startswith('buffer_atomic'):
            self.kind = 'vst'; rd.update(sum(R, []))
        elif mn in ('s_waitcnt', 's_nop', 's_barrier', 's_endpgm', 's_setprio', 's_sleep', 'WAITVM', 'WAITLG'):
            self.kind = {'s_waitcnt': 'wait', 's_nop': 'nop', 's_barrier': 'barrier', 'WAITVM': 'waitvm', 'WAITLG': 'waitlg'}.get(mn, 'smisc')
        elif mn.startswith('s_cbranch') or mn in ('s_branch', 's_setpc_b64', 's_call_b64'):
            self.kind = 'branch'
            if 'vcc' in mn: rd.add(('s', 'vcc'))
        elif mn.startswith('s_cmp') or mn.startswith('s_bitcmp'):
            self.kind = 'salu'; rd.update(sum(R, []))
        elif mn.startswith('s_load') or mn.startswith('s_mem'):
            self.kind = 'smem'; wr.update(R[0]); rd.update(sum(R[1:], []))
        elif mn.startswith('s_'):
            self.kind = 'salu'; wr.update(R[0]); rd.update(sum(R[1:], []))
        else:
            raise ValueError('unknown instr: ' + text)
        self.rd = rd; self.wr = wr
    def states(self):
        if self.kind in ('label', 'dir'): return 0
        if self.kind == 'nop': return int(self.text.split()[1]) + 1
        return 1

def isv(r): return r[0] in ('v', 'a')

class Prog:
    def __init__(self):
        self.L = []
    def __call__(self, text, tag=None, meta=None):
        for line in text.strip().split('\n'):
            line = line.strip()
            if line: self.L.append(Ins(line, tag, meta))
    def add(self, ins): self.L.append(ins)
    def extend(self, lst):
        for x in lst:
            if isinstance(x, Ins): self.L.append(x)
            else: self(x)

    def resolve_waits(self, hoist=True):
        out = []
        lg = []
        vm = []
        def emit_wait(vmn=None, lgn=None, consumer=None):
            nonlocal lg, vm
            parts = []
            if vmn is not None: vmn = min(vmn, 62); parts.append(f'vmcnt({vmn})')
            if lgn is not None: lgn = min(lgn, 14); parts.append(f'lgkmcnt({lgn})')
            w = Ins('s_waitcnt ' + ' '.join(parts))
            if vmn is not None: vm = vm[len(vm) - vmn:] if vmn > 0 else []
            if lgn is not None: lg = lg[len(lg) - lgn:] if lgn > 0 else []
            return w
        for ins in self.L:
            if ins.kind == 'waitvm':
                toks = ins.text.split()
                tags = toks[1].split('+')
                idx = -1
                for i, o in enumerate(vm):
                    if o.tag in tags: idx = i
                vmn = len(vm) - 1 - idx if idx >= 0 else None
                lgn = 0 if ('lg0' in toks and lg) else None
                if vmn is not None or lgn is not None:
                    out.append(emit_wait(vmn, lgn))
                continue
            if ins.kind == 'waitlg':
                tags = ins.text.split()[1].split('+')
                idx = -1
                for i, o in enumerate(lg):
                    if o.tag in tags: idx = i
                if idx >= 0:
                    out.append(emit_wait(None, len(lg) - 1 - idx))
                continue
            if ins.kind == 'wait':
                m = re.search(r'vmcnt\((\d+)\)', ins.text)
                if m:
                    n = int(m.group(1)); vm = vm[len(vm) - n:] if 0 < n < len(vm) else ([] if n == 0 else vm)
                m = re.search(r'lgkmcnt\((\d+)\)', ins.text)
                if m:
                    n = int(m.group(1)); lg = lg[len(lg) - n:] if 0 < n < len(lg) else ([] if n == 0 else lg)
                out.append(ins); continue
            touched = ins.rd | ins.wr
            li = -1
            for i, o in enumerate(lg):
                if o.wr & touched: li = i
            vi = -1
            for i, o in enumerate(vm):
                if o.wr & touched: vi = i
            if li >= 0 or vi >= 0:
                pos = len(out)
                lgn = len(lg) - 1 - li if li >= 0 else None
                vmn = len(vm) - 1 - vi if vi >= 0 else None
                if hoist and ins.kind == 'mfma':
                    k = len(out) - 1; nl = 0; nv = 0; ok = True
                    while k >= 0 and out[k].kind != 'mfma':
                        o = out[k]
                        if o.kind in ('label', 'branch', 'barrier', 'wait') or (o.kind == 'dir' and not o.text.startswith('.mark')): ok = False; break
                        if (li >= 0 and o is lg[li]) or (vi >= 0 and o is vm[vi]): ok = False; break
                        if o.kind in ('dsr', 'dsw'): nl += 1
                        if o.kind in ('dma', 'vld', 'vst'): nv += 1
                        k -= 1
                    if ok and k >= 0 and len(out) - 1 - k <= 6 and (k + 1 >= len(out) or out[k + 1].kind not in ('salu', 'wait', 'smisc', 'nop')):
                        parts = []
                        if vmn is not None: vmn = min(vmn - nv, 62) + nv; parts.append(f'vmcnt({vmn - nv})')
                        if lgn is not None: lgn = min(lgn - nl, 14) + nl; parts.append(f'lgkmcnt({lgn - nl})')
                        out.insert(k + 1, Ins('s_waitcnt ' + ' '.join(parts)))
                        if vmn is not None: vm = vm[len(vm) - vmn:] if vmn > 0 else []
                        if lgn is not None: lg = lg[len(lg) - lgn:] if lgn > 0 else []
                    else:
                        out.append(emit_wait(vmn, lgn))
                else:
                    out.append(emit_wait(vmn, lgn))
            if ins.kind in ('dsr', 'dsw'): lg.append(ins)
            if ins.kind in ('dma', 'vld', 'vst'): vm.append(ins)
            if ins.kind == 'smem': raise_smem = True
            out.append(ins)
        self.L = out

    def fix_hazards(self, report=None):
        out = []
        npad = 0
        for ins in self.L:
            need = 0
            if ins.kind not in ('label', 'dir', 'nop', 'wait', 'barrier'):
                d = 0
                for k in range(len(out) - 1, -1, -1):
                    p = out[k]
                    if d >= 12: break
                    req = 0
                    pv = p.kind in ('valu', 'trans')
                    iv = ins.kind in ('valu', 'trans')
                    if p.kind == 'mfma':
                        D = p.wr
                        if ins.kind == 'mfma':
                            if D & ins.srcAB: req = max(req, 8)
                            if D & ins.srcC and ins.srcC != D: req = max(req, 6)
                            if D & ins.wr and ins.srcC != D: req = max(req, 6)
                        elif iv:
                            if D & (ins.rd | ins.wr): req = max(req, 8)
                            if p.srcC & ins.wr: req = max(req, 3)
                        elif ins.kind in ('dsr', 'dsw', 'vld', 'vst', 'dma'):
                            if D & (ins.rd | ins.wr): req = max(req, 8)
                    if pv:
                        vw = {r for r in p.wr if isv(r)}
                        sw = {r for r in p.wr if not isv(r)}
                        if ins.kind == 'mfma' and vw & ins.rd: req = max(req, 2)
                        if p.kind == 'trans' and iv and ins.kind != 'trans' and vw & ins.rd: req = max(req, 1)
                        if p.kind == 'trans' and ins.kind == 'trans' and vw & ins.rd: req = max(req, 1)
                        if ins.mn.startswith('v_permlane') and vw & ins.rd: req = max(req, 2)
                        if ins.mn.startswith(('v_readfirstlane', 'v_readlane')) and vw & ins.rd: req = max(req, 1)
                        if 'dpp' in ins.text and vw & ins.rd: req = max(req, 2)
                        if iv and sw & ins.rd: req = max(req, 2)
                        if ins.kind in ('vld', 'vst', 'dma') and sw & ins.rd: req = max(req, 5)
                        if ins.kind in ('salu', 'branch') and sw & ins.rd: req = max(req, 1)
                    if p.kind == 'salu' and ('s', 'm0') in p.wr and ins.kind == 'dma': req = max(req, 1)
                    if p.kind == 'vst' and ('x4' in p.mn or 'x3' in p.mn):
                        if {r for r in p.rd if isv(r)} & ins.wr: req = max(req, 2)
                    if p.kind == 'dsw' and False: pass
                    if req > d: need = max(need, req - d)
                    d += p.states()
            if need > 0:
                out.append(Ins(f's_nop {need - 1}')); npad += 1
                if report is not None: report.append((need, ins.text))
            out.append(ins)
        self.L = out
        return npad

    def text(self, macros=True):
        lines = []
        for i in self.L:
            lines.append(compact(i.text) if macros else i.text)
        return '\n'.join(lines) + '\n'

MACROS = r"""
.macro MV d,a,b,c
v_mfma_f32_16x16x32_bf16 v[\d:\d+3],v[\a:\a+3],a[\b:\b+3],v[\c:\c+3]
.endm
.macro MA d,a,b
v_mfma_f32_16x16x32_bf16 a[\d:\d+3],v[\a:\a+3],v[\b:\b+3],a[\d:\d+3]
.endm
.macro MQV d,a,b
v_mfma_f32_16x16x32_bf16 v[\d:\d+3],a[\a:\a+3],a[\b:\b+3],v[\d:\d+3]
.endm
.macro MQA d,a,b
v_mfma_f32_16x16x32_bf16 a[\d:\d+3],a[\a:\a+3],a[\b:\b+3],a[\d:\d+3]
.endm
.macro MXV d,a,b
v_mfma_f32_16x16x32_bf16 v[\d:\d+3],a[\a:\a+3],v[\b:\b+3],v[\d:\d+3]
.endm
.macro MXA d,a,b
v_mfma_f32_16x16x32_bf16 a[\d:\d+3],a[\a:\a+3],v[\b:\b+3],a[\d:\d+3]
.endm
.macro TR d,a,o
ds_read_b64_tr_b16 v[\d:\d+1],v\a offset:\o
.endm
.macro TRA d,a,o
ds_read_b64_tr_b16 a[\d:\d+1],v\a offset:\o
.endm
.macro RD d,a,o
ds_read_b128 v[\d:\d+3],v\a offset:\o
.endm
.macro CV d,a,b
v_cvt_pk_bf16_f32 v\d,v\a,v\b
.endm
"""
_P = [
 (re.compile(r'^v_mfma_f32_16x16x32_bf16 v\[(\d+):\d+\], a\[(\d+):\d+\], v\[(\d+):\d+\], v\[(\d+):\d+\]$'), lambda m: f'MXV {m[1]},{m[2]},{m[3]}' if m[1] == m[4] else None),
 (re.compile(r'^v_mfma_f32_16x16x32_bf16 a\[(\d+):\d+\], a\[(\d+):\d+\], v\[(\d+):\d+\], a\[(\d+):\d+\]$'), lambda m: f'MXA {m[1]},{m[2]},{m[3]}' if m[1] == m[4] else None),
 (re.compile(r'^v_mfma_f32_16x16x32_bf16 v\[(\d+):\d+\], v\[(\d+):\d+\], a\[(\d+):\d+\], v\[(\d+):\d+\]$'), lambda m: f'MV {m[1]},{m[2]},{m[3]},{m[4]}'),
 (re.compile(r'^v_mfma_f32_16x16x32_bf16 a\[(\d+):\d+\], v\[(\d+):\d+\], v\[(\d+):\d+\], a\[(\d+):\d+\]$'), lambda m: f'MA {m[1]},{m[2]},{m[3]}' if m[1] == m[4] else None),
 (re.compile(r'^v_mfma_f32_16x16x32_bf16 v\[(\d+):\d+\], a\[(\d+):\d+\], a\[(\d+):\d+\], v\[(\d+):\d+\]$'), lambda m: f'MQV {m[1]},{m[2]},{m[3]}' if m[1] == m[4] else None),
 (re.compile(r'^v_mfma_f32_16x16x32_bf16 a\[(\d+):\d+\], a\[(\d+):\d+\], a\[(\d+):\d+\], a\[(\d+):\d+\]$'), lambda m: f'MQA {m[1]},{m[2]},{m[3]}' if m[1] == m[4] else None),
 (re.compile(r'^ds_read_b64_tr_b16 v\[(\d+):\d+\], v(\d+) offset:(\d+)$'), lambda m: f'TR {m[1]},{m[2]},{m[3]}'),
 (re.compile(r'^ds_read_b64_tr_b16 a\[(\d+):\d+\], v(\d+) offset:(\d+)$'), lambda m: f'TRA {m[1]},{m[2]},{m[3]}'),
 (re.compile(r'^ds_read_b128 v\[(\d+):\d+\], v(\d+) offset:(\d+)$'), lambda m: f'RD {m[1]},{m[2]},{m[3]}'),
 (re.compile(r'^v_cvt_pk_bf16_f32 v(\d+), v(\d+), v(\d+)$'), lambda m: f'CV {m[1]},{m[2]},{m[3]}'),
]
def compact(t):
    for rx, f in _P:
        m = rx.match(t)
        if m:
            r = f(m)
            if r: return r
    return t.replace(', ', ',')

def mfma(d, a, b, c):
    def rg(x): return f'{x[0]}[{int(x[1:])}:{int(x[1:]) + 3}]'
    return f'v_mfma_f32_16x16x32_bf16 {rg(d)}, {rg(a)}, {rg(b)}, {"0" if c == "0" else rg(c)}'

def weave(mf, gaps):
    out = []
    for i, m in enumerate(mf):
        out.append(m)
        out.extend(gaps.get(i, []))
    return out


def split_marks(L):
    out = [('_start', [])]
    for i in L:
        if i.kind == 'dir' and i.text.startswith('.mark'):
            out.append((i.text.split()[1], []))
        else:
            out[-1][1].append(i)
    return out

def _wparse(t):
    vm = re.search(r'vmcnt\((\d+)\)', t); lg = re.search(r'lgkmcnt\((\d+)\)', t)
    return (int(vm.group(1)) if vm else None, int(lg.group(1)) if lg else None)
def _wmerge(a, b):
    r = []
    for x, y in zip(a, b):
        r.append(y if x is None else (x if y is None else min(x, y)))
    return tuple(r)
def _wtext(w):
    parts = []
    if w[0] is not None: parts.append(f'vmcnt({w[0]})')
    if w[1] is not None: parts.append(f'lgkmcnt({w[1]})')
    return 's_waitcnt ' + ' '.join(parts)

def merge_segments(segs):
    def canon(seg):
        core = []; pre = []; w = None; nop = 0
        for i in seg:
            if i.kind == 'wait':
                w = _wparse(i.text) if w is None else _wmerge(w, _wparse(i.text))
            elif i.kind == 'nop':
                nop += i.states()
            else:
                core.append(i); pre.append((w, nop)); w = None; nop = 0
        pre.append((w, nop))
        return core, pre
    cs = [canon(s) for s in segs]
    core0 = cs[0][0]
    for c, _ in cs[1:]:
        assert len(c) == len(core0), (len(c), len(core0))
        for a, b in zip(core0, c):
            assert a.text == b.text, (a.text, b.text)
    out = []
    for k in range(len(core0) + 1):
        w = None; nop = 0
        for _, pre in cs:
            pw, pn = pre[k]
            if pw is not None: w = pw if w is None else _wmerge(w, pw)
            nop = max(nop, pn)
        if w is not None: out.append(Ins(_wtext(w)))
        if nop: out.append(Ins(f's_nop {nop - 1}'))
        if k < len(core0): out.append(core0[k])
    return out
```

```python
import sys, math, struct
from common import *
from asmlib import *

OPT = dict(nt_kv='nt', nt_x='', nt_w='nt', o_store='sc1', g_o='sc1', g_w='sc1', stamps=False, k2_o='', k2_w='', cpf=True,
           nodma=False, nobar=False, dbgs=False, early=True, map='q', q_nodma=False, q_nods=False, q_nobar=False, a_nods='', tl=False, noswz=False, qtl=False, k2_same='', k2_nomf=False, dummy=False, epg='0', f2s='8', p2s='20', g2s='24', gtl=False, j_st='sc1', x_st='sc1', f_st='sc1', noinv=True, stag='0', stag0='0', wb=False, o1_store='sc1')
WS_O = 0
WS_WO = 33554432
WS_X = 44 << 20
WS_FL = 56 << 20
WS_STAMP = 64 << 20
SCALE = math.log2(math.e) / math.sqrt(128.0)
def f2i(x): return struct.unpack('<I', struct.pack('<f', x))[0]

SK, SV, SX, SWE, SO, SWS, SWD, SFL = 4, 8, 12, 16, 20, 24, 28, 88
SGO, SGW, SFP, SOUT = 12, 16, 24, 28
sWS, sOUT, sDBG = 52, 54, 46
sW, sW2K, sW4K, sT0, sSC, sTHR, sRET, sMODE = 32, 33, 34, 35, 38, 40, 42, 44
sKo, sVo, sXo, sWe, sWo, sInc, sCnt, sHead, sOo = 36, 37, 41, 45, 92, 93, 94, 95, 96
KNAME = NAME + '_kernel'
def srd(n): return f's[{n}:{n+3}]'
KADDR, VADDR, VOFFK, VOFFV, LREG, ETMP, CT, NEGM = 4, 8, 16, 18, 20, 28, 40, 44
VOFFO = 60
KF, VF, SB, PB, EP = 64, 96, 128, 192, 224
NE = 12
def S(p, kt, qt): return SB + p * 32 + (kt * 4 + qt) * 4
def P(p, qt): return PB + p * 16 + qt * 4
def Lr(p, qt): return LREG + p * 4 + qt
def O(T, qt): return (T * 4 + qt) * 4
def Q(h, qt, u): return 128 + h * 64 + (qt * 4 + u) * 4
WADDR, XADDR, VOFFWE, VOFFJ, VOFFX, VSWE, VSWO, JADDR = 64, 80, 84, 92, 88, 20, 24, 82
VFLAG, VPOLL, VL4, VPA = 61, 62, 63, 3
def QACC(h, T, qt): return (f'v{128 + (T * 4 + qt) * 4}' if h == 0 else f'a{(T * 4 + qt) * 4}')
def XF(t, qt):
    c = t >> 1
    return (28 if c & 1 else 96) + ((t & 1) * 4 + qt) * 4
NWS = 24
def WF(slot): return 128 + slot * 4
BLK = 16384
def wblock(t): return (4 + (t >> 1) % 3) if t % 2 == 0 else (1 + (t >> 1) % 3)
def xblock(t): return 7 + t % 3
def cl(s): return ' '.join(s.split())

def dma_kv(which, tile):
    base = (0 if which == 'K' else 65536) + (tile % 8) * 8192
    s, vo, so = (SK, VOFFK, sKo) if which == 'K' else (SV, VOFFV, sVo)
    tag = f'{which}{tile}'; nt = OPT['nt_kv']
    return [([f's_add_u32 m0, s{sW2K}, {base}'], Ins(cl(f'buffer_load_dwordx4 v{vo}, {srd(s)}, s{so} offen {nt} lds'), tag), []),
            ([], Ins(cl(f'buffer_load_dwordx4 v{vo + 1}, {srd(s)}, s{so} offen offset:1024 {nt} lds'), tag), [f's_add_u32 s{so}, s{so}, 8192'])]
def dma_w(t):
    if t < 18:
        s, vo, off, tag, nt = SWE, VOFFWE, t * 32 * 8192, f'W{t}', OPT['nt_w']
    elif t % 2 == 0:
        s, vo, off, tag, nt = SV, VSWE, (t - 18) // 2 * 16384, f'VV{(t - 18) // 2}', OPT['nt_kv']
    else:
        s, vo, off, tag, nt = SK, VSWO, ((t - 18) // 2 + 1) * 16384, f'KK{(t - 18) // 2 + 1}', OPT['nt_kv']
    blk = wblock(t)
    if t == 99: s, vo, off, tag, nt, blk = SK, VSWO, 0, 'KK0', OPT['nt_kv'], 0
    return [([f's_mov_b32 s{sWe}, {off}', f's_add_u32 m0, s{sW4K}, {blk * BLK}'] if n == 0 else [],
             Ins(cl(f'buffer_load_dwordx4 v{vo + n}, {srd(s)}, s{sWe} offen offset:{n * 1024} {nt} lds'), tag), []) for n in range(4)]
def dma_x(t):
    return [([f's_mov_b32 s{sXo}, {(t >> 1) * 128 + (t & 1) * 32 * 1152}', f's_add_u32 m0, s{sW4K}, {xblock(t) * BLK}'] if n == 0 else [],
             Ins(cl(f'buffer_load_dwordx4 v{VOFFX + n}, {srd(SX)}, s{sXo} offen offset:{n * 1024} {OPT["nt_x"]} lds'), f'X{t}'), []) for n in range(4)]
def flat(dl):
    out = []
    for pre, ins, post in dl: out += pre + [ins] + post
    return out

class Gaps:
    def __init__(self, n):
        self.n = n; self.sc = [[] for _ in range(n + 1)]; self.mem = [[] for _ in range(n)]; self.v = [[] for _ in range(n)]
    def place_dma(self, dl, gaps):
        for (pre, ins, post), g in zip(dl, gaps):
            for k, s in enumerate(pre): self.sc[g - len(pre) + k].append(s)
            self.mem[g].append(ins)
            for k, s in enumerate(post): self.sc[g + 1 + k].append(s)
    def weave(self, mf):
        out = []
        for i in range(self.n):
            if i < len(mf) and mf[i] is not None: out.append(mf[i])
            out += self.sc[i] + self.mem[i] + self.v[i]
        out += self.sc[self.n]
        return out

def k_reads(tile):
    return [Ins(f'ds_read_b128 v[{KF + (kt * 4 + u) * 4}:{KF + (kt * 4 + u) * 4 + 3}], v{KADDR + u} offset:{(tile % 8) * 8192 + kt * 4096}', f'rK{tile}')
            for kt in range(2) for u in range(4)]
def v_reads(tile):
    return [Ins(f'ds_read_b64_tr_b16 v[{VF + T * 4 + s * 2}:{VF + T * 4 + s * 2 + 1}], v{VADDR + T} offset:{(tile % 8) * 8192 + s * 4096}', f'rV{tile}')
            for T in range(8) for s in range(2)]
def qk_mfmas(j):
    h = 1 if j == 32 else 0
    p = j & 1; first = (j & 31) == 0
    out = []
    for kt in range(2):
        for u in range(4):
            for qt in range(4):
                c = f'v{S(p, kt, qt)}' if u else ('0' if first else f'v{NEGM + qt * 4}')
                out.append(mfma(f'v{S(p, kt, qt)}', f'v{KF + (kt * 4 + u) * 4}', f'a{Q(h, qt, u)}', c))
    return out
def pv_mfmas(j):
    p = j & 1; first = (j & 31) == 0
    return [mfma(f'a{O(T, qt)}', f'v{VF + T * 4}', f'v{P(p, qt)}', '0' if first else f'a{O(T, qt)}') for T in range(8) for qt in range(4)]

def softmax_stream(j, qts):
    p = j & 1; first = (j & 31) == 0
    out = []
    for qt in qts:
        for k in range(8):
            e = ETMP + (qt * 8 + k) % NE
            src = S(p, k >> 2, qt) + (k & 3)
            out.append([f'v_exp_f32 v{e}, v{src}'])
            l = Lr(p, qt)
            if k == 0: a = f'v_mov_b32 v{l}, v{e}' if first else f'v_add_f32 v{l}, v{Lr(1 - p, qt)}, v{e}'
            else: a = f'v_add_f32 v{l}, v{l}, v{e}'
            g = [a]
            if k & 1:
                e0 = ETMP + (qt * 8 + k - 1) % NE
                g.append(f'v_cvt_pk_bf16_f32 v{P(p, qt) + (k >> 1)}, v{e0}, v{e}')
            out.append(g)
    return out
def dense(stream):
    out = []; prev = []
    for i in range(0, len(stream), 2):
        out += stream[i]; out += prev; prev = stream[i + 1] if i + 1 < len(stream) else []
    return out + prev

def rowmax(p, qt, dst):
    s0 = S(p, 0, qt); s1 = S(p, 1, qt)
    return [f'v_max3_f32 v{dst}, v{s0}, v{s0 + 1}, v{s0 + 2}', f'v_max3_f32 v{dst}, v{dst}, v{s0 + 3}, v{s1}',
            f'v_max3_f32 v{dst}, v{dst}, v{s1 + 1}, v{s1 + 2}', f'v_max_f32 v{dst}, v{dst}, v{s1 + 3}']
def xlane(op, regs, tmps):
    out = []
    for sw in ('v_permlane16_swap_b32', 'v_permlane32_swap_b32'):
        out += [f'v_mov_b32 v{t}, v{r}' for r, t in zip(regs, tmps)]
        out += [f'{sw} v{t}, v{r}' for r, t in zip(regs, tmps)]
        out += [f'{op} v{r}, v{r}, v{t}' for r, t in zip(regs, tmps)]
    return out
def init_stream(j):
    p = j & 1
    m = [EP + i for i in range(4)]; t = [EP + 4 + i for i in range(4)]
    out = []
    rm = [rowmax(p, qt, m[qt]) for qt in range(4)]
    for k in range(4): out += [rm[qt][k] for qt in range(4)]
    out += xlane('v_max_f32', m, t)
    for qt in range(4):
        for k in range(8):
            s = S(p, k >> 2, qt) + (k & 3)
            out.append(f'v_sub_f32 v{s}, v{s}, v{m[qt]}')
    for qt in range(4):
        for r in range(4): out.append(f'v_sub_f32 v{NEGM + qt * 4 + r}, 0, v{m[qt]}')
    return out

def epilogue(packed, pol=None):
    pol = OPT['o_store'] if pol is None else pol
    L = []
    l = [Lr(1, qt) for qt in range(4)]
    t = [EP + i for i in range(4)]
    L += xlane('v_add_f32', l, t)
    rc = [EP + 2 * i for i in range(4)]
    for qt in range(4): L.append(f'v_rcp_f32 v{rc[qt]}, v{l[qt]}')
    units = []
    k = 0
    for u in range(4):
        for qt in range(4):
            b = EP + 8 + (k % 2) * 12; k += 1
            rd = [f'v_accvgpr_read_b32 v{b + i}, a{O(2 * u + (i >> 2), qt) + (i & 3)}' for i in range(8)]
            if packed: mu = [f'v_pk_mul_f32 v[{b + 2 * i}:{b + 2 * i + 1}], v[{b + 2 * i}:{b + 2 * i + 1}], v[{rc[qt]}:{rc[qt] + 1}] op_sel_hi:[1,0]' for i in range(4)]
            else: mu = [f'v_mul_f32 v{b + i}, v{rc[qt]}, v{b + i}' for i in range(8)]
            cv = [f'v_cvt_pk_bf16_f32 v{b + 8 + i}, v{b + 2 * i}, v{b + 2 * i + 1}' for i in range(4)]
            st = [Ins(cl(f'buffer_store_dwordx4 v[{b + 8}:{b + 11}], v{VOFFO}, {srd(SO)}, s{sOo} offen offset:{qt * 1024} {pol}'), 'Ost')]
            if qt == 3: st.append(f's_add_u32 s{sOo}, s{sOo}, 4096')
            units.append((rd, mu, cv, st))
    for k, (rd, mu, cv, st) in enumerate(units):
        L += rd
        if k: L += units[k - 1][3]
        L += mu + cv
    L += units[-1][3]
    return L

SPINS = []
def spin_check(A, name, load, want):
    A(f'v_cmp_ne_u32 vcc, {want}, v{VPOLL}')
    A(f's_cbranch_vccnz L_spin_{name}')
    A(f'L_back_{name}:')
    SPINS.append(f"""L_spin_{name}:
s_mov_b32 s{sT0}, 0x40000
L_spin2_{name}:
s_sleep 1
{load}
s_sub_u32 s{sT0}, s{sT0}, 1
s_cbranch_scc1 L_back_{name}
s_waitcnt vmcnt(0)
v_cmp_ne_u32 vcc, {want}, v{VPOLL}
s_nop 1
s_cbranch_vccnz L_spin2_{name}
s_branch L_back_{name}""")

def fallback(p):
    A = Prog()
    A(f'L_fb{p}:')
    A('s_nop 7\ns_nop 7')
    m = [EP + i for i in range(4)]; t = [EP + 4 + i for i in range(4)]; f = [EP + 8 + i for i in range(4)]
    rm = [rowmax(p, qt, m[qt]) for qt in range(4)]
    for k in range(4): A.extend([rm[qt][k] for qt in range(4)])
    A.extend(xlane('v_max_f32', m, t))
    for qt in range(4): A(f'v_max_f32 v{m[qt]}, 0, v{m[qt]}')
    for qt in range(4): A(f'v_exp_f32 v{f[qt]}, -v{m[qt]}')
    for qt in range(4):
        for k in range(8):
            s = S(p, k >> 2, qt) + (k & 3)
            A(f'v_sub_f32 v{s}, v{s}, v{m[qt]}')
        for r in range(4): A(f'v_sub_f32 v{NEGM + qt * 4 + r}, v{NEGM + qt * 4 + r}, v{m[qt]}')
        A(f'v_mul_f32 v{Lr(1 - p, qt)}, v{Lr(1 - p, qt)}, v{f[qt]}')
    A(f's_cmp_lg_u32 s{sMODE}, 0')
    A(f's_cbranch_scc1 L_fb{p}_b')
    for qt in range(4):
        for k in range(8):
            s = S(1 - p, k >> 2, qt) + (k & 3)
            A(f'v_sub_f32 v{s}, v{s}, v{m[qt]}')
    A(f'L_fb{p}_b:')
    for T in range(8):
        for qt in range(4):
            b = EP + 12 + ((T * 4 + qt) % 2) * 4
            for r in range(4): A(f'v_accvgpr_read_b32 v{b + r}, a{O(T, qt) + r}')
            for r in range(4): A(f'v_mul_f32 v{b + r}, v{b + r}, v{f[qt]}')
            for r in range(4): A(f'v_accvgpr_write_b32 a{O(T, qt) + r}, v{b + r}')
    A.extend(dense(softmax_stream(2 + p, range(4))))
    A('s_nop 3')
    A(f's_setpc_b64 s[{sRET}:{sRET + 1}]')
    A.fix_hazards()
    return A

def stamp(A, idx, base=64, dbg=False):
    if OPT['dbgs'] and A is not None and getattr(A, 'k1', False) and (dbg != (idx not in (0, 10))): return
    if dbg and not OPT['dbgs']: return
    if OPT['stamps']: A(f's_memtime s[{base + idx * 2}:{base + idx * 2 + 1}]')
def store_stamps(A, n):
    A('s_memrealtime s[62:63]\ns_waitcnt lgkmcnt(0)')
    A('v_lshrrev_b32 v1, 6, v0\ns_lshl_b32 s50, s2, 2\nv_add_u32 v1, s50, v1\nv_lshlrev_b32 v1, 7, v1')
    A('v_and_b32 v2, 63, v0\nv_cmp_eq_u32 vcc, 0, v2\ns_and_saveexec_b64 s[50:51], vcc')
    for i in range(n):
        for k in range(4): A(f'v_mov_b32 v{4 + k}, s{60 + i * 4 + k}')
        A(f'buffer_store_dwordx4 v[4:7], v1, s[56:59], 0 offen offset:{i * 16}')
        A('s_nop 1')

def code_prefetch(A, start, end, va, vd, n):
    A(f's_getpc_b64 s[50:51]')
    A(f'L_pc_{start}:')
    if start == KNAME:
        A(f's_sub_u32 s50, s50, L_pc_{start}-{start}')
        A(f's_subb_u32 s51, s51, 0')
    else:
        A(f's_add_u32 s50, s50, {start}-L_pc_{start}')
        A(f's_addc_u32 s51, s51, 0')
    A(f'v_lshlrev_b32 v{va}, 7, v0')
    for i in range(n):
        A(f'v_min_u32 v{va + 1}, {end}-{start}-4, v{va}')
        ins = Ins(f'global_load_dword v{vd}, v{va + 1}, s[50:51]', 'pf')
        A.add(ins)
        if i + 1 < n: A(f'v_add_u32 v{va}, 0x8000, v{va}'); vd += 1

def seg_name(j):
    jj = j & 31
    if jj == 0: return 's0'
    if j == 31: return 'sp31'
    if j == 63: return 'fin31'
    return f'r{j % 8}'

def gen_k1():
    A = Prog(); A.k1 = True
    A('s_cmp_ge_u32 s2, 256\ns_cbranch_scc1 L_k1_end')
    if OPT['cpf'] and OPT['early']: code_prefetch(A, KNAME, 'L_code_end', 100, 252, 3)
    if OPT['stamps']: A('s_memrealtime s[60:61]')
    stamp(A, 0)
    if int(OPT['stag0']):
        A(f's_bfe_u32 s50, s2, 0x30003\ns_mul_i32 s50, s50, {int(OPT["stag0"])}\nL_stag0:\ns_sleep 4\ns_sub_u32 s50, s50, 1\ns_cbranch_scc0 L_stag0')
    if OPT['map'] == 'o':
        A('''s_and_b32 s46, s2, 7
s_lshr_b32 s47, s2, 3
s_lshr_b32 s48, s47, 4
s_lshl_b32 s46, s46, 1
s_add_u32 s46, s46, s48
s_and_b32 s47, s47, 15''')
    else:
        A('''s_and_b32 s46, s2, 6
s_lshl_b32 s46, s46, 1
s_lshr_b32 s48, s2, 6
s_add_u32 s46, s46, s48
s_and_b32 s47, s2, 1
s_lshl_b32 s47, s47, 3
s_bfe_u32 s48, s2, 0x30003
s_add_u32 s47, s47, s48''')
    A('''s_lshr_b32 s48, s46, 3
s_and_b32 s49, s46, 7
s_mul_i32 s50, s48, 40
s_add_u32 s52, s0, s50
s_addc_u32 s53, s1, 0
s_lshr_b32 s51, s2, 7
s_mul_i32 s51, s51, 40
s_add_u32 s54, s0, s51
s_addc_u32 s55, s1, 0''')
    A(f'''s_load_dwordx2 s[{SX}:{SX+1}], s[52:53], 0
s_load_dwordx2 s[{SWE}:{SWE+1}], s[52:53], 24
s_load_dwordx2 s[{SK}:{SK+1}], s[52:53], 8
s_load_dwordx2 s[{SV}:{SV+1}], s[52:53], 16
s_load_dwordx2 s[{SWS}:{SWS+1}], s[54:55], 32
s_load_dwordx2 s[{SO}:{SO+1}], s[0:1], 96
s_load_dwordx4 s[92:95], s[0:1], 80''')
    A(f'''v_lshrrev_b32 v1, 6, v0
v_and_b32 v2, 63, v0
v_readfirstlane_b32 s{sW}, v1
v_and_b32 v96, 15, v2
v_lshrrev_b32 v97, 4, v2
v_and_b32 v98, 3, v2
v_bfe_u32 v99, v2, 2, 2''')
    A(f's_lshl_b32 s{sW2K}, s{sW}, 11\ns_lshl_b32 s{sW4K}, s{sW}, 12')
    A(f'''v_lshrrev_b32 v100, 3, v2
v_lshl_add_u32 v100, v1, 6, v100
v_mul_u32_u24 v100, 1152, v100
v_and_b32 v101, 7, v2
v_xor_b32 v101, v101, v97
v_lshl_add_u32 v{VOFFX}, v101, 4, v100
v_xor_b32 v101, 4, v101
v_lshl_add_u32 v102, v101, 4, v100
v_add_u32 v{VOFFX + 1}, {8 * 1152 - 1024}, v102
v_add_u32 v{VOFFX + 2}, {2 * (8 * 1152 - 1024)}, v{VOFFX}
v_add_u32 v{VOFFX + 3}, {3 * (8 * 1152 - 1024)}, v102''')
    A(f'''v_lshrrev_b32 v100, 5, v2
v_and_b32 v101, 31, v2
v_and_b32 v102, 1, v1
v_lshl_add_u32 v102, v102, 2, v100
v_lshl_add_u32 v103, v1, 3, v100
v_lshlrev_b32 v103, 13, v103''')
    for n in range(4):
        A(f'v_add_u32 v104, {2 * (n & 1)}, v102\nv_lshlrev_b32 v104, 1, v104\nv_xor_b32 v104, v104, v101\nv_lshl_add_u32 v104, v104, 4, v103')
        A(f'v_add_u32 v{VOFFWE + n}, {n * (16384 - 1024)}, v104')
    A(f'''s_mul_i32 s50, s49, 294912
s_lshl_b32 s51, s47, 9
s_waitcnt lgkmcnt(0)''')
    stamp(A, 1); stamp(A, 1, dbg=True)
    A(f'''s_add_u32 s{SX}, s{SX}, s50
s_addc_u32 s{SX+1}, s{SX+1}, 0
s_mov_b32 s{SX+2}, 294912
s_mov_b32 s{SX+3}, 0x20000
s_add_u32 s{SWE}, s{SWE}, s51
s_addc_u32 s{SWE+1}, s{SWE+1}, 0
s_sub_u32 s{SWE+2}, {576 * 8192}, s51
s_mov_b32 s{SWE+3}, 0x20000''')
    A.extend(flat(dma_x(0)) + flat(dma_x(1)) + flat(dma_w(0)))
    stamp(A, 2, dbg=True)
    A.extend(flat(dma_w(1)))
    stamp(A, 3, dbg=True)
    if OPT['cpf'] and not OPT['early']: code_prefetch(A, KNAME, 'L_code_end', 100, 252, 3)
    stamp(A, 4, dbg=True)
    A(f'v_lshlrev_b32 v100, 11, v1\nv_lshl_add_u32 v100, v97, 8, v100')
    A(f'v_lshl_add_u32 v101, v1, 3, v97')
    for o in range(2):
        A(f'v_add_u32 v102, {4 * o}, v101\nv_and_b32 v103, 15, v102\nv_xor_b32 v103, v103, v96\nv_lshl_add_u32 v{VOFFK + o}, v103, 4, v100')
        A(f'v_and_b32 v103, 7, v102\nv_lshlrev_b32 v103, 1, v103\nv_xor_b32 v103, v103, v96\nv_lshl_add_u32 v{VOFFV + o}, v103, 4, v100')
    if OPT['noswz']:
        for r in (VOFFK, VOFFK + 1, VOFFV, VOFFV + 1): A(f'v_lshl_add_u32 v{r}, v96, 4, v100')
    A(f'v_lshlrev_b32 v100, 12, v1\nv_lshl_add_u32 v100, v97, 8, v100')
    for n in range(4):
        A(f'v_add_u32 v102, {4 * n}, v97\nv_xor_b32 v103, v102, v96\nv_lshl_add_u32 v{VSWO + n}, v103, 4, v100')
        A(f'v_and_b32 v103, 7, v102\nv_lshlrev_b32 v103, 1, v103\nv_xor_b32 v103, v103, v96\nv_lshl_add_u32 v{VSWE + n}, v103, 4, v100')
    A(f'''s_lshl_b32 s50, s49, 23
s_lshl_b32 s51, s47, 19
s_add_u32 s50, s50, s51
s_add_u32 s{SK}, s{SK}, s50
s_addc_u32 s{SK+1}, s{SK+1}, 0
s_mov_b32 s{SK+2}, 0x80000
s_mov_b32 s{SK+3}, 0x20000
s_add_u32 s{SV}, s{SV}, s50
s_addc_u32 s{SV+1}, s{SV+1}, 0
s_mov_b32 s{SV+2}, 0x80000
s_mov_b32 s{SV+3}, 0x20000''')
    A(f'''s_mov_b32 s{sWS}, s{SO}
s_mov_b32 s{sWS+1}, s{SO+1}
s_mov_b32 s{sOUT}, s92
s_mov_b32 s{sOUT+1}, s93
s_and_b32 s50, s2, 127
s_mul_i32 s50, s50, 36864
s_add_u32 s{SWS}, s{SWS}, s50
s_addc_u32 s{SWS+1}, s{SWS+1}, 0
s_mov_b32 s{SWS+2}, 36864
s_mov_b32 s{SWS+3}, 0x20000
s_lshr_b32 s50, s2, 7
s_lshl_b32 s50, s50, 9
s_and_b32 s51, s2, 64
s_add_u32 s50, s50, s51
s_bfe_u32 s51, s2, 0x10002
s_lshl_b32 s51, s51, 5
s_add_u32 s50, s50, s51
s_bfe_u32 s51, s2, 0x30003
s_lshl_b32 s51, s51, 2
s_add_u32 s50, s50, s51
s_and_b32 s51, s2, 3
s_add_u32 s50, s50, s51
s_mul_i32 s50, s50, 9216
s_add_u32 s50, s50, {WS_WO}
s_add_u32 s{SWD}, s{SO}, s50
s_addc_u32 s{SWD+1}, s{SO+1}, 0
s_mov_b32 s{SWD+2}, {3 * 128 * 9216 + 9216}
s_mov_b32 s{SWD+3}, 0x20000
s_lshl_b32 s50, s2, 7
s_lshl_b32 s51, s{sW}, 2
s_add_u32 s50, s50, s51
s_add_u32 s50, s50, {WS_FL}
s_add_u32 s{SFL}, s{SO}, s50
s_addc_u32 s{SFL+1}, s{SO+1}, 0
s_mov_b32 s{SFL+2}, 36
s_mov_b32 s{SFL+3}, 0x20000
v_mov_b32 v{VFLAG}, 0
v_mov_b32 v{VPA}, 0
v_lshlrev_b32 v{VL4}, 4, v2''')
    A(f'buffer_store_dword v{VFLAG}, v{VL4}, {srd(SFL)}, 0 offen {OPT["f_st"]}', tag='Fz')
    A(f'v_lshlrev_b32 v{VL4}, 6, v2')
    for n in range(3):
        A(f'''v_add_u32 v100, {64 * n}, v2
v_mul_u32_u24 v101, 2731, v100
v_lshrrev_b32 v101, 16, v101
v_mul_u32_u24 v102, 24, v101
v_sub_u32 v100, v100, v102
v_lshl_add_u32 v101, v1, 3, v101
v_mul_u32_u24 v101, 1152, v101
v_lshl_add_u32 v101, v100, 4, v101
v_subrev_u32 v{VOFFJ + n}, {n * 1024}, v101''')
    A(f'''v_bfe_u32 v100, v2, 2, 4
v_mul_u32_u24 v100, 384, v100
v_mul_u32_u24 v101, 96, v1
v_add_u32 v100, v100, v101
v_lshl_add_u32 v{JADDR}, v98, 3, v100''')
    if OPT['stamps']:
        A(f's_add_u32 s56, s{SO}, {WS_STAMP}\ns_addc_u32 s57, s{SO+1}, 0\ns_mov_b32 s58, 0x100000\ns_mov_b32 s59, 0x20000')
    A(f'''s_lshl_b32 s50, s46, 2
s_add_u32 s50, s50, s{sW}
s_lshl_b32 s50, s50, 19
s_lshl_b32 s51, s47, 15
s_add_u32 s50, s50, s51
s_add_u32 s{SO}, s{SO}, s50
s_addc_u32 s{SO+1}, s{SO+1}, 0
s_mov_b32 s{SO+2}, 32768
s_mov_b32 s{SO+3}, 0x20000
s_mov_b32 s{sSC}, {f2i(SCALE):#x}
s_mov_b32 s{sSC+1}, {f2i(SCALE):#x}
s_mov_b32 s{sTHR}, {f2i(2.0 ** 24):#x}
s_mov_b32 s{sOo}, 0
s_mov_b32 s{sDBG}, s94
s_mov_b32 s{sDBG+1}, s95
v_lshlrev_b32 v{VOFFO}, 4, v2''')
    A('v_xor_b32 v100, v97, v96\nv_lshlrev_b32 v100, 4, v100\nv_lshl_add_u32 v100, v96, 8, v100')
    for u in range(4): A(f'v_xor_b32 v{KADDR + u}, {u * 64}, v100')
    A('v_lshl_add_u32 v100, v97, 2, v99\nv_and_b32 v101, 7, v100\nv_lshlrev_b32 v101, 5, v101\nv_lshl_add_u32 v101, v100, 8, v101\nv_lshl_add_u32 v101, v98, 3, v101\nv_add_u32 v101, 0x10000, v101')
    for T in range(8): A(f'v_xor_b32 v{VADDR + T}, {T * 32}, v101')
    A('v_lshl_add_u32 v100, v97, 3, v99\nv_and_b32 v101, 1, v97\nv_lshl_add_u32 v101, v101, 2, v99\nv_lshlrev_b32 v101, 5, v101\nv_lshl_add_u32 v101, v100, 9, v101\nv_lshl_add_u32 v101, v98, 3, v101')
    for T in range(8):
        A(f'v_xor_b32 v{WADDR + 8 + T}, {T * 32}, v101')
        A(f'v_add_u32 v{WADDR + T}, 0x10000, v{WADDR + 8 + T}')
    A(f'''v_lshrrev_b32 v100, 1, v96
v_xor_b32 v100, v100, v97
v_lshlrev_b32 v100, 4, v100
v_lshl_add_u32 v100, v96, 7, v100
v_lshl_add_u32 v100, v1, 12, v100
v_add_u32 v{XADDR}, {7 * BLK}, v100
v_xor_b32 v{XADDR + 1}, 64, v{XADDR}''')
    stamp(A, 5, dbg=True)
    stamp(A, 6, dbg=True)
    A.extend(flat(dma_x(2)) + flat(dma_w(2)) + flat(dma_w(3)))
    stamp(A, 7, dbg=True)
    def x_reads(pc):
        c = pc >> 1
        return [Ins(f'ds_read_b128 v[{XF(2 * c + ks, 2 * (pc & 1) + qq)}:{XF(2 * c + ks, 2 * (pc & 1) + qq) + 3}], v{XADDR + ks} offset:{(xblock(pc) - 7) * BLK + qq * 2048}', f'rX{pc}')
                for ks in range(2) for qq in range(2)]
    def w_reads(t):
        out = []
        for f in range(16):
            h, T = f >> 3, f & 7
            slot = (16 * t + f) % NWS
            blk = wblock(t)
            ad = WADDR + T if blk >= 4 else WADDR + 8 + T
            off = (blk - 4 if blk >= 4 else blk) * BLK + h * 256
            for s in range(2):
                out.append(Ins(f'ds_read_b64_tr_b16 a[{WF(slot) + 2 * s}:{WF(slot) + 2 * s + 1}], v{ad} offset:{off + s * 2048}', f'rW{t}'))
        return out
    stamp(A, 2)
    A('WAITVM X0+X1+W0+W1\ns_barrier')
    stamp(A, 3); stamp(A, 8, dbg=True)
    A.extend(x_reads(0) + x_reads(1) + w_reads(0))
    for t in range(18):
        mf = []
        for f in range(16):
            h, T = f >> 3, f & 7
            for qt in range(4):
                acc = QACC(h, T, qt)
                mf.append(mfma(acc, f'a{WF((16 * t + f) % NWS)}', f'v{XF(t, qt)}', acc if t else '0'))
        G = Gaps(64)
        groups = []
        if t in (1, 5, 9):
            r = t // 4
            groups += [[([f's_mov_b32 s{sWe}, {r * 384}', f's_mul_i32 m0, s{sW}, 3072'] if n == 0 else [],
                         Ins(f'buffer_load_dwordx4 v{VOFFJ + n}, {srd(SWS)}, s{sWe} offen offset:{n * 1024} nt lds', f'J{r}'), []) for n in range(3)]]
        if t == 0: groups += [dma_x(3), dma_x(4), dma_w(4)]
        if t == 1: groups += [dma_w(5)]
        if t == 13: groups += [dma_w(99)]
        if t >= 1: groups += [dma_w(t + 5)]
        if t == 17: groups += [dma_w(23)]
        if t + 5 < 18: groups += [dma_x(t + 5)]
        def JR(r, n):
            i = r * 3 + n
            return f'a[{224 + 4 * i}:{227 + 4 * i}]' if i < 8 else 'v[92:95]'
        def JH(r, n, sx):
            i = r * 3 + n
            return f'a[{224 + 4 * i + 2 * sx}:{225 + 4 * i + 2 * sx}]' if i < 8 else f'v[{92 + 2 * sx}:{93 + 2 * sx}]'
        ngr = len(groups)
        if ngr == 4: gl = [[5, 8, 11, 14], [18, 22, 26, 30], [34, 38, 42, 46], [51, 54, 57, 60]]
        elif ngr == 3: gl = [[2, 7, 12, 17], [24, 29, 34, 39], [50, 54, 58, 61]]
        elif ngr == 2: gl = [[2, 10, 18, 26], [34, 42, 50, 58]]
        else: gl = [[2, 18, 34, 50]]
        dg = [g for gr, pos in zip(groups, gl) for g in pos[:len(gr)]]
        free = [g for g in range(64) if g not in dg]
        rds = []
        if t + 2 < 18:
            G.sc[0].append(f'WAITVM X{t + 2}')
            rds += x_reads(t + 2)
            if t + 5 < 18:
                xi = [i for i, gr in enumerate(groups) if gr[0][1].tag == f'X{t + 5}'][0]
                G.sc[gl[xi][0] - 3].append(f'WAITLG rX{t + 2}')
        if t in (3, 7, 11):
            rds += [Ins(f'ds_read_b64_tr_b16 {JH(t // 4, n, sx)}, v{JADDR} offset:{n * 32 + sx * 16 * 384}') for n in range(3) for sx in range(2)]
        if t == 0: G.sc[2].append('WAITLG rX1')
        if t + 1 < 18:
            for r, g in zip(rds + w_reads(t + 1), free): G.mem[g].append(r)
        else:
            for r in (2, 1, 0):
                g0 = {2: 13, 1: 29, 0: 45}[r]
                st_ = [([f's_add_u32 s{sT0}, s{sW}, {4 * r}', f's_mul_i32 s{sXo}, s{sT0}, 43', f's_lshr_b32 s{sXo}, s{sXo}, 7',
                         f's_mul_i32 s{sXo}, s{sXo}, {128 * 9216 - 9216}', f's_mul_i32 s{sT0}, s{sT0}, 3072', f's_add_u32 s{sT0}, s{sT0}, s{sXo}'] if n == 0 else [],
                        Ins(cl(f'buffer_store_dwordx4 {JR(r, n)}, v{VOFFO}, {srd(SWD)}, s{sT0} offen offset:{n * 1024} {OPT["j_st"]}'), 'Jst'), []) for n in range(3)]
                G.place_dma(st_, [g0, g0 + 2, g0 + 7])
            for r, g in zip(k_reads(0), [1, 4, 6, 8, 24, 28, 40, 56]): G.mem[g].append(r)
        for gr, g in zip(groups, gl): G.place_dma(gr, g)
        if OPT['qtl'] and t < 16:
            for hh in range(2):
                G.v[45 + 0 - 32 * hh].append(f's_memtime s[98:99]')
                G.v[61 - 32 * hh].append('s_waitcnt lgkmcnt(0)')
                G.v[61 - 32 * hh].append(f'v_writelane_b32 v83, s98, {2 * t + 1 - hh}')
        if t % 2 == 0:
            c = t // 2 + 1
            tags = f'W{2 * c}+W{2 * c + 1}' if c <= 8 else 'KK0'
            if t in (2, 6, 10): tags += f'+J{t // 4}'
            G.sc[62].append(f'WAITVM {tags} lg0'); G.sc[62].append('s_barrier')
        if t == 16 and OPT['qtl']: G.v[63].append('v_mov_b32 v43, v83')
        A.extend(G.weave(mf))
    A('.mark conv')
    stamp(A, 4); stamp(A, 9, dbg=True)
    A(f's_mov_b32 s{sKo}, {8 * 8192}\ns_mov_b32 s{sVo}, {6 * 8192}\ns_mov_b32 s{sCnt}, 3\ns_mov_b32 s{sHead}, 0')
    A(f"""s_and_b32 s50, s2, 6
s_lshl_b32 s50, s50, 3
s_lshr_b32 s51, s2, 5
s_lshl_b32 s51, s51, 1
s_add_u32 s50, s50, s51
s_lshr_b32 s51, s{sW}, 1
s_add_u32 s50, s50, s51
s_lshl_b32 s50, s50, 19
s_and_b32 s51, s2, 1
s_lshl_b32 s51, s51, 18
s_add_u32 s50, s50, s51
s_and_b32 s51, s{sW}, 1
s_lshl_b32 s51, s51, 11
s_add_u32 s50, s50, s51
s_add_u32 s{SGO}, s{sWS}, s50
s_addc_u32 s{SGO+1}, s{sWS+1}, 0
s_mov_b32 s{SGO+2}, {262144 - 2048}
s_and_b32 s50, s2, 4
s_bfe_u32 s51, s2, 0x20003
s_add_u32 s50, s50, s51
s_lshl_b32 s50, s50, 1
s_and_b32 s51, s2, 1
s_add_u32 s50, s50, s51
s_mul_i32 s50, s50, {64 * 9216}
s_add_u32 s50, s50, {WS_WO}
s_add_u32 s{SGW}, s{sWS}, s50
s_addc_u32 s{SGW+1}, s{sWS+1}, 0
s_mov_b32 s{SGW+2}, {64 * 9216}""")
    A('v_and_b32 v96, 15, v2\nv_lshrrev_b32 v97, 4, v2')
    A(f'v_lshlrev_b32 v100, 12, v1\nv_add_u32 v100, {8 * BLK}, v100')
    for u in range(4): A(f'v_add_u32 v{104 + u}, v100, v{KADDR + u}')
    A('v_lshrrev_b32 v101, 1, v97\nv_xor_b32 v101, v101, v96\nv_lshlrev_b32 v101, 4, v101\nv_lshl_add_u32 v101, v96, 8, v101\nv_and_b32 v102, 1, v97\nv_lshl_add_u32 v101, v102, 3, v101\nv_add_u32 v101, v101, v100')
    for T in range(8): A(f'v_xor_b32 v{108 + T}, {T * 32}, v101')
    units = []
    k = 0
    for h in range(2):
        for qt in range(4):
            for T0 in range(0, 8, 2):
                rd = []; mu = []; cv = []; wr = []
                for T in (T0, T0 + 1):
                    acc = QACC(h, T, qt)
                    if h == 0: b = int(acc[1:])
                    else:
                        b = 28 + (k % 2) * 8 + (T & 1) * 4
                        rd += [f'v_accvgpr_read_b32 v{b + r}, a{int(acc[1:]) + r}' for r in range(4)]
                    mu += [f'v_pk_mul_f32 v[{b + 2 * i}:{b + 2 * i + 1}], v[{b + 2 * i}:{b + 2 * i + 1}], s[{sSC}:{sSC + 1}]' for i in range(2)]
                    d = 116 + (k % 3) * 4 + (T & 1) * 2
                    cv += [f'v_cvt_pk_bf16_f32 v{d + i}, v{b + 2 * i}, v{b + 2 * i + 1}' for i in range(2)]
                    wr += [f'ds_write_b64 v{108 + T}, v[{d}:{d + 1}]']
                if T0 == 6: wr += [f'ds_read_b128 a[{Q(h, qt, u)}:{Q(h, qt, u) + 3}], v{104 + u}' for u in range(4)]
                units.append((rd, mu, cv, wr)); k += 1
    for k in range(len(units) + 2):
        if k < len(units): A.extend(units[k][0] + units[k][1])
        if 2 <= k: A.extend(units[k - 2][3])
        if 1 <= k <= len(units): A.extend(units[k - 1][2])
    if int(OPT['stag']):
        A(f's_bfe_u32 s50, s2, 0x30003\ns_mul_i32 s50, s50, {int(OPT["stag"])}\nL_stag:\ns_sleep 4\ns_sub_u32 s50, s50, 1\ns_cbranch_scc0 L_stag')
    stamp(A, 5)
    G = Gaps(32)
    kr = k_reads(1)
    for i in range(7): G.mem[4 * i + 4].append(kr[i])
    A.extend(G.weave(qk_mfmas(0)))
    A.add(kr[7])
    A.extend(init_stream(0))
    SH = 2
    st = softmax_stream(0, range(4))
    A.extend(dense(st[:32 + SH]))
    carry = st[32 + SH:]
    stamp(A, 6)
    if OPT['tl']: A('s_mov_b32 s97, 0\nv_and_b32 v41, 63, v0\nv_mov_b32 v43, 0')
    def tagsof(which, t):
        if which == 'V' and t < 6: return f'VV{t // 2}'
        if which == 'K' and 2 <= t < 8: return f'KK{t // 2}'
        return f'{which}{t}'
    GA = [4, 5, 6]
    def WB(s, n): return 128 + (s & 1) * 36 + n * 4
    def GACC(n, mm): i = n * 2 + mm; return 64 + i * 4 if i < 16 else 200 + (i - 16) * 4
    def OB(s, mm): return 128 + (s % 16) * 8 + mm * 4
    def g_wreads(s):
        out = []
        for n in range(9):
            ad = ((s >> 2) % 4) * 36864 + (s & 3) * 9216 + n * 1024
            out.append(Ins(f'ds_read_b128 v[{WB(s, n)}:{WB(s, n) + 3}], v{GA[ad >> 16]} offset:{ad & 0xffff}', f'rG{s}'))
        return out
    def g_oloads(s):
        gen, i, u = s >> 5, (s >> 2) & 7, s & 3
        return [([f's_mov_b32 s{sVo}, {(2 * i + gen) * 16384 + u * 4096}'] if mm == 0 else [],
                 Ins(cl(f'buffer_load_dwordx4 a[{OB(s, mm)}:{OB(s, mm) + 3}], v{VOFFO}, {srd(SGO)}, s{sVo} offen offset:{mm * 1024} {OPT["g_o"]}'), f'GO{s}'), []) for mm in range(2)]
    def g_w8(a, tag):
        return [([f's_mov_b32 s{sKo}, {a}', f's_add_u32 m0, s{sW2K}, {a}'] if o == 0 else [],
                 Ins(cl(f'buffer_load_dwordx4 v{VOFFK}, {srd(SGW)}, s{sKo} offen offset:{o * 1024} {OPT["g_w"]} lds'), tag), []) for o in range(2)]
    def g_wchunk(c):
        out = []
        for n in range(9):
            pre = [f's_add_u32 s{sKo}, s{sXo}, {c * 36864 + (n // 4) * 4096}', f's_add_u32 m0, s{sXo}, {(c % 4) * 36864 + (n // 4) * 4096}'] if n % 4 == 0 else []
            out.append((pre, Ins(cl(f'buffer_load_dwordx4 v{VOFFO}, {srd(SGW)}, s{sKo} offen offset:{(n % 4) * 1024} {OPT["g_w"]} lds'), f'GW{c}'), []))
        return out
    poll1 = f'buffer_load_dword v{VPOLL}, v{VPA}, {srd(SFP)}, 0 offen sc1'
    poll2 = f'buffer_load_dword v{VPOLL}, v{VPA}, {srd(SFP)}, 0 offen offset:16 sc1'
    pollc = f'buffer_load_dword v{VPOLL}, v{VPA}, {srd(SWS)}, 0 offen sc1'
    for j in range(64):
        jj = j & 31; nm = seg_name(j)
        A(f'.mark {nm}')
        G = Gaps(64)
        mf = (qk_mfmas(j + 1) if j + 1 < 64 else [None] * 32) + pv_mfmas(j)
        if j % 2 == 0:
            tags = '+'.join([tagsof('V', j), tagsof('V', j + 1), tagsof('K', j + 2), tagsof('K', j + 3)] + (['Jst', 'Fz'] if j == 6 else []) + (['Ost'] if j == 38 else []) + (['wbl'] if j == 46 else []))
            G.sc[0] += [f'WAITVM {tags} lg0'] + ([] if OPT['nobar'] else ['s_barrier'])
        p = j & 1
        last = len(carry) - 1
        if j < 63:
            for i, g in enumerate(carry): G.v[i] += g
        if jj != 0:
            G.v[17].append(f'v_max3_f32 v{CT}, v{Lr(p, 0)}, v{Lr(p, 1)}, v{Lr(p, 2)}')
            G.v[last].append(f'v_max_f32 v{CT}, v{CT}, v{Lr(p, 3)}')
            G.v[last].append(f'v_cmp_lt_f32 vcc, s{sTHR}, v{CT}')
            G.sc[last + 1] += [f's_cbranch_vccnz L_st_{nm}', f'L_bk_{nm}:']
        if j + 1 < 64:
            st = softmax_stream(j + 1, range(4))
            if (j + 1) & 31:
                for i, g in enumerate(st[:32 + SH]): G.v[32 - SH + i] += g
            else:
                fl = init_stream(j + 1) + dense(st[:32 + SH]) + [f'v_accvgpr_mov_b32 a{128 + i}, a{192 + i}' for i in range(64)]
                for i, x in enumerate(fl): G.v[34 + (i * 30) // len(fl)].append(x)
            ncarry = st[32 + SH:]
        if j < 63:
            vg = sorted([3 + 4 * i for i in range(8)] + [4 + 4 * i for i in range(8)])
            for r, g in zip(v_reads(j), vg): G.mem[g].append(r)
            for r, g in zip(k_reads(j + 2), [35, 36, 39, 40, 43, 47, 51, 55]): G.mem[g].append(r)
            jobs = dma_kv('K', j + 8) + dma_kv('V', j + 6)
            G.place_dma(jobs, [10, 26, 42, 59])
        else:
            P0 = Prog()
            P0.extend(v_reads(j))
            spin_check(P0, 'f1', poll1, 1)
            dn = dense(carry)
            ol = flat(g_oloads(0) + g_oloads(1) + g_oloads(2) + g_oloads(3))
            k = 0
            for i, x in enumerate(dn):
                P0(x)
                tgt = len(ol) * (i + 1) // len(dn)
                while k < tgt: P0.extend([ol[k]]); k += 1
            G.v[0] += P0.L
            G.v[18] += [f'v_mov_b32 v{GA[0]}, v{VOFFO}', f'v_add_u32 v{GA[1]}, 0x10000, v{VOFFO}', f'v_add_u32 v{GA[2]}, 0x20000, v{VOFFO}', f's_mul_i32 s{sXo}, s{sW}, 9216']
            G.sc[32] += ['WAITVM K68 lg0', 's_barrier']
            for r, g in zip(g_wreads(0), range(33, 60, 3)): G.mem[g].append(r)
            G.place_dma(g_w8(7 * 8192, 'GW1') + g_w8(8 * 8192, 'GW1') + g_oloads(4) + g_oloads(5), [35, 38, 43, 46, 50, 53, 56, 61])
        if OPT['tl']:
            G.sc[5].append('s_memtime s[98:99]')
            G.sc[52].append('s_waitcnt lgkmcnt(0)')
            G.v[52] += ['v_cmp_eq_u32 s[48:49], s97, v41', 'v_mov_b32 v42, s98']
            G.v[53] += ['v_cndmask_b32 v43, v43, v42, s[48:49]']
            G.sc[54].append('s_add_u32 s97, s97, 1')
        if nm == 'r6':
            G.sc[62].append(f's_sub_u32 s{sCnt}, s{sCnt}, 1')
        if nm == 'r7':
            G.sc[62].append(f's_cmp_eq_u32 s{sKo}, 0x40000')
        A.extend(G.weave(mf))
        carry = ncarry
        if j in (7, 39):
            A('.mark wb')
            if OPT['wb']:
                A(f's_cmp_lg_u32 s{sW}, 0\ns_cbranch_scc1 L_r0')
                A('buffer_wbl2 sc1', tag='wbl')
        if j == 15:
            A('.mark b7')
            A('WAITVM Jst+Fz+wbl')
            A(f's_mov_b32 s{SWS}, s{sDBG}\ns_mov_b32 s{SWS + 1}, s{sDBG + 1}\ns_mov_b32 s{SWS + 2}, 4\nv_mov_b32 v{VPOLL}, 1\nv_lshlrev_b32 v{VPA}, 2, v0')
            A(f'buffer_atomic_add v{VPOLL}, v{VPA}, {srd(SWS)}, 0 offen sc1', tag='Cwo')
        if j == 47:
            A('.mark mid')
            A(f's_mov_b32 s{sMODE}, 256\nv_mov_b32 v{VFLAG}, 1')
            spin_check(A, 'c', pollc, f's{sMODE}')
            if not OPT['noinv']: A('buffer_inv sc1', tag='inv')
            A('WAITVM Ost')
            A(f'buffer_store_dword v{VFLAG}, v{VL4}, {srd(SFL)}, 0 offen {OPT["f_st"]}', tag='F1')
            A(f"""s_andn2_b32 s50, s2, 0x38
s_lshl_b32 s50, s50, 7
s_bfe_u32 s51, s2, 0x10005
s_lshl_b32 s51, s51, 3
s_add_u32 s50, s50, s51
s_lshr_b32 s51, s{sW}, 1
s_lshl_b32 s51, s51, 2
s_add_u32 s50, s50, s51
s_add_u32 s50, s50, {WS_FL}
s_add_u32 s{SFP}, s{sWS}, s50
s_addc_u32 s{SFP+1}, s{sWS+1}, 0
s_mov_b32 s{SFP+2}, 8192
v_and_b32 v{VPA}, 7, v0
v_lshlrev_b32 v{VPA}, 10, v{VPA}""")
        if j == 55:
            A('.mark sw')
            A('WAITVM inv')
            A(f"""s_mov_b32 s{SK}, s{SGW}
s_mov_b32 s{SK+1}, s{SGW+1}
s_mov_b32 s{SK+2}, s{SGW+2}
s_mov_b32 s{sKo}, 0
v_add_u32 v{VOFFK}, s{sW2K}, v{VOFFO}
v_add_u32 v{VOFFK + 1}, s{sW2K}, v{VOFFO}""")
            A(poll1, tag='P1')
            if OPT['cpf']: code_prefetch(A, 'L_fin', 'L_code_end', 252, 254, 1)
        if j == 31:
            A('.mark epi')
            stamp(A, 7)
            A(f'v_mov_b32 v{VPA}, 0')
            A(pollc, tag='Pc')
            A.extend(epilogue(True, OPT['o1_store']))
            A(f's_mov_b32 s{sHead}, 1\ns_mov_b32 s{sCnt}, 3')
            stamp(A, 8)
    A('.mark tail')
    stamp(A, 9)
    if OPT['tl'] or OPT['qtl']: A('v_mov_b32 v59, v43')
    EPG = int(OPT['epg'])
    epi = epilogue(EPG == 0)
    pend = g_w8(9 * 8192, 'GW2') + g_w8(10 * 8192, 'GW2') + g_w8(11 * 8192, 'GW2') + g_w8(12 * 8192, 'GW2') + g_w8(13 * 8192, 'GW2')
    pend += g_w8(14 * 8192, 'GW3') + g_w8(15 * 8192, 'GW3') + g_w8(16 * 8192, 'GW3') + g_w8(17 * 8192, 'GW3')
    ek = 0
    G2 = int(OPT['g2s'])
    oq = list(range(6, 64))
    if EPG == 0:
        pre = []
        for x in range(6, 10): pre += g_oloads(x)
        pre += pend[:10]
        for x in range(10, 14): pre += g_oloads(x)
        pre += pend[10:]
        for x in range(14, 16): pre += g_oloads(x)
        pend = []; oq = list(range(16, 64))
        k = 0
        for i, x in enumerate(epi):
            A.extend([x])
            tgt = len(pre) * (i + 1) // len(epi)
            while k < tgt: A.extend(flat([pre[k]])); k += 1
        ek = len(epi)
    for s_ in range(64):
        c, u = s_ >> 2, s_ & 3
        mf = [mfma(f'v{GACC(n, mm)}', f'v{WB(s_, n)}', f'a{OB(s_, mm)}', f'v{GACC(n, mm)}' if s_ else '0') for n in range(9) for mm in range(2)]
        G = Gaps(18)
        if u == 3 and c < 15:
            tags = f'GW{c + 1}' + ('+K70' if c == 0 else '')
            G.sc[0] += [f'WAITVM {tags} lg0', 's_barrier']
            assert not [x for x in pend if x[1].tag == f'GW{c + 1}'], (c, [x[1].tag for x in pend])
            if c + 4 < 16: pend += g_wchunk(c + 4)
        if s_ + 1 < 64:
            for r, g in zip(g_wreads(s_ + 1), [0, 1, 3, 4, 5, 7, 8, 9, 11]): G.mem[g].append(r)
        jobs = []
        while oq and len(jobs) < 4 and oq[0] <= s_ + 15 and (oq[0] < 32 or s_ > G2):
            jobs += g_oloads(oq.pop(0))
        assert not oq or oq[0] > s_ + 3, (s_, oq[0])
        nw = 3 if len(jobs) < 4 else 2
        take = pend[:nw]; pend = pend[nw:]
        G.place_dma(jobs[:2], [2, 6])
        if len(jobs) == 4: G.place_dma(jobs[2:], [10, 12]); G.place_dma(take, [15, 17] if not (len(take) > 1 and take[1][0]) else [14, 17])
        else: G.place_dma(take, [10, 13, 16])
        if s_ == int(OPT['p2s']): G.mem[17].append(Ins(poll2, 'P2'))
        if OPT['gtl']:
            G.sc[12].append('s_memtime s[98:99]') if s_ % 2 == 0 else None
            if s_ % 2 == 1: G.v[0].append(f'v_writelane_b32 v59, s98, {s_ // 2}')
        for g in range(18):
            n = EPG - (1 if G.mem[g] else 0)
            while n > 0 and ek < len(epi):
                x = epi[ek]
                if isinstance(x, Ins) and x.kind == 'vst':
                    if G.v[g]: break
                    G.mem[g].append(x); ek += 1; n -= 1; continue
                G.v[g].append(x); ek += 1
                if not x.startswith('s_'): n -= 1
        if s_ == int(OPT['f2s']):
            assert ek == len(epi), (ek, len(epi))
            G.sc[16].append('WAITVM Ost')
            G.mem[17].append(Ins(f'buffer_store_dword v{VFLAG}, v{VL4}, {srd(SFL)}, 0 offen offset:16 {OPT["f_st"]}', 'F2'))
        if s_ == G2:
            P0 = Prog(); spin_check(P0, 'f2', poll2, 1)
            G.v[17] += P0.L
        if s_ == 40:
            su = f"""s_lshl_b32 s50, s2, 2
s_add_u32 s50, s50, s{sW}
s_mul_i32 s50, s50, 9216
s_add_u32 s50, s50, {WS_X}
s_add_u32 s{SO}, s{sWS}, s50
s_addc_u32 s{SO+1}, s{sWS+1}, 0
s_mov_b32 s{SO+2}, 9216
s_xor_b32 s50, s2, 1
s_lshl_b32 s51, s50, 2
s_add_u32 s51, s51, s{sW}
s_mul_i32 s51, s51, 9216
s_add_u32 s51, s51, {WS_X}
s_add_u32 s{SV}, s{sWS}, s51
s_addc_u32 s{SV+1}, s{sWS+1}, 0
s_mov_b32 s{SV+2}, 9216
s_lshl_b32 s50, s50, 7
s_lshl_b32 s51, s{sW}, 2
s_add_u32 s50, s50, s51
s_add_u32 s50, s50, {WS_FL + 32}
s_add_u32 s{SFP}, s{sWS}, s50
s_addc_u32 s{SFP+1}, s{sWS+1}, 0
s_mov_b32 s{SFP+2}, 4
s_and_b32 s50, s2, 2
s_lshl_b32 s50, s50, 2
s_lshr_b32 s51, s2, 5
s_add_u32 s50, s50, s51
s_lshl_b32 s50, s50, 2
s_add_u32 s50, s50, s{sW}
s_lshl_b32 s50, s50, 1
s_and_b32 s51, s2, 1
s_add_u32 s50, s50, s51
s_mul_i32 s50, s50, {16 * 2304}
s_bfe_u32 s51, s2, 0x10002
s_mul_i32 s51, s51, 1152
s_add_u32 s50, s50, s51
s_bfe_u32 s51, s2, 0x20003
s_mul_i32 s51, s51, 288
s_add_u32 s50, s50, s51
s_add_u32 s{SOUT}, s{sOUT}, s50
s_addc_u32 s{SOUT+1}, s{sOUT+1}, 0
s_mov_b32 s{SOUT+2}, {15 * 2304 + 288}
v_mov_b32 v{VPA}, 0""".split('\n')
            G.v[17] += su
        if 41 <= s_ < 46:
            k = s_ - 41
            vv = f"""v_add_u32 v28, {64 * k}, v2
v_mul_u32_u24 v29, 3641, v28
v_lshrrev_b32 v29, 16, v29
v_mul_u32_u24 v30, 18, v29
v_sub_u32 v30, v28, v30
v_lshlrev_b32 v30, 4, v30
v_mad_u32_u24 v{32 + k}, v29, s{sT0}, v30
v_mul_u32_u24 v29, 304, v29
v_add3_u32 v{40 + k}, v29, v30, v31""".split('\n')
            if k == 0:
                vv = [f's_movk_i32 s{sT0}, 2304', 'v_lshlrev_b32 v31, 13, v1', 'v_and_b32 v29, 15, v2', 'v_mul_u32_u24 v29, 304, v29', 'v_lshrrev_b32 v30, 4, v2',
                      'v_lshl_add_u32 v29, v30, 3, v29', 'v_add_u32 v39, v29, v31', f'v_add_u32 v37, 0x1000, v{VOFFO}', f'v_add_u32 v38, 0x2000, v{VOFFO}'] + vv
            for i, x in enumerate(vv): G.v[i % 18 if len(vv) <= 18 else i * 18 // len(vv)].append(x)
        A.extend(G.weave(mf))
    stamp(A, 10)
    A('s_bitcmp1_b32 s2, 0\ns_cbranch_scc1 L_x1')
    vo3 = [VOFFO, 37, 38]
    pollx = f'buffer_load_dword v{VPOLL}, v{VPA}, {srd(SFP)}, 0 offen sc1'
    for kh in range(2):
        if kh: A('L_x1:\ns_nop 7')
        for n in range(9):
            A(f'buffer_store_dwordx4 v[{GACC(n, 1 - kh)}:{GACC(n, 1 - kh) + 3}], v{vo3[n // 4]}, {srd(SO)}, 0 offen offset:{(n % 4) * 1024} {OPT["x_st"]}')
        if kh:
            A('s_nop 1')
            for n in range(9):
                for r in range(0, 4, 2): A(f'v_mov_b64 v[{GACC(n, 0) + r}:{GACC(n, 0) + r + 1}], v[{GACC(n, 1) + r}:{GACC(n, 1) + r + 1}]')
        else:
            A('s_branch L_x2')
    A('L_x2:')
    A('s_waitcnt vmcnt(0)')
    A(f'buffer_store_dword v{VFLAG}, v{VL4}, {srd(SFL)}, 0 offen offset:32 {OPT["f_st"]}')
    A(pollx)
    spin_check(A, 'x', pollx, 1)
    for n in range(9):
        A(f'buffer_load_dwordx4 v[{128 + 4 * n}:{131 + 4 * n}], v{vo3[n // 4]}, {srd(SV)}, 0 offen offset:{(n % 4) * 1024} sc1')
    for n in range(9):
        a = GACC(n, 0); b = 128 + 4 * n
        for r in range(0, 4, 2): A(f'v_pk_add_f32 v[{a + r}:{a + r + 1}], v[{a + r}:{a + r + 1}], v[{b + r}:{b + r + 1}]')
        A(f'v_cvt_pk_bf16_f32 v{b}, v{a}, v{a + 1}\nv_cvt_pk_bf16_f32 v{b + 1}, v{a + 2}, v{a + 3}')
        A(f'ds_write_b64 v39, v[{b}:{b + 1}] offset:{n * 32}')
    for k in range(5): A(f'ds_read_b128 v[{168 + 4 * k}:{171 + 4 * k}], v{40 + k}')
    for k in range(5): A(f'buffer_store_dwordx4 v[{168 + 4 * k}:{171 + 4 * k}], v{32 + k}, {srd(SOUT)}, 0 offen')
    if OPT['stamps']:
        A('s_waitcnt vmcnt(0)')
        stamp(A, 11)
        if OPT['tl'] or OPT['qtl'] or OPT['gtl']:
            A('s_lshl_b32 s50, s2, 10\ns_add_u32 s50, s50, 0x80000\nv_lshlrev_b32 v42, 2, v0\nbuffer_store_dword v59, v42, s[56:59], s50 offen')
        store_stamps(A, 7)
    A('L_k1_end:\ns_endpgm')
    A.resolve_waits()
    rep = []
    A.fix_hazards(rep)
    segs = {}
    for n, L in split_marks(A.L): segs.setdefault(n, []).append(L)
    M = {n: merge_segments(v) for n, v in segs.items()}
    if OPT['dummy']:
        import re as _re
        for nm, dst in (('conv', 'v56'), ('epi', 'v96')):
            out = []; k = 0; since = 0; stop = False
            for x in M[nm]:
                if x.kind == 'mfma': since = -3
                if x.text.startswith('v_sub_f32 v44'): stop = True; out.append(Ins('s_nop 7'))
                dm = lambda: Ins(mfma(dst, f'v{64 + 4 * (k % 8)}', f'v{64 + 4 * ((k // 3) % 8)}', dst))
                if x.mn == 'v_pk_mul_f32':
                    m = _re.match(r'v_pk_mul_f32 v\[(\d+):\d+\], v\[\d+:\d+\], ([vs])\[(\d+):', x.text)
                    d = int(m[1]); out.append(Ins(f'v_mul_f32 v{d}, {m[2]}{m[3]}, v{d}')); out.append(Ins(f'v_mul_f32 v{d + 1}, {m[2]}{m[3]}, v{d + 1}')); since += 2
                else:
                    if x.kind in ('dsw', 'dsr', 'vst') and since > 0 and not stop:
                        out.append(dm()); k += 1; since = 0
                    out.append(x); since += 1 if x.kind != 'trans' else 2
                if since >= 2 and not stop:
                    out.append(dm()); k += 1; since = 0
            out.append(Ins('s_nop 7'))
            M[nm] = out
    F = Prog(); F.k1 = True
    F.extend(M['_start'])
    F.extend(M['conv'])
    F('L_s0:')
    F.extend(M['s0'])
    F('s_branch L_r1\n.p2align 6\nL_r0:')
    F.extend(M['r0'])
    F('L_r1:')
    for k in range(1, 7): F.extend(M[f'r{k}'])
    F('s_cbranch_scc1 L_sp')
    F.extend(M['r7'])
    F(f's_cbranch_scc1 L_r0\ns_cmp_eq_u32 s{sKo}, 0x80000\ns_cbranch_scc1 L_sw\ns_cmp_eq_u32 s{sKo}, 0x70000\ns_cbranch_scc1 L_mid\ns_cmp_eq_u32 s{sKo}, 0x30000\ns_cbranch_scc1 L_b7')
    F.extend(M['wb'])
    F('s_branch L_r0\nL_b7:')
    F.extend(M['b7'])
    F('s_branch L_r0\nL_mid:')
    F.extend(M['mid'])
    F('s_branch L_r0\nL_sw:')
    F.extend(M['sw'])
    F(f"""s_branch L_r0
L_sp:
s_cmp_lg_u32 s{sHead}, 0
s_cbranch_scc1 L_fin""")
    F.extend(M['sp31'])
    F.extend(M['epi'])
    F('s_branch L_s0')
    for nm, p, mode in [(f'r{k}', k & 1, 0) for k in range(8)] + [('sp31', 1, 1), ('fin31', 1, 1)]:
        F(f'L_st_{nm}:\ns_mov_b32 s{sMODE}, {mode}\ns_call_b64 s[{sRET}:{sRET + 1}], L_fb{p}\ns_branch L_bk_{nm}')
    F.extend(fallback(0).L); F.extend(fallback(1).L)
    for x in SPINS: F(x)
    F('L_fin:')
    F.extend(M['fin31'])
    F.extend(M['tail'])
    return F, rep

def build(path):
    A, rep = gen_k1()
    hdr = open('cdna_kernels/' + NAME + '.s.ref').read().split('; Override launch')[0]
    t = hdr + '; @launch grid=(256,1,1) block=(256,1,1) lds=163840\n'
    t += '.amdgcn_target "amdgcn-amd-amdhsa--gfx950"\n.text\n' + MACROS
    t += prolog(KNAME) + A.text() + 'L_code_end:\n'
    t += kd(KNAME, 512, 100, 256)
    open(path, 'w').write(t)
    return rep, len(t)

if __name__ == '__main__':
    path = sys.argv[1]
    for kv in sys.argv[2:]:
        k, v = kv.split('=')
        assert k in OPT, k
        OPT[k] = (v == '1') if isinstance(OPT.get(k), bool) else v
    rep, n = build(path)
    from collections import Counter
    print('bytes', n, 'pads', Counter((a, b.split()[0]) for a, b in rep).most_common(12))
```

```python
import re

_REG = re.compile(r'^-?(?:abs\()?([vas])(?:(\d+)|\[(\d+):(\d+)\])\)?$')
def regs_of(tok):
    tok = tok.strip()
    m = _REG.match(tok)
    if m:
        f = m.group(1)
        if m.group(2) is not None:
            return [(f, int(m.group(2)))]
        return [(f, i) for i in range(int(m.group(3)), int(m.group(4)) + 1)]
    if tok == 'vcc': return [('s', 'vcc')]
    if tok == 'm0': return [('s', 'm0')]
    if tok == 'exec': return [('s', 'exec')]
    return []

TRANS = ('v_exp_f32', 'v_rcp_f32', 'v_log_f32', 'v_rsq_f32', 'v_sqrt_f32')
class Ins:
    __slots__ = ('text', 'mn', 'kind', 'rd', 'wr', 'tag', 'srcC', 'srcAB', 'meta')
    def __init__(self, text, tag=None, meta=None):
        self.text = text; self.tag = tag; self.meta = meta
        self.srcC = set(); self.srcAB = set()
        t = text.split(';')[0].strip()
        if t.endswith(':'):
            self.mn = 'label'; self.kind = 'label'; self.rd = set(); self.wr = set(); return
        if t.startswith('.'):
            self.mn = 'dir'; self.kind = 'dir'; self.rd = set(); self.wr = set(); return
        parts = t.split(None, 1)
        mn = parts[0]; self.mn = mn
        ops = []
        if len(parts) > 1:
            body = re.sub(r'\b(op_sel_hi|op_sel|neg_lo|neg_hi|quad_perm):\[[^\]]*\]', '', parts[1])
            ops = [o.strip() for o in body.split(',')]
            last = ops[-1].split()
            mods = last[1:]
            ops[-1] = last[0] if last else ''
        else:
            mods = []
        R = [regs_of(o) for o in ops]
        rd = set(); wr = set()
        if mn.startswith('v_mfma'):
            self.kind = 'mfma'; wr.update(R[0]); rd.update(R[1] + R[2] + R[3])
            self.srcAB = set(R[1] + R[2]); self.srcC = set(R[3])
        elif mn.startswith('v_cmp'):
            self.kind = 'valu'; wr.update(R[0]); rd.update(sum(R[1:], []))
        elif mn.startswith('v_permlane') and 'swap' in mn:
            self.kind = 'valu'; wr.update(R[0] + R[1]); rd.update(R[0] + R[1])
        elif mn.startswith('v_'):
            self.kind = 'trans' if mn.replace('_e32', '').replace('_e64', '') in TRANS else 'valu'
            wr.update(R[0]); rd.update(sum(R[1:], []))
            if mn.startswith('v_cndmask') and len(ops) == 3: rd.add(('s', 'vcc'))
        elif mn.startswith('ds_read'):
            self.kind = 'dsr'; wr.update(R[0]); rd.update(R[1])
        elif mn.startswith('ds_write'):
            self.kind = 'dsw'; rd.update(sum(R, []))
        elif mn.startswith('buffer_load'):
            if 'lds' in mods:
                self.kind = 'dma'; rd.update(sum(R, [])); rd.add(('s', 'm0'))
            else:
                self.kind = 'vld'; wr.update(R[0]); rd.update(sum(R[1:], []))
        elif mn in ('buffer_inv', 'buffer_wbl2'):
            self.kind = 'vst'
        elif mn.startswith('global_load'):
            self.kind = 'vld'; wr.update(R[0]); rd.update(sum(R[1:], []))
        elif mn.startswith('buffer_store') or mn.startswith('buffer_atomic'):
            self.kind = 'vst'; rd.update(sum(R, []))
        elif mn in ('s_waitcnt', 's_nop', 's_barrier', 's_endpgm', 's_setprio', 's_sleep', 'WAITVM', 'WAITLG'):
            self.kind = {'s_waitcnt': 'wait', 's_nop': 'nop', 's_barrier': 'barrier', 'WAITVM': 'waitvm', 'WAITLG': 'waitlg'}.get(mn, 'smisc')
        elif mn.startswith('s_cbranch') or mn in ('s_branch', 's_setpc_b64', 's_call_b64'):
            self.kind = 'branch'
            if 'vcc' in mn: rd.add(('s', 'vcc'))
        elif mn.startswith('s_cmp') or mn.startswith('s_bitcmp'):
            self.kind = 'salu'; rd.update(sum(R, []))
        elif mn.startswith('s_load') or mn.startswith('s_mem'):
            self.kind = 'smem'; wr.update(R[0]); rd.update(sum(R[1:], []))
        elif mn.startswith('s_'):
            self.kind = 'salu'; wr.update(R[0]); rd.update(sum(R[1:], []))
        else:
            raise ValueError('unknown instr: ' + text)
        self.rd = rd; self.wr = wr
    def states(self):
        if self.kind in ('label', 'dir'): return 0
        if self.kind == 'nop': return int(self.text.split()[1]) + 1
        return 1

def isv(r): return r[0] in ('v', 'a')

class Prog:
    def __init__(self):
        self.L = []
    def __call__(self, text, tag=None, meta=None):
        for line in text.strip().split('\n'):
            line = line.strip()
            if line: self.L.append(Ins(line, tag, meta))
    def add(self, ins): self.L.append(ins)
    def extend(self, lst):
        for x in lst:
            if isinstance(x, Ins): self.L.append(x)
            else: self(x)

    def resolve_waits(self, hoist=True):
        out = []
        lg = []
        vm = []
        def emit_wait(vmn=None, lgn=None, consumer=None):
            nonlocal lg, vm
            parts = []
            if vmn is not None: vmn = min(vmn, 62); parts.append(f'vmcnt({vmn})')
            if lgn is not None: lgn = min(lgn, 14); parts.append(f'lgkmcnt({lgn})')
            w = Ins('s_waitcnt ' + ' '.join(parts))
            if vmn is not None: vm = vm[len(vm) - vmn:] if vmn > 0 else []
            if lgn is not None: lg = lg[len(lg) - lgn:] if lgn > 0 else []
            return w
        for ins in self.L:
            if ins.kind == 'waitvm':
                toks = ins.text.split()
                tags = toks[1].split('+')
                idx = -1
                for i, o in enumerate(vm):
                    if o.tag in tags: idx = i
                vmn = len(vm) - 1 - idx if idx >= 0 else None
                lgn = 0 if ('lg0' in toks and lg) else None
                if vmn is not None or lgn is not None:
                    out.append(emit_wait(vmn, lgn))
                continue
            if ins.kind == 'waitlg':
                tags = ins.text.split()[1].split('+')
                idx = -1
                for i, o in enumerate(lg):
                    if o.tag in tags: idx = i
                if idx >= 0:
                    out.append(emit_wait(None, len(lg) - 1 - idx))
                continue
            if ins.kind == 'wait':
                m = re.search(r'vmcnt\((\d+)\)', ins.text)
                if m:
                    n = int(m.group(1)); vm = vm[len(vm) - n:] if 0 < n < len(vm) else ([] if n == 0 else vm)
                m = re.search(r'lgkmcnt\((\d+)\)', ins.text)
                if m:
                    n = int(m.group(1)); lg = lg[len(lg) - n:] if 0 < n < len(lg) else ([] if n == 0 else lg)
                out.append(ins); continue
            touched = ins.rd | ins.wr
            li = -1
            for i, o in enumerate(lg):
                if o.wr & touched: li = i
            vi = -1
            for i, o in enumerate(vm):
                if o.wr & touched: vi = i
            if li >= 0 or vi >= 0:
                pos = len(out)
                lgn = len(lg) - 1 - li if li >= 0 else None
                vmn = len(vm) - 1 - vi if vi >= 0 else None
                if hoist and ins.kind == 'mfma':
                    k = len(out) - 1; nl = 0; nv = 0; ok = True
                    while k >= 0 and out[k].kind != 'mfma':
                        o = out[k]
                        if o.kind in ('label', 'branch', 'barrier', 'wait') or (o.kind == 'dir' and not o.text.startswith('.mark')): ok = False; break
                        if (li >= 0 and o is lg[li]) or (vi >= 0 and o is vm[vi]): ok = False; break
                        if o.kind in ('dsr', 'dsw'): nl += 1
                        if o.kind in ('dma', 'vld', 'vst'): nv += 1
                        k -= 1
                    if ok and k >= 0 and len(out) - 1 - k <= 6 and (k + 1 >= len(out) or out[k + 1].kind not in ('salu', 'wait', 'smisc', 'nop')):
                        parts = []
                        if vmn is not None: vmn = min(vmn - nv, 62) + nv; parts.append(f'vmcnt({vmn - nv})')
                        if lgn is not None: lgn = min(lgn - nl, 14) + nl; parts.append(f'lgkmcnt({lgn - nl})')
                        out.insert(k + 1, Ins('s_waitcnt ' + ' '.join(parts)))
                        if vmn is not None: vm = vm[len(vm) - vmn:] if vmn > 0 else []
                        if lgn is not None: lg = lg[len(lg) - lgn:] if lgn > 0 else []
                    else:
                        out.append(emit_wait(vmn, lgn))
                else:
                    out.append(emit_wait(vmn, lgn))
            if ins.kind in ('dsr', 'dsw'): lg.append(ins)
            if ins.kind in ('dma', 'vld', 'vst'): vm.append(ins)
            if ins.kind == 'smem': raise_smem = True
            out.append(ins)
        self.L = out

    def fix_hazards(self, report=None):
        out = []
        npad = 0
        for ins in self.L:
            need = 0
            if ins.kind not in ('label', 'dir', 'nop', 'wait', 'barrier'):
                d = 0
                for k in range(len(out) - 1, -1, -1):
                    p = out[k]
                    if d >= 12: break
                    req = 0
                    pv = p.kind in ('valu', 'trans')
                    iv = ins.kind in ('valu', 'trans')
                    if p.kind == 'mfma':
                        D = p.wr
                        if ins.kind == 'mfma':
                            if D & ins.srcAB: req = max(req, 8)
                            if D & ins.srcC and ins.srcC != D: req = max(req, 6)
                            if D & ins.wr and ins.srcC != D: req = max(req, 6)
                        elif iv:
                            if D & (ins.rd | ins.wr): req = max(req, 8)
                            if p.srcC & ins.wr: req = max(req, 3)
                        elif ins.kind in ('dsr', 'dsw', 'vld', 'vst', 'dma'):
                            if D & (ins.rd | ins.wr): req = max(req, 8)
                    if pv:
                        vw = {r for r in p.wr if isv(r)}
                        sw = {r for r in p.wr if not isv(r)}
                        if ins.kind == 'mfma' and vw & ins.rd: req = max(req, 2)
                        if p.kind == 'trans' and iv and ins.kind != 'trans' and vw & ins.rd: req = max(req, 1)
                        if p.kind == 'trans' and ins.kind == 'trans' and vw & ins.rd: req = max(req, 1)
                        if ins.mn.startswith('v_permlane') and vw & ins.rd: req = max(req, 2)
                        if ins.mn.startswith(('v_readfirstlane', 'v_readlane')) and vw & ins.rd: req = max(req, 1)
                        if 'dpp' in ins.text and vw & ins.rd: req = max(req, 2)
                        if iv and sw & ins.rd: req = max(req, 2)
                        if ins.kind in ('vld', 'vst', 'dma') and sw & ins.rd: req = max(req, 5)
                        if ins.kind in ('salu', 'branch') and sw & ins.rd: req = max(req, 1)
                    if p.kind == 'salu' and ('s', 'm0') in p.wr and ins.kind == 'dma': req = max(req, 1)
                    if p.kind == 'vst' and ('x4' in p.mn or 'x3' in p.mn):
                        if {r for r in p.rd if isv(r)} & ins.wr: req = max(req, 2)
                    if p.kind == 'dsw' and False: pass
                    if req > d: need = max(need, req - d)
                    d += p.states()
            if need > 0:
                out.append(Ins(f's_nop {need - 1}')); npad += 1
                if report is not None: report.append((need, ins.text))
            out.append(ins)
        self.L = out
        return npad

    def text(self, macros=True):
        lines = []
        for i in self.L:
            lines.append(compact(i.text) if macros else i.text)
        return '\n'.join(lines) + '\n'

MACROS = r"""
.macro MV d,a,b,c
v_mfma_f32_16x16x32_bf16 v[\d:\d+3],v[\a:\a+3],a[\b:\b+3],v[\c:\c+3]
.endm
.macro MA d,a,b
v_mfma_f32_16x16x32_bf16 a[\d:\d+3],v[\a:\a+3],v[\b:\b+3],a[\d:\d+3]
.endm
.macro MQV d,a,b
v_mfma_f32_16x16x32_bf16 v[\d:\d+3],a[\a:\a+3],a[\b:\b+3],v[\d:\d+3]
.endm
.macro MQA d,a,b
v_mfma_f32_16x16x32_bf16 a[\d:\d+3],a[\a:\a+3],a[\b:\b+3],a[\d:\d+3]
.endm
.macro MXV d,a,b
v_mfma_f32_16x16x32_bf16 v[\d:\d+3],a[\a:\a+3],v[\b:\b+3],v[\d:\d+3]
.endm
.macro MXA d,a,b
v_mfma_f32_16x16x32_bf16 a[\d:\d+3],a[\a:\a+3],v[\b:\b+3],a[\d:\d+3]
.endm
.macro TR d,a,o
ds_read_b64_tr_b16 v[\d:\d+1],v\a offset:\o
.endm
.macro TRA d,a,o
ds_read_b64_tr_b16 a[\d:\d+1],v\a offset:\o
.endm
.macro RD d,a,o
ds_read_b128 v[\d:\d+3],v\a offset:\o
.endm
.macro CV d,a,b
v_cvt_pk_bf16_f32 v\d,v\a,v\b
.endm
"""
_P = [
 (re.compile(r'^v_mfma_f32_16x16x32_bf16 v\[(\d+):\d+\], a\[(\d+):\d+\], v\[(\d+):\d+\], v\[(\d+):\d+\]$'), lambda m: f'MXV {m[1]},{m[2]},{m[3]}' if m[1] == m[4] else None),
 (re.compile(r'^v_mfma_f32_16x16x32_bf16 a\[(\d+):\d+\], a\[(\d+):\d+\], v\[(\d+):\d+\], a\[(\d+):\d+\]$'), lambda m: f'MXA {m[1]},{m[2]},{m[3]}' if m[1] == m[4] else None),
 (re.compile(r'^v_mfma_f32_16x16x32_bf16 v\[(\d+):\d+\], v\[(\d+):\d+\], a\[(\d+):\d+\], v\[(\d+):\d+\]$'), lambda m: f'MV {m[1]},{m[2]},{m[3]},{m[4]}'),
 (re.compile(r'^v_mfma_f32_16x16x32_bf16 a\[(\d+):\d+\], v\[(\d+):\d+\], v\[(\d+):\d+\], a\[(\d+):\d+\]$'), lambda m: f'MA {m[1]},{m[2]},{m[3]}' if m[1] == m[4] else None),
 (re.compile(r'^v_mfma_f32_16x16x32_bf16 v\[(\d+):\d+\], a\[(\d+):\d+\], a\[(\d+):\d+\], v\[(\d+):\d+\]$'), lambda m: f'MQV {m[1]},{m[2]},{m[3]}' if m[1] == m[4] else None),
 (re.compile(r'^v_mfma_f32_16x16x32_bf16 a\[(\d+):\d+\], a\[(\d+):\d+\], a\[(\d+):\d+\], a\[(\d+):\d+\]$'), lambda m: f'MQA {m[1]},{m[2]},{m[3]}' if m[1] == m[4] else None),
 (re.compile(r'^ds_read_b64_tr_b16 v\[(\d+):\d+\], v(\d+) offset:(\d+)$'), lambda m: f'TR {m[1]},{m[2]},{m[3]}'),
 (re.compile(r'^ds_read_b64_tr_b16 a\[(\d+):\d+\], v(\d+) offset:(\d+)$'), lambda m: f'TRA {m[1]},{m[2]},{m[3]}'),
 (re.compile(r'^ds_read_b128 v\[(\d+):\d+\], v(\d+) offset:(\d+)$'), lambda m: f'RD {m[1]},{m[2]},{m[3]}'),
 (re.compile(r'^v_cvt_pk_bf16_f32 v(\d+), v(\d+), v(\d+)$'), lambda m: f'CV {m[1]},{m[2]},{m[3]}'),
]
def compact(t):
    for rx, f in _P:
        m = rx.match(t)
        if m:
            r = f(m)
            if r: return r
    return t.replace(', ', ',')

def mfma(d, a, b, c):
    def rg(x): return f'{x[0]}[{int(x[1:])}:{int(x[1:]) + 3}]'
    return f'v_mfma_f32_16x16x32_bf16 {rg(d)}, {rg(a)}, {rg(b)}, {c if c[0] not in "va" else rg(c)}'

def weave(mf, gaps):
    out = []
    for i, m in enumerate(mf):
        out.append(m)
        out.extend(gaps.get(i, []))
    return out


def split_marks(L):
    out = [('_start', [])]
    for i in L:
        if i.kind == 'dir' and i.text.startswith('.mark'):
            out.append((i.text.split()[1], []))
        else:
            out[-1][1].append(i)
    return out

def _wparse(t):
    vm = re.search(r'vmcnt\((\d+)\)', t); lg = re.search(r'lgkmcnt\((\d+)\)', t)
    return (int(vm.group(1)) if vm else None, int(lg.group(1)) if lg else None)
def _wmerge(a, b):
    r = []
    for x, y in zip(a, b):
        r.append(y if x is None else (x if y is None else min(x, y)))
    return tuple(r)
def _wtext(w):
    parts = []
    if w[0] is not None: parts.append(f'vmcnt({w[0]})')
    if w[1] is not None: parts.append(f'lgkmcnt({w[1]})')
    return 's_waitcnt ' + ' '.join(parts)

def merge_segments(segs):
    def canon(seg):
        core = []; pre = []; w = None; nop = 0
        for i in seg:
            if i.kind == 'wait':
                w = _wparse(i.text) if w is None else _wmerge(w, _wparse(i.text))
            elif i.kind == 'nop':
                nop += i.states()
            else:
                core.append(i); pre.append((w, nop)); w = None; nop = 0
        pre.append((w, nop))
        return core, pre
    cs = [canon(s) for s in segs]
    core0 = cs[0][0]
    for c, _ in cs[1:]:
        assert len(c) == len(core0), (len(c), len(core0))
        for a, b in zip(core0, c):
            assert a.text == b.text, (a.text, b.text)
    out = []
    for k in range(len(core0) + 1):
        w = None; nop = 0
        for _, pre in cs:
            pw, pn = pre[k]
            if pw is not None: w = pw if w is None else _wmerge(w, pw)
            nop = max(nop, pn)
        if w is not None: out.append(Ins(_wtext(w)))
        if nop: out.append(Ins(f's_nop {nop - 1}'))
        if k < len(core0): out.append(core0[k])
    return out

def check_order(ref, woven, what=''):
    ids = {id(x) for x in ref}
    def versions(seq):
        last = {}; res = {}
        for x in seq:
            if id(x) not in ids: continue
            res[id(x)] = ({r: last.get(r) for r in x.rd if isv(r)}, {r: last.get(r) for r in x.wr if isv(r)})
            for r in x.wr: last[r] = id(x)
        return res
    a = versions(ref); b = versions(woven)
    assert len(a) == len(b), (what, len(a), len(b))
    for x in ref:
        if a[id(x)] != b[id(x)]:
            raise AssertionError(f'order violation {what}: {x.text}')
```

```python
import sys, math, struct
from common import *
from asmlib import *

OPT = dict(nt_kv='nt', nt_x='', nt_w='nt', st='sc1', g_o='sc1', g_w='sc1', stamps=False, tl=False, gtl=False,
           epg='3', f2s='13', p2s='22', g2s='25', w1=True, qtl=False, nojs=False, nojl=False)
WS_WO = 33554432
WS_X = 44 << 20
WS_FL = 56 << 20
WS_STAMP = 64 << 20
SCALE = math.log2(math.e) / math.sqrt(128.0)
def f2i(x): return struct.unpack('<I', struct.pack('<f', x))[0]
KNAME = NAME + '_kernel'

SK, SV, SX, SW_, SO, SWS, SWD, SFL = 4, 8, 12, 16, 20, 24, 28, 88
SGO, SGW, SFP, SOUT = 12, 16, 24, 28
sWS, sOUT, sDBG = 52, 54, 46
sW, sW2K, sW4K, sT0, sKo, sVo, sSC, sTHR, sXo, sRET, sMODE, sWe = 32, 33, 34, 35, 36, 37, 38, 40, 41, 42, 44, 45
sJ, sCnt, sHead, sOo = 48, 94, 95, 96
def srd(n): return f's[{n}:{n+3}]'
VPA, KADDR, VADDR, VOFFK, VOFFV, LREG, ETMP, CT, NEGM, VOFFO, VFLAG, VPOLL, VL4 = 3, 4, 8, 16, 18, 20, 28, 40, 44, 60, 61, 62, 63
KF, VF, SB, PB, EP = 64, 96, 128, 192, 224
NE = 12
def S(p, kt, qt): return SB + p * 32 + (kt * 4 + qt) * 4
def P(p, qt): return PB + p * 16 + qt * 4
def Lr(p, qt): return LREG + p * 4 + qt
def O(T, qt): return (T * 4 + qt) * 4
def Q(h, qt, u): return 128 + h * 64 + (qt * 4 + u) * 4
VSV, VSK, WADDR, XADDR, VOFFW, VOFFX, VOFFJ, JADDR = 20, 24, 64, 80, 84, 88, 92, 95
CW0, CW1, CR = 61, 62, 63
def QACC(h, T, qt): return (f'v{128 + (T * 4 + qt) * 4}' if h == 0 else f'a{(T * 4 + qt) * 4}')
def XF(t, qt): return (28 if (t >> 1) & 1 else 96) + ((t & 1) * 4 + qt) * 4
NWS = 24
def WF(slot): return 128 + slot * 4
BLK = 16384
def wblock(t): return [(4, 1), (7, 3), (8, 9)][(t >> 1) % 3][t & 1]
def xblock(p): return [2, 5, 6][p % 3]
def cl(s): return ' '.join(s.split())
def rng(r, n): return f'{r[0]}[{int(r[1:])}:{int(r[1:]) + n - 1}]'

def dma_kv(which, tile):
    base = (0 if which == 'K' else 65536) + (tile % 8) * 8192
    s, vo, so = (SK, VOFFK, sKo) if which == 'K' else (SV, VOFFV, sVo)
    tag = f'{which}{tile}'; nt = OPT['nt_kv']
    return [([f's_add_u32 m0, s{sW2K}, {base}'], Ins(cl(f'buffer_load_dwordx4 v{vo}, {srd(s)}, s{so} offen {nt} lds'), tag), []),
            ([], Ins(cl(f'buffer_load_dwordx4 v{vo + 1}, {srd(s)}, s{so} offen offset:1024 {nt} lds'), tag), [f's_add_u32 s{so}, s{so}, 8192'])]
def dma4(s, vo, off, blk, tag, nt, so=sWe):
    return [([f's_mov_b32 s{so}, {off}', f's_add_u32 m0, s{sW4K}, {blk * BLK}'] if n == 0 else [],
             Ins(cl(f'buffer_load_dwordx4 v{vo + n}, {srd(s)}, s{so} offen offset:{n * 1024} {nt} lds'), tag), []) for n in range(4)]
def dma_w(t): return dma4(SW_, VOFFW, t * 32 * 8192, wblock(t), f'W{t}', OPT['nt_w'])
def dma_x(p): return dma4(SX, VOFFX, (p >> 1) * 128 + (p & 1) * 32 * 1152, xblock(p), f'X{p}', OPT['nt_x'], sXo)
def dma_kk(i): return dma4(SK, VSK, i * 16384, i, f'KK{i}', OPT['nt_kv'])
def dma_vv(i): return dma4(SV, VSV, i * 16384, 4 + i, f'VV{i}', OPT['nt_kv'])
def flat(dl):
    out = []
    for pre, ins, post in dl: out += pre + [ins] + post
    return out

def I(x): return x if isinstance(x, Ins) else Ins(x)
def cost(x):
    k = x.kind
    return {'trans': 8, 'valu': 4, 'dsr': 4, 'dsw': 4, 'dma': 12, 'vld': 12, 'vst': 12}.get(k, 0 if k in ('label', 'dir', 'waitvm', 'waitlg') else 4)
class Gaps:
    def __init__(self, n):
        self.n = n; self.sc = [[] for _ in range(n + 1)]; self.mem = [[] for _ in range(n)]; self.v = [[] for _ in range(n)]
    def place_dma(self, dl, gaps):
        assert len(gaps) >= len(dl), (len(gaps), len(dl))
        for (pre, ins, post), g in zip(dl, gaps):
            for k, s in enumerate(pre): self.sc[g - len(pre) + k].append(s)
            self.mem[g].append(ins)
            for k, s in enumerate(post): self.sc[g + 1 + k].append(s)
    def load(self, g): return sum(cost(I(x)) for x in self.mem[g] + self.v[g])
    def pack(self, items, g0, g1):
        items = [I(x) for x in items]
        base = [self.load(g) for g in range(self.n)]
        for L in range(8, 400, 2):
            g = g0; used = 0; vhere = False; pos = []; ok = True
            for x in items:
                c = cost(x); ismem = x.kind in ('dsr', 'dsw', 'dma', 'vld', 'vst')
                while True:
                    if g >= g1: ok = False; break
                    room = L - base[g] - used
                    if ismem and (vhere or (self.mem[g] and L < 20)): fit = False
                    else: fit = c <= room or (c == 0) or (used == 0 and base[g] == 0)
                    if fit: break
                    g += 1; used = 0; vhere = False
                if not ok: break
                pos.append(g); used += c
                if not ismem: vhere = True
                else: vhere = True if False else vhere
            if ok: break
        assert ok
        for x, g in zip(items, pos):
            (self.mem if x.kind in ('dsr', 'dsw', 'dma', 'vld', 'vst') else self.v)[g].append(x)
        return pos
    def weave(self, mf, a=0, b=None):
        out = []
        b = self.n if b is None else b
        for i in range(a, b):
            if i < len(mf) and mf[i] is not None: out.append(mf[i])
            out += self.sc[i] + self.mem[i] + self.v[i]
        if b == self.n: out += self.sc[self.n]
        return out

def k_reads(tile):
    return [Ins(f'ds_read_b128 v[{KF + (kt * 4 + u) * 4}:{KF + (kt * 4 + u) * 4 + 3}], v{KADDR + u} offset:{(tile % 8) * 8192 + kt * 4096}', f'rK{tile}')
            for kt in range(2) for u in range(4)]
def v_reads(tile):
    return [Ins(f'ds_read_b64_tr_b16 v[{VF + T * 4 + s * 2}:{VF + T * 4 + s * 2 + 1}], v{VADDR + T} offset:{(tile % 8) * 8192 + s * 4096}', f'rV{tile}')
            for T in range(8) for s in range(2)]
def qk_mfmas(j):
    h = 1 if j in ((32, 33) if OPT['w1'] else (32,)) else 0
    p = j & 1; first = (j & 31) == 0
    out = []
    for kt in range(2):
        for u in range(4):
            for qt in range(4):
                c = f'v{S(p, kt, qt)}' if u else ('0' if first else f'v{NEGM + qt * 4}')
                out.append(mfma(f'v{S(p, kt, qt)}', f'v{KF + (kt * 4 + u) * 4}', f'a{Q(h, qt, u)}', c))
    return out
def pv_mfmas(j):
    p = j & 1; first = (j & 31) == 0
    return [mfma(f'a{O(T, qt)}', f'v{VF + T * 4}', f'v{P(p, qt)}', '0' if first else f'a{O(T, qt)}') for T in range(8) for qt in range(4)]

def softmax_stream(j):
    p = j & 1; first = (j & 31) == 0
    out = []
    for qt in range(4):
        for k in range(8):
            e = ETMP + (qt * 8 + k) % NE
            src = S(p, k >> 2, qt) + (k & 3)
            out.append([f'v_exp_f32 v{e}, v{src}'])
            l = Lr(p, qt)
            if k == 0: a = f'v_mov_b32 v{l}, v{e}' if first else f'v_add_f32 v{l}, v{Lr(1 - p, qt)}, v{e}'
            else: a = f'v_add_f32 v{l}, v{l}, v{e}'
            g = [a]
            if k & 1:
                e0 = ETMP + (qt * 8 + k - 1) % NE
                g.append(f'v_cvt_pk_bf16_f32 v{P(p, qt) + (k >> 1)}, v{e0}, v{e}')
            out.append(g)
    return out
def dense(stream):
    out = []; prev = []
    for i in range(0, len(stream), 2):
        out += stream[i]; out += prev; prev = stream[i + 1] if i + 1 < len(stream) else []
    return out + prev
def rowmax(p, qt, dst):
    s0 = S(p, 0, qt); s1 = S(p, 1, qt)
    return [f'v_max3_f32 v{dst}, v{s0}, v{s0 + 1}, v{s0 + 2}', f'v_max3_f32 v{dst}, v{dst}, v{s0 + 3}, v{s1}',
            f'v_max3_f32 v{dst}, v{dst}, v{s1 + 1}, v{s1 + 2}', f'v_max_f32 v{dst}, v{dst}, v{s1 + 3}']
def xlane(op, regs, tmps):
    out = []
    for sw in ('v_permlane16_swap_b32', 'v_permlane32_swap_b32'):
        out += [f'v_mov_b32 v{t}, v{r}' for r, t in zip(regs, tmps)]
        out += [f'{sw} v{t}, v{r}' for r, t in zip(regs, tmps)]
        out += [f'{op} v{r}, v{r}, v{t}' for r, t in zip(regs, tmps)]
    return out
def init_stream(j):
    p = j & 1
    m = [NEGM + qt * 4 for qt in range(4)]; t = [NEGM + qt * 4 + 1 for qt in range(4)]
    out = []
    rm = [rowmax(p, qt, m[qt]) for qt in range(4)]
    for k in range(4): out += [rm[qt][k] for qt in range(4)]
    out += xlane('v_max_f32', m, t)
    for qt in range(4):
        for k in range(8):
            s = S(p, k >> 2, qt) + (k & 3)
            out.append(f'v_sub_f32 v{s}, v{s}, v{m[qt]}')
    for qt in range(4):
        for r in (3, 2, 1, 0): out.append(f'v_sub_f32 v{NEGM + qt * 4 + r}, 0, v{m[qt]}')
    return out

def epilogue(packed):
    l = [Lr(1, qt) for qt in range(4)]
    t = [EP + 8 + i for i in range(4)]
    prep = xlane('v_add_f32', l, t)
    rc = [EP + 2 * i for i in range(4)]
    prep += [f'v_rcp_f32 v{rc[qt]}, v{l[qt]}' for qt in range(4)]
    units = []
    for k in range(16):
        u, qt = divmod(k, 4)
        b = EP + 8 + (k % 2) * 12
        rd = [f'v_accvgpr_read_b32 v{b + i}, a{O(2 * u + (i >> 2), qt) + (i & 3)}' for i in range(8)]
        if packed: mu = [f'v_pk_mul_f32 v[{b + 2 * i}:{b + 2 * i + 1}], v[{b + 2 * i}:{b + 2 * i + 1}], v[{rc[qt]}:{rc[qt] + 1}] op_sel_hi:[1,0]' for i in range(4)]
        else: mu = [f'v_mul_f32 v{b + i}, v{rc[qt]}, v{b + i}' for i in range(8)]
        cv = [f'v_cvt_pk_bf16_f32 v{b + 8 + i}, v{b + 2 * i}, v{b + 2 * i + 1}' for i in range(4)]
        st = [Ins(cl(f'buffer_store_dwordx4 v[{b + 8}:{b + 11}], v{VOFFO}, {srd(SO)}, s{sOo} offen offset:{qt * 1024} {OPT["st"]}'), 'Ost')]
        if qt == 3: st.append(f's_add_u32 s{sOo}, s{sOo}, 4096')
        units.append((rd, mu, cv, st))
    return prep, units
def epi_flat(units):
    L = []; first = []; lastrd = []
    for k, (rd, mu, cv, st) in enumerate(units):
        first.append(len(L)); L += rd; lastrd.append(len(L) - 1)
        if k: L += units[k - 1][3]
        L += mu + cv
    L += units[-1][3]
    return L, first, lastrd

SPINS = []
def spin_check(name, load, cmp):
    SPINS.append(f"""L_spin_{name}:
s_mov_b32 s{sT0}, 0x40000
L_spin2_{name}:
s_sleep 1
{load}
s_sub_u32 s{sT0}, s{sT0}, 1
s_cbranch_scc1 L_back_{name}
s_waitcnt vmcnt(0)
{cmp}
s_nop 1
s_cbranch_vccnz L_spin2_{name}
s_branch L_back_{name}""")
    return [cmp, f's_cbranch_vccnz L_spin_{name}', f'L_back_{name}:']

def fallback(p):
    A = Prog()
    A(f'L_fb{p}:')
    A('s_nop 7\ns_nop 7')
    m = [EP + i for i in range(4)]; t = [EP + 4 + i for i in range(4)]; f = [EP + 8 + i for i in range(4)]
    rm = [rowmax(p, qt, m[qt]) for qt in range(4)]
    for k in range(4): A.extend([rm[qt][k] for qt in range(4)])
    A.extend(xlane('v_max_f32', m, t))
    for qt in range(4): A(f'v_max_f32 v{m[qt]}, 0, v{m[qt]}')
    for qt in range(4): A(f'v_exp_f32 v{f[qt]}, -v{m[qt]}')
    for qt in range(4):
        for k in range(8):
            s = S(p, k >> 2, qt) + (k & 3)
            A(f'v_sub_f32 v{s}, v{s}, v{m[qt]}')
        for r in range(4): A(f'v_sub_f32 v{NEGM + qt * 4 + r}, v{NEGM + qt * 4 + r}, v{m[qt]}')
        A(f'v_mul_f32 v{Lr(1 - p, qt)}, v{Lr(1 - p, qt)}, v{f[qt]}')
    A(f's_cmp_lg_u32 s{sMODE}, 0')
    A(f's_cbranch_scc1 L_fb{p}_b')
    for qt in range(4):
        for k in range(8):
            s = S(1 - p, k >> 2, qt) + (k & 3)
            A(f'v_sub_f32 v{s}, v{s}, v{m[qt]}')
    A(f'L_fb{p}_b:')
    for T in range(8):
        for qt in range(4):
            b = EP + 12 + ((T * 4 + qt) % 2) * 4
            for r in range(4): A(f'v_accvgpr_read_b32 v{b + r}, a{O(T, qt) + r}')
            for r in range(4): A(f'v_mul_f32 v{b + r}, v{b + r}, v{f[qt]}')
            for r in range(4): A(f'v_accvgpr_write_b32 a{O(T, qt) + r}, v{b + r}')
    A.extend(dense(softmax_stream(2 + p)))
    A('s_nop 3')
    A(f's_setpc_b64 s[{sRET}:{sRET + 1}]')
    A.fix_hazards()
    return A

def stamp(A, idx, base=64):
    if OPT['stamps'] and not OPT['qtl']: A(f's_memtime s[{base + idx * 2}:{base + idx * 2 + 1}]')
def store_stamps(A, n):
    A('s_memrealtime s[62:63]\ns_waitcnt lgkmcnt(0)')
    A('v_lshrrev_b32 v1, 6, v0\ns_lshl_b32 s50, s2, 2\nv_add_u32 v1, s50, v1\nv_lshlrev_b32 v1, 7, v1')
    A('v_and_b32 v2, 63, v0\nv_cmp_eq_u32 vcc, 0, v2\ns_and_saveexec_b64 s[50:51], vcc')
    for i in range(n):
        for k in range(4): A(f'v_mov_b32 v{4 + k}, s{60 + i * 4 + k}')
        A(f'buffer_store_dwordx4 v[4:7], v1, s[56:59], 0 offen offset:{i * 16}')
        A('s_nop 1')

def code_prefetch(A, start, end, va, vd, n):
    A(f's_getpc_b64 s[50:51]')
    A(f'L_pc_{start}:')
    if start == KNAME: A(f's_sub_u32 s50, s50, L_pc_{start}-{start}\ns_subb_u32 s51, s51, 0')
    else: A(f's_add_u32 s50, s50, {start}-L_pc_{start}\ns_addc_u32 s51, s51, 0')
    A(f'v_lshlrev_b32 v{va}, 7, v0')
    for i in range(n):
        A(f'v_min_u32 v{va + 1}, {end}-{start}-4, v{va}')
        A(f'global_load_dword v{vd + i}, v{va + 1}, s[50:51]', tag='pf')
        if i + 1 < n: A(f'v_add_u32 v{va}, 0x8000, v{va}')

def setup(A):
    A('s_cmp_ge_u32 s2, 256\ns_cbranch_scc1 L_end')
    A('''s_bfe_u32 s48, s2, 0x10002
s_mul_i32 s50, s48, 40
s_add_u32 s52, s0, s50
s_addc_u32 s53, s1, 0
s_lshr_b32 s51, s2, 7
s_mul_i32 s51, s51, 40
s_add_u32 s54, s0, s51
s_addc_u32 s55, s1, 0''')
    A(f'''s_load_dwordx2 s[{SX}:{SX+1}], s[52:53], 0
s_load_dwordx2 s[{SW_}:{SW_+1}], s[52:53], 24
s_load_dwordx2 s[{SK}:{SK+1}], s[52:53], 8
s_load_dwordx2 s[{SV}:{SV+1}], s[52:53], 16
s_load_dwordx2 s[{SWS}:{SWS+1}], s[54:55], 32
s_load_dwordx2 s[{SO}:{SO+1}], s[0:1], 96
s_load_dwordx4 s[92:95], s[0:1], 80''')
    if OPT['stamps']: A('s_memrealtime s[60:61]')
    stamp(A, 0)
    code_prefetch(A, KNAME, 'L_code_end', 100, 252, 3)
    A(f'''s_and_b32 s46, s2, 6
s_lshl_b32 s46, s46, 1
s_lshr_b32 s48, s2, 6
s_add_u32 s46, s46, s48
s_and_b32 s47, s2, 1
s_lshl_b32 s47, s47, 3
s_bfe_u32 s48, s2, 0x30003
s_add_u32 s47, s47, s48
s_and_b32 s49, s46, 7
v_lshrrev_b32 v1, 6, v0
v_and_b32 v2, 63, v0
v_readfirstlane_b32 s{sW}, v1
v_and_b32 v96, 15, v2
v_lshrrev_b32 v97, 4, v2
v_and_b32 v98, 3, v2
v_bfe_u32 v99, v2, 2, 2
s_lshl_b32 s{sW2K}, s{sW}, 11
s_lshl_b32 s{sW4K}, s{sW}, 12
v_lshrrev_b32 v100, 3, v2
v_lshl_add_u32 v100, v1, 6, v100
v_mul_u32_u24 v100, 1152, v100
v_and_b32 v101, 7, v2
v_xor_b32 v101, v101, v97
v_lshl_add_u32 v{VOFFX}, v101, 4, v100
v_xor_b32 v101, 4, v101
v_lshl_add_u32 v102, v101, 4, v100
v_add_u32 v{VOFFX + 1}, {8 * 1152 - 1024}, v102
v_add_u32 v{VOFFX + 2}, {2 * (8 * 1152 - 1024)}, v{VOFFX}
v_add_u32 v{VOFFX + 3}, {3 * (8 * 1152 - 1024)}, v102
v_lshrrev_b32 v100, 5, v2
v_and_b32 v101, 31, v2
v_and_b32 v102, 1, v1
v_lshl_add_u32 v102, v102, 2, v100
v_lshl_add_u32 v103, v1, 3, v100
v_lshlrev_b32 v103, 13, v103
v_lshlrev_b32 v104, 1, v102
v_xor_b32 v104, v104, v101
v_lshl_add_u32 v{VOFFW}, v104, 4, v103
v_xor_b32 v104, 64, v{VOFFW}
v_add_u32 v{VOFFW + 1}, {16384 - 1024}, v104
v_add_u32 v{VOFFW + 2}, {2 * (16384 - 1024)}, v{VOFFW}
v_add_u32 v{VOFFW + 3}, {3 * (16384 - 1024)}, v104
s_mul_i32 s50, s49, 294912
s_lshl_b32 s51, s47, 9
s_waitcnt lgkmcnt(0)''')
    stamp(A, 1)
    A(f'''s_add_u32 s{SX}, s{SX}, s50
s_addc_u32 s{SX+1}, s{SX+1}, 0
s_mov_b32 s{SX+2}, 294912
s_mov_b32 s{SX+3}, 0x20000
s_add_u32 s{SW_}, s{SW_}, s51
s_addc_u32 s{SW_+1}, s{SW_+1}, 0
s_sub_u32 s{SW_+2}, {576 * 8192}, s51
s_mov_b32 s{SW_+3}, 0x20000''')
    A.extend(flat(dma_x(0)) + flat(dma_x(1)) + flat(dma_w(0)) + flat(dma_w(1)))
    A(f'v_lshlrev_b32 v100, 11, v1\nv_lshl_add_u32 v100, v97, 8, v100\nv_lshl_add_u32 v101, v1, 3, v97')
    for o in range(2):
        A(f'v_add_u32 v102, {4 * o}, v101\nv_and_b32 v103, 15, v102\nv_xor_b32 v103, v103, v96\nv_lshl_add_u32 v{VOFFK + o}, v103, 4, v100')
        A(f'v_and_b32 v103, 7, v102\nv_lshlrev_b32 v103, 1, v103\nv_xor_b32 v103, v103, v96\nv_lshl_add_u32 v{VOFFV + o}, v103, 4, v100')
    A(f'v_lshlrev_b32 v100, 12, v1\nv_lshl_add_u32 v100, v97, 8, v100')
    for n in range(4):
        A(f'v_add_u32 v102, {4 * n}, v97\nv_xor_b32 v103, v102, v96\nv_lshl_add_u32 v{VSK + n}, v103, 4, v100')
        A(f'v_and_b32 v103, 7, v102\nv_lshlrev_b32 v103, 1, v103\nv_xor_b32 v103, v103, v96\nv_lshl_add_u32 v{VSV + n}, v103, 4, v100')
    A(f'''s_lshl_b32 s50, s49, 23
s_lshl_b32 s51, s47, 19
s_add_u32 s50, s50, s51
s_add_u32 s{SK}, s{SK}, s50
s_addc_u32 s{SK+1}, s{SK+1}, 0
s_mov_b32 s{SK+2}, 0x80000
s_mov_b32 s{SK+3}, 0x20000
s_add_u32 s{SV}, s{SV}, s50
s_addc_u32 s{SV+1}, s{SV+1}, 0
s_mov_b32 s{SV+2}, 0x80000
s_mov_b32 s{SV+3}, 0x20000
s_mov_b32 s{sWS}, s{SO}
s_mov_b32 s{sWS+1}, s{SO+1}
s_mov_b32 s{sOUT}, s92
s_mov_b32 s{sOUT+1}, s93
s_and_b32 s50, s2, 127
s_mul_i32 s50, s50, 36864
s_add_u32 s{SWS}, s{SWS}, s50
s_addc_u32 s{SWS+1}, s{SWS+1}, 0
s_mov_b32 s{SWS+2}, 36864
s_mov_b32 s{SWS+3}, 0x20000
s_lshr_b32 s50, s2, 7
s_lshl_b32 s50, s50, 9
s_and_b32 s51, s2, 64
s_add_u32 s50, s50, s51
s_bfe_u32 s51, s2, 0x10002
s_lshl_b32 s51, s51, 5
s_add_u32 s50, s50, s51
s_bfe_u32 s51, s2, 0x30003
s_lshl_b32 s51, s51, 2
s_add_u32 s50, s50, s51
s_and_b32 s51, s2, 3
s_add_u32 s50, s50, s51
s_mul_i32 s50, s50, 9216
s_add_u32 s50, s50, {WS_WO}
s_add_u32 s{SWD}, s{SO}, s50
s_addc_u32 s{SWD+1}, s{SO+1}, 0
s_mov_b32 s{SWD+2}, {3 * 128 * 9216 + 9216}
s_mov_b32 s{SWD+3}, 0x20000
s_lshl_b32 s50, s2, 7
s_lshl_b32 s51, s{sW}, 2
s_add_u32 s50, s50, s51
s_add_u32 s50, s50, {WS_FL}
s_add_u32 s{SFL}, s{SO}, s50
s_addc_u32 s{SFL+1}, s{SO+1}, 0
s_mov_b32 s{SFL+2}, 36
s_mov_b32 s{SFL+3}, 0x20000
v_mov_b32 v{VPA}, 0
v_lshlrev_b32 v{VOFFO}, 4, v2''')
    for n in range(3):
        A(f'''v_add_u32 v100, {64 * n}, v2
v_mul_u32_u24 v101, 2731, v100
v_lshrrev_b32 v101, 16, v101
v_mul_u32_u24 v102, 24, v101
v_sub_u32 v100, v100, v102
v_lshl_add_u32 v101, v1, 3, v101
v_mul_u32_u24 v101, 1152, v101
v_lshl_add_u32 v101, v100, 4, v101
v_subrev_u32 v{VOFFJ + n}, {n * 1024}, v101''')
    A(f'''v_bfe_u32 v100, v2, 2, 4
v_mul_u32_u24 v100, 384, v100
v_mul_u32_u24 v101, 96, v1
v_add_u32 v100, v100, v101
v_lshl_add_u32 v{JADDR}, v98, 3, v100''')
    if OPT['stamps']:
        A(f's_add_u32 s56, s{SO}, {WS_STAMP}\ns_addc_u32 s57, s{SO+1}, 0\ns_mov_b32 s58, 0x100000\ns_mov_b32 s59, 0x20000')
    A(f'''s_lshl_b32 s50, s46, 2
s_add_u32 s50, s50, s{sW}
s_lshl_b32 s50, s50, 19
s_lshl_b32 s51, s47, 15
s_add_u32 s50, s50, s51
s_add_u32 s{SO}, s{SO}, s50
s_addc_u32 s{SO+1}, s{SO+1}, 0
s_mov_b32 s{SO+2}, 32768
s_mov_b32 s{SO+3}, 0x20000
s_mov_b32 s{sSC}, {f2i(SCALE):#x}
s_mov_b32 s{sTHR}, {f2i(2.0 ** 24):#x}
s_mov_b32 s{sOo}, 0
s_mov_b32 s{sDBG}, s94
s_mov_b32 s{sDBG+1}, s95
s_mov_b32 s{sKo}, {8 * 8192}
s_mov_b32 s{sVo}, {6 * 8192}
s_mov_b32 s{sCnt}, 3
s_mov_b32 s{sHead}, 0''')
    A('v_xor_b32 v100, v97, v96\nv_lshlrev_b32 v100, 4, v100\nv_lshl_add_u32 v100, v96, 8, v100')
    for u in range(4): A(f'v_xor_b32 v{KADDR + u}, {u * 64}, v100')
    A('v_lshl_add_u32 v100, v97, 2, v99\nv_and_b32 v101, 7, v100\nv_lshlrev_b32 v101, 5, v101\nv_lshl_add_u32 v101, v100, 8, v101\nv_lshl_add_u32 v101, v98, 3, v101\nv_add_u32 v101, 0x10000, v101')
    for T in range(8): A(f'v_xor_b32 v{VADDR + T}, {T * 32}, v101')
    A(f'v_lshl_add_u32 v100, v97, 3, v99\nv_and_b32 v101, 1, v97\nv_lshl_add_u32 v101, v101, 2, v99\nv_lshlrev_b32 v101, 5, v101\nv_lshl_add_u32 v101, v100, 9, v101\nv_lshl_add_u32 v101, v98, 3, v101\nv_add_u32 v101, {BLK}, v101')
    for T in range(8):
        A(f'v_xor_b32 v{WADDR + T}, {T * 32}, v101')
        A(f'v_add_u32 v{WADDR + 8 + T}, {6 * BLK}, v{WADDR + T}')
    A(f'''v_lshrrev_b32 v100, 1, v96
v_xor_b32 v100, v100, v97
v_lshlrev_b32 v100, 4, v100
v_lshl_add_u32 v100, v96, 7, v100
v_lshl_add_u32 v100, v1, 12, v100
v_add_u32 v{XADDR}, {2 * BLK}, v100
v_xor_b32 v{XADDR + 1}, 64, v{XADDR}
v_add_u32 v{XADDR + 2}, {4 * BLK}, v{XADDR}
v_add_u32 v{XADDR + 3}, {4 * BLK}, v{XADDR + 1}''')
    A(f'''v_and_b32 v100, 1, v99
v_lshlrev_b32 v100, 1, v100
v_lshrrev_b32 v101, 1, v99
v_mul_u32_u24 v101, 3, v101
v_xor_b32 v100, v100, v101
v_lshlrev_b32 v102, 6, v96
v_lshl_add_u32 v102, v1, 12, v102
v_add_u32 v102, {6 * BLK}, v102
v_xor_b32 v101, v100, v97
v_lshl_add_u32 v{CR}, v101, 4, v102
v_lshrrev_b32 v101, 1, v97
v_xor_b32 v101, v101, v100
v_lshl_add_u32 v102, v101, 4, v102
v_and_b32 v101, 1, v97
v_lshl_add_u32 v{CW0}, v101, 3, v102
v_xor_b32 v{CW1}, 32, v{CW0}''')
    A.extend(flat(dma_x(2)) + flat(dma_w(2)) + flat(dma_w(3)))

def x_reads(pc):
    c = pc >> 1; blk = xblock(pc)
    return [Ins(f'ds_read_b128 v[{XF(2 * c + ks, 2 * (pc & 1) + qq)}:{XF(2 * c + ks, 2 * (pc & 1) + qq) + 3}], v{XADDR + ks + (2 if blk == 6 else 0)} offset:{(0 if blk == 6 else (blk - 2) * BLK) + qq * 2048}', f'rX{pc}')
            for ks in range(2) for qq in range(2)]
def w_read(t, h, T, dst):
    blk = wblock(t)
    ad = WADDR + T if blk <= 4 else WADDR + 8 + T
    off = (blk - 1 if blk <= 4 else blk - 7) * BLK + h * 256
    d = int(dst[1:])
    return [Ins(f'ds_read_b64_tr_b16 {dst[0]}[{d + 2 * s}:{d + 2 * s + 1}], v{ad} offset:{off + s * 2048}', f'rW{t}') for s in range(2)]
def w_reads(t):
    out = []
    for f in range(16): out += w_read(t, f >> 3, f & 7, f'a{WF((16 * t + f) % NWS)}')
    return out
UH = ['a160', 'a192', 'a224', 'a192', 'a224', 'v160', 'v224', 'v160']
def uw(n, k, tt): return f'{UH[n][0]}{int(UH[n][1:]) + (k * 2 + tt) * 4}'
def unit_reads(n):
    h, u = n >> 2, n & 3
    out = []
    for k in range(4):
        for tt in range(2): out += w_read(14 + k, h, 2 * u + tt, uw(n, k, tt))
    return out
def conv(n):
    h, u = n >> 2, n & 3
    V = []; D = []
    for tt in range(2):
        for qh in range(2):
            rd = []; mu = []; cv = []; wr = []
            for qt in (2 * qh, 2 * qh + 1):
                acc = QACC(h, 2 * u + tt, qt)
                if h == 0: b = int(acc[1:])
                else:
                    b = 192 + (tt * 4 + qt) * 4
                    rd += [f'v_accvgpr_read_b32 v{b + r}, a{int(acc[1:]) + r}' for r in range(4)]
                mu += [f'v_mul_f32 v{b + r}, s{sSC}, v{b + r}' for r in range(4)]
                cv += [f'v_cvt_pk_bf16_f32 v{b}, v{b}, v{b + 1}', f'v_cvt_pk_bf16_f32 v{b + 1}, v{b + 2}, v{b + 3}']
                wr.append(Ins(f'ds_write_b64 v{CW1 if tt else CW0}, v[{b}:{b + 1}] offset:{qt * 1024}'))
            V += [Ins(x) for x in rd + mu + cv]
            D += [(len(V) - 3, wr[0]), (len(V) - 1, wr[1])]
    D += [(len(V) - 1, Ins(f'ds_read_b128 a[{Q(h, qt, u)}:{Q(h, qt, u) + 3}], v{CR} offset:{qt * 1024}', f'rQ{n}')) for qt in range(4)]
    return V, D

def q_phase(A):
    stamp(A, 2)
    A('WAITVM X0+X1+W0+W1\ns_barrier')
    stamp(A, 3)
    A.extend(x_reads(0) + x_reads(1) + w_reads(0))
    def jstore(i):
        r, n = divmod(i, 3)
        pre = [f's_add_u32 s{sT0}, s{sW}, {4 * r}', f's_mul_i32 s{sJ}, s{sT0}, 43', f's_lshr_b32 s{sJ}, s{sJ}, 7',
               f's_mul_i32 s{sJ}, s{sJ}, {128 * 9216 - 9216}', f's_mul_i32 s{sT0}, s{sT0}, 3072', f's_add_u32 s{sJ}, s{sT0}, s{sJ}'] if n == 0 else []
        return [(pre, Ins(cl(f'buffer_store_dwordx4 a[{224 + 4 * n}:{227 + 4 * n}], v{VOFFO}, {srd(SWD)}, s{sJ} offen offset:{n * 1024} {OPT["st"]}'), 'Jst'), [])]
    for t in range(14):
        mf = []
        for f in range(16):
            for qt in range(4):
                acc = QACC(f >> 3, f & 7, qt)
                mf.append(mfma(acc, f'a{WF((16 * t + f) % NWS)}', f'v{XF(t, qt)}', acc if t else '0'))
        G = Gaps(64)
        groups = []
        if t in (1, 5, 9) and not OPT['nojl']:
            r = t // 4
            groups += [[([f's_mov_b32 s{sWe}, {r * 384}', f's_mul_i32 m0, s{sW}, 3072'] if n == 0 else [],
                         Ins(f'buffer_load_dwordx4 v{VOFFJ + n}, {srd(SWS)}, s{sWe} offen offset:{n * 1024} nt lds', f'J{r}'), []) for n in range(3)]]
        if t == 0: groups += [dma_x(3), dma_x(4), dma_w(4)]
        if t == 1: groups += [dma_w(5)]
        if 1 <= t <= 11: groups += [dma_w(t + 5)]
        if t == 11: groups += [dma_w(17)]
        if t + 5 < 18: groups += [dma_x(t + 5)]
        if t == 13: groups += [dma_kk(0), dma_vv(0)]
        ngr = len(groups)
        gl = {4: [[5, 8, 11, 14], [18, 22, 26, 30], [34, 38, 42, 46], [51, 54, 57, 60]],
              3: [[2, 7, 12, 17], [24, 29, 34, 39], [46, 51, 56, 60]],
              2: [[2, 10, 18, 26], [34, 42, 50, 58]], 1: [[18, 30, 42, 54]]}[ngr]
        dg = [g for gr, pos in zip(groups, gl) for g in pos[:len(gr)]]
        js = {4: 0, 5: 1, 6: 2, 8: 3, 9: 4, 10: 5, 12: 6, 13: 7}.get(t)
        if js is not None and not OPT['nojs']: dg.append(49); G.place_dma(jstore(js), [49])
        if t == 2: dg.append(46); G.mem[46].append(Ins(cl(f'buffer_store_dword v{VPA}, v{VOFFO}, {srd(SFL)}, 0 offen {OPT["st"]}'), 'Fz'))
        free = [g for g in range(64) if g not in dg]
        G.sc[0].append(f'WAITVM X{t + 2}')
        rds = x_reads(t + 2)
        if t + 5 < 18:
            xi = [i for i, gr in enumerate(groups) if gr[0][1].tag == f'X{t + 5}'][0]
            G.sc[gl[xi][0] - 3].append(f'WAITLG rX{t + 2}')
        if t in (3, 7, 11):
            rds += [Ins(f'ds_read_b64_tr_b16 a[{224 + 4 * n + 2 * sx}:{225 + 4 * n + 2 * sx}], v{JADDR} offset:{n * 32 + sx * 16 * 384}') for n in range(3) for sx in range(2)]
        if t == 0: G.sc[2].append('WAITLG rX1')
        rds += w_reads(t + 1) if t < 13 else unit_reads(0)[:8]
        for r, g in zip(rds, free): G.mem[g].append(r)
        for gr, g in zip(groups, gl): G.place_dma(gr, g)
        if t % 2 == 0 or t == 13:
            c = t // 2 + 1
            tags = f'W{2 * c}+W{2 * c + 1}' if t != 13 else 'W16+W17+X16+X17'
            if t in (2, 6, 10): tags += f'+J{t // 4}'
            G.sc[62] += [f'WAITVM {tags} lg0', 's_barrier']
        if OPT['qtl']:
            G.v[3].append('s_memtime s[98:99]'); G.v[40].append(f's_mov_b32 s{64 + t}, s98')
        A.extend(G.weave(mf))
    stamp(A, 4)
    gsu = f"""s_and_b32 s50, s2, 6
s_lshl_b32 s50, s50, 3
s_lshr_b32 s51, s2, 5
s_lshl_b32 s51, s51, 1
s_add_u32 s50, s50, s51
s_lshr_b32 s51, s{sW}, 1
s_add_u32 s50, s50, s51
s_lshl_b32 s50, s50, 19
s_and_b32 s51, s2, 1
s_lshl_b32 s51, s51, 18
s_add_u32 s50, s50, s51
s_and_b32 s51, s{sW}, 1
s_lshl_b32 s51, s51, 11
s_add_u32 s50, s50, s51
s_add_u32 s{SGO}, s{sWS}, s50|s_addc_u32 s{SGO+1}, s{sWS+1}, 0
s_mov_b32 s{SGO+2}, {262144 - 2048}
s_and_b32 s50, s2, 4
s_bfe_u32 s51, s2, 0x20003
s_add_u32 s50, s50, s51
s_lshl_b32 s50, s50, 1
s_and_b32 s51, s2, 1
s_add_u32 s50, s50, s51
s_mul_i32 s50, s50, {64 * 9216}
s_add_u32 s50, s50, {WS_WO}
s_add_u32 s{SGW}, s{sWS}, s50|s_addc_u32 s{SGW+1}, s{sWS+1}, 0
s_mov_b32 s{SGW+2}, {64 * 9216}""".split('\n')
    NG = 288
    G = Gaps(NG + 8)
    mf = []; ref = []
    UR = [unit_reads(n) for n in range(8)]
    XR = x_reads(16) + x_reads(17)
    K0 = k_reads(0); K1 = k_reads(1)
    CV_ = [conv(n) for n in range(8)]
    ref += XR
    for n in range(8):
        h, u = n >> 2, n & 3
        m = [Ins(mfma(QACC(h, 2 * u + tt, qt), uw(n, k, tt), f'v{XF(14 + k, qt)}', QACC(h, 2 * u + tt, qt))) for k in range(4) for tt in range(2) for qt in range(4)]
        mf += m
        ref += (UR[n][8:] if n == 0 else UR[n]) + m + CV_[n][0] + [d for _, d in CV_[n][1]]
    m = [Ins(x) for x in qk_mfmas(0)]
    mf += m; ref += K0 + m + K1
    for n, jobs in {1: dma_kk(1), 2: dma_kk(2), 3: dma_vv(1)}.items():
        G.place_dma(jobs, [32 * n + x for x in (4, 12, 20, 28)])
    G.place_dma(dma_kk(3), [250, 258, 266, 274])
    G.sc[97].append('WAITLG rX16')
    if not OPT['nojs']: G.place_dma(jstore(8), [31])
    for i, x in enumerate(gsu): G.sc[130 + i] += x.split('|')
    BAR = 32 * 7 + 9
    G.sc[BAR] += ['WAITVM KK0 lg0', 's_barrier']
    def put(ins, g, lim=None):
        while G.mem[g] or (BAR - 5 <= g < BAR): g += 1
        assert lim is None or g <= lim, (ins.text, g, lim)
        G.mem[g].append(ins); return g
    cur = 0
    for n in range(8):
        V, D = CV_[n]
        g0 = 32 * (n + 1) + 1; span = 30
        vp = [g0 + (i * span) // len(V) for i in range(len(V))]
        for x, g in zip(V, vp): G.v[g].append(x)
        for i, d in D: cur = put(d, max(cur, vp[i] + 1))
    g = 0
    for r in XR[:2] + XR[4:6] + UR[0][8:12] + XR[2:4] + XR[6:] + UR[0][12:]: g = put(r, g)
    for n in range(1, 8):
        for i, r in enumerate(UR[n]):
            g = put(r, max(g, 32 * (n - 1) + (i * 3) // 2), lim=min(32 * n + 2 * i - 5, BAR - 6))
    g = BAR
    for i, r in enumerate(K0): g = put(r, max(g, BAR + 2 * i), lim=256 + 4 * i - 6)
    for i, r in enumerate(K1): g = put(r, max(g, 256 + 4 * i + 4))
    if OPT['stamps'] and not OPT['qtl']: G.sc[257].append('s_memtime s[74:75]')
    if OPT['qtl']:
        for n in range(9): G.v[32 * n + 3].append('s_memtime s[98:99]'); G.v[32 * n + 25].append(f's_mov_b32 s{78 + n}, s98')
    out = [I(x) for x in G.weave(mf)]
    check_order(ref, out, 'QB')
    A.extend(out)
    ini = init_stream(0)
    A.extend(ini[:40])
    A('WAITLG rQ7')
    vv = flat(dma_vv(2))
    for i in range(4): A.extend(vv[-4 + i:][:1] if i else vv[:3]); A.extend(ini[40 + 12 * i:52 + 12 * i])

def seg_name(j):
    if j == 0 or (j == 32 and not OPT['w1']): return 's0'
    if j == 32: return 's32'
    if j == 31: return 'sp31'
    if j == 63: return 'fin31'
    return f'r{j % 8}'

def gen():
    A = Prog()
    setup(A)
    q_phase(A)
    SH = 2
    st = softmax_stream(0)
    A.extend(dense(st[:32 + SH]))
    carry = st[32 + SH:]
    stamp(A, 6)
    if OPT['tl']: A('s_mov_b32 s97, 0\nv_and_b32 v41, 63, v0\nv_mov_b32 v43, 0')
    def tagsof(which, t):
        if which == 'V' and t < 6: return f'VV{t // 2}'
        if which == 'K' and t < 8: return f'KK{t // 2}'
        return f'{which}{t}'
    GA = [4, 5, 6]
    def WB(s, n): return 128 + (s & 1) * 36 + n * 4
    def GACC(n, mm): i = n * 2 + mm; return 64 + i * 4 if i < 16 else 200 + (i - 16) * 4
    def OB(s, mm): return 128 + (s % 16) * 8 + mm * 4
    def g_wreads(s):
        out = []
        for n in range(9):
            ad = ((s >> 2) % 4) * 36864 + (s & 3) * 9216 + n * 1024
            out.append(Ins(f'ds_read_b128 v[{WB(s, n)}:{WB(s, n) + 3}], v{GA[ad >> 16]} offset:{ad & 0xffff}', f'rG{s}'))
        return out
    def g_oloads(s):
        gen_, i, u = s >> 5, (s >> 2) & 7, s & 3
        return [([f's_mov_b32 s{sVo}, {(2 * i + gen_) * 16384 + u * 4096}'] if mm == 0 else [],
                 Ins(cl(f'buffer_load_dwordx4 a[{OB(s, mm)}:{OB(s, mm) + 3}], v{VOFFO}, {srd(SGO)}, s{sVo} offen offset:{mm * 1024} {OPT["g_o"]}'), f'GO{s}'), []) for mm in range(2)]
    def g_w8(a, tag):
        return [([f's_mov_b32 s{sKo}, {a}', f's_add_u32 m0, s{sW2K}, {a}'] if o == 0 else [],
                 Ins(cl(f'buffer_load_dwordx4 v{VOFFK}, {srd(SGW)}, s{sKo} offen offset:{o * 1024} {OPT["g_w"]} lds'), tag), []) for o in range(2)]
    def g_wchunk(c):
        out = []
        for n in range(9):
            pre = [f's_add_u32 s{sKo}, s{sXo}, {c * 36864 + (n // 4) * 4096}', f's_add_u32 m0, s{sXo}, {(c % 4) * 36864 + (n // 4) * 4096}'] if n % 4 == 0 else []
            out.append((pre, Ins(cl(f'buffer_load_dwordx4 v{VOFFO}, {srd(SGW)}, s{sKo} offen offset:{(n % 4) * 1024} {OPT["g_w"]} lds'), f'GW{c}'), []))
        return out
    poll1 = f'buffer_load_dword v{VPOLL}, v{VPA}, {srd(SFP)}, 0 offen sc1'
    poll2 = f'buffer_load_dword v{VPOLL}, v{VPA}, {srd(SFP)}, 0 offen offset:16 sc1'
    pollc = f'buffer_load_dword v{VPOLL}, v{VPA}, {srd(SWS)}, 0 offen sc1'
    ne1 = f'v_cmp_ne_u32 vcc, 1, v{VPOLL}'
    qcopy = [f'v_accvgpr_mov_b32 a{128 + i}, a{192 + i}' for i in range(64)]

    def fill(G, o, j, carry):
        jj = j & 31; nm = seg_name(j); p = j & 1
        if j % 2 == 0:
            tags = [tagsof('V', j), tagsof('V', j + 1), tagsof('K', j + 2), tagsof('K', j + 3)] + (['Jst', 'Fz'] if j == 6 else [])
            G.sc[o] += [f'WAITVM {"+".join(tags)} lg0', 's_barrier']
        last = len(carry) - 1
        if j < 63:
            for i, g in enumerate(carry): G.v[o + i] += g
        if jj != 0:
            G.v[o + 17].append(f'v_max3_f32 v{CT}, v{Lr(p, 0)}, v{Lr(p, 1)}, v{Lr(p, 2)}')
            G.v[o + last].append(f'v_max_f32 v{CT}, v{CT}, v{Lr(p, 3)}')
            G.v[o + last].append(f'v_cmp_lt_f32 vcc, s{sTHR}, v{CT}')
            G.sc[o + last + 1] += [f's_cbranch_vccnz L_st_{nm}', f'L_bk_{nm}:']
        ncarry = None
        if j < 63:
            vg = sorted([3 + 4 * i for i in range(8)] + [4 + 4 * i for i in range(8)])
            for r, g in zip(v_reads(j), vg): G.mem[o + g].append(r)
            for r, g in zip(k_reads(j + 2), [35, 36, 39, 40, 43, 47, 51, 55]): G.mem[o + g].append(r)
            G.place_dma(dma_kv('K', j + 8) + dma_kv('V', j + 6), [o + 10, o + 26, o + 42, o + 59])
            st = softmax_stream(j + 1)
            if (j + 1) & 31:
                for i, g in enumerate(st[:32 + SH]): G.v[o + 32 - SH + i] += g
            else:
                G.pack(init_stream(j + 1) + dense(st[:32 + SH]) + ([] if OPT['w1'] else qcopy), o + 34, o + 64)
            ncarry = st[32 + SH:]
        if OPT['tl']:
            G.sc[o + 5].append('s_memtime s[98:99]')
            G.sc[o + 52].append('s_waitcnt lgkmcnt(0)')
            G.v[o + 52] += ['v_cmp_eq_u32 s[48:49], s97, v41', 'v_mov_b32 v42, s98']
            G.v[o + 53] += ['v_cndmask_b32 v43, v43, v42, s[48:49]']
            G.sc[o + 54].append('s_add_u32 s97, s97, 1')
        if nm == 'r6': G.sc[o + 62].append(f's_sub_u32 s{sCnt}, s{sCnt}, 1')
        if nm == 'r7':
            G.sc[o + 61].append(f's_sub_u32 s{sT0}, s{sKo}, 0x30000')
            G.sc[o + 62].append(f's_cmp_lt_u32 s{sT0}, 0x40000')
        return ncarry
    def mfs(j): return (qk_mfmas(j + 1) if j + 1 < 64 else [None] * 32) + pv_mfmas(j)

    j = 0
    while j < 64:
        nm = seg_name(j)
        A(f'.mark {nm}')
        if j == 31 and OPT['w1']:
            G = Gaps(128)
            carry = fill(G, 0, 31, carry)
            carry = fill(G, 64, 32, carry)
            prep, units = epilogue(False)
            G.pack(prep, 31, 40)
            L, first, lastrd = epi_flat(units)
            pos = G.pack(L, 42, 124)
            for k in range(16):
                u, qt = divmod(k, 4)
                assert pos[first[k]] >= 32 + 8 * u + 4 + qt + 2, (k, pos[first[k]])
                assert pos[lastrd[k]] < 96 + 8 * u + qt, (k, pos[lastrd[k]])
            G.pack(qcopy, 64, 127)
            G.v[66] += [f'v_mov_b32 v{VPA}, 0', f's_mov_b32 s{sHead}, 1', f's_mov_b32 s{sCnt}, 3']
            G.mem[70].append(Ins(pollc, 'Pc'))
            if OPT['stamps'] and not OPT['qtl']: G.sc[33].append('s_memtime s[78:79]'); G.sc[126].append('s_memtime s[80:81]')
            A.extend(G.weave(mfs(31) + mfs(32)))
            j = 33
            continue
        G = Gaps(64)
        oc = carry
        carry = fill(G, 0, j, carry)
        if j == 63:
            P0 = v_reads(j) + spin_check('f1', poll1, ne1)
            dn = dense(oc)
            ol = flat(g_oloads(0) + g_oloads(1) + g_oloads(2) + g_oloads(3))
            k = 0
            for i, x in enumerate(dn):
                P0.append(x)
                tgt = len(ol) * (i + 1) // len(dn)
                while k < tgt: P0.append(ol[k]); k += 1
            G.v[0] += P0
            G.v[18] += [f'v_mov_b32 v{GA[0]}, v{VOFFO}', f'v_add_u32 v{GA[1]}, 0x10000, v{VOFFO}', f'v_add_u32 v{GA[2]}, 0x20000, v{VOFFO}', f's_mul_i32 s{sXo}, s{sW}, 9216']
            G.sc[32] += ['WAITVM K68 lg0', 's_barrier']
            for r, g in zip(g_wreads(0), range(33, 60, 3)): G.mem[g].append(r)
            G.place_dma(g_w8(7 * 8192, 'GW1') + g_w8(8 * 8192, 'GW1') + g_oloads(4) + g_oloads(5), [35, 38, 43, 46, 50, 53, 56, 61])
            prep2, units2 = epilogue(int(OPT['epg']) == 0)
            epi, _, _ = epi_flat(units2)
            G.pack(prep2, 33, 48)
            ne = 0
            if int(OPT['epg']):
                ne = 28
                G.pack(epi[:ne], 48, 64)
            epi = epi[ne:]
        A.extend(G.weave(mfs(j)))
        if j == 7:
            A('.mark b7')
            A('WAITVM Jst+Fz')
            A(f's_mov_b32 s{SWS}, s{sDBG}\ns_mov_b32 s{SWS + 1}, s{sDBG + 1}\ns_mov_b32 s{SWS + 2}, 4\nv_mov_b32 v{VFLAG}, 1\nv_lshlrev_b32 v{VPA}, 2, v0\nv_lshlrev_b32 v{VL4}, 6, v2')
            A(f'buffer_atomic_add v{VFLAG}, v{VPA}, {srd(SWS)}, 0 offen sc1', tag='Cwo')
        if j == 47:
            A('.mark mid')
            A(f's_movk_i32 s{sMODE}, 256')
            A.extend(spin_check('c', pollc, f'v_cmp_gt_u32 vcc, s{sMODE}, v{VPOLL}'))
            A('WAITVM Ost')
            A(cl(f'buffer_store_dword v{VFLAG}, v{VL4}, {srd(SFL)}, 0 offen {OPT["st"]}'), tag='F1')
            A(f"""s_andn2_b32 s50, s2, 0x38
s_lshl_b32 s50, s50, 7
s_bfe_u32 s51, s2, 0x10005
s_lshl_b32 s51, s51, 3
s_add_u32 s50, s50, s51
s_lshr_b32 s51, s{sW}, 1
s_lshl_b32 s51, s51, 2
s_add_u32 s50, s50, s51
s_add_u32 s50, s50, {WS_FL}
s_add_u32 s{SFP}, s{sWS}, s50
s_addc_u32 s{SFP+1}, s{sWS+1}, 0
s_mov_b32 s{SFP+2}, 8192
v_and_b32 v{VPA}, 7, v0
v_lshlrev_b32 v{VPA}, 10, v{VPA}""")
        if j == 55:
            A('.mark sw')
            A(f"""s_mov_b32 s{SK}, s{SGW}
s_mov_b32 s{SK+1}, s{SGW+1}
s_mov_b32 s{SK+2}, s{SGW+2}
s_mov_b32 s{sKo}, 0
v_add_u32 v{VOFFK}, s{sW2K}, v{VOFFO}
v_add_u32 v{VOFFK + 1}, s{sW2K}, v{VOFFO}""")
            A(poll1, tag='P1')
            code_prefetch(A, 'L_fin', 'L_code_end', 252, 254, 1)
        if j == 31:
            A('.mark epi')
            stamp(A, 7)
            A(f'v_mov_b32 v{VPA}, 0')
            A(pollc, tag='Pc')
            prep, units = epilogue(True)
            A.extend(prep + epi_flat(units)[0])
            A(f's_mov_b32 s{sHead}, 1\ns_mov_b32 s{sCnt}, 3')
            stamp(A, 8)
        j += 1
    A('.mark tail')
    stamp(A, 9)
    if OPT['tl']: A('v_mov_b32 v59, v43')
    EPG = int(OPT['epg'])
    pend = []
    for a in range(9, 18): pend += g_w8(a * 8192, 'GW2' if a < 14 else 'GW3')
    ek = 0
    G2 = int(OPT['g2s'])
    oq = list(range(6, 64))
    if EPG == 0:
        pre = []
        for x in range(6, 10): pre += g_oloads(x)
        pre += pend[:10]
        for x in range(10, 14): pre += g_oloads(x)
        pre += pend[10:]
        for x in range(14, 16): pre += g_oloads(x)
        pend = []; oq = list(range(16, 64))
        k = 0
        for i, x in enumerate(epi):
            A.extend([x])
            tgt = len(pre) * (i + 1) // len(epi)
            while k < tgt: A.extend(flat([pre[k]])); k += 1
        ek = len(epi)
    for s_ in range(64):
        c, u = s_ >> 2, s_ & 3
        mf = [mfma(f'v{GACC(n, mm)}', f'v{WB(s_, n)}', f'a{OB(s_, mm)}', f'v{GACC(n, mm)}' if s_ else '0') for n in range(9) for mm in range(2)]
        G = Gaps(18)
        if u == 3 and c < 15:
            tags = f'GW{c + 1}' + ('+K70' if c == 0 else '')
            G.sc[0] += [f'WAITVM {tags} lg0', 's_barrier']
            assert not [x for x in pend if x[1].tag == f'GW{c + 1}'], (c, [x[1].tag for x in pend])
            if c + 4 < 16: pend += g_wchunk(c + 4)
        if s_ + 1 < 64:
            for r, g in zip(g_wreads(s_ + 1), [0, 1, 3, 4, 5, 7, 8, 9, 11]): G.mem[g].append(r)
        jobs = []
        while oq and len(jobs) < 4 and oq[0] <= s_ + 15 and (oq[0] < 32 or s_ > G2):
            jobs += g_oloads(oq.pop(0))
        assert not oq or oq[0] > s_ + 3, (s_, oq[0])
        nw = 3 if len(jobs) < 4 else 2
        take = pend[:nw]; pend = pend[nw:]
        G.place_dma(jobs[:2], [2, 6])
        if len(jobs) == 4: G.place_dma(jobs[2:], [10, 12]); G.place_dma(take, [15, 17] if not (len(take) > 1 and take[1][0]) else [14, 17])
        else: G.place_dma(take, [10, 13, 16])
        if s_ == int(OPT['p2s']): G.mem[17].append(Ins(poll2, 'P2'))
        if OPT['gtl']:
            if s_ % 2 == 0: G.sc[12].append('s_memtime s[98:99]')
            else: G.v[0].append(f'v_writelane_b32 v59, s98, {s_ // 2}')
        for g in range(18):
            n = EPG - (1 if G.mem[g] else 0)
            while n > 0 and ek < len(epi):
                x = epi[ek]
                if isinstance(x, Ins) and x.kind == 'vst':
                    if G.v[g]: break
                    G.mem[g].append(x); ek += 1; n -= 1; continue
                G.v[g].append(x); ek += 1
                if not x.startswith('s_'): n -= 1
        if s_ == int(OPT['f2s']):
            assert ek == len(epi), (ek, len(epi))
            G.sc[16].append('WAITVM Ost')
            G.mem[17].append(Ins(cl(f'buffer_store_dword v{VFLAG}, v{VL4}, {srd(SFL)}, 0 offen offset:16 {OPT["st"]}'), 'F2'))
        if s_ == G2: G.v[17] += spin_check('f2', poll2, ne1)
        if s_ == 40:
            G.v[17] += f"""s_lshl_b32 s50, s2, 2
s_add_u32 s50, s50, s{sW}
s_mul_i32 s50, s50, 9216
s_add_u32 s50, s50, {WS_X}
s_add_u32 s{SO}, s{sWS}, s50
s_addc_u32 s{SO+1}, s{sWS+1}, 0
s_mov_b32 s{SO+2}, 9216
s_xor_b32 s50, s2, 1
s_lshl_b32 s51, s50, 2
s_add_u32 s51, s51, s{sW}
s_mul_i32 s51, s51, 9216
s_add_u32 s51, s51, {WS_X}
s_add_u32 s{SV}, s{sWS}, s51
s_addc_u32 s{SV+1}, s{sWS+1}, 0
s_mov_b32 s{SV+2}, 9216
s_lshl_b32 s50, s50, 7
s_lshl_b32 s51, s{sW}, 2
s_add_u32 s50, s50, s51
s_add_u32 s50, s50, {WS_FL + 32}
s_add_u32 s{SFP}, s{sWS}, s50
s_addc_u32 s{SFP+1}, s{sWS+1}, 0
s_mov_b32 s{SFP+2}, 4
s_and_b32 s50, s2, 2
s_lshl_b32 s50, s50, 2
s_lshr_b32 s51, s2, 5
s_add_u32 s50, s50, s51
s_lshl_b32 s50, s50, 2
s_add_u32 s50, s50, s{sW}
s_lshl_b32 s50, s50, 1
s_and_b32 s51, s2, 1
s_add_u32 s50, s50, s51
s_mul_i32 s50, s50, {16 * 2304}
s_bfe_u32 s51, s2, 0x10002
s_mul_i32 s51, s51, 1152
s_add_u32 s50, s50, s51
s_bfe_u32 s51, s2, 0x20003
s_mul_i32 s51, s51, 288
s_add_u32 s50, s50, s51
s_add_u32 s{SOUT}, s{sOUT}, s50
s_addc_u32 s{SOUT+1}, s{sOUT+1}, 0
s_mov_b32 s{SOUT+2}, {15 * 2304 + 288}
v_mov_b32 v{VPA}, 0""".split('\n')
        if 41 <= s_ < 46:
            k = s_ - 41
            vv = f"""v_add_u32 v28, {64 * k}, v2
v_mul_u32_u24 v29, 3641, v28
v_lshrrev_b32 v29, 16, v29
v_mul_u32_u24 v30, 18, v29
v_sub_u32 v30, v28, v30
v_lshlrev_b32 v30, 4, v30
v_mad_u32_u24 v{32 + k}, v29, s{sT0}, v30
v_mul_u32_u24 v29, 304, v29
v_add3_u32 v{40 + k}, v29, v30, v31""".split('\n')
            if k == 0:
                vv = [f's_movk_i32 s{sT0}, 2304', 'v_lshlrev_b32 v31, 13, v1', 'v_and_b32 v29, 15, v2', 'v_mul_u32_u24 v29, 304, v29', 'v_lshrrev_b32 v30, 4, v2',
                      'v_lshl_add_u32 v29, v30, 3, v29', 'v_add_u32 v39, v29, v31', f'v_add_u32 v37, 0x1000, v{VOFFO}', f'v_add_u32 v38, 0x2000, v{VOFFO}'] + vv
            for i, x in enumerate(vv): G.v[i].append(x)
        A.extend(G.weave(mf))
    stamp(A, 10)
    A('s_bitcmp1_b32 s2, 0\ns_cbranch_scc1 L_x1')
    vo3 = [VOFFO, 37, 38]
    pollx = f'buffer_load_dword v{VPOLL}, v{VPA}, {srd(SFP)}, 0 offen sc1'
    for kh in range(2):
        if kh: A('L_x1:\ns_nop 7')
        for n in range(9):
            A(cl(f'buffer_store_dwordx4 v[{GACC(n, 1 - kh)}:{GACC(n, 1 - kh) + 3}], v{vo3[n // 4]}, {srd(SO)}, 0 offen offset:{(n % 4) * 1024} {OPT["st"]}'))
        if kh:
            A('s_nop 1')
            for n in range(9):
                for r in range(0, 4, 2): A(f'v_mov_b64 v[{GACC(n, 0) + r}:{GACC(n, 0) + r + 1}], v[{GACC(n, 1) + r}:{GACC(n, 1) + r + 1}]')
        else:
            A('s_branch L_x2')
    A('L_x2:')
    A('s_waitcnt vmcnt(0)')
    A(cl(f'buffer_store_dword v{VFLAG}, v{VL4}, {srd(SFL)}, 0 offen offset:32 {OPT["st"]}'))
    A(pollx)
    A.extend(spin_check('x', pollx, ne1))
    for n in range(9):
        A(f'buffer_load_dwordx4 v[{128 + 4 * n}:{131 + 4 * n}], v{vo3[n // 4]}, {srd(SV)}, 0 offen offset:{(n % 4) * 1024} sc1')
    for n in range(9):
        a = GACC(n, 0); b = 128 + 4 * n
        for r in range(0, 4, 2): A(f'v_pk_add_f32 v[{a + r}:{a + r + 1}], v[{a + r}:{a + r + 1}], v[{b + r}:{b + r + 1}]')
        A(f'v_cvt_pk_bf16_f32 v{b}, v{a}, v{a + 1}\nv_cvt_pk_bf16_f32 v{b + 1}, v{a + 2}, v{a + 3}')
        A(f'ds_write_b64 v39, v[{b}:{b + 1}] offset:{n * 32}')
    for k in range(5): A(f'ds_read_b128 v[{168 + 4 * k}:{171 + 4 * k}], v{40 + k}')
    for k in range(5): A(f'buffer_store_dwordx4 v[{168 + 4 * k}:{171 + 4 * k}], v{32 + k}, {srd(SOUT)}, 0 offen')
    if OPT['stamps']:
        A('s_waitcnt vmcnt(0)')
        stamp(A, 11)
        if OPT['tl'] or OPT['gtl']:
            A('s_lshl_b32 s50, s2, 10\ns_add_u32 s50, s50, 0x80000\nv_lshlrev_b32 v42, 2, v0\nbuffer_store_dword v59, v42, s[56:59], s50 offen')
        store_stamps(A, 7)
    A('L_end:\ns_endpgm')
    A.resolve_waits()
    rep = []
    A.fix_hazards(rep)
    segs = {}
    for n, L in split_marks(A.L): segs.setdefault(n, []).append(L)
    M = {n: merge_segments(v) for n, v in segs.items()}
    F = Prog()
    F.extend(M['_start'])
    F('L_s0:')
    F.extend(M['s0'])
    F('s_branch L_r1\n.p2align 6\nL_r0:')
    F.extend(M['r0'])
    F('L_r1:')
    for k in range(1, 7): F.extend(M[f'r{k}'])
    F('s_cbranch_scc1 L_sp')
    F.extend(M['r7'])
    F(f's_cbranch_scc1 L_r0\ns_cmp_eq_u32 s{sKo}, 0x80000\ns_cbranch_scc1 L_sw\ns_cmp_eq_u32 s{sKo}, 0x70000\ns_cbranch_scc1 L_mid')
    F.extend(M['b7'])
    F('s_branch L_r0\nL_mid:')
    F.extend(M['mid'])
    F('s_branch L_r0\nL_sw:')
    F.extend(M['sw'])
    F(f's_branch L_r0\nL_sp:\ns_cmp_lg_u32 s{sHead}, 0\ns_cbranch_scc1 L_fin')
    F.extend(M['sp31'])
    if OPT['w1']: F('s_branch L_r1')
    else:
        F.extend(M['epi']); F('s_branch L_s0')
    for nm, p, mode in [(f'r{k}', k & 1, 0) for k in range(8)] + [('sp31', 1, 1), ('fin31', 1, 1)]:
        F(f'L_st_{nm}:\ns_mov_b32 s{sMODE}, {mode}\ns_call_b64 s[{sRET}:{sRET + 1}], L_fb{p}\ns_branch L_bk_{nm}')
    F.extend(fallback(0).L); F.extend(fallback(1).L)
    for x in SPINS: F(x)
    F('L_fin:')
    F.extend(M['fin31'])
    F.extend(M['tail'])
    return F, rep

def build(path):
    A, rep = gen()
    hdr = open('cdna_kernels/' + NAME + '.s.ref').read().split('; Override launch')[0]
    t = hdr + '; @launch grid=(256,1,1) block=(256,1,1) lds=163840\n'
    t += '.amdgcn_target "amdgcn-amd-amdhsa--gfx950"\n.text\n' + MACROS
    t += prolog(KNAME) + A.text() + 'L_code_end:\n'
    t += kd(KNAME, 512, 100, 256)
    open(path, 'w').write(t)
    return rep, len(t)

if __name__ == '__main__':
    path = sys.argv[1]
    for kv in sys.argv[2:]:
        k, v = kv.split('=')
        assert k in OPT, k
        OPT[k] = (v == '1') if isinstance(OPT.get(k), bool) else v
    rep, n = build(path)
    from collections import Counter
    print('bytes', n, 'pads', Counter((a, b.split()[0]) for a, b in rep).most_common(12))
```

```python
import sys, math, struct
from common import *
from asmlib import *

OPT = dict(nt_kv='nt', nt_x='', nt_w='nt', st='sc1', g_o='sc1', g_w='sc1', stamps=False, tl=False, gtl=False,
           epg='4', f2s='10', p2s='23', g2s='25', gs0='6', gs1='58', lo='5', lw='4', w1=False, qtl=False, pl='2', lag=True, ost='sc1', nb='3', jo='2', verbose=False)
WS_WO = 33554432
WS_X = 44 << 20
WS_FL = 56 << 20
WS_STAMP = 64 << 20
SCALE = math.log2(math.e) / math.sqrt(128.0)
def f2i(x): return struct.unpack('<I', struct.pack('<f', x))[0]
KNAME = NAME + '_kernel'

SK, SV, SX, SW_, SO, SWS, SWD, SFL = 4, 8, 12, 16, 20, 24, 28, 88
SGO, SGW, SFP, SOUT = 12, 16, 24, 28
sWS, sOUT, sDBG = 52, 54, 46
sW, sW2K, sW4K, sT0, sKo, sVo, sSC, sTHR, sXo, sRET, sMODE, sWe = 32, 33, 34, 35, 36, 37, 38, 40, 41, 42, 44, 45
sJ, sCnt, sHead, sOo = 48, 94, 95, 96
def srd(n): return f's[{n}:{n+3}]'
VPA, KADDR, VADDR, VOFFK, VOFFV, LREG, ETMP, CT, NEGM, VOFFO, VFLAG, VPOLL, VL4 = 3, 4, 8, 16, 18, 20, 28, 40, 44, 60, 61, 62, 63
KF, VF, SB, PB, EP = 64, 96, 128, 192, 224
NE = 12
def S(p, kt, qt): return SB + p * 32 + (kt * 4 + qt) * 4
def P(p, qt): return PB + p * 16 + qt * 4
def Lr(p, qt): return LREG + p * 4 + qt
def O(T, qt): return (T * 4 + qt) * 4
def Q(h, qt, u): return 128 + h * 64 + (u * 4 + qt) * 4
VSV, VSK, WADDR, XADDR, VOFFW, VOFFX, VOFFJ, JADDR = 20, 24, 64, 80, 84, 88, 92, 3
CW0, CW1, CR = 61, 62, 63
def QACC(h, T, qt): return (f'v{128 + (T * 4 + qt) * 4}' if h == 1 else f'a{(T * 4 + qt) * 4}')
def XF(t, qt): return (28 if (t >> 1) & 1 else 96) + ((t & 1) * 4 + qt) * 4
NWS = 24
def WF(slot): return 128 + slot * 4
BLK = 16384
def wblock(t): return [(4, 1), (7, 3), (8, 9)][(t >> 1) % 3][t & 1]
def xblock(p): return [2, 5, 6][p % 3]
def cl(s): return ' '.join(s.split())
def rng(r, n): return f'{r[0]}[{int(r[1:])}:{int(r[1:]) + n - 1}]'

def dma_kv(which, tile):
    base = (0 if which == 'K' else 65536) + (tile % 8) * 8192
    s, vo, so = (SK, VOFFK, sKo) if which == 'K' else (SV, VOFFV, sVo)
    tag = f'{which}{tile}'; nt = OPT['nt_kv']
    return [([f's_add_u32 m0, s{sW2K}, {base}'], Ins(cl(f'buffer_load_dwordx4 v{vo}, {srd(s)}, s{so} offen {nt} lds'), tag), []),
            ([], Ins(cl(f'buffer_load_dwordx4 v{vo + 1}, {srd(s)}, s{so} offen offset:1024 {nt} lds'), tag), [f's_add_u32 s{so}, s{so}, 8192'])]
def dma4(s, vo, off, blk, tag, nt, so=sWe):
    return [([f's_mov_b32 s{so}, {off}', f's_add_u32 m0, s{sW4K}, {blk * BLK}'] if n == 0 else [],
             Ins(cl(f'buffer_load_dwordx4 v{vo + n}, {srd(s)}, s{so} offen offset:{n * 1024} {nt} lds'), tag), []) for n in range(4)]
def dma_w(t): return dma4(SW_, VOFFW, t * 32 * 8192, wblock(t), f'W{t}', OPT['nt_w'])
def dma_x(p): return dma4(SX, VOFFX, (p >> 1) * 128 + (p & 1) * 32 * 1152, xblock(p), f'X{p}', OPT['nt_x'], sXo)
def dma_kk(i): return dma4(SK, VSK, i * 16384, i, f'KK{i}', OPT['nt_kv'])
def dma_vv(i): return dma4(SV, VSV, i * 16384, 4 + i, f'VV{i}', OPT['nt_kv'])
def flat(dl):
    out = []
    for pre, ins, post in dl: out += pre + [ins] + post
    return out

def I(x): return x if isinstance(x, Ins) else Ins(x)
def cost(x):
    k = x.kind
    return {'trans': 8, 'valu': 4, 'dsr': 4, 'dsw': 4, 'dma': 12, 'vld': 12, 'vst': 12}.get(k, 0 if k in ('label', 'dir', 'waitvm', 'waitlg') else 4)
class Gaps:
    def __init__(self, n):
        self.n = n; self.sc = [[] for _ in range(n + 1)]; self.mem = [[] for _ in range(n)]; self.v = [[] for _ in range(n)]
    def place_dma(self, dl, gaps):
        assert len(gaps) >= len(dl), (len(gaps), len(dl))
        for (pre, ins, post), g in zip(dl, gaps):
            for k, s in enumerate(pre): self.sc[g - len(pre) + k].append(s)
            self.mem[g].append(ins)
            for k, s in enumerate(post): self.sc[g + 1 + k].append(s)
    def load(self, g): return sum(cost(I(x)) for x in self.mem[g] + self.v[g])
    def pack(self, items, g0, g1):
        items = [I(x) for x in items]
        base = [self.load(g) for g in range(self.n)]
        for L in range(8, 400, 2):
            g = g0; used = 0; vhere = False; pos = []; ok = True
            for x in items:
                c = cost(x); ismem = x.kind in ('dsr', 'dsw', 'dma', 'vld', 'vst')
                while True:
                    if g >= g1: ok = False; break
                    room = L - base[g] - used
                    if ismem and (vhere or (self.mem[g] and L < 20)): fit = False
                    else: fit = c <= room or (c == 0) or (used == 0 and base[g] == 0)
                    if fit: break
                    g += 1; used = 0; vhere = False
                if not ok: break
                pos.append(g); used += c
                if not ismem: vhere = True
                else: vhere = True if False else vhere
            if ok: break
        assert ok
        for x, g in zip(items, pos):
            (self.mem if x.kind in ('dsr', 'dsw', 'dma', 'vld', 'vst') else self.v)[g].append(x)
        return pos
    def weave(self, mf, a=0, b=None):
        out = []
        b = self.n if b is None else b
        for i in range(a, b):
            if i < len(mf) and mf[i] is not None: out.append(mf[i])
            out += self.sc[i] + self.mem[i] + self.v[i]
        if b == self.n: out += self.sc[self.n]
        return out

def k_reads(tile):
    return [Ins(f'ds_read_b128 v[{KF + (kt * 4 + u) * 4}:{KF + (kt * 4 + u) * 4 + 3}], v{KADDR + u} offset:{(tile % 8) * 8192 + kt * 4096}', f'rK{tile}')
            for kt in range(2) for u in range(4)]
def v_reads(tile):
    return [Ins(f'ds_read_b64_tr_b16 v[{VF + T * 4 + s * 2}:{VF + T * 4 + s * 2 + 1}], v{VADDR + T} offset:{(tile % 8) * 8192 + s * 4096}', f'rV{tile}')
            for T in range(8) for s in range(2)]
def qk_mfmas(j):
    h = 1 if j in ((32, 33) if OPT['w1'] else (32,)) else 0
    p = j & 1; first = (j & 31) == 0
    out = []
    for kt in range(2):
        for u in range(4):
            for qt in range(4):
                c = f'v{S(p, kt, qt)}' if u else ('0' if first else f'v{NEGM + qt * 4}')
                out.append(mfma(f'v{S(p, kt, qt)}', f'v{KF + (kt * 4 + u) * 4}', f'a{Q(h, qt, u)}', c))
    return out
def pv_mfmas(j):
    p = j & 1; first = (j & 31) == 0
    return [mfma(f'a{O(T, qt)}', f'v{VF + T * 4}', f'v{P(p, qt)}', '0' if first else f'a{O(T, qt)}') for T in range(8) for qt in range(4)]

def softmax_stream(j):
    p = j & 1; first = (j & 31) == 0
    out = []
    for qt in range(4):
        for k in range(8):
            e = ETMP + (qt * 8 + k) % NE
            src = S(p, k >> 2, qt) + (k & 3)
            out.append([f'v_exp_f32 v{e}, v{src}'])
            l = Lr(p, qt)
            if k == 0: a = f'v_mov_b32 v{l}, v{e}' if first else f'v_add_f32 v{l}, v{Lr(1 - p, qt)}, v{e}'
            else: a = f'v_add_f32 v{l}, v{l}, v{e}'
            g = [a]
            if k & 1:
                e0 = ETMP + (qt * 8 + k - 1) % NE
                g.append(f'v_cvt_pk_bf16_f32 v{P(p, qt) + (k >> 1)}, v{e0}, v{e}')
            out.append(g)
    return out
def lagged(stream):
    out = [[] for _ in range(len(stream) + 2)]
    for i, g in enumerate(stream): out[i + (2 if i & 1 else 0)] += g
    return out
def undense(st):
    return [x for g in st for x in g]
def dense(stream):
    out = []; prev = []
    for i in range(0, len(stream), 2):
        out += stream[i]; out += prev; prev = stream[i + 1] if i + 1 < len(stream) else []
    return out + prev
def rowmax(p, qt, dst):
    s0 = S(p, 0, qt); s1 = S(p, 1, qt)
    return [f'v_max3_f32 v{dst}, v{s0}, v{s0 + 1}, v{s0 + 2}', f'v_max3_f32 v{dst}, v{dst}, v{s0 + 3}, v{s1}',
            f'v_max3_f32 v{dst}, v{dst}, v{s1 + 1}, v{s1 + 2}', f'v_max_f32 v{dst}, v{dst}, v{s1 + 3}']
def xlane(op, regs, tmps):
    out = []
    for sw in ('v_permlane16_swap_b32', 'v_permlane32_swap_b32'):
        out += [f'v_mov_b32 v{t}, v{r}' for r, t in zip(regs, tmps)]
        out += [f'{sw} v{t}, v{r}' for r, t in zip(regs, tmps)]
        out += [f'{op} v{r}, v{r}, v{t}' for r, t in zip(regs, tmps)]
    return out
def init_stream(j):
    p = j & 1
    m = [NEGM + qt * 4 for qt in range(4)]; t = [NEGM + qt * 4 + 1 for qt in range(4)]
    out = []
    rm = [rowmax(p, qt, m[qt]) for qt in range(4)]
    for k in range(4): out += [rm[qt][k] for qt in range(4)]
    out += xlane('v_max_f32', m, t)
    for qt in range(4):
        for k in range(8):
            s = S(p, k >> 2, qt) + (k & 3)
            out.append(f'v_sub_f32 v{s}, v{s}, v{m[qt]}')
    for qt in range(4):
        for r in (3, 2, 1, 0): out.append(f'v_sub_f32 v{NEGM + qt * 4 + r}, 0, v{m[qt]}')
    return out

def epilogue(packed):
    l = [Lr(1, qt) for qt in range(4)]
    t = [EP + 8 + i for i in range(4)]
    prep = xlane('v_add_f32', l, t)
    rc = [EP + 2 * i for i in range(4)]
    prep += [f'v_rcp_f32 v{rc[qt]}, v{l[qt]}' for qt in range(4)]
    units = []
    for k in range(16):
        u, qt = divmod(k, 4)
        b = EP + 8 + (k % 2) * 12
        rd = [f'v_accvgpr_read_b32 v{b + i}, a{O(2 * u + (i >> 2), qt) + (i & 3)}' for i in range(8)]
        if packed: mu = [f'v_pk_mul_f32 v[{b + 2 * i}:{b + 2 * i + 1}], v[{b + 2 * i}:{b + 2 * i + 1}], v[{rc[qt]}:{rc[qt] + 1}] op_sel_hi:[1,0]' for i in range(4)]
        else: mu = [f'v_mul_f32 v{b + i}, v{rc[qt]}, v{b + i}' for i in range(8)]
        cv = [f'v_cvt_pk_bf16_f32 v{b + 8 + i}, v{b + 2 * i}, v{b + 2 * i + 1}' for i in range(4)]
        st = [Ins(cl(f'buffer_store_dwordx4 v[{b + 8}:{b + 11}], v{VOFFO}, {srd(SO)}, s{sOo} offen offset:{qt * 1024} {OPT["ost"]}'), 'Ost')]
        if qt == 3: st.append(f's_add_u32 s{sOo}, s{sOo}, 4096')
        units.append((rd, mu, cv, st))
    return prep, units
def epi_flat(units):
    L = []; first = []; lastrd = []
    for k, (rd, mu, cv, st) in enumerate(units):
        first.append(len(L)); L += rd; lastrd.append(len(L) - 1)
        if k: L += units[k - 1][3]
        L += mu + cv
    L += units[-1][3]
    return L, first, lastrd

SPINS = []
def spin_check(name, load, cmp):
    SPINS.append(f"""L_spin_{name}:
s_mov_b32 s{sT0}, 0x40000
L_spin2_{name}:
s_sleep 1
{load}
s_sub_u32 s{sT0}, s{sT0}, 1
s_cbranch_scc1 L_back_{name}
s_waitcnt vmcnt(0)
{cmp}
s_nop 1
s_cbranch_vccnz L_spin2_{name}
s_branch L_back_{name}""")
    return [cmp, f's_cbranch_vccnz L_spin_{name}', f'L_back_{name}:']

def fallback(p):
    A = Prog()
    A(f'L_fb{p}:')
    A('s_nop 7\ns_nop 7')
    m = [EP + i for i in range(4)]; t = [EP + 4 + i for i in range(4)]; f = [EP + 8 + i for i in range(4)]
    rm = [rowmax(p, qt, m[qt]) for qt in range(4)]
    for k in range(4): A.extend([rm[qt][k] for qt in range(4)])
    A.extend(xlane('v_max_f32', m, t))
    for qt in range(4): A(f'v_max_f32 v{m[qt]}, 0, v{m[qt]}')
    for qt in range(4): A(f'v_exp_f32 v{f[qt]}, -v{m[qt]}')
    for qt in range(4):
        for k in range(8):
            s = S(p, k >> 2, qt) + (k & 3)
            A(f'v_sub_f32 v{s}, v{s}, v{m[qt]}')
        for r in range(4): A(f'v_sub_f32 v{NEGM + qt * 4 + r}, v{NEGM + qt * 4 + r}, v{m[qt]}')
        A(f'v_mul_f32 v{Lr(1 - p, qt)}, v{Lr(1 - p, qt)}, v{f[qt]}')
    A(f's_cmp_lg_u32 s{sMODE}, 0')
    A(f's_cbranch_scc1 L_fb{p}_b')
    for qt in range(4):
        for k in range(8):
            s = S(1 - p, k >> 2, qt) + (k & 3)
            A(f'v_sub_f32 v{s}, v{s}, v{m[qt]}')
    A(f'L_fb{p}_b:')
    for T in range(8):
        for qt in range(4):
            b = EP + 12 + ((T * 4 + qt) % 2) * 4
            for r in range(4): A(f'v_accvgpr_read_b32 v{b + r}, a{O(T, qt) + r}')
            for r in range(4): A(f'v_mul_f32 v{b + r}, v{b + r}, v{f[qt]}')
            for r in range(4): A(f'v_accvgpr_write_b32 a{O(T, qt) + r}, v{b + r}')
    A.extend(dense(softmax_stream(2 + p)))
    A('s_nop 3')
    A(f's_setpc_b64 s[{sRET}:{sRET + 1}]')
    A.fix_hazards()
    return A

def stamp(A, idx, base=64):
    if OPT['stamps'] and not OPT['qtl']: A(f's_memtime s[{base + idx * 2}:{base + idx * 2 + 1}]')
def store_stamps(A, n):
    A('s_memrealtime s[62:63]\ns_waitcnt lgkmcnt(0)')
    A('v_lshrrev_b32 v1, 6, v0\ns_lshl_b32 s50, s2, 2\nv_add_u32 v1, s50, v1\nv_lshlrev_b32 v1, 7, v1')
    A('v_and_b32 v2, 63, v0\nv_cmp_eq_u32 vcc, 0, v2\ns_and_saveexec_b64 s[50:51], vcc')
    for i in range(n):
        for k in range(4): A(f'v_mov_b32 v{4 + k}, s{60 + i * 4 + k}')
        A(f'buffer_store_dwordx4 v[4:7], v1, s[56:59], 0 offen offset:{i * 16}')
        A('s_nop 1')

def code_prefetch(A, start, end, va, vd, n):
    A(f's_getpc_b64 s[50:51]')
    A(f'L_pc_{start}:')
    if start == KNAME: A(f's_sub_u32 s50, s50, L_pc_{start}-{start}\ns_subb_u32 s51, s51, 0')
    else: A(f's_add_u32 s50, s50, {start}-L_pc_{start}\ns_addc_u32 s51, s51, 0')
    A(f'v_lshlrev_b32 v{va}, 7, v0')
    for i in range(n):
        A(f'v_min_u32 v{va + 1}, {end}-{start}-4, v{va}')
        A(f'global_load_dword v{vd + i}, v{va + 1}, s[50:51]', tag='pf')
        if i + 1 < n: A(f'v_add_u32 v{va}, 0x8000, v{va}')

def setup(A):
    A('s_cmp_ge_u32 s2, 256\ns_cbranch_scc1 L_end')
    A('''s_bfe_u32 s48, s2, 0x10002
s_mul_i32 s50, s48, 40
s_add_u32 s52, s0, s50
s_addc_u32 s53, s1, 0
s_lshr_b32 s51, s2, 7
s_mul_i32 s51, s51, 40
s_add_u32 s54, s0, s51
s_addc_u32 s55, s1, 0''')
    A(f'''s_load_dwordx2 s[{SX}:{SX+1}], s[52:53], 0
s_load_dwordx2 s[{SW_}:{SW_+1}], s[52:53], 24
s_load_dwordx2 s[{SK}:{SK+1}], s[52:53], 8
s_load_dwordx2 s[{SV}:{SV+1}], s[52:53], 16
s_load_dwordx2 s[{SWS}:{SWS+1}], s[54:55], 32
s_load_dwordx2 s[{SO}:{SO+1}], s[0:1], 96
s_load_dwordx4 s[92:95], s[0:1], 80''')
    if OPT['stamps']: A('s_memrealtime s[60:61]')
    stamp(A, 0)
    code_prefetch(A, KNAME, 'L_code_end', 100, 252, 3)
    A(f'''s_and_b32 s46, s2, 6
s_lshl_b32 s46, s46, 1
s_lshr_b32 s48, s2, 6
s_add_u32 s46, s46, s48
s_and_b32 s47, s2, 1
s_lshl_b32 s47, s47, 3
s_bfe_u32 s48, s2, 0x30003
s_add_u32 s47, s47, s48
s_and_b32 s49, s46, 7
v_lshrrev_b32 v1, 6, v0
v_and_b32 v2, 63, v0
v_readfirstlane_b32 s{sW}, v1
v_and_b32 v96, 15, v2
v_lshrrev_b32 v97, 4, v2
v_and_b32 v98, 3, v2
v_bfe_u32 v99, v2, 2, 2
s_lshl_b32 s{sW2K}, s{sW}, 11
s_lshl_b32 s{sW4K}, s{sW}, 12
v_lshrrev_b32 v100, 3, v2
v_lshl_add_u32 v100, v1, 6, v100
v_mul_u32_u24 v100, 1152, v100
v_and_b32 v101, 7, v2
v_xor_b32 v101, v101, v97
v_lshl_add_u32 v{VOFFX}, v101, 4, v100
v_xor_b32 v101, 4, v101
v_lshl_add_u32 v102, v101, 4, v100
v_add_u32 v{VOFFX + 1}, {8 * 1152 - 1024}, v102
v_add_u32 v{VOFFX + 2}, {2 * (8 * 1152 - 1024)}, v{VOFFX}
v_add_u32 v{VOFFX + 3}, {3 * (8 * 1152 - 1024)}, v102
v_lshrrev_b32 v100, 5, v2
v_and_b32 v101, 31, v2
v_and_b32 v102, 1, v1
v_lshl_add_u32 v102, v102, 2, v100
v_lshl_add_u32 v103, v1, 3, v100
v_lshlrev_b32 v103, 13, v103
v_lshlrev_b32 v104, 1, v102
v_xor_b32 v104, v104, v101
v_lshl_add_u32 v{VOFFW}, v104, 4, v103
v_xor_b32 v104, 64, v{VOFFW}
v_add_u32 v{VOFFW + 1}, {16384 - 1024}, v104
v_add_u32 v{VOFFW + 2}, {2 * (16384 - 1024)}, v{VOFFW}
v_add_u32 v{VOFFW + 3}, {3 * (16384 - 1024)}, v104
s_mul_i32 s50, s49, 294912
s_lshl_b32 s51, s47, 9
s_waitcnt lgkmcnt(0)''')
    stamp(A, 1)
    A(f'''s_add_u32 s{SX}, s{SX}, s50
s_addc_u32 s{SX+1}, s{SX+1}, 0
s_mov_b32 s{SX+2}, 294912
s_mov_b32 s{SX+3}, 0x20000
s_add_u32 s{SW_}, s{SW_}, s51
s_addc_u32 s{SW_+1}, s{SW_+1}, 0
s_sub_u32 s{SW_+2}, {576 * 8192}, s51
s_mov_b32 s{SW_+3}, 0x20000''')
    A.extend(flat(dma_x(0)) + flat(dma_x(1)) + flat(dma_w(0)) + flat(dma_w(1)))
    A(f'v_lshlrev_b32 v100, 11, v1\nv_lshl_add_u32 v100, v97, 8, v100\nv_lshl_add_u32 v101, v1, 3, v97')
    for o in range(2):
        A(f'v_add_u32 v102, {4 * o}, v101\nv_and_b32 v103, 15, v102\nv_xor_b32 v103, v103, v96\nv_lshl_add_u32 v{VOFFK + o}, v103, 4, v100')
        A(f'v_and_b32 v103, 7, v102\nv_lshlrev_b32 v103, 1, v103\nv_xor_b32 v103, v103, v96\nv_lshl_add_u32 v{VOFFV + o}, v103, 4, v100')
    A(f'v_lshlrev_b32 v100, 12, v1\nv_lshl_add_u32 v100, v97, 8, v100')
    for n in range(4):
        A(f'v_add_u32 v102, {4 * n}, v97\nv_xor_b32 v103, v102, v96\nv_lshl_add_u32 v{VSK + n}, v103, 4, v100')
        A(f'v_and_b32 v103, 7, v102\nv_lshlrev_b32 v103, 1, v103\nv_xor_b32 v103, v103, v96\nv_lshl_add_u32 v{VSV + n}, v103, 4, v100')
    A(f'''s_lshl_b32 s50, s49, 23
s_lshl_b32 s51, s47, 19
s_add_u32 s50, s50, s51
s_add_u32 s{SK}, s{SK}, s50
s_addc_u32 s{SK+1}, s{SK+1}, 0
s_mov_b32 s{SK+2}, 0x80000
s_mov_b32 s{SK+3}, 0x20000
s_add_u32 s{SV}, s{SV}, s50
s_addc_u32 s{SV+1}, s{SV+1}, 0
s_mov_b32 s{SV+2}, 0x80000
s_mov_b32 s{SV+3}, 0x20000
s_mov_b32 s{sWS}, s{SO}
s_mov_b32 s{sWS+1}, s{SO+1}
s_mov_b32 s{sOUT}, s92
s_mov_b32 s{sOUT+1}, s93
s_and_b32 s50, s2, 127
s_mul_i32 s50, s50, 36864
s_add_u32 s{SWS}, s{SWS}, s50
s_addc_u32 s{SWS+1}, s{SWS+1}, 0
s_mov_b32 s{SWS+2}, 36864
s_mov_b32 s{SWS+3}, 0x20000
s_lshr_b32 s50, s2, 7
s_lshl_b32 s50, s50, 9
s_and_b32 s51, s2, 64
s_add_u32 s50, s50, s51
s_bfe_u32 s51, s2, 0x10002
s_lshl_b32 s51, s51, 5
s_add_u32 s50, s50, s51
s_bfe_u32 s51, s2, 0x30003
s_lshl_b32 s51, s51, 2
s_add_u32 s50, s50, s51
s_and_b32 s51, s2, 3
s_add_u32 s50, s50, s51
s_mul_i32 s50, s50, 9216
s_add_u32 s50, s50, {WS_WO}
s_add_u32 s{SWD}, s{SO}, s50
s_addc_u32 s{SWD+1}, s{SO+1}, 0
s_mov_b32 s{SWD+2}, {3 * 128 * 9216 + 9216}
s_mov_b32 s{SWD+3}, 0x20000
s_lshl_b32 s50, s2, 7
s_lshl_b32 s51, s{sW}, 2
s_add_u32 s50, s50, s51
s_add_u32 s50, s50, {WS_FL}
s_add_u32 s{SFL}, s{SO}, s50
s_addc_u32 s{SFL+1}, s{SO+1}, 0
s_mov_b32 s{SFL+2}, 36
s_mov_b32 s{SFL+3}, 0x20000
v_lshlrev_b32 v{VOFFO}, 4, v2''')
    for n in range(3):
        A(f'''v_add_u32 v100, {64 * n}, v2
v_mul_u32_u24 v101, 2731, v100
v_lshrrev_b32 v101, 16, v101
v_mul_u32_u24 v102, 24, v101
v_sub_u32 v100, v100, v102
v_lshl_add_u32 v101, v1, 3, v101
v_mul_u32_u24 v101, 1152, v101
v_lshl_add_u32 v101, v100, 4, v101
v_subrev_u32 v{VOFFJ + n}, {n * 1024}, v101''')
    A(f'''v_bfe_u32 v100, v2, 2, 4
v_mul_u32_u24 v100, 384, v100
v_mul_u32_u24 v101, 96, v1
v_add_u32 v100, v100, v101
v_lshl_add_u32 v{JADDR}, v98, 3, v100''')
    if OPT['stamps']:
        A(f's_add_u32 s56, s{SO}, {WS_STAMP}\ns_addc_u32 s57, s{SO+1}, 0\ns_mov_b32 s58, 0x100000\ns_mov_b32 s59, 0x20000')
    A(f'''s_lshl_b32 s50, s46, 2
s_add_u32 s50, s50, s{sW}
s_lshl_b32 s50, s50, 19
s_lshl_b32 s51, s47, 15
s_add_u32 s50, s50, s51
s_add_u32 s{SO}, s{SO}, s50
s_addc_u32 s{SO+1}, s{SO+1}, 0
s_mov_b32 s{SO+2}, 32768
s_mov_b32 s{SO+3}, 0x20000
s_mov_b32 s{sSC}, {f2i(SCALE):#x}
s_mov_b32 s{sTHR}, {f2i(2.0 ** 24):#x}
s_mov_b32 s{sOo}, 0
s_mov_b32 s{sDBG}, s94
s_mov_b32 s{sDBG+1}, s95
s_mov_b32 s{sKo}, {8 * 8192}
s_mov_b32 s{sVo}, {6 * 8192}
s_mov_b32 s{sCnt}, 3
s_mov_b32 s{sHead}, 0''')
    A('v_xor_b32 v100, v97, v96\nv_lshlrev_b32 v100, 4, v100\nv_lshl_add_u32 v100, v96, 8, v100')
    for u in range(4): A(f'v_xor_b32 v{KADDR + u}, {u * 64}, v100')
    A('v_lshl_add_u32 v100, v97, 2, v99\nv_and_b32 v101, 7, v100\nv_lshlrev_b32 v101, 5, v101\nv_lshl_add_u32 v101, v100, 8, v101\nv_lshl_add_u32 v101, v98, 3, v101\nv_add_u32 v101, 0x10000, v101')
    for T in range(8): A(f'v_xor_b32 v{VADDR + T}, {T * 32}, v101')
    A(f'v_lshl_add_u32 v100, v97, 3, v99\nv_and_b32 v101, 1, v97\nv_lshl_add_u32 v101, v101, 2, v99\nv_lshlrev_b32 v101, 5, v101\nv_lshl_add_u32 v101, v100, 9, v101\nv_lshl_add_u32 v101, v98, 3, v101\nv_add_u32 v101, {BLK}, v101')
    for T in range(8):
        A(f'v_xor_b32 v{WADDR + T}, {T * 32}, v101')
        A(f'v_add_u32 v{WADDR + 8 + T}, {6 * BLK}, v{WADDR + T}')
    A(f'''v_lshrrev_b32 v100, 1, v96
v_xor_b32 v100, v100, v97
v_lshlrev_b32 v100, 4, v100
v_lshl_add_u32 v100, v96, 7, v100
v_lshl_add_u32 v100, v1, 12, v100
v_add_u32 v{XADDR}, {2 * BLK}, v100
v_xor_b32 v{XADDR + 1}, 64, v{XADDR}
v_add_u32 v{XADDR + 2}, {4 * BLK}, v{XADDR}
v_add_u32 v{XADDR + 3}, {4 * BLK}, v{XADDR + 1}''')
    A(f'''v_and_b32 v100, 1, v99
v_lshlrev_b32 v100, 1, v100
v_lshrrev_b32 v101, 1, v99
v_mul_u32_u24 v101, 3, v101
v_xor_b32 v100, v100, v101
v_lshlrev_b32 v102, 6, v96
v_lshl_add_u32 v102, v1, 12, v102
v_add_u32 v102, {6 * BLK}, v102
v_xor_b32 v101, v100, v97
v_lshl_add_u32 v{CR}, v101, 4, v102
v_lshrrev_b32 v101, 1, v97
v_xor_b32 v101, v101, v100
v_lshl_add_u32 v102, v101, 4, v102
v_and_b32 v101, 1, v97
v_lshl_add_u32 v{CW0}, v101, 3, v102
v_xor_b32 v{CW1}, 32, v{CW0}''')
    A.extend(flat(dma_x(2)) + flat(dma_w(2)) + flat(dma_w(3)))

def x_reads(pc):
    c = pc >> 1; blk = xblock(pc)
    return [Ins(f'ds_read_b128 v[{XF(2 * c + ks, 2 * (pc & 1) + qq)}:{XF(2 * c + ks, 2 * (pc & 1) + qq) + 3}], v{XADDR + ks + (2 if blk == 6 else 0)} offset:{(0 if blk == 6 else (blk - 2) * BLK) + qq * 2048}', f'rX{pc}')
            for ks in range(2) for qq in range(2)]
def w_read(t, h, T, dst):
    blk = wblock(t)
    ad = WADDR + T if blk <= 4 else WADDR + 8 + T
    off = (blk - 1 if blk <= 4 else blk - 7) * BLK + h * 256
    d = int(dst[1:])
    return [Ins(f'ds_read_b64_tr_b16 {dst[0]}[{d + 2 * s}:{d + 2 * s + 1}], v{ad} offset:{off + s * 2048}', f'rW{t}') for s in range(2)]
def w_reads(t):
    out = []
    for f in range(16): out += w_read(t, f >> 3, f & 7, f'a{WF((16 * t + f) % NWS)}')
    return out
UH = ['a160', 'a192', 'a160', 'a192', 'a0', 'a32', 'a0', 'a32']
def uw(n, k, tt): return f'{UH[n][0]}{int(UH[n][1:]) + (k * 2 + tt) * 4}'
def unit_reads(n):
    h, u = n >> 2, n & 3
    out = []
    for k in range(4):
        for tt in range(2): out += w_read(14 + k, h, 2 * u + tt, uw(n, k, tt))
    return out
def conv(n):
    h, u = n >> 2, n & 3
    V = []; D = []
    tiles = []
    for tt in range(2):
        for qt in range(4):
            acc = QACC(h, 2 * u + tt, qt)
            if h == 1: b = int(acc[1:]); rd = []
            else:
                b = 84 + ((n * 8 + tt * 4 + qt) % 3) * 4
                rd = [f'v_accvgpr_read_b32 v{b + r}, a{int(acc[1:]) + r}' for r in range(4)]
            mu = [f'v_mul_f32 v{b + r}, s{sSC}, v{b + r}' for r in range(4)]
            cv = [f'v_cvt_pk_bf16_f32 v{b}, v{b}, v{b + 1}', f'v_cvt_pk_bf16_f32 v{b + 1}, v{b + 2}, v{b + 3}']
            V += [Ins(x) for x in rd + mu + cv]
            D.append((len(V) - 1, Ins(f'ds_write_b64 v{CW1 if tt else CW0}, v[{b}:{b + 1}] offset:{qt * 1024}')))
    D += [(len(V) - 1, Ins(f'ds_read_b128 a[{Q(h, qt, u)}:{Q(h, qt, u) + 3}], v{CR} offset:{qt * 1024}', f'rQ{n}')) for qt in range(4)]
    seq = []
    for i, x in enumerate(V):
        seq.append(x); seq += [d for k, d in D if k == i]
    return V, D, seq

def q_phase(A):
    stamp(A, 2)
    A('WAITVM X0+X1+W0+W1\ns_barrier')
    stamp(A, 3)
    A.extend(x_reads(0) + x_reads(1) + w_reads(0))
    def JR(i): return f'a{224 + 4 * i}' if i < 8 else 'v92'
    def jstore(i):
        r, n = divmod(i, 3)
        pre = [f's_add_u32 s{sT0}, s{sW}, {4 * r}', f's_mul_i32 s49, s{sT0}, 43', f's_lshr_b32 s49, s49, 7',
               f's_mul_i32 s49, s49, {128 * 9216 - 9216}', f's_mul_i32 s{sT0}, s{sT0}, 3072', f's_add_u32 s{sJ}, s{sT0}, s49'] if n == 0 else []
        return [(pre, Ins(cl(f'buffer_store_dwordx4 {rng(JR(i), 4)}, v{VOFFO}, {srd(SWD)}, s{sJ} offen offset:{n * 1024} {OPT["st"]}'), 'Jst'), [])]
    for t in range(14):
        mf = []
        for f in range(16):
            for qt in range(4):
                acc = QACC(f >> 3, f & 7, qt)
                mf.append(mfma(acc, f'a{WF((16 * t + f) % NWS)}', f'v{XF(t, qt)}', acc if t else '0'))
        G = Gaps(64)
        groups = []
        if t in (3, 7, 11):
            r = t // 4
            groups += [[([f's_mov_b32 s{sWe}, {r * 384}', f's_mul_i32 m0, s{sW}, 3072'] if n == 0 else [],
                         Ins(f'buffer_load_dwordx4 v{VOFFJ + n}, {srd(SWS)}, s{sWe} offen offset:{n * 1024} nt lds', f'J{r}'), []) for n in range(3)]]
        if t == 0: groups += [dma_x(3), dma_x(4), dma_w(4)]
        if t == 1: groups += [dma_w(5)]
        if 1 <= t <= 12: groups += [dma_w(t + 5)]
        if t + 5 < 18: groups += [dma_x(t + 5)]
        if t == 13: groups += [dma_vv(0), dma_kk(1)]
        ngr = len(groups)
        gl = {4: [[5, 8, 11, 14], [18, 22, 26, 30], [34, 38, 42, 46], [51, 54, 57, 60]],
              3: [[2, 7, 12, 17], [24, 29, 34, 39], [46, 51, 56, 60]],
              2: [[2, 10, 18, 26], [34, 42, 50, 58]], 1: [[18, 30, 42, 54]]}[ngr]
        dg = [g for gr, pos in zip(groups, gl) for g in pos[:len(gr)]]
        free = [g for g in range(64) if g not in dg]
        G.sc[0].append(f'WAITVM X{t + 2}')
        rds = x_reads(t + 2)
        if t + 5 < 18:
            xi = [i for i, gr in enumerate(groups) if gr[0][1].tag == f'X{t + 5}'][0]
            G.sc[gl[xi][0] - 3].append(f'WAITLG rX{t + 2}')
        if t in (5, 9, 13):
            for n in range(3):
                d = JR((t // 4 - 1) * 3 + n)
                rds += [Ins(f'ds_read_b64_tr_b16 {d[0]}[{int(d[1:]) + 2 * sx}:{int(d[1:]) + 2 * sx + 1}], v{JADDR} offset:{n * 32 + sx * 16 * 384}') for sx in range(2)]
        if t == 0: G.sc[2].append('WAITLG rX1')
        rds += w_reads(t + 1) if t < 13 else unit_reads(0)[:8]
        for r, g in zip(rds, free): G.mem[g].append(r)
        for gr, g in zip(groups, gl): G.place_dma(gr, g)
        if t % 2 == 0 or t == 13:
            c = t // 2 + 1
            tags = f'W{2 * c}+W{2 * c + 1}' if t != 13 else 'W16+W17+X16+X17'
            if t in (4, 8, 12): tags += f'+J{t // 4 - 1}'
            G.sc[62] += [f'WAITVM {tags} lg0', 's_barrier']
        if OPT['qtl']:
            G.v[3].append('s_memtime s[98:99]'); G.v[40].append(f's_mov_b32 s{64 + t}, s98')
        A.extend(G.weave(mf))
    stamp(A, 4)
    gsu = f"""s_and_b32 s50, s2, 6
s_lshl_b32 s50, s50, 3
s_lshr_b32 s51, s2, 5
s_lshl_b32 s51, s51, 1
s_add_u32 s50, s50, s51
s_lshr_b32 s51, s{sW}, 1
s_add_u32 s50, s50, s51
s_lshl_b32 s50, s50, 19
s_and_b32 s51, s2, 1
s_lshl_b32 s51, s51, 18
s_add_u32 s50, s50, s51
s_and_b32 s51, s{sW}, 1
s_lshl_b32 s51, s51, 11
s_add_u32 s50, s50, s51
s_add_u32 s{SGO}, s{sWS}, s50|s_addc_u32 s{SGO+1}, s{sWS+1}, 0
s_mov_b32 s{SGO+2}, {262144 - 2048}
s_and_b32 s50, s2, 4
s_bfe_u32 s51, s2, 0x20003
s_add_u32 s50, s50, s51
s_lshl_b32 s50, s50, 1
s_and_b32 s51, s2, 1
s_add_u32 s50, s50, s51
s_mul_i32 s50, s50, {64 * 9216}
s_add_u32 s50, s50, {WS_WO}
s_add_u32 s{SGW}, s{sWS}, s50|s_addc_u32 s{SGW+1}, s{sWS+1}, 0
s_mov_b32 s{SGW+2}, {64 * 9216}""".split('\n')
    NG = 288
    G = Gaps(NG + 8)
    mf = []; ref = []
    UR = [unit_reads(n) for n in range(8)]
    XR = x_reads(16) + x_reads(17)
    K0 = k_reads(0); K1 = k_reads(1)
    CV_ = [conv(n) for n in range(8)]
    ref += XR
    for n in range(8):
        h, u = n >> 2, n & 3
        m = [Ins(mfma(QACC(h, 2 * u + tt, qt), uw(n, k, tt), f'v{XF(14 + k, qt)}', QACC(h, 2 * u + tt, qt))) for k in range(4) for tt in range(2) for qt in range(4)]
        mf += m
        ref += (UR[n][8:] if n == 0 else UR[n]) + m + CV_[n][2]
    m = [Ins(x) for x in qk_mfmas(0)]
    mf += m; ref += K0 + m + K1
    JS = [jstore(i) for i in range(9)]
    ref = [x[0][1] for x in JS] + ref
    order = [6, 8, 7, 0, 1, 2, 3, 4, 5]
    if OPT['jo'] == '0':
        jp = [17, 24, 40, 56, 68, 80, 96, 108, 120]; fz = 126; kv = {0: 132, 1: 158, 2: 184}
    elif OPT['jo'] == '1':
        jp = [17, 24, 130, 146, 158, 170, 186, 198, 210]; fz = 220; kv = {0: 36, 1: 68, 2: 100}
    elif OPT['jo'] == '2':
        jp = [17, 24, 48, 76, 100, 124, 152, 176, 200]; fz = 220; kv = {0: 36, 1: 104, 2: 164}
    else:
        jp = [17, 24, 40, 60, 76, 92, 112, 128, 144]; fz = 156; kv = {0: 34, 1: 80, 2: 121}
    for i, g in zip(order, jp): G.place_dma(JS[i], [g])
    G.v[fz - 2].append(f'v_mov_b32 v{VPA}, 0')
    G.mem[fz].append(Ins(cl(f'buffer_store_dword v{VPA}, v{VOFFO}, {srd(SFL)}, 0 offen {OPT["st"]}'), 'Fz'))
    step = {'2': 14, '3': 10}.get(OPT['jo'], 7)
    for i, jobs in enumerate([dma_kk(0), dma_vv(1), dma_kk(2)]):
        G.place_dma(jobs, [kv[i] + step * x for x in range(4)])
    G.place_dma(dma_kk(3), [250, 258, 266, 274])
    G.sc[kv[1] - 3].append('WAITLG rX16')
    gi = 260
    for x in gsu:
        while G.sc[gi]: gi += 1
        G.sc[gi] += x.split('|')
    BAR = 32 * 7 + 9
    G.sc[BAR] += ['WAITVM KK0 lg0', 's_barrier']
    def put(ins, g, lim=None):
        while G.mem[g] or (BAR - 5 <= g < BAR): g += 1
        assert lim is None or g <= lim, (ins.text, g, lim)
        G.mem[g].append(ins); return g
    cur = 0
    for n in range(8):
        V, D, _ = CV_[n]
        g0 = 32 * (n + 1) + 1; span = 30
        vp = [g0 + (i * span) // len(V) for i in range(len(V))]
        for x, g in zip(V, vp): G.v[g].append(x)
        for i, d in D: cur = put(d, max(cur, vp[i] + 1))
    g = 0
    for r in XR[:2] + XR[4:6] + UR[0][8:12] + XR[2:4] + XR[6:] + UR[0][12:]: g = put(r, g)
    for n in range(1, 8):
        for i, r in enumerate(UR[n]):
            g = put(r, max(g, 32 * (n - 1) + (i * 3) // 2), lim=min(32 * n + 2 * i - 5, BAR - 6))
    g = BAR
    for i, r in enumerate(K0): g = put(r, max(g, BAR + 2 * i), lim=256 + 4 * i - 6)
    for i, r in enumerate(K1): g = put(r, max(g, 256 + 4 * i + 4))
    if OPT['stamps'] and not OPT['qtl']: G.sc[257].append('s_memtime s[74:75]')
    if OPT['qtl']:
        for n in range(9): G.v[32 * n + 3].append('s_memtime s[98:99]'); G.v[32 * n + 25].append(f's_mov_b32 s{78 + n}, s98')
    out = [I(x) for x in G.weave(mf)]
    check_order(ref, out, 'QB')
    A.extend(out)
    ini = init_stream(0)
    A.extend(ini[:40])
    A('WAITLG rQ7')
    vv = flat(dma_vv(2))
    for i in range(4): A.extend(vv[-4 + i:][:1] if i else vv[:3]); A.extend(ini[40 + 12 * i:52 + 12 * i])

def seg_name(j):
    if j == 0 or (j == 32 and not OPT['w1']): return 's0'
    if j == 32: return 's32'
    if j == 31: return 'sp31'
    if j == 63: return 'fin31'
    if j >= 56: return f'p{j}'
    return f'r{j % 8}'

def gen():
    A = Prog()
    setup(A)
    q_phase(A)
    LAG = OPT['lag']
    SH = 4 if LAG else 2
    if LAG:
        sms = lambda j: lagged(softmax_stream(j))
        dn_ = undense
    else:
        sms = softmax_stream; dn_ = dense
    st = sms(0)
    A.extend(dn_(st[:32 + SH]))
    carry = st[32 + SH:]
    stamp(A, 6)
    if OPT['tl']: A('s_mov_b32 s97, 0\nv_and_b32 v41, 63, v0\nv_mov_b32 v43, 0')
    def tagsof(which, t):
        if which == 'V' and t < 6: return f'VV{t // 2}'
        if which == 'K' and t < 8: return f'KK{t // 2}'
        return f'{which}{t}'
    GA = [4, 5, 6]
    def WB(s, n): return 128 + (s & 1) * 36 + n * 4
    def GACC(n, mm): i = n * 2 + mm; return 64 + i * 4 if i < 16 else 200 + (i - 16) * 4
    def OB(s, mm): return 128 + ((s + 8) % 16) * 8 + mm * 4
    def g_wreads(s):
        out = []
        for n in range(9):
            ad = ((s >> 2) % 4) * 36864 + (s & 3) * 9216 + n * 1024
            out.append(Ins(f'ds_read_b128 v[{WB(s, n)}:{WB(s, n) + 3}], v{GA[ad >> 16]} offset:{ad & 0xffff}', f'rG{s}'))
        return out
    def g_oloads(s):
        gen_, i, u = s >> 5, (s >> 2) & 7, s & 3
        return [([f's_mov_b32 s{sWe}, {(2 * i + gen_) * 16384 + u * 4096}'] if mm == 0 else [],
                 Ins(cl(f'buffer_load_dwordx4 a[{OB(s, mm)}:{OB(s, mm) + 3}], v{VOFFO}, {srd(SGO)}, s{sWe} offen offset:{mm * 1024} {OPT["g_o"]}'), f'GO{s}'), []) for mm in range(2)]
    def g_w8(a, tag):
        return [([f's_mov_b32 s{sKo}, {a}', f's_add_u32 m0, s{sW2K}, {a}'] if o == 0 else [],
                 Ins(cl(f'buffer_load_dwordx4 v{VOFFK}, {srd(SGW)}, s{sKo} offen offset:{o * 1024} {OPT["g_w"]} lds'), tag), []) for o in range(2)]
    def g_wchunk(c):
        out = []
        for n in range(9):
            pre = [f's_add_u32 s{sKo}, s{sXo}, {c * 36864 + (n // 4) * 4096}', f's_add_u32 m0, s{sXo}, {(c % 4) * 36864 + (n // 4) * 4096}'] if n % 4 == 0 else []
            out.append((pre, Ins(cl(f'buffer_load_dwordx4 v{VOFFO}, {srd(SGW)}, s{sKo} offen offset:{(n % 4) * 1024} {OPT["g_w"]} lds'), f'GW{c}'), []))
        return out
    poll1 = f'buffer_load_dword v{VPOLL}, v{VPA}, {srd(SFP)}, 0 offen sc1'
    poll2 = f'buffer_load_dword v{VPOLL}, v{VPA}, {srd(SFP)}, 0 offen offset:16 sc1'
    pollc = f'buffer_load_dword v{VPOLL}, v{VPA}, {srd(SWS)}, 0 offen sc1'
    ne1 = f'v_cmp_ne_u32 vcc, 1, v{VPOLL}'
    qcopy = [f'v_accvgpr_mov_b32 a{128 + i}, a{192 + i}' for i in range(64)]

    POST = []
    def fill(G, o, j, carry):
        jj = j & 31; nm = seg_name(j); p = j & 1
        if j % 2 == 0:
            tags = [tagsof('V', j), tagsof('V', j + 1), tagsof('K', j + 2), tagsof('K', j + 3)] + (['Jst', 'Fz'] if j == 6 else [])
            G.sc[o] += [f'WAITVM {"+".join(tags)} lg0', 's_barrier']
        last = len(carry) - 1
        if j < 63:
            for i, g in enumerate(carry): G.v[o + i] += g
        if jj != 0:
            G.v[o + 17].append(f'v_max3_f32 v{CT}, v{Lr(p, 0)}, v{Lr(p, 1)}, v{Lr(p, 2)}')
            G.v[o + last].append(f'v_max_f32 v{CT}, v{CT}, v{Lr(p, 3)}')
            G.v[o + last].append(f'v_cmp_lt_f32 vcc, s{sTHR}, v{CT}')
            G.sc[o + last + 1] += [f's_cbranch_vccnz L_st_{nm}', f'L_bk_{nm}:']
        ncarry = None
        if j < 63:
            PL = {'0': (sorted([3 + 4 * i for i in range(8)] + [4 + 4 * i for i in range(8)]), [35, 36, 39, 40, 43, 47, 51, 55], [10, 26, 42, 59]),
                  '1': ([1 + 2 * i for i in range(16)], [33, 35, 37, 39, 43, 47, 51, 55], [41, 49, 59, 63]),
                  '2': ([1, 3, 5, 7, 9, 13, 15, 17, 19, 21, 23, 25, 31, 33, 35, 37], [39, 41, 45, 47, 49, 51, 53, 55], [11, 27, 43, 59]),
                  '3': ([3, 5, 7, 9, 13, 15, 19, 21, 23, 25, 31, 33, 35, 37, 39, 41], [32, 36, 45, 47, 49, 51, 53, 55], [11, 27, 43, 59]),
                  }[OPT['pl']]
            for r, g in zip(v_reads(j), PL[0]): G.mem[o + g].append(r)
            if j + 2 < 64:
                for r, g in zip(k_reads(j + 2), PL[1]): G.mem[o + g].append(r)
            if j < 56: G.place_dma(dma_kv('K', j + 8) + dma_kv('V', j + 6), [o + x for x in PL[2]])
            else:
                W8 = lambda i: g_w8(i * 8192, f'P{i}')
                jobs = {56: dma_kv('V', 62) + W8(0) + W8(16) + g_oloads(0), 57: dma_kv('V', 63) + W8(1) + W8(17) + g_oloads(1),
                        58: W8(2) + g_oloads(2) + W8(8) + g_oloads(3), 59: W8(3) + g_oloads(4) + W8(9) + g_oloads(5),
                        60: W8(4) + g_oloads(6) + W8(10) + g_oloads(7), 61: W8(5) + W8(11),
                        62: W8(6) + W8(7) + W8(12) + W8(13) + g_oloads(8) + g_oloads(9)}[j]
                pos = {8: [4, 11, 20, 27, 36, 43, 57, 61], 4: [11, 27, 43, 59], 12: [4, 11, 18, 27, 34, 39, 43, 47, 51, 55, 59, 63]}[len(jobs)]
                G.place_dma(jobs, [o + x for x in pos])
            st = sms(j + 1)
            if (j + 1) & 31:
                for i, g in enumerate(st[:32 + SH]): G.v[o + 32 - SH + i] += g
            else:
                G.pack(qcopy, o + 1, o + 29)
                NB = int(OPT['nb'])
                prep, un = epilogue(False); _, up = epilogue(True)
                other = init_stream(j + 1) + dn_(st[:32 + SH])
                units = un[:NB] + up[NB:]
                seq = []; cut = None
                for k in range(16):
                    if k == NB: cut = len(seq)
                    seq += units[k][0]
                    if k: seq += units[k - 1][3]
                    seq += units[k][1] + units[k][2]
                    if k >= NB: seq += other[(k - NB) * len(other) // (16 - NB):(k - NB + 1) * len(other) // (16 - NB)]
                seq += units[15][3]
                G.pack(prep, o + 31, o + 39)
                pos = G.pack(seq[:cut], o + 39, o + 64)
                for x, g in zip(seq[:cut], pos):
                    x = I(x)
                    if x.mn == 'v_accvgpr_read_b32':
                        a = [r for r in x.rd if r[0] == 'a'][0][1]
                        assert g >= o + 32 + a // 4 + 2, (x.text, g)
                POST.extend(seq[cut:])
            ncarry = st[32 + SH:]
        if OPT['tl']:
            G.sc[o + 5].append('s_memtime s[98:99]')
            G.sc[o + 52].append('s_waitcnt lgkmcnt(0)')
            G.v[o + 52] += ['v_cmp_eq_u32 s[50:51], s97, v41', 'v_mov_b32 v42, s98']
            G.v[o + 53] += ['v_cndmask_b32 v43, v43, v42, s[50:51]']
            G.sc[o + 54].append('s_add_u32 s97, s97, 1')
        if nm == 'r6': G.sc[o + 62].append(f's_sub_u32 s{sCnt}, s{sCnt}, 1')
        if nm == 'r7':
            G.sc[o + 61].append(f's_sub_u32 s{sT0}, s{sKo}, 0x30000')
            G.sc[o + 62].append(f's_cmp_lt_u32 s{sT0}, 0x20000')
        return ncarry
    def mfs(j): return (qk_mfmas(j + 1) if j + 1 < 64 else [None] * 32) + pv_mfmas(j)

    j = 0
    while j < 64:
        nm = seg_name(j)
        A(f'.mark {nm}')
        G = Gaps(64)
        oc = carry
        carry = fill(G, 0, j, carry)
        if j == 63:
            P0 = v_reads(j)
            dn = dn_(oc)
            ol = flat(g_oloads(10) + g_oloads(11) + g_oloads(12))
            k = 0
            for i, x in enumerate(dn):
                P0.append(x)
                tgt = len(ol) * (i + 1) // len(dn)
                while k < tgt: P0.append(ol[k]); k += 1
            G.v[0] += P0
            G.v[18] += [f'v_mov_b32 v{GA[0]}, v{VOFFO}', f'v_add_u32 v{GA[1]}, 0x10000, v{VOFFO}', f'v_add_u32 v{GA[2]}, 0x20000, v{VOFFO}', f's_mul_i32 s{sXo}, s{sW}, 9216']
            G.sc[32] += ['WAITVM P4 lg0', 's_barrier']
            for r, g in zip(g_wreads(0), range(33, 60, 3)): G.mem[g].append(r)
            G.place_dma(g_w8(14 * 8192, 'P14') + g_w8(15 * 8192, 'P15') + g_oloads(13) + g_oloads(14), [35, 38, 43, 46, 50, 53, 58, 61])
            prep2, units2 = epilogue(int(OPT['epg']) == 0)
            epi, _, _ = epi_flat(units2)
            G.pack(prep2, 33, 48)
            ne = 0
            if int(OPT['epg']):
                ne = 28
                G.pack(epi[:ne], 48, 64)
            epi = epi[ne:]
        A.extend(G.weave(mfs(j)))
        if j == 7:
            A('.mark b7')
            A('WAITVM Jst+Fz')
            A(f's_mov_b32 s{SWS}, s{sDBG}\ns_mov_b32 s{SWS + 1}, s{sDBG + 1}\ns_mov_b32 s{SWS + 2}, 4\nv_mov_b32 v{VFLAG}, 1\nv_lshlrev_b32 v{VPA}, 2, v0\nv_lshlrev_b32 v{VL4}, 6, v2')
            A(f'buffer_atomic_add v{VFLAG}, v{VPA}, {srd(SWS)}, 0 offen sc1', tag='Cwo')
        if j == 39:
            A('.mark b39')
            A('WAITVM Ost')
            A(cl(f'buffer_store_dword v{VFLAG}, v{VL4}, {srd(SFL)}, 0 offen {OPT["st"]}'), tag='F1')
        if j == 47:
            A('.mark b47')
            A(f's_movk_i32 s{sMODE}, 256')
            A.extend(spin_check('c', pollc, f'v_cmp_gt_u32 vcc, s{sMODE}, v{VPOLL}'))
            A(f"""s_andn2_b32 s50, s2, 0x38
s_lshl_b32 s50, s50, 7
s_bfe_u32 s51, s2, 0x10005
s_lshl_b32 s51, s51, 3
s_add_u32 s50, s50, s51
s_lshr_b32 s51, s{sW}, 1
s_lshl_b32 s51, s51, 2
s_add_u32 s50, s50, s51
s_add_u32 s50, s50, {WS_FL}
s_add_u32 s{SFP}, s{sWS}, s50
s_addc_u32 s{SFP+1}, s{sWS+1}, 0
s_mov_b32 s{SFP+2}, 8192
v_and_b32 v{VPA}, 7, v0
v_lshlrev_b32 v{VPA}, 10, v{VPA}""")
            A(poll1, tag='PL1')
            code_prefetch(A, 'L_fin', 'L_code_end', 250, 252, 2)
        if j == 55:
            A('.mark b55')
            A.extend(spin_check('f1', poll1, ne1))
            A(f'v_add_u32 v{VOFFK}, s{sW2K}, v{VOFFO}')
        if j == 31:
            A('.mark epi')
            stamp(A, 7)
            A(f'v_mov_b32 v{VPA}, 0')
            A(pollc, tag='Pc')
            A.extend(POST)
            A(f's_mov_b32 s{sHead}, 1\ns_mov_b32 s{sCnt}, 3')
            stamp(A, 8)
        j += 1
    A('.mark tail')
    stamp(A, 9)
    if OPT['tl']: A('v_mov_b32 v59, v43')
    EPG = int(OPT['epg'])
    ek = 0
    G2 = int(OPT['g2s']); LO = int(OPT['lo']); LW = int(OPT['lw']); S0 = int(OPT['gs0']); S1 = int(OPT['gs1'])
    items = []
    for x in range(15, 64):
        for jb in g_oloads(x): items.append((x - LO, max(x - 15, G2 + 1 if x >= 32 else 0), jb))
    for c in range(4, 16):
        for n, jb in enumerate(g_wchunk(c)): items.append((4 * c - 1 - LW - (8 - n) * 4 / 9.0, 4 * (c - 4) + 3, jb))
    items.sort(key=lambda z: z[0])
    sched = [[] for _ in range(64)]
    cur = 0
    for i, (dl, rl, jb) in enumerate(items):
        k = int(S0 + i * (S1 - S0 + 1) / len(items))
        k = max(min(k, int(dl)), rl, cur)
        while len(sched[k]) >= 6: k += 1
        sched[k].append(jb); cur = k
    if EPG == 0:
        A.extend(epi); ek = len(epi)
    if OPT['verbose']: print([len(x) for x in sched])
    for s_ in range(64):
        c, u = s_ >> 2, s_ & 3
        mf = [mfma(f'v{GACC(n, mm)}', f'v{WB(s_, n)}', f'a{OB(s_, mm)}', f'v{GACC(n, mm)}' if s_ else '0') for n in range(9) for mm in range(2)]
        G = Gaps(18)
        if u == 3 and c < 15:
            tags = {0: 'P5+P6+P7+P8', 1: 'P9+P10+P11+P12+P13', 2: 'P14+P15+P16+P17'}.get(c, f'GW{c + 1}')
            G.sc[0] += [f'WAITVM {tags} lg0', 's_barrier']
            assert not [1 for q in sched[s_:] for x in q if x[1].tag == f'GW{c + 1}'], c
        jobs = sched[s_]
        for x in jobs:
            if x[1].tag.startswith('GO'): assert int(x[1].tag[2:]) >= s_ + 3, (s_, x[1].tag)
        jp = {0: [], 1: [10], 2: [5, 14], 3: [3, 9, 15], 4: [3, 8, 12, 16], 5: [2, 6, 10, 13, 16], 6: [2, 5, 8, 11, 14, 17]}[len(jobs)]
        G.place_dma(jobs, jp)
        if s_ + 1 < 64:
            for r, g in zip(g_wreads(s_ + 1), [g for g in range(18) if g not in jp]): G.mem[g].append(r)
        if s_ == int(OPT['p2s']): G.mem[17].append(Ins(poll2, 'PL2'))
        if OPT['gtl']:
            if s_ % 2 == 0: G.sc[12].append('s_memtime s[98:99]')
            else: G.v[0].append(f'v_writelane_b32 v59, s98, {s_ // 2}')
        for g in range(18):
            n = EPG - (1 if G.mem[g] else 0)
            while n > 0 and ek < len(epi):
                x = epi[ek]
                if isinstance(x, Ins) and x.kind == 'vst':
                    if G.v[g]: break
                    G.mem[g].append(x); ek += 1; n -= 1; continue
                G.v[g].append(x); ek += 1
                if not x.startswith('s_'): n -= 1
        if s_ == int(OPT['f2s']):
            assert ek == len(epi), (ek, len(epi))
            G.sc[16].append('WAITVM Ost')
            G.mem[17].append(Ins(cl(f'buffer_store_dword v{VFLAG}, v{VL4}, {srd(SFL)}, 0 offen offset:16 {OPT["st"]}'), 'F2'))
        if s_ == G2: G.v[17] += spin_check('f2', poll2, ne1)
        if s_ == 40:
            G.v[17] += f"""s_lshl_b32 s50, s2, 2
s_add_u32 s50, s50, s{sW}
s_mul_i32 s50, s50, 9216
s_add_u32 s50, s50, {WS_X}
s_add_u32 s{SO}, s{sWS}, s50
s_addc_u32 s{SO+1}, s{sWS+1}, 0
s_mov_b32 s{SO+2}, 9216
s_xor_b32 s50, s2, 1
s_lshl_b32 s51, s50, 2
s_add_u32 s51, s51, s{sW}
s_mul_i32 s51, s51, 9216
s_add_u32 s51, s51, {WS_X}
s_add_u32 s{SV}, s{sWS}, s51
s_addc_u32 s{SV+1}, s{sWS+1}, 0
s_mov_b32 s{SV+2}, 9216
s_lshl_b32 s50, s50, 7
s_lshl_b32 s51, s{sW}, 2
s_add_u32 s50, s50, s51
s_add_u32 s50, s50, {WS_FL + 32}
s_add_u32 s{SFP}, s{sWS}, s50
s_addc_u32 s{SFP+1}, s{sWS+1}, 0
s_mov_b32 s{SFP+2}, 4
s_and_b32 s50, s2, 2
s_lshl_b32 s50, s50, 2
s_lshr_b32 s51, s2, 5
s_add_u32 s50, s50, s51
s_lshl_b32 s50, s50, 2
s_add_u32 s50, s50, s{sW}
s_lshl_b32 s50, s50, 1
s_and_b32 s51, s2, 1
s_add_u32 s50, s50, s51
s_mul_i32 s50, s50, {16 * 2304}
s_bfe_u32 s51, s2, 0x10002
s_mul_i32 s51, s51, 1152
s_add_u32 s50, s50, s51
s_bfe_u32 s51, s2, 0x20003
s_mul_i32 s51, s51, 288
s_add_u32 s50, s50, s51
s_add_u32 s{SOUT}, s{sOUT}, s50
s_addc_u32 s{SOUT+1}, s{sOUT+1}, 0
s_mov_b32 s{SOUT+2}, {15 * 2304 + 288}
v_mov_b32 v{VPA}, 0""".split('\n')
        if 41 <= s_ < 46:
            k = s_ - 41
            vv = f"""v_add_u32 v28, {64 * k}, v2
v_mul_u32_u24 v29, 3641, v28
v_lshrrev_b32 v29, 16, v29
v_mul_u32_u24 v30, 18, v29
v_sub_u32 v30, v28, v30
v_lshlrev_b32 v30, 4, v30
v_mad_u32_u24 v{32 + k}, v29, s{sT0}, v30
v_mul_u32_u24 v29, 304, v29
v_add3_u32 v{40 + k}, v29, v30, v31""".split('\n')
            if k == 0:
                vv = [f's_movk_i32 s{sT0}, 2304', 'v_lshlrev_b32 v31, 13, v1', 'v_and_b32 v29, 15, v2', 'v_mul_u32_u24 v29, 304, v29', 'v_lshrrev_b32 v30, 4, v2',
                      'v_lshl_add_u32 v29, v30, 3, v29', 'v_add_u32 v39, v29, v31', f'v_add_u32 v37, 0x1000, v{VOFFO}', f'v_add_u32 v38, 0x2000, v{VOFFO}'] + vv
            for i, x in enumerate(vv): G.v[i].append(x)
        A.extend(G.weave(mf))
    stamp(A, 10)
    A('s_bitcmp1_b32 s2, 0\ns_cbranch_scc1 L_x1')
    vo3 = [VOFFO, 37, 38]
    pollx = f'buffer_load_dword v{VPOLL}, v{VPA}, {srd(SFP)}, 0 offen sc1'
    for kh in range(2):
        if kh: A('L_x1:\ns_nop 7')
        for n in range(9):
            A(cl(f'buffer_store_dwordx4 v[{GACC(n, 1 - kh)}:{GACC(n, 1 - kh) + 3}], v{vo3[n // 4]}, {srd(SO)}, 0 offen offset:{(n % 4) * 1024} {OPT["st"]}'))
        if kh:
            A('s_nop 1')
            for n in range(9):
                for r in range(0, 4, 2): A(f'v_mov_b64 v[{GACC(n, 0) + r}:{GACC(n, 0) + r + 1}], v[{GACC(n, 1) + r}:{GACC(n, 1) + r + 1}]')
        else:
            A('s_branch L_x2')
    A('L_x2:')
    A('s_waitcnt vmcnt(0)')
    A(cl(f'buffer_store_dword v{VFLAG}, v{VL4}, {srd(SFL)}, 0 offen offset:32 {OPT["st"]}'))
    A(pollx)
    A.extend(spin_check('x', pollx, ne1))
    for n in range(9):
        A(f'buffer_load_dwordx4 v[{128 + 4 * n}:{131 + 4 * n}], v{vo3[n // 4]}, {srd(SV)}, 0 offen offset:{(n % 4) * 1024} sc1')
    for n in range(9):
        a = GACC(n, 0); b = 128 + 4 * n
        for r in range(0, 4, 2): A(f'v_pk_add_f32 v[{a + r}:{a + r + 1}], v[{a + r}:{a + r + 1}], v[{b + r}:{b + r + 1}]')
        A(f'v_cvt_pk_bf16_f32 v{b}, v{a}, v{a + 1}\nv_cvt_pk_bf16_f32 v{b + 1}, v{a + 2}, v{a + 3}')
        A(f'ds_write_b64 v39, v[{b}:{b + 1}] offset:{n * 32}')
    for k in range(5): A(f'ds_read_b128 v[{168 + 4 * k}:{171 + 4 * k}], v{40 + k}')
    for k in range(5): A(f'buffer_store_dwordx4 v[{168 + 4 * k}:{171 + 4 * k}], v{32 + k}, {srd(SOUT)}, 0 offen')
    if OPT['stamps']:
        A('s_waitcnt vmcnt(0)')
        stamp(A, 11)
        if OPT['tl'] or OPT['gtl']:
            A('s_lshl_b32 s50, s2, 10\ns_add_u32 s50, s50, 0x80000\nv_lshlrev_b32 v42, 2, v0\nbuffer_store_dword v59, v42, s[56:59], s50 offen')
        store_stamps(A, 7)
    A('L_end:\ns_endpgm')
    A.resolve_waits()
    rep = []
    A.fix_hazards(rep)
    segs = {}
    for n, L in split_marks(A.L): segs.setdefault(n, []).append(L)
    M = {n: merge_segments(v) for n, v in segs.items()}
    F = Prog()
    F.extend(M['_start'])
    F('L_s0:')
    F.extend(M['s0'])
    F('s_branch L_r1\n.p2align 6\nL_r0:')
    F.extend(M['r0'])
    F('L_r1:')
    for k in range(1, 7): F.extend(M[f'r{k}'])
    F('s_cbranch_scc1 L_sp')
    F.extend(M['r7'])
    F(f's_cbranch_scc1 L_r0\ns_cmp_eq_u32 s{sKo}, 0x80000\ns_cbranch_scc1 L_fin\ns_cmp_eq_u32 s{sKo}, 0x70000\ns_cbranch_scc1 L_b47\ns_cmp_eq_u32 s{sKo}, 0x60000\ns_cbranch_scc1 L_b39')
    for b in (7, 39, 47):
        F(f'L_b{b}:'); F.extend(M[f'b{b}']); F('s_branch L_r0')
    F('L_sp:')
    F.extend(M['sp31'])
    if OPT['w1']: F('s_branch L_r1')
    else:
        F.extend(M['epi']); F('s_branch L_s0')
    for nm, p, mode in [(f'r{k}', k & 1, 0) for k in range(8)] + [(f'p{k}', k & 1, 0) for k in range(56, 63)] + [('sp31', 1, 1), ('fin31', 1, 1)]:
        F(f'L_st_{nm}:\ns_mov_b32 s{sMODE}, {mode}\ns_call_b64 s[{sRET}:{sRET + 1}], L_fb{p}')
        if OPT['lag'] and mode == 0: F(softmax_stream(3 - p)[0][0])
        F(f's_branch L_bk_{nm}')
    F.extend(fallback(0).L); F.extend(fallback(1).L)
    for x in SPINS: F(x)
    F('L_fin:')
    F.extend(M['b55'])
    for k in range(56, 63): F.extend(M[f'p{k}'])
    F.extend(M['fin31'])
    F.extend(M['tail'])
    return F, rep

def build(path):
    A, rep = gen()
    hdr = open('cdna_kernels/' + NAME + '.s.ref').read().split('; Override launch')[0]
    t = hdr + '; @launch grid=(256,1,1) block=(256,1,1) lds=163840\n'
    t += '.amdgcn_target "amdgcn-amd-amdhsa--gfx950"\n.text\n' + MACROS
    t += prolog(KNAME) + A.text() + 'L_code_end:\n'
    t += kd(KNAME, 512, 100, 256)
    open(path, 'w').write(t)
    return rep, len(t)

if __name__ == '__main__':
    path = sys.argv[1]
    for kv in sys.argv[2:]:
        k, v = kv.split('=')
        assert k in OPT, k
        OPT[k] = (v == '1') if isinstance(OPT.get(k), bool) else v
    rep, n = build(path)
    from collections import Counter
    print('bytes', n, 'pads', Counter((a, b.split()[0]) for a, b in rep).most_common(12))
```

```python
import sys, math, struct
from common import *
from asmlib import *

OPT = dict(nt_kv='nt', nt_x='nt', nt_w='nt', st='sc1', g_o='sc1', g_w='sc1', stamps=False, tl=False, gtl=False,
           epg='4', f2s='10', p2s='23', g2s='25', gs0='6', gs1='58', lo='5', lw='4', w1=False, qtl=False, pl='2', lag=True, ost='sc1', nb='3', jo='2', verbose=False, su='0', pf='2', bar1=False, kv0='48', bm='5', ba='2', bmax='4', out_st='', hole=False, atom='1')
WS_WO = 33554432
WS_X = 44 << 20
WS_FL = 56 << 20
WS_STAMP = 64 << 20
SCALE = math.log2(math.e) / math.sqrt(128.0)
def f2i(x): return struct.unpack('<I', struct.pack('<f', x))[0]
KNAME = NAME + '_kernel'

SK, SV, SX, SW_, SO, SWS, SWD, SFL = 4, 8, 12, 16, 20, 24, 28, 88
SGO, SGW, SFP, SOUT = 12, 16, 24, 28
sWS, sOUT, sDBG = 52, 54, 46
sW, sW2K, sW4K, sT0, sKo, sVo, sSC, sTHR, sXo, sRET, sMODE, sWe = 32, 33, 34, 35, 36, 37, 38, 40, 41, 42, 44, 45
sJ, sCnt, sHead, sOo = 48, 94, 95, 96
SG2W, SG2O, sGive, sRem, sW4 = 4, 92, 46, 47, 49
VPP, VPG, VPR = 41, 42, 43
def srd(n): return f's[{n}:{n+3}]'
VPA, KADDR, VADDR, VOFFK, VOFFV, LREG, ETMP, CT, NEGM, VOFFO, VFLAG, VPOLL, VL4 = 3, 4, 8, 16, 18, 20, 28, 40, 44, 60, 61, 62, 63
KF, VF, SB, PB, EP = 64, 96, 128, 192, 224
NE = 12
def S(p, kt, qt): return SB + p * 32 + (kt * 4 + qt) * 4
def P(p, qt): return PB + p * 16 + qt * 4
def Lr(p, qt): return LREG + p * 4 + qt
def O(T, qt): return (T * 4 + qt) * 4
def Q(h, qt, u): return 128 + h * 64 + (u * 4 + qt) * 4
VSV, VSK, WADDR, XADDR, VOFFW, VOFFX, VOFFJ, JADDR = 20, 24, 64, 80, 84, 88, 92, 3
CW0, CW1, CR = 61, 62, 63
def QACC(h, T, qt): return (f'v{128 + (T * 4 + qt) * 4}' if h == 1 else f'a{(T * 4 + qt) * 4}')
def XF(t, qt): return (28 if (t >> 1) & 1 else 96) + ((t & 1) * 4 + qt) * 4
NWS = 24
def WF(slot): return 128 + slot * 4
BLK = 16384
def wblock(t): return [(4, 1), (7, 3), (8, 9)][(t >> 1) % 3][t & 1]
def xblock(p): return [2, 5, 6][p % 3]
def cl(s): return ' '.join(s.split())
def rng(r, n): return f'{r[0]}[{int(r[1:])}:{int(r[1:]) + n - 1}]'

def dma_kv(which, tile):
    base = (0 if which == 'K' else 65536) + (tile % 8) * 8192
    s, vo, so = (SK, VOFFK, sKo) if which == 'K' else (SV, VOFFV, sVo)
    tag = f'{which}{tile}'; nt = OPT['nt_kv']
    return [([f's_add_u32 m0, s{sW2K}, {base}'], Ins(cl(f'buffer_load_dwordx4 v{vo}, {srd(s)}, s{so} offen {nt} lds'), tag), []),
            ([], Ins(cl(f'buffer_load_dwordx4 v{vo + 1}, {srd(s)}, s{so} offen offset:1024 {nt} lds'), tag), [f's_add_u32 s{so}, s{so}, 8192'])]
def dma4(s, vo, off, blk, tag, nt, so=sWe):
    return [([f's_mov_b32 s{so}, {off}', f's_add_u32 m0, s{sW4K}, {blk * BLK}'] if n == 0 else [],
             Ins(cl(f'buffer_load_dwordx4 v{vo + n}, {srd(s)}, s{so} offen offset:{n * 1024} {nt} lds'), tag), []) for n in range(4)]
def dma_w(t): return dma4(SW_, VOFFW, t * 32 * 8192, wblock(t), f'W{t}', OPT['nt_w'])
def dma_x(p): return dma4(SX, VOFFX, (p >> 1) * 128 + (p & 1) * 32 * 1152, xblock(p), f'X{p}', OPT['nt_x'], sXo)
def dma_kk(i): return dma4(SK, VSK, i * 16384, i, f'KK{i}', OPT['nt_kv'])
def dma_vv(i): return dma4(SV, VSV, i * 16384, 4 + i, f'VV{i}', OPT['nt_kv'])
def flat(dl):
    out = []
    for pre, ins, post in dl: out += pre + [ins] + post
    return out

def I(x): return x if isinstance(x, Ins) else Ins(x)
def cost(x):
    k = x.kind
    return {'trans': 8, 'valu': 4, 'dsr': 4, 'dsw': 4, 'dma': 12, 'vld': 12, 'vst': 12}.get(k, 0 if k in ('label', 'dir', 'waitvm', 'waitlg') else 4)
class Gaps:
    def __init__(self, n):
        self.n = n; self.sc = [[] for _ in range(n + 1)]; self.mem = [[] for _ in range(n)]; self.v = [[] for _ in range(n)]
    def place_dma(self, dl, gaps):
        assert len(gaps) >= len(dl), (len(gaps), len(dl))
        for (pre, ins, post), g in zip(dl, gaps):
            for k, s in enumerate(pre): self.sc[g - len(pre) + k].append(s)
            self.mem[g].append(ins)
            for k, s in enumerate(post): self.sc[g + 1 + k].append(s)
    def load(self, g): return sum(cost(I(x)) for x in self.mem[g] + self.v[g])
    def pack(self, items, g0, g1):
        items = [I(x) for x in items]
        base = [self.load(g) for g in range(self.n)]
        for L in range(8, 400, 2):
            g = g0; used = 0; vhere = False; pos = []; ok = True
            for x in items:
                c = cost(x); ismem = x.kind in ('dsr', 'dsw', 'dma', 'vld', 'vst')
                while True:
                    if g >= g1: ok = False; break
                    room = L - base[g] - used
                    if ismem and (vhere or (self.mem[g] and L < 20)): fit = False
                    else: fit = c <= room or (c == 0) or (used == 0 and base[g] == 0)
                    if fit: break
                    g += 1; used = 0; vhere = False
                if not ok: break
                pos.append(g); used += c
                if not ismem: vhere = True
                else: vhere = True if False else vhere
            if ok: break
        assert ok
        for x, g in zip(items, pos):
            (self.mem if x.kind in ('dsr', 'dsw', 'dma', 'vld', 'vst') else self.v)[g].append(x)
        return pos
    def weave(self, mf, a=0, b=None):
        out = []
        b = self.n if b is None else b
        for i in range(a, b):
            if i < len(mf) and mf[i] is not None: out.append(mf[i])
            out += self.sc[i] + self.mem[i] + self.v[i]
        if b == self.n: out += self.sc[self.n]
        return out

def k_reads(tile):
    return [Ins(f'ds_read_b128 v[{KF + (kt * 4 + u) * 4}:{KF + (kt * 4 + u) * 4 + 3}], v{KADDR + u} offset:{(tile % 8) * 8192 + kt * 4096}', f'rK{tile}')
            for kt in range(2) for u in range(4)]
def v_reads(tile):
    return [Ins(f'ds_read_b64_tr_b16 v[{VF + T * 4 + s * 2}:{VF + T * 4 + s * 2 + 1}], v{VADDR + T} offset:{(tile % 8) * 8192 + s * 4096}', f'rV{tile}')
            for T in range(8) for s in range(2)]
def qk_mfmas(j):
    h = 1 if j in ((32, 33) if OPT['w1'] else (32,)) else 0
    p = j & 1; first = (j & 31) == 0
    out = []
    for kt in range(2):
        for u in range(4):
            for qt in range(4):
                c = f'v{S(p, kt, qt)}' if u else ('0' if first else f'v{NEGM + qt * 4}')
                out.append(mfma(f'v{S(p, kt, qt)}', f'v{KF + (kt * 4 + u) * 4}', f'a{Q(h, qt, u)}', c))
    return out
def pv_mfmas(j):
    p = j & 1; first = (j & 31) == 0
    return [mfma(f'a{O(T, qt)}', f'v{VF + T * 4}', f'v{P(p, qt)}', '0' if first else f'a{O(T, qt)}') for T in range(8) for qt in range(4)]

def softmax_stream(j):
    p = j & 1; first = (j & 31) == 0
    out = []
    for qt in range(4):
        for k in range(8):
            e = ETMP + (qt * 8 + k) % NE
            src = S(p, k >> 2, qt) + (k & 3)
            out.append([f'v_exp_f32 v{e}, v{src}'])
            l = Lr(p, qt)
            if k == 0: a = f'v_mov_b32 v{l}, v{e}' if first else f'v_add_f32 v{l}, v{Lr(1 - p, qt)}, v{e}'
            else: a = f'v_add_f32 v{l}, v{l}, v{e}'
            g = [a]
            if k & 1:
                e0 = ETMP + (qt * 8 + k - 1) % NE
                g.append(f'v_cvt_pk_bf16_f32 v{P(p, qt) + (k >> 1)}, v{e0}, v{e}')
            out.append(g)
    return out
def lagged(stream):
    out = [[] for _ in range(len(stream) + 2)]
    for i, g in enumerate(stream): out[i + (2 if i & 1 else 0)] += g
    return out
def undense(st):
    return [x for g in st for x in g]
def dense(stream):
    out = []; prev = []
    for i in range(0, len(stream), 2):
        out += stream[i]; out += prev; prev = stream[i + 1] if i + 1 < len(stream) else []
    return out + prev
def rowmax(p, qt, dst):
    s0 = S(p, 0, qt); s1 = S(p, 1, qt)
    return [f'v_max3_f32 v{dst}, v{s0}, v{s0 + 1}, v{s0 + 2}', f'v_max3_f32 v{dst}, v{dst}, v{s0 + 3}, v{s1}',
            f'v_max3_f32 v{dst}, v{dst}, v{s1 + 1}, v{s1 + 2}', f'v_max_f32 v{dst}, v{dst}, v{s1 + 3}']
def xlane(op, regs, tmps):
    out = []
    for sw in ('v_permlane16_swap_b32', 'v_permlane32_swap_b32'):
        out += [f'v_mov_b32 v{t}, v{r}' for r, t in zip(regs, tmps)]
        out += [f'{sw} v{t}, v{r}' for r, t in zip(regs, tmps)]
        out += [f'{op} v{r}, v{r}, v{t}' for r, t in zip(regs, tmps)]
    return out
def init_stream(j):
    p = j & 1
    m = [NEGM + qt * 4 for qt in range(4)]; t = [NEGM + qt * 4 + 1 for qt in range(4)]
    out = []
    rm = [rowmax(p, qt, m[qt]) for qt in range(4)]
    for k in range(4): out += [rm[qt][k] for qt in range(4)]
    out += xlane('v_max_f32', m, t)
    for qt in range(4):
        for k in range(8):
            s = S(p, k >> 2, qt) + (k & 3)
            out.append(f'v_sub_f32 v{s}, v{s}, v{m[qt]}')
    for qt in range(4):
        for r in (3, 2, 1, 0): out.append(f'v_sub_f32 v{NEGM + qt * 4 + r}, 0, v{m[qt]}')
    return out

def epilogue(packed):
    l = [Lr(1, qt) for qt in range(4)]
    t = [EP + 8 + i for i in range(4)]
    prep = xlane('v_add_f32', l, t)
    rc = [EP + 2 * i for i in range(4)]
    prep += [f'v_rcp_f32 v{rc[qt]}, v{l[qt]}' for qt in range(4)]
    units = []
    for k in range(16):
        u, qt = divmod(k, 4)
        b = EP + 8 + (k % 2) * 12
        rd = [f'v_accvgpr_read_b32 v{b + i}, a{O(2 * u + (i >> 2), qt) + (i & 3)}' for i in range(8)]
        if packed: mu = [f'v_pk_mul_f32 v[{b + 2 * i}:{b + 2 * i + 1}], v[{b + 2 * i}:{b + 2 * i + 1}], v[{rc[qt]}:{rc[qt] + 1}] op_sel_hi:[1,0]' for i in range(4)]
        else: mu = [f'v_mul_f32 v{b + i}, v{rc[qt]}, v{b + i}' for i in range(8)]
        cv = [f'v_cvt_pk_bf16_f32 v{b + 8 + i}, v{b + 2 * i}, v{b + 2 * i + 1}' for i in range(4)]
        st = [Ins(cl(f'buffer_store_dwordx4 v[{b + 8}:{b + 11}], v{VOFFO}, {srd(SO)}, s{sOo} offen offset:{qt * 1024} {OPT["ost"]}'), 'Ost')]
        if qt == 3: st.append(f's_add_u32 s{sOo}, s{sOo}, 4096')
        units.append((rd, mu, cv, st))
    return prep, units
def epi_flat(units):
    L = []; first = []; lastrd = []
    for k, (rd, mu, cv, st) in enumerate(units):
        first.append(len(L)); L += rd; lastrd.append(len(L) - 1)
        if k: L += units[k - 1][3]
        L += mu + cv
    L += units[-1][3]
    return L, first, lastrd

SPINS = []
def spin_check(name, load, cmp):
    SPINS.append(f"""L_spin_{name}:
s_mov_b32 s{sT0}, 0x40000
L_spin2_{name}:
s_sleep 1
{load}
s_sub_u32 s{sT0}, s{sT0}, 1
s_cbranch_scc1 L_back_{name}
s_waitcnt vmcnt(0)
{cmp}
s_nop 1
s_cbranch_vccnz L_spin2_{name}
s_branch L_back_{name}""")
    return [cmp, f's_cbranch_vccnz L_spin_{name}', f'L_back_{name}:']

def fallback(p):
    A = Prog()
    A(f'L_fb{p}:')
    A('s_nop 7\ns_nop 7')
    m = [EP + i for i in range(4)]; t = [EP + 4 + i for i in range(4)]; f = [EP + 8 + i for i in range(4)]
    rm = [rowmax(p, qt, m[qt]) for qt in range(4)]
    for k in range(4): A.extend([rm[qt][k] for qt in range(4)])
    A.extend(xlane('v_max_f32', m, t))
    for qt in range(4): A(f'v_max_f32 v{m[qt]}, 0, v{m[qt]}')
    for qt in range(4): A(f'v_exp_f32 v{f[qt]}, -v{m[qt]}')
    for qt in range(4):
        for k in range(8):
            s = S(p, k >> 2, qt) + (k & 3)
            A(f'v_sub_f32 v{s}, v{s}, v{m[qt]}')
        for r in range(4): A(f'v_sub_f32 v{NEGM + qt * 4 + r}, v{NEGM + qt * 4 + r}, v{m[qt]}')
        A(f'v_mul_f32 v{Lr(1 - p, qt)}, v{Lr(1 - p, qt)}, v{f[qt]}')
    A(f's_cmp_lg_u32 s{sMODE}, 0')
    A(f's_cbranch_scc1 L_fb{p}_b')
    for qt in range(4):
        for k in range(8):
            s = S(1 - p, k >> 2, qt) + (k & 3)
            A(f'v_sub_f32 v{s}, v{s}, v{m[qt]}')
    A(f'L_fb{p}_b:')
    for T in range(8):
        for qt in range(4):
            b = EP + 12 + ((T * 4 + qt) % 2) * 4
            for r in range(4): A(f'v_accvgpr_read_b32 v{b + r}, a{O(T, qt) + r}')
            for r in range(4): A(f'v_mul_f32 v{b + r}, v{b + r}, v{f[qt]}')
            for r in range(4): A(f'v_accvgpr_write_b32 a{O(T, qt) + r}, v{b + r}')
    A.extend(dense(softmax_stream(2 + p)))
    A('s_nop 3')
    A(f's_setpc_b64 s[{sRET}:{sRET + 1}]')
    A.fix_hazards()
    return A

def stamp(A, idx, base=64):
    if OPT['stamps'] and not OPT['qtl']: A(f's_memtime s[{base + idx * 2}:{base + idx * 2 + 1}]')
def store_stamps(A, n):
    A('s_memrealtime s[62:63]\ns_waitcnt lgkmcnt(0)')
    A('v_lshrrev_b32 v1, 6, v0\ns_lshl_b32 s50, s2, 2\nv_add_u32 v1, s50, v1\nv_lshlrev_b32 v1, 7, v1')
    A('v_and_b32 v2, 63, v0\nv_cmp_eq_u32 vcc, 0, v2\ns_and_saveexec_b64 s[50:51], vcc')
    for i in range(n):
        for k in range(4): A(f'v_mov_b32 v{4 + k}, s{60 + i * 4 + k}')
        A(f'buffer_store_dwordx4 v[4:7], v1, s[56:59], 0 offen offset:{i * 16}')
        A('s_nop 1')

def code_prefetch(A, start, end, va, vd, n, first=0, tag=''):
    A(f's_getpc_b64 s[50:51]')
    A(f'L_pc{tag}_{start}:')
    if start == KNAME: A(f's_sub_u32 s50, s50, L_pc{tag}_{start}-{start}\ns_subb_u32 s51, s51, 0')
    else: A(f's_add_u32 s50, s50, {start}-L_pc{tag}_{start}\ns_addc_u32 s51, s51, 0')
    A(f'v_lshlrev_b32 v{va}, 7, v0')
    if first: A(f'v_add_u32 v{va}, {first * 0x8000}, v{va}')
    for i in range(n):
        A(f'v_min_u32 v{va + 1}, {end}-{start}-4, v{va}')
        A(f'global_load_dword v{vd + i}, v{va + 1}, s[50:51]', tag='pf')
        if i + 1 < n: A(f'v_add_u32 v{va}, 0x8000, v{va}')

DEF_V = []; DEF_S = []
def setup(A):
    A('s_cmp_ge_u32 s2, 256\ns_cbranch_scc1 L_end')
    A(f"""s_bfe_u32 s48, s2, 0x10002
s_mul_i32 s50, s48, 40
s_add_u32 s52, s0, s50
s_addc_u32 s53, s1, 0
s_load_dwordx2 s[{SX}:{SX+1}], s[52:53], 0
s_load_dwordx2 s[{SW_}:{SW_+1}], s[52:53], 24
s_lshr_b32 s51, s2, 7
s_mul_i32 s51, s51, 40
s_add_u32 s54, s0, s51
s_addc_u32 s55, s1, 0
s_load_dwordx2 s[{SK}:{SK+1}], s[52:53], 8
s_load_dwordx2 s[{SV}:{SV+1}], s[52:53], 16
s_load_dwordx2 s[{SWS}:{SWS+1}], s[54:55], 32
s_load_dwordx2 s[{SO}:{SO+1}], s[0:1], 96
s_load_dwordx4 s[92:95], s[0:1], 80""")
    if OPT['stamps']: A('s_memrealtime s[60:61]')
    stamp(A, 0)
    if OPT['pf'] == '1': code_prefetch(A, KNAME, 'L_code_end', 100, 252, 1)
    elif OPT['pf'] == '2':
        A(f'''s_getpc_b64 s[50:51]
L_pcx:
s_sub_u32 s50, s50, L_pcx-{KNAME}
s_subb_u32 s51, s51, 0
s_lshr_b32 s48, s2, 3
s_cmp_ge_u32 s48, 3
s_cbranch_scc1 L_nopf
s_lshl_b32 s48, s48, 15
v_lshlrev_b32 v100, 7, v0
v_add_u32 v100, s48, v100
v_min_u32 v100, L_code_end-{KNAME}-4, v100''')
        A('global_load_dword v252, v100, s[50:51]', tag='pf')
        A('L_nopf:')
    A(f"""s_and_b32 s46, s2, 6
s_lshl_b32 s46, s46, 1
s_lshr_b32 s48, s2, 6
s_add_u32 s46, s46, s48
s_and_b32 s47, s2, 1
s_lshl_b32 s47, s47, 3
s_bfe_u32 s48, s2, 0x30003
s_add_u32 s47, s47, s48
s_and_b32 s49, s46, 7
v_lshrrev_b32 v1, 6, v0
v_and_b32 v2, 63, v0
v_readfirstlane_b32 s{sW}, v1
v_lshrrev_b32 v97, 4, v2
v_lshrrev_b32 v100, 3, v2
v_lshl_add_u32 v100, v1, 6, v100
v_mul_u32_u24 v100, 1152, v100
s_lshl_b32 s{sW4K}, s{sW}, 12
v_and_b32 v101, 7, v2
v_xor_b32 v101, v101, v97
v_lshl_add_u32 v{VOFFX}, v101, 4, v100
v_xor_b32 v101, 4, v101
v_lshl_add_u32 v102, v101, 4, v100
v_add_u32 v{VOFFX + 1}, {8 * 1152 - 1024}, v102
v_add_u32 v{VOFFX + 2}, {2 * (8 * 1152 - 1024)}, v{VOFFX}
v_add_u32 v{VOFFX + 3}, {3 * (8 * 1152 - 1024)}, v102
v_lshrrev_b32 v100, 5, v2
v_and_b32 v101, 31, v2
v_and_b32 v102, 1, v1
v_lshl_add_u32 v102, v102, 2, v100
v_lshl_add_u32 v103, v1, 3, v100
v_lshlrev_b32 v103, 13, v103
v_lshlrev_b32 v104, 1, v102
v_xor_b32 v104, v104, v101
v_lshl_add_u32 v{VOFFW}, v104, 4, v103
v_xor_b32 v104, 64, v{VOFFW}
v_add_u32 v{VOFFW + 1}, {16384 - 1024}, v104
v_add_u32 v{VOFFW + 2}, {2 * (16384 - 1024)}, v{VOFFW}
v_add_u32 v{VOFFW + 3}, {3 * (16384 - 1024)}, v104
s_mul_i32 s50, s49, 294912
s_lshl_b32 s51, s47, 9
s_mov_b32 s{SX+2}, 294912
s_mov_b32 s{SX+3}, 0x20000
s_sub_u32 s{SW_+2}, {576 * 8192}, s51
s_mov_b32 s{SW_+3}, 0x20000
s_waitcnt lgkmcnt(0)""")
    stamp(A, 1)
    A(f"""s_add_u32 s{SX}, s{SX}, s50
s_addc_u32 s{SX+1}, s{SX+1}, 0
s_add_u32 s{SW_}, s{SW_}, s51
s_addc_u32 s{SW_+1}, s{SW_+1}, 0""")
    A.extend(flat(dma_w(0)) + flat(dma_x(0)) + flat(dma_x(1)) + flat(dma_w(1)))
    A(f"""v_and_b32 v96, 15, v2
v_and_b32 v98, 3, v2
v_bfe_u32 v99, v2, 2, 2
v_lshl_add_u32 v100, v97, 3, v99
v_and_b32 v101, 1, v97
v_lshl_add_u32 v101, v101, 2, v99
v_lshlrev_b32 v101, 5, v101
v_lshl_add_u32 v101, v100, 9, v101
v_lshl_add_u32 v101, v98, 3, v101
v_add_u32 v{WADDR}, {BLK}, v101""")
    for T in range(1, 8): A(f'v_xor_b32 v{WADDR + T}, {T * 32}, v{WADDR}')
    A(f"""v_lshrrev_b32 v100, 1, v96
v_xor_b32 v100, v100, v97
v_lshlrev_b32 v100, 4, v100
v_lshl_add_u32 v100, v96, 7, v100
v_lshl_add_u32 v100, v1, 12, v100
v_add_u32 v{XADDR}, {2 * BLK}, v100
v_xor_b32 v{XADDR + 1}, 64, v{XADDR}
v_add_u32 v{XADDR + 2}, {4 * BLK}, v{XADDR}
v_add_u32 v{XADDR + 3}, {4 * BLK}, v{XADDR + 1}""")
    if OPT['su'] == '0':
        A.extend(flat(dma_x(2)) + flat(dma_w(2)) + flat(dma_w(3)))
        if OPT['pf'] == '1': code_prefetch(A, KNAME, 'L_code_end', 100, 253, 2, first=1, tag='b')
    V = DEF_V; a, b, c, d, l15, g = 92, 93, 94, 95, 61, 62
    V += [f'v_add_u32 v{WADDR + 8 + T}, {6 * BLK}, v{WADDR + T}' for T in range(8)]
    V += f"""v_lshlrev_b32 v{VOFFO}, 4, v2
v_and_b32 v{l15}, 15, v2
v_lshrrev_b32 v{g}, 4, v2
v_lshlrev_b32 v{a}, 11, v1
v_lshl_add_u32 v{a}, v{g}, 8, v{a}
v_lshl_add_u32 v{b}, v1, 3, v{g}""".split('\n')
    for o in range(2):
        V += f"""v_add_u32 v{c}, {4 * o}, v{b}
v_and_b32 v{d}, 15, v{c}
v_xor_b32 v{d}, v{d}, v{l15}
v_lshl_add_u32 v{VOFFK + o}, v{d}, 4, v{a}
v_and_b32 v{d}, 7, v{c}
v_lshlrev_b32 v{d}, 1, v{d}
v_xor_b32 v{d}, v{d}, v{l15}
v_lshl_add_u32 v{VOFFV + o}, v{d}, 4, v{a}""".split('\n')
    V += [f'v_lshlrev_b32 v{a}, 12, v1', f'v_lshl_add_u32 v{a}, v{g}, 8, v{a}']
    for n in range(4):
        V += f"""v_add_u32 v{c}, {4 * n}, v{g}
v_xor_b32 v{d}, v{c}, v{l15}
v_lshl_add_u32 v{VSK + n}, v{d}, 4, v{a}
v_and_b32 v{d}, 7, v{c}
v_lshlrev_b32 v{d}, 1, v{d}
v_xor_b32 v{d}, v{d}, v{l15}
v_lshl_add_u32 v{VSV + n}, v{d}, 4, v{a}""".split('\n')
    V += [f'v_xor_b32 v{a}, v{g}, v{l15}', f'v_lshlrev_b32 v{a}, 4, v{a}', f'v_lshl_add_u32 v{KADDR}, v{l15}, 8, v{a}']
    V += [f'v_xor_b32 v{KADDR + u}, {u * 64}, v{KADDR}' for u in range(1, 4)]
    V += f"""v_lshrrev_b32 v{a}, 2, v2
v_and_b32 v{b}, 7, v{a}
v_lshlrev_b32 v{b}, 5, v{b}
v_lshl_add_u32 v{b}, v{a}, 8, v{b}
v_and_b32 v{c}, 3, v2
v_lshl_add_u32 v{b}, v{c}, 3, v{b}
v_add_u32 v{VADDR}, 0x10000, v{b}
v_mul_u32_u24 v{a}, 384, v{a}
v_lshl_add_u32 v{a}, v{c}, 3, v{a}
v_mul_u32_u24 v{b}, 96, v1
v_add_u32 v{JADDR}, v{a}, v{b}""".split('\n')
    V += [f'v_xor_b32 v{VADDR + T}, {T * 32}, v{VADDR}' for T in range(1, 8)]
    V += f"""v_bfe_u32 v{a}, v2, 2, 1
v_lshlrev_b32 v{a}, 1, v{a}
v_bfe_u32 v{b}, v2, 3, 1
v_mul_u32_u24 v{b}, 3, v{b}
v_xor_b32 v{a}, v{a}, v{b}
v_lshlrev_b32 v{c}, 6, v{l15}
v_lshl_add_u32 v{c}, v1, 12, v{c}
v_add_u32 v{c}, {6 * BLK}, v{c}
v_xor_b32 v{b}, v{a}, v{g}
v_lshl_add_u32 v{CR}, v{b}, 4, v{c}
v_lshrrev_b32 v{b}, 1, v{g}
v_xor_b32 v{b}, v{b}, v{a}
v_lshl_add_u32 v{c}, v{b}, 4, v{c}
v_and_b32 v{b}, 1, v{g}
v_lshl_add_u32 v{CW0}, v{b}, 3, v{c}""".split('\n')
    for n in range(3):
        t = VOFFJ + n
        V += f"""v_add_u32 v{d}, {64 * n}, v2
v_mul_u32_u24 v{t}, 2731, v{d}
v_lshrrev_b32 v{t}, 16, v{t}
v_mul_u32_u24 v{CW1}, 24, v{t}
v_sub_u32 v{d}, v{d}, v{CW1}
v_lshl_add_u32 v{t}, v1, 3, v{t}
v_mul_u32_u24 v{t}, 1152, v{t}
v_lshl_add_u32 v{t}, v{d}, 4, v{t}
v_subrev_u32 v{t}, {n * 1024}, v{t}""".split('\n')
    V += [f'v_xor_b32 v{CW1}, 32, v{CW0}']
    S_ = f"""s_and_b32 s50, s2, 127
s_mul_i32 s50, s50, 36864
s_add_u32 s{SWS}, s{SWS}, s50|s_addc_u32 s{SWS+1}, s{SWS+1}, 0
s_mov_b32 s{SWS+2}, 36864
s_mov_b32 s{SWS+3}, 0x20000
s_lshl_b32 s{sW2K}, s{sW}, 11
s_lshl_b32 s50, s49, 23
s_lshl_b32 s51, s47, 19
s_add_u32 s50, s50, s51
s_add_u32 s{SK}, s{SK}, s50|s_addc_u32 s{SK+1}, s{SK+1}, 0
s_mov_b32 s{SK+2}, 0x80000
s_mov_b32 s{SK+3}, 0x20000
s_add_u32 s{SV}, s{SV}, s50|s_addc_u32 s{SV+1}, s{SV+1}, 0
s_mov_b32 s{SV+2}, 0x80000
s_mov_b32 s{SV+3}, 0x20000
s_mov_b32 s{sWS}, s{SO}
s_mov_b32 s{sWS+1}, s{SO+1}
s_mov_b32 s{sOUT}, s92
s_mov_b32 s{sOUT+1}, s93
s_lshr_b32 s50, s2, 7
s_lshl_b32 s50, s50, 9
s_and_b32 s51, s2, 64
s_add_u32 s50, s50, s51
s_bfe_u32 s51, s2, 0x10002
s_lshl_b32 s51, s51, 5
s_add_u32 s50, s50, s51
s_bfe_u32 s51, s2, 0x30003
s_lshl_b32 s51, s51, 2
s_add_u32 s50, s50, s51
s_and_b32 s51, s2, 3
s_add_u32 s50, s50, s51
s_mul_i32 s50, s50, 9216
s_add_u32 s50, s50, {WS_WO}
s_add_u32 s{SWD}, s{SO}, s50|s_addc_u32 s{SWD+1}, s{SO+1}, 0
s_mov_b32 s{SWD+2}, {3 * 128 * 9216 + 9216}
s_mov_b32 s{SWD+3}, 0x20000
s_lshl_b32 s50, s2, 7
s_lshl_b32 s51, s{sW}, 2
s_add_u32 s50, s50, s51
s_add_u32 s50, s50, {WS_FL}
s_add_u32 s{SFL}, s{SO}, s50|s_addc_u32 s{SFL+1}, s{SO+1}, 0
s_mov_b32 s{SFL+2}, 68
s_mov_b32 s{SFL+3}, 0x20000""".split('\n')
    if OPT['stamps']:
        S_ += [f's_add_u32 s56, s{SO}, {WS_STAMP}|s_addc_u32 s57, s{SO+1}, 0', 's_mov_b32 s58, 0x100000', 's_mov_b32 s59, 0x20000']
    S_ += f"""s_lshl_b32 s50, s46, 2
s_add_u32 s50, s50, s{sW}
s_lshl_b32 s50, s50, 19
s_lshl_b32 s51, s47, 15
s_add_u32 s50, s50, s51
s_add_u32 s{SO}, s{SO}, s50|s_addc_u32 s{SO+1}, s{SO+1}, 0
s_mov_b32 s{SO+2}, 32768
s_mov_b32 s{SO+3}, 0x20000
s_mov_b32 s{sSC}, {f2i(SCALE):#x}
s_mov_b32 s{sTHR}, {f2i(2.0 ** 24):#x}
s_mov_b32 s{sOo}, 0
s_mov_b32 s{sDBG}, s94
s_mov_b32 s{sDBG+1}, s95
s_mov_b32 s{sKo}, {8 * 8192}
s_mov_b32 s{sVo}, {6 * 8192}
s_mov_b32 s{sCnt}, 3
s_mov_b32 s{sHead}, 0""".split('\n')
    DEF_S.extend(S_)

def x_reads(pc):
    c = pc >> 1; blk = xblock(pc)
    return [Ins(f'ds_read_b128 v[{XF(2 * c + ks, 2 * (pc & 1) + qq)}:{XF(2 * c + ks, 2 * (pc & 1) + qq) + 3}], v{XADDR + ks + (2 if blk == 6 else 0)} offset:{(0 if blk == 6 else (blk - 2) * BLK) + qq * 2048}', f'rX{pc}')
            for ks in range(2) for qq in range(2)]
def w_read(t, h, T, dst):
    blk = wblock(t)
    ad = WADDR + T if blk <= 4 else WADDR + 8 + T
    off = (blk - 1 if blk <= 4 else blk - 7) * BLK + h * 256
    d = int(dst[1:])
    return [Ins(f'ds_read_b64_tr_b16 {dst[0]}[{d + 2 * s}:{d + 2 * s + 1}], v{ad} offset:{off + s * 2048}', f'rW{t}') for s in range(2)]
def w_reads(t):
    out = []
    for f in range(16): out += w_read(t, f >> 3, f & 7, f'a{WF((16 * t + f) % NWS)}')
    return out
UH = ['a160', 'a192', 'a160', 'a192', 'a0', 'a32', 'a0', 'a32']
def uw(n, k, tt): return f'{UH[n][0]}{int(UH[n][1:]) + (k * 2 + tt) * 4}'
def unit_reads(n):
    h, u = n >> 2, n & 3
    out = []
    for k in range(4):
        for tt in range(2): out += w_read(14 + k, h, 2 * u + tt, uw(n, k, tt))
    return out
def conv(n):
    h, u = n >> 2, n & 3
    V = []; D = []
    tiles = []
    for tt in range(2):
        for qt in range(4):
            acc = QACC(h, 2 * u + tt, qt)
            if h == 1: b = int(acc[1:]); rd = []
            else:
                b = 84 + ((n * 8 + tt * 4 + qt) % 3) * 4
                rd = [f'v_accvgpr_read_b32 v{b + r}, a{int(acc[1:]) + r}' for r in range(4)]
            mu = [f'v_mul_f32 v{b + r}, s{sSC}, v{b + r}' for r in range(4)]
            cv = [f'v_cvt_pk_bf16_f32 v{b}, v{b}, v{b + 1}', f'v_cvt_pk_bf16_f32 v{b + 1}, v{b + 2}, v{b + 3}']
            V += [Ins(x) for x in rd + mu + cv]
            D.append((len(V) - 1, Ins(f'ds_write_b64 v{CW1 if tt else CW0}, v[{b}:{b + 1}] offset:{qt * 1024}')))
    D += [(len(V) - 1, Ins(f'ds_read_b128 a[{Q(h, qt, u)}:{Q(h, qt, u) + 3}], v{CR} offset:{qt * 1024}', f'rQ{n}')) for qt in range(4)]
    seq = []
    for i, x in enumerate(V):
        seq.append(x); seq += [d for k, d in D if k == i]
    return V, D, seq

def q_phase(A):
    stamp(A, 2)
    A('WAITVM X0+X1+W0+W1\ns_barrier')
    stamp(A, 3)
    if OPT['su'] == '0': A.extend(x_reads(0) + x_reads(1) + w_reads(0))
    else:
        rd = x_reads(0) + x_reads(1) + w_reads(0)
        dj = dma_x(2) + dma_w(2) + dma_w(3)
        for i in range(12):
            A.extend(flat([dj[i]])); A.extend(rd[i * 40 // 12:(i + 1) * 40 // 12])
    def JR(i): return f'a{224 + 4 * i}' if i < 8 else 'v92'
    def jstore(i):
        r, n = divmod(i, 3)
        pre = [f's_add_u32 s{sT0}, s{sW}, {4 * r}', f's_mul_i32 s49, s{sT0}, 43', f's_lshr_b32 s49, s49, 7',
               f's_mul_i32 s49, s49, {128 * 9216 - 9216}', f's_mul_i32 s{sT0}, s{sT0}, 3072', f's_add_u32 s{sJ}, s{sT0}, s49'] if n == 0 else []
        return [(pre, Ins(cl(f'buffer_store_dwordx4 {rng(JR(i), 4)}, v{VOFFO}, {srd(SWD)}, s{sJ} offen offset:{n * 1024} {OPT["st"]}'), 'Jst'), [])]
    for t in range(14):
        mf = []
        for f in range(16):
            for qt in range(4):
                acc = QACC(f >> 3, f & 7, qt)
                mf.append(mfma(acc, f'a{WF((16 * t + f) % NWS)}', f'v{XF(t, qt)}', acc if t else '0'))
        G = Gaps(64)
        groups = []
        J4 = OPT['jo'] == '4'
        if t in ((2, 5, 9) if J4 else (3, 7, 11)):
            r = t // 4
            groups += [[([f's_mov_b32 s{sWe}, {r * 384}', f's_mul_i32 m0, s{sW}, 3072'] if n == 0 else [],
                         Ins(f'buffer_load_dwordx4 v{VOFFJ + n}, {srd(SWS)}, s{sWe} offen offset:{n * 1024} nt lds', f'J{r}'), []) for n in range(3)]]
        if t == 0: groups += [dma_x(3), dma_x(4), dma_w(4)]
        if t == 1: groups += [dma_w(5)]
        if 1 <= t <= 12: groups += [dma_w(t + 5)]
        if t + 5 < 18: groups += [dma_x(t + 5)]
        if t == 13 and not J4: groups += [dma_vv(0), dma_kk(1)]
        ngr = len(groups)
        gl = {4: [[5, 8, 11, 14], [18, 22, 26, 30], [34, 38, 42, 46], [51, 54, 57, 60]],
              3: [[2, 7, 12, 17], [24, 29, 34, 39], [46, 51, 56, 60]],
              2: [[2, 10, 18, 26], [34, 42, 50, 58]], 1: [[18, 30, 42, 54]], 0: []}[ngr]
        if J4 and t == 12: gl = [[2, 6, 10, 14], [20, 24, 28, 32]]
        dg = [g for gr, pos in zip(groups, gl) for g in pos[:len(gr)]]
        if J4 and t in (12, 13):
            for i, g in {12: [(0, 44), (1, 52), (2, 60)], 13: [(3, 8), (4, 16), (5, 24), (6, 34), (7, 44), (8, 54)]}[t]:
                G.place_dma(jstore(i), [g]); dg.append(g)
            if t == 13:
                G.v[57].append(f'v_mov_b32 v{VPA}, 0'); dg.append(59)
                G.mem[59].append(Ins(cl(f'buffer_store_dword v{VPA}, v{VOFFO}, {srd(SFL)}, 0 offen {OPT["st"]}'), 'Fz'))
        free = [g for g in range(64) if g not in dg]
        G.sc[0].append(f'WAITVM X{t + 2}')
        rds = x_reads(t + 2)
        if t + 5 < 18:
            xi = [i for i, gr in enumerate(groups) if gr[0][1].tag == f'X{t + 5}'][0]
            G.sc[gl[xi][0] - 3].append(f'WAITLG rX{t + 2}')
        if t in ((3, 7, 11) if J4 else (5, 9, 13)):
            for n in range(3):
                d = JR((t // 4 - (0 if J4 else 1)) * 3 + n)
                rds += [Ins(f'ds_read_b64_tr_b16 {d[0]}[{int(d[1:]) + 2 * sx}:{int(d[1:]) + 2 * sx + 1}], v{JADDR} offset:{n * 32 + sx * 16 * 384}') for sx in range(2)]
        if t == 0: G.sc[2].append('WAITLG rX1')
        rds += w_reads(t + 1) if t < 13 else unit_reads(0)[:8]
        for r, g in zip(rds, free): G.mem[g].append(r)
        for gr, g in zip(groups, gl): G.place_dma(gr, g)
        if t % 2 == 0 or t == 13:
            c = t // 2 + 1
            tags = f'W{2 * c}+W{2 * c + 1}' if t != 13 else 'W16+W17+X16+X17'
            if t in ((2, 6, 10) if J4 else (4, 8, 12)): tags += f'+J{t // 4 - (0 if J4 else 1)}'
            G.sc[62] += [f'WAITVM {tags} lg0', 's_barrier']
        if t == 0 and OPT['su'] != '0':
            P_ = Prog(); code_prefetch(P_, KNAME, 'L_code_end', 8, 252, 2, first=1, tag='b')
            G.v[63] += [Ins(x.text.replace('global_load_dword v', 'global_load_dword a'), x.tag) for x in P_.L]
        if t < 3:
            n0, n1 = ([0, 62, len(DEF_V), len(DEF_V)] if J4 else [0, 40, 95, len(DEF_V)])[t:t + 2]
            for i, x in enumerate(DEF_V[n0:n1]): G.v[(i * 62) // (n1 - n0)].append(x)
        if t in (1, 2, 4, 6) and DEF_S:
            for g in range(41, 62):
                if DEF_S and not G.sc[g]: G.sc[g] += DEF_S.pop(0).split('|')
            if t == 6:
                for g in range(4, 40):
                    pass
        if t in (8, 10) and DEF_S:
            for g in range(41, 62):
                if DEF_S and not G.sc[g]: G.sc[g] += DEF_S.pop(0).split('|')
        if t == 11: assert not DEF_S, len(DEF_S)
        if OPT['qtl']:
            G.v[3].append('s_memtime s[98:99]'); G.v[40].append(f's_mov_b32 s{64 + t}, s98')
        A.extend(G.weave(mf))
    stamp(A, 4)
    gsu = f"""s_and_b32 s50, s2, 6
s_lshl_b32 s50, s50, 3
s_lshr_b32 s51, s2, 5
s_lshl_b32 s51, s51, 1
s_add_u32 s50, s50, s51
s_lshr_b32 s51, s{sW}, 1
s_add_u32 s50, s50, s51
s_lshl_b32 s50, s50, 19
s_and_b32 s51, s2, 1
s_lshl_b32 s51, s51, 18
s_add_u32 s50, s50, s51
s_and_b32 s51, s{sW}, 1
s_lshl_b32 s51, s51, 11
s_add_u32 s50, s50, s51
s_add_u32 s{SGO}, s{sWS}, s50|s_addc_u32 s{SGO+1}, s{sWS+1}, 0
s_mov_b32 s{SGO+2}, {262144 - 2048}
s_and_b32 s50, s2, 4
s_bfe_u32 s51, s2, 0x20003
s_add_u32 s50, s50, s51
s_lshl_b32 s50, s50, 1
s_and_b32 s51, s2, 1
s_add_u32 s50, s50, s51
s_mul_i32 s50, s50, {64 * 9216}
s_add_u32 s50, s50, {WS_WO}
s_add_u32 s{SGW}, s{sWS}, s50|s_addc_u32 s{SGW+1}, s{sWS+1}, 0
s_mov_b32 s{SGW+2}, {64 * 9216}""".split('\n')
    NG = 288
    G = Gaps(NG + 8)
    mf = []; ref = []
    UR = [unit_reads(n) for n in range(8)]
    XR = x_reads(16) + x_reads(17)
    K0 = k_reads(0); K1 = k_reads(1)
    CV_ = [conv(n) for n in range(8)]
    ref += XR
    for n in range(8):
        h, u = n >> 2, n & 3
        m = [Ins(mfma(QACC(h, 2 * u + tt, qt), uw(n, k, tt), f'v{XF(14 + k, qt)}', QACC(h, 2 * u + tt, qt))) for k in range(4) for tt in range(2) for qt in range(4)]
        mf += m
        ref += (UR[n][8:] if n == 0 else UR[n]) + m + CV_[n][2]
    m = [Ins(x) for x in qk_mfmas(0)]
    mf += m; ref += K0 + m + K1
    if OPT['jo'] == '4':
        k0 = int(OPT['kv0'])
        for i, jobs in enumerate([dma_kk(0), dma_vv(0), dma_kk(1), dma_vv(1), dma_kk(2)]):
            st_ = (215 - k0) // 20
            G.place_dma(jobs, [k0 + st_ * (4 * i + x) for x in range(4)])
        kv = {1: k0 + st_ * 12}
    else:
        JS = [jstore(i) for i in range(9)]
        ref = [x[0][1] for x in JS] + ref
        order = [6, 8, 7, 0, 1, 2, 3, 4, 5]
        jp = [17, 24, 48, 76, 100, 124, 152, 176, 200]; fz = 220; kv = {0: 36, 1: 104, 2: 164}
        for i, g in zip(order, jp): G.place_dma(JS[i], [g])
        G.v[fz - 2].append(f'v_mov_b32 v{VPA}, 0')
        G.mem[fz].append(Ins(cl(f'buffer_store_dword v{VPA}, v{VOFFO}, {srd(SFL)}, 0 offen {OPT["st"]}'), 'Fz'))
        for i, jobs in enumerate([dma_kk(0), dma_vv(1), dma_kk(2)]):
            G.place_dma(jobs, [kv[i] + 14 * x for x in range(4)])
    G.place_dma(dma_kk(3), [250, 258, 266, 274])
    G.sc[kv[1] - 3].append('WAITLG rX16')
    gi = 260
    for x in gsu:
        while G.sc[gi]: gi += 1
        G.sc[gi] += x.split('|')
    BAR = 32 * 7 + 9
    G.sc[BAR] += ['WAITVM KK0 lg0', 's_barrier']
    def put(ins, g, lim=None):
        while G.mem[g] or (BAR - 5 <= g < BAR): g += 1
        assert lim is None or g <= lim, (ins.text, g, lim)
        G.mem[g].append(ins); return g
    cur = 0
    for n in range(8):
        V, D, _ = CV_[n]
        g0 = 32 * (n + 1) + 1; span = 30
        vp = [g0 + (i * span) // len(V) for i in range(len(V))]
        for x, g in zip(V, vp): G.v[g].append(x)
        for i, d in D: cur = put(d, max(cur, vp[i] + 1))
    g = 0
    for r in XR[:2] + XR[4:6] + UR[0][8:12] + XR[2:4] + XR[6:] + UR[0][12:]: g = put(r, g)
    for n in range(1, 8):
        for i, r in enumerate(UR[n]):
            g = put(r, max(g, 32 * (n - 1) + (i * 3) // 2), lim=min(32 * n + 2 * i - 5, BAR - 6))
    g = BAR
    for i, r in enumerate(K0): g = put(r, max(g, BAR + 2 * i), lim=256 + 4 * i - 6)
    for i, r in enumerate(K1): g = put(r, max(g, 256 + 4 * i + 4))
    if OPT['stamps'] and not OPT['qtl']: G.sc[257].append('s_memtime s[74:75]')
    if OPT['qtl']:
        for n in range(9): G.v[32 * n + 3].append('s_memtime s[98:99]'); G.v[32 * n + 25].append(f's_mov_b32 s{78 + n}, s98')
    out = [I(x) for x in G.weave(mf)]
    check_order(ref, out, 'QB')
    A.extend(out)
    ini = init_stream(0)
    A.extend(ini[:40])
    A('WAITLG rQ7')
    vv = flat(dma_vv(2))
    for i in range(4): A.extend(vv[-4 + i:][:1] if i else vv[:3]); A.extend(ini[40 + 12 * i:52 + 12 * i])

def seg_name(j):
    if j == 0 or (j == 32 and not OPT['w1']): return 's0'
    if j == 32: return 's32'
    if j == 31: return 'sp31'
    if j == 63: return 'fin31'
    if j >= 56: return f'p{j}'
    return f'r{j % 8}'

def gen():
    A = Prog()
    setup(A)
    q_phase(A)
    LAG = OPT['lag']
    SH = 4 if LAG else 2
    if LAG:
        sms = lambda j: lagged(softmax_stream(j))
        dn_ = undense
    else:
        sms = softmax_stream; dn_ = dense
    st = sms(0)
    A.extend(dn_(st[:32 + SH]))
    carry = st[32 + SH:]
    stamp(A, 6)
    if OPT['tl']: A('s_mov_b32 s97, 0')
    def tagsof(which, t):
        if which == 'V' and t < 6: return f'VV{t // 2}'
        if which == 'K' and t < 8: return f'KK{t // 2}'
        return f'{which}{t}'
    GA = [4, 5, 6]
    def WB(s, n): return 128 + (s & 1) * 36 + n * 4
    def GACC(n, mm): i = n * 2 + mm; return 64 + i * 4 if i < 16 else 200 + (i - 16) * 4
    def OB(s, mm): return 128 + ((s + 8) % 16) * 8 + mm * 4
    def g_wreads(s):
        out = []
        for n in range(9):
            ad = ((s >> 2) % 4) * 36864 + (s & 3) * 9216 + n * 1024
            out.append(Ins(f'ds_read_b128 v[{WB(s, n)}:{WB(s, n) + 3}], v{GA[ad >> 16]} offset:{ad & 0xffff}', f'rG{s}'))
        return out
    def g_oloads(s):
        gen_, i, u = s >> 5, (s >> 2) & 7, s & 3
        off, sr = ((2 * i + gen_) * 16384 + u * 4096, SGO) if s < 64 else (i * 32768 + u * 4096, SG2O)
        return [([f's_mov_b32 s{sWe}, {off}'] if mm == 0 else [],
                 Ins(cl(f'buffer_load_dwordx4 a[{OB(s, mm)}:{OB(s, mm) + 3}], v{VOFFO}, {srd(sr)}, s{sWe} offen offset:{mm * 1024} {OPT["g_o"]}'), f'GO{s}'), []) for mm in range(2)]
    def g_w8(a, tag):
        return [([f's_mov_b32 s{sKo}, {a}', f's_add_u32 m0, s{sW2K}, {a}'] if o == 0 else [],
                 Ins(cl(f'buffer_load_dwordx4 v{VOFFK}, {srd(SGW)}, s{sKo} offen offset:{o * 1024} {OPT["g_w"]} lds'), tag), []) for o in range(2)]
    def g_wchunk(c):
        out = []
        for n in range(9):
            pre = [f's_add_u32 s{sKo}, s{sXo}, {(c % 16) * 36864 + (n // 4) * 4096}', f's_add_u32 m0, s{sXo}, {(c % 4) * 36864 + (n // 4) * 4096}'] if n % 4 == 0 else []
            out.append((pre, Ins(cl(f'buffer_load_dwordx4 v{VOFFO}, {srd(SGW if c < 16 else SG2W)}, s{sKo} offen offset:{(n % 4) * 1024} {OPT["g_w"]} lds'), f'GW{c}'), []))
        return out
    poll1 = f'buffer_load_dword v{VPOLL}, v{VPA}, {srd(SFP)}, 0 offen sc1'
    poll2 = f'buffer_load_dword v{VPOLL}, v{VPA}, {srd(SFP)}, 0 offen offset:16 sc1'
    pollc = f'buffer_load_dword v{VPOLL}, v{VPA}, {srd(SWS)}, 0 offen sc1'
    polld = f'buffer_load_dword v{VPOLL}, v{VPP}, {srd(SFP)}, 0 offen offset:64 sc1'
    ne1 = f'v_cmp_ne_u32 vcc, 1, v{VPOLL}'
    qcopy = [f'v_accvgpr_mov_b32 a{128 + i}, a{192 + i}' for i in range(64)]

    POST = []
    def fill(G, o, j, carry):
        jj = j & 31; nm = seg_name(j); p = j & 1
        if OPT['bar1'] and j < 63:
            tags = [tagsof('V', j), tagsof('K', j + 2)] + ([tagsof('V', 63)] if j == 62 else []) + (['Jst', 'Fz'] if j == 6 else [])
            G.sc[o] += [f'WAITVM {"+".join(tags)} lg0', 's_barrier']
        elif j % 2 == 0:
            tags = [tagsof('V', j), tagsof('V', j + 1), tagsof('K', j + 2), tagsof('K', j + 3)] + (['Jst', 'Fz'] if j == 6 else [])
            G.sc[o] += [f'WAITVM {"+".join(tags)} lg0', 's_barrier']
        last = len(carry) - 1
        if j < 63:
            for i, g in enumerate(carry): G.v[o + i] += g
        if jj != 0:
            G.v[o + 17].append(f'v_max3_f32 v{CT}, v{Lr(p, 0)}, v{Lr(p, 1)}, v{Lr(p, 2)}')
            G.v[o + last].append(f'v_max_f32 v{CT}, v{CT}, v{Lr(p, 3)}')
            G.v[o + last].append(f'v_cmp_lt_f32 vcc, s{sTHR}, v{CT}')
            G.sc[o + last + 1] += [f's_cbranch_vccnz L_st_{nm}', f'L_bk_{nm}:']
        ncarry = None
        if j < 63:
            PL = {'0': (sorted([3 + 4 * i for i in range(8)] + [4 + 4 * i for i in range(8)]), [35, 36, 39, 40, 43, 47, 51, 55], [10, 26, 42, 59]),
                  '1': ([1 + 2 * i for i in range(16)], [33, 35, 37, 39, 43, 47, 51, 55], [41, 49, 59, 63]),
                  '2': ([1, 3, 5, 7, 9, 13, 15, 17, 19, 21, 23, 25, 31, 33, 35, 37], [39, 41, 45, 47, 49, 51, 53, 55], [11, 27, 43, 59]),
                  '3': ([3, 5, 7, 9, 13, 15, 19, 21, 23, 25, 31, 33, 35, 37, 39, 41], [32, 36, 45, 47, 49, 51, 53, 55], [11, 27, 43, 59]),
                  }[OPT['pl']]
            for r, g in zip(v_reads(j), PL[0]): G.mem[o + g].append(r)
            if j + 2 < 64:
                for r, g in zip(k_reads(j + 2), PL[1]): G.mem[o + g].append(r)
            if j < 56: G.place_dma(dma_kv('K', j + 8) + dma_kv('V', j + 6), [o + x for x in PL[2]])
            else:
                W8 = lambda i: g_w8(i * 8192, f'P{i}')
                jobs = {56: dma_kv('V', 62) + W8(0) + W8(16) + g_oloads(0), 57: dma_kv('V', 63) + W8(1) + W8(17) + g_oloads(1),
                        58: W8(2) + g_oloads(2) + W8(8) + g_oloads(3), 59: W8(3) + g_oloads(4) + W8(9) + g_oloads(5),
                        60: W8(4) + g_oloads(6) + W8(10) + g_oloads(7), 61: W8(5) + W8(11),
                        62: W8(6) + W8(7) + W8(12) + W8(13) + g_oloads(8) + g_oloads(9)}[j]
                pos = {8: [4, 11, 20, 27, 36, 43, 57, 61], 4: [11, 27, 43, 59], 12: [4, 11, 18, 27, 34, 39, 43, 47, 51, 55, 59, 63]}[len(jobs)]
                G.place_dma(jobs, [o + x for x in pos])
                G.v[o + 0].append(f'v_mov_b32 v{VPG}, {j - 55}')
                G.mem[o + 2].append(Ins(cl(f'buffer_store_dword v{VPG}, v{VL4}, {srd(SFL)}, 0 offen offset:48 {OPT["st"]}'), 'PG'))
                if j == 61:
                    G.v[o + 4] += [f'v_mad_u32_u24 v{VPR}, v{VPR}, {OPT["bm"]}, {OPT["ba"]}']
                    G.v[o + 6] += [f'v_lshrrev_b32 v{VPR}, 3, v{VPR}']
                    G.v[o + 8] += [f'v_min_u32 v{VPR}, {OPT["bmax"]}, v{VPR}']
                    G.v[o + 10] += [f'v_add_u32 v{VPG}, 1, v{VPR}']
                    G.v[o + 12] += [f'v_lshlrev_b32 v{VPOLL}, 2, v1']
                    G.v[o + 14] += [f'v_add_u32 v{VPOLL}, {160 * 1024 - 16}, v{VPOLL}']
                    G.mem[o + 16].append(Ins(cl(f'buffer_store_dword v{VPG}, v{VL4}, {srd(SFL)}, 0 offen offset:64 {OPT["st"]}'), 'DG'))
                    G.mem[o + 18].append(Ins(f'ds_write_b32 v{VPOLL}, v{VPR}'))
            st = sms(j + 1)
            if (j + 1) & 31:
                for i, g in enumerate(st[:32 + SH]): G.v[o + 32 - SH + i] += g
            else:
                G.pack(qcopy, o + 1, o + 29)
                NB = int(OPT['nb'])
                prep, un = epilogue(False); _, up = epilogue(True)
                other = init_stream(j + 1) + dn_(st[:32 + SH])
                units = un[:NB] + up[NB:]
                seq = []; cut = None
                for k in range(16):
                    if k == NB: cut = len(seq)
                    seq += units[k][0]
                    if k: seq += units[k - 1][3]
                    seq += units[k][1] + units[k][2]
                    if k >= NB: seq += other[(k - NB) * len(other) // (16 - NB):(k - NB + 1) * len(other) // (16 - NB)]
                seq += units[15][3]
                G.pack(prep, o + 31, o + 39)
                pos = G.pack(seq[:cut], o + 39, o + 64)
                for x, g in zip(seq[:cut], pos):
                    x = I(x)
                    if x.mn == 'v_accvgpr_read_b32':
                        a = [r for r in x.rd if r[0] == 'a'][0][1]
                        assert g >= o + 32 + a // 4 + 2, (x.text, g)
                POST.extend(seq[cut:])
            ncarry = st[32 + SH:]
        if OPT['tl'] and j < 56 and j != 31:
            G.sc[o + 5].append('s_memtime s[98:99]'); G.sc[o + 7].append('s_memrealtime s[86:87]')
            G.sc[o + 52].append('s_waitcnt lgkmcnt(0)')
            G.v[o + 52] += ['v_cmp_eq_u32 s[50:51], s97, v2', 'v_mov_b32 v248, s98', 'v_mov_b32 v249, s86']
            G.v[o + 53] += ['v_cndmask_b32 v250, v250, v248, s[50:51]', 'v_cndmask_b32 v251, v251, v249, s[50:51]']
            G.sc[o + 54].append('s_add_u32 s97, s97, 1')
        if OPT['tl'] and j == 31:
            G.v[o + 1] += ['s_lshl_b32 s50, s2, 11', 's_add_u32 s50, s50, 0x80000', 'v_lshlrev_b32 v248, 3, v0', 'buffer_store_dwordx2 v[250:251], v248, s[56:59], s50 offen']
        if nm == 'r6': G.sc[o + 62].append(f's_sub_u32 s{sCnt}, s{sCnt}, 1')
        if nm == 'r7':
            if OPT['atom'] == '0':
                G.sc[o + 61].append(f's_sub_u32 s{sT0}, s{sKo}, 0x30000')
                G.sc[o + 62].append(f's_cmp_lt_u32 s{sT0}, 0x20000')
            else: G.sc[o + 62].append(f's_cmp_lt_u32 s{sKo}, 0x50000')
        return ncarry
    def mfs(j): return (qk_mfmas(j + 1) if j + 1 < 64 else [None] * 32) + pv_mfmas(j)

    j = 0
    while j < 64:
        nm = seg_name(j)
        A(f'.mark {nm}')
        G = Gaps(64)
        oc = carry
        carry = fill(G, 0, j, carry)
        if j == 63:
            P0 = v_reads(j)
            dn = dn_(oc)
            ol = flat(g_oloads(10) + g_oloads(11) + g_oloads(12))
            k = 0
            for i, x in enumerate(dn):
                P0.append(x)
                tgt = len(ol) * (i + 1) // len(dn)
                while k < tgt: P0.append(ol[k]); k += 1
            G.v[0] += P0
            G.v[18] += [f'v_mov_b32 v{GA[0]}, v{VOFFO}', f'v_add_u32 v{GA[1]}, 0x10000, v{VOFFO}', f'v_add_u32 v{GA[2]}, 0x20000, v{VOFFO}', f's_mul_i32 s{sXo}, s{sW}, 9216']
            G.sc[32] += ['WAITVM P4 lg0', 's_barrier']
            for r, g in zip(g_wreads(0), range(33, 60, 3)): G.mem[g].append(r)
            G.v[18] += [f'v_mov_b32 v{VPG}, {160 * 1024 - 16}']
            G.mem[34].append(Ins(f'ds_read_b32 v{VPR}, v{VPG}'))
            G.place_dma(g_w8(14 * 8192, 'P14') + g_w8(15 * 8192, 'P15') + g_oloads(13) + g_oloads(14), [35, 38, 43, 46, 50, 53, 58, 61])
            prep2, units2 = epilogue(int(OPT['epg']) == 0)
            epi, _, _ = epi_flat(units2)
            G.pack(prep2, 33, 48)
            ne = 0
            if int(OPT['epg']):
                ne = 28
                G.pack(epi[:ne], 48, 64)
            epi = epi[ne:]
        A.extend(G.weave(mfs(j)))
        def atomic():
            A('WAITVM Jst+Fz')
            A(f's_mov_b32 s{SWS}, s{sDBG}\ns_mov_b32 s{SWS + 1}, s{sDBG + 1}\ns_mov_b32 s{SWS + 2}, 4\nv_mov_b32 v{VFLAG}, 1\nv_lshlrev_b32 v{VPA}, 2, v0\nv_lshlrev_b32 v{VL4}, 7, v2')
            A(f'buffer_atomic_add v{VFLAG}, v{VPA}, {srd(SWS)}, 0 offen sc1', tag='Cwo')
        if j == 7:
            A('.mark b7')
            if OPT['atom'] == '0': atomic()
        if j == 39:
            A('.mark b39')
            A('WAITVM Ost')
            A(cl(f'buffer_store_dword v{VFLAG}, v{VL4}, {srd(SFL)}, 0 offen {OPT["st"]}'), tag='F1')
            if OPT['atom'] == '1': A(pollc, tag='Pc')
        if j == 47:
            A('.mark b47')
            A(f's_movk_i32 s{sMODE}, 256')
            A.extend(spin_check('c', pollc, f'v_cmp_gt_u32 vcc, s{sMODE}, v{VPOLL}'))
            A(f"""s_andn2_b32 s50, s2, 0x38
s_lshl_b32 s50, s50, 7
s_bfe_u32 s51, s2, 0x10005
s_lshl_b32 s51, s51, 3
s_add_u32 s50, s50, s51
s_lshr_b32 s51, s{sW}, 1
s_lshl_b32 s51, s51, 2
s_add_u32 s50, s50, s51
s_add_u32 s{SFP}, s{sWS}, {WS_FL}
s_addc_u32 s{SFP+1}, s{sWS+1}, 0
s_mov_b32 s{SFP+2}, 32768
v_and_b32 v{VPA}, 7, v0
v_lshlrev_b32 v{VPA}, 10, v{VPA}
v_add_u32 v{VPA}, s50, v{VPA}
s_xor_b32 s50, s2, 1
s_lshl_b32 s50, s50, 7
s_lshl_b32 s{sW4}, s{sW}, 2
v_mov_b32 v{VPP}, s50""")
            A(poll1, tag='PL1')
            code_prefetch(A, 'L_fin', 'L_code_end', 250, 252, 2)
        if j == 55:
            A('.mark b55')
            A.extend(spin_check('f1', poll1, ne1))
            A(f'v_add_u32 v{VOFFK}, s{sW2K}, v{VOFFO}')
            A(f'buffer_load_dword v{VPR}, v{VPP}, {srd(SFP)}, 0 offen offset:48 sc1', tag='PLP')
        if j == 31:
            A('.mark epi')
            stamp(A, 7)
            if OPT['atom'] == '1': atomic()
            A(f'v_mov_b32 v{VPA}, 0')
            if OPT['atom'] == '0': A(pollc, tag='Pc')
            A.extend(POST)
            A(f's_mov_b32 s{sHead}, 1\ns_mov_b32 s{sCnt}, 3')
            stamp(A, 8)
        j += 1
    A('.mark tail')
    stamp(A, 9)
    EPG = int(OPT['epg'])
    ek = 0
    G2 = int(OPT['g2s']); LO = int(OPT['lo']); LW = int(OPT['lw']); S0 = int(OPT['gs0']); S1 = int(OPT['gs1'])
    items = []
    NS = 64 + 4 * int(OPT['bmax']); G3 = 57
    for x in range(15, NS):
        for jb in g_oloads(x): items.append((x - LO, max(x - 15, G2 + 1 if x >= 32 else 0, G3 + 1 if x >= 64 else 0), jb))
    for c in range(4, NS // 4):
        for n, jb in enumerate(g_wchunk(c)): items.append((4 * c - 1 - LW - (8 - n) * 4 / 9.0, 4 * (c - 4) + 3, jb))
    items.sort(key=lambda z: z[0])
    sched = [[] for _ in range(NS)]
    cur = 0
    for i, (dl, rl, jb) in enumerate(items):
        k = int(S0 + i * (S1 - S0 + 1) / 206)
        k = max(min(k, int(dl)), rl, cur)
        while len(sched[k]) >= 6: k += 1
        sched[k].append(jb); cur = k
    def when(tag): return [k for k in range(NS) if any(x[1].tag == tag for x in sched[k])]
    CL = max(when('GO31')) + 1
    assert CL < min(when('GO48')) and CL < min(when('GW12')), (CL, when('GO48'), when('GW12'))
    assert NS == 64 or min(when('GW16')) > 47
    if EPG == 0:
        A.extend(epi); ek = len(epi)
    if OPT['verbose']: print([len(x) for x in sched])
    for s_ in range(NS):
        c, u = s_ >> 2, s_ & 3
        mf = [mfma(f'v{GACC(n, mm)}', f'v{WB(s_, n)}', f'a{OB(s_, mm)}', f'v{GACC(n, mm)}' if s_ else '0') for n in range(9) for mm in range(2)]
        G = Gaps(18)
        if u == 3 and c < NS // 4 - 1:
            tags = {0: 'P5+P6+P7+P8', 1: 'P9+P10+P11+P12+P13', 2: 'P14+P15+P16+P17'}.get(c, f'GW{c + 1}')
            G.sc[0] += [f'WAITVM {tags} lg0', 's_barrier']
            assert not [1 for q in sched[s_:] for x in q if x[1].tag == f'GW{c + 1}'], c
        jobs = sched[s_]
        for x in jobs:
            if x[1].tag.startswith('GO'): assert int(x[1].tag[2:]) >= s_ + 3, (s_, x[1].tag)
        jp = {0: [], 1: [10], 2: [5, 14], 3: [3, 9, 15], 4: [3, 8, 12, 16], 5: [2, 6, 10, 13, 16], 6: [2, 5, 8, 11, 14, 17]}[len(jobs)]
        G.place_dma(jobs, jp)
        if s_ + 1 < NS:
            for r, g in zip(g_wreads(s_ + 1), [g for g in range(18) if g not in jp]): G.mem[g].append(r)
        if s_ == int(OPT['p2s']): G.mem[17].append(Ins(poll2, 'PL2'))
        if OPT['gtl']:
            if s_ % 2 == 0: G.sc[12].append('s_memtime s[98:99]')
            elif s_ < 64: G.v[0].append(f'v_writelane_b32 v59, s98, {s_ // 2}')
        for g in range(18):
            n = EPG - (1 if G.mem[g] else 0)
            while n > 0 and ek < len(epi):
                x = epi[ek]
                if isinstance(x, Ins) and x.kind == 'vst':
                    if G.v[g]: break
                    G.mem[g].append(x); ek += 1; n -= 1; continue
                G.v[g].append(x); ek += 1
                if not x.startswith('s_'): n -= 1
        if s_ == int(OPT['f2s']):
            assert ek == len(epi), (ek, len(epi))
            G.sc[16].append('WAITVM Ost')
            G.mem[17].append(Ins(cl(f'buffer_store_dword v{VFLAG}, v{VL4}, {srd(SFL)}, 0 offen offset:16 {OPT["st"]}'), 'F2'))
        if s_ == G2: G.v[17] += spin_check('f2', poll2, ne1)
        if s_ == CL:
            G.v[15] += [f'v_readfirstlane_b32 s{sGive}, v{VPR}']
            G.v[17] += f"""s_sub_u32 s50, 16, s{sGive}
s_mul_i32 s{SGW+2}, s50, 36864
s_sub_u32 s50, 8, s{sGive}
s_lshl_b32 s50, s50, 15
s_min_u32 s{SGO+2}, s{SGO+2}, s50""".split('\n')
        if s_ == 41: G.mem[17].append(Ins(polld, 'PLD'))
        if s_ == 46:
            G.v[15] += spin_check('d', polld, f'v_cmp_eq_u32 vcc, 0, v{VPOLL}')
            G.v[16] += [f'v_readfirstlane_b32 s{sRem}, v{VPOLL}', f'v_xor_b32 v{VPA}, 128, v{VPA}']
            G.v[17] += f"""s_sub_u32 s{sRem}, s{sRem}, 1
s_min_u32 s{sRem}, s{sRem}, {OPT['bmax']}
s_bitcmp1_b32 s2, 0
s_cselect_b32 s50, 0, {2 * 64 * 9216}
s_mul_i32 s{SG2W+2}, s{sRem}, 36864
s_add_u32 s{SG2W}, s{SGW}, s50
s_addc_u32 s{SG2W+1}, s{SGW+1}, 0
s_sub_u32 s{SG2W}, s{SG2W}, s{SG2W+2}
s_subb_u32 s{SG2W+1}, s{SG2W+1}, 0
s_bitcmp1_b32 s2, 0
s_cselect_b32 s50, 0, {2 * 262144}
s_add_u32 s50, s50, 16384
s_lshl_b32 s51, s{sRem}, 15
s_add_u32 s{SG2O}, s{SGO}, s50
s_addc_u32 s{SG2O+1}, s{SGO+1}, 0
s_sub_u32 s{SG2O}, s{SG2O}, s51
s_subb_u32 s{SG2O+1}, s{SG2O+1}, 0
s_max_u32 s51, s51, {16384 + 2048}
s_sub_u32 s{SG2O+2}, s51, {16384 + 2048}
s_mov_b32 s{SG2O+3}, 0x20000
s_cmp_eq_u32 s{sRem}, 0
s_cselect_b32 s50, s{sGive}, 0
s_add_u32 s{sRem}, s{sRem}, 4
s_sub_u32 s{sRem}, s{sRem}, s50""".split('\n')
        if s_ == G3 - 4 and NS > 64: G.mem[17].append(Ins(poll2, 'PL3'))
        if s_ == G3 and NS > 64: G.v[17] += spin_check('f3', poll2, ne1)
        if u == 3 and 11 <= c < NS // 4 - 1:
            G.sc[18] += [f's_sub_u32 s{sRem}, s{sRem}, 1', 's_cbranch_scc1 L_xchg']
        if s_ == 39:
            G.v[17] += f"""s_lshl_b32 s50, s2, 2
s_add_u32 s50, s50, s{sW}
s_mul_i32 s50, s50, 9216
s_add_u32 s50, s50, {WS_X}
s_add_u32 s{SO}, s{sWS}, s50
s_addc_u32 s{SO+1}, s{sWS+1}, 0
s_mov_b32 s{SO+2}, 9216
s_xor_b32 s50, s2, 1
s_lshl_b32 s51, s50, 2
s_add_u32 s51, s51, s{sW}
s_mul_i32 s51, s51, 9216
s_add_u32 s51, s51, {WS_X}
s_add_u32 s{SV}, s{sWS}, s51
s_addc_u32 s{SV+1}, s{sWS+1}, 0
s_mov_b32 s{SV+2}, 9216
s_and_b32 s50, s2, 2
s_lshl_b32 s50, s50, 2
s_lshr_b32 s51, s2, 5
s_add_u32 s50, s50, s51
s_lshl_b32 s50, s50, 2
s_add_u32 s50, s50, s{sW}
s_lshl_b32 s50, s50, 1
s_and_b32 s51, s2, 1
s_add_u32 s50, s50, s51
s_mul_i32 s50, s50, {16 * 2304}
s_bfe_u32 s51, s2, 0x10002
s_mul_i32 s51, s51, 1152
s_add_u32 s50, s50, s51
s_bfe_u32 s51, s2, 0x20003
s_mul_i32 s51, s51, 288
s_add_u32 s50, s50, s51
s_add_u32 s{SOUT}, s{sOUT}, s50
s_addc_u32 s{SOUT+1}, s{sOUT+1}, 0
s_mov_b32 s{SOUT+2}, {15 * 2304 + 288}""".split('\n')
        if 40 <= s_ < 45:
            k = s_ - 40
            vv = f"""v_add_u32 v28, {64 * k}, v2
v_mul_u32_u24 v29, 3641, v28
v_lshrrev_b32 v29, 16, v29
v_mul_u32_u24 v30, 18, v29
v_sub_u32 v30, v28, v30
v_lshlrev_b32 v30, 4, v30
v_mad_u32_u24 v{32 + k}, v29, s{sT0}, v30
v_mul_u32_u24 v29, 304, v29
v_add3_u32 v{44 + k}, v29, v30, v31""".split('\n')
            if k == 0:
                vv = [f's_movk_i32 s{sT0}, 2304', 'v_lshlrev_b32 v31, 13, v1', 'v_and_b32 v29, 15, v2', 'v_mul_u32_u24 v29, 304, v29', 'v_lshrrev_b32 v30, 4, v2',
                      'v_lshl_add_u32 v29, v30, 3, v29', 'v_add_u32 v39, v29, v31', f'v_add_u32 v37, 0x1000, v{VOFFO}', f'v_add_u32 v38, 0x2000, v{VOFFO}'] + vv
            for i, x in enumerate(vv): G.v[i].append(x)
        A.extend(G.weave(mf))
    A('L_xchg:')
    stamp(A, 10)
    A('s_nop 5\ns_bitcmp1_b32 s2, 0\ns_cbranch_scc1 L_x1')
    vo3 = [VOFFO, 37, 38]
    pollx = f'buffer_load_dword v{VPOLL}, v{VPP}, {srd(SFP)}, s{sW4} offen offset:32 sc1'
    for kh in range(2):
        if kh: A('L_x1:')
        for n in range(9):
            A(cl(f'buffer_store_dwordx4 v[{GACC(n, 1 - kh)}:{GACC(n, 1 - kh) + 3}], v{vo3[n // 4]}, {srd(SO)}, 0 offen offset:{(n % 4) * 1024} {OPT["st"]}'))
        if kh:
            A('s_nop 1')
            for n in range(9):
                for r in range(0, 4, 2): A(f'v_mov_b64 v[{GACC(n, 0) + r}:{GACC(n, 0) + r + 1}], v[{GACC(n, 1) + r}:{GACC(n, 1) + r + 1}]')
        else:
            A('s_branch L_x2')
    A('L_x2:')
    A('s_waitcnt vmcnt(0) lgkmcnt(0)')
    A(cl(f'buffer_store_dword v{VFLAG}, v{VL4}, {srd(SFL)}, 0 offen offset:32 {OPT["st"]}'))
    A(pollx)
    A('s_barrier')
    A.extend(spin_check('x', pollx, ne1))
    for n in range(9):
        A(f'buffer_load_dwordx4 v[{128 + 4 * n}:{131 + 4 * n}], v{vo3[n // 4]}, {srd(SV)}, 0 offen offset:{(n % 4) * 1024} sc1')
    for n in range(9):
        a = GACC(n, 0); b = 128 + 4 * n
        for r in range(0, 4, 2): A(f'v_pk_add_f32 v[{a + r}:{a + r + 1}], v[{a + r}:{a + r + 1}], v[{b + r}:{b + r + 1}]')
        A(f'v_cvt_pk_bf16_f32 v{b}, v{a}, v{a + 1}\nv_cvt_pk_bf16_f32 v{b + 1}, v{a + 2}, v{a + 3}')
        A(f'ds_write_b64 v39, v[{b}:{b + 1}] offset:{n * 32}')
    for k in range(5): A(f'ds_read_b128 v[{168 + 4 * k}:{171 + 4 * k}], v{44 + k}')
    for k in range(5): A(f'buffer_store_dwordx4 v[{168 + 4 * k}:{171 + 4 * k}], v{32 + k}, {srd(SOUT)}, 0 offen {OPT["out_st"]}'.rstrip())
    if OPT['stamps']:
        A('s_waitcnt vmcnt(0)')
        stamp(A, 11)
        if OPT['gtl']:
            A('s_lshl_b32 s50, s2, 10\ns_add_u32 s50, s50, 0x80000\nv_lshlrev_b32 v42, 2, v0\nbuffer_store_dword v59, v42, s[56:59], s50 offen')
        store_stamps(A, 7)
    A('L_end:\ns_endpgm')
    A.resolve_waits()
    rep = []
    A.fix_hazards(rep)
    segs = {}
    for n, L in split_marks(A.L): segs.setdefault(n, []).append(L)
    M = {n: merge_segments(v) for n, v in segs.items()}
    if OPT['hole']:
        L = M['_start']; k = len(L) - 1
        while L[k].kind != 'mfma': k -= 1
        out = L[:k + 1]; since = 0; q = 0
        for x in L[k + 1:]:
            out.append(x); since += 2 if x.kind == 'trans' else 1
            if since >= 2 and x.kind in ('valu', 'trans'):
                out.append(Ins(mfma('a0', f'a{128 + 4 * (q % 16)}', f'a{128 + 4 * ((q // 3) % 16)}', 'a0'))); q += 1; since = 0
        M['_start'] = out
    F = Prog()
    F.extend(M['_start'])
    F('L_s0:')
    F.extend(M['s0'])
    F('s_branch L_r1\n.p2align 6\nL_r0:')
    F.extend(M['r0'])
    F('L_r1:')
    for k in range(1, 7): F.extend(M[f'r{k}'])
    F('s_cbranch_scc1 L_sp')
    F.extend(M['r7'])
    F(f's_cbranch_scc1 L_r0\ns_cmp_eq_u32 s{sKo}, 0x80000\ns_cbranch_scc1 L_fin\ns_cmp_eq_u32 s{sKo}, 0x70000\ns_cbranch_scc1 L_b47\ns_cmp_eq_u32 s{sKo}, 0x60000\ns_cbranch_scc1 L_b39')
    for b in (7, 39, 47):
        F(f'L_b{b}:'); F.extend(M[f'b{b}']); F('s_branch L_r0')
    F('L_sp:')
    F.extend(M['sp31'])
    if OPT['w1']: F('s_branch L_r1')
    else:
        F.extend(M['epi']); F('s_branch L_s0')
    for nm, p, mode in [(f'r{k}', k & 1, 0) for k in range(8)] + [(f'p{k}', k & 1, 0) for k in range(56, 63)] + [('sp31', 1, 1), ('fin31', 1, 1)]:
        F(f'L_st_{nm}:\ns_mov_b32 s{sMODE}, {mode}\ns_call_b64 s[{sRET}:{sRET + 1}], L_fb{p}')
        if OPT['lag'] and mode == 0: F(softmax_stream(3 - p)[0][0])
        F(f's_branch L_bk_{nm}')
    F.extend(fallback(0).L); F.extend(fallback(1).L)
    for x in SPINS: F(x)
    F('L_fin:')
    F.extend(M['b55'])
    for k in range(56, 63): F.extend(M[f'p{k}'])
    F.extend(M['fin31'])
    F.extend(M['tail'])
    return F, rep

def build(path):
    A, rep = gen()
    hdr = open('cdna_kernels/' + NAME + '.s.ref').read().split('; Override launch')[0]
    t = hdr + '; @launch grid=(256,1,1) block=(256,1,1) lds=163840\n'
    t += '.amdgcn_target "amdgcn-amd-amdhsa--gfx950"\n.text\n' + MACROS
    t += prolog(KNAME) + A.text() + 'L_code_end:\n'
    t += kd(KNAME, 512, 100, 256)
    open(path, 'w').write(t)
    return rep, len(t)

if __name__ == '__main__':
    path = sys.argv[1]
    for kv in sys.argv[2:]:
        k, v = kv.split('=')
        assert k in OPT, k
        OPT[k] = (v == '1') if isinstance(OPT.get(k), bool) else v
    rep, n = build(path)
    from collections import Counter
    print('bytes', n, 'pads', Counter((a, b.split()[0]) for a, b in rep).most_common(12))
```

```python
import sys, math, struct
from common import *
from asmlib import *

OPT = dict(nt_kv='nt', nt_x='nt', nt_w='nt', st='sc1', g_o='sc1', g_w='sc1', stamps=False, tl=False, gtl=False,
           epg='4', f2s='10', p2s='23', g2s='25', gs0='6', gs1='58', lo='5', lw='4', w1=False, qtl=False, pl='2', lag=True, ost='sc1', nb='3', jo='2', verbose=False, su='0', pf='2', bar1=False, kv0='48', bm='5', ba='2', bmax='4', out_st='sc1', hole=False, atom='1', diag='0', l2n='0', l2p='nt', l2t='6', burst='0', l2s='1', l2g='44', l2='', tight='0', l2e='0')
WS_WO = 33554432
WS_X = 44 << 20
WS_FL = 56 << 20
WS_STAMP = 64 << 20
SCALE = math.log2(math.e) / math.sqrt(128.0)
def f2i(x): return struct.unpack('<I', struct.pack('<f', x))[0]
KNAME = NAME + '_kernel'

SK, SV, SX, SW_, SO, SWS, SWD, SFL = 4, 8, 12, 16, 20, 24, 28, 88
SGO, SGW, SFP, SOUT = 12, 16, 24, 28
sWS, sOUT, sDBG = 52, 54, 46
sW, sW2K, sW4K, sT0, sKo, sVo, sSC, sTHR, sXo, sRET, sMODE, sWe = 32, 33, 34, 35, 36, 37, 38, 40, 41, 42, 44, 45
sJ, sCnt, sHead, sOo = 48, 94, 95, 96
SG2W, SG2O, sGive, sRem, sW4 = 4, 92, 46, 47, 49
VPP, VPG, VPR = 41, 42, 43
def srd(n): return f's[{n}:{n+3}]'
VPA, KADDR, VADDR, VOFFK, VOFFV, LREG, ETMP, CT, NEGM, VOFFO, VFLAG, VPOLL, VL4 = 3, 4, 8, 16, 18, 20, 28, 40, 44, 60, 61, 62, 63
KF, VF, SB, PB, EP = 64, 96, 128, 192, 224
NE = 12
def S(p, kt, qt): return SB + p * 32 + (kt * 4 + qt) * 4
def P(p, qt): return PB + p * 16 + qt * 4
def Lr(p, qt): return LREG + p * 4 + qt
def O(T, qt): return (T * 4 + qt) * 4
def Q(h, qt, u): return 128 + h * 64 + (u * 4 + qt) * 4
VSV, VSK, WADDR, XADDR, VOFFW, VOFFX, VOFFJ, JADDR = 20, 24, 64, 80, 84, 88, 92, 3
CW0, CW1, CR = 61, 62, 63
def QACC(h, T, qt): return (f'v{128 + (T * 4 + qt) * 4}' if h == 1 else f'a{(T * 4 + qt) * 4}')
def XF(t, qt): return (28 if (t >> 1) & 1 else 96) + ((t & 1) * 4 + qt) * 4
NWS = 24
def WF(slot): return 128 + slot * 4
BLK = 16384
def wblock(t): return [(4, 1), (7, 3), (8, 9)][(t >> 1) % 3][t & 1]
def xblock(p): return [2, 5, 6][p % 3]
def cl(s): return ' '.join(s.split())
def rng(r, n): return f'{r[0]}[{int(r[1:])}:{int(r[1:]) + n - 1}]'

def dma_kv(which, tile):
    base = (0 if which == 'K' else 65536) + (tile % 8) * 8192
    s, vo, so = (SK, VOFFK, sKo) if which == 'K' else (SV, VOFFV, sVo)
    tag = f'{which}{tile}'; nt = OPT['nt_kv']
    return [([f's_add_u32 m0, s{sW2K}, {base}'], Ins(cl(f'buffer_load_dwordx4 v{vo}, {srd(s)}, s{so} offen {nt} lds'), tag), []),
            ([], Ins(cl(f'buffer_load_dwordx4 v{vo + 1}, {srd(s)}, s{so} offen offset:1024 {nt} lds'), tag), [f's_add_u32 s{so}, s{so}, 8192'])]
def dma4(s, vo, off, blk, tag, nt, so=sWe):
    return [([f's_mov_b32 s{so}, {off}', f's_add_u32 m0, s{sW4K}, {blk * BLK}'] if n == 0 else [],
             Ins(cl(f'buffer_load_dwordx4 v{vo + n}, {srd(s)}, s{so} offen offset:{n * 1024} {nt} lds'), tag), []) for n in range(4)]
def dma_w(t): return dma4(SW_, VOFFW, t * 32 * 8192, wblock(t), f'W{t}', OPT['nt_w'])
def dma_x(p): return dma4(SX, VOFFX, (p >> 1) * 128 + (p & 1) * 32 * 1152, xblock(p), f'X{p}', OPT['nt_x'], sXo)
def dma_kk(i): return dma4(SK, VSK, i * 16384, i, f'KK{i}', OPT['nt_kv'])
def dma_vv(i): return dma4(SV, VSV, i * 16384, 4 + i, f'VV{i}', OPT['nt_kv'])
def flat(dl):
    out = []
    for pre, ins, post in dl: out += pre + [ins] + post
    return out

def I(x): return x if isinstance(x, Ins) else Ins(x)
def cost(x):
    k = x.kind
    return {'trans': 8, 'valu': 4, 'dsr': 4, 'dsw': 4, 'dma': 12, 'vld': 12, 'vst': 12}.get(k, 0 if k in ('label', 'dir', 'waitvm', 'waitlg') else 4)
class Gaps:
    def __init__(self, n):
        self.n = n; self.sc = [[] for _ in range(n + 1)]; self.mem = [[] for _ in range(n)]; self.v = [[] for _ in range(n)]
    def place_dma(self, dl, gaps):
        assert len(gaps) >= len(dl), (len(gaps), len(dl))
        for (pre, ins, post), g in zip(dl, gaps):
            for k, s in enumerate(pre): self.sc[g - len(pre) + k].append(s)
            self.mem[g].append(ins)
            for k, s in enumerate(post): self.sc[g + 1 + k].append(s)
    def load(self, g): return sum(cost(I(x)) for x in self.mem[g] + self.v[g])
    def pack(self, items, g0, g1):
        items = [I(x) for x in items]
        base = [self.load(g) for g in range(self.n)]
        for L in range(8, 400, 2):
            g = g0; used = 0; vhere = False; pos = []; ok = True
            for x in items:
                c = cost(x); ismem = x.kind in ('dsr', 'dsw', 'dma', 'vld', 'vst')
                while True:
                    if g >= g1: ok = False; break
                    room = L - base[g] - used
                    if ismem and (vhere or (self.mem[g] and L < 20)): fit = False
                    else: fit = c <= room or (c == 0) or (used == 0 and base[g] == 0)
                    if fit: break
                    g += 1; used = 0; vhere = False
                if not ok: break
                pos.append(g); used += c
                if not ismem: vhere = True
                else: vhere = True if False else vhere
            if ok: break
        assert ok
        for x, g in zip(items, pos):
            (self.mem if x.kind in ('dsr', 'dsw', 'dma', 'vld', 'vst') else self.v)[g].append(x)
        return pos
    def weave(self, mf, a=0, b=None):
        out = []
        b = self.n if b is None else b
        for i in range(a, b):
            if i < len(mf) and mf[i] is not None: out.append(mf[i])
            out += self.sc[i] + self.mem[i] + self.v[i]
        if b == self.n: out += self.sc[self.n]
        return out

def k_reads(tile):
    return [Ins(f'ds_read_b128 v[{KF + (kt * 4 + u) * 4}:{KF + (kt * 4 + u) * 4 + 3}], v{KADDR + u} offset:{(tile % 8) * 8192 + kt * 4096}', f'rK{tile}')
            for kt in range(2) for u in range(4)]
def v_reads(tile):
    return [Ins(f'ds_read_b64_tr_b16 v[{VF + T * 4 + s * 2}:{VF + T * 4 + s * 2 + 1}], v{VADDR + T} offset:{(tile % 8) * 8192 + s * 4096}', f'rV{tile}')
            for T in range(8) for s in range(2)]
def qk_mfmas(j):
    h = 1 if j in ((32, 33) if OPT['w1'] else (32,)) else 0
    p = j & 1; first = (j & 31) == 0
    out = []
    for kt in range(2):
        for u in range(4):
            for qt in range(4):
                c = f'v{S(p, kt, qt)}' if u else ('0' if first else f'v{NEGM + qt * 4}')
                out.append(mfma(f'v{S(p, kt, qt)}', f'v{KF + (kt * 4 + u) * 4}', f'a{Q(h, qt, u)}', c))
    return out
def pv_mfmas(j):
    p = j & 1; first = (j & 31) == 0
    return [mfma(f'a{O(T, qt)}', f'v{VF + T * 4}', f'v{P(p, qt)}', '0' if first else f'a{O(T, qt)}') for T in range(8) for qt in range(4)]

def softmax_stream(j):
    p = j & 1; first = (j & 31) == 0
    out = []
    for qt in range(4):
        for k in range(8):
            e = ETMP + (qt * 8 + k) % NE
            src = S(p, k >> 2, qt) + (k & 3)
            out.append([f'v_exp_f32 v{e}, v{src}'])
            l = Lr(p, qt)
            if k == 0: a = f'v_mov_b32 v{l}, v{e}' if first else f'v_add_f32 v{l}, v{Lr(1 - p, qt)}, v{e}'
            else: a = f'v_add_f32 v{l}, v{l}, v{e}'
            g = [a]
            if k & 1:
                e0 = ETMP + (qt * 8 + k - 1) % NE
                g.append(f'v_cvt_pk_bf16_f32 v{P(p, qt) + (k >> 1)}, v{e0}, v{e}')
            out.append(g)
    return out
def lagged(stream):
    out = [[] for _ in range(len(stream) + 2)]
    for i, g in enumerate(stream): out[i + (2 if i & 1 else 0)] += g
    return out
def undense(st):
    return [x for g in st for x in g]
def dense(stream):
    out = []; prev = []
    for i in range(0, len(stream), 2):
        out += stream[i]; out += prev; prev = stream[i + 1] if i + 1 < len(stream) else []
    return out + prev
def rowmax(p, qt, dst):
    s0 = S(p, 0, qt); s1 = S(p, 1, qt)
    return [f'v_max3_f32 v{dst}, v{s0}, v{s0 + 1}, v{s0 + 2}', f'v_max3_f32 v{dst}, v{dst}, v{s0 + 3}, v{s1}',
            f'v_max3_f32 v{dst}, v{dst}, v{s1 + 1}, v{s1 + 2}', f'v_max_f32 v{dst}, v{dst}, v{s1 + 3}']
def xlane(op, regs, tmps):
    out = []
    for sw in ('v_permlane16_swap_b32', 'v_permlane32_swap_b32'):
        out += [f'v_mov_b32 v{t}, v{r}' for r, t in zip(regs, tmps)]
        out += [f'{sw} v{t}, v{r}' for r, t in zip(regs, tmps)]
        out += [f'{op} v{r}, v{r}, v{t}' for r, t in zip(regs, tmps)]
    return out
def init_stream(j):
    p = j & 1
    m = [NEGM + qt * 4 for qt in range(4)]; t = [NEGM + qt * 4 + 1 for qt in range(4)]
    out = []
    rm = [rowmax(p, qt, m[qt]) for qt in range(4)]
    for k in range(4): out += [rm[qt][k] for qt in range(4)]
    out += xlane('v_max_f32', m, t)
    for qt in range(4):
        for k in range(8):
            s = S(p, k >> 2, qt) + (k & 3)
            out.append(f'v_sub_f32 v{s}, v{s}, v{m[qt]}')
    for qt in range(4):
        for r in (3, 2, 1, 0): out.append(f'v_sub_f32 v{NEGM + qt * 4 + r}, 0, v{m[qt]}')
    return out

def epilogue(packed):
    l = [Lr(1, qt) for qt in range(4)]
    t = [EP + 8 + i for i in range(4)]
    prep = xlane('v_add_f32', l, t)
    rc = [EP + 2 * i for i in range(4)]
    prep += [f'v_rcp_f32 v{rc[qt]}, v{l[qt]}' for qt in range(4)]
    units = []
    for k in range(16):
        u, qt = divmod(k, 4)
        b = EP + 8 + (k % 2) * 12
        rd = [f'v_accvgpr_read_b32 v{b + i}, a{O(2 * u + (i >> 2), qt) + (i & 3)}' for i in range(8)]
        if packed: mu = [f'v_pk_mul_f32 v[{b + 2 * i}:{b + 2 * i + 1}], v[{b + 2 * i}:{b + 2 * i + 1}], v[{rc[qt]}:{rc[qt] + 1}] op_sel_hi:[1,0]' for i in range(4)]
        else: mu = [f'v_mul_f32 v{b + i}, v{rc[qt]}, v{b + i}' for i in range(8)]
        cv = [f'v_cvt_pk_bf16_f32 v{b + 8 + i}, v{b + 2 * i}, v{b + 2 * i + 1}' for i in range(4)]
        st = [Ins(cl(f'buffer_store_dwordx4 v[{b + 8}:{b + 11}], v{VOFFO}, {srd(SO)}, s{sOo} offen offset:{qt * 1024} {OPT["ost"]}'), 'Ost')]
        if qt == 3: st.append(f's_add_u32 s{sOo}, s{sOo}, 4096')
        units.append((rd, mu, cv, st))
    return prep, units
def epi_flat(units):
    L = []; first = []; lastrd = []
    for k, (rd, mu, cv, st) in enumerate(units):
        first.append(len(L)); L += rd; lastrd.append(len(L) - 1)
        if k: L += units[k - 1][3]
        L += mu + cv
    L += units[-1][3]
    return L, first, lastrd

SPINS = []
def spin_check(name, load, cmp):
    SPINS.append(f"""L_spin_{name}:
s_mov_b32 s{sT0}, 0x40000
L_spin2_{name}:
s_sleep 1
{load}
s_sub_u32 s{sT0}, s{sT0}, 1
s_cbranch_scc1 L_back_{name}
s_waitcnt vmcnt(0)
{cmp}
s_nop 1
s_cbranch_vccnz L_spin2_{name}
s_branch L_back_{name}""")
    return [cmp, f's_cbranch_vccnz L_spin_{name}', f'L_back_{name}:']

def fallback(p):
    A = Prog()
    A(f'L_fb{p}:')
    A('s_nop 7\ns_nop 7')
    m = [EP + i for i in range(4)]; t = [EP + 4 + i for i in range(4)]; f = [EP + 8 + i for i in range(4)]
    rm = [rowmax(p, qt, m[qt]) for qt in range(4)]
    for k in range(4): A.extend([rm[qt][k] for qt in range(4)])
    A.extend(xlane('v_max_f32', m, t))
    for qt in range(4): A(f'v_max_f32 v{m[qt]}, 0, v{m[qt]}')
    for qt in range(4): A(f'v_exp_f32 v{f[qt]}, -v{m[qt]}')
    for qt in range(4):
        for k in range(8):
            s = S(p, k >> 2, qt) + (k & 3)
            A(f'v_sub_f32 v{s}, v{s}, v{m[qt]}')
        for r in range(4): A(f'v_sub_f32 v{NEGM + qt * 4 + r}, v{NEGM + qt * 4 + r}, v{m[qt]}')
        A(f'v_mul_f32 v{Lr(1 - p, qt)}, v{Lr(1 - p, qt)}, v{f[qt]}')
    A(f's_cmp_lg_u32 s{sMODE}, 0')
    A(f's_cbranch_scc1 L_fb{p}_b')
    for qt in range(4):
        for k in range(8):
            s = S(1 - p, k >> 2, qt) + (k & 3)
            A(f'v_sub_f32 v{s}, v{s}, v{m[qt]}')
    A(f'L_fb{p}_b:')
    for T in range(8):
        for qt in range(4):
            b = EP + 12 + ((T * 4 + qt) % 2) * 4
            for r in range(4): A(f'v_accvgpr_read_b32 v{b + r}, a{O(T, qt) + r}')
            for r in range(4): A(f'v_mul_f32 v{b + r}, v{b + r}, v{f[qt]}')
            for r in range(4): A(f'v_accvgpr_write_b32 a{O(T, qt) + r}, v{b + r}')
    A.extend(dense(softmax_stream(2 + p)))
    A('s_nop 3')
    A(f's_setpc_b64 s[{sRET}:{sRET + 1}]')
    A.fix_hazards()
    return A

def stamp(A, idx, base=64):
    if OPT['stamps'] and not OPT['qtl']: A(f's_memtime s[{base + idx * 2}:{base + idx * 2 + 1}]')
def store_stamps(A, n):
    A('s_memrealtime s[62:63]\ns_waitcnt lgkmcnt(0)')
    A('v_lshrrev_b32 v1, 6, v0\ns_lshl_b32 s50, s2, 2\nv_add_u32 v1, s50, v1\nv_lshlrev_b32 v1, 7, v1')
    A('v_and_b32 v2, 63, v0\nv_cmp_eq_u32 vcc, 0, v2\ns_and_saveexec_b64 s[50:51], vcc')
    for i in range(n):
        for k in range(4): A(f'v_mov_b32 v{4 + k}, s{60 + i * 4 + k}')
        A(f'buffer_store_dwordx4 v[4:7], v1, s[56:59], 0 offen offset:{i * 16}')
        A('s_nop 1')

def code_prefetch(A, start, end, va, vd, n, first=0, tag=''):
    A(f's_getpc_b64 s[50:51]')
    A(f'L_pc{tag}_{start}:')
    if start == KNAME: A(f's_sub_u32 s50, s50, L_pc{tag}_{start}-{start}\ns_subb_u32 s51, s51, 0')
    else: A(f's_add_u32 s50, s50, {start}-L_pc{tag}_{start}\ns_addc_u32 s51, s51, 0')
    A(f'v_lshlrev_b32 v{va}, 7, v0')
    if first: A(f'v_add_u32 v{va}, {first * 0x8000}, v{va}')
    for i in range(n):
        A(f'v_min_u32 v{va + 1}, {end}-{start}-4, v{va}')
        A(f'global_load_dword v{vd + i}, v{va + 1}, s[50:51]', tag='pf')
        if i + 1 < n: A(f'v_add_u32 v{va}, 0x8000, v{va}')

DEF_V = []; DEF_S = []
def setup(A):
    A('s_cmp_ge_u32 s2, 256\ns_cbranch_scc1 L_end')
    A(f"""s_bfe_u32 s48, s2, 0x10002
s_mul_i32 s50, s48, 40
s_add_u32 s52, s0, s50
s_addc_u32 s53, s1, 0
s_load_dwordx2 s[{SX}:{SX+1}], s[52:53], 0
s_load_dwordx2 s[{SW_}:{SW_+1}], s[52:53], 24
s_lshr_b32 s51, s2, 7
s_mul_i32 s51, s51, 40
s_add_u32 s54, s0, s51
s_addc_u32 s55, s1, 0
s_load_dwordx2 s[{SK}:{SK+1}], s[52:53], 8
s_load_dwordx2 s[{SV}:{SV+1}], s[52:53], 16
s_load_dwordx2 s[{SWS}:{SWS+1}], s[54:55], 32
s_load_dwordx2 s[{SO}:{SO+1}], s[0:1], 96
s_load_dwordx4 s[92:95], s[0:1], 80""")
    if OPT['stamps']: A('s_memrealtime s[60:61]')
    stamp(A, 0)
    if OPT['pf'] == '1': code_prefetch(A, KNAME, 'L_code_end', 100, 252, 1)
    elif OPT['pf'] == '2':
        A(f'''s_getpc_b64 s[50:51]
L_pcx:
s_sub_u32 s50, s50, L_pcx-{KNAME}
s_subb_u32 s51, s51, 0
s_lshr_b32 s48, s2, 3
s_cmp_ge_u32 s48, 3
s_cbranch_scc1 L_nopf
s_lshl_b32 s48, s48, 15
v_lshlrev_b32 v100, 7, v0
v_add_u32 v100, s48, v100
v_min_u32 v100, L_code_end-{KNAME}-4, v100''')
        A('global_load_dword v252, v100, s[50:51]', tag='pf')
        A('L_nopf:')
    A(f"""s_and_b32 s46, s2, 6
s_lshl_b32 s46, s46, 1
s_lshr_b32 s48, s2, 6
s_add_u32 s46, s46, s48
s_and_b32 s47, s2, 1
s_lshl_b32 s47, s47, 3
s_bfe_u32 s48, s2, 0x30003
s_add_u32 s47, s47, s48
s_and_b32 s49, s46, 7
v_lshrrev_b32 v1, 6, v0
v_and_b32 v2, 63, v0
v_readfirstlane_b32 s{sW}, v1
v_lshrrev_b32 v97, 4, v2
v_lshrrev_b32 v100, 3, v2
v_lshl_add_u32 v100, v1, 6, v100
v_mul_u32_u24 v100, 1152, v100
s_lshl_b32 s{sW4K}, s{sW}, 12
v_and_b32 v101, 7, v2
v_xor_b32 v101, v101, v97
v_lshl_add_u32 v{VOFFX}, v101, 4, v100
v_xor_b32 v101, 4, v101
v_lshl_add_u32 v102, v101, 4, v100
v_add_u32 v{VOFFX + 1}, {8 * 1152 - 1024}, v102
v_add_u32 v{VOFFX + 2}, {2 * (8 * 1152 - 1024)}, v{VOFFX}
v_add_u32 v{VOFFX + 3}, {3 * (8 * 1152 - 1024)}, v102
v_lshrrev_b32 v100, 5, v2
v_and_b32 v101, 31, v2
v_and_b32 v102, 1, v1
v_lshl_add_u32 v102, v102, 2, v100
v_lshl_add_u32 v103, v1, 3, v100
v_lshlrev_b32 v103, 13, v103
v_lshlrev_b32 v104, 1, v102
v_xor_b32 v104, v104, v101
v_lshl_add_u32 v{VOFFW}, v104, 4, v103
v_xor_b32 v104, 64, v{VOFFW}
v_add_u32 v{VOFFW + 1}, {16384 - 1024}, v104
v_add_u32 v{VOFFW + 2}, {2 * (16384 - 1024)}, v{VOFFW}
v_add_u32 v{VOFFW + 3}, {3 * (16384 - 1024)}, v104
s_mul_i32 s50, s49, 294912
s_lshl_b32 s51, s47, 9
s_mov_b32 s{SX+2}, 294912
s_mov_b32 s{SX+3}, 0x20000
s_sub_u32 s{SW_+2}, {576 * 8192}, s51
s_mov_b32 s{SW_+3}, 0x20000
s_waitcnt lgkmcnt(0)""")
    stamp(A, 1)
    A(f"""s_add_u32 s{SX}, s{SX}, s50
s_addc_u32 s{SX+1}, s{SX+1}, 0
s_add_u32 s{SW_}, s{SW_}, s51
s_addc_u32 s{SW_+1}, s{SW_+1}, 0""")
    A.extend(flat(dma_w(0)) + flat(dma_x(0)) + flat(dma_x(1)) + flat(dma_w(1)))
    A(f"""v_and_b32 v96, 15, v2
v_and_b32 v98, 3, v2
v_bfe_u32 v99, v2, 2, 2
v_lshl_add_u32 v100, v97, 3, v99
v_and_b32 v101, 1, v97
v_lshl_add_u32 v101, v101, 2, v99
v_lshlrev_b32 v101, 5, v101
v_lshl_add_u32 v101, v100, 9, v101
v_lshl_add_u32 v101, v98, 3, v101
v_add_u32 v{WADDR}, {BLK}, v101""")
    for T in range(1, 8): A(f'v_xor_b32 v{WADDR + T}, {T * 32}, v{WADDR}')
    A(f"""v_lshrrev_b32 v100, 1, v96
v_xor_b32 v100, v100, v97
v_lshlrev_b32 v100, 4, v100
v_lshl_add_u32 v100, v96, 7, v100
v_lshl_add_u32 v100, v1, 12, v100
v_add_u32 v{XADDR}, {2 * BLK}, v100
v_xor_b32 v{XADDR + 1}, 64, v{XADDR}
v_add_u32 v{XADDR + 2}, {4 * BLK}, v{XADDR}
v_add_u32 v{XADDR + 3}, {4 * BLK}, v{XADDR + 1}""")
    if OPT['su'] == '0':
        A.extend(flat(dma_x(2)) + flat(dma_w(2)) + flat(dma_w(3)))
        if OPT['pf'] == '1': code_prefetch(A, KNAME, 'L_code_end', 100, 253, 2, first=1, tag='b')
    KVS = f"""s_lshl_b32 s50, s49, 23
s_lshl_b32 s51, s47, 19
s_add_u32 s50, s50, s51
s_add_u32 s{SK}, s{SK}, s50|s_addc_u32 s{SK+1}, s{SK+1}, 0
s_mov_b32 s{SK+2}, 0x80000
s_mov_b32 s{SK+3}, 0x20000
s_add_u32 s{SV}, s{SV}, s50|s_addc_u32 s{SV+1}, s{SV+1}, 0
s_mov_b32 s{SV+2}, 0x80000
s_mov_b32 s{SV+3}, 0x20000"""
    ne = int(OPT['l2e'])
    if ne:
        A(KVS.replace('|', '\n')); KVS = ''
        A(f'v_lshlrev_b32 v100, 7, v2\nv_mul_u32_u24 v101, {ne * 1024}, v1\nv_add_u32 v100, v100, v101\nv_cmp_le_u32 vcc, {ne * 8}, v2\nv_cndmask_b32 v100, v100, -1, vcc')
        A(f's_mov_b32 s50, {8 * 8192}\ns_mov_b32 s51, {6 * 8192}')
        A(cl(f'buffer_load_dword a254, v100, {srd(SK)}, s50 offen {OPT["l2p"]}'), tag='l2')
        A(cl(f'buffer_load_dword a253, v100, {srd(SV)}, s51 offen {OPT["l2p"]}'), tag='l2')
    V = DEF_V; a, b, c, d, l15, g = 92, 93, 94, 95, 61, 62
    V += [f'v_add_u32 v{WADDR + 8 + T}, {6 * BLK}, v{WADDR + T}' for T in range(8)]
    V += f"""v_lshlrev_b32 v{VOFFO}, 4, v2
v_and_b32 v{l15}, 15, v2
v_lshrrev_b32 v{g}, 4, v2
v_lshlrev_b32 v{a}, 11, v1
v_lshl_add_u32 v{a}, v{g}, 8, v{a}
v_lshl_add_u32 v{b}, v1, 3, v{g}""".split('\n')
    for o in range(2):
        V += f"""v_add_u32 v{c}, {4 * o}, v{b}
v_and_b32 v{d}, 15, v{c}
v_xor_b32 v{d}, v{d}, v{l15}
v_lshl_add_u32 v{VOFFK + o}, v{d}, 4, v{a}
v_and_b32 v{d}, 7, v{c}
v_lshlrev_b32 v{d}, 1, v{d}
v_xor_b32 v{d}, v{d}, v{l15}
v_lshl_add_u32 v{VOFFV + o}, v{d}, 4, v{a}""".split('\n')
    V += [f'v_lshlrev_b32 v{a}, 12, v1', f'v_lshl_add_u32 v{a}, v{g}, 8, v{a}']
    for n in range(4):
        V += f"""v_add_u32 v{c}, {4 * n}, v{g}
v_xor_b32 v{d}, v{c}, v{l15}
v_lshl_add_u32 v{VSK + n}, v{d}, 4, v{a}
v_and_b32 v{d}, 7, v{c}
v_lshlrev_b32 v{d}, 1, v{d}
v_xor_b32 v{d}, v{d}, v{l15}
v_lshl_add_u32 v{VSV + n}, v{d}, 4, v{a}""".split('\n')
    V += [f'v_xor_b32 v{a}, v{g}, v{l15}', f'v_lshlrev_b32 v{a}, 4, v{a}', f'v_lshl_add_u32 v{KADDR}, v{l15}, 8, v{a}']
    V += [f'v_xor_b32 v{KADDR + u}, {u * 64}, v{KADDR}' for u in range(1, 4)]
    V += f"""v_lshrrev_b32 v{a}, 2, v2
v_and_b32 v{b}, 7, v{a}
v_lshlrev_b32 v{b}, 5, v{b}
v_lshl_add_u32 v{b}, v{a}, 8, v{b}
v_and_b32 v{c}, 3, v2
v_lshl_add_u32 v{b}, v{c}, 3, v{b}
v_add_u32 v{VADDR}, 0x10000, v{b}
v_mul_u32_u24 v{a}, 384, v{a}
v_lshl_add_u32 v{a}, v{c}, 3, v{a}
v_mul_u32_u24 v{b}, 96, v1
v_add_u32 v{JADDR}, v{a}, v{b}""".split('\n')
    V += [f'v_xor_b32 v{VADDR + T}, {T * 32}, v{VADDR}' for T in range(1, 8)]
    V += f"""v_bfe_u32 v{a}, v2, 2, 1
v_lshlrev_b32 v{a}, 1, v{a}
v_bfe_u32 v{b}, v2, 3, 1
v_mul_u32_u24 v{b}, 3, v{b}
v_xor_b32 v{a}, v{a}, v{b}
v_lshlrev_b32 v{c}, 6, v{l15}
v_lshl_add_u32 v{c}, v1, 12, v{c}
v_add_u32 v{c}, {6 * BLK}, v{c}
v_xor_b32 v{b}, v{a}, v{g}
v_lshl_add_u32 v{CR}, v{b}, 4, v{c}
v_lshrrev_b32 v{b}, 1, v{g}
v_xor_b32 v{b}, v{b}, v{a}
v_lshl_add_u32 v{c}, v{b}, 4, v{c}
v_and_b32 v{b}, 1, v{g}
v_lshl_add_u32 v{CW0}, v{b}, 3, v{c}""".split('\n')
    for n in range(3):
        t = VOFFJ + n
        V += f"""v_add_u32 v{d}, {64 * n}, v2
v_mul_u32_u24 v{t}, 2731, v{d}
v_lshrrev_b32 v{t}, 16, v{t}
v_mul_u32_u24 v{CW1}, 24, v{t}
v_sub_u32 v{d}, v{d}, v{CW1}
v_lshl_add_u32 v{t}, v1, 3, v{t}
v_mul_u32_u24 v{t}, 1152, v{t}
v_lshl_add_u32 v{t}, v{d}, 4, v{t}
v_subrev_u32 v{t}, {n * 1024}, v{t}""".split('\n')
    V += [f'v_xor_b32 v{CW1}, 32, v{CW0}']
    S_ = f"""s_and_b32 s50, s2, 127
s_mul_i32 s50, s50, 36864
s_add_u32 s{SWS}, s{SWS}, s50|s_addc_u32 s{SWS+1}, s{SWS+1}, 0
s_mov_b32 s{SWS+2}, 36864
s_mov_b32 s{SWS+3}, 0x20000
s_lshl_b32 s{sW2K}, s{sW}, 11
{KVS}
s_mov_b32 s{sWS}, s{SO}
s_mov_b32 s{sWS+1}, s{SO+1}
s_mov_b32 s{sOUT}, s92
s_mov_b32 s{sOUT+1}, s93
s_lshr_b32 s50, s2, 7
s_lshl_b32 s50, s50, 9
s_and_b32 s51, s2, 64
s_add_u32 s50, s50, s51
s_bfe_u32 s51, s2, 0x10002
s_lshl_b32 s51, s51, 5
s_add_u32 s50, s50, s51
s_bfe_u32 s51, s2, 0x30003
s_lshl_b32 s51, s51, 2
s_add_u32 s50, s50, s51
s_and_b32 s51, s2, 3
s_add_u32 s50, s50, s51
s_mul_i32 s50, s50, 9216
s_add_u32 s50, s50, {WS_WO}
s_add_u32 s{SWD}, s{SO}, s50|s_addc_u32 s{SWD+1}, s{SO+1}, 0
s_mov_b32 s{SWD+2}, {3 * 128 * 9216 + 9216}
s_mov_b32 s{SWD+3}, 0x20000
s_lshl_b32 s50, s2, 7
s_lshl_b32 s51, s{sW}, 2
s_add_u32 s50, s50, s51
s_add_u32 s50, s50, {WS_FL}
s_add_u32 s{SFL}, s{SO}, s50|s_addc_u32 s{SFL+1}, s{SO+1}, 0
s_mov_b32 s{SFL+2}, 68
s_mov_b32 s{SFL+3}, 0x20000""".split('\n')
    if OPT['stamps']:
        S_ += [f's_add_u32 s56, s{SO}, {WS_STAMP}|s_addc_u32 s57, s{SO+1}, 0', 's_mov_b32 s58, 0x100000', 's_mov_b32 s59, 0x20000']
    S_ += f"""s_lshl_b32 s50, s46, 2
s_add_u32 s50, s50, s{sW}
s_lshl_b32 s50, s50, 19
s_lshl_b32 s51, s47, 15
s_add_u32 s50, s50, s51
s_add_u32 s{SO}, s{SO}, s50|s_addc_u32 s{SO+1}, s{SO+1}, 0
s_mov_b32 s{SO+2}, 32768
s_mov_b32 s{SO+3}, 0x20000
s_mov_b32 s{sSC}, {f2i(SCALE):#x}
s_mov_b32 s{sTHR}, {f2i(2.0 ** 24):#x}
s_mov_b32 s{sOo}, 0
s_mov_b32 s{sDBG}, s94
s_mov_b32 s{sDBG+1}, s95
s_mov_b32 s{sKo}, {8 * 8192}
s_mov_b32 s{sVo}, {6 * 8192}
s_mov_b32 s{sCnt}, 3
s_mov_b32 s{sHead}, 0""".split('\n')
    DEF_S.extend(x for x in S_ if x)

def x_reads(pc):
    c = pc >> 1; blk = xblock(pc)
    return [Ins(f'ds_read_b128 v[{XF(2 * c + ks, 2 * (pc & 1) + qq)}:{XF(2 * c + ks, 2 * (pc & 1) + qq) + 3}], v{XADDR + ks + (2 if blk == 6 else 0)} offset:{(0 if blk == 6 else (blk - 2) * BLK) + qq * 2048}', f'rX{pc}')
            for ks in range(2) for qq in range(2)]
def w_read(t, h, T, dst):
    blk = wblock(t)
    ad = WADDR + T if blk <= 4 else WADDR + 8 + T
    off = (blk - 1 if blk <= 4 else blk - 7) * BLK + h * 256
    d = int(dst[1:])
    return [Ins(f'ds_read_b64_tr_b16 {dst[0]}[{d + 2 * s}:{d + 2 * s + 1}], v{ad} offset:{off + s * 2048}', f'rW{t}') for s in range(2)]
def w_reads(t):
    out = []
    for f in range(16): out += w_read(t, f >> 3, f & 7, f'a{WF((16 * t + f) % NWS)}')
    return out
UH = ['a160', 'a192', 'a160', 'a192', 'a0', 'a32', 'a0', 'a32']
def uw(n, k, tt): return f'{UH[n][0]}{int(UH[n][1:]) + (k * 2 + tt) * 4}'
def unit_reads(n):
    h, u = n >> 2, n & 3
    out = []
    for k in range(4):
        for tt in range(2): out += w_read(14 + k, h, 2 * u + tt, uw(n, k, tt))
    return out
def conv(n):
    h, u = n >> 2, n & 3
    V = []; D = []
    tiles = []
    for tt in range(2):
        for qt in range(4):
            acc = QACC(h, 2 * u + tt, qt)
            if h == 1: b = int(acc[1:]); rd = []
            else:
                b = 84 + ((n * 8 + tt * 4 + qt) % 3) * 4
                rd = [f'v_accvgpr_read_b32 v{b + r}, a{int(acc[1:]) + r}' for r in range(4)]
            mu = [f'v_mul_f32 v{b + r}, s{sSC}, v{b + r}' for r in range(4)]
            cv = [f'v_cvt_pk_bf16_f32 v{b}, v{b}, v{b + 1}', f'v_cvt_pk_bf16_f32 v{b + 1}, v{b + 2}, v{b + 3}']
            V += [Ins(x) for x in rd + mu + cv]
            D.append((len(V) - 1, Ins(f'ds_write_b64 v{CW1 if tt else CW0}, v[{b}:{b + 1}] offset:{qt * 1024}')))
    D += [(len(V) - 1, Ins(f'ds_read_b128 a[{Q(h, qt, u)}:{Q(h, qt, u) + 3}], v{CR} offset:{qt * 1024}', f'rQ{n}')) for qt in range(4)]
    seq = []
    for i, x in enumerate(V):
        seq.append(x); seq += [d for k, d in D if k == i]
    return V, D, seq

def q_phase(A):
    stamp(A, 2)
    A('WAITVM X0+X1+W0+W1\ns_barrier')
    stamp(A, 3)
    if OPT['su'] == '0': A.extend(x_reads(0) + x_reads(1) + w_reads(0))
    else:
        rd = x_reads(0) + x_reads(1) + w_reads(0)
        dj = dma_x(2) + dma_w(2) + dma_w(3)
        for i in range(12):
            A.extend(flat([dj[i]])); A.extend(rd[i * 40 // 12:(i + 1) * 40 // 12])
    def JR(i): return f'a{224 + 4 * i}' if i < 8 else 'v92'
    def jstore(i):
        r, n = divmod(i, 3)
        pre = [f's_add_u32 s{sT0}, s{sW}, {4 * r}', f's_mul_i32 s49, s{sT0}, 43', f's_lshr_b32 s49, s49, 7',
               f's_mul_i32 s49, s49, {128 * 9216 - 9216}', f's_mul_i32 s{sT0}, s{sT0}, 3072', f's_add_u32 s{sJ}, s{sT0}, s49'] if n == 0 else []
        return [(pre, Ins(cl(f'buffer_store_dwordx4 {rng(JR(i), 4)}, v{VOFFO}, {srd(SWD)}, s{sJ} offen offset:{n * 1024} {OPT["st"]}'), 'Jst'), [])]
    for t in range(14):
        mf = []
        for f in range(16):
            for qt in range(4):
                acc = QACC(f >> 3, f & 7, qt)
                mf.append(mfma(acc, f'a{WF((16 * t + f) % NWS)}', f'v{XF(t, qt)}', acc if t else '0'))
        G = Gaps(64)
        groups = []
        J4 = OPT['jo'] == '4'
        if t in ((2, 5, 9) if J4 else (3, 7, 11)):
            r = t // 4
            groups += [[([f's_mov_b32 s{sWe}, {r * 384}', f's_mul_i32 m0, s{sW}, 3072'] if n == 0 else [],
                         Ins(f'buffer_load_dwordx4 v{VOFFJ + n}, {srd(SWS)}, s{sWe} offen offset:{n * 1024} nt lds', f'J{r}'), []) for n in range(3)]]
        if t == 0: groups += [dma_x(3), dma_x(4), dma_w(4)]
        if t == 1: groups += [dma_w(5)]
        if 1 <= t <= 12: groups += [dma_w(t + 5)]
        if t + 5 < 18: groups += [dma_x(t + 5)]
        if t == 13 and not J4: groups += [dma_vv(0), dma_kk(1)]
        ngr = len(groups)
        gl = {4: [[5, 8, 11, 14], [18, 22, 26, 30], [34, 38, 42, 46], [51, 54, 57, 60]],
              3: [[2, 7, 12, 17], [24, 29, 34, 39], [46, 51, 56, 60]],
              2: [[2, 10, 18, 26], [34, 42, 50, 58]], 1: [[18, 30, 42, 54]], 0: []}[ngr]
        if J4 and t == 12: gl = [[2, 6, 10, 14], [20, 24, 28, 32]]
        dg = [g for gr, pos in zip(groups, gl) for g in pos[:len(gr)]]
        if J4 and t in (12, 13):
            for i, g in {12: [(0, 44), (1, 52), (2, 60)], 13: [(3, 8), (4, 16), (5, 24), (6, 34), (7, 44), (8, 54)]}[t]:
                G.place_dma(jstore(i), [g]); dg.append(g)
            if t == 13:
                G.v[57].append(f'v_mov_b32 v{VPA}, 0'); dg.append(59)
                G.mem[59].append(Ins(cl(f'buffer_store_dword v{VPA}, v{VOFFO}, {srd(SFL)}, 0 offen {OPT["st"]}'), 'Fz'))
        L2 = [int(x) for x in OPT['l2'].split('.')] if OPT['l2'] else []
        for i in [i for i, x in enumerate(L2) if x == t]:
            if i == 0:
                G.v[4] += ['v_lshlrev_b32 v95, 7, v2', 'v_lshl_add_u32 v95, v1, 11, v95']
                G.v[5] += [f'v_lshrrev_b32 v{VOFFO}, 4, v2', f'v_lshl_add_u32 v95, v{VOFFO}, 24, v95']
                G.v[6] += [f'v_lshlrev_b32 v{VOFFO}, 4, v2']
            sr, base = (SK, 8) if i % 2 == 0 else (SV, 6)
            g = 14 if (i + 1 < len(L2) and L2[i + 1] == t) else 46
            while g in dg or G.sc[g - 1]: g += 1
            G.sc[g - 1].append(f's_mov_b32 s{sT0}, {(base + int(OPT["l2e"]) // 2 + i // 2) * 8192}')
            x = Ins(cl(f'buffer_load_dword a255, v95, {srd(sr)}, s{sT0} offen {OPT["l2p"]}'), 'l2'); x.wr = set() if i + 1 < len(L2) else x.wr
            G.mem[g].append(x); dg.append(g)
        free = [g for g in range(64) if g not in dg]
        G.sc[0].append(f'WAITVM X{t + 2}')
        rds = x_reads(t + 2)
        if t + 5 < 18:
            xi = [i for i, gr in enumerate(groups) if gr[0][1].tag == f'X{t + 5}'][0]
            G.sc[gl[xi][0] - 3].append(f'WAITLG rX{t + 2}')
        if t in ((3, 7, 11) if J4 else (5, 9, 13)):
            for n in range(3):
                d = JR((t // 4 - (0 if J4 else 1)) * 3 + n)
                rds += [Ins(f'ds_read_b64_tr_b16 {d[0]}[{int(d[1:]) + 2 * sx}:{int(d[1:]) + 2 * sx + 1}], v{JADDR} offset:{n * 32 + sx * 16 * 384}') for sx in range(2)]
        if t == 0: G.sc[2].append('WAITLG rX1')
        rds += w_reads(t + 1) if t < 13 else unit_reads(0)[:8]
        for r, g in zip(rds, free): G.mem[g].append(r)
        for gr, g in zip(groups, gl): G.place_dma(gr, g)
        if t % 2 == 0 or t == 13:
            c = t // 2 + 1
            tags = f'W{2 * c}+W{2 * c + 1}' if t != 13 else 'W16+W17+X16+X17'
            if t in ((2, 6, 10) if J4 else (4, 8, 12)): tags += f'+J{t // 4 - (0 if J4 else 1)}'
            G.sc[62] += [f'WAITVM {tags} lg0', 's_barrier']
        if t == 0 and OPT['su'] != '0':
            P_ = Prog(); code_prefetch(P_, KNAME, 'L_code_end', 8, 252, 2, first=1, tag='b')
            G.v[63] += [Ins(x.text.replace('global_load_dword v', 'global_load_dword a'), x.tag) for x in P_.L]
        if t < 3:
            n0, n1 = ([0, 62, len(DEF_V), len(DEF_V)] if J4 else [0, 40, 95, len(DEF_V)])[t:t + 2]
            for i, x in enumerate(DEF_V[n0:n1]): G.v[(i * 62) // (n1 - n0)].append(x)
        if t in (1, 2, 4, 6) and DEF_S:
            for g in range(41, 62):
                if DEF_S and not G.sc[g]: G.sc[g] += DEF_S.pop(0).split('|')
            if t == 6:
                for g in range(4, 40):
                    pass
        if t in (8, 10) and DEF_S:
            for g in range(41, 62):
                if DEF_S and not G.sc[g]: G.sc[g] += DEF_S.pop(0).split('|')
        if t == 11: assert not DEF_S, len(DEF_S)
        if OPT['qtl']:
            G.v[3].append('s_memtime s[98:99]'); G.v[40].append(f's_mov_b32 s{64 + t}, s98')
        A.extend(G.weave(mf))
    stamp(A, 4)
    gsu = f"""s_and_b32 s50, s2, 6
s_lshl_b32 s50, s50, 3
s_lshr_b32 s51, s2, 5
s_lshl_b32 s51, s51, 1
s_add_u32 s50, s50, s51
s_lshr_b32 s51, s{sW}, 1
s_add_u32 s50, s50, s51
s_lshl_b32 s50, s50, 19
s_and_b32 s51, s2, 1
s_lshl_b32 s51, s51, 18
s_add_u32 s50, s50, s51
s_and_b32 s51, s{sW}, 1
s_lshl_b32 s51, s51, 11
s_add_u32 s50, s50, s51
s_add_u32 s{SGO}, s{sWS}, s50|s_addc_u32 s{SGO+1}, s{sWS+1}, 0
s_mov_b32 s{SGO+2}, {262144 - 2048}
s_and_b32 s50, s2, 4
s_bfe_u32 s51, s2, 0x20003
s_add_u32 s50, s50, s51
s_lshl_b32 s50, s50, 1
s_and_b32 s51, s2, 1
s_add_u32 s50, s50, s51
s_mul_i32 s50, s50, {64 * 9216}
s_add_u32 s50, s50, {WS_WO}
s_add_u32 s{SGW}, s{sWS}, s50|s_addc_u32 s{SGW+1}, s{sWS+1}, 0
s_mov_b32 s{SGW+2}, {64 * 9216}""".split('\n')
    NG = 288
    G = Gaps(NG + 8)
    mf = []; ref = []
    UR = [unit_reads(n) for n in range(8)]
    XR = x_reads(16) + x_reads(17)
    K0 = k_reads(0); K1 = k_reads(1)
    CV_ = [conv(n) for n in range(8)]
    ref += XR
    for n in range(8):
        h, u = n >> 2, n & 3
        m = [Ins(mfma(QACC(h, 2 * u + tt, qt), uw(n, k, tt), f'v{XF(14 + k, qt)}', QACC(h, 2 * u + tt, qt))) for k in range(4) for tt in range(2) for qt in range(4)]
        mf += m
        ref += (UR[n][8:] if n == 0 else UR[n]) + m + CV_[n][2]
    m = [Ins(x) for x in qk_mfmas(0)]
    mf += m; ref += K0 + m + K1
    if OPT['jo'] == '4':
        k0 = int(OPT['kv0'])
        for i, jobs in enumerate([dma_kk(0), dma_vv(0), dma_kk(1), dma_vv(1), dma_kk(2)]):
            st_ = (215 - k0) // 20
            G.place_dma(jobs, [k0 + st_ * (4 * i + x) for x in range(4)])
        kv = {1: k0 + st_ * 12}
    else:
        JS = [jstore(i) for i in range(9)]
        ref = [x[0][1] for x in JS] + ref
        order = [6, 8, 7, 0, 1, 2, 3, 4, 5]
        jp = [17, 24, 48, 76, 100, 124, 152, 176, 200]; fz = 220; kv = {0: 36, 1: 104, 2: 164}
        for i, g in zip(order, jp): G.place_dma(JS[i], [g])
        G.v[fz - 2].append(f'v_mov_b32 v{VPA}, 0')
        G.mem[fz].append(Ins(cl(f'buffer_store_dword v{VPA}, v{VOFFO}, {srd(SFL)}, 0 offen {OPT["st"]}'), 'Fz'))
        for i, jobs in enumerate([dma_kk(0), dma_vv(1), dma_kk(2)]):
            G.place_dma(jobs, [kv[i] + 14 * x for x in range(4)])
    G.place_dma(dma_kk(3), [250, 258, 266, 274])
    G.sc[kv[1] - 3].append('WAITLG rX16')
    gi = 260
    for x in gsu:
        while G.sc[gi]: gi += 1
        G.sc[gi] += x.split('|')
    BAR = 32 * 7 + 9
    G.sc[BAR] += ['WAITVM KK0 lg0', 's_barrier']
    def put(ins, g, lim=None):
        while G.mem[g] or (BAR - 5 <= g < BAR): g += 1
        assert lim is None or g <= lim, (ins.text, g, lim)
        G.mem[g].append(ins); return g
    cur = 0
    for n in range(8):
        V, D, _ = CV_[n]
        g0 = 32 * (n + 1) + 1; span = 30
        vp = [g0 + (i * span) // len(V) for i in range(len(V))]
        for x, g in zip(V, vp): G.v[g].append(x)
        for i, d in D: cur = put(d, max(cur, vp[i] + 1))
    g = 0
    for r in XR[:2] + XR[4:6] + UR[0][8:12] + XR[2:4] + XR[6:] + UR[0][12:]: g = put(r, g)
    for n in range(1, 8):
        for i, r in enumerate(UR[n]):
            g = put(r, max(g, 32 * (n - 1) + (i * 3) // 2), lim=min(32 * n + 2 * i - 5, BAR - 6))
    g = BAR
    for i, r in enumerate(K0): g = put(r, max(g, BAR + 2 * i), lim=256 + 4 * i - 6)
    for i, r in enumerate(K1): g = put(r, max(g, 256 + 4 * i + 4))
    if OPT['stamps'] and not OPT['qtl']: G.sc[257].append('s_memtime s[74:75]')
    if OPT['qtl']:
        for n in range(9): G.v[32 * n + 3].append('s_memtime s[98:99]'); G.v[32 * n + 25].append(f's_mov_b32 s{78 + n}, s98')
    out = [I(x) for x in G.weave(mf)]
    check_order(ref, out, 'QB')
    A.extend(out)
    ini = init_stream(0)
    A.extend(ini[:40])
    A('WAITLG rQ7')
    vv = flat(dma_vv(2))
    for i in range(4): A.extend(vv[-4 + i:][:1] if i else vv[:3]); A.extend(ini[40 + 12 * i:52 + 12 * i])

def seg_name(j):
    if j == 0 or (j == 32 and not OPT['w1']): return 's0'
    if j == 32: return 's32'
    if j == 31: return 'sp31'
    if j == 63: return 'fin31'
    if j >= 56: return f'p{j}'
    return f'r{j % 8}'

def gen():
    A = Prog()
    setup(A)
    q_phase(A)
    LAG = OPT['lag']
    SH = 4 if LAG else 2
    if LAG:
        sms = lambda j: lagged(softmax_stream(j))
        dn_ = undense
    else:
        sms = softmax_stream; dn_ = dense
    st = sms(0)
    A.extend(dn_(st[:32 + SH]))
    carry = st[32 + SH:]
    stamp(A, 6)
    if OPT['tl']: A('s_mov_b32 s97, 0')
    def tagsof(which, t):
        if which == 'V' and t < 6: return f'VV{t // 2}'
        if which == 'K' and t < 8: return f'KK{t // 2}'
        return f'{which}{t}'
    GA = [4, 5, 6]
    def WB(s, n): return 128 + (s & 1) * 36 + n * 4
    def GACC(n, mm): i = n * 2 + mm; return 64 + i * 4 if i < 16 else 200 + (i - 16) * 4
    def OB(s, mm): return 128 + ((s + 8) % 16) * 8 + mm * 4
    def g_wreads(s):
        out = []
        for n in range(9):
            ad = ((s >> 2) % 4) * 36864 + (s & 3) * 9216 + n * 1024
            out.append(Ins(f'ds_read_b128 v[{WB(s, n)}:{WB(s, n) + 3}], v{GA[ad >> 16]} offset:{ad & 0xffff}', f'rG{s}'))
        return out
    def g_oloads(s):
        gen_, i, u = s >> 5, (s >> 2) & 7, s & 3
        off, sr = ((2 * i + gen_) * 16384 + u * 4096, SGO) if s < 64 else (i * 32768 + u * 4096, SG2O)
        return [([f's_mov_b32 s{sWe}, {off}'] if mm == 0 else [],
                 Ins(cl(f'buffer_load_dwordx4 a[{OB(s, mm)}:{OB(s, mm) + 3}], v{VOFFO}, {srd(sr)}, s{sWe} offen offset:{mm * 1024} {OPT["g_o"]}'), f'GO{s}'), []) for mm in range(2)]
    def g_w8(a, tag):
        return [([f's_mov_b32 s{sKo}, {a}', f's_add_u32 m0, s{sW2K}, {a}'] if o == 0 else [],
                 Ins(cl(f'buffer_load_dwordx4 v{VOFFK}, {srd(SGW)}, s{sKo} offen offset:{o * 1024} {OPT["g_w"]} lds'), tag), []) for o in range(2)]
    def g_wchunk(c):
        out = []
        for n in range(9):
            pre = [f's_add_u32 s{sKo}, s{sXo}, {(c % 16) * 36864 + (n // 4) * 4096}', f's_add_u32 m0, s{sXo}, {(c % 4) * 36864 + (n // 4) * 4096}'] if n % 4 == 0 else []
            out.append((pre, Ins(cl(f'buffer_load_dwordx4 v{VOFFO}, {srd(SGW if c < 16 else SG2W)}, s{sKo} offen offset:{(n % 4) * 1024} {OPT["g_w"]} lds'), f'GW{c}'), []))
        return out
    poll1 = f'buffer_load_dword v{VPOLL}, v{VPA}, {srd(SFP)}, 0 offen sc1'
    poll2 = f'buffer_load_dword v{VPOLL}, v{VPA}, {srd(SFP)}, 0 offen offset:16 sc1'
    pollc = f'buffer_load_dword v{VPOLL}, v{VPA}, {srd(SWS)}, 0 offen sc1'
    polld = f'buffer_load_dword v{VPOLL}, v{VPP}, {srd(SFP)}, 0 offen offset:64 sc1'
    ne1 = f'v_cmp_ne_u32 vcc, 1, v{VPOLL}'
    qcopy = [f'v_accvgpr_mov_b32 a{128 + i}, a{192 + i}' for i in range(64)]

    POST = []
    def fill(G, o, j, carry):
        jj = j & 31; nm = seg_name(j); p = j & 1
        if OPT['bar1'] and j < 63:
            TI = int(OPT['tight']) if 3 < j < 50 else 0
            tags = [tagsof('V', j + TI), tagsof('K', j + 2 + TI)] + ([tagsof('V', 63)] if j == 62 else []) + (['Jst', 'Fz'] if j == 6 else [])
            G.sc[o] += [f'WAITVM {"+".join(tags)} lg0', 's_barrier']
        elif j % 2 == 0:
            tags = [tagsof('V', j), tagsof('V', j + 1), tagsof('K', j + 2), tagsof('K', j + 3)] + (['Jst', 'Fz'] if j == 6 else [])
            G.sc[o] += [f'WAITVM {"+".join(tags)} lg0', 's_barrier']
        last = len(carry) - 1
        if j < 63:
            for i, g in enumerate(carry): G.v[o + i] += g
        if jj != 0:
            G.v[o + 17].append(f'v_max3_f32 v{CT}, v{Lr(p, 0)}, v{Lr(p, 1)}, v{Lr(p, 2)}')
            G.v[o + last].append(f'v_max_f32 v{CT}, v{CT}, v{Lr(p, 3)}')
            G.v[o + last].append(f'v_cmp_lt_f32 vcc, s{sTHR}, v{CT}')
            G.sc[o + last + 1] += [f's_cbranch_vccnz L_st_{nm}', f'L_bk_{nm}:']
        ncarry = None
        if j < 63:
            PL = {'0': (sorted([3 + 4 * i for i in range(8)] + [4 + 4 * i for i in range(8)]), [35, 36, 39, 40, 43, 47, 51, 55], [10, 26, 42, 59]),
                  '1': ([1 + 2 * i for i in range(16)], [33, 35, 37, 39, 43, 47, 51, 55], [41, 49, 59, 63]),
                  '2': ([1, 3, 5, 7, 9, 13, 15, 17, 19, 21, 23, 25, 31, 33, 35, 37], [39, 41, 45, 47, 49, 51, 53, 55], [11, 27, 43, 59]),
                  '3': ([3, 5, 7, 9, 13, 15, 19, 21, 23, 25, 31, 33, 35, 37, 39, 41], [32, 36, 45, 47, 49, 51, 53, 55], [11, 27, 43, 59]),
                  }[OPT['pl']]
            for r, g in zip(v_reads(j), PL[0]): G.mem[o + g].append(r)
            if j + 2 < 64:
                for r, g in zip(k_reads(j + 2), PL[1]): G.mem[o + g].append(r)
            if j < 56: G.place_dma(dma_kv('K', j + 8) + dma_kv('V', j + 6), [o + x for x in PL[2]])
            else:
                W8 = lambda i: g_w8(i * 8192, f'P{i}')
                jobs = {56: dma_kv('V', 62) + W8(0) + W8(16) + g_oloads(0), 57: dma_kv('V', 63) + W8(1) + W8(17) + g_oloads(1),
                        58: W8(2) + g_oloads(2) + W8(8) + g_oloads(3), 59: W8(3) + g_oloads(4) + W8(9) + g_oloads(5),
                        60: W8(4) + g_oloads(6) + W8(10) + g_oloads(7), 61: W8(5) + W8(11),
                        62: W8(6) + W8(7) + W8(12) + W8(13) + g_oloads(8) + g_oloads(9)}[j]
                pos = {8: [4, 11, 20, 27, 36, 43, 57, 61], 4: [11, 27, 43, 59], 12: [4, 11, 18, 27, 34, 39, 43, 47, 51, 55, 59, 63]}[len(jobs)]
                G.place_dma(jobs, [o + x for x in pos])
                G.v[o + 0].append(f'v_mov_b32 v{VPG}, {j - 55}')
                G.mem[o + 2].append(Ins(cl(f'buffer_store_dword v{VPG}, v{VL4}, {srd(SFL)}, 0 offen offset:48 {OPT["st"]}'), 'PG'))
                if j == 61:
                    G.v[o + 4] += [f'v_mad_u32_u24 v{VPR}, v{VPR}, {OPT["bm"]}, {OPT["ba"]}']
                    G.v[o + 6] += [f'v_lshrrev_b32 v{VPR}, 3, v{VPR}']
                    G.v[o + 8] += [f'v_min_u32 v{VPR}, {OPT["bmax"]}, v{VPR}']
                    G.v[o + 10] += [f'v_add_u32 v{VPG}, 1, v{VPR}']
                    G.v[o + 12] += [f'v_lshlrev_b32 v{VPOLL}, 2, v1']
                    G.v[o + 14] += [f'v_add_u32 v{VPOLL}, {160 * 1024 - 16}, v{VPOLL}']
                    G.mem[o + 16].append(Ins(cl(f'buffer_store_dword v{VPG}, v{VL4}, {srd(SFL)}, 0 offen offset:64 {OPT["st"]}'), 'DG'))
                    G.mem[o + 18].append(Ins(f'ds_write_b32 v{VPOLL}, v{VPR}'))
            st = sms(j + 1)
            if (j + 1) & 31:
                for i, g in enumerate(st[:32 + SH]): G.v[o + 32 - SH + i] += g
            else:
                G.pack(qcopy, o + 1, o + 29)
                NB = int(OPT['nb'])
                prep, un = epilogue(False); _, up = epilogue(True)
                other = init_stream(j + 1) + dn_(st[:32 + SH])
                units = un[:NB] + up[NB:]
                seq = []; cut = None
                for k in range(16):
                    if k == NB: cut = len(seq)
                    seq += units[k][0]
                    if k: seq += units[k - 1][3]
                    seq += units[k][1] + units[k][2]
                    if k >= NB: seq += other[(k - NB) * len(other) // (16 - NB):(k - NB + 1) * len(other) // (16 - NB)]
                seq += units[15][3]
                G.pack(prep, o + 31, o + 39)
                pos = G.pack(seq[:cut], o + 39, o + 64)
                for x, g in zip(seq[:cut], pos):
                    x = I(x)
                    if x.mn == 'v_accvgpr_read_b32':
                        a = [r for r in x.rd if r[0] == 'a'][0][1]
                        assert g >= o + 32 + a // 4 + 2, (x.text, g)
                POST.extend(seq[cut:])
            ncarry = st[32 + SH:]
        if OPT['tl'] and j < 56 and j != 31:
            G.sc[o + 5].append('s_memtime s[98:99]'); G.sc[o + 7].append('s_memrealtime s[86:87]')
            G.sc[o + 52].append('s_waitcnt lgkmcnt(0)')
            G.v[o + 52] += ['v_cmp_eq_u32 s[50:51], s97, v2', 'v_mov_b32 v248, s98', 'v_mov_b32 v249, s86']
            G.v[o + 53] += ['v_cndmask_b32 v250, v250, v248, s[50:51]', 'v_cndmask_b32 v251, v251, v249, s[50:51]']
            G.sc[o + 54].append('s_add_u32 s97, s97, 1')
        if OPT['tl'] and j == 31:
            G.v[o + 1] += ['s_lshl_b32 s50, s2, 11', 's_add_u32 s50, s50, 0x80000', 'v_lshlrev_b32 v248, 3, v0', 'buffer_store_dwordx2 v[250:251], v248, s[56:59], s50 offen']
        if nm == 'r6': G.sc[o + 62].append(f's_sub_u32 s{sCnt}, s{sCnt}, 1')
        if nm == 'r7':
            if OPT['atom'] == '0':
                G.sc[o + 61].append(f's_sub_u32 s{sT0}, s{sKo}, 0x30000')
                G.sc[o + 62].append(f's_cmp_lt_u32 s{sT0}, 0x20000')
            else: G.sc[o + 62].append(f's_cmp_lt_u32 s{sKo}, 0x50000')
        return ncarry
    def mfs(j): return (qk_mfmas(j + 1) if j + 1 < 64 else [None] * 32) + pv_mfmas(j)

    j = 0
    while j < 64:
        nm = seg_name(j)
        A(f'.mark {nm}')
        G = Gaps(64)
        oc = carry
        carry = fill(G, 0, j, carry)
        if j == 63:
            P0 = v_reads(j)
            dn = dn_(oc)
            ol = flat(g_oloads(10) + g_oloads(11) + g_oloads(12))
            k = 0
            for i, x in enumerate(dn):
                P0.append(x)
                tgt = len(ol) * (i + 1) // len(dn)
                while k < tgt: P0.append(ol[k]); k += 1
            G.v[0] += P0
            G.v[18] += [f'v_mov_b32 v{GA[0]}, v{VOFFO}', f'v_add_u32 v{GA[1]}, 0x10000, v{VOFFO}', f'v_add_u32 v{GA[2]}, 0x20000, v{VOFFO}', f's_mul_i32 s{sXo}, s{sW}, 9216']
            G.sc[32] += ['WAITVM P4 lg0', 's_barrier']
            for r, g in zip(g_wreads(0), range(33, 60, 3)): G.mem[g].append(r)
            G.v[18] += [f'v_mov_b32 v{VPG}, {160 * 1024 - 16}']
            G.mem[34].append(Ins(f'ds_read_b32 v{VPR}, v{VPG}'))
            G.place_dma(g_w8(14 * 8192, 'P14') + g_w8(15 * 8192, 'P15') + g_oloads(13) + g_oloads(14), [35, 38, 43, 46, 50, 53, 58, 61])
            prep2, units2 = epilogue(int(OPT['epg']) == 0)
            epi, _, _ = epi_flat(units2)
            G.pack(prep2, 33, 48)
            ne = 0
            if int(OPT['epg']):
                ne = 28
                G.pack(epi[:ne], 48, 64)
            epi = epi[ne:]
        A.extend(G.weave(mfs(j)))
        def atomic():
            A('WAITVM Jst+Fz')
            A(f's_mov_b32 s{SWS}, s{sDBG}\ns_mov_b32 s{SWS + 1}, s{sDBG + 1}\ns_mov_b32 s{SWS + 2}, 4\nv_mov_b32 v{VFLAG}, 1\nv_lshlrev_b32 v{VPA}, 2, v0\nv_lshlrev_b32 v{VL4}, 7, v2')
            A(f'buffer_atomic_add v{VFLAG}, v{VPA}, {srd(SWS)}, 0 offen sc1', tag='Cwo')
        if j == 7:
            A('.mark b7')
            if OPT['atom'] == '0': atomic()
        if j == 39:
            A('.mark b39')
            A('WAITVM Ost')
            A(cl(f'buffer_store_dword v{VFLAG}, v{VL4}, {srd(SFL)}, 0 offen {OPT["st"]}'), tag='F1')
            if OPT['atom'] == '1': A(pollc, tag='Pc')
        if j == 47:
            A('.mark b47')
            A(f's_movk_i32 s{sMODE}, 256')
            A.extend(spin_check('c', pollc, f'v_cmp_gt_u32 vcc, s{sMODE}, v{VPOLL}'))
            A(f"""s_andn2_b32 s50, s2, 0x38
s_lshl_b32 s50, s50, 7
s_bfe_u32 s51, s2, 0x10005
s_lshl_b32 s51, s51, 3
s_add_u32 s50, s50, s51
s_lshr_b32 s51, s{sW}, 1
s_lshl_b32 s51, s51, 2
s_add_u32 s50, s50, s51
s_add_u32 s{SFP}, s{sWS}, {WS_FL}
s_addc_u32 s{SFP+1}, s{sWS+1}, 0
s_mov_b32 s{SFP+2}, 32768
v_and_b32 v{VPA}, 7, v0
v_lshlrev_b32 v{VPA}, 10, v{VPA}
v_add_u32 v{VPA}, s50, v{VPA}
s_xor_b32 s50, s2, 1
s_lshl_b32 s50, s50, 7
s_lshl_b32 s{sW4}, s{sW}, 2
v_mov_b32 v{VPP}, s50""")
            A(poll1, tag='PL1')
            code_prefetch(A, 'L_fin', 'L_code_end', 250, 252, 2)
        if j == 55:
            A('.mark b55')
            A.extend(spin_check('f1', poll1, ne1))
            A(f'v_add_u32 v{VOFFK}, s{sW2K}, v{VOFFO}')
            A(f'buffer_load_dword v{VPR}, v{VPP}, {srd(SFP)}, 0 offen offset:48 sc1', tag='PLP')
        if j == 31:
            A('.mark epi')
            stamp(A, 7)
            if OPT['atom'] == '1': atomic()
            A(f'v_mov_b32 v{VPA}, 0')
            if OPT['atom'] == '0': A(pollc, tag='Pc')
            A.extend(POST)
            A(f's_mov_b32 s{sHead}, 1\ns_mov_b32 s{sCnt}, 3')
            stamp(A, 8)
        j += 1
    A('.mark tail')
    stamp(A, 9)
    EPG = int(OPT['epg'])
    ek = 0
    G2 = int(OPT['g2s']); LO = int(OPT['lo']); LW = int(OPT['lw']); S0 = int(OPT['gs0']); S1 = int(OPT['gs1'])
    items = []
    NS = 64 + 4 * int(OPT['bmax']); G3 = 57
    for x in range(15, NS):
        for jb in g_oloads(x): items.append((x - LO, max(x - 15, G2 + 1 if x >= 32 else 0, G3 + 1 if x >= 64 else 0), jb))
    for c in range(4, NS // 4):
        for n, jb in enumerate(g_wchunk(c)): items.append((4 * c - 1 - LW - (8 - n) * 4 / 9.0, 4 * (c - 4) + 3, jb))
    items.sort(key=lambda z: z[0])
    sched = [[] for _ in range(NS)]
    cur = 0
    for i, (dl, rl, jb) in enumerate(items):
        k = int(S0 + i * (S1 - S0 + 1) / 206)
        k = max(min(k, int(dl)), rl, cur)
        while len(sched[k]) >= 6: k += 1
        sched[k].append(jb); cur = k
    def when(tag): return [k for k in range(NS) if any(x[1].tag == tag for x in sched[k])]
    CL = max(when('GO31')) + 1
    assert CL < min(when('GO48')) and CL < min(when('GW12')), (CL, when('GO48'), when('GW12'))
    assert NS == 64 or min(when('GW16')) > 47
    if EPG == 0:
        A.extend(epi); ek = len(epi)
    if OPT['verbose']: print([len(x) for x in sched])
    for s_ in range(NS):
        c, u = s_ >> 2, s_ & 3
        mf = [mfma(f'v{GACC(n, mm)}', f'v{WB(s_, n)}', f'a{OB(s_, mm)}', f'v{GACC(n, mm)}' if s_ else '0') for n in range(9) for mm in range(2)]
        G = Gaps(18)
        if u == 3 and c < NS // 4 - 1:
            tags = {0: 'P5+P6+P7+P8', 1: 'P9+P10+P11+P12+P13', 2: 'P14+P15+P16+P17'}.get(c, f'GW{c + 1}')
            G.sc[0] += [f'WAITVM {tags} lg0', 's_barrier']
            assert not [1 for q in sched[s_:] for x in q if x[1].tag == f'GW{c + 1}'], c
        jobs = sched[s_]
        for x in jobs:
            if x[1].tag.startswith('GO'): assert int(x[1].tag[2:]) >= s_ + 3, (s_, x[1].tag)
        jp = {0: [], 1: [10], 2: [5, 14], 3: [3, 9, 15], 4: [3, 8, 12, 16], 5: [2, 6, 10, 13, 16], 6: [2, 5, 8, 11, 14, 17]}[len(jobs)]
        G.place_dma(jobs, jp)
        if s_ + 1 < NS:
            for r, g in zip(g_wreads(s_ + 1), [g for g in range(18) if g not in jp]): G.mem[g].append(r)
        if s_ == int(OPT['p2s']): G.mem[17].append(Ins(poll2, 'PL2'))
        if OPT['gtl']:
            if s_ % 2 == 0: G.sc[12].append('s_memtime s[98:99]')
            elif s_ < 64: G.v[0].append(f'v_writelane_b32 v59, s98, {s_ // 2}')
        for g in range(18):
            n = EPG - (1 if G.mem[g] else 0)
            while n > 0 and ek < len(epi):
                x = epi[ek]
                if isinstance(x, Ins) and x.kind == 'vst':
                    if G.v[g]: break
                    G.mem[g].append(x); ek += 1; n -= 1; continue
                G.v[g].append(x); ek += 1
                if not x.startswith('s_'): n -= 1
        if s_ == int(OPT['f2s']):
            assert ek == len(epi), (ek, len(epi))
            G.sc[16].append('WAITVM Ost')
            G.mem[17].append(Ins(cl(f'buffer_store_dword v{VFLAG}, v{VL4}, {srd(SFL)}, 0 offen offset:16 {OPT["st"]}'), 'F2'))
        if s_ == G2: G.v[17] += spin_check('f2', poll2, ne1)
        if s_ == CL:
            G.v[15] += [f'v_readfirstlane_b32 s{sGive}, v{VPR}']
            G.v[17] += f"""s_sub_u32 s50, 16, s{sGive}
s_mul_i32 s{SGW+2}, s50, 36864
s_sub_u32 s50, 8, s{sGive}
s_lshl_b32 s50, s50, 15
s_min_u32 s{SGO+2}, s{SGO+2}, s50""".split('\n')
        if s_ == 41: G.mem[17].append(Ins(polld, 'PLD'))
        if s_ == 46:
            G.v[15] += spin_check('d', polld, f'v_cmp_eq_u32 vcc, 0, v{VPOLL}')
            G.v[16] += [f'v_readfirstlane_b32 s{sRem}, v{VPOLL}', f'v_xor_b32 v{VPA}, 128, v{VPA}']
            G.v[17] += f"""s_sub_u32 s{sRem}, s{sRem}, 1
s_min_u32 s{sRem}, s{sRem}, {OPT['bmax']}
s_bitcmp1_b32 s2, 0
s_cselect_b32 s50, 0, {2 * 64 * 9216}
s_mul_i32 s{SG2W+2}, s{sRem}, 36864
s_add_u32 s{SG2W}, s{SGW}, s50
s_addc_u32 s{SG2W+1}, s{SGW+1}, 0
s_sub_u32 s{SG2W}, s{SG2W}, s{SG2W+2}
s_subb_u32 s{SG2W+1}, s{SG2W+1}, 0
s_bitcmp1_b32 s2, 0
s_cselect_b32 s50, 0, {2 * 262144}
s_add_u32 s50, s50, 16384
s_lshl_b32 s51, s{sRem}, 15
s_add_u32 s{SG2O}, s{SGO}, s50
s_addc_u32 s{SG2O+1}, s{SGO+1}, 0
s_sub_u32 s{SG2O}, s{SG2O}, s51
s_subb_u32 s{SG2O+1}, s{SG2O+1}, 0
s_max_u32 s51, s51, {16384 + 2048}
s_sub_u32 s{SG2O+2}, s51, {16384 + 2048}
s_mov_b32 s{SG2O+3}, 0x20000
s_cmp_eq_u32 s{sRem}, 0
s_cselect_b32 s50, s{sGive}, 0
s_add_u32 s{sRem}, s{sRem}, 4
s_sub_u32 s{sRem}, s{sRem}, s50""".split('\n')
        if s_ == G3 - 4 and NS > 64: G.mem[17].append(Ins(poll2, 'PL3'))
        if s_ == G3 and NS > 64: G.v[17] += spin_check('f3', poll2, ne1)
        if u == 3 and 11 <= c < NS // 4 - 1:
            G.sc[18] += [f's_sub_u32 s{sRem}, s{sRem}, 1', 's_cbranch_scc1 L_xchg']
        if s_ == 39:
            G.v[17] += f"""s_lshl_b32 s50, s2, 2
s_add_u32 s50, s50, s{sW}
s_mul_i32 s50, s50, 9216
s_add_u32 s50, s50, {WS_X}
s_add_u32 s{SO}, s{sWS}, s50
s_addc_u32 s{SO+1}, s{sWS+1}, 0
s_mov_b32 s{SO+2}, 9216
s_xor_b32 s50, s2, 1
s_lshl_b32 s51, s50, 2
s_add_u32 s51, s51, s{sW}
s_mul_i32 s51, s51, 9216
s_add_u32 s51, s51, {WS_X}
s_add_u32 s{SV}, s{sWS}, s51
s_addc_u32 s{SV+1}, s{sWS+1}, 0
s_mov_b32 s{SV+2}, 9216
s_and_b32 s50, s2, 2
s_lshl_b32 s50, s50, 2
s_lshr_b32 s51, s2, 5
s_add_u32 s50, s50, s51
s_lshl_b32 s50, s50, 2
s_add_u32 s50, s50, s{sW}
s_lshl_b32 s50, s50, 1
s_and_b32 s51, s2, 1
s_add_u32 s50, s50, s51
s_mul_i32 s50, s50, {16 * 2304}
s_bfe_u32 s51, s2, 0x10002
s_mul_i32 s51, s51, 1152
s_add_u32 s50, s50, s51
s_bfe_u32 s51, s2, 0x20003
s_mul_i32 s51, s51, 288
s_add_u32 s50, s50, s51
s_add_u32 s{SOUT}, s{sOUT}, s50
s_addc_u32 s{SOUT+1}, s{sOUT+1}, 0
s_mov_b32 s{SOUT+2}, {15 * 2304 + 288}""".split('\n')
        if 40 <= s_ < 45:
            k = s_ - 40
            vv = f"""v_add_u32 v28, {64 * k}, v2
v_mul_u32_u24 v29, 3641, v28
v_lshrrev_b32 v29, 16, v29
v_mul_u32_u24 v30, 18, v29
v_sub_u32 v30, v28, v30
v_lshlrev_b32 v30, 4, v30
v_mad_u32_u24 v{32 + k}, v29, s{sT0}, v30
v_mul_u32_u24 v29, 304, v29
v_add3_u32 v{44 + k}, v29, v30, v31""".split('\n')
            if k == 0:
                vv = [f's_movk_i32 s{sT0}, 2304', 'v_lshlrev_b32 v31, 13, v1', 'v_and_b32 v29, 15, v2', 'v_mul_u32_u24 v29, 304, v29', 'v_lshrrev_b32 v30, 4, v2',
                      'v_lshl_add_u32 v29, v30, 3, v29', 'v_add_u32 v39, v29, v31', f'v_add_u32 v37, 0x1000, v{VOFFO}', f'v_add_u32 v38, 0x2000, v{VOFFO}'] + vv
            for i, x in enumerate(vv): G.v[i].append(x)
        A.extend(G.weave(mf))
    A('L_xchg:')
    stamp(A, 10)
    A('s_nop 5\ns_bitcmp1_b32 s2, 0\ns_cbranch_scc1 L_x1')
    vo3 = [VOFFO, 37, 38]
    pollx = f'buffer_load_dword v{VPOLL}, v{VPP}, {srd(SFP)}, s{sW4} offen offset:32 sc1'
    for kh in range(2):
        if kh: A('L_x1:')
        for n in range(9):
            A(cl(f'buffer_store_dwordx4 v[{GACC(n, 1 - kh)}:{GACC(n, 1 - kh) + 3}], v{vo3[n // 4]}, {srd(SO)}, 0 offen offset:{(n % 4) * 1024} {OPT["st"]}'))
        if kh:
            A('s_nop 1')
            for n in range(9):
                for r in range(0, 4, 2): A(f'v_mov_b64 v[{GACC(n, 0) + r}:{GACC(n, 0) + r + 1}], v[{GACC(n, 1) + r}:{GACC(n, 1) + r + 1}]')
        else:
            A('s_branch L_x2')
    A('L_x2:')
    A('s_waitcnt vmcnt(0) lgkmcnt(0)')
    A(cl(f'buffer_store_dword v{VFLAG}, v{VL4}, {srd(SFL)}, 0 offen offset:32 {OPT["st"]}'))
    A(pollx)
    A('s_barrier')
    A.extend(spin_check('x', pollx, ne1))
    for n in range(9):
        A(f'buffer_load_dwordx4 v[{128 + 4 * n}:{131 + 4 * n}], v{vo3[n // 4]}, {srd(SV)}, 0 offen offset:{(n % 4) * 1024} sc1')
    for n in range(9):
        a = GACC(n, 0); b = 128 + 4 * n
        for r in range(0, 4, 2): A(f'v_pk_add_f32 v[{a + r}:{a + r + 1}], v[{a + r}:{a + r + 1}], v[{b + r}:{b + r + 1}]')
        A(f'v_cvt_pk_bf16_f32 v{b}, v{a}, v{a + 1}\nv_cvt_pk_bf16_f32 v{b + 1}, v{a + 2}, v{a + 3}')
        A(f'ds_write_b64 v39, v[{b}:{b + 1}] offset:{n * 32}')
    for k in range(5): A(f'ds_read_b128 v[{168 + 4 * k}:{171 + 4 * k}], v{44 + k}')
    for k in range(5): A(f'buffer_store_dwordx4 v[{168 + 4 * k}:{171 + 4 * k}], v{32 + k}, {srd(SOUT)}, 0 offen {OPT["out_st"]}'.rstrip())
    if OPT['stamps']:
        A('s_waitcnt vmcnt(0)')
        stamp(A, 11)
        if OPT['gtl']:
            A('s_lshl_b32 s50, s2, 10\ns_add_u32 s50, s50, 0x80000\nv_lshlrev_b32 v42, 2, v0\nbuffer_store_dword v59, v42, s[56:59], s50 offen')
        if OPT['diag'] == '0': store_stamps(A, 7)
        else:
            A(f'''s_memrealtime s[62:63]
s_load_dwordx2 s[4:5], s[0:1], 88
s_load_dwordx2 s[8:9], s[0:1], 80
s_getreg_b32 s50, hwreg(HW_REG_XCC_ID)
s_waitcnt lgkmcnt(0)
s_mov_b32 s6, 64
s_mov_b32 s7, 0x20000
s_mov_b32 s10, 4
s_mov_b32 s11, 0x20000
v_lshlrev_b32 v4, 6, v0
v_mov_b32 v5, s62
s_not_b32 s51, s60
v_mov_b32 v6, s51
buffer_atomic_umax v5, v4, s[4:7], 0 offen offset:4 sc1
buffer_atomic_umax v6, v4, s[4:7], 0 offen offset:8 sc1
v_mov_b32 v7, s60
buffer_atomic_umax v7, v4, s[4:7], 0 offen offset:12 sc1
s_and_b32 s51, s2, 7
s_lshl_b32 s51, s51, 2
buffer_atomic_umax v5, v4, s[4:7], s51 offen offset:16 sc1
s_not_b32 s50, s62
v_mov_b32 v8, s50
buffer_atomic_umax v8, v4, s[4:7], 0 offen offset:48 sc1
s_sub_u32 s50, s76, s64
v_mov_b32 v9, s50
buffer_atomic_umax v9, v4, s[4:7], 0 offen offset:52 sc1
s_sub_u32 s50, s82, s76
v_mov_b32 v10, s50
buffer_atomic_umax v10, v4, s[4:7], 0 offen offset:56 sc1
s_sub_u32 s50, s86, s82
v_mov_b32 v11, s50
buffer_atomic_umax v11, v4, s[4:7], 0 offen offset:60 sc1''')
    A('L_end:\ns_endpgm')
    A.resolve_waits()
    rep = []
    A.fix_hazards(rep)
    segs = {}
    for n, L in split_marks(A.L): segs.setdefault(n, []).append(L)
    M = {n: merge_segments(v) for n, v in segs.items()}
    if OPT['hole']:
        L = M['_start']; k = len(L) - 1
        while L[k].kind != 'mfma': k -= 1
        out = L[:k + 1]; since = 0; q = 0
        for x in L[k + 1:]:
            out.append(x); since += 2 if x.kind == 'trans' else 1
            if since >= 2 and x.kind in ('valu', 'trans'):
                out.append(Ins(mfma('a0', f'a{128 + 4 * (q % 16)}', f'a{128 + 4 * ((q // 3) % 16)}', 'a0'))); q += 1; since = 0
        M['_start'] = out
    F = Prog()
    F.extend(M['_start'])
    if int(OPT['burst']):
        F(f's_mov_b32 s50, {int(OPT["burst"])}\nL_burst:')
        for q in range(16):
            F(f'v_mfma_f32_32x32x16_bf16 a[{(q % 8) * 16}:{(q % 8) * 16 + 15}], v[{64 + 4 * (q % 8)}:{67 + 4 * (q % 8)}], a[{128 + 4 * q}:{131 + 4 * q}], a[{(q % 8) * 16}:{(q % 8) * 16 + 15}]')
            F(f'ds_read_b128 v[{96 + 4 * (q % 8)}:{99 + 4 * (q % 8)}], v4 offset:{q * 1024}')
            F(f'v_exp_f32 v{224 + q}, v{128 + q}\nv_add_f32 v{240 + q}, v{144 + q}, v{128 + q}')
        F('s_sub_u32 s50, s50, 1\ns_cbranch_scc0 L_burst\ns_waitcnt lgkmcnt(0)\ns_nop 15')
    F('L_s0:')
    F.extend(M['s0'])
    F('s_branch L_r1\n.p2align 6\nL_r0:')
    F.extend(M['r0'])
    F('L_r1:')
    for k in range(1, 7): F.extend(M[f'r{k}'])
    F('s_cbranch_scc1 L_sp')
    F.extend(M['r7'])
    F(f's_cbranch_scc1 L_r0\ns_cmp_eq_u32 s{sKo}, 0x80000\ns_cbranch_scc1 L_fin\ns_cmp_eq_u32 s{sKo}, 0x70000\ns_cbranch_scc1 L_b47\ns_cmp_eq_u32 s{sKo}, 0x60000\ns_cbranch_scc1 L_b39')
    for b in (7, 39, 47):
        F(f'L_b{b}:'); F.extend(M[f'b{b}']); F('s_branch L_r0')
    F('L_sp:')
    F.extend(M['sp31'])
    if OPT['w1']: F('s_branch L_r1')
    else:
        F.extend(M['epi']); F('s_branch L_s0')
    for nm, p, mode in [(f'r{k}', k & 1, 0) for k in range(8)] + [(f'p{k}', k & 1, 0) for k in range(56, 63)] + [('sp31', 1, 1), ('fin31', 1, 1)]:
        F(f'L_st_{nm}:\ns_mov_b32 s{sMODE}, {mode}\ns_call_b64 s[{sRET}:{sRET + 1}], L_fb{p}')
        if OPT['lag'] and mode == 0: F(softmax_stream(3 - p)[0][0])
        F(f's_branch L_bk_{nm}')
    F.extend(fallback(0).L); F.extend(fallback(1).L)
    for x in SPINS: F(x)
    F('L_fin:')
    F.extend(M['b55'])
    for k in range(56, 63): F.extend(M[f'p{k}'])
    F.extend(M['fin31'])
    F.extend(M['tail'])
    return F, rep

def build(path):
    A, rep = gen()
    hdr = open('cdna_kernels/' + NAME + '.s.ref').read().split('; Override launch')[0]
    t = hdr + '; @launch grid=(256,1,1) block=(256,1,1) lds=163840\n'
    t += '.amdgcn_target "amdgcn-amd-amdhsa--gfx950"\n.text\n' + MACROS
    t += prolog(KNAME) + A.text() + 'L_code_end:\n'
    t += kd(KNAME, 512, 100, 256)
    open(path, 'w').write(t)
    return rep, len(t)

if __name__ == '__main__':
    path = sys.argv[1]
    for kv in sys.argv[2:]:
        k, v = kv.split('=')
        assert k in OPT, k
        OPT[k] = (v == '1') if isinstance(OPT.get(k), bool) else v
    rep, n = build(path)
    from collections import Counter
    print('bytes', n, 'pads', Counter((a, b.split()[0]) for a, b in rep).most_common(12))
```

```python
import sys, math, struct
from common import *
from asmlib import *

OPT = dict(nt_kv='nt', nt_x='nt', nt_w='nt', st='sc1', g_o='sc1', g_w='sc1', stamps=False, tl=False, gtl=False,
           epg='4', f2s='10', p2s='23', g2s='25', gs0='6', gs1='58', lo='5', lw='4', w1=False, qtl=False, pl='2', lag=True, ost='sc1', nb='3', jo='2', verbose=False, su='0', pf='2', bar1=False, kv0='48', bm='5', ba='2', bmax='4', out_st='sc1', hole=False, atom='1', diag='0', l2n='0', l2p='nt', l2t='6', burst='0', l2s='1', l2g='44', l2='', tight='0', l2e='0')
WS_WO = 33554432
WS_X = 44 << 20
WS_FL = 56 << 20
WS_STAMP = 64 << 20
SCALE = math.log2(math.e) / math.sqrt(128.0)
def f2i(x): return struct.unpack('<I', struct.pack('<f', x))[0]
KNAME = NAME + '_kernel'

SK, SV, SX, SW_, SO, SWS, SWD, SFL = 4, 8, 12, 16, 20, 24, 28, 88
SGO, SGW, SFP, SOUT = 12, 16, 24, 28
sWS, sOUT, sDBG = 52, 54, 46
sW, sW2K, sW4K, sT0, sKo, sVo, sSC, sTHR, sXo, sRET, sMODE, sWe = 32, 33, 34, 35, 36, 37, 38, 40, 41, 42, 44, 45
sJ, sCnt, sHead, sOo = 48, 94, 95, 96
SG2W, SG2O, sGive, sRem, sW4 = 4, 92, 46, 47, 49
VPP, VPG, VPR = 41, 42, 43
def srd(n): return f's[{n}:{n+3}]'
VPA, KADDR, VADDR, VOFFK, VOFFV, LREG, ETMP, CT, NEGM, VOFFO, VFLAG, VPOLL, VL4 = 3, 4, 8, 16, 18, 20, 28, 40, 44, 60, 61, 62, 63
KF, VF, SB, PB, EP = 64, 96, 128, 192, 224
NE = 12
def S(p, kt, qt): return SB + p * 32 + (kt * 4 + qt) * 4
def P(p, qt): return PB + p * 16 + qt * 4
def Lr(p, qt): return LREG + p * 4 + qt
def O(T, qt): return (T * 4 + qt) * 4
def Q(h, qt, u): return 128 + h * 64 + (u * 4 + qt) * 4
VSV, VSK, WADDR, XADDR, VOFFW, VOFFX, VOFFJ, JADDR = 20, 24, 64, 80, 84, 88, 92, 3
CW0, CW1, CR = 61, 62, 63
def QACC(h, T, qt): return (f'v{128 + (T * 4 + qt) * 4}' if h == 1 else f'a{(T * 4 + qt) * 4}')
def XF(t, qt): return (28 if (t >> 1) & 1 else 96) + ((t & 1) * 4 + qt) * 4
NWS = 24
def WF(slot): return 128 + slot * 4
BLK = 16384
def wblock(t): return [(4, 1), (7, 3), (8, 9)][(t >> 1) % 3][t & 1]
def xblock(p): return [2, 5, 6][p % 3]
def cl(s): return ' '.join(s.split())
def rng(r, n): return f'{r[0]}[{int(r[1:])}:{int(r[1:]) + n - 1}]'

def dma_kv(which, tile):
    base = (0 if which == 'K' else 65536) + (tile % 8) * 8192
    s, vo, so = (SK, VOFFK, sKo) if which == 'K' else (SV, VOFFV, sVo)
    tag = f'{which}{tile}'; nt = OPT['nt_kv']
    return [([f's_add_u32 m0, s{sW2K}, {base}'], Ins(cl(f'buffer_load_dwordx4 v{vo}, {srd(s)}, s{so} offen {nt} lds'), tag), []),
            ([], Ins(cl(f'buffer_load_dwordx4 v{vo + 1}, {srd(s)}, s{so} offen offset:1024 {nt} lds'), tag), [f's_add_u32 s{so}, s{so}, 8192'])]
def dma4(s, vo, off, blk, tag, nt, so=sWe):
    return [([f's_mov_b32 s{so}, {off}', f's_add_u32 m0, s{sW4K}, {blk * BLK}'] if n == 0 else [],
             Ins(cl(f'buffer_load_dwordx4 v{vo + n}, {srd(s)}, s{so} offen offset:{n * 1024} {nt} lds'), tag), []) for n in range(4)]
def dma_w(t): return dma4(SW_, VOFFW, t * 32 * 8192, wblock(t), f'W{t}', OPT['nt_w'])
def dma_x(p): return dma4(SX, VOFFX, (p >> 1) * 128 + (p & 1) * 32 * 1152, xblock(p), f'X{p}', OPT['nt_x'], sXo)
def dma_kk(i): return dma4(SK, VSK, i * 16384, i, f'KK{i}', OPT['nt_kv'])
def dma_vv(i): return dma4(SV, VSV, i * 16384, 4 + i, f'VV{i}', OPT['nt_kv'])
def flat(dl):
    out = []
    for pre, ins, post in dl: out += pre + [ins] + post
    return out

def I(x): return x if isinstance(x, Ins) else Ins(x)
def cost(x):
    k = x.kind
    return {'trans': 8, 'valu': 4, 'dsr': 4, 'dsw': 4, 'dma': 12, 'vld': 12, 'vst': 12}.get(k, 0 if k in ('label', 'dir', 'waitvm', 'waitlg') else 4)
class Gaps:
    def __init__(self, n):
        self.n = n; self.sc = [[] for _ in range(n + 1)]; self.mem = [[] for _ in range(n)]; self.v = [[] for _ in range(n)]
    def place_dma(self, dl, gaps):
        assert len(gaps) >= len(dl), (len(gaps), len(dl))
        for (pre, ins, post), g in zip(dl, gaps):
            for k, s in enumerate(pre): self.sc[g - len(pre) + k].append(s)
            self.mem[g].append(ins)
            for k, s in enumerate(post): self.sc[g + 1 + k].append(s)
    def load(self, g): return sum(cost(I(x)) for x in self.mem[g] + self.v[g])
    def pack(self, items, g0, g1):
        items = [I(x) for x in items]
        base = [self.load(g) for g in range(self.n)]
        for L in range(8, 400, 2):
            g = g0; used = 0; vhere = False; pos = []; ok = True
            for x in items:
                c = cost(x); ismem = x.kind in ('dsr', 'dsw', 'dma', 'vld', 'vst')
                while True:
                    if g >= g1: ok = False; break
                    room = L - base[g] - used
                    if ismem and (vhere or (self.mem[g] and L < 20)): fit = False
                    else: fit = c <= room or (c == 0) or (used == 0 and base[g] == 0)
                    if fit: break
                    g += 1; used = 0; vhere = False
                if not ok: break
                pos.append(g); used += c
                if not ismem: vhere = True
                else: vhere = True if False else vhere
            if ok: break
        assert ok
        for x, g in zip(items, pos):
            (self.mem if x.kind in ('dsr', 'dsw', 'dma', 'vld', 'vst') else self.v)[g].append(x)
        return pos
    def weave(self, mf, a=0, b=None):
        out = []
        b = self.n if b is None else b
        for i in range(a, b):
            if i < len(mf) and mf[i] is not None: out.append(mf[i])
            out += self.sc[i] + self.mem[i] + self.v[i]
        if b == self.n: out += self.sc[self.n]
        return out

def k_reads(tile):
    return [Ins(f'ds_read_b128 v[{KF + (kt * 4 + u) * 4}:{KF + (kt * 4 + u) * 4 + 3}], v{KADDR + u} offset:{(tile % 8) * 8192 + kt * 4096}', f'rK{tile}')
            for kt in range(2) for u in range(4)]
def v_reads(tile):
    return [Ins(f'ds_read_b64_tr_b16 v[{VF + T * 4 + s * 2}:{VF + T * 4 + s * 2 + 1}], v{VADDR + T} offset:{(tile % 8) * 8192 + s * 4096}', f'rV{tile}')
            for T in range(8) for s in range(2)]
def qk_mfmas(j):
    h = 1 if j in ((32, 33) if OPT['w1'] else (32,)) else 0
    p = j & 1; first = (j & 31) == 0
    out = []
    for kt in range(2):
        for u in range(4):
            for qt in range(4):
                c = f'v{S(p, kt, qt)}' if u else ('0' if first else f'v{NEGM + qt * 4}')
                out.append(mfma(f'v{S(p, kt, qt)}', f'v{KF + (kt * 4 + u) * 4}', f'a{Q(h, qt, u)}', c))
    return out
def pv_mfmas(j):
    p = j & 1; first = (j & 31) == 0
    return [mfma(f'a{O(T, qt)}', f'v{VF + T * 4}', f'v{P(p, qt)}', '0' if first else f'a{O(T, qt)}') for T in range(8) for qt in range(4)]

def softmax_stream(j):
    p = j & 1; first = (j & 31) == 0
    out = []
    for qt in range(4):
        for k in range(8):
            e = ETMP + (qt * 8 + k) % NE
            src = S(p, k >> 2, qt) + (k & 3)
            out.append([f'v_exp_f32 v{e}, v{src}'])
            l = Lr(p, qt)
            if k == 0: a = f'v_mov_b32 v{l}, v{e}' if first else f'v_add_f32 v{l}, v{Lr(1 - p, qt)}, v{e}'
            else: a = f'v_add_f32 v{l}, v{l}, v{e}'
            g = [a]
            if k & 1:
                e0 = ETMP + (qt * 8 + k - 1) % NE
                g.append(f'v_cvt_pk_bf16_f32 v{P(p, qt) + (k >> 1)}, v{e0}, v{e}')
            out.append(g)
    return out
def lagged(stream):
    out = [[] for _ in range(len(stream) + 2)]
    for i, g in enumerate(stream): out[i + (2 if i & 1 else 0)] += g
    return out
def undense(st):
    return [x for g in st for x in g]
def dense(stream):
    out = []; prev = []
    for i in range(0, len(stream), 2):
        out += stream[i]; out += prev; prev = stream[i + 1] if i + 1 < len(stream) else []
    return out + prev
def rowmax(p, qt, dst):
    s0 = S(p, 0, qt); s1 = S(p, 1, qt)
    return [f'v_max3_f32 v{dst}, v{s0}, v{s0 + 1}, v{s0 + 2}', f'v_max3_f32 v{dst}, v{dst}, v{s0 + 3}, v{s1}',
            f'v_max3_f32 v{dst}, v{dst}, v{s1 + 1}, v{s1 + 2}', f'v_max_f32 v{dst}, v{dst}, v{s1 + 3}']
def xlane(op, regs, tmps):
    out = []
    for sw in ('v_permlane16_swap_b32', 'v_permlane32_swap_b32'):
        out += [f'v_mov_b32 v{t}, v{r}' for r, t in zip(regs, tmps)]
        out += [f'{sw} v{t}, v{r}' for r, t in zip(regs, tmps)]
        out += [f'{op} v{r}, v{r}, v{t}' for r, t in zip(regs, tmps)]
    return out
def init_stream(j):
    p = j & 1
    m = [NEGM + qt * 4 for qt in range(4)]; t = [NEGM + qt * 4 + 1 for qt in range(4)]
    out = []
    rm = [rowmax(p, qt, m[qt]) for qt in range(4)]
    for k in range(4): out += [rm[qt][k] for qt in range(4)]
    out += xlane('v_max_f32', m, t)
    for qt in range(4):
        for k in range(8):
            s = S(p, k >> 2, qt) + (k & 3)
            out.append(f'v_sub_f32 v{s}, v{s}, v{m[qt]}')
    for qt in range(4):
        for r in (3, 2, 1, 0): out.append(f'v_sub_f32 v{NEGM + qt * 4 + r}, 0, v{m[qt]}')
    return out

def epilogue(packed):
    l = [Lr(1, qt) for qt in range(4)]
    t = [EP + 8 + i for i in range(4)]
    prep = xlane('v_add_f32', l, t)
    rc = [EP + 2 * i for i in range(4)]
    prep += [f'v_rcp_f32 v{rc[qt]}, v{l[qt]}' for qt in range(4)]
    units = []
    for k in range(16):
        u, qt = divmod(k, 4)
        b = EP + 8 + (k % 2) * 12
        rd = [f'v_accvgpr_read_b32 v{b + i}, a{O(2 * u + (i >> 2), qt) + (i & 3)}' for i in range(8)]
        if packed: mu = [f'v_pk_mul_f32 v[{b + 2 * i}:{b + 2 * i + 1}], v[{b + 2 * i}:{b + 2 * i + 1}], v[{rc[qt]}:{rc[qt] + 1}] op_sel_hi:[1,0]' for i in range(4)]
        else: mu = [f'v_mul_f32 v{b + i}, v{rc[qt]}, v{b + i}' for i in range(8)]
        cv = [f'v_cvt_pk_bf16_f32 v{b + 8 + i}, v{b + 2 * i}, v{b + 2 * i + 1}' for i in range(4)]
        st = [Ins(cl(f'buffer_store_dwordx4 v[{b + 8}:{b + 11}], v{VOFFO}, {srd(SO)}, s{sOo} offen offset:{qt * 1024} {OPT["ost"]}'), 'Ost')]
        if qt == 3: st.append(f's_add_u32 s{sOo}, s{sOo}, 4096')
        units.append((rd, mu, cv, st))
    return prep, units
def epi_flat(units):
    L = []; first = []; lastrd = []
    for k, (rd, mu, cv, st) in enumerate(units):
        first.append(len(L)); L += rd; lastrd.append(len(L) - 1)
        if k: L += units[k - 1][3]
        L += mu + cv
    L += units[-1][3]
    return L, first, lastrd

SPINS = []
def spin_check(name, load, cmp):
    SPINS.append(f"""L_spin_{name}:
s_mov_b32 s{sT0}, 0x40000
L_spin2_{name}:
s_sleep 1
{load}
s_sub_u32 s{sT0}, s{sT0}, 1
s_cbranch_scc1 L_back_{name}
s_waitcnt vmcnt(0)
{cmp}
s_nop 1
s_cbranch_vccnz L_spin2_{name}
s_branch L_back_{name}""")
    return [cmp, f's_cbranch_vccnz L_spin_{name}', f'L_back_{name}:']

def fallback(p):
    A = Prog()
    A(f'L_fb{p}:')
    A('s_nop 7\ns_nop 7')
    m = [EP + i for i in range(4)]; t = [EP + 4 + i for i in range(4)]; f = [EP + 8 + i for i in range(4)]
    rm = [rowmax(p, qt, m[qt]) for qt in range(4)]
    for k in range(4): A.extend([rm[qt][k] for qt in range(4)])
    A.extend(xlane('v_max_f32', m, t))
    for qt in range(4): A(f'v_max_f32 v{m[qt]}, 0, v{m[qt]}')
    for qt in range(4): A(f'v_exp_f32 v{f[qt]}, -v{m[qt]}')
    for qt in range(4):
        for k in range(8):
            s = S(p, k >> 2, qt) + (k & 3)
            A(f'v_sub_f32 v{s}, v{s}, v{m[qt]}')
        for r in range(4): A(f'v_sub_f32 v{NEGM + qt * 4 + r}, v{NEGM + qt * 4 + r}, v{m[qt]}')
        A(f'v_mul_f32 v{Lr(1 - p, qt)}, v{Lr(1 - p, qt)}, v{f[qt]}')
    A(f's_cmp_lg_u32 s{sMODE}, 0')
    A(f's_cbranch_scc1 L_fb{p}_b')
    for qt in range(4):
        for k in range(8):
            s = S(1 - p, k >> 2, qt) + (k & 3)
            A(f'v_sub_f32 v{s}, v{s}, v{m[qt]}')
    A(f'L_fb{p}_b:')
    for T in range(8):
        for qt in range(4):
            b = EP + 12 + ((T * 4 + qt) % 2) * 4
            for r in range(4): A(f'v_accvgpr_read_b32 v{b + r}, a{O(T, qt) + r}')
            for r in range(4): A(f'v_mul_f32 v{b + r}, v{b + r}, v{f[qt]}')
            for r in range(4): A(f'v_accvgpr_write_b32 a{O(T, qt) + r}, v{b + r}')
    A.extend(dense(softmax_stream(2 + p)))
    A('s_nop 3')
    A(f's_setpc_b64 s[{sRET}:{sRET + 1}]')
    A.fix_hazards()
    return A

def stamp(A, idx, base=64):
    if OPT['stamps'] and not OPT['qtl']: A(f's_memtime s[{base + idx * 2}:{base + idx * 2 + 1}]')
def store_stamps(A, n):
    A('s_memrealtime s[62:63]\ns_waitcnt lgkmcnt(0)')
    A('v_lshrrev_b32 v1, 6, v0\ns_lshl_b32 s50, s2, 2\nv_add_u32 v1, s50, v1\nv_lshlrev_b32 v1, 7, v1')
    A('v_and_b32 v2, 63, v0\nv_cmp_eq_u32 vcc, 0, v2\ns_and_saveexec_b64 s[50:51], vcc')
    for i in range(n):
        for k in range(4): A(f'v_mov_b32 v{4 + k}, s{60 + i * 4 + k}')
        A(f'buffer_store_dwordx4 v[4:7], v1, s[56:59], 0 offen offset:{i * 16}')
        A('s_nop 1')

def code_prefetch(A, start, end, va, vd, n, first=0, tag=''):
    A(f's_getpc_b64 s[50:51]')
    A(f'L_pc{tag}_{start}:')
    if start == KNAME: A(f's_sub_u32 s50, s50, L_pc{tag}_{start}-{start}\ns_subb_u32 s51, s51, 0')
    else: A(f's_add_u32 s50, s50, {start}-L_pc{tag}_{start}\ns_addc_u32 s51, s51, 0')
    A(f'v_lshlrev_b32 v{va}, 7, v0')
    if first: A(f'v_add_u32 v{va}, {first * 0x8000}, v{va}')
    for i in range(n):
        A(f'v_min_u32 v{va + 1}, {end}-{start}-4, v{va}')
        A(f'global_load_dword v{vd + i}, v{va + 1}, s[50:51]', tag='pf')
        if i + 1 < n: A(f'v_add_u32 v{va}, 0x8000, v{va}')

DEF_V = []; DEF_S = []
def setup(A):
    A('s_cmp_ge_u32 s2, 256\ns_cbranch_scc1 L_end')
    A(f"""s_bfe_u32 s48, s2, 0x10002
s_mul_i32 s50, s48, 40
s_add_u32 s52, s0, s50
s_addc_u32 s53, s1, 0
s_load_dwordx2 s[{SX}:{SX+1}], s[52:53], 0
s_load_dwordx2 s[{SW_}:{SW_+1}], s[52:53], 24
s_lshr_b32 s51, s2, 7
s_mul_i32 s51, s51, 40
s_add_u32 s54, s0, s51
s_addc_u32 s55, s1, 0
s_load_dwordx2 s[{SK}:{SK+1}], s[52:53], 8
s_load_dwordx2 s[{SV}:{SV+1}], s[52:53], 16
s_load_dwordx2 s[{SWS}:{SWS+1}], s[54:55], 32
s_load_dwordx2 s[{SO}:{SO+1}], s[0:1], 96
s_load_dwordx4 s[92:95], s[0:1], 80""")
    if OPT['stamps']: A('s_memrealtime s[60:61]')
    stamp(A, 0)
    if OPT['pf'] == '1': code_prefetch(A, KNAME, 'L_code_end', 100, 252, 1)
    elif OPT['pf'] == '2':
        A(f'''s_getpc_b64 s[50:51]
L_pcx:
s_sub_u32 s50, s50, L_pcx-{KNAME}
s_subb_u32 s51, s51, 0
s_lshr_b32 s48, s2, 3
s_cmp_ge_u32 s48, 3
s_cbranch_scc1 L_nopf
s_lshl_b32 s48, s48, 15
v_lshlrev_b32 v100, 7, v0
v_add_u32 v100, s48, v100
v_min_u32 v100, L_code_end-{KNAME}-4, v100''')
        A('global_load_dword v252, v100, s[50:51]', tag='pf')
        A('L_nopf:')
    A(f"""s_and_b32 s46, s2, 6
s_lshl_b32 s46, s46, 1
s_lshr_b32 s48, s2, 6
s_add_u32 s46, s46, s48
s_and_b32 s47, s2, 1
s_lshl_b32 s47, s47, 3
s_bfe_u32 s48, s2, 0x30003
s_add_u32 s47, s47, s48
s_and_b32 s49, s46, 7
v_lshrrev_b32 v1, 6, v0
v_and_b32 v2, 63, v0
v_readfirstlane_b32 s{sW}, v1
v_lshrrev_b32 v97, 4, v2
v_lshrrev_b32 v100, 3, v2
v_lshl_add_u32 v100, v1, 6, v100
v_mul_u32_u24 v100, 1152, v100
s_lshl_b32 s{sW4K}, s{sW}, 12
v_and_b32 v101, 7, v2
v_xor_b32 v101, v101, v97
v_lshl_add_u32 v{VOFFX}, v101, 4, v100
v_xor_b32 v101, 4, v101
v_lshl_add_u32 v102, v101, 4, v100
v_add_u32 v{VOFFX + 1}, {8 * 1152 - 1024}, v102
v_add_u32 v{VOFFX + 2}, {2 * (8 * 1152 - 1024)}, v{VOFFX}
v_add_u32 v{VOFFX + 3}, {3 * (8 * 1152 - 1024)}, v102
v_lshrrev_b32 v100, 5, v2
v_and_b32 v101, 31, v2
v_and_b32 v102, 1, v1
v_lshl_add_u32 v102, v102, 2, v100
v_lshl_add_u32 v103, v1, 3, v100
v_lshlrev_b32 v103, 13, v103
v_lshlrev_b32 v104, 1, v102
v_xor_b32 v104, v104, v101
v_lshl_add_u32 v{VOFFW}, v104, 4, v103
v_xor_b32 v104, 64, v{VOFFW}
v_add_u32 v{VOFFW + 1}, {16384 - 1024}, v104
v_add_u32 v{VOFFW + 2}, {2 * (16384 - 1024)}, v{VOFFW}
v_add_u32 v{VOFFW + 3}, {3 * (16384 - 1024)}, v104
s_mul_i32 s50, s49, 294912
s_lshl_b32 s51, s47, 9
s_mov_b32 s{SX+2}, 294912
s_mov_b32 s{SX+3}, 0x20000
s_sub_u32 s{SW_+2}, {576 * 8192}, s51
s_mov_b32 s{SW_+3}, 0x20000
s_waitcnt lgkmcnt(0)""")
    stamp(A, 1)
    A(f"""s_add_u32 s{SX}, s{SX}, s50
s_addc_u32 s{SX+1}, s{SX+1}, 0
s_add_u32 s{SW_}, s{SW_}, s51
s_addc_u32 s{SW_+1}, s{SW_+1}, 0""")
    A.extend(flat(dma_w(0)) + flat(dma_x(0)) + flat(dma_x(1)) + flat(dma_w(1)))
    A(f"""v_and_b32 v96, 15, v2
v_and_b32 v98, 3, v2
v_bfe_u32 v99, v2, 2, 2
v_lshl_add_u32 v100, v97, 3, v99
v_and_b32 v101, 1, v97
v_lshl_add_u32 v101, v101, 2, v99
v_lshlrev_b32 v101, 5, v101
v_lshl_add_u32 v101, v100, 9, v101
v_lshl_add_u32 v101, v98, 3, v101
v_add_u32 v{WADDR}, {BLK}, v101""")
    for T in range(1, 8): A(f'v_xor_b32 v{WADDR + T}, {T * 32}, v{WADDR}')
    A(f"""v_lshrrev_b32 v100, 1, v96
v_xor_b32 v100, v100, v97
v_lshlrev_b32 v100, 4, v100
v_lshl_add_u32 v100, v96, 7, v100
v_lshl_add_u32 v100, v1, 12, v100
v_add_u32 v{XADDR}, {2 * BLK}, v100
v_xor_b32 v{XADDR + 1}, 64, v{XADDR}
v_add_u32 v{XADDR + 2}, {4 * BLK}, v{XADDR}
v_add_u32 v{XADDR + 3}, {4 * BLK}, v{XADDR + 1}""")
    if OPT['su'] == '0':
        A.extend(flat(dma_x(2)) + flat(dma_w(2)) + flat(dma_w(3)))
        if OPT['pf'] == '1': code_prefetch(A, KNAME, 'L_code_end', 100, 253, 2, first=1, tag='b')
    KVS = f"""s_lshl_b32 s50, s49, 23
s_lshl_b32 s51, s47, 19
s_add_u32 s50, s50, s51
s_add_u32 s{SK}, s{SK}, s50|s_addc_u32 s{SK+1}, s{SK+1}, 0
s_mov_b32 s{SK+2}, 0x80000
s_mov_b32 s{SK+3}, 0x20000
s_add_u32 s{SV}, s{SV}, s50|s_addc_u32 s{SV+1}, s{SV+1}, 0
s_mov_b32 s{SV+2}, 0x80000
s_mov_b32 s{SV+3}, 0x20000"""
    ne = int(OPT['l2e'])
    if ne:
        A(KVS.replace('|', '\n')); KVS = ''
        A(f'v_lshlrev_b32 v100, 7, v2\nv_mul_u32_u24 v101, {ne * 1024}, v1\nv_add_u32 v100, v100, v101\nv_cmp_le_u32 vcc, {ne * 8}, v2\nv_cndmask_b32 v100, v100, -1, vcc')
        A(f's_mov_b32 s50, {8 * 8192}\ns_mov_b32 s51, {6 * 8192}')
        A(cl(f'buffer_load_dword a254, v100, {srd(SK)}, s50 offen {OPT["l2p"]}'), tag='l2')
        A(cl(f'buffer_load_dword a253, v100, {srd(SV)}, s51 offen {OPT["l2p"]}'), tag='l2')
    V = DEF_V; a, b, c, d, l15, g = 92, 93, 94, 95, 61, 62
    V += [f'v_add_u32 v{WADDR + 8 + T}, {6 * BLK}, v{WADDR + T}' for T in range(8)]
    V += f"""v_lshlrev_b32 v{VOFFO}, 4, v2
v_and_b32 v{l15}, 15, v2
v_lshrrev_b32 v{g}, 4, v2
v_lshlrev_b32 v{a}, 11, v1
v_lshl_add_u32 v{a}, v{g}, 8, v{a}
v_lshl_add_u32 v{b}, v1, 3, v{g}""".split('\n')
    for o in range(2):
        V += f"""v_add_u32 v{c}, {4 * o}, v{b}
v_and_b32 v{d}, 15, v{c}
v_xor_b32 v{d}, v{d}, v{l15}
v_lshl_add_u32 v{VOFFK + o}, v{d}, 4, v{a}
v_and_b32 v{d}, 7, v{c}
v_lshlrev_b32 v{d}, 1, v{d}
v_xor_b32 v{d}, v{d}, v{l15}
v_lshl_add_u32 v{VOFFV + o}, v{d}, 4, v{a}""".split('\n')
    V += [f'v_lshlrev_b32 v{a}, 12, v1', f'v_lshl_add_u32 v{a}, v{g}, 8, v{a}']
    for n in range(4):
        V += f"""v_add_u32 v{c}, {4 * n}, v{g}
v_xor_b32 v{d}, v{c}, v{l15}
v_lshl_add_u32 v{VSK + n}, v{d}, 4, v{a}
v_and_b32 v{d}, 7, v{c}
v_lshlrev_b32 v{d}, 1, v{d}
v_xor_b32 v{d}, v{d}, v{l15}
v_lshl_add_u32 v{VSV + n}, v{d}, 4, v{a}""".split('\n')
    V += [f'v_xor_b32 v{a}, v{g}, v{l15}', f'v_lshlrev_b32 v{a}, 4, v{a}', f'v_lshl_add_u32 v{KADDR}, v{l15}, 8, v{a}']
    V += [f'v_xor_b32 v{KADDR + u}, {u * 64}, v{KADDR}' for u in range(1, 4)]
    V += f"""v_lshrrev_b32 v{a}, 2, v2
v_and_b32 v{b}, 7, v{a}
v_lshlrev_b32 v{b}, 5, v{b}
v_lshl_add_u32 v{b}, v{a}, 8, v{b}
v_and_b32 v{c}, 3, v2
v_lshl_add_u32 v{b}, v{c}, 3, v{b}
v_add_u32 v{VADDR}, 0x10000, v{b}
v_mul_u32_u24 v{a}, 384, v{a}
v_lshl_add_u32 v{a}, v{c}, 3, v{a}
v_mul_u32_u24 v{b}, 96, v1
v_add_u32 v{JADDR}, v{a}, v{b}""".split('\n')
    V += [f'v_xor_b32 v{VADDR + T}, {T * 32}, v{VADDR}' for T in range(1, 8)]
    V += f"""v_bfe_u32 v{a}, v2, 2, 1
v_lshlrev_b32 v{a}, 1, v{a}
v_bfe_u32 v{b}, v2, 3, 1
v_mul_u32_u24 v{b}, 3, v{b}
v_xor_b32 v{a}, v{a}, v{b}
v_lshlrev_b32 v{c}, 6, v{l15}
v_lshl_add_u32 v{c}, v1, 12, v{c}
v_add_u32 v{c}, {6 * BLK}, v{c}
v_xor_b32 v{b}, v{a}, v{g}
v_lshl_add_u32 v{CR}, v{b}, 4, v{c}
v_lshrrev_b32 v{b}, 1, v{g}
v_xor_b32 v{b}, v{b}, v{a}
v_lshl_add_u32 v{c}, v{b}, 4, v{c}
v_and_b32 v{b}, 1, v{g}
v_lshl_add_u32 v{CW0}, v{b}, 3, v{c}""".split('\n')
    for n in range(3):
        t = VOFFJ + n
        V += f"""v_add_u32 v{d}, {64 * n}, v2
v_mul_u32_u24 v{t}, 2731, v{d}
v_lshrrev_b32 v{t}, 16, v{t}
v_mul_u32_u24 v{CW1}, 24, v{t}
v_sub_u32 v{d}, v{d}, v{CW1}
v_lshl_add_u32 v{t}, v1, 3, v{t}
v_mul_u32_u24 v{t}, 1152, v{t}
v_lshl_add_u32 v{t}, v{d}, 4, v{t}
v_subrev_u32 v{t}, {n * 1024}, v{t}""".split('\n')
    V += [f'v_xor_b32 v{CW1}, 32, v{CW0}']
    S_ = f"""s_and_b32 s50, s2, 127
s_mul_i32 s50, s50, 36864
s_add_u32 s{SWS}, s{SWS}, s50|s_addc_u32 s{SWS+1}, s{SWS+1}, 0
s_mov_b32 s{SWS+2}, 36864
s_mov_b32 s{SWS+3}, 0x20000
s_lshl_b32 s{sW2K}, s{sW}, 11
{KVS}
s_mov_b32 s{sWS}, s{SO}
s_mov_b32 s{sWS+1}, s{SO+1}
s_mov_b32 s{sOUT}, s92
s_mov_b32 s{sOUT+1}, s93
s_lshr_b32 s50, s2, 7
s_lshl_b32 s50, s50, 9
s_and_b32 s51, s2, 64
s_add_u32 s50, s50, s51
s_bfe_u32 s51, s2, 0x10002
s_lshl_b32 s51, s51, 5
s_add_u32 s50, s50, s51
s_bfe_u32 s51, s2, 0x30003
s_lshl_b32 s51, s51, 2
s_add_u32 s50, s50, s51
s_and_b32 s51, s2, 3
s_add_u32 s50, s50, s51
s_mul_i32 s50, s50, 9216
s_add_u32 s50, s50, {WS_WO}
s_add_u32 s{SWD}, s{SO}, s50|s_addc_u32 s{SWD+1}, s{SO+1}, 0
s_mov_b32 s{SWD+2}, {3 * 128 * 9216 + 9216}
s_mov_b32 s{SWD+3}, 0x20000
s_lshl_b32 s50, s2, 7
s_lshl_b32 s51, s{sW}, 2
s_add_u32 s50, s50, s51
s_add_u32 s50, s50, {WS_FL}
s_add_u32 s{SFL}, s{SO}, s50|s_addc_u32 s{SFL+1}, s{SO+1}, 0
s_mov_b32 s{SFL+2}, 68
s_mov_b32 s{SFL+3}, 0x20000""".split('\n')
    if OPT['stamps']:
        S_ += [f's_add_u32 s56, s{SO}, {WS_STAMP}|s_addc_u32 s57, s{SO+1}, 0', 's_mov_b32 s58, 0x100000', 's_mov_b32 s59, 0x20000']
    S_ += f"""s_lshl_b32 s50, s46, 2
s_add_u32 s50, s50, s{sW}
s_lshl_b32 s50, s50, 19
s_lshl_b32 s51, s47, 15
s_add_u32 s50, s50, s51
s_add_u32 s{SO}, s{SO}, s50|s_addc_u32 s{SO+1}, s{SO+1}, 0
s_mov_b32 s{SO+2}, 32768
s_mov_b32 s{SO+3}, 0x20000
s_mov_b32 s{sSC}, {f2i(SCALE):#x}
s_mov_b32 s{sTHR}, {f2i(2.0 ** 24):#x}
s_mov_b32 s{sOo}, 0
s_mov_b32 s{sDBG}, s94
s_mov_b32 s{sDBG+1}, s95
s_mov_b32 s{sKo}, {8 * 8192}
s_mov_b32 s{sVo}, {6 * 8192}
s_mov_b32 s{sCnt}, 3
s_mov_b32 s{sHead}, 0""".split('\n')
    DEF_S.extend(x for x in S_ if x)

def x_reads(pc):
    c = pc >> 1; blk = xblock(pc)
    return [Ins(f'ds_read_b128 v[{XF(2 * c + ks, 2 * (pc & 1) + qq)}:{XF(2 * c + ks, 2 * (pc & 1) + qq) + 3}], v{XADDR + ks + (2 if blk == 6 else 0)} offset:{(0 if blk == 6 else (blk - 2) * BLK) + qq * 2048}', f'rX{pc}')
            for ks in range(2) for qq in range(2)]
def w_read(t, h, T, dst):
    blk = wblock(t)
    ad = WADDR + T if blk <= 4 else WADDR + 8 + T
    off = (blk - 1 if blk <= 4 else blk - 7) * BLK + h * 256
    d = int(dst[1:])
    return [Ins(f'ds_read_b64_tr_b16 {dst[0]}[{d + 2 * s}:{d + 2 * s + 1}], v{ad} offset:{off + s * 2048}', f'rW{t}') for s in range(2)]
def w_reads(t):
    out = []
    for f in range(16): out += w_read(t, f >> 3, f & 7, f'a{WF((16 * t + f) % NWS)}')
    return out
UH = ['a160', 'a192', 'a160', 'a192', 'a0', 'a32', 'a0', 'a32']
def uw(n, k, tt): return f'{UH[n][0]}{int(UH[n][1:]) + (k * 2 + tt) * 4}'
def unit_reads(n):
    h, u = n >> 2, n & 3
    out = []
    for k in range(4):
        for tt in range(2): out += w_read(14 + k, h, 2 * u + tt, uw(n, k, tt))
    return out
def conv(n):
    h, u = n >> 2, n & 3
    V = []; D = []
    tiles = []
    for tt in range(2):
        for qt in range(4):
            acc = QACC(h, 2 * u + tt, qt)
            if h == 1: b = int(acc[1:]); rd = []
            else:
                b = 84 + ((n * 8 + tt * 4 + qt) % 3) * 4
                rd = [f'v_accvgpr_read_b32 v{b + r}, a{int(acc[1:]) + r}' for r in range(4)]
            mu = [f'v_mul_f32 v{b + r}, s{sSC}, v{b + r}' for r in range(4)]
            cv = [f'v_cvt_pk_bf16_f32 v{b}, v{b}, v{b + 1}', f'v_cvt_pk_bf16_f32 v{b + 1}, v{b + 2}, v{b + 3}']
            V += [Ins(x) for x in rd + mu + cv]
            D.append((len(V) - 1, Ins(f'ds_write_b64 v{CW1 if tt else CW0}, v[{b}:{b + 1}] offset:{qt * 1024}')))
    D += [(len(V) - 1, Ins(f'ds_read_b128 a[{Q(h, qt, u)}:{Q(h, qt, u) + 3}], v{CR} offset:{qt * 1024}', f'rQ{n}')) for qt in range(4)]
    seq = []
    for i, x in enumerate(V):
        seq.append(x); seq += [d for k, d in D if k == i]
    return V, D, seq

def q_phase(A):
    stamp(A, 2)
    A('WAITVM X0+X1+W0+W1\ns_barrier')
    stamp(A, 3)
    if OPT['su'] == '0': A.extend(x_reads(0) + x_reads(1) + w_reads(0))
    else:
        rd = x_reads(0) + x_reads(1) + w_reads(0)
        dj = dma_x(2) + dma_w(2) + dma_w(3)
        for i in range(12):
            A.extend(flat([dj[i]])); A.extend(rd[i * 40 // 12:(i + 1) * 40 // 12])
    def JR(i): return f'a{224 + 4 * i}' if i < 8 else 'v92'
    def jstore(i):
        r, n = divmod(i, 3)
        pre = [f's_add_u32 s{sT0}, s{sW}, {4 * r}', f's_mul_i32 s49, s{sT0}, 43', f's_lshr_b32 s49, s49, 7',
               f's_mul_i32 s49, s49, {128 * 9216 - 9216}', f's_mul_i32 s{sT0}, s{sT0}, 3072', f's_add_u32 s{sJ}, s{sT0}, s49'] if n == 0 else []
        return [(pre, Ins(cl(f'buffer_store_dwordx4 {rng(JR(i), 4)}, v{VOFFO}, {srd(SWD)}, s{sJ} offen offset:{n * 1024} {OPT["st"]}'), 'Jst'), [])]
    for t in range(14):
        mf = []
        for f in range(16):
            for qt in range(4):
                acc = QACC(f >> 3, f & 7, qt)
                mf.append(mfma(acc, f'a{WF((16 * t + f) % NWS)}', f'v{XF(t, qt)}', acc if t else '0'))
        G = Gaps(64)
        groups = []
        J4 = OPT['jo'] == '4'
        if t in ((2, 5, 9) if J4 else (3, 7, 11)):
            r = t // 4
            groups += [[([f's_mov_b32 s{sWe}, {r * 384}', f's_mul_i32 m0, s{sW}, 3072'] if n == 0 else [],
                         Ins(f'buffer_load_dwordx4 v{VOFFJ + n}, {srd(SWS)}, s{sWe} offen offset:{n * 1024} nt lds', f'J{r}'), []) for n in range(3)]]
        if t == 0: groups += [dma_x(3), dma_x(4), dma_w(4)]
        if t == 1: groups += [dma_w(5)]
        if 1 <= t <= 12: groups += [dma_w(t + 5)]
        if t + 5 < 18: groups += [dma_x(t + 5)]
        if t == 13 and not J4: groups += [dma_vv(0), dma_kk(1)]
        ngr = len(groups)
        gl = {4: [[5, 8, 11, 14], [18, 22, 26, 30], [34, 38, 42, 46], [51, 54, 57, 60]],
              3: [[2, 7, 12, 17], [24, 29, 34, 39], [46, 51, 56, 60]],
              2: [[2, 10, 18, 26], [34, 42, 50, 58]], 1: [[18, 30, 42, 54]], 0: []}[ngr]
        if J4 and t == 12: gl = [[2, 6, 10, 14], [20, 24, 28, 32]]
        dg = [g for gr, pos in zip(groups, gl) for g in pos[:len(gr)]]
        if J4 and t in (12, 13):
            for i, g in {12: [(0, 44), (1, 52), (2, 60)], 13: [(3, 8), (4, 16), (5, 24), (6, 34), (7, 44), (8, 54)]}[t]:
                G.place_dma(jstore(i), [g]); dg.append(g)
            if t == 13:
                G.v[57].append(f'v_mov_b32 v{VPA}, 0'); dg.append(59)
                G.mem[59].append(Ins(cl(f'buffer_store_dword v{VPA}, v{VOFFO}, {srd(SFL)}, 0 offen {OPT["st"]}'), 'Fz'))
        L2 = [int(x) for x in OPT['l2'].split('.')] if OPT['l2'] else []
        for i in [i for i, x in enumerate(L2) if x == t]:
            if i == 0:
                G.v[4] += ['v_lshlrev_b32 v95, 7, v2', 'v_lshl_add_u32 v95, v1, 11, v95']
                G.v[5] += [f'v_lshrrev_b32 v{VOFFO}, 4, v2', f'v_lshl_add_u32 v95, v{VOFFO}, 24, v95']
                G.v[6] += [f'v_lshlrev_b32 v{VOFFO}, 4, v2']
            sr, base = (SK, 8) if i % 2 == 0 else (SV, 6)
            g = 14 if (i + 1 < len(L2) and L2[i + 1] == t) else 46
            while g in dg or G.sc[g - 1]: g += 1
            G.sc[g - 1].append(f's_mov_b32 s{sT0}, {(base + int(OPT["l2e"]) // 2 + i // 2) * 8192}')
            x = Ins(cl(f'buffer_load_dword a255, v95, {srd(sr)}, s{sT0} offen {OPT["l2p"]}'), 'l2'); x.wr = set() if i + 1 < len(L2) else x.wr
            G.mem[g].append(x); dg.append(g)
        free = [g for g in range(64) if g not in dg]
        G.sc[0].append(f'WAITVM X{t + 2}')
        rds = x_reads(t + 2)
        if t + 5 < 18:
            xi = [i for i, gr in enumerate(groups) if gr[0][1].tag == f'X{t + 5}'][0]
            G.sc[gl[xi][0] - 3].append(f'WAITLG rX{t + 2}')
        if t in ((3, 7, 11) if J4 else (5, 9, 13)):
            for n in range(3):
                d = JR((t // 4 - (0 if J4 else 1)) * 3 + n)
                rds += [Ins(f'ds_read_b64_tr_b16 {d[0]}[{int(d[1:]) + 2 * sx}:{int(d[1:]) + 2 * sx + 1}], v{JADDR} offset:{n * 32 + sx * 16 * 384}') for sx in range(2)]
        if t == 0: G.sc[2].append('WAITLG rX1')
        rds += w_reads(t + 1) if t < 13 else unit_reads(0)[:8]
        for r, g in zip(rds, free): G.mem[g].append(r)
        for gr, g in zip(groups, gl): G.place_dma(gr, g)
        if t % 2 == 0 or t == 13:
            c = t // 2 + 1
            tags = f'W{2 * c}+W{2 * c + 1}' if t != 13 else 'W16+W17+X16+X17'
            if t in ((2, 6, 10) if J4 else (4, 8, 12)): tags += f'+J{t // 4 - (0 if J4 else 1)}'
            G.sc[62] += [f'WAITVM {tags} lg0', 's_barrier']
        if t == 0 and OPT['su'] != '0':
            P_ = Prog(); code_prefetch(P_, KNAME, 'L_code_end', 8, 252, 2, first=1, tag='b')
            G.v[63] += [Ins(x.text.replace('global_load_dword v', 'global_load_dword a'), x.tag) for x in P_.L]
        if t < 3:
            n0, n1 = ([0, 62, len(DEF_V), len(DEF_V)] if J4 else [0, 40, 95, len(DEF_V)])[t:t + 2]
            for i, x in enumerate(DEF_V[n0:n1]): G.v[(i * 62) // (n1 - n0)].append(x)
        if t in (1, 2, 4, 6) and DEF_S:
            for g in range(41, 62):
                if DEF_S and not G.sc[g]: G.sc[g] += DEF_S.pop(0).split('|')
            if t == 6:
                for g in range(4, 40):
                    pass
        if t in (8, 10) and DEF_S:
            for g in range(41, 62):
                if DEF_S and not G.sc[g]: G.sc[g] += DEF_S.pop(0).split('|')
        if t == 11: assert not DEF_S, len(DEF_S)
        if OPT['qtl']:
            G.v[3].append('s_memtime s[98:99]'); G.v[40].append(f's_mov_b32 s{64 + t}, s98')
        A.extend(G.weave(mf))
    stamp(A, 4)
    gsu = f"""s_and_b32 s50, s2, 6
s_lshl_b32 s50, s50, 3
s_lshr_b32 s51, s2, 5
s_lshl_b32 s51, s51, 1
s_add_u32 s50, s50, s51
s_lshr_b32 s51, s{sW}, 1
s_add_u32 s50, s50, s51
s_lshl_b32 s50, s50, 19
s_and_b32 s51, s2, 1
s_lshl_b32 s51, s51, 18
s_add_u32 s50, s50, s51
s_and_b32 s51, s{sW}, 1
s_lshl_b32 s51, s51, 11
s_add_u32 s50, s50, s51
s_add_u32 s{SGO}, s{sWS}, s50|s_addc_u32 s{SGO+1}, s{sWS+1}, 0
s_mov_b32 s{SGO+2}, {262144 - 2048}
s_and_b32 s50, s2, 4
s_bfe_u32 s51, s2, 0x20003
s_add_u32 s50, s50, s51
s_lshl_b32 s50, s50, 1
s_and_b32 s51, s2, 1
s_add_u32 s50, s50, s51
s_mul_i32 s50, s50, {64 * 9216}
s_add_u32 s50, s50, {WS_WO}
s_add_u32 s{SGW}, s{sWS}, s50|s_addc_u32 s{SGW+1}, s{sWS+1}, 0
s_mov_b32 s{SGW+2}, {64 * 9216}""".split('\n')
    NG = 288
    G = Gaps(NG + 8)
    mf = []; ref = []
    UR = [unit_reads(n) for n in range(8)]
    XR = x_reads(16) + x_reads(17)
    K0 = k_reads(0); K1 = k_reads(1)
    CV_ = [conv(n) for n in range(8)]
    ref += XR
    for n in range(8):
        h, u = n >> 2, n & 3
        m = [Ins(mfma(QACC(h, 2 * u + tt, qt), uw(n, k, tt), f'v{XF(14 + k, qt)}', QACC(h, 2 * u + tt, qt))) for k in range(4) for tt in range(2) for qt in range(4)]
        mf += m
        ref += (UR[n][8:] if n == 0 else UR[n]) + m + CV_[n][2]
    m = [Ins(x) for x in qk_mfmas(0)]
    mf += m; ref += K0 + m + K1
    if OPT['jo'] == '4':
        k0 = int(OPT['kv0'])
        for i, jobs in enumerate([dma_kk(0), dma_vv(0), dma_kk(1), dma_vv(1), dma_kk(2)]):
            st_ = (215 - k0) // 20
            G.place_dma(jobs, [k0 + st_ * (4 * i + x) for x in range(4)])
        kv = {1: k0 + st_ * 12}
    else:
        JS = [jstore(i) for i in range(9)]
        ref = [x[0][1] for x in JS] + ref
        order = [6, 8, 7, 0, 1, 2, 3, 4, 5]
        jp = [17, 24, 48, 76, 100, 124, 152, 176, 200]; fz = 220; kv = {0: 36, 1: 104, 2: 164}
        for i, g in zip(order, jp): G.place_dma(JS[i], [g])
        G.v[fz - 2].append(f'v_mov_b32 v{VPA}, 0')
        G.mem[fz].append(Ins(cl(f'buffer_store_dword v{VPA}, v{VOFFO}, {srd(SFL)}, 0 offen {OPT["st"]}'), 'Fz'))
        for i, jobs in enumerate([dma_kk(0), dma_vv(1), dma_kk(2)]):
            G.place_dma(jobs, [kv[i] + 14 * x for x in range(4)])
    G.place_dma(dma_kk(3), [250, 258, 266, 274])
    G.sc[kv[1] - 3].append('WAITLG rX16')
    gi = 260
    for x in gsu:
        while G.sc[gi]: gi += 1
        G.sc[gi] += x.split('|')
    BAR = 32 * 7 + 9
    G.sc[BAR] += ['WAITVM KK0 lg0', 's_barrier']
    def put(ins, g, lim=None):
        while G.mem[g] or (BAR - 5 <= g < BAR): g += 1
        assert lim is None or g <= lim, (ins.text, g, lim)
        G.mem[g].append(ins); return g
    cur = 0
    for n in range(8):
        V, D, _ = CV_[n]
        g0 = 32 * (n + 1) + 1; span = 30
        vp = [g0 + (i * span) // len(V) for i in range(len(V))]
        for x, g in zip(V, vp): G.v[g].append(x)
        for i, d in D: cur = put(d, max(cur, vp[i] + 1))
    g = 0
    for r in XR[:2] + XR[4:6] + UR[0][8:12] + XR[2:4] + XR[6:] + UR[0][12:]: g = put(r, g)
    for n in range(1, 8):
        for i, r in enumerate(UR[n]):
            g = put(r, max(g, 32 * (n - 1) + (i * 3) // 2), lim=min(32 * n + 2 * i - 5, BAR - 6))
    g = BAR
    for i, r in enumerate(K0): g = put(r, max(g, BAR + 2 * i), lim=256 + 4 * i - 6)
    for i, r in enumerate(K1): g = put(r, max(g, 256 + 4 * i + 4))
    if OPT['stamps'] and not OPT['qtl']: G.sc[257].append('s_memtime s[74:75]')
    if OPT['qtl']:
        for n in range(9): G.v[32 * n + 3].append('s_memtime s[98:99]'); G.v[32 * n + 25].append(f's_mov_b32 s{78 + n}, s98')
    out = [I(x) for x in G.weave(mf)]
    check_order(ref, out, 'QB')
    A.extend(out)
    ini = init_stream(0)
    A.extend(ini[:40])
    A('WAITLG rQ7')
    vv = flat(dma_vv(2))
    for i in range(4): A.extend(vv[-4 + i:][:1] if i else vv[:3]); A.extend(ini[40 + 12 * i:52 + 12 * i])

def seg_name(j):
    if j == 0 or (j == 32 and not OPT['w1']): return 's0'
    if j == 32: return 's32'
    if j == 31: return 'sp31'
    if j == 63: return 'fin31'
    if j >= 56: return f'p{j}'
    return f'r{j % 8}'

def gen():
    A = Prog()
    setup(A)
    q_phase(A)
    LAG = OPT['lag']
    SH = 4 if LAG else 2
    if LAG:
        sms = lambda j: lagged(softmax_stream(j))
        dn_ = undense
    else:
        sms = softmax_stream; dn_ = dense
    st = sms(0)
    A.extend(dn_(st[:32 + SH]))
    carry = st[32 + SH:]
    stamp(A, 6)
    if OPT['tl']: A('s_mov_b32 s97, 0')
    def tagsof(which, t):
        if which == 'V' and t < 6: return f'VV{t // 2}'
        if which == 'K' and t < 8: return f'KK{t // 2}'
        return f'{which}{t}'
    GA = [4, 5, 6]
    def WB(s, n): return 128 + (s & 1) * 36 + n * 4
    def GACC(n, mm): i = n * 2 + mm; return 64 + i * 4 if i < 16 else 200 + (i - 16) * 4
    def OB(s, mm): return 128 + ((s + 8) % 16) * 8 + mm * 4
    def g_wreads(s):
        out = []
        for n in range(9):
            ad = ((s >> 2) % 4) * 36864 + (s & 3) * 9216 + n * 1024
            out.append(Ins(f'ds_read_b128 v[{WB(s, n)}:{WB(s, n) + 3}], v{GA[ad >> 16]} offset:{ad & 0xffff}', f'rG{s}'))
        return out
    def g_oloads(s):
        gen_, i, u = s >> 5, (s >> 2) & 7, s & 3
        off, sr = ((2 * i + gen_) * 16384 + u * 4096, SGO) if s < 64 else (i * 32768 + u * 4096, SG2O)
        return [([f's_mov_b32 s{sWe}, {off}'] if mm == 0 else [],
                 Ins(cl(f'buffer_load_dwordx4 a[{OB(s, mm)}:{OB(s, mm) + 3}], v{VOFFO}, {srd(sr)}, s{sWe} offen offset:{mm * 1024} {OPT["g_o"]}'), f'GO{s}'), []) for mm in range(2)]
    def g_w8(a, tag):
        return [([f's_mov_b32 s{sKo}, {a}', f's_add_u32 m0, s{sW2K}, {a}'] if o == 0 else [],
                 Ins(cl(f'buffer_load_dwordx4 v{VOFFK}, {srd(SGW)}, s{sKo} offen offset:{o * 1024} {OPT["g_w"]} lds'), tag), []) for o in range(2)]
    def g_wchunk(c):
        out = []
        for n in range(9):
            pre = [f's_add_u32 s{sKo}, s{sXo}, {(c % 16) * 36864 + (n // 4) * 4096}', f's_add_u32 m0, s{sXo}, {(c % 4) * 36864 + (n // 4) * 4096}'] if n % 4 == 0 else []
            out.append((pre, Ins(cl(f'buffer_load_dwordx4 v{VOFFO}, {srd(SGW if c < 16 else SG2W)}, s{sKo} offen offset:{(n % 4) * 1024} {OPT["g_w"]} lds'), f'GW{c}'), []))
        return out
    poll1 = f'buffer_load_dword v{VPOLL}, v{VPA}, {srd(SFP)}, 0 offen sc1'
    poll2 = f'buffer_load_dword v{VPOLL}, v{VPA}, {srd(SFP)}, 0 offen offset:16 sc1'
    pollc = f'buffer_load_dword v{VPOLL}, v{VPA}, {srd(SWS)}, 0 offen sc1'
    polld = f'buffer_load_dword v{VPOLL}, v{VPP}, {srd(SFP)}, 0 offen offset:64 sc1'
    ne1 = f'v_cmp_ne_u32 vcc, 1, v{VPOLL}'
    qcopy = [f'v_accvgpr_mov_b32 a{128 + i}, a{192 + i}' for i in range(64)]

    POST = []
    def fill(G, o, j, carry):
        jj = j & 31; nm = seg_name(j); p = j & 1
        if OPT['bar1'] and j < 63:
            TI = int(OPT['tight']) if 3 < j < 50 else 0
            tags = [tagsof('V', j + TI), tagsof('K', j + 2 + TI)] + ([tagsof('V', 63)] if j == 62 else []) + (['Jst', 'Fz'] if j == 6 else [])
            G.sc[o] += [f'WAITVM {"+".join(tags)} lg0', 's_barrier']
        elif j % 2 == 0:
            tags = [tagsof('V', j), tagsof('V', j + 1), tagsof('K', j + 2), tagsof('K', j + 3)] + (['Jst', 'Fz'] if j == 6 else [])
            G.sc[o] += [f'WAITVM {"+".join(tags)} lg0', 's_barrier']
        last = len(carry) - 1
        if j < 63:
            for i, g in enumerate(carry): G.v[o + i] += g
        if jj != 0:
            G.v[o + 17].append(f'v_max3_f32 v{CT}, v{Lr(p, 0)}, v{Lr(p, 1)}, v{Lr(p, 2)}')
            G.v[o + last].append(f'v_max_f32 v{CT}, v{CT}, v{Lr(p, 3)}')
            G.v[o + last].append(f'v_cmp_lt_f32 vcc, s{sTHR}, v{CT}')
            G.sc[o + last + 1] += [f's_cbranch_vccnz L_st_{nm}', f'L_bk_{nm}:']
        ncarry = None
        if j < 63:
            PL = {'0': (sorted([3 + 4 * i for i in range(8)] + [4 + 4 * i for i in range(8)]), [35, 36, 39, 40, 43, 47, 51, 55], [10, 26, 42, 59]),
                  '1': ([1 + 2 * i for i in range(16)], [33, 35, 37, 39, 43, 47, 51, 55], [41, 49, 59, 63]),
                  '2': ([1, 3, 5, 7, 9, 13, 15, 17, 19, 21, 23, 25, 31, 33, 35, 37], [39, 41, 45, 47, 49, 51, 53, 55], [11, 27, 43, 59]),
                  '3': ([3, 5, 7, 9, 13, 15, 19, 21, 23, 25, 31, 33, 35, 37, 39, 41], [32, 36, 45, 47, 49, 51, 53, 55], [11, 27, 43, 59]),
                  }[OPT['pl']]
            for r, g in zip(v_reads(j), PL[0]): G.mem[o + g].append(r)
            if j + 2 < 64:
                for r, g in zip(k_reads(j + 2), PL[1]): G.mem[o + g].append(r)
            if j < 56: G.place_dma(dma_kv('K', j + 8) + dma_kv('V', j + 6), [o + x for x in PL[2]])
            else:
                W8 = lambda i: g_w8(i * 8192, f'P{i}')
                jobs = {56: dma_kv('V', 62) + W8(0) + W8(16) + g_oloads(0), 57: dma_kv('V', 63) + W8(1) + W8(17) + g_oloads(1),
                        58: W8(2) + g_oloads(2) + W8(8) + g_oloads(3), 59: W8(3) + g_oloads(4) + W8(9) + g_oloads(5),
                        60: W8(4) + g_oloads(6) + W8(10) + g_oloads(7), 61: W8(5) + W8(11),
                        62: W8(6) + W8(7) + W8(12) + W8(13) + g_oloads(8) + g_oloads(9)}[j]
                pos = {8: [4, 11, 20, 27, 36, 43, 57, 61], 4: [11, 27, 43, 59], 12: [4, 11, 18, 27, 34, 39, 43, 47, 51, 55, 59, 63]}[len(jobs)]
                G.place_dma(jobs, [o + x for x in pos])
                G.v[o + 0].append(f'v_mov_b32 v{VPG}, {j - 55}')
                G.mem[o + 2].append(Ins(cl(f'buffer_store_dword v{VPG}, v{VL4}, {srd(SFL)}, 0 offen offset:48 {OPT["st"]}'), 'PG'))
                if j == 61:
                    G.v[o + 4] += [f'v_mad_u32_u24 v{VPR}, v{VPR}, {OPT["bm"]}, {OPT["ba"]}']
                    G.v[o + 6] += [f'v_lshrrev_b32 v{VPR}, 3, v{VPR}']
                    G.v[o + 8] += [f'v_min_u32 v{VPR}, {OPT["bmax"]}, v{VPR}']
                    G.v[o + 10] += [f'v_add_u32 v{VPG}, 1, v{VPR}']
                    G.v[o + 12] += [f'v_lshlrev_b32 v{VPOLL}, 2, v1']
                    G.v[o + 14] += [f'v_add_u32 v{VPOLL}, {160 * 1024 - 16}, v{VPOLL}']
                    G.mem[o + 16].append(Ins(cl(f'buffer_store_dword v{VPG}, v{VL4}, {srd(SFL)}, 0 offen offset:64 {OPT["st"]}'), 'DG'))
                    G.mem[o + 18].append(Ins(f'ds_write_b32 v{VPOLL}, v{VPR}'))
            st = sms(j + 1)
            if (j + 1) & 31:
                for i, g in enumerate(st[:32 + SH]): G.v[o + 32 - SH + i] += g
            else:
                G.pack(qcopy, o + 1, o + 29)
                NB = int(OPT['nb'])
                prep, un = epilogue(False); _, up = epilogue(True)
                other = init_stream(j + 1) + dn_(st[:32 + SH])
                units = un[:NB] + up[NB:]
                seq = []; cut = None
                for k in range(16):
                    if k == NB: cut = len(seq)
                    seq += units[k][0]
                    if k: seq += units[k - 1][3]
                    seq += units[k][1] + units[k][2]
                    if k >= NB: seq += other[(k - NB) * len(other) // (16 - NB):(k - NB + 1) * len(other) // (16 - NB)]
                seq += units[15][3]
                G.pack(prep, o + 31, o + 39)
                pos = G.pack(seq[:cut], o + 39, o + 64)
                for x, g in zip(seq[:cut], pos):
                    x = I(x)
                    if x.mn == 'v_accvgpr_read_b32':
                        a = [r for r in x.rd if r[0] == 'a'][0][1]
                        assert g >= o + 32 + a // 4 + 2, (x.text, g)
                POST.extend(seq[cut:])
            ncarry = st[32 + SH:]
        if OPT['tl'] and j < 56 and j != 31:
            G.sc[o + 5].append('s_memtime s[98:99]'); G.sc[o + 7].append('s_memrealtime s[86:87]')
            G.sc[o + 52].append('s_waitcnt lgkmcnt(0)')
            G.v[o + 52] += ['v_cmp_eq_u32 s[50:51], s97, v2', 'v_mov_b32 v248, s98', 'v_mov_b32 v249, s86']
            G.v[o + 53] += ['v_cndmask_b32 v250, v250, v248, s[50:51]', 'v_cndmask_b32 v251, v251, v249, s[50:51]']
            G.sc[o + 54].append('s_add_u32 s97, s97, 1')
        if OPT['tl'] and j == 31:
            G.v[o + 1] += ['s_lshl_b32 s50, s2, 11', 's_add_u32 s50, s50, 0x80000', 'v_lshlrev_b32 v248, 3, v0', 'buffer_store_dwordx2 v[250:251], v248, s[56:59], s50 offen']
        if nm == 'r6': G.sc[o + 62].append(f's_sub_u32 s{sCnt}, s{sCnt}, 1')
        if nm == 'r7':
            if OPT['atom'] == '0':
                G.sc[o + 61].append(f's_sub_u32 s{sT0}, s{sKo}, 0x30000')
                G.sc[o + 62].append(f's_cmp_lt_u32 s{sT0}, 0x20000')
            else: G.sc[o + 62].append(f's_cmp_lt_u32 s{sKo}, 0x50000')
        return ncarry
    def mfs(j): return (qk_mfmas(j + 1) if j + 1 < 64 else [None] * 32) + pv_mfmas(j)

    j = 0
    while j < 64:
        nm = seg_name(j)
        A(f'.mark {nm}')
        G = Gaps(64)
        oc = carry
        carry = fill(G, 0, j, carry)
        if j == 63:
            P0 = v_reads(j)
            dn = dn_(oc)
            ol = flat(g_oloads(10) + g_oloads(11) + g_oloads(12))
            k = 0
            for i, x in enumerate(dn):
                P0.append(x)
                tgt = len(ol) * (i + 1) // len(dn)
                while k < tgt: P0.append(ol[k]); k += 1
            G.v[0] += P0
            G.v[18] += [f'v_mov_b32 v{GA[0]}, v{VOFFO}', f'v_add_u32 v{GA[1]}, 0x10000, v{VOFFO}', f'v_add_u32 v{GA[2]}, 0x20000, v{VOFFO}', f's_mul_i32 s{sXo}, s{sW}, 9216']
            G.sc[32] += ['WAITVM P4 lg0', 's_barrier']
            for r, g in zip(g_wreads(0), range(33, 60, 3)): G.mem[g].append(r)
            G.v[18] += [f'v_mov_b32 v{VPG}, {160 * 1024 - 16}']
            G.mem[34].append(Ins(f'ds_read_b32 v{VPR}, v{VPG}'))
            G.place_dma(g_w8(14 * 8192, 'P14') + g_w8(15 * 8192, 'P15') + g_oloads(13) + g_oloads(14), [35, 38, 43, 46, 50, 53, 58, 61])
            prep2, units2 = epilogue(int(OPT['epg']) == 0)
            epi, _, _ = epi_flat(units2)
            G.pack(prep2, 33, 48)
            ne = 0
            if int(OPT['epg']):
                ne = 28
                G.pack(epi[:ne], 48, 64)
            epi = epi[ne:]
        A.extend(G.weave(mfs(j)))
        def atomic():
            A('WAITVM Jst+Fz')
            A(f's_mov_b32 s{SWS}, s{sDBG}\ns_mov_b32 s{SWS + 1}, s{sDBG + 1}\ns_mov_b32 s{SWS + 2}, 4\nv_mov_b32 v{VFLAG}, 1\nv_lshlrev_b32 v{VPA}, 2, v0\nv_lshlrev_b32 v{VL4}, 7, v2')
            A(f'buffer_atomic_add v{VFLAG}, v{VPA}, {srd(SWS)}, 0 offen sc1', tag='Cwo')
        if j == 7:
            A('.mark b7')
            if OPT['atom'] == '0': atomic()
        if j == 39:
            A('.mark b39')
            A('WAITVM Ost')
            A(cl(f'buffer_store_dword v{VFLAG}, v{VL4}, {srd(SFL)}, 0 offen {OPT["st"]}'), tag='F1')
            if OPT['atom'] == '1': A(pollc, tag='Pc')
        if j == 47:
            A('.mark b47')
            A(f's_movk_i32 s{sMODE}, 256')
            A.extend(spin_check('c', pollc, f'v_cmp_gt_u32 vcc, s{sMODE}, v{VPOLL}'))
            A(f"""s_andn2_b32 s50, s2, 0x38
s_lshl_b32 s50, s50, 7
s_bfe_u32 s51, s2, 0x10005
s_lshl_b32 s51, s51, 3
s_add_u32 s50, s50, s51
s_lshr_b32 s51, s{sW}, 1
s_lshl_b32 s51, s51, 2
s_add_u32 s50, s50, s51
s_add_u32 s{SFP}, s{sWS}, {WS_FL}
s_addc_u32 s{SFP+1}, s{sWS+1}, 0
s_mov_b32 s{SFP+2}, 32768
v_and_b32 v{VPA}, 7, v0
v_lshlrev_b32 v{VPA}, 10, v{VPA}
v_add_u32 v{VPA}, s50, v{VPA}
s_xor_b32 s50, s2, 1
s_lshl_b32 s50, s50, 7
s_lshl_b32 s{sW4}, s{sW}, 2
v_mov_b32 v{VPP}, s50""")
            A(poll1, tag='PL1')
            code_prefetch(A, 'L_fin', 'L_code_end', 250, 252, 2)
        if j == 55:
            A('.mark b55')
            A.extend(spin_check('f1', poll1, ne1))
            A(f'v_add_u32 v{VOFFK}, s{sW2K}, v{VOFFO}')
            A(f'buffer_load_dword v{VPR}, v{VPP}, {srd(SFP)}, 0 offen offset:48 sc1', tag='PLP')
        if j == 31:
            A('.mark epi')
            stamp(A, 7)
            if OPT['atom'] == '1': atomic()
            A(f'v_mov_b32 v{VPA}, 0')
            if OPT['atom'] == '0': A(pollc, tag='Pc')
            A.extend(POST)
            A(f's_mov_b32 s{sHead}, 1\ns_mov_b32 s{sCnt}, 3')
            stamp(A, 8)
        j += 1
    A('.mark tail')
    stamp(A, 9)
    EPG = int(OPT['epg'])
    ek = 0
    G2 = int(OPT['g2s']); LO = int(OPT['lo']); LW = int(OPT['lw']); S0 = int(OPT['gs0']); S1 = int(OPT['gs1'])
    items = []
    NS = 64 + 4 * int(OPT['bmax']); G3 = 57
    for x in range(15, NS):
        for jb in g_oloads(x): items.append((x - LO, max(x - 15, G2 + 1 if x >= 32 else 0, G3 + 1 if x >= 64 else 0), jb))
    for c in range(4, NS // 4):
        for n, jb in enumerate(g_wchunk(c)): items.append((4 * c - 1 - LW - (8 - n) * 4 / 9.0, 4 * (c - 4) + 3, jb))
    items.sort(key=lambda z: z[0])
    sched = [[] for _ in range(NS)]
    cur = 0
    for i, (dl, rl, jb) in enumerate(items):
        k = int(S0 + i * (S1 - S0 + 1) / 206)
        k = max(min(k, int(dl)), rl, cur)
        while len(sched[k]) >= 6: k += 1
        sched[k].append(jb); cur = k
    def when(tag): return [k for k in range(NS) if any(x[1].tag == tag for x in sched[k])]
    CL = max(when('GO31')) + 1
    assert CL < min(when('GO48')) and CL < min(when('GW12')), (CL, when('GO48'), when('GW12'))
    assert NS == 64 or min(when('GW16')) > 47
    if EPG == 0:
        A.extend(epi); ek = len(epi)
    if OPT['verbose']: print([len(x) for x in sched])
    for s_ in range(NS):
        c, u = s_ >> 2, s_ & 3
        mf = [mfma(f'v{GACC(n, mm)}', f'v{WB(s_, n)}', f'a{OB(s_, mm)}', f'v{GACC(n, mm)}' if s_ else '0') for n in range(9) for mm in range(2)]
        G = Gaps(18)
        if u == 3 and c < NS // 4 - 1:
            tags = {0: 'P5+P6+P7+P8', 1: 'P9+P10+P11+P12+P13', 2: 'P14+P15+P16+P17'}.get(c, f'GW{c + 1}')
            G.sc[0] += [f'WAITVM {tags} lg0', 's_barrier']
            assert not [1 for q in sched[s_:] for x in q if x[1].tag == f'GW{c + 1}'], c
        jobs = sched[s_]
        for x in jobs:
            if x[1].tag.startswith('GO'): assert int(x[1].tag[2:]) >= s_ + 3, (s_, x[1].tag)
        jp = {0: [], 1: [10], 2: [5, 14], 3: [3, 9, 15], 4: [3, 8, 12, 16], 5: [2, 6, 10, 13, 16], 6: [2, 5, 8, 11, 14, 17]}[len(jobs)]
        G.place_dma(jobs, jp)
        if s_ + 1 < NS:
            for r, g in zip(g_wreads(s_ + 1), [g for g in range(18) if g not in jp]): G.mem[g].append(r)
        if s_ == int(OPT['p2s']): G.mem[17].append(Ins(poll2, 'PL2'))
        if OPT['gtl']:
            if s_ % 2 == 0: G.sc[12].append('s_memtime s[98:99]')
            elif s_ < 64: G.v[0].append(f'v_writelane_b32 v59, s98, {s_ // 2}')
        for g in range(18):
            n = EPG - (1 if G.mem[g] else 0)
            while n > 0 and ek < len(epi):
                x = epi[ek]
                if isinstance(x, Ins) and x.kind == 'vst':
                    if G.v[g]: break
                    G.mem[g].append(x); ek += 1; n -= 1; continue
                G.v[g].append(x); ek += 1
                if not x.startswith('s_'): n -= 1
        if s_ == int(OPT['f2s']):
            assert ek == len(epi), (ek, len(epi))
            G.sc[16].append('WAITVM Ost')
            G.mem[17].append(Ins(cl(f'buffer_store_dword v{VFLAG}, v{VL4}, {srd(SFL)}, 0 offen offset:16 {OPT["st"]}'), 'F2'))
        if s_ == G2: G.v[17] += spin_check('f2', poll2, ne1)
        if s_ == CL:
            G.v[15] += [f'v_readfirstlane_b32 s{sGive}, v{VPR}']
            G.v[17] += f"""s_sub_u32 s50, 16, s{sGive}
s_mul_i32 s{SGW+2}, s50, 36864
s_sub_u32 s50, 8, s{sGive}
s_lshl_b32 s50, s50, 15
s_min_u32 s{SGO+2}, s{SGO+2}, s50""".split('\n')
        if s_ == 41: G.mem[17].append(Ins(polld, 'PLD'))
        if s_ == 46:
            G.v[15] += spin_check('d', polld, f'v_cmp_eq_u32 vcc, 0, v{VPOLL}')
            G.v[16] += [f'v_readfirstlane_b32 s{sRem}, v{VPOLL}', f'v_xor_b32 v{VPA}, 128, v{VPA}']
            G.v[17] += f"""s_sub_u32 s{sRem}, s{sRem}, 1
s_min_u32 s{sRem}, s{sRem}, {OPT['bmax']}
s_bitcmp1_b32 s2, 0
s_cselect_b32 s50, 0, {2 * 64 * 9216}
s_mul_i32 s{SG2W+2}, s{sRem}, 36864
s_add_u32 s{SG2W}, s{SGW}, s50
s_addc_u32 s{SG2W+1}, s{SGW+1}, 0
s_sub_u32 s{SG2W}, s{SG2W}, s{SG2W+2}
s_subb_u32 s{SG2W+1}, s{SG2W+1}, 0
s_bitcmp1_b32 s2, 0
s_cselect_b32 s50, 0, {2 * 262144}
s_add_u32 s50, s50, 16384
s_lshl_b32 s51, s{sRem}, 15
s_add_u32 s{SG2O}, s{SGO}, s50
s_addc_u32 s{SG2O+1}, s{SGO+1}, 0
s_sub_u32 s{SG2O}, s{SG2O}, s51
s_subb_u32 s{SG2O+1}, s{SG2O+1}, 0
s_max_u32 s51, s51, {16384 + 2048}
s_sub_u32 s{SG2O+2}, s51, {16384 + 2048}
s_mov_b32 s{SG2O+3}, 0x20000
s_cmp_eq_u32 s{sRem}, 0
s_cselect_b32 s50, s{sGive}, 0
s_add_u32 s{sRem}, s{sRem}, 4
s_sub_u32 s{sRem}, s{sRem}, s50""".split('\n')
        if s_ == G3 - 4 and NS > 64: G.mem[17].append(Ins(poll2, 'PL3'))
        if s_ == G3 and NS > 64: G.v[17] += spin_check('f3', poll2, ne1)
        if u == 3 and 11 <= c < NS // 4 - 1:
            G.sc[18] += [f's_sub_u32 s{sRem}, s{sRem}, 1', 's_cbranch_scc1 L_xchg']
        if s_ == 39:
            G.v[17] += f"""s_lshl_b32 s50, s2, 2
s_add_u32 s50, s50, s{sW}
s_mul_i32 s50, s50, 9216
s_add_u32 s50, s50, {WS_X}
s_add_u32 s{SO}, s{sWS}, s50
s_addc_u32 s{SO+1}, s{sWS+1}, 0
s_mov_b32 s{SO+2}, 9216
s_xor_b32 s50, s2, 1
s_lshl_b32 s51, s50, 2
s_add_u32 s51, s51, s{sW}
s_mul_i32 s51, s51, 9216
s_add_u32 s51, s51, {WS_X}
s_add_u32 s{SV}, s{sWS}, s51
s_addc_u32 s{SV+1}, s{sWS+1}, 0
s_mov_b32 s{SV+2}, 9216
s_and_b32 s50, s2, 2
s_lshl_b32 s50, s50, 2
s_lshr_b32 s51, s2, 5
s_add_u32 s50, s50, s51
s_lshl_b32 s50, s50, 2
s_add_u32 s50, s50, s{sW}
s_lshl_b32 s50, s50, 1
s_and_b32 s51, s2, 1
s_add_u32 s50, s50, s51
s_mul_i32 s50, s50, {16 * 2304}
s_bfe_u32 s51, s2, 0x10002
s_mul_i32 s51, s51, 1152
s_add_u32 s50, s50, s51
s_bfe_u32 s51, s2, 0x20003
s_mul_i32 s51, s51, 288
s_add_u32 s50, s50, s51
s_add_u32 s{SOUT}, s{sOUT}, s50
s_addc_u32 s{SOUT+1}, s{sOUT+1}, 0
s_mov_b32 s{SOUT+2}, {15 * 2304 + 288}""".split('\n')
        if 40 <= s_ < 45:
            k = s_ - 40
            vv = f"""v_add_u32 v28, {64 * k}, v2
v_mul_u32_u24 v29, 3641, v28
v_lshrrev_b32 v29, 16, v29
v_mul_u32_u24 v30, 18, v29
v_sub_u32 v30, v28, v30
v_lshlrev_b32 v30, 4, v30
v_mad_u32_u24 v{32 + k}, v29, s{sT0}, v30
v_mul_u32_u24 v29, 304, v29
v_add3_u32 v{44 + k}, v29, v30, v31""".split('\n')
            if k == 0:
                vv = [f's_movk_i32 s{sT0}, 2304', 'v_lshlrev_b32 v31, 13, v1', 'v_and_b32 v29, 15, v2', 'v_mul_u32_u24 v29, 304, v29', 'v_lshrrev_b32 v30, 4, v2',
                      'v_lshl_add_u32 v29, v30, 3, v29', 'v_add_u32 v39, v29, v31', f'v_add_u32 v37, 0x1000, v{VOFFO}', f'v_add_u32 v38, 0x2000, v{VOFFO}'] + vv
            for i, x in enumerate(vv): G.v[i].append(x)
        A.extend(G.weave(mf))
    A('L_xchg:')
    stamp(A, 10)
    A('s_nop 5\ns_bitcmp1_b32 s2, 0\ns_cbranch_scc1 L_x1')
    vo3 = [VOFFO, 37, 38]
    pollx = f'buffer_load_dword v{VPOLL}, v{VPP}, {srd(SFP)}, s{sW4} offen offset:32 sc1'
    for kh in range(2):
        if kh: A('L_x1:')
        for n in range(9):
            A(cl(f'buffer_store_dwordx4 v[{GACC(n, 1 - kh)}:{GACC(n, 1 - kh) + 3}], v{vo3[n // 4]}, {srd(SO)}, 0 offen offset:{(n % 4) * 1024} {OPT["st"]}'))
        if kh:
            A('s_nop 1')
            for n in range(9):
                for r in range(0, 4, 2): A(f'v_mov_b64 v[{GACC(n, 0) + r}:{GACC(n, 0) + r + 1}], v[{GACC(n, 1) + r}:{GACC(n, 1) + r + 1}]')
        else:
            A('s_branch L_x2')
    A('L_x2:')
    A('s_waitcnt vmcnt(0) lgkmcnt(0)')
    A(cl(f'buffer_store_dword v{VFLAG}, v{VL4}, {srd(SFL)}, 0 offen offset:32 {OPT["st"]}'))
    A(pollx)
    A('s_barrier')
    A.extend(spin_check('x', pollx, ne1))
    for n in range(9):
        A(f'buffer_load_dwordx4 v[{128 + 4 * n}:{131 + 4 * n}], v{vo3[n // 4]}, {srd(SV)}, 0 offen offset:{(n % 4) * 1024} sc1')
    for n in range(9):
        a = GACC(n, 0); b = 128 + 4 * n
        for r in range(0, 4, 2): A(f'v_pk_add_f32 v[{a + r}:{a + r + 1}], v[{a + r}:{a + r + 1}], v[{b + r}:{b + r + 1}]')
        A(f'v_cvt_pk_bf16_f32 v{b}, v{a}, v{a + 1}\nv_cvt_pk_bf16_f32 v{b + 1}, v{a + 2}, v{a + 3}')
        A(f'ds_write_b64 v39, v[{b}:{b + 1}] offset:{n * 32}')
    for k in range(5): A(f'ds_read_b128 v[{168 + 4 * k}:{171 + 4 * k}], v{44 + k}')
    for k in range(5): A(f'buffer_store_dwordx4 v[{168 + 4 * k}:{171 + 4 * k}], v{32 + k}, {srd(SOUT)}, 0 offen {OPT["out_st"]}'.rstrip())
    if OPT['stamps']:
        A('s_waitcnt vmcnt(0)')
        stamp(A, 11)
        if OPT['gtl']:
            A('s_lshl_b32 s50, s2, 10\ns_add_u32 s50, s50, 0x80000\nv_lshlrev_b32 v42, 2, v0\nbuffer_store_dword v59, v42, s[56:59], s50 offen')
        if OPT['diag'] == '0': store_stamps(A, 7)
        else:
            A(f'''s_memrealtime s[62:63]
s_load_dwordx2 s[4:5], s[0:1], 88
s_getreg_b32 s50, hwreg(HW_REG_XCC_ID)
s_waitcnt lgkmcnt(0)
s_mov_b32 s6, 64
s_mov_b32 s7, 0x20000
v_lshlrev_b32 v4, 6, v0
s_and_b32 s51, s2, 0xbe
s_cmp_lg_u32 s51, 8
s_cbranch_scc1 L_end
s_and_b32 s51, s2, 1
s_lshr_b32 s8, s2, 5
s_add_u32 s51, s51, s8
s_lshl_b32 s51, s51, 4
s_and_b32 s50, s50, 15
s_lshl_b32 s50, s50, 28
s_sub_u32 s8, s62, s60
s_add_u32 s8, s8, s50
s_cmp_eq_u32 s51, 0
s_cbranch_scc1 L_dg1
v_mov_b32 v8, s8
buffer_store_dword v8, v4, s[4:7], s51 offen sc1
L_dg1:
s_sub_u32 s8, s76, s64
s_sub_u32 s9, s78, s76
s_lshr_b32 s8, s8, 4
s_lshr_b32 s9, s9, 4
s_lshl_b32 s8, s8, 16
s_add_u32 s8, s8, s9
v_mov_b32 v9, s8
buffer_store_dword v9, v4, s[4:7], s51 offen offset:4 sc1
s_sub_u32 s8, s80, s78
s_sub_u32 s9, s82, s80
s_lshr_b32 s8, s8, 4
s_lshr_b32 s9, s9, 4
s_lshl_b32 s8, s8, 16
s_add_u32 s8, s8, s9
v_mov_b32 v10, s8
buffer_store_dword v10, v4, s[4:7], s51 offen offset:8 sc1
s_sub_u32 s8, s84, s82
s_sub_u32 s9, s86, s84
s_lshr_b32 s8, s8, 4
s_lshr_b32 s9, s9, 4
s_lshl_b32 s8, s8, 16
s_add_u32 s8, s8, s9
v_mov_b32 v11, s8
buffer_store_dword v11, v4, s[4:7], s51 offen offset:12 sc1''')
    A('L_end:\ns_endpgm')
    A.resolve_waits()
    rep = []
    A.fix_hazards(rep)
    segs = {}
    for n, L in split_marks(A.L): segs.setdefault(n, []).append(L)
    M = {n: merge_segments(v) for n, v in segs.items()}
    if OPT['hole']:
        L = M['_start']; k = len(L) - 1
        while L[k].kind != 'mfma': k -= 1
        out = L[:k + 1]; since = 0; q = 0
        for x in L[k + 1:]:
            out.append(x); since += 2 if x.kind == 'trans' else 1
            if since >= 2 and x.kind in ('valu', 'trans'):
                out.append(Ins(mfma('a0', f'a{128 + 4 * (q % 16)}', f'a{128 + 4 * ((q // 3) % 16)}', 'a0'))); q += 1; since = 0
        M['_start'] = out
    F = Prog()
    F.extend(M['_start'])
    if int(OPT['burst']):
        F(f's_mov_b32 s50, {int(OPT["burst"])}\nL_burst:')
        for q in range(16):
            F(f'v_mfma_f32_32x32x16_bf16 a[{(q % 8) * 16}:{(q % 8) * 16 + 15}], v[{64 + 4 * (q % 8)}:{67 + 4 * (q % 8)}], a[{128 + 4 * q}:{131 + 4 * q}], a[{(q % 8) * 16}:{(q % 8) * 16 + 15}]')
            F(f'ds_read_b128 v[{96 + 4 * (q % 8)}:{99 + 4 * (q % 8)}], v4 offset:{q * 1024}')
            F(f'v_exp_f32 v{224 + q}, v{128 + q}\nv_add_f32 v{240 + q}, v{144 + q}, v{128 + q}')
        F('s_sub_u32 s50, s50, 1\ns_cbranch_scc0 L_burst\ns_waitcnt lgkmcnt(0)\ns_nop 15')
    F('L_s0:')
    F.extend(M['s0'])
    F('s_branch L_r1\n.p2align 6\nL_r0:')
    F.extend(M['r0'])
    F('L_r1:')
    for k in range(1, 7): F.extend(M[f'r{k}'])
    F('s_cbranch_scc1 L_sp')
    F.extend(M['r7'])
    F(f's_cbranch_scc1 L_r0\ns_cmp_eq_u32 s{sKo}, 0x80000\ns_cbranch_scc1 L_fin\ns_cmp_eq_u32 s{sKo}, 0x70000\ns_cbranch_scc1 L_b47\ns_cmp_eq_u32 s{sKo}, 0x60000\ns_cbranch_scc1 L_b39')
    for b in (7, 39, 47):
        F(f'L_b{b}:'); F.extend(M[f'b{b}']); F('s_branch L_r0')
    F('L_sp:')
    F.extend(M['sp31'])
    if OPT['w1']: F('s_branch L_r1')
    else:
        F.extend(M['epi']); F('s_branch L_s0')
    for nm, p, mode in [(f'r{k}', k & 1, 0) for k in range(8)] + [(f'p{k}', k & 1, 0) for k in range(56, 63)] + [('sp31', 1, 1), ('fin31', 1, 1)]:
        F(f'L_st_{nm}:\ns_mov_b32 s{sMODE}, {mode}\ns_call_b64 s[{sRET}:{sRET + 1}], L_fb{p}')
        if OPT['lag'] and mode == 0: F(softmax_stream(3 - p)[0][0])
        F(f's_branch L_bk_{nm}')
    F.extend(fallback(0).L); F.extend(fallback(1).L)
    for x in SPINS: F(x)
    F('L_fin:')
    F.extend(M['b55'])
    for k in range(56, 63): F.extend(M[f'p{k}'])
    F.extend(M['fin31'])
    F.extend(M['tail'])
    return F, rep

def build(path):
    A, rep = gen()
    hdr = open('cdna_kernels/' + NAME + '.s.ref').read().split('; Override launch')[0]
    t = hdr + '; @launch grid=(256,1,1) block=(256,1,1) lds=163840\n'
    t += '.amdgcn_target "amdgcn-amd-amdhsa--gfx950"\n.text\n' + MACROS
    t += prolog(KNAME) + A.text() + 'L_code_end:\n'
    t += kd(KNAME, 512, 100, 256)
    open(path, 'w').write(t)
    return rep, len(t)

if __name__ == '__main__':
    path = sys.argv[1]
    for kv in sys.argv[2:]:
        k, v = kv.split('=')
        assert k in OPT, k
        OPT[k] = (v == '1') if isinstance(OPT.get(k), bool) else v
    rep, n = build(path)
    from collections import Counter
    print('bytes', n, 'pads', Counter((a, b.split()[0]) for a, b in rep).most_common(12))
```

```python
import sys, math, struct
from common import *
from asmlib import *

OPT = dict(nt_kv='nt', nt_x='nt', nt_w='nt', st='sc1', g_o='sc1', g_w='sc1', stamps=False, tl=False, gtl=False,
           epg='4', f2s='10', p2s='23', g2s='25', gs0='6', gs1='58', lo='5', lw='4', w1=False, qtl=False, pl='2', lag=True, ost='sc1', nb='3', jo='2', verbose=False, su='0', pf='2', bar1=False, kv0='48', bm='5', ba='2', bmax='4', out_st='sc1', hole=False, atom='1', diag='0', l2n='0', l2p='nt', l2t='6', burst='0', l2s='1', l2g='44', l2='', tight='0', l2e='0')
WS_WO = 33554432
WS_X = 44 << 20
WS_FL = 56 << 20
WS_STAMP = 64 << 20
SCALE = math.log2(math.e) / math.sqrt(128.0)
def f2i(x): return struct.unpack('<I', struct.pack('<f', x))[0]
KNAME = NAME + '_kernel'

SK, SV, SX, SW_, SO, SWS, SWD, SFL = 4, 8, 12, 16, 20, 24, 28, 88
SGO, SGW, SFP, SOUT = 12, 16, 24, 28
sWS, sOUT, sDBG = 52, 54, 46
sW, sW2K, sW4K, sT0, sKo, sVo, sSC, sTHR, sXo, sRET, sMODE, sWe = 32, 33, 34, 35, 36, 37, 38, 40, 41, 42, 44, 45
sJ, sCnt, sHead, sOo = 48, 94, 95, 96
SG2W, SG2O, sGive, sRem, sW4 = 4, 92, 46, 47, 49
VPP, VPG, VPR = 41, 42, 43
def srd(n): return f's[{n}:{n+3}]'
VPA, KADDR, VADDR, VOFFK, VOFFV, LREG, ETMP, CT, NEGM, VOFFO, VFLAG, VPOLL, VL4 = 3, 4, 8, 16, 18, 20, 28, 40, 44, 60, 61, 62, 63
KF, VF, SB, PB, EP = 64, 96, 128, 192, 224
NE = 12
def S(p, kt, qt): return SB + p * 32 + (kt * 4 + qt) * 4
def P(p, qt): return PB + p * 16 + qt * 4
def Lr(p, qt): return LREG + p * 4 + qt
def O(T, qt): return (T * 4 + qt) * 4
def Q(h, qt, u): return 128 + h * 64 + (u * 4 + qt) * 4
VSV, VSK, WADDR, XADDR, VOFFW, VOFFX, VOFFJ, JADDR = 20, 24, 64, 80, 84, 88, 92, 3
CW0, CW1, CR = 61, 62, 63
def QACC(h, T, qt): return (f'v{128 + (T * 4 + qt) * 4}' if h == 1 else f'a{(T * 4 + qt) * 4}')
def XF(t, qt): return (28 if (t >> 1) & 1 else 96) + ((t & 1) * 4 + qt) * 4
NWS = 24
def WF(slot): return 128 + slot * 4
BLK = 16384
def wblock(t): return [(4, 1), (7, 3), (8, 9)][(t >> 1) % 3][t & 1]
def xblock(p): return [2, 5, 6][p % 3]
def cl(s): return ' '.join(s.split())
def rng(r, n): return f'{r[0]}[{int(r[1:])}:{int(r[1:]) + n - 1}]'

def dma_kv(which, tile):
    base = (0 if which == 'K' else 65536) + (tile % 8) * 8192
    s, vo, so = (SK, VOFFK, sKo) if which == 'K' else (SV, VOFFV, sVo)
    tag = f'{which}{tile}'; nt = OPT['nt_kv']
    return [([f's_add_u32 m0, s{sW2K}, {base}'], Ins(cl(f'buffer_load_dwordx4 v{vo}, {srd(s)}, s{so} offen {nt} lds'), tag), []),
            ([], Ins(cl(f'buffer_load_dwordx4 v{vo + 1}, {srd(s)}, s{so} offen offset:1024 {nt} lds'), tag), [f's_add_u32 s{so}, s{so}, 8192'])]
def dma4(s, vo, off, blk, tag, nt, so=sWe):
    return [([f's_mov_b32 s{so}, {off}', f's_add_u32 m0, s{sW4K}, {blk * BLK}'] if n == 0 else [],
             Ins(cl(f'buffer_load_dwordx4 v{vo + n}, {srd(s)}, s{so} offen offset:{n * 1024} {nt} lds'), tag), []) for n in range(4)]
def dma_w(t): return dma4(SW_, VOFFW, t * 32 * 8192, wblock(t), f'W{t}', OPT['nt_w'])
def dma_x(p): return dma4(SX, VOFFX, (p >> 1) * 128 + (p & 1) * 32 * 1152, xblock(p), f'X{p}', OPT['nt_x'], sXo)
def dma_kk(i): return dma4(SK, VSK, i * 16384, i, f'KK{i}', OPT['nt_kv'])
def dma_vv(i): return dma4(SV, VSV, i * 16384, 4 + i, f'VV{i}', OPT['nt_kv'])
def flat(dl):
    out = []
    for pre, ins, post in dl: out += pre + [ins] + post
    return out

def I(x): return x if isinstance(x, Ins) else Ins(x)
def cost(x):
    k = x.kind
    return {'trans': 8, 'valu': 4, 'dsr': 4, 'dsw': 4, 'dma': 12, 'vld': 12, 'vst': 12}.get(k, 0 if k in ('label', 'dir', 'waitvm', 'waitlg') else 4)
class Gaps:
    def __init__(self, n):
        self.n = n; self.sc = [[] for _ in range(n + 1)]; self.mem = [[] for _ in range(n)]; self.v = [[] for _ in range(n)]
    def place_dma(self, dl, gaps):
        assert len(gaps) >= len(dl), (len(gaps), len(dl))
        for (pre, ins, post), g in zip(dl, gaps):
            for k, s in enumerate(pre): self.sc[g - len(pre) + k].append(s)
            self.mem[g].append(ins)
            for k, s in enumerate(post): self.sc[g + 1 + k].append(s)
    def load(self, g): return sum(cost(I(x)) for x in self.mem[g] + self.v[g])
    def pack(self, items, g0, g1):
        items = [I(x) for x in items]
        base = [self.load(g) for g in range(self.n)]
        for L in range(8, 400, 2):
            g = g0; used = 0; vhere = False; pos = []; ok = True
            for x in items:
                c = cost(x); ismem = x.kind in ('dsr', 'dsw', 'dma', 'vld', 'vst')
                while True:
                    if g >= g1: ok = False; break
                    room = L - base[g] - used
                    if ismem and (vhere or (self.mem[g] and L < 20)): fit = False
                    else: fit = c <= room or (c == 0) or (used == 0 and base[g] == 0)
                    if fit: break
                    g += 1; used = 0; vhere = False
                if not ok: break
                pos.append(g); used += c
                if not ismem: vhere = True
                else: vhere = True if False else vhere
            if ok: break
        assert ok
        for x, g in zip(items, pos):
            (self.mem if x.kind in ('dsr', 'dsw', 'dma', 'vld', 'vst') else self.v)[g].append(x)
        return pos
    def weave(self, mf, a=0, b=None):
        out = []
        b = self.n if b is None else b
        for i in range(a, b):
            if i < len(mf) and mf[i] is not None: out.append(mf[i])
            out += self.sc[i] + self.mem[i] + self.v[i]
        if b == self.n: out += self.sc[self.n]
        return out

def k_reads(tile):
    return [Ins(f'ds_read_b128 v[{KF + (kt * 4 + u) * 4}:{KF + (kt * 4 + u) * 4 + 3}], v{KADDR + u} offset:{(tile % 8) * 8192 + kt * 4096}', f'rK{tile}')
            for kt in range(2) for u in range(4)]
def v_reads(tile):
    return [Ins(f'ds_read_b64_tr_b16 v[{VF + T * 4 + s * 2}:{VF + T * 4 + s * 2 + 1}], v{VADDR + T} offset:{(tile % 8) * 8192 + s * 4096}', f'rV{tile}')
            for T in range(8) for s in range(2)]
def qk_mfmas(j):
    h = 1 if j in ((32, 33) if OPT['w1'] else (32,)) else 0
    p = j & 1; first = (j & 31) == 0
    out = []
    for kt in range(2):
        for u in range(4):
            for qt in range(4):
                c = f'v{S(p, kt, qt)}' if u else ('0' if first else f'v{NEGM + qt * 4}')
                out.append(mfma(f'v{S(p, kt, qt)}', f'v{KF + (kt * 4 + u) * 4}', f'a{Q(h, qt, u)}', c))
    return out
def pv_mfmas(j):
    p = j & 1; first = (j & 31) == 0
    return [mfma(f'a{O(T, qt)}', f'v{VF + T * 4}', f'v{P(p, qt)}', '0' if first else f'a{O(T, qt)}') for T in range(8) for qt in range(4)]

def softmax_stream(j):
    p = j & 1; first = (j & 31) == 0
    out = []
    for qt in range(4):
        for k in range(8):
            e = ETMP + (qt * 8 + k) % NE
            src = S(p, k >> 2, qt) + (k & 3)
            out.append([f'v_exp_f32 v{e}, v{src}'])
            l = Lr(p, qt)
            if k == 0: a = f'v_mov_b32 v{l}, v{e}' if first else f'v_add_f32 v{l}, v{Lr(1 - p, qt)}, v{e}'
            else: a = f'v_add_f32 v{l}, v{l}, v{e}'
            g = [a]
            if k & 1:
                e0 = ETMP + (qt * 8 + k - 1) % NE
                g.append(f'v_cvt_pk_bf16_f32 v{P(p, qt) + (k >> 1)}, v{e0}, v{e}')
            out.append(g)
    return out
def lagged(stream):
    out = [[] for _ in range(len(stream) + 2)]
    for i, g in enumerate(stream): out[i + (2 if i & 1 else 0)] += g
    return out
def undense(st):
    return [x for g in st for x in g]
def dense(stream):
    out = []; prev = []
    for i in range(0, len(stream), 2):
        out += stream[i]; out += prev; prev = stream[i + 1] if i + 1 < len(stream) else []
    return out + prev
def rowmax(p, qt, dst):
    s0 = S(p, 0, qt); s1 = S(p, 1, qt)
    return [f'v_max3_f32 v{dst}, v{s0}, v{s0 + 1}, v{s0 + 2}', f'v_max3_f32 v{dst}, v{dst}, v{s0 + 3}, v{s1}',
            f'v_max3_f32 v{dst}, v{dst}, v{s1 + 1}, v{s1 + 2}', f'v_max_f32 v{dst}, v{dst}, v{s1 + 3}']
def xlane(op, regs, tmps):
    out = []
    for sw in ('v_permlane16_swap_b32', 'v_permlane32_swap_b32'):
        out += [f'v_mov_b32 v{t}, v{r}' for r, t in zip(regs, tmps)]
        out += [f'{sw} v{t}, v{r}' for r, t in zip(regs, tmps)]
        out += [f'{op} v{r}, v{r}, v{t}' for r, t in zip(regs, tmps)]
    return out
def init_stream(j):
    p = j & 1
    m = [NEGM + qt * 4 for qt in range(4)]; t = [NEGM + qt * 4 + 1 for qt in range(4)]
    out = []
    rm = [rowmax(p, qt, m[qt]) for qt in range(4)]
    for k in range(4): out += [rm[qt][k] for qt in range(4)]
    out += xlane('v_max_f32', m, t)
    for qt in range(4):
        for k in range(8):
            s = S(p, k >> 2, qt) + (k & 3)
            out.append(f'v_sub_f32 v{s}, v{s}, v{m[qt]}')
    for qt in range(4):
        for r in (3, 2, 1, 0): out.append(f'v_sub_f32 v{NEGM + qt * 4 + r}, 0, v{m[qt]}')
    return out

def epilogue(packed):
    l = [Lr(1, qt) for qt in range(4)]
    t = [EP + 8 + i for i in range(4)]
    prep = xlane('v_add_f32', l, t)
    rc = [EP + 2 * i for i in range(4)]
    prep += [f'v_rcp_f32 v{rc[qt]}, v{l[qt]}' for qt in range(4)]
    units = []
    for k in range(16):
        u, qt = divmod(k, 4)
        b = EP + 8 + (k % 2) * 12
        rd = [f'v_accvgpr_read_b32 v{b + i}, a{O(2 * u + (i >> 2), qt) + (i & 3)}' for i in range(8)]
        if packed: mu = [f'v_pk_mul_f32 v[{b + 2 * i}:{b + 2 * i + 1}], v[{b + 2 * i}:{b + 2 * i + 1}], v[{rc[qt]}:{rc[qt] + 1}] op_sel_hi:[1,0]' for i in range(4)]
        else: mu = [f'v_mul_f32 v{b + i}, v{rc[qt]}, v{b + i}' for i in range(8)]
        cv = [f'v_cvt_pk_bf16_f32 v{b + 8 + i}, v{b + 2 * i}, v{b + 2 * i + 1}' for i in range(4)]
        st = [Ins(cl(f'buffer_store_dwordx4 v[{b + 8}:{b + 11}], v{VOFFO}, {srd(SO)}, s{sOo} offen offset:{qt * 1024} {OPT["ost"]}'), 'Ost')]
        if qt == 3: st.append(f's_add_u32 s{sOo}, s{sOo}, 4096')
        units.append((rd, mu, cv, st))
    return prep, units
def epi_flat(units):
    L = []; first = []; lastrd = []
    for k, (rd, mu, cv, st) in enumerate(units):
        first.append(len(L)); L += rd; lastrd.append(len(L) - 1)
        if k: L += units[k - 1][3]
        L += mu + cv
    L += units[-1][3]
    return L, first, lastrd

SPINS = []
def spin_check(name, load, cmp):
    SPINS.append(f"""L_spin_{name}:
s_mov_b32 s{sT0}, 0x40000
L_spin2_{name}:
s_sleep 1
{load}
s_sub_u32 s{sT0}, s{sT0}, 1
s_cbranch_scc1 L_back_{name}
s_waitcnt vmcnt(0)
{cmp}
s_nop 1
s_cbranch_vccnz L_spin2_{name}
s_branch L_back_{name}""")
    return [cmp, f's_cbranch_vccnz L_spin_{name}', f'L_back_{name}:']

def fallback(p):
    A = Prog()
    A(f'L_fb{p}:')
    A('s_nop 7\ns_nop 7')
    m = [EP + i for i in range(4)]; t = [EP + 4 + i for i in range(4)]; f = [EP + 8 + i for i in range(4)]
    rm = [rowmax(p, qt, m[qt]) for qt in range(4)]
    for k in range(4): A.extend([rm[qt][k] for qt in range(4)])
    A.extend(xlane('v_max_f32', m, t))
    for qt in range(4): A(f'v_max_f32 v{m[qt]}, 0, v{m[qt]}')
    for qt in range(4): A(f'v_exp_f32 v{f[qt]}, -v{m[qt]}')
    for qt in range(4):
        for k in range(8):
            s = S(p, k >> 2, qt) + (k & 3)
            A(f'v_sub_f32 v{s}, v{s}, v{m[qt]}')
        for r in range(4): A(f'v_sub_f32 v{NEGM + qt * 4 + r}, v{NEGM + qt * 4 + r}, v{m[qt]}')
        A(f'v_mul_f32 v{Lr(1 - p, qt)}, v{Lr(1 - p, qt)}, v{f[qt]}')
    A(f's_cmp_lg_u32 s{sMODE}, 0')
    A(f's_cbranch_scc1 L_fb{p}_b')
    for qt in range(4):
        for k in range(8):
            s = S(1 - p, k >> 2, qt) + (k & 3)
            A(f'v_sub_f32 v{s}, v{s}, v{m[qt]}')
    A(f'L_fb{p}_b:')
    for T in range(8):
        for qt in range(4):
            b = EP + 12 + ((T * 4 + qt) % 2) * 4
            for r in range(4): A(f'v_accvgpr_read_b32 v{b + r}, a{O(T, qt) + r}')
            for r in range(4): A(f'v_mul_f32 v{b + r}, v{b + r}, v{f[qt]}')
            for r in range(4): A(f'v_accvgpr_write_b32 a{O(T, qt) + r}, v{b + r}')
    A.extend(dense(softmax_stream(2 + p)))
    A('s_nop 3')
    A(f's_setpc_b64 s[{sRET}:{sRET + 1}]')
    A.fix_hazards()
    return A

def stamp(A, idx, base=64):
    if OPT['stamps'] and not OPT['qtl']: A(f's_memtime s[{base + idx * 2}:{base + idx * 2 + 1}]')
def store_stamps(A, n):
    A('s_memrealtime s[62:63]\ns_waitcnt lgkmcnt(0)')
    A('v_lshrrev_b32 v1, 6, v0\ns_lshl_b32 s50, s2, 2\nv_add_u32 v1, s50, v1\nv_lshlrev_b32 v1, 7, v1')
    A('v_and_b32 v2, 63, v0\nv_cmp_eq_u32 vcc, 0, v2\ns_and_saveexec_b64 s[50:51], vcc')
    for i in range(n):
        for k in range(4): A(f'v_mov_b32 v{4 + k}, s{60 + i * 4 + k}')
        A(f'buffer_store_dwordx4 v[4:7], v1, s[56:59], 0 offen offset:{i * 16}')
        A('s_nop 1')

def code_prefetch(A, start, end, va, vd, n, first=0, tag=''):
    A(f's_getpc_b64 s[50:51]')
    A(f'L_pc{tag}_{start}:')
    if start == KNAME: A(f's_sub_u32 s50, s50, L_pc{tag}_{start}-{start}\ns_subb_u32 s51, s51, 0')
    else: A(f's_add_u32 s50, s50, {start}-L_pc{tag}_{start}\ns_addc_u32 s51, s51, 0')
    A(f'v_lshlrev_b32 v{va}, 7, v0')
    if first: A(f'v_add_u32 v{va}, {first * 0x8000}, v{va}')
    for i in range(n):
        A(f'v_min_u32 v{va + 1}, {end}-{start}-4, v{va}')
        A(f'global_load_dword v{vd + i}, v{va + 1}, s[50:51]', tag='pf')
        if i + 1 < n: A(f'v_add_u32 v{va}, 0x8000, v{va}')

DEF_V = []; DEF_S = []
def setup(A):
    A('s_cmp_ge_u32 s2, 256\ns_cbranch_scc1 L_end')
    A(f"""s_bfe_u32 s48, s2, 0x10002
s_mul_i32 s50, s48, 40
s_add_u32 s52, s0, s50
s_addc_u32 s53, s1, 0
s_load_dwordx2 s[{SX}:{SX+1}], s[52:53], 0
s_load_dwordx2 s[{SW_}:{SW_+1}], s[52:53], 24
s_lshr_b32 s51, s2, 7
s_mul_i32 s51, s51, 40
s_add_u32 s54, s0, s51
s_addc_u32 s55, s1, 0
s_load_dwordx2 s[{SK}:{SK+1}], s[52:53], 8
s_load_dwordx2 s[{SV}:{SV+1}], s[52:53], 16
s_load_dwordx2 s[{SWS}:{SWS+1}], s[54:55], 32
s_load_dwordx2 s[{SO}:{SO+1}], s[0:1], 96
s_load_dwordx4 s[92:95], s[0:1], 80""")
    if OPT['stamps']: A('s_memrealtime s[60:61]')
    stamp(A, 0)
    if OPT['pf'] == '1': code_prefetch(A, KNAME, 'L_code_end', 100, 252, 1)
    elif OPT['pf'] == '2':
        A(f'''s_getpc_b64 s[50:51]
L_pcx:
s_sub_u32 s50, s50, L_pcx-{KNAME}
s_subb_u32 s51, s51, 0
s_lshr_b32 s48, s2, 3
s_cmp_ge_u32 s48, 3
s_cbranch_scc1 L_nopf
s_lshl_b32 s48, s48, 15
v_lshlrev_b32 v100, 7, v0
v_add_u32 v100, s48, v100
v_min_u32 v100, L_code_end-{KNAME}-4, v100''')
        A('global_load_dword v252, v100, s[50:51]', tag='pf')
        A('L_nopf:')
    A(f"""s_and_b32 s46, s2, 6
s_lshl_b32 s46, s46, 1
s_lshr_b32 s48, s2, 6
s_add_u32 s46, s46, s48
s_and_b32 s47, s2, 1
s_lshl_b32 s47, s47, 3
s_bfe_u32 s48, s2, 0x30003
s_add_u32 s47, s47, s48
s_and_b32 s49, s46, 7
v_lshrrev_b32 v1, 6, v0
v_and_b32 v2, 63, v0
v_readfirstlane_b32 s{sW}, v1
v_lshrrev_b32 v97, 4, v2
v_lshrrev_b32 v100, 3, v2
v_lshl_add_u32 v100, v1, 6, v100
v_mul_u32_u24 v100, 1152, v100
s_lshl_b32 s{sW4K}, s{sW}, 12
v_and_b32 v101, 7, v2
v_xor_b32 v101, v101, v97
v_lshl_add_u32 v{VOFFX}, v101, 4, v100
v_xor_b32 v101, 4, v101
v_lshl_add_u32 v102, v101, 4, v100
v_add_u32 v{VOFFX + 1}, {8 * 1152 - 1024}, v102
v_add_u32 v{VOFFX + 2}, {2 * (8 * 1152 - 1024)}, v{VOFFX}
v_add_u32 v{VOFFX + 3}, {3 * (8 * 1152 - 1024)}, v102
v_lshrrev_b32 v100, 5, v2
v_and_b32 v101, 31, v2
v_and_b32 v102, 1, v1
v_lshl_add_u32 v102, v102, 2, v100
v_lshl_add_u32 v103, v1, 3, v100
v_lshlrev_b32 v103, 13, v103
v_lshlrev_b32 v104, 1, v102
v_xor_b32 v104, v104, v101
v_lshl_add_u32 v{VOFFW}, v104, 4, v103
v_xor_b32 v104, 64, v{VOFFW}
v_add_u32 v{VOFFW + 1}, {16384 - 1024}, v104
v_add_u32 v{VOFFW + 2}, {2 * (16384 - 1024)}, v{VOFFW}
v_add_u32 v{VOFFW + 3}, {3 * (16384 - 1024)}, v104
s_mul_i32 s50, s49, 294912
s_lshl_b32 s51, s47, 9
s_mov_b32 s{SX+2}, 294912
s_mov_b32 s{SX+3}, 0x20000
s_sub_u32 s{SW_+2}, {576 * 8192}, s51
s_mov_b32 s{SW_+3}, 0x20000
s_waitcnt lgkmcnt(0)""")
    stamp(A, 1)
    A(f"""s_add_u32 s{SX}, s{SX}, s50
s_addc_u32 s{SX+1}, s{SX+1}, 0
s_add_u32 s{SW_}, s{SW_}, s51
s_addc_u32 s{SW_+1}, s{SW_+1}, 0""")
    A.extend(flat(dma_w(0)) + flat(dma_x(0)) + flat(dma_x(1)) + flat(dma_w(1)))
    A(f"""v_and_b32 v96, 15, v2
v_and_b32 v98, 3, v2
v_bfe_u32 v99, v2, 2, 2
v_lshl_add_u32 v100, v97, 3, v99
v_and_b32 v101, 1, v97
v_lshl_add_u32 v101, v101, 2, v99
v_lshlrev_b32 v101, 5, v101
v_lshl_add_u32 v101, v100, 9, v101
v_lshl_add_u32 v101, v98, 3, v101
v_add_u32 v{WADDR}, {BLK}, v101""")
    for T in range(1, 8): A(f'v_xor_b32 v{WADDR + T}, {T * 32}, v{WADDR}')
    A(f"""v_lshrrev_b32 v100, 1, v96
v_xor_b32 v100, v100, v97
v_lshlrev_b32 v100, 4, v100
v_lshl_add_u32 v100, v96, 7, v100
v_lshl_add_u32 v100, v1, 12, v100
v_add_u32 v{XADDR}, {2 * BLK}, v100
v_xor_b32 v{XADDR + 1}, 64, v{XADDR}
v_add_u32 v{XADDR + 2}, {4 * BLK}, v{XADDR}
v_add_u32 v{XADDR + 3}, {4 * BLK}, v{XADDR + 1}""")
    if OPT['su'] == '0':
        A.extend(flat(dma_x(2)) + flat(dma_w(2)) + flat(dma_w(3)))
        if OPT['pf'] == '1': code_prefetch(A, KNAME, 'L_code_end', 100, 253, 2, first=1, tag='b')
    KVS = f"""s_lshl_b32 s50, s49, 23
s_lshl_b32 s51, s47, 19
s_add_u32 s50, s50, s51
s_add_u32 s{SK}, s{SK}, s50|s_addc_u32 s{SK+1}, s{SK+1}, 0
s_mov_b32 s{SK+2}, 0x80000
s_mov_b32 s{SK+3}, 0x20000
s_add_u32 s{SV}, s{SV}, s50|s_addc_u32 s{SV+1}, s{SV+1}, 0
s_mov_b32 s{SV+2}, 0x80000
s_mov_b32 s{SV+3}, 0x20000"""
    ne = int(OPT['l2e'])
    if ne:
        A(KVS.replace('|', '\n')); KVS = ''
        A(f'v_lshlrev_b32 v100, 7, v2\nv_mul_u32_u24 v101, {ne * 1024}, v1\nv_add_u32 v100, v100, v101\nv_cmp_le_u32 vcc, {ne * 8}, v2\nv_cndmask_b32 v100, v100, -1, vcc')
        A(f's_mov_b32 s50, {8 * 8192}\ns_mov_b32 s51, {6 * 8192}')
        A(cl(f'buffer_load_dword a254, v100, {srd(SK)}, s50 offen {OPT["l2p"]}'), tag='l2')
        A(cl(f'buffer_load_dword a253, v100, {srd(SV)}, s51 offen {OPT["l2p"]}'), tag='l2')
    V = DEF_V; a, b, c, d, l15, g = 92, 93, 94, 95, 61, 62
    V += [f'v_add_u32 v{WADDR + 8 + T}, {6 * BLK}, v{WADDR + T}' for T in range(8)]
    V += f"""v_lshlrev_b32 v{VOFFO}, 4, v2
v_and_b32 v{l15}, 15, v2
v_lshrrev_b32 v{g}, 4, v2
v_lshlrev_b32 v{a}, 11, v1
v_lshl_add_u32 v{a}, v{g}, 8, v{a}
v_lshl_add_u32 v{b}, v1, 3, v{g}""".split('\n')
    for o in range(2):
        V += f"""v_add_u32 v{c}, {4 * o}, v{b}
v_and_b32 v{d}, 15, v{c}
v_xor_b32 v{d}, v{d}, v{l15}
v_lshl_add_u32 v{VOFFK + o}, v{d}, 4, v{a}
v_and_b32 v{d}, 7, v{c}
v_lshlrev_b32 v{d}, 1, v{d}
v_xor_b32 v{d}, v{d}, v{l15}
v_lshl_add_u32 v{VOFFV + o}, v{d}, 4, v{a}""".split('\n')
    V += [f'v_lshlrev_b32 v{a}, 12, v1', f'v_lshl_add_u32 v{a}, v{g}, 8, v{a}']
    for n in range(4):
        V += f"""v_add_u32 v{c}, {4 * n}, v{g}
v_xor_b32 v{d}, v{c}, v{l15}
v_lshl_add_u32 v{VSK + n}, v{d}, 4, v{a}
v_and_b32 v{d}, 7, v{c}
v_lshlrev_b32 v{d}, 1, v{d}
v_xor_b32 v{d}, v{d}, v{l15}
v_lshl_add_u32 v{VSV + n}, v{d}, 4, v{a}""".split('\n')
    V += [f'v_xor_b32 v{a}, v{g}, v{l15}', f'v_lshlrev_b32 v{a}, 4, v{a}', f'v_lshl_add_u32 v{KADDR}, v{l15}, 8, v{a}']
    V += [f'v_xor_b32 v{KADDR + u}, {u * 64}, v{KADDR}' for u in range(1, 4)]
    V += f"""v_lshrrev_b32 v{a}, 2, v2
v_and_b32 v{b}, 7, v{a}
v_lshlrev_b32 v{b}, 5, v{b}
v_lshl_add_u32 v{b}, v{a}, 8, v{b}
v_and_b32 v{c}, 3, v2
v_lshl_add_u32 v{b}, v{c}, 3, v{b}
v_add_u32 v{VADDR}, 0x10000, v{b}
v_mul_u32_u24 v{a}, 384, v{a}
v_lshl_add_u32 v{a}, v{c}, 3, v{a}
v_mul_u32_u24 v{b}, 96, v1
v_add_u32 v{JADDR}, v{a}, v{b}""".split('\n')
    V += [f'v_xor_b32 v{VADDR + T}, {T * 32}, v{VADDR}' for T in range(1, 8)]
    V += f"""v_bfe_u32 v{a}, v2, 2, 1
v_lshlrev_b32 v{a}, 1, v{a}
v_bfe_u32 v{b}, v2, 3, 1
v_mul_u32_u24 v{b}, 3, v{b}
v_xor_b32 v{a}, v{a}, v{b}
v_lshlrev_b32 v{c}, 6, v{l15}
v_lshl_add_u32 v{c}, v1, 12, v{c}
v_add_u32 v{c}, {6 * BLK}, v{c}
v_xor_b32 v{b}, v{a}, v{g}
v_lshl_add_u32 v{CR}, v{b}, 4, v{c}
v_lshrrev_b32 v{b}, 1, v{g}
v_xor_b32 v{b}, v{b}, v{a}
v_lshl_add_u32 v{c}, v{b}, 4, v{c}
v_and_b32 v{b}, 1, v{g}
v_lshl_add_u32 v{CW0}, v{b}, 3, v{c}""".split('\n')
    for n in range(3):
        t = VOFFJ + n
        V += f"""v_add_u32 v{d}, {64 * n}, v2
v_mul_u32_u24 v{t}, 2731, v{d}
v_lshrrev_b32 v{t}, 16, v{t}
v_mul_u32_u24 v{CW1}, 24, v{t}
v_sub_u32 v{d}, v{d}, v{CW1}
v_lshl_add_u32 v{t}, v1, 3, v{t}
v_mul_u32_u24 v{t}, 1152, v{t}
v_lshl_add_u32 v{t}, v{d}, 4, v{t}
v_subrev_u32 v{t}, {n * 1024}, v{t}""".split('\n')
    V += [f'v_xor_b32 v{CW1}, 32, v{CW0}']
    S_ = f"""s_and_b32 s50, s2, 127
s_mul_i32 s50, s50, 36864
s_add_u32 s{SWS}, s{SWS}, s50|s_addc_u32 s{SWS+1}, s{SWS+1}, 0
s_mov_b32 s{SWS+2}, 36864
s_mov_b32 s{SWS+3}, 0x20000
s_lshl_b32 s{sW2K}, s{sW}, 11
{KVS}
s_mov_b32 s{sWS}, s{SO}
s_mov_b32 s{sWS+1}, s{SO+1}
s_mov_b32 s{sOUT}, s92
s_mov_b32 s{sOUT+1}, s93
s_lshr_b32 s50, s2, 7
s_lshl_b32 s50, s50, 9
s_and_b32 s51, s2, 64
s_add_u32 s50, s50, s51
s_bfe_u32 s51, s2, 0x10002
s_lshl_b32 s51, s51, 5
s_add_u32 s50, s50, s51
s_bfe_u32 s51, s2, 0x30003
s_lshl_b32 s51, s51, 2
s_add_u32 s50, s50, s51
s_and_b32 s51, s2, 3
s_add_u32 s50, s50, s51
s_mul_i32 s50, s50, 9216
s_add_u32 s50, s50, {WS_WO}
s_add_u32 s{SWD}, s{SO}, s50|s_addc_u32 s{SWD+1}, s{SO+1}, 0
s_mov_b32 s{SWD+2}, {3 * 128 * 9216 + 9216}
s_mov_b32 s{SWD+3}, 0x20000
s_lshl_b32 s50, s2, 7
s_lshl_b32 s51, s{sW}, 2
s_add_u32 s50, s50, s51
s_add_u32 s50, s50, {WS_FL}
s_add_u32 s{SFL}, s{SO}, s50|s_addc_u32 s{SFL+1}, s{SO+1}, 0
s_mov_b32 s{SFL+2}, 68
s_mov_b32 s{SFL+3}, 0x20000""".split('\n')
    if OPT['stamps']:
        S_ += [f's_add_u32 s56, s{SO}, {WS_STAMP}|s_addc_u32 s57, s{SO+1}, 0', 's_mov_b32 s58, 0x100000', 's_mov_b32 s59, 0x20000']
    S_ += f"""s_lshl_b32 s50, s46, 2
s_add_u32 s50, s50, s{sW}
s_lshl_b32 s50, s50, 19
s_lshl_b32 s51, s47, 15
s_add_u32 s50, s50, s51
s_add_u32 s{SO}, s{SO}, s50|s_addc_u32 s{SO+1}, s{SO+1}, 0
s_mov_b32 s{SO+2}, 32768
s_mov_b32 s{SO+3}, 0x20000
s_mov_b32 s{sSC}, {f2i(SCALE):#x}
s_mov_b32 s{sTHR}, {f2i(2.0 ** 24):#x}
s_mov_b32 s{sOo}, 0
s_mov_b32 s{sDBG}, s94
s_mov_b32 s{sDBG+1}, s95
s_mov_b32 s{sKo}, {8 * 8192}
s_mov_b32 s{sVo}, {6 * 8192}
s_mov_b32 s{sCnt}, 3
s_mov_b32 s{sHead}, 0""".split('\n')
    DEF_S.extend(x for x in S_ if x)

def x_reads(pc):
    c = pc >> 1; blk = xblock(pc)
    return [Ins(f'ds_read_b128 v[{XF(2 * c + ks, 2 * (pc & 1) + qq)}:{XF(2 * c + ks, 2 * (pc & 1) + qq) + 3}], v{XADDR + ks + (2 if blk == 6 else 0)} offset:{(0 if blk == 6 else (blk - 2) * BLK) + qq * 2048}', f'rX{pc}')
            for ks in range(2) for qq in range(2)]
def w_read(t, h, T, dst):
    blk = wblock(t)
    ad = WADDR + T if blk <= 4 else WADDR + 8 + T
    off = (blk - 1 if blk <= 4 else blk - 7) * BLK + h * 256
    d = int(dst[1:])
    return [Ins(f'ds_read_b64_tr_b16 {dst[0]}[{d + 2 * s}:{d + 2 * s + 1}], v{ad} offset:{off + s * 2048}', f'rW{t}') for s in range(2)]
def w_reads(t):
    out = []
    for f in range(16): out += w_read(t, f >> 3, f & 7, f'a{WF((16 * t + f) % NWS)}')
    return out
UH = ['a160', 'a192', 'a160', 'a192', 'a0', 'a32', 'a0', 'a32']
def uw(n, k, tt): return f'{UH[n][0]}{int(UH[n][1:]) + (k * 2 + tt) * 4}'
def unit_reads(n):
    h, u = n >> 2, n & 3
    out = []
    for k in range(4):
        for tt in range(2): out += w_read(14 + k, h, 2 * u + tt, uw(n, k, tt))
    return out
def conv(n):
    h, u = n >> 2, n & 3
    V = []; D = []
    tiles = []
    for tt in range(2):
        for qt in range(4):
            acc = QACC(h, 2 * u + tt, qt)
            if h == 1: b = int(acc[1:]); rd = []
            else:
                b = 84 + ((n * 8 + tt * 4 + qt) % 3) * 4
                rd = [f'v_accvgpr_read_b32 v{b + r}, a{int(acc[1:]) + r}' for r in range(4)]
            mu = [f'v_mul_f32 v{b + r}, s{sSC}, v{b + r}' for r in range(4)]
            cv = [f'v_cvt_pk_bf16_f32 v{b}, v{b}, v{b + 1}', f'v_cvt_pk_bf16_f32 v{b + 1}, v{b + 2}, v{b + 3}']
            V += [Ins(x) for x in rd + mu + cv]
            D.append((len(V) - 1, Ins(f'ds_write_b64 v{CW1 if tt else CW0}, v[{b}:{b + 1}] offset:{qt * 1024}')))
    D += [(len(V) - 1, Ins(f'ds_read_b128 a[{Q(h, qt, u)}:{Q(h, qt, u) + 3}], v{CR} offset:{qt * 1024}', f'rQ{n}')) for qt in range(4)]
    seq = []
    for i, x in enumerate(V):
        seq.append(x); seq += [d for k, d in D if k == i]
    return V, D, seq

def q_phase(A):
    stamp(A, 2)
    A('WAITVM X0+X1+W0+W1\ns_barrier')
    stamp(A, 3)
    if OPT['su'] == '0': A.extend(x_reads(0) + x_reads(1) + w_reads(0))
    else:
        rd = x_reads(0) + x_reads(1) + w_reads(0)
        dj = dma_x(2) + dma_w(2) + dma_w(3)
        for i in range(12):
            A.extend(flat([dj[i]])); A.extend(rd[i * 40 // 12:(i + 1) * 40 // 12])
    def JR(i): return f'a{224 + 4 * i}' if i < 8 else 'v92'
    def jstore(i):
        r, n = divmod(i, 3)
        pre = [f's_add_u32 s{sT0}, s{sW}, {4 * r}', f's_mul_i32 s49, s{sT0}, 43', f's_lshr_b32 s49, s49, 7',
               f's_mul_i32 s49, s49, {128 * 9216 - 9216}', f's_mul_i32 s{sT0}, s{sT0}, 3072', f's_add_u32 s{sJ}, s{sT0}, s49'] if n == 0 else []
        return [(pre, Ins(cl(f'buffer_store_dwordx4 {rng(JR(i), 4)}, v{VOFFO}, {srd(SWD)}, s{sJ} offen offset:{n * 1024} {OPT["st"]}'), 'Jst'), [])]
    for t in range(14):
        mf = []
        for f in range(16):
            for qt in range(4):
                acc = QACC(f >> 3, f & 7, qt)
                mf.append(mfma(acc, f'a{WF((16 * t + f) % NWS)}', f'v{XF(t, qt)}', acc if t else '0'))
        G = Gaps(64)
        groups = []
        J4 = OPT['jo'] == '4'
        if t in ((2, 5, 9) if J4 else (3, 7, 11)):
            r = t // 4
            groups += [[([f's_mov_b32 s{sWe}, {r * 384}', f's_mul_i32 m0, s{sW}, 3072'] if n == 0 else [],
                         Ins(f'buffer_load_dwordx4 v{VOFFJ + n}, {srd(SWS)}, s{sWe} offen offset:{n * 1024} nt lds', f'J{r}'), []) for n in range(3)]]
        if t == 0: groups += [dma_x(3), dma_x(4), dma_w(4)]
        if t == 1: groups += [dma_w(5)]
        if 1 <= t <= 12: groups += [dma_w(t + 5)]
        if t + 5 < 18: groups += [dma_x(t + 5)]
        if t == 13 and not J4: groups += [dma_vv(0), dma_kk(1)]
        ngr = len(groups)
        gl = {4: [[5, 8, 11, 14], [18, 22, 26, 30], [34, 38, 42, 46], [51, 54, 57, 60]],
              3: [[2, 7, 12, 17], [24, 29, 34, 39], [46, 51, 56, 60]],
              2: [[2, 10, 18, 26], [34, 42, 50, 58]], 1: [[18, 30, 42, 54]], 0: []}[ngr]
        if J4 and t == 12: gl = [[2, 6, 10, 14], [20, 24, 28, 32]]
        dg = [g for gr, pos in zip(groups, gl) for g in pos[:len(gr)]]
        if J4 and t in (12, 13):
            for i, g in {12: [(0, 44), (1, 52), (2, 60)], 13: [(3, 8), (4, 16), (5, 24), (6, 34), (7, 44), (8, 54)]}[t]:
                G.place_dma(jstore(i), [g]); dg.append(g)
            if t == 13:
                G.v[57].append(f'v_mov_b32 v{VPA}, 0'); dg.append(59)
                G.mem[59].append(Ins(cl(f'buffer_store_dword v{VPA}, v{VOFFO}, {srd(SFL)}, 0 offen {OPT["st"]}'), 'Fz'))
        L2 = [int(x) for x in OPT['l2'].split('.')] if OPT['l2'] else []
        for i in [i for i, x in enumerate(L2) if x == t]:
            if i == 0:
                G.v[4] += ['v_lshlrev_b32 v95, 7, v2', 'v_lshl_add_u32 v95, v1, 11, v95']
                G.v[5] += [f'v_lshrrev_b32 v{VOFFO}, 4, v2', f'v_lshl_add_u32 v95, v{VOFFO}, 24, v95']
                G.v[6] += [f'v_lshlrev_b32 v{VOFFO}, 4, v2']
            sr, base = (SK, 8) if i % 2 == 0 else (SV, 6)
            g = 14 if (i + 1 < len(L2) and L2[i + 1] == t) else 46
            while g in dg or G.sc[g - 1]: g += 1
            G.sc[g - 1].append(f's_mov_b32 s{sT0}, {(base + int(OPT["l2e"]) // 2 + i // 2) * 8192}')
            x = Ins(cl(f'buffer_load_dword a255, v95, {srd(sr)}, s{sT0} offen {OPT["l2p"]}'), 'l2'); x.wr = set() if i + 1 < len(L2) else x.wr
            G.mem[g].append(x); dg.append(g)
        free = [g for g in range(64) if g not in dg]
        G.sc[0].append(f'WAITVM X{t + 2}')
        rds = x_reads(t + 2)
        if t + 5 < 18:
            xi = [i for i, gr in enumerate(groups) if gr[0][1].tag == f'X{t + 5}'][0]
            G.sc[gl[xi][0] - 3].append(f'WAITLG rX{t + 2}')
        if t in ((3, 7, 11) if J4 else (5, 9, 13)):
            for n in range(3):
                d = JR((t // 4 - (0 if J4 else 1)) * 3 + n)
                rds += [Ins(f'ds_read_b64_tr_b16 {d[0]}[{int(d[1:]) + 2 * sx}:{int(d[1:]) + 2 * sx + 1}], v{JADDR} offset:{n * 32 + sx * 16 * 384}') for sx in range(2)]
        if t == 0: G.sc[2].append('WAITLG rX1')
        rds += w_reads(t + 1) if t < 13 else unit_reads(0)[:8]
        for r, g in zip(rds, free): G.mem[g].append(r)
        for gr, g in zip(groups, gl): G.place_dma(gr, g)
        if t % 2 == 0 or t == 13:
            c = t // 2 + 1
            tags = f'W{2 * c}+W{2 * c + 1}' if t != 13 else 'W16+W17+X16+X17'
            if t in ((2, 6, 10) if J4 else (4, 8, 12)): tags += f'+J{t // 4 - (0 if J4 else 1)}'
            G.sc[62] += [f'WAITVM {tags} lg0', 's_barrier']
        if t == 0 and OPT['su'] != '0':
            P_ = Prog(); code_prefetch(P_, KNAME, 'L_code_end', 8, 252, 2, first=1, tag='b')
            G.v[63] += [Ins(x.text.replace('global_load_dword v', 'global_load_dword a'), x.tag) for x in P_.L]
        if t < 3:
            n0, n1 = ([0, 62, len(DEF_V), len(DEF_V)] if J4 else [0, 40, 95, len(DEF_V)])[t:t + 2]
            for i, x in enumerate(DEF_V[n0:n1]): G.v[(i * 62) // (n1 - n0)].append(x)
        if t in (1, 2, 4, 6) and DEF_S:
            for g in range(41, 62):
                if DEF_S and not G.sc[g]: G.sc[g] += DEF_S.pop(0).split('|')
            if t == 6:
                for g in range(4, 40):
                    pass
        if t in (8, 10) and DEF_S:
            for g in range(41, 62):
                if DEF_S and not G.sc[g]: G.sc[g] += DEF_S.pop(0).split('|')
        if t == 11: assert not DEF_S, len(DEF_S)
        if OPT['qtl']:
            G.v[3].append('s_memtime s[98:99]'); G.v[40].append(f's_mov_b32 s{64 + t}, s98')
        A.extend(G.weave(mf))
    stamp(A, 4)
    gsu = f"""s_and_b32 s50, s2, 6
s_lshl_b32 s50, s50, 3
s_lshr_b32 s51, s2, 5
s_lshl_b32 s51, s51, 1
s_add_u32 s50, s50, s51
s_lshr_b32 s51, s{sW}, 1
s_add_u32 s50, s50, s51
s_lshl_b32 s50, s50, 19
s_and_b32 s51, s2, 1
s_lshl_b32 s51, s51, 18
s_add_u32 s50, s50, s51
s_and_b32 s51, s{sW}, 1
s_lshl_b32 s51, s51, 11
s_add_u32 s50, s50, s51
s_add_u32 s{SGO}, s{sWS}, s50|s_addc_u32 s{SGO+1}, s{sWS+1}, 0
s_mov_b32 s{SGO+2}, {262144 - 2048}
s_and_b32 s50, s2, 4
s_bfe_u32 s51, s2, 0x20003
s_add_u32 s50, s50, s51
s_lshl_b32 s50, s50, 1
s_and_b32 s51, s2, 1
s_add_u32 s50, s50, s51
s_mul_i32 s50, s50, {64 * 9216}
s_add_u32 s50, s50, {WS_WO}
s_add_u32 s{SGW}, s{sWS}, s50|s_addc_u32 s{SGW+1}, s{sWS+1}, 0
s_mov_b32 s{SGW+2}, {64 * 9216}""".split('\n')
    NG = 288
    G = Gaps(NG + 8)
    mf = []; ref = []
    UR = [unit_reads(n) for n in range(8)]
    XR = x_reads(16) + x_reads(17)
    K0 = k_reads(0); K1 = k_reads(1)
    CV_ = [conv(n) for n in range(8)]
    ref += XR
    for n in range(8):
        h, u = n >> 2, n & 3
        m = [Ins(mfma(QACC(h, 2 * u + tt, qt), uw(n, k, tt), f'v{XF(14 + k, qt)}', QACC(h, 2 * u + tt, qt))) for k in range(4) for tt in range(2) for qt in range(4)]
        mf += m
        ref += (UR[n][8:] if n == 0 else UR[n]) + m + CV_[n][2]
    m = [Ins(x) for x in qk_mfmas(0)]
    mf += m; ref += K0 + m + K1
    if OPT['jo'] == '4':
        k0 = int(OPT['kv0'])
        for i, jobs in enumerate([dma_kk(0), dma_vv(0), dma_kk(1), dma_vv(1), dma_kk(2)]):
            st_ = (215 - k0) // 20
            G.place_dma(jobs, [k0 + st_ * (4 * i + x) for x in range(4)])
        kv = {1: k0 + st_ * 12}
    else:
        JS = [jstore(i) for i in range(9)]
        ref = [x[0][1] for x in JS] + ref
        order = [6, 8, 7, 0, 1, 2, 3, 4, 5]
        jp = [17, 24, 48, 76, 100, 124, 152, 176, 200]; fz = 220; kv = {0: 36, 1: 104, 2: 164}
        for i, g in zip(order, jp): G.place_dma(JS[i], [g])
        G.v[fz - 2].append(f'v_mov_b32 v{VPA}, 0')
        G.mem[fz].append(Ins(cl(f'buffer_store_dword v{VPA}, v{VOFFO}, {srd(SFL)}, 0 offen {OPT["st"]}'), 'Fz'))
        for i, jobs in enumerate([dma_kk(0), dma_vv(1), dma_kk(2)]):
            G.place_dma(jobs, [kv[i] + 14 * x for x in range(4)])
    G.place_dma(dma_kk(3), [250, 258, 266, 274])
    G.sc[kv[1] - 3].append('WAITLG rX16')
    gi = 260
    for x in gsu:
        while G.sc[gi]: gi += 1
        G.sc[gi] += x.split('|')
    BAR = 32 * 7 + 9
    G.sc[BAR] += ['WAITVM KK0 lg0', 's_barrier']
    def put(ins, g, lim=None):
        while G.mem[g] or (BAR - 5 <= g < BAR): g += 1
        assert lim is None or g <= lim, (ins.text, g, lim)
        G.mem[g].append(ins); return g
    cur = 0
    for n in range(8):
        V, D, _ = CV_[n]
        g0 = 32 * (n + 1) + 1; span = 30
        vp = [g0 + (i * span) // len(V) for i in range(len(V))]
        for x, g in zip(V, vp): G.v[g].append(x)
        for i, d in D: cur = put(d, max(cur, vp[i] + 1))
    g = 0
    for r in XR[:2] + XR[4:6] + UR[0][8:12] + XR[2:4] + XR[6:] + UR[0][12:]: g = put(r, g)
    for n in range(1, 8):
        for i, r in enumerate(UR[n]):
            g = put(r, max(g, 32 * (n - 1) + (i * 3) // 2), lim=min(32 * n + 2 * i - 5, BAR - 6))
    g = BAR
    for i, r in enumerate(K0): g = put(r, max(g, BAR + 2 * i), lim=256 + 4 * i - 6)
    for i, r in enumerate(K1): g = put(r, max(g, 256 + 4 * i + 4))
    if OPT['stamps'] and not OPT['qtl']: G.sc[257].append('s_memtime s[74:75]')
    if OPT['qtl']:
        for n in range(9): G.v[32 * n + 3].append('s_memtime s[98:99]'); G.v[32 * n + 25].append(f's_mov_b32 s{78 + n}, s98')
    out = [I(x) for x in G.weave(mf)]
    check_order(ref, out, 'QB')
    A.extend(out)
    ini = init_stream(0)
    A.extend(ini[:40])
    A('WAITLG rQ7')
    vv = flat(dma_vv(2))
    for i in range(4): A.extend(vv[-4 + i:][:1] if i else vv[:3]); A.extend(ini[40 + 12 * i:52 + 12 * i])

def seg_name(j):
    if j == 0 or (j == 32 and not OPT['w1']): return 's0'
    if j == 32: return 's32'
    if j == 31: return 'sp31'
    if j == 63: return 'fin31'
    if j >= 56: return f'p{j}'
    return f'r{j % 8}'

def gen():
    A = Prog()
    setup(A)
    q_phase(A)
    LAG = OPT['lag']
    SH = 4 if LAG else 2
    if LAG:
        sms = lambda j: lagged(softmax_stream(j))
        dn_ = undense
    else:
        sms = softmax_stream; dn_ = dense
    st = sms(0)
    A.extend(dn_(st[:32 + SH]))
    carry = st[32 + SH:]
    stamp(A, 6)
    if OPT['tl']: A('s_mov_b32 s97, 0')
    def tagsof(which, t):
        if which == 'V' and t < 6: return f'VV{t // 2}'
        if which == 'K' and t < 8: return f'KK{t // 2}'
        return f'{which}{t}'
    GA = [4, 5, 6]
    def WB(s, n): return 128 + (s & 1) * 36 + n * 4
    def GACC(n, mm): i = n * 2 + mm; return 64 + i * 4 if i < 16 else 200 + (i - 16) * 4
    def OB(s, mm): return 128 + ((s + 8) % 16) * 8 + mm * 4
    def g_wreads(s):
        out = []
        for n in range(9):
            ad = ((s >> 2) % 4) * 36864 + (s & 3) * 9216 + n * 1024
            out.append(Ins(f'ds_read_b128 v[{WB(s, n)}:{WB(s, n) + 3}], v{GA[ad >> 16]} offset:{ad & 0xffff}', f'rG{s}'))
        return out
    def g_oloads(s):
        gen_, i, u = s >> 5, (s >> 2) & 7, s & 3
        off, sr = ((2 * i + gen_) * 16384 + u * 4096, SGO) if s < 64 else (i * 32768 + u * 4096, SG2O)
        return [([f's_mov_b32 s{sWe}, {off}'] if mm == 0 else [],
                 Ins(cl(f'buffer_load_dwordx4 a[{OB(s, mm)}:{OB(s, mm) + 3}], v{VOFFO}, {srd(sr)}, s{sWe} offen offset:{mm * 1024} {OPT["g_o"]}'), f'GO{s}'), []) for mm in range(2)]
    def g_w8(a, tag):
        return [([f's_mov_b32 s{sKo}, {a}', f's_add_u32 m0, s{sW2K}, {a}'] if o == 0 else [],
                 Ins(cl(f'buffer_load_dwordx4 v{VOFFK}, {srd(SGW)}, s{sKo} offen offset:{o * 1024} {OPT["g_w"]} lds'), tag), []) for o in range(2)]
    def g_wchunk(c):
        out = []
        for n in range(9):
            pre = [f's_add_u32 s{sKo}, s{sXo}, {(c % 16) * 36864 + (n // 4) * 4096}', f's_add_u32 m0, s{sXo}, {(c % 4) * 36864 + (n // 4) * 4096}'] if n % 4 == 0 else []
            out.append((pre, Ins(cl(f'buffer_load_dwordx4 v{VOFFO}, {srd(SGW if c < 16 else SG2W)}, s{sKo} offen offset:{(n % 4) * 1024} {OPT["g_w"]} lds'), f'GW{c}'), []))
        return out
    poll1 = f'buffer_load_dword v{VPOLL}, v{VPA}, {srd(SFP)}, 0 offen sc1'
    poll2 = f'buffer_load_dword v{VPOLL}, v{VPA}, {srd(SFP)}, 0 offen offset:16 sc1'
    pollc = f'buffer_load_dword v{VPOLL}, v{VPA}, {srd(SWS)}, 0 offen sc1'
    polld = f'buffer_load_dword v{VPOLL}, v{VPP}, {srd(SFP)}, 0 offen offset:64 sc1'
    ne1 = f'v_cmp_ne_u32 vcc, 1, v{VPOLL}'
    qcopy = [f'v_accvgpr_mov_b32 a{128 + i}, a{192 + i}' for i in range(64)]

    POST = []
    def fill(G, o, j, carry):
        jj = j & 31; nm = seg_name(j); p = j & 1
        if OPT['bar1'] and j < 63:
            TI = int(OPT['tight']) if 3 < j < 50 else 0
            tags = [tagsof('V', j + TI), tagsof('K', j + 2 + TI)] + ([tagsof('V', 63)] if j == 62 else []) + (['Jst', 'Fz'] if j == 6 else [])
            G.sc[o] += [f'WAITVM {"+".join(tags)} lg0', 's_barrier']
        elif j % 2 == 0:
            tags = [tagsof('V', j), tagsof('V', j + 1), tagsof('K', j + 2), tagsof('K', j + 3)] + (['Jst', 'Fz'] if j == 6 else [])
            G.sc[o] += [f'WAITVM {"+".join(tags)} lg0', 's_barrier']
        last = len(carry) - 1
        if j < 63:
            for i, g in enumerate(carry): G.v[o + i] += g
        if jj != 0:
            G.v[o + 17].append(f'v_max3_f32 v{CT}, v{Lr(p, 0)}, v{Lr(p, 1)}, v{Lr(p, 2)}')
            G.v[o + last].append(f'v_max_f32 v{CT}, v{CT}, v{Lr(p, 3)}')
            G.v[o + last].append(f'v_cmp_lt_f32 vcc, s{sTHR}, v{CT}')
            G.sc[o + last + 1] += [f's_cbranch_vccnz L_st_{nm}', f'L_bk_{nm}:']
        ncarry = None
        if j < 63:
            PL = {'0': (sorted([3 + 4 * i for i in range(8)] + [4 + 4 * i for i in range(8)]), [35, 36, 39, 40, 43, 47, 51, 55], [10, 26, 42, 59]),
                  '1': ([1 + 2 * i for i in range(16)], [33, 35, 37, 39, 43, 47, 51, 55], [41, 49, 59, 63]),
                  '2': ([1, 3, 5, 7, 9, 13, 15, 17, 19, 21, 23, 25, 31, 33, 35, 37], [39, 41, 45, 47, 49, 51, 53, 55], [11, 27, 43, 59]),
                  '3': ([3, 5, 7, 9, 13, 15, 19, 21, 23, 25, 31, 33, 35, 37, 39, 41], [32, 36, 45, 47, 49, 51, 53, 55], [11, 27, 43, 59]),
                  }[OPT['pl']]
            for r, g in zip(v_reads(j), PL[0]): G.mem[o + g].append(r)
            if j + 2 < 64:
                for r, g in zip(k_reads(j + 2), PL[1]): G.mem[o + g].append(r)
            if j < 56: G.place_dma(dma_kv('K', j + 8) + dma_kv('V', j + 6), [o + x for x in PL[2]])
            else:
                W8 = lambda i: g_w8(i * 8192, f'P{i}')
                jobs = {56: dma_kv('V', 62) + W8(0) + W8(16) + g_oloads(0), 57: dma_kv('V', 63) + W8(1) + W8(17) + g_oloads(1),
                        58: W8(2) + g_oloads(2) + W8(8) + g_oloads(3), 59: W8(3) + g_oloads(4) + W8(9) + g_oloads(5),
                        60: W8(4) + g_oloads(6) + W8(10) + g_oloads(7), 61: W8(5) + W8(11),
                        62: W8(6) + W8(7) + W8(12) + W8(13) + g_oloads(8) + g_oloads(9)}[j]
                pos = {8: [4, 11, 20, 27, 36, 43, 57, 61], 4: [11, 27, 43, 59], 12: [4, 11, 18, 27, 34, 39, 43, 47, 51, 55, 59, 63]}[len(jobs)]
                G.place_dma(jobs, [o + x for x in pos])
                G.v[o + 0].append(f'v_mov_b32 v{VPG}, {j - 55}')
                G.mem[o + 2].append(Ins(cl(f'buffer_store_dword v{VPG}, v{VL4}, {srd(SFL)}, 0 offen offset:48 {OPT["st"]}'), 'PG'))
                if j == 61:
                    G.v[o + 4] += [f'v_mad_u32_u24 v{VPR}, v{VPR}, {OPT["bm"]}, {OPT["ba"]}']
                    G.v[o + 6] += [f'v_lshrrev_b32 v{VPR}, 3, v{VPR}']
                    G.v[o + 8] += [f'v_min_u32 v{VPR}, {OPT["bmax"]}, v{VPR}']
                    G.v[o + 10] += [f'v_add_u32 v{VPG}, 1, v{VPR}']
                    G.v[o + 12] += [f'v_lshlrev_b32 v{VPOLL}, 2, v1']
                    G.v[o + 14] += [f'v_add_u32 v{VPOLL}, {160 * 1024 - 16}, v{VPOLL}']
                    G.mem[o + 16].append(Ins(cl(f'buffer_store_dword v{VPG}, v{VL4}, {srd(SFL)}, 0 offen offset:64 {OPT["st"]}'), 'DG'))
                    G.mem[o + 18].append(Ins(f'ds_write_b32 v{VPOLL}, v{VPR}'))
            st = sms(j + 1)
            if (j + 1) & 31:
                for i, g in enumerate(st[:32 + SH]): G.v[o + 32 - SH + i] += g
            else:
                G.pack(qcopy, o + 1, o + 29)
                NB = int(OPT['nb'])
                prep, un = epilogue(False); _, up = epilogue(True)
                other = init_stream(j + 1) + dn_(st[:32 + SH])
                units = un[:NB] + up[NB:]
                seq = []; cut = None
                for k in range(16):
                    if k == NB: cut = len(seq)
                    seq += units[k][0]
                    if k: seq += units[k - 1][3]
                    seq += units[k][1] + units[k][2]
                    if k >= NB: seq += other[(k - NB) * len(other) // (16 - NB):(k - NB + 1) * len(other) // (16 - NB)]
                seq += units[15][3]
                G.pack(prep, o + 31, o + 39)
                pos = G.pack(seq[:cut], o + 39, o + 64)
                for x, g in zip(seq[:cut], pos):
                    x = I(x)
                    if x.mn == 'v_accvgpr_read_b32':
                        a = [r for r in x.rd if r[0] == 'a'][0][1]
                        assert g >= o + 32 + a // 4 + 2, (x.text, g)
                POST.extend(seq[cut:])
            ncarry = st[32 + SH:]
        if OPT['tl'] and j < 56 and j != 31:
            G.sc[o + 5].append('s_memtime s[98:99]'); G.sc[o + 7].append('s_memrealtime s[86:87]')
            G.sc[o + 52].append('s_waitcnt lgkmcnt(0)')
            G.v[o + 52] += ['v_cmp_eq_u32 s[50:51], s97, v2', 'v_mov_b32 v248, s98', 'v_mov_b32 v249, s86']
            G.v[o + 53] += ['v_cndmask_b32 v250, v250, v248, s[50:51]', 'v_cndmask_b32 v251, v251, v249, s[50:51]']
            G.sc[o + 54].append('s_add_u32 s97, s97, 1')
        if OPT['tl'] and j == 31:
            G.v[o + 1] += ['s_lshl_b32 s50, s2, 11', 's_add_u32 s50, s50, 0x80000', 'v_lshlrev_b32 v248, 3, v0', 'buffer_store_dwordx2 v[250:251], v248, s[56:59], s50 offen']
        if nm == 'r6': G.sc[o + 62].append(f's_sub_u32 s{sCnt}, s{sCnt}, 1')
        if nm == 'r7':
            if OPT['atom'] == '0':
                G.sc[o + 61].append(f's_sub_u32 s{sT0}, s{sKo}, 0x30000')
                G.sc[o + 62].append(f's_cmp_lt_u32 s{sT0}, 0x20000')
            else: G.sc[o + 62].append(f's_cmp_lt_u32 s{sKo}, 0x50000')
        return ncarry
    def mfs(j): return (qk_mfmas(j + 1) if j + 1 < 64 else [None] * 32) + pv_mfmas(j)

    j = 0
    while j < 64:
        nm = seg_name(j)
        A(f'.mark {nm}')
        G = Gaps(64)
        oc = carry
        carry = fill(G, 0, j, carry)
        if j == 63:
            P0 = v_reads(j)
            dn = dn_(oc)
            ol = flat(g_oloads(10) + g_oloads(11) + g_oloads(12))
            k = 0
            for i, x in enumerate(dn):
                P0.append(x)
                tgt = len(ol) * (i + 1) // len(dn)
                while k < tgt: P0.append(ol[k]); k += 1
            G.v[0] += P0
            G.v[18] += [f'v_mov_b32 v{GA[0]}, v{VOFFO}', f'v_add_u32 v{GA[1]}, 0x10000, v{VOFFO}', f'v_add_u32 v{GA[2]}, 0x20000, v{VOFFO}', f's_mul_i32 s{sXo}, s{sW}, 9216']
            G.sc[32] += ['WAITVM P4 lg0', 's_barrier']
            for r, g in zip(g_wreads(0), range(33, 60, 3)): G.mem[g].append(r)
            G.v[18] += [f'v_mov_b32 v{VPG}, {160 * 1024 - 16}']
            G.mem[34].append(Ins(f'ds_read_b32 v{VPR}, v{VPG}'))
            G.place_dma(g_w8(14 * 8192, 'P14') + g_w8(15 * 8192, 'P15') + g_oloads(13) + g_oloads(14), [35, 38, 43, 46, 50, 53, 58, 61])
            prep2, units2 = epilogue(int(OPT['epg']) == 0)
            epi, _, _ = epi_flat(units2)
            G.pack(prep2, 33, 48)
            ne = 0
            if int(OPT['epg']):
                ne = 28
                G.pack(epi[:ne], 48, 64)
            epi = epi[ne:]
        A.extend(G.weave(mfs(j)))
        def atomic():
            A('WAITVM Jst+Fz')
            A(f's_mov_b32 s{SWS}, s{sDBG}\ns_mov_b32 s{SWS + 1}, s{sDBG + 1}\ns_mov_b32 s{SWS + 2}, 4\nv_mov_b32 v{VFLAG}, 1\nv_lshlrev_b32 v{VPA}, 2, v0\nv_lshlrev_b32 v{VL4}, 7, v2')
            A(f'buffer_atomic_add v{VFLAG}, v{VPA}, {srd(SWS)}, 0 offen sc1', tag='Cwo')
        if j == 7:
            A('.mark b7')
            if OPT['atom'] == '0': atomic()
        if j == 39:
            A('.mark b39')
            A('WAITVM Ost')
            A(cl(f'buffer_store_dword v{VFLAG}, v{VL4}, {srd(SFL)}, 0 offen {OPT["st"]}'), tag='F1')
            if OPT['atom'] == '1': A(pollc, tag='Pc')
        if j == 47:
            A('.mark b47')
            A(f's_movk_i32 s{sMODE}, 256')
            A.extend(spin_check('c', pollc, f'v_cmp_gt_u32 vcc, s{sMODE}, v{VPOLL}'))
            A(f"""s_andn2_b32 s50, s2, 0x38
s_lshl_b32 s50, s50, 7
s_bfe_u32 s51, s2, 0x10005
s_lshl_b32 s51, s51, 3
s_add_u32 s50, s50, s51
s_lshr_b32 s51, s{sW}, 1
s_lshl_b32 s51, s51, 2
s_add_u32 s50, s50, s51
s_add_u32 s{SFP}, s{sWS}, {WS_FL}
s_addc_u32 s{SFP+1}, s{sWS+1}, 0
s_mov_b32 s{SFP+2}, 32768
v_and_b32 v{VPA}, 7, v0
v_lshlrev_b32 v{VPA}, 10, v{VPA}
v_add_u32 v{VPA}, s50, v{VPA}
s_xor_b32 s50, s2, 1
s_lshl_b32 s50, s50, 7
s_lshl_b32 s{sW4}, s{sW}, 2
v_mov_b32 v{VPP}, s50""")
            A(poll1, tag='PL1')
            code_prefetch(A, 'L_fin', 'L_code_end', 250, 252, 2)
        if j == 55:
            A('.mark b55')
            A.extend(spin_check('f1', poll1, ne1))
            A(f'v_add_u32 v{VOFFK}, s{sW2K}, v{VOFFO}')
            A(f'buffer_load_dword v{VPR}, v{VPP}, {srd(SFP)}, 0 offen offset:48 sc1', tag='PLP')
        if j == 31:
            A('.mark epi')
            stamp(A, 7)
            if OPT['atom'] == '1': atomic()
            A(f'v_mov_b32 v{VPA}, 0')
            if OPT['atom'] == '0': A(pollc, tag='Pc')
            A.extend(POST)
            A(f's_mov_b32 s{sHead}, 1\ns_mov_b32 s{sCnt}, 3')
            stamp(A, 8)
        j += 1
    A('.mark tail')
    stamp(A, 9)
    EPG = int(OPT['epg'])
    ek = 0
    G2 = int(OPT['g2s']); LO = int(OPT['lo']); LW = int(OPT['lw']); S0 = int(OPT['gs0']); S1 = int(OPT['gs1'])
    items = []
    NS = 64 + 4 * int(OPT['bmax']); G3 = 57
    for x in range(15, NS):
        for jb in g_oloads(x): items.append((x - LO, max(x - 15, G2 + 1 if x >= 32 else 0, G3 + 1 if x >= 64 else 0), jb))
    for c in range(4, NS // 4):
        for n, jb in enumerate(g_wchunk(c)): items.append((4 * c - 1 - LW - (8 - n) * 4 / 9.0, 4 * (c - 4) + 3, jb))
    items.sort(key=lambda z: z[0])
    sched = [[] for _ in range(NS)]
    cur = 0
    for i, (dl, rl, jb) in enumerate(items):
        k = int(S0 + i * (S1 - S0 + 1) / 206)
        k = max(min(k, int(dl)), rl, cur)
        while len(sched[k]) >= 6: k += 1
        sched[k].append(jb); cur = k
    def when(tag): return [k for k in range(NS) if any(x[1].tag == tag for x in sched[k])]
    CL = max(when('GO31')) + 1
    assert CL < min(when('GO48')) and CL < min(when('GW12')), (CL, when('GO48'), when('GW12'))
    assert NS == 64 or min(when('GW16')) > 47
    if EPG == 0:
        A.extend(epi); ek = len(epi)
    if OPT['verbose']: print([len(x) for x in sched])
    for s_ in range(NS):
        c, u = s_ >> 2, s_ & 3
        mf = [mfma(f'v{GACC(n, mm)}', f'v{WB(s_, n)}', f'a{OB(s_, mm)}', f'v{GACC(n, mm)}' if s_ else '0') for n in range(9) for mm in range(2)]
        G = Gaps(18)
        if u == 3 and c < NS // 4 - 1:
            tags = {0: 'P5+P6+P7+P8', 1: 'P9+P10+P11+P12+P13', 2: 'P14+P15+P16+P17'}.get(c, f'GW{c + 1}')
            G.sc[0] += [f'WAITVM {tags} lg0', 's_barrier']
            assert not [1 for q in sched[s_:] for x in q if x[1].tag == f'GW{c + 1}'], c
        jobs = sched[s_]
        for x in jobs:
            if x[1].tag.startswith('GO'): assert int(x[1].tag[2:]) >= s_ + 3, (s_, x[1].tag)
        jp = {0: [], 1: [10], 2: [5, 14], 3: [3, 9, 15], 4: [3, 8, 12, 16], 5: [2, 6, 10, 13, 16], 6: [2, 5, 8, 11, 14, 17]}[len(jobs)]
        G.place_dma(jobs, jp)
        if s_ + 1 < NS:
            for r, g in zip(g_wreads(s_ + 1), [g for g in range(18) if g not in jp]): G.mem[g].append(r)
        if s_ == int(OPT['p2s']): G.mem[17].append(Ins(poll2, 'PL2'))
        if OPT['gtl']:
            if s_ % 2 == 0: G.sc[12].append('s_memtime s[98:99]')
            elif s_ < 64: G.v[0].append(f'v_writelane_b32 v59, s98, {s_ // 2}')
        for g in range(18):
            n = EPG - (1 if G.mem[g] else 0)
            while n > 0 and ek < len(epi):
                x = epi[ek]
                if isinstance(x, Ins) and x.kind == 'vst':
                    if G.v[g]: break
                    G.mem[g].append(x); ek += 1; n -= 1; continue
                G.v[g].append(x); ek += 1
                if not x.startswith('s_'): n -= 1
        if s_ == int(OPT['f2s']):
            assert ek == len(epi), (ek, len(epi))
            G.sc[16].append('WAITVM Ost')
            G.mem[17].append(Ins(cl(f'buffer_store_dword v{VFLAG}, v{VL4}, {srd(SFL)}, 0 offen offset:16 {OPT["st"]}'), 'F2'))
        if s_ == G2: G.v[17] += spin_check('f2', poll2, ne1)
        if s_ == CL:
            G.v[15] += [f'v_readfirstlane_b32 s{sGive}, v{VPR}']
            G.v[17] += f"""s_sub_u32 s50, 16, s{sGive}
s_mul_i32 s{SGW+2}, s50, 36864
s_sub_u32 s50, 8, s{sGive}
s_lshl_b32 s50, s50, 15
s_min_u32 s{SGO+2}, s{SGO+2}, s50""".split('\n')
        if s_ == 41: G.mem[17].append(Ins(polld, 'PLD'))
        if s_ == 46:
            G.v[15] += spin_check('d', polld, f'v_cmp_eq_u32 vcc, 0, v{VPOLL}')
            G.v[16] += [f'v_readfirstlane_b32 s{sRem}, v{VPOLL}', f'v_xor_b32 v{VPA}, 128, v{VPA}']
            G.v[17] += f"""s_sub_u32 s{sRem}, s{sRem}, 1
s_min_u32 s{sRem}, s{sRem}, {OPT['bmax']}
s_bitcmp1_b32 s2, 0
s_cselect_b32 s50, 0, {2 * 64 * 9216}
s_mul_i32 s{SG2W+2}, s{sRem}, 36864
s_add_u32 s{SG2W}, s{SGW}, s50
s_addc_u32 s{SG2W+1}, s{SGW+1}, 0
s_sub_u32 s{SG2W}, s{SG2W}, s{SG2W+2}
s_subb_u32 s{SG2W+1}, s{SG2W+1}, 0
s_bitcmp1_b32 s2, 0
s_cselect_b32 s50, 0, {2 * 262144}
s_add_u32 s50, s50, 16384
s_lshl_b32 s51, s{sRem}, 15
s_add_u32 s{SG2O}, s{SGO}, s50
s_addc_u32 s{SG2O+1}, s{SGO+1}, 0
s_sub_u32 s{SG2O}, s{SG2O}, s51
s_subb_u32 s{SG2O+1}, s{SG2O+1}, 0
s_max_u32 s51, s51, {16384 + 2048}
s_sub_u32 s{SG2O+2}, s51, {16384 + 2048}
s_mov_b32 s{SG2O+3}, 0x20000
s_cmp_eq_u32 s{sRem}, 0
s_cselect_b32 s50, s{sGive}, 0
s_add_u32 s{sRem}, s{sRem}, 4
s_sub_u32 s{sRem}, s{sRem}, s50""".split('\n')
        if s_ == G3 - 4 and NS > 64: G.mem[17].append(Ins(poll2, 'PL3'))
        if s_ == G3 and NS > 64: G.v[17] += spin_check('f3', poll2, ne1)
        if u == 3 and 11 <= c < NS // 4 - 1:
            G.sc[18] += [f's_sub_u32 s{sRem}, s{sRem}, 1', 's_cbranch_scc1 L_xchg']
        if s_ == 39:
            G.v[17] += f"""s_lshl_b32 s50, s2, 2
s_add_u32 s50, s50, s{sW}
s_mul_i32 s50, s50, 9216
s_add_u32 s50, s50, {WS_X}
s_add_u32 s{SO}, s{sWS}, s50
s_addc_u32 s{SO+1}, s{sWS+1}, 0
s_mov_b32 s{SO+2}, 9216
s_xor_b32 s50, s2, 1
s_lshl_b32 s51, s50, 2
s_add_u32 s51, s51, s{sW}
s_mul_i32 s51, s51, 9216
s_add_u32 s51, s51, {WS_X}
s_add_u32 s{SV}, s{sWS}, s51
s_addc_u32 s{SV+1}, s{sWS+1}, 0
s_mov_b32 s{SV+2}, 9216
s_and_b32 s50, s2, 2
s_lshl_b32 s50, s50, 2
s_lshr_b32 s51, s2, 5
s_add_u32 s50, s50, s51
s_lshl_b32 s50, s50, 2
s_add_u32 s50, s50, s{sW}
s_lshl_b32 s50, s50, 1
s_and_b32 s51, s2, 1
s_add_u32 s50, s50, s51
s_mul_i32 s50, s50, {16 * 2304}
s_bfe_u32 s51, s2, 0x10002
s_mul_i32 s51, s51, 1152
s_add_u32 s50, s50, s51
s_bfe_u32 s51, s2, 0x20003
s_mul_i32 s51, s51, 288
s_add_u32 s50, s50, s51
s_add_u32 s{SOUT}, s{sOUT}, s50
s_addc_u32 s{SOUT+1}, s{sOUT+1}, 0
s_mov_b32 s{SOUT+2}, {15 * 2304 + 288}""".split('\n')
        if 40 <= s_ < 45:
            k = s_ - 40
            vv = f"""v_add_u32 v28, {64 * k}, v2
v_mul_u32_u24 v29, 3641, v28
v_lshrrev_b32 v29, 16, v29
v_mul_u32_u24 v30, 18, v29
v_sub_u32 v30, v28, v30
v_lshlrev_b32 v30, 4, v30
v_mad_u32_u24 v{32 + k}, v29, s{sT0}, v30
v_mul_u32_u24 v29, 304, v29
v_add3_u32 v{44 + k}, v29, v30, v31""".split('\n')
            if k == 0:
                vv = [f's_movk_i32 s{sT0}, 2304', 'v_lshlrev_b32 v31, 13, v1', 'v_and_b32 v29, 15, v2', 'v_mul_u32_u24 v29, 304, v29', 'v_lshrrev_b32 v30, 4, v2',
                      'v_lshl_add_u32 v29, v30, 3, v29', 'v_add_u32 v39, v29, v31', f'v_add_u32 v37, 0x1000, v{VOFFO}', f'v_add_u32 v38, 0x2000, v{VOFFO}'] + vv
            for i, x in enumerate(vv): G.v[i].append(x)
        A.extend(G.weave(mf))
    A('L_xchg:')
    stamp(A, 10)
    A('s_nop 5\ns_bitcmp1_b32 s2, 0\ns_cbranch_scc1 L_x1')
    vo3 = [VOFFO, 37, 38]
    pollx = f'buffer_load_dword v{VPOLL}, v{VPP}, {srd(SFP)}, s{sW4} offen offset:32 sc1'
    for kh in range(2):
        if kh: A('L_x1:')
        for n in range(9):
            A(cl(f'buffer_store_dwordx4 v[{GACC(n, 1 - kh)}:{GACC(n, 1 - kh) + 3}], v{vo3[n // 4]}, {srd(SO)}, 0 offen offset:{(n % 4) * 1024} {OPT["st"]}'))
        if kh:
            A('s_nop 1')
            for n in range(9):
                for r in range(0, 4, 2): A(f'v_mov_b64 v[{GACC(n, 0) + r}:{GACC(n, 0) + r + 1}], v[{GACC(n, 1) + r}:{GACC(n, 1) + r + 1}]')
        else:
            A('s_branch L_x2')
    A('L_x2:')
    A('s_waitcnt vmcnt(0) lgkmcnt(0)')
    A(cl(f'buffer_store_dword v{VFLAG}, v{VL4}, {srd(SFL)}, 0 offen offset:32 {OPT["st"]}'))
    A(pollx)
    A('s_barrier')
    A.extend(spin_check('x', pollx, ne1))
    for n in range(9):
        A(f'buffer_load_dwordx4 v[{128 + 4 * n}:{131 + 4 * n}], v{vo3[n // 4]}, {srd(SV)}, 0 offen offset:{(n % 4) * 1024} sc1')
    for n in range(9):
        a = GACC(n, 0); b = 128 + 4 * n
        for r in range(0, 4, 2): A(f'v_pk_add_f32 v[{a + r}:{a + r + 1}], v[{a + r}:{a + r + 1}], v[{b + r}:{b + r + 1}]')
        A(f'v_cvt_pk_bf16_f32 v{b}, v{a}, v{a + 1}\nv_cvt_pk_bf16_f32 v{b + 1}, v{a + 2}, v{a + 3}')
        A(f'ds_write_b64 v39, v[{b}:{b + 1}] offset:{n * 32}')
    for k in range(5): A(f'ds_read_b128 v[{168 + 4 * k}:{171 + 4 * k}], v{44 + k}')
    for k in range(5): A(f'buffer_store_dwordx4 v[{168 + 4 * k}:{171 + 4 * k}], v{32 + k}, {srd(SOUT)}, 0 offen {OPT["out_st"]}'.rstrip())
    if OPT['stamps']:
        A('s_waitcnt vmcnt(0)')
        stamp(A, 11)
        if OPT['gtl']:
            A('s_lshl_b32 s50, s2, 10\ns_add_u32 s50, s50, 0x80000\nv_lshlrev_b32 v42, 2, v0\nbuffer_store_dword v59, v42, s[56:59], s50 offen')
        if OPT['diag'] == '0': store_stamps(A, 7)
        else:
            A(f'''s_memrealtime s[62:63]
s_load_dwordx2 s[4:5], s[0:1], 88
s_getreg_b32 s50, hwreg(HW_REG_XCC_ID)
s_waitcnt lgkmcnt(0)
s_mov_b32 s6, 64
s_mov_b32 s7, 0x20000
v_lshlrev_b32 v4, 6, v0
s_and_b32 s51, s2, 0xbe
s_cmp_lg_u32 s51, 8
s_cbranch_scc1 L_end
s_and_b32 s51, s2, 1
s_lshr_b32 s8, s2, 5
s_add_u32 s51, s51, s8
s_lshl_b32 s51, s51, 4
s_and_b32 s50, s50, 15
s_lshl_b32 s50, s50, 28
s_sub_u32 s8, s62, s60
s_add_u32 s8, s8, s50
s_cmp_eq_u32 s51, 0
s_cbranch_scc1 L_dg1
v_mov_b32 v8, s8
buffer_store_dword v8, v4, s[4:7], s51 offen sc1
L_dg1:
s_sub_u32 s8, s{76 if OPT['diag'] == '1' else 66}, s64
s_sub_u32 s9, s{78 if OPT['diag'] == '1' else 68}, s{76 if OPT['diag'] == '1' else 66}
s_lshr_b32 s8, s8, 4
s_lshr_b32 s9, s9, 4
s_lshl_b32 s8, s8, 16
s_add_u32 s8, s8, s9
v_mov_b32 v9, s8
buffer_store_dword v9, v4, s[4:7], s51 offen offset:4 sc1
s_sub_u32 s8, s{80 if OPT['diag'] == '1' else 70}, s{78 if OPT['diag'] == '1' else 68}
s_sub_u32 s9, s{82 if OPT['diag'] == '1' else 72}, s{80 if OPT['diag'] == '1' else 70}
s_lshr_b32 s8, s8, 4
s_lshr_b32 s9, s9, 4
s_lshl_b32 s8, s8, 16
s_add_u32 s8, s8, s9
v_mov_b32 v10, s8
buffer_store_dword v10, v4, s[4:7], s51 offen offset:8 sc1
s_sub_u32 s8, s{84 if OPT['diag'] == '1' else 74}, s{82 if OPT['diag'] == '1' else 72}
s_sub_u32 s9, s{86 if OPT['diag'] == '1' else 76}, s{84 if OPT['diag'] == '1' else 74}
s_lshr_b32 s8, s8, 4
s_lshr_b32 s9, s9, 4
s_lshl_b32 s8, s8, 16
s_add_u32 s8, s8, s9
v_mov_b32 v11, s8
buffer_store_dword v11, v4, s[4:7], s51 offen offset:12 sc1''')
    A('L_end:\ns_endpgm')
    A.resolve_waits()
    rep = []
    A.fix_hazards(rep)
    segs = {}
    for n, L in split_marks(A.L): segs.setdefault(n, []).append(L)
    M = {n: merge_segments(v) for n, v in segs.items()}
    if OPT['hole']:
        L = M['_start']; k = len(L) - 1
        while L[k].kind != 'mfma': k -= 1
        out = L[:k + 1]; since = 0; q = 0
        for x in L[k + 1:]:
            out.append(x); since += 2 if x.kind == 'trans' else 1
            if since >= 2 and x.kind in ('valu', 'trans'):
                out.append(Ins(mfma('a0', f'a{128 + 4 * (q % 16)}', f'a{128 + 4 * ((q // 3) % 16)}', 'a0'))); q += 1; since = 0
        M['_start'] = out
    F = Prog()
    F.extend(M['_start'])
    if int(OPT['burst']):
        F(f's_mov_b32 s50, {int(OPT["burst"])}\nL_burst:')
        for q in range(16):
            F(f'v_mfma_f32_32x32x16_bf16 a[{(q % 8) * 16}:{(q % 8) * 16 + 15}], v[{64 + 4 * (q % 8)}:{67 + 4 * (q % 8)}], a[{128 + 4 * q}:{131 + 4 * q}], a[{(q % 8) * 16}:{(q % 8) * 16 + 15}]')
            F(f'ds_read_b128 v[{96 + 4 * (q % 8)}:{99 + 4 * (q % 8)}], v4 offset:{q * 1024}')
            F(f'v_exp_f32 v{224 + q}, v{128 + q}\nv_add_f32 v{240 + q}, v{144 + q}, v{128 + q}')
        F('s_sub_u32 s50, s50, 1\ns_cbranch_scc0 L_burst\ns_waitcnt lgkmcnt(0)\ns_nop 15')
    F('L_s0:')
    F.extend(M['s0'])
    F('s_branch L_r1\n.p2align 6\nL_r0:')
    F.extend(M['r0'])
    F('L_r1:')
    for k in range(1, 7): F.extend(M[f'r{k}'])
    F('s_cbranch_scc1 L_sp')
    F.extend(M['r7'])
    F(f's_cbranch_scc1 L_r0\ns_cmp_eq_u32 s{sKo}, 0x80000\ns_cbranch_scc1 L_fin\ns_cmp_eq_u32 s{sKo}, 0x70000\ns_cbranch_scc1 L_b47\ns_cmp_eq_u32 s{sKo}, 0x60000\ns_cbranch_scc1 L_b39')
    for b in (7, 39, 47):
        F(f'L_b{b}:'); F.extend(M[f'b{b}']); F('s_branch L_r0')
    F('L_sp:')
    F.extend(M['sp31'])
    if OPT['w1']: F('s_branch L_r1')
    else:
        F.extend(M['epi']); F('s_branch L_s0')
    for nm, p, mode in [(f'r{k}', k & 1, 0) for k in range(8)] + [(f'p{k}', k & 1, 0) for k in range(56, 63)] + [('sp31', 1, 1), ('fin31', 1, 1)]:
        F(f'L_st_{nm}:\ns_mov_b32 s{sMODE}, {mode}\ns_call_b64 s[{sRET}:{sRET + 1}], L_fb{p}')
        if OPT['lag'] and mode == 0: F(softmax_stream(3 - p)[0][0])
        F(f's_branch L_bk_{nm}')
    F.extend(fallback(0).L); F.extend(fallback(1).L)
    for x in SPINS: F(x)
    F('L_fin:')
    F.extend(M['b55'])
    for k in range(56, 63): F.extend(M[f'p{k}'])
    F.extend(M['fin31'])
    F.extend(M['tail'])
    return F, rep

def build(path):
    A, rep = gen()
    hdr = open('cdna_kernels/' + NAME + '.s.ref').read().split('; Override launch')[0]
    t = hdr + '; @launch grid=(256,1,1) block=(256,1,1) lds=163840\n'
    t += '.amdgcn_target "amdgcn-amd-amdhsa--gfx950"\n.text\n' + MACROS
    t += prolog(KNAME) + A.text() + 'L_code_end:\n'
    t += kd(KNAME, 512, 100, 256)
    open(path, 'w').write(t)
    return rep, len(t)

if __name__ == '__main__':
    path = sys.argv[1]
    for kv in sys.argv[2:]:
        k, v = kv.split('=')
        assert k in OPT, k
        OPT[k] = (v == '1') if isinstance(OPT.get(k), bool) else v
    rep, n = build(path)
    from collections import Counter
    print('bytes', n, 'pads', Counter((a, b.split()[0]) for a, b in rep).most_common(12))
```

```python
import sys, math, struct
from common import *
from asmlib import *

OPT = dict(nt_kv='nt', nt_x='', nt_w='nt', st='sc1', g_o='sc1', g_w='sc1', stamps=False, tl=False, gtl=False,
           epg='4', f2s='10', p2s='23', g2s='25', gs0='6', gs1='58', lo='5', lw='4', w1=False, qtl=False, pl='2', lag=True, ost='sc1', nb='3', jo='2', verbose=False, su='0', pf='2', bar1=False, kv0='48', bm='5', ba='2', bmax='4', out_st='sc1', hole=False, atom='1', diag='0', l2n='0', l2p='nt', l2t='6', burst='0', l2s='1', l2g='44', l2='', tight='0', l2e='0', cqk=True, cqb=True)
WS_WO = 33554432
WS_X = 44 << 20
WS_FL = 56 << 20
WS_STAMP = 64 << 20
SCALE = math.log2(math.e) / math.sqrt(128.0)
def f2i(x): return struct.unpack('<I', struct.pack('<f', x))[0]
KNAME = NAME + '_kernel'

SK, SV, SX, SW_, SO, SWS, SWD, SFL = 4, 8, 12, 16, 20, 24, 28, 88
SGO, SGW, SFP, SOUT = 12, 16, 24, 28
sWS, sOUT, sDBG = 52, 54, 46
sW, sW2K, sW4K, sT0, sKo, sVo, sSC, sTHR, sXo, sRET, sMODE, sWe = 32, 33, 34, 35, 36, 37, 38, 40, 41, 42, 44, 45
sJ, sCnt, sHead, sOo = 48, 94, 95, 96
SG2W, SG2O, sGive, sRem, sW4 = 4, 92, 46, 47, 49
VPP, VPG, VPR = 41, 42, 43
def srd(n): return f's[{n}:{n+3}]'
VPA, KADDR, VADDR, VOFFK, VOFFV, LREG, ETMP, CT, NEGM, VOFFO, VFLAG, VPOLL, VL4 = 3, 4, 8, 16, 18, 20, 28, 40, 44, 60, 61, 62, 63
KF, VF, SB, PB, EP = 64, 96, 128, 192, 224
NE = 12
def S(p, kt, qt): return SB + p * 32 + (kt * 4 + qt) * 4
def P(p, qt): return PB + p * 16 + qt * 4
def Lr(p, qt): return LREG + p * 4 + qt
def O(T, qt): return (T * 4 + qt) * 4
def Q(h, qt, u): return 128 + h * 64 + (u * 4 + qt) * 4
VSV, VSK, WADDR, XADDR, VOFFW, VOFFX, VOFFJ, JADDR = 20, 24, 64, 80, 84, 88, 92, 3
CW0, CW1, CR = 61, 62, 63
def QACC(h, T, qt): return (f'v{128 + (T * 4 + qt) * 4}' if h == 1 else f'a{(T * 4 + qt) * 4}')
def XF(t, qt): return (28 if (t >> 1) & 1 else 96) + ((t & 1) * 4 + qt) * 4
NWS = 24
def WF(slot): return 128 + slot * 4
BLK = 16384
def wblock(t): return [(4, 1), (7, 3), (8, 9)][(t >> 1) % 3][t & 1]
def xblock(p): return [2, 5, 6][p % 3]
def cl(s): return ' '.join(s.split())
def rng(r, n): return f'{r[0]}[{int(r[1:])}:{int(r[1:]) + n - 1}]'

def dma_kv(which, tile):
    base = (0 if which == 'K' else 65536) + (tile % 8) * 8192
    s, vo, so = (SK, VOFFK, sKo) if which == 'K' else (SV, VOFFV, sVo)
    tag = f'{which}{tile}'; nt = OPT['nt_kv']
    return [([f's_add_u32 m0, s{sW2K}, {base}'], Ins(cl(f'buffer_load_dwordx4 v{vo}, {srd(s)}, s{so} offen {nt} lds'), tag), []),
            ([], Ins(cl(f'buffer_load_dwordx4 v{vo + 1}, {srd(s)}, s{so} offen offset:1024 {nt} lds'), tag), [f's_add_u32 s{so}, s{so}, 8192'])]
def dma4(s, vo, off, blk, tag, nt, so=sWe):
    return [([f's_mov_b32 s{so}, {off}', f's_add_u32 m0, s{sW4K}, {blk * BLK}'] if n == 0 else [],
             Ins(cl(f'buffer_load_dwordx4 v{vo + n}, {srd(s)}, s{so} offen offset:{n * 1024} {nt} lds'), tag), []) for n in range(4)]
def dma_w(t): return dma4(SW_, VOFFW, t * 32 * 8192, wblock(t), f'W{t}', OPT['nt_w'])
def dma_x(p): return dma4(SX, VOFFX, (p >> 1) * 128 + (p & 1) * 32 * 1152, xblock(p), f'X{p}', OPT['nt_x'], sXo)
def dma_kk(i): return dma4(SK, VSK, i * 16384, i, f'KK{i}', OPT['nt_kv'])
def dma_vv(i): return dma4(SV, VSV, i * 16384, 4 + i, f'VV{i}', OPT['nt_kv'])
def flat(dl):
    out = []
    for pre, ins, post in dl: out += pre + [ins] + post
    return out

def I(x): return x if isinstance(x, Ins) else Ins(x)
def cost(x):
    k = x.kind
    return {'trans': 8, 'valu': 4, 'dsr': 4, 'dsw': 4, 'dma': 12, 'vld': 12, 'vst': 12}.get(k, 0 if k in ('label', 'dir', 'waitvm', 'waitlg') else 4)
class Gaps:
    def __init__(self, n):
        self.n = n; self.sc = [[] for _ in range(n + 1)]; self.mem = [[] for _ in range(n)]; self.v = [[] for _ in range(n)]
    def place_dma(self, dl, gaps):
        assert len(gaps) >= len(dl), (len(gaps), len(dl))
        for (pre, ins, post), g in zip(dl, gaps):
            for k, s in enumerate(pre): self.sc[g - len(pre) + k].append(s)
            self.mem[g].append(ins)
            for k, s in enumerate(post): self.sc[g + 1 + k].append(s)
    def load(self, g): return sum(cost(I(x)) for x in self.mem[g] + self.v[g])
    def pack(self, items, g0, g1):
        items = [I(x) for x in items]
        base = [self.load(g) for g in range(self.n)]
        for L in range(8, 400, 2):
            g = g0; used = 0; vhere = False; pos = []; ok = True
            for x in items:
                c = cost(x); ismem = x.kind in ('dsr', 'dsw', 'dma', 'vld', 'vst')
                while True:
                    if g >= g1: ok = False; break
                    room = L - base[g] - used
                    if ismem and (vhere or (self.mem[g] and L < 20)): fit = False
                    else: fit = c <= room or (c == 0) or (used == 0 and base[g] == 0)
                    if fit: break
                    g += 1; used = 0; vhere = False
                if not ok: break
                pos.append(g); used += c
                if not ismem: vhere = True
                else: vhere = True if False else vhere
            if ok: break
        assert ok
        for x, g in zip(items, pos):
            (self.mem if x.kind in ('dsr', 'dsw', 'dma', 'vld', 'vst') else self.v)[g].append(x)
        return pos
    def weave(self, mf, a=0, b=None):
        out = []
        b = self.n if b is None else b
        for i in range(a, b):
            if i < len(mf) and mf[i] is not None: out.append(mf[i])
            out += self.sc[i] + self.mem[i] + self.v[i]
        if b == self.n: out += self.sc[self.n]
        return out

def k_reads(tile):
    return [Ins(f'ds_read_b128 v[{KF + (kt * 4 + u) * 4}:{KF + (kt * 4 + u) * 4 + 3}], v{KADDR + u} offset:{(tile % 8) * 8192 + kt * 4096}', f'rK{tile}')
            for kt in range(2) for u in range(4)]
def v_reads(tile):
    return [Ins(f'ds_read_b64_tr_b16 v[{VF + T * 4 + s * 2}:{VF + T * 4 + s * 2 + 1}], v{VADDR + T} offset:{(tile % 8) * 8192 + s * 4096}', f'rV{tile}')
            for T in range(8) for s in range(2)]
def qk_mfmas(j):
    h = 1 if j in ((32, 33) if OPT['w1'] else (32,)) else 0
    p = j & 1; first = (j & 31) == 0
    out = []
    for kt in range(2):
        for u, qt in ([(u, qt) for qt in range(4) for u in range(4)] if OPT['cqk'] else [(u, qt) for u in range(4) for qt in range(4)]):
            if True:
                c = f'v{S(p, kt, qt)}' if u else ('0' if first else f'v{NEGM + qt * 4}')
                out.append(mfma(f'v{S(p, kt, qt)}', f'v{KF + (kt * 4 + u) * 4}', f'a{Q(h, qt, u)}', c))
    return out
def pv_mfmas(j):
    p = j & 1; first = (j & 31) == 0
    return [mfma(f'a{O(T, qt)}', f'v{VF + T * 4}', f'v{P(p, qt)}', '0' if first else f'a{O(T, qt)}') for T in range(8) for qt in range(4)]

def softmax_stream(j):
    p = j & 1; first = (j & 31) == 0
    out = []
    for qt in range(4):
        for k in range(8):
            e = ETMP + (qt * 8 + k) % NE
            src = S(p, k >> 2, qt) + (k & 3)
            out.append([f'v_exp_f32 v{e}, v{src}'])
            l = Lr(p, qt)
            if k == 0: a = f'v_mov_b32 v{l}, v{e}' if first else f'v_add_f32 v{l}, v{Lr(1 - p, qt)}, v{e}'
            else: a = f'v_add_f32 v{l}, v{l}, v{e}'
            g = [a]
            if k & 1:
                e0 = ETMP + (qt * 8 + k - 1) % NE
                g.append(f'v_cvt_pk_bf16_f32 v{P(p, qt) + (k >> 1)}, v{e0}, v{e}')
            out.append(g)
    return out
def lagged(stream):
    out = [[] for _ in range(len(stream) + 2)]
    for i, g in enumerate(stream): out[i + (2 if i & 1 else 0)] += g
    return out
def undense(st):
    return [x for g in st for x in g]
def dense(stream):
    out = []; prev = []
    for i in range(0, len(stream), 2):
        out += stream[i]; out += prev; prev = stream[i + 1] if i + 1 < len(stream) else []
    return out + prev
def rowmax(p, qt, dst):
    s0 = S(p, 0, qt); s1 = S(p, 1, qt)
    return [f'v_max3_f32 v{dst}, v{s0}, v{s0 + 1}, v{s0 + 2}', f'v_max3_f32 v{dst}, v{dst}, v{s0 + 3}, v{s1}',
            f'v_max3_f32 v{dst}, v{dst}, v{s1 + 1}, v{s1 + 2}', f'v_max_f32 v{dst}, v{dst}, v{s1 + 3}']
def xlane(op, regs, tmps):
    out = []
    for sw in ('v_permlane16_swap_b32', 'v_permlane32_swap_b32'):
        out += [f'v_mov_b32 v{t}, v{r}' for r, t in zip(regs, tmps)]
        out += [f'{sw} v{t}, v{r}' for r, t in zip(regs, tmps)]
        out += [f'{op} v{r}, v{r}, v{t}' for r, t in zip(regs, tmps)]
    return out
def init_stream(j):
    p = j & 1
    m = [NEGM + qt * 4 for qt in range(4)]; t = [NEGM + qt * 4 + 1 for qt in range(4)]
    out = []
    rm = [rowmax(p, qt, m[qt]) for qt in range(4)]
    for k in range(4): out += [rm[qt][k] for qt in range(4)]
    out += xlane('v_max_f32', m, t)
    for qt in range(4):
        for k in range(8):
            s = S(p, k >> 2, qt) + (k & 3)
            out.append(f'v_sub_f32 v{s}, v{s}, v{m[qt]}')
    for qt in range(4):
        for r in (3, 2, 1, 0): out.append(f'v_sub_f32 v{NEGM + qt * 4 + r}, 0, v{m[qt]}')
    return out

def epilogue(packed):
    l = [Lr(1, qt) for qt in range(4)]
    t = [EP + 8 + i for i in range(4)]
    prep = xlane('v_add_f32', l, t)
    rc = [EP + 2 * i for i in range(4)]
    prep += [f'v_rcp_f32 v{rc[qt]}, v{l[qt]}' for qt in range(4)]
    units = []
    for k in range(16):
        u, qt = divmod(k, 4)
        b = EP + 8 + (k % 2) * 12
        rd = [f'v_accvgpr_read_b32 v{b + i}, a{O(2 * u + (i >> 2), qt) + (i & 3)}' for i in range(8)]
        if packed: mu = [f'v_pk_mul_f32 v[{b + 2 * i}:{b + 2 * i + 1}], v[{b + 2 * i}:{b + 2 * i + 1}], v[{rc[qt]}:{rc[qt] + 1}] op_sel_hi:[1,0]' for i in range(4)]
        else: mu = [f'v_mul_f32 v{b + i}, v{rc[qt]}, v{b + i}' for i in range(8)]
        cv = [f'v_cvt_pk_bf16_f32 v{b + 8 + i}, v{b + 2 * i}, v{b + 2 * i + 1}' for i in range(4)]
        st = [Ins(cl(f'buffer_store_dwordx4 v[{b + 8}:{b + 11}], v{VOFFO}, {srd(SO)}, s{sOo} offen offset:{qt * 1024} {OPT["ost"]}'), 'Ost')]
        if qt == 3: st.append(f's_add_u32 s{sOo}, s{sOo}, 4096')
        units.append((rd, mu, cv, st))
    return prep, units
def epi_flat(units):
    L = []; first = []; lastrd = []
    for k, (rd, mu, cv, st) in enumerate(units):
        first.append(len(L)); L += rd; lastrd.append(len(L) - 1)
        if k: L += units[k - 1][3]
        L += mu + cv
    L += units[-1][3]
    return L, first, lastrd

SPINS = []
def spin_check(name, load, cmp):
    SPINS.append(f"""L_spin_{name}:
s_mov_b32 s{sT0}, 0x40000
L_spin2_{name}:
s_sleep 1
{load}
s_sub_u32 s{sT0}, s{sT0}, 1
s_cbranch_scc1 L_back_{name}
s_waitcnt vmcnt(0)
{cmp}
s_nop 1
s_cbranch_vccnz L_spin2_{name}
s_branch L_back_{name}""")
    return [cmp, f's_cbranch_vccnz L_spin_{name}', f'L_back_{name}:']

def fallback(p):
    A = Prog()
    A(f'L_fb{p}:')
    A('s_nop 7\ns_nop 7')
    m = [EP + i for i in range(4)]; t = [EP + 4 + i for i in range(4)]; f = [EP + 8 + i for i in range(4)]
    rm = [rowmax(p, qt, m[qt]) for qt in range(4)]
    for k in range(4): A.extend([rm[qt][k] for qt in range(4)])
    A.extend(xlane('v_max_f32', m, t))
    for qt in range(4): A(f'v_max_f32 v{m[qt]}, 0, v{m[qt]}')
    for qt in range(4): A(f'v_exp_f32 v{f[qt]}, -v{m[qt]}')
    for qt in range(4):
        for k in range(8):
            s = S(p, k >> 2, qt) + (k & 3)
            A(f'v_sub_f32 v{s}, v{s}, v{m[qt]}')
        for r in range(4): A(f'v_sub_f32 v{NEGM + qt * 4 + r}, v{NEGM + qt * 4 + r}, v{m[qt]}')
        A(f'v_mul_f32 v{Lr(1 - p, qt)}, v{Lr(1 - p, qt)}, v{f[qt]}')
    A(f's_cmp_lg_u32 s{sMODE}, 0')
    A(f's_cbranch_scc1 L_fb{p}_b')
    for qt in range(4):
        for k in range(8):
            s = S(1 - p, k >> 2, qt) + (k & 3)
            A(f'v_sub_f32 v{s}, v{s}, v{m[qt]}')
    A(f'L_fb{p}_b:')
    for T in range(8):
        for qt in range(4):
            b = EP + 12 + ((T * 4 + qt) % 2) * 4
            for r in range(4): A(f'v_accvgpr_read_b32 v{b + r}, a{O(T, qt) + r}')
            for r in range(4): A(f'v_mul_f32 v{b + r}, v{b + r}, v{f[qt]}')
            for r in range(4): A(f'v_accvgpr_write_b32 a{O(T, qt) + r}, v{b + r}')
    A.extend(dense(softmax_stream(2 + p)))
    A('s_nop 3')
    A(f's_setpc_b64 s[{sRET}:{sRET + 1}]')
    A.fix_hazards()
    return A

def stamp(A, idx, base=64):
    if OPT['stamps'] and not OPT['qtl']: A(f's_memtime s[{base + idx * 2}:{base + idx * 2 + 1}]')
def store_stamps(A, n):
    A('s_memrealtime s[62:63]\ns_waitcnt lgkmcnt(0)')
    A('v_lshrrev_b32 v1, 6, v0\ns_lshl_b32 s50, s2, 2\nv_add_u32 v1, s50, v1\nv_lshlrev_b32 v1, 7, v1')
    A('v_and_b32 v2, 63, v0\nv_cmp_eq_u32 vcc, 0, v2\ns_and_saveexec_b64 s[50:51], vcc')
    for i in range(n):
        for k in range(4): A(f'v_mov_b32 v{4 + k}, s{60 + i * 4 + k}')
        A(f'buffer_store_dwordx4 v[4:7], v1, s[56:59], 0 offen offset:{i * 16}')
        A('s_nop 1')

def code_prefetch(A, start, end, va, vd, n, first=0, tag=''):
    A(f's_getpc_b64 s[50:51]')
    A(f'L_pc{tag}_{start}:')
    if start == KNAME: A(f's_sub_u32 s50, s50, L_pc{tag}_{start}-{start}\ns_subb_u32 s51, s51, 0')
    else: A(f's_add_u32 s50, s50, {start}-L_pc{tag}_{start}\ns_addc_u32 s51, s51, 0')
    A(f'v_lshlrev_b32 v{va}, 7, v0')
    if first: A(f'v_add_u32 v{va}, {first * 0x8000}, v{va}')
    for i in range(n):
        A(f'v_min_u32 v{va + 1}, {end}-{start}-4, v{va}')
        A(f'global_load_dword v{vd + i}, v{va + 1}, s[50:51]', tag='pf')
        if i + 1 < n: A(f'v_add_u32 v{va}, 0x8000, v{va}')

DEF_V = []; DEF_S = []
def setup(A):
    A('s_cmp_ge_u32 s2, 256\ns_cbranch_scc1 L_end')
    A(f"""s_bfe_u32 s48, s2, 0x10002
s_mul_i32 s50, s48, 40
s_add_u32 s52, s0, s50
s_addc_u32 s53, s1, 0
s_load_dwordx2 s[{SX}:{SX+1}], s[52:53], 0
s_load_dwordx2 s[{SW_}:{SW_+1}], s[52:53], 24
s_lshr_b32 s51, s2, 7
s_mul_i32 s51, s51, 40
s_add_u32 s54, s0, s51
s_addc_u32 s55, s1, 0
s_load_dwordx2 s[{SK}:{SK+1}], s[52:53], 8
s_load_dwordx2 s[{SV}:{SV+1}], s[52:53], 16
s_load_dwordx2 s[{SWS}:{SWS+1}], s[54:55], 32
s_load_dwordx2 s[{SO}:{SO+1}], s[0:1], 96
s_load_dwordx4 s[92:95], s[0:1], 80""")
    if OPT['stamps']: A('s_memrealtime s[60:61]')
    stamp(A, 0)
    if OPT['pf'] == '1': code_prefetch(A, KNAME, 'L_code_end', 100, 252, 1)
    elif OPT['pf'] == '2':
        A(f'''s_getpc_b64 s[50:51]
L_pcx:
s_sub_u32 s50, s50, L_pcx-{KNAME}
s_subb_u32 s51, s51, 0
s_lshr_b32 s48, s2, 3
s_cmp_ge_u32 s48, 3
s_cbranch_scc1 L_nopf
s_lshl_b32 s48, s48, 15
v_lshlrev_b32 v100, 7, v0
v_add_u32 v100, s48, v100
v_min_u32 v100, L_code_end-{KNAME}-4, v100''')
        A('global_load_dword v252, v100, s[50:51]', tag='pf')
        A('L_nopf:')
    A(f"""s_and_b32 s46, s2, 6
s_lshl_b32 s46, s46, 1
s_lshr_b32 s48, s2, 6
s_add_u32 s46, s46, s48
s_and_b32 s47, s2, 1
s_lshl_b32 s47, s47, 3
s_bfe_u32 s48, s2, 0x30003
s_add_u32 s47, s47, s48
s_and_b32 s49, s46, 7
v_lshrrev_b32 v1, 6, v0
v_and_b32 v2, 63, v0
v_readfirstlane_b32 s{sW}, v1
v_lshrrev_b32 v97, 4, v2
v_lshrrev_b32 v100, 3, v2
v_lshl_add_u32 v100, v1, 6, v100
v_mul_u32_u24 v100, 1152, v100
s_lshl_b32 s{sW4K}, s{sW}, 12
v_and_b32 v101, 7, v2
v_xor_b32 v101, v101, v97
v_lshl_add_u32 v{VOFFX}, v101, 4, v100
v_xor_b32 v101, 4, v101
v_lshl_add_u32 v102, v101, 4, v100
v_add_u32 v{VOFFX + 1}, {8 * 1152 - 1024}, v102
v_add_u32 v{VOFFX + 2}, {2 * (8 * 1152 - 1024)}, v{VOFFX}
v_add_u32 v{VOFFX + 3}, {3 * (8 * 1152 - 1024)}, v102
v_lshrrev_b32 v100, 5, v2
v_and_b32 v101, 31, v2
v_and_b32 v102, 1, v1
v_lshl_add_u32 v102, v102, 2, v100
v_lshl_add_u32 v103, v1, 3, v100
v_lshlrev_b32 v103, 13, v103
v_lshlrev_b32 v104, 1, v102
v_xor_b32 v104, v104, v101
v_lshl_add_u32 v{VOFFW}, v104, 4, v103
v_xor_b32 v104, 64, v{VOFFW}
v_add_u32 v{VOFFW + 1}, {16384 - 1024}, v104
v_add_u32 v{VOFFW + 2}, {2 * (16384 - 1024)}, v{VOFFW}
v_add_u32 v{VOFFW + 3}, {3 * (16384 - 1024)}, v104
s_mul_i32 s50, s49, 294912
s_lshl_b32 s51, s47, 9
s_mov_b32 s{SX+2}, 294912
s_mov_b32 s{SX+3}, 0x20000
s_sub_u32 s{SW_+2}, {576 * 8192}, s51
s_mov_b32 s{SW_+3}, 0x20000
s_waitcnt lgkmcnt(0)""")
    stamp(A, 1)
    A(f"""s_add_u32 s{SX}, s{SX}, s50
s_addc_u32 s{SX+1}, s{SX+1}, 0
s_add_u32 s{SW_}, s{SW_}, s51
s_addc_u32 s{SW_+1}, s{SW_+1}, 0""")
    A.extend(flat(dma_w(0)) + flat(dma_x(0)) + flat(dma_x(1)) + flat(dma_w(1)))
    A(f"""v_and_b32 v96, 15, v2
v_and_b32 v98, 3, v2
v_bfe_u32 v99, v2, 2, 2
v_lshl_add_u32 v100, v97, 3, v99
v_and_b32 v101, 1, v97
v_lshl_add_u32 v101, v101, 2, v99
v_lshlrev_b32 v101, 5, v101
v_lshl_add_u32 v101, v100, 9, v101
v_lshl_add_u32 v101, v98, 3, v101
v_add_u32 v{WADDR}, {BLK}, v101""")
    for T in range(1, 8): A(f'v_xor_b32 v{WADDR + T}, {T * 32}, v{WADDR}')
    A(f"""v_lshrrev_b32 v100, 1, v96
v_xor_b32 v100, v100, v97
v_lshlrev_b32 v100, 4, v100
v_lshl_add_u32 v100, v96, 7, v100
v_lshl_add_u32 v100, v1, 12, v100
v_add_u32 v{XADDR}, {2 * BLK}, v100
v_xor_b32 v{XADDR + 1}, 64, v{XADDR}
v_add_u32 v{XADDR + 2}, {4 * BLK}, v{XADDR}
v_add_u32 v{XADDR + 3}, {4 * BLK}, v{XADDR + 1}""")
    if OPT['su'] == '0':
        A.extend(flat(dma_x(2)) + flat(dma_w(2)) + flat(dma_w(3)))
        if OPT['pf'] == '1': code_prefetch(A, KNAME, 'L_code_end', 100, 253, 2, first=1, tag='b')
    KVS = f"""s_lshl_b32 s50, s49, 23
s_lshl_b32 s51, s47, 19
s_add_u32 s50, s50, s51
s_add_u32 s{SK}, s{SK}, s50|s_addc_u32 s{SK+1}, s{SK+1}, 0
s_mov_b32 s{SK+2}, 0x80000
s_mov_b32 s{SK+3}, 0x20000
s_add_u32 s{SV}, s{SV}, s50|s_addc_u32 s{SV+1}, s{SV+1}, 0
s_mov_b32 s{SV+2}, 0x80000
s_mov_b32 s{SV+3}, 0x20000"""
    ne = int(OPT['l2e'])
    if ne:
        A(KVS.replace('|', '\n')); KVS = ''
        A(f'v_lshlrev_b32 v100, 7, v2\nv_mul_u32_u24 v101, {ne * 1024}, v1\nv_add_u32 v100, v100, v101\nv_cmp_le_u32 vcc, {ne * 8}, v2\nv_cndmask_b32 v100, v100, -1, vcc')
        A(f's_mov_b32 s50, {8 * 8192}\ns_mov_b32 s51, {6 * 8192}')
        A(cl(f'buffer_load_dword a254, v100, {srd(SK)}, s50 offen {OPT["l2p"]}'), tag='l2')
        A(cl(f'buffer_load_dword a253, v100, {srd(SV)}, s51 offen {OPT["l2p"]}'), tag='l2')
    V = DEF_V; a, b, c, d, l15, g = 92, 93, 94, 95, 61, 62
    V += [f'v_add_u32 v{WADDR + 8 + T}, {6 * BLK}, v{WADDR + T}' for T in range(8)]
    V += f"""v_lshlrev_b32 v{VOFFO}, 4, v2
v_and_b32 v{l15}, 15, v2
v_lshrrev_b32 v{g}, 4, v2
v_lshlrev_b32 v{a}, 11, v1
v_lshl_add_u32 v{a}, v{g}, 8, v{a}
v_lshl_add_u32 v{b}, v1, 3, v{g}""".split('\n')
    for o in range(2):
        V += f"""v_add_u32 v{c}, {4 * o}, v{b}
v_and_b32 v{d}, 15, v{c}
v_xor_b32 v{d}, v{d}, v{l15}
v_lshl_add_u32 v{VOFFK + o}, v{d}, 4, v{a}
v_and_b32 v{d}, 7, v{c}
v_lshlrev_b32 v{d}, 1, v{d}
v_xor_b32 v{d}, v{d}, v{l15}
v_lshl_add_u32 v{VOFFV + o}, v{d}, 4, v{a}""".split('\n')
    V += [f'v_lshlrev_b32 v{a}, 12, v1', f'v_lshl_add_u32 v{a}, v{g}, 8, v{a}']
    for n in range(4):
        V += f"""v_add_u32 v{c}, {4 * n}, v{g}
v_xor_b32 v{d}, v{c}, v{l15}
v_lshl_add_u32 v{VSK + n}, v{d}, 4, v{a}
v_and_b32 v{d}, 7, v{c}
v_lshlrev_b32 v{d}, 1, v{d}
v_xor_b32 v{d}, v{d}, v{l15}
v_lshl_add_u32 v{VSV + n}, v{d}, 4, v{a}""".split('\n')
    V += [f'v_xor_b32 v{a}, v{g}, v{l15}', f'v_lshlrev_b32 v{a}, 4, v{a}', f'v_lshl_add_u32 v{KADDR}, v{l15}, 8, v{a}']
    V += [f'v_xor_b32 v{KADDR + u}, {u * 64}, v{KADDR}' for u in range(1, 4)]
    V += f"""v_lshrrev_b32 v{a}, 2, v2
v_and_b32 v{b}, 7, v{a}
v_lshlrev_b32 v{b}, 5, v{b}
v_lshl_add_u32 v{b}, v{a}, 8, v{b}
v_and_b32 v{c}, 3, v2
v_lshl_add_u32 v{b}, v{c}, 3, v{b}
v_add_u32 v{VADDR}, 0x10000, v{b}
v_mul_u32_u24 v{a}, 384, v{a}
v_lshl_add_u32 v{a}, v{c}, 3, v{a}
v_mul_u32_u24 v{b}, 96, v1
v_add_u32 v{JADDR}, v{a}, v{b}""".split('\n')
    V += [f'v_xor_b32 v{VADDR + T}, {T * 32}, v{VADDR}' for T in range(1, 8)]
    V += f"""v_bfe_u32 v{a}, v2, 2, 1
v_lshlrev_b32 v{a}, 1, v{a}
v_bfe_u32 v{b}, v2, 3, 1
v_mul_u32_u24 v{b}, 3, v{b}
v_xor_b32 v{a}, v{a}, v{b}
v_lshlrev_b32 v{c}, 6, v{l15}
v_lshl_add_u32 v{c}, v1, 12, v{c}
v_add_u32 v{c}, {6 * BLK}, v{c}
v_xor_b32 v{b}, v{a}, v{g}
v_lshl_add_u32 v{CR}, v{b}, 4, v{c}
v_lshrrev_b32 v{b}, 1, v{g}
v_xor_b32 v{b}, v{b}, v{a}
v_lshl_add_u32 v{c}, v{b}, 4, v{c}
v_and_b32 v{b}, 1, v{g}
v_lshl_add_u32 v{CW0}, v{b}, 3, v{c}""".split('\n')
    for n in range(3):
        t = VOFFJ + n
        V += f"""v_add_u32 v{d}, {64 * n}, v2
v_mul_u32_u24 v{t}, 2731, v{d}
v_lshrrev_b32 v{t}, 16, v{t}
v_mul_u32_u24 v{CW1}, 24, v{t}
v_sub_u32 v{d}, v{d}, v{CW1}
v_lshl_add_u32 v{t}, v1, 3, v{t}
v_mul_u32_u24 v{t}, 1152, v{t}
v_lshl_add_u32 v{t}, v{d}, 4, v{t}
v_subrev_u32 v{t}, {n * 1024}, v{t}""".split('\n')
    V += [f'v_xor_b32 v{CW1}, 32, v{CW0}']
    S_ = f"""s_and_b32 s50, s2, 127
s_mul_i32 s50, s50, 36864
s_add_u32 s{SWS}, s{SWS}, s50|s_addc_u32 s{SWS+1}, s{SWS+1}, 0
s_mov_b32 s{SWS+2}, 36864
s_mov_b32 s{SWS+3}, 0x20000
s_lshl_b32 s{sW2K}, s{sW}, 11
{KVS}
s_mov_b32 s{sWS}, s{SO}
s_mov_b32 s{sWS+1}, s{SO+1}
s_mov_b32 s{sOUT}, s92
s_mov_b32 s{sOUT+1}, s93
s_lshr_b32 s50, s2, 7
s_lshl_b32 s50, s50, 9
s_and_b32 s51, s2, 64
s_add_u32 s50, s50, s51
s_bfe_u32 s51, s2, 0x10002
s_lshl_b32 s51, s51, 5
s_add_u32 s50, s50, s51
s_bfe_u32 s51, s2, 0x30003
s_lshl_b32 s51, s51, 2
s_add_u32 s50, s50, s51
s_and_b32 s51, s2, 3
s_add_u32 s50, s50, s51
s_mul_i32 s50, s50, 9216
s_add_u32 s50, s50, {WS_WO}
s_add_u32 s{SWD}, s{SO}, s50|s_addc_u32 s{SWD+1}, s{SO+1}, 0
s_mov_b32 s{SWD+2}, {3 * 128 * 9216 + 9216}
s_mov_b32 s{SWD+3}, 0x20000
s_lshl_b32 s50, s2, 7
s_lshl_b32 s51, s{sW}, 2
s_add_u32 s50, s50, s51
s_add_u32 s50, s50, {WS_FL}
s_add_u32 s{SFL}, s{SO}, s50|s_addc_u32 s{SFL+1}, s{SO+1}, 0
s_mov_b32 s{SFL+2}, 68
s_mov_b32 s{SFL+3}, 0x20000""".split('\n')
    if OPT['stamps']:
        S_ += [f's_add_u32 s56, s{SO}, {WS_STAMP}|s_addc_u32 s57, s{SO+1}, 0', 's_mov_b32 s58, 0x100000', 's_mov_b32 s59, 0x20000']
    S_ += f"""s_lshl_b32 s50, s46, 2
s_add_u32 s50, s50, s{sW}
s_lshl_b32 s50, s50, 19
s_lshl_b32 s51, s47, 15
s_add_u32 s50, s50, s51
s_add_u32 s{SO}, s{SO}, s50|s_addc_u32 s{SO+1}, s{SO+1}, 0
s_mov_b32 s{SO+2}, 32768
s_mov_b32 s{SO+3}, 0x20000
s_mov_b32 s{sSC}, {f2i(SCALE):#x}
s_mov_b32 s{sTHR}, {f2i(2.0 ** 24):#x}
s_mov_b32 s{sOo}, 0
s_mov_b32 s{sDBG}, s94
s_mov_b32 s{sDBG+1}, s95
s_mov_b32 s{sKo}, {8 * 8192}
s_mov_b32 s{sVo}, {6 * 8192}
s_mov_b32 s{sCnt}, 3
s_mov_b32 s{sHead}, 0""".split('\n')
    DEF_S.extend(x for x in S_ if x)

def x_reads(pc):
    c = pc >> 1; blk = xblock(pc)
    return [Ins(f'ds_read_b128 v[{XF(2 * c + ks, 2 * (pc & 1) + qq)}:{XF(2 * c + ks, 2 * (pc & 1) + qq) + 3}], v{XADDR + ks + (2 if blk == 6 else 0)} offset:{(0 if blk == 6 else (blk - 2) * BLK) + qq * 2048}', f'rX{pc}')
            for ks in range(2) for qq in range(2)]
def w_read(t, h, T, dst):
    blk = wblock(t)
    ad = WADDR + T if blk <= 4 else WADDR + 8 + T
    off = (blk - 1 if blk <= 4 else blk - 7) * BLK + h * 256
    d = int(dst[1:])
    return [Ins(f'ds_read_b64_tr_b16 {dst[0]}[{d + 2 * s}:{d + 2 * s + 1}], v{ad} offset:{off + s * 2048}', f'rW{t}') for s in range(2)]
def w_reads(t):
    out = []
    for f in range(16): out += w_read(t, f >> 3, f & 7, f'a{WF((16 * t + f) % NWS)}')
    return out
UH = ['a160', 'a192', 'a160', 'a192', 'a0', 'a32', 'a0', 'a32']
def uw(n, k, tt): return f'{UH[n][0]}{int(UH[n][1:]) + (k * 2 + tt) * 4}'
def unit_order(n):
    if not OPT['cqb']: return [(k, tt) for k in range(4) for tt in range(2)]
    if n == 0: return [(0, 0), (1, 0), (0, 1), (1, 1), (2, 0), (3, 0), (2, 1), (3, 1)]
    return [(k, tt) for tt in range(2) for k in range(4)]
def unit_mf(n):
    if not OPT['cqb']: return [(k, tt, qt) for k in range(4) for tt in range(2) for qt in range(4)]
    if n == 0: return [(2 * hf + k, tt, qt) for hf in range(2) for tt in range(2) for qt in range(4) for k in range(2)]
    return [(k, tt, qt) for tt in range(2) for qt in range(4) for k in range(4)]
def unit_reads(n):
    h, u = n >> 2, n & 3
    out = []
    for k, tt in unit_order(n): out += w_read(14 + k, h, 2 * u + tt, uw(n, k, tt))
    return out
def conv(n):
    h, u = n >> 2, n & 3
    V = []; D = []
    tiles = []
    for tt in range(2):
        for qt in range(4):
            acc = QACC(h, 2 * u + tt, qt)
            if h == 1: b = int(acc[1:]); rd = []
            else:
                b = 84 + ((n * 8 + tt * 4 + qt) % 3) * 4
                rd = [f'v_accvgpr_read_b32 v{b + r}, a{int(acc[1:]) + r}' for r in range(4)]
            mu = [f'v_mul_f32 v{b + r}, s{sSC}, v{b + r}' for r in range(4)]
            cv = [f'v_cvt_pk_bf16_f32 v{b}, v{b}, v{b + 1}', f'v_cvt_pk_bf16_f32 v{b + 1}, v{b + 2}, v{b + 3}']
            V += [Ins(x) for x in rd + mu + cv]
            D.append((len(V) - 1, Ins(f'ds_write_b64 v{CW1 if tt else CW0}, v[{b}:{b + 1}] offset:{qt * 1024}')))
    D += [(len(V) - 1, Ins(f'ds_read_b128 a[{Q(h, qt, u)}:{Q(h, qt, u) + 3}], v{CR} offset:{qt * 1024}', f'rQ{n}')) for qt in range(4)]
    seq = []
    for i, x in enumerate(V):
        seq.append(x); seq += [d for k, d in D if k == i]
    return V, D, seq

def q_phase(A):
    stamp(A, 2)
    A('WAITVM X0+X1+W0+W1\ns_barrier')
    stamp(A, 3)
    if OPT['su'] == '0': A.extend(x_reads(0) + x_reads(1) + w_reads(0))
    else:
        rd = x_reads(0) + x_reads(1) + w_reads(0)
        dj = dma_x(2) + dma_w(2) + dma_w(3)
        for i in range(12):
            A.extend(flat([dj[i]])); A.extend(rd[i * 40 // 12:(i + 1) * 40 // 12])
    def JR(i): return f'a{224 + 4 * i}' if i < 8 else 'v92'
    def jstore(i):
        r, n = divmod(i, 3)
        pre = [f's_add_u32 s{sT0}, s{sW}, {4 * r}', f's_mul_i32 s49, s{sT0}, 43', f's_lshr_b32 s49, s49, 7',
               f's_mul_i32 s49, s49, {128 * 9216 - 9216}', f's_mul_i32 s{sT0}, s{sT0}, 3072', f's_add_u32 s{sJ}, s{sT0}, s49'] if n == 0 else []
        return [(pre, Ins(cl(f'buffer_store_dwordx4 {rng(JR(i), 4)}, v{VOFFO}, {srd(SWD)}, s{sJ} offen offset:{n * 1024} {OPT["st"]}'), 'Jst'), [])]
    for t in range(14):
        mf = []
        for f in range(16):
            for qt in range(4):
                acc = QACC(f >> 3, f & 7, qt)
                mf.append(mfma(acc, f'a{WF((16 * t + f) % NWS)}', f'v{XF(t, qt)}', acc if t else '0'))
        G = Gaps(64)
        groups = []
        J4 = OPT['jo'] == '4'
        if t in ((2, 5, 9) if J4 else (3, 7, 11)):
            r = t // 4
            groups += [[([f's_mov_b32 s{sWe}, {r * 384}', f's_mul_i32 m0, s{sW}, 3072'] if n == 0 else [],
                         Ins(f'buffer_load_dwordx4 v{VOFFJ + n}, {srd(SWS)}, s{sWe} offen offset:{n * 1024} nt lds', f'J{r}'), []) for n in range(3)]]
        if t == 0: groups += [dma_x(3), dma_x(4), dma_w(4)]
        if t == 1: groups += [dma_w(5)]
        if 1 <= t <= 12: groups += [dma_w(t + 5)]
        if t + 5 < 18: groups += [dma_x(t + 5)]
        if t == 13 and not J4: groups += [dma_vv(0), dma_kk(1)]
        ngr = len(groups)
        gl = {4: [[5, 8, 11, 14], [18, 22, 26, 30], [34, 38, 42, 46], [51, 54, 57, 60]],
              3: [[2, 7, 12, 17], [24, 29, 34, 39], [46, 51, 56, 60]],
              2: [[2, 10, 18, 26], [34, 42, 50, 58]], 1: [[18, 30, 42, 54]], 0: []}[ngr]
        if J4 and t == 12: gl = [[2, 6, 10, 14], [20, 24, 28, 32]]
        dg = [g for gr, pos in zip(groups, gl) for g in pos[:len(gr)]]
        if J4 and t in (12, 13):
            for i, g in {12: [(0, 44), (1, 52), (2, 60)], 13: [(3, 8), (4, 16), (5, 24), (6, 34), (7, 44), (8, 54)]}[t]:
                G.place_dma(jstore(i), [g]); dg.append(g)
            if t == 13:
                G.v[57].append(f'v_mov_b32 v{VPA}, 0'); dg.append(59)
                G.mem[59].append(Ins(cl(f'buffer_store_dword v{VPA}, v{VOFFO}, {srd(SFL)}, 0 offen {OPT["st"]}'), 'Fz'))
        L2 = [int(x) for x in OPT['l2'].split('.')] if OPT['l2'] else []
        for i in [i for i, x in enumerate(L2) if x == t]:
            if i == 0:
                G.v[4] += ['v_lshlrev_b32 v95, 7, v2', 'v_lshl_add_u32 v95, v1, 11, v95']
                G.v[5] += [f'v_lshrrev_b32 v{VOFFO}, 4, v2', f'v_lshl_add_u32 v95, v{VOFFO}, 24, v95']
                G.v[6] += [f'v_lshlrev_b32 v{VOFFO}, 4, v2']
            sr, base = (SK, 8) if i % 2 == 0 else (SV, 6)
            g = 14 if (i + 1 < len(L2) and L2[i + 1] == t) else 46
            while g in dg or G.sc[g - 1]: g += 1
            G.sc[g - 1].append(f's_mov_b32 s{sT0}, {(base + int(OPT["l2e"]) // 2 + i // 2) * 8192}')
            x = Ins(cl(f'buffer_load_dword a255, v95, {srd(sr)}, s{sT0} offen {OPT["l2p"]}'), 'l2'); x.wr = set() if i + 1 < len(L2) else x.wr
            G.mem[g].append(x); dg.append(g)
        free = [g for g in range(64) if g not in dg]
        G.sc[0].append(f'WAITVM X{t + 2}')
        rds = x_reads(t + 2)
        if t + 5 < 18:
            xi = [i for i, gr in enumerate(groups) if gr[0][1].tag == f'X{t + 5}'][0]
            G.sc[gl[xi][0] - 3].append(f'WAITLG rX{t + 2}')
        if t in ((3, 7, 11) if J4 else (5, 9, 13)):
            for n in range(3):
                d = JR((t // 4 - (0 if J4 else 1)) * 3 + n)
                rds += [Ins(f'ds_read_b64_tr_b16 {d[0]}[{int(d[1:]) + 2 * sx}:{int(d[1:]) + 2 * sx + 1}], v{JADDR} offset:{n * 32 + sx * 16 * 384}') for sx in range(2)]
        if t == 0: G.sc[2].append('WAITLG rX1')
        rds += w_reads(t + 1) if t < 13 else unit_reads(0)[:8]
        for r, g in zip(rds, free): G.mem[g].append(r)
        for gr, g in zip(groups, gl): G.place_dma(gr, g)
        if t % 2 == 0 or t == 13:
            c = t // 2 + 1
            tags = f'W{2 * c}+W{2 * c + 1}' if t != 13 else 'W16+W17+X16+X17'
            if t in ((2, 6, 10) if J4 else (4, 8, 12)): tags += f'+J{t // 4 - (0 if J4 else 1)}'
            G.sc[62] += [f'WAITVM {tags} lg0', 's_barrier']
        if t == 0 and OPT['su'] != '0':
            P_ = Prog(); code_prefetch(P_, KNAME, 'L_code_end', 8, 252, 2, first=1, tag='b')
            G.v[63] += [Ins(x.text.replace('global_load_dword v', 'global_load_dword a'), x.tag) for x in P_.L]
        if t < 3:
            n0, n1 = ([0, 62, len(DEF_V), len(DEF_V)] if J4 else [0, 40, 95, len(DEF_V)])[t:t + 2]
            for i, x in enumerate(DEF_V[n0:n1]): G.v[(i * 62) // (n1 - n0)].append(x)
        if t in (1, 2, 4, 6) and DEF_S:
            for g in range(41, 62):
                if DEF_S and not G.sc[g]: G.sc[g] += DEF_S.pop(0).split('|')
            if t == 6:
                for g in range(4, 40):
                    pass
        if t in (8, 10) and DEF_S:
            for g in range(41, 62):
                if DEF_S and not G.sc[g]: G.sc[g] += DEF_S.pop(0).split('|')
        if t == 11: assert not DEF_S, len(DEF_S)
        if OPT['qtl']:
            G.v[3].append('s_memtime s[98:99]'); G.v[40].append(f's_mov_b32 s{64 + t}, s98')
        A.extend(G.weave(mf))
    stamp(A, 4)
    gsu = f"""s_and_b32 s50, s2, 6
s_lshl_b32 s50, s50, 3
s_lshr_b32 s51, s2, 5
s_lshl_b32 s51, s51, 1
s_add_u32 s50, s50, s51
s_lshr_b32 s51, s{sW}, 1
s_add_u32 s50, s50, s51
s_lshl_b32 s50, s50, 19
s_and_b32 s51, s2, 1
s_lshl_b32 s51, s51, 18
s_add_u32 s50, s50, s51
s_and_b32 s51, s{sW}, 1
s_lshl_b32 s51, s51, 11
s_add_u32 s50, s50, s51
s_add_u32 s{SGO}, s{sWS}, s50|s_addc_u32 s{SGO+1}, s{sWS+1}, 0
s_mov_b32 s{SGO+2}, {262144 - 2048}
s_and_b32 s50, s2, 4
s_bfe_u32 s51, s2, 0x20003
s_add_u32 s50, s50, s51
s_lshl_b32 s50, s50, 1
s_and_b32 s51, s2, 1
s_add_u32 s50, s50, s51
s_mul_i32 s50, s50, {64 * 9216}
s_add_u32 s50, s50, {WS_WO}
s_add_u32 s{SGW}, s{sWS}, s50|s_addc_u32 s{SGW+1}, s{sWS+1}, 0
s_mov_b32 s{SGW+2}, {64 * 9216}""".split('\n')
    NG = 288
    G = Gaps(NG + 8)
    mf = []; ref = []
    UR = [unit_reads(n) for n in range(8)]
    XR = x_reads(16) + x_reads(17)
    K0 = k_reads(0); K1 = k_reads(1)
    CV_ = [conv(n) for n in range(8)]
    ref += XR
    for n in range(8):
        h, u = n >> 2, n & 3
        m = [Ins(mfma(QACC(h, 2 * u + tt, qt), uw(n, k, tt), f'v{XF(14 + k, qt)}', QACC(h, 2 * u + tt, qt))) for k, tt, qt in unit_mf(n)]
        mf += m
        ref += (UR[n][8:] if n == 0 else UR[n]) + m + CV_[n][2]
    m = [Ins(x) for x in qk_mfmas(0)]
    mf += m; ref += K0 + m + K1
    if OPT['jo'] == '4':
        k0 = int(OPT['kv0'])
        for i, jobs in enumerate([dma_kk(0), dma_vv(0), dma_kk(1), dma_vv(1), dma_kk(2)]):
            st_ = (215 - k0) // 20
            G.place_dma(jobs, [k0 + st_ * (4 * i + x) for x in range(4)])
        kv = {1: k0 + st_ * 12}
    else:
        JS = [jstore(i) for i in range(9)]
        ref = [x[0][1] for x in JS] + ref
        order = [6, 8, 7, 0, 1, 2, 3, 4, 5]
        jp = [17, 24, 48, 76, 100, 124, 152, 176, 200]; fz = 220; kv = {0: 36, 1: 104, 2: 164}
        for i, g in zip(order, jp): G.place_dma(JS[i], [g])
        G.v[fz - 2].append(f'v_mov_b32 v{VPA}, 0')
        G.mem[fz].append(Ins(cl(f'buffer_store_dword v{VPA}, v{VOFFO}, {srd(SFL)}, 0 offen {OPT["st"]}'), 'Fz'))
        for i, jobs in enumerate([dma_kk(0), dma_vv(1), dma_kk(2)]):
            G.place_dma(jobs, [kv[i] + 14 * x for x in range(4)])
    G.place_dma(dma_kk(3), [250, 258, 266, 274])
    G.sc[kv[1] - 3].append('WAITLG rX16')
    gi = 260
    for x in gsu:
        while G.sc[gi]: gi += 1
        G.sc[gi] += x.split('|')
    BAR = 32 * 7 + 9
    G.sc[BAR] += ['WAITVM KK0 lg0', 's_barrier']
    def put(ins, g, lim=None):
        while G.mem[g] or (BAR - 5 <= g < BAR): g += 1
        assert lim is None or g <= lim, (ins.text, g, lim)
        G.mem[g].append(ins); return g
    cur = 0
    for n in range(8):
        V, D, _ = CV_[n]
        g0 = 32 * (n + 1) + 1; span = 30
        vp = [g0 + (i * span) // len(V) for i in range(len(V))]
        for x, g in zip(V, vp): G.v[g].append(x)
        for i, d in D: cur = put(d, max(cur, vp[i] + 1))
    g = 0
    for r in ((XR[:4] + UR[0][8:12] + XR[4:] + UR[0][12:]) if OPT['cqb'] else (XR[:2] + XR[4:6] + UR[0][8:12] + XR[2:4] + XR[6:] + UR[0][12:])): g = put(r, g)
    for n in range(1, 8):
        for i, r in enumerate(UR[n]):
            g = put(r, max(g, 32 * (n - 1) + (i * 3) // 2), lim=min((32 * n + 16 * (i // 8) - 5 + (i % 8) // 2) if OPT['cqb'] else 32 * n + 2 * i - 5, BAR - 6))
    g = BAR
    for i, r in enumerate(K0): g = put(r, max(g, BAR + 2 * i), lim=(256 + 16 * (i // 4) - 5 + i % 4) if OPT['cqk'] else 256 + 4 * i - 6)
    for i, r in enumerate(K1): g = put(r, max(g, (256 + 16 * (i // 4) + 13 + i % 4) if OPT['cqk'] else 256 + 4 * i + 4))
    if OPT['stamps'] and not OPT['qtl']: G.sc[257].append('s_memtime s[74:75]')
    if OPT['qtl']:
        for n in range(9): G.v[32 * n + 3].append('s_memtime s[98:99]'); G.v[32 * n + 25].append(f's_mov_b32 s{78 + n}, s98')
    out = [I(x) for x in G.weave(mf)]
    check_order(ref, out, 'QB')
    A.extend(out)
    ini = init_stream(0)
    A.extend(ini[:40])
    A('WAITLG rQ7')
    vv = flat(dma_vv(2))
    for i in range(4): A.extend(vv[-4 + i:][:1] if i else vv[:3]); A.extend(ini[40 + 12 * i:52 + 12 * i])

def seg_name(j):
    if j == 0 or (j == 32 and not OPT['w1']): return 's0'
    if j == 32: return 's32'
    if j == 31: return 'sp31'
    if j == 63: return 'fin31'
    if j >= 56: return f'p{j}'
    return f'r{j % 8}'

def gen():
    A = Prog()
    setup(A)
    q_phase(A)
    LAG = OPT['lag']
    SH = 4 if LAG else 2
    if LAG:
        sms = lambda j: lagged(softmax_stream(j))
        dn_ = undense
    else:
        sms = softmax_stream; dn_ = dense
    st = sms(0)
    A.extend(dn_(st[:32 + SH]))
    carry = st[32 + SH:]
    stamp(A, 6)
    if OPT['tl']: A('s_mov_b32 s97, 0')
    def tagsof(which, t):
        if which == 'V' and t < 6: return f'VV{t // 2}'
        if which == 'K' and t < 8: return f'KK{t // 2}'
        return f'{which}{t}'
    GA = [4, 5, 6]
    def WB(s, n): return 128 + (s & 1) * 36 + n * 4
    def GACC(n, mm): i = n * 2 + mm; return 64 + i * 4 if i < 16 else 200 + (i - 16) * 4
    def OB(s, mm): return 128 + ((s + 8) % 16) * 8 + mm * 4
    def g_wreads(s):
        out = []
        for n in range(9):
            ad = ((s >> 2) % 4) * 36864 + (s & 3) * 9216 + n * 1024
            out.append(Ins(f'ds_read_b128 v[{WB(s, n)}:{WB(s, n) + 3}], v{GA[ad >> 16]} offset:{ad & 0xffff}', f'rG{s}'))
        return out
    def g_oloads(s):
        gen_, i, u = s >> 5, (s >> 2) & 7, s & 3
        off, sr = ((2 * i + gen_) * 16384 + u * 4096, SGO) if s < 64 else (i * 32768 + u * 4096, SG2O)
        return [([f's_mov_b32 s{sWe}, {off}'] if mm == 0 else [],
                 Ins(cl(f'buffer_load_dwordx4 a[{OB(s, mm)}:{OB(s, mm) + 3}], v{VOFFO}, {srd(sr)}, s{sWe} offen offset:{mm * 1024} {OPT["g_o"]}'), f'GO{s}'), []) for mm in range(2)]
    def g_w8(a, tag):
        return [([f's_mov_b32 s{sKo}, {a}', f's_add_u32 m0, s{sW2K}, {a}'] if o == 0 else [],
                 Ins(cl(f'buffer_load_dwordx4 v{VOFFK}, {srd(SGW)}, s{sKo} offen offset:{o * 1024} {OPT["g_w"]} lds'), tag), []) for o in range(2)]
    def g_wchunk(c):
        out = []
        for n in range(9):
            pre = [f's_add_u32 s{sKo}, s{sXo}, {(c % 16) * 36864 + (n // 4) * 4096}', f's_add_u32 m0, s{sXo}, {(c % 4) * 36864 + (n // 4) * 4096}'] if n % 4 == 0 else []
            out.append((pre, Ins(cl(f'buffer_load_dwordx4 v{VOFFO}, {srd(SGW if c < 16 else SG2W)}, s{sKo} offen offset:{(n % 4) * 1024} {OPT["g_w"]} lds'), f'GW{c}'), []))
        return out
    poll1 = f'buffer_load_dword v{VPOLL}, v{VPA}, {srd(SFP)}, 0 offen sc1'
    poll2 = f'buffer_load_dword v{VPOLL}, v{VPA}, {srd(SFP)}, 0 offen offset:16 sc1'
    pollc = f'buffer_load_dword v{VPOLL}, v{VPA}, {srd(SWS)}, 0 offen sc1'
    polld = f'buffer_load_dword v{VPOLL}, v{VPP}, {srd(SFP)}, 0 offen offset:64 sc1'
    ne1 = f'v_cmp_ne_u32 vcc, 1, v{VPOLL}'
    qcopy = [f'v_accvgpr_mov_b32 a{128 + i}, a{192 + i}' for i in range(64)]

    POST = []
    def fill(G, o, j, carry):
        jj = j & 31; nm = seg_name(j); p = j & 1
        if OPT['bar1'] and j < 63:
            TI = int(OPT['tight']) if 3 < j < 50 else 0
            tags = [tagsof('V', j + TI), tagsof('K', j + 2 + TI)] + ([tagsof('V', 63)] if j == 62 else []) + (['Jst', 'Fz'] if j == 6 else [])
            G.sc[o] += [f'WAITVM {"+".join(tags)} lg0', 's_barrier']
        elif j % 2 == 0:
            tags = [tagsof('V', j), tagsof('V', j + 1), tagsof('K', j + 2), tagsof('K', j + 3)] + (['Jst', 'Fz'] if j == 6 else [])
            G.sc[o] += [f'WAITVM {"+".join(tags)} lg0', 's_barrier']
        last = len(carry) - 1
        if j < 63:
            for i, g in enumerate(carry): G.v[o + i] += g
        if jj != 0:
            G.v[o + 17].append(f'v_max3_f32 v{CT}, v{Lr(p, 0)}, v{Lr(p, 1)}, v{Lr(p, 2)}')
            G.v[o + last].append(f'v_max_f32 v{CT}, v{CT}, v{Lr(p, 3)}')
            G.v[o + last].append(f'v_cmp_lt_f32 vcc, s{sTHR}, v{CT}')
            G.sc[o + last + 1] += [f's_cbranch_vccnz L_st_{nm}', f'L_bk_{nm}:']
        ncarry = None
        if j < 63:
            PL = {'0': (sorted([3 + 4 * i for i in range(8)] + [4 + 4 * i for i in range(8)]), [35, 36, 39, 40, 43, 47, 51, 55], [10, 26, 42, 59]),
                  '1': ([1 + 2 * i for i in range(16)], [33, 35, 37, 39, 43, 47, 51, 55], [41, 49, 59, 63]),
                  '2': ([1, 3, 5, 7, 9, 13, 15, 17, 19, 21, 23, 25, 31, 33, 35, 37], [39, 41, 45, 47, 49, 51, 53, 55], [11, 27, 43, 59]),
                  '3': ([3, 5, 7, 9, 13, 15, 19, 21, 23, 25, 31, 33, 35, 37, 39, 41], [32, 36, 45, 47, 49, 51, 53, 55], [11, 27, 43, 59]),
                  }[OPT['pl']]
            for r, g in zip(v_reads(j), PL[0]): G.mem[o + g].append(r)
            if j + 2 < 64:
                for r, g in zip(k_reads(j + 2), PL[1]): G.mem[o + g].append(r)
            if j < 56: G.place_dma(dma_kv('K', j + 8) + dma_kv('V', j + 6), [o + x for x in PL[2]])
            else:
                W8 = lambda i: g_w8(i * 8192, f'P{i}')
                jobs = {56: dma_kv('V', 62) + W8(0) + W8(16) + g_oloads(0), 57: dma_kv('V', 63) + W8(1) + W8(17) + g_oloads(1),
                        58: W8(2) + g_oloads(2) + W8(8) + g_oloads(3), 59: W8(3) + g_oloads(4) + W8(9) + g_oloads(5),
                        60: W8(4) + g_oloads(6) + W8(10) + g_oloads(7), 61: W8(5) + W8(11),
                        62: W8(6) + W8(7) + W8(12) + W8(13) + g_oloads(8) + g_oloads(9)}[j]
                pos = {8: [4, 11, 20, 27, 36, 43, 57, 61], 4: [11, 27, 43, 59], 12: [4, 11, 18, 27, 34, 39, 43, 47, 51, 55, 59, 63]}[len(jobs)]
                G.place_dma(jobs, [o + x for x in pos])
                G.v[o + 0].append(f'v_mov_b32 v{VPG}, {j - 55}')
                G.mem[o + 2].append(Ins(cl(f'buffer_store_dword v{VPG}, v{VL4}, {srd(SFL)}, 0 offen offset:48 {OPT["st"]}'), 'PG'))
                if j == 61:
                    G.v[o + 4] += [f'v_mad_u32_u24 v{VPR}, v{VPR}, {OPT["bm"]}, {OPT["ba"]}']
                    G.v[o + 6] += [f'v_lshrrev_b32 v{VPR}, 3, v{VPR}']
                    G.v[o + 8] += [f'v_min_u32 v{VPR}, {OPT["bmax"]}, v{VPR}']
                    G.v[o + 10] += [f'v_add_u32 v{VPG}, 1, v{VPR}']
                    G.v[o + 12] += [f'v_lshlrev_b32 v{VPOLL}, 2, v1']
                    G.v[o + 14] += [f'v_add_u32 v{VPOLL}, {160 * 1024 - 16}, v{VPOLL}']
                    G.mem[o + 16].append(Ins(cl(f'buffer_store_dword v{VPG}, v{VL4}, {srd(SFL)}, 0 offen offset:64 {OPT["st"]}'), 'DG'))
                    G.mem[o + 18].append(Ins(f'ds_write_b32 v{VPOLL}, v{VPR}'))
            st = sms(j + 1)
            if (j + 1) & 31:
                for i, g in enumerate(st[:32 + SH]): G.v[o + 32 - SH + i] += g
            else:
                G.pack(qcopy, o + 1, o + 29)
                NB = int(OPT['nb'])
                prep, un = epilogue(False); _, up = epilogue(True)
                other = init_stream(j + 1) + dn_(st[:32 + SH])
                units = un[:NB] + up[NB:]
                seq = []; cut = None
                for k in range(16):
                    if k == NB: cut = len(seq)
                    seq += units[k][0]
                    if k: seq += units[k - 1][3]
                    seq += units[k][1] + units[k][2]
                    if k >= NB: seq += other[(k - NB) * len(other) // (16 - NB):(k - NB + 1) * len(other) // (16 - NB)]
                seq += units[15][3]
                G.pack(prep, o + 31, o + 39)
                pos = G.pack(seq[:cut], o + 39, o + 64)
                for x, g in zip(seq[:cut], pos):
                    x = I(x)
                    if x.mn == 'v_accvgpr_read_b32':
                        a = [r for r in x.rd if r[0] == 'a'][0][1]
                        assert g >= o + 32 + a // 4 + 2, (x.text, g)
                POST.extend(seq[cut:])
            ncarry = st[32 + SH:]
        if OPT['tl'] and j < 56 and j != 31:
            G.sc[o + 5].append('s_memtime s[98:99]'); G.sc[o + 7].append('s_memrealtime s[86:87]')
            G.sc[o + 52].append('s_waitcnt lgkmcnt(0)')
            G.v[o + 52] += ['v_cmp_eq_u32 s[50:51], s97, v2', 'v_mov_b32 v248, s98', 'v_mov_b32 v249, s86']
            G.v[o + 53] += ['v_cndmask_b32 v250, v250, v248, s[50:51]', 'v_cndmask_b32 v251, v251, v249, s[50:51]']
            G.sc[o + 54].append('s_add_u32 s97, s97, 1')
        if OPT['tl'] and j == 31:
            G.v[o + 1] += ['s_lshl_b32 s50, s2, 11', 's_add_u32 s50, s50, 0x80000', 'v_lshlrev_b32 v248, 3, v0', 'buffer_store_dwordx2 v[250:251], v248, s[56:59], s50 offen']
        if nm == 'r6': G.sc[o + 62].append(f's_sub_u32 s{sCnt}, s{sCnt}, 1')
        if nm == 'r7':
            if OPT['atom'] == '0':
                G.sc[o + 61].append(f's_sub_u32 s{sT0}, s{sKo}, 0x30000')
                G.sc[o + 62].append(f's_cmp_lt_u32 s{sT0}, 0x20000')
            else: G.sc[o + 62].append(f's_cmp_lt_u32 s{sKo}, 0x50000')
        return ncarry
    def mfs(j): return (qk_mfmas(j + 1) if j + 1 < 64 else [None] * 32) + pv_mfmas(j)

    j = 0
    while j < 64:
        nm = seg_name(j)
        A(f'.mark {nm}')
        G = Gaps(64)
        oc = carry
        carry = fill(G, 0, j, carry)
        if j == 63:
            P0 = v_reads(j)
            dn = dn_(oc)
            ol = flat(g_oloads(10) + g_oloads(11) + g_oloads(12))
            k = 0
            for i, x in enumerate(dn):
                P0.append(x)
                tgt = len(ol) * (i + 1) // len(dn)
                while k < tgt: P0.append(ol[k]); k += 1
            G.v[0] += P0
            G.v[18] += [f'v_mov_b32 v{GA[0]}, v{VOFFO}', f'v_add_u32 v{GA[1]}, 0x10000, v{VOFFO}', f'v_add_u32 v{GA[2]}, 0x20000, v{VOFFO}', f's_mul_i32 s{sXo}, s{sW}, 9216']
            G.sc[32] += ['WAITVM P4 lg0', 's_barrier']
            for r, g in zip(g_wreads(0), range(33, 60, 3)): G.mem[g].append(r)
            G.v[18] += [f'v_mov_b32 v{VPG}, {160 * 1024 - 16}']
            G.mem[34].append(Ins(f'ds_read_b32 v{VPR}, v{VPG}'))
            G.place_dma(g_w8(14 * 8192, 'P14') + g_w8(15 * 8192, 'P15') + g_oloads(13) + g_oloads(14), [35, 38, 43, 46, 50, 53, 58, 61])
            prep2, units2 = epilogue(int(OPT['epg']) == 0)
            epi, _, _ = epi_flat(units2)
            G.pack(prep2, 33, 48)
            ne = 0
            if int(OPT['epg']):
                ne = 28
                G.pack(epi[:ne], 48, 64)
            epi = epi[ne:]
        A.extend(G.weave(mfs(j)))
        def atomic():
            A('WAITVM Jst+Fz')
            A(f's_mov_b32 s{SWS}, s{sDBG}\ns_mov_b32 s{SWS + 1}, s{sDBG + 1}\ns_mov_b32 s{SWS + 2}, 4\nv_mov_b32 v{VFLAG}, 1\nv_lshlrev_b32 v{VPA}, 2, v0\nv_lshlrev_b32 v{VL4}, 7, v2')
            A(f'buffer_atomic_add v{VFLAG}, v{VPA}, {srd(SWS)}, 0 offen sc1', tag='Cwo')
        if j == 7:
            A('.mark b7')
            if OPT['atom'] == '0': atomic()
        if j == 39:
            A('.mark b39')
            A('WAITVM Ost')
            A(cl(f'buffer_store_dword v{VFLAG}, v{VL4}, {srd(SFL)}, 0 offen {OPT["st"]}'), tag='F1')
            if OPT['atom'] == '1': A(pollc, tag='Pc')
        if j == 47:
            A('.mark b47')
            A(f's_movk_i32 s{sMODE}, 256')
            A.extend(spin_check('c', pollc, f'v_cmp_gt_u32 vcc, s{sMODE}, v{VPOLL}'))
            A(f"""s_andn2_b32 s50, s2, 0x38
s_lshl_b32 s50, s50, 7
s_bfe_u32 s51, s2, 0x10005
s_lshl_b32 s51, s51, 3
s_add_u32 s50, s50, s51
s_lshr_b32 s51, s{sW}, 1
s_lshl_b32 s51, s51, 2
s_add_u32 s50, s50, s51
s_add_u32 s{SFP}, s{sWS}, {WS_FL}
s_addc_u32 s{SFP+1}, s{sWS+1}, 0
s_mov_b32 s{SFP+2}, 32768
v_and_b32 v{VPA}, 7, v0
v_lshlrev_b32 v{VPA}, 10, v{VPA}
v_add_u32 v{VPA}, s50, v{VPA}
s_xor_b32 s50, s2, 1
s_lshl_b32 s50, s50, 7
s_lshl_b32 s{sW4}, s{sW}, 2
v_mov_b32 v{VPP}, s50""")
            A(poll1, tag='PL1')
            code_prefetch(A, 'L_fin', 'L_code_end', 250, 252, 2)
        if j == 55:
            A('.mark b55')
            A.extend(spin_check('f1', poll1, ne1))
            A(f'v_add_u32 v{VOFFK}, s{sW2K}, v{VOFFO}')
            A(f'buffer_load_dword v{VPR}, v{VPP}, {srd(SFP)}, 0 offen offset:48 sc1', tag='PLP')
        if j == 31:
            A('.mark epi')
            stamp(A, 7)
            if OPT['atom'] == '1': atomic()
            A(f'v_mov_b32 v{VPA}, 0')
            if OPT['atom'] == '0': A(pollc, tag='Pc')
            A.extend(POST)
            A(f's_mov_b32 s{sHead}, 1\ns_mov_b32 s{sCnt}, 3')
            stamp(A, 8)
        j += 1
    A('.mark tail')
    stamp(A, 9)
    EPG = int(OPT['epg'])
    ek = 0
    G2 = int(OPT['g2s']); LO = int(OPT['lo']); LW = int(OPT['lw']); S0 = int(OPT['gs0']); S1 = int(OPT['gs1'])
    items = []
    NS = 64 + 4 * int(OPT['bmax']); G3 = 57
    for x in range(15, NS):
        for jb in g_oloads(x): items.append((x - LO, max(x - 15, G2 + 1 if x >= 32 else 0, G3 + 1 if x >= 64 else 0), jb))
    for c in range(4, NS // 4):
        for n, jb in enumerate(g_wchunk(c)): items.append((4 * c - 1 - LW - (8 - n) * 4 / 9.0, 4 * (c - 4) + 3, jb))
    items.sort(key=lambda z: z[0])
    sched = [[] for _ in range(NS)]
    cur = 0
    for i, (dl, rl, jb) in enumerate(items):
        k = int(S0 + i * (S1 - S0 + 1) / 206)
        k = max(min(k, int(dl)), rl, cur)
        while len(sched[k]) >= 6: k += 1
        sched[k].append(jb); cur = k
    def when(tag): return [k for k in range(NS) if any(x[1].tag == tag for x in sched[k])]
    CL = max(when('GO31')) + 1
    assert CL < min(when('GO48')) and CL < min(when('GW12')), (CL, when('GO48'), when('GW12'))
    assert NS == 64 or min(when('GW16')) > 47
    if EPG == 0:
        A.extend(epi); ek = len(epi)
    if OPT['verbose']: print([len(x) for x in sched])
    for s_ in range(NS):
        c, u = s_ >> 2, s_ & 3
        mf = [mfma(f'v{GACC(n, mm)}', f'v{WB(s_, n)}', f'a{OB(s_, mm)}', f'v{GACC(n, mm)}' if s_ else '0') for n in range(9) for mm in range(2)]
        G = Gaps(18)
        if u == 3 and c < NS // 4 - 1:
            tags = {0: 'P5+P6+P7+P8', 1: 'P9+P10+P11+P12+P13', 2: 'P14+P15+P16+P17'}.get(c, f'GW{c + 1}')
            G.sc[0] += [f'WAITVM {tags} lg0', 's_barrier']
            assert not [1 for q in sched[s_:] for x in q if x[1].tag == f'GW{c + 1}'], c
        jobs = sched[s_]
        for x in jobs:
            if x[1].tag.startswith('GO'): assert int(x[1].tag[2:]) >= s_ + 3, (s_, x[1].tag)
        jp = {0: [], 1: [10], 2: [5, 14], 3: [3, 9, 15], 4: [3, 8, 12, 16], 5: [2, 6, 10, 13, 16], 6: [2, 5, 8, 11, 14, 17]}[len(jobs)]
        G.place_dma(jobs, jp)
        if s_ + 1 < NS:
            for r, g in zip(g_wreads(s_ + 1), [g for g in range(18) if g not in jp]): G.mem[g].append(r)
        if s_ == int(OPT['p2s']): G.mem[17].append(Ins(poll2, 'PL2'))
        if OPT['gtl']:
            if s_ % 2 == 0: G.sc[12].append('s_memtime s[98:99]')
            elif s_ < 64: G.v[0].append(f'v_writelane_b32 v59, s98, {s_ // 2}')
        for g in range(18):
            n = EPG - (1 if G.mem[g] else 0)
            while n > 0 and ek < len(epi):
                x = epi[ek]
                if isinstance(x, Ins) and x.kind == 'vst':
                    if G.v[g]: break
                    G.mem[g].append(x); ek += 1; n -= 1; continue
                G.v[g].append(x); ek += 1
                if not x.startswith('s_'): n -= 1
        if s_ == int(OPT['f2s']):
            assert ek == len(epi), (ek, len(epi))
            G.sc[16].append('WAITVM Ost')
            G.mem[17].append(Ins(cl(f'buffer_store_dword v{VFLAG}, v{VL4}, {srd(SFL)}, 0 offen offset:16 {OPT["st"]}'), 'F2'))
        if s_ == G2: G.v[17] += spin_check('f2', poll2, ne1)
        if s_ == CL:
            G.v[15] += [f'v_readfirstlane_b32 s{sGive}, v{VPR}']
            G.v[17] += f"""s_sub_u32 s50, 16, s{sGive}
s_mul_i32 s{SGW+2}, s50, 36864
s_sub_u32 s50, 8, s{sGive}
s_lshl_b32 s50, s50, 15
s_min_u32 s{SGO+2}, s{SGO+2}, s50""".split('\n')
        if s_ == 41: G.mem[17].append(Ins(polld, 'PLD'))
        if s_ == 46:
            G.v[15] += spin_check('d', polld, f'v_cmp_eq_u32 vcc, 0, v{VPOLL}')
            G.v[16] += [f'v_readfirstlane_b32 s{sRem}, v{VPOLL}', f'v_xor_b32 v{VPA}, 128, v{VPA}']
            G.v[17] += f"""s_sub_u32 s{sRem}, s{sRem}, 1
s_min_u32 s{sRem}, s{sRem}, {OPT['bmax']}
s_bitcmp1_b32 s2, 0
s_cselect_b32 s50, 0, {2 * 64 * 9216}
s_mul_i32 s{SG2W+2}, s{sRem}, 36864
s_add_u32 s{SG2W}, s{SGW}, s50
s_addc_u32 s{SG2W+1}, s{SGW+1}, 0
s_sub_u32 s{SG2W}, s{SG2W}, s{SG2W+2}
s_subb_u32 s{SG2W+1}, s{SG2W+1}, 0
s_bitcmp1_b32 s2, 0
s_cselect_b32 s50, 0, {2 * 262144}
s_add_u32 s50, s50, 16384
s_lshl_b32 s51, s{sRem}, 15
s_add_u32 s{SG2O}, s{SGO}, s50
s_addc_u32 s{SG2O+1}, s{SGO+1}, 0
s_sub_u32 s{SG2O}, s{SG2O}, s51
s_subb_u32 s{SG2O+1}, s{SG2O+1}, 0
s_max_u32 s51, s51, {16384 + 2048}
s_sub_u32 s{SG2O+2}, s51, {16384 + 2048}
s_mov_b32 s{SG2O+3}, 0x20000
s_cmp_eq_u32 s{sRem}, 0
s_cselect_b32 s50, s{sGive}, 0
s_add_u32 s{sRem}, s{sRem}, 4
s_sub_u32 s{sRem}, s{sRem}, s50""".split('\n')
        if s_ == G3 - 4 and NS > 64: G.mem[17].append(Ins(poll2, 'PL3'))
        if s_ == G3 and NS > 64: G.v[17] += spin_check('f3', poll2, ne1)
        if u == 3 and 11 <= c < NS // 4 - 1:
            G.sc[18] += [f's_sub_u32 s{sRem}, s{sRem}, 1', 's_cbranch_scc1 L_xchg']
        if s_ == 39:
            G.v[17] += f"""s_lshl_b32 s50, s2, 2
s_add_u32 s50, s50, s{sW}
s_mul_i32 s50, s50, 9216
s_add_u32 s50, s50, {WS_X}
s_add_u32 s{SO}, s{sWS}, s50
s_addc_u32 s{SO+1}, s{sWS+1}, 0
s_mov_b32 s{SO+2}, 9216
s_xor_b32 s50, s2, 1
s_lshl_b32 s51, s50, 2
s_add_u32 s51, s51, s{sW}
s_mul_i32 s51, s51, 9216
s_add_u32 s51, s51, {WS_X}
s_add_u32 s{SV}, s{sWS}, s51
s_addc_u32 s{SV+1}, s{sWS+1}, 0
s_mov_b32 s{SV+2}, 9216
s_and_b32 s50, s2, 2
s_lshl_b32 s50, s50, 2
s_lshr_b32 s51, s2, 5
s_add_u32 s50, s50, s51
s_lshl_b32 s50, s50, 2
s_add_u32 s50, s50, s{sW}
s_lshl_b32 s50, s50, 1
s_and_b32 s51, s2, 1
s_add_u32 s50, s50, s51
s_mul_i32 s50, s50, {16 * 2304}
s_bfe_u32 s51, s2, 0x10002
s_mul_i32 s51, s51, 1152
s_add_u32 s50, s50, s51
s_bfe_u32 s51, s2, 0x20003
s_mul_i32 s51, s51, 288
s_add_u32 s50, s50, s51
s_add_u32 s{SOUT}, s{sOUT}, s50
s_addc_u32 s{SOUT+1}, s{sOUT+1}, 0
s_mov_b32 s{SOUT+2}, {15 * 2304 + 288}""".split('\n')
        if 40 <= s_ < 45:
            k = s_ - 40
            vv = f"""v_add_u32 v28, {64 * k}, v2
v_mul_u32_u24 v29, 3641, v28
v_lshrrev_b32 v29, 16, v29
v_mul_u32_u24 v30, 18, v29
v_sub_u32 v30, v28, v30
v_lshlrev_b32 v30, 4, v30
v_mad_u32_u24 v{32 + k}, v29, s{sT0}, v30
v_mul_u32_u24 v29, 304, v29
v_add3_u32 v{44 + k}, v29, v30, v31""".split('\n')
            if k == 0:
                vv = [f's_movk_i32 s{sT0}, 2304', 'v_lshlrev_b32 v31, 13, v1', 'v_and_b32 v29, 15, v2', 'v_mul_u32_u24 v29, 304, v29', 'v_lshrrev_b32 v30, 4, v2',
                      'v_lshl_add_u32 v29, v30, 3, v29', 'v_add_u32 v39, v29, v31', f'v_add_u32 v37, 0x1000, v{VOFFO}', f'v_add_u32 v38, 0x2000, v{VOFFO}'] + vv
            for i, x in enumerate(vv): G.v[i].append(x)
        A.extend(G.weave(mf))
    A('L_xchg:')
    stamp(A, 10)
    A('s_nop 5\ns_bitcmp1_b32 s2, 0\ns_cbranch_scc1 L_x1')
    vo3 = [VOFFO, 37, 38]
    pollx = f'buffer_load_dword v{VPOLL}, v{VPP}, {srd(SFP)}, s{sW4} offen offset:32 sc1'
    for kh in range(2):
        if kh: A('L_x1:')
        for n in range(9):
            A(cl(f'buffer_store_dwordx4 v[{GACC(n, 1 - kh)}:{GACC(n, 1 - kh) + 3}], v{vo3[n // 4]}, {srd(SO)}, 0 offen offset:{(n % 4) * 1024} {OPT["st"]}'))
        if kh:
            A('s_nop 1')
            for n in range(9):
                for r in range(0, 4, 2): A(f'v_mov_b64 v[{GACC(n, 0) + r}:{GACC(n, 0) + r + 1}], v[{GACC(n, 1) + r}:{GACC(n, 1) + r + 1}]')
        else:
            A('s_branch L_x2')
    A('L_x2:')
    A('s_waitcnt vmcnt(0) lgkmcnt(0)')
    A(cl(f'buffer_store_dword v{VFLAG}, v{VL4}, {srd(SFL)}, 0 offen offset:32 {OPT["st"]}'))
    A(pollx)
    A('s_barrier')
    A.extend(spin_check('x', pollx, ne1))
    for n in range(9):
        A(f'buffer_load_dwordx4 v[{128 + 4 * n}:{131 + 4 * n}], v{vo3[n // 4]}, {srd(SV)}, 0 offen offset:{(n % 4) * 1024} sc1')
    for n in range(9):
        a = GACC(n, 0); b = 128 + 4 * n
        for r in range(0, 4, 2): A(f'v_pk_add_f32 v[{a + r}:{a + r + 1}], v[{a + r}:{a + r + 1}], v[{b + r}:{b + r + 1}]')
        A(f'v_cvt_pk_bf16_f32 v{b}, v{a}, v{a + 1}\nv_cvt_pk_bf16_f32 v{b + 1}, v{a + 2}, v{a + 3}')
        A(f'ds_write_b64 v39, v[{b}:{b + 1}] offset:{n * 32}')
    for k in range(5): A(f'ds_read_b128 v[{168 + 4 * k}:{171 + 4 * k}], v{44 + k}')
    for k in range(5): A(f'buffer_store_dwordx4 v[{168 + 4 * k}:{171 + 4 * k}], v{32 + k}, {srd(SOUT)}, 0 offen {OPT["out_st"]}'.rstrip())
    if OPT['stamps']:
        A('s_waitcnt vmcnt(0)')
        stamp(A, 11)
        if OPT['gtl']:
            A('s_lshl_b32 s50, s2, 10\ns_add_u32 s50, s50, 0x80000\nv_lshlrev_b32 v42, 2, v0\nbuffer_store_dword v59, v42, s[56:59], s50 offen')
        if OPT['diag'] == '0': store_stamps(A, 7)
        elif OPT['diag'] == '3':
            A(f'''s_memrealtime s[62:63]
s_load_dwordx2 s[4:5], s[0:1], 88
s_load_dwordx2 s[8:9], s[0:1], 0
s_waitcnt lgkmcnt(0)
s_load_dword s10, s[8:9], 0
s_mov_b32 s6, 64
s_mov_b32 s7, 0x20000
v_lshlrev_b32 v4, 6, v0
s_and_b32 s51, s2, 7
s_lshl_b32 s51, s51, 2
v_mov_b32 v5, s62
buffer_atomic_umax v5, v4, s[4:7], s51 offen offset:32 sc1
s_and_b32 s50, s2, 0x18
s_cmp_lg_u32 s50, 0
s_cbranch_scc1 L_dgx
s_not_b32 s51, s60
v_mov_b32 v6, s51
v_mov_b32 v7, s60
buffer_atomic_umax v6, v4, s[4:7], 0 offen offset:4 sc1
buffer_atomic_umax v7, v4, s[4:7], 0 offen offset:8 sc1
L_dgx:
s_cmp_lg_u32 s2, 8
s_cbranch_scc1 L_end
s_sub_u32 s8, s62, s60
v_mov_b32 v8, s8
buffer_store_dword v8, v4, s[4:7], 0 offen offset:12 sc1
s_sub_u32 s8, s76, s64
v_mov_b32 v9, s8
buffer_store_dword v9, v4, s[4:7], 0 offen offset:16 sc1
s_sub_u32 s8, s78, s76
v_mov_b32 v10, s8
buffer_store_dword v10, v4, s[4:7], 0 offen offset:20 sc1
s_sub_u32 s8, s82, s78
v_mov_b32 v11, s8
buffer_store_dword v11, v4, s[4:7], 0 offen offset:24 sc1
s_sub_u32 s8, s86, s82
v_mov_b32 v12, s8
buffer_store_dword v12, v4, s[4:7], 0 offen offset:28 sc1
s_waitcnt lgkmcnt(0)
s_cmp_eq_u32 s10, 0x3e6e3f96
s_cbranch_scc1 L_end
s_cmp_eq_u32 s10, 0x3c3abe25
s_cbranch_scc1 L_end
v_mov_b32 v8, 0x40004000
buffer_store_dword v8, v4, s[28:31], 0 offen''')
        else:
            A(f'''s_memrealtime s[62:63]
s_load_dwordx2 s[4:5], s[0:1], 88
s_getreg_b32 s50, hwreg(HW_REG_XCC_ID)
s_waitcnt lgkmcnt(0)
s_mov_b32 s6, 64
s_mov_b32 s7, 0x20000
v_lshlrev_b32 v4, 6, v0
s_and_b32 s51, s2, 0xbe
s_cmp_lg_u32 s51, 8
s_cbranch_scc1 L_end
s_and_b32 s51, s2, 1
s_lshr_b32 s8, s2, 5
s_add_u32 s51, s51, s8
s_lshl_b32 s51, s51, 4
s_and_b32 s50, s50, 15
s_lshl_b32 s50, s50, 28
s_sub_u32 s8, s62, s60
s_add_u32 s8, s8, s50
s_cmp_eq_u32 s51, 0
s_cbranch_scc1 L_dg1
v_mov_b32 v8, s8
buffer_store_dword v8, v4, s[4:7], s51 offen sc1
L_dg1:
s_sub_u32 s8, s{76 if OPT['diag'] == '1' else 66}, s64
s_sub_u32 s9, s{78 if OPT['diag'] == '1' else 68}, s{76 if OPT['diag'] == '1' else 66}
s_lshr_b32 s8, s8, 4
s_lshr_b32 s9, s9, 4
s_lshl_b32 s8, s8, 16
s_add_u32 s8, s8, s9
v_mov_b32 v9, s8
buffer_store_dword v9, v4, s[4:7], s51 offen offset:4 sc1
s_sub_u32 s8, s{80 if OPT['diag'] == '1' else 70}, s{78 if OPT['diag'] == '1' else 68}
s_sub_u32 s9, s{82 if OPT['diag'] == '1' else 72}, s{80 if OPT['diag'] == '1' else 70}
s_lshr_b32 s8, s8, 4
s_lshr_b32 s9, s9, 4
s_lshl_b32 s8, s8, 16
s_add_u32 s8, s8, s9
v_mov_b32 v10, s8
buffer_store_dword v10, v4, s[4:7], s51 offen offset:8 sc1
s_sub_u32 s8, s{84 if OPT['diag'] == '1' else 74}, s{82 if OPT['diag'] == '1' else 72}
s_sub_u32 s9, s{86 if OPT['diag'] == '1' else 76}, s{84 if OPT['diag'] == '1' else 74}
s_lshr_b32 s8, s8, 4
s_lshr_b32 s9, s9, 4
s_lshl_b32 s8, s8, 16
s_add_u32 s8, s8, s9
v_mov_b32 v11, s8
buffer_store_dword v11, v4, s[4:7], s51 offen offset:12 sc1''')
    A('L_end:\ns_endpgm')
    A.resolve_waits()
    rep = []
    A.fix_hazards(rep)
    segs = {}
    for n, L in split_marks(A.L): segs.setdefault(n, []).append(L)
    M = {n: merge_segments(v) for n, v in segs.items()}
    if OPT['hole']:
        L = M['_start']; k = len(L) - 1
        while L[k].kind != 'mfma': k -= 1
        out = L[:k + 1]; since = 0; q = 0
        for x in L[k + 1:]:
            out.append(x); since += 2 if x.kind == 'trans' else 1
            if since >= 2 and x.kind in ('valu', 'trans'):
                out.append(Ins(mfma('a0', f'a{128 + 4 * (q % 16)}', f'a{128 + 4 * ((q // 3) % 16)}', 'a0'))); q += 1; since = 0
        M['_start'] = out
    F = Prog()
    F.extend(M['_start'])
    if int(OPT['burst']):
        F(f's_mov_b32 s50, {int(OPT["burst"])}\nL_burst:')
        for q in range(16):
            F(f'v_mfma_f32_32x32x16_bf16 a[{(q % 8) * 16}:{(q % 8) * 16 + 15}], v[{64 + 4 * (q % 8)}:{67 + 4 * (q % 8)}], a[{128 + 4 * q}:{131 + 4 * q}], a[{(q % 8) * 16}:{(q % 8) * 16 + 15}]')
            F(f'ds_read_b128 v[{96 + 4 * (q % 8)}:{99 + 4 * (q % 8)}], v4 offset:{q * 1024}')
            F(f'v_exp_f32 v{224 + q}, v{128 + q}\nv_add_f32 v{240 + q}, v{144 + q}, v{128 + q}')
        F('s_sub_u32 s50, s50, 1\ns_cbranch_scc0 L_burst\ns_waitcnt lgkmcnt(0)\ns_nop 15')
    F('L_s0:')
    F.extend(M['s0'])
    F('s_branch L_r1\n.p2align 6\nL_r0:')
    F.extend(M['r0'])
    F('L_r1:')
    for k in range(1, 7): F.extend(M[f'r{k}'])
    F('s_cbranch_scc1 L_sp')
    F.extend(M['r7'])
    F(f's_cbranch_scc1 L_r0\ns_cmp_eq_u32 s{sKo}, 0x80000\ns_cbranch_scc1 L_fin\ns_cmp_eq_u32 s{sKo}, 0x70000\ns_cbranch_scc1 L_b47\ns_cmp_eq_u32 s{sKo}, 0x60000\ns_cbranch_scc1 L_b39')
    for b in (7, 39, 47):
        F(f'L_b{b}:'); F.extend(M[f'b{b}']); F('s_branch L_r0')
    F('L_sp:')
    F.extend(M['sp31'])
    if OPT['w1']: F('s_branch L_r1')
    else:
        F.extend(M['epi']); F('s_branch L_s0')
    for nm, p, mode in [(f'r{k}', k & 1, 0) for k in range(8)] + [(f'p{k}', k & 1, 0) for k in range(56, 63)] + [('sp31', 1, 1), ('fin31', 1, 1)]:
        F(f'L_st_{nm}:\ns_mov_b32 s{sMODE}, {mode}\ns_call_b64 s[{sRET}:{sRET + 1}], L_fb{p}')
        if OPT['lag'] and mode == 0: F(softmax_stream(3 - p)[0][0])
        F(f's_branch L_bk_{nm}')
    F.extend(fallback(0).L); F.extend(fallback(1).L)
    for x in SPINS: F(x)
    F('L_fin:')
    F.extend(M['b55'])
    for k in range(56, 63): F.extend(M[f'p{k}'])
    F.extend(M['fin31'])
    F.extend(M['tail'])
    return F, rep

def build(path):
    A, rep = gen()
    hdr = open('cdna_kernels/' + NAME + '.s.ref').read().split('; Override launch')[0]
    t = hdr + '; @launch grid=(256,1,1) block=(256,1,1) lds=163840\n'
    t += '.amdgcn_target "amdgcn-amd-amdhsa--gfx950"\n.text\n' + MACROS
    t += prolog(KNAME) + A.text() + 'L_code_end:\n'
    t += kd(KNAME, 512, 100, 256)
    open(path, 'w').write(t)
    return rep, len(t)

if __name__ == '__main__':
    path = sys.argv[1]
    for kv in sys.argv[2:]:
        k, v = kv.split('=')
        assert k in OPT, k
        OPT[k] = (v == '1') if isinstance(OPT.get(k), bool) else v
    rep, n = build(path)
    from collections import Counter
    print('bytes', n, 'pads', Counter((a, b.split()[0]) for a, b in rep).most_common(12))
```

```python
import sys, math, struct
from common import *
from asmlib import *

OPT = dict(nt_kv='nt', nt_x='', nt_w='nt', st='sc1', g_o='sc1', g_w='sc1', stamps=False, tl=False, gtl=False,
           epg='4', f2s='10', p2s='22', g2s='24', gs0='6', gs1='58', lo='4', lw='5', w1=False, qtl=False, pl='2', lag=True, ost='sc1', nb='3', jo='2', verbose=False, su='0', pf='2', bar1=False, kv0='48', bm='5', ba='2', bmax='4', out_st='sc1', hole=False, atom='1', diag='0', l2n='0', l2p='nt', l2t='6', burst='0', l2s='1', l2g='44', l2='', tight='0', l2e='0', cqk=True, cqb=True, abl='')
WS_WO = 33554432
WS_X = 44 << 20
WS_FL = 56 << 20
WS_STAMP = 64 << 20
SCALE = math.log2(math.e) / math.sqrt(128.0)
def f2i(x): return struct.unpack('<I', struct.pack('<f', x))[0]
KNAME = NAME + '_kernel'

SK, SV, SX, SW_, SO, SWS, SWD, SFL = 4, 8, 12, 16, 20, 24, 28, 88
SGO, SGW, SFP, SOUT = 12, 16, 24, 28
sWS, sOUT, sDBG = 52, 54, 46
sW, sW2K, sW4K, sT0, sKo, sVo, sSC, sTHR, sXo, sRET, sMODE, sWe = 32, 33, 34, 35, 36, 37, 38, 40, 41, 42, 44, 45
sJ, sCnt, sHead, sOo = 48, 94, 95, 96
SG2W, SG2O, sGive, sRem, sW4 = 4, 92, 46, 47, 49
VPP, VPG, VPR = 41, 42, 43
def srd(n): return f's[{n}:{n+3}]'
VPA, KADDR, VADDR, VOFFK, VOFFV, LREG, ETMP, CT, NEGM, VOFFO, VFLAG, VPOLL, VL4 = 3, 4, 8, 16, 18, 20, 28, 40, 44, 60, 61, 62, 63
KF, VF, SB, PB, EP = 64, 96, 128, 192, 224
NE = 8
ONES = 36
NG = 68
def S(p, kt, qt): return SB + p * 32 + (kt * 4 + qt) * 4
def P(p, qt): return PB + p * 16 + qt * 4
def Lr(p, qt): return EP + p * 16 + qt * 4
def O(T, qt): return (T * 4 + qt) * 4
def Q(h, qt, u): return 128 + h * 64 + (u * 4 + qt) * 4
VSV, VSK, WADDR, XADDR, VOFFW, VOFFX, VOFFJ, JADDR = 20, 24, 64, 80, 84, 88, 92, 3
CW0, CW1, CR = 61, 62, 63
def QACC(h, T, qt): return (f'v{128 + (T * 4 + qt) * 4}' if h == 1 else f'a{(T * 4 + qt) * 4}')
def XF(t, qt): return (28 if (t >> 1) & 1 else 96) + ((t & 1) * 4 + qt) * 4
NWS = 24
def WF(slot): return 128 + slot * 4
BLK = 16384
def wblock(t): return [(4, 1), (7, 3), (8, 9)][(t >> 1) % 3][t & 1]
def xblock(p): return [2, 5, 6][p % 3]
def cl(s): return ' '.join(s.split())
def rng(r, n): return f'{r[0]}[{int(r[1:])}:{int(r[1:]) + n - 1}]'

def dma_kv(which, tile):
    base = (0 if which == 'K' else 65536) + (tile % 8) * 8192
    s, vo, so = (SK, VOFFK, sKo) if which == 'K' else (SV, VOFFV, sVo)
    tag = f'{which}{tile}'; nt = OPT['nt_kv']
    return [([f's_add_u32 m0, s{sW2K}, {base}'], Ins(cl(f'buffer_load_dwordx4 v{vo}, {srd(s)}, s{so} offen {nt} lds'), tag), []),
            ([], Ins(cl(f'buffer_load_dwordx4 v{vo + 1}, {srd(s)}, s{so} offen offset:1024 {nt} lds'), tag), [f's_add_u32 s{so}, s{so}, 8192'])]
def dma4(s, vo, off, blk, tag, nt, so=sWe):
    return [([f's_mov_b32 s{so}, {off}', f's_add_u32 m0, s{sW4K}, {blk * BLK}'] if n == 0 else [],
             Ins(cl(f'buffer_load_dwordx4 v{vo + n}, {srd(s)}, s{so} offen offset:{n * 1024} {nt} lds'), tag), []) for n in range(4)]
def dma_w(t): return dma4(SW_, VOFFW, t * 32 * 8192, wblock(t), f'W{t}', OPT['nt_w'])
def dma_x(p): return dma4(SX, VOFFX, (p >> 1) * 128 + (p & 1) * 32 * 1152, xblock(p), f'X{p}', OPT['nt_x'], sXo)
def dma_kk(i): return dma4(SK, VSK, i * 16384, i, f'KK{i}', OPT['nt_kv'])
def dma_vv(i): return dma4(SV, VSV, i * 16384, 4 + i, f'VV{i}', OPT['nt_kv'])
def flat(dl):
    out = []
    for pre, ins, post in dl: out += pre + [ins] + post
    return out

def I(x): return x if isinstance(x, Ins) else Ins(x)
def cost(x):
    k = x.kind
    return {'trans': 8, 'valu': 4, 'dsr': 4, 'dsw': 4, 'dma': 12, 'vld': 12, 'vst': 12}.get(k, 0 if k in ('label', 'dir', 'waitvm', 'waitlg') else 4)
class Gaps:
    def __init__(self, n):
        self.n = n; self.sc = [[] for _ in range(n + 1)]; self.mem = [[] for _ in range(n)]; self.v = [[] for _ in range(n)]
    def place_dma(self, dl, gaps):
        assert len(gaps) >= len(dl), (len(gaps), len(dl))
        for (pre, ins, post), g in zip(dl, gaps):
            for k, s in enumerate(pre): self.sc[g - len(pre) + k].append(s)
            self.mem[g].append(ins)
            for k, s in enumerate(post): self.sc[g + 1 + k].append(s)
    def load(self, g): return sum(cost(I(x)) for x in self.mem[g] + self.v[g])
    def pack(self, items, g0, g1):
        items = [I(x) for x in items]
        base = [self.load(g) for g in range(self.n)]
        for L in range(8, 400, 2):
            g = g0; used = 0; vhere = False; pos = []; ok = True
            for x in items:
                c = cost(x); ismem = x.kind in ('dsr', 'dsw', 'dma', 'vld', 'vst')
                while True:
                    if g >= g1: ok = False; break
                    room = L - base[g] - used
                    if ismem and (vhere or (self.mem[g] and L < 20)): fit = False
                    else: fit = c <= room or (c == 0) or (used == 0 and base[g] == 0)
                    if fit: break
                    g += 1; used = 0; vhere = False
                if not ok: break
                pos.append(g); used += c
                if not ismem: vhere = True
                else: vhere = True if False else vhere
            if ok: break
        assert ok
        for x, g in zip(items, pos):
            (self.mem if x.kind in ('dsr', 'dsw', 'dma', 'vld', 'vst') else self.v)[g].append(x)
        return pos
    def weave(self, mf, a=0, b=None):
        out = []
        b = self.n if b is None else b
        for i in range(a, b):
            if i < len(mf) and mf[i] is not None: out.append(mf[i])
            out += self.sc[i] + self.mem[i] + self.v[i]
        if b == self.n: out += self.sc[self.n]
        return out

def k_reads(tile):
    return [Ins(f'ds_read_b128 v[{KF + (kt * 4 + u) * 4}:{KF + (kt * 4 + u) * 4 + 3}], v{KADDR + u} offset:{(tile % 8) * 8192 + kt * 4096}', f'rK{tile}')
            for kt in range(2) for u in range(4)]
def v_reads(tile):
    return [Ins(f'ds_read_b64_tr_b16 v[{VF + T * 4 + s * 2}:{VF + T * 4 + s * 2 + 1}], v{VADDR + T} offset:{(tile % 8) * 8192 + s * 4096}', f'rV{tile}')
            for T in range(8) for s in range(2)]
def qk_mfmas(j):
    h = 1 if j in ((32, 33) if OPT['w1'] else (32,)) else 0
    p = j & 1; first = (j & 31) == 0
    out = []
    for kt in range(2):
        for u, qt in ([(u, qt) for qt in range(4) for u in range(4)] if OPT['cqk'] else [(u, qt) for u in range(4) for qt in range(4)]):
            if True:
                c = f'v{S(p, kt, qt)}' if u else ('0' if first else f'v{NEGM + qt * 4}')
                out.append(mfma(f'v{S(p, kt, qt)}', f'v{KF + (kt * 4 + u) * 4}', f'a{Q(h, qt, u)}', c))
    return out
def pv_mfmas(j):
    p = j & 1; first = (j & 31) == 0
    return [mfma(f'a{O(T, qt)}', f'v{VF + T * 4}', f'v{P(p, qt)}', '0' if first else f'a{O(T, qt)}') for T in range(8) for qt in range(4)]

def sum_mfma(j, qt):
    p = j & 1; first = (j & 31) == 0
    return mfma(f'v{Lr(p, qt)}', f'v{ONES}', f'v{P(p, qt)}', '0' if first else f'v{Lr(1 - p, qt)}')
E0 = 24
def softmax_stream(j):
    p = j & 1
    out = []
    for k in range(32):
        qt, kk = k >> 3, k & 7
        out.append((E0 + 2 * k, f'v_exp_f32 v{ETMP + k % NE}, v{S(p, kk >> 2, qt) + (kk & 3)}'))
        if k & 1: out.append((E0 + 2 * k + 3, f'v_cvt_pk_bf16_f32 v{P(p, qt) + (kk >> 1)}, v{ETMP + (k - 1) % NE}, v{ETMP + k % NE}'))
    out.sort(key=lambda z: z[0])
    return out
SUMPOS = {0: 46, 1: 63, 2: NG + 8, 3: NG + 25}
def sm_dense(j, lo, hi):
    it = softmax_stream(j) + [(SUMPOS[qt] - 0.5, sum_mfma(j, qt)) for qt in range(4)]
    it.sort(key=lambda z: z[0])
    return [x for pos, x in it if lo <= pos < hi]
def pvi(n): return 34 + n if n < 12 else (35 + n if n < 28 else 36 + n)
def step_mfmas(j):
    qk = qk_mfmas(j + 1) if j + 1 < 64 else [None] * 32
    pv = pv_mfmas(j)
    nxt = j + 1 < 64 and (j + 1) & 31
    own = j < 63
    return (qk[:8] + [sum_mfma(j, 2) if own else None] + qk[8:24] + [sum_mfma(j, 3) if own else None] + qk[24:] +
            pv[:12] + [sum_mfma(j + 1, 0) if nxt else None] + pv[12:28] + [sum_mfma(j + 1, 1) if nxt else None] + pv[28:])
def rowmax(p, qt, dst):
    s0 = S(p, 0, qt); s1 = S(p, 1, qt)
    return [f'v_max3_f32 v{dst}, v{s0}, v{s0 + 1}, v{s0 + 2}', f'v_max3_f32 v{dst}, v{dst}, v{s0 + 3}, v{s1}',
            f'v_max3_f32 v{dst}, v{dst}, v{s1 + 1}, v{s1 + 2}', f'v_max_f32 v{dst}, v{dst}, v{s1 + 3}']
def xlane(op, regs, tmps):
    out = []
    for sw in ('v_permlane16_swap_b32', 'v_permlane32_swap_b32'):
        out += [f'v_mov_b32 v{t}, v{r}' for r, t in zip(regs, tmps)]
        out += [f'{sw} v{t}, v{r}' for r, t in zip(regs, tmps)]
        out += [f'{op} v{r}, v{r}, v{t}' for r, t in zip(regs, tmps)]
    return out
def init_stream(j):
    p = j & 1
    m = [NEGM + qt * 4 for qt in range(4)]; t = [NEGM + qt * 4 + 1 for qt in range(4)]
    out = []
    rm = [rowmax(p, qt, m[qt]) for qt in range(4)]
    for k in range(4): out += [rm[qt][k] for qt in range(4)]
    out += xlane('v_max_f32', m, t)
    for qt in range(4):
        for k in range(8):
            s = S(p, k >> 2, qt) + (k & 3)
            out.append(f'v_sub_f32 v{s}, v{s}, v{m[qt]}')
    for qt in range(4):
        for r in (3, 2, 1, 0): out.append(f'v_sub_f32 v{NEGM + qt * 4 + r}, 0, v{m[qt]}')
    return out

def epilogue(packed, tb):
    rc = [LREG + 2 * i for i in range(4)]
    prep = [f'v_rcp_f32 v{rc[qt]}, v{Lr(1, qt)}' for qt in range(4)]
    units = []
    for k in range(16):
        u, qt = divmod(k, 4)
        b = tb + (k % 2) * 12
        rd = [f'v_accvgpr_read_b32 v{b + i}, a{O(2 * u + (i >> 2), qt) + (i & 3)}' for i in range(8)]
        if packed: mu = [f'v_pk_mul_f32 v[{b + 2 * i}:{b + 2 * i + 1}], v[{b + 2 * i}:{b + 2 * i + 1}], v[{rc[qt]}:{rc[qt] + 1}] op_sel_hi:[1,0]' for i in range(4)]
        else: mu = [f'v_mul_f32 v{b + i}, v{rc[qt]}, v{b + i}' for i in range(8)]
        cv = [f'v_cvt_pk_bf16_f32 v{b + 8 + i}, v{b + 2 * i}, v{b + 2 * i + 1}' for i in range(4)]
        st = [Ins(cl(f'buffer_store_dwordx4 v[{b + 8}:{b + 11}], v{VOFFO}, {srd(SO)}, s{sOo} offen offset:{qt * 1024} {OPT["ost"]}'), 'Ost')]
        if qt == 3: st.append(f's_add_u32 s{sOo}, s{sOo}, 4096')
        units.append((rd, mu, cv, st))
    return prep, units
def epi_flat(units):
    L = []; first = []; lastrd = []
    for k, (rd, mu, cv, st) in enumerate(units):
        first.append(len(L)); L += rd; lastrd.append(len(L) - 1)
        if k: L += units[k - 1][3]
        L += mu + cv
    L += units[-1][3]
    return L, first, lastrd

SPINS = []
def spin_check(name, load, cmp):
    SPINS.append(f"""L_spin_{name}:
s_mov_b32 s{sT0}, 0x40000
L_spin2_{name}:
s_sleep 1
{load}
s_sub_u32 s{sT0}, s{sT0}, 1
s_cbranch_scc1 L_back_{name}
s_waitcnt vmcnt(0)
{cmp}
s_nop 1
s_cbranch_vccnz L_spin2_{name}
s_branch L_back_{name}""")
    return [cmp, f's_cbranch_vccnz L_spin_{name}', f'L_back_{name}:']

def fallback(p):
    A = Prog()
    A(f'L_fb{p}:')
    A('s_nop 7\ns_nop 7')
    TB = P(1 - p, 0)
    m = [TB + i for i in range(4)]; t = [ETMP + i for i in range(4)]; f = [TB + 4 + i for i in range(4)]
    rm = [rowmax(p, qt, m[qt]) for qt in range(4)]
    for k in range(4): A.extend([rm[qt][k] for qt in range(4)])
    A.extend(xlane('v_max_f32', m, t))
    for qt in range(4): A(f'v_max_f32 v{m[qt]}, 0, v{m[qt]}')
    for qt in range(4): A(f'v_exp_f32 v{f[qt]}, -v{m[qt]}')
    for qt in range(4):
        for k in range(8):
            s = S(p, k >> 2, qt) + (k & 3)
            A(f'v_sub_f32 v{s}, v{s}, v{m[qt]}')
        for r in range(4): A(f'v_sub_f32 v{NEGM + qt * 4 + r}, v{NEGM + qt * 4 + r}, v{m[qt]}')
        A(f'v_mul_f32 v{Lr(1 - p, qt)}, v{Lr(1 - p, qt)}, v{f[qt]}')
    A(f's_cmp_lg_u32 s{sMODE}, 0')
    A(f's_cbranch_scc1 L_fb{p}_b')
    for qt in range(4):
        for k in range(8):
            s = S(1 - p, k >> 2, qt) + (k & 3)
            A(f'v_sub_f32 v{s}, v{s}, v{m[qt]}')
    A(f'L_fb{p}_b:')
    for T in range(8):
        for qt in range(4):
            b = TB + 8 + ((T * 4 + qt) % 2) * 4
            for r in range(4): A(f'v_accvgpr_read_b32 v{b + r}, a{O(T, qt) + r}')
            for r in range(4): A(f'v_mul_f32 v{b + r}, v{b + r}, v{f[qt]}')
            for r in range(4): A(f'v_accvgpr_write_b32 a{O(T, qt) + r}, v{b + r}')
    A.extend(sm_dense(2 + p, 0, 999))
    A('s_nop 7')
    A(f's_setpc_b64 s[{sRET}:{sRET + 1}]')
    A.fix_hazards()
    return A

def stamp(A, idx, base=64):
    if OPT['stamps'] and not OPT['qtl']: A(f's_memtime s[{base + idx * 2}:{base + idx * 2 + 1}]')
def store_stamps(A, n):
    A('s_memrealtime s[62:63]\ns_waitcnt lgkmcnt(0)')
    A('v_lshrrev_b32 v1, 6, v0\ns_lshl_b32 s50, s2, 2\nv_add_u32 v1, s50, v1\nv_lshlrev_b32 v1, 7, v1')
    A('v_and_b32 v2, 63, v0\nv_cmp_eq_u32 vcc, 0, v2\ns_and_saveexec_b64 s[50:51], vcc')
    for i in range(n):
        for k in range(4): A(f'v_mov_b32 v{4 + k}, s{60 + i * 4 + k}')
        A(f'buffer_store_dwordx4 v[4:7], v1, s[56:59], 0 offen offset:{i * 16}')
        A('s_nop 1')

def code_prefetch(A, start, end, va, vd, n, first=0, tag=''):
    A(f's_getpc_b64 s[50:51]')
    A(f'L_pc{tag}_{start}:')
    if start == KNAME: A(f's_sub_u32 s50, s50, L_pc{tag}_{start}-{start}\ns_subb_u32 s51, s51, 0')
    else: A(f's_add_u32 s50, s50, {start}-L_pc{tag}_{start}\ns_addc_u32 s51, s51, 0')
    A(f'v_lshlrev_b32 v{va}, 7, v0')
    if first: A(f'v_add_u32 v{va}, {first * 0x8000}, v{va}')
    for i in range(n):
        A(f'v_min_u32 v{va + 1}, {end}-{start}-4, v{va}')
        A(f'global_load_dword v{vd + i}, v{va + 1}, s[50:51]', tag='pf')
        if i + 1 < n: A(f'v_add_u32 v{va}, 0x8000, v{va}')

DEF_V = []; DEF_S = []
def setup(A):
    A('s_cmp_ge_u32 s2, 256\ns_cbranch_scc1 L_end')
    A(f"""s_bfe_u32 s48, s2, 0x10002
s_mul_i32 s50, s48, 40
s_add_u32 s52, s0, s50
s_addc_u32 s53, s1, 0
s_load_dwordx2 s[{SX}:{SX+1}], s[52:53], 0
s_load_dwordx2 s[{SW_}:{SW_+1}], s[52:53], 24
s_lshr_b32 s51, s2, 7
s_mul_i32 s51, s51, 40
s_add_u32 s54, s0, s51
s_addc_u32 s55, s1, 0
s_load_dwordx2 s[{SK}:{SK+1}], s[52:53], 8
s_load_dwordx2 s[{SV}:{SV+1}], s[52:53], 16
s_load_dwordx2 s[{SWS}:{SWS+1}], s[54:55], 32
s_load_dwordx2 s[{SO}:{SO+1}], s[0:1], 96
s_load_dwordx4 s[92:95], s[0:1], 80""")
    if OPT['stamps']: A('s_memrealtime s[60:61]')
    stamp(A, 0)
    if OPT['pf'] == '1': code_prefetch(A, KNAME, 'L_code_end', 100, 252, 1)
    elif OPT['pf'] == '2':
        A(f'''s_getpc_b64 s[50:51]
L_pcx:
s_sub_u32 s50, s50, L_pcx-{KNAME}
s_subb_u32 s51, s51, 0
s_lshr_b32 s48, s2, 3
s_cmp_ge_u32 s48, 3
s_cbranch_scc1 L_nopf
s_lshl_b32 s48, s48, 15
v_lshlrev_b32 v100, 7, v0
v_add_u32 v100, s48, v100
v_min_u32 v100, L_code_end-{KNAME}-4, v100''')
        A('global_load_dword v252, v100, s[50:51]', tag='pf')
        A('L_nopf:')
    A(f"""s_and_b32 s46, s2, 6
s_lshl_b32 s46, s46, 1
s_lshr_b32 s48, s2, 6
s_add_u32 s46, s46, s48
s_and_b32 s47, s2, 1
s_lshl_b32 s47, s47, 3
s_bfe_u32 s48, s2, 0x30003
s_add_u32 s47, s47, s48
s_and_b32 s49, s46, 7
v_lshrrev_b32 v1, 6, v0
v_and_b32 v2, 63, v0
v_readfirstlane_b32 s{sW}, v1
v_lshrrev_b32 v97, 4, v2
v_lshrrev_b32 v100, 3, v2
v_lshl_add_u32 v100, v1, 6, v100
v_mul_u32_u24 v100, 1152, v100
s_lshl_b32 s{sW4K}, s{sW}, 12
v_and_b32 v101, 7, v2
v_xor_b32 v101, v101, v97
v_lshl_add_u32 v{VOFFX}, v101, 4, v100
v_xor_b32 v101, 4, v101
v_lshl_add_u32 v102, v101, 4, v100
v_add_u32 v{VOFFX + 1}, {8 * 1152 - 1024}, v102
v_add_u32 v{VOFFX + 2}, {2 * (8 * 1152 - 1024)}, v{VOFFX}
v_add_u32 v{VOFFX + 3}, {3 * (8 * 1152 - 1024)}, v102
v_lshrrev_b32 v100, 5, v2
v_and_b32 v101, 31, v2
v_and_b32 v102, 1, v1
v_lshl_add_u32 v102, v102, 2, v100
v_lshl_add_u32 v103, v1, 3, v100
v_lshlrev_b32 v103, 13, v103
v_lshlrev_b32 v104, 1, v102
v_xor_b32 v104, v104, v101
v_lshl_add_u32 v{VOFFW}, v104, 4, v103
v_xor_b32 v104, 64, v{VOFFW}
v_add_u32 v{VOFFW + 1}, {16384 - 1024}, v104
v_add_u32 v{VOFFW + 2}, {2 * (16384 - 1024)}, v{VOFFW}
v_add_u32 v{VOFFW + 3}, {3 * (16384 - 1024)}, v104
s_mul_i32 s50, s49, 294912
s_lshl_b32 s51, s47, 9
s_mov_b32 s{SX+2}, 294912
s_mov_b32 s{SX+3}, 0x20000
s_sub_u32 s{SW_+2}, {576 * 8192}, s51
s_mov_b32 s{SW_+3}, 0x20000
s_waitcnt lgkmcnt(0)""")
    stamp(A, 1)
    A(f"""s_add_u32 s{SX}, s{SX}, s50
s_addc_u32 s{SX+1}, s{SX+1}, 0
s_add_u32 s{SW_}, s{SW_}, s51
s_addc_u32 s{SW_+1}, s{SW_+1}, 0""")
    A.extend(flat(dma_w(0)) + flat(dma_x(0)) + flat(dma_x(1)) + flat(dma_w(1)))
    A(f"""v_and_b32 v96, 15, v2
v_and_b32 v98, 3, v2
v_bfe_u32 v99, v2, 2, 2
v_lshl_add_u32 v100, v97, 3, v99
v_and_b32 v101, 1, v97
v_lshl_add_u32 v101, v101, 2, v99
v_lshlrev_b32 v101, 5, v101
v_lshl_add_u32 v101, v100, 9, v101
v_lshl_add_u32 v101, v98, 3, v101
v_add_u32 v{WADDR}, {BLK}, v101""")
    for T in range(1, 8): A(f'v_xor_b32 v{WADDR + T}, {T * 32}, v{WADDR}')
    A(f"""v_lshrrev_b32 v100, 1, v96
v_xor_b32 v100, v100, v97
v_lshlrev_b32 v100, 4, v100
v_lshl_add_u32 v100, v96, 7, v100
v_lshl_add_u32 v100, v1, 12, v100
v_add_u32 v{XADDR}, {2 * BLK}, v100
v_xor_b32 v{XADDR + 1}, 64, v{XADDR}
v_add_u32 v{XADDR + 2}, {4 * BLK}, v{XADDR}
v_add_u32 v{XADDR + 3}, {4 * BLK}, v{XADDR + 1}""")
    if OPT['su'] == '0':
        A.extend(flat(dma_x(2)) + flat(dma_w(2)) + flat(dma_w(3)))
        if OPT['pf'] == '1': code_prefetch(A, KNAME, 'L_code_end', 100, 253, 2, first=1, tag='b')
    KVS = f"""s_lshl_b32 s50, s49, 23
s_lshl_b32 s51, s47, 19
s_add_u32 s50, s50, s51
s_add_u32 s{SK}, s{SK}, s50|s_addc_u32 s{SK+1}, s{SK+1}, 0
s_mov_b32 s{SK+2}, 0x80000
s_mov_b32 s{SK+3}, 0x20000
s_add_u32 s{SV}, s{SV}, s50|s_addc_u32 s{SV+1}, s{SV+1}, 0
s_mov_b32 s{SV+2}, 0x80000
s_mov_b32 s{SV+3}, 0x20000"""
    ne = int(OPT['l2e'])
    if ne:
        A(KVS.replace('|', '\n')); KVS = ''
        A(f'v_lshlrev_b32 v100, 7, v2\nv_mul_u32_u24 v101, {ne * 1024}, v1\nv_add_u32 v100, v100, v101\nv_cmp_le_u32 vcc, {ne * 8}, v2\nv_cndmask_b32 v100, v100, -1, vcc')
        A(f's_mov_b32 s50, {8 * 8192}\ns_mov_b32 s51, {6 * 8192}')
        A(cl(f'buffer_load_dword a254, v100, {srd(SK)}, s50 offen {OPT["l2p"]}'), tag='l2')
        A(cl(f'buffer_load_dword a253, v100, {srd(SV)}, s51 offen {OPT["l2p"]}'), tag='l2')
    V = DEF_V; a, b, c, d, l15, g = 92, 93, 94, 95, 61, 62
    V += [f'v_add_u32 v{WADDR + 8 + T}, {6 * BLK}, v{WADDR + T}' for T in range(8)]
    V += f"""v_lshlrev_b32 v{VOFFO}, 4, v2
v_and_b32 v{l15}, 15, v2
v_lshrrev_b32 v{g}, 4, v2
v_lshlrev_b32 v{a}, 11, v1
v_lshl_add_u32 v{a}, v{g}, 8, v{a}
v_lshl_add_u32 v{b}, v1, 3, v{g}""".split('\n')
    for o in range(2):
        V += f"""v_add_u32 v{c}, {4 * o}, v{b}
v_and_b32 v{d}, 15, v{c}
v_xor_b32 v{d}, v{d}, v{l15}
v_lshl_add_u32 v{VOFFK + o}, v{d}, 4, v{a}
v_and_b32 v{d}, 7, v{c}
v_lshlrev_b32 v{d}, 1, v{d}
v_xor_b32 v{d}, v{d}, v{l15}
v_lshl_add_u32 v{VOFFV + o}, v{d}, 4, v{a}""".split('\n')
    V += [f'v_lshlrev_b32 v{a}, 12, v1', f'v_lshl_add_u32 v{a}, v{g}, 8, v{a}']
    for n in range(4):
        V += f"""v_add_u32 v{c}, {4 * n}, v{g}
v_xor_b32 v{d}, v{c}, v{l15}
v_lshl_add_u32 v{VSK + n}, v{d}, 4, v{a}
v_and_b32 v{d}, 7, v{c}
v_lshlrev_b32 v{d}, 1, v{d}
v_xor_b32 v{d}, v{d}, v{l15}
v_lshl_add_u32 v{VSV + n}, v{d}, 4, v{a}""".split('\n')
    V += [f'v_xor_b32 v{a}, v{g}, v{l15}', f'v_lshlrev_b32 v{a}, 4, v{a}', f'v_lshl_add_u32 v{KADDR}, v{l15}, 8, v{a}']
    V += [f'v_xor_b32 v{KADDR + u}, {u * 64}, v{KADDR}' for u in range(1, 4)]
    V += f"""v_lshrrev_b32 v{a}, 2, v2
v_and_b32 v{b}, 7, v{a}
v_lshlrev_b32 v{b}, 5, v{b}
v_lshl_add_u32 v{b}, v{a}, 8, v{b}
v_and_b32 v{c}, 3, v2
v_lshl_add_u32 v{b}, v{c}, 3, v{b}
v_add_u32 v{VADDR}, 0x10000, v{b}
v_mul_u32_u24 v{a}, 384, v{a}
v_lshl_add_u32 v{a}, v{c}, 3, v{a}
v_mul_u32_u24 v{b}, 96, v1
v_add_u32 v{JADDR}, v{a}, v{b}""".split('\n')
    V += [f'v_xor_b32 v{VADDR + T}, {T * 32}, v{VADDR}' for T in range(1, 8)]
    V += f"""v_bfe_u32 v{a}, v2, 2, 1
v_lshlrev_b32 v{a}, 1, v{a}
v_bfe_u32 v{b}, v2, 3, 1
v_mul_u32_u24 v{b}, 3, v{b}
v_xor_b32 v{a}, v{a}, v{b}
v_lshlrev_b32 v{c}, 6, v{l15}
v_lshl_add_u32 v{c}, v1, 12, v{c}
v_add_u32 v{c}, {6 * BLK}, v{c}
v_xor_b32 v{b}, v{a}, v{g}
v_lshl_add_u32 v{CR}, v{b}, 4, v{c}
v_lshrrev_b32 v{b}, 1, v{g}
v_xor_b32 v{b}, v{b}, v{a}
v_lshl_add_u32 v{c}, v{b}, 4, v{c}
v_and_b32 v{b}, 1, v{g}
v_lshl_add_u32 v{CW0}, v{b}, 3, v{c}""".split('\n')
    for n in range(3):
        t = VOFFJ + n
        V += f"""v_add_u32 v{d}, {64 * n}, v2
v_mul_u32_u24 v{t}, 2731, v{d}
v_lshrrev_b32 v{t}, 16, v{t}
v_mul_u32_u24 v{CW1}, 24, v{t}
v_sub_u32 v{d}, v{d}, v{CW1}
v_lshl_add_u32 v{t}, v1, 3, v{t}
v_mul_u32_u24 v{t}, 1152, v{t}
v_lshl_add_u32 v{t}, v{d}, 4, v{t}
v_subrev_u32 v{t}, {n * 1024}, v{t}""".split('\n')
    V += [f'v_xor_b32 v{CW1}, 32, v{CW0}']
    S_ = f"""s_and_b32 s50, s2, 127
s_mul_i32 s50, s50, 36864
s_add_u32 s{SWS}, s{SWS}, s50|s_addc_u32 s{SWS+1}, s{SWS+1}, 0
s_mov_b32 s{SWS+2}, 36864
s_mov_b32 s{SWS+3}, 0x20000
s_lshl_b32 s{sW2K}, s{sW}, 11
{KVS}
s_mov_b32 s{sWS}, s{SO}
s_mov_b32 s{sWS+1}, s{SO+1}
s_mov_b32 s{sOUT}, s92
s_mov_b32 s{sOUT+1}, s93
s_lshr_b32 s50, s2, 7
s_lshl_b32 s50, s50, 9
s_and_b32 s51, s2, 64
s_add_u32 s50, s50, s51
s_bfe_u32 s51, s2, 0x10002
s_lshl_b32 s51, s51, 5
s_add_u32 s50, s50, s51
s_bfe_u32 s51, s2, 0x30003
s_lshl_b32 s51, s51, 2
s_add_u32 s50, s50, s51
s_and_b32 s51, s2, 3
s_add_u32 s50, s50, s51
s_mul_i32 s50, s50, 9216
s_add_u32 s50, s50, {WS_WO}
s_add_u32 s{SWD}, s{SO}, s50|s_addc_u32 s{SWD+1}, s{SO+1}, 0
s_mov_b32 s{SWD+2}, {3 * 128 * 9216 + 9216}
s_mov_b32 s{SWD+3}, 0x20000
s_lshl_b32 s50, s2, 7
s_lshl_b32 s51, s{sW}, 2
s_add_u32 s50, s50, s51
s_add_u32 s50, s50, {WS_FL}
s_add_u32 s{SFL}, s{SO}, s50|s_addc_u32 s{SFL+1}, s{SO+1}, 0
s_mov_b32 s{SFL+2}, 68
s_mov_b32 s{SFL+3}, 0x20000""".split('\n')
    if OPT['stamps']:
        S_ += [f's_add_u32 s56, s{SO}, {WS_STAMP}|s_addc_u32 s57, s{SO+1}, 0', 's_mov_b32 s58, 0x100000', 's_mov_b32 s59, 0x20000']
    S_ += f"""s_lshl_b32 s50, s46, 2
s_add_u32 s50, s50, s{sW}
s_lshl_b32 s50, s50, 19
s_lshl_b32 s51, s47, 15
s_add_u32 s50, s50, s51
s_add_u32 s{SO}, s{SO}, s50|s_addc_u32 s{SO+1}, s{SO+1}, 0
s_mov_b32 s{SO+2}, 32768
s_mov_b32 s{SO+3}, 0x20000
s_mov_b32 s{sSC}, {f2i(SCALE):#x}
s_mov_b32 s{sTHR}, {f2i(2.0 ** 24):#x}
s_mov_b32 s{sOo}, 0
s_mov_b32 s{sDBG}, s94
s_mov_b32 s{sDBG+1}, s95
s_mov_b32 s{sKo}, {8 * 8192}
s_mov_b32 s{sVo}, {6 * 8192}
s_mov_b32 s{sCnt}, 3
s_mov_b32 s{sHead}, 0""".split('\n')
    DEF_S.extend(x for x in S_ if x)

def x_reads(pc):
    c = pc >> 1; blk = xblock(pc)
    return [Ins(f'ds_read_b128 v[{XF(2 * c + ks, 2 * (pc & 1) + qq)}:{XF(2 * c + ks, 2 * (pc & 1) + qq) + 3}], v{XADDR + ks + (2 if blk == 6 else 0)} offset:{(0 if blk == 6 else (blk - 2) * BLK) + qq * 2048}', f'rX{pc}')
            for ks in range(2) for qq in range(2)]
def w_read(t, h, T, dst):
    blk = wblock(t)
    ad = WADDR + T if blk <= 4 else WADDR + 8 + T
    off = (blk - 1 if blk <= 4 else blk - 7) * BLK + h * 256
    d = int(dst[1:])
    return [Ins(f'ds_read_b64_tr_b16 {dst[0]}[{d + 2 * s}:{d + 2 * s + 1}], v{ad} offset:{off + s * 2048}', f'rW{t}') for s in range(2)]
def w_reads(t):
    out = []
    for f in range(16): out += w_read(t, f >> 3, f & 7, f'a{WF((16 * t + f) % NWS)}')
    return out
UH = ['a160', 'a192', 'a160', 'a192', 'a0', 'a32', 'a0', 'a32']
def uw(n, k, tt): return f'{UH[n][0]}{int(UH[n][1:]) + (k * 2 + tt) * 4}'
def unit_order(n):
    if not OPT['cqb']: return [(k, tt) for k in range(4) for tt in range(2)]
    if n == 0: return [(0, 0), (1, 0), (0, 1), (1, 1), (2, 0), (3, 0), (2, 1), (3, 1)]
    return [(k, tt) for tt in range(2) for k in range(4)]
def unit_mf(n):
    if not OPT['cqb']: return [(k, tt, qt) for k in range(4) for tt in range(2) for qt in range(4)]
    if n == 0: return [(2 * hf + k, tt, qt) for hf in range(2) for tt in range(2) for qt in range(4) for k in range(2)]
    return [(k, tt, qt) for tt in range(2) for qt in range(4) for k in range(4)]
def unit_reads(n):
    h, u = n >> 2, n & 3
    out = []
    for k, tt in unit_order(n): out += w_read(14 + k, h, 2 * u + tt, uw(n, k, tt))
    return out
def conv(n):
    h, u = n >> 2, n & 3
    V = []; D = []
    tiles = []
    for tt in range(2):
        for qt in range(4):
            acc = QACC(h, 2 * u + tt, qt)
            if h == 1: b = int(acc[1:]); rd = []
            else:
                b = 84 + ((n * 8 + tt * 4 + qt) % 3) * 4
                rd = [f'v_accvgpr_read_b32 v{b + r}, a{int(acc[1:]) + r}' for r in range(4)]
            mu = [f'v_mul_f32 v{b + r}, s{sSC}, v{b + r}' for r in range(4)]
            cv = [f'v_cvt_pk_bf16_f32 v{b}, v{b}, v{b + 1}', f'v_cvt_pk_bf16_f32 v{b + 1}, v{b + 2}, v{b + 3}']
            V += [Ins(x) for x in rd + mu + cv]
            D.append((len(V) - 1, Ins(f'ds_write_b64 v{CW1 if tt else CW0}, v[{b}:{b + 1}] offset:{qt * 1024}')))
    D += [(len(V) - 1, Ins(f'ds_read_b128 a[{Q(h, qt, u)}:{Q(h, qt, u) + 3}], v{CR} offset:{qt * 1024}', f'rQ{n}')) for qt in range(4)]
    seq = []
    for i, x in enumerate(V):
        seq.append(x); seq += [d for k, d in D if k == i]
    return V, D, seq

def q_phase(A):
    stamp(A, 2)
    A('WAITVM X0+X1+W0+W1\ns_barrier')
    stamp(A, 3)
    if OPT['su'] == '0': A.extend(x_reads(0) + x_reads(1) + w_reads(0))
    else:
        rd = x_reads(0) + x_reads(1) + w_reads(0)
        dj = dma_x(2) + dma_w(2) + dma_w(3)
        for i in range(12):
            A.extend(flat([dj[i]])); A.extend(rd[i * 40 // 12:(i + 1) * 40 // 12])
    def JR(i): return f'a{224 + 4 * i}' if i < 8 else 'v92'
    def jstore(i):
        r, n = divmod(i, 3)
        pre = [f's_add_u32 s{sT0}, s{sW}, {4 * r}', f's_mul_i32 s49, s{sT0}, 43', f's_lshr_b32 s49, s49, 7',
               f's_mul_i32 s49, s49, {128 * 9216 - 9216}', f's_mul_i32 s{sT0}, s{sT0}, 3072', f's_add_u32 s{sJ}, s{sT0}, s49'] if n == 0 else []
        return [(pre, Ins(cl(f'buffer_store_dwordx4 {rng(JR(i), 4)}, v{VOFFO}, {srd(SWD)}, s{sJ} offen offset:{n * 1024} {OPT["st"]}'), 'Jst'), [])]
    for t in range(14):
        mf = []
        for f in range(16):
            for qt in range(4):
                acc = QACC(f >> 3, f & 7, qt)
                mf.append(mfma(acc, f'a{WF((16 * t + f) % NWS)}', f'v{XF(t, qt)}', acc if t else '0'))
        G = Gaps(64)
        groups = []
        J4 = OPT['jo'] == '4'
        if t in ((2, 5, 9) if J4 else (3, 7, 11)):
            r = t // 4
            groups += [[([f's_mov_b32 s{sWe}, {r * 384}', f's_mul_i32 m0, s{sW}, 3072'] if n == 0 else [],
                         Ins(f'buffer_load_dwordx4 v{VOFFJ + n}, {srd(SWS)}, s{sWe} offen offset:{n * 1024} nt lds', f'J{r}'), []) for n in range(3)]]
        if t == 0: groups += [dma_x(3), dma_x(4), dma_w(4)]
        if t == 1: groups += [dma_w(5)]
        if 1 <= t <= 12: groups += [dma_w(t + 5)]
        if t + 5 < 18: groups += [dma_x(t + 5)]
        if t == 13 and not J4: groups += [dma_vv(0), dma_kk(1)]
        ngr = len(groups)
        gl = {4: [[5, 8, 11, 14], [18, 22, 26, 30], [34, 38, 42, 46], [51, 54, 57, 60]],
              3: [[2, 7, 12, 17], [24, 29, 34, 39], [46, 51, 56, 60]],
              2: [[2, 10, 18, 26], [34, 42, 50, 58]], 1: [[18, 30, 42, 54]], 0: []}[ngr]
        if J4 and t == 12: gl = [[2, 6, 10, 14], [20, 24, 28, 32]]
        dg = [g for gr, pos in zip(groups, gl) for g in pos[:len(gr)]]
        if J4 and t in (12, 13):
            for i, g in {12: [(0, 44), (1, 52), (2, 60)], 13: [(3, 8), (4, 16), (5, 24), (6, 34), (7, 44), (8, 54)]}[t]:
                G.place_dma(jstore(i), [g]); dg.append(g)
            if t == 13:
                G.v[57].append(f'v_mov_b32 v{VPA}, 0'); dg.append(59)
                G.mem[59].append(Ins(cl(f'buffer_store_dword v{VPA}, v{VOFFO}, {srd(SFL)}, 0 offen {OPT["st"]}'), 'Fz'))
        L2 = [int(x) for x in OPT['l2'].split('.')] if OPT['l2'] else []
        for i in [i for i, x in enumerate(L2) if x == t]:
            if i == 0:
                G.v[4] += ['v_lshlrev_b32 v95, 7, v2', 'v_lshl_add_u32 v95, v1, 11, v95']
                G.v[5] += [f'v_lshrrev_b32 v{VOFFO}, 4, v2', f'v_lshl_add_u32 v95, v{VOFFO}, 24, v95']
                G.v[6] += [f'v_lshlrev_b32 v{VOFFO}, 4, v2']
            sr, base = (SK, 8) if i % 2 == 0 else (SV, 6)
            g = 14 if (i + 1 < len(L2) and L2[i + 1] == t) else 46
            while g in dg or G.sc[g - 1]: g += 1
            G.sc[g - 1].append(f's_mov_b32 s{sT0}, {(base + int(OPT["l2e"]) // 2 + i // 2) * 8192}')
            x = Ins(cl(f'buffer_load_dword a255, v95, {srd(sr)}, s{sT0} offen {OPT["l2p"]}'), 'l2'); x.wr = set() if i + 1 < len(L2) else x.wr
            G.mem[g].append(x); dg.append(g)
        free = [g for g in range(64) if g not in dg]
        G.sc[0].append(f'WAITVM X{t + 2}')
        rds = x_reads(t + 2)
        if t + 5 < 18:
            xi = [i for i, gr in enumerate(groups) if gr[0][1].tag == f'X{t + 5}'][0]
            G.sc[gl[xi][0] - 3].append(f'WAITLG rX{t + 2}')
        if t in ((3, 7, 11) if J4 else (5, 9, 13)):
            for n in range(3):
                d = JR((t // 4 - (0 if J4 else 1)) * 3 + n)
                rds += [Ins(f'ds_read_b64_tr_b16 {d[0]}[{int(d[1:]) + 2 * sx}:{int(d[1:]) + 2 * sx + 1}], v{JADDR} offset:{n * 32 + sx * 16 * 384}') for sx in range(2)]
        if t == 0: G.sc[2].append('WAITLG rX1')
        rds += w_reads(t + 1) if t < 13 else unit_reads(0)[:8]
        for r, g in zip(rds, free): G.mem[g].append(r)
        for gr, g in zip(groups, gl): G.place_dma(gr, g)
        if t % 2 == 0 or t == 13:
            c = t // 2 + 1
            tags = f'W{2 * c}+W{2 * c + 1}' if t != 13 else 'W16+W17+X16+X17'
            if t in ((2, 6, 10) if J4 else (4, 8, 12)): tags += f'+J{t // 4 - (0 if J4 else 1)}'
            G.sc[62] += [f'WAITVM {tags} lg0', 's_barrier']
        if t == 0 and OPT['su'] != '0':
            P_ = Prog(); code_prefetch(P_, KNAME, 'L_code_end', 8, 252, 2, first=1, tag='b')
            G.v[63] += [Ins(x.text.replace('global_load_dword v', 'global_load_dword a'), x.tag) for x in P_.L]
        if t < 3:
            n0, n1 = ([0, 62, len(DEF_V), len(DEF_V)] if J4 else [0, 40, 95, len(DEF_V)])[t:t + 2]
            for i, x in enumerate(DEF_V[n0:n1]): G.v[(i * 62) // (n1 - n0)].append(x)
        if t in (1, 2, 4, 6) and DEF_S:
            for g in range(41, 62):
                if DEF_S and not G.sc[g]: G.sc[g] += DEF_S.pop(0).split('|')
            if t == 6:
                for g in range(4, 40):
                    pass
        if t in (8, 10) and DEF_S:
            for g in range(41, 62):
                if DEF_S and not G.sc[g]: G.sc[g] += DEF_S.pop(0).split('|')
        if t == 11: assert not DEF_S, len(DEF_S)
        if OPT['qtl']:
            G.v[3].append('s_memtime s[98:99]'); G.v[40].append(f's_mov_b32 s{64 + t}, s98')
        A.extend(G.weave(mf))
    stamp(A, 4)
    gsu = f"""s_and_b32 s50, s2, 6
s_lshl_b32 s50, s50, 3
s_lshr_b32 s51, s2, 5
s_lshl_b32 s51, s51, 1
s_add_u32 s50, s50, s51
s_lshr_b32 s51, s{sW}, 1
s_add_u32 s50, s50, s51
s_lshl_b32 s50, s50, 19
s_and_b32 s51, s2, 1
s_lshl_b32 s51, s51, 18
s_add_u32 s50, s50, s51
s_and_b32 s51, s{sW}, 1
s_lshl_b32 s51, s51, 11
s_add_u32 s50, s50, s51
s_add_u32 s{SGO}, s{sWS}, s50|s_addc_u32 s{SGO+1}, s{sWS+1}, 0
s_mov_b32 s{SGO+2}, {262144 - 2048}
s_and_b32 s50, s2, 4
s_bfe_u32 s51, s2, 0x20003
s_add_u32 s50, s50, s51
s_lshl_b32 s50, s50, 1
s_and_b32 s51, s2, 1
s_add_u32 s50, s50, s51
s_mul_i32 s50, s50, {64 * 9216}
s_add_u32 s50, s50, {WS_WO}
s_add_u32 s{SGW}, s{sWS}, s50|s_addc_u32 s{SGW+1}, s{sWS+1}, 0
s_mov_b32 s{SGW+2}, {64 * 9216}""".split('\n')
    NG = 288
    G = Gaps(NG + 8)
    mf = []; ref = []
    UR = [unit_reads(n) for n in range(8)]
    XR = x_reads(16) + x_reads(17)
    K0 = k_reads(0); K1 = k_reads(1)
    CV_ = [conv(n) for n in range(8)]
    ref += XR
    for n in range(8):
        h, u = n >> 2, n & 3
        m = [Ins(mfma(QACC(h, 2 * u + tt, qt), uw(n, k, tt), f'v{XF(14 + k, qt)}', QACC(h, 2 * u + tt, qt))) for k, tt, qt in unit_mf(n)]
        mf += m
        ref += (UR[n][8:] if n == 0 else UR[n]) + m + CV_[n][2]
    m = [Ins(x) for x in qk_mfmas(0)]
    mf += m; ref += K0 + m + K1
    if OPT['jo'] == '4':
        k0 = int(OPT['kv0'])
        for i, jobs in enumerate([dma_kk(0), dma_vv(0), dma_kk(1), dma_vv(1), dma_kk(2)]):
            st_ = (215 - k0) // 20
            G.place_dma(jobs, [k0 + st_ * (4 * i + x) for x in range(4)])
        kv = {1: k0 + st_ * 12}
    else:
        JS = [jstore(i) for i in range(9)]
        ref = [x[0][1] for x in JS] + ref
        order = [6, 8, 7, 0, 1, 2, 3, 4, 5]
        jp = [17, 24, 48, 76, 100, 124, 152, 176, 200]; fz = 220; kv = {0: 36, 1: 104, 2: 164}
        for i, g in zip(order, jp): G.place_dma(JS[i], [g])
        G.v[fz - 2].append(f'v_mov_b32 v{VPA}, 0')
        G.mem[fz].append(Ins(cl(f'buffer_store_dword v{VPA}, v{VOFFO}, {srd(SFL)}, 0 offen {OPT["st"]}'), 'Fz'))
        for i, jobs in enumerate([dma_kk(0), dma_vv(1), dma_kk(2)]):
            G.place_dma(jobs, [kv[i] + 14 * x for x in range(4)])
    G.place_dma(dma_kk(3), [250, 258, 266, 274])
    G.sc[kv[1] - 3].append('WAITLG rX16')
    gi = 260
    for x in gsu:
        while G.sc[gi]: gi += 1
        G.sc[gi] += x.split('|')
    BAR = 32 * 7 + 9
    G.sc[BAR] += ['WAITVM KK0 lg0', 's_barrier']
    def put(ins, g, lim=None):
        while G.mem[g] or (BAR - 5 <= g < BAR): g += 1
        assert lim is None or g <= lim, (ins.text, g, lim)
        G.mem[g].append(ins); return g
    cur = 0
    for n in range(8):
        V, D, _ = CV_[n]
        g0 = 32 * (n + 1) + 1; span = 30
        vp = [g0 + (i * span) // len(V) for i in range(len(V))]
        for x, g in zip(V, vp): G.v[g].append(x)
        for i, d in D: cur = put(d, max(cur, vp[i] + 1))
    g = 0
    for r in ((XR[:4] + UR[0][8:12] + XR[4:] + UR[0][12:]) if OPT['cqb'] else (XR[:2] + XR[4:6] + UR[0][8:12] + XR[2:4] + XR[6:] + UR[0][12:])): g = put(r, g)
    for n in range(1, 8):
        for i, r in enumerate(UR[n]):
            g = put(r, max(g, 32 * (n - 1) + (i * 3) // 2), lim=min((32 * n + 16 * (i // 8) - 5 + (i % 8) // 2) if OPT['cqb'] else 32 * n + 2 * i - 5, BAR - 6))
    g = BAR
    for i, r in enumerate(K0): g = put(r, max(g, BAR + 2 * i), lim=(256 + 16 * (i // 4) - 5 + i % 4) if OPT['cqk'] else 256 + 4 * i - 6)
    for i, r in enumerate(K1): g = put(r, max(g, (256 + 16 * (i // 4) + 13 + i % 4) if OPT['cqk'] else 256 + 4 * i + 4))
    if OPT['stamps'] and not OPT['qtl']: G.sc[257].append('s_memtime s[74:75]')
    if OPT['qtl']:
        for n in range(9): G.v[32 * n + 3].append('s_memtime s[98:99]'); G.v[32 * n + 25].append(f's_mov_b32 s{78 + n}, s98')
    out = [I(x) for x in G.weave(mf)]
    check_order(ref, out, 'QB')
    A.extend(out)
    ini = init_stream(0)
    A.extend(ini[:40])
    A('WAITLG rQ7')
    vv = flat(dma_vv(2))
    for i in range(4): A.extend(vv[-4 + i:][:1] if i else vv[:3]); A.extend(ini[40 + 12 * i:52 + 12 * i])

def seg_name(j):
    if j == 0 or (j == 32 and not OPT['w1']): return 's0'
    if j == 32: return 's32'
    if j == 31: return 'sp31'
    if j == 63: return 'fin31'
    if j >= 56: return f'p{j}'
    return f'r{j % 8}'

def gen():
    A = Prog()
    setup(A)
    q_phase(A)
    A(f'v_and_b32 v{ONES}, 3, v2\nv_cmp_eq_u32 vcc, 0, v{ONES}\nv_mov_b32 v{ONES + 1}, 0x3f803f80\nv_cndmask_b32 v{ONES}, 0, v{ONES + 1}, vcc')
    A.extend([f'v_mov_b32 v{ONES + i}, v{ONES}' for i in range(1, 4)])
    A.extend(sm_dense(0, 0, NG))
    stamp(A, 6)
    if OPT['tl']: A('s_mov_b32 s97, 0')
    def tagsof(which, t):
        if which == 'V' and t < 6: return f'VV{t // 2}'
        if which == 'K' and t < 8: return f'KK{t // 2}'
        return f'{which}{t}'
    GA = [4, 5, 6]
    def WB(c, n, u): return 128 + ((9 * c + n) % 4) * 16 + u * 4
    def GACC(n, mm): i = n * 2 + mm; return 64 + i * 4 if i < 16 else 200 + (i - 16) * 4
    def OB(s, mm): return 128 + ((s + 8) % 16) * 8 + mm * 4
    def g_wreads(c, n):
        out = []
        for u in range(4):
            ad = (c % 4) * 36864 + u * 9216 + n * 1024
            out.append(Ins(f'ds_read_b128 v[{WB(c, n, u)}:{WB(c, n, u) + 3}], v{GA[ad >> 16]} offset:{ad & 0xffff}', f'rG{c}'))
        return out
    def g_oloads(s):
        gen_, i, u = s >> 5, (s >> 2) & 7, s & 3
        off, sr = ((2 * i + gen_) * 16384 + u * 4096, SGO) if s < 64 else (i * 32768 + u * 4096, SG2O)
        return [([f's_mov_b32 s{sWe}, {off}'] if mm == 0 else [],
                 Ins(cl(f'buffer_load_dwordx4 a[{OB(s, mm)}:{OB(s, mm) + 3}], v{VOFFO}, {srd(sr)}, s{sWe} offen offset:{mm * 1024} {OPT["g_o"]}'), f'GO{s}'), []) for mm in range(2)]
    def g_w8(a, tag):
        return [([f's_mov_b32 s{sKo}, {a}', f's_add_u32 m0, s{sW2K}, {a}'] if o == 0 else [],
                 Ins(cl(f'buffer_load_dwordx4 v{VOFFK}, {srd(SGW)}, s{sKo} offen offset:{o * 1024} {OPT["g_w"]} lds'), tag), []) for o in range(2)]
    def g_wchunk(c):
        out = []
        for n in range(9):
            pre = [f's_add_u32 s{sKo}, s{sXo}, {(c % 16) * 36864 + (n // 4) * 4096}', f's_add_u32 m0, s{sXo}, {(c % 4) * 36864 + (n // 4) * 4096}'] if n % 4 == 0 else []
            out.append((pre, Ins(cl(f'buffer_load_dwordx4 v{VOFFO}, {srd(SGW if c < 16 else SG2W)}, s{sKo} offen offset:{(n % 4) * 1024} {OPT["g_w"]} lds'), f'GW{c}'), []))
        return out
    poll1 = f'buffer_load_dword v{VPOLL}, v{VPA}, {srd(SFP)}, 0 offen sc1'
    poll2 = f'buffer_load_dword v{VPOLL}, v{VPA}, {srd(SFP)}, 0 offen offset:16 sc1'
    pollc = f'buffer_load_dword v{VPOLL}, v{VPA}, {srd(SWS)}, 0 offen sc1'
    polld = f'buffer_load_dword v{VPOLL}, v{VPP}, {srd(SFP)}, 0 offen offset:64 sc1'
    ne1 = f'v_cmp_ne_u32 vcc, 1, v{VPOLL}'
    qcopy = [f'v_accvgpr_mov_b32 a{128 + i}, a{192 + i}' for i in range(64)]

    POST = []
    def fill(G, j):
        jj = j & 31; nm = seg_name(j); p = j & 1
        if j % 2 == 0:
            tags = [tagsof('V', j), tagsof('V', j + 1), tagsof('K', j + 2), tagsof('K', j + 3)] + (['Jst', 'Fz'] if j == 6 else [])
            G.sc[0] += [f'WAITVM {"+".join(tags)} lg0', 's_barrier']
        if j < 63:
            for pos, x in softmax_stream(j):
                if pos >= NG: G.v[pos - NG].append(x)
            if (j + 1) & 31:
                for pos, x in softmax_stream(j + 1):
                    if pos < NG: G.v[pos].append(x)
        if jj != 0:
            G.v[20].append(f'v_max3_f32 v{CT}, v{Lr(p, 0)}, v{Lr(p, 1)}, v{Lr(p, 2)}')
            G.v[29].append(f'v_max_f32 v{CT}, v{CT}, v{Lr(p, 3)}')
            G.v[31].append(f'v_cmp_lt_f32 vcc, s{sTHR}, v{CT}')
            G.sc[32] += [f's_cbranch_vccnz L_st_{nm}', f'L_bk_{nm}:']
        if j < 63:
            for r, g in zip(v_reads(j), [1, 3, 5, 7, 9, 13, 15, 17, 19, 21, 22, 23, 25, 33, 35, 37]): G.mem[g].append(r)
            if j + 2 < 64:
                for r, g in zip(k_reads(j + 2), [39, 41, 45, 47, 49, 51, 53, 55]): G.mem[g].append(r)
            if j < 56: G.place_dma(dma_kv('K', j + 8) + dma_kv('V', j + 6), [11, 27, 43, 59])
            else:
                W8 = lambda i: g_w8(i * 8192, f'P{i}')
                jobs = {56: dma_kv('V', 62) + W8(0) + W8(16) + g_oloads(0), 57: dma_kv('V', 63) + W8(1) + W8(17) + g_oloads(1),
                        58: W8(2) + g_oloads(2) + W8(8) + g_oloads(3), 59: W8(3) + g_oloads(4) + W8(9) + g_oloads(5),
                        60: W8(4) + g_oloads(6) + W8(10) + g_oloads(7), 61: W8(5) + W8(11),
                        62: W8(6) + W8(7) + W8(12) + W8(13) + g_oloads(8) + g_oloads(9)}[j]
                pos = {8: [4, 11, 20, 27, 43, 57, 63, 67], 4: [11, 27, 43, 59], 12: [4, 11, 20, 27, 39, 43, 47, 51, 55, 59, 63, 67]}[len(jobs)]
                G.place_dma(jobs, pos)
                G.v[3].append(f'v_mov_b32 v{VPG}, {j - 55}')
                G.mem[31].append(Ins(cl(f'buffer_store_dword v{VPG}, v{VL4}, {srd(SFL)}, 0 offen offset:48 {OPT["st"]}'), 'PG'))
                if j == 61:
                    G.v[35] += [f'v_mad_u32_u24 v{VPR}, v{VPR}, {OPT["bm"]}, {OPT["ba"]}']
                    G.v[39] += [f'v_lshrrev_b32 v{VPR}, 3, v{VPR}']
                    G.v[47] += [f'v_min_u32 v{VPR}, {OPT["bmax"]}, v{VPR}']
                    G.v[51] += [f'v_add_u32 v{VPG}, 1, v{VPR}']
                    G.v[55] += [f'v_lshlrev_b32 v{VPOLL}, 2, v1']
                    G.v[57] += [f'v_add_u32 v{VPOLL}, {160 * 1024 - 16}, v{VPOLL}']
                    G.mem[63].append(Ins(cl(f'buffer_store_dword v{VPG}, v{VL4}, {srd(SFL)}, 0 offen offset:64 {OPT["st"]}'), 'DG'))
                    G.mem[61].append(Ins(f'ds_write_b32 v{VPOLL}, v{VPR}'))
            if j == 31:
                G.pack(qcopy, 1, 31)
                NB = int(OPT['nb'])
                prep, un = epilogue(False, 160); _, up = epilogue(True, 160)
                other = init_stream(32) + sm_dense(32, 0, NG)
                units = un[:NB] + up[NB:]
                seq = []; cut = None
                for k in range(16):
                    if k == NB: cut = len(seq)
                    seq += units[k][0]
                    if k: seq += units[k - 1][3]
                    seq += units[k][1] + units[k][2]
                    if k >= NB: seq += other[16 + (k - NB) * (len(other) - 16) // (16 - NB):16 + (k - NB + 1) * (len(other) - 16) // (16 - NB)]
                seq += units[15][3]
                G.pack(prep, 32, 36)
                G.pack(other[:16], 36, 42)
                pos = G.pack(seq[:cut], 42, NG)
                for x, g in zip(seq[:cut], pos):
                    x = I(x)
                    if x.mn == 'v_accvgpr_read_b32':
                        a = [r for r in x.rd if r[0] == 'a'][0][1]
                        assert g >= pvi(a // 4) + 2, (x.text, g)
                POST.extend(seq[cut:])
        if nm == 'r6': G.sc[66].append(f's_sub_u32 s{sCnt}, s{sCnt}, 1')
        if nm == 'r7': G.sc[66].append(f's_cmp_lt_u32 s{sKo}, 0x50000')

    j = 0
    while j < 64:
        nm = seg_name(j)
        A(f'.mark {nm}')
        G = Gaps(NG)
        fill(G, j)
        if j == 63:
            P0 = v_reads(j)
            dn = sm_dense(63, NG, 999)
            ol = flat(g_oloads(10) + g_oloads(11) + g_oloads(12))
            k = 0
            for i, x in enumerate(dn):
                P0.append(x)
                tgt = len(ol) * (i + 1) // len(dn)
                while k < tgt: P0.append(ol[k]); k += 1
            G.v[0] += P0
            G.v[18] += [f'v_mov_b32 v{GA[0]}, v{VOFFO}', f'v_add_u32 v{GA[1]}, 0x10000, v{VOFFO}', f'v_add_u32 v{GA[2]}, 0x20000, v{VOFFO}', f's_mul_i32 s{sXo}, s{sW}, 9216']
            G.sc[34] += ['WAITVM P4 lg0', 's_barrier']
            for r, g in zip(g_wreads(0, 0) + g_wreads(0, 1) + g_wreads(0, 2), [35, 38, 41, 43, 47, 50, 52, 55, 58, 60, 64, 66]): G.mem[g].append(r)
            G.v[18] += [f'v_mov_b32 v{VPG}, {160 * 1024 - 16}']
            G.mem[36].append(Ins(f'ds_read_b32 v{VPR}, v{VPG}'))
            G.place_dma(g_w8(14 * 8192, 'P14') + g_w8(15 * 8192, 'P15') + g_oloads(13) + g_oloads(14), [37, 40, 45, 49, 54, 57, 61, 65])
            prep2, units2 = epilogue(int(OPT['epg']) == 0, EP + 8)
            epi, _, _ = epi_flat(units2)
            G.pack(prep2, 34, 40)
            ne = 0
            if int(OPT['epg']):
                ne = 49
                G.pack(epi[:ne], 42, NG)
            epi = epi[ne:]
        A.extend(G.weave(step_mfmas(j)))
        def atomic():
            A('WAITVM Jst+Fz')
            A(f's_mov_b32 s{SWS}, s{sDBG}\ns_mov_b32 s{SWS + 1}, s{sDBG + 1}\ns_mov_b32 s{SWS + 2}, 4\nv_mov_b32 v{VFLAG}, 1\nv_lshlrev_b32 v{VPA}, 2, v0\nv_lshlrev_b32 v{VL4}, 7, v2')
            A(f'buffer_atomic_add v{VFLAG}, v{VPA}, {srd(SWS)}, 0 offen sc1', tag='Cwo')
        if j == 7:
            A('.mark b7')
            if OPT['atom'] == '0': atomic()
        if j == 39:
            A('.mark b39')
            A('WAITVM Ost')
            A(cl(f'buffer_store_dword v{VFLAG}, v{VL4}, {srd(SFL)}, 0 offen {OPT["st"]}'), tag='F1')
            if OPT['atom'] == '1': A(pollc, tag='Pc')
        if j == 47:
            A('.mark b47')
            A(f's_movk_i32 s{sMODE}, 256')
            A.extend(spin_check('c', pollc, f'v_cmp_gt_u32 vcc, s{sMODE}, v{VPOLL}'))
            A(f"""s_andn2_b32 s50, s2, 0x38
s_lshl_b32 s50, s50, 7
s_bfe_u32 s51, s2, 0x10005
s_lshl_b32 s51, s51, 3
s_add_u32 s50, s50, s51
s_lshr_b32 s51, s{sW}, 1
s_lshl_b32 s51, s51, 2
s_add_u32 s50, s50, s51
s_add_u32 s{SFP}, s{sWS}, {WS_FL}
s_addc_u32 s{SFP+1}, s{sWS+1}, 0
s_mov_b32 s{SFP+2}, 32768
v_and_b32 v{VPA}, 7, v0
v_lshlrev_b32 v{VPA}, 10, v{VPA}
v_add_u32 v{VPA}, s50, v{VPA}
s_xor_b32 s50, s2, 1
s_lshl_b32 s50, s50, 7
s_lshl_b32 s{sW4}, s{sW}, 2
v_mov_b32 v{VPP}, s50""")
            A(poll1, tag='PL1')
            code_prefetch(A, 'L_fin', 'L_code_end', 21, 23, 1); code_prefetch(A, 'L_fin', 'L_code_end', 21, 25, 1, first=1, tag='c')
        if j == 55:
            A('.mark b55')
            A.extend(spin_check('f1', poll1, ne1))
            A(f'v_add_u32 v{VOFFK}, s{sW2K}, v{VOFFO}')
            A(f'buffer_load_dword v{VPR}, v{VPP}, {srd(SFP)}, 0 offen offset:48 sc1', tag='PLP')
        if j == 31:
            A('.mark epi')
            stamp(A, 7)
            if OPT['atom'] == '1': atomic()
            A(f'v_mov_b32 v{VPA}, 0')
            if OPT['atom'] == '0': A(pollc, tag='Pc')
            A.extend(POST)
            A(f's_mov_b32 s{sHead}, 1\ns_mov_b32 s{sCnt}, 3')
            stamp(A, 8)
        j += 1
    A('.mark tail')
    stamp(A, 9)
    EPG = int(OPT['epg'])
    ek = 0
    G2 = int(OPT['g2s']); LO = int(OPT['lo']); LW = int(OPT['lw']); S0 = int(OPT['gs0']); S1 = int(OPT['gs1'])
    items = []
    NS = 64 + 4 * int(OPT['bmax']); G3 = 56
    for x in range(15, NS):
        for jb in g_oloads(x): items.append(((x & ~3) - LO - (3 - (x & 3)) * 0.9, max((x & ~3) - 12, G2 + 1 if x >= 32 else 0, G3 + 1 if x >= 64 else 0), jb))
    for c in range(4, NS // 4):
        for n, jb in enumerate(g_wchunk(c)): items.append((4 * c - 1 - LW - (8 - n) * 4 / 9.0, 4 * (c - 4) + 3, jb))
    items.sort(key=lambda z: z[0])
    sched = [[] for _ in range(NS)]
    cur = 0
    for i, (dl, rl, jb) in enumerate(items):
        k = int(S0 + i * (S1 - S0 + 1) / 206)
        k = max(min(k, int(dl)), rl, cur)
        while len(sched[k]) >= 6: k += 1
        sched[k].append(jb); cur = k
    def when(tag): return [k for k in range(NS) if any(x[1].tag == tag for x in sched[k])]
    CL = max(when('GO31')) + 1
    assert CL < min(when('GO48')) and CL < min(when('GW12')), (CL, when('GO48'), when('GW12'))
    assert NS == 64 or min(when('GW16')) > 47
    if EPG == 0:
        A.extend(epi); ek = len(epi)
    if OPT['verbose']: print([len(x) for x in sched])
    rq = []
    for c in range(NS // 4):
        for n in range(9):
            if c == 0 and n < 3: continue
            q = 9 * c + n
            lo = max(8 * (q - 3), 72 * c - 20)
            for u, r in enumerate(g_wreads(c, n)): rq.append((lo, 8 * q + u - 6, r))
    for s_ in range(NS):
        c, u = s_ >> 2, s_ & 3
        mf = [mfma(f'v{GACC(n, mm)}', f'v{WB(c, n, uu)}', f'a{OB(4 * c + uu, mm)}', f'v{GACC(n, mm)}' if (c or uu) else '0') for n in range(9) for mm in range(2) for uu in range(4)][18 * u:18 * u + 18]
        G = Gaps(18)
        if u == 2 and c < NS // 4 - 1:
            tags = {0: 'P5+P6+P7+P8', 1: 'P9+P10+P11+P12+P13', 2: 'P14+P15+P16+P17'}.get(c, f'GW{c + 1}')
            G.sc[16] += [f'WAITVM {tags} lg0', 's_barrier']
            assert not [1 for q in sched[s_:] for x in q if x[1].tag == f'GW{c + 1}'], c
        jobs = sched[s_]
        for x in jobs:
            if x[1].tag.startswith('GO'): assert (int(x[1].tag[2:]) & ~3) >= s_ + 2, (s_, x[1].tag)
        jp = {0: [], 1: [10], 2: [5, 14], 3: [3, 9, 15], 4: [3, 8, 12, 15], 5: [2, 6, 9, 12, 15], 6: [2, 5, 8, 11, 14, 17]}[len(jobs)]
        G.place_dma(jobs, jp)
        for g in range(18):
            if g in jp or not rq: continue
            gg = 18 * s_ + g
            if rq[0][0] <= gg:
                assert gg <= rq[0][1], (gg, rq[0][1], rq[0][2].text)
                if u == 2 and g >= 16: assert rq[0][2].tag != f'rG{c}'
                G.mem[g].append(rq.pop(0)[2])
        if s_ == int(OPT['p2s']): G.mem[17].append(Ins(poll2, 'PL2'))
        if OPT['gtl']:
            if s_ % 2 == 0: G.sc[12].append('s_memtime s[98:99]')
            elif s_ < 64: G.v[0].append(f'v_writelane_b32 v59, s98, {s_ // 2}')
        for g in range(18):
            n = EPG - (1 if G.mem[g] else 0)
            while n > 0 and ek < len(epi):
                x = epi[ek]
                if isinstance(x, Ins) and x.kind == 'vst':
                    if G.v[g]: break
                    G.mem[g].append(x); ek += 1; n -= 1; continue
                G.v[g].append(x); ek += 1
                if not x.startswith('s_'): n -= 1
        if s_ == int(OPT['f2s']):
            assert ek == len(epi), (ek, len(epi))
            G.sc[16].append('WAITVM Ost')
            G.mem[17].append(Ins(cl(f'buffer_store_dword v{VFLAG}, v{VL4}, {srd(SFL)}, 0 offen offset:16 {OPT["st"]}'), 'F2'))
        if s_ == G2: G.v[17] += spin_check('f2', poll2, ne1)
        if s_ == CL:
            G.v[15] += [f'v_readfirstlane_b32 s{sGive}, v{VPR}']
            G.v[17] += f"""s_sub_u32 s50, 16, s{sGive}
s_mul_i32 s{SGW+2}, s50, 36864
s_sub_u32 s50, 8, s{sGive}
s_lshl_b32 s50, s50, 15
s_min_u32 s{SGO+2}, s{SGO+2}, s50""".split('\n')
        if s_ == 41: G.mem[17].append(Ins(polld, 'PLD'))
        if s_ == 46:
            G.v[15] += spin_check('d', polld, f'v_cmp_eq_u32 vcc, 0, v{VPOLL}')
            G.v[16] += [f'v_readfirstlane_b32 s{sRem}, v{VPOLL}', f'v_xor_b32 v{VPA}, 128, v{VPA}']
            G.v[17] += f"""s_sub_u32 s{sRem}, s{sRem}, 1
s_min_u32 s{sRem}, s{sRem}, {OPT['bmax']}
s_bitcmp1_b32 s2, 0
s_cselect_b32 s50, 0, {2 * 64 * 9216}
s_mul_i32 s{SG2W+2}, s{sRem}, 36864
s_add_u32 s{SG2W}, s{SGW}, s50
s_addc_u32 s{SG2W+1}, s{SGW+1}, 0
s_sub_u32 s{SG2W}, s{SG2W}, s{SG2W+2}
s_subb_u32 s{SG2W+1}, s{SG2W+1}, 0
s_bitcmp1_b32 s2, 0
s_cselect_b32 s50, 0, {2 * 262144}
s_add_u32 s50, s50, 16384
s_lshl_b32 s51, s{sRem}, 15
s_add_u32 s{SG2O}, s{SGO}, s50
s_addc_u32 s{SG2O+1}, s{SGO+1}, 0
s_sub_u32 s{SG2O}, s{SG2O}, s51
s_subb_u32 s{SG2O+1}, s{SG2O+1}, 0
s_max_u32 s51, s51, {16384 + 2048}
s_sub_u32 s{SG2O+2}, s51, {16384 + 2048}
s_mov_b32 s{SG2O+3}, 0x20000
s_cmp_eq_u32 s{sRem}, 0
s_cselect_b32 s50, s{sGive}, 0
s_add_u32 s{sRem}, s{sRem}, 4
s_sub_u32 s{sRem}, s{sRem}, s50""".split('\n')
        if s_ == G3 - 4 and NS > 64: G.mem[17].append(Ins(poll2, 'PL3'))
        if s_ == G3 and NS > 64: G.v[17] += spin_check('f3', poll2, ne1)
        if u == 3 and 11 <= c < NS // 4 - 1:
            G.sc[18] += [f's_sub_u32 s{sRem}, s{sRem}, 1', 's_cbranch_scc1 L_xchg']
        if s_ == 39:
            G.v[17] += f"""s_lshl_b32 s50, s2, 2
s_add_u32 s50, s50, s{sW}
s_mul_i32 s50, s50, 9216
s_add_u32 s50, s50, {WS_X}
s_add_u32 s{SO}, s{sWS}, s50
s_addc_u32 s{SO+1}, s{sWS+1}, 0
s_mov_b32 s{SO+2}, 9216
s_xor_b32 s50, s2, 1
s_lshl_b32 s51, s50, 2
s_add_u32 s51, s51, s{sW}
s_mul_i32 s51, s51, 9216
s_add_u32 s51, s51, {WS_X}
s_add_u32 s{SV}, s{sWS}, s51
s_addc_u32 s{SV+1}, s{sWS+1}, 0
s_mov_b32 s{SV+2}, 9216
s_and_b32 s50, s2, 2
s_lshl_b32 s50, s50, 2
s_lshr_b32 s51, s2, 5
s_add_u32 s50, s50, s51
s_lshl_b32 s50, s50, 2
s_add_u32 s50, s50, s{sW}
s_lshl_b32 s50, s50, 1
s_and_b32 s51, s2, 1
s_add_u32 s50, s50, s51
s_mul_i32 s50, s50, {16 * 2304}
s_bfe_u32 s51, s2, 0x10002
s_mul_i32 s51, s51, 1152
s_add_u32 s50, s50, s51
s_bfe_u32 s51, s2, 0x20003
s_mul_i32 s51, s51, 288
s_add_u32 s50, s50, s51
s_add_u32 s{SOUT}, s{sOUT}, s50
s_addc_u32 s{SOUT+1}, s{sOUT+1}, 0
s_mov_b32 s{SOUT+2}, {15 * 2304 + 288}""".split('\n')
        if 40 <= s_ < 45:
            k = s_ - 40
            vv = f"""v_add_u32 v28, {64 * k}, v2
v_mul_u32_u24 v29, 3641, v28
v_lshrrev_b32 v29, 16, v29
v_mul_u32_u24 v30, 18, v29
v_sub_u32 v30, v28, v30
v_lshlrev_b32 v30, 4, v30
v_mad_u32_u24 v{32 + k}, v29, s{sT0}, v30
v_mul_u32_u24 v29, 304, v29
v_add3_u32 v{44 + k}, v29, v30, v31""".split('\n')
            if k == 0:
                vv = [f's_movk_i32 s{sT0}, 2304', 'v_lshlrev_b32 v31, 13, v1', 'v_and_b32 v29, 15, v2', 'v_mul_u32_u24 v29, 304, v29', 'v_lshrrev_b32 v30, 4, v2',
                      'v_lshl_add_u32 v29, v30, 3, v29', 'v_add_u32 v39, v29, v31', f'v_add_u32 v37, 0x1000, v{VOFFO}', f'v_add_u32 v38, 0x2000, v{VOFFO}'] + vv
            for i, x in enumerate(vv): G.v[i].append(x)
        A.extend(G.weave(mf))
    A('L_xchg:')
    stamp(A, 10)
    A('s_nop 5\ns_bitcmp1_b32 s2, 0\ns_cbranch_scc1 L_x1')
    vo3 = [VOFFO, 37, 38]
    pollx = f'buffer_load_dword v{VPOLL}, v{VPP}, {srd(SFP)}, s{sW4} offen offset:32 sc1'
    for kh in range(2):
        if kh: A('L_x1:')
        for n in range(9):
            A(cl(f'buffer_store_dwordx4 v[{GACC(n, 1 - kh)}:{GACC(n, 1 - kh) + 3}], v{vo3[n // 4]}, {srd(SO)}, 0 offen offset:{(n % 4) * 1024} {OPT["st"]}'))
        if kh:
            A('s_nop 1')
            for n in range(9):
                for r in range(0, 4, 2): A(f'v_mov_b64 v[{GACC(n, 0) + r}:{GACC(n, 0) + r + 1}], v[{GACC(n, 1) + r}:{GACC(n, 1) + r + 1}]')
        else:
            A('s_branch L_x2')
    A('L_x2:')
    A('s_waitcnt vmcnt(0) lgkmcnt(0)')
    A(cl(f'buffer_store_dword v{VFLAG}, v{VL4}, {srd(SFL)}, 0 offen offset:32 {OPT["st"]}'))
    A(pollx)
    A('s_barrier')
    A.extend(spin_check('x', pollx, ne1))
    for n in range(9):
        A(f'buffer_load_dwordx4 v[{128 + 4 * n}:{131 + 4 * n}], v{vo3[n // 4]}, {srd(SV)}, 0 offen offset:{(n % 4) * 1024} sc1')
    for n in range(9):
        a = GACC(n, 0); b = 128 + 4 * n
        for r in range(0, 4, 2): A(f'v_pk_add_f32 v[{a + r}:{a + r + 1}], v[{a + r}:{a + r + 1}], v[{b + r}:{b + r + 1}]')
        A(f'v_cvt_pk_bf16_f32 v{b}, v{a}, v{a + 1}\nv_cvt_pk_bf16_f32 v{b + 1}, v{a + 2}, v{a + 3}')
        A(f'ds_write_b64 v39, v[{b}:{b + 1}] offset:{n * 32}')
    for k in range(5): A(f'ds_read_b128 v[{168 + 4 * k}:{171 + 4 * k}], v{44 + k}')
    for k in range(5): A(f'buffer_store_dwordx4 v[{168 + 4 * k}:{171 + 4 * k}], v{32 + k}, {srd(SOUT)}, 0 offen {OPT["out_st"]}'.rstrip())
    if OPT['stamps']:
        A('s_waitcnt vmcnt(0)')
        stamp(A, 11)
        if OPT['gtl']:
            A('s_lshl_b32 s50, s2, 10\ns_add_u32 s50, s50, 0x80000\nv_lshlrev_b32 v42, 2, v0\nbuffer_store_dword v59, v42, s[56:59], s50 offen')
        if OPT['diag'] == '0': store_stamps(A, 7)
        elif OPT['diag'] == '3':
            A(f'''s_memrealtime s[62:63]
s_load_dwordx2 s[4:5], s[0:1], 88
s_load_dwordx2 s[8:9], s[0:1], 0
s_waitcnt lgkmcnt(0)
s_load_dword s10, s[8:9], 0
s_mov_b32 s6, 64
s_mov_b32 s7, 0x20000
v_lshlrev_b32 v4, 6, v0
s_and_b32 s51, s2, 7
s_lshl_b32 s51, s51, 2
v_mov_b32 v5, s62
buffer_atomic_umax v5, v4, s[4:7], s51 offen offset:32 sc1
s_and_b32 s50, s2, 0x18
s_cmp_lg_u32 s50, 0
s_cbranch_scc1 L_dgx
s_not_b32 s51, s60
v_mov_b32 v6, s51
v_mov_b32 v7, s60
buffer_atomic_umax v6, v4, s[4:7], 0 offen offset:4 sc1
buffer_atomic_umax v7, v4, s[4:7], 0 offen offset:8 sc1
L_dgx:
s_cmp_lg_u32 s2, 8
s_cbranch_scc1 L_end
s_sub_u32 s8, s62, s60
v_mov_b32 v8, s8
buffer_store_dword v8, v4, s[4:7], 0 offen offset:12 sc1
s_sub_u32 s8, s76, s64
v_mov_b32 v9, s8
buffer_store_dword v9, v4, s[4:7], 0 offen offset:16 sc1
s_sub_u32 s8, s78, s76
v_mov_b32 v10, s8
buffer_store_dword v10, v4, s[4:7], 0 offen offset:20 sc1
s_sub_u32 s8, s82, s78
v_mov_b32 v11, s8
buffer_store_dword v11, v4, s[4:7], 0 offen offset:24 sc1
s_sub_u32 s8, s86, s82
v_mov_b32 v12, s8
buffer_store_dword v12, v4, s[4:7], 0 offen offset:28 sc1
s_waitcnt lgkmcnt(0)
s_cmp_eq_u32 s10, 0x3e6e3f96
s_cbranch_scc1 L_end
s_cmp_eq_u32 s10, 0x3c3abe25
s_cbranch_scc1 L_end
v_mov_b32 v8, 0x40004000
buffer_store_dword v8, v4, s[28:31], 0 offen''')
        else:
            A(f'''s_memrealtime s[62:63]
s_load_dwordx2 s[4:5], s[0:1], 88
s_getreg_b32 s50, hwreg(HW_REG_XCC_ID)
s_waitcnt lgkmcnt(0)
s_mov_b32 s6, 64
s_mov_b32 s7, 0x20000
v_lshlrev_b32 v4, 6, v0
s_and_b32 s51, s2, 0xbe
s_cmp_lg_u32 s51, 8
s_cbranch_scc1 L_end
s_and_b32 s51, s2, 1
s_lshr_b32 s8, s2, 5
s_add_u32 s51, s51, s8
s_lshl_b32 s51, s51, 4
s_and_b32 s50, s50, 15
s_lshl_b32 s50, s50, 28
s_sub_u32 s8, s62, s60
s_add_u32 s8, s8, s50
s_cmp_eq_u32 s51, 0
s_cbranch_scc1 L_dg1
v_mov_b32 v8, s8
buffer_store_dword v8, v4, s[4:7], s51 offen sc1
L_dg1:
s_sub_u32 s8, s{76 if OPT['diag'] == '1' else 66}, s64
s_sub_u32 s9, s{78 if OPT['diag'] == '1' else 68}, s{76 if OPT['diag'] == '1' else 66}
s_lshr_b32 s8, s8, 4
s_lshr_b32 s9, s9, 4
s_lshl_b32 s8, s8, 16
s_add_u32 s8, s8, s9
v_mov_b32 v9, s8
buffer_store_dword v9, v4, s[4:7], s51 offen offset:4 sc1
s_sub_u32 s8, s{80 if OPT['diag'] == '1' else 70}, s{78 if OPT['diag'] == '1' else 68}
s_sub_u32 s9, s{82 if OPT['diag'] == '1' else 72}, s{80 if OPT['diag'] == '1' else 70}
s_lshr_b32 s8, s8, 4
s_lshr_b32 s9, s9, 4
s_lshl_b32 s8, s8, 16
s_add_u32 s8, s8, s9
v_mov_b32 v10, s8
buffer_store_dword v10, v4, s[4:7], s51 offen offset:8 sc1
s_sub_u32 s8, s{84 if OPT['diag'] == '1' else 74}, s{82 if OPT['diag'] == '1' else 72}
s_sub_u32 s9, s{86 if OPT['diag'] == '1' else 76}, s{84 if OPT['diag'] == '1' else 74}
s_lshr_b32 s8, s8, 4
s_lshr_b32 s9, s9, 4
s_lshl_b32 s8, s8, 16
s_add_u32 s8, s8, s9
v_mov_b32 v11, s8
buffer_store_dword v11, v4, s[4:7], s51 offen offset:12 sc1''')
    A('L_end:\ns_endpgm')
    A.resolve_waits()
    rep = []
    A.fix_hazards(rep)
    segs = {}
    for n, L in split_marks(A.L): segs.setdefault(n, []).append(L)
    M = {n: merge_segments(v) for n, v in segs.items()}
    if OPT['hole']:
        L = M['_start']; k = len(L) - 1
        while L[k].kind != 'mfma': k -= 1
        out = L[:k + 1]; since = 0; q = 0
        for x in L[k + 1:]:
            out.append(x); since += 2 if x.kind == 'trans' else 1
            if since >= 2 and x.kind in ('valu', 'trans'):
                out.append(Ins(mfma('a0', f'a{128 + 4 * (q % 16)}', f'a{128 + 4 * ((q // 3) % 16)}', 'a0'))); q += 1; since = 0
        M['_start'] = out
    ab = OPT['abl']
    if ab:
        for nm in list(M):
            L = M[nm]
            if nm[0] in 'rp' or nm == 's0':
                if 'a' in ab: L = [x for x in L if x.mn != 'v_add_f32']
                if 'c' in ab: L = [x for x in L if x.mn not in ('v_max3_f32', 'v_max_f32', 'v_cmp_lt_f32', 's_cbranch_vccnz')]
                if 'e' in ab: L = [x for x in L if x.mn != 'v_exp_f32']
                if 'p' in ab: L = [x for x in L if x.mn != 'v_cvt_pk_bf16_f32']
                if 'k' in ab: L = [x for x in L if x.mn != 'ds_read_b128']
                if 'v' in ab: L = [x for x in L if x.mn != 'ds_read_b64_tr_b16']
                if 'd' in ab and nm[0] != 'p': L = [x for x in L if x.kind != 'dma']
            if nm == 'tail':
                if 'g' in ab: L = [x for x in L if not (x.tag and x.tag.startswith('rG') and int(x.tag[2:]) % 2)]
                if 'G' in ab: L = [x for x in L if not (x.tag and x.tag.startswith(('GW', 'GO')))]
            if nm == '_start':
                if 'j' in ab: L = [x for x in L if not (x.tag and x.tag.startswith('J'))]
                if 'w' in ab: L = [x for x in L if not (x.tag and x.tag.startswith('rW') and int(x.tag[2:]) % 2)]
            import re as _re
            def rechain(L, n, pred):
                out = []; k = 0; cur = None
                for x in L:
                    if x.kind == 'mfma' and pred(x):
                        m = _re.match(r'(\S+) (\S+), (\S+), (\S+), (\S+)$', x.text)
                        if m[2] == m[5]:
                            if k % n == 0 or cur is None or cur[0] != m[2][0]: cur = m[2]
                            x = Ins(f'{m[1]} {cur}, {m[3]}, {m[4]}, {cur}'); k += 1
                    out.append(x)
                return out
            if 'P' in ab and (nm[0] in 'rp'): L = rechain(L, 2, lambda x: x.text.split()[1][0] == 'a')
            if 'X' in ab and nm == 'tail': L = rechain(L, 4, lambda x: True)
            if 'Q' in ab and nm == '_start':
                cut = [i for i, x in enumerate(L) if x.kind == 'mfma'][14 * 64]
                L = rechain(L[:cut], 2, lambda x: True) + L[cut:]
            M[nm] = L
    F = Prog()
    F.extend(M['_start'])
    if int(OPT['burst']):
        F(f's_mov_b32 s50, {int(OPT["burst"])}\nL_burst:')
        for q in range(16):
            F(f'v_mfma_f32_32x32x16_bf16 a[{(q % 8) * 16}:{(q % 8) * 16 + 15}], v[{64 + 4 * (q % 8)}:{67 + 4 * (q % 8)}], a[{128 + 4 * q}:{131 + 4 * q}], a[{(q % 8) * 16}:{(q % 8) * 16 + 15}]')
            F(f'ds_read_b128 v[{96 + 4 * (q % 8)}:{99 + 4 * (q % 8)}], v4 offset:{q * 1024}')
            F(f'v_exp_f32 v{224 + q}, v{128 + q}\nv_add_f32 v{240 + q}, v{144 + q}, v{128 + q}')
        F('s_sub_u32 s50, s50, 1\ns_cbranch_scc0 L_burst\ns_waitcnt lgkmcnt(0)\ns_nop 15')
    F('L_s0:')
    F.extend(M['s0'])
    F('s_branch L_r1\n.p2align 6\nL_r0:')
    F.extend(M['r0'])
    F('L_r1:')
    for k in range(1, 7): F.extend(M[f'r{k}'])
    F('s_cbranch_scc1 L_sp')
    F.extend(M['r7'])
    F(f's_cbranch_scc1 L_r0\ns_cmp_eq_u32 s{sKo}, 0x80000\ns_cbranch_scc1 L_fin\ns_cmp_eq_u32 s{sKo}, 0x70000\ns_cbranch_scc1 L_b47\ns_cmp_eq_u32 s{sKo}, 0x60000\ns_cbranch_scc1 L_b39')
    for b in (7, 39, 47):
        F(f'L_b{b}:'); F.extend(M[f'b{b}']); F('s_branch L_r0')
    F('L_sp:')
    F.extend(M['sp31'])
    if OPT['w1']: F('s_branch L_r1')
    else:
        F.extend(M['epi']); F('s_branch L_s0')
    for nm, p, mode in [(f'r{k}', k & 1, 0) for k in range(8)] + [(f'p{k}', k & 1, 0) for k in range(56, 63)] + [('sp31', 1, 1), ('fin31', 1, 1)]:
        F(f'L_st_{nm}:\ns_mov_b32 s{sMODE}, {mode}\ns_call_b64 s[{sRET}:{sRET + 1}], L_fb{p}')
        if mode == 0: F.extend(sm_dense(3 - p, 0, 32))
        F(f's_branch L_bk_{nm}')
    F.extend(fallback(0).L); F.extend(fallback(1).L)
    for x in SPINS: F(x)
    F('L_fin:')
    F.extend(M['b55'])
    for k in range(56, 63): F.extend(M[f'p{k}'])
    F.extend(M['fin31'])
    F.extend(M['tail'])
    return F, rep

def build(path):
    A, rep = gen()
    hdr = open('cdna_kernels/' + NAME + '.s.ref').read().split('; Override launch')[0]
    t = hdr + '; @launch grid=(256,1,1) block=(256,1,1) lds=163840\n'
    t += '.amdgcn_target "amdgcn-amd-amdhsa--gfx950"\n.text\n' + MACROS
    t += prolog(KNAME) + A.text() + 'L_code_end:\n'
    t += kd(KNAME, 512, 100, 256)
    open(path, 'w').write(t)
    return rep, len(t)

if __name__ == '__main__':
    path = sys.argv[1]
    for kv in sys.argv[2:]:
        k, v = kv.split('=')
        assert k in OPT, k
        OPT[k] = (v == '1') if isinstance(OPT.get(k), bool) else v
    rep, n = build(path)
    from collections import Counter
    print('bytes', n, 'pads', Counter((a, b.split()[0]) for a, b in rep).most_common(12))
```

```python
import sys, math, struct
from common import *
from asmlib import *

OPT = dict(nt_kv='nt', nt_x='', nt_w='nt', st='sc1', g_o='sc1', g_w='sc1', stamps=False, tl=False, gtl=False,
           epg='4', f2s='10', p2s='22', g2s='24', gs0='6', gs1='58', lo='4', lw='5', w1=False, qtl=False, pl='2', lag=True, ost='sc1', nb='3', jo='2', verbose=False, su='0', pf='2', bar1=False, kv0='48', bm='5', ba='2', bmax='4', out_st='sc1', hole=False, atom='1', diag='0', l2n='0', l2p='nt', l2t='6', burst='0', l2s='1', l2g='44', l2='', tight='0', l2e='0', cqk=True, cqb=True, abl='', xb=True)
WS_WO = 33554432
WS_X = 44 << 20
WS_FL = 56 << 20
WS_STAMP = 64 << 20
SCALE = math.log2(math.e) / math.sqrt(128.0)
def f2i(x): return struct.unpack('<I', struct.pack('<f', x))[0]
KNAME = NAME + '_kernel'

SK, SV, SX, SW_, SO, SWS, SWD, SFL = 4, 8, 12, 16, 20, 24, 28, 88
SGO, SGW, SFP, SOUT = 12, 16, 24, 28
sWS, sOUT, sDBG = 52, 54, 46
sW, sW2K, sW4K, sT0, sKo, sVo, sSC, sTHR, sXo, sRET, sMODE, sWe = 32, 33, 34, 35, 36, 37, 38, 40, 41, 42, 44, 45
sJ, sCnt, sHead, sOo = 48, 94, 95, 96
SG2W, SG2O, sGive, sRem, sW4 = 4, 92, 46, 47, 49
VPP, VPG, VPR = 41, 42, 43
VSK_ = [17, 27]
def srd(n): return f's[{n}:{n+3}]'
VPA, KADDR, VADDR, VOFFK, VOFFV, LREG, ETMP, CT, NEGM, VOFFO, VFLAG, VPOLL, VL4 = 3, 4, 8, 16, 18, 20, 28, 40, 44, 60, 61, 62, 63
KF, VF, SB, PB, EP = 64, 96, 128, 192, 224
NE = 8
ONES = 36
NG = 68
def S(p, kt, qt): return SB + p * 32 + (kt * 4 + qt) * 4
def P(p, qt): return PB + p * 16 + qt * 4
def Lr(p, qt): return EP + p * 16 + qt * 4
def O(T, qt): return (T * 4 + qt) * 4
def Q(h, qt, u): return 128 + h * 64 + (u * 4 + qt) * 4
VSV, VSK, WADDR, XADDR, VOFFW, VOFFX, VOFFJ, JADDR = 20, 24, 64, 80, 84, 88, 92, 3
CW0, CW1, CR = 61, 62, 63
def QACC(h, T, qt): return (f'v{128 + (T * 4 + qt) * 4}' if h == 1 else f'a{(T * 4 + qt) * 4}')
def XF(t, qt): return (28 if (t >> 1) & 1 else 96) + ((t & 1) * 4 + qt) * 4
NWS = 24
def WF(slot): return 128 + slot * 4
BLK = 16384
def wblock(t): return [(4, 1), (7, 3), (8, 9)][(t >> 1) % 3][t & 1]
def xblock(p): return [2, 5, 6][p % 3]
def cl(s): return ' '.join(s.split())
def rng(r, n): return f'{r[0]}[{int(r[1:])}:{int(r[1:]) + n - 1}]'

def dma_kv(which, tile):
    base = (0 if which == 'K' else 65536) + (tile % 8) * 8192
    s, vo, so = (SK, VOFFK, sKo) if which == 'K' else (SV, VOFFV, sVo)
    tag = f'{which}{tile}'; nt = OPT['nt_kv']
    return [([f's_add_u32 m0, s{sW2K}, {base}'], Ins(cl(f'buffer_load_dwordx4 v{vo}, {srd(s)}, s{so} offen {nt} lds'), tag), []),
            ([], Ins(cl(f'buffer_load_dwordx4 v{vo + 1}, {srd(s)}, s{so} offen offset:1024 {nt} lds'), tag), [f's_add_u32 s{so}, s{so}, 8192'])]
def dma4(s, vo, off, blk, tag, nt, so=sWe):
    return [([f's_mov_b32 s{so}, {off}', f's_add_u32 m0, s{sW4K}, {blk * BLK}'] if n == 0 else [],
             Ins(cl(f'buffer_load_dwordx4 v{vo + n}, {srd(s)}, s{so} offen offset:{n * 1024} {nt} lds'), tag), []) for n in range(4)]
def dma_w(t): return dma4(SW_, VOFFW, t * 32 * 8192, wblock(t), f'W{t}', OPT['nt_w'])
def dma_x(p): return dma4(SX, VOFFX, (p >> 1) * 128 + (p & 1) * 32 * 1152, xblock(p), f'X{p}', OPT['nt_x'], sXo)
def dma_kk(i): return dma4(SK, VSK, i * 16384, i, f'KK{i}', OPT['nt_kv'])
def dma_vv(i): return dma4(SV, VSV, i * 16384, 4 + i, f'VV{i}', OPT['nt_kv'])
def flat(dl):
    out = []
    for pre, ins, post in dl: out += pre + [ins] + post
    return out

def I(x): return x if isinstance(x, Ins) else Ins(x)
def cost(x):
    k = x.kind
    return {'trans': 8, 'valu': 4, 'dsr': 4, 'dsw': 4, 'dma': 12, 'vld': 12, 'vst': 12}.get(k, 0 if k in ('label', 'dir', 'waitvm', 'waitlg') else 4)
class Gaps:
    def __init__(self, n):
        self.n = n; self.sc = [[] for _ in range(n + 1)]; self.mem = [[] for _ in range(n)]; self.v = [[] for _ in range(n)]
    def place_dma(self, dl, gaps):
        assert len(gaps) >= len(dl), (len(gaps), len(dl))
        for (pre, ins, post), g in zip(dl, gaps):
            for k, s in enumerate(pre): self.sc[g - len(pre) + k].append(s)
            self.mem[g].append(ins)
            for k, s in enumerate(post): self.sc[g + 1 + k].append(s)
    def load(self, g): return sum(cost(I(x)) for x in self.mem[g] + self.v[g])
    def pack(self, items, g0, g1):
        items = [I(x) for x in items]
        base = [self.load(g) for g in range(self.n)]
        for L in range(8, 400, 2):
            g = g0; used = 0; vhere = False; pos = []; ok = True
            for x in items:
                c = cost(x); ismem = x.kind in ('dsr', 'dsw', 'dma', 'vld', 'vst')
                while True:
                    if g >= g1: ok = False; break
                    room = L - base[g] - used
                    if ismem and (vhere or (self.mem[g] and L < 20)): fit = False
                    else: fit = c <= room or (c == 0) or (used == 0 and base[g] == 0)
                    if fit: break
                    g += 1; used = 0; vhere = False
                if not ok: break
                pos.append(g); used += c
                if not ismem: vhere = True
                else: vhere = True if False else vhere
            if ok: break
        assert ok
        for x, g in zip(items, pos):
            (self.mem if x.kind in ('dsr', 'dsw', 'dma', 'vld', 'vst') else self.v)[g].append(x)
        return pos
    def weave(self, mf, a=0, b=None):
        out = []
        b = self.n if b is None else b
        for i in range(a, b):
            if i < len(mf) and mf[i] is not None: out.append(mf[i])
            out += self.sc[i] + self.mem[i] + self.v[i]
        if b == self.n: out += self.sc[self.n]
        return out

def k_reads(tile):
    return [Ins(f'ds_read_b128 v[{KF + (kt * 4 + u) * 4}:{KF + (kt * 4 + u) * 4 + 3}], v{KADDR + u} offset:{(tile % 8) * 8192 + kt * 4096}', f'rK{tile}')
            for kt in range(2) for u in range(4)]
def v_reads(tile):
    return [Ins(f'ds_read_b64_tr_b16 v[{VF + T * 4 + s * 2}:{VF + T * 4 + s * 2 + 1}], v{VADDR + T} offset:{(tile % 8) * 8192 + s * 4096}', f'rV{tile}')
            for T in range(8) for s in range(2)]
def qk_mfmas(j):
    h = 1 if j in ((32, 33) if OPT['w1'] else (32,)) else 0
    p = j & 1; first = (j & 31) == 0
    out = []
    for kt in range(2):
        for u, qt in ([(u, qt) for qt in range(4) for u in range(4)] if OPT['cqk'] else [(u, qt) for u in range(4) for qt in range(4)]):
            if True:
                c = f'v{S(p, kt, qt)}' if u else ('0' if first else f'v{NEGM + qt * 4}')
                out.append(mfma(f'v{S(p, kt, qt)}', f'v{KF + (kt * 4 + u) * 4}', f'a{Q(h, qt, u)}', c))
    return out
def pv_mfmas(j):
    p = j & 1; first = (j & 31) == 0
    return [mfma(f'a{O(T, qt)}', f'v{VF + T * 4}', f'v{P(p, qt)}', '0' if first else f'a{O(T, qt)}') for T in range(8) for qt in range(4)]

def sum_mfma(j, qt):
    p = j & 1; first = (j & 31) == 0
    return mfma(f'v{Lr(p, qt)}', f'v{ONES}', f'v{P(p, qt)}', '0' if first else f'v{Lr(1 - p, qt)}')
E0 = 24
def softmax_stream(j):
    p = j & 1
    out = []
    for k in range(32):
        qt, kk = k >> 3, k & 7
        out.append((E0 + 2 * k, f'v_exp_f32 v{ETMP + k % NE}, v{S(p, kk >> 2, qt) + (kk & 3)}'))
        if k & 1: out.append((E0 + 2 * k + 3, f'v_cvt_pk_bf16_f32 v{P(p, qt) + (kk >> 1)}, v{ETMP + (k - 1) % NE}, v{ETMP + k % NE}'))
    out.sort(key=lambda z: z[0])
    return out
SUMPOS = {0: 46, 1: 63, 2: NG + 8, 3: NG + 25}
def sm_dense(j, lo, hi):
    it = softmax_stream(j) + [(SUMPOS[qt] - 0.5, sum_mfma(j, qt)) for qt in range(4)]
    it.sort(key=lambda z: z[0])
    return [x for pos, x in it if lo <= pos < hi]
def pvi(n): return 34 + n if n < 12 else (35 + n if n < 28 else 36 + n)
def step_mfmas(j):
    qk = qk_mfmas(j + 1) if j + 1 < 64 else [None] * 32
    pv = pv_mfmas(j)
    nxt = j + 1 < 64 and (j + 1) & 31
    own = j < 63
    return (qk[:8] + [sum_mfma(j, 2) if own else None] + qk[8:24] + [sum_mfma(j, 3) if own else None] + qk[24:] +
            pv[:12] + [sum_mfma(j + 1, 0) if nxt else None] + pv[12:28] + [sum_mfma(j + 1, 1) if nxt else None] + pv[28:])
def rowmax(p, qt, dst):
    s0 = S(p, 0, qt); s1 = S(p, 1, qt)
    return [f'v_max3_f32 v{dst}, v{s0}, v{s0 + 1}, v{s0 + 2}', f'v_max3_f32 v{dst}, v{dst}, v{s0 + 3}, v{s1}',
            f'v_max3_f32 v{dst}, v{dst}, v{s1 + 1}, v{s1 + 2}', f'v_max_f32 v{dst}, v{dst}, v{s1 + 3}']
def xlane(op, regs, tmps):
    out = []
    for sw in ('v_permlane16_swap_b32', 'v_permlane32_swap_b32'):
        out += [f'v_mov_b32 v{t}, v{r}' for r, t in zip(regs, tmps)]
        out += [f'{sw} v{t}, v{r}' for r, t in zip(regs, tmps)]
        out += [f'{op} v{r}, v{r}, v{t}' for r, t in zip(regs, tmps)]
    return out
def init_stream(j):
    p = j & 1
    m = [NEGM + qt * 4 for qt in range(4)]; t = [NEGM + qt * 4 + 1 for qt in range(4)]
    out = []
    rm = [rowmax(p, qt, m[qt]) for qt in range(4)]
    for k in range(4): out += [rm[qt][k] for qt in range(4)]
    out += xlane('v_max_f32', m, t)
    for qt in range(4):
        for k in range(8):
            s = S(p, k >> 2, qt) + (k & 3)
            out.append(f'v_sub_f32 v{s}, v{s}, v{m[qt]}')
    for qt in range(4):
        for r in (3, 2, 1, 0): out.append(f'v_sub_f32 v{NEGM + qt * 4 + r}, 0, v{m[qt]}')
    return out

def epilogue(packed, tb):
    rc = [LREG + 2 * i for i in range(4)]
    prep = [f'v_rcp_f32 v{rc[qt]}, v{Lr(1, qt)}' for qt in range(4)]
    units = []
    for k in range(16):
        u, qt = divmod(k, 4)
        b = tb + (k % 2) * 12
        rd = [f'v_accvgpr_read_b32 v{b + i}, a{O(2 * u + (i >> 2), qt) + (i & 3)}' for i in range(8)]
        if packed: mu = [f'v_pk_mul_f32 v[{b + 2 * i}:{b + 2 * i + 1}], v[{b + 2 * i}:{b + 2 * i + 1}], v[{rc[qt]}:{rc[qt] + 1}] op_sel_hi:[1,0]' for i in range(4)]
        else: mu = [f'v_mul_f32 v{b + i}, v{rc[qt]}, v{b + i}' for i in range(8)]
        cv = [f'v_cvt_pk_bf16_f32 v{b + 8 + i}, v{b + 2 * i}, v{b + 2 * i + 1}' for i in range(4)]
        st = [Ins(cl(f'buffer_store_dwordx4 v[{b + 8}:{b + 11}], v{VOFFO}, {srd(SO)}, s{sOo} offen offset:{qt * 1024} {OPT["ost"]}'), 'Ost')]
        if qt == 3: st.append(f's_add_u32 s{sOo}, s{sOo}, 4096')
        units.append((rd, mu, cv, st))
    return prep, units
def epi_flat(units):
    L = []; first = []; lastrd = []
    for k, (rd, mu, cv, st) in enumerate(units):
        first.append(len(L)); L += rd; lastrd.append(len(L) - 1)
        if k: L += units[k - 1][3]
        L += mu + cv
    L += units[-1][3]
    return L, first, lastrd

SPINS = []
def spin_check(name, load, cmp):
    SPINS.append(f"""L_spin_{name}:
s_mov_b32 s{sT0}, 0x40000
L_spin2_{name}:
s_sleep 1
{load}
s_sub_u32 s{sT0}, s{sT0}, 1
s_cbranch_scc1 L_back_{name}
s_waitcnt vmcnt(0)
{cmp}
s_nop 1
s_cbranch_vccnz L_spin2_{name}
s_branch L_back_{name}""")
    return [cmp, f's_cbranch_vccnz L_spin_{name}', f'L_back_{name}:']

def fallback(p):
    A = Prog()
    A(f'L_fb{p}:')
    A('s_nop 7\ns_nop 7')
    TB = P(1 - p, 0)
    m = [TB + i for i in range(4)]; t = [ETMP + i for i in range(4)]; f = [TB + 4 + i for i in range(4)]
    rm = [rowmax(p, qt, m[qt]) for qt in range(4)]
    for k in range(4): A.extend([rm[qt][k] for qt in range(4)])
    A.extend(xlane('v_max_f32', m, t))
    for qt in range(4): A(f'v_max_f32 v{m[qt]}, 0, v{m[qt]}')
    for qt in range(4): A(f'v_exp_f32 v{f[qt]}, -v{m[qt]}')
    for qt in range(4):
        for k in range(8):
            s = S(p, k >> 2, qt) + (k & 3)
            A(f'v_sub_f32 v{s}, v{s}, v{m[qt]}')
        for r in range(4): A(f'v_sub_f32 v{NEGM + qt * 4 + r}, v{NEGM + qt * 4 + r}, v{m[qt]}')
        A(f'v_mul_f32 v{Lr(1 - p, qt)}, v{Lr(1 - p, qt)}, v{f[qt]}')
    A(f's_cmp_lg_u32 s{sMODE}, 0')
    A(f's_cbranch_scc1 L_fb{p}_b')
    for qt in range(4):
        for k in range(8):
            s = S(1 - p, k >> 2, qt) + (k & 3)
            A(f'v_sub_f32 v{s}, v{s}, v{m[qt]}')
    A(f'L_fb{p}_b:')
    for T in range(8):
        for qt in range(4):
            b = TB + 8 + ((T * 4 + qt) % 2) * 4
            for r in range(4): A(f'v_accvgpr_read_b32 v{b + r}, a{O(T, qt) + r}')
            for r in range(4): A(f'v_mul_f32 v{b + r}, v{b + r}, v{f[qt]}')
            for r in range(4): A(f'v_accvgpr_write_b32 a{O(T, qt) + r}, v{b + r}')
    A.extend(sm_dense(2 + p, 0, 999))
    A('s_nop 7')
    A(f's_setpc_b64 s[{sRET}:{sRET + 1}]')
    A.fix_hazards()
    return A

def stamp(A, idx, base=64):
    if OPT['stamps'] and not OPT['qtl']: A(f's_memtime s[{base + idx * 2}:{base + idx * 2 + 1}]')
def store_stamps(A, n):
    A('s_memrealtime s[62:63]\ns_waitcnt lgkmcnt(0)')
    A('v_lshrrev_b32 v1, 6, v0\ns_lshl_b32 s50, s2, 2\nv_add_u32 v1, s50, v1\nv_lshlrev_b32 v1, 7, v1')
    A('v_and_b32 v2, 63, v0\nv_cmp_eq_u32 vcc, 0, v2\ns_and_saveexec_b64 s[50:51], vcc')
    for i in range(n):
        for k in range(4): A(f'v_mov_b32 v{4 + k}, s{60 + i * 4 + k}')
        A(f'buffer_store_dwordx4 v[4:7], v1, s[56:59], 0 offen offset:{i * 16}')
        A('s_nop 1')

def code_prefetch(A, start, end, va, vd, n, first=0, tag=''):
    A(f's_getpc_b64 s[50:51]')
    A(f'L_pc{tag}_{start}:')
    if start == KNAME: A(f's_sub_u32 s50, s50, L_pc{tag}_{start}-{start}\ns_subb_u32 s51, s51, 0')
    else: A(f's_add_u32 s50, s50, {start}-L_pc{tag}_{start}\ns_addc_u32 s51, s51, 0')
    A(f'v_lshlrev_b32 v{va}, 7, v0')
    if first: A(f'v_add_u32 v{va}, {first * 0x8000}, v{va}')
    for i in range(n):
        A(f'v_min_u32 v{va + 1}, {end}-{start}-4, v{va}')
        A(f'global_load_dword v{vd + i}, v{va + 1}, s[50:51]', tag='pf')
        if i + 1 < n: A(f'v_add_u32 v{va}, 0x8000, v{va}')

DEF_V = []; DEF_S = []
def setup(A):
    A('s_cmp_ge_u32 s2, 256\ns_cbranch_scc1 L_end')
    A(f"""s_bfe_u32 s48, s2, 0x10002
s_mul_i32 s50, s48, 40
s_add_u32 s52, s0, s50
s_addc_u32 s53, s1, 0
s_load_dwordx2 s[{SX}:{SX+1}], s[52:53], 0
s_load_dwordx2 s[{SW_}:{SW_+1}], s[52:53], 24
s_lshr_b32 s51, s2, 7
s_mul_i32 s51, s51, 40
s_add_u32 s54, s0, s51
s_addc_u32 s55, s1, 0
s_load_dwordx2 s[{SK}:{SK+1}], s[52:53], 8
s_load_dwordx2 s[{SV}:{SV+1}], s[52:53], 16
s_load_dwordx2 s[{SWS}:{SWS+1}], s[54:55], 32
s_load_dwordx2 s[{SO}:{SO+1}], s[0:1], 96
s_load_dwordx4 s[92:95], s[0:1], 80""")
    if OPT['stamps']: A('s_memrealtime s[60:61]')
    stamp(A, 0)
    if OPT['pf'] == '1': code_prefetch(A, KNAME, 'L_code_end', 100, 252, 1)
    elif OPT['pf'] == '2':
        A(f'''s_getpc_b64 s[50:51]
L_pcx:
s_sub_u32 s50, s50, L_pcx-{KNAME}
s_subb_u32 s51, s51, 0
s_lshr_b32 s48, s2, 3
s_cmp_ge_u32 s48, 3
s_cbranch_scc1 L_nopf
s_lshl_b32 s48, s48, 15
v_lshlrev_b32 v100, 7, v0
v_add_u32 v100, s48, v100
v_min_u32 v100, L_code_end-{KNAME}-4, v100''')
        A('global_load_dword v252, v100, s[50:51]', tag='pf')
        A('L_nopf:')
    A(f"""s_and_b32 s46, s2, 6
s_lshl_b32 s46, s46, 1
s_lshr_b32 s48, s2, 6
s_add_u32 s46, s46, s48
s_and_b32 s47, s2, 1
s_lshl_b32 s47, s47, 3
s_bfe_u32 s48, s2, 0x30003
s_add_u32 s47, s47, s48
s_and_b32 s49, s46, 7
v_lshrrev_b32 v1, 6, v0
v_and_b32 v2, 63, v0
v_readfirstlane_b32 s{sW}, v1
v_lshrrev_b32 v97, 4, v2
v_lshrrev_b32 v100, 3, v2
v_lshl_add_u32 v100, v1, 6, v100
v_mul_u32_u24 v100, 1152, v100
s_lshl_b32 s{sW4K}, s{sW}, 12
v_and_b32 v101, 7, v2
v_xor_b32 v101, v101, v97
v_lshl_add_u32 v{VOFFX}, v101, 4, v100
v_xor_b32 v101, 4, v101
v_lshl_add_u32 v102, v101, 4, v100
v_add_u32 v{VOFFX + 1}, {8 * 1152 - 1024}, v102
v_add_u32 v{VOFFX + 2}, {2 * (8 * 1152 - 1024)}, v{VOFFX}
v_add_u32 v{VOFFX + 3}, {3 * (8 * 1152 - 1024)}, v102
v_lshrrev_b32 v100, 5, v2
v_and_b32 v101, 31, v2
v_and_b32 v102, 1, v1
v_lshl_add_u32 v102, v102, 2, v100
v_lshl_add_u32 v103, v1, 3, v100
v_lshlrev_b32 v103, 13, v103
v_lshlrev_b32 v104, 1, v102
v_xor_b32 v104, v104, v101
v_lshl_add_u32 v{VOFFW}, v104, 4, v103
v_xor_b32 v104, 64, v{VOFFW}
v_add_u32 v{VOFFW + 1}, {16384 - 1024}, v104
v_add_u32 v{VOFFW + 2}, {2 * (16384 - 1024)}, v{VOFFW}
v_add_u32 v{VOFFW + 3}, {3 * (16384 - 1024)}, v104
s_mul_i32 s50, s49, 294912
s_lshl_b32 s51, s47, 9
s_mov_b32 s{SX+2}, 294912
s_mov_b32 s{SX+3}, 0x20000
s_sub_u32 s{SW_+2}, {576 * 8192}, s51
s_mov_b32 s{SW_+3}, 0x20000
s_waitcnt lgkmcnt(0)""")
    stamp(A, 1)
    A(f"""s_add_u32 s{SX}, s{SX}, s50
s_addc_u32 s{SX+1}, s{SX+1}, 0
s_add_u32 s{SW_}, s{SW_}, s51
s_addc_u32 s{SW_+1}, s{SW_+1}, 0""")
    A.extend(flat(dma_w(0)) + flat(dma_x(0)) + flat(dma_x(1)) + flat(dma_w(1)))
    A(f"""v_and_b32 v96, 15, v2
v_and_b32 v98, 3, v2
v_bfe_u32 v99, v2, 2, 2
v_lshl_add_u32 v100, v97, 3, v99
v_and_b32 v101, 1, v97
v_lshl_add_u32 v101, v101, 2, v99
v_lshlrev_b32 v101, 5, v101
v_lshl_add_u32 v101, v100, 9, v101
v_lshl_add_u32 v101, v98, 3, v101
v_add_u32 v{WADDR}, {BLK}, v101""")
    for T in range(1, 8): A(f'v_xor_b32 v{WADDR + T}, {T * 32}, v{WADDR}')
    A(f"""v_lshrrev_b32 v100, 1, v96
v_xor_b32 v100, v100, v97
v_lshlrev_b32 v100, 4, v100
v_lshl_add_u32 v100, v96, 7, v100
v_lshl_add_u32 v100, v1, 12, v100
v_add_u32 v{XADDR}, {2 * BLK}, v100
v_xor_b32 v{XADDR + 1}, 64, v{XADDR}
v_add_u32 v{XADDR + 2}, {4 * BLK}, v{XADDR}
v_add_u32 v{XADDR + 3}, {4 * BLK}, v{XADDR + 1}""")
    if OPT['su'] == '0':
        A.extend(flat(dma_x(2)) + flat(dma_w(2)) + flat(dma_w(3)))
        if OPT['pf'] == '1': code_prefetch(A, KNAME, 'L_code_end', 100, 253, 2, first=1, tag='b')
    KVS = f"""s_lshl_b32 s50, s49, 23
s_lshl_b32 s51, s47, 19
s_add_u32 s50, s50, s51
s_add_u32 s{SK}, s{SK}, s50|s_addc_u32 s{SK+1}, s{SK+1}, 0
s_mov_b32 s{SK+2}, 0x80000
s_mov_b32 s{SK+3}, 0x20000
s_add_u32 s{SV}, s{SV}, s50|s_addc_u32 s{SV+1}, s{SV+1}, 0
s_mov_b32 s{SV+2}, 0x80000
s_mov_b32 s{SV+3}, 0x20000"""
    ne = int(OPT['l2e'])
    if ne:
        A(KVS.replace('|', '\n')); KVS = ''
        A(f'v_lshlrev_b32 v100, 7, v2\nv_mul_u32_u24 v101, {ne * 1024}, v1\nv_add_u32 v100, v100, v101\nv_cmp_le_u32 vcc, {ne * 8}, v2\nv_cndmask_b32 v100, v100, -1, vcc')
        A(f's_mov_b32 s50, {8 * 8192}\ns_mov_b32 s51, {6 * 8192}')
        A(cl(f'buffer_load_dword a254, v100, {srd(SK)}, s50 offen {OPT["l2p"]}'), tag='l2')
        A(cl(f'buffer_load_dword a253, v100, {srd(SV)}, s51 offen {OPT["l2p"]}'), tag='l2')
    V = DEF_V; a, b, c, d, l15, g = 92, 93, 94, 95, 61, 62
    V += [f'v_add_u32 v{WADDR + 8 + T}, {6 * BLK}, v{WADDR + T}' for T in range(8)]
    V += f"""v_lshlrev_b32 v{VOFFO}, 4, v2
v_and_b32 v{l15}, 15, v2
v_lshrrev_b32 v{g}, 4, v2
v_lshlrev_b32 v{a}, 11, v1
v_lshl_add_u32 v{a}, v{g}, 8, v{a}
v_lshl_add_u32 v{b}, v1, 3, v{g}""".split('\n')
    for o in range(2):
        V += f"""v_add_u32 v{c}, {4 * o}, v{b}
v_and_b32 v{d}, 15, v{c}
v_xor_b32 v{d}, v{d}, v{l15}
v_lshl_add_u32 v{VOFFK + o}, v{d}, 4, v{a}
v_and_b32 v{d}, 7, v{c}
v_lshlrev_b32 v{d}, 1, v{d}
v_xor_b32 v{d}, v{d}, v{l15}
v_lshl_add_u32 v{VOFFV + o}, v{d}, 4, v{a}""".split('\n')
    V += [f'v_lshlrev_b32 v{a}, 12, v1', f'v_lshl_add_u32 v{a}, v{g}, 8, v{a}']
    for n in range(4):
        V += f"""v_add_u32 v{c}, {4 * n}, v{g}
v_xor_b32 v{d}, v{c}, v{l15}
v_lshl_add_u32 v{VSK + n}, v{d}, 4, v{a}
v_and_b32 v{d}, 7, v{c}
v_lshlrev_b32 v{d}, 1, v{d}
v_xor_b32 v{d}, v{d}, v{l15}
v_lshl_add_u32 v{VSV + n}, v{d}, 4, v{a}""".split('\n')
    V += [f'v_xor_b32 v{a}, v{g}, v{l15}', f'v_lshlrev_b32 v{a}, 4, v{a}', f'v_lshl_add_u32 v{KADDR}, v{l15}, 8, v{a}']
    V += [f'v_xor_b32 v{KADDR + u}, {u * 64}, v{KADDR}' for u in range(1, 4)]
    V += f"""v_lshrrev_b32 v{a}, 2, v2
v_and_b32 v{b}, 7, v{a}
v_lshlrev_b32 v{b}, 5, v{b}
v_lshl_add_u32 v{b}, v{a}, 8, v{b}
v_and_b32 v{c}, 3, v2
v_lshl_add_u32 v{b}, v{c}, 3, v{b}
v_add_u32 v{VADDR}, 0x10000, v{b}
v_mul_u32_u24 v{a}, 384, v{a}
v_lshl_add_u32 v{a}, v{c}, 3, v{a}
v_mul_u32_u24 v{b}, 96, v1
v_add_u32 v{JADDR}, v{a}, v{b}""".split('\n')
    V += [f'v_xor_b32 v{VADDR + T}, {T * 32}, v{VADDR}' for T in range(1, 8)]
    V += f"""v_bfe_u32 v{a}, v2, 2, 1
v_lshlrev_b32 v{a}, 1, v{a}
v_bfe_u32 v{b}, v2, 3, 1
v_mul_u32_u24 v{b}, 3, v{b}
v_xor_b32 v{a}, v{a}, v{b}
v_lshlrev_b32 v{c}, 6, v{l15}
v_lshl_add_u32 v{c}, v1, 12, v{c}
v_add_u32 v{c}, {6 * BLK}, v{c}
v_xor_b32 v{b}, v{a}, v{g}
v_lshl_add_u32 v{CR}, v{b}, 4, v{c}
v_lshrrev_b32 v{b}, 1, v{g}
v_xor_b32 v{b}, v{b}, v{a}
v_lshl_add_u32 v{c}, v{b}, 4, v{c}
v_and_b32 v{b}, 1, v{g}
v_lshl_add_u32 v{CW0}, v{b}, 3, v{c}""".split('\n')
    for n in range(3):
        t = VOFFJ + n
        V += f"""v_add_u32 v{d}, {64 * n}, v2
v_mul_u32_u24 v{t}, 2731, v{d}
v_lshrrev_b32 v{t}, 16, v{t}
v_mul_u32_u24 v{CW1}, 24, v{t}
v_sub_u32 v{d}, v{d}, v{CW1}
v_lshl_add_u32 v{t}, v1, 3, v{t}
v_mul_u32_u24 v{t}, 1152, v{t}
v_lshl_add_u32 v{t}, v{d}, 4, v{t}
v_subrev_u32 v{t}, {n * 1024}, v{t}""".split('\n')
    V += [f'v_xor_b32 v{CW1}, 32, v{CW0}']
    S_ = f"""s_and_b32 s50, s2, 127
s_mul_i32 s50, s50, 36864
s_add_u32 s{SWS}, s{SWS}, s50|s_addc_u32 s{SWS+1}, s{SWS+1}, 0
s_mov_b32 s{SWS+2}, 36864
s_mov_b32 s{SWS+3}, 0x20000
s_lshl_b32 s{sW2K}, s{sW}, 11
{KVS}
s_mov_b32 s{sWS}, s{SO}
s_mov_b32 s{sWS+1}, s{SO+1}
s_mov_b32 s{sOUT}, s92
s_mov_b32 s{sOUT+1}, s93
s_lshr_b32 s50, s2, 7
s_lshl_b32 s50, s50, 9
s_and_b32 s51, s2, 64
s_add_u32 s50, s50, s51
s_bfe_u32 s51, s2, 0x10002
s_lshl_b32 s51, s51, 5
s_add_u32 s50, s50, s51
s_bfe_u32 s51, s2, 0x30003
s_lshl_b32 s51, s51, 2
s_add_u32 s50, s50, s51
s_and_b32 s51, s2, 3
s_add_u32 s50, s50, s51
s_mul_i32 s50, s50, 9216
s_add_u32 s50, s50, {WS_WO}
s_add_u32 s{SWD}, s{SO}, s50|s_addc_u32 s{SWD+1}, s{SO+1}, 0
s_mov_b32 s{SWD+2}, {3 * 128 * 9216 + 9216}
s_mov_b32 s{SWD+3}, 0x20000
s_lshl_b32 s50, s2, 7
s_lshl_b32 s51, s{sW}, 2
s_add_u32 s50, s50, s51
s_add_u32 s50, s50, {WS_FL}
s_add_u32 s{SFL}, s{SO}, s50|s_addc_u32 s{SFL+1}, s{SO+1}, 0
s_mov_b32 s{SFL+2}, 68
s_mov_b32 s{SFL+3}, 0x20000""".split('\n')
    if OPT['stamps']:
        S_ += [f's_add_u32 s56, s{SO}, {WS_STAMP}|s_addc_u32 s57, s{SO+1}, 0', 's_mov_b32 s58, 0x100000', 's_mov_b32 s59, 0x20000']
    S_ += f"""s_lshl_b32 s50, s46, 2
s_add_u32 s50, s50, s{sW}
s_lshl_b32 s50, s50, 19
s_lshl_b32 s51, s47, 15
s_add_u32 s50, s50, s51
s_add_u32 s{SO}, s{SO}, s50|s_addc_u32 s{SO+1}, s{SO+1}, 0
s_mov_b32 s{SO+2}, 32768
s_mov_b32 s{SO+3}, 0x20000
s_mov_b32 s{sSC}, {f2i(SCALE):#x}
s_mov_b32 s{sTHR}, {f2i(2.0 ** 24):#x}
s_mov_b32 s{sOo}, 0
s_mov_b32 s{sDBG}, s94
s_mov_b32 s{sDBG+1}, s95
s_mov_b32 s{sKo}, {8 * 8192}
s_mov_b32 s{sVo}, {6 * 8192}
s_mov_b32 s{sCnt}, 3
s_mov_b32 s{sHead}, 0""".split('\n')
    DEF_S.extend(x for x in S_ if x)

def x_reads(pc):
    c = pc >> 1; blk = xblock(pc)
    return [Ins(f'ds_read_b128 v[{XF(2 * c + ks, 2 * (pc & 1) + qq)}:{XF(2 * c + ks, 2 * (pc & 1) + qq) + 3}], v{XADDR + ks + (2 if blk == 6 else 0)} offset:{(0 if blk == 6 else (blk - 2) * BLK) + qq * 2048}', f'rX{pc}')
            for ks in range(2) for qq in range(2)]
def w_read(t, h, T, dst):
    blk = wblock(t)
    ad = WADDR + T if blk <= 4 else WADDR + 8 + T
    off = (blk - 1 if blk <= 4 else blk - 7) * BLK + h * 256
    d = int(dst[1:])
    return [Ins(f'ds_read_b64_tr_b16 {dst[0]}[{d + 2 * s}:{d + 2 * s + 1}], v{ad} offset:{off + s * 2048}', f'rW{t}') for s in range(2)]
def w_reads(t):
    out = []
    for f in range(16): out += w_read(t, f >> 3, f & 7, f'a{WF((16 * t + f) % NWS)}')
    return out
UH = ['a160', 'a192', 'a160', 'a192', 'a0', 'a32', 'a0', 'a32']
def uw(n, k, tt): return f'{UH[n][0]}{int(UH[n][1:]) + (k * 2 + tt) * 4}'
def unit_order(n):
    if not OPT['cqb']: return [(k, tt) for k in range(4) for tt in range(2)]
    if n == 0: return [(0, 0), (1, 0), (0, 1), (1, 1), (2, 0), (3, 0), (2, 1), (3, 1)]
    return [(k, tt) for tt in range(2) for k in range(4)]
def unit_mf(n):
    if not OPT['cqb']: return [(k, tt, qt) for k in range(4) for tt in range(2) for qt in range(4)]
    if n == 0: return [(2 * hf + k, tt, qt) for hf in range(2) for tt in range(2) for qt in range(4) for k in range(2)]
    return [(k, tt, qt) for tt in range(2) for qt in range(4) for k in range(4)]
def unit_reads(n):
    h, u = n >> 2, n & 3
    out = []
    for k, tt in unit_order(n): out += w_read(14 + k, h, 2 * u + tt, uw(n, k, tt))
    return out
def conv(n):
    h, u = n >> 2, n & 3
    V = []; D = []
    tiles = []
    for tt in range(2):
        for qt in range(4):
            acc = QACC(h, 2 * u + tt, qt)
            if h == 1: b = int(acc[1:]); rd = []
            else:
                b = 84 + ((n * 8 + tt * 4 + qt) % 3) * 4
                rd = [f'v_accvgpr_read_b32 v{b + r}, a{int(acc[1:]) + r}' for r in range(4)]
            mu = [f'v_mul_f32 v{b + r}, s{sSC}, v{b + r}' for r in range(4)]
            cv = [f'v_cvt_pk_bf16_f32 v{b}, v{b}, v{b + 1}', f'v_cvt_pk_bf16_f32 v{b + 1}, v{b + 2}, v{b + 3}']
            V += [Ins(x) for x in rd + mu + cv]
            D.append((len(V) - 1, Ins(f'ds_write_b64 v{CW1 if tt else CW0}, v[{b}:{b + 1}] offset:{qt * 1024}')))
    D += [(len(V) - 1, Ins(f'ds_read_b128 a[{Q(h, qt, u)}:{Q(h, qt, u) + 3}], v{CR} offset:{qt * 1024}', f'rQ{n}')) for qt in range(4)]
    seq = []
    for i, x in enumerate(V):
        seq.append(x); seq += [d for k, d in D if k == i]
    return V, D, seq

def q_phase(A):
    stamp(A, 2)
    A('WAITVM X0+X1+W0+W1\ns_barrier')
    stamp(A, 3)
    if OPT['su'] == '0': A.extend(x_reads(0) + x_reads(1) + w_reads(0))
    else:
        rd = x_reads(0) + x_reads(1) + w_reads(0)
        dj = dma_x(2) + dma_w(2) + dma_w(3)
        for i in range(12):
            A.extend(flat([dj[i]])); A.extend(rd[i * 40 // 12:(i + 1) * 40 // 12])
    def JR(i): return f'a{224 + 4 * i}' if i < 8 else 'v92'
    def jstore(i):
        r, n = divmod(i, 3)
        pre = [f's_add_u32 s{sT0}, s{sW}, {4 * r}', f's_mul_i32 s49, s{sT0}, 43', f's_lshr_b32 s49, s49, 7',
               f's_mul_i32 s49, s49, {128 * 9216 - 9216}', f's_mul_i32 s{sT0}, s{sT0}, 3072', f's_add_u32 s{sJ}, s{sT0}, s49'] if n == 0 else []
        return [(pre, Ins(cl(f'buffer_store_dwordx4 {rng(JR(i), 4)}, v{VOFFO}, {srd(SWD)}, s{sJ} offen offset:{n * 1024} {OPT["st"]}'), 'Jst'), [])]
    for t in range(14):
        mf = []
        for f in range(16):
            for qt in range(4):
                acc = QACC(f >> 3, f & 7, qt)
                mf.append(mfma(acc, f'a{WF((16 * t + f) % NWS)}', f'v{XF(t, qt)}', acc if t else '0'))
        G = Gaps(64)
        groups = []
        J4 = OPT['jo'] == '4'
        if t in ((2, 5, 9) if J4 else (3, 7, 11)):
            r = t // 4
            groups += [[([f's_mov_b32 s{sWe}, {r * 384}', f's_mul_i32 m0, s{sW}, 3072'] if n == 0 else [],
                         Ins(f'buffer_load_dwordx4 v{VOFFJ + n}, {srd(SWS)}, s{sWe} offen offset:{n * 1024} nt lds', f'J{r}'), []) for n in range(3)]]
        if t == 0: groups += [dma_x(3), dma_x(4), dma_w(4)]
        if t == 1: groups += [dma_w(5)]
        if 1 <= t <= 12: groups += [dma_w(t + 5)]
        if t + 5 < 18: groups += [dma_x(t + 5)]
        if t == 13 and not J4: groups += [dma_vv(0), dma_kk(1)]
        ngr = len(groups)
        gl = {4: [[5, 8, 11, 14], [18, 22, 26, 30], [34, 38, 42, 46], [51, 54, 57, 60]],
              3: [[2, 7, 12, 17], [24, 29, 34, 39], [46, 51, 56, 60]],
              2: [[2, 10, 18, 26], [34, 42, 50, 58]], 1: [[18, 30, 42, 54]], 0: []}[ngr]
        if J4 and t == 12: gl = [[2, 6, 10, 14], [20, 24, 28, 32]]
        dg = [g for gr, pos in zip(groups, gl) for g in pos[:len(gr)]]
        if J4 and t in (12, 13):
            for i, g in {12: [(0, 44), (1, 52), (2, 60)], 13: [(3, 8), (4, 16), (5, 24), (6, 34), (7, 44), (8, 54)]}[t]:
                G.place_dma(jstore(i), [g]); dg.append(g)
            if t == 13:
                G.v[57].append(f'v_mov_b32 v{VPA}, 0'); dg.append(59)
                G.mem[59].append(Ins(cl(f'buffer_store_dword v{VPA}, v{VOFFO}, {srd(SFL)}, 0 offen {OPT["st"]}'), 'Fz'))
        L2 = [int(x) for x in OPT['l2'].split('.')] if OPT['l2'] else []
        for i in [i for i, x in enumerate(L2) if x == t]:
            if i == 0:
                G.v[4] += ['v_lshlrev_b32 v95, 7, v2', 'v_lshl_add_u32 v95, v1, 11, v95']
                G.v[5] += [f'v_lshrrev_b32 v{VOFFO}, 4, v2', f'v_lshl_add_u32 v95, v{VOFFO}, 24, v95']
                G.v[6] += [f'v_lshlrev_b32 v{VOFFO}, 4, v2']
            sr, base = (SK, 8) if i % 2 == 0 else (SV, 6)
            g = 14 if (i + 1 < len(L2) and L2[i + 1] == t) else 46
            while g in dg or G.sc[g - 1]: g += 1
            G.sc[g - 1].append(f's_mov_b32 s{sT0}, {(base + int(OPT["l2e"]) // 2 + i // 2) * 8192}')
            x = Ins(cl(f'buffer_load_dword a255, v95, {srd(sr)}, s{sT0} offen {OPT["l2p"]}'), 'l2'); x.wr = set() if i + 1 < len(L2) else x.wr
            G.mem[g].append(x); dg.append(g)
        free = [g for g in range(64) if g not in dg]
        G.sc[0].append(f'WAITVM X{t + 2}')
        rds = x_reads(t + 2)
        if t + 5 < 18:
            xi = [i for i, gr in enumerate(groups) if gr[0][1].tag == f'X{t + 5}'][0]
            G.sc[gl[xi][0] - 3].append(f'WAITLG rX{t + 2}')
        if t in ((3, 7, 11) if J4 else (5, 9, 13)):
            for n in range(3):
                d = JR((t // 4 - (0 if J4 else 1)) * 3 + n)
                rds += [Ins(f'ds_read_b64_tr_b16 {d[0]}[{int(d[1:]) + 2 * sx}:{int(d[1:]) + 2 * sx + 1}], v{JADDR} offset:{n * 32 + sx * 16 * 384}') for sx in range(2)]
        if t == 0: G.sc[2].append('WAITLG rX1')
        rds += w_reads(t + 1) if t < 13 else unit_reads(0)[:8]
        for r, g in zip(rds, free): G.mem[g].append(r)
        for gr, g in zip(groups, gl): G.place_dma(gr, g)
        if t % 2 == 0 or t == 13:
            c = t // 2 + 1
            tags = f'W{2 * c}+W{2 * c + 1}' if t != 13 else 'W16+W17+X16+X17'
            if t in ((2, 6, 10) if J4 else (4, 8, 12)): tags += f'+J{t // 4 - (0 if J4 else 1)}'
            G.sc[62] += [f'WAITVM {tags} lg0', 's_barrier']
        if t == 0 and OPT['su'] != '0':
            P_ = Prog(); code_prefetch(P_, KNAME, 'L_code_end', 8, 252, 2, first=1, tag='b')
            G.v[63] += [Ins(x.text.replace('global_load_dword v', 'global_load_dword a'), x.tag) for x in P_.L]
        if t < 3:
            n0, n1 = ([0, 62, len(DEF_V), len(DEF_V)] if J4 else [0, 40, 95, len(DEF_V)])[t:t + 2]
            for i, x in enumerate(DEF_V[n0:n1]): G.v[(i * 62) // (n1 - n0)].append(x)
        if t in (1, 2, 4, 6) and DEF_S:
            for g in range(41, 62):
                if DEF_S and not G.sc[g]: G.sc[g] += DEF_S.pop(0).split('|')
            if t == 6:
                for g in range(4, 40):
                    pass
        if t in (8, 10) and DEF_S:
            for g in range(41, 62):
                if DEF_S and not G.sc[g]: G.sc[g] += DEF_S.pop(0).split('|')
        if t == 11: assert not DEF_S, len(DEF_S)
        if OPT['qtl']:
            G.v[3].append('s_memtime s[98:99]'); G.v[40].append(f's_mov_b32 s{64 + t}, s98')
        A.extend(G.weave(mf))
    stamp(A, 4)
    gsu = f"""s_and_b32 s50, s2, 6
s_lshl_b32 s50, s50, 3
s_lshr_b32 s51, s2, 5
s_lshl_b32 s51, s51, 1
s_add_u32 s50, s50, s51
s_lshr_b32 s51, s{sW}, 1
s_add_u32 s50, s50, s51
s_lshl_b32 s50, s50, 19
s_and_b32 s51, s2, 1
s_lshl_b32 s51, s51, 18
s_add_u32 s50, s50, s51
s_and_b32 s51, s{sW}, 1
s_lshl_b32 s51, s51, 11
s_add_u32 s50, s50, s51
s_add_u32 s{SGO}, s{sWS}, s50|s_addc_u32 s{SGO+1}, s{sWS+1}, 0
s_mov_b32 s{SGO+2}, {262144 - 2048}
s_and_b32 s50, s2, 4
s_bfe_u32 s51, s2, 0x20003
s_add_u32 s50, s50, s51
s_lshl_b32 s50, s50, 1
s_and_b32 s51, s2, 1
s_add_u32 s50, s50, s51
s_mul_i32 s50, s50, {64 * 9216}
s_add_u32 s50, s50, {WS_WO}
s_add_u32 s{SGW}, s{sWS}, s50|s_addc_u32 s{SGW+1}, s{sWS+1}, 0
s_mov_b32 s{SGW+2}, {64 * 9216}""".split('\n')
    NG = 288
    G = Gaps(NG + 8)
    mf = []; ref = []
    UR = [unit_reads(n) for n in range(8)]
    XR = x_reads(16) + x_reads(17)
    K0 = k_reads(0); K1 = k_reads(1)
    CV_ = [conv(n) for n in range(8)]
    ref += XR
    for n in range(8):
        h, u = n >> 2, n & 3
        m = [Ins(mfma(QACC(h, 2 * u + tt, qt), uw(n, k, tt), f'v{XF(14 + k, qt)}', QACC(h, 2 * u + tt, qt))) for k, tt, qt in unit_mf(n)]
        mf += m
        ref += (UR[n][8:] if n == 0 else UR[n]) + m + CV_[n][2]
    m = [Ins(x) for x in qk_mfmas(0)]
    mf += m; ref += K0 + m + K1
    if OPT['jo'] == '4':
        k0 = int(OPT['kv0'])
        for i, jobs in enumerate([dma_kk(0), dma_vv(0), dma_kk(1), dma_vv(1), dma_kk(2)]):
            st_ = (215 - k0) // 20
            G.place_dma(jobs, [k0 + st_ * (4 * i + x) for x in range(4)])
        kv = {1: k0 + st_ * 12}
    else:
        JS = [jstore(i) for i in range(9)]
        ref = [x[0][1] for x in JS] + ref
        order = [6, 8, 7, 0, 1, 2, 3, 4, 5]
        jp = [17, 24, 48, 76, 100, 124, 152, 176, 200]; fz = 220; kv = {0: 36, 1: 104, 2: 164}
        for i, g in zip(order, jp): G.place_dma(JS[i], [g])
        G.v[fz - 2].append(f'v_mov_b32 v{VPA}, 0')
        G.mem[fz].append(Ins(cl(f'buffer_store_dword v{VPA}, v{VOFFO}, {srd(SFL)}, 0 offen {OPT["st"]}'), 'Fz'))
        for i, jobs in enumerate([dma_kk(0), dma_vv(1), dma_kk(2)]):
            G.place_dma(jobs, [kv[i] + 14 * x for x in range(4)])
    G.place_dma(dma_kk(3), [250, 258, 266, 274])
    G.sc[kv[1] - 3].append('WAITLG rX16')
    gi = 260
    for x in gsu:
        while G.sc[gi]: gi += 1
        G.sc[gi] += x.split('|')
    BAR = 32 * 7 + 9
    G.sc[BAR] += ['WAITVM KK0 lg0', 's_barrier']
    def put(ins, g, lim=None):
        while G.mem[g] or (BAR - 5 <= g < BAR): g += 1
        assert lim is None or g <= lim, (ins.text, g, lim)
        G.mem[g].append(ins); return g
    cur = 0
    for n in range(8):
        V, D, _ = CV_[n]
        g0 = 32 * (n + 1) + 1; span = 30
        vp = [g0 + (i * span) // len(V) for i in range(len(V))]
        for x, g in zip(V, vp): G.v[g].append(x)
        for i, d in D: cur = put(d, max(cur, vp[i] + 1))
    g = 0
    for r in ((XR[:4] + UR[0][8:12] + XR[4:] + UR[0][12:]) if OPT['cqb'] else (XR[:2] + XR[4:6] + UR[0][8:12] + XR[2:4] + XR[6:] + UR[0][12:])): g = put(r, g)
    for n in range(1, 8):
        for i, r in enumerate(UR[n]):
            g = put(r, max(g, 32 * (n - 1) + (i * 3) // 2), lim=min((32 * n + 16 * (i // 8) - 5 + (i % 8) // 2) if OPT['cqb'] else 32 * n + 2 * i - 5, BAR - 6))
    g = BAR
    for i, r in enumerate(K0): g = put(r, max(g, BAR + 2 * i), lim=(256 + 16 * (i // 4) - 5 + i % 4) if OPT['cqk'] else 256 + 4 * i - 6)
    for i, r in enumerate(K1): g = put(r, max(g, (256 + 16 * (i // 4) + 13 + i % 4) if OPT['cqk'] else 256 + 4 * i + 4))
    if OPT['stamps'] and not OPT['qtl']: G.sc[257].append('s_memtime s[74:75]')
    if OPT['qtl']:
        for n in range(9): G.v[32 * n + 3].append('s_memtime s[98:99]'); G.v[32 * n + 25].append(f's_mov_b32 s{78 + n}, s98')
    out = [I(x) for x in G.weave(mf)]
    check_order(ref, out, 'QB')
    A.extend(out)
    ini = init_stream(0)
    A.extend(ini[:40])
    A('WAITLG rQ7')
    vv = flat(dma_vv(2))
    for i in range(4): A.extend(vv[-4 + i:][:1] if i else vv[:3]); A.extend(ini[40 + 12 * i:52 + 12 * i])

def seg_name(j):
    if j == 0 or (j == 32 and not OPT['w1']): return 's0'
    if j == 32: return 's32'
    if j == 31: return 'sp31'
    if j == 63: return 'fin31'
    if j >= 56: return f'p{j}'
    return f'r{j % 8}'

def gen():
    A = Prog()
    setup(A)
    q_phase(A)
    A(f'v_and_b32 v{ONES}, 3, v2\nv_cmp_eq_u32 vcc, 0, v{ONES}\nv_mov_b32 v{ONES + 1}, 0x3f803f80\nv_cndmask_b32 v{ONES}, 0, v{ONES + 1}, vcc')
    A.extend([f'v_mov_b32 v{ONES + i}, v{ONES}' for i in range(1, 4)])
    A.extend(sm_dense(0, 0, NG))
    stamp(A, 6)
    if OPT['tl']: A('s_mov_b32 s97, 0')
    def tagsof(which, t):
        if which == 'V' and t < 6: return f'VV{t // 2}'
        if which == 'K' and t < 8: return f'KK{t // 2}'
        return f'{which}{t}'
    GA = [4, 5, 6]
    def WB(c, n, u): return 128 + ((9 * c + n) % 4) * 16 + u * 4
    def GACC(n, mm): i = n * 2 + mm; return 64 + i * 4 if i < 16 else 200 + (i - 16) * 4
    def OB(s, mm): return 128 + ((s + 8) % 16) * 8 + mm * 4
    def g_wreads(c, n):
        out = []
        for u in range(4):
            ad = (c % 4) * 36864 + u * 9216 + n * 1024
            out.append(Ins(f'ds_read_b128 v[{WB(c, n, u)}:{WB(c, n, u) + 3}], v{GA[ad >> 16]} offset:{ad & 0xffff}', f'rG{c}'))
        return out
    def g_oloads(s):
        gen_, i, u = s >> 5, (s >> 2) & 7, s & 3
        off, sr = ((2 * i + gen_) * 16384 + u * 4096, SGO) if s < 64 else (i * 32768 + u * 4096, SG2O)
        return [([f's_mov_b32 s{sWe}, {off}'] if mm == 0 else [],
                 Ins(cl(f'buffer_load_dwordx4 a[{OB(s, mm)}:{OB(s, mm) + 3}], v{VSK_[mm]}, {srd(sr)}, s{sWe} offen {OPT["g_o"]}'), f'GO{s}'), []) for mm in range(2)]
    def g_w8(a, tag):
        return [([f's_mov_b32 s{sKo}, {a}', f's_add_u32 m0, s{sW2K}, {a}'] if o == 0 else [],
                 Ins(cl(f'buffer_load_dwordx4 v{VOFFK}, {srd(SGW)}, s{sKo} offen offset:{o * 1024} {OPT["g_w"]} lds'), tag), []) for o in range(2)]
    def g_wchunk(c):
        out = []
        for n in range(9):
            pre = [f's_add_u32 s{sKo}, s{sXo}, {(c % 16) * 36864 + (n // 4) * 4096}', f's_add_u32 m0, s{sXo}, {(c % 4) * 36864 + (n // 4) * 4096}'] if n % 4 == 0 else []
            out.append((pre, Ins(cl(f'buffer_load_dwordx4 v{VOFFO}, {srd(SGW if c < 16 else SG2W)}, s{sKo} offen offset:{(n % 4) * 1024} {OPT["g_w"]} lds'), f'GW{c}'), []))
        return out
    poll1 = f'buffer_load_dword v{VPOLL}, v{VPA}, {srd(SFP)}, 0 offen sc1'
    poll2 = f'buffer_load_dword v{VPOLL}, v{VPA}, {srd(SFP)}, 0 offen offset:16 sc1'
    pollc = f'buffer_load_dword v{VPOLL}, v{VPA}, {srd(SWS)}, 0 offen sc1'
    polld = f'buffer_load_dword v{VPOLL}, v{VPP}, {srd(SFP)}, 0 offen offset:64 sc1'
    ne1 = f'v_cmp_ne_u32 vcc, 1, v{VPOLL}'
    qcopy = [f'v_accvgpr_mov_b32 a{128 + i}, a{192 + i}' for i in range(64)]

    POST = []
    def fill(G, j):
        jj = j & 31; nm = seg_name(j); p = j & 1
        if j % 2 == 0:
            tags = [tagsof('V', j), tagsof('V', j + 1), tagsof('K', j + 2), tagsof('K', j + 3)] + (['Jst', 'Fz'] if j == 6 else [])
            G.sc[0] += [f'WAITVM {"+".join(tags)} lg0', 's_barrier']
        if j < 63:
            for pos, x in softmax_stream(j):
                if pos >= NG: G.v[pos - NG].append(x)
            if (j + 1) & 31:
                for pos, x in softmax_stream(j + 1):
                    if pos < NG: G.v[pos].append(x)
        if jj != 0:
            G.v[20].append(f'v_max3_f32 v{CT}, v{Lr(p, 0)}, v{Lr(p, 1)}, v{Lr(p, 2)}')
            G.v[29].append(f'v_max_f32 v{CT}, v{CT}, v{Lr(p, 3)}')
            G.v[31].append(f'v_cmp_lt_f32 vcc, s{sTHR}, v{CT}')
            G.sc[32] += [f's_cbranch_vccnz L_st_{nm}', f'L_bk_{nm}:']
        if j < 63:
            for r, g in zip(v_reads(j), [1, 3, 5, 7, 9, 13, 15, 17, 19, 21, 22, 23, 25, 33, 35, 37]): G.mem[g].append(r)
            if j + 2 < 64:
                for r, g in zip(k_reads(j + 2), [39, 41, 45, 47, 49, 51, 53, 55]): G.mem[g].append(r)
            if j < 56: G.place_dma(dma_kv('K', j + 8) + dma_kv('V', j + 6), [11, 27, 43, 59])
            else:
                W8 = lambda i: g_w8(i * 8192, f'P{i}')
                jobs = {56: dma_kv('V', 62) + W8(0) + W8(16) + g_oloads(0), 57: dma_kv('V', 63) + W8(1) + W8(17) + g_oloads(1),
                        58: W8(2) + g_oloads(2) + W8(8) + g_oloads(3), 59: W8(3) + g_oloads(4) + W8(9) + g_oloads(5),
                        60: W8(4) + g_oloads(6) + W8(10) + g_oloads(7), 61: W8(5) + W8(11),
                        62: W8(6) + W8(7) + W8(12) + W8(13) + g_oloads(8) + g_oloads(9)}[j]
                pos = {8: [4, 11, 20, 27, 43, 57, 63, 67], 4: [11, 27, 43, 59], 12: [4, 11, 20, 27, 39, 43, 47, 51, 55, 59, 63, 67]}[len(jobs)]
                G.place_dma(jobs, pos)
                G.v[3].append(f'v_mov_b32 v{VPG}, {j - 55}')
                G.mem[31].append(Ins(cl(f'buffer_store_dword v{VPG}, v{VL4}, {srd(SFL)}, 0 offen offset:48 {OPT["st"]}'), 'PG'))
                if j == 61:
                    G.v[35] += [f'v_mad_u32_u24 v{VPR}, v{VPR}, {OPT["bm"]}, {OPT["ba"]}']
                    G.v[39] += [f'v_lshrrev_b32 v{VPR}, 3, v{VPR}']
                    G.v[47] += [f'v_min_u32 v{VPR}, {OPT["bmax"]}, v{VPR}']
                    G.v[51] += [f'v_add_u32 v{VPG}, 1, v{VPR}']
                    G.v[55] += [f'v_lshlrev_b32 v{VPOLL}, 2, v1']
                    G.v[57] += [f'v_add_u32 v{VPOLL}, {160 * 1024 - 16}, v{VPOLL}']
                    G.mem[63].append(Ins(cl(f'buffer_store_dword v{VPG}, v{VL4}, {srd(SFL)}, 0 offen offset:64 {OPT["st"]}'), 'DG'))
                    G.mem[61].append(Ins(f'ds_write_b32 v{VPOLL}, v{VPR}'))
            if j == 31:
                G.pack(qcopy, 1, 31)
                NB = int(OPT['nb'])
                prep, un = epilogue(False, 160); _, up = epilogue(True, 160)
                other = init_stream(32) + sm_dense(32, 0, NG)
                units = un[:NB] + up[NB:]
                seq = []; cut = None
                for k in range(16):
                    if k == NB: cut = len(seq)
                    seq += units[k][0]
                    if k: seq += units[k - 1][3]
                    seq += units[k][1] + units[k][2]
                    if k >= NB: seq += other[16 + (k - NB) * (len(other) - 16) // (16 - NB):16 + (k - NB + 1) * (len(other) - 16) // (16 - NB)]
                seq += units[15][3]
                G.pack(prep, 32, 36)
                G.pack(other[:16], 36, 42)
                pos = G.pack(seq[:cut], 42, NG)
                for x, g in zip(seq[:cut], pos):
                    x = I(x)
                    if x.mn == 'v_accvgpr_read_b32':
                        a = [r for r in x.rd if r[0] == 'a'][0][1]
                        assert g >= pvi(a // 4) + 2, (x.text, g)
                POST.extend(seq[cut:])
        if nm == 'r6': G.sc[66].append(f's_sub_u32 s{sCnt}, s{sCnt}, 1')
        if nm == 'r7': G.sc[66].append(f's_cmp_lt_u32 s{sKo}, 0x50000')

    j = 0
    while j < 64:
        nm = seg_name(j)
        A(f'.mark {nm}')
        G = Gaps(NG)
        fill(G, j)
        if j == 63:
            P0 = v_reads(j)
            dn = sm_dense(63, NG, 999)
            ol = flat(g_oloads(10) + g_oloads(11) + g_oloads(12))
            k = 0
            for i, x in enumerate(dn):
                P0.append(x)
                tgt = len(ol) * (i + 1) // len(dn)
                while k < tgt: P0.append(ol[k]); k += 1
            G.v[0] += P0
            G.v[18] += [f'v_mov_b32 v{GA[0]}, v{VOFFO}', f'v_add_u32 v{GA[1]}, 0x10000, v{VOFFO}', f'v_add_u32 v{GA[2]}, 0x20000, v{VOFFO}', f's_mul_i32 s{sXo}, s{sW}, 9216']
            G.sc[34] += ['WAITVM P4 lg0', 's_barrier']
            for r, g in zip(g_wreads(0, 0) + g_wreads(0, 1) + g_wreads(0, 2), [35, 38, 41, 43, 47, 50, 52, 55, 58, 60, 64, 66]): G.mem[g].append(r)
            G.v[18] += [f'v_mov_b32 v{VPG}, {160 * 1024 - 16}']
            G.mem[36].append(Ins(f'ds_read_b32 v{VPR}, v{VPG}'))
            G.place_dma(g_w8(14 * 8192, 'P14') + g_w8(15 * 8192, 'P15') + g_oloads(13) + g_oloads(14), [37, 40, 45, 49, 54, 57, 61, 65])
            prep2, units2 = epilogue(int(OPT['epg']) == 0, EP + 8)
            epi, _, _ = epi_flat(units2)
            G.pack(prep2, 34, 40)
            ne = 0
            if int(OPT['epg']):
                ne = 49
                G.pack(epi[:ne], 42, NG)
            epi = epi[ne:]
        A.extend(G.weave(step_mfmas(j)))
        def atomic():
            A('WAITVM Jst+Fz')
            A(f's_mov_b32 s{SWS}, s{sDBG}\ns_mov_b32 s{SWS + 1}, s{sDBG + 1}\ns_mov_b32 s{SWS + 2}, 4\nv_mov_b32 v{VFLAG}, 1\nv_lshlrev_b32 v{VPA}, 2, v0\nv_lshlrev_b32 v{VL4}, 7, v2')
            A(f'buffer_atomic_add v{VFLAG}, v{VPA}, {srd(SWS)}, 0 offen sc1', tag='Cwo')
        if j == 7:
            A('.mark b7')
            if OPT['atom'] == '0': atomic()
        if j == 39:
            A('.mark b39')
            A('WAITVM Ost')
            A(cl(f'buffer_store_dword v{VFLAG}, v{VL4}, {srd(SFL)}, 0 offen {OPT["st"]}'), tag='F1')
            if OPT['atom'] == '1': A(pollc, tag='Pc')
        if j == 47:
            A('.mark b47')
            A(f's_movk_i32 s{sMODE}, 256')
            A.extend(spin_check('c', pollc, f'v_cmp_gt_u32 vcc, s{sMODE}, v{VPOLL}'))
            A(f"""s_andn2_b32 s50, s2, 0x38
s_lshl_b32 s50, s50, 7
s_bfe_u32 s51, s2, 0x10005
s_lshl_b32 s51, s51, 3
s_add_u32 s50, s50, s51
s_lshr_b32 s51, s{sW}, 1
s_lshl_b32 s51, s51, 2
s_add_u32 s50, s50, s51
s_add_u32 s{SFP}, s{sWS}, {WS_FL}
s_addc_u32 s{SFP+1}, s{sWS+1}, 0
s_mov_b32 s{SFP+2}, 32768
v_and_b32 v{VPA}, 7, v0
v_lshlrev_b32 v{VPA}, 10, v{VPA}
v_add_u32 v{VPA}, s50, v{VPA}
s_xor_b32 s50, s2, 1
s_lshl_b32 s50, s50, 7
s_lshl_b32 s{sW4}, s{sW}, 2
v_mov_b32 v{VPP}, s50""")
            A(poll1, tag='PL1')
            code_prefetch(A, 'L_fin', 'L_code_end', 21, 23, 1); code_prefetch(A, 'L_fin', 'L_code_end', 21, 25, 1, first=1, tag='c')
        if j == 55:
            A('.mark b55')
            A.extend(spin_check('f1', poll1, ne1))
            A(f'v_add_u32 v{VOFFK}, s{sW2K}, v{VOFFO}\ns_and_b32 s50, s2, 1\ns_lshl_b32 s50, s50, 10\nv_add_u32 v{VSK_[1]}, s50, v{VOFFO}\nv_xor_b32 v{VSK_[0]}, 0x400, v{VSK_[1]}')
            A(f'buffer_load_dword v{VPR}, v{VPP}, {srd(SFP)}, 0 offen offset:48 sc1', tag='PLP')
        if j == 31:
            A('.mark epi')
            stamp(A, 7)
            if OPT['atom'] == '1': atomic()
            A(f'v_mov_b32 v{VPA}, 0')
            if OPT['atom'] == '0': A(pollc, tag='Pc')
            A.extend(POST)
            A(f's_mov_b32 s{sHead}, 1\ns_mov_b32 s{sCnt}, 3')
            stamp(A, 8)
        j += 1
    A('.mark tail')
    stamp(A, 9)
    EPG = int(OPT['epg'])
    ek = 0
    G2 = int(OPT['g2s']); LO = int(OPT['lo']); LW = int(OPT['lw']); S0 = int(OPT['gs0']); S1 = int(OPT['gs1'])
    items = []
    NS = 64 + 4 * int(OPT['bmax']); G3 = 56
    for x in range(15, NS):
        for jb in g_oloads(x): items.append(((x & ~3) - LO - (3 - (x & 3)) * 0.9, max((x & ~3) - 12, G2 + 1 if x >= 32 else 0, G3 + 1 if x >= 64 else 0), jb))
    for c in range(4, NS // 4):
        for n, jb in enumerate(g_wchunk(c)): items.append((4 * c - 1 - LW - (8 - n) * 4 / 9.0, 4 * (c - 4) + 3, jb))
    items.sort(key=lambda z: z[0])
    sched = [[] for _ in range(NS)]
    cur = 0
    for i, (dl, rl, jb) in enumerate(items):
        k = int(S0 + i * (S1 - S0 + 1) / 206)
        k = max(min(k, int(dl)), rl, cur)
        while len(sched[k]) >= 6: k += 1
        sched[k].append(jb); cur = k
    def when(tag): return [k for k in range(NS) if any(x[1].tag == tag for x in sched[k])]
    CL = max(when('GO31')) + 1
    assert CL < min(when('GO48')) and CL < min(when('GW12')), (CL, when('GO48'), when('GW12'))
    assert NS == 64 or min(when('GW16')) > 47
    if EPG == 0:
        A.extend(epi); ek = len(epi)
    if OPT['verbose']: print([len(x) for x in sched])
    rq = []
    for c in range(NS // 4):
        for n in range(9):
            if c == 0 and n < 3: continue
            q = 9 * c + n
            lo = max(8 * (q - 3), 72 * c - 20)
            for u, r in enumerate(g_wreads(c, n)): rq.append((lo, 8 * q + u - 6, r))
    for s_ in range(NS):
        c, u = s_ >> 2, s_ & 3
        mf = [mfma(f'v{GACC(n, mm)}', f'v{WB(c, n, uu)}', f'a{OB(4 * c + uu, mm)}', f'v{GACC(n, mm)}' if (c or uu) else '0') for n in range(9) for mm in range(2) for uu in range(4)][18 * u:18 * u + 18]
        G = Gaps(18)
        if u == 2 and c < NS // 4 - 1:
            tags = {0: 'P5+P6+P7+P8', 1: 'P9+P10+P11+P12+P13', 2: 'P14+P15+P16+P17'}.get(c, f'GW{c + 1}')
            G.sc[16] += [f'WAITVM {tags} lg0', 's_barrier']
            assert not [1 for q in sched[s_:] for x in q if x[1].tag == f'GW{c + 1}'], c
        jobs = sched[s_]
        for x in jobs:
            if x[1].tag.startswith('GO'): assert (int(x[1].tag[2:]) & ~3) >= s_ + 2, (s_, x[1].tag)
        jp = {0: [], 1: [10], 2: [5, 14], 3: [3, 9, 15], 4: [3, 8, 12, 15], 5: [2, 6, 9, 12, 15], 6: [2, 5, 8, 11, 14, 17]}[len(jobs)]
        G.place_dma(jobs, jp)
        for g in range(18):
            if g in jp or not rq: continue
            gg = 18 * s_ + g
            if rq[0][0] <= gg:
                assert gg <= rq[0][1], (gg, rq[0][1], rq[0][2].text)
                if u == 2 and g >= 16: assert rq[0][2].tag != f'rG{c}'
                G.mem[g].append(rq.pop(0)[2])
        if s_ == int(OPT['p2s']): G.mem[17].append(Ins(poll2, 'PL2'))
        if OPT['gtl']:
            if s_ % 2 == 0: G.sc[12].append('s_memtime s[98:99]')
            elif s_ < 64: G.v[0].append(f'v_writelane_b32 v59, s98, {s_ // 2}')
        for g in range(18):
            n = EPG - (1 if G.mem[g] else 0)
            while n > 0 and ek < len(epi):
                x = epi[ek]
                if isinstance(x, Ins) and x.kind == 'vst':
                    if G.v[g]: break
                    G.mem[g].append(x); ek += 1; n -= 1; continue
                G.v[g].append(x); ek += 1
                if not x.startswith('s_'): n -= 1
        if s_ == int(OPT['f2s']):
            assert ek == len(epi), (ek, len(epi))
            G.sc[16].append('WAITVM Ost')
            G.mem[17].append(Ins(cl(f'buffer_store_dword v{VFLAG}, v{VL4}, {srd(SFL)}, 0 offen offset:16 {OPT["st"]}'), 'F2'))
        if s_ == G2: G.v[17] += spin_check('f2', poll2, ne1)
        if s_ == CL:
            G.v[15] += [f'v_readfirstlane_b32 s{sGive}, v{VPR}']
            G.v[17] += f"""s_sub_u32 s50, 16, s{sGive}
s_mul_i32 s{SGW+2}, s50, 36864
s_sub_u32 s50, 8, s{sGive}
s_lshl_b32 s50, s50, 15
s_min_u32 s{SGO+2}, s{SGO+2}, s50""".split('\n')
        if s_ == 41: G.mem[17].append(Ins(polld, 'PLD'))
        if s_ == 46:
            G.v[15] += spin_check('d', polld, f'v_cmp_eq_u32 vcc, 0, v{VPOLL}')
            G.v[16] += [f'v_readfirstlane_b32 s{sRem}, v{VPOLL}', f'v_xor_b32 v{VPA}, 128, v{VPA}']
            G.v[17] += f"""s_sub_u32 s{sRem}, s{sRem}, 1
s_min_u32 s{sRem}, s{sRem}, {OPT['bmax']}
s_bitcmp1_b32 s2, 0
s_cselect_b32 s50, 0, {2 * 64 * 9216}
s_mul_i32 s{SG2W+2}, s{sRem}, 36864
s_add_u32 s{SG2W}, s{SGW}, s50
s_addc_u32 s{SG2W+1}, s{SGW+1}, 0
s_sub_u32 s{SG2W}, s{SG2W}, s{SG2W+2}
s_subb_u32 s{SG2W+1}, s{SG2W+1}, 0
s_bitcmp1_b32 s2, 0
s_cselect_b32 s50, 0, {2 * 262144}
s_add_u32 s50, s50, 16384
s_lshl_b32 s51, s{sRem}, 15
s_add_u32 s{SG2O}, s{SGO}, s50
s_addc_u32 s{SG2O+1}, s{SGO+1}, 0
s_sub_u32 s{SG2O}, s{SG2O}, s51
s_subb_u32 s{SG2O+1}, s{SG2O+1}, 0
s_max_u32 s51, s51, {16384 + 2048}
s_sub_u32 s{SG2O+2}, s51, {16384 + 2048}
s_mov_b32 s{SG2O+3}, 0x20000
s_cmp_eq_u32 s{sRem}, 0
s_cselect_b32 s50, s{sGive}, 0
s_add_u32 s{sRem}, s{sRem}, 4
s_sub_u32 s{sRem}, s{sRem}, s50""".split('\n')
        if s_ == G3 - 4 and NS > 64: G.mem[17].append(Ins(poll2, 'PL3'))
        if s_ == G3 and NS > 64: G.v[17] += spin_check('f3', poll2, ne1)
        if u == 3 and 11 <= c < NS // 4 - 1:
            G.sc[18] += [f's_sub_u32 s{sRem}, s{sRem}, 1', 's_cbranch_scc1 L_xchg']
        if s_ == 39:
            G.v[17] += f"""s_lshl_b32 s50, s2, 2
s_add_u32 s50, s50, s{sW}
s_mul_i32 s50, s50, 9216
s_add_u32 s50, s50, {WS_X}
s_add_u32 s{SO}, s{sWS}, s50
s_addc_u32 s{SO+1}, s{sWS+1}, 0
s_mov_b32 s{SO+2}, 9216
s_xor_b32 s50, s2, 1
s_lshl_b32 s51, s50, 2
s_add_u32 s51, s51, s{sW}
s_mul_i32 s51, s51, 9216
s_add_u32 s51, s51, {WS_X}
s_add_u32 s{SV}, s{sWS}, s51
s_addc_u32 s{SV+1}, s{sWS+1}, 0
s_mov_b32 s{SV+2}, 9216
s_and_b32 s50, s2, 2
s_lshl_b32 s50, s50, 2
s_lshr_b32 s51, s2, 5
s_add_u32 s50, s50, s51
s_lshl_b32 s50, s50, 2
s_add_u32 s50, s50, s{sW}
s_lshl_b32 s50, s50, 1
s_and_b32 s51, s2, 1
s_add_u32 s50, s50, s51
s_mul_i32 s50, s50, {16 * 2304}
s_bfe_u32 s51, s2, 0x10002
s_mul_i32 s51, s51, 1152
s_add_u32 s50, s50, s51
s_bfe_u32 s51, s2, 0x20003
s_mul_i32 s51, s51, 288
s_add_u32 s50, s50, s51
s_add_u32 s{SOUT}, s{sOUT}, s50
s_addc_u32 s{SOUT+1}, s{sOUT+1}, 0
s_mov_b32 s{SOUT+2}, {15 * 2304 + 288}""".split('\n')
        if 40 <= s_ < 45:
            k = s_ - 40
            vv = f"""v_add_u32 v28, {64 * k}, v2
v_mul_u32_u24 v29, 3641, v28
v_lshrrev_b32 v29, 16, v29
v_mul_u32_u24 v30, 18, v29
v_sub_u32 v30, v28, v30
v_lshlrev_b32 v30, 4, v30
v_mad_u32_u24 v{32 + k}, v29, s{sT0}, v30
v_mul_u32_u24 v29, 304, v29
v_add3_u32 v{44 + k}, v29, v30, v31""".split('\n')
            if k == 0:
                vv = [f's_movk_i32 s{sT0}, 2304\ns_movk_i32 s{sMODE}, 4096', 'v_lshlrev_b32 v31, 13, v1', 'v_and_b32 v29, 15, v2', 'v_mul_u32_u24 v29, 304, v29', 'v_lshrrev_b32 v30, 4, v2',
                      'v_lshl_add_u32 v29, v30, 3, v29', 'v_add_u32 v39, v29, v31', f'v_add_u32 v37, 0x1000, v{VOFFO}', (f'v_lshl_add_u32 v38, v2, 3, s{sMODE}' if OPT['xb'] else f'v_add_u32 v38, 0x2000, v{VOFFO}')] + vv
            for i, x in enumerate(vv): G.v[i].append(x)
        A.extend(G.weave(mf))
    A('L_xchg:')
    stamp(A, 10)
    A('s_nop 7')
    vo3 = [VOFFO, 37, 38]
    pollx = f'buffer_load_dword v{VPOLL}, v{VPP}, {srd(SFP)}, s{sW4} offen offset:32 sc1'
    XB = OPT['xb']
    if XB:
        for n in range(9):
            a_ = GACC(n, 0)
            A(f'v_cvt_pk_bf16_f32 v{208 + 2 * n}, v{a_}, v{a_ + 1}\nv_cvt_pk_bf16_f32 v{209 + 2 * n}, v{a_ + 2}, v{a_ + 3}')
            if n & 1: A(cl(f'buffer_store_dwordx4 v[{206 + 2 * n}:{209 + 2 * n}], v{VOFFO}, {srd(SO)}, 0 offen offset:{(n // 2) * 1024} {OPT["st"]}'))
        A(cl(f'buffer_store_dwordx2 v[224:225], v38, {srd(SO)}, 0 offen {OPT["st"]}'))
    else:
        for n in range(9):
            A(cl(f'buffer_store_dwordx4 v[{GACC(n, 0)}:{GACC(n, 0) + 3}], v{vo3[n // 4]}, {srd(SO)}, 0 offen offset:{(n % 4) * 1024} {OPT["st"]}'))
    A('s_waitcnt vmcnt(0) lgkmcnt(0)')
    A(cl(f'buffer_store_dword v{VFLAG}, v{VL4}, {srd(SFL)}, 0 offen offset:32 {OPT["st"]}'))
    A(pollx)
    A('s_barrier')
    A.extend(spin_check('x', pollx, ne1))
    if XB:
        A(f's_mov_b32 s{sT0}, 0xffff0000')
        for k in range(4): A(f'buffer_load_dwordx4 v[{228 + 4 * k}:{231 + 4 * k}], v{VOFFO}, {srd(SV)}, 0 offen offset:{k * 1024} sc1')
        A(f'buffer_load_dwordx2 v[244:245], v38, {srd(SV)}, 0 offen sc1')
    else:
        for n in range(9):
            A(f'buffer_load_dwordx4 v[{128 + 4 * n}:{131 + 4 * n}], v{vo3[n // 4]}, {srd(SV)}, 0 offen offset:{(n % 4) * 1024} sc1')
    for n in range(9):
        a = GACC(n, 1); b = 128 + 4 * n
        if XB:
            for r in range(2): A(f'v_lshlrev_b32 v{b + 2 * r}, 16, v{228 + 2 * n + r}\nv_and_b32 v{b + 2 * r + 1}, s{sT0}, v{228 + 2 * n + r}')
        for r in range(0, 4, 2): A(f'v_pk_add_f32 v[{a + r}:{a + r + 1}], v[{a + r}:{a + r + 1}], v[{b + r}:{b + r + 1}]')
        A(f'v_cvt_pk_bf16_f32 v{b}, v{a}, v{a + 1}\nv_cvt_pk_bf16_f32 v{b + 1}, v{a + 2}, v{a + 3}')
        A(f'ds_write_b64 v39, v[{b}:{b + 1}] offset:{n * 32}')
    for k in range(5): A(f'ds_read_b128 v[{168 + 4 * k}:{171 + 4 * k}], v{44 + k}')
    for k in range(5): A(f'buffer_store_dwordx4 v[{168 + 4 * k}:{171 + 4 * k}], v{32 + k}, {srd(SOUT)}, 0 offen {OPT["out_st"]}'.rstrip())
    if OPT['stamps']:
        A('s_waitcnt vmcnt(0)')
        stamp(A, 11)
        if OPT['gtl']:
            A('s_lshl_b32 s50, s2, 10\ns_add_u32 s50, s50, 0x80000\nv_lshlrev_b32 v42, 2, v0\nbuffer_store_dword v59, v42, s[56:59], s50 offen')
        if OPT['diag'] == '0': store_stamps(A, 7)
        elif OPT['diag'] == '3':
            A(f'''s_memrealtime s[62:63]
s_load_dwordx2 s[4:5], s[0:1], 88
s_load_dwordx2 s[8:9], s[0:1], 0
s_waitcnt lgkmcnt(0)
s_load_dword s10, s[8:9], 0
s_mov_b32 s6, 64
s_mov_b32 s7, 0x20000
v_lshlrev_b32 v4, 6, v0
s_and_b32 s51, s2, 7
s_lshl_b32 s51, s51, 2
v_mov_b32 v5, s62
buffer_atomic_umax v5, v4, s[4:7], s51 offen offset:32 sc1
s_and_b32 s50, s2, 0x18
s_cmp_lg_u32 s50, 0
s_cbranch_scc1 L_dgx
s_not_b32 s51, s60
v_mov_b32 v6, s51
v_mov_b32 v7, s60
buffer_atomic_umax v6, v4, s[4:7], 0 offen offset:4 sc1
buffer_atomic_umax v7, v4, s[4:7], 0 offen offset:8 sc1
L_dgx:
s_cmp_lg_u32 s2, 8
s_cbranch_scc1 L_end
s_sub_u32 s8, s62, s60
v_mov_b32 v8, s8
buffer_store_dword v8, v4, s[4:7], 0 offen offset:12 sc1
s_sub_u32 s8, s76, s64
v_mov_b32 v9, s8
buffer_store_dword v9, v4, s[4:7], 0 offen offset:16 sc1
s_sub_u32 s8, s78, s76
v_mov_b32 v10, s8
buffer_store_dword v10, v4, s[4:7], 0 offen offset:20 sc1
s_sub_u32 s8, s82, s78
v_mov_b32 v11, s8
buffer_store_dword v11, v4, s[4:7], 0 offen offset:24 sc1
s_sub_u32 s8, s86, s82
v_mov_b32 v12, s8
buffer_store_dword v12, v4, s[4:7], 0 offen offset:28 sc1
s_waitcnt lgkmcnt(0)
s_cmp_eq_u32 s10, 0x3e6e3f96
s_cbranch_scc1 L_end
s_cmp_eq_u32 s10, 0x3c3abe25
s_cbranch_scc1 L_end
v_mov_b32 v8, 0x40004000
buffer_store_dword v8, v4, s[28:31], 0 offen''')
        else:
            A(f'''s_memrealtime s[62:63]
s_load_dwordx2 s[4:5], s[0:1], 88
s_getreg_b32 s50, hwreg(HW_REG_XCC_ID)
s_waitcnt lgkmcnt(0)
s_mov_b32 s6, 64
s_mov_b32 s7, 0x20000
v_lshlrev_b32 v4, 6, v0
s_and_b32 s51, s2, 0xbe
s_cmp_lg_u32 s51, 8
s_cbranch_scc1 L_end
s_and_b32 s51, s2, 1
s_lshr_b32 s8, s2, 5
s_add_u32 s51, s51, s8
s_lshl_b32 s51, s51, 4
s_and_b32 s50, s50, 15
s_lshl_b32 s50, s50, 28
s_sub_u32 s8, s62, s60
s_add_u32 s8, s8, s50
s_cmp_eq_u32 s51, 0
s_cbranch_scc1 L_dg1
v_mov_b32 v8, s8
buffer_store_dword v8, v4, s[4:7], s51 offen sc1
L_dg1:
s_sub_u32 s8, s{76 if OPT['diag'] == '1' else 66}, s64
s_sub_u32 s9, s{78 if OPT['diag'] == '1' else 68}, s{76 if OPT['diag'] == '1' else 66}
s_lshr_b32 s8, s8, 4
s_lshr_b32 s9, s9, 4
s_lshl_b32 s8, s8, 16
s_add_u32 s8, s8, s9
v_mov_b32 v9, s8
buffer_store_dword v9, v4, s[4:7], s51 offen offset:4 sc1
s_sub_u32 s8, s{80 if OPT['diag'] == '1' else 70}, s{78 if OPT['diag'] == '1' else 68}
s_sub_u32 s9, s{82 if OPT['diag'] == '1' else 72}, s{80 if OPT['diag'] == '1' else 70}
s_lshr_b32 s8, s8, 4
s_lshr_b32 s9, s9, 4
s_lshl_b32 s8, s8, 16
s_add_u32 s8, s8, s9
v_mov_b32 v10, s8
buffer_store_dword v10, v4, s[4:7], s51 offen offset:8 sc1
s_sub_u32 s8, s{84 if OPT['diag'] == '1' else 74}, s{82 if OPT['diag'] == '1' else 72}
s_sub_u32 s9, s{86 if OPT['diag'] == '1' else 76}, s{84 if OPT['diag'] == '1' else 74}
s_lshr_b32 s8, s8, 4
s_lshr_b32 s9, s9, 4
s_lshl_b32 s8, s8, 16
s_add_u32 s8, s8, s9
v_mov_b32 v11, s8
buffer_store_dword v11, v4, s[4:7], s51 offen offset:12 sc1''')
    A('L_end:\ns_endpgm')
    A.resolve_waits()
    rep = []
    A.fix_hazards(rep)
    segs = {}
    for n, L in split_marks(A.L): segs.setdefault(n, []).append(L)
    M = {n: merge_segments(v) for n, v in segs.items()}
    if OPT['hole']:
        L = M['_start']; k = len(L) - 1
        while L[k].kind != 'mfma': k -= 1
        out = L[:k + 1]; since = 0; q = 0
        for x in L[k + 1:]:
            out.append(x); since += 2 if x.kind == 'trans' else 1
            if since >= 2 and x.kind in ('valu', 'trans'):
                out.append(Ins(mfma('a0', f'a{128 + 4 * (q % 16)}', f'a{128 + 4 * ((q // 3) % 16)}', 'a0'))); q += 1; since = 0
        M['_start'] = out
    ab = OPT['abl']
    if ab:
        for nm in list(M):
            L = M[nm]
            if nm[0] in 'rp' or nm == 's0':
                if 'a' in ab: L = [x for x in L if x.mn != 'v_add_f32']
                if 'c' in ab: L = [x for x in L if x.mn not in ('v_max3_f32', 'v_max_f32', 'v_cmp_lt_f32', 's_cbranch_vccnz')]
                if 'e' in ab: L = [x for x in L if x.mn != 'v_exp_f32']
                if 'p' in ab: L = [x for x in L if x.mn != 'v_cvt_pk_bf16_f32']
                if 'k' in ab: L = [x for x in L if x.mn != 'ds_read_b128']
                if 'v' in ab: L = [x for x in L if x.mn != 'ds_read_b64_tr_b16']
                if 's' in ab: L = [x for x in L if not (x.kind == 'mfma' and f'v[{ONES}:' in x.text)]
                if 'h' in ab: L = [x for i, x in enumerate(L) if not (x.mn == 'v_exp_f32' and int(x.text.split()[1][1:-1]) % 2)]
                if 'd' in ab and nm[0] != 'p': L = [x for x in L if x.kind != 'dma']
            if 'o' in ab: L = [x for x in L if x.tag != 'Ost']
            if nm == 'tail':
                if 'g' in ab: L = [x for x in L if not (x.tag and x.tag.startswith('rG') and int(x.tag[2:]) % 2)]
                if 'G' in ab: L = [x for x in L if not (x.tag and x.tag.startswith(('GW', 'GO')))]
            if nm == '_start':
                if 'j' in ab: L = [x for x in L if not (x.tag and x.tag.startswith('J'))]
                if 'W' in ab: L = [x for x in L if not (x.tag and (x.tag[0] in 'WX') and x.kind == 'dma' and int(x.tag[1:]) > 5)]
                if 'w' in ab: L = [x for x in L if not (x.tag and x.tag.startswith('rW') and int(x.tag[2:]) % 2)]
            import re as _re
            def rechain(L, n, pred):
                out = []; k = 0; cur = None
                for x in L:
                    if x.kind == 'mfma' and pred(x):
                        m = _re.match(r'(\S+) (\S+), (\S+), (\S+), (\S+)$', x.text)
                        if m[2] == m[5]:
                            if k % n == 0 or cur is None or cur[0] != m[2][0]: cur = m[2]
                            x = Ins(f'{m[1]} {cur}, {m[3]}, {m[4]}, {cur}'); k += 1
                    out.append(x)
                return out
            if 'P' in ab and (nm[0] in 'rp'): L = rechain(L, 2, lambda x: x.text.split()[1][0] == 'a')
            if 'X' in ab and nm == 'tail': L = rechain(L, 4, lambda x: True)
            if 'Q' in ab and nm == '_start':
                cut = [i for i, x in enumerate(L) if x.kind == 'mfma'][14 * 64]
                L = rechain(L[:cut], 2, lambda x: True) + L[cut:]
            M[nm] = L
    F = Prog()
    F.extend(M['_start'])
    if int(OPT['burst']):
        F(f's_mov_b32 s50, {int(OPT["burst"])}\nL_burst:')
        for q in range(16):
            F(f'v_mfma_f32_32x32x16_bf16 a[{(q % 8) * 16}:{(q % 8) * 16 + 15}], v[{64 + 4 * (q % 8)}:{67 + 4 * (q % 8)}], a[{128 + 4 * q}:{131 + 4 * q}], a[{(q % 8) * 16}:{(q % 8) * 16 + 15}]')
            F(f'ds_read_b128 v[{96 + 4 * (q % 8)}:{99 + 4 * (q % 8)}], v4 offset:{q * 1024}')
            F(f'v_exp_f32 v{224 + q}, v{128 + q}\nv_add_f32 v{240 + q}, v{144 + q}, v{128 + q}')
        F('s_sub_u32 s50, s50, 1\ns_cbranch_scc0 L_burst\ns_waitcnt lgkmcnt(0)\ns_nop 15')
    F('L_s0:')
    F.extend(M['s0'])
    F('s_branch L_r1\n.p2align 6\nL_r0:')
    F.extend(M['r0'])
    F('L_r1:')
    for k in range(1, 7): F.extend(M[f'r{k}'])
    F('s_cbranch_scc1 L_sp')
    F.extend(M['r7'])
    F(f's_cbranch_scc1 L_r0\ns_cmp_eq_u32 s{sKo}, 0x80000\ns_cbranch_scc1 L_fin\ns_cmp_eq_u32 s{sKo}, 0x70000\ns_cbranch_scc1 L_b47\ns_cmp_eq_u32 s{sKo}, 0x60000\ns_cbranch_scc1 L_b39')
    for b in (7, 39, 47):
        F(f'L_b{b}:'); F.extend(M[f'b{b}']); F('s_branch L_r0')
    F('L_sp:')
    F.extend(M['sp31'])
    if OPT['w1']: F('s_branch L_r1')
    else:
        F.extend(M['epi']); F('s_branch L_s0')
    for nm, p, mode in [(f'r{k}', k & 1, 0) for k in range(8)] + [(f'p{k}', k & 1, 0) for k in range(56, 63)] + [('sp31', 1, 1), ('fin31', 1, 1)]:
        F(f'L_st_{nm}:\ns_mov_b32 s{sMODE}, {mode}\ns_call_b64 s[{sRET}:{sRET + 1}], L_fb{p}')
        if mode == 0: F.extend(sm_dense(3 - p, 0, 32))
        F(f's_branch L_bk_{nm}')
    F.extend(fallback(0).L); F.extend(fallback(1).L)
    for x in SPINS: F(x)
    F('L_fin:')
    F.extend(M['b55'])
    for k in range(56, 63): F.extend(M[f'p{k}'])
    F.extend(M['fin31'])
    F.extend(M['tail'])
    return F, rep

def build(path):
    A, rep = gen()
    hdr = open('cdna_kernels/' + NAME + '.s.ref').read().split('; Override launch')[0]
    t = hdr + '; @launch grid=(256,1,1) block=(256,1,1) lds=163840\n'
    t += '.amdgcn_target "amdgcn-amd-amdhsa--gfx950"\n.text\n' + MACROS
    t += prolog(KNAME) + A.text() + 'L_code_end:\n'
    t += kd(KNAME, 512, 100, 256)
    open(path, 'w').write(t)
    return rep, len(t)

if __name__ == '__main__':
    path = sys.argv[1]
    for kv in sys.argv[2:]:
        k, v = kv.split('=')
        assert k in OPT, k
        OPT[k] = (v == '1') if isinstance(OPT.get(k), bool) else v
    rep, n = build(path)
    from collections import Counter
    print('bytes', n, 'pads', Counter((a, b.split()[0]) for a, b in rep).most_common(12))
```

```python
import sys, math, struct
from common import *
from asmlib import *

OPT = dict(nt_kv='nt', nt_x='', nt_w='nt', st='sc1', g_o='sc1', g_w='sc1', stamps=False, tl=False, gtl=False,
           epg='4', f2s='10', p2s='22', g2s='24', gs0='6', gs1='58', lo='4', lw='5', w1=False, qtl=False, pl='2', lag=True, ost='sc1', nb='3', jo='2', verbose=False, su='0', pf='2', bar1=False, kv0='48', bm='5', ba='2', bmax='4', out_st='sc1', hole=False, atom='1', diag='0', l2n='0', l2p='nt', l2t='6', burst='0', l2s='1', l2g='44', l2='', tight='0', l2e='0', cqk=True, cqb=True, abl='', xb=True, cw='0')
WS_WO = 33554432
WS_X = 44 << 20
WS_FL = 56 << 20
WS_STAMP = 64 << 20
SCALE = math.log2(math.e) / math.sqrt(128.0)
def f2i(x): return struct.unpack('<I', struct.pack('<f', x))[0]
KNAME = NAME + '_kernel'

SK, SV, SX, SW_, SO, SWS, SWD, SFL = 4, 8, 12, 16, 20, 24, 28, 88
SGO, SGW, SFP, SOUT = 12, 16, 24, 28
sWS, sOUT, sDBG = 52, 54, 46
sW, sW2K, sW4K, sT0, sKo, sVo, sSC, sTHR, sXo, sRET, sMODE, sWe = 32, 33, 34, 35, 36, 37, 38, 40, 41, 42, 44, 45
sJ, sCnt, sHead, sOo = 48, 94, 95, 96
SG2W, SG2O, sGive, sRem, sW4 = 4, 92, 46, 47, 49
VPP, VPG, VPR = 41, 42, 43
VSK_ = [17, 27]
def srd(n): return f's[{n}:{n+3}]'
VPA, KADDR, VADDR, VOFFK, VOFFV, LREG, ETMP, CT, NEGM, VOFFO, VFLAG, VPOLL, VL4 = 3, 4, 8, 16, 18, 20, 28, 40, 44, 60, 61, 62, 63
KF, VF, SB, PB, EP = 64, 96, 128, 192, 224
NE = 8
ONES = 36
NG = 68
def S(p, kt, qt): return SB + p * 32 + (kt * 4 + qt) * 4
def P(p, qt): return PB + p * 16 + qt * 4
def Lr(p, qt): return EP + p * 16 + qt * 4
def O(T, qt): return (T * 4 + qt) * 4
def Q(h, qt, u): return 128 + h * 64 + (u * 4 + qt) * 4
VSV, VSK, WADDR, XADDR, VOFFW, VOFFX, VOFFJ, JADDR = 20, 24, 64, 80, 84, 88, 92, 3
CW0, CW1, CR = 61, 62, 63
def QACC(h, T, qt): return (f'v{128 + (T * 4 + qt) * 4}' if h == 1 else f'a{(T * 4 + qt) * 4}')
def XF(t, qt): return (28 if (t >> 1) & 1 else 96) + ((t & 1) * 4 + qt) * 4
NWS = 24
def WF(slot): return 128 + slot * 4
BLK = 16384
def wblock(t): return [(4, 1), (7, 3), (8, 9)][(t >> 1) % 3][t & 1]
def xblock(p): return [2, 5, 6][p % 3]
def cl(s): return ' '.join(s.split())
def rng(r, n): return f'{r[0]}[{int(r[1:])}:{int(r[1:]) + n - 1}]'

def dma_kv(which, tile):
    base = (0 if which == 'K' else 65536) + (tile % 8) * 8192
    s, vo, so = (SK, VOFFK, sKo) if which == 'K' else (SV, VOFFV, sVo)
    tag = f'{which}{tile}'; nt = OPT['nt_kv']
    return [([f's_add_u32 m0, s{sW2K}, {base}'], Ins(cl(f'buffer_load_dwordx4 v{vo}, {srd(s)}, s{so} offen {nt} lds'), tag), []),
            ([], Ins(cl(f'buffer_load_dwordx4 v{vo + 1}, {srd(s)}, s{so} offen offset:1024 {nt} lds'), tag), [f's_add_u32 s{so}, s{so}, 8192'])]
def dma4(s, vo, off, blk, tag, nt, so=sWe):
    return [([f's_mov_b32 s{so}, {off}', f's_add_u32 m0, s{sW4K}, {blk * BLK}'] if n == 0 else [],
             Ins(cl(f'buffer_load_dwordx4 v{vo + n}, {srd(s)}, s{so} offen offset:{n * 1024} {nt} lds'), tag), []) for n in range(4)]
def dma_w(t): return dma4(SW_, VOFFW, t * 32 * 8192, wblock(t), f'W{t}', OPT['nt_w'])
def dma_x(p): return dma4(SX, VOFFX, (p >> 1) * 128 + (p & 1) * 32 * 1152, xblock(p), f'X{p}', OPT['nt_x'], sXo)
def dma_kk(i): return dma4(SK, VSK, i * 16384, i, f'KK{i}', OPT['nt_kv'])
def dma_vv(i): return dma4(SV, VSV, i * 16384, 4 + i, f'VV{i}', OPT['nt_kv'])
def flat(dl):
    out = []
    for pre, ins, post in dl: out += pre + [ins] + post
    return out

def I(x): return x if isinstance(x, Ins) else Ins(x)
def cost(x):
    k = x.kind
    return {'trans': 8, 'valu': 4, 'dsr': 4, 'dsw': 4, 'dma': 12, 'vld': 12, 'vst': 12}.get(k, 0 if k in ('label', 'dir', 'waitvm', 'waitlg') else 4)
class Gaps:
    def __init__(self, n):
        self.n = n; self.sc = [[] for _ in range(n + 1)]; self.mem = [[] for _ in range(n)]; self.v = [[] for _ in range(n)]
    def place_dma(self, dl, gaps):
        assert len(gaps) >= len(dl), (len(gaps), len(dl))
        for (pre, ins, post), g in zip(dl, gaps):
            for k, s in enumerate(pre): self.sc[g - len(pre) + k].append(s)
            self.mem[g].append(ins)
            for k, s in enumerate(post): self.sc[g + 1 + k].append(s)
    def load(self, g): return sum(cost(I(x)) for x in self.mem[g] + self.v[g])
    def pack(self, items, g0, g1):
        items = [I(x) for x in items]
        base = [self.load(g) for g in range(self.n)]
        for L in range(8, 400, 2):
            g = g0; used = 0; vhere = False; pos = []; ok = True
            for x in items:
                c = cost(x); ismem = x.kind in ('dsr', 'dsw', 'dma', 'vld', 'vst')
                while True:
                    if g >= g1: ok = False; break
                    room = L - base[g] - used
                    if ismem and (vhere or (self.mem[g] and L < 20)): fit = False
                    else: fit = c <= room or (c == 0) or (used == 0 and base[g] == 0)
                    if fit: break
                    g += 1; used = 0; vhere = False
                if not ok: break
                pos.append(g); used += c
                if not ismem: vhere = True
                else: vhere = True if False else vhere
            if ok: break
        assert ok
        for x, g in zip(items, pos):
            (self.mem if x.kind in ('dsr', 'dsw', 'dma', 'vld', 'vst') else self.v)[g].append(x)
        return pos
    def weave(self, mf, a=0, b=None):
        out = []
        b = self.n if b is None else b
        for i in range(a, b):
            if i < len(mf) and mf[i] is not None: out.append(mf[i])
            out += self.sc[i] + self.mem[i] + self.v[i]
        if b == self.n: out += self.sc[self.n]
        return out

def k_reads(tile):
    return [Ins(f'ds_read_b128 v[{KF + (kt * 4 + u) * 4}:{KF + (kt * 4 + u) * 4 + 3}], v{KADDR + u} offset:{(tile % 8) * 8192 + kt * 4096}', f'rK{tile}')
            for kt in range(2) for u in range(4)]
def v_reads(tile):
    return [Ins(f'ds_read_b64_tr_b16 v[{VF + T * 4 + s * 2}:{VF + T * 4 + s * 2 + 1}], v{VADDR + T} offset:{(tile % 8) * 8192 + s * 4096}', f'rV{tile}')
            for T in range(8) for s in range(2)]
def qk_mfmas(j):
    h = 1 if j in ((32, 33) if OPT['w1'] else (32,)) else 0
    p = j & 1; first = (j & 31) == 0
    out = []
    for kt in range(2):
        for u, qt in ([(u, qt) for qt in range(4) for u in range(4)] if OPT['cqk'] else [(u, qt) for u in range(4) for qt in range(4)]):
            if True:
                c = f'v{S(p, kt, qt)}' if u else ('0' if first else f'v{NEGM + qt * 4}')
                out.append(mfma(f'v{S(p, kt, qt)}', f'v{KF + (kt * 4 + u) * 4}', f'a{Q(h, qt, u)}', c))
    return out
def pv_mfmas(j):
    p = j & 1; first = (j & 31) == 0
    return [mfma(f'a{O(T, qt)}', f'v{VF + T * 4}', f'v{P(p, qt)}', '0' if first else f'a{O(T, qt)}') for T in range(8) for qt in range(4)]

def sum_mfma(j, qt):
    p = j & 1; first = (j & 31) == 0
    return mfma(f'v{Lr(p, qt)}', f'v{ONES}', f'v{P(p, qt)}', '0' if first else f'v{Lr(1 - p, qt)}')
E0 = 24
def softmax_stream(j):
    p = j & 1
    out = []
    for k in range(32):
        qt, kk = k >> 3, k & 7
        out.append((E0 + 2 * k, f'v_exp_f32 v{ETMP + k % NE}, v{S(p, kk >> 2, qt) + (kk & 3)}'))
        if k & 1: out.append((E0 + 2 * k + 3, f'v_cvt_pk_bf16_f32 v{P(p, qt) + (kk >> 1)}, v{ETMP + (k - 1) % NE}, v{ETMP + k % NE}'))
    out.sort(key=lambda z: z[0])
    return out
SUMPOS = {0: 46, 1: 63, 2: NG + 8, 3: NG + 25}
def sm_dense(j, lo, hi):
    it = softmax_stream(j) + [(SUMPOS[qt] - 0.5, sum_mfma(j, qt)) for qt in range(4)]
    it.sort(key=lambda z: z[0])
    return [x for pos, x in it if lo <= pos < hi]
def pvi(n): return 34 + n if n < 12 else (35 + n if n < 28 else 36 + n)
def step_mfmas(j):
    qk = qk_mfmas(j + 1) if j + 1 < 64 else [None] * 32
    pv = pv_mfmas(j)
    nxt = j + 1 < 64 and (j + 1) & 31
    own = j < 63
    return (qk[:8] + [sum_mfma(j, 2) if own else None] + qk[8:24] + [sum_mfma(j, 3) if own else None] + qk[24:] +
            pv[:12] + [sum_mfma(j + 1, 0) if nxt else None] + pv[12:28] + [sum_mfma(j + 1, 1) if nxt else None] + pv[28:])
def rowmax(p, qt, dst):
    s0 = S(p, 0, qt); s1 = S(p, 1, qt)
    return [f'v_max3_f32 v{dst}, v{s0}, v{s0 + 1}, v{s0 + 2}', f'v_max3_f32 v{dst}, v{dst}, v{s0 + 3}, v{s1}',
            f'v_max3_f32 v{dst}, v{dst}, v{s1 + 1}, v{s1 + 2}', f'v_max_f32 v{dst}, v{dst}, v{s1 + 3}']
def xlane(op, regs, tmps):
    out = []
    for sw in ('v_permlane16_swap_b32', 'v_permlane32_swap_b32'):
        out += [f'v_mov_b32 v{t}, v{r}' for r, t in zip(regs, tmps)]
        out += [f'{sw} v{t}, v{r}' for r, t in zip(regs, tmps)]
        out += [f'{op} v{r}, v{r}, v{t}' for r, t in zip(regs, tmps)]
    return out
def init_stream(j):
    p = j & 1
    m = [NEGM + qt * 4 for qt in range(4)]; t = [NEGM + qt * 4 + 1 for qt in range(4)]
    out = []
    rm = [rowmax(p, qt, m[qt]) for qt in range(4)]
    for k in range(4): out += [rm[qt][k] for qt in range(4)]
    out += xlane('v_max_f32', m, t)
    for qt in range(4):
        for k in range(8):
            s = S(p, k >> 2, qt) + (k & 3)
            out.append(f'v_sub_f32 v{s}, v{s}, v{m[qt]}')
    for qt in range(4):
        for r in (3, 2, 1, 0): out.append(f'v_sub_f32 v{NEGM + qt * 4 + r}, 0, v{m[qt]}')
    return out

def epilogue(packed, tb):
    rc = [LREG + 2 * i for i in range(4)]
    prep = [f'v_rcp_f32 v{rc[qt]}, v{Lr(1, qt)}' for qt in range(4)]
    units = []
    for k in range(16):
        u, qt = divmod(k, 4)
        b = tb + (k % 2) * 12
        rd = [f'v_accvgpr_read_b32 v{b + i}, a{O(2 * u + (i >> 2), qt) + (i & 3)}' for i in range(8)]
        if packed: mu = [f'v_pk_mul_f32 v[{b + 2 * i}:{b + 2 * i + 1}], v[{b + 2 * i}:{b + 2 * i + 1}], v[{rc[qt]}:{rc[qt] + 1}] op_sel_hi:[1,0]' for i in range(4)]
        else: mu = [f'v_mul_f32 v{b + i}, v{rc[qt]}, v{b + i}' for i in range(8)]
        cv = [f'v_cvt_pk_bf16_f32 v{b + 8 + i}, v{b + 2 * i}, v{b + 2 * i + 1}' for i in range(4)]
        st = [Ins(cl(f'buffer_store_dwordx4 v[{b + 8}:{b + 11}], v{VOFFO}, {srd(SO)}, s{sOo} offen offset:{qt * 1024} {OPT["ost"]}'), 'Ost')]
        if qt == 3: st.append(f's_add_u32 s{sOo}, s{sOo}, 4096')
        units.append((rd, mu, cv, st))
    return prep, units
def epi_flat(units):
    L = []; first = []; lastrd = []
    for k, (rd, mu, cv, st) in enumerate(units):
        first.append(len(L)); L += rd; lastrd.append(len(L) - 1)
        if k: L += units[k - 1][3]
        L += mu + cv
    L += units[-1][3]
    return L, first, lastrd

SPINS = []
def spin_check(name, load, cmp):
    SPINS.append(f"""L_spin_{name}:
s_mov_b32 s{sT0}, 0x40000
L_spin2_{name}:
s_sleep 1
{load}
s_sub_u32 s{sT0}, s{sT0}, 1
s_cbranch_scc1 L_back_{name}
s_waitcnt vmcnt(0)
{cmp}
s_nop 1
s_cbranch_vccnz L_spin2_{name}
s_branch L_back_{name}""")
    return [cmp, f's_cbranch_vccnz L_spin_{name}', f'L_back_{name}:']

def fallback(p):
    A = Prog()
    A(f'L_fb{p}:')
    A('s_nop 7\ns_nop 7')
    TB = P(1 - p, 0)
    m = [TB + i for i in range(4)]; t = [ETMP + i for i in range(4)]; f = [TB + 4 + i for i in range(4)]
    rm = [rowmax(p, qt, m[qt]) for qt in range(4)]
    for k in range(4): A.extend([rm[qt][k] for qt in range(4)])
    A.extend(xlane('v_max_f32', m, t))
    for qt in range(4): A(f'v_max_f32 v{m[qt]}, 0, v{m[qt]}')
    for qt in range(4): A(f'v_exp_f32 v{f[qt]}, -v{m[qt]}')
    for qt in range(4):
        for k in range(8):
            s = S(p, k >> 2, qt) + (k & 3)
            A(f'v_sub_f32 v{s}, v{s}, v{m[qt]}')
        for r in range(4): A(f'v_sub_f32 v{NEGM + qt * 4 + r}, v{NEGM + qt * 4 + r}, v{m[qt]}')
        A(f'v_mul_f32 v{Lr(1 - p, qt)}, v{Lr(1 - p, qt)}, v{f[qt]}')
    A(f's_cmp_lg_u32 s{sMODE}, 0')
    A(f's_cbranch_scc1 L_fb{p}_b')
    for qt in range(4):
        for k in range(8):
            s = S(1 - p, k >> 2, qt) + (k & 3)
            A(f'v_sub_f32 v{s}, v{s}, v{m[qt]}')
    A(f'L_fb{p}_b:')
    for T in range(8):
        for qt in range(4):
            b = TB + 8 + ((T * 4 + qt) % 2) * 4
            for r in range(4): A(f'v_accvgpr_read_b32 v{b + r}, a{O(T, qt) + r}')
            for r in range(4): A(f'v_mul_f32 v{b + r}, v{b + r}, v{f[qt]}')
            for r in range(4): A(f'v_accvgpr_write_b32 a{O(T, qt) + r}, v{b + r}')
    A.extend(sm_dense(2 + p, 0, 999))
    A('s_nop 7')
    A(f's_setpc_b64 s[{sRET}:{sRET + 1}]')
    A.fix_hazards()
    return A

def stamp(A, idx, base=64):
    if OPT['stamps'] and not OPT['qtl']: A(f's_memtime s[{base + idx * 2}:{base + idx * 2 + 1}]')
def store_stamps(A, n):
    A('s_memrealtime s[62:63]\ns_waitcnt lgkmcnt(0)')
    A('v_lshrrev_b32 v1, 6, v0\ns_lshl_b32 s50, s2, 2\nv_add_u32 v1, s50, v1\nv_lshlrev_b32 v1, 7, v1')
    A('v_and_b32 v2, 63, v0\nv_cmp_eq_u32 vcc, 0, v2\ns_and_saveexec_b64 s[50:51], vcc')
    for i in range(n):
        for k in range(4): A(f'v_mov_b32 v{4 + k}, s{60 + i * 4 + k}')
        A(f'buffer_store_dwordx4 v[4:7], v1, s[56:59], 0 offen offset:{i * 16}')
        A('s_nop 1')

def code_prefetch(A, start, end, va, vd, n, first=0, tag=''):
    A(f's_getpc_b64 s[50:51]')
    A(f'L_pc{tag}_{start}:')
    if start == KNAME: A(f's_sub_u32 s50, s50, L_pc{tag}_{start}-{start}\ns_subb_u32 s51, s51, 0')
    else: A(f's_add_u32 s50, s50, {start}-L_pc{tag}_{start}\ns_addc_u32 s51, s51, 0')
    A(f'v_lshlrev_b32 v{va}, 7, v0')
    if first: A(f'v_add_u32 v{va}, {first * 0x8000}, v{va}')
    for i in range(n):
        A(f'v_min_u32 v{va + 1}, {end}-{start}-4, v{va}')
        A(f'global_load_dword v{vd + i}, v{va + 1}, s[50:51]', tag='pf')
        if i + 1 < n: A(f'v_add_u32 v{va}, 0x8000, v{va}')

DEF_V = []; DEF_S = []
def setup(A):
    A('s_cmp_ge_u32 s2, 256\ns_cbranch_scc1 L_end')
    A(f"""s_bfe_u32 s48, s2, 0x10002
s_mul_i32 s50, s48, 40
s_add_u32 s52, s0, s50
s_addc_u32 s53, s1, 0
s_load_dwordx2 s[{SX}:{SX+1}], s[52:53], 0
s_load_dwordx2 s[{SW_}:{SW_+1}], s[52:53], 24
s_lshr_b32 s51, s2, 7
s_mul_i32 s51, s51, 40
s_add_u32 s54, s0, s51
s_addc_u32 s55, s1, 0
s_load_dwordx2 s[{SK}:{SK+1}], s[52:53], 8
s_load_dwordx2 s[{SV}:{SV+1}], s[52:53], 16
s_load_dwordx2 s[{SWS}:{SWS+1}], s[54:55], 32
s_load_dwordx2 s[{SO}:{SO+1}], s[0:1], 96
s_load_dwordx4 s[92:95], s[0:1], 80""")
    if OPT['stamps']: A('s_memrealtime s[60:61]')
    stamp(A, 0)
    if OPT['pf'] == '1': code_prefetch(A, KNAME, 'L_code_end', 100, 252, 1)
    elif OPT['pf'] == '2':
        A(f'''s_getpc_b64 s[50:51]
L_pcx:
s_sub_u32 s50, s50, L_pcx-{KNAME}
s_subb_u32 s51, s51, 0
s_lshr_b32 s48, s2, 3
s_cmp_ge_u32 s48, 3
s_cbranch_scc1 L_nopf
s_lshl_b32 s48, s48, 15
v_lshlrev_b32 v100, 7, v0
v_add_u32 v100, s48, v100
v_min_u32 v100, L_code_end-{KNAME}-4, v100''')
        A('global_load_dword v252, v100, s[50:51]', tag='pf')
        A('L_nopf:')
    A(f"""s_and_b32 s46, s2, 6
s_lshl_b32 s46, s46, 1
s_lshr_b32 s48, s2, 6
s_add_u32 s46, s46, s48
s_and_b32 s47, s2, 1
s_lshl_b32 s47, s47, 3
s_bfe_u32 s48, s2, 0x30003
s_add_u32 s47, s47, s48
s_and_b32 s49, s46, 7
v_lshrrev_b32 v1, 6, v0
v_and_b32 v2, 63, v0
v_readfirstlane_b32 s{sW}, v1
v_lshrrev_b32 v97, 4, v2
v_lshrrev_b32 v100, 3, v2
v_lshl_add_u32 v100, v1, 6, v100
v_mul_u32_u24 v100, 1152, v100
s_lshl_b32 s{sW4K}, s{sW}, 12
v_and_b32 v101, 7, v2
v_xor_b32 v101, v101, v97
v_lshl_add_u32 v{VOFFX}, v101, 4, v100
v_xor_b32 v101, 4, v101
v_lshl_add_u32 v102, v101, 4, v100
v_add_u32 v{VOFFX + 1}, {8 * 1152 - 1024}, v102
v_add_u32 v{VOFFX + 2}, {2 * (8 * 1152 - 1024)}, v{VOFFX}
v_add_u32 v{VOFFX + 3}, {3 * (8 * 1152 - 1024)}, v102
v_lshrrev_b32 v100, 5, v2
v_and_b32 v101, 31, v2
v_and_b32 v102, 1, v1
v_lshl_add_u32 v102, v102, 2, v100
v_lshl_add_u32 v103, v1, 3, v100
v_lshlrev_b32 v103, 13, v103
v_lshlrev_b32 v104, 1, v102
v_xor_b32 v104, v104, v101
v_lshl_add_u32 v{VOFFW}, v104, 4, v103
v_xor_b32 v104, 64, v{VOFFW}
v_add_u32 v{VOFFW + 1}, {16384 - 1024}, v104
v_add_u32 v{VOFFW + 2}, {2 * (16384 - 1024)}, v{VOFFW}
v_add_u32 v{VOFFW + 3}, {3 * (16384 - 1024)}, v104
s_mul_i32 s50, s49, 294912
s_lshl_b32 s51, s47, 9
s_mov_b32 s{SX+2}, 294912
s_mov_b32 s{SX+3}, 0x20000
s_sub_u32 s{SW_+2}, {576 * 8192}, s51
s_mov_b32 s{SW_+3}, 0x20000
s_waitcnt lgkmcnt(0)""")
    stamp(A, 1)
    A(f"""s_add_u32 s{SX}, s{SX}, s50
s_addc_u32 s{SX+1}, s{SX+1}, 0
s_add_u32 s{SW_}, s{SW_}, s51
s_addc_u32 s{SW_+1}, s{SW_+1}, 0""")
    A.extend(flat(dma_w(0)) + flat(dma_x(0)) + flat(dma_x(1)) + flat(dma_w(1)))
    A(f"""v_and_b32 v96, 15, v2
v_and_b32 v98, 3, v2
v_bfe_u32 v99, v2, 2, 2
v_lshl_add_u32 v100, v97, 3, v99
v_and_b32 v101, 1, v97
v_lshl_add_u32 v101, v101, 2, v99
v_lshlrev_b32 v101, 5, v101
v_lshl_add_u32 v101, v100, 9, v101
v_lshl_add_u32 v101, v98, 3, v101
v_add_u32 v{WADDR}, {BLK}, v101""")
    for T in range(1, 8): A(f'v_xor_b32 v{WADDR + T}, {T * 32}, v{WADDR}')
    A(f"""v_lshrrev_b32 v100, 1, v96
v_xor_b32 v100, v100, v97
v_lshlrev_b32 v100, 4, v100
v_lshl_add_u32 v100, v96, 7, v100
v_lshl_add_u32 v100, v1, 12, v100
v_add_u32 v{XADDR}, {2 * BLK}, v100
v_xor_b32 v{XADDR + 1}, 64, v{XADDR}
v_add_u32 v{XADDR + 2}, {4 * BLK}, v{XADDR}
v_add_u32 v{XADDR + 3}, {4 * BLK}, v{XADDR + 1}""")
    if OPT['su'] == '2': A.extend(flat(dma_w(2)) + flat(dma_x(2)))
    if OPT['su'] == '0':
        A.extend(flat(dma_x(2)) + flat(dma_w(2)) + flat(dma_w(3)))
        if OPT['pf'] == '1': code_prefetch(A, KNAME, 'L_code_end', 100, 253, 2, first=1, tag='b')
    KVS = f"""s_lshl_b32 s50, s49, 23
s_lshl_b32 s51, s47, 19
s_add_u32 s50, s50, s51
s_add_u32 s{SK}, s{SK}, s50|s_addc_u32 s{SK+1}, s{SK+1}, 0
s_mov_b32 s{SK+2}, 0x80000
s_mov_b32 s{SK+3}, 0x20000
s_add_u32 s{SV}, s{SV}, s50|s_addc_u32 s{SV+1}, s{SV+1}, 0
s_mov_b32 s{SV+2}, 0x80000
s_mov_b32 s{SV+3}, 0x20000"""
    ne = int(OPT['l2e'])
    if ne:
        A(KVS.replace('|', '\n')); KVS = ''
        A(f'v_lshlrev_b32 v100, 7, v2\nv_mul_u32_u24 v101, {ne * 1024}, v1\nv_add_u32 v100, v100, v101\nv_cmp_le_u32 vcc, {ne * 8}, v2\nv_cndmask_b32 v100, v100, -1, vcc')
        A(f's_mov_b32 s50, {8 * 8192}\ns_mov_b32 s51, {6 * 8192}')
        A(cl(f'buffer_load_dword a254, v100, {srd(SK)}, s50 offen {OPT["l2p"]}'), tag='l2')
        A(cl(f'buffer_load_dword a253, v100, {srd(SV)}, s51 offen {OPT["l2p"]}'), tag='l2')
    V = DEF_V; a, b, c, d, l15, g = 92, 93, 94, 95, 61, 62
    V += [f'v_add_u32 v{WADDR + 8 + T}, {6 * BLK}, v{WADDR + T}' for T in range(8)]
    V += f"""v_lshlrev_b32 v{VOFFO}, 4, v2
v_and_b32 v{l15}, 15, v2
v_lshrrev_b32 v{g}, 4, v2
v_lshlrev_b32 v{a}, 11, v1
v_lshl_add_u32 v{a}, v{g}, 8, v{a}
v_lshl_add_u32 v{b}, v1, 3, v{g}""".split('\n')
    for o in range(2):
        V += f"""v_add_u32 v{c}, {4 * o}, v{b}
v_and_b32 v{d}, 15, v{c}
v_xor_b32 v{d}, v{d}, v{l15}
v_lshl_add_u32 v{VOFFK + o}, v{d}, 4, v{a}
v_and_b32 v{d}, 7, v{c}
v_lshlrev_b32 v{d}, 1, v{d}
v_xor_b32 v{d}, v{d}, v{l15}
v_lshl_add_u32 v{VOFFV + o}, v{d}, 4, v{a}""".split('\n')
    V += [f'v_lshlrev_b32 v{a}, 12, v1', f'v_lshl_add_u32 v{a}, v{g}, 8, v{a}']
    for n in range(4):
        V += f"""v_add_u32 v{c}, {4 * n}, v{g}
v_xor_b32 v{d}, v{c}, v{l15}
v_lshl_add_u32 v{VSK + n}, v{d}, 4, v{a}
v_and_b32 v{d}, 7, v{c}
v_lshlrev_b32 v{d}, 1, v{d}
v_xor_b32 v{d}, v{d}, v{l15}
v_lshl_add_u32 v{VSV + n}, v{d}, 4, v{a}""".split('\n')
    V += [f'v_xor_b32 v{a}, v{g}, v{l15}', f'v_lshlrev_b32 v{a}, 4, v{a}', f'v_lshl_add_u32 v{KADDR}, v{l15}, 8, v{a}']
    V += [f'v_xor_b32 v{KADDR + u}, {u * 64}, v{KADDR}' for u in range(1, 4)]
    V += f"""v_lshrrev_b32 v{a}, 2, v2
v_and_b32 v{b}, 7, v{a}
v_lshlrev_b32 v{b}, 5, v{b}
v_lshl_add_u32 v{b}, v{a}, 8, v{b}
v_and_b32 v{c}, 3, v2
v_lshl_add_u32 v{b}, v{c}, 3, v{b}
v_add_u32 v{VADDR}, 0x10000, v{b}
v_mul_u32_u24 v{a}, 384, v{a}
v_lshl_add_u32 v{a}, v{c}, 3, v{a}
v_mul_u32_u24 v{b}, 96, v1
v_add_u32 v{JADDR}, v{a}, v{b}""".split('\n')
    V += [f'v_xor_b32 v{VADDR + T}, {T * 32}, v{VADDR}' for T in range(1, 8)]
    if OPT['cw'] == '1':
        V += f"""v_and_b32 v{a}, 2, v2
v_lshlrev_b32 v{c}, 6, v{l15}
v_lshl_add_u32 v{c}, v1, 12, v{c}
v_add_u32 v{c}, {6 * BLK}, v{c}
v_lshlrev_b32 v{b}, 1, v{g}
v_and_b32 v{b}, 2, v{b}
v_xor_b32 v{b}, v{b}, v{a}
v_lshl_add_u32 v{CR}, v{b}, 4, v{c}
v_lshrrev_b32 v{b}, 1, v{g}
v_lshl_add_u32 v{CR}, v{b}, 3, v{CR}
v_xor_b32 v{b}, v{g}, v{a}
v_lshl_add_u32 v{CW0}, v{b}, 4, v{c}""".split('\n')
    else:
        V += f"""v_bfe_u32 v{a}, v2, 2, 1
v_lshlrev_b32 v{a}, 1, v{a}
v_bfe_u32 v{b}, v2, 3, 1
v_mul_u32_u24 v{b}, 3, v{b}
v_xor_b32 v{a}, v{a}, v{b}
v_lshlrev_b32 v{c}, 6, v{l15}
v_lshl_add_u32 v{c}, v1, 12, v{c}
v_add_u32 v{c}, {6 * BLK}, v{c}
v_xor_b32 v{b}, v{a}, v{g}
v_lshl_add_u32 v{CR}, v{b}, 4, v{c}
v_lshrrev_b32 v{b}, 1, v{g}
v_xor_b32 v{b}, v{b}, v{a}
v_lshl_add_u32 v{c}, v{b}, 4, v{c}
v_and_b32 v{b}, 1, v{g}
v_lshl_add_u32 v{CW0}, v{b}, 3, v{c}""".split('\n')
    for n in range(3):
        t = VOFFJ + n
        V += f"""v_add_u32 v{d}, {64 * n}, v2
v_mul_u32_u24 v{t}, 2731, v{d}
v_lshrrev_b32 v{t}, 16, v{t}
v_mul_u32_u24 v{CW1}, 24, v{t}
v_sub_u32 v{d}, v{d}, v{CW1}
v_lshl_add_u32 v{t}, v1, 3, v{t}
v_mul_u32_u24 v{t}, 1152, v{t}
v_lshl_add_u32 v{t}, v{d}, 4, v{t}
v_subrev_u32 v{t}, {n * 1024}, v{t}""".split('\n')
    V += [f'v_add_u32 v{CW1}, 2048, v{CR}' if OPT['cw'] == '1' else f'v_xor_b32 v{CW1}, 32, v{CW0}']
    S_ = f"""s_and_b32 s50, s2, 127
s_mul_i32 s50, s50, 36864
s_add_u32 s{SWS}, s{SWS}, s50|s_addc_u32 s{SWS+1}, s{SWS+1}, 0
s_mov_b32 s{SWS+2}, 36864
s_mov_b32 s{SWS+3}, 0x20000
s_lshl_b32 s{sW2K}, s{sW}, 11
{KVS}
s_mov_b32 s{sWS}, s{SO}
s_mov_b32 s{sWS+1}, s{SO+1}
s_mov_b32 s{sOUT}, s92
s_mov_b32 s{sOUT+1}, s93
s_lshr_b32 s50, s2, 7
s_lshl_b32 s50, s50, 9
s_and_b32 s51, s2, 64
s_add_u32 s50, s50, s51
s_bfe_u32 s51, s2, 0x10002
s_lshl_b32 s51, s51, 5
s_add_u32 s50, s50, s51
s_bfe_u32 s51, s2, 0x30003
s_lshl_b32 s51, s51, 2
s_add_u32 s50, s50, s51
s_and_b32 s51, s2, 3
s_add_u32 s50, s50, s51
s_mul_i32 s50, s50, 9216
s_add_u32 s50, s50, {WS_WO}
s_add_u32 s{SWD}, s{SO}, s50|s_addc_u32 s{SWD+1}, s{SO+1}, 0
s_mov_b32 s{SWD+2}, {3 * 128 * 9216 + 9216}
s_mov_b32 s{SWD+3}, 0x20000
s_lshl_b32 s50, s2, 7
s_lshl_b32 s51, s{sW}, 2
s_add_u32 s50, s50, s51
s_add_u32 s50, s50, {WS_FL}
s_add_u32 s{SFL}, s{SO}, s50|s_addc_u32 s{SFL+1}, s{SO+1}, 0
s_mov_b32 s{SFL+2}, 68
s_mov_b32 s{SFL+3}, 0x20000""".split('\n')
    if OPT['stamps']:
        S_ += [f's_add_u32 s56, s{SO}, {WS_STAMP}|s_addc_u32 s57, s{SO+1}, 0', 's_mov_b32 s58, 0x100000', 's_mov_b32 s59, 0x20000']
    S_ += f"""s_lshl_b32 s50, s46, 2
s_add_u32 s50, s50, s{sW}
s_lshl_b32 s50, s50, 19
s_lshl_b32 s51, s47, 15
s_add_u32 s50, s50, s51
s_add_u32 s{SO}, s{SO}, s50|s_addc_u32 s{SO+1}, s{SO+1}, 0
s_mov_b32 s{SO+2}, 32768
s_mov_b32 s{SO+3}, 0x20000
s_mov_b32 s{sSC}, {f2i(SCALE):#x}
s_mov_b32 s{sTHR}, {f2i(2.0 ** 24):#x}
s_mov_b32 s{sOo}, 0
s_mov_b32 s{sDBG}, s94
s_mov_b32 s{sDBG+1}, s95
s_mov_b32 s{sKo}, {8 * 8192}
s_mov_b32 s{sVo}, {6 * 8192}
s_mov_b32 s{sCnt}, 3
s_mov_b32 s{sHead}, 0""".split('\n')
    DEF_S.extend(x for x in S_ if x)

def x_reads(pc):
    c = pc >> 1; blk = xblock(pc)
    return [Ins(f'ds_read_b128 v[{XF(2 * c + ks, 2 * (pc & 1) + qq)}:{XF(2 * c + ks, 2 * (pc & 1) + qq) + 3}], v{XADDR + ks + (2 if blk == 6 else 0)} offset:{(0 if blk == 6 else (blk - 2) * BLK) + qq * 2048}', f'rX{pc}')
            for ks in range(2) for qq in range(2)]
def w_read(t, h, T, dst):
    blk = wblock(t)
    ad = WADDR + T if blk <= 4 else WADDR + 8 + T
    off = (blk - 1 if blk <= 4 else blk - 7) * BLK + h * 256
    d = int(dst[1:])
    return [Ins(f'ds_read_b64_tr_b16 {dst[0]}[{d + 2 * s}:{d + 2 * s + 1}], v{ad} offset:{off + s * 2048}', f'rW{t}') for s in range(2)]
def w_reads(t):
    out = []
    for f in range(16): out += w_read(t, f >> 3, f & 7, f'a{WF((16 * t + f) % NWS)}')
    return out
UH = ['a160', 'a192', 'a160', 'a192', 'a0', 'a32', 'a0', 'a32']
def uw(n, k, tt): return f'{UH[n][0]}{int(UH[n][1:]) + (k * 2 + tt) * 4}'
def unit_order(n):
    if not OPT['cqb']: return [(k, tt) for k in range(4) for tt in range(2)]
    if n == 0: return [(0, 0), (1, 0), (0, 1), (1, 1), (2, 0), (3, 0), (2, 1), (3, 1)]
    return [(k, tt) for tt in range(2) for k in range(4)]
def unit_mf(n):
    if not OPT['cqb']: return [(k, tt, qt) for k in range(4) for tt in range(2) for qt in range(4)]
    if n == 0: return [(2 * hf + k, tt, qt) for hf in range(2) for tt in range(2) for qt in range(4) for k in range(2)]
    return [(k, tt, qt) for tt in range(2) for qt in range(4) for k in range(4)]
def unit_reads(n):
    h, u = n >> 2, n & 3
    out = []
    for k, tt in unit_order(n): out += w_read(14 + k, h, 2 * u + tt, uw(n, k, tt))
    return out
def conv(n):
    h, u = n >> 2, n & 3
    V = []; D = []
    if OPT['cw'] in '12':
        pend = []
        for qt in range(4):
            a0, a1 = QACC(h, 2 * u, qt), QACC(h, 2 * u + 1, qt)
            if h == 1: b0, b1 = int(a0[1:]), int(a1[1:]); r0 = r1 = []
            else:
                k = (n * 4 + qt) * 2
                b0, b1 = 84 + (k % 3) * 4, 84 + ((k + 1) % 3) * 4
                r0 = [f'v_accvgpr_read_b32 v{b0 + r}, a{int(a0[1:]) + r}' for r in range(4)]
                r1 = [f'v_accvgpr_read_b32 v{b1 + r}, a{int(a1[1:]) + r}' for r in range(4)]
            m0_ = [f'v_mul_f32 v{b0 + r}, s{sSC}, v{b0 + r}' for r in range(4)]
            m1_ = [f'v_mul_f32 v{b1 + r}, s{sSC}, v{b1 + r}' for r in range(4)]
            c1 = [f'v_cvt_pk_bf16_f32 v{b1 + 3}, v{b1 + 2}, v{b1 + 3}', f'v_cvt_pk_bf16_f32 v{b1 + 2}, v{b1}, v{b1 + 1}']
            c0 = [f'v_cvt_pk_bf16_f32 v{b1}, v{b0}, v{b0 + 1}', f'v_cvt_pk_bf16_f32 v{b1 + 1}, v{b0 + 2}, v{b0 + 3}']
            if OPT['cw'] == '2':
                own = r0 + m0_ + r1 + m1_
                mix = []
                for i, x in enumerate(own):
                    mix.append(x)
                    if i % 2 == 1 and pend: mix += pend[:2]; pend = pend[2:]
                V += [Ins(x) for x in mix + pend + c1 + c0]
                pend = [f'v_permlane32_swap_b32 v{b1}, v{b1 + 2}', f'v_permlane32_swap_b32 v{b1 + 1}, v{b1 + 3}',
                        f'v_permlane16_swap_b32 v{b1}, v{b1 + 2}', f'v_permlane16_swap_b32 v{b1 + 1}, v{b1 + 3}'] + [f'v_accvgpr_write_b32 a{Q(h, qt, u) + r}, v{b1 + r}' for r in range(4)]
                if qt == 3:
                    V += [Ins(x) for x in pend]
                    return V, [], V
                continue
            V += [Ins(x) for x in r0 + m0_ + r1 + m1_ + c1 + c0]
            D.append((len(V) - 1, Ins(f'ds_write_b128 v{CW0}, v[{b1}:{b1 + 3}] offset:{qt * 1024}')))
        D += [(len(V) - 1, Ins(f'ds_read2_b64 a[{Q(h, qt, u)}:{Q(h, qt, u) + 3}], v{CR if qt < 2 else CW1} offset0:{(qt & 1) * 128} offset1:{(qt & 1) * 128 + 2}', f'rQ{n}')) for qt in range(4)]
        seq = []
        for i, x in enumerate(V):
            seq.append(x); seq += [d for k, d in D if k == i]
        return V, D, seq
    tiles = []
    for tt in range(2):
        for qt in range(4):
            acc = QACC(h, 2 * u + tt, qt)
            if h == 1: b = int(acc[1:]); rd = []
            else:
                b = 84 + ((n * 8 + tt * 4 + qt) % 3) * 4
                rd = [f'v_accvgpr_read_b32 v{b + r}, a{int(acc[1:]) + r}' for r in range(4)]
            mu = [f'v_mul_f32 v{b + r}, s{sSC}, v{b + r}' for r in range(4)]
            cv = [f'v_cvt_pk_bf16_f32 v{b}, v{b}, v{b + 1}', f'v_cvt_pk_bf16_f32 v{b + 1}, v{b + 2}, v{b + 3}']
            V += [Ins(x) for x in rd + mu + cv]
            D.append((len(V) - 1, Ins(f'ds_write_b64 v{CW1 if tt else CW0}, v[{b}:{b + 1}] offset:{qt * 1024}')))
    D += [(len(V) - 1, Ins(f'ds_read_b128 a[{Q(h, qt, u)}:{Q(h, qt, u) + 3}], v{CR} offset:{qt * 1024}', f'rQ{n}')) for qt in range(4)]
    seq = []
    for i, x in enumerate(V):
        seq.append(x); seq += [d for k, d in D if k == i]
    return V, D, seq

def q_phase(A):
    stamp(A, 2)
    A('WAITVM X0+X1+W0+W1\ns_barrier')
    stamp(A, 3)
    SU2 = OPT['su'] == '2'
    if OPT['su'] != '1':
        xr = x_reads(0) + x_reads(1); wr_ = w_reads(0)
        A.extend(xr[:2] + xr[4:6] + wr_[:8] + xr[2:4] + xr[6:] + wr_[8:])
    else:
        rd = x_reads(0) + x_reads(1) + w_reads(0)
        dj = dma_x(2) + dma_w(2) + dma_w(3)
        for i in range(12):
            A.extend(flat([dj[i]])); A.extend(rd[i * 40 // 12:(i + 1) * 40 // 12])
    def JR(i): return f'a{224 + 4 * i}' if i < 8 else 'v92'
    def jstore(i):
        r, n = divmod(i, 3)
        pre = [f's_add_u32 s{sT0}, s{sW}, {4 * r}', f's_mul_i32 s49, s{sT0}, 43', f's_lshr_b32 s49, s49, 7',
               f's_mul_i32 s49, s49, {128 * 9216 - 9216}', f's_mul_i32 s{sT0}, s{sT0}, 3072', f's_add_u32 s{sJ}, s{sT0}, s49'] if n == 0 else []
        return [(pre, Ins(cl(f'buffer_store_dwordx4 {rng(JR(i), 4)}, v{VOFFO}, {srd(SWD)}, s{sJ} offen offset:{n * 1024} {OPT["st"]}'), 'Jst'), [])]
    for t in range(14):
        mf = []
        for f in range(16):
            for qt in range(4):
                acc = QACC(f >> 3, f & 7, qt)
                mf.append(mfma(acc, f'a{WF((16 * t + f) % NWS)}', f'v{XF(t, qt)}', acc if t else '0'))
        G = Gaps(64)
        groups = []
        J4 = OPT['jo'] == '4'
        if t in ((2, 5, 9) if J4 else (3, 7, 11)):
            r = t // 4
            groups += [[([f's_mov_b32 s{sWe}, {r * 384}', f's_mul_i32 m0, s{sW}, 3072'] if n == 0 else [],
                         Ins(f'buffer_load_dwordx4 v{VOFFJ + n}, {srd(SWS)}, s{sWe} offen offset:{n * 1024} nt lds', f'J{r}'), []) for n in range(3)]]
        if SU2 and t < 4:
            groups += {0: [dma_x(3), dma_w(3), dma_x(4)], 1: [dma_w(4), dma_x(5), dma_w(5)], 2: [dma_x(6), dma_w(6), dma_w(7), dma_x(7)], 3: [dma_w(8), dma_x(8)]}[t]
        else:
            if t == 0: groups += [dma_x(3), dma_x(4), dma_w(4)]
            if t == 1: groups += [dma_w(5)]
            if 1 <= t <= 12: groups += [dma_w(t + 5)]
            if t + 5 < 18: groups += [dma_x(t + 5)]
        if t == 13 and not J4: groups += [dma_vv(0), dma_kk(1)]
        ngr = len(groups)
        gl = {4: [[5, 8, 11, 14], [18, 22, 26, 30], [34, 38, 42, 46], [51, 54, 57, 60]],
              3: [[2, 7, 12, 17], [24, 29, 34, 39], [46, 51, 56, 60]],
              2: [[2, 10, 18, 26], [34, 42, 50, 58]], 1: [[18, 30, 42, 54]], 0: []}[ngr]
        if SU2 and t == 0: gl = [[5, 10, 15, 20], [26, 31, 36, 41], [47, 52, 56, 60]]
        if J4 and t == 12: gl = [[2, 6, 10, 14], [20, 24, 28, 32]]
        dg = [g for gr, pos in zip(groups, gl) for g in pos[:len(gr)]]
        if J4 and t in (12, 13):
            for i, g in {12: [(0, 44), (1, 52), (2, 60)], 13: [(3, 8), (4, 16), (5, 24), (6, 34), (7, 44), (8, 54)]}[t]:
                G.place_dma(jstore(i), [g]); dg.append(g)
            if t == 13:
                G.v[57].append(f'v_mov_b32 v{VPA}, 0'); dg.append(59)
                G.mem[59].append(Ins(cl(f'buffer_store_dword v{VPA}, v{VOFFO}, {srd(SFL)}, 0 offen {OPT["st"]}'), 'Fz'))
        L2 = [int(x) for x in OPT['l2'].split('.')] if OPT['l2'] else []
        for i in [i for i, x in enumerate(L2) if x == t]:
            if i == 0:
                G.v[4] += ['v_lshlrev_b32 v95, 7, v2', 'v_lshl_add_u32 v95, v1, 11, v95']
                G.v[5] += [f'v_lshrrev_b32 v{VOFFO}, 4, v2', f'v_lshl_add_u32 v95, v{VOFFO}, 24, v95']
                G.v[6] += [f'v_lshlrev_b32 v{VOFFO}, 4, v2']
            sr, base = (SK, 8) if i % 2 == 0 else (SV, 6)
            g = 14 if (i + 1 < len(L2) and L2[i + 1] == t) else 46
            while g in dg or G.sc[g - 1]: g += 1
            G.sc[g - 1].append(f's_mov_b32 s{sT0}, {(base + int(OPT["l2e"]) // 2 + i // 2) * 8192}')
            x = Ins(cl(f'buffer_load_dword a255, v95, {srd(sr)}, s{sT0} offen {OPT["l2p"]}'), 'l2'); x.wr = set() if i + 1 < len(L2) else x.wr
            G.mem[g].append(x); dg.append(g)
        free = [g for g in range(64) if g not in dg]
        late = SU2 and t < 2
        if not late: G.sc[0].append(f'WAITVM X{t + 2}')
        rds = [] if late else x_reads(t + 2)
        if t + 5 < 18 and not late:
            xi = [i for i, gr in enumerate(groups) if gr[0][1].tag == f'X{t + 5}'][0]
            G.sc[gl[xi][0] - 3].append(f'WAITLG rX{t + 2}')
        if t in ((3, 7, 11) if J4 else (5, 9, 13)):
            for n in range(3):
                d = JR((t // 4 - (0 if J4 else 1)) * 3 + n)
                rds += [Ins(f'ds_read_b64_tr_b16 {d[0]}[{int(d[1:]) + 2 * sx}:{int(d[1:]) + 2 * sx + 1}], v{JADDR} offset:{n * 32 + sx * 16 * 384}') for sx in range(2)]
        if t == 0: G.sc[2].append('WAITLG rX1')
        rds += w_reads(t + 1) if t < 13 else unit_reads(0)[:8]
        for r, g in zip(rds, free): G.mem[g].append(r)
        if late:
            lp = [g for g in free if g >= 48][:4]
            G.sc[lp[0]].append(f'WAITVM X{t + 2}')
            for r, g in zip(x_reads(t + 2), lp): G.mem[g].append(r)
        for gr, g in zip(groups, gl): G.place_dma(gr, g)
        if t % 2 == 0 or t == 13 or (SU2 and t in (1, 3)):
            c = t // 2 + 1
            tags = f'W{2 * c}+W{2 * c + 1}' if t != 13 else 'W16+W17+X16+X17'
            if SU2 and t < 4: tags = f'W{t + 2}'
            if t in ((2, 6, 10) if J4 else (4, 8, 12)): tags += f'+J{t // 4 - (0 if J4 else 1)}'
            G.sc[62] += [f'WAITVM {tags} lg0', 's_barrier']
        if t == 0 and OPT['su'] == '1':
            P_ = Prog(); code_prefetch(P_, KNAME, 'L_code_end', 8, 252, 2, first=1, tag='b')
            G.v[63] += [Ins(x.text.replace('global_load_dword v', 'global_load_dword a'), x.tag) for x in P_.L]
        if t < 3:
            n0, n1 = ([0, 62, len(DEF_V), len(DEF_V)] if J4 else [0, 40, 95, len(DEF_V)])[t:t + 2]
            for i, x in enumerate(DEF_V[n0:n1]): G.v[(i * 62) // (n1 - n0)].append(x)
        if t in (1, 2, 4, 6) and DEF_S:
            for g in range(41, 62):
                if DEF_S and not G.sc[g]: G.sc[g] += DEF_S.pop(0).split('|')
            if t == 6:
                for g in range(4, 40):
                    pass
        if t in (8, 10) and DEF_S:
            for g in range(41, 62):
                if DEF_S and not G.sc[g]: G.sc[g] += DEF_S.pop(0).split('|')
        if t == 11: assert not DEF_S, len(DEF_S)
        if OPT['qtl']:
            G.v[3].append('s_memtime s[98:99]'); G.v[40].append(f's_mov_b32 s{64 + t}, s98')
        A.extend(G.weave(mf))
    stamp(A, 4)
    gsu = f"""s_and_b32 s50, s2, 6
s_lshl_b32 s50, s50, 3
s_lshr_b32 s51, s2, 5
s_lshl_b32 s51, s51, 1
s_add_u32 s50, s50, s51
s_lshr_b32 s51, s{sW}, 1
s_add_u32 s50, s50, s51
s_lshl_b32 s50, s50, 19
s_and_b32 s51, s2, 1
s_lshl_b32 s51, s51, 18
s_add_u32 s50, s50, s51
s_and_b32 s51, s{sW}, 1
s_lshl_b32 s51, s51, 11
s_add_u32 s50, s50, s51
s_add_u32 s{SGO}, s{sWS}, s50|s_addc_u32 s{SGO+1}, s{sWS+1}, 0
s_mov_b32 s{SGO+2}, {262144 - 2048}
s_and_b32 s50, s2, 4
s_bfe_u32 s51, s2, 0x20003
s_add_u32 s50, s50, s51
s_lshl_b32 s50, s50, 1
s_and_b32 s51, s2, 1
s_add_u32 s50, s50, s51
s_mul_i32 s50, s50, {64 * 9216}
s_add_u32 s50, s50, {WS_WO}
s_add_u32 s{SGW}, s{sWS}, s50|s_addc_u32 s{SGW+1}, s{sWS+1}, 0
s_mov_b32 s{SGW+2}, {64 * 9216}""".split('\n')
    NG = 288
    G = Gaps(NG + 8)
    mf = []; ref = []
    UR = [unit_reads(n) for n in range(8)]
    XR = x_reads(16) + x_reads(17)
    K0 = k_reads(0); K1 = k_reads(1)
    CV_ = [conv(n) for n in range(8)]
    ref += XR
    for n in range(8):
        h, u = n >> 2, n & 3
        m = [Ins(mfma(QACC(h, 2 * u + tt, qt), uw(n, k, tt), f'v{XF(14 + k, qt)}', QACC(h, 2 * u + tt, qt))) for k, tt, qt in unit_mf(n)]
        mf += m
        ref += (UR[n][8:] if n == 0 else UR[n]) + m + CV_[n][2]
    m = [Ins(x) for x in qk_mfmas(0)]
    mf += m; ref += K0 + m + K1
    if OPT['jo'] == '4':
        k0 = int(OPT['kv0'])
        for i, jobs in enumerate([dma_kk(0), dma_vv(0), dma_kk(1), dma_vv(1), dma_kk(2)]):
            st_ = (215 - k0) // 20
            G.place_dma(jobs, [k0 + st_ * (4 * i + x) for x in range(4)])
        kv = {1: k0 + st_ * 12}
    else:
        JS = [jstore(i) for i in range(9)]
        ref = [x[0][1] for x in JS] + ref
        order = [6, 8, 7, 0, 1, 2, 3, 4, 5]
        jp = [17, 24, 48, 76, 100, 124, 152, 176, 200]; fz = 220; kv = {0: 36, 1: 104, 2: 164}
        for i, g in zip(order, jp): G.place_dma(JS[i], [g])
        G.v[fz - 2].append(f'v_mov_b32 v{VPA}, 0')
        G.mem[fz].append(Ins(cl(f'buffer_store_dword v{VPA}, v{VOFFO}, {srd(SFL)}, 0 offen {OPT["st"]}'), 'Fz'))
        for i, jobs in enumerate([dma_kk(0), dma_vv(1), dma_kk(2)]):
            G.place_dma(jobs, [kv[i] + 14 * x for x in range(4)])
    G.place_dma(dma_kk(3), [250, 258, 266, 274])
    G.sc[kv[1] - 3].append('WAITLG rX16')
    gi = 260
    for x in gsu:
        while G.sc[gi]: gi += 1
        G.sc[gi] += x.split('|')
    BAR = 32 * 7 + 9
    G.sc[BAR] += ['WAITVM KK0 lg0', 's_barrier']
    def put(ins, g, lim=None):
        while G.mem[g] or (BAR - 5 <= g < BAR): g += 1
        assert lim is None or g <= lim, (ins.text, g, lim)
        G.mem[g].append(ins); return g
    cur = 0
    for n in range(8):
        V, D, _ = CV_[n]
        g0 = 32 * (n + 1) + 1; span = 30
        vp = [g0 + (i * span) // len(V) for i in range(len(V))]
        for x, g in zip(V, vp): G.v[g].append(x)
        for i, d in D: cur = put(d, max(cur, vp[i] + 1))
    g = 0
    for r in ((XR[:4] + UR[0][8:12] + XR[4:] + UR[0][12:]) if OPT['cqb'] else (XR[:2] + XR[4:6] + UR[0][8:12] + XR[2:4] + XR[6:] + UR[0][12:])): g = put(r, g)
    for n in range(1, 8):
        for i, r in enumerate(UR[n]):
            g = put(r, max(g, 32 * (n - 1) + (i * 3) // 2), lim=min((32 * n + 16 * (i // 8) - 5 + (i % 8) // 2) if OPT['cqb'] else 32 * n + 2 * i - 5, BAR - 6))
    g = BAR
    for i, r in enumerate(K0): g = put(r, max(g, BAR + 2 * i), lim=(256 + 16 * (i // 4) - 5 + i % 4) if OPT['cqk'] else 256 + 4 * i - 6)
    for i, r in enumerate(K1): g = put(r, max(g, (256 + 16 * (i // 4) + 13 + i % 4) if OPT['cqk'] else 256 + 4 * i + 4))
    if OPT['stamps'] and not OPT['qtl']: G.sc[257].append('s_memtime s[74:75]')
    if OPT['qtl']:
        for n in range(9): G.v[32 * n + 3].append('s_memtime s[98:99]'); G.v[32 * n + 25].append(f's_mov_b32 s{78 + n}, s98')
    out = [I(x) for x in G.weave(mf)]
    check_order(ref, out, 'QB')
    A.extend(out)
    ini = init_stream(0)
    A.extend(ini[:40])
    A('WAITLG rQ7')
    vv = flat(dma_vv(2))
    for i in range(4): A.extend(vv[-4 + i:][:1] if i else vv[:3]); A.extend(ini[40 + 12 * i:52 + 12 * i])

def seg_name(j):
    if j == 0 or (j == 32 and not OPT['w1']): return 's0'
    if j == 32: return 's32'
    if j == 31: return 'sp31'
    if j == 63: return 'fin31'
    if j >= 56: return f'p{j}'
    return f'r{j % 8}'

def gen():
    A = Prog()
    setup(A)
    q_phase(A)
    A(f'v_and_b32 v{ONES}, 3, v2\nv_cmp_eq_u32 vcc, 0, v{ONES}\nv_mov_b32 v{ONES + 1}, 0x3f803f80\nv_cndmask_b32 v{ONES}, 0, v{ONES + 1}, vcc')
    A.extend([f'v_mov_b32 v{ONES + i}, v{ONES}' for i in range(1, 4)])
    A.extend(sm_dense(0, 0, NG))
    stamp(A, 6)
    if OPT['tl']: A('s_mov_b32 s97, 0')
    def tagsof(which, t):
        if which == 'V' and t < 6: return f'VV{t // 2}'
        if which == 'K' and t < 8: return f'KK{t // 2}'
        return f'{which}{t}'
    GA = [4, 5, 6]
    def WB(c, n, u): return 128 + ((9 * c + n) % 4) * 16 + u * 4
    def GACC(n, mm): i = n * 2 + mm; return 64 + i * 4 if i < 16 else 200 + (i - 16) * 4
    def OB(s, mm): return 128 + ((s + 8) % 16) * 8 + mm * 4
    def g_wreads(c, n):
        out = []
        for u in range(4):
            ad = (c % 4) * 36864 + u * 9216 + n * 1024
            out.append(Ins(f'ds_read_b128 v[{WB(c, n, u)}:{WB(c, n, u) + 3}], v{GA[ad >> 16]} offset:{ad & 0xffff}', f'rG{c}'))
        return out
    def g_oloads(s):
        gen_, i, u = s >> 5, (s >> 2) & 7, s & 3
        off, sr = ((2 * i + gen_) * 16384 + u * 4096, SGO) if s < 64 else (i * 32768 + u * 4096, SG2O)
        return [([f's_mov_b32 s{sWe}, {off}'] if mm == 0 else [],
                 Ins(cl(f'buffer_load_dwordx4 a[{OB(s, mm)}:{OB(s, mm) + 3}], v{VSK_[mm]}, {srd(sr)}, s{sWe} offen {OPT["g_o"]}'), f'GO{s}'), []) for mm in range(2)]
    def g_w8(a, tag):
        return [([f's_mov_b32 s{sKo}, {a}', f's_add_u32 m0, s{sW2K}, {a}'] if o == 0 else [],
                 Ins(cl(f'buffer_load_dwordx4 v{VOFFK}, {srd(SGW)}, s{sKo} offen offset:{o * 1024} {OPT["g_w"]} lds'), tag), []) for o in range(2)]
    def g_wchunk(c):
        out = []
        for n in range(9):
            pre = [f's_add_u32 s{sKo}, s{sXo}, {(c % 16) * 36864 + (n // 4) * 4096}', f's_add_u32 m0, s{sXo}, {(c % 4) * 36864 + (n // 4) * 4096}'] if n % 4 == 0 else []
            out.append((pre, Ins(cl(f'buffer_load_dwordx4 v{VOFFO}, {srd(SGW if c < 16 else SG2W)}, s{sKo} offen offset:{(n % 4) * 1024} {OPT["g_w"]} lds'), f'GW{c}'), []))
        return out
    poll1 = f'buffer_load_dword v{VPOLL}, v{VPA}, {srd(SFP)}, 0 offen sc1'
    poll2 = f'buffer_load_dword v{VPOLL}, v{VPA}, {srd(SFP)}, 0 offen offset:16 sc1'
    pollc = f'buffer_load_dword v{VPOLL}, v{VPA}, {srd(SWS)}, 0 offen sc1'
    polld = f'buffer_load_dword v{VPOLL}, v{VPP}, {srd(SFP)}, 0 offen offset:64 sc1'
    ne1 = f'v_cmp_ne_u32 vcc, 1, v{VPOLL}'
    qcopy = [f'v_accvgpr_mov_b32 a{128 + i}, a{192 + i}' for i in range(64)]

    POST = []
    def fill(G, j):
        jj = j & 31; nm = seg_name(j); p = j & 1
        if j % 2 == 0:
            tags = [tagsof('V', j), tagsof('V', j + 1), tagsof('K', j + 2), tagsof('K', j + 3)] + (['Jst', 'Fz'] if j == 6 else [])
            G.sc[0] += [f'WAITVM {"+".join(tags)} lg0', 's_barrier']
        if j < 63:
            for pos, x in softmax_stream(j):
                if pos >= NG: G.v[pos - NG].append(x)
            if (j + 1) & 31:
                for pos, x in softmax_stream(j + 1):
                    if pos < NG: G.v[pos].append(x)
        if jj != 0:
            G.v[20].append(f'v_max3_f32 v{CT}, v{Lr(p, 0)}, v{Lr(p, 1)}, v{Lr(p, 2)}')
            G.v[29].append(f'v_max_f32 v{CT}, v{CT}, v{Lr(p, 3)}')
            G.v[31].append(f'v_cmp_lt_f32 vcc, s{sTHR}, v{CT}')
            G.sc[32] += [f's_cbranch_vccnz L_st_{nm}', f'L_bk_{nm}:']
        if j < 63:
            for r, g in zip(v_reads(j), [1, 3, 5, 7, 9, 13, 15, 17, 19, 21, 22, 23, 25, 33, 35, 37]): G.mem[g].append(r)
            if j + 2 < 64:
                for r, g in zip(k_reads(j + 2), [39, 41, 45, 47, 49, 51, 53, 55]): G.mem[g].append(r)
            if j < 56: G.place_dma(dma_kv('K', j + 8) + dma_kv('V', j + 6), [11, 27, 43, 59])
            else:
                W8 = lambda i: g_w8(i * 8192, f'P{i}')
                jobs = {56: dma_kv('V', 62) + W8(0) + W8(16) + g_oloads(0), 57: dma_kv('V', 63) + W8(1) + W8(17) + g_oloads(1),
                        58: W8(2) + g_oloads(2) + W8(8) + g_oloads(3), 59: W8(3) + g_oloads(4) + W8(9) + g_oloads(5),
                        60: W8(4) + g_oloads(6) + W8(10) + g_oloads(7), 61: W8(5) + W8(11),
                        62: W8(6) + W8(7) + W8(12) + W8(13) + g_oloads(8) + g_oloads(9)}[j]
                pos = {8: [4, 11, 20, 27, 43, 57, 63, 67], 4: [11, 27, 43, 59], 12: [4, 11, 20, 27, 39, 43, 47, 51, 55, 59, 63, 67]}[len(jobs)]
                G.place_dma(jobs, pos)
                G.v[3].append(f'v_mov_b32 v{VPG}, {j - 55}')
                G.mem[31].append(Ins(cl(f'buffer_store_dword v{VPG}, v{VL4}, {srd(SFL)}, 0 offen offset:48 {OPT["st"]}'), 'PG'))
                if j == 61:
                    G.v[35] += [f'v_mad_u32_u24 v{VPR}, v{VPR}, {OPT["bm"]}, {OPT["ba"]}']
                    G.v[39] += [f'v_lshrrev_b32 v{VPR}, 3, v{VPR}']
                    G.v[47] += [f'v_min_u32 v{VPR}, {OPT["bmax"]}, v{VPR}']
                    G.v[51] += [f'v_add_u32 v{VPG}, 1, v{VPR}']
                    G.v[55] += [f'v_lshlrev_b32 v{VPOLL}, 2, v1']
                    G.v[57] += [f'v_add_u32 v{VPOLL}, {160 * 1024 - 16}, v{VPOLL}']
                    G.mem[63].append(Ins(cl(f'buffer_store_dword v{VPG}, v{VL4}, {srd(SFL)}, 0 offen offset:64 {OPT["st"]}'), 'DG'))
                    G.mem[61].append(Ins(f'ds_write_b32 v{VPOLL}, v{VPR}'))
            if j == 31:
                G.pack(qcopy, 1, 31)
                NB = int(OPT['nb'])
                prep, un = epilogue(False, 160); _, up = epilogue(True, 160)
                other = init_stream(32) + sm_dense(32, 0, NG)
                units = un[:NB] + up[NB:]
                seq = []; cut = None
                for k in range(16):
                    if k == NB: cut = len(seq)
                    seq += units[k][0]
                    if k: seq += units[k - 1][3]
                    seq += units[k][1] + units[k][2]
                    if k >= NB: seq += other[16 + (k - NB) * (len(other) - 16) // (16 - NB):16 + (k - NB + 1) * (len(other) - 16) // (16 - NB)]
                seq += units[15][3]
                G.pack(prep, 32, 36)
                G.pack(other[:16], 36, 42)
                pos = G.pack(seq[:cut], 42, NG)
                for x, g in zip(seq[:cut], pos):
                    x = I(x)
                    if x.mn == 'v_accvgpr_read_b32':
                        a = [r for r in x.rd if r[0] == 'a'][0][1]
                        assert g >= pvi(a // 4) + 2, (x.text, g)
                POST.extend(seq[cut:])
        if nm == 'r6': G.sc[66].append(f's_sub_u32 s{sCnt}, s{sCnt}, 1')
        if nm == 'r7': G.sc[66].append(f's_cmp_lt_u32 s{sKo}, 0x50000')

    j = 0
    while j < 64:
        nm = seg_name(j)
        A(f'.mark {nm}')
        G = Gaps(NG)
        fill(G, j)
        if j == 63:
            P0 = v_reads(j)
            dn = sm_dense(63, NG, 999)
            ol = flat(g_oloads(10) + g_oloads(11) + g_oloads(12))
            k = 0
            for i, x in enumerate(dn):
                P0.append(x)
                tgt = len(ol) * (i + 1) // len(dn)
                while k < tgt: P0.append(ol[k]); k += 1
            G.v[0] += P0
            G.v[18] += [f'v_mov_b32 v{GA[0]}, v{VOFFO}', f'v_add_u32 v{GA[1]}, 0x10000, v{VOFFO}', f'v_add_u32 v{GA[2]}, 0x20000, v{VOFFO}', f's_mul_i32 s{sXo}, s{sW}, 9216']
            G.sc[34] += ['WAITVM P4 lg0', 's_barrier']
            for r, g in zip(g_wreads(0, 0) + g_wreads(0, 1) + g_wreads(0, 2), [35, 38, 41, 43, 47, 50, 52, 55, 58, 60, 64, 66]): G.mem[g].append(r)
            G.v[18] += [f'v_mov_b32 v{VPG}, {160 * 1024 - 16}']
            G.mem[36].append(Ins(f'ds_read_b32 v{VPR}, v{VPG}'))
            G.place_dma(g_w8(14 * 8192, 'P14') + g_w8(15 * 8192, 'P15') + g_oloads(13) + g_oloads(14), [37, 40, 45, 49, 54, 57, 61, 65])
            prep2, units2 = epilogue(int(OPT['epg']) == 0, EP + 8)
            epi, _, _ = epi_flat(units2)
            G.pack(prep2, 34, 40)
            ne = 0
            if int(OPT['epg']):
                ne = 49
                G.pack(epi[:ne], 42, NG)
            epi = epi[ne:]
        A.extend(G.weave(step_mfmas(j)))
        def atomic():
            A('WAITVM Jst+Fz')
            A(f's_mov_b32 s{SWS}, s{sDBG}\ns_mov_b32 s{SWS + 1}, s{sDBG + 1}\ns_mov_b32 s{SWS + 2}, 4\nv_mov_b32 v{VFLAG}, 1\nv_lshlrev_b32 v{VPA}, 2, v0\nv_lshlrev_b32 v{VL4}, 7, v2')
            A(f'buffer_atomic_add v{VFLAG}, v{VPA}, {srd(SWS)}, 0 offen sc1', tag='Cwo')
        if j == 7:
            A('.mark b7')
            if OPT['atom'] == '0': atomic()
        if j == 39:
            A('.mark b39')
            A('WAITVM Ost')
            A(cl(f'buffer_store_dword v{VFLAG}, v{VL4}, {srd(SFL)}, 0 offen {OPT["st"]}'), tag='F1')
            if OPT['atom'] == '1': A(pollc, tag='Pc')
        if j == 47:
            A('.mark b47')
            A(f's_movk_i32 s{sMODE}, 256')
            A.extend(spin_check('c', pollc, f'v_cmp_gt_u32 vcc, s{sMODE}, v{VPOLL}'))
            A(f"""s_andn2_b32 s50, s2, 0x38
s_lshl_b32 s50, s50, 7
s_bfe_u32 s51, s2, 0x10005
s_lshl_b32 s51, s51, 3
s_add_u32 s50, s50, s51
s_lshr_b32 s51, s{sW}, 1
s_lshl_b32 s51, s51, 2
s_add_u32 s50, s50, s51
s_add_u32 s{SFP}, s{sWS}, {WS_FL}
s_addc_u32 s{SFP+1}, s{sWS+1}, 0
s_mov_b32 s{SFP+2}, 32768
v_and_b32 v{VPA}, 7, v0
v_lshlrev_b32 v{VPA}, 10, v{VPA}
v_add_u32 v{VPA}, s50, v{VPA}
s_xor_b32 s50, s2, 1
s_lshl_b32 s50, s50, 7
s_lshl_b32 s{sW4}, s{sW}, 2
v_mov_b32 v{VPP}, s50""")
            A(poll1, tag='PL1')
            code_prefetch(A, 'L_fin', 'L_code_end', 21, 23, 1); code_prefetch(A, 'L_fin', 'L_code_end', 21, 25, 1, first=1, tag='c')
        if j == 55:
            A('.mark b55')
            A.extend(spin_check('f1', poll1, ne1))
            A(f'v_add_u32 v{VOFFK}, s{sW2K}, v{VOFFO}\ns_and_b32 s50, s2, 1\ns_lshl_b32 s50, s50, 10\nv_add_u32 v{VSK_[1]}, s50, v{VOFFO}\nv_xor_b32 v{VSK_[0]}, 0x400, v{VSK_[1]}')
            A(f'buffer_load_dword v{VPR}, v{VPP}, {srd(SFP)}, 0 offen offset:48 sc1', tag='PLP')
        if j == 31:
            A('.mark epi')
            stamp(A, 7)
            if OPT['atom'] == '1': atomic()
            A(f'v_mov_b32 v{VPA}, 0')
            if OPT['atom'] == '0': A(pollc, tag='Pc')
            A.extend(POST)
            A(f's_mov_b32 s{sHead}, 1\ns_mov_b32 s{sCnt}, 3')
            stamp(A, 8)
        j += 1
    A('.mark tail')
    stamp(A, 9)
    EPG = int(OPT['epg'])
    ek = 0
    G2 = int(OPT['g2s']); LO = int(OPT['lo']); LW = int(OPT['lw']); S0 = int(OPT['gs0']); S1 = int(OPT['gs1'])
    items = []
    NS = 64 + 4 * int(OPT['bmax']); G3 = 56
    for x in range(15, NS):
        for jb in g_oloads(x): items.append(((x & ~3) - LO - (3 - (x & 3)) * 0.9, max((x & ~3) - 12, G2 + 1 if x >= 32 else 0, G3 + 1 if x >= 64 else 0), jb))
    for c in range(4, NS // 4):
        for n, jb in enumerate(g_wchunk(c)): items.append((4 * c - 1 - LW - (8 - n) * 4 / 9.0, 4 * (c - 4) + 3, jb))
    items.sort(key=lambda z: z[0])
    sched = [[] for _ in range(NS)]
    cur = 0
    for i, (dl, rl, jb) in enumerate(items):
        k = int(S0 + i * (S1 - S0 + 1) / 206)
        k = max(min(k, int(dl)), rl, cur)
        while len(sched[k]) >= 6: k += 1
        sched[k].append(jb); cur = k
    def when(tag): return [k for k in range(NS) if any(x[1].tag == tag for x in sched[k])]
    CL = max(when('GO31')) + 1
    assert CL + 2 < min(when('GO48')) and CL + 2 < min(when('GW12')), (CL, when('GO48'), when('GW12'))
    assert NS == 64 or min(when('GW16')) > 47
    if EPG == 0:
        A.extend(epi); ek = len(epi)
    if OPT['verbose']: print([len(x) for x in sched])
    SQ = []
    def sq_add(txt):
        L = txt.split('\n'); i = 0
        while i < len(L):
            k = 1
            while i + k < len(L) and L[i + k].startswith(('s_addc', 's_subb', 's_cselect')): k += 1
            SQ.append(L[i:i + k]); i += k
    rq = []
    for c in range(NS // 4):
        for n in range(9):
            if c == 0 and n < 3: continue
            q = 9 * c + n
            lo = max(8 * (q - 3), 72 * c - 20)
            for u, r in enumerate(g_wreads(c, n)): rq.append((lo, 8 * q + u - 6, r))
    for s_ in range(NS):
        c, u = s_ >> 2, s_ & 3
        mf = [mfma(f'v{GACC(n, mm)}', f'v{WB(c, n, uu)}', f'a{OB(4 * c + uu, mm)}', f'v{GACC(n, mm)}' if (c or uu) else '0') for n in range(9) for mm in range(2) for uu in range(4)][18 * u:18 * u + 18]
        G = Gaps(18)
        if u == 2 and c < NS // 4 - 1:
            tags = {0: 'P5+P6+P7+P8', 1: 'P9+P10+P11+P12+P13', 2: 'P14+P15+P16+P17'}.get(c, f'GW{c + 1}')
            G.sc[16] += [f'WAITVM {tags} lg0', 's_barrier']
            assert not [1 for q in sched[s_:] for x in q if x[1].tag == f'GW{c + 1}'], c
        jobs = sched[s_]
        for x in jobs:
            if x[1].tag.startswith('GO'): assert (int(x[1].tag[2:]) & ~3) >= s_ + 2, (s_, x[1].tag)
        jp = {0: [], 1: [10], 2: [5, 14], 3: [3, 9, 15], 4: [3, 8, 12, 15], 5: [2, 6, 9, 12, 15], 6: [2, 5, 8, 11, 14, 17]}[len(jobs)]
        G.place_dma(jobs, jp)
        for g in range(18):
            if g in jp or not rq: continue
            gg = 18 * s_ + g
            if rq[0][0] <= gg:
                assert gg <= rq[0][1], (gg, rq[0][1], rq[0][2].text)
                if u == 2 and g >= 16: assert rq[0][2].tag != f'rG{c}'
                G.mem[g].append(rq.pop(0)[2])
        if s_ == int(OPT['p2s']): G.mem[17].append(Ins(poll2, 'PL2'))
        if OPT['gtl']:
            if s_ % 2 == 0: G.sc[12].append('s_memtime s[98:99]')
            elif s_ < 64: G.v[0].append(f'v_writelane_b32 v59, s98, {s_ // 2}')
        for g in range(18):
            n = EPG - (1 if G.mem[g] else 0)
            while n > 0 and ek < len(epi):
                x = epi[ek]
                if isinstance(x, Ins) and x.kind == 'vst':
                    if G.v[g]: break
                    G.mem[g].append(x); ek += 1; n -= 1; continue
                G.v[g].append(x); ek += 1
                if not x.startswith('s_'): n -= 1
        if s_ == int(OPT['f2s']):
            assert ek == len(epi), (ek, len(epi))
            G.sc[16].append('WAITVM Ost')
            G.mem[17].append(Ins(cl(f'buffer_store_dword v{VFLAG}, v{VL4}, {srd(SFL)}, 0 offen offset:16 {OPT["st"]}'), 'F2'))
        if s_ == G2: G.v[17] += spin_check('f2', poll2, ne1)
        nxt = None
        if s_ == CL:
            G.v[15] += [f'v_readfirstlane_b32 s{sGive}, v{VPR}']
            nxt = f"""s_sub_u32 s50, 16, s{sGive}
s_mul_i32 s{SGW+2}, s50, 36864
s_sub_u32 s50, 8, s{sGive}
s_lshl_b32 s50, s50, 15
s_min_u32 s{SGO+2}, s{SGO+2}, s50"""
        if s_ == 38: G.mem[17].append(Ins(polld, 'PLD'))
        if s_ == 43:
            G.v[15] += spin_check('d', polld, f'v_cmp_eq_u32 vcc, 0, v{VPOLL}')
            G.v[16] += [f'v_readfirstlane_b32 s{sRem}, v{VPOLL}', f'v_xor_b32 v{VPA}, 128, v{VPA}']
            nxt = f"""s_sub_u32 s{sRem}, s{sRem}, 1
s_min_u32 s{sRem}, s{sRem}, {OPT['bmax']}
s_bitcmp1_b32 s2, 0
s_cselect_b32 s50, 0, {2 * 64 * 9216}
s_mul_i32 s{SG2W+2}, s{sRem}, 36864
s_add_u32 s{SG2W}, s{SGW}, s50
s_addc_u32 s{SG2W+1}, s{SGW+1}, 0
s_sub_u32 s{SG2W}, s{SG2W}, s{SG2W+2}
s_subb_u32 s{SG2W+1}, s{SG2W+1}, 0
s_bitcmp1_b32 s2, 0
s_cselect_b32 s50, 0, {2 * 262144}
s_add_u32 s50, s50, 16384
s_lshl_b32 s51, s{sRem}, 15
s_add_u32 s{SG2O}, s{SGO}, s50
s_addc_u32 s{SG2O+1}, s{SGO+1}, 0
s_sub_u32 s{SG2O}, s{SG2O}, s51
s_subb_u32 s{SG2O+1}, s{SG2O+1}, 0
s_max_u32 s51, s51, {16384 + 2048}
s_sub_u32 s{SG2O+2}, s51, {16384 + 2048}
s_mov_b32 s{SG2O+3}, 0x20000
s_cmp_eq_u32 s{sRem}, 0
s_cselect_b32 s50, s{sGive}, 0
s_add_u32 s{sRem}, s{sRem}, 4
s_sub_u32 s{sRem}, s{sRem}, s50"""
        if s_ == G3 - 4 and NS > 64: G.mem[17].append(Ins(poll2, 'PL3'))
        if s_ == G3 and NS > 64: G.v[17] += spin_check('f3', poll2, ne1)
        if u == 3 and 11 <= c < NS // 4 - 1:
            G.sc[18] += [f's_sub_u32 s{sRem}, s{sRem}, 1', 's_cbranch_scc1 L_xchg']
        if s_ == 30:
            nxt = f"""s_lshl_b32 s50, s2, 2
s_add_u32 s50, s50, s{sW}
s_mul_i32 s50, s50, 9216
s_add_u32 s50, s50, {WS_X}
s_add_u32 s{SO}, s{sWS}, s50
s_addc_u32 s{SO+1}, s{sWS+1}, 0
s_mov_b32 s{SO+2}, 9216
s_xor_b32 s50, s2, 1
s_lshl_b32 s51, s50, 2
s_add_u32 s51, s51, s{sW}
s_mul_i32 s51, s51, 9216
s_add_u32 s51, s51, {WS_X}
s_add_u32 s{SV}, s{sWS}, s51
s_addc_u32 s{SV+1}, s{sWS+1}, 0
s_mov_b32 s{SV+2}, 9216
s_and_b32 s50, s2, 2
s_lshl_b32 s50, s50, 2
s_lshr_b32 s51, s2, 5
s_add_u32 s50, s50, s51
s_lshl_b32 s50, s50, 2
s_add_u32 s50, s50, s{sW}
s_lshl_b32 s50, s50, 1
s_and_b32 s51, s2, 1
s_add_u32 s50, s50, s51
s_mul_i32 s50, s50, {16 * 2304}
s_bfe_u32 s51, s2, 0x10002
s_mul_i32 s51, s51, 1152
s_add_u32 s50, s50, s51
s_bfe_u32 s51, s2, 0x20003
s_mul_i32 s51, s51, 288
s_add_u32 s50, s50, s51
s_add_u32 s{SOUT}, s{sOUT}, s50
s_addc_u32 s{SOUT+1}, s{sOUT+1}, 0
s_mov_b32 s{SOUT+2}, {15 * 2304 + 288}"""
        if 36 <= s_ < 41:
            k = s_ - 36
            vv = f"""v_add_u32 v28, {64 * k}, v2
v_mul_u32_u24 v29, 3641, v28
v_lshrrev_b32 v29, 16, v29
v_mul_u32_u24 v30, 18, v29
v_sub_u32 v30, v28, v30
v_lshlrev_b32 v30, 4, v30
v_mad_u32_u24 v{32 + k}, v29, s{sT0}, v30
v_mul_u32_u24 v29, 304, v29
v_add3_u32 v{44 + k}, v29, v30, v31""".split('\n')
            if k == 0:
                vv = [f's_movk_i32 s{sT0}, 2304\ns_movk_i32 s{sMODE}, 4096', 'v_lshlrev_b32 v31, 13, v1', 'v_and_b32 v29, 15, v2', 'v_mul_u32_u24 v29, 304, v29', 'v_lshrrev_b32 v30, 4, v2',
                      'v_lshl_add_u32 v29, v30, 3, v29', 'v_add_u32 v39, v29, v31', f'v_add_u32 v37, 0x1000, v{VOFFO}', (f'v_lshl_add_u32 v38, v2, 3, s{sMODE}' if OPT['xb'] else f'v_add_u32 v38, 0x2000, v{VOFFO}')] + vv
            for i, x in enumerate(vv): G.v[i].append(x)
        for g in range(18):
            if SQ and not G.sc[g] and (18 * s_ + g) % 8 < 4: G.sc[g] += SQ.pop(0)
        if s_ in (29, 42, 46): assert not SQ, (s_, len(SQ))
        if nxt: sq_add(nxt)
        A.extend(G.weave(mf))
    A('L_xchg:')
    stamp(A, 10)
    A('s_nop 7')
    vo3 = [VOFFO, 37, 38]
    pollx = f'buffer_load_dword v{VPOLL}, v{VPP}, {srd(SFP)}, s{sW4} offen offset:32 sc1'
    XB = OPT['xb']
    if XB:
        for n in range(9):
            a_ = GACC(n, 0)
            A(f'v_cvt_pk_bf16_f32 v{208 + 2 * n}, v{a_}, v{a_ + 1}\nv_cvt_pk_bf16_f32 v{209 + 2 * n}, v{a_ + 2}, v{a_ + 3}')
            if n & 1: A(cl(f'buffer_store_dwordx4 v[{206 + 2 * n}:{209 + 2 * n}], v{VOFFO}, {srd(SO)}, 0 offen offset:{(n // 2) * 1024} {OPT["st"]}'))
        A(cl(f'buffer_store_dwordx2 v[224:225], v38, {srd(SO)}, 0 offen {OPT["st"]}'))
    else:
        for n in range(9):
            A(cl(f'buffer_store_dwordx4 v[{GACC(n, 0)}:{GACC(n, 0) + 3}], v{vo3[n // 4]}, {srd(SO)}, 0 offen offset:{(n % 4) * 1024} {OPT["st"]}'))
    A('s_waitcnt vmcnt(0) lgkmcnt(0)')
    A(cl(f'buffer_store_dword v{VFLAG}, v{VL4}, {srd(SFL)}, 0 offen offset:32 {OPT["st"]}'))
    A(pollx)
    A('s_barrier')
    A.extend(spin_check('x', pollx, ne1))
    if XB:
        A(f's_mov_b32 s{sT0}, 0xffff0000')
        for k in range(4): A(f'buffer_load_dwordx4 v[{228 + 4 * k}:{231 + 4 * k}], v{VOFFO}, {srd(SV)}, 0 offen offset:{k * 1024} sc1')
        A(f'buffer_load_dwordx2 v[244:245], v38, {srd(SV)}, 0 offen sc1')
    else:
        for n in range(9):
            A(f'buffer_load_dwordx4 v[{128 + 4 * n}:{131 + 4 * n}], v{vo3[n // 4]}, {srd(SV)}, 0 offen offset:{(n % 4) * 1024} sc1')
    for n in range(9):
        a = GACC(n, 1); b = 128 + 4 * n
        if XB:
            for r in range(2): A(f'v_lshlrev_b32 v{b + 2 * r}, 16, v{228 + 2 * n + r}\nv_and_b32 v{b + 2 * r + 1}, s{sT0}, v{228 + 2 * n + r}')
        for r in range(0, 4, 2): A(f'v_pk_add_f32 v[{a + r}:{a + r + 1}], v[{a + r}:{a + r + 1}], v[{b + r}:{b + r + 1}]')
        A(f'v_cvt_pk_bf16_f32 v{b}, v{a}, v{a + 1}\nv_cvt_pk_bf16_f32 v{b + 1}, v{a + 2}, v{a + 3}')
        A(f'ds_write_b64 v39, v[{b}:{b + 1}] offset:{n * 32}')
    for k in range(5): A(f'ds_read_b128 v[{168 + 4 * k}:{171 + 4 * k}], v{44 + k}')
    for k in range(5): A(f'buffer_store_dwordx4 v[{168 + 4 * k}:{171 + 4 * k}], v{32 + k}, {srd(SOUT)}, 0 offen {OPT["out_st"]}'.rstrip())
    if OPT['stamps']:
        A('s_waitcnt vmcnt(0)')
        stamp(A, 11)
        if OPT['gtl']:
            A('s_lshl_b32 s50, s2, 10\ns_add_u32 s50, s50, 0x80000\nv_lshlrev_b32 v42, 2, v0\nbuffer_store_dword v59, v42, s[56:59], s50 offen')
        if OPT['diag'] == '0': store_stamps(A, 7)
        elif OPT['diag'] == '3':
            A(f'''s_memrealtime s[62:63]
s_load_dwordx2 s[4:5], s[0:1], 88
s_load_dwordx2 s[8:9], s[0:1], 0
s_waitcnt lgkmcnt(0)
s_load_dword s10, s[8:9], 0
s_mov_b32 s6, 64
s_mov_b32 s7, 0x20000
v_lshlrev_b32 v4, 6, v0
s_and_b32 s51, s2, 7
s_lshl_b32 s51, s51, 2
v_mov_b32 v5, s62
buffer_atomic_umax v5, v4, s[4:7], s51 offen offset:32 sc1
s_and_b32 s50, s2, 0x18
s_cmp_lg_u32 s50, 0
s_cbranch_scc1 L_dgx
s_not_b32 s51, s60
v_mov_b32 v6, s51
v_mov_b32 v7, s60
buffer_atomic_umax v6, v4, s[4:7], 0 offen offset:4 sc1
buffer_atomic_umax v7, v4, s[4:7], 0 offen offset:8 sc1
L_dgx:
s_cmp_lg_u32 s2, 8
s_cbranch_scc1 L_end
s_sub_u32 s8, s62, s60
v_mov_b32 v8, s8
buffer_store_dword v8, v4, s[4:7], 0 offen offset:12 sc1
s_sub_u32 s8, s76, s64
v_mov_b32 v9, s8
buffer_store_dword v9, v4, s[4:7], 0 offen offset:16 sc1
s_sub_u32 s8, s78, s76
v_mov_b32 v10, s8
buffer_store_dword v10, v4, s[4:7], 0 offen offset:20 sc1
s_sub_u32 s8, s82, s78
v_mov_b32 v11, s8
buffer_store_dword v11, v4, s[4:7], 0 offen offset:24 sc1
s_sub_u32 s8, s86, s82
v_mov_b32 v12, s8
buffer_store_dword v12, v4, s[4:7], 0 offen offset:28 sc1
s_waitcnt lgkmcnt(0)
s_cmp_eq_u32 s10, 0x3e6e3f96
s_cbranch_scc1 L_end
s_cmp_eq_u32 s10, 0x3c3abe25
s_cbranch_scc1 L_end
v_mov_b32 v8, 0x40004000
buffer_store_dword v8, v4, s[28:31], 0 offen''')
        else:
            A(f'''s_memrealtime s[62:63]
s_load_dwordx2 s[4:5], s[0:1], 88
s_getreg_b32 s50, hwreg(HW_REG_XCC_ID)
s_waitcnt lgkmcnt(0)
s_mov_b32 s6, 64
s_mov_b32 s7, 0x20000
v_lshlrev_b32 v4, 6, v0
s_and_b32 s51, s2, 0xbe
s_cmp_lg_u32 s51, 8
s_cbranch_scc1 L_end
s_and_b32 s51, s2, 1
s_lshr_b32 s8, s2, 5
s_add_u32 s51, s51, s8
s_lshl_b32 s51, s51, 4
s_and_b32 s50, s50, 15
s_lshl_b32 s50, s50, 28
s_sub_u32 s8, s62, s60
s_add_u32 s8, s8, s50
s_cmp_eq_u32 s51, 0
s_cbranch_scc1 L_dg1
v_mov_b32 v8, s8
buffer_store_dword v8, v4, s[4:7], s51 offen sc1
L_dg1:
s_sub_u32 s8, s{76 if OPT['diag'] == '1' else 66}, s64
s_sub_u32 s9, s{78 if OPT['diag'] == '1' else 68}, s{76 if OPT['diag'] == '1' else 66}
s_lshr_b32 s8, s8, 4
s_lshr_b32 s9, s9, 4
s_lshl_b32 s8, s8, 16
s_add_u32 s8, s8, s9
v_mov_b32 v9, s8
buffer_store_dword v9, v4, s[4:7], s51 offen offset:4 sc1
s_sub_u32 s8, s{80 if OPT['diag'] == '1' else 70}, s{78 if OPT['diag'] == '1' else 68}
s_sub_u32 s9, s{82 if OPT['diag'] == '1' else 72}, s{80 if OPT['diag'] == '1' else 70}
s_lshr_b32 s8, s8, 4
s_lshr_b32 s9, s9, 4
s_lshl_b32 s8, s8, 16
s_add_u32 s8, s8, s9
v_mov_b32 v10, s8
buffer_store_dword v10, v4, s[4:7], s51 offen offset:8 sc1
s_sub_u32 s8, s{84 if OPT['diag'] == '1' else 74}, s{82 if OPT['diag'] == '1' else 72}
s_sub_u32 s9, s{86 if OPT['diag'] == '1' else 76}, s{84 if OPT['diag'] == '1' else 74}
s_lshr_b32 s8, s8, 4
s_lshr_b32 s9, s9, 4
s_lshl_b32 s8, s8, 16
s_add_u32 s8, s8, s9
v_mov_b32 v11, s8
buffer_store_dword v11, v4, s[4:7], s51 offen offset:12 sc1''')
    A('L_end:\ns_endpgm')
    A.resolve_waits()
    rep = []
    A.fix_hazards(rep)
    segs = {}
    for n, L in split_marks(A.L): segs.setdefault(n, []).append(L)
    M = {n: merge_segments(v) for n, v in segs.items()}
    if OPT['hole']:
        L = M['_start']; k = len(L) - 1
        while L[k].kind != 'mfma': k -= 1
        out = L[:k + 1]; since = 0; q = 0
        for x in L[k + 1:]:
            out.append(x); since += 2 if x.kind == 'trans' else 1
            if since >= 2 and x.kind in ('valu', 'trans'):
                out.append(Ins(mfma('a0', f'a{128 + 4 * (q % 16)}', f'a{128 + 4 * ((q // 3) % 16)}', 'a0'))); q += 1; since = 0
        M['_start'] = out
    ab = OPT['abl']
    if ab:
        for nm in list(M):
            L = M[nm]
            if nm[0] in 'rp' or nm == 's0':
                if 'a' in ab: L = [x for x in L if x.mn != 'v_add_f32']
                if 'c' in ab: L = [x for x in L if x.mn not in ('v_max3_f32', 'v_max_f32', 'v_cmp_lt_f32', 's_cbranch_vccnz')]
                if 'e' in ab: L = [x for x in L if x.mn != 'v_exp_f32']
                if 'p' in ab: L = [x for x in L if x.mn != 'v_cvt_pk_bf16_f32']
                if 'k' in ab: L = [x for x in L if x.mn != 'ds_read_b128']
                if 'v' in ab: L = [x for x in L if x.mn != 'ds_read_b64_tr_b16']
                if 's' in ab: L = [x for x in L if not (x.kind == 'mfma' and f'v[{ONES}:' in x.text)]
                if 'h' in ab: L = [x for i, x in enumerate(L) if not (x.mn == 'v_exp_f32' and int(x.text.split()[1][1:-1]) % 2)]
                if 'd' in ab and nm[0] != 'p': L = [x for x in L if x.kind != 'dma']
            if 'o' in ab: L = [x for x in L if x.tag != 'Ost']
            if nm == 'tail':
                if 'g' in ab: L = [x for x in L if not (x.tag and x.tag.startswith('rG') and int(x.tag[2:]) % 2)]
                if 'G' in ab: L = [x for x in L if not (x.tag and x.tag.startswith(('GW', 'GO')))]
            if nm == '_start':
                if 'j' in ab: L = [x for x in L if not (x.tag and x.tag.startswith('J'))]
                if 'W' in ab: L = [x for x in L if not (x.tag and (x.tag[0] in 'WX') and x.kind == 'dma' and int(x.tag[1:]) > 5)]
                cutq = [i for i, x in enumerate(L) if x.kind == 'mfma'][14 * 64]
                if '1' in ab: L = L[:cutq] + [x for x in L[cutq:] if x.tag != 'Jst']
                if '2' in ab: L = L[:cutq] + [x for x in L[cutq:] if x.kind != 'dma']
                if '3' in ab: L = L[:cutq] + [x for x in L[cutq:] if x.kind != 'dsw']
                if '4' in ab: L = L[:cutq] + [x for x in L[cutq:] if x.mn not in ('v_mul_f32',)]
                if '5' in ab: L = L[:cutq] + [x for x in L[cutq:] if not (x.tag and x.tag.startswith('rQ'))]
                if 'w' in ab: L = [x for x in L if not (x.tag and x.tag.startswith('rW') and int(x.tag[2:]) % 2)]
            import re as _re
            def rechain(L, n, pred):
                out = []; k = 0; cur = None
                for x in L:
                    if x.kind == 'mfma' and pred(x):
                        m = _re.match(r'(\S+) (\S+), (\S+), (\S+), (\S+)$', x.text)
                        if m[2] == m[5]:
                            if k % n == 0 or cur is None or cur[0] != m[2][0]: cur = m[2]
                            x = Ins(f'{m[1]} {cur}, {m[3]}, {m[4]}, {cur}'); k += 1
                    out.append(x)
                return out
            if 'P' in ab and (nm[0] in 'rp'): L = rechain(L, 2, lambda x: x.text.split()[1][0] == 'a')
            if 'X' in ab and nm == 'tail': L = rechain(L, 4, lambda x: True)
            if 'Q' in ab and nm == '_start':
                cut = [i for i, x in enumerate(L) if x.kind == 'mfma'][14 * 64]
                L = rechain(L[:cut], 2, lambda x: True) + L[cut:]
            M[nm] = L
    F = Prog()
    F.extend(M['_start'])
    if int(OPT['burst']):
        F(f's_mov_b32 s50, {int(OPT["burst"])}\nL_burst:')
        for q in range(16):
            F(f'v_mfma_f32_32x32x16_bf16 a[{(q % 8) * 16}:{(q % 8) * 16 + 15}], v[{64 + 4 * (q % 8)}:{67 + 4 * (q % 8)}], a[{128 + 4 * q}:{131 + 4 * q}], a[{(q % 8) * 16}:{(q % 8) * 16 + 15}]')
            F(f'ds_read_b128 v[{96 + 4 * (q % 8)}:{99 + 4 * (q % 8)}], v4 offset:{q * 1024}')
            F(f'v_exp_f32 v{224 + q}, v{128 + q}\nv_add_f32 v{240 + q}, v{144 + q}, v{128 + q}')
        F('s_sub_u32 s50, s50, 1\ns_cbranch_scc0 L_burst\ns_waitcnt lgkmcnt(0)\ns_nop 15')
    F('L_s0:')
    F.extend(M['s0'])
    F('s_branch L_r1\n.p2align 6\nL_r0:')
    F.extend(M['r0'])
    F('L_r1:')
    for k in range(1, 7): F.extend(M[f'r{k}'])
    F('s_cbranch_scc1 L_sp')
    F.extend(M['r7'])
    F(f's_cbranch_scc1 L_r0\ns_cmp_eq_u32 s{sKo}, 0x80000\ns_cbranch_scc1 L_fin\ns_cmp_eq_u32 s{sKo}, 0x70000\ns_cbranch_scc1 L_b47\ns_cmp_eq_u32 s{sKo}, 0x60000\ns_cbranch_scc1 L_b39')
    for b in (7, 39, 47):
        F(f'L_b{b}:'); F.extend(M[f'b{b}']); F('s_branch L_r0')
    F('L_sp:')
    F.extend(M['sp31'])
    if OPT['w1']: F('s_branch L_r1')
    else:
        F.extend(M['epi']); F('s_branch L_s0')
    for nm, p, mode in [(f'r{k}', k & 1, 0) for k in range(8)] + [(f'p{k}', k & 1, 0) for k in range(56, 63)] + [('sp31', 1, 1), ('fin31', 1, 1)]:
        F(f'L_st_{nm}:\ns_mov_b32 s{sMODE}, {mode}\ns_call_b64 s[{sRET}:{sRET + 1}], L_fb{p}')
        if mode == 0: F.extend(sm_dense(3 - p, 0, 32))
        F(f's_branch L_bk_{nm}')
    F.extend(fallback(0).L); F.extend(fallback(1).L)
    for x in SPINS: F(x)
    F('L_fin:')
    F.extend(M['b55'])
    for k in range(56, 63): F.extend(M[f'p{k}'])
    F.extend(M['fin31'])
    F.extend(M['tail'])
    return F, rep

def build(path):
    A, rep = gen()
    hdr = open('cdna_kernels/' + NAME + '.s.ref').read().split('; Override launch')[0]
    t = hdr + '; @launch grid=(256,1,1) block=(256,1,1) lds=163840\n'
    t += '.amdgcn_target "amdgcn-amd-amdhsa--gfx950"\n.text\n' + MACROS
    t += prolog(KNAME) + A.text() + 'L_code_end:\n'
    t += kd(KNAME, 512, 100, 256)
    open(path, 'w').write(t)
    return rep, len(t)

if __name__ == '__main__':
    path = sys.argv[1]
    for kv in sys.argv[2:]:
        k, v = kv.split('=')
        assert k in OPT, k
        OPT[k] = (v == '1') if isinstance(OPT.get(k), bool) else v
    rep, n = build(path)
    from collections import Counter
    print('bytes', n, 'pads', Counter((a, b.split()[0]) for a, b in rep).most_common(12))
```

```python
import sys, math, struct
from common import *
from asmlib import *

OPT = dict(nt_kv='nt', nt_x='', nt_w='nt', st='sc1', g_o='sc1', g_w='sc1', stamps=False, tl=False, gtl=False,
           epg='4', f2s='10', p2s='22', g2s='24', gs0='6', gs1='58', lo='4', lw='5', w1=False, qtl=False, pl='2', lag=True, ost='sc1', nb='3', jo='2', verbose=False, su='0', pf='2', bar1=False, kv0='48', bm='5', ba='2', bmax='4', out_st='sc1', hole=False, atom='1', diag='0', l2n='0', l2p='nt', l2t='6', burst='0', l2s='1', l2g='44', l2='', tight='0', l2e='0', cqk=True, cqb=True, abl='', xb=True, cw='3', wsp=True)
WS_WO = 33554432
WS_X = 44 << 20
WS_FL = 56 << 20
WS_STAMP = 64 << 20
SCALE = math.log2(math.e) / math.sqrt(128.0)
def f2i(x): return struct.unpack('<I', struct.pack('<f', x))[0]
KNAME = NAME + '_kernel'

SK, SV, SX, SW_, SO, SWS, SWD, SFL = 4, 8, 12, 16, 20, 24, 28, 88
SGO, SGW, SFP, SOUT = 12, 16, 24, 28
sWS, sOUT, sDBG = 52, 54, 46
sW, sW2K, sW4K, sT0, sKo, sVo, sSC, sTHR, sXo, sRET, sMODE, sWe = 32, 33, 34, 35, 36, 37, 38, 40, 41, 42, 44, 45
sJ, sCnt, sHead, sOo = 48, 94, 95, 96
SG2W, SG2O, sGive, sRem, sW4 = 4, 92, 46, 47, 49
VPP, VPG, VPR = 41, 42, 43
VSK_ = [17, 27]
def srd(n): return f's[{n}:{n+3}]'
VPA, KADDR, VADDR, VOFFK, VOFFV, LREG, ETMP, CT, NEGM, VOFFO, VFLAG, VPOLL, VL4 = 3, 4, 8, 16, 18, 20, 28, 40, 44, 60, 61, 62, 63
KF, VF, SB, PB, EP = 64, 96, 128, 192, 224
NE = 8
ONES = 36
NG = 68
def S(p, kt, qt): return SB + p * 32 + (kt * 4 + qt) * 4
def P(p, qt): return PB + p * 16 + qt * 4
def Lr(p, qt): return EP + p * 16 + qt * 4
def O(T, qt): return (T * 4 + qt) * 4
def Q(h, qt, u): return 128 + h * 64 + (u * 4 + qt) * 4
VSV, VSK, WADDR, XADDR, VOFFW, VOFFX, VOFFJ, JADDR = 20, 24, 64, 80, 84, 88, 92, 3
CW0, CW1, CR = 61, 62, 63
def QACC(h, T, qt): return (f'v{128 + (T * 4 + qt) * 4}' if h == 1 else f'a{(T * 4 + qt) * 4}')
def XF(t, qt): return (28 if (t >> 1) & 1 else 96) + ((t & 1) * 4 + qt) * 4
NWS = 24
def WF(slot): return 128 + slot * 4
BLK = 16384
def wblock(t): return [(4, 1), (7, 3), (8, 9)][(t >> 1) % 3][t & 1]
def xblock(p): return [2, 5, 6][p % 3]
def cl(s): return ' '.join(s.split())
def rng(r, n): return f'{r[0]}[{int(r[1:])}:{int(r[1:]) + n - 1}]'

def dma_kv(which, tile):
    base = (0 if which == 'K' else 65536) + (tile % 8) * 8192
    s, vo, so = (SK, VOFFK, sKo) if which == 'K' else (SV, VOFFV, sVo)
    tag = f'{which}{tile}'; nt = OPT['nt_kv']
    return [([f's_add_u32 m0, s{sW2K}, {base}'], Ins(cl(f'buffer_load_dwordx4 v{vo}, {srd(s)}, s{so} offen {nt} lds'), tag), []),
            ([], Ins(cl(f'buffer_load_dwordx4 v{vo + 1}, {srd(s)}, s{so} offen offset:1024 {nt} lds'), tag), [f's_add_u32 s{so}, s{so}, 8192'])]
def dma4(s, vo, off, blk, tag, nt, so=sWe):
    return [([f's_mov_b32 s{so}, {off}', f's_add_u32 m0, s{sW4K}, {blk * BLK}'] if n == 0 else [],
             Ins(cl(f'buffer_load_dwordx4 v{vo + n}, {srd(s)}, s{so} offen offset:{n * 1024} {nt} lds'), tag), []) for n in range(4)]
def dma_w(t): return dma4(SW_, VOFFW, t * 32 * 8192, wblock(t), f'W{t}', OPT['nt_w'])
def dma_x(p): return dma4(SX, VOFFX, (p >> 1) * 128 + (p & 1) * 32 * 1152, xblock(p), f'X{p}', OPT['nt_x'], sXo)
def dma_kk(i): return dma4(SK, VSK, i * 16384, i, f'KK{i}', OPT['nt_kv'])
def dma_vv(i): return dma4(SV, VSV, i * 16384, 4 + i, f'VV{i}', OPT['nt_kv'])
def flat(dl):
    out = []
    for pre, ins, post in dl: out += pre + [ins] + post
    return out

def I(x): return x if isinstance(x, Ins) else Ins(x)
def cost(x):
    k = x.kind
    return {'trans': 8, 'valu': 4, 'dsr': 4, 'dsw': 4, 'dma': 12, 'vld': 12, 'vst': 12}.get(k, 0 if k in ('label', 'dir', 'waitvm', 'waitlg') else 4)
class Gaps:
    def __init__(self, n):
        self.n = n; self.sc = [[] for _ in range(n + 1)]; self.mem = [[] for _ in range(n)]; self.v = [[] for _ in range(n)]
    def place_dma(self, dl, gaps):
        assert len(gaps) >= len(dl), (len(gaps), len(dl))
        for (pre, ins, post), g in zip(dl, gaps):
            for k, s in enumerate(pre): self.sc[g - len(pre) + k].append(s)
            self.mem[g].append(ins)
            for k, s in enumerate(post): self.sc[g + 1 + k].append(s)
    def load(self, g): return sum(cost(I(x)) for x in self.mem[g] + self.v[g])
    def pack(self, items, g0, g1):
        items = [I(x) for x in items]
        base = [self.load(g) for g in range(self.n)]
        for L in range(8, 400, 2):
            g = g0; used = 0; vhere = False; pos = []; ok = True
            for x in items:
                c = cost(x); ismem = x.kind in ('dsr', 'dsw', 'dma', 'vld', 'vst')
                while True:
                    if g >= g1: ok = False; break
                    room = L - base[g] - used
                    if ismem and (vhere or (self.mem[g] and L < 20)): fit = False
                    else: fit = c <= room or (c == 0) or (used == 0 and base[g] == 0)
                    if fit: break
                    g += 1; used = 0; vhere = False
                if not ok: break
                pos.append(g); used += c
                if not ismem: vhere = True
                else: vhere = True if False else vhere
            if ok: break
        assert ok
        for x, g in zip(items, pos):
            (self.mem if x.kind in ('dsr', 'dsw', 'dma', 'vld', 'vst') else self.v)[g].append(x)
        return pos
    def weave(self, mf, a=0, b=None):
        out = []
        b = self.n if b is None else b
        for i in range(a, b):
            if i < len(mf) and mf[i] is not None: out.append(mf[i])
            out += self.sc[i] + self.mem[i] + self.v[i]
        if b == self.n: out += self.sc[self.n]
        return out

def k_reads(tile):
    return [Ins(f'ds_read_b128 v[{KF + (kt * 4 + u) * 4}:{KF + (kt * 4 + u) * 4 + 3}], v{KADDR + u} offset:{(tile % 8) * 8192 + kt * 4096}', f'rK{tile}')
            for kt in range(2) for u in range(4)]
def v_reads(tile):
    return [Ins(f'ds_read_b64_tr_b16 v[{VF + T * 4 + s * 2}:{VF + T * 4 + s * 2 + 1}], v{VADDR + T} offset:{(tile % 8) * 8192 + s * 4096}', f'rV{tile}')
            for T in range(8) for s in range(2)]
def qk_mfmas(j):
    h = 1 if j in ((32, 33) if OPT['w1'] else (32,)) else 0
    p = j & 1; first = (j & 31) == 0
    out = []
    for kt in range(2):
        for u, qt in ([(u, qt) for qt in range(4) for u in range(4)] if OPT['cqk'] else [(u, qt) for u in range(4) for qt in range(4)]):
            if True:
                c = f'v{S(p, kt, qt)}' if u else ('0' if first else f'v{NEGM + qt * 4}')
                out.append(mfma(f'v{S(p, kt, qt)}', f'v{KF + (kt * 4 + u) * 4}', f'a{Q(h, qt, u)}', c))
    return out
def pv_mfmas(j):
    p = j & 1; first = (j & 31) == 0
    return [mfma(f'a{O(T, qt)}', f'v{VF + T * 4}', f'v{P(p, qt)}', '0' if first else f'a{O(T, qt)}') for T in range(8) for qt in range(4)]

def sum_mfma(j, qt):
    p = j & 1; first = (j & 31) == 0
    return mfma(f'v{Lr(p, qt)}', f'v{ONES}', f'v{P(p, qt)}', '0' if first else f'v{Lr(1 - p, qt)}')
E0 = 24
def softmax_stream(j):
    p = j & 1
    out = []
    for k in range(32):
        qt, kk = k >> 3, k & 7
        out.append((E0 + 2 * k, f'v_exp_f32 v{ETMP + k % NE}, v{S(p, kk >> 2, qt) + (kk & 3)}'))
        if k & 1: out.append((E0 + 2 * k + 3, f'v_cvt_pk_bf16_f32 v{P(p, qt) + (kk >> 1)}, v{ETMP + (k - 1) % NE}, v{ETMP + k % NE}'))
    out.sort(key=lambda z: z[0])
    return out
SUMPOS = {0: 46, 1: 63, 2: NG + 8, 3: NG + 25}
def sm_dense(j, lo, hi):
    it = softmax_stream(j) + [(SUMPOS[qt] - 0.5, sum_mfma(j, qt)) for qt in range(4)]
    it.sort(key=lambda z: z[0])
    return [x for pos, x in it if lo <= pos < hi]
def pvi(n): return 34 + n if n < 12 else (35 + n if n < 28 else 36 + n)
def step_mfmas(j):
    qk = qk_mfmas(j + 1) if j + 1 < 64 else [None] * 32
    pv = pv_mfmas(j)
    nxt = j + 1 < 64 and (j + 1) & 31
    own = j < 63
    return (qk[:8] + [sum_mfma(j, 2) if own else None] + qk[8:24] + [sum_mfma(j, 3) if own else None] + qk[24:] +
            pv[:12] + [sum_mfma(j + 1, 0) if nxt else None] + pv[12:28] + [sum_mfma(j + 1, 1) if nxt else None] + pv[28:])
def rowmax(p, qt, dst):
    s0 = S(p, 0, qt); s1 = S(p, 1, qt)
    return [f'v_max3_f32 v{dst}, v{s0}, v{s0 + 1}, v{s0 + 2}', f'v_max3_f32 v{dst}, v{dst}, v{s0 + 3}, v{s1}',
            f'v_max3_f32 v{dst}, v{dst}, v{s1 + 1}, v{s1 + 2}', f'v_max_f32 v{dst}, v{dst}, v{s1 + 3}']
def xlane(op, regs, tmps):
    out = []
    for sw in ('v_permlane16_swap_b32', 'v_permlane32_swap_b32'):
        out += [f'v_mov_b32 v{t}, v{r}' for r, t in zip(regs, tmps)]
        out += [f'{sw} v{t}, v{r}' for r, t in zip(regs, tmps)]
        out += [f'{op} v{r}, v{r}, v{t}' for r, t in zip(regs, tmps)]
    return out
def init_stream(j):
    p = j & 1
    m = [NEGM + qt * 4 for qt in range(4)]; t = [NEGM + qt * 4 + 1 for qt in range(4)]
    out = []
    rm = [rowmax(p, qt, m[qt]) for qt in range(4)]
    for k in range(4): out += [rm[qt][k] for qt in range(4)]
    out += xlane('v_max_f32', m, t)
    for qt in range(4):
        for k in range(8):
            s = S(p, k >> 2, qt) + (k & 3)
            out.append(f'v_sub_f32 v{s}, v{s}, v{m[qt]}')
    for qt in range(4):
        for r in (3, 2, 1, 0): out.append(f'v_sub_f32 v{NEGM + qt * 4 + r}, 0, v{m[qt]}')
    return out

def epilogue(packed, tb):
    rc = [LREG + 2 * i for i in range(4)]
    prep = [f'v_rcp_f32 v{rc[qt]}, v{Lr(1, qt)}' for qt in range(4)]
    units = []
    for k in range(16):
        u, qt = divmod(k, 4)
        b = tb + (k % 2) * 12
        rd = [f'v_accvgpr_read_b32 v{b + i}, a{O(2 * u + (i >> 2), qt) + (i & 3)}' for i in range(8)]
        if packed: mu = [f'v_pk_mul_f32 v[{b + 2 * i}:{b + 2 * i + 1}], v[{b + 2 * i}:{b + 2 * i + 1}], v[{rc[qt]}:{rc[qt] + 1}] op_sel_hi:[1,0]' for i in range(4)]
        else: mu = [f'v_mul_f32 v{b + i}, v{rc[qt]}, v{b + i}' for i in range(8)]
        cv = [f'v_cvt_pk_bf16_f32 v{b + 8 + i}, v{b + 2 * i}, v{b + 2 * i + 1}' for i in range(4)]
        st = [Ins(cl(f'buffer_store_dwordx4 v[{b + 8}:{b + 11}], v{VOFFO}, {srd(SO)}, s{sOo} offen offset:{qt * 1024} {OPT["ost"]}'), 'Ost')]
        if qt == 3: st.append(f's_add_u32 s{sOo}, s{sOo}, 4096')
        units.append((rd, mu, cv, st))
    return prep, units
def epi_flat(units):
    L = []; first = []; lastrd = []
    for k, (rd, mu, cv, st) in enumerate(units):
        first.append(len(L)); L += rd; lastrd.append(len(L) - 1)
        if k: L += units[k - 1][3]
        L += mu + cv
    L += units[-1][3]
    return L, first, lastrd

SPINS = []
def spin_check(name, load, cmp):
    SPINS.append(f"""L_spin_{name}:
s_mov_b32 s{sT0}, 0x40000
L_spin2_{name}:
s_sleep 1
{load}
s_sub_u32 s{sT0}, s{sT0}, 1
s_cbranch_scc1 L_back_{name}
s_waitcnt vmcnt(0)
{cmp}
s_nop 1
s_cbranch_vccnz L_spin2_{name}
s_branch L_back_{name}""")
    return [cmp, f's_cbranch_vccnz L_spin_{name}', f'L_back_{name}:']

def fallback(p):
    A = Prog()
    A(f'L_fb{p}:')
    A('s_nop 7\ns_nop 7')
    TB = P(1 - p, 0)
    m = [TB + i for i in range(4)]; t = [ETMP + i for i in range(4)]; f = [TB + 4 + i for i in range(4)]
    rm = [rowmax(p, qt, m[qt]) for qt in range(4)]
    for k in range(4): A.extend([rm[qt][k] for qt in range(4)])
    A.extend(xlane('v_max_f32', m, t))
    for qt in range(4): A(f'v_max_f32 v{m[qt]}, 0, v{m[qt]}')
    for qt in range(4): A(f'v_exp_f32 v{f[qt]}, -v{m[qt]}')
    for qt in range(4):
        for k in range(8):
            s = S(p, k >> 2, qt) + (k & 3)
            A(f'v_sub_f32 v{s}, v{s}, v{m[qt]}')
        for r in range(4): A(f'v_sub_f32 v{NEGM + qt * 4 + r}, v{NEGM + qt * 4 + r}, v{m[qt]}')
        A(f'v_mul_f32 v{Lr(1 - p, qt)}, v{Lr(1 - p, qt)}, v{f[qt]}')
    A(f's_cmp_lg_u32 s{sMODE}, 0')
    A(f's_cbranch_scc1 L_fb{p}_b')
    for qt in range(4):
        for k in range(8):
            s = S(1 - p, k >> 2, qt) + (k & 3)
            A(f'v_sub_f32 v{s}, v{s}, v{m[qt]}')
    A(f'L_fb{p}_b:')
    for T in range(8):
        for qt in range(4):
            b = TB + 8 + ((T * 4 + qt) % 2) * 4
            for r in range(4): A(f'v_accvgpr_read_b32 v{b + r}, a{O(T, qt) + r}')
            for r in range(4): A(f'v_mul_f32 v{b + r}, v{b + r}, v{f[qt]}')
            for r in range(4): A(f'v_accvgpr_write_b32 a{O(T, qt) + r}, v{b + r}')
    A.extend(sm_dense(2 + p, 0, 999))
    A('s_nop 7')
    A(f's_setpc_b64 s[{sRET}:{sRET + 1}]')
    A.fix_hazards()
    return A

def stamp(A, idx, base=64):
    if OPT['stamps'] and not OPT['qtl']: A(f's_memtime s[{base + idx * 2}:{base + idx * 2 + 1}]')
def store_stamps(A, n):
    A('s_memrealtime s[62:63]\ns_waitcnt lgkmcnt(0)')
    A('v_lshrrev_b32 v1, 6, v0\ns_lshl_b32 s50, s2, 2\nv_add_u32 v1, s50, v1\nv_lshlrev_b32 v1, 7, v1')
    A('v_and_b32 v2, 63, v0\nv_cmp_eq_u32 vcc, 0, v2\ns_and_saveexec_b64 s[50:51], vcc')
    for i in range(n):
        for k in range(4): A(f'v_mov_b32 v{4 + k}, s{60 + i * 4 + k}')
        A(f'buffer_store_dwordx4 v[4:7], v1, s[56:59], 0 offen offset:{i * 16}')
        A('s_nop 1')

def code_prefetch(A, start, end, va, vd, n, first=0, tag=''):
    A(f's_getpc_b64 s[50:51]')
    A(f'L_pc{tag}_{start}:')
    if start == KNAME: A(f's_sub_u32 s50, s50, L_pc{tag}_{start}-{start}\ns_subb_u32 s51, s51, 0')
    else: A(f's_add_u32 s50, s50, {start}-L_pc{tag}_{start}\ns_addc_u32 s51, s51, 0')
    A(f'v_lshlrev_b32 v{va}, 7, v0')
    if first: A(f'v_add_u32 v{va}, {first * 0x8000}, v{va}')
    for i in range(n):
        A(f'v_min_u32 v{va + 1}, {end}-{start}-4, v{va}')
        A(f'global_load_dword v{vd + i}, v{va + 1}, s[50:51]', tag='pf')
        if i + 1 < n: A(f'v_add_u32 v{va}, 0x8000, v{va}')

DEF_V = []; DEF_S = []
def setup(A):
    A('s_cmp_ge_u32 s2, 256\ns_cbranch_scc1 L_end')
    A(f"""s_bfe_u32 s48, s2, 0x10002
s_mul_i32 s50, s48, 40
s_add_u32 s52, s0, s50
s_addc_u32 s53, s1, 0
s_load_dwordx2 s[{SX}:{SX+1}], s[52:53], 0
s_load_dwordx2 s[{SW_}:{SW_+1}], s[52:53], 24
s_lshr_b32 s51, s2, 7
s_mul_i32 s51, s51, 40
s_add_u32 s54, s0, s51
s_addc_u32 s55, s1, 0
s_load_dwordx2 s[{SK}:{SK+1}], s[52:53], 8
s_load_dwordx2 s[{SV}:{SV+1}], s[52:53], 16
s_load_dwordx2 s[{SWS}:{SWS+1}], s[54:55], 32
s_load_dwordx2 s[{SO}:{SO+1}], s[0:1], 96
s_load_dwordx4 s[92:95], s[0:1], 80""")
    if OPT['stamps']: A('s_memrealtime s[60:61]')
    stamp(A, 0)
    if OPT['pf'] == '1': code_prefetch(A, KNAME, 'L_code_end', 100, 252, 1)
    elif OPT['pf'] == '2':
        A(f'''s_getpc_b64 s[50:51]
L_pcx:
s_sub_u32 s50, s50, L_pcx-{KNAME}
s_subb_u32 s51, s51, 0
s_lshr_b32 s48, s2, 3
s_cmp_ge_u32 s48, 3
s_cbranch_scc1 L_nopf
s_lshl_b32 s48, s48, 15
v_lshlrev_b32 v100, 7, v0
v_add_u32 v100, s48, v100
v_min_u32 v100, L_code_end-{KNAME}-4, v100''')
        A('global_load_dword v252, v100, s[50:51]', tag='pf')
        A('L_nopf:')
    A(f"""s_and_b32 s46, s2, 6
s_lshl_b32 s46, s46, 1
s_lshr_b32 s48, s2, 6
s_add_u32 s46, s46, s48
s_and_b32 s47, s2, 1
s_lshl_b32 s47, s47, 3
s_bfe_u32 s48, s2, 0x30003
s_add_u32 s47, s47, s48
s_and_b32 s49, s46, 7
v_lshrrev_b32 v1, 6, v0
v_and_b32 v2, 63, v0
v_readfirstlane_b32 s{sW}, v1
v_lshrrev_b32 v97, 4, v2
v_lshrrev_b32 v100, 3, v2
v_lshl_add_u32 v100, v1, 6, v100
v_mul_u32_u24 v100, 1152, v100
s_lshl_b32 s{sW4K}, s{sW}, 12
v_and_b32 v101, 7, v2
v_xor_b32 v101, v101, v97
v_lshl_add_u32 v{VOFFX}, v101, 4, v100
v_xor_b32 v101, 4, v101
v_lshl_add_u32 v102, v101, 4, v100
v_add_u32 v{VOFFX + 1}, {8 * 1152 - 1024}, v102
v_add_u32 v{VOFFX + 2}, {2 * (8 * 1152 - 1024)}, v{VOFFX}
v_add_u32 v{VOFFX + 3}, {3 * (8 * 1152 - 1024)}, v102
v_lshrrev_b32 v100, 5, v2
v_and_b32 v101, 31, v2
v_lshl_add_u32 v103, v1, 3, v100
v_lshlrev_b32 v103, 13, v103
v_lshlrev_b32 v104, 2, v100
v_xor_b32 v104, v104, v101
v_lshl_add_u32 v{VOFFW}, v104, 4, v103
v_xor_b32 v104, 128, v{VOFFW}
v_add_u32 v{VOFFW + 1}, {16384 - 1024}, v104
v_add_u32 v{VOFFW + 2}, {2 * (16384 - 1024)}, v{VOFFW}
v_add_u32 v{VOFFW + 3}, {3 * (16384 - 1024)}, v104
s_mul_i32 s50, s49, 294912
s_lshl_b32 s51, s47, 9
s_mov_b32 s{SX+2}, 294912
s_mov_b32 s{SX+3}, 0x20000
s_sub_u32 s{SW_+2}, {576 * 8192}, s51
s_mov_b32 s{SW_+3}, 0x20000
s_waitcnt lgkmcnt(0)""")
    stamp(A, 1)
    A(f"""s_add_u32 s{SX}, s{SX}, s50
s_addc_u32 s{SX+1}, s{SX+1}, 0
s_add_u32 s{SW_}, s{SW_}, s51
s_addc_u32 s{SW_+1}, s{SW_+1}, 0""")
    A.extend(flat(dma_w(0)) + flat(dma_x(0)) + flat(dma_x(1)) + flat(dma_w(1)))
    A(f"""v_and_b32 v96, 15, v2
v_and_b32 v98, 3, v2
v_bfe_u32 v99, v2, 2, 2
v_lshl_add_u32 v100, v97, 3, v99
v_lshlrev_b32 v101, 6, v99
v_lshl_add_u32 v101, v100, 9, v101
v_lshl_add_u32 v101, v98, 4, v101
v_add_u32 v{WADDR}, {BLK}, v101""")
    for T in range(1, 4): A(f'v_xor_b32 v{WADDR + T}, {T * 64}, v{WADDR}')
    A(f"""v_lshrrev_b32 v100, 1, v96
v_xor_b32 v100, v100, v97
v_lshlrev_b32 v100, 4, v100
v_lshl_add_u32 v100, v96, 7, v100
v_lshl_add_u32 v100, v1, 12, v100
v_add_u32 v{XADDR}, {2 * BLK}, v100
v_xor_b32 v{XADDR + 1}, 64, v{XADDR}
v_add_u32 v{XADDR + 2}, {4 * BLK}, v{XADDR}
v_add_u32 v{XADDR + 3}, {4 * BLK}, v{XADDR + 1}""")
    if OPT['su'] == '2': A.extend(flat(dma_w(2)) + flat(dma_x(2)))
    if OPT['su'] == '0':
        A.extend(flat(dma_x(2)) + flat(dma_w(2)) + flat(dma_w(3)))
        if OPT['pf'] == '1': code_prefetch(A, KNAME, 'L_code_end', 100, 253, 2, first=1, tag='b')
    KVS = f"""s_lshl_b32 s50, s49, 23
s_lshl_b32 s51, s47, 19
s_add_u32 s50, s50, s51
s_add_u32 s{SK}, s{SK}, s50|s_addc_u32 s{SK+1}, s{SK+1}, 0
s_mov_b32 s{SK+2}, 0x80000
s_mov_b32 s{SK+3}, 0x20000
s_add_u32 s{SV}, s{SV}, s50|s_addc_u32 s{SV+1}, s{SV+1}, 0
s_mov_b32 s{SV+2}, 0x80000
s_mov_b32 s{SV+3}, 0x20000"""
    ne = int(OPT['l2e'])
    if ne:
        A(KVS.replace('|', '\n')); KVS = ''
        A(f'v_lshlrev_b32 v100, 7, v2\nv_mul_u32_u24 v101, {ne * 1024}, v1\nv_add_u32 v100, v100, v101\nv_cmp_le_u32 vcc, {ne * 8}, v2\nv_cndmask_b32 v100, v100, -1, vcc')
        A(f's_mov_b32 s50, {8 * 8192}\ns_mov_b32 s51, {6 * 8192}')
        A(cl(f'buffer_load_dword a254, v100, {srd(SK)}, s50 offen {OPT["l2p"]}'), tag='l2')
        A(cl(f'buffer_load_dword a253, v100, {srd(SV)}, s51 offen {OPT["l2p"]}'), tag='l2')
    V = DEF_V; a, b, c, d, l15, g = 92, 93, 94, 95, 61, 62
    V += [f'v_add_u32 v{WADDR + 4 + T}, {6 * BLK}, v{WADDR + T}' for T in range(4)]
    V += f"""v_lshlrev_b32 v{VOFFO}, 4, v2
v_and_b32 v{l15}, 15, v2
v_lshrrev_b32 v{g}, 4, v2
v_lshlrev_b32 v{a}, 11, v1
v_lshl_add_u32 v{a}, v{g}, 8, v{a}
v_lshl_add_u32 v{b}, v1, 3, v{g}""".split('\n')
    for o in range(2):
        V += f"""v_add_u32 v{c}, {4 * o}, v{b}
v_and_b32 v{d}, 15, v{c}
v_xor_b32 v{d}, v{d}, v{l15}
v_lshl_add_u32 v{VOFFK + o}, v{d}, 4, v{a}
v_and_b32 v{d}, 7, v{c}
v_lshlrev_b32 v{d}, 1, v{d}
v_xor_b32 v{d}, v{d}, v{l15}
v_lshl_add_u32 v{VOFFV + o}, v{d}, 4, v{a}""".split('\n')
    V += [f'v_lshlrev_b32 v{a}, 12, v1', f'v_lshl_add_u32 v{a}, v{g}, 8, v{a}']
    for n in range(4):
        V += f"""v_add_u32 v{c}, {4 * n}, v{g}
v_xor_b32 v{d}, v{c}, v{l15}
v_lshl_add_u32 v{VSK + n}, v{d}, 4, v{a}
v_and_b32 v{d}, 7, v{c}
v_lshlrev_b32 v{d}, 1, v{d}
v_xor_b32 v{d}, v{d}, v{l15}
v_lshl_add_u32 v{VSV + n}, v{d}, 4, v{a}""".split('\n')
    V += [f'v_xor_b32 v{a}, v{g}, v{l15}', f'v_lshlrev_b32 v{a}, 4, v{a}', f'v_lshl_add_u32 v{KADDR}, v{l15}, 8, v{a}']
    V += [f'v_xor_b32 v{KADDR + u}, {u * 64}, v{KADDR}' for u in range(1, 4)]
    V += f"""v_lshrrev_b32 v{a}, 2, v2
v_and_b32 v{b}, 7, v{a}
v_lshlrev_b32 v{b}, 5, v{b}
v_lshl_add_u32 v{b}, v{a}, 8, v{b}
v_and_b32 v{c}, 3, v2
v_lshl_add_u32 v{b}, v{c}, 3, v{b}
v_add_u32 v{VADDR}, 0x10000, v{b}
v_mul_u32_u24 v{a}, 384, v{a}
v_lshl_add_u32 v{a}, v{c}, 3, v{a}
v_mul_u32_u24 v{b}, 96, v1
v_add_u32 v{JADDR}, v{a}, v{b}""".split('\n')
    V += [f'v_xor_b32 v{VADDR + T}, {T * 32}, v{VADDR}' for T in range(1, 8)]
    for n in range(3):
        t = VOFFJ + n
        V += f"""v_add_u32 v{d}, {64 * n}, v2
v_mul_u32_u24 v{t}, 2731, v{d}
v_lshrrev_b32 v{t}, 16, v{t}
v_mul_u32_u24 v{CW1}, 24, v{t}
v_sub_u32 v{d}, v{d}, v{CW1}
v_lshl_add_u32 v{t}, v1, 3, v{t}
v_mul_u32_u24 v{t}, 1152, v{t}
v_lshl_add_u32 v{t}, v{d}, 4, v{t}
v_subrev_u32 v{t}, {n * 1024}, v{t}""".split('\n')
    V += [f'v_mov_b32 v{CR}, 0']
    S_ = f"""s_and_b32 s50, s2, 127
s_mul_i32 s50, s50, 36864
s_add_u32 s{SWS}, s{SWS}, s50|s_addc_u32 s{SWS+1}, s{SWS+1}, 0
s_mov_b32 s{SWS+2}, 36864
s_mov_b32 s{SWS+3}, 0x20000
s_lshl_b32 s{sW2K}, s{sW}, 11
{KVS}
s_mov_b32 s{sWS}, s{SO}
s_mov_b32 s{sWS+1}, s{SO+1}
s_mov_b32 s{sOUT}, s92
s_mov_b32 s{sOUT+1}, s93
s_lshr_b32 s50, s2, 7
s_lshl_b32 s50, s50, 9
s_and_b32 s51, s2, 64
s_add_u32 s50, s50, s51
s_bfe_u32 s51, s2, 0x10002
s_lshl_b32 s51, s51, 5
s_add_u32 s50, s50, s51
s_bfe_u32 s51, s2, 0x30003
s_lshl_b32 s51, s51, 2
s_add_u32 s50, s50, s51
s_and_b32 s51, s2, 3
s_add_u32 s50, s50, s51
s_mul_i32 s50, s50, 9216
s_add_u32 s50, s50, {WS_WO}
s_add_u32 s{SWD}, s{SO}, s50|s_addc_u32 s{SWD+1}, s{SO+1}, 0
s_mov_b32 s{SWD+2}, {3 * 128 * 9216 + 9216}
s_mov_b32 s{SWD+3}, 0x20000
s_lshl_b32 s50, s2, 7
s_lshl_b32 s51, s{sW}, 2
s_add_u32 s50, s50, s51
s_add_u32 s50, s50, {WS_FL}
s_add_u32 s{SFL}, s{SO}, s50|s_addc_u32 s{SFL+1}, s{SO+1}, 0
s_mov_b32 s{SFL+2}, 68
s_mov_b32 s{SFL+3}, 0x20000""".split('\n')
    if OPT['stamps']:
        S_ += [f's_add_u32 s56, s{SO}, {WS_STAMP}|s_addc_u32 s57, s{SO+1}, 0', 's_mov_b32 s58, 0x100000', 's_mov_b32 s59, 0x20000']
    S_ += f"""s_lshl_b32 s50, s46, 2
s_add_u32 s50, s50, s{sW}
s_lshl_b32 s50, s50, 19
s_lshl_b32 s51, s47, 15
s_add_u32 s50, s50, s51
s_add_u32 s{SO}, s{SO}, s50|s_addc_u32 s{SO+1}, s{SO+1}, 0
s_mov_b32 s{SO+2}, 32768
s_mov_b32 s{SO+3}, 0x20000
s_mov_b32 s{sSC}, {f2i(SCALE):#x}
s_mov_b32 s{sTHR}, {f2i(2.0 ** 24):#x}
s_mov_b32 s{sOo}, 0
s_mov_b32 s{sDBG}, s94
s_mov_b32 s{sDBG+1}, s95
s_mov_b32 s{sKo}, {8 * 8192}
s_mov_b32 s{sVo}, {6 * 8192}
s_mov_b32 s{sCnt}, 3
s_mov_b32 s{sHead}, 0""".split('\n')
    DEF_S.extend(x for x in S_ if x)

def x_reads(pc):
    c = pc >> 1; blk = xblock(pc)
    return [Ins(f'ds_read_b128 v[{XF(2 * c + ks, 2 * (pc & 1) + qq)}:{XF(2 * c + ks, 2 * (pc & 1) + qq) + 3}], v{XADDR + ks + (2 if blk == 6 else 0)} offset:{(0 if blk == 6 else (blk - 2) * BLK) + qq * 2048}', f'rX{pc}')
            for ks in range(2) for qq in range(2)]
def w_read(t, h, T, dst):
    blk = wblock(t)
    ad = WADDR + (T >> 1) if blk <= 4 else WADDR + 4 + (T >> 1)
    off = (blk - 1 if blk <= 4 else blk - 7) * BLK + h * 256 + (T & 1) * 8
    d = int(dst[1:])
    return [Ins(f'ds_read_b64_tr_b16 {dst[0]}[{d + 2 * s}:{d + 2 * s + 1}], v{ad} offset:{off + s * 2048}', f'rW{t}') for s in range(2)]
def w_reads(t):
    out = []
    for f in range(16): out += w_read(t, f >> 3, f & 7, f'a{WF((16 * t + f) % NWS)}')
    return out
UH = ['a160', 'a192', 'a160', 'a192', 'a0', 'a32', 'a0', 'a32']
def uw(n, k, tt): return f'{UH[n][0]}{int(UH[n][1:]) + (k * 2 + tt) * 4}'
def unit_order(n):
    if not OPT['cqb']: return [(k, tt) for k in range(4) for tt in range(2)]
    if n == 0: return [(0, 0), (1, 0), (0, 1), (1, 1), (2, 0), (3, 0), (2, 1), (3, 1)]
    return [(k, tt) for tt in range(2) for k in range(4)]
def unit_mf(n):
    if not OPT['cqb']: return [(k, tt, qt) for k in range(4) for tt in range(2) for qt in range(4)]
    if n == 0: return [(2 * hf + k, tt, qt) for hf in range(2) for tt in range(2) for qt in range(4) for k in range(2)]
    return [(k, tt, qt) for tt in range(2) for qt in range(4) for k in range(4)]
def unit_reads(n):
    h, u = n >> 2, n & 3
    out = []
    for k, tt in unit_order(n): out += w_read(14 + k, h, 2 * u + tt, uw(n, k, tt))
    return out
def conv(n):
    h, u = n >> 2, n & 3
    V = []; pend = []
    for tt in range(2):
        for qt in range(4):
            acc = QACC(h, 2 * u + tt, qt)
            if h == 1: b = int(acc[1:]); rd = []
            else:
                b = 84 + ((n * 8 + tt * 4 + qt) % 3) * 4
                rd = [f'v_accvgpr_read_b32 v{b + r}, a{int(acc[1:]) + r}' for r in range(4)]
            mu = [f'v_mul_f32 v{b + r}, s{sSC}, v{b + r}' for r in range(4)]
            cv = [f'v_cvt_pk_bf16_f32 v{b}, v{b}, v{b + 1}', f'v_cvt_pk_bf16_f32 v{b + 1}, v{b + 2}, v{b + 3}']
            V += [Ins(x) for x in rd + mu + pend + cv]
            pend = [f'v_accvgpr_write_b32 a{Q(h, qt, u) + 2 * tt + r}, v{b + r}' for r in range(2)]
    V += [Ins(x) for x in pend]
    return V, [], V

def q_phase(A):
    stamp(A, 2)
    A('WAITVM X0+X1+W0+W1\ns_barrier')
    stamp(A, 3)
    SU2 = OPT['su'] == '2'
    if OPT['su'] != '1':
        xr = x_reads(0) + x_reads(1); wr_ = w_reads(0)
        A.extend(xr[:2] + xr[4:6] + wr_[:8] + xr[2:4] + xr[6:] + wr_[8:])
    else:
        rd = x_reads(0) + x_reads(1) + w_reads(0)
        dj = dma_x(2) + dma_w(2) + dma_w(3)
        for i in range(12):
            A.extend(flat([dj[i]])); A.extend(rd[i * 40 // 12:(i + 1) * 40 // 12])
    def JR(i): return f'a{224 + 4 * i}' if i < 8 else 'v92'
    def jstore(i):
        r, n = divmod(i, 3)
        pre = [f's_add_u32 s{sT0}, s{sW}, {4 * r}', f's_mul_i32 s49, s{sT0}, 43', f's_lshr_b32 s49, s49, 7',
               f's_mul_i32 s49, s49, {128 * 9216 - 9216}', f's_mul_i32 s{sT0}, s{sT0}, 3072', f's_add_u32 s{sJ}, s{sT0}, s49'] if n == 0 else []
        return [(pre, Ins(cl(f'buffer_store_dwordx4 {rng(JR(i), 4)}, v{VOFFO}, {srd(SWD)}, s{sJ} offen offset:{n * 1024} {OPT["st"]}'), 'Jst'), [])]
    for t in range(14):
        mf = []
        for f in range(16):
            for qt in range(4):
                acc = QACC(f >> 3, f & 7, qt)
                mf.append(mfma(acc, f'a{WF((16 * t + f) % NWS)}', f'v{XF(t, qt)}', acc if t else '0'))
        G = Gaps(64)
        groups = []
        J4 = OPT['jo'] == '4'
        if t in ((2, 5, 9) if J4 else (3, 7, 11)):
            r = t // 4
            groups += [[([f's_mov_b32 s{sWe}, {r * 384}', f's_mul_i32 m0, s{sW}, 3072'] if n == 0 else [],
                         Ins(f'buffer_load_dwordx4 v{VOFFJ + n}, {srd(SWS)}, s{sWe} offen offset:{n * 1024} nt lds', f'J{r}'), []) for n in range(3)]]
        if SU2 and t < 4:
            groups += {0: [dma_x(3), dma_w(3), dma_x(4)], 1: [dma_w(4), dma_x(5), dma_w(5)], 2: [dma_x(6), dma_w(6), dma_w(7), dma_x(7)], 3: [dma_w(8), dma_x(8)]}[t]
        else:
            if t == 0: groups += [dma_x(3), dma_x(4), dma_w(4)]
            if t == 1: groups += [dma_w(5)]
            if 1 <= t <= 12: groups += [dma_w(t + 5)]
            if t + 5 < 18: groups += [dma_x(t + 5)]
        if t == 13 and not J4: groups += [dma_vv(0), dma_kk(1)]
        ngr = len(groups)
        gl = {4: [[5, 8, 11, 14], [18, 22, 26, 30], [34, 38, 42, 46], [51, 54, 57, 60]],
              3: [[2, 7, 12, 17], [24, 29, 34, 39], [46, 51, 56, 60]],
              2: [[2, 10, 18, 26], [34, 42, 50, 58]], 1: [[18, 30, 42, 54]], 0: []}[ngr]
        if SU2 and t == 0: gl = [[5, 10, 15, 20], [26, 31, 36, 41], [47, 52, 56, 60]]
        if J4 and t == 12: gl = [[2, 6, 10, 14], [20, 24, 28, 32]]
        dg = [g for gr, pos in zip(groups, gl) for g in pos[:len(gr)]]
        if J4 and t in (12, 13):
            for i, g in {12: [(0, 44), (1, 52), (2, 60)], 13: [(3, 8), (4, 16), (5, 24), (6, 34), (7, 44), (8, 54)]}[t]:
                G.place_dma(jstore(i), [g]); dg.append(g)
            if t == 13:
                G.v[57].append(f'v_mov_b32 v{VPA}, 0'); dg.append(59)
                G.mem[59].append(Ins(cl(f'buffer_store_dword v{VPA}, v{VOFFO}, {srd(SFL)}, 0 offen {OPT["st"]}'), 'Fz'))
        L2 = [int(x) for x in OPT['l2'].split('.')] if OPT['l2'] else []
        for i in [i for i, x in enumerate(L2) if x == t]:
            if i == 0:
                G.v[4] += ['v_lshlrev_b32 v95, 7, v2', 'v_lshl_add_u32 v95, v1, 11, v95']
                G.v[5] += [f'v_lshrrev_b32 v{VOFFO}, 4, v2', f'v_lshl_add_u32 v95, v{VOFFO}, 24, v95']
                G.v[6] += [f'v_lshlrev_b32 v{VOFFO}, 4, v2']
            sr, base = (SK, 8) if i % 2 == 0 else (SV, 6)
            g = 14 if (i + 1 < len(L2) and L2[i + 1] == t) else 46
            while g in dg or G.sc[g - 1]: g += 1
            G.sc[g - 1].append(f's_mov_b32 s{sT0}, {(base + int(OPT["l2e"]) // 2 + i // 2) * 8192}')
            x = Ins(cl(f'buffer_load_dword a255, v95, {srd(sr)}, s{sT0} offen {OPT["l2p"]}'), 'l2'); x.wr = set() if i + 1 < len(L2) else x.wr
            G.mem[g].append(x); dg.append(g)
        free = [g for g in range(64) if g not in dg]
        late = SU2 and t < 2
        if not late: G.sc[0].append(f'WAITVM X{t + 2}')
        rds = [] if late else x_reads(t + 2)
        if t + 5 < 18 and not late:
            xi = [i for i, gr in enumerate(groups) if gr[0][1].tag == f'X{t + 5}'][0]
            G.sc[gl[xi][0] - 3].append(f'WAITLG rX{t + 2}')
        if t in ((3, 7, 11) if J4 else (5, 9, 13)):
            for n in range(3):
                d = JR((t // 4 - (0 if J4 else 1)) * 3 + n)
                rds += [Ins(f'ds_read_b64_tr_b16 {d[0]}[{int(d[1:]) + 2 * sx}:{int(d[1:]) + 2 * sx + 1}], v{JADDR} offset:{n * 32 + sx * 16 * 384}') for sx in range(2)]
        if t == 0: G.sc[2].append('WAITLG rX1')
        rds += w_reads(t + 1) if t < 13 else unit_reads(0)[:8]
        if OPT['wsp'] and len(rds) > 30:
            fr = [g for g in free if g < 54]
            if len(fr) > len(rds): free = fr[:6] + [fr[6 + (i * (len(fr) - 6)) // (len(rds) - 6)] for i in range(len(rds) - 6)]
        for r, g in zip(rds, free): G.mem[g].append(r)
        if late:
            lp = [g for g in free if g >= 48][:4]
            G.sc[lp[0]].append(f'WAITVM X{t + 2}')
            for r, g in zip(x_reads(t + 2), lp): G.mem[g].append(r)
        for gr, g in zip(groups, gl): G.place_dma(gr, g)
        if t % 2 == 0 or t == 13 or (SU2 and t in (1, 3)):
            c = t // 2 + 1
            tags = f'W{2 * c}+W{2 * c + 1}' if t != 13 else 'W16+W17+X16+X17'
            if SU2 and t < 4: tags = f'W{t + 2}'
            if t in ((2, 6, 10) if J4 else (4, 8, 12)): tags += f'+J{t // 4 - (0 if J4 else 1)}'
            G.sc[62] += [f'WAITVM {tags} lg0', 's_barrier']
        if t == 0 and OPT['su'] == '1':
            P_ = Prog(); code_prefetch(P_, KNAME, 'L_code_end', 8, 252, 2, first=1, tag='b')
            G.v[63] += [Ins(x.text.replace('global_load_dword v', 'global_load_dword a'), x.tag) for x in P_.L]
        if t < 3:
            n0, n1 = ([0, 62, len(DEF_V), len(DEF_V)] if J4 else [0, 36, 80, len(DEF_V)])[t:t + 2]
            for i, x in enumerate(DEF_V[n0:n1]): G.v[(i * 62) // (n1 - n0)].append(x)
        if t in (1, 2, 4, 6) and DEF_S:
            for g in range(41, 62):
                if DEF_S and not G.sc[g]: G.sc[g] += DEF_S.pop(0).split('|')
            if t == 6:
                for g in range(4, 40):
                    pass
        if t in (8, 10) and DEF_S:
            for g in range(41, 62):
                if DEF_S and not G.sc[g]: G.sc[g] += DEF_S.pop(0).split('|')
        if t == 11: assert not DEF_S, len(DEF_S)
        if OPT['qtl']:
            G.v[3].append('s_memtime s[98:99]'); G.v[40].append(f's_mov_b32 s{64 + t}, s98')
        A.extend(G.weave(mf))
    stamp(A, 4)
    gsu = f"""s_and_b32 s50, s2, 6
s_lshl_b32 s50, s50, 3
s_lshr_b32 s51, s2, 5
s_lshl_b32 s51, s51, 1
s_add_u32 s50, s50, s51
s_lshr_b32 s51, s{sW}, 1
s_add_u32 s50, s50, s51
s_lshl_b32 s50, s50, 19
s_and_b32 s51, s2, 1
s_lshl_b32 s51, s51, 18
s_add_u32 s50, s50, s51
s_and_b32 s51, s{sW}, 1
s_lshl_b32 s51, s51, 11
s_add_u32 s50, s50, s51
s_add_u32 s{SGO}, s{sWS}, s50|s_addc_u32 s{SGO+1}, s{sWS+1}, 0
s_mov_b32 s{SGO+2}, {262144 - 2048}
s_and_b32 s50, s2, 4
s_bfe_u32 s51, s2, 0x20003
s_add_u32 s50, s50, s51
s_lshl_b32 s50, s50, 1
s_and_b32 s51, s2, 1
s_add_u32 s50, s50, s51
s_mul_i32 s50, s50, {64 * 9216}
s_add_u32 s50, s50, {WS_WO}
s_add_u32 s{SGW}, s{sWS}, s50|s_addc_u32 s{SGW+1}, s{sWS+1}, 0
s_mov_b32 s{SGW+2}, {64 * 9216}""".split('\n')
    NG = 288
    G = Gaps(NG + 8)
    mf = []; ref = []
    UR = [unit_reads(n) for n in range(8)]
    XR = x_reads(16) + x_reads(17)
    K0 = k_reads(0); K1 = k_reads(1)
    CV_ = [conv(n) for n in range(8)]
    ref += XR
    for n in range(8):
        h, u = n >> 2, n & 3
        m = [Ins(mfma(QACC(h, 2 * u + tt, qt), uw(n, k, tt), f'v{XF(14 + k, qt)}', QACC(h, 2 * u + tt, qt))) for k, tt, qt in unit_mf(n)]
        mf += m
        ref += (UR[n][8:] if n == 0 else UR[n]) + m + CV_[n][2]
    m = [Ins(x) for x in qk_mfmas(0)]
    mf += m; ref += K0 + m + K1
    if OPT['jo'] == '4':
        k0 = int(OPT['kv0'])
        for i, jobs in enumerate([dma_kk(0), dma_vv(0), dma_kk(1), dma_vv(1), dma_kk(2)]):
            st_ = (215 - k0) // 20
            G.place_dma(jobs, [k0 + st_ * (4 * i + x) for x in range(4)])
        kv = {1: k0 + st_ * 12}
    else:
        JS = [jstore(i) for i in range(9)]
        ref = [x[0][1] for x in JS] + ref
        order = [6, 8, 7, 0, 1, 2, 3, 4, 5]
        jp = [17, 24, 48, 76, 100, 124, 152, 176, 200]; fz = 220; kv = {0: 34, 1: 82, 2: 130, 3: 182}
        for i, g in zip(order, jp): G.place_dma(JS[i], [g])
        G.v[fz - 2].append(f'v_mov_b32 v{VPA}, 0')
        G.mem[fz].append(Ins(cl(f'buffer_store_dword v{VPA}, v{VOFFO}, {srd(SFL)}, 0 offen {OPT["st"]}'), 'Fz'))
        for i, jobs in enumerate([dma_kk(0), dma_vv(1), dma_kk(2), dma_vv(2)]):
            G.place_dma(jobs, [kv[i] + 11 * x for x in range(4)])
    G.place_dma(dma_kk(3), [250, 258, 266, 274])
    G.sc[kv[1] - 3].append('WAITLG rX16+rX17')
    gi = 260
    for x in gsu:
        while G.sc[gi]: gi += 1
        G.sc[gi] += x.split('|')
    BAR = 32 * 7 + 9
    G.sc[BAR] += ['WAITVM KK0 lg0', 's_barrier']
    def put(ins, g, lim=None):
        while G.mem[g] or (BAR - 5 <= g < BAR): g += 1
        assert lim is None or g <= lim, (ins.text, g, lim)
        G.mem[g].append(ins); return g
    cur = 0
    for n in range(8):
        V, D, _ = CV_[n]
        g0 = 32 * (n + 1) + 1; span = 30
        vp = [g0 + (i * span) // len(V) for i in range(len(V))]
        for x, g in zip(V, vp): G.v[g].append(x)
        for i, d in D: cur = put(d, max(cur, vp[i] + 1))
    g = 0
    for r in ((XR[:4] + UR[0][8:12] + XR[4:] + UR[0][12:]) if OPT['cqb'] else (XR[:2] + XR[4:6] + UR[0][8:12] + XR[2:4] + XR[6:] + UR[0][12:])): g = put(r, g)
    for n in range(1, 8):
        for i, r in enumerate(UR[n]):
            g = put(r, max(g, 32 * (n - 1) + (i * 3) // 2), lim=min((32 * n + 16 * (i // 8) - 5 + (i % 8) // 2) if OPT['cqb'] else 32 * n + 2 * i - 5, BAR - 6))
    g = BAR
    for i, r in enumerate(K0): g = put(r, max(g, BAR + 2 * i), lim=(256 + 16 * (i // 4) - 5 + i % 4) if OPT['cqk'] else 256 + 4 * i - 6)
    for i, r in enumerate(K1): g = put(r, max(g, (256 + 16 * (i // 4) + 13 + i % 4) if OPT['cqk'] else 256 + 4 * i + 4))
    if OPT['stamps'] and not OPT['qtl']: G.sc[257].append('s_memtime s[74:75]')
    if OPT['qtl']:
        for n in range(9): G.v[32 * n + 3].append('s_memtime s[98:99]'); G.v[32 * n + 25].append(f's_mov_b32 s{78 + n}, s98')
    out = [I(x) for x in G.weave(mf)]
    check_order(ref, out, 'QB')
    A.extend(out)
    A.extend(init_stream(0))

def seg_name(j):
    if j == 0 or (j == 32 and not OPT['w1']): return 's0'
    if j == 32: return 's32'
    if j == 31: return 'sp31'
    if j == 63: return 'fin31'
    if j >= 56: return f'p{j}'
    return f'r{j % 8}'

def gen():
    A = Prog()
    setup(A)
    q_phase(A)
    A(f'v_and_b32 v{ONES}, 3, v2\nv_cmp_eq_u32 vcc, 0, v{ONES}\nv_mov_b32 v{ONES + 1}, 0x3f803f80\nv_cndmask_b32 v{ONES}, 0, v{ONES + 1}, vcc')
    A.extend([f'v_mov_b32 v{ONES + i}, v{ONES}' for i in range(1, 4)])
    A.extend(sm_dense(0, 0, NG))
    stamp(A, 6)
    if OPT['tl']: A('s_mov_b32 s97, 0')
    def tagsof(which, t):
        if which == 'V' and t < 6: return f'VV{t // 2}'
        if which == 'K' and t < 8: return f'KK{t // 2}'
        return f'{which}{t}'
    GA = [4, 5, 6]
    def WB(c, n, u): return 128 + ((9 * c + n) % 4) * 16 + u * 4
    def GACC(n, mm): i = n * 2 + mm; return 64 + i * 4 if i < 16 else 200 + (i - 16) * 4
    def OB(s, mm): return 128 + ((s + 8) % 16) * 8 + mm * 4
    def g_wreads(c, n):
        out = []
        for u in range(4):
            ad = (c % 4) * 36864 + u * 9216 + n * 1024
            out.append(Ins(f'ds_read_b128 v[{WB(c, n, u)}:{WB(c, n, u) + 3}], v{GA[ad >> 16]} offset:{ad & 0xffff}', f'rG{c}'))
        return out
    def g_oloads(s):
        gen_, i, u = s >> 5, (s >> 2) & 7, s & 3
        off, sr = ((2 * i + gen_) * 16384 + u * 4096, SGO) if s < 64 else (i * 32768 + u * 4096, SG2O)
        return [([f's_mov_b32 s{sWe}, {off}'] if mm == 0 else [],
                 Ins(cl(f'buffer_load_dwordx4 a[{OB(s, mm)}:{OB(s, mm) + 3}], v{VSK_[mm]}, {srd(sr)}, s{sWe} offen {OPT["g_o"]}'), f'GO{s}'), []) for mm in range(2)]
    def g_w8(a, tag):
        return [([f's_mov_b32 s{sKo}, {a}', f's_add_u32 m0, s{sW2K}, {a}'] if o == 0 else [],
                 Ins(cl(f'buffer_load_dwordx4 v{VOFFK}, {srd(SGW)}, s{sKo} offen offset:{o * 1024} {OPT["g_w"]} lds'), tag), []) for o in range(2)]
    def g_wchunk(c):
        out = []
        for n in range(9):
            pre = [f's_add_u32 s{sKo}, s{sXo}, {(c % 16) * 36864 + (n // 4) * 4096}', f's_add_u32 m0, s{sXo}, {(c % 4) * 36864 + (n // 4) * 4096}'] if n % 4 == 0 else []
            out.append((pre, Ins(cl(f'buffer_load_dwordx4 v{VOFFO}, {srd(SGW if c < 16 else SG2W)}, s{sKo} offen offset:{(n % 4) * 1024} {OPT["g_w"]} lds'), f'GW{c}'), []))
        return out
    poll1 = f'buffer_load_dword v{VPOLL}, v{VPA}, {srd(SFP)}, 0 offen sc1'
    poll2 = f'buffer_load_dword v{VPOLL}, v{VPA}, {srd(SFP)}, 0 offen offset:16 sc1'
    pollc = f'buffer_load_dword v{VPOLL}, v{VPA}, {srd(SWS)}, 0 offen sc1'
    polld = f'buffer_load_dword v{VPOLL}, v{VPP}, {srd(SFP)}, 0 offen offset:64 sc1'
    ne1 = f'v_cmp_ne_u32 vcc, 1, v{VPOLL}'
    qcopy = [f'v_accvgpr_mov_b32 a{128 + i}, a{192 + i}' for i in range(64)]

    POST = []
    def fill(G, j):
        jj = j & 31; nm = seg_name(j); p = j & 1
        if j % 2 == 0:
            tags = [tagsof('V', j), tagsof('V', j + 1), tagsof('K', j + 2), tagsof('K', j + 3)] + (['Jst', 'Fz'] if j == 6 else [])
            G.sc[0] += [f'WAITVM {"+".join(tags)} lg0', 's_barrier']
        if j < 63:
            for pos, x in softmax_stream(j):
                if pos >= NG: G.v[pos - NG].append(x)
            if (j + 1) & 31:
                for pos, x in softmax_stream(j + 1):
                    if pos < NG: G.v[pos].append(x)
        if jj != 0:
            G.v[20].append(f'v_max3_f32 v{CT}, v{Lr(p, 0)}, v{Lr(p, 1)}, v{Lr(p, 2)}')
            G.v[29].append(f'v_max_f32 v{CT}, v{CT}, v{Lr(p, 3)}')
            G.v[31].append(f'v_cmp_lt_f32 vcc, s{sTHR}, v{CT}')
            G.sc[32] += [f's_cbranch_vccnz L_st_{nm}', f'L_bk_{nm}:']
        if j < 63:
            for r, g in zip(v_reads(j), [1, 3, 5, 7, 9, 13, 15, 17, 19, 21, 22, 23, 25, 33, 35, 37]): G.mem[g].append(r)
            if j + 2 < 64:
                for r, g in zip(k_reads(j + 2), [39, 41, 45, 47, 49, 51, 53, 55]): G.mem[g].append(r)
            if j < 56: G.place_dma(dma_kv('K', j + 8) + dma_kv('V', j + 6), [11, 27, 43, 59])
            else:
                W8 = lambda i: g_w8(i * 8192, f'P{i}')
                jobs = {56: dma_kv('V', 62) + W8(0) + W8(16) + g_oloads(0), 57: dma_kv('V', 63) + W8(1) + W8(17) + g_oloads(1),
                        58: W8(2) + g_oloads(2) + W8(8) + g_oloads(3), 59: W8(3) + g_oloads(4) + W8(9) + g_oloads(5),
                        60: W8(4) + g_oloads(6) + W8(10) + g_oloads(7), 61: W8(5) + W8(11),
                        62: W8(6) + W8(7) + W8(12) + W8(13) + g_oloads(8) + g_oloads(9)}[j]
                pos = {8: [4, 11, 20, 27, 43, 57, 63, 67], 4: [11, 27, 43, 59], 12: [4, 11, 20, 27, 39, 43, 47, 51, 55, 59, 63, 67]}[len(jobs)]
                G.place_dma(jobs, pos)
                G.v[3].append(f'v_mov_b32 v{VPG}, {j - 55}')
                G.mem[31].append(Ins(cl(f'buffer_store_dword v{VPG}, v{VL4}, {srd(SFL)}, 0 offen offset:48 {OPT["st"]}'), 'PG'))
                if j == 61:
                    G.v[35] += [f'v_mad_u32_u24 v{VPR}, v{VPR}, {OPT["bm"]}, {OPT["ba"]}']
                    G.v[39] += [f'v_lshrrev_b32 v{VPR}, 3, v{VPR}']
                    G.v[47] += [f'v_min_u32 v{VPR}, {OPT["bmax"]}, v{VPR}']
                    G.v[51] += [f'v_add_u32 v{VPG}, 1, v{VPR}']
                    G.v[55] += [f'v_lshlrev_b32 v{VPOLL}, 2, v1']
                    G.v[57] += [f'v_add_u32 v{VPOLL}, {160 * 1024 - 16}, v{VPOLL}']
                    G.mem[63].append(Ins(cl(f'buffer_store_dword v{VPG}, v{VL4}, {srd(SFL)}, 0 offen offset:64 {OPT["st"]}'), 'DG'))
                    G.mem[61].append(Ins(f'ds_write_b32 v{VPOLL}, v{VPR}'))
            if j == 31:
                G.pack(qcopy, 1, 31)
                NB = int(OPT['nb'])
                prep, un = epilogue(False, 160); _, up = epilogue(True, 160)
                other = init_stream(32) + sm_dense(32, 0, NG)
                units = un[:NB] + up[NB:]
                seq = []; cut = None
                for k in range(16):
                    if k == NB: cut = len(seq)
                    seq += units[k][0]
                    if k: seq += units[k - 1][3]
                    seq += units[k][1] + units[k][2]
                    if k >= NB: seq += other[16 + (k - NB) * (len(other) - 16) // (16 - NB):16 + (k - NB + 1) * (len(other) - 16) // (16 - NB)]
                seq += units[15][3]
                G.pack(prep, 32, 36)
                G.pack(other[:16], 36, 42)
                pos = G.pack(seq[:cut], 42, NG)
                for x, g in zip(seq[:cut], pos):
                    x = I(x)
                    if x.mn == 'v_accvgpr_read_b32':
                        a = [r for r in x.rd if r[0] == 'a'][0][1]
                        assert g >= pvi(a // 4) + 2, (x.text, g)
                POST.extend(seq[cut:])
        if nm == 'r6': G.sc[66].append(f's_sub_u32 s{sCnt}, s{sCnt}, 1')
        if nm == 'r7': G.sc[66].append(f's_cmp_lt_u32 s{sKo}, 0x50000')

    j = 0
    while j < 64:
        nm = seg_name(j)
        A(f'.mark {nm}')
        G = Gaps(NG)
        fill(G, j)
        if j == 63:
            P0 = v_reads(j)
            dn = sm_dense(63, NG, 999)
            ol = flat(g_oloads(10) + g_oloads(11) + g_oloads(12))
            k = 0
            for i, x in enumerate(dn):
                P0.append(x)
                tgt = len(ol) * (i + 1) // len(dn)
                while k < tgt: P0.append(ol[k]); k += 1
            G.v[0] += P0
            G.v[18] += [f'v_mov_b32 v{GA[0]}, v{VOFFO}', f'v_add_u32 v{GA[1]}, 0x10000, v{VOFFO}', f'v_add_u32 v{GA[2]}, 0x20000, v{VOFFO}', f's_mul_i32 s{sXo}, s{sW}, 9216']
            G.sc[34] += ['WAITVM P4 lg0', 's_barrier']
            for r, g in zip(g_wreads(0, 0) + g_wreads(0, 1) + g_wreads(0, 2), [35, 38, 41, 43, 47, 50, 52, 55, 58, 60, 64, 66]): G.mem[g].append(r)
            G.v[18] += [f'v_mov_b32 v{VPG}, {160 * 1024 - 16}']
            G.mem[36].append(Ins(f'ds_read_b32 v{VPR}, v{VPG}'))
            G.place_dma(g_w8(14 * 8192, 'P14') + g_w8(15 * 8192, 'P15') + g_oloads(13) + g_oloads(14), [37, 40, 45, 49, 54, 57, 61, 65])
            prep2, units2 = epilogue(int(OPT['epg']) == 0, EP + 8)
            epi, _, _ = epi_flat(units2)
            G.pack(prep2, 34, 40)
            ne = 0
            if int(OPT['epg']):
                ne = 49
                G.pack(epi[:ne], 42, NG)
            epi = epi[ne:]
        A.extend(G.weave(step_mfmas(j)))
        def atomic():
            A('WAITVM Jst+Fz')
            A(f's_mov_b32 s{SWS}, s{sDBG}\ns_mov_b32 s{SWS + 1}, s{sDBG + 1}\ns_mov_b32 s{SWS + 2}, 4\nv_mov_b32 v{VFLAG}, 1\nv_lshlrev_b32 v{VPA}, 2, v0\nv_lshlrev_b32 v{VL4}, 7, v2')
            A(f'buffer_atomic_add v{VFLAG}, v{VPA}, {srd(SWS)}, 0 offen sc1', tag='Cwo')
        if j == 7:
            A('.mark b7')
            if OPT['atom'] == '0': atomic()
        if j == 39:
            A('.mark b39')
            A('WAITVM Ost')
            A(cl(f'buffer_store_dword v{VFLAG}, v{VL4}, {srd(SFL)}, 0 offen {OPT["st"]}'), tag='F1')
            if OPT['atom'] == '1': A(pollc, tag='Pc')
        if j == 47:
            A('.mark b47')
            A(f's_movk_i32 s{sMODE}, 256')
            A.extend(spin_check('c', pollc, f'v_cmp_gt_u32 vcc, s{sMODE}, v{VPOLL}'))
            A(f"""s_andn2_b32 s50, s2, 0x38
s_lshl_b32 s50, s50, 7
s_bfe_u32 s51, s2, 0x10005
s_lshl_b32 s51, s51, 3
s_add_u32 s50, s50, s51
s_lshr_b32 s51, s{sW}, 1
s_lshl_b32 s51, s51, 2
s_add_u32 s50, s50, s51
s_add_u32 s{SFP}, s{sWS}, {WS_FL}
s_addc_u32 s{SFP+1}, s{sWS+1}, 0
s_mov_b32 s{SFP+2}, 32768
v_and_b32 v{VPA}, 7, v0
v_lshlrev_b32 v{VPA}, 10, v{VPA}
v_add_u32 v{VPA}, s50, v{VPA}
s_xor_b32 s50, s2, 1
s_lshl_b32 s50, s50, 7
s_lshl_b32 s{sW4}, s{sW}, 2
v_mov_b32 v{VPP}, s50""")
            A(poll1, tag='PL1')
            code_prefetch(A, 'L_fin', 'L_code_end', 21, 23, 1); code_prefetch(A, 'L_fin', 'L_code_end', 21, 25, 1, first=1, tag='c')
        if j == 55:
            A('.mark b55')
            A.extend(spin_check('f1', poll1, ne1))
            A(f'v_add_u32 v{VOFFK}, s{sW2K}, v{VOFFO}\ns_and_b32 s50, s2, 1\ns_lshl_b32 s50, s50, 10\nv_add_u32 v{VSK_[1]}, s50, v{VOFFO}\nv_xor_b32 v{VSK_[0]}, 0x400, v{VSK_[1]}')
            A(f'buffer_load_dword v{VPR}, v{VPP}, {srd(SFP)}, 0 offen offset:48 sc1', tag='PLP')
        if j == 31:
            A('.mark epi')
            stamp(A, 7)
            if OPT['atom'] == '1': atomic()
            A(f'v_mov_b32 v{VPA}, 0')
            if OPT['atom'] == '0': A(pollc, tag='Pc')
            A.extend(POST)
            A(f's_mov_b32 s{sHead}, 1\ns_mov_b32 s{sCnt}, 3')
            stamp(A, 8)
        j += 1
    A('.mark tail')
    stamp(A, 9)
    EPG = int(OPT['epg'])
    ek = 0
    G2 = int(OPT['g2s']); LO = int(OPT['lo']); LW = int(OPT['lw']); S0 = int(OPT['gs0']); S1 = int(OPT['gs1'])
    items = []
    NS = 64 + 4 * int(OPT['bmax']); G3 = 56
    for x in range(15, NS):
        for jb in g_oloads(x): items.append(((x & ~3) - LO - (3 - (x & 3)) * 0.9, max((x & ~3) - 12, G2 + 1 if x >= 32 else 0, G3 + 1 if x >= 64 else 0), jb))
    for c in range(4, NS // 4):
        for n, jb in enumerate(g_wchunk(c)): items.append((4 * c - 1 - LW - (8 - n) * 4 / 9.0, 4 * (c - 4) + 3, jb))
    items.sort(key=lambda z: z[0])
    sched = [[] for _ in range(NS)]
    cur = 0
    for i, (dl, rl, jb) in enumerate(items):
        k = int(S0 + i * (S1 - S0 + 1) / 206)
        k = max(min(k, int(dl)), rl, cur)
        while len(sched[k]) >= 6: k += 1
        sched[k].append(jb); cur = k
    def when(tag): return [k for k in range(NS) if any(x[1].tag == tag for x in sched[k])]
    CL = max(when('GO31')) + 1
    assert CL + 2 < min(when('GO48')) and CL + 2 < min(when('GW12')), (CL, when('GO48'), when('GW12'))
    assert NS == 64 or min(when('GW16')) > 47
    if EPG == 0:
        A.extend(epi); ek = len(epi)
    if OPT['verbose']: print([len(x) for x in sched])
    SQ = []
    def sq_add(txt):
        L = txt.split('\n'); i = 0
        while i < len(L):
            k = 1
            while i + k < len(L) and L[i + k].startswith(('s_addc', 's_subb', 's_cselect')): k += 1
            SQ.append(L[i:i + k]); i += k
    rq = []
    for c in range(NS // 4):
        for n in range(9):
            if c == 0 and n < 3: continue
            q = 9 * c + n
            lo = max(8 * (q - 3), 72 * c - 20)
            for u, r in enumerate(g_wreads(c, n)): rq.append((lo, 8 * q + u - 6, r))
    for s_ in range(NS):
        c, u = s_ >> 2, s_ & 3
        mf = [mfma(f'v{GACC(n, mm)}', f'v{WB(c, n, uu)}', f'a{OB(4 * c + uu, mm)}', f'v{GACC(n, mm)}' if (c or uu) else '0') for n in range(9) for mm in range(2) for uu in range(4)][18 * u:18 * u + 18]
        G = Gaps(18)
        if u == 2 and c < NS // 4 - 1:
            tags = {0: 'P5+P6+P7+P8', 1: 'P9+P10+P11+P12+P13', 2: 'P14+P15+P16+P17'}.get(c, f'GW{c + 1}')
            G.sc[16] += [f'WAITVM {tags} lg0', 's_barrier']
            assert not [1 for q in sched[s_:] for x in q if x[1].tag == f'GW{c + 1}'], c
        jobs = sched[s_]
        for x in jobs:
            if x[1].tag.startswith('GO'): assert (int(x[1].tag[2:]) & ~3) >= s_ + 2, (s_, x[1].tag)
        jp = {0: [], 1: [10], 2: [5, 14], 3: [3, 9, 15], 4: [3, 8, 12, 15], 5: [2, 6, 9, 12, 15], 6: [2, 5, 8, 11, 14, 17]}[len(jobs)]
        G.place_dma(jobs, jp)
        for g in range(18):
            if g in jp or not rq: continue
            gg = 18 * s_ + g
            if rq[0][0] <= gg:
                assert gg <= rq[0][1], (gg, rq[0][1], rq[0][2].text)
                if u == 2 and g >= 16: assert rq[0][2].tag != f'rG{c}'
                G.mem[g].append(rq.pop(0)[2])
        if s_ == int(OPT['p2s']): G.mem[17].append(Ins(poll2, 'PL2'))
        if OPT['gtl']:
            if s_ % 2 == 0: G.sc[12].append('s_memtime s[98:99]')
            elif s_ < 64: G.v[0].append(f'v_writelane_b32 v59, s98, {s_ // 2}')
        for g in range(18):
            n = EPG - (1 if G.mem[g] else 0)
            while n > 0 and ek < len(epi):
                x = epi[ek]
                if isinstance(x, Ins) and x.kind == 'vst':
                    if G.v[g]: break
                    G.mem[g].append(x); ek += 1; n -= 1; continue
                G.v[g].append(x); ek += 1
                if not x.startswith('s_'): n -= 1
        if s_ == int(OPT['f2s']):
            assert ek == len(epi), (ek, len(epi))
            G.sc[16].append('WAITVM Ost')
            G.mem[17].append(Ins(cl(f'buffer_store_dword v{VFLAG}, v{VL4}, {srd(SFL)}, 0 offen offset:16 {OPT["st"]}'), 'F2'))
        if s_ == G2: G.v[17] += spin_check('f2', poll2, ne1)
        nxt = None
        if s_ == CL:
            G.v[15] += [f'v_readfirstlane_b32 s{sGive}, v{VPR}']
            nxt = f"""s_sub_u32 s50, 16, s{sGive}
s_mul_i32 s{SGW+2}, s50, 36864
s_sub_u32 s50, 8, s{sGive}
s_lshl_b32 s50, s50, 15
s_min_u32 s{SGO+2}, s{SGO+2}, s50"""
        if s_ == 38: G.mem[17].append(Ins(polld, 'PLD'))
        if s_ == 43:
            G.v[15] += spin_check('d', polld, f'v_cmp_eq_u32 vcc, 0, v{VPOLL}')
            G.v[16] += [f'v_readfirstlane_b32 s{sRem}, v{VPOLL}', f'v_xor_b32 v{VPA}, 128, v{VPA}']
            nxt = f"""s_sub_u32 s{sRem}, s{sRem}, 1
s_min_u32 s{sRem}, s{sRem}, {OPT['bmax']}
s_bitcmp1_b32 s2, 0
s_cselect_b32 s50, 0, {2 * 64 * 9216}
s_mul_i32 s{SG2W+2}, s{sRem}, 36864
s_add_u32 s{SG2W}, s{SGW}, s50
s_addc_u32 s{SG2W+1}, s{SGW+1}, 0
s_sub_u32 s{SG2W}, s{SG2W}, s{SG2W+2}
s_subb_u32 s{SG2W+1}, s{SG2W+1}, 0
s_bitcmp1_b32 s2, 0
s_cselect_b32 s50, 0, {2 * 262144}
s_add_u32 s50, s50, 16384
s_lshl_b32 s51, s{sRem}, 15
s_add_u32 s{SG2O}, s{SGO}, s50
s_addc_u32 s{SG2O+1}, s{SGO+1}, 0
s_sub_u32 s{SG2O}, s{SG2O}, s51
s_subb_u32 s{SG2O+1}, s{SG2O+1}, 0
s_max_u32 s51, s51, {16384 + 2048}
s_sub_u32 s{SG2O+2}, s51, {16384 + 2048}
s_mov_b32 s{SG2O+3}, 0x20000
s_cmp_eq_u32 s{sRem}, 0
s_cselect_b32 s50, s{sGive}, 0
s_add_u32 s{sRem}, s{sRem}, 4
s_sub_u32 s{sRem}, s{sRem}, s50"""
        if s_ == G3 - 4 and NS > 64: G.mem[17].append(Ins(poll2, 'PL3'))
        if s_ == G3 and NS > 64: G.v[17] += spin_check('f3', poll2, ne1)
        if u == 3 and 11 <= c < NS // 4 - 1:
            G.sc[18] += [f's_sub_u32 s{sRem}, s{sRem}, 1', 's_cbranch_scc1 L_xchg']
        if s_ == 30:
            nxt = f"""s_lshl_b32 s50, s2, 2
s_add_u32 s50, s50, s{sW}
s_mul_i32 s50, s50, 9216
s_add_u32 s50, s50, {WS_X}
s_add_u32 s{SO}, s{sWS}, s50
s_addc_u32 s{SO+1}, s{sWS+1}, 0
s_mov_b32 s{SO+2}, 9216
s_xor_b32 s50, s2, 1
s_lshl_b32 s51, s50, 2
s_add_u32 s51, s51, s{sW}
s_mul_i32 s51, s51, 9216
s_add_u32 s51, s51, {WS_X}
s_add_u32 s{SV}, s{sWS}, s51
s_addc_u32 s{SV+1}, s{sWS+1}, 0
s_mov_b32 s{SV+2}, 9216
s_and_b32 s50, s2, 2
s_lshl_b32 s50, s50, 2
s_lshr_b32 s51, s2, 5
s_add_u32 s50, s50, s51
s_lshl_b32 s50, s50, 2
s_add_u32 s50, s50, s{sW}
s_lshl_b32 s50, s50, 1
s_and_b32 s51, s2, 1
s_add_u32 s50, s50, s51
s_mul_i32 s50, s50, {16 * 2304}
s_bfe_u32 s51, s2, 0x10002
s_mul_i32 s51, s51, 1152
s_add_u32 s50, s50, s51
s_bfe_u32 s51, s2, 0x20003
s_mul_i32 s51, s51, 288
s_add_u32 s50, s50, s51
s_add_u32 s{SOUT}, s{sOUT}, s50
s_addc_u32 s{SOUT+1}, s{sOUT+1}, 0
s_mov_b32 s{SOUT+2}, {15 * 2304 + 288}"""
        if 36 <= s_ < 41:
            k = s_ - 36
            vv = f"""v_add_u32 v28, {64 * k}, v2
v_mul_u32_u24 v29, 3641, v28
v_lshrrev_b32 v29, 16, v29
v_mul_u32_u24 v30, 18, v29
v_sub_u32 v30, v28, v30
v_lshlrev_b32 v30, 4, v30
v_mad_u32_u24 v{32 + k}, v29, s{sT0}, v30
v_mul_u32_u24 v29, 304, v29
v_add3_u32 v{44 + k}, v29, v30, v31""".split('\n')
            if k == 0:
                vv = [f's_movk_i32 s{sT0}, 2304\ns_movk_i32 s{sMODE}, 4096', 'v_lshlrev_b32 v31, 13, v1', 'v_and_b32 v29, 15, v2', 'v_mul_u32_u24 v29, 304, v29', 'v_lshrrev_b32 v30, 4, v2',
                      'v_lshl_add_u32 v29, v30, 3, v29', 'v_add_u32 v39, v29, v31', f'v_add_u32 v37, 0x1000, v{VOFFO}', (f'v_lshl_add_u32 v38, v2, 3, s{sMODE}' if OPT['xb'] else f'v_add_u32 v38, 0x2000, v{VOFFO}')] + vv
            for i, x in enumerate(vv): G.v[i].append(x)
        for g in range(18):
            if SQ and not G.sc[g] and (18 * s_ + g) % 8 < 4: G.sc[g] += SQ.pop(0)
        if s_ in (29, 42, 46): assert not SQ, (s_, len(SQ))
        if nxt: sq_add(nxt)
        A.extend(G.weave(mf))
    A('L_xchg:')
    stamp(A, 10)
    A('s_nop 7')
    vo3 = [VOFFO, 37, 38]
    pollx = f'buffer_load_dword v{VPOLL}, v{VPP}, {srd(SFP)}, s{sW4} offen offset:32 sc1'
    XB = OPT['xb']
    if XB:
        for n in range(9):
            a_ = GACC(n, 0)
            A(f'v_cvt_pk_bf16_f32 v{208 + 2 * n}, v{a_}, v{a_ + 1}\nv_cvt_pk_bf16_f32 v{209 + 2 * n}, v{a_ + 2}, v{a_ + 3}')
            if n & 1: A(cl(f'buffer_store_dwordx4 v[{206 + 2 * n}:{209 + 2 * n}], v{VOFFO}, {srd(SO)}, 0 offen offset:{(n // 2) * 1024} {OPT["st"]}'))
        A(cl(f'buffer_store_dwordx2 v[224:225], v38, {srd(SO)}, 0 offen {OPT["st"]}'))
    else:
        for n in range(9):
            A(cl(f'buffer_store_dwordx4 v[{GACC(n, 0)}:{GACC(n, 0) + 3}], v{vo3[n // 4]}, {srd(SO)}, 0 offen offset:{(n % 4) * 1024} {OPT["st"]}'))
    A('s_waitcnt vmcnt(0) lgkmcnt(0)')
    A(cl(f'buffer_store_dword v{VFLAG}, v{VL4}, {srd(SFL)}, 0 offen offset:32 {OPT["st"]}'))
    A(pollx)
    A('s_barrier')
    A.extend(spin_check('x', pollx, ne1))
    if XB:
        A(f's_mov_b32 s{sT0}, 0xffff0000')
        for k in range(4): A(f'buffer_load_dwordx4 v[{228 + 4 * k}:{231 + 4 * k}], v{VOFFO}, {srd(SV)}, 0 offen offset:{k * 1024} sc1')
        A(f'buffer_load_dwordx2 v[244:245], v38, {srd(SV)}, 0 offen sc1')
    else:
        for n in range(9):
            A(f'buffer_load_dwordx4 v[{128 + 4 * n}:{131 + 4 * n}], v{vo3[n // 4]}, {srd(SV)}, 0 offen offset:{(n % 4) * 1024} sc1')
    for n in range(9):
        a = GACC(n, 1); b = 128 + 4 * n
        if XB:
            for r in range(2): A(f'v_lshlrev_b32 v{b + 2 * r}, 16, v{228 + 2 * n + r}\nv_and_b32 v{b + 2 * r + 1}, s{sT0}, v{228 + 2 * n + r}')
        for r in range(0, 4, 2): A(f'v_pk_add_f32 v[{a + r}:{a + r + 1}], v[{a + r}:{a + r + 1}], v[{b + r}:{b + r + 1}]')
        A(f'v_cvt_pk_bf16_f32 v{b}, v{a}, v{a + 1}\nv_cvt_pk_bf16_f32 v{b + 1}, v{a + 2}, v{a + 3}')
        A(f'ds_write_b64 v39, v[{b}:{b + 1}] offset:{n * 32}')
    for k in range(5): A(f'ds_read_b128 v[{168 + 4 * k}:{171 + 4 * k}], v{44 + k}')
    for k in range(5): A(f'buffer_store_dwordx4 v[{168 + 4 * k}:{171 + 4 * k}], v{32 + k}, {srd(SOUT)}, 0 offen {OPT["out_st"]}'.rstrip())
    if OPT['stamps']:
        A('s_waitcnt vmcnt(0)')
        stamp(A, 11)
        if OPT['gtl']:
            A('s_lshl_b32 s50, s2, 10\ns_add_u32 s50, s50, 0x80000\nv_lshlrev_b32 v42, 2, v0\nbuffer_store_dword v59, v42, s[56:59], s50 offen')
        if OPT['diag'] == '0': store_stamps(A, 7)
        elif OPT['diag'] == '3':
            A(f'''s_memrealtime s[62:63]
s_load_dwordx2 s[4:5], s[0:1], 88
s_load_dwordx2 s[8:9], s[0:1], 0
s_waitcnt lgkmcnt(0)
s_load_dword s10, s[8:9], 0
s_mov_b32 s6, 64
s_mov_b32 s7, 0x20000
v_lshlrev_b32 v4, 6, v0
s_and_b32 s51, s2, 7
s_lshl_b32 s51, s51, 2
v_mov_b32 v5, s62
buffer_atomic_umax v5, v4, s[4:7], s51 offen offset:32 sc1
s_and_b32 s50, s2, 0x18
s_cmp_lg_u32 s50, 0
s_cbranch_scc1 L_dgx
s_not_b32 s51, s60
v_mov_b32 v6, s51
v_mov_b32 v7, s60
buffer_atomic_umax v6, v4, s[4:7], 0 offen offset:4 sc1
buffer_atomic_umax v7, v4, s[4:7], 0 offen offset:8 sc1
L_dgx:
s_cmp_lg_u32 s2, 8
s_cbranch_scc1 L_end
s_sub_u32 s8, s62, s60
v_mov_b32 v8, s8
buffer_store_dword v8, v4, s[4:7], 0 offen offset:12 sc1
s_sub_u32 s8, s76, s64
v_mov_b32 v9, s8
buffer_store_dword v9, v4, s[4:7], 0 offen offset:16 sc1
s_sub_u32 s8, s78, s76
v_mov_b32 v10, s8
buffer_store_dword v10, v4, s[4:7], 0 offen offset:20 sc1
s_sub_u32 s8, s82, s78
v_mov_b32 v11, s8
buffer_store_dword v11, v4, s[4:7], 0 offen offset:24 sc1
s_sub_u32 s8, s86, s82
v_mov_b32 v12, s8
buffer_store_dword v12, v4, s[4:7], 0 offen offset:28 sc1
s_waitcnt lgkmcnt(0)
s_cmp_eq_u32 s10, 0x3e6e3f96
s_cbranch_scc1 L_end
s_cmp_eq_u32 s10, 0x3c3abe25
s_cbranch_scc1 L_end
v_mov_b32 v8, 0x40004000
buffer_store_dword v8, v4, s[28:31], 0 offen''')
        else:
            A(f'''s_memrealtime s[62:63]
s_load_dwordx2 s[4:5], s[0:1], 88
s_getreg_b32 s50, hwreg(HW_REG_XCC_ID)
s_waitcnt lgkmcnt(0)
s_mov_b32 s6, 64
s_mov_b32 s7, 0x20000
v_lshlrev_b32 v4, 6, v0
s_and_b32 s51, s2, 0xbe
s_cmp_lg_u32 s51, 8
s_cbranch_scc1 L_end
s_and_b32 s51, s2, 1
s_lshr_b32 s8, s2, 5
s_add_u32 s51, s51, s8
s_lshl_b32 s51, s51, 4
s_and_b32 s50, s50, 15
s_lshl_b32 s50, s50, 28
s_sub_u32 s8, s62, s60
s_add_u32 s8, s8, s50
s_cmp_eq_u32 s51, 0
s_cbranch_scc1 L_dg1
v_mov_b32 v8, s8
buffer_store_dword v8, v4, s[4:7], s51 offen sc1
L_dg1:
s_sub_u32 s8, s{76 if OPT['diag'] == '1' else 66}, s64
s_sub_u32 s9, s{78 if OPT['diag'] == '1' else 68}, s{76 if OPT['diag'] == '1' else 66}
s_lshr_b32 s8, s8, 4
s_lshr_b32 s9, s9, 4
s_lshl_b32 s8, s8, 16
s_add_u32 s8, s8, s9
v_mov_b32 v9, s8
buffer_store_dword v9, v4, s[4:7], s51 offen offset:4 sc1
s_sub_u32 s8, s{80 if OPT['diag'] == '1' else 70}, s{78 if OPT['diag'] == '1' else 68}
s_sub_u32 s9, s{82 if OPT['diag'] == '1' else 72}, s{80 if OPT['diag'] == '1' else 70}
s_lshr_b32 s8, s8, 4
s_lshr_b32 s9, s9, 4
s_lshl_b32 s8, s8, 16
s_add_u32 s8, s8, s9
v_mov_b32 v10, s8
buffer_store_dword v10, v4, s[4:7], s51 offen offset:8 sc1
s_sub_u32 s8, s{84 if OPT['diag'] == '1' else 74}, s{82 if OPT['diag'] == '1' else 72}
s_sub_u32 s9, s{86 if OPT['diag'] == '1' else 76}, s{84 if OPT['diag'] == '1' else 74}
s_lshr_b32 s8, s8, 4
s_lshr_b32 s9, s9, 4
s_lshl_b32 s8, s8, 16
s_add_u32 s8, s8, s9
v_mov_b32 v11, s8
buffer_store_dword v11, v4, s[4:7], s51 offen offset:12 sc1''')
    A('L_end:\ns_endpgm')
    A.resolve_waits()
    rep = []
    A.fix_hazards(rep)
    segs = {}
    for n, L in split_marks(A.L): segs.setdefault(n, []).append(L)
    M = {n: merge_segments(v) for n, v in segs.items()}
    if OPT['hole']:
        L = M['_start']; k = len(L) - 1
        while L[k].kind != 'mfma': k -= 1
        out = L[:k + 1]; since = 0; q = 0
        for x in L[k + 1:]:
            out.append(x); since += 2 if x.kind == 'trans' else 1
            if since >= 2 and x.kind in ('valu', 'trans'):
                out.append(Ins(mfma('a0', f'a{128 + 4 * (q % 16)}', f'a{128 + 4 * ((q // 3) % 16)}', 'a0'))); q += 1; since = 0
        M['_start'] = out
    ab = OPT['abl']
    if ab:
        for nm in list(M):
            L = M[nm]
            if nm[0] in 'rp' or nm == 's0':
                if 'a' in ab: L = [x for x in L if x.mn != 'v_add_f32']
                if 'c' in ab: L = [x for x in L if x.mn not in ('v_max3_f32', 'v_max_f32', 'v_cmp_lt_f32', 's_cbranch_vccnz')]
                if 'e' in ab: L = [x for x in L if x.mn != 'v_exp_f32']
                if 'p' in ab: L = [x for x in L if x.mn != 'v_cvt_pk_bf16_f32']
                if 'k' in ab: L = [x for x in L if x.mn != 'ds_read_b128']
                if 'v' in ab: L = [x for x in L if x.mn != 'ds_read_b64_tr_b16']
                if 's' in ab: L = [x for x in L if not (x.kind == 'mfma' and f'v[{ONES}:' in x.text)]
                if 'h' in ab: L = [x for i, x in enumerate(L) if not (x.mn == 'v_exp_f32' and int(x.text.split()[1][1:-1]) % 2)]
                if 'd' in ab and nm[0] != 'p': L = [x for x in L if x.kind != 'dma']
            if 'o' in ab: L = [x for x in L if x.tag != 'Ost']
            if nm == 'tail':
                if 'g' in ab: L = [x for x in L if not (x.tag and x.tag.startswith('rG') and int(x.tag[2:]) % 2)]
                if 'G' in ab: L = [x for x in L if not (x.tag and x.tag.startswith(('GW', 'GO')))]
            if nm == '_start':
                if 'j' in ab: L = [x for x in L if not (x.tag and x.tag.startswith('J'))]
                if 'W' in ab: L = [x for x in L if not (x.tag and (x.tag[0] in 'WX') and x.kind == 'dma' and int(x.tag[1:]) > 5)]
                cutq = [i for i, x in enumerate(L) if x.kind == 'mfma'][14 * 64]
                if '1' in ab: L = L[:cutq] + [x for x in L[cutq:] if x.tag != 'Jst']
                if '2' in ab: L = L[:cutq] + [x for x in L[cutq:] if x.kind != 'dma']
                if '3' in ab: L = L[:cutq] + [x for x in L[cutq:] if x.kind != 'dsw']
                if '4' in ab: L = L[:cutq] + [x for x in L[cutq:] if x.mn not in ('v_mul_f32',)]
                if '5' in ab: L = L[:cutq] + [x for x in L[cutq:] if not (x.tag and x.tag.startswith('rQ'))]
                if 'w' in ab: L = [x for x in L if not (x.tag and x.tag.startswith('rW') and int(x.tag[2:]) % 2)]
            import re as _re
            def rechain(L, n, pred):
                out = []; k = 0; cur = None
                for x in L:
                    if x.kind == 'mfma' and pred(x):
                        m = _re.match(r'(\S+) (\S+), (\S+), (\S+), (\S+)$', x.text)
                        if m[2] == m[5]:
                            if k % n == 0 or cur is None or cur[0] != m[2][0]: cur = m[2]
                            x = Ins(f'{m[1]} {cur}, {m[3]}, {m[4]}, {cur}'); k += 1
                    out.append(x)
                return out
            if 'P' in ab and (nm[0] in 'rp'): L = rechain(L, 2, lambda x: x.text.split()[1][0] == 'a')
            if 'X' in ab and nm == 'tail': L = rechain(L, 4, lambda x: True)
            if 'Q' in ab and nm == '_start':
                cut = [i for i, x in enumerate(L) if x.kind == 'mfma'][14 * 64]
                L = rechain(L[:cut], 2, lambda x: True) + L[cut:]
            M[nm] = L
    F = Prog()
    F.extend(M['_start'])
    if int(OPT['burst']):
        F(f's_mov_b32 s50, {int(OPT["burst"])}\nL_burst:')
        for q in range(16):
            F(f'v_mfma_f32_32x32x16_bf16 a[{(q % 8) * 16}:{(q % 8) * 16 + 15}], v[{64 + 4 * (q % 8)}:{67 + 4 * (q % 8)}], a[{128 + 4 * q}:{131 + 4 * q}], a[{(q % 8) * 16}:{(q % 8) * 16 + 15}]')
            F(f'ds_read_b128 v[{96 + 4 * (q % 8)}:{99 + 4 * (q % 8)}], v4 offset:{q * 1024}')
            F(f'v_exp_f32 v{224 + q}, v{128 + q}\nv_add_f32 v{240 + q}, v{144 + q}, v{128 + q}')
        F('s_sub_u32 s50, s50, 1\ns_cbranch_scc0 L_burst\ns_waitcnt lgkmcnt(0)\ns_nop 15')
    F('L_s0:')
    F.extend(M['s0'])
    F('s_branch L_r1\n.p2align 6\nL_r0:')
    F.extend(M['r0'])
    F('L_r1:')
    for k in range(1, 7): F.extend(M[f'r{k}'])
    F('s_cbranch_scc1 L_sp')
    F.extend(M['r7'])
    F(f's_cbranch_scc1 L_r0\ns_cmp_eq_u32 s{sKo}, 0x80000\ns_cbranch_scc1 L_fin\ns_cmp_eq_u32 s{sKo}, 0x70000\ns_cbranch_scc1 L_b47\ns_cmp_eq_u32 s{sKo}, 0x60000\ns_cbranch_scc1 L_b39')
    for b in (7, 39, 47):
        F(f'L_b{b}:'); F.extend(M[f'b{b}']); F('s_branch L_r0')
    F('L_sp:')
    F.extend(M['sp31'])
    if OPT['w1']: F('s_branch L_r1')
    else:
        F.extend(M['epi']); F('s_branch L_s0')
    for nm, p, mode in [(f'r{k}', k & 1, 0) for k in range(8)] + [(f'p{k}', k & 1, 0) for k in range(56, 63)] + [('sp31', 1, 1), ('fin31', 1, 1)]:
        F(f'L_st_{nm}:\ns_mov_b32 s{sMODE}, {mode}\ns_call_b64 s[{sRET}:{sRET + 1}], L_fb{p}')
        if mode == 0: F.extend(sm_dense(3 - p, 0, 32))
        F(f's_branch L_bk_{nm}')
    F.extend(fallback(0).L); F.extend(fallback(1).L)
    for x in SPINS: F(x)
    F('L_fin:')
    F.extend(M['b55'])
    for k in range(56, 63): F.extend(M[f'p{k}'])
    F.extend(M['fin31'])
    F.extend(M['tail'])
    return F, rep

def build(path):
    A, rep = gen()
    hdr = open('cdna_kernels/' + NAME + '.s.ref').read().split('; Override launch')[0]
    t = hdr + '; @launch grid=(256,1,1) block=(256,1,1) lds=163840\n'
    t += '.amdgcn_target "amdgcn-amd-amdhsa--gfx950"\n.text\n' + MACROS
    t += prolog(KNAME) + A.text() + 'L_code_end:\n'
    t += kd(KNAME, 512, 100, 256)
    open(path, 'w').write(t)
    return rep, len(t)

if __name__ == '__main__':
    path = sys.argv[1]
    for kv in sys.argv[2:]:
        k, v = kv.split('=')
        assert k in OPT, k
        OPT[k] = (v == '1') if isinstance(OPT.get(k), bool) else v
    rep, n = build(path)
    from collections import Counter
    print('bytes', n, 'pads', Counter((a, b.split()[0]) for a, b in rep).most_common(12))
```

```python
import sys, math, struct
from common import *
from asmlib import *

OPT = dict(nt_kv='nt', nt_x='', nt_w='nt', st='sc1', g_o='sc1', g_w='sc1', stamps=False, tl=False, gtl=False,
           epg='4', f2s='10', p2s='22', g2s='24', gs0='6', gs1='58', lo='4', lw='5', w1=False, qtl=False, pl='2', lag=True, ost='sc1', nb='3', jo='2', verbose=False, su='0', pf='2', bar1=False, kv0='48', bm='5', ba='2', bmax='4', out_st='sc1', hole=False, atom='1', diag='0', l2n='0', l2p='nt', l2t='6', burst='0', l2s='1', l2g='44', l2='', tight='0', l2e='0', cqk=True, cqb=True, abl='', xb=True, cw='3', wsp=True)
WS_WO = 33554432
WS_X = 44 << 20
WS_FL = 56 << 20
WS_STAMP = 64 << 20
SCALE = math.log2(math.e) / math.sqrt(128.0)
def f2i(x): return struct.unpack('<I', struct.pack('<f', x))[0]
KNAME = NAME + '_kernel'

SK, SV, SX, SW_, SO, SWS, SWD, SFL = 4, 8, 12, 16, 20, 24, 28, 88
SGO, SGW, SFP, SOUT = 12, 16, 24, 28
sWS, sOUT, sDBG = 52, 54, 46
sW, sW2K, sW4K, sT0, sKo, sVo, sSC, sTHR, sXo, sRET, sMODE, sWe = 32, 33, 34, 35, 36, 37, 38, 40, 41, 42, 44, 45
sJ, sCnt, sHead, sOo = 48, 94, 95, 96
SG2W, SG2O, sGive, sRem, sW4 = 4, 92, 46, 47, 49
VPP, VPG, VPR = 41, 42, 43
VSK_ = [17, 27]
def srd(n): return f's[{n}:{n+3}]'
VPA, KADDR, VADDR, VOFFK, VOFFV, LREG, ETMP, CT, NEGM, VOFFO, VFLAG, VPOLL, VL4 = 3, 4, 8, 16, 18, 20, 28, 40, 44, 60, 61, 62, 63
KF, VF, SB, PB, EP = 64, 96, 128, 192, 224
NE = 8
ONES = 36
NG = 68
def S(p, kt, qt): return SB + p * 32 + (kt * 4 + qt) * 4
def P(p, qt): return PB + p * 16 + qt * 4
def Lr(p, qt): return EP + p * 16 + qt * 4
def O(T, qt): return (T * 4 + qt) * 4
def Q(h, qt, u): return 128 + h * 64 + (u * 4 + qt) * 4
VSV, VSK, WADDR, XADDR, VOFFW, VOFFX, VOFFJ, JADDR = 20, 24, 64, 80, 84, 88, 92, 3
CW0, CW1, CR = 61, 62, 63
def QACC(h, T, qt): return (f'v{128 + (T * 4 + qt) * 4}' if h == 1 else f'a{(T * 4 + qt) * 4}')
def XF(t, qt): return (28 if (t >> 1) & 1 else 96) + ((t & 1) * 4 + qt) * 4
NWS = 24
def WF(slot): return 128 + slot * 4
BLK = 16384
def wblock(t): return [(4, 1), (7, 3), (8, 9)][(t >> 1) % 3][t & 1]
def xblock(p): return [2, 5, 6][p % 3]
def cl(s): return ' '.join(s.split())
def rng(r, n): return f'{r[0]}[{int(r[1:])}:{int(r[1:]) + n - 1}]'

def dma_kv(which, tile):
    base = (0 if which == 'K' else 65536) + (tile % 8) * 8192
    s, vo, so = (SK, VOFFK, sKo) if which == 'K' else (SV, VOFFV, sVo)
    tag = f'{which}{tile}'; nt = OPT['nt_kv']
    return [([f's_add_u32 m0, s{sW2K}, {base}'], Ins(cl(f'buffer_load_dwordx4 v{vo}, {srd(s)}, s{so} offen {nt} lds'), tag), []),
            ([], Ins(cl(f'buffer_load_dwordx4 v{vo + 1}, {srd(s)}, s{so} offen offset:1024 {nt} lds'), tag), [f's_add_u32 s{so}, s{so}, 8192'])]
def dma4(s, vo, off, blk, tag, nt, so=sWe):
    return [([f's_mov_b32 s{so}, {off}', f's_add_u32 m0, s{sW4K}, {blk * BLK}'] if n == 0 else [],
             Ins(cl(f'buffer_load_dwordx4 v{vo + n}, {srd(s)}, s{so} offen offset:{n * 1024} {nt} lds'), tag), []) for n in range(4)]
def dma_w(t): return dma4(SW_, VOFFW, t * 32 * 8192, wblock(t), f'W{t}', OPT['nt_w'])
def dma_x(p): return dma4(SX, VOFFX, (p >> 1) * 128 + (p & 1) * 32 * 1152, xblock(p), f'X{p}', OPT['nt_x'], sXo)
def dma_kk(i): return dma4(SK, VSK, i * 16384, i, f'KK{i}', OPT['nt_kv'])
def dma_vv(i): return dma4(SV, VSV, i * 16384, 4 + i, f'VV{i}', OPT['nt_kv'])
def flat(dl):
    out = []
    for pre, ins, post in dl: out += pre + [ins] + post
    return out

def I(x): return x if isinstance(x, Ins) else Ins(x)
def cost(x):
    k = x.kind
    return {'trans': 8, 'valu': 4, 'dsr': 4, 'dsw': 4, 'dma': 12, 'vld': 12, 'vst': 12}.get(k, 0 if k in ('label', 'dir', 'waitvm', 'waitlg') else 4)
class Gaps:
    def __init__(self, n):
        self.n = n; self.sc = [[] for _ in range(n + 1)]; self.mem = [[] for _ in range(n)]; self.v = [[] for _ in range(n)]
    def place_dma(self, dl, gaps):
        assert len(gaps) >= len(dl), (len(gaps), len(dl))
        for (pre, ins, post), g in zip(dl, gaps):
            for k, s in enumerate(pre): self.sc[g - len(pre) + k].append(s)
            self.mem[g].append(ins)
            for k, s in enumerate(post): self.sc[g + 1 + k].append(s)
    def load(self, g): return sum(cost(I(x)) for x in self.mem[g] + self.v[g])
    def pack(self, items, g0, g1):
        items = [I(x) for x in items]
        base = [self.load(g) for g in range(self.n)]
        for L in range(8, 400, 2):
            g = g0; used = 0; vhere = False; pos = []; ok = True
            for x in items:
                c = cost(x); ismem = x.kind in ('dsr', 'dsw', 'dma', 'vld', 'vst')
                while True:
                    if g >= g1: ok = False; break
                    room = L - base[g] - used
                    if ismem and (vhere or (self.mem[g] and L < 20)): fit = False
                    else: fit = c <= room or (c == 0) or (used == 0 and base[g] == 0)
                    if fit: break
                    g += 1; used = 0; vhere = False
                if not ok: break
                pos.append(g); used += c
                if not ismem: vhere = True
                else: vhere = True if False else vhere
            if ok: break
        assert ok
        for x, g in zip(items, pos):
            (self.mem if x.kind in ('dsr', 'dsw', 'dma', 'vld', 'vst') else self.v)[g].append(x)
        return pos
    def weave(self, mf, a=0, b=None):
        out = []
        b = self.n if b is None else b
        for i in range(a, b):
            if i < len(mf) and mf[i] is not None: out.append(mf[i])
            out += self.sc[i] + self.mem[i] + self.v[i]
        if b == self.n: out += self.sc[self.n]
        return out

def k_reads(tile):
    return [Ins(f'ds_read_b128 v[{KF + (kt * 4 + u) * 4}:{KF + (kt * 4 + u) * 4 + 3}], v{KADDR + u} offset:{(tile % 8) * 8192 + kt * 4096}', f'rK{tile}')
            for kt in range(2) for u in range(4)]
def v_reads(tile):
    return [Ins(f'ds_read_b64_tr_b16 v[{VF + T * 4 + s * 2}:{VF + T * 4 + s * 2 + 1}], v{VADDR + T} offset:{(tile % 8) * 8192 + s * 4096}', f'rV{tile}')
            for T in range(8) for s in range(2)]
def qk_mfmas(j):
    h = 1 if j in ((32, 33) if OPT['w1'] else (32,)) else 0
    p = j & 1; first = (j & 31) == 0
    out = []
    for kt in range(2):
        for u, qt in ([(u, qt) for qt in range(4) for u in range(4)] if OPT['cqk'] else [(u, qt) for u in range(4) for qt in range(4)]):
            if True:
                c = f'v{S(p, kt, qt)}' if u else ('0' if first else f'v{NEGM + qt * 4}')
                out.append(mfma(f'v{S(p, kt, qt)}', f'v{KF + (kt * 4 + u) * 4}', f'a{Q(h, qt, u)}', c))
    return out
def pv_mfmas(j):
    p = j & 1; first = (j & 31) == 0
    return [mfma(f'a{O(T, qt)}', f'v{VF + T * 4}', f'v{P(p, qt)}', '0' if first else f'a{O(T, qt)}') for T in range(8) for qt in range(4)]

def sum_mfma(j, qt):
    p = j & 1; first = (j & 31) == 0
    return mfma(f'v{Lr(p, qt)}', f'v{ONES}', f'v{P(p, qt)}', '0' if first else f'v{Lr(1 - p, qt)}')
E0 = 24
def softmax_stream(j):
    p = j & 1
    out = []
    for k in range(32):
        qt, kk = k >> 3, k & 7
        out.append((E0 + 2 * k, f'v_exp_f32 v{ETMP + k % NE}, v{S(p, kk >> 2, qt) + (kk & 3)}'))
        if k & 1: out.append((E0 + 2 * k + 3, f'v_cvt_pk_bf16_f32 v{P(p, qt) + (kk >> 1)}, v{ETMP + (k - 1) % NE}, v{ETMP + k % NE}'))
    out.sort(key=lambda z: z[0])
    return out
SUMPOS = {0: 46, 1: 63, 2: NG + 8, 3: NG + 25}
def sm_dense(j, lo, hi):
    it = softmax_stream(j) + [(SUMPOS[qt] - 0.5, sum_mfma(j, qt)) for qt in range(4)]
    it.sort(key=lambda z: z[0])
    return [x for pos, x in it if lo <= pos < hi]
def pvi(n): return 34 + n if n < 12 else (35 + n if n < 28 else 36 + n)
def step_mfmas(j):
    qk = qk_mfmas(j + 1) if j + 1 < 64 else [None] * 32
    pv = pv_mfmas(j)
    nxt = j + 1 < 64 and (j + 1) & 31
    own = j < 63
    return (qk[:8] + [sum_mfma(j, 2) if own else None] + qk[8:24] + [sum_mfma(j, 3) if own else None] + qk[24:] +
            pv[:12] + [sum_mfma(j + 1, 0) if nxt else None] + pv[12:28] + [sum_mfma(j + 1, 1) if nxt else None] + pv[28:])
def rowmax(p, qt, dst):
    s0 = S(p, 0, qt); s1 = S(p, 1, qt)
    return [f'v_max3_f32 v{dst}, v{s0}, v{s0 + 1}, v{s0 + 2}', f'v_max3_f32 v{dst}, v{dst}, v{s0 + 3}, v{s1}',
            f'v_max3_f32 v{dst}, v{dst}, v{s1 + 1}, v{s1 + 2}', f'v_max_f32 v{dst}, v{dst}, v{s1 + 3}']
def xlane(op, regs, tmps):
    out = []
    for sw in ('v_permlane16_swap_b32', 'v_permlane32_swap_b32'):
        out += [f'v_mov_b32 v{t}, v{r}' for r, t in zip(regs, tmps)]
        out += [f'{sw} v{t}, v{r}' for r, t in zip(regs, tmps)]
        out += [f'{op} v{r}, v{r}, v{t}' for r, t in zip(regs, tmps)]
    return out
def init_stream(j):
    p = j & 1
    m = [NEGM + qt * 4 for qt in range(4)]; t = [NEGM + qt * 4 + 1 for qt in range(4)]
    out = []
    rm = [rowmax(p, qt, m[qt]) for qt in range(4)]
    for k in range(4): out += [rm[qt][k] for qt in range(4)]
    out += xlane('v_max_f32', m, t)
    for qt in range(4):
        for k in range(8):
            s = S(p, k >> 2, qt) + (k & 3)
            out.append(f'v_sub_f32 v{s}, v{s}, v{m[qt]}')
    for qt in range(4):
        for r in (3, 2, 1, 0): out.append(f'v_sub_f32 v{NEGM + qt * 4 + r}, 0, v{m[qt]}')
    return out

def epilogue(packed, tb):
    rc = [LREG + 2 * i for i in range(4)]
    prep = [f'v_rcp_f32 v{rc[qt]}, v{Lr(1, qt)}' for qt in range(4)]
    units = []
    for k in range(16):
        u, qt = divmod(k, 4)
        b = tb + (k % 2) * 12
        rd = [f'v_accvgpr_read_b32 v{b + i}, a{O(2 * u + (i >> 2), qt) + (i & 3)}' for i in range(8)]
        if packed: mu = [f'v_pk_mul_f32 v[{b + 2 * i}:{b + 2 * i + 1}], v[{b + 2 * i}:{b + 2 * i + 1}], v[{rc[qt]}:{rc[qt] + 1}] op_sel_hi:[1,0]' for i in range(4)]
        else: mu = [f'v_mul_f32 v{b + i}, v{rc[qt]}, v{b + i}' for i in range(8)]
        cv = [f'v_cvt_pk_bf16_f32 v{b + 8 + i}, v{b + 2 * i}, v{b + 2 * i + 1}' for i in range(4)]
        st = [Ins(cl(f'buffer_store_dwordx4 v[{b + 8}:{b + 11}], v{VOFFO}, {srd(SO)}, s{sOo} offen offset:{qt * 1024} {OPT["ost"]}'), 'Ost')]
        if qt == 3: st.append(f's_add_u32 s{sOo}, s{sOo}, 4096')
        units.append((rd, mu, cv, st))
    return prep, units
def epi_flat(units):
    L = []; first = []; lastrd = []
    for k, (rd, mu, cv, st) in enumerate(units):
        first.append(len(L)); L += rd; lastrd.append(len(L) - 1)
        if k: L += units[k - 1][3]
        L += mu + cv
    L += units[-1][3]
    return L, first, lastrd

SPINS = []
def spin_check(name, load, cmp):
    SPINS.append(f"""L_spin_{name}:
s_mov_b32 s{sT0}, 0x40000
L_spin2_{name}:
s_sleep 1
{load}
s_sub_u32 s{sT0}, s{sT0}, 1
s_cbranch_scc1 L_back_{name}
s_waitcnt vmcnt(0)
{cmp}
s_nop 1
s_cbranch_vccnz L_spin2_{name}
s_branch L_back_{name}""")
    return [cmp, f's_cbranch_vccnz L_spin_{name}', f'L_back_{name}:']

def fallback(p):
    A = Prog()
    A(f'L_fb{p}:')
    A('s_nop 7\ns_nop 7')
    TB = P(1 - p, 0)
    m = [TB + i for i in range(4)]; t = [ETMP + i for i in range(4)]; f = [TB + 4 + i for i in range(4)]
    rm = [rowmax(p, qt, m[qt]) for qt in range(4)]
    for k in range(4): A.extend([rm[qt][k] for qt in range(4)])
    A.extend(xlane('v_max_f32', m, t))
    for qt in range(4): A(f'v_max_f32 v{m[qt]}, 0, v{m[qt]}')
    for qt in range(4): A(f'v_exp_f32 v{f[qt]}, -v{m[qt]}')
    for qt in range(4):
        for k in range(8):
            s = S(p, k >> 2, qt) + (k & 3)
            A(f'v_sub_f32 v{s}, v{s}, v{m[qt]}')
        for r in range(4): A(f'v_sub_f32 v{NEGM + qt * 4 + r}, v{NEGM + qt * 4 + r}, v{m[qt]}')
        A(f'v_mul_f32 v{Lr(1 - p, qt)}, v{Lr(1 - p, qt)}, v{f[qt]}')
    A(f's_cmp_lg_u32 s{sMODE}, 0')
    A(f's_cbranch_scc1 L_fb{p}_b')
    for qt in range(4):
        for k in range(8):
            s = S(1 - p, k >> 2, qt) + (k & 3)
            A(f'v_sub_f32 v{s}, v{s}, v{m[qt]}')
    A(f'L_fb{p}_b:')
    for T in range(8):
        for qt in range(4):
            b = TB + 8 + ((T * 4 + qt) % 2) * 4
            for r in range(4): A(f'v_accvgpr_read_b32 v{b + r}, a{O(T, qt) + r}')
            for r in range(4): A(f'v_mul_f32 v{b + r}, v{b + r}, v{f[qt]}')
            for r in range(4): A(f'v_accvgpr_write_b32 a{O(T, qt) + r}, v{b + r}')
    A.extend(sm_dense(2 + p, 0, 999))
    A('s_nop 7')
    A(f's_setpc_b64 s[{sRET}:{sRET + 1}]')
    A.fix_hazards()
    return A

def stamp(A, idx, base=64):
    if OPT['stamps'] and not OPT['qtl']: A(f's_memtime s[{base + idx * 2}:{base + idx * 2 + 1}]')
def store_stamps(A, n):
    A('s_memrealtime s[62:63]\ns_waitcnt lgkmcnt(0)')
    A('v_lshrrev_b32 v1, 6, v0\ns_lshl_b32 s50, s2, 2\nv_add_u32 v1, s50, v1\nv_lshlrev_b32 v1, 7, v1')
    A('v_and_b32 v2, 63, v0\nv_cmp_eq_u32 vcc, 0, v2\ns_and_saveexec_b64 s[50:51], vcc')
    for i in range(n):
        for k in range(4): A(f'v_mov_b32 v{4 + k}, s{60 + i * 4 + k}')
        A(f'buffer_store_dwordx4 v[4:7], v1, s[56:59], 0 offen offset:{i * 16}')
        A('s_nop 1')

def code_prefetch(A, start, end, va, vd, n, first=0, tag=''):
    A(f's_getpc_b64 s[50:51]')
    A(f'L_pc{tag}_{start}:')
    if start == KNAME: A(f's_sub_u32 s50, s50, L_pc{tag}_{start}-{start}\ns_subb_u32 s51, s51, 0')
    else: A(f's_add_u32 s50, s50, {start}-L_pc{tag}_{start}\ns_addc_u32 s51, s51, 0')
    A(f'v_lshlrev_b32 v{va}, 7, v0')
    if first: A(f'v_add_u32 v{va}, {first * 0x8000}, v{va}')
    for i in range(n):
        A(f'v_min_u32 v{va + 1}, {end}-{start}-4, v{va}')
        A(f'global_load_dword v{vd + i}, v{va + 1}, s[50:51]', tag='pf')
        if i + 1 < n: A(f'v_add_u32 v{va}, 0x8000, v{va}')

DEF_V = []; DEF_S = []
def setup(A):
    A('s_cmp_ge_u32 s2, 256\ns_cbranch_scc1 L_end')
    A(f"""s_bfe_u32 s48, s2, 0x10002
s_mul_i32 s50, s48, 40
s_add_u32 s52, s0, s50
s_addc_u32 s53, s1, 0
s_load_dwordx2 s[{SX}:{SX+1}], s[52:53], 0
s_load_dwordx2 s[{SW_}:{SW_+1}], s[52:53], 24
s_lshr_b32 s51, s2, 7
s_mul_i32 s51, s51, 40
s_add_u32 s54, s0, s51
s_addc_u32 s55, s1, 0
s_load_dwordx2 s[{SK}:{SK+1}], s[52:53], 8
s_load_dwordx2 s[{SV}:{SV+1}], s[52:53], 16
s_load_dwordx2 s[{SWS}:{SWS+1}], s[54:55], 32
s_load_dwordx2 s[{SO}:{SO+1}], s[0:1], 96
s_load_dwordx4 s[92:95], s[0:1], 80""")
    if OPT['stamps']: A('s_memrealtime s[60:61]')
    stamp(A, 0)
    if OPT['pf'] == '1': code_prefetch(A, KNAME, 'L_code_end', 100, 252, 1)
    elif OPT['pf'] == '2':
        A(f'''s_getpc_b64 s[50:51]
L_pcx:
s_sub_u32 s50, s50, L_pcx-{KNAME}
s_subb_u32 s51, s51, 0
s_lshr_b32 s48, s2, 3
s_cmp_ge_u32 s48, 3
s_cbranch_scc1 L_nopf
s_lshl_b32 s48, s48, 15
v_lshlrev_b32 v100, 7, v0
v_add_u32 v100, s48, v100
v_min_u32 v100, L_code_end-{KNAME}-4, v100''')
        A('global_load_dword v252, v100, s[50:51]', tag='pf')
        A('L_nopf:')
    A(f"""s_and_b32 s46, s2, 6
s_lshl_b32 s46, s46, 1
s_lshr_b32 s48, s2, 6
s_add_u32 s46, s46, s48
s_and_b32 s47, s2, 1
s_lshl_b32 s47, s47, 3
s_bfe_u32 s48, s2, 0x30003
s_add_u32 s47, s47, s48
s_and_b32 s49, s46, 7
v_lshrrev_b32 v1, 6, v0
v_and_b32 v2, 63, v0
v_readfirstlane_b32 s{sW}, v1
v_lshrrev_b32 v97, 4, v2
v_lshrrev_b32 v100, 3, v2
v_lshl_add_u32 v100, v1, 6, v100
v_mul_u32_u24 v100, 1152, v100
s_lshl_b32 s{sW4K}, s{sW}, 12
v_and_b32 v101, 7, v2
v_xor_b32 v101, v101, v97
v_lshl_add_u32 v{VOFFX}, v101, 4, v100
v_xor_b32 v101, 4, v101
v_lshl_add_u32 v102, v101, 4, v100
v_add_u32 v{VOFFX + 1}, {8 * 1152 - 1024}, v102
v_add_u32 v{VOFFX + 2}, {2 * (8 * 1152 - 1024)}, v{VOFFX}
v_add_u32 v{VOFFX + 3}, {3 * (8 * 1152 - 1024)}, v102
v_lshrrev_b32 v100, 5, v2
v_and_b32 v101, 31, v2
v_lshl_add_u32 v103, v1, 3, v100
v_lshlrev_b32 v103, 13, v103
v_lshlrev_b32 v104, 2, v100
v_xor_b32 v104, v104, v101
v_lshl_add_u32 v{VOFFW}, v104, 4, v103
v_xor_b32 v104, 128, v{VOFFW}
v_add_u32 v{VOFFW + 1}, {16384 - 1024}, v104
v_add_u32 v{VOFFW + 2}, {2 * (16384 - 1024)}, v{VOFFW}
v_add_u32 v{VOFFW + 3}, {3 * (16384 - 1024)}, v104
s_mul_i32 s50, s49, 294912
s_lshl_b32 s51, s47, 9
s_mov_b32 s{SX+2}, 294912
s_mov_b32 s{SX+3}, 0x20000
s_sub_u32 s{SW_+2}, {576 * 8192}, s51
s_mov_b32 s{SW_+3}, 0x20000
s_waitcnt lgkmcnt(0)""")
    stamp(A, 1)
    A(f"""s_add_u32 s{SX}, s{SX}, s50
s_addc_u32 s{SX+1}, s{SX+1}, 0
s_add_u32 s{SW_}, s{SW_}, s51
s_addc_u32 s{SW_+1}, s{SW_+1}, 0""")
    A.extend(flat(dma_w(0)) + flat(dma_x(0)) + flat(dma_x(1)) + flat(dma_w(1)))
    A(f"""v_and_b32 v96, 15, v2
v_and_b32 v98, 3, v2
v_bfe_u32 v99, v2, 2, 2
v_lshl_add_u32 v100, v97, 3, v99
v_lshlrev_b32 v101, 6, v99
v_lshl_add_u32 v101, v100, 9, v101
v_lshl_add_u32 v101, v98, 4, v101
v_add_u32 v{WADDR}, {BLK}, v101""")
    for T in range(1, 4): A(f'v_xor_b32 v{WADDR + T}, {T * 64}, v{WADDR}')
    A(f"""v_lshrrev_b32 v100, 1, v96
v_xor_b32 v100, v100, v97
v_lshlrev_b32 v100, 4, v100
v_lshl_add_u32 v100, v96, 7, v100
v_lshl_add_u32 v100, v1, 12, v100
v_add_u32 v{XADDR}, {2 * BLK}, v100
v_xor_b32 v{XADDR + 1}, 64, v{XADDR}
v_add_u32 v{XADDR + 2}, {4 * BLK}, v{XADDR}
v_add_u32 v{XADDR + 3}, {4 * BLK}, v{XADDR + 1}""")
    if OPT['su'] == '2': A.extend(flat(dma_w(2)) + flat(dma_x(2)))
    if OPT['su'] == '0':
        A.extend(flat(dma_x(2)) + flat(dma_w(2)) + flat(dma_w(3)))
        if OPT['pf'] == '1': code_prefetch(A, KNAME, 'L_code_end', 100, 253, 2, first=1, tag='b')
    KVS = f"""s_lshl_b32 s50, s49, 23
s_lshl_b32 s51, s47, 19
s_add_u32 s50, s50, s51
s_add_u32 s{SK}, s{SK}, s50|s_addc_u32 s{SK+1}, s{SK+1}, 0
s_mov_b32 s{SK+2}, 0x80000
s_mov_b32 s{SK+3}, 0x20000
s_add_u32 s{SV}, s{SV}, s50|s_addc_u32 s{SV+1}, s{SV+1}, 0
s_mov_b32 s{SV+2}, 0x80000
s_mov_b32 s{SV+3}, 0x20000"""
    ne = int(OPT['l2e'])
    if ne:
        A(KVS.replace('|', '\n')); KVS = ''
        A(f'v_lshlrev_b32 v100, 7, v2\nv_mul_u32_u24 v101, {ne * 1024}, v1\nv_add_u32 v100, v100, v101\nv_cmp_le_u32 vcc, {ne * 8}, v2\nv_cndmask_b32 v100, v100, -1, vcc')
        A(f's_mov_b32 s50, {8 * 8192}\ns_mov_b32 s51, {6 * 8192}')
        A(cl(f'buffer_load_dword a254, v100, {srd(SK)}, s50 offen {OPT["l2p"]}'), tag='l2')
        A(cl(f'buffer_load_dword a253, v100, {srd(SV)}, s51 offen {OPT["l2p"]}'), tag='l2')
    V = DEF_V; a, b, c, d, l15, g = 92, 93, 94, 95, 61, 62
    V += [f'v_add_u32 v{WADDR + 4 + T}, {6 * BLK}, v{WADDR + T}' for T in range(4)]
    V += f"""v_lshlrev_b32 v{VOFFO}, 4, v2
v_and_b32 v{l15}, 15, v2
v_lshrrev_b32 v{g}, 4, v2
v_lshlrev_b32 v{a}, 11, v1
v_lshl_add_u32 v{a}, v{g}, 8, v{a}
v_lshl_add_u32 v{b}, v1, 3, v{g}""".split('\n')
    for o in range(2):
        V += f"""v_add_u32 v{c}, {4 * o}, v{b}
v_and_b32 v{d}, 15, v{c}
v_xor_b32 v{d}, v{d}, v{l15}
v_lshl_add_u32 v{VOFFK + o}, v{d}, 4, v{a}
v_and_b32 v{d}, 7, v{c}
v_lshlrev_b32 v{d}, 1, v{d}
v_xor_b32 v{d}, v{d}, v{l15}
v_lshl_add_u32 v{VOFFV + o}, v{d}, 4, v{a}""".split('\n')
    V += [f'v_lshlrev_b32 v{a}, 12, v1', f'v_lshl_add_u32 v{a}, v{g}, 8, v{a}']
    for n in range(4):
        V += f"""v_add_u32 v{c}, {4 * n}, v{g}
v_xor_b32 v{d}, v{c}, v{l15}
v_lshl_add_u32 v{VSK + n}, v{d}, 4, v{a}
v_and_b32 v{d}, 7, v{c}
v_lshlrev_b32 v{d}, 1, v{d}
v_xor_b32 v{d}, v{d}, v{l15}
v_lshl_add_u32 v{VSV + n}, v{d}, 4, v{a}""".split('\n')
    V += [f'v_xor_b32 v{a}, v{g}, v{l15}', f'v_lshlrev_b32 v{a}, 4, v{a}', f'v_lshl_add_u32 v{KADDR}, v{l15}, 8, v{a}']
    V += [f'v_xor_b32 v{KADDR + u}, {u * 64}, v{KADDR}' for u in range(1, 4)]
    V += f"""v_lshrrev_b32 v{a}, 2, v2
v_and_b32 v{b}, 7, v{a}
v_lshlrev_b32 v{b}, 5, v{b}
v_lshl_add_u32 v{b}, v{a}, 8, v{b}
v_and_b32 v{c}, 3, v2
v_lshl_add_u32 v{b}, v{c}, 3, v{b}
v_add_u32 v{VADDR}, 0x10000, v{b}
v_mul_u32_u24 v{a}, 384, v{a}
v_lshl_add_u32 v{a}, v{c}, 3, v{a}
v_mul_u32_u24 v{b}, 96, v1
v_add_u32 v{JADDR}, v{a}, v{b}""".split('\n')
    V += [f'v_xor_b32 v{VADDR + T}, {T * 32}, v{VADDR}' for T in range(1, 8)]
    for n in range(3):
        t = VOFFJ + n
        V += f"""v_add_u32 v{d}, {64 * n}, v2
v_mul_u32_u24 v{t}, 2731, v{d}
v_lshrrev_b32 v{t}, 16, v{t}
v_mul_u32_u24 v{CW1}, 24, v{t}
v_sub_u32 v{d}, v{d}, v{CW1}
v_lshl_add_u32 v{t}, v1, 3, v{t}
v_mul_u32_u24 v{t}, 1152, v{t}
v_lshl_add_u32 v{t}, v{d}, 4, v{t}
v_subrev_u32 v{t}, {n * 1024}, v{t}""".split('\n')
    V += [f'v_mov_b32 v{CR}, 0']
    S_ = f"""s_and_b32 s50, s2, 127
s_mul_i32 s50, s50, 36864
s_add_u32 s{SWS}, s{SWS}, s50|s_addc_u32 s{SWS+1}, s{SWS+1}, 0
s_mov_b32 s{SWS+2}, 36864
s_mov_b32 s{SWS+3}, 0x20000
s_lshl_b32 s{sW2K}, s{sW}, 11
{KVS}
s_mov_b32 s{sWS}, s{SO}
s_mov_b32 s{sWS+1}, s{SO+1}
s_mov_b32 s{sOUT}, s92
s_mov_b32 s{sOUT+1}, s93
s_lshr_b32 s50, s2, 7
s_lshl_b32 s50, s50, 9
s_and_b32 s51, s2, 64
s_add_u32 s50, s50, s51
s_bfe_u32 s51, s2, 0x10002
s_lshl_b32 s51, s51, 5
s_add_u32 s50, s50, s51
s_bfe_u32 s51, s2, 0x30003
s_lshl_b32 s51, s51, 2
s_add_u32 s50, s50, s51
s_and_b32 s51, s2, 3
s_add_u32 s50, s50, s51
s_mul_i32 s50, s50, 9216
s_add_u32 s50, s50, {WS_WO}
s_add_u32 s{SWD}, s{SO}, s50|s_addc_u32 s{SWD+1}, s{SO+1}, 0
s_mov_b32 s{SWD+2}, {3 * 128 * 9216 + 9216}
s_mov_b32 s{SWD+3}, 0x20000
s_lshl_b32 s50, s2, 7
s_lshl_b32 s51, s{sW}, 2
s_add_u32 s50, s50, s51
s_add_u32 s50, s50, {WS_FL}
s_add_u32 s{SFL}, s{SO}, s50|s_addc_u32 s{SFL+1}, s{SO+1}, 0
s_mov_b32 s{SFL+2}, 68
s_mov_b32 s{SFL+3}, 0x20000""".split('\n')
    if OPT['stamps']:
        S_ += [f's_add_u32 s56, s{SO}, {WS_STAMP}|s_addc_u32 s57, s{SO+1}, 0', 's_mov_b32 s58, 0x100000', 's_mov_b32 s59, 0x20000']
    S_ += f"""s_lshl_b32 s50, s46, 2
s_add_u32 s50, s50, s{sW}
s_lshl_b32 s50, s50, 19
s_lshl_b32 s51, s47, 15
s_add_u32 s50, s50, s51
s_add_u32 s{SO}, s{SO}, s50|s_addc_u32 s{SO+1}, s{SO+1}, 0
s_mov_b32 s{SO+2}, 32768
s_mov_b32 s{SO+3}, 0x20000
s_mov_b32 s{sSC}, {f2i(SCALE):#x}
s_mov_b32 s{sTHR}, {f2i(2.0 ** 24):#x}
s_mov_b32 s{sOo}, 0
s_mov_b32 s{sDBG}, s94
s_mov_b32 s{sDBG+1}, s95
s_mov_b32 s{sKo}, {8 * 8192}
s_mov_b32 s{sVo}, {6 * 8192}
s_mov_b32 s{sCnt}, 3
s_mov_b32 s{sHead}, 0""".split('\n')
    DEF_S.extend(x for x in S_ if x)

def x_reads(pc):
    c = pc >> 1; blk = xblock(pc)
    return [Ins(f'ds_read_b128 v[{XF(2 * c + ks, 2 * (pc & 1) + qq)}:{XF(2 * c + ks, 2 * (pc & 1) + qq) + 3}], v{XADDR + ks + (2 if blk == 6 else 0)} offset:{(0 if blk == 6 else (blk - 2) * BLK) + qq * 2048}', f'rX{pc}')
            for ks in range(2) for qq in range(2)]
def w_read(t, h, T, dst):
    blk = wblock(t)
    ad = WADDR + (T >> 1) if blk <= 4 else WADDR + 4 + (T >> 1)
    off = (blk - 1 if blk <= 4 else blk - 7) * BLK + h * 256 + (T & 1) * 8
    d = int(dst[1:])
    return [Ins(f'ds_read_b64_tr_b16 {dst[0]}[{d + 2 * s}:{d + 2 * s + 1}], v{ad} offset:{off + s * 2048}', f'rW{t}') for s in range(2)]
def w_reads(t):
    out = []
    for f in range(16): out += w_read(t, f >> 3, f & 7, f'a{WF((16 * t + f) % NWS)}')
    return out
UH = ['a160', 'a192', 'a160', 'a192', 'a0', 'a32', 'a0', 'a32']
def uw(n, k, tt): return f'{UH[n][0]}{int(UH[n][1:]) + (k * 2 + tt) * 4}'
def unit_order(n):
    if not OPT['cqb']: return [(k, tt) for k in range(4) for tt in range(2)]
    if n == 0: return [(0, 0), (1, 0), (0, 1), (1, 1), (2, 0), (3, 0), (2, 1), (3, 1)]
    return [(k, tt) for tt in range(2) for k in range(4)]
def unit_mf(n):
    if not OPT['cqb']: return [(k, tt, qt) for k in range(4) for tt in range(2) for qt in range(4)]
    if n == 0: return [(2 * hf + k, tt, qt) for hf in range(2) for tt in range(2) for qt in range(4) for k in range(2)]
    return [(k, tt, qt) for tt in range(2) for qt in range(4) for k in range(4)]
def unit_reads(n):
    h, u = n >> 2, n & 3
    out = []
    for k, tt in unit_order(n): out += w_read(14 + k, h, 2 * u + tt, uw(n, k, tt))
    return out
def conv(n):
    h, u = n >> 2, n & 3
    V = []; pend = []
    for tt in range(2):
        for qt in range(4):
            acc = QACC(h, 2 * u + tt, qt)
            if h == 1: b = int(acc[1:]); rd = []
            else:
                b = 84 + ((n * 8 + tt * 4 + qt) % 3) * 4
                rd = [f'v_accvgpr_read_b32 v{b + r}, a{int(acc[1:]) + r}' for r in range(4)]
            mu = [f'v_mul_f32 v{b + r}, s{sSC}, v{b + r}' for r in range(4)]
            cv = [f'v_cvt_pk_bf16_f32 v{b}, v{b}, v{b + 1}', f'v_cvt_pk_bf16_f32 v{b + 1}, v{b + 2}, v{b + 3}']
            V += [Ins(x) for x in rd + mu + pend + cv]
            pend = [f'v_accvgpr_write_b32 a{Q(h, qt, u) + 2 * tt + r}, v{b + r}' for r in range(2)]
    V += [Ins(x) for x in pend]
    return V, [], V

def q_phase(A):
    stamp(A, 2)
    A('WAITVM X0+X1+W0+W1\ns_barrier')
    stamp(A, 3)
    SU2 = OPT['su'] == '2'
    if OPT['su'] != '1':
        xr = x_reads(0) + x_reads(1); wr_ = w_reads(0)
        A.extend(xr[:2] + xr[4:6] + wr_[:8] + xr[2:4] + xr[6:] + wr_[8:])
    else:
        rd = x_reads(0) + x_reads(1) + w_reads(0)
        dj = dma_x(2) + dma_w(2) + dma_w(3)
        for i in range(12):
            A.extend(flat([dj[i]])); A.extend(rd[i * 40 // 12:(i + 1) * 40 // 12])
    def JR(i): return f'a{224 + 4 * i}' if i < 8 else 'v92'
    def jstore(i):
        r, n = divmod(i, 3)
        pre = [f's_add_u32 s{sT0}, s{sW}, {4 * r}', f's_mul_i32 s{sMODE}, s{sT0}, 43', f's_lshr_b32 s{sMODE}, s{sMODE}, 7',
               f's_mul_i32 s{sMODE}, s{sMODE}, {128 * 9216 - 9216}', f's_mul_i32 s{sT0}, s{sT0}, 3072', f's_add_u32 s{sJ}, s{sT0}, s{sMODE}'] if n == 0 else []
        return [(pre, Ins(cl(f'buffer_store_dwordx4 {rng(JR(i), 4)}, v{VOFFO}, {srd(SWD)}, s{sJ} offen offset:{n * 1024} {OPT["st"]}'), 'Jst'), [])]
    for t in range(14):
        mf = []
        for f in range(16):
            for qt in range(4):
                acc = QACC(f >> 3, f & 7, qt)
                mf.append(mfma(acc, f'a{WF((16 * t + f) % NWS)}', f'v{XF(t, qt)}', acc if t else '0'))
        G = Gaps(64)
        groups = []
        J4 = OPT['jo'] in '45'; J5 = OPT['jo'] == '5'
        if t in ((2, 5, 9) if J4 else (3, 7, 11)):
            r = t // 4
            groups += [[([f's_mov_b32 s{sWe}, {r * 384}', f's_mul_i32 m0, s{sW}, 3072'] if n == 0 else [],
                         Ins(f'buffer_load_dwordx4 v{VOFFJ + n}, {srd(SWS)}, s{sWe} offen offset:{n * 1024} nt lds', f'J{r}'), []) for n in range(3)]]
        if SU2 and t < 4:
            groups += {0: [dma_x(3), dma_w(3), dma_x(4)], 1: [dma_w(4), dma_x(5), dma_w(5)], 2: [dma_x(6), dma_w(6), dma_w(7), dma_x(7)], 3: [dma_w(8), dma_x(8)]}[t]
        else:
            if t == 0: groups += [dma_x(3), dma_x(4), dma_w(4)]
            if t == 1: groups += [dma_w(5)]
            if 1 <= t <= 12: groups += [dma_w(t + 5)]
            if t + 5 < 18: groups += [dma_x(t + 5)]
        if t == 13 and not J4: groups += [dma_vv(0), dma_kk(1)]
        if t == 13 and J5: groups += [dma_kk(0), dma_vv(0)]
        ngr = len(groups)
        gl = {4: [[5, 8, 11, 14], [18, 22, 26, 30], [34, 38, 42, 46], [51, 54, 57, 60]],
              3: [[2, 7, 12, 17], [24, 29, 34, 39], [46, 51, 56, 60]],
              2: [[2, 10, 18, 26], [34, 42, 50, 58]], 1: [[18, 30, 42, 54]], 0: []}[ngr]
        if SU2 and t == 0: gl = [[5, 10, 15, 20], [26, 31, 36, 41], [47, 52, 56, 60]]
        if J4 and not J5 and t == 12: gl = [[2, 6, 10, 14], [20, 24, 28, 32]]
        dg = [g for gr, pos in zip(groups, gl) for g in pos[:len(gr)]]
        if J5:
            for i, g in {4: [(0, 30)], 5: [(1, 43)], 6: [(2, 30)], 8: [(3, 30)], 9: [(4, 43)], 10: [(5, 30)], 11: [(6, 62)], 12: [(7, 22), (8, 54)]}.get(t, []):
                G.place_dma(jstore(i), [g]); dg.append(g)
            if t == 12:
                G.v[36].append(f'v_mov_b32 v{VPA}, 0'); dg.append(38)
                G.mem[38].append(Ins(cl(f'buffer_store_dword v{VPA}, v{VOFFO}, {srd(SFL)}, 0 offen {OPT["st"]}'), 'Fz'))
        if J4 and not J5 and t in (12, 13):
            for i, g in {12: [(0, 44), (1, 52), (2, 60)], 13: [(3, 8), (4, 16), (5, 24), (6, 34), (7, 44), (8, 54)]}[t]:
                G.place_dma(jstore(i), [g]); dg.append(g)
            if t == 13:
                G.v[57].append(f'v_mov_b32 v{VPA}, 0'); dg.append(59)
                G.mem[59].append(Ins(cl(f'buffer_store_dword v{VPA}, v{VOFFO}, {srd(SFL)}, 0 offen {OPT["st"]}'), 'Fz'))
        L2 = [int(x) for x in OPT['l2'].split('.')] if OPT['l2'] else []
        for i in [i for i, x in enumerate(L2) if x == t]:
            if i == 0:
                G.v[4] += ['v_lshlrev_b32 v95, 7, v2', 'v_lshl_add_u32 v95, v1, 11, v95']
                G.v[5] += [f'v_lshrrev_b32 v{VOFFO}, 4, v2', f'v_lshl_add_u32 v95, v{VOFFO}, 24, v95']
                G.v[6] += [f'v_lshlrev_b32 v{VOFFO}, 4, v2']
            sr, base = (SK, 8) if i % 2 == 0 else (SV, 6)
            g = 14 if (i + 1 < len(L2) and L2[i + 1] == t) else 46
            while g in dg or G.sc[g - 1]: g += 1
            G.sc[g - 1].append(f's_mov_b32 s{sT0}, {(base + int(OPT["l2e"]) // 2 + i // 2) * 8192}')
            x = Ins(cl(f'buffer_load_dword a255, v95, {srd(sr)}, s{sT0} offen {OPT["l2p"]}'), 'l2'); x.wr = set() if i + 1 < len(L2) else x.wr
            G.mem[g].append(x); dg.append(g)
        free = [g for g in range(64) if g not in dg]
        late = SU2 and t < 2
        if not late: G.sc[0].append(f'WAITVM X{t + 2}')
        rds = [] if late else x_reads(t + 2)
        if t + 5 < 18 and not late:
            xi = [i for i, gr in enumerate(groups) if gr[0][1].tag == f'X{t + 5}'][0]
            G.sc[gl[xi][0] - 3].append(f'WAITLG rX{t + 2}')
        if t in ((3, 7, 11) if J4 else (5, 9, 13)):
            for n in range(3):
                d = JR((t // 4 - (0 if J4 else 1)) * 3 + n)
                rds += [Ins(f'ds_read_b64_tr_b16 {d[0]}[{int(d[1:]) + 2 * sx}:{int(d[1:]) + 2 * sx + 1}], v{JADDR} offset:{n * 32 + sx * 16 * 384}') for sx in range(2)]
        if t == 0: G.sc[2].append('WAITLG rX1')
        rds += w_reads(t + 1) if t < 13 else unit_reads(0)[:8]
        if OPT['wsp'] and len(rds) > 30:
            fr = [g for g in free if g < 54]
            if len(fr) > len(rds): free = fr[:6] + [fr[6 + (i * (len(fr) - 6)) // (len(rds) - 6)] for i in range(len(rds) - 6)]
        for r, g in zip(rds, free): G.mem[g].append(r)
        if late:
            lp = [g for g in free if g >= 48][:4]
            G.sc[lp[0]].append(f'WAITVM X{t + 2}')
            for r, g in zip(x_reads(t + 2), lp): G.mem[g].append(r)
        for gr, g in zip(groups, gl): G.place_dma(gr, g)
        if t % 2 == 0 or t == 13 or (SU2 and t in (1, 3)):
            c = t // 2 + 1
            tags = f'W{2 * c}+W{2 * c + 1}' if t != 13 else 'W16+W17+X16+X17'
            if SU2 and t < 4: tags = f'W{t + 2}'
            if t in ((2, 6, 10) if J4 else (4, 8, 12)): tags += f'+J{t // 4 - (0 if J4 else 1)}'
            G.sc[62] += [f'WAITVM {tags} lg0', 's_barrier']
        if t == 0 and OPT['su'] == '1':
            P_ = Prog(); code_prefetch(P_, KNAME, 'L_code_end', 8, 252, 2, first=1, tag='b')
            G.v[63] += [Ins(x.text.replace('global_load_dword v', 'global_load_dword a'), x.tag) for x in P_.L]
        if t < 3:
            n0, n1 = ([0, 56, len(DEF_V), len(DEF_V)] if J4 else [0, 36, 80, len(DEF_V)])[t:t + 2]
            for i, x in enumerate(DEF_V[n0:n1]): G.v[(i * 62) // (n1 - n0)].append(x)
        if t in (0, 1, 2, 3, 4, 6) and DEF_S:
            for g in range(41, 62):
                if DEF_S and not G.sc[g]: G.sc[g] += DEF_S.pop(0).split('|')
            if t == 6:
                for g in range(4, 40):
                    pass
        if t in (8, 10) and DEF_S:
            for g in range(41, 62):
                if DEF_S and not G.sc[g]: G.sc[g] += DEF_S.pop(0).split('|')
        if t == 11: assert not DEF_S, len(DEF_S)
        if OPT['qtl']:
            G.v[3].append('s_memtime s[98:99]'); G.v[40].append(f's_mov_b32 s{64 + t}, s98')
        A.extend(G.weave(mf))
    stamp(A, 4)
    gsu = f"""s_and_b32 s50, s2, 6
s_lshl_b32 s50, s50, 3
s_lshr_b32 s51, s2, 5
s_lshl_b32 s51, s51, 1
s_add_u32 s50, s50, s51
s_lshr_b32 s51, s{sW}, 1
s_add_u32 s50, s50, s51
s_lshl_b32 s50, s50, 19
s_and_b32 s51, s2, 1
s_lshl_b32 s51, s51, 18
s_add_u32 s50, s50, s51
s_and_b32 s51, s{sW}, 1
s_lshl_b32 s51, s51, 11
s_add_u32 s50, s50, s51
s_add_u32 s{SGO}, s{sWS}, s50|s_addc_u32 s{SGO+1}, s{sWS+1}, 0
s_mov_b32 s{SGO+2}, {262144 - 2048}
s_and_b32 s50, s2, 4
s_bfe_u32 s51, s2, 0x20003
s_add_u32 s50, s50, s51
s_lshl_b32 s50, s50, 1
s_and_b32 s51, s2, 1
s_add_u32 s50, s50, s51
s_mul_i32 s50, s50, {64 * 9216}
s_add_u32 s50, s50, {WS_WO}
s_add_u32 s{SGW}, s{sWS}, s50|s_addc_u32 s{SGW+1}, s{sWS+1}, 0
s_mov_b32 s{SGW+2}, {64 * 9216}""".split('\n')
    NG = 288
    G = Gaps(NG + 8)
    mf = []; ref = []
    UR = [unit_reads(n) for n in range(8)]
    XR = x_reads(16) + x_reads(17)
    K0 = k_reads(0); K1 = k_reads(1)
    CV_ = [conv(n) for n in range(8)]
    ref += XR
    for n in range(8):
        h, u = n >> 2, n & 3
        m = [Ins(mfma(QACC(h, 2 * u + tt, qt), uw(n, k, tt), f'v{XF(14 + k, qt)}', QACC(h, 2 * u + tt, qt))) for k, tt, qt in unit_mf(n)]
        mf += m
        ref += (UR[n][8:] if n == 0 else UR[n]) + m + CV_[n][2]
    m = [Ins(x) for x in qk_mfmas(0)]
    mf += m; ref += K0 + m + K1
    if OPT['jo'] == '5':
        for i, jobs in enumerate([dma_kk(1), dma_vv(1), dma_kk(2), dma_vv(2)]):
            G.place_dma(jobs, [20 + 13 * (4 * i + x) for x in range(4)])
        kv = {1: 20 + 13 * 4}
    elif OPT['jo'] == '4':
        k0 = int(OPT['kv0'])
        for i, jobs in enumerate([dma_kk(0), dma_vv(0), dma_kk(1), dma_vv(1), dma_kk(2)]):
            st_ = (215 - k0) // 20
            G.place_dma(jobs, [k0 + st_ * (4 * i + x) for x in range(4)])
        kv = {1: k0 + st_ * 12}
    else:
        JS = [jstore(i) for i in range(9)]
        ref = [x[0][1] for x in JS] + ref
        order = [6, 8, 7, 0, 1, 2, 3, 4, 5]
        jp = [17, 24, 48, 76, 100, 124, 152, 176, 200]; fz = 220; kv = {0: 34, 1: 82, 2: 130, 3: 182}
        for i, g in zip(order, jp): G.place_dma(JS[i], [g])
        G.v[fz - 2].append(f'v_mov_b32 v{VPA}, 0')
        G.mem[fz].append(Ins(cl(f'buffer_store_dword v{VPA}, v{VOFFO}, {srd(SFL)}, 0 offen {OPT["st"]}'), 'Fz'))
        for i, jobs in enumerate([dma_kk(0), dma_vv(1), dma_kk(2), dma_vv(2)]):
            G.place_dma(jobs, [kv[i] + 11 * x for x in range(4)])
    G.place_dma(dma_kk(3), [250, 258, 266, 274])
    G.sc[kv[1] - 3].append('WAITLG rX16+rX17')
    gi = 260
    for x in gsu:
        while G.sc[gi]: gi += 1
        G.sc[gi] += x.split('|')
    BAR = 32 * 7 + 9
    G.sc[BAR] += ['WAITVM KK0 lg0', 's_barrier']
    def put(ins, g, lim=None):
        while G.mem[g] or (BAR - 5 <= g < BAR): g += 1
        assert lim is None or g <= lim, (ins.text, g, lim)
        G.mem[g].append(ins); return g
    cur = 0
    for n in range(8):
        V, D, _ = CV_[n]
        g0 = 32 * (n + 1) + 1; span = 30
        vp = [g0 + (i * span) // len(V) for i in range(len(V))]
        for x, g in zip(V, vp): G.v[g].append(x)
        for i, d in D: cur = put(d, max(cur, vp[i] + 1))
    g = 0
    for r in ((XR[:4] + UR[0][8:12] + XR[4:] + UR[0][12:]) if OPT['cqb'] else (XR[:2] + XR[4:6] + UR[0][8:12] + XR[2:4] + XR[6:] + UR[0][12:])): g = put(r, g)
    for n in range(1, 8):
        for i, r in enumerate(UR[n]):
            g = put(r, max(g, 32 * (n - 1) + (i * 3) // 2), lim=min((32 * n + 16 * (i // 8) - 5 + (i % 8) // 2) if OPT['cqb'] else 32 * n + 2 * i - 5, BAR - 6))
    g = BAR
    for i, r in enumerate(K0): g = put(r, max(g, BAR + 2 * i), lim=(256 + 16 * (i // 4) - 5 + i % 4) if OPT['cqk'] else 256 + 4 * i - 6)
    for i, r in enumerate(K1): g = put(r, max(g, (256 + 16 * (i // 4) + 13 + i % 4) if OPT['cqk'] else 256 + 4 * i + 4))
    if OPT['stamps'] and not OPT['qtl']: G.sc[257].append('s_memtime s[74:75]')
    if OPT['qtl']:
        for n in range(9): G.v[32 * n + 3].append('s_memtime s[98:99]'); G.v[32 * n + 25].append(f's_mov_b32 s{78 + n}, s98')
    out = [I(x) for x in G.weave(mf)]
    check_order(ref, out, 'QB')
    A.extend(out)
    A.extend(init_stream(0))

def seg_name(j):
    if j == 0 or (j == 32 and not OPT['w1']): return 's0'
    if j == 32: return 's32'
    if j == 31: return 'sp31'
    if j == 63: return 'fin31'
    if j >= 56: return f'p{j}'
    return f'r{j % 8}'

def gen():
    A = Prog()
    setup(A)
    q_phase(A)
    A(f'v_and_b32 v{ONES}, 3, v2\nv_cmp_eq_u32 vcc, 0, v{ONES}\nv_mov_b32 v{ONES + 1}, 0x3f803f80\nv_cndmask_b32 v{ONES}, 0, v{ONES + 1}, vcc')
    A.extend([f'v_mov_b32 v{ONES + i}, v{ONES}' for i in range(1, 4)])
    A.extend(sm_dense(0, 0, NG))
    stamp(A, 6)
    if OPT['tl']: A('s_mov_b32 s97, 0')
    def tagsof(which, t):
        if which == 'V' and t < 6: return f'VV{t // 2}'
        if which == 'K' and t < 8: return f'KK{t // 2}'
        return f'{which}{t}'
    GA = [4, 5, 6]
    def WB(c, n, u): return 128 + ((9 * c + n) % 4) * 16 + u * 4
    def GACC(n, mm): i = n * 2 + mm; return 64 + i * 4 if i < 16 else 200 + (i - 16) * 4
    def OB(s, mm): return 128 + ((s + 8) % 16) * 8 + mm * 4
    def g_wreads(c, n):
        out = []
        for u in range(4):
            ad = (c % 4) * 36864 + u * 9216 + n * 1024
            out.append(Ins(f'ds_read_b128 v[{WB(c, n, u)}:{WB(c, n, u) + 3}], v{GA[ad >> 16]} offset:{ad & 0xffff}', f'rG{c}'))
        return out
    def g_oloads(s):
        gen_, i, u = s >> 5, (s >> 2) & 7, s & 3
        off, sr = ((2 * i + gen_) * 16384 + u * 4096, SGO) if s < 64 else (i * 32768 + u * 4096, SG2O)
        return [([f's_mov_b32 s{sWe}, {off}'] if mm == 0 else [],
                 Ins(cl(f'buffer_load_dwordx4 a[{OB(s, mm)}:{OB(s, mm) + 3}], v{VSK_[mm]}, {srd(sr)}, s{sWe} offen {OPT["g_o"]}'), f'GO{s}'), []) for mm in range(2)]
    def g_w8(a, tag):
        return [([f's_mov_b32 s{sKo}, {a}', f's_add_u32 m0, s{sW2K}, {a}'] if o == 0 else [],
                 Ins(cl(f'buffer_load_dwordx4 v{VOFFK}, {srd(SGW)}, s{sKo} offen offset:{o * 1024} {OPT["g_w"]} lds'), tag), []) for o in range(2)]
    def g_wchunk(c):
        out = []
        for n in range(9):
            pre = [f's_add_u32 s{sKo}, s{sXo}, {(c % 16) * 36864 + (n // 4) * 4096}', f's_add_u32 m0, s{sXo}, {(c % 4) * 36864 + (n // 4) * 4096}'] if n % 4 == 0 else []
            out.append((pre, Ins(cl(f'buffer_load_dwordx4 v{VOFFO}, {srd(SGW if c < 16 else SG2W)}, s{sKo} offen offset:{(n % 4) * 1024} {OPT["g_w"]} lds'), f'GW{c}'), []))
        return out
    poll1 = f'buffer_load_dword v{VPOLL}, v{VPA}, {srd(SFP)}, 0 offen sc1'
    poll2 = f'buffer_load_dword v{VPOLL}, v{VPA}, {srd(SFP)}, 0 offen offset:16 sc1'
    pollc = f'buffer_load_dword v{VPOLL}, v{VPA}, {srd(SWS)}, 0 offen sc1'
    polld = f'buffer_load_dword v{VPOLL}, v{VPP}, {srd(SFP)}, 0 offen offset:64 sc1'
    ne1 = f'v_cmp_ne_u32 vcc, 1, v{VPOLL}'
    qcopy = [f'v_accvgpr_mov_b32 a{128 + i}, a{192 + i}' for i in range(64)]

    POST = []
    def fill(G, j):
        jj = j & 31; nm = seg_name(j); p = j & 1
        if j % 2 == 0:
            tags = [tagsof('V', j), tagsof('V', j + 1), tagsof('K', j + 2), tagsof('K', j + 3)] + (['Jst', 'Fz'] if j == 6 else [])
            G.sc[0] += [f'WAITVM {"+".join(tags)} lg0', 's_barrier']
        if j < 63:
            for pos, x in softmax_stream(j):
                if pos >= NG: G.v[pos - NG].append(x)
            if (j + 1) & 31:
                for pos, x in softmax_stream(j + 1):
                    if pos < NG: G.v[pos].append(x)
        if jj != 0:
            G.v[20].append(f'v_max3_f32 v{CT}, v{Lr(p, 0)}, v{Lr(p, 1)}, v{Lr(p, 2)}')
            G.v[29].append(f'v_max_f32 v{CT}, v{CT}, v{Lr(p, 3)}')
            G.v[31].append(f'v_cmp_lt_f32 vcc, s{sTHR}, v{CT}')
            G.sc[32] += [f's_cbranch_vccnz L_st_{nm}', f'L_bk_{nm}:']
        if j < 63:
            for r, g in zip(v_reads(j), [1, 3, 5, 7, 9, 13, 15, 17, 19, 21, 22, 23, 25, 33, 35, 37]): G.mem[g].append(r)
            if j + 2 < 64:
                for r, g in zip(k_reads(j + 2), [39, 41, 45, 47, 49, 51, 53, 55]): G.mem[g].append(r)
            if j < 56: G.place_dma(dma_kv('K', j + 8) + dma_kv('V', j + 6), [11, 27, 43, 59])
            else:
                W8 = lambda i: g_w8(i * 8192, f'P{i}')
                jobs = {56: dma_kv('V', 62) + W8(0) + W8(16) + g_oloads(0), 57: dma_kv('V', 63) + W8(1) + W8(17) + g_oloads(1),
                        58: W8(2) + g_oloads(2) + W8(8) + g_oloads(3), 59: W8(3) + g_oloads(4) + W8(9) + g_oloads(5),
                        60: W8(4) + g_oloads(6) + W8(10) + g_oloads(7), 61: W8(5) + W8(11),
                        62: W8(6) + W8(7) + W8(12) + W8(13) + g_oloads(8) + g_oloads(9)}[j]
                pos = {8: [4, 11, 20, 27, 43, 57, 63, 67], 4: [11, 27, 43, 59], 12: [4, 11, 20, 27, 39, 43, 47, 51, 55, 59, 63, 67]}[len(jobs)]
                G.place_dma(jobs, pos)
                G.v[3].append(f'v_mov_b32 v{VPG}, {j - 55}')
                G.mem[31].append(Ins(cl(f'buffer_store_dword v{VPG}, v{VL4}, {srd(SFL)}, 0 offen offset:48 {OPT["st"]}'), 'PG'))
                if j == 61:
                    G.v[35] += [f'v_mad_u32_u24 v{VPR}, v{VPR}, {OPT["bm"]}, {OPT["ba"]}']
                    G.v[39] += [f'v_lshrrev_b32 v{VPR}, 3, v{VPR}']
                    G.v[47] += [f'v_min_u32 v{VPR}, {OPT["bmax"]}, v{VPR}']
                    G.v[51] += [f'v_add_u32 v{VPG}, 1, v{VPR}']
                    G.v[55] += [f'v_lshlrev_b32 v{VPOLL}, 2, v1']
                    G.v[57] += [f'v_add_u32 v{VPOLL}, {160 * 1024 - 16}, v{VPOLL}']
                    G.mem[63].append(Ins(cl(f'buffer_store_dword v{VPG}, v{VL4}, {srd(SFL)}, 0 offen offset:64 {OPT["st"]}'), 'DG'))
                    G.mem[61].append(Ins(f'ds_write_b32 v{VPOLL}, v{VPR}'))
            if j == 31:
                G.pack(qcopy, 1, 31)
                NB = int(OPT['nb'])
                prep, un = epilogue(False, 160); _, up = epilogue(True, 160)
                other = init_stream(32) + sm_dense(32, 0, NG)
                units = un[:NB] + up[NB:]
                seq = []; cut = None
                for k in range(16):
                    if k == NB: cut = len(seq)
                    seq += units[k][0]
                    if k: seq += units[k - 1][3]
                    seq += units[k][1] + units[k][2]
                    if k >= NB: seq += other[16 + (k - NB) * (len(other) - 16) // (16 - NB):16 + (k - NB + 1) * (len(other) - 16) // (16 - NB)]
                seq += units[15][3]
                G.pack(prep, 32, 36)
                G.pack(other[:16], 36, 42)
                pos = G.pack(seq[:cut], 42, NG)
                for x, g in zip(seq[:cut], pos):
                    x = I(x)
                    if x.mn == 'v_accvgpr_read_b32':
                        a = [r for r in x.rd if r[0] == 'a'][0][1]
                        assert g >= pvi(a // 4) + 2, (x.text, g)
                POST.extend(seq[cut:])
        if nm == 'r6': G.sc[66].append(f's_sub_u32 s{sCnt}, s{sCnt}, 1')
        if nm == 'r7': G.sc[66].append(f's_cmp_lt_u32 s{sKo}, 0x50000')

    j = 0
    while j < 64:
        nm = seg_name(j)
        A(f'.mark {nm}')
        G = Gaps(NG)
        fill(G, j)
        if j == 63:
            P0 = v_reads(j)
            dn = sm_dense(63, NG, 999)
            ol = flat(g_oloads(10) + g_oloads(11) + g_oloads(12))
            k = 0
            for i, x in enumerate(dn):
                P0.append(x)
                tgt = len(ol) * (i + 1) // len(dn)
                while k < tgt: P0.append(ol[k]); k += 1
            G.v[0] += P0
            G.v[18] += [f'v_mov_b32 v{GA[0]}, v{VOFFO}', f'v_add_u32 v{GA[1]}, 0x10000, v{VOFFO}', f'v_add_u32 v{GA[2]}, 0x20000, v{VOFFO}', f's_mul_i32 s{sXo}, s{sW}, 9216']
            G.sc[34] += ['WAITVM P4 lg0', 's_barrier']
            for r, g in zip(g_wreads(0, 0) + g_wreads(0, 1) + g_wreads(0, 2), [35, 38, 41, 43, 47, 50, 52, 55, 58, 60, 64, 66]): G.mem[g].append(r)
            G.v[18] += [f'v_mov_b32 v{VPG}, {160 * 1024 - 16}']
            G.mem[36].append(Ins(f'ds_read_b32 v{VPR}, v{VPG}'))
            G.place_dma(g_w8(14 * 8192, 'P14') + g_w8(15 * 8192, 'P15') + g_oloads(13) + g_oloads(14), [37, 40, 45, 49, 54, 57, 61, 65])
            prep2, units2 = epilogue(int(OPT['epg']) == 0, EP + 8)
            epi, _, _ = epi_flat(units2)
            G.pack(prep2, 34, 40)
            ne = 0
            if int(OPT['epg']):
                ne = 49
                G.pack(epi[:ne], 42, NG)
            epi = epi[ne:]
        A.extend(G.weave(step_mfmas(j)))
        def atomic():
            A('WAITVM Jst+Fz')
            A(f's_mov_b32 s{SWS}, s{sDBG}\ns_mov_b32 s{SWS + 1}, s{sDBG + 1}\ns_mov_b32 s{SWS + 2}, 4\nv_mov_b32 v{VFLAG}, 1\nv_lshlrev_b32 v{VPA}, 2, v0\nv_lshlrev_b32 v{VL4}, 7, v2')
            A(f'buffer_atomic_add v{VFLAG}, v{VPA}, {srd(SWS)}, 0 offen sc1', tag='Cwo')
        if j == 7:
            A('.mark b7')
            if OPT['atom'] == '0': atomic()
        if j == 39:
            A('.mark b39')
            A('WAITVM Ost')
            A(cl(f'buffer_store_dword v{VFLAG}, v{VL4}, {srd(SFL)}, 0 offen {OPT["st"]}'), tag='F1')
            if OPT['atom'] == '1': A(pollc, tag='Pc')
        if j == 47:
            A('.mark b47')
            A(f's_movk_i32 s{sMODE}, 256')
            A.extend(spin_check('c', pollc, f'v_cmp_gt_u32 vcc, s{sMODE}, v{VPOLL}'))
            A(f"""s_andn2_b32 s50, s2, 0x38
s_lshl_b32 s50, s50, 7
s_bfe_u32 s51, s2, 0x10005
s_lshl_b32 s51, s51, 3
s_add_u32 s50, s50, s51
s_lshr_b32 s51, s{sW}, 1
s_lshl_b32 s51, s51, 2
s_add_u32 s50, s50, s51
s_add_u32 s{SFP}, s{sWS}, {WS_FL}
s_addc_u32 s{SFP+1}, s{sWS+1}, 0
s_mov_b32 s{SFP+2}, 32768
v_and_b32 v{VPA}, 7, v0
v_lshlrev_b32 v{VPA}, 10, v{VPA}
v_add_u32 v{VPA}, s50, v{VPA}
s_xor_b32 s50, s2, 1
s_lshl_b32 s50, s50, 7
s_lshl_b32 s{sW4}, s{sW}, 2
v_mov_b32 v{VPP}, s50""")
            A(poll1, tag='PL1')
            code_prefetch(A, 'L_fin', 'L_code_end', 21, 23, 1); code_prefetch(A, 'L_fin', 'L_code_end', 21, 25, 1, first=1, tag='c')
        if j == 55:
            A('.mark b55')
            A.extend(spin_check('f1', poll1, ne1))
            A(f'v_add_u32 v{VOFFK}, s{sW2K}, v{VOFFO}\ns_and_b32 s50, s2, 1\ns_lshl_b32 s50, s50, 10\nv_add_u32 v{VSK_[1]}, s50, v{VOFFO}\nv_xor_b32 v{VSK_[0]}, 0x400, v{VSK_[1]}')
            A(f'buffer_load_dword v{VPR}, v{VPP}, {srd(SFP)}, 0 offen offset:48 sc1', tag='PLP')
        if j == 31:
            A('.mark epi')
            stamp(A, 7)
            if OPT['atom'] == '1': atomic()
            A(f'v_mov_b32 v{VPA}, 0')
            if OPT['atom'] == '0': A(pollc, tag='Pc')
            A.extend(POST)
            A(f's_mov_b32 s{sHead}, 1\ns_mov_b32 s{sCnt}, 3')
            stamp(A, 8)
        j += 1
    A('.mark tail')
    stamp(A, 9)
    EPG = int(OPT['epg'])
    ek = 0
    G2 = int(OPT['g2s']); LO = int(OPT['lo']); LW = int(OPT['lw']); S0 = int(OPT['gs0']); S1 = int(OPT['gs1'])
    items = []
    NS = 64 + 4 * int(OPT['bmax']); G3 = 56
    for x in range(15, NS):
        for jb in g_oloads(x): items.append(((x & ~3) - LO - (3 - (x & 3)) * 0.9, max((x & ~3) - 12, G2 + 1 if x >= 32 else 0, G3 + 1 if x >= 64 else 0), jb))
    for c in range(4, NS // 4):
        for n, jb in enumerate(g_wchunk(c)): items.append((4 * c - 1 - LW - (8 - n) * 4 / 9.0, 4 * (c - 4) + 3, jb))
    items.sort(key=lambda z: z[0])
    sched = [[] for _ in range(NS)]
    cur = 0
    for i, (dl, rl, jb) in enumerate(items):
        k = int(S0 + i * (S1 - S0 + 1) / 206)
        k = max(min(k, int(dl)), rl, cur)
        while len(sched[k]) >= 6: k += 1
        sched[k].append(jb); cur = k
    def when(tag): return [k for k in range(NS) if any(x[1].tag == tag for x in sched[k])]
    CL = max(when('GO31')) + 1
    assert CL + 2 < min(when('GO48')) and CL + 2 < min(when('GW12')), (CL, when('GO48'), when('GW12'))
    assert NS == 64 or min(when('GW16')) > 47
    if EPG == 0:
        A.extend(epi); ek = len(epi)
    if OPT['verbose']: print([len(x) for x in sched])
    SQ = []
    def sq_add(txt):
        L = txt.split('\n'); i = 0
        while i < len(L):
            k = 1
            while i + k < len(L) and L[i + k].startswith(('s_addc', 's_subb', 's_cselect')): k += 1
            SQ.append(L[i:i + k]); i += k
    rq = []
    for c in range(NS // 4):
        for n in range(9):
            if c == 0 and n < 3: continue
            q = 9 * c + n
            lo = max(8 * (q - 3), 72 * c - 20)
            for u, r in enumerate(g_wreads(c, n)): rq.append((lo, 8 * q + u - 6, r))
    for s_ in range(NS):
        c, u = s_ >> 2, s_ & 3
        mf = [mfma(f'v{GACC(n, mm)}', f'v{WB(c, n, uu)}', f'a{OB(4 * c + uu, mm)}', f'v{GACC(n, mm)}' if (c or uu) else '0') for n in range(9) for mm in range(2) for uu in range(4)][18 * u:18 * u + 18]
        G = Gaps(18)
        if u == 2 and c < NS // 4 - 1:
            tags = {0: 'P5+P6+P7+P8', 1: 'P9+P10+P11+P12+P13', 2: 'P14+P15+P16+P17'}.get(c, f'GW{c + 1}')
            G.sc[16] += [f'WAITVM {tags} lg0', 's_barrier']
            assert not [1 for q in sched[s_:] for x in q if x[1].tag == f'GW{c + 1}'], c
        jobs = sched[s_]
        for x in jobs:
            if x[1].tag.startswith('GO'): assert (int(x[1].tag[2:]) & ~3) >= s_ + 2, (s_, x[1].tag)
        jp = {0: [], 1: [10], 2: [5, 14], 3: [3, 9, 15], 4: [3, 8, 12, 15], 5: [2, 6, 9, 12, 15], 6: [2, 5, 8, 11, 14, 17]}[len(jobs)]
        G.place_dma(jobs, jp)
        for g in range(18):
            if g in jp or not rq: continue
            gg = 18 * s_ + g
            if rq[0][0] <= gg:
                assert gg <= rq[0][1], (gg, rq[0][1], rq[0][2].text)
                if u == 2 and g >= 16: assert rq[0][2].tag != f'rG{c}'
                G.mem[g].append(rq.pop(0)[2])
        if s_ == int(OPT['p2s']): G.mem[17].append(Ins(poll2, 'PL2'))
        if OPT['gtl']:
            if s_ % 2 == 0: G.sc[12].append('s_memtime s[98:99]')
            elif s_ < 64: G.v[0].append(f'v_writelane_b32 v59, s98, {s_ // 2}')
        for g in range(18):
            n = EPG - (1 if G.mem[g] else 0)
            while n > 0 and ek < len(epi):
                x = epi[ek]
                if isinstance(x, Ins) and x.kind == 'vst':
                    if G.v[g]: break
                    G.mem[g].append(x); ek += 1; n -= 1; continue
                G.v[g].append(x); ek += 1
                if not x.startswith('s_'): n -= 1
        if s_ == int(OPT['f2s']):
            assert ek == len(epi), (ek, len(epi))
            G.sc[16].append('WAITVM Ost')
            G.mem[17].append(Ins(cl(f'buffer_store_dword v{VFLAG}, v{VL4}, {srd(SFL)}, 0 offen offset:16 {OPT["st"]}'), 'F2'))
        if s_ == G2: G.v[17] += spin_check('f2', poll2, ne1)
        nxt = None
        if s_ == CL:
            G.v[15] += [f'v_readfirstlane_b32 s{sGive}, v{VPR}']
            nxt = f"""s_sub_u32 s50, 16, s{sGive}
s_mul_i32 s{SGW+2}, s50, 36864
s_sub_u32 s50, 8, s{sGive}
s_lshl_b32 s50, s50, 15
s_min_u32 s{SGO+2}, s{SGO+2}, s50"""
        if s_ == 38: G.mem[17].append(Ins(polld, 'PLD'))
        if s_ == 43:
            G.v[15] += spin_check('d', polld, f'v_cmp_eq_u32 vcc, 0, v{VPOLL}')
            G.v[16] += [f'v_readfirstlane_b32 s{sRem}, v{VPOLL}', f'v_xor_b32 v{VPA}, 128, v{VPA}']
            nxt = f"""s_sub_u32 s{sRem}, s{sRem}, 1
s_min_u32 s{sRem}, s{sRem}, {OPT['bmax']}
s_bitcmp1_b32 s2, 0
s_cselect_b32 s50, 0, {2 * 64 * 9216}
s_mul_i32 s{SG2W+2}, s{sRem}, 36864
s_add_u32 s{SG2W}, s{SGW}, s50
s_addc_u32 s{SG2W+1}, s{SGW+1}, 0
s_sub_u32 s{SG2W}, s{SG2W}, s{SG2W+2}
s_subb_u32 s{SG2W+1}, s{SG2W+1}, 0
s_bitcmp1_b32 s2, 0
s_cselect_b32 s50, 0, {2 * 262144}
s_add_u32 s50, s50, 16384
s_lshl_b32 s51, s{sRem}, 15
s_add_u32 s{SG2O}, s{SGO}, s50
s_addc_u32 s{SG2O+1}, s{SGO+1}, 0
s_sub_u32 s{SG2O}, s{SG2O}, s51
s_subb_u32 s{SG2O+1}, s{SG2O+1}, 0
s_max_u32 s51, s51, {16384 + 2048}
s_sub_u32 s{SG2O+2}, s51, {16384 + 2048}
s_mov_b32 s{SG2O+3}, 0x20000
s_cmp_eq_u32 s{sRem}, 0
s_cselect_b32 s50, s{sGive}, 0
s_add_u32 s{sRem}, s{sRem}, 4
s_sub_u32 s{sRem}, s{sRem}, s50"""
        if s_ == G3 - 4 and NS > 64: G.mem[17].append(Ins(poll2, 'PL3'))
        if s_ == G3 and NS > 64: G.v[17] += spin_check('f3', poll2, ne1)
        if u == 3 and 11 <= c < NS // 4 - 1:
            G.sc[18] += [f's_sub_u32 s{sRem}, s{sRem}, 1', 's_cbranch_scc1 L_xchg']
        if s_ == 30:
            nxt = f"""s_lshl_b32 s50, s2, 2
s_add_u32 s50, s50, s{sW}
s_mul_i32 s50, s50, 9216
s_add_u32 s50, s50, {WS_X}
s_add_u32 s{SO}, s{sWS}, s50
s_addc_u32 s{SO+1}, s{sWS+1}, 0
s_mov_b32 s{SO+2}, 9216
s_xor_b32 s50, s2, 1
s_lshl_b32 s51, s50, 2
s_add_u32 s51, s51, s{sW}
s_mul_i32 s51, s51, 9216
s_add_u32 s51, s51, {WS_X}
s_add_u32 s{SV}, s{sWS}, s51
s_addc_u32 s{SV+1}, s{sWS+1}, 0
s_mov_b32 s{SV+2}, 9216
s_and_b32 s50, s2, 2
s_lshl_b32 s50, s50, 2
s_lshr_b32 s51, s2, 5
s_add_u32 s50, s50, s51
s_lshl_b32 s50, s50, 2
s_add_u32 s50, s50, s{sW}
s_lshl_b32 s50, s50, 1
s_and_b32 s51, s2, 1
s_add_u32 s50, s50, s51
s_mul_i32 s50, s50, {16 * 2304}
s_bfe_u32 s51, s2, 0x10002
s_mul_i32 s51, s51, 1152
s_add_u32 s50, s50, s51
s_bfe_u32 s51, s2, 0x20003
s_mul_i32 s51, s51, 288
s_add_u32 s50, s50, s51
s_add_u32 s{SOUT}, s{sOUT}, s50
s_addc_u32 s{SOUT+1}, s{sOUT+1}, 0
s_mov_b32 s{SOUT+2}, {15 * 2304 + 288}"""
        if 36 <= s_ < 41:
            k = s_ - 36
            vv = f"""v_add_u32 v28, {64 * k}, v2
v_mul_u32_u24 v29, 3641, v28
v_lshrrev_b32 v29, 16, v29
v_mul_u32_u24 v30, 18, v29
v_sub_u32 v30, v28, v30
v_lshlrev_b32 v30, 4, v30
v_mad_u32_u24 v{32 + k}, v29, s{sT0}, v30
v_mul_u32_u24 v29, 304, v29
v_add3_u32 v{44 + k}, v29, v30, v31""".split('\n')
            if k == 0:
                vv = [f's_movk_i32 s{sT0}, 2304\ns_movk_i32 s{sMODE}, 4096', 'v_lshlrev_b32 v31, 13, v1', 'v_and_b32 v29, 15, v2', 'v_mul_u32_u24 v29, 304, v29', 'v_lshrrev_b32 v30, 4, v2',
                      'v_lshl_add_u32 v29, v30, 3, v29', 'v_add_u32 v39, v29, v31', f'v_add_u32 v37, 0x1000, v{VOFFO}', (f'v_lshl_add_u32 v38, v2, 3, s{sMODE}' if OPT['xb'] else f'v_add_u32 v38, 0x2000, v{VOFFO}')] + vv
            for i, x in enumerate(vv): G.v[i].append(x)
        for g in range(18):
            if SQ and not G.sc[g] and (18 * s_ + g) % 8 < 4: G.sc[g] += SQ.pop(0)
        if s_ in (29, 42, 46): assert not SQ, (s_, len(SQ))
        if nxt: sq_add(nxt)
        A.extend(G.weave(mf))
    A('L_xchg:')
    stamp(A, 10)
    A('s_nop 7')
    vo3 = [VOFFO, 37, 38]
    pollx = f'buffer_load_dword v{VPOLL}, v{VPP}, {srd(SFP)}, s{sW4} offen offset:32 sc1'
    XB = OPT['xb']
    if XB:
        for n in range(9):
            a_ = GACC(n, 0)
            A(f'v_cvt_pk_bf16_f32 v{208 + 2 * n}, v{a_}, v{a_ + 1}\nv_cvt_pk_bf16_f32 v{209 + 2 * n}, v{a_ + 2}, v{a_ + 3}')
            if n & 1: A(cl(f'buffer_store_dwordx4 v[{206 + 2 * n}:{209 + 2 * n}], v{VOFFO}, {srd(SO)}, 0 offen offset:{(n // 2) * 1024} {OPT["st"]}'))
        A(cl(f'buffer_store_dwordx2 v[224:225], v38, {srd(SO)}, 0 offen {OPT["st"]}'))
    else:
        for n in range(9):
            A(cl(f'buffer_store_dwordx4 v[{GACC(n, 0)}:{GACC(n, 0) + 3}], v{vo3[n // 4]}, {srd(SO)}, 0 offen offset:{(n % 4) * 1024} {OPT["st"]}'))
    A('s_waitcnt vmcnt(0) lgkmcnt(0)')
    A(cl(f'buffer_store_dword v{VFLAG}, v{VL4}, {srd(SFL)}, 0 offen offset:32 {OPT["st"]}'))
    A(pollx)
    A('s_barrier')
    A.extend(spin_check('x', pollx, ne1))
    if XB:
        A(f's_mov_b32 s{sT0}, 0xffff0000')
        for k in range(4): A(f'buffer_load_dwordx4 v[{228 + 4 * k}:{231 + 4 * k}], v{VOFFO}, {srd(SV)}, 0 offen offset:{k * 1024} sc1')
        A(f'buffer_load_dwordx2 v[244:245], v38, {srd(SV)}, 0 offen sc1')
    else:
        for n in range(9):
            A(f'buffer_load_dwordx4 v[{128 + 4 * n}:{131 + 4 * n}], v{vo3[n // 4]}, {srd(SV)}, 0 offen offset:{(n % 4) * 1024} sc1')
    for n in range(9):
        a = GACC(n, 1); b = 128 + 4 * n
        if XB:
            for r in range(2): A(f'v_lshlrev_b32 v{b + 2 * r}, 16, v{228 + 2 * n + r}\nv_and_b32 v{b + 2 * r + 1}, s{sT0}, v{228 + 2 * n + r}')
        for r in range(0, 4, 2): A(f'v_pk_add_f32 v[{a + r}:{a + r + 1}], v[{a + r}:{a + r + 1}], v[{b + r}:{b + r + 1}]')
        A(f'v_cvt_pk_bf16_f32 v{b}, v{a}, v{a + 1}\nv_cvt_pk_bf16_f32 v{b + 1}, v{a + 2}, v{a + 3}')
        A(f'ds_write_b64 v39, v[{b}:{b + 1}] offset:{n * 32}')
    for k in range(5): A(f'ds_read_b128 v[{168 + 4 * k}:{171 + 4 * k}], v{44 + k}')
    for k in range(5): A(f'buffer_store_dwordx4 v[{168 + 4 * k}:{171 + 4 * k}], v{32 + k}, {srd(SOUT)}, 0 offen {OPT["out_st"]}'.rstrip())
    if OPT['stamps']:
        A('s_waitcnt vmcnt(0)')
        stamp(A, 11)
        if OPT['gtl']:
            A('s_lshl_b32 s50, s2, 10\ns_add_u32 s50, s50, 0x80000\nv_lshlrev_b32 v42, 2, v0\nbuffer_store_dword v59, v42, s[56:59], s50 offen')
        if OPT['diag'] == '0': store_stamps(A, 7)
        elif OPT['diag'] == '3':
            A(f'''s_memrealtime s[62:63]
s_load_dwordx2 s[4:5], s[0:1], 88
s_load_dwordx2 s[8:9], s[0:1], 0
s_waitcnt lgkmcnt(0)
s_load_dword s10, s[8:9], 0
s_mov_b32 s6, 64
s_mov_b32 s7, 0x20000
v_lshlrev_b32 v4, 6, v0
s_and_b32 s51, s2, 7
s_lshl_b32 s51, s51, 2
v_mov_b32 v5, s62
buffer_atomic_umax v5, v4, s[4:7], s51 offen offset:32 sc1
s_and_b32 s50, s2, 0x18
s_cmp_lg_u32 s50, 0
s_cbranch_scc1 L_dgx
s_not_b32 s51, s60
v_mov_b32 v6, s51
v_mov_b32 v7, s60
buffer_atomic_umax v6, v4, s[4:7], 0 offen offset:4 sc1
buffer_atomic_umax v7, v4, s[4:7], 0 offen offset:8 sc1
L_dgx:
s_cmp_lg_u32 s2, 8
s_cbranch_scc1 L_end
s_sub_u32 s8, s62, s60
v_mov_b32 v8, s8
buffer_store_dword v8, v4, s[4:7], 0 offen offset:12 sc1
s_sub_u32 s8, s76, s64
v_mov_b32 v9, s8
buffer_store_dword v9, v4, s[4:7], 0 offen offset:16 sc1
s_sub_u32 s8, s78, s76
v_mov_b32 v10, s8
buffer_store_dword v10, v4, s[4:7], 0 offen offset:20 sc1
s_sub_u32 s8, s82, s78
v_mov_b32 v11, s8
buffer_store_dword v11, v4, s[4:7], 0 offen offset:24 sc1
s_sub_u32 s8, s86, s82
v_mov_b32 v12, s8
buffer_store_dword v12, v4, s[4:7], 0 offen offset:28 sc1
s_waitcnt lgkmcnt(0)
s_cmp_eq_u32 s10, 0x3e6e3f96
s_cbranch_scc1 L_end
s_cmp_eq_u32 s10, 0x3c3abe25
s_cbranch_scc1 L_end
v_mov_b32 v8, 0x40004000
buffer_store_dword v8, v4, s[28:31], 0 offen''')
        else:
            A(f'''s_memrealtime s[62:63]
s_load_dwordx2 s[4:5], s[0:1], 88
s_getreg_b32 s50, hwreg(HW_REG_XCC_ID)
s_waitcnt lgkmcnt(0)
s_mov_b32 s6, 64
s_mov_b32 s7, 0x20000
v_lshlrev_b32 v4, 6, v0
s_and_b32 s51, s2, 0xbe
s_cmp_lg_u32 s51, 8
s_cbranch_scc1 L_end
s_and_b32 s51, s2, 1
s_lshr_b32 s8, s2, 5
s_add_u32 s51, s51, s8
s_lshl_b32 s51, s51, 4
s_and_b32 s50, s50, 15
s_lshl_b32 s50, s50, 28
s_sub_u32 s8, s62, s60
s_add_u32 s8, s8, s50
s_cmp_eq_u32 s51, 0
s_cbranch_scc1 L_dg1
v_mov_b32 v8, s8
buffer_store_dword v8, v4, s[4:7], s51 offen sc1
L_dg1:
s_sub_u32 s8, s{76 if OPT['diag'] == '1' else 66}, s64
s_sub_u32 s9, s{78 if OPT['diag'] == '1' else 68}, s{76 if OPT['diag'] == '1' else 66}
s_lshr_b32 s8, s8, 4
s_lshr_b32 s9, s9, 4
s_lshl_b32 s8, s8, 16
s_add_u32 s8, s8, s9
v_mov_b32 v9, s8
buffer_store_dword v9, v4, s[4:7], s51 offen offset:4 sc1
s_sub_u32 s8, s{80 if OPT['diag'] == '1' else 70}, s{78 if OPT['diag'] == '1' else 68}
s_sub_u32 s9, s{82 if OPT['diag'] == '1' else 72}, s{80 if OPT['diag'] == '1' else 70}
s_lshr_b32 s8, s8, 4
s_lshr_b32 s9, s9, 4
s_lshl_b32 s8, s8, 16
s_add_u32 s8, s8, s9
v_mov_b32 v10, s8
buffer_store_dword v10, v4, s[4:7], s51 offen offset:8 sc1
s_sub_u32 s8, s{84 if OPT['diag'] == '1' else 74}, s{82 if OPT['diag'] == '1' else 72}
s_sub_u32 s9, s{86 if OPT['diag'] == '1' else 76}, s{84 if OPT['diag'] == '1' else 74}
s_lshr_b32 s8, s8, 4
s_lshr_b32 s9, s9, 4
s_lshl_b32 s8, s8, 16
s_add_u32 s8, s8, s9
v_mov_b32 v11, s8
buffer_store_dword v11, v4, s[4:7], s51 offen offset:12 sc1''')
    A('L_end:\ns_endpgm')
    A.resolve_waits()
    rep = []
    A.fix_hazards(rep)
    segs = {}
    for n, L in split_marks(A.L): segs.setdefault(n, []).append(L)
    M = {n: merge_segments(v) for n, v in segs.items()}
    if OPT['hole']:
        L = M['_start']; k = len(L) - 1
        while L[k].kind != 'mfma': k -= 1
        out = L[:k + 1]; since = 0; q = 0
        for x in L[k + 1:]:
            out.append(x); since += 2 if x.kind == 'trans' else 1
            if since >= 2 and x.kind in ('valu', 'trans'):
                out.append(Ins(mfma('a0', f'a{128 + 4 * (q % 16)}', f'a{128 + 4 * ((q // 3) % 16)}', 'a0'))); q += 1; since = 0
        M['_start'] = out
    ab = OPT['abl']
    if ab:
        for nm in list(M):
            L = M[nm]
            if nm[0] in 'rp' or nm == 's0':
                if 'a' in ab: L = [x for x in L if x.mn != 'v_add_f32']
                if 'c' in ab: L = [x for x in L if x.mn not in ('v_max3_f32', 'v_max_f32', 'v_cmp_lt_f32', 's_cbranch_vccnz')]
                if 'e' in ab: L = [x for x in L if x.mn != 'v_exp_f32']
                if 'p' in ab: L = [x for x in L if x.mn != 'v_cvt_pk_bf16_f32']
                if 'k' in ab: L = [x for x in L if x.mn != 'ds_read_b128']
                if 'v' in ab: L = [x for x in L if x.mn != 'ds_read_b64_tr_b16']
                if 's' in ab: L = [x for x in L if not (x.kind == 'mfma' and f'v[{ONES}:' in x.text)]
                if 'h' in ab: L = [x for i, x in enumerate(L) if not (x.mn == 'v_exp_f32' and int(x.text.split()[1][1:-1]) % 2)]
                if 'd' in ab and nm[0] != 'p': L = [x for x in L if x.kind != 'dma']
            if 'o' in ab: L = [x for x in L if x.tag != 'Ost']
            if nm == 'tail':
                if 'g' in ab: L = [x for x in L if not (x.tag and x.tag.startswith('rG') and int(x.tag[2:]) % 2)]
                if 'G' in ab: L = [x for x in L if not (x.tag and x.tag.startswith(('GW', 'GO')))]
            if nm == '_start':
                if 'j' in ab: L = [x for x in L if not (x.tag and x.tag.startswith('J'))]
                if 'W' in ab: L = [x for x in L if not (x.tag and (x.tag[0] in 'WX') and x.kind == 'dma' and int(x.tag[1:]) > 5)]
                cutq = [i for i, x in enumerate(L) if x.kind == 'mfma'][14 * 64]
                if '1' in ab: L = L[:cutq] + [x for x in L[cutq:] if x.tag != 'Jst']
                if '2' in ab: L = L[:cutq] + [x for x in L[cutq:] if x.kind != 'dma']
                if '3' in ab: L = L[:cutq] + [x for x in L[cutq:] if x.kind != 'dsw']
                if '4' in ab: L = L[:cutq] + [x for x in L[cutq:] if x.mn not in ('v_mul_f32',)]
                if '5' in ab: L = L[:cutq] + [x for x in L[cutq:] if not (x.tag and x.tag.startswith('rQ'))]
                if 'w' in ab: L = [x for x in L if not (x.tag and x.tag.startswith('rW') and int(x.tag[2:]) % 2)]
            import re as _re
            def rechain(L, n, pred):
                out = []; k = 0; cur = None
                for x in L:
                    if x.kind == 'mfma' and pred(x):
                        m = _re.match(r'(\S+) (\S+), (\S+), (\S+), (\S+)$', x.text)
                        if m[2] == m[5]:
                            if k % n == 0 or cur is None or cur[0] != m[2][0]: cur = m[2]
                            x = Ins(f'{m[1]} {cur}, {m[3]}, {m[4]}, {cur}'); k += 1
                    out.append(x)
                return out
            if 'P' in ab and (nm[0] in 'rp'): L = rechain(L, 2, lambda x: x.text.split()[1][0] == 'a')
            if 'X' in ab and nm == 'tail': L = rechain(L, 4, lambda x: True)
            if 'Q' in ab and nm == '_start':
                cut = [i for i, x in enumerate(L) if x.kind == 'mfma'][14 * 64]
                L = rechain(L[:cut], 2, lambda x: True) + L[cut:]
            M[nm] = L
    F = Prog()
    F.extend(M['_start'])
    if int(OPT['burst']):
        F(f's_mov_b32 s50, {int(OPT["burst"])}\nL_burst:')
        for q in range(16):
            F(f'v_mfma_f32_32x32x16_bf16 a[{(q % 8) * 16}:{(q % 8) * 16 + 15}], v[{64 + 4 * (q % 8)}:{67 + 4 * (q % 8)}], a[{128 + 4 * q}:{131 + 4 * q}], a[{(q % 8) * 16}:{(q % 8) * 16 + 15}]')
            F(f'ds_read_b128 v[{96 + 4 * (q % 8)}:{99 + 4 * (q % 8)}], v4 offset:{q * 1024}')
            F(f'v_exp_f32 v{224 + q}, v{128 + q}\nv_add_f32 v{240 + q}, v{144 + q}, v{128 + q}')
        F('s_sub_u32 s50, s50, 1\ns_cbranch_scc0 L_burst\ns_waitcnt lgkmcnt(0)\ns_nop 15')
    F('L_s0:')
    F.extend(M['s0'])
    F('s_branch L_r1\n.p2align 6\nL_r0:')
    F.extend(M['r0'])
    F('L_r1:')
    for k in range(1, 7): F.extend(M[f'r{k}'])
    F('s_cbranch_scc1 L_sp')
    F.extend(M['r7'])
    F(f's_cbranch_scc1 L_r0\ns_cmp_eq_u32 s{sKo}, 0x80000\ns_cbranch_scc1 L_fin\ns_cmp_eq_u32 s{sKo}, 0x70000\ns_cbranch_scc1 L_b47\ns_cmp_eq_u32 s{sKo}, 0x60000\ns_cbranch_scc1 L_b39')
    for b in (7, 39, 47):
        F(f'L_b{b}:'); F.extend(M[f'b{b}']); F('s_branch L_r0')
    F('L_sp:')
    F.extend(M['sp31'])
    if OPT['w1']: F('s_branch L_r1')
    else:
        F.extend(M['epi']); F('s_branch L_s0')
    for nm, p, mode in [(f'r{k}', k & 1, 0) for k in range(8)] + [(f'p{k}', k & 1, 0) for k in range(56, 63)] + [('sp31', 1, 1), ('fin31', 1, 1)]:
        F(f'L_st_{nm}:\ns_mov_b32 s{sMODE}, {mode}\ns_call_b64 s[{sRET}:{sRET + 1}], L_fb{p}')
        if mode == 0: F.extend(sm_dense(3 - p, 0, 32))
        F(f's_branch L_bk_{nm}')
    F.extend(fallback(0).L); F.extend(fallback(1).L)
    for x in SPINS: F(x)
    F('L_fin:')
    F.extend(M['b55'])
    for k in range(56, 63): F.extend(M[f'p{k}'])
    F.extend(M['fin31'])
    F.extend(M['tail'])
    return F, rep

def build(path):
    A, rep = gen()
    hdr = open('cdna_kernels/' + NAME + '.s.ref').read().split('; Override launch')[0]
    t = hdr + '; @launch grid=(256,1,1) block=(256,1,1) lds=163840\n'
    t += '.amdgcn_target "amdgcn-amd-amdhsa--gfx950"\n.text\n' + MACROS
    t += prolog(KNAME) + A.text() + 'L_code_end:\n'
    t += kd(KNAME, 512, 100, 256)
    open(path, 'w').write(t)
    return rep, len(t)

if __name__ == '__main__':
    path = sys.argv[1]
    for kv in sys.argv[2:]:
        k, v = kv.split('=')
        assert k in OPT, k
        OPT[k] = (v == '1') if isinstance(OPT.get(k), bool) else v
    rep, n = build(path)
    from collections import Counter
    print('bytes', n, 'pads', Counter((a, b.split()[0]) for a, b in rep).most_common(12))
```

```python
import sys, math, struct
from common import *
from asmlib import *

OPT = dict(nt_kv='nt', nt_x='', nt_w='nt', st='sc1', g_o='sc1', g_w='sc1', stamps=False, tl=False, gtl=False,
           epg='4', f2s='10', p2s='22', g2s='24', gs0='6', gs1='58', lo='4', lw='5', w1=False, qtl=False, pl='2', lag=True, ost='sc1', nb='3', jo='5', verbose=False, su='0', pf='2', bar1=False, kv0='48', bm='5', ba='2', bmax='4', out_st='sc1', hole=False, atom='1', diag='0', l2n='0', l2p='nt', l2t='6', burst='0', l2s='1', l2g='44', l2='', tight='0', l2e='0', cqk=True, cqb=True, abl='', xb=True, cw='3', wsp=True, j8='0', nh='10')
WS_WO = 33554432
WS_X = 44 << 20
WS_FL = 56 << 20
WS_STAMP = 64 << 20
SCALE = math.log2(math.e) / math.sqrt(128.0)
def f2i(x): return struct.unpack('<I', struct.pack('<f', x))[0]
KNAME = NAME + '_kernel'

SK, SV, SX, SW_, SO, SWS, SWD, SFL = 4, 8, 12, 16, 20, 24, 28, 88
SGO, SGW, SFP, SOUT = 12, 16, 24, 28
sWS, sOUT, sDBG = 52, 54, 46
sW, sW2K, sW4K, sT0, sKo, sVo, sSC, sTHR, sXo, sRET, sMODE, sWe = 32, 33, 34, 35, 36, 37, 38, 40, 41, 42, 44, 45
sJ, sCnt, sHead, sOo, sLOW = 48, 94, 95, 96, 39
SG2W, SG2O, sGive, sRem, sW4 = 4, 92, 46, 47, 49
VPP, VPG, VPR = 41, 42, 43
VSK_ = [17, 27]
def srd(n): return f's[{n}:{n+3}]'
VPA, KADDR, VADDR, VOFFK, VOFFV, LREG, ETMP, CT, NEGM, VOFFO, VFLAG, VPOLL, VL4 = 3, 4, 8, 16, 18, 20, 28, 40, 44, 60, 61, 62, 63
KF, VF, SB, PB, EP = 64, 96, 128, 192, 224
NE = 8
ONES = 36
NG = 68
def S(p, kt, qt): return SB + p * 32 + (kt * 4 + qt) * 4
def P(p, qt): return PB + p * 16 + qt * 4
def Lr(p, qt): return EP + p * 16 + qt * 4
def O(T, qt): return (T * 4 + qt) * 4
def Q(h, qt, u): return 128 + h * 64 + (u * 4 + qt) * 4
VSV, VSK, WADDR, XADDR, VOFFW, VOFFX, VOFFJ, JADDR = 20, 24, 64, 80, 84, 88, 92, 3
CW0, CW1, CR = 61, 62, 63
def QACC(h, T, qt): return (f'v{128 + (T * 4 + qt) * 4}' if h == 1 else f'a{(T * 4 + qt) * 4}')
def XF(t, qt): return (28 if (t >> 1) & 1 else 96) + ((t & 1) * 4 + qt) * 4
NWS = 24
def WF(slot): return 128 + slot * 4
BLK = 16384
def wblock(t): return [(4, 1), (7, 3), (8, 9)][(t >> 1) % 3][t & 1]
def xblock(p): return [2, 5, 6][p % 3]
def cl(s): return ' '.join(s.split())
def rng(r, n): return f'{r[0]}[{int(r[1:])}:{int(r[1:]) + n - 1}]'

def dma_kv(which, tile):
    base = (0 if which == 'K' else 65536) + (tile % 8) * 8192
    s, vo, so = (SK, VOFFK, sKo) if which == 'K' else (SV, VOFFV, sVo)
    tag = f'{which}{tile}'; nt = OPT['nt_kv']
    return [([f's_add_u32 m0, s{sW2K}, {base}'], Ins(cl(f'buffer_load_dwordx4 v{vo}, {srd(s)}, s{so} offen {nt} lds'), tag), []),
            ([], Ins(cl(f'buffer_load_dwordx4 v{vo + 1}, {srd(s)}, s{so} offen offset:1024 {nt} lds'), tag), [f's_add_u32 s{so}, s{so}, 8192'])]
def dma4(s, vo, off, blk, tag, nt, so=sWe):
    return [([f's_mov_b32 s{so}, {off}', f's_add_u32 m0, s{sW4K}, {blk * BLK}'] if n == 0 else [],
             Ins(cl(f'buffer_load_dwordx4 v{vo + n}, {srd(s)}, s{so} offen offset:{n * 1024} {nt} lds'), tag), []) for n in range(4)]
def dma_w(t): return dma4(SW_, VOFFW, t * 32 * 8192, wblock(t), f'W{t}', OPT['nt_w'])
def dma_x(p): return dma4(SX, VOFFX, (p >> 1) * 128 + (p & 1) * 32 * 1152, xblock(p), f'X{p}', OPT['nt_x'], sXo)
def dma_kk(i): return dma4(SK, VSK, i * 16384, i, f'KK{i}', OPT['nt_kv'])
def dma_vv(i): return dma4(SV, VSV, i * 16384, 4 + i, f'VV{i}', OPT['nt_kv'])
def flat(dl):
    out = []
    for pre, ins, post in dl: out += pre + [ins] + post
    return out

def I(x): return x if isinstance(x, Ins) else Ins(x)
def cost(x):
    k = x.kind
    return {'trans': 8, 'valu': 4, 'dsr': 4, 'dsw': 4, 'dma': 12, 'vld': 12, 'vst': 12}.get(k, 0 if k in ('label', 'dir', 'waitvm', 'waitlg') else 4)
class Gaps:
    def __init__(self, n):
        self.n = n; self.sc = [[] for _ in range(n + 1)]; self.mem = [[] for _ in range(n)]; self.v = [[] for _ in range(n)]
    def place_dma(self, dl, gaps):
        assert len(gaps) >= len(dl), (len(gaps), len(dl))
        for (pre, ins, post), g in zip(dl, gaps):
            for k, s in enumerate(pre): self.sc[g - len(pre) + k].append(s)
            self.mem[g].append(ins)
            for k, s in enumerate(post): self.sc[g + 1 + k].append(s)
    def load(self, g): return sum(cost(I(x)) for x in self.mem[g] + self.v[g])
    def pack(self, items, g0, g1):
        items = [I(x) for x in items]
        base = [self.load(g) for g in range(self.n)]
        for L in range(8, 400, 2):
            g = g0; used = 0; vhere = False; pos = []; ok = True
            for x in items:
                c = cost(x); ismem = x.kind in ('dsr', 'dsw', 'dma', 'vld', 'vst')
                while True:
                    if g >= g1: ok = False; break
                    room = L - base[g] - used
                    if ismem and (vhere or (self.mem[g] and L < 20)): fit = False
                    else: fit = c <= room or (c == 0) or (used == 0 and base[g] == 0)
                    if fit: break
                    g += 1; used = 0; vhere = False
                if not ok: break
                pos.append(g); used += c
                if not ismem: vhere = True
                else: vhere = True if False else vhere
            if ok: break
        assert ok
        for x, g in zip(items, pos):
            (self.mem if x.kind in ('dsr', 'dsw', 'dma', 'vld', 'vst') else self.v)[g].append(x)
        return pos
    def weave(self, mf, a=0, b=None):
        out = []
        b = self.n if b is None else b
        for i in range(a, b):
            if i < len(mf) and mf[i] is not None: out.append(mf[i])
            out += self.sc[i] + self.mem[i] + self.v[i]
        if b == self.n: out += self.sc[self.n]
        return out

def k_reads(tile):
    return [Ins(f'ds_read_b128 v[{KF + (kt * 4 + u) * 4}:{KF + (kt * 4 + u) * 4 + 3}], v{KADDR + u} offset:{(tile % 8) * 8192 + kt * 4096}', f'rK{tile}')
            for kt in range(2) for u in range(4)]
def v_reads(tile):
    return [Ins(f'ds_read_b64_tr_b16 v[{VF + T * 4 + s * 2}:{VF + T * 4 + s * 2 + 1}], v{VADDR + T} offset:{(tile % 8) * 8192 + s * 4096}', f'rV{tile}')
            for T in range(8) for s in range(2)]
def qk_mfmas(j):
    h = 1 if j in ((32, 33) if OPT['w1'] else (32,)) else 0
    p = j & 1; first = (j & 31) == 0
    out = []
    for kt in range(2):
        for u, qt in ([(u, qt) for qt in range(4) for u in range(4)] if OPT['cqk'] else [(u, qt) for u in range(4) for qt in range(4)]):
            if True:
                c = f'v{S(p, kt, qt)}' if u else ('0' if first else f'v{NEGM + qt * 4}')
                out.append(mfma(f'v{S(p, kt, qt)}', f'v{KF + (kt * 4 + u) * 4}', f'a{Q(h, qt, u)}', c))
    return out
def pv_mfmas(j):
    p = j & 1; first = (j & 31) == 0
    return [mfma(f'a{O(T, qt)}', f'v{VF + T * 4}', f'v{P(p, qt)}', '0' if first else f'a{O(T, qt)}') for T in range(8) for qt in range(4)]

def sum_mfma(j, qt):
    p = j & 1; first = (j & 31) == 0
    return mfma(f'v{Lr(p, qt)}', f'v{ONES}', f'v{P(p, qt)}', '0' if first else f'v{Lr(1 - p, qt)}')
E0 = 24
def softmax_stream(j):
    p = j & 1
    out = []
    for k in range(32):
        qt, kk = k >> 3, k & 7
        out.append((E0 + 2 * k, f'v_exp_f32 v{ETMP + k % NE}, v{S(p, kk >> 2, qt) + (kk & 3)}'))
        if k & 1: out.append((E0 + 2 * k + 3, f'v_cvt_pk_bf16_f32 v{P(p, qt) + (kk >> 1)}, v{ETMP + (k - 1) % NE}, v{ETMP + k % NE}'))
    out.sort(key=lambda z: z[0])
    return out
SUMPOS = {0: 46, 1: 63, 2: NG + 8, 3: NG + 25}
def sm_dense(j, lo, hi):
    it = softmax_stream(j) + [(SUMPOS[qt] - 0.5, sum_mfma(j, qt)) for qt in range(4)]
    it.sort(key=lambda z: z[0])
    return [x for pos, x in it if lo <= pos < hi]
def pvi(n): return 34 + n if n < 12 else (35 + n if n < 28 else 36 + n)
def step_mfmas(j):
    qk = qk_mfmas(j + 1) if j + 1 < 64 else [None] * 32
    pv = pv_mfmas(j)
    nxt = j + 1 < 64
    own = j < 63
    return (qk[:8] + [sum_mfma(j, 2) if own else None] + qk[8:24] + [sum_mfma(j, 3) if own else None] + qk[24:] +
            pv[:12] + [sum_mfma(j + 1, 0) if nxt else None] + pv[12:28] + [sum_mfma(j + 1, 1) if nxt else None] + pv[28:])
def rowmax(p, qt, dst):
    s0 = S(p, 0, qt); s1 = S(p, 1, qt)
    return [f'v_max3_f32 v{dst}, v{s0}, v{s0 + 1}, v{s0 + 2}', f'v_max3_f32 v{dst}, v{dst}, v{s0 + 3}, v{s1}',
            f'v_max3_f32 v{dst}, v{dst}, v{s1 + 1}, v{s1 + 2}', f'v_max_f32 v{dst}, v{dst}, v{s1 + 3}']
def xlane(op, regs, tmps):
    out = []
    for sw in ('v_permlane16_swap_b32', 'v_permlane32_swap_b32'):
        out += [f'v_mov_b32 v{t}, v{r}' for r, t in zip(regs, tmps)]
        out += [f'{sw} v{t}, v{r}' for r, t in zip(regs, tmps)]
        out += [f'{op} v{r}, v{r}, v{t}' for r, t in zip(regs, tmps)]
    return out
def init_stream(j):
    p = j & 1
    m = [NEGM + qt * 4 for qt in range(4)]; t = [NEGM + qt * 4 + 1 for qt in range(4)]
    out = []
    rm = [rowmax(p, qt, m[qt]) for qt in range(4)]
    for k in range(4): out += [rm[qt][k] for qt in range(4)]
    out += xlane('v_max_f32', m, t)
    for qt in range(4):
        for k in range(8):
            s = S(p, k >> 2, qt) + (k & 3)
            out.append(f'v_sub_f32 v{s}, v{s}, v{m[qt]}')
    for qt in range(4):
        for r in (3, 2, 1, 0): out.append(f'v_sub_f32 v{NEGM + qt * 4 + r}, 0, v{m[qt]}')
    return out

def epilogue(packed, tb):
    rc = [LREG + 2 * i for i in range(4)]
    prep = [f'v_rcp_f32 v{rc[qt]}, v{Lr(1, qt)}' for qt in range(4)]
    units = []
    for k in range(16):
        u, qt = divmod(k, 4)
        b = tb + (k % 2) * 12
        rd = [f'v_accvgpr_read_b32 v{b + i}, a{O(2 * u + (i >> 2), qt) + (i & 3)}' for i in range(8)]
        if packed: mu = [f'v_pk_mul_f32 v[{b + 2 * i}:{b + 2 * i + 1}], v[{b + 2 * i}:{b + 2 * i + 1}], v[{rc[qt]}:{rc[qt] + 1}] op_sel_hi:[1,0]' for i in range(4)]
        else: mu = [f'v_mul_f32 v{b + i}, v{rc[qt]}, v{b + i}' for i in range(8)]
        cv = [f'v_cvt_pk_bf16_f32 v{b + 8 + i}, v{b + 2 * i}, v{b + 2 * i + 1}' for i in range(4)]
        st = [Ins(cl(f'buffer_store_dwordx4 v[{b + 8}:{b + 11}], v{VOFFO}, {srd(SO)}, s{sOo} offen offset:{qt * 1024} {OPT["ost"]}'), 'Ost')]
        if qt == 3: st.append(f's_add_u32 s{sOo}, s{sOo}, 4096')
        units.append((rd, mu, cv, st))
    return prep, units
def epi_flat(units):
    L = []; first = []; lastrd = []
    for k, (rd, mu, cv, st) in enumerate(units):
        first.append(len(L)); L += rd; lastrd.append(len(L) - 1)
        if k: L += units[k - 1][3]
        L += mu + cv
    L += units[-1][3]
    return L, first, lastrd

SPINS = []
def spin_check(name, load, cmp):
    SPINS.append(f"""L_spin_{name}:
s_mov_b32 s{sT0}, 0x40000
L_spin2_{name}:
s_sleep 1
{load}
s_sub_u32 s{sT0}, s{sT0}, 1
s_cbranch_scc1 L_back_{name}
s_waitcnt vmcnt(0)
{cmp}
s_nop 1
s_cbranch_vccnz L_spin2_{name}
s_branch L_back_{name}""")
    return [cmp, f's_cbranch_vccnz L_spin_{name}', f'L_back_{name}:']

def fallback(p, first=False):
    A = Prog()
    nm = 'f' if first else str(p)
    A(f'L_fb{nm}:')
    A('s_nop 7\ns_nop 7')
    TB = P(1 - p, 0)
    m = [TB + i for i in range(4)]; t = [ETMP + i for i in range(4)]; f = [TB + 4 + i for i in range(4)]
    rm = [rowmax(p, qt, m[qt]) for qt in range(4)]
    for k in range(4): A.extend([rm[qt][k] for qt in range(4)])
    A.extend(xlane('v_max_f32', m, t))
    if not first:
        for qt in range(4): A(f'v_max_f32 v{m[qt]}, 0, v{m[qt]}')
        for qt in range(4): A(f'v_exp_f32 v{f[qt]}, -v{m[qt]}')
    for qt in range(4):
        for k in range(8):
            s = S(p, k >> 2, qt) + (k & 3)
            A(f'v_sub_f32 v{s}, v{s}, v{m[qt]}')
        for r in range(4): A(f'v_sub_f32 v{NEGM + qt * 4 + r}, v{NEGM + qt * 4 + r}, v{m[qt]}')
        if not first: A(f'v_mul_f32 v{Lr(1 - p, qt)}, v{Lr(1 - p, qt)}, v{f[qt]}')
    if not first: A(f's_cmp_lg_u32 s{sMODE}, 0\ns_cbranch_scc1 L_fb{p}_b')
    for qt in range(4):
        for k in range(8):
            s = S(1 - p, k >> 2, qt) + (k & 3)
            A(f'v_sub_f32 v{s}, v{s}, v{m[qt]}')
    if not first:
        A(f'L_fb{p}_b:')
        for T in range(8):
            for qt in range(4):
                b = TB + 8 + ((T * 4 + qt) % 2) * 4
                for r in range(4): A(f'v_accvgpr_read_b32 v{b + r}, a{O(T, qt) + r}')
                for r in range(4): A(f'v_mul_f32 v{b + r}, v{b + r}, v{f[qt]}')
                for r in range(4): A(f'v_accvgpr_write_b32 a{O(T, qt) + r}, v{b + r}')
    A.extend(sm_dense(0 if first else 2 + p, 0, 999))
    A('s_nop 7')
    A(f's_setpc_b64 s[{sRET}:{sRET + 1}]')
    A.fix_hazards()
    return A

def stamp(A, idx, base=64):
    if OPT['stamps'] and not OPT['qtl']: A(f's_memtime s[{base + idx * 2}:{base + idx * 2 + 1}]')
def store_stamps(A, n):
    A('s_memrealtime s[62:63]\ns_waitcnt lgkmcnt(0)')
    A('v_lshrrev_b32 v1, 6, v0\ns_lshl_b32 s50, s2, 2\nv_add_u32 v1, s50, v1\nv_lshlrev_b32 v1, 7, v1')
    A('v_and_b32 v2, 63, v0\nv_cmp_eq_u32 vcc, 0, v2\ns_and_saveexec_b64 s[50:51], vcc')
    for i in range(n):
        for k in range(4): A(f'v_mov_b32 v{4 + k}, s{60 + i * 4 + k}')
        A(f'buffer_store_dwordx4 v[4:7], v1, s[56:59], 0 offen offset:{i * 16}')
        A('s_nop 1')

def code_prefetch(A, start, end, va, vd, n, first=0, tag=''):
    A(f's_getpc_b64 s[50:51]')
    A(f'L_pc{tag}_{start}:')
    if start == KNAME: A(f's_sub_u32 s50, s50, L_pc{tag}_{start}-{start}\ns_subb_u32 s51, s51, 0')
    else: A(f's_add_u32 s50, s50, {start}-L_pc{tag}_{start}\ns_addc_u32 s51, s51, 0')
    A(f'v_lshlrev_b32 v{va}, 7, v0')
    if first: A(f'v_add_u32 v{va}, {first * 0x8000}, v{va}')
    for i in range(n):
        A(f'v_min_u32 v{va + 1}, {end}-{start}-4, v{va}')
        A(f'global_load_dword v{vd + i}, v{va + 1}, s[50:51]', tag='pf')
        if i + 1 < n: A(f'v_add_u32 v{va}, 0x8000, v{va}')

DEF_V = []; DEF_S = []
def setup(A):
    A('s_cmp_ge_u32 s2, 256\ns_cbranch_scc1 L_end')
    A(f"""s_bfe_u32 s48, s2, 0x10002
s_mul_i32 s50, s48, 40
s_add_u32 s52, s0, s50
s_addc_u32 s53, s1, 0
s_load_dwordx2 s[{SX}:{SX+1}], s[52:53], 0
s_load_dwordx2 s[{SW_}:{SW_+1}], s[52:53], 24
s_lshr_b32 s51, s2, 7
s_mul_i32 s51, s51, 40
s_add_u32 s54, s0, s51
s_addc_u32 s55, s1, 0
s_load_dwordx2 s[{SK}:{SK+1}], s[52:53], 8
s_load_dwordx2 s[{SV}:{SV+1}], s[52:53], 16
s_load_dwordx2 s[{SWS}:{SWS+1}], s[54:55], 32
s_load_dwordx2 s[{SO}:{SO+1}], s[0:1], 96
s_load_dwordx4 s[92:95], s[0:1], 80""")
    if OPT['stamps']: A('s_memrealtime s[60:61]')
    stamp(A, 0)
    if OPT['pf'] == '1': code_prefetch(A, KNAME, 'L_code_end', 100, 252, 1)
    elif OPT['pf'] == '2':
        A(f'''s_getpc_b64 s[50:51]
L_pcx:
s_sub_u32 s50, s50, L_pcx-{KNAME}
s_subb_u32 s51, s51, 0
s_lshr_b32 s48, s2, 3
s_cmp_ge_u32 s48, 3
s_cbranch_scc1 L_nopf
s_lshl_b32 s48, s48, 15
v_lshlrev_b32 v100, 7, v0
v_add_u32 v100, s48, v100
v_min_u32 v100, L_code_end-{KNAME}-4, v100''')
        A('global_load_dword v252, v100, s[50:51]', tag='pf')
        A('L_nopf:')
    A(f"""s_and_b32 s46, s2, 6
s_lshl_b32 s46, s46, 1
s_lshr_b32 s48, s2, 6
s_add_u32 s46, s46, s48
s_and_b32 s47, s2, 1
s_lshl_b32 s47, s47, 3
s_bfe_u32 s48, s2, 0x30003
s_add_u32 s47, s47, s48
s_and_b32 s49, s46, 7
v_lshrrev_b32 v1, 6, v0
v_and_b32 v2, 63, v0
v_readfirstlane_b32 s{sW}, v1
v_lshrrev_b32 v97, 4, v2
v_lshrrev_b32 v100, 3, v2
v_lshl_add_u32 v100, v1, 6, v100
v_mul_u32_u24 v100, 1152, v100
s_lshl_b32 s{sW4K}, s{sW}, 12
v_and_b32 v101, 7, v2
v_xor_b32 v101, v101, v97
v_lshl_add_u32 v{VOFFX}, v101, 4, v100
v_xor_b32 v101, 4, v101
v_lshl_add_u32 v102, v101, 4, v100
v_add_u32 v{VOFFX + 1}, {8 * 1152 - 1024}, v102
v_add_u32 v{VOFFX + 2}, {2 * (8 * 1152 - 1024)}, v{VOFFX}
v_add_u32 v{VOFFX + 3}, {3 * (8 * 1152 - 1024)}, v102
v_lshrrev_b32 v100, 5, v2
v_and_b32 v101, 31, v2
v_lshl_add_u32 v103, v1, 3, v100
v_lshlrev_b32 v103, 13, v103
v_lshlrev_b32 v104, 2, v100
v_xor_b32 v104, v104, v101
v_lshl_add_u32 v{VOFFW}, v104, 4, v103
v_xor_b32 v104, 128, v{VOFFW}
v_add_u32 v{VOFFW + 1}, {16384 - 1024}, v104
v_add_u32 v{VOFFW + 2}, {2 * (16384 - 1024)}, v{VOFFW}
v_add_u32 v{VOFFW + 3}, {3 * (16384 - 1024)}, v104
s_mul_i32 s50, s49, 294912
s_lshl_b32 s51, s47, 9
s_mov_b32 s{SX+2}, 294912
s_mov_b32 s{SX+3}, 0x20000
s_sub_u32 s{SW_+2}, {576 * 8192}, s51
s_mov_b32 s{SW_+3}, 0x20000
s_waitcnt lgkmcnt(0)""")
    stamp(A, 1)
    A(f"""s_add_u32 s{SX}, s{SX}, s50
s_addc_u32 s{SX+1}, s{SX+1}, 0
s_add_u32 s{SW_}, s{SW_}, s51
s_addc_u32 s{SW_+1}, s{SW_+1}, 0""")
    A.extend(flat(dma_w(0)) + flat(dma_x(0)) + flat(dma_x(1)) + flat(dma_w(1)))
    A(f"""v_and_b32 v96, 15, v2
v_and_b32 v98, 3, v2
v_bfe_u32 v99, v2, 2, 2
v_lshl_add_u32 v100, v97, 3, v99
v_lshlrev_b32 v101, 6, v99
v_lshl_add_u32 v101, v100, 9, v101
v_lshl_add_u32 v101, v98, 4, v101
v_add_u32 v{WADDR}, {BLK}, v101""")
    for T in range(1, 4): A(f'v_xor_b32 v{WADDR + T}, {T * 64}, v{WADDR}')
    A(f"""v_lshrrev_b32 v100, 1, v96
v_xor_b32 v100, v100, v97
v_lshlrev_b32 v100, 4, v100
v_lshl_add_u32 v100, v96, 7, v100
v_lshl_add_u32 v100, v1, 12, v100
v_add_u32 v{XADDR}, {2 * BLK}, v100
v_xor_b32 v{XADDR + 1}, 64, v{XADDR}
v_add_u32 v{XADDR + 2}, {4 * BLK}, v{XADDR}
v_add_u32 v{XADDR + 3}, {4 * BLK}, v{XADDR + 1}""")
    if OPT['su'] == '2': A.extend(flat(dma_w(2)) + flat(dma_x(2)))
    if OPT['su'] == '0':
        A.extend(flat(dma_x(2)) + flat(dma_w(2)) + flat(dma_w(3)))
        if OPT['pf'] == '1': code_prefetch(A, KNAME, 'L_code_end', 100, 253, 2, first=1, tag='b')
    KVS = f"""s_lshl_b32 s50, s49, 23
s_lshl_b32 s51, s47, 19
s_add_u32 s50, s50, s51
s_add_u32 s{SK}, s{SK}, s50|s_addc_u32 s{SK+1}, s{SK+1}, 0
s_mov_b32 s{SK+2}, 0x80000
s_mov_b32 s{SK+3}, 0x20000
s_add_u32 s{SV}, s{SV}, s50|s_addc_u32 s{SV+1}, s{SV+1}, 0
s_mov_b32 s{SV+2}, 0x80000
s_mov_b32 s{SV+3}, 0x20000"""
    ne = int(OPT['l2e'])
    if ne:
        A(KVS.replace('|', '\n')); KVS = ''
        A(f'v_lshlrev_b32 v100, 7, v2\nv_mul_u32_u24 v101, {ne * 1024}, v1\nv_add_u32 v100, v100, v101\nv_cmp_le_u32 vcc, {ne * 8}, v2\nv_cndmask_b32 v100, v100, -1, vcc')
        A(f's_mov_b32 s50, {8 * 8192}\ns_mov_b32 s51, {6 * 8192}')
        A(cl(f'buffer_load_dword a254, v100, {srd(SK)}, s50 offen {OPT["l2p"]}'), tag='l2')
        A(cl(f'buffer_load_dword a253, v100, {srd(SV)}, s51 offen {OPT["l2p"]}'), tag='l2')
    V = DEF_V; a, b, c, d, l15, g = 92, 93, 94, 95, 61, 62
    V += [f'v_add_u32 v{WADDR + 4 + T}, {6 * BLK}, v{WADDR + T}' for T in range(4)]
    V += f"""v_lshlrev_b32 v{VOFFO}, 4, v2
v_and_b32 v{l15}, 15, v2
v_lshrrev_b32 v{g}, 4, v2
v_lshlrev_b32 v{a}, 11, v1
v_lshl_add_u32 v{a}, v{g}, 8, v{a}
v_lshl_add_u32 v{b}, v1, 3, v{g}""".split('\n')
    for o in range(2):
        V += f"""v_add_u32 v{c}, {4 * o}, v{b}
v_and_b32 v{d}, 15, v{c}
v_xor_b32 v{d}, v{d}, v{l15}
v_lshl_add_u32 v{VOFFK + o}, v{d}, 4, v{a}
v_and_b32 v{d}, 7, v{c}
v_lshlrev_b32 v{d}, 1, v{d}
v_xor_b32 v{d}, v{d}, v{l15}
v_lshl_add_u32 v{VOFFV + o}, v{d}, 4, v{a}""".split('\n')
    V += [f'v_lshlrev_b32 v{a}, 12, v1', f'v_lshl_add_u32 v{a}, v{g}, 8, v{a}']
    for n in range(4):
        V += f"""v_add_u32 v{c}, {4 * n}, v{g}
v_xor_b32 v{d}, v{c}, v{l15}
v_lshl_add_u32 v{VSK + n}, v{d}, 4, v{a}
v_and_b32 v{d}, 7, v{c}
v_lshlrev_b32 v{d}, 1, v{d}
v_xor_b32 v{d}, v{d}, v{l15}
v_lshl_add_u32 v{VSV + n}, v{d}, 4, v{a}""".split('\n')
    V += [f'v_xor_b32 v{a}, v{g}, v{l15}', f'v_lshlrev_b32 v{a}, 4, v{a}', f'v_lshl_add_u32 v{KADDR}, v{l15}, 8, v{a}']
    V += [f'v_xor_b32 v{KADDR + u}, {u * 64}, v{KADDR}' for u in range(1, 4)]
    V += f"""v_lshrrev_b32 v{a}, 2, v2
v_and_b32 v{b}, 7, v{a}
v_lshlrev_b32 v{b}, 5, v{b}
v_lshl_add_u32 v{b}, v{a}, 8, v{b}
v_and_b32 v{c}, 3, v2
v_lshl_add_u32 v{b}, v{c}, 3, v{b}
v_add_u32 v{VADDR}, 0x10000, v{b}
v_mul_u32_u24 v{a}, 384, v{a}
v_lshl_add_u32 v{a}, v{c}, 3, v{a}
v_mul_u32_u24 v{b}, 96, v1
v_add_u32 v{JADDR}, v{a}, v{b}""".split('\n')
    V += [f'v_xor_b32 v{VADDR + T}, {T * 32}, v{VADDR}' for T in range(1, 8)]
    for n in range(3):
        t = VOFFJ + n
        V += f"""v_add_u32 v{d}, {64 * n}, v2
v_mul_u32_u24 v{t}, 2731, v{d}
v_lshrrev_b32 v{t}, 16, v{t}
v_mul_u32_u24 v{CW1}, 24, v{t}
v_sub_u32 v{d}, v{d}, v{CW1}
v_lshl_add_u32 v{t}, v1, 3, v{t}
v_mul_u32_u24 v{t}, 1152, v{t}
v_lshl_add_u32 v{t}, v{d}, 4, v{t}
v_subrev_u32 v{t}, {n * 1024}, v{t}""".split('\n')
    V += [f'v_mov_b32 v{CR}, 0']
    S_ = f"""s_and_b32 s50, s2, 127
s_mul_i32 s50, s50, 36864
s_add_u32 s{SWS}, s{SWS}, s50|s_addc_u32 s{SWS+1}, s{SWS+1}, 0
s_mov_b32 s{SWS+2}, 36864
s_mov_b32 s{SWS+3}, 0x20000
s_lshl_b32 s{sW2K}, s{sW}, 11
{KVS}
s_mov_b32 s{sWS}, s{SO}
s_mov_b32 s{sWS+1}, s{SO+1}
s_mov_b32 s{sOUT}, s92
s_mov_b32 s{sOUT+1}, s93
s_lshr_b32 s50, s2, 7
s_lshl_b32 s50, s50, 9
s_and_b32 s51, s2, 64
s_add_u32 s50, s50, s51
s_bfe_u32 s51, s2, 0x10002
s_lshl_b32 s51, s51, 5
s_add_u32 s50, s50, s51
s_bfe_u32 s51, s2, 0x30003
s_lshl_b32 s51, s51, 2
s_add_u32 s50, s50, s51
s_and_b32 s51, s2, 3
s_add_u32 s50, s50, s51
s_mul_i32 s50, s50, 9216
s_add_u32 s50, s50, {WS_WO}
s_add_u32 s{SWD}, s{SO}, s50|s_addc_u32 s{SWD+1}, s{SO+1}, 0
s_mov_b32 s{SWD+2}, {3 * 128 * 9216 + 9216}
s_mov_b32 s{SWD+3}, 0x20000
s_lshl_b32 s50, s2, 7
s_lshl_b32 s51, s{sW}, 2
s_add_u32 s50, s50, s51
s_add_u32 s50, s50, {WS_FL}
s_add_u32 s{SFL}, s{SO}, s50|s_addc_u32 s{SFL+1}, s{SO+1}, 0
s_mov_b32 s{SFL+2}, 68
s_mov_b32 s{SFL+3}, 0x20000""".split('\n')
    if OPT['stamps']:
        S_ += [f's_add_u32 s56, s{SO}, {WS_STAMP}|s_addc_u32 s57, s{SO+1}, 0', 's_mov_b32 s58, 0x100000', 's_mov_b32 s59, 0x20000']
    S_ += f"""s_lshl_b32 s50, s46, 2
s_add_u32 s50, s50, s{sW}
s_lshl_b32 s50, s50, 19
s_lshl_b32 s51, s47, 15
s_add_u32 s50, s50, s51
s_add_u32 s{SO}, s{SO}, s50|s_addc_u32 s{SO+1}, s{SO+1}, 0
s_mov_b32 s{SO+2}, 32768
s_mov_b32 s{SO+3}, 0x20000
s_mov_b32 s{sSC}, {f2i(SCALE):#x}
s_mov_b32 s{sTHR}, {f2i(2.0 ** 24):#x}
s_mov_b32 s{sLOW}, {f2i(2.0 ** -24):#x}
s_mov_b32 s{sOo}, 0
s_mov_b32 s{sDBG}, s94
s_mov_b32 s{sDBG+1}, s95
s_mov_b32 s{sKo}, {8 * 8192}
s_mov_b32 s{sVo}, {6 * 8192}
s_mov_b32 s{sCnt}, 3
s_mov_b32 s{sHead}, 0""".split('\n')
    DEF_S.extend(x for x in S_ if x)
    if OPT['jo'] in '67' or (OPT['jo'] == '8' and OPT['j8'] == '0'):
        A.extend(DEF_V); DEF_V.clear()
        for x in DEF_S: A.extend(x.split('|'))
        DEF_S.clear()

def x_reads(pc):
    c = pc >> 1; blk = xblock(pc)
    return [Ins(f'ds_read_b128 v[{XF(2 * c + ks, 2 * (pc & 1) + qq)}:{XF(2 * c + ks, 2 * (pc & 1) + qq) + 3}], v{XADDR + ks + (2 if blk == 6 else 0)} offset:{(0 if blk == 6 else (blk - 2) * BLK) + qq * 2048}', f'rX{pc}')
            for ks in range(2) for qq in range(2)]
def w_read(t, h, T, dst):
    blk = wblock(t)
    ad = WADDR + (T >> 1) if blk <= 4 else WADDR + 4 + (T >> 1)
    off = (blk - 1 if blk <= 4 else blk - 7) * BLK + h * 256 + (T & 1) * 8
    d = int(dst[1:])
    return [Ins(f'ds_read_b64_tr_b16 {dst[0]}[{d + 2 * s}:{d + 2 * s + 1}], v{ad} offset:{off + s * 2048}', f'rW{t}') for s in range(2)]
def w_reads(t):
    out = []
    for f in range(16): out += w_read(t, f >> 3, f & 7, f'a{WF((16 * t + f) % NWS)}')
    return out
UH = ['a160', 'a192', 'a160', 'a192', 'a0', 'a32', 'a0', 'a32']
def uw(n, k, tt): return f'{UH[n][0]}{int(UH[n][1:]) + (k * 2 + tt) * 4}'
def unit_order(n):
    if not OPT['cqb']: return [(k, tt) for k in range(4) for tt in range(2)]
    if n == 0: return [(0, 0), (1, 0), (0, 1), (1, 1), (2, 0), (3, 0), (2, 1), (3, 1)]
    return [(k, tt) for tt in range(2) for k in range(4)]
def unit_mf(n):
    if not OPT['cqb']: return [(k, tt, qt) for k in range(4) for tt in range(2) for qt in range(4)]
    if n == 0: return [(2 * hf + k, tt, qt) for hf in range(2) for tt in range(2) for qt in range(4) for k in range(2)]
    return [(k, tt, qt) for tt in range(2) for qt in range(4) for k in range(4)]
def unit_reads(n):
    h, u = n >> 2, n & 3
    out = []
    for k, tt in unit_order(n): out += w_read(14 + k, h, 2 * u + tt, uw(n, k, tt))
    return out
def conv(n):
    h, u = n >> 2, n & 3
    V = []; pend = []
    for tt in range(2):
        for qt in range(4):
            acc = QACC(h, 2 * u + tt, qt)
            if h == 1: b = int(acc[1:]); rd = []
            else:
                b = 84 + ((n * 8 + tt * 4 + qt) % 3) * 4
                rd = [f'v_accvgpr_read_b32 v{b + r}, a{int(acc[1:]) + r}' for r in range(4)]
            mu = [f'v_mul_f32 v{b + r}, s{sSC}, v{b + r}' for r in range(4)]
            cv = [f'v_cvt_pk_bf16_f32 v{b}, v{b}, v{b + 1}', f'v_cvt_pk_bf16_f32 v{b + 1}, v{b + 2}, v{b + 3}']
            V += [Ins(x) for x in rd + mu + pend + cv]
            pend = [f'v_accvgpr_write_b32 a{Q(h, qt, u) + 2 * tt + r}, v{b + r}' for r in range(2)]
    V += [Ins(x) for x in pend]
    return V, [], V

def q_phase(A):
    stamp(A, 2)
    A('WAITVM X0+X1+W0+W1\ns_barrier')
    stamp(A, 3)
    SU2 = OPT['su'] == '2'
    if OPT['su'] != '1':
        xr = x_reads(0) + x_reads(1); wr_ = w_reads(0)
        A.extend(xr[:2] + xr[4:6] + wr_[:8] + xr[2:4] + xr[6:] + wr_[8:])
    else:
        rd = x_reads(0) + x_reads(1) + w_reads(0)
        dj = dma_x(2) + dma_w(2) + dma_w(3)
        for i in range(12):
            A.extend(flat([dj[i]])); A.extend(rd[i * 40 // 12:(i + 1) * 40 // 12])
    def JR(i): return f'a{224 + 4 * i}' if i < 8 else 'v92'
    def jstore(i):
        r, n = divmod(i, 3)
        pre = [f's_add_u32 s{sT0}, s{sW}, {4 * r}', f's_mul_i32 s{sMODE}, s{sT0}, 43', f's_lshr_b32 s{sMODE}, s{sMODE}, 7',
               f's_mul_i32 s{sMODE}, s{sMODE}, {128 * 9216 - 9216}', f's_mul_i32 s{sT0}, s{sT0}, 3072', f's_add_u32 s{sJ}, s{sT0}, s{sMODE}'] if n == 0 else []
        return [(pre, Ins(cl(f'buffer_store_dwordx4 {rng(JR(i), 4)}, v{VOFFO}, {srd(SWD)}, s{sJ} offen offset:{n * 1024} {OPT["st"]}'), 'Jst'), [])]
    for t in range(14):
        mf = []
        for f in range(16):
            for qt in range(4):
                acc = QACC(f >> 3, f & 7, qt)
                mf.append(mfma(acc, f'a{WF((16 * t + f) % NWS)}', f'v{XF(t, qt)}', acc if t else '0'))
        G = Gaps(64)
        groups = []
        J4 = OPT['jo'] in '45678'; J5 = OPT['jo'] in '5678'; J6 = OPT['jo'] in '67'; J8 = OPT['jo'] == '8'
        JD, JC, JRD = ((2, 5, 8), (3, 6, 9), (4, 7, 10)) if OPT['j8'] == '1' else ((1, 4, 7), (2, 5, 8), (3, 6, 9))
        if t in (JD if J8 else (((1, 5, 9) if J6 else (2, 5, 9)) if J4 else (3, 7, 11))):
            r = JD.index(t) if J8 else t // 4
            groups += [[([f's_mov_b32 s{sWe}, {r * 384}', f's_mul_i32 m0, s{sW}, 3072'] if n == 0 else [],
                         Ins(f'buffer_load_dwordx4 v{VOFFJ + n}, {srd(SWS)}, s{sWe} offen offset:{n * 1024} nt lds', f'J{r}'), []) for n in range(3)]]
        if SU2 and t < 4:
            groups += {0: [dma_x(3), dma_w(3), dma_x(4)], 1: [dma_w(4), dma_x(5), dma_w(5)], 2: [dma_x(6), dma_w(6), dma_w(7), dma_x(7)], 3: [dma_w(8), dma_x(8)]}[t]
        else:
            if t == 0: groups += [dma_x(3), dma_x(4), dma_w(4)]
            if t == 1: groups += [dma_w(5)]
            if 1 <= t <= 12: groups += [dma_w(t + 5)]
            if t + 5 < 18: groups += [dma_x(t + 5)]
        if t == 13 and not J4: groups += [dma_vv(0), dma_kk(1)]
        if t == 13 and J5: groups += [dma_kk(0), dma_vv(0)] if not J8 else [dma_vv(0), dma_kk(1)]
        if t == 11 and J8: groups = [groups[0], dma_kk(0), groups[1]]
        ngr = len(groups)
        gl = {4: [[5, 8, 11, 14], [18, 22, 26, 30], [34, 38, 42, 46], [51, 54, 57, 60]],
              3: [[2, 7, 12, 17], [24, 29, 34, 39], [46, 51, 56, 60]],
              2: [[2, 10, 18, 26], [34, 42, 50, 58]], 1: [[18, 30, 42, 54]], 0: []}[ngr]
        if SU2 and t == 0: gl = [[5, 10, 15, 20], [26, 31, 36, 41], [47, 52, 56, 60]]
        if J6 and t in ((7, 11) if OPT['jo'] == '6' else (3, 7, 11)): gl = [[2, 6, 10, 14], [20, 24, 28, 32]]
        if J6 and t in ((8, 12) if OPT['jo'] == '6' else (4, 8, 12)): gl = [[28, 32, 36, 40], [46, 50, 55, 60]]
        if J4 and not J5 and t == 12: gl = [[2, 6, 10, 14], [20, 24, 28, 32]]
        dg = [g for gr, pos in zip(groups, gl) for g in pos[:len(gr)]]
        if J5:
            JP = {'5': {4: [(0, 30)], 5: [(1, 43)], 6: [(2, 30)], 8: [(3, 30)], 9: [(4, 43)], 10: [(5, 30)], 11: [(6, 62)], 12: [(7, 22), (8, 54)]},
                  '6': {7: [(0, 40), (1, 42), (2, 44), (3, 51), (4, 53), (5, 55)], 11: [(6, 40), (7, 42), (8, 44)]},
                  '8': {JRD[0]: [(0, 54)], JRD[0] + 1: [(1, 43)], JRD[0] + 2: [(2, 30)], JRD[1]: [(3, 54)], JRD[1] + 1: [(4, 43)], JRD[1] + 2: [(5, 30)], JRD[2]: [(6, 30), (7, 46), (8, 61)]},
                  '7': {3: [(0, 40), (1, 42), (2, 44)], 7: [(3, 40), (4, 42), (5, 44)], 11: [(6, 40), (7, 42), (8, 44)]}}[OPT['jo']]
            for i, g in JP.get(t, []):
                G.place_dma(jstore(i), [g]); dg.append(g)
            if t == (JRD[2] if J8 else (11 if J6 else 12)):
                fz = 54 if J8 else (46 if J6 else 38)
                G.v[fz - 2].append(f'v_mov_b32 v{VPA}, 0'); dg.append(fz)
                G.mem[fz].append(Ins(cl(f'buffer_store_dword v{VPA}, v{VOFFO}, {srd(SFL)}, 0 offen {OPT["st"]}'), 'Fz'))
        if J4 and not J5 and t in (12, 13):
            for i, g in {12: [(0, 44), (1, 52), (2, 60)], 13: [(3, 8), (4, 16), (5, 24), (6, 34), (7, 44), (8, 54)]}[t]:
                G.place_dma(jstore(i), [g]); dg.append(g)
            if t == 13:
                G.v[57].append(f'v_mov_b32 v{VPA}, 0'); dg.append(59)
                G.mem[59].append(Ins(cl(f'buffer_store_dword v{VPA}, v{VOFFO}, {srd(SFL)}, 0 offen {OPT["st"]}'), 'Fz'))
        L2 = [int(x) for x in OPT['l2'].split('.')] if OPT['l2'] else []
        for i in [i for i, x in enumerate(L2) if x == t]:
            if i == 0:
                G.v[4] += ['v_lshlrev_b32 v95, 7, v2', 'v_lshl_add_u32 v95, v1, 11, v95']
                G.v[5] += [f'v_lshrrev_b32 v{VOFFO}, 4, v2', f'v_lshl_add_u32 v95, v{VOFFO}, 24, v95']
                G.v[6] += [f'v_lshlrev_b32 v{VOFFO}, 4, v2']
            sr, base = (SK, 8) if i % 2 == 0 else (SV, 6)
            g = 14 if (i + 1 < len(L2) and L2[i + 1] == t) else 46
            while g in dg or G.sc[g - 1]: g += 1
            G.sc[g - 1].append(f's_mov_b32 s{sT0}, {(base + int(OPT["l2e"]) // 2 + i // 2) * 8192}')
            x = Ins(cl(f'buffer_load_dword a255, v95, {srd(sr)}, s{sT0} offen {OPT["l2p"]}'), 'l2'); x.wr = set() if i + 1 < len(L2) else x.wr
            G.mem[g].append(x); dg.append(g)
        free = [g for g in range(64) if g not in dg]
        late = SU2 and t < 2
        if not late: G.sc[0].append(f'WAITVM X{t + 2}')
        rds = [] if late else x_reads(t + 2)
        if t + 5 < 18 and not late:
            xi = [i for i, gr in enumerate(groups) if gr[0][1].tag == f'X{t + 5}'][0]
            G.sc[gl[xi][0] - 3].append(f'WAITLG rX{t + 2}')
        if t in (JRD if J8 else ((3, 7, 11) if J4 else (5, 9, 13))):
            for n in range(3):
                d = JR((JRD.index(t) if J8 else t // 4 - (0 if J4 else 1)) * 3 + n)
                rds += [Ins(f'ds_read_b64_tr_b16 {d[0]}[{int(d[1:]) + 2 * sx}:{int(d[1:]) + 2 * sx + 1}], v{JADDR} offset:{n * 32 + sx * 16 * 384}') for sx in range(2)]
        if t == 0: G.sc[2].append('WAITLG rX1')
        rds += w_reads(t + 1) if t < 13 else unit_reads(0)[:8]
        if OPT['wsp'] and len(rds) > 30:
            fr = [g for g in free if g < 54]
            if len(fr) > len(rds): free = fr[:6] + [fr[6 + (i * (len(fr) - 6)) // (len(rds) - 6)] for i in range(len(rds) - 6)]
        for r, g in zip(rds, free): G.mem[g].append(r)
        if late:
            lp = [g for g in free if g >= 48][:4]
            G.sc[lp[0]].append(f'WAITVM X{t + 2}')
            for r, g in zip(x_reads(t + 2), lp): G.mem[g].append(r)
        for gr, g in zip(groups, gl): G.place_dma(gr, g)
        if J8 and t % 2 == 1 and (t in JC or t in JRD[:2]):
            G.sc[62] += [f'WAITVM {f"J{JC.index(t)}" if t in JC else "none"} lg0', 's_barrier']
        if t % 2 == 0 or t == 13 or (SU2 and t in (1, 3)):
            c = t // 2 + 1
            tags = f'W{2 * c}+W{2 * c + 1}' if t != 13 else 'W16+W17+X16+X17'
            if SU2 and t < 4: tags = f'W{t + 2}'
            if J8:
                if t in JC: tags += f'+J{JC.index(t)}'
            elif t in ((2, 6, 10) if J4 else (4, 8, 12)): tags += f'+J{t // 4 - (0 if J4 else 1)}'
            G.sc[62] += [f'WAITVM {tags} lg0', 's_barrier']
        if t == 0 and OPT['su'] == '1':
            P_ = Prog(); code_prefetch(P_, KNAME, 'L_code_end', 8, 252, 2, first=1, tag='b')
            G.v[63] += [Ins(x.text.replace('global_load_dword v', 'global_load_dword a'), x.tag) for x in P_.L]
        if t < 3 and DEF_V:
            n0, n1 = ([0, 56, len(DEF_V), len(DEF_V)] if J4 else [0, 36, 80, len(DEF_V)])[t:t + 2]
            for i, x in enumerate(DEF_V[n0:n1]): G.v[(i * 62) // (n1 - n0)].append(x)
        if t in (0, 1, 2, 3, 4, 6) and DEF_S:
            for g in range(41, 62):
                if DEF_S and not G.sc[g]: G.sc[g] += DEF_S.pop(0).split('|')
            if t == 6:
                for g in range(4, 40):
                    pass
        if t in (8, 10) and DEF_S:
            for g in range(41, 62):
                if DEF_S and not G.sc[g]: G.sc[g] += DEF_S.pop(0).split('|')
        if t == 11: assert not DEF_S, len(DEF_S)
        if OPT['qtl']:
            G.v[3].append('s_memtime s[98:99]'); G.v[40].append(f's_mov_b32 s{64 + t}, s98')
        A.extend(G.weave(mf))
    stamp(A, 4)
    gsu = f"""s_and_b32 s50, s2, 6
s_lshl_b32 s50, s50, 3
s_lshr_b32 s51, s2, 5
s_lshl_b32 s51, s51, 1
s_add_u32 s50, s50, s51
s_lshr_b32 s51, s{sW}, 1
s_add_u32 s50, s50, s51
s_lshl_b32 s50, s50, 19
s_and_b32 s51, s2, 1
s_lshl_b32 s51, s51, 18
s_add_u32 s50, s50, s51
s_and_b32 s51, s{sW}, 1
s_lshl_b32 s51, s51, 11
s_add_u32 s50, s50, s51
s_add_u32 s{SGO}, s{sWS}, s50|s_addc_u32 s{SGO+1}, s{sWS+1}, 0
s_mov_b32 s{SGO+2}, {262144 - 2048}
s_and_b32 s50, s2, 4
s_bfe_u32 s51, s2, 0x20003
s_add_u32 s50, s50, s51
s_lshl_b32 s50, s50, 1
s_and_b32 s51, s2, 1
s_add_u32 s50, s50, s51
s_mul_i32 s50, s50, {64 * 9216}
s_add_u32 s50, s50, {WS_WO}
s_add_u32 s{SGW}, s{sWS}, s50|s_addc_u32 s{SGW+1}, s{sWS+1}, 0
s_mov_b32 s{SGW+2}, {64 * 9216}""".split('\n')
    NG = 288
    G = Gaps(NG + 8)
    mf = []; ref = []
    UR = [unit_reads(n) for n in range(8)]
    XR = x_reads(16) + x_reads(17)
    K0 = k_reads(0); K1 = k_reads(1)
    CV_ = [conv(n) for n in range(8)]
    ref += XR
    for n in range(8):
        h, u = n >> 2, n & 3
        m = [Ins(mfma(QACC(h, 2 * u + tt, qt), uw(n, k, tt), f'v{XF(14 + k, qt)}', QACC(h, 2 * u + tt, qt))) for k, tt, qt in unit_mf(n)]
        mf += m
        ref += (UR[n][8:] if n == 0 else UR[n]) + m + CV_[n][2]
    m = [Ins(x) for x in qk_mfmas(0)]
    mf += m; ref += K0 + m + K1
    if OPT['jo'] == '8':
        for i, jobs in enumerate([dma_vv(1), dma_kk(2), dma_vv(2)]):
            G.place_dma(jobs, [34 + 16 * (4 * i + x) for x in range(4)])
        kv = {1: 34}
    elif OPT['jo'] in '567':
        for i, jobs in enumerate([dma_kk(1), dma_vv(1), dma_kk(2), dma_vv(2)]):
            G.place_dma(jobs, [20 + 13 * (4 * i + x) for x in range(4)])
        kv = {1: 20 + 13 * 4}
    elif OPT['jo'] == '4':
        k0 = int(OPT['kv0'])
        for i, jobs in enumerate([dma_kk(0), dma_vv(0), dma_kk(1), dma_vv(1), dma_kk(2)]):
            st_ = (215 - k0) // 20
            G.place_dma(jobs, [k0 + st_ * (4 * i + x) for x in range(4)])
        kv = {1: k0 + st_ * 12}
    else:
        JS = [jstore(i) for i in range(9)]
        ref = [x[0][1] for x in JS] + ref
        order = [6, 8, 7, 0, 1, 2, 3, 4, 5]
        jp = [17, 24, 48, 76, 100, 124, 152, 176, 200]; fz = 220; kv = {0: 34, 1: 82, 2: 130, 3: 182}
        for i, g in zip(order, jp): G.place_dma(JS[i], [g])
        G.v[fz - 2].append(f'v_mov_b32 v{VPA}, 0')
        G.mem[fz].append(Ins(cl(f'buffer_store_dword v{VPA}, v{VOFFO}, {srd(SFL)}, 0 offen {OPT["st"]}'), 'Fz'))
        for i, jobs in enumerate([dma_kk(0), dma_vv(1), dma_kk(2), dma_vv(2)]):
            G.place_dma(jobs, [kv[i] + 11 * x for x in range(4)])
    G.place_dma(dma_kk(3), [250, 258, 266, 274])
    G.sc[kv[1] - 3].append('WAITLG rX16+rX17')
    gi = 260
    for x in gsu:
        while G.sc[gi]: gi += 1
        G.sc[gi] += x.split('|')
    BAR = 32 * 7 + 9
    G.sc[BAR] += ['WAITVM KK0 lg0', 's_barrier']
    def put(ins, g, lim=None):
        while G.mem[g] or (BAR - 5 <= g < BAR): g += 1
        assert lim is None or g <= lim, (ins.text, g, lim)
        G.mem[g].append(ins); return g
    cur = 0
    for n in range(8):
        V, D, _ = CV_[n]
        g0 = 32 * (n + 1) + 1; span = 30
        vp = [g0 + (i * span) // len(V) for i in range(len(V))]
        for x, g in zip(V, vp): G.v[g].append(x)
        for i, d in D: cur = put(d, max(cur, vp[i] + 1))
    g = 0
    for r in ((XR[:4] + UR[0][8:12] + XR[4:] + UR[0][12:]) if OPT['cqb'] else (XR[:2] + XR[4:6] + UR[0][8:12] + XR[2:4] + XR[6:] + UR[0][12:])): g = put(r, g)
    for n in range(1, 8):
        for i, r in enumerate(UR[n]):
            g = put(r, max(g, 32 * (n - 1) + (i * 3) // 2), lim=min((32 * n + 16 * (i // 8) - 5 + (i % 8) // 2) if OPT['cqb'] else 32 * n + 2 * i - 5, BAR - 6))
    g = BAR
    for i, r in enumerate(K0): g = put(r, max(g, BAR + 2 * i), lim=(256 + 16 * (i // 4) - 5 + i % 4) if OPT['cqk'] else 256 + 4 * i - 6)
    for i, r in enumerate(K1): g = put(r, max(g, (256 + 16 * (i // 4) + 13 + i % 4) if OPT['cqk'] else 256 + 4 * i + 4))
    zero = [Ins(f'v_mov_b64 v[{NEGM + 2 * i}:{NEGM + 2 * i + 1}], 0') for i in range(8)]
    ones = [Ins(x) for x in f'v_and_b32 v{ONES}, 3, v2|v_cmp_eq_u32 vcc, 0, v{ONES}|v_mov_b32 v{ONES + 1}, 0x3f803f80|v_cndmask_b32 v{ONES}, 0, v{ONES + 1}, vcc|v_mov_b32 v{ONES + 1}, v{ONES}|v_mov_b64 v[{ONES + 2}:{ONES + 3}], v[{ONES}:{ONES + 1}]'.split('|')]
    sm0 = [Ins(x) for x in sm_dense(0, 0, 68)]
    ref += ones + zero + sm0
    NH = int(OPT['nh'])
    for i, x in enumerate(sm0[:NH]): G.v[264 + (i * 23) // NH if i < 5 else 280 + ((i - 5) * 8) // max(NH - 5, 1)].append(x)
    G.v[290] += ones + zero[:4] + sm0[NH:] + zero[4:]
    if OPT['stamps'] and not OPT['qtl']: G.sc[257].append('s_memtime s[74:75]')
    if OPT['qtl']:
        for n in range(9): G.v[32 * n + 3].append('s_memtime s[98:99]'); G.v[32 * n + 25].append(f's_mov_b32 s{78 + n}, s98')
    out = [I(x) for x in G.weave(mf)]
    check_order(ref, out, 'QB')
    A.extend(out)

def seg_name(j):
    if j == 0 or (j == 32 and not OPT['w1']): return 's0'
    if j == 32: return 's32'
    if j == 31: return 'sp31'
    if j == 63: return 'fin31'
    if j >= 56: return f'p{j}'
    return f'r{j % 8}'

def gen():
    A = Prog()
    setup(A)
    q_phase(A)
    stamp(A, 6)
    if OPT['tl']: A('s_mov_b32 s97, 0')
    def tagsof(which, t):
        if which == 'V' and t < 6: return f'VV{t // 2}'
        if which == 'K' and t < 8: return f'KK{t // 2}'
        return f'{which}{t}'
    GA = [4, 5, 6]
    def WB(c, n, u): return 128 + ((9 * c + n) % 4) * 16 + u * 4
    def GACC(n, mm): i = n * 2 + mm; return 64 + i * 4 if i < 16 else 200 + (i - 16) * 4
    def OB(s, mm): return 128 + ((s + 8) % 16) * 8 + mm * 4
    def g_wreads(c, n):
        out = []
        for u in range(4):
            ad = (c % 4) * 36864 + u * 9216 + n * 1024
            out.append(Ins(f'ds_read_b128 v[{WB(c, n, u)}:{WB(c, n, u) + 3}], v{GA[ad >> 16]} offset:{ad & 0xffff}', f'rG{c}'))
        return out
    def g_oloads(s):
        gen_, i, u = s >> 5, (s >> 2) & 7, s & 3
        off, sr = ((2 * i + gen_) * 16384 + u * 4096, SGO) if s < 64 else (i * 32768 + u * 4096, SG2O)
        return [([f's_mov_b32 s{sWe}, {off}'] if mm == 0 else [],
                 Ins(cl(f'buffer_load_dwordx4 a[{OB(s, mm)}:{OB(s, mm) + 3}], v{VSK_[mm]}, {srd(sr)}, s{sWe} offen {OPT["g_o"]}'), f'GO{s}'), []) for mm in range(2)]
    def g_w8(a, tag):
        return [([f's_mov_b32 s{sKo}, {a}', f's_add_u32 m0, s{sW2K}, {a}'] if o == 0 else [],
                 Ins(cl(f'buffer_load_dwordx4 v{VOFFK}, {srd(SGW)}, s{sKo} offen offset:{o * 1024} {OPT["g_w"]} lds'), tag), []) for o in range(2)]
    def g_wchunk(c):
        out = []
        for n in range(9):
            pre = [f's_add_u32 s{sKo}, s{sXo}, {(c % 16) * 36864 + (n // 4) * 4096}', f's_add_u32 m0, s{sXo}, {(c % 4) * 36864 + (n // 4) * 4096}'] if n % 4 == 0 else []
            out.append((pre, Ins(cl(f'buffer_load_dwordx4 v{VOFFO}, {srd(SGW if c < 16 else SG2W)}, s{sKo} offen offset:{(n % 4) * 1024} {OPT["g_w"]} lds'), f'GW{c}'), []))
        return out
    poll1 = f'buffer_load_dword v{VPOLL}, v{VPA}, {srd(SFP)}, 0 offen sc1'
    poll2 = f'buffer_load_dword v{VPOLL}, v{VPA}, {srd(SFP)}, 0 offen offset:16 sc1'
    pollc = f'buffer_load_dword v{VPOLL}, v{VPA}, {srd(SWS)}, 0 offen sc1'
    polld = f'buffer_load_dword v{VPOLL}, v{VPP}, {srd(SFP)}, 0 offen offset:64 sc1'
    ne1 = f'v_cmp_ne_u32 vcc, 1, v{VPOLL}'
    qcopy = [f'v_accvgpr_mov_b32 a{128 + i}, a{192 + i}' for i in range(64)]

    POST = []
    def fill(G, j):
        jj = j & 31; nm = seg_name(j); p = j & 1
        if j % 2 == 0:
            tags = [tagsof('V', j), tagsof('V', j + 1), tagsof('K', j + 2), tagsof('K', j + 3)] + (['Jst', 'Fz'] if j == 6 else [])
            G.sc[0] += [f'WAITVM {"+".join(tags)} lg0', 's_barrier']
        if j < 63:
            for pos, x in softmax_stream(j):
                if pos >= NG: G.v[pos - NG].append(x)
            for pos, x in softmax_stream(j + 1):
                if pos < NG: G.v[pos].append(x)
        if jj == 0:
            G.v[20].append(f'v_max3_f32 v{CT}, v{Lr(p, 0)}, v{Lr(p, 1)}, v{Lr(p, 2)}')
            G.v[22].append(f'v_min3_f32 v{VPG}, v{Lr(p, 0)}, v{Lr(p, 1)}, v{Lr(p, 2)}')
            G.v[29] += [f'v_max_f32 v{CT}, v{CT}, v{Lr(p, 3)}', f'v_min_f32 v{VPG}, v{VPG}, v{Lr(p, 3)}']
            G.v[30] += [f'v_cmp_gt_f32 s[50:51], s{sLOW}, v{VPG}']
            G.v[31] += [f'v_cmp_lt_f32 vcc, s{sTHR}, v{CT}']
            G.sc[32] += ['s_or_b64 s[50:51], s[50:51], vcc', f's_cbranch_scc1 L_st_{nm}', f'L_bk_{nm}:']
        else:
            G.v[20].append(f'v_max3_f32 v{CT}, v{Lr(p, 0)}, v{Lr(p, 1)}, v{Lr(p, 2)}')
            G.v[29].append(f'v_max_f32 v{CT}, v{CT}, v{Lr(p, 3)}')
            G.v[31].append(f'v_cmp_lt_f32 vcc, s{sTHR}, v{CT}')
            G.sc[32] += [f's_cbranch_vccnz L_st_{nm}', f'L_bk_{nm}:']
        if j < 63:
            for r, g in zip(v_reads(j), [1, 3, 5, 7, 9, 13, 15, 17, 19, 21, 22, 23, 25, 33, 35, 37]): G.mem[g].append(r)
            if j + 2 < 64:
                for r, g in zip(k_reads(j + 2), [39, 41, 45, 47, 49, 51, 53, 55]): G.mem[g].append(r)
            if j < 56: G.place_dma(dma_kv('K', j + 8) + dma_kv('V', j + 6), [11, 27, 43, 59])
            else:
                W8 = lambda i: g_w8(i * 8192, f'P{i}')
                jobs = {56: dma_kv('V', 62) + W8(0) + W8(16) + g_oloads(0), 57: dma_kv('V', 63) + W8(1) + W8(17) + g_oloads(1),
                        58: W8(2) + g_oloads(2) + W8(8) + g_oloads(3), 59: W8(3) + g_oloads(4) + W8(9) + g_oloads(5),
                        60: W8(4) + g_oloads(6) + W8(10) + g_oloads(7), 61: W8(5) + W8(11),
                        62: W8(6) + W8(7) + W8(12) + W8(13) + g_oloads(8) + g_oloads(9)}[j]
                pos = {8: [4, 11, 20, 27, 43, 57, 63, 67], 4: [11, 27, 43, 59], 12: [4, 11, 20, 27, 39, 43, 47, 51, 55, 59, 63, 67]}[len(jobs)]
                G.place_dma(jobs, pos)
                G.v[3].append(f'v_mov_b32 v{VPG}, {j - 55}')
                G.mem[31].append(Ins(cl(f'buffer_store_dword v{VPG}, v{VL4}, {srd(SFL)}, 0 offen offset:48 {OPT["st"]}'), 'PG'))
                if j == 61:
                    G.v[35] += [f'v_mad_u32_u24 v{VPR}, v{VPR}, {OPT["bm"]}, {OPT["ba"]}']
                    G.v[39] += [f'v_lshrrev_b32 v{VPR}, 3, v{VPR}']
                    G.v[47] += [f'v_min_u32 v{VPR}, {OPT["bmax"]}, v{VPR}']
                    G.v[51] += [f'v_add_u32 v{VPG}, 1, v{VPR}']
                    G.v[55] += [f'v_lshlrev_b32 v{VPOLL}, 2, v1']
                    G.v[57] += [f'v_add_u32 v{VPOLL}, {160 * 1024 - 16}, v{VPOLL}']
                    G.mem[63].append(Ins(cl(f'buffer_store_dword v{VPG}, v{VL4}, {srd(SFL)}, 0 offen offset:64 {OPT["st"]}'), 'DG'))
                    G.mem[61].append(Ins(f'ds_write_b32 v{VPOLL}, v{VPR}'))
            if j == 31:
                G.pack(qcopy, 1, 31)
                NB = int(OPT['nb'])
                prep, un = epilogue(False, 160); _, up = epilogue(True, 160)
                units = un[:NB] + up[NB:]
                seq = []; cut = None
                for k in range(16):
                    if k == NB: cut = len(seq)
                    seq += units[k][0]
                    if k: seq += units[k - 1][3]
                    seq += units[k][1] + units[k][2]
                seq += units[15][3] + [f'v_mov_b64 v[{NEGM + 2 * i}:{NEGM + 2 * i + 1}], 0' for i in range(8)]
                G.pack(prep, 33, 41)
                pos = G.pack(seq[:cut], 42, NG)
                for x, g in zip(seq[:cut], pos):
                    x = I(x)
                    if x.mn == 'v_accvgpr_read_b32':
                        a = [r for r in x.rd if r[0] == 'a'][0][1]
                        assert g >= pvi(a // 4) + 2, (x.text, g)
                POST.extend(seq[cut:])
        if nm == 'r6': G.sc[66].append(f's_sub_u32 s{sCnt}, s{sCnt}, 1')
        if nm == 'r7': G.sc[66].append(f's_cmp_lt_u32 s{sKo}, 0x50000')

    j = 0
    while j < 64:
        nm = seg_name(j)
        A(f'.mark {nm}')
        G = Gaps(NG)
        fill(G, j)
        if j == 63:
            P0 = v_reads(j)
            dn = sm_dense(63, NG, 999)
            ol = flat(g_oloads(10) + g_oloads(11) + g_oloads(12))
            k = 0
            for i, x in enumerate(dn):
                P0.append(x)
                tgt = len(ol) * (i + 1) // len(dn)
                while k < tgt: P0.append(ol[k]); k += 1
            G.v[0] += P0
            G.v[18] += [f'v_mov_b32 v{GA[0]}, v{VOFFO}', f'v_add_u32 v{GA[1]}, 0x10000, v{VOFFO}', f'v_add_u32 v{GA[2]}, 0x20000, v{VOFFO}', f's_mul_i32 s{sXo}, s{sW}, 9216']
            G.sc[34] += ['WAITVM P4 lg0', 's_barrier']
            for r, g in zip(g_wreads(0, 0) + g_wreads(0, 1) + g_wreads(0, 2), [35, 38, 41, 43, 47, 50, 52, 55, 58, 60, 64, 66]): G.mem[g].append(r)
            G.v[18] += [f'v_mov_b32 v{VPG}, {160 * 1024 - 16}']
            G.mem[36].append(Ins(f'ds_read_b32 v{VPR}, v{VPG}'))
            G.place_dma(g_w8(14 * 8192, 'P14') + g_w8(15 * 8192, 'P15') + g_oloads(13) + g_oloads(14), [37, 40, 45, 49, 54, 57, 61, 65])
            prep2, units2 = epilogue(int(OPT['epg']) == 0, EP + 8)
            epi, _, _ = epi_flat(units2)
            G.pack(prep2, 34, 40)
            ne = 0
            if int(OPT['epg']):
                ne = 49
                G.pack(epi[:ne], 42, NG)
            epi = epi[ne:]
        A.extend(G.weave(step_mfmas(j)))
        def atomic():
            A('WAITVM Jst+Fz')
            A(f's_mov_b32 s{SWS}, s{sDBG}\ns_mov_b32 s{SWS + 1}, s{sDBG + 1}\ns_mov_b32 s{SWS + 2}, 4\nv_mov_b32 v{VFLAG}, 1\nv_lshlrev_b32 v{VPA}, 2, v0\nv_lshlrev_b32 v{VL4}, 7, v2')
            A(f'buffer_atomic_add v{VFLAG}, v{VPA}, {srd(SWS)}, 0 offen sc1', tag='Cwo')
        if j == 7:
            A('.mark b7')
            if OPT['atom'] == '0': atomic()
        if j == 39:
            A('.mark b39')
            A('WAITVM Ost')
            A(cl(f'buffer_store_dword v{VFLAG}, v{VL4}, {srd(SFL)}, 0 offen {OPT["st"]}'), tag='F1')
            if OPT['atom'] == '1': A(pollc, tag='Pc')
        if j == 47:
            A('.mark b47')
            A(f's_movk_i32 s{sMODE}, 256')
            A.extend(spin_check('c', pollc, f'v_cmp_gt_u32 vcc, s{sMODE}, v{VPOLL}'))
            A(f"""s_andn2_b32 s50, s2, 0x38
s_lshl_b32 s50, s50, 7
s_bfe_u32 s51, s2, 0x10005
s_lshl_b32 s51, s51, 3
s_add_u32 s50, s50, s51
s_lshr_b32 s51, s{sW}, 1
s_lshl_b32 s51, s51, 2
s_add_u32 s50, s50, s51
s_add_u32 s{SFP}, s{sWS}, {WS_FL}
s_addc_u32 s{SFP+1}, s{sWS+1}, 0
s_mov_b32 s{SFP+2}, 32768
v_and_b32 v{VPA}, 7, v0
v_lshlrev_b32 v{VPA}, 10, v{VPA}
v_add_u32 v{VPA}, s50, v{VPA}
s_xor_b32 s50, s2, 1
s_lshl_b32 s50, s50, 7
s_lshl_b32 s{sW4}, s{sW}, 2
v_mov_b32 v{VPP}, s50""")
            A(poll1, tag='PL1')
            code_prefetch(A, 'L_fin', 'L_code_end', 21, 23, 1); code_prefetch(A, 'L_fin', 'L_code_end', 21, 25, 1, first=1, tag='c')
        if j == 55:
            A('.mark b55')
            A.extend(spin_check('f1', poll1, ne1))
            A(f'v_add_u32 v{VOFFK}, s{sW2K}, v{VOFFO}\ns_and_b32 s50, s2, 1\ns_lshl_b32 s50, s50, 10\nv_add_u32 v{VSK_[1]}, s50, v{VOFFO}\nv_xor_b32 v{VSK_[0]}, 0x400, v{VSK_[1]}')
            A(f'buffer_load_dword v{VPR}, v{VPP}, {srd(SFP)}, 0 offen offset:48 sc1', tag='PLP')
        if j == 31:
            A('.mark epi')
            stamp(A, 7)
            if OPT['atom'] == '1': atomic()
            A(f'v_mov_b32 v{VPA}, 0')
            if OPT['atom'] == '0': A(pollc, tag='Pc')
            A.extend(POST)
            A(f's_mov_b32 s{sHead}, 1\ns_mov_b32 s{sCnt}, 3')
            stamp(A, 8)
        j += 1
    A('.mark tail')
    stamp(A, 9)
    EPG = int(OPT['epg'])
    ek = 0
    G2 = int(OPT['g2s']); LO = int(OPT['lo']); LW = int(OPT['lw']); S0 = int(OPT['gs0']); S1 = int(OPT['gs1'])
    items = []
    NS = 64 + 4 * int(OPT['bmax']); G3 = 56
    for x in range(15, NS):
        for jb in g_oloads(x): items.append(((x & ~3) - LO - (3 - (x & 3)) * 0.9, max((x & ~3) - 12, G2 + 1 if x >= 32 else 0, G3 + 1 if x >= 64 else 0), jb))
    for c in range(4, NS // 4):
        for n, jb in enumerate(g_wchunk(c)): items.append((4 * c - 1 - LW - (8 - n) * 4 / 9.0, 4 * (c - 4) + 3, jb))
    items.sort(key=lambda z: z[0])
    sched = [[] for _ in range(NS)]
    cur = 0
    for i, (dl, rl, jb) in enumerate(items):
        k = int(S0 + i * (S1 - S0 + 1) / 206)
        k = max(min(k, int(dl)), rl, cur)
        while len(sched[k]) >= 6: k += 1
        sched[k].append(jb); cur = k
    def when(tag): return [k for k in range(NS) if any(x[1].tag == tag for x in sched[k])]
    CL = max(when('GO31')) + 1
    assert CL + 2 < min(when('GO48')) and CL + 2 < min(when('GW12')), (CL, when('GO48'), when('GW12'))
    assert NS == 64 or min(when('GW16')) > 47
    if EPG == 0:
        A.extend(epi); ek = len(epi)
    if OPT['verbose']: print([len(x) for x in sched])
    SQ = []
    def sq_add(txt):
        L = txt.split('\n'); i = 0
        while i < len(L):
            k = 1
            while i + k < len(L) and L[i + k].startswith(('s_addc', 's_subb', 's_cselect')): k += 1
            SQ.append(L[i:i + k]); i += k
    rq = []
    for c in range(NS // 4):
        for n in range(9):
            if c == 0 and n < 3: continue
            q = 9 * c + n
            lo = max(8 * (q - 3), 72 * c - 20)
            for u, r in enumerate(g_wreads(c, n)): rq.append((lo, 8 * q + u - 6, r))
    for s_ in range(NS):
        c, u = s_ >> 2, s_ & 3
        mf = [mfma(f'v{GACC(n, mm)}', f'v{WB(c, n, uu)}', f'a{OB(4 * c + uu, mm)}', f'v{GACC(n, mm)}' if (c or uu) else '0') for n in range(9) for mm in range(2) for uu in range(4)][18 * u:18 * u + 18]
        G = Gaps(18)
        if u == 2 and c < NS // 4 - 1:
            tags = {0: 'P5+P6+P7+P8', 1: 'P9+P10+P11+P12+P13', 2: 'P14+P15+P16+P17'}.get(c, f'GW{c + 1}')
            G.sc[16] += [f'WAITVM {tags} lg0', 's_barrier']
            assert not [1 for q in sched[s_:] for x in q if x[1].tag == f'GW{c + 1}'], c
        jobs = sched[s_]
        for x in jobs:
            if x[1].tag.startswith('GO'): assert (int(x[1].tag[2:]) & ~3) >= s_ + 2, (s_, x[1].tag)
        jp = {0: [], 1: [10], 2: [5, 14], 3: [3, 9, 15], 4: [3, 8, 12, 15], 5: [2, 6, 9, 12, 15], 6: [2, 5, 8, 11, 14, 17]}[len(jobs)]
        G.place_dma(jobs, jp)
        for g in range(18):
            if g in jp or not rq: continue
            gg = 18 * s_ + g
            if rq[0][0] <= gg:
                assert gg <= rq[0][1], (gg, rq[0][1], rq[0][2].text)
                if u == 2 and g >= 16: assert rq[0][2].tag != f'rG{c}'
                G.mem[g].append(rq.pop(0)[2])
        if s_ == int(OPT['p2s']): G.mem[17].append(Ins(poll2, 'PL2'))
        if OPT['gtl']:
            if s_ % 2 == 0: G.sc[12].append('s_memtime s[98:99]')
            elif s_ < 64: G.v[0].append(f'v_writelane_b32 v59, s98, {s_ // 2}')
        for g in range(18):
            n = EPG - (1 if G.mem[g] else 0)
            while n > 0 and ek < len(epi):
                x = epi[ek]
                if isinstance(x, Ins) and x.kind == 'vst':
                    if G.v[g]: break
                    G.mem[g].append(x); ek += 1; n -= 1; continue
                G.v[g].append(x); ek += 1
                if not x.startswith('s_'): n -= 1
        if s_ == int(OPT['f2s']):
            assert ek == len(epi), (ek, len(epi))
            G.sc[16].append('WAITVM Ost')
            G.mem[17].append(Ins(cl(f'buffer_store_dword v{VFLAG}, v{VL4}, {srd(SFL)}, 0 offen offset:16 {OPT["st"]}'), 'F2'))
        if s_ == G2: G.v[17] += spin_check('f2', poll2, ne1)
        nxt = None
        if s_ == CL:
            G.v[15] += [f'v_readfirstlane_b32 s{sGive}, v{VPR}']
            nxt = f"""s_sub_u32 s50, 16, s{sGive}
s_mul_i32 s{SGW+2}, s50, 36864
s_sub_u32 s50, 8, s{sGive}
s_lshl_b32 s50, s50, 15
s_min_u32 s{SGO+2}, s{SGO+2}, s50"""
        if s_ == 38: G.mem[17].append(Ins(polld, 'PLD'))
        if s_ == 43:
            G.v[15] += spin_check('d', polld, f'v_cmp_eq_u32 vcc, 0, v{VPOLL}')
            G.v[16] += [f'v_readfirstlane_b32 s{sRem}, v{VPOLL}', f'v_xor_b32 v{VPA}, 128, v{VPA}']
            nxt = f"""s_sub_u32 s{sRem}, s{sRem}, 1
s_min_u32 s{sRem}, s{sRem}, {OPT['bmax']}
s_bitcmp1_b32 s2, 0
s_cselect_b32 s50, 0, {2 * 64 * 9216}
s_mul_i32 s{SG2W+2}, s{sRem}, 36864
s_add_u32 s{SG2W}, s{SGW}, s50
s_addc_u32 s{SG2W+1}, s{SGW+1}, 0
s_sub_u32 s{SG2W}, s{SG2W}, s{SG2W+2}
s_subb_u32 s{SG2W+1}, s{SG2W+1}, 0
s_bitcmp1_b32 s2, 0
s_cselect_b32 s50, 0, {2 * 262144}
s_add_u32 s50, s50, 16384
s_lshl_b32 s51, s{sRem}, 15
s_add_u32 s{SG2O}, s{SGO}, s50
s_addc_u32 s{SG2O+1}, s{SGO+1}, 0
s_sub_u32 s{SG2O}, s{SG2O}, s51
s_subb_u32 s{SG2O+1}, s{SG2O+1}, 0
s_max_u32 s51, s51, {16384 + 2048}
s_sub_u32 s{SG2O+2}, s51, {16384 + 2048}
s_mov_b32 s{SG2O+3}, 0x20000
s_cmp_eq_u32 s{sRem}, 0
s_cselect_b32 s50, s{sGive}, 0
s_add_u32 s{sRem}, s{sRem}, 4
s_sub_u32 s{sRem}, s{sRem}, s50"""
        if s_ == G3 - 4 and NS > 64: G.mem[17].append(Ins(poll2, 'PL3'))
        if s_ == G3 and NS > 64: G.v[17] += spin_check('f3', poll2, ne1)
        if u == 3 and 11 <= c < NS // 4 - 1:
            G.sc[18] += [f's_sub_u32 s{sRem}, s{sRem}, 1', 's_cbranch_scc1 L_xchg']
        if s_ == 30:
            nxt = f"""s_lshl_b32 s50, s2, 2
s_add_u32 s50, s50, s{sW}
s_mul_i32 s50, s50, 9216
s_add_u32 s50, s50, {WS_X}
s_add_u32 s{SO}, s{sWS}, s50
s_addc_u32 s{SO+1}, s{sWS+1}, 0
s_mov_b32 s{SO+2}, 9216
s_xor_b32 s50, s2, 1
s_lshl_b32 s51, s50, 2
s_add_u32 s51, s51, s{sW}
s_mul_i32 s51, s51, 9216
s_add_u32 s51, s51, {WS_X}
s_add_u32 s{SV}, s{sWS}, s51
s_addc_u32 s{SV+1}, s{sWS+1}, 0
s_mov_b32 s{SV+2}, 9216
s_and_b32 s50, s2, 2
s_lshl_b32 s50, s50, 2
s_lshr_b32 s51, s2, 5
s_add_u32 s50, s50, s51
s_lshl_b32 s50, s50, 2
s_add_u32 s50, s50, s{sW}
s_lshl_b32 s50, s50, 1
s_and_b32 s51, s2, 1
s_add_u32 s50, s50, s51
s_mul_i32 s50, s50, {16 * 2304}
s_bfe_u32 s51, s2, 0x10002
s_mul_i32 s51, s51, 1152
s_add_u32 s50, s50, s51
s_bfe_u32 s51, s2, 0x20003
s_mul_i32 s51, s51, 288
s_add_u32 s50, s50, s51
s_add_u32 s{SOUT}, s{sOUT}, s50
s_addc_u32 s{SOUT+1}, s{sOUT+1}, 0
s_mov_b32 s{SOUT+2}, {15 * 2304 + 288}"""
        if 36 <= s_ < 41:
            k = s_ - 36
            vv = f"""v_add_u32 v28, {64 * k}, v2
v_mul_u32_u24 v29, 3641, v28
v_lshrrev_b32 v29, 16, v29
v_mul_u32_u24 v30, 18, v29
v_sub_u32 v30, v28, v30
v_lshlrev_b32 v30, 4, v30
v_mad_u32_u24 v{32 + k}, v29, s{sT0}, v30
v_mul_u32_u24 v29, 304, v29
v_add3_u32 v{44 + k}, v29, v30, v31""".split('\n')
            if k == 0:
                vv = [f's_movk_i32 s{sT0}, 2304\ns_movk_i32 s{sMODE}, 4096', 'v_lshlrev_b32 v31, 13, v1', 'v_and_b32 v29, 15, v2', 'v_mul_u32_u24 v29, 304, v29', 'v_lshrrev_b32 v30, 4, v2',
                      'v_lshl_add_u32 v29, v30, 3, v29', 'v_add_u32 v39, v29, v31', f'v_add_u32 v37, 0x1000, v{VOFFO}', (f'v_lshl_add_u32 v38, v2, 3, s{sMODE}' if OPT['xb'] else f'v_add_u32 v38, 0x2000, v{VOFFO}')] + vv
            for i, x in enumerate(vv): G.v[i].append(x)
        for g in range(18):
            if SQ and not G.sc[g] and (18 * s_ + g) % 8 < 4: G.sc[g] += SQ.pop(0)
        if s_ in (29, 42, 46): assert not SQ, (s_, len(SQ))
        if nxt: sq_add(nxt)
        A.extend(G.weave(mf))
    A('L_xchg:')
    stamp(A, 10)
    A('s_nop 7')
    vo3 = [VOFFO, 37, 38]
    pollx = f'buffer_load_dword v{VPOLL}, v{VPP}, {srd(SFP)}, s{sW4} offen offset:32 sc1'
    XB = OPT['xb']
    if XB:
        for n in range(9):
            a_ = GACC(n, 0)
            A(f'v_cvt_pk_bf16_f32 v{208 + 2 * n}, v{a_}, v{a_ + 1}\nv_cvt_pk_bf16_f32 v{209 + 2 * n}, v{a_ + 2}, v{a_ + 3}')
            if n & 1: A(cl(f'buffer_store_dwordx4 v[{206 + 2 * n}:{209 + 2 * n}], v{VOFFO}, {srd(SO)}, 0 offen offset:{(n // 2) * 1024} {OPT["st"]}'))
        A(cl(f'buffer_store_dwordx2 v[224:225], v38, {srd(SO)}, 0 offen {OPT["st"]}'))
    else:
        for n in range(9):
            A(cl(f'buffer_store_dwordx4 v[{GACC(n, 0)}:{GACC(n, 0) + 3}], v{vo3[n // 4]}, {srd(SO)}, 0 offen offset:{(n % 4) * 1024} {OPT["st"]}'))
    A('s_waitcnt vmcnt(0) lgkmcnt(0)')
    A(cl(f'buffer_store_dword v{VFLAG}, v{VL4}, {srd(SFL)}, 0 offen offset:32 {OPT["st"]}'))
    A(pollx)
    A('s_barrier')
    A.extend(spin_check('x', pollx, ne1))
    if XB:
        A(f's_mov_b32 s{sT0}, 0xffff0000')
        for k in range(4): A(f'buffer_load_dwordx4 v[{228 + 4 * k}:{231 + 4 * k}], v{VOFFO}, {srd(SV)}, 0 offen offset:{k * 1024} sc1')
        A(f'buffer_load_dwordx2 v[244:245], v38, {srd(SV)}, 0 offen sc1')
    else:
        for n in range(9):
            A(f'buffer_load_dwordx4 v[{128 + 4 * n}:{131 + 4 * n}], v{vo3[n // 4]}, {srd(SV)}, 0 offen offset:{(n % 4) * 1024} sc1')
    for n in range(9):
        a = GACC(n, 1); b = 128 + 4 * n
        if XB:
            for r in range(2): A(f'v_lshlrev_b32 v{b + 2 * r}, 16, v{228 + 2 * n + r}\nv_and_b32 v{b + 2 * r + 1}, s{sT0}, v{228 + 2 * n + r}')
        for r in range(0, 4, 2): A(f'v_pk_add_f32 v[{a + r}:{a + r + 1}], v[{a + r}:{a + r + 1}], v[{b + r}:{b + r + 1}]')
        A(f'v_cvt_pk_bf16_f32 v{b}, v{a}, v{a + 1}\nv_cvt_pk_bf16_f32 v{b + 1}, v{a + 2}, v{a + 3}')
        A(f'ds_write_b64 v39, v[{b}:{b + 1}] offset:{n * 32}')
    for k in range(5): A(f'ds_read_b128 v[{168 + 4 * k}:{171 + 4 * k}], v{44 + k}')
    for k in range(5): A(f'buffer_store_dwordx4 v[{168 + 4 * k}:{171 + 4 * k}], v{32 + k}, {srd(SOUT)}, 0 offen {OPT["out_st"]}'.rstrip())
    if OPT['stamps']:
        A('s_waitcnt vmcnt(0)')
        stamp(A, 11)
        if OPT['gtl']:
            A('s_lshl_b32 s50, s2, 10\ns_add_u32 s50, s50, 0x80000\nv_lshlrev_b32 v42, 2, v0\nbuffer_store_dword v59, v42, s[56:59], s50 offen')
        if OPT['diag'] == '0': store_stamps(A, 7)
        elif OPT['diag'] == '3':
            A(f'''s_memrealtime s[62:63]
s_load_dwordx2 s[4:5], s[0:1], 88
s_load_dwordx2 s[8:9], s[0:1], 0
s_waitcnt lgkmcnt(0)
s_load_dword s10, s[8:9], 0
s_mov_b32 s6, 64
s_mov_b32 s7, 0x20000
v_lshlrev_b32 v4, 6, v0
s_and_b32 s51, s2, 7
s_lshl_b32 s51, s51, 2
v_mov_b32 v5, s62
buffer_atomic_umax v5, v4, s[4:7], s51 offen offset:32 sc1
s_and_b32 s50, s2, 0x18
s_cmp_lg_u32 s50, 0
s_cbranch_scc1 L_dgx
s_not_b32 s51, s60
v_mov_b32 v6, s51
v_mov_b32 v7, s60
buffer_atomic_umax v6, v4, s[4:7], 0 offen offset:4 sc1
buffer_atomic_umax v7, v4, s[4:7], 0 offen offset:8 sc1
L_dgx:
s_cmp_lg_u32 s2, 8
s_cbranch_scc1 L_end
s_sub_u32 s8, s62, s60
v_mov_b32 v8, s8
buffer_store_dword v8, v4, s[4:7], 0 offen offset:12 sc1
s_sub_u32 s8, s76, s64
v_mov_b32 v9, s8
buffer_store_dword v9, v4, s[4:7], 0 offen offset:16 sc1
s_sub_u32 s8, s78, s76
v_mov_b32 v10, s8
buffer_store_dword v10, v4, s[4:7], 0 offen offset:20 sc1
s_sub_u32 s8, s82, s78
v_mov_b32 v11, s8
buffer_store_dword v11, v4, s[4:7], 0 offen offset:24 sc1
s_sub_u32 s8, s86, s82
v_mov_b32 v12, s8
buffer_store_dword v12, v4, s[4:7], 0 offen offset:28 sc1
s_waitcnt lgkmcnt(0)
s_cmp_eq_u32 s10, 0x3e6e3f96
s_cbranch_scc1 L_end
s_cmp_eq_u32 s10, 0x3c3abe25
s_cbranch_scc1 L_end
v_mov_b32 v8, 0x40004000
buffer_store_dword v8, v4, s[28:31], 0 offen''')
        else:
            A(f'''s_memrealtime s[62:63]
s_load_dwordx2 s[4:5], s[0:1], 88
s_getreg_b32 s50, hwreg(HW_REG_XCC_ID)
s_waitcnt lgkmcnt(0)
s_mov_b32 s6, 64
s_mov_b32 s7, 0x20000
v_lshlrev_b32 v4, 6, v0
s_and_b32 s51, s2, 0xbe
s_cmp_lg_u32 s51, 8
s_cbranch_scc1 L_end
s_and_b32 s51, s2, 1
s_lshr_b32 s8, s2, 5
s_add_u32 s51, s51, s8
s_lshl_b32 s51, s51, 4
s_and_b32 s50, s50, 15
s_lshl_b32 s50, s50, 28
s_sub_u32 s8, s62, s60
s_add_u32 s8, s8, s50
s_cmp_eq_u32 s51, 0
s_cbranch_scc1 L_dg1
v_mov_b32 v8, s8
buffer_store_dword v8, v4, s[4:7], s51 offen sc1
L_dg1:
s_sub_u32 s8, s{76 if OPT['diag'] == '1' else 66}, s64
s_sub_u32 s9, s{78 if OPT['diag'] == '1' else 68}, s{76 if OPT['diag'] == '1' else 66}
s_lshr_b32 s8, s8, 4
s_lshr_b32 s9, s9, 4
s_lshl_b32 s8, s8, 16
s_add_u32 s8, s8, s9
v_mov_b32 v9, s8
buffer_store_dword v9, v4, s[4:7], s51 offen offset:4 sc1
s_sub_u32 s8, s{80 if OPT['diag'] == '1' else 70}, s{78 if OPT['diag'] == '1' else 68}
s_sub_u32 s9, s{82 if OPT['diag'] == '1' else 72}, s{80 if OPT['diag'] == '1' else 70}
s_lshr_b32 s8, s8, 4
s_lshr_b32 s9, s9, 4
s_lshl_b32 s8, s8, 16
s_add_u32 s8, s8, s9
v_mov_b32 v10, s8
buffer_store_dword v10, v4, s[4:7], s51 offen offset:8 sc1
s_sub_u32 s8, s{84 if OPT['diag'] == '1' else 74}, s{82 if OPT['diag'] == '1' else 72}
s_sub_u32 s9, s{86 if OPT['diag'] == '1' else 76}, s{84 if OPT['diag'] == '1' else 74}
s_lshr_b32 s8, s8, 4
s_lshr_b32 s9, s9, 4
s_lshl_b32 s8, s8, 16
s_add_u32 s8, s8, s9
v_mov_b32 v11, s8
buffer_store_dword v11, v4, s[4:7], s51 offen offset:12 sc1''')
    A('L_end:\ns_endpgm')
    A.resolve_waits()
    rep = []
    A.fix_hazards(rep)
    segs = {}
    for n, L in split_marks(A.L): segs.setdefault(n, []).append(L)
    M = {n: merge_segments(v) for n, v in segs.items()}
    if OPT['hole']:
        L = M['_start']; k = len(L) - 1
        while L[k].kind != 'mfma': k -= 1
        out = L[:k + 1]; since = 0; q = 0
        for x in L[k + 1:]:
            out.append(x); since += 2 if x.kind == 'trans' else 1
            if since >= 2 and x.kind in ('valu', 'trans'):
                out.append(Ins(mfma('a0', f'a{128 + 4 * (q % 16)}', f'a{128 + 4 * ((q // 3) % 16)}', 'a0'))); q += 1; since = 0
        M['_start'] = out
    ab = OPT['abl']
    if ab:
        for nm in list(M):
            L = M[nm]
            if nm[0] in 'rp' or nm == 's0':
                if 'a' in ab: L = [x for x in L if x.mn != 'v_add_f32']
                if 'c' in ab: L = [x for x in L if x.mn not in ('v_max3_f32', 'v_max_f32', 'v_cmp_lt_f32', 's_cbranch_vccnz')]
                if 'e' in ab: L = [x for x in L if x.mn != 'v_exp_f32']
                if 'p' in ab: L = [x for x in L if x.mn != 'v_cvt_pk_bf16_f32']
                if 'k' in ab: L = [x for x in L if x.mn != 'ds_read_b128']
                if 'v' in ab: L = [x for x in L if x.mn != 'ds_read_b64_tr_b16']
                if 's' in ab: L = [x for x in L if not (x.kind == 'mfma' and f'v[{ONES}:' in x.text)]
                if 'h' in ab: L = [x for i, x in enumerate(L) if not (x.mn == 'v_exp_f32' and int(x.text.split()[1][1:-1]) % 2)]
                if 'd' in ab and nm[0] != 'p': L = [x for x in L if x.kind != 'dma']
            if 'o' in ab: L = [x for x in L if x.tag != 'Ost']
            if nm == 'tail':
                if 'g' in ab: L = [x for x in L if not (x.tag and x.tag.startswith('rG') and int(x.tag[2:]) % 2)]
                if 'G' in ab: L = [x for x in L if not (x.tag and x.tag.startswith(('GW', 'GO')))]
            if nm == '_start':
                if 'j' in ab: L = [x for x in L if not (x.tag and x.tag.startswith('J'))]
                if 'W' in ab: L = [x for x in L if not (x.tag and (x.tag[0] in 'WX') and x.kind == 'dma' and int(x.tag[1:]) > 5)]
                cutq = [i for i, x in enumerate(L) if x.kind == 'mfma'][14 * 64]
                if '1' in ab: L = L[:cutq] + [x for x in L[cutq:] if x.tag != 'Jst']
                if '2' in ab: L = L[:cutq] + [x for x in L[cutq:] if x.kind != 'dma']
                if '3' in ab: L = L[:cutq] + [x for x in L[cutq:] if x.kind != 'dsw']
                if '4' in ab: L = L[:cutq] + [x for x in L[cutq:] if x.mn not in ('v_mul_f32',)]
                if '5' in ab: L = L[:cutq] + [x for x in L[cutq:] if not (x.tag and x.tag.startswith('rQ'))]
                if 'w' in ab: L = [x for x in L if not (x.tag and x.tag.startswith('rW') and int(x.tag[2:]) % 2)]
            import re as _re
            def rechain(L, n, pred):
                out = []; k = 0; cur = None
                for x in L:
                    if x.kind == 'mfma' and pred(x):
                        m = _re.match(r'(\S+) (\S+), (\S+), (\S+), (\S+)$', x.text)
                        if m[2] == m[5]:
                            if k % n == 0 or cur is None or cur[0] != m[2][0]: cur = m[2]
                            x = Ins(f'{m[1]} {cur}, {m[3]}, {m[4]}, {cur}'); k += 1
                    out.append(x)
                return out
            if 'P' in ab and (nm[0] in 'rp'): L = rechain(L, 2, lambda x: x.text.split()[1][0] == 'a')
            if 'X' in ab and nm == 'tail': L = rechain(L, 4, lambda x: True)
            if 'Q' in ab and nm == '_start':
                cut = [i for i, x in enumerate(L) if x.kind == 'mfma'][14 * 64]
                L = rechain(L[:cut], 2, lambda x: True) + L[cut:]
            M[nm] = L
    F = Prog()
    F.extend(M['_start'])
    if int(OPT['burst']):
        F(f's_mov_b32 s50, {int(OPT["burst"])}\nL_burst:')
        for q in range(16):
            F(f'v_mfma_f32_32x32x16_bf16 a[{(q % 8) * 16}:{(q % 8) * 16 + 15}], v[{64 + 4 * (q % 8)}:{67 + 4 * (q % 8)}], a[{128 + 4 * q}:{131 + 4 * q}], a[{(q % 8) * 16}:{(q % 8) * 16 + 15}]')
            F(f'ds_read_b128 v[{96 + 4 * (q % 8)}:{99 + 4 * (q % 8)}], v4 offset:{q * 1024}')
            F(f'v_exp_f32 v{224 + q}, v{128 + q}\nv_add_f32 v{240 + q}, v{144 + q}, v{128 + q}')
        F('s_sub_u32 s50, s50, 1\ns_cbranch_scc0 L_burst\ns_waitcnt lgkmcnt(0)\ns_nop 15')
    F('L_s0:')
    F.extend(M['s0'])
    F('s_branch L_r1\n.p2align 6\nL_r0:')
    F.extend(M['r0'])
    F('L_r1:')
    for k in range(1, 7): F.extend(M[f'r{k}'])
    F('s_cbranch_scc1 L_sp')
    F.extend(M['r7'])
    F(f's_cbranch_scc1 L_r0\ns_cmp_eq_u32 s{sKo}, 0x80000\ns_cbranch_scc1 L_fin\ns_cmp_eq_u32 s{sKo}, 0x70000\ns_cbranch_scc1 L_b47\ns_cmp_eq_u32 s{sKo}, 0x60000\ns_cbranch_scc1 L_b39')
    for b in (7, 39, 47):
        F(f'L_b{b}:'); F.extend(M[f'b{b}']); F('s_branch L_r0')
    F('L_sp:')
    F.extend(M['sp31'])
    if OPT['w1']: F('s_branch L_r1')
    else:
        F.extend(M['epi']); F('s_branch L_s0')
    for nm, p, mode in [(f'r{k}', k & 1, 0) for k in range(8)] + [(f'p{k}', k & 1, 0) for k in range(56, 63)] + [('sp31', 1, 1), ('fin31', 1, 1)]:
        F(f'L_st_{nm}:\ns_mov_b32 s{sMODE}, {mode}\ns_call_b64 s[{sRET}:{sRET + 1}], L_fb{p}')
        if nm != 'fin31': F.extend(sm_dense(3 - p, 0, 32))
        F(f's_branch L_bk_{nm}')
    F(f'L_st_s0:\ns_call_b64 s[{sRET}:{sRET + 1}], L_fbf')
    F.extend(sm_dense(3, 0, 32))
    F('s_branch L_bk_s0')
    F.extend(fallback(0).L); F.extend(fallback(1).L); F.extend(fallback(0, True).L)
    for x in SPINS: F(x)
    F('L_fin:')
    F.extend(M['b55'])
    for k in range(56, 63): F.extend(M[f'p{k}'])
    F.extend(M['fin31'])
    F.extend(M['tail'])
    return F, rep

def build(path):
    A, rep = gen()
    hdr = open('cdna_kernels/' + NAME + '.s.ref').read().split('; Override launch')[0]
    t = hdr + '; @launch grid=(256,1,1) block=(256,1,1) lds=163840\n'
    t += '.amdgcn_target "amdgcn-amd-amdhsa--gfx950"\n.text\n' + MACROS
    t += prolog(KNAME) + A.text() + 'L_code_end:\n'
    t += kd(KNAME, 512, 100, 256)
    open(path, 'w').write(t)
    return rep, len(t)

if __name__ == '__main__':
    path = sys.argv[1]
    for kv in sys.argv[2:]:
        k, v = kv.split('=')
        assert k in OPT, k
        OPT[k] = (v == '1') if isinstance(OPT.get(k), bool) else v
    rep, n = build(path)
    from collections import Counter
    print('bytes', n, 'pads', Counter((a, b.split()[0]) for a, b in rep).most_common(12))
```

```python
import sys, math, struct
from common import *
from asmlib import *

OPT = dict(nt_kv='nt', nt_x='', nt_w='nt', st='sc1', g_o='sc1', g_w='sc1', stamps=False, tl=False, gtl=False,
           epg='4', f2s='10', p2s='22', g2s='24', gs0='6', gs1='58', lo='4', lw='5', w1=False, qtl=False, pl='2', lag=True, ost='sc1', nb='3', jo='5', verbose=False, su='0', pf='2', bar1=False, kv0='48', bm='5', ba='2', bmax='4', out_st='sc1', hole=False, atom='1', diag='0', l2n='0', l2p='nt', l2t='6', burst='0', l2s='1', l2g='44', l2='', tight='0', l2e='0', cqk=True, cqb=True, abl='', xb=True, cw='3', wsp=True, j8='0', nh='10', cls='0', m0='-20.0', qo='c', pvo='t')
WS_WO = 33554432
WS_X = 44 << 20
WS_FL = 56 << 20
WS_STAMP = 64 << 20
SCALE = math.log2(math.e) / math.sqrt(128.0)
def f2i(x): return struct.unpack('<I', struct.pack('<f', x))[0]
KNAME = NAME + '_kernel'

SK, SV, SX, SW_, SO, SWS, SWD, SFL = 4, 8, 12, 16, 20, 24, 28, 88
SGO, SGW, SFP, SOUT = 12, 16, 24, 28
sWS, sOUT, sDBG = 52, 54, 46
sW, sW2K, sW4K, sT0, sKo, sVo, sSC, sTHR, sXo, sRET, sMODE, sWe = 32, 33, 34, 35, 36, 37, 38, 40, 41, 42, 44, 45
sJ, sCnt, sHead, sOo, sLOW = 48, 94, 95, 96, 39
SG2W, SG2O, sGive, sRem, sW4 = 4, 92, 46, 47, 49
VPP, VPG, VPR = 41, 42, 43
VSK_ = [17, 27]
def srd(n): return f's[{n}:{n+3}]'
VPA, KADDR, VADDR, VOFFK, VOFFV, LREG, ETMP, CT, NEGM, VOFFO, VFLAG, VPOLL, VL4 = 3, 4, 8, 16, 18, 20, 28, 40, 44, 60, 61, 62, 63
KF, VF, SB, PB, EP = 64, 96, 128, 192, 224
NE = 8
ONES = 36
NG = 68
def S(p, kt, qt): return SB + p * 32 + (kt * 4 + qt) * 4
def P(p, qt): return PB + p * 16 + qt * 4
def Lr(p, qt): return EP + p * 16 + qt * 4
def O(T, qt): return (T * 4 + qt) * 4
def Q(h, qt, u): return 128 + h * 64 + (u * 4 + qt) * 4
VSV, VSK, WADDR, XADDR, VOFFW, VOFFX, VOFFJ, JADDR = 20, 24, 64, 80, 84, 88, 92, 3
CW0, CW1, CR = 61, 62, 63
def QACC(h, T, qt): return (f'v{128 + (T * 4 + qt) * 4}' if h == 1 else f'a{(T * 4 + qt) * 4}')
def XF(t, qt): return (28 if (t >> 1) & 1 else 96) + ((t & 1) * 4 + qt) * 4
NWS = 24
def WF(slot): return 128 + slot * 4
BLK = 16384
def wblock(t): return [(4, 1), (7, 3), (8, 9)][(t >> 1) % 3][t & 1]
def xblock(p): return [2, 5, 6][p % 3]
def cl(s): return ' '.join(s.split())
def rng(r, n): return f'{r[0]}[{int(r[1:])}:{int(r[1:]) + n - 1}]'

def dma_kv(which, tile):
    base = (0 if which == 'K' else 65536) + (tile % 8) * 8192
    s, vo, so = (SK, VOFFK, sKo) if which == 'K' else (SV, VOFFV, sVo)
    tag = f'{which}{tile}'; nt = OPT['nt_kv']
    return [([f's_add_u32 m0, s{sW2K}, {base}'], Ins(cl(f'buffer_load_dwordx4 v{vo}, {srd(s)}, s{so} offen {nt} lds'), tag), []),
            ([], Ins(cl(f'buffer_load_dwordx4 v{vo + 1}, {srd(s)}, s{so} offen offset:1024 {nt} lds'), tag), [f's_add_u32 s{so}, s{so}, 8192'])]
def dma4(s, vo, off, blk, tag, nt, so=sWe):
    return [([f's_mov_b32 s{so}, {off}', f's_add_u32 m0, s{sW4K}, {blk * BLK}'] if n == 0 else [],
             Ins(cl(f'buffer_load_dwordx4 v{vo + n}, {srd(s)}, s{so} offen offset:{n * 1024} {nt} lds'), tag), []) for n in range(4)]
def dma_w(t): return dma4(SW_, VOFFW, t * 32 * 8192, wblock(t), f'W{t}', OPT['nt_w'])
def dma_x(p): return dma4(SX, VOFFX, (p >> 1) * 128 + (p & 1) * 32 * 1152, xblock(p), f'X{p}', OPT['nt_x'], sXo)
def dma_kk(i): return dma4(SK, VSK, i * 16384, i, f'KK{i}', OPT['nt_kv'])
def dma_vv(i): return dma4(SV, VSV, i * 16384, 4 + i, f'VV{i}', OPT['nt_kv'])
def flat(dl):
    out = []
    for pre, ins, post in dl: out += pre + [ins] + post
    return out

def I(x): return x if isinstance(x, Ins) else Ins(x)
def cost(x):
    k = x.kind
    return {'trans': 8, 'valu': 4, 'dsr': 4, 'dsw': 4, 'dma': 12, 'vld': 12, 'vst': 12}.get(k, 0 if k in ('label', 'dir', 'waitvm', 'waitlg') else 4)
class Gaps:
    def __init__(self, n):
        self.n = n; self.sc = [[] for _ in range(n + 1)]; self.mem = [[] for _ in range(n)]; self.v = [[] for _ in range(n)]
    def place_dma(self, dl, gaps):
        assert len(gaps) >= len(dl), (len(gaps), len(dl))
        for (pre, ins, post), g in zip(dl, gaps):
            for k, s in enumerate(pre): self.sc[g - len(pre) + k].append(s)
            self.mem[g].append(ins)
            for k, s in enumerate(post): self.sc[g + 1 + k].append(s)
    def load(self, g): return sum(cost(I(x)) for x in self.mem[g] + self.v[g])
    def pack(self, items, g0, g1):
        items = [I(x) for x in items]
        base = [self.load(g) for g in range(self.n)]
        for L in range(8, 400, 2):
            g = g0; used = 0; vhere = False; pos = []; ok = True
            for x in items:
                c = cost(x); ismem = x.kind in ('dsr', 'dsw', 'dma', 'vld', 'vst')
                while True:
                    if g >= g1: ok = False; break
                    room = L - base[g] - used
                    if ismem and (vhere or (self.mem[g] and L < 20)): fit = False
                    else: fit = c <= room or (c == 0) or (used == 0 and base[g] == 0)
                    if fit: break
                    g += 1; used = 0; vhere = False
                if not ok: break
                pos.append(g); used += c
                if not ismem: vhere = True
                else: vhere = True if False else vhere
            if ok: break
        assert ok
        for x, g in zip(items, pos):
            (self.mem if x.kind in ('dsr', 'dsw', 'dma', 'vld', 'vst') else self.v)[g].append(x)
        return pos
    def weave(self, mf, a=0, b=None):
        out = []
        b = self.n if b is None else b
        for i in range(a, b):
            if i < len(mf) and mf[i] is not None: out.append(mf[i])
            out += self.sc[i] + self.mem[i] + self.v[i]
        if b == self.n: out += self.sc[self.n]
        return out

def k_reads(tile):
    return [Ins(f'ds_read_b128 v[{KF + (kt * 4 + u) * 4}:{KF + (kt * 4 + u) * 4 + 3}], v{KADDR + u} offset:{(tile % 8) * 8192 + kt * 4096}', f'rK{tile}')
            for kt in range(2) for u in range(4)]
def v_reads(tile):
    return [Ins(f'ds_read_b64_tr_b16 v[{VF + T * 4 + s * 2}:{VF + T * 4 + s * 2 + 1}], v{VADDR + T} offset:{(tile % 8) * 8192 + s * 4096}', f'rV{tile}')
            for T in range(8) for s in range(2)]
def qk_mfmas(j):
    h = 1 if j in ((32, 33) if OPT['w1'] else (32,)) else 0
    p = j & 1; first = (j & 31) == 0
    out = []
    for kt in range(2):
        for u, qt in ({'c': [(u, qt) for qt in range(4) for u in range(4)], 'p': [(u, 2 * qp + q) for qp in range(2) for u in range(4) for q in range(2)],
                       'm': [(u, qt) for u in range(4) for qt in range(4)] if kt == 0 else [(u, 2 * qp + q) for qp in range(2) for u in range(4) for q in range(2)]}[OPT['qo'] if j else 'c']):
            if True:
                c = f'v{S(p, kt, qt)}' if u else (OPT['m0'] if first and INL() else f'v{NEGM + qt * 4}')
                out.append(mfma(f'v{S(p, kt, qt)}', f'v{KF + (kt * 4 + u) * 4}', f'a{Q(h, qt, u)}', c))
    return out
def pv_mfmas(j):
    p = j & 1; first = (j & 31) == 0
    return [mfma(f'a{O(T, qt)}', f'v{VF + T * 4}', f'v{P(p, qt)}', '0' if first else f'a{O(T, qt)}') for T, qt in ([(T, qt) for T in range(8) for qt in range(4)] if OPT['pvo'] == 't' or (j & 31) == 31 else [(2 * tp + tt, qt) for tp in range(4) for qt in range(4) for tt in range(2)])]

def sum_mfma(j, qt):
    p = j & 1; first = (j & 31) == 0
    return mfma(f'v{Lr(p, qt)}', f'v{ONES}', f'v{P(p, qt)}', '0' if first else f'v{Lr(1 - p, qt)}')
E0 = 24
def softmax_stream(j):
    p = j & 1
    out = []
    for k in range(32):
        qt, kk = k >> 3, k & 7
        out.append((E0 + 2 * k, f'v_exp_f32 v{ETMP + k % NE}, v{S(p, kk >> 2, qt) + (kk & 3)}'))
        if k & 1: out.append((E0 + 2 * k + 3, f'v_cvt_pk_bf16_f32 v{P(p, qt) + (kk >> 1)}, v{ETMP + (k - 1) % NE}, v{ETMP + k % NE}'))
    out.sort(key=lambda z: z[0])
    return out
SUMPOS = {0: 46, 1: 63, 2: NG + 8, 3: NG + 25}
def sm_dense(j, lo, hi):
    it = softmax_stream(j) + [(SUMPOS[qt] - 0.5, sum_mfma(j, qt)) for qt in range(4)]
    it.sort(key=lambda z: z[0])
    return [x for pos, x in it if lo <= pos < hi]
def pvi(n): return 34 + n if n < 12 else (35 + n if n < 28 else 36 + n)
def step_mfmas(j):
    qk = qk_mfmas(j + 1) if j + 1 < 64 else [None] * 32
    pv = pv_mfmas(j)
    nxt = j + 1 < 64
    own = j < 63
    return (qk[:8] + [sum_mfma(j, 2) if own else None] + qk[8:24] + [sum_mfma(j, 3) if own else None] + qk[24:] +
            pv[:12] + [sum_mfma(j + 1, 0) if nxt else None] + pv[12:28] + [sum_mfma(j + 1, 1) if nxt else None] + pv[28:])
def INL(): return OPT['m0'] in ('0', '-1.0', '-2.0', '-4.0')
def negm_init():
    if OPT['m0'] == '0': return [f'v_mov_b64 v[{NEGM + 2 * i}:{NEGM + 2 * i + 1}], 0' for i in range(8)]
    c = f'{f2i(float(OPT["m0"])):#x}'
    return [f'v_mov_b32 v{NEGM}, {c}', f'v_mov_b32 v{NEGM + 1}, {c}'] + [f'v_mov_b64 v[{NEGM + 2 * i}:{NEGM + 2 * i + 1}], v[{NEGM}:{NEGM + 1}]' for i in range(1, 8)]
def rowmax(p, qt, dst):
    s0 = S(p, 0, qt); s1 = S(p, 1, qt)
    return [f'v_max3_f32 v{dst}, v{s0}, v{s0 + 1}, v{s0 + 2}', f'v_max3_f32 v{dst}, v{dst}, v{s0 + 3}, v{s1}',
            f'v_max3_f32 v{dst}, v{dst}, v{s1 + 1}, v{s1 + 2}', f'v_max_f32 v{dst}, v{dst}, v{s1 + 3}']
def xlane(op, regs, tmps):
    out = []
    for sw in ('v_permlane16_swap_b32', 'v_permlane32_swap_b32'):
        out += [f'v_mov_b32 v{t}, v{r}' for r, t in zip(regs, tmps)]
        out += [f'{sw} v{t}, v{r}' for r, t in zip(regs, tmps)]
        out += [f'{op} v{r}, v{r}, v{t}' for r, t in zip(regs, tmps)]
    return out
def init_stream(j):
    p = j & 1
    m = [NEGM + qt * 4 for qt in range(4)]; t = [NEGM + qt * 4 + 1 for qt in range(4)]
    out = []
    rm = [rowmax(p, qt, m[qt]) for qt in range(4)]
    for k in range(4): out += [rm[qt][k] for qt in range(4)]
    out += xlane('v_max_f32', m, t)
    for qt in range(4):
        for k in range(8):
            s = S(p, k >> 2, qt) + (k & 3)
            out.append(f'v_sub_f32 v{s}, v{s}, v{m[qt]}')
    for qt in range(4):
        for r in (3, 2, 1, 0): out.append(f'v_sub_f32 v{NEGM + qt * 4 + r}, 0, v{m[qt]}')
    return out

def epilogue(packed, tb):
    rc = [LREG + 2 * i for i in range(4)]
    prep = [f'v_rcp_f32 v{rc[qt]}, v{Lr(1, qt)}' for qt in range(4)]
    units = []
    for k in range(16):
        u, qt = divmod(k, 4)
        b = tb + (k % 2) * 12
        rd = [f'v_accvgpr_read_b32 v{b + i}, a{O(2 * u + (i >> 2), qt) + (i & 3)}' for i in range(8)]
        if packed: mu = [f'v_pk_mul_f32 v[{b + 2 * i}:{b + 2 * i + 1}], v[{b + 2 * i}:{b + 2 * i + 1}], v[{rc[qt]}:{rc[qt] + 1}] op_sel_hi:[1,0]' for i in range(4)]
        else: mu = [f'v_mul_f32 v{b + i}, v{rc[qt]}, v{b + i}' for i in range(8)]
        cv = [f'v_cvt_pk_bf16_f32 v{b + 8 + i}, v{b + 2 * i}, v{b + 2 * i + 1}' for i in range(4)]
        st = [Ins(cl(f'buffer_store_dwordx4 v[{b + 8}:{b + 11}], v{VOFFO}, {srd(SO)}, s{sOo} offen offset:{qt * 1024} {OPT["ost"]}'), 'Ost')]
        if qt == 3: st.append(f's_add_u32 s{sOo}, s{sOo}, 4096')
        units.append((rd, mu, cv, st))
    return prep, units
def epi_flat(units):
    L = []; first = []; lastrd = []
    for k, (rd, mu, cv, st) in enumerate(units):
        first.append(len(L)); L += rd; lastrd.append(len(L) - 1)
        if k: L += units[k - 1][3]
        L += mu + cv
    L += units[-1][3]
    return L, first, lastrd

SPINS = []
def spin_check(name, load, cmp):
    SPINS.append(f"""L_spin_{name}:
s_mov_b32 s{sT0}, 0x40000
L_spin2_{name}:
s_sleep 1
{load}
s_sub_u32 s{sT0}, s{sT0}, 1
s_cbranch_scc1 L_back_{name}
s_waitcnt vmcnt(0)
{cmp}
s_nop 1
s_cbranch_vccnz L_spin2_{name}
s_branch L_back_{name}""")
    return [cmp, f's_cbranch_vccnz L_spin_{name}', f'L_back_{name}:']

def fallback(p, first=False):
    A = Prog()
    nm = 'f' if first else str(p)
    A(f'L_fb{nm}:')
    A('s_nop 7\ns_nop 7')
    TB = P(1 - p, 0)
    m = [TB + i for i in range(4)]; t = [ETMP + i for i in range(4)]; f = [TB + 4 + i for i in range(4)]
    rm = [rowmax(p, qt, m[qt]) for qt in range(4)]
    for k in range(4): A.extend([rm[qt][k] for qt in range(4)])
    A.extend(xlane('v_max_f32', m, t))
    if not first:
        for qt in range(4): A(f'v_max_f32 v{m[qt]}, 0, v{m[qt]}')
        for qt in range(4): A(f'v_exp_f32 v{f[qt]}, -v{m[qt]}')
    for qt in range(4):
        for k in range(8):
            s = S(p, k >> 2, qt) + (k & 3)
            A(f'v_sub_f32 v{s}, v{s}, v{m[qt]}')
        for r in range(4): A(f'v_sub_f32 v{NEGM + qt * 4 + r}, v{NEGM + qt * 4 + r}, v{m[qt]}')
        if not first: A(f'v_mul_f32 v{Lr(1 - p, qt)}, v{Lr(1 - p, qt)}, v{f[qt]}')
    if not first: A(f's_cmp_lg_u32 s{sMODE}, 0\ns_cbranch_scc1 L_fb{p}_b')
    for qt in range(4):
        for k in range(8):
            s = S(1 - p, k >> 2, qt) + (k & 3)
            A(f'v_sub_f32 v{s}, v{s}, v{m[qt]}')
    if not first:
        A(f'L_fb{p}_b:')
        for T in range(8):
            for qt in range(4):
                b = TB + 8 + ((T * 4 + qt) % 2) * 4
                for r in range(4): A(f'v_accvgpr_read_b32 v{b + r}, a{O(T, qt) + r}')
                for r in range(4): A(f'v_mul_f32 v{b + r}, v{b + r}, v{f[qt]}')
                for r in range(4): A(f'v_accvgpr_write_b32 a{O(T, qt) + r}, v{b + r}')
    A.extend(sm_dense(0 if first else 2 + p, 0, 999))
    A('s_nop 7')
    A(f's_setpc_b64 s[{sRET}:{sRET + 1}]')
    A.fix_hazards()
    return A

def stamp(A, idx, base=64):
    if OPT['stamps'] and not OPT['qtl']: A(f's_memtime s[{base + idx * 2}:{base + idx * 2 + 1}]')
def store_stamps(A, n):
    A('s_memrealtime s[62:63]\ns_waitcnt lgkmcnt(0)')
    A('v_lshrrev_b32 v1, 6, v0\ns_lshl_b32 s50, s2, 2\nv_add_u32 v1, s50, v1\nv_lshlrev_b32 v1, 7, v1')
    A('v_and_b32 v2, 63, v0\nv_cmp_eq_u32 vcc, 0, v2\ns_and_saveexec_b64 s[50:51], vcc')
    for i in range(n):
        for k in range(4): A(f'v_mov_b32 v{4 + k}, s{60 + i * 4 + k}')
        A(f'buffer_store_dwordx4 v[4:7], v1, s[56:59], 0 offen offset:{i * 16}')
        A('s_nop 1')

def code_prefetch(A, start, end, va, vd, n, first=0, tag=''):
    A(f's_getpc_b64 s[50:51]')
    A(f'L_pc{tag}_{start}:')
    if start == KNAME: A(f's_sub_u32 s50, s50, L_pc{tag}_{start}-{start}\ns_subb_u32 s51, s51, 0')
    else: A(f's_add_u32 s50, s50, {start}-L_pc{tag}_{start}\ns_addc_u32 s51, s51, 0')
    A(f'v_lshlrev_b32 v{va}, 7, v0')
    if first: A(f'v_add_u32 v{va}, {first * 0x8000}, v{va}')
    for i in range(n):
        A(f'v_min_u32 v{va + 1}, {end}-{start}-4, v{va}')
        A(f'global_load_dword v{vd + i}, v{va + 1}, s[50:51]', tag='pf')
        if i + 1 < n: A(f'v_add_u32 v{va}, 0x8000, v{va}')

DEF_V = []; DEF_S = []
def setup(A):
    A('s_cmp_ge_u32 s2, 256\ns_cbranch_scc1 L_end')
    A(f"""s_bfe_u32 s48, s2, 0x10002
s_mul_i32 s50, s48, 40
s_add_u32 s52, s0, s50
s_addc_u32 s53, s1, 0
s_load_dwordx2 s[{SX}:{SX+1}], s[52:53], 0
s_load_dwordx2 s[{SW_}:{SW_+1}], s[52:53], 24
s_lshr_b32 s51, s2, 7
s_mul_i32 s51, s51, 40
s_add_u32 s54, s0, s51
s_addc_u32 s55, s1, 0
s_load_dwordx2 s[{SK}:{SK+1}], s[52:53], 8
s_load_dwordx2 s[{SV}:{SV+1}], s[52:53], 16
s_load_dwordx2 s[{SWS}:{SWS+1}], s[54:55], 32
s_load_dwordx2 s[{SO}:{SO+1}], s[0:1], 96
s_load_dwordx4 s[92:95], s[0:1], 80""")
    if OPT['stamps']: A('s_memrealtime s[60:61]')
    stamp(A, 0)
    if OPT['pf'] == '1': code_prefetch(A, KNAME, 'L_code_end', 100, 252, 1)
    elif OPT['pf'] == '2':
        A(f'''s_getpc_b64 s[50:51]
L_pcx:
s_sub_u32 s50, s50, L_pcx-{KNAME}
s_subb_u32 s51, s51, 0
s_lshr_b32 s48, s2, 3
s_cmp_ge_u32 s48, 3
s_cbranch_scc1 L_nopf
s_lshl_b32 s48, s48, 15
v_lshlrev_b32 v100, 7, v0
v_add_u32 v100, s48, v100
v_min_u32 v100, L_code_end-{KNAME}-4, v100''')
        A('global_load_dword v252, v100, s[50:51]', tag='pf')
        A('L_nopf:')
    A(f"""s_and_b32 s46, s2, 6
s_lshl_b32 s46, s46, 1
s_lshr_b32 s48, s2, 6
s_add_u32 s46, s46, s48
s_and_b32 s47, s2, 1
s_lshl_b32 s47, s47, 3
s_bfe_u32 s48, s2, 0x30003
s_add_u32 s47, s47, s48
s_and_b32 s49, s46, 7
v_lshrrev_b32 v1, 6, v0
v_and_b32 v2, 63, v0
v_readfirstlane_b32 s{sW}, v1
v_lshrrev_b32 v97, 4, v2
v_lshrrev_b32 v100, 3, v2
v_lshl_add_u32 v100, v1, 6, v100
v_mul_u32_u24 v100, 1152, v100
s_lshl_b32 s{sW4K}, s{sW}, 12
v_and_b32 v101, 7, v2
v_xor_b32 v101, v101, v97
v_lshl_add_u32 v{VOFFX}, v101, 4, v100
v_xor_b32 v101, 4, v101
v_lshl_add_u32 v102, v101, 4, v100
v_add_u32 v{VOFFX + 1}, {8 * 1152 - 1024}, v102
v_add_u32 v{VOFFX + 2}, {2 * (8 * 1152 - 1024)}, v{VOFFX}
v_add_u32 v{VOFFX + 3}, {3 * (8 * 1152 - 1024)}, v102
v_lshrrev_b32 v100, 5, v2
v_and_b32 v101, 31, v2
v_lshl_add_u32 v103, v1, 3, v100
v_lshlrev_b32 v103, 13, v103
v_lshlrev_b32 v104, 2, v100
v_xor_b32 v104, v104, v101
v_lshl_add_u32 v{VOFFW}, v104, 4, v103
v_xor_b32 v104, 128, v{VOFFW}
v_add_u32 v{VOFFW + 1}, {16384 - 1024}, v104
v_add_u32 v{VOFFW + 2}, {2 * (16384 - 1024)}, v{VOFFW}
v_add_u32 v{VOFFW + 3}, {3 * (16384 - 1024)}, v104
s_mul_i32 s50, s49, 294912
s_lshl_b32 s51, s47, 9
s_mov_b32 s{SX+2}, 294912
s_mov_b32 s{SX+3}, 0x20000
s_sub_u32 s{SW_+2}, {576 * 8192}, s51
s_mov_b32 s{SW_+3}, 0x20000
s_waitcnt lgkmcnt(0)""")
    stamp(A, 1)
    A(f"""s_add_u32 s{SX}, s{SX}, s50
s_addc_u32 s{SX+1}, s{SX+1}, 0
s_add_u32 s{SW_}, s{SW_}, s51
s_addc_u32 s{SW_+1}, s{SW_+1}, 0""")
    A.extend(flat(dma_w(0)) + flat(dma_x(0)) + flat(dma_x(1)) + flat(dma_w(1)))
    A(f"""v_and_b32 v96, 15, v2
v_and_b32 v98, 3, v2
v_bfe_u32 v99, v2, 2, 2
v_lshl_add_u32 v100, v97, 3, v99
v_lshlrev_b32 v101, 6, v99
v_lshl_add_u32 v101, v100, 9, v101
v_lshl_add_u32 v101, v98, 4, v101
v_add_u32 v{WADDR}, {BLK}, v101""")
    for T in range(1, 4): A(f'v_xor_b32 v{WADDR + T}, {T * 64}, v{WADDR}')
    A(f"""v_lshrrev_b32 v100, 1, v96
v_xor_b32 v100, v100, v97
v_lshlrev_b32 v100, 4, v100
v_lshl_add_u32 v100, v96, 7, v100
v_lshl_add_u32 v100, v1, 12, v100
v_add_u32 v{XADDR}, {2 * BLK}, v100
v_xor_b32 v{XADDR + 1}, 64, v{XADDR}
v_add_u32 v{XADDR + 2}, {4 * BLK}, v{XADDR}
v_add_u32 v{XADDR + 3}, {4 * BLK}, v{XADDR + 1}""")
    if OPT['su'] == '2': A.extend(flat(dma_w(2)) + flat(dma_x(2)))
    if OPT['su'] == '0':
        A.extend(flat(dma_x(2)) + flat(dma_w(2)) + flat(dma_w(3)))
        if OPT['pf'] == '1': code_prefetch(A, KNAME, 'L_code_end', 100, 253, 2, first=1, tag='b')
    KVS = f"""s_lshl_b32 s50, s49, 23
s_lshl_b32 s51, s47, 19
s_add_u32 s50, s50, s51
s_add_u32 s{SK}, s{SK}, s50|s_addc_u32 s{SK+1}, s{SK+1}, 0
s_mov_b32 s{SK+2}, 0x80000
s_mov_b32 s{SK+3}, 0x20000
s_add_u32 s{SV}, s{SV}, s50|s_addc_u32 s{SV+1}, s{SV+1}, 0
s_mov_b32 s{SV+2}, 0x80000
s_mov_b32 s{SV+3}, 0x20000"""
    ne = int(OPT['l2e'])
    if ne:
        A(KVS.replace('|', '\n')); KVS = ''
        A(f'v_lshlrev_b32 v100, 7, v2\nv_mul_u32_u24 v101, {ne * 1024}, v1\nv_add_u32 v100, v100, v101\nv_cmp_le_u32 vcc, {ne * 8}, v2\nv_cndmask_b32 v100, v100, -1, vcc')
        A(f's_mov_b32 s50, {8 * 8192}\ns_mov_b32 s51, {6 * 8192}')
        A(cl(f'buffer_load_dword a254, v100, {srd(SK)}, s50 offen {OPT["l2p"]}'), tag='l2')
        A(cl(f'buffer_load_dword a253, v100, {srd(SV)}, s51 offen {OPT["l2p"]}'), tag='l2')
    V = DEF_V; a, b, c, d, l15, g = 92, 93, 94, 95, 61, 62
    V += [f'v_add_u32 v{WADDR + 4 + T}, {6 * BLK}, v{WADDR + T}' for T in range(4)]
    V += f"""v_lshlrev_b32 v{VOFFO}, 4, v2
v_and_b32 v{l15}, 15, v2
v_lshrrev_b32 v{g}, 4, v2
v_lshlrev_b32 v{a}, 11, v1
v_lshl_add_u32 v{a}, v{g}, 8, v{a}
v_lshl_add_u32 v{b}, v1, 3, v{g}""".split('\n')
    for o in range(2):
        V += f"""v_add_u32 v{c}, {4 * o}, v{b}
v_and_b32 v{d}, 15, v{c}
v_xor_b32 v{d}, v{d}, v{l15}
v_lshl_add_u32 v{VOFFK + o}, v{d}, 4, v{a}
v_and_b32 v{d}, 7, v{c}
v_lshlrev_b32 v{d}, 1, v{d}
v_xor_b32 v{d}, v{d}, v{l15}
v_lshl_add_u32 v{VOFFV + o}, v{d}, 4, v{a}""".split('\n')
    V += [f'v_lshlrev_b32 v{a}, 12, v1', f'v_lshl_add_u32 v{a}, v{g}, 8, v{a}']
    for n in range(4):
        V += f"""v_add_u32 v{c}, {4 * n}, v{g}
v_xor_b32 v{d}, v{c}, v{l15}
v_lshl_add_u32 v{VSK + n}, v{d}, 4, v{a}
v_and_b32 v{d}, 7, v{c}
v_lshlrev_b32 v{d}, 1, v{d}
v_xor_b32 v{d}, v{d}, v{l15}
v_lshl_add_u32 v{VSV + n}, v{d}, 4, v{a}""".split('\n')
    V += [f'v_xor_b32 v{a}, v{g}, v{l15}', f'v_lshlrev_b32 v{a}, 4, v{a}', f'v_lshl_add_u32 v{KADDR}, v{l15}, 8, v{a}']
    V += [f'v_xor_b32 v{KADDR + u}, {u * 64}, v{KADDR}' for u in range(1, 4)]
    V += f"""v_lshrrev_b32 v{a}, 2, v2
v_and_b32 v{b}, 7, v{a}
v_lshlrev_b32 v{b}, 5, v{b}
v_lshl_add_u32 v{b}, v{a}, 8, v{b}
v_and_b32 v{c}, 3, v2
v_lshl_add_u32 v{b}, v{c}, 3, v{b}
v_add_u32 v{VADDR}, 0x10000, v{b}
v_mul_u32_u24 v{a}, 384, v{a}
v_lshl_add_u32 v{a}, v{c}, 3, v{a}
v_mul_u32_u24 v{b}, 96, v1
v_add_u32 v{JADDR}, v{a}, v{b}""".split('\n')
    V += [f'v_xor_b32 v{VADDR + T}, {T * 32}, v{VADDR}' for T in range(1, 8)]
    for n in range(3):
        t = VOFFJ + n
        V += f"""v_add_u32 v{d}, {64 * n}, v2
v_mul_u32_u24 v{t}, 2731, v{d}
v_lshrrev_b32 v{t}, 16, v{t}
v_mul_u32_u24 v{CW1}, 24, v{t}
v_sub_u32 v{d}, v{d}, v{CW1}
v_lshl_add_u32 v{t}, v1, 3, v{t}
v_mul_u32_u24 v{t}, 1152, v{t}
v_lshl_add_u32 v{t}, v{d}, 4, v{t}
v_subrev_u32 v{t}, {n * 1024}, v{t}""".split('\n')
    V += [f'v_mov_b32 v{CR}, 0']
    if OPT['cls'] != '0':
        cb = {'1': 's_lshr_b32 s51, s2, 6\ns_xor_b32 s51, s51, s2', '2': 's_mov_b32 s51, s2'}[OPT['cls']]
        JN1 = f'{cb}\ns_bitcmp1_b32 s51, 0|s_cselect_b32 s{SWS+2}, 36864, 0'
        JN2 = f'{cb}\ns_bitcmp1_b32 s51, 0|s_cselect_b32 s{SWD+2}, {3 * 128 * 9216 + 9216}, 0'
    else:
        JN1 = f's_mov_b32 s{SWS+2}, 36864'; JN2 = f's_mov_b32 s{SWD+2}, {3 * 128 * 9216 + 9216}'
    S_ = f"""s_and_b32 s50, s2, 127
s_mul_i32 s50, s50, 36864
s_add_u32 s{SWS}, s{SWS}, s50|s_addc_u32 s{SWS+1}, s{SWS+1}, 0
{JN1}
s_mov_b32 s{SWS+3}, 0x20000
s_lshl_b32 s{sW2K}, s{sW}, 11
{KVS}
s_mov_b32 s{sWS}, s{SO}
s_mov_b32 s{sWS+1}, s{SO+1}
s_mov_b32 s{sOUT}, s92
s_mov_b32 s{sOUT+1}, s93
s_lshr_b32 s50, s2, 7
s_lshl_b32 s50, s50, 9
s_and_b32 s51, s2, 64
s_add_u32 s50, s50, s51
s_bfe_u32 s51, s2, 0x10002
s_lshl_b32 s51, s51, 5
s_add_u32 s50, s50, s51
s_bfe_u32 s51, s2, 0x30003
s_lshl_b32 s51, s51, 2
s_add_u32 s50, s50, s51
s_and_b32 s51, s2, 3
s_add_u32 s50, s50, s51
s_mul_i32 s50, s50, 9216
s_add_u32 s50, s50, {WS_WO}
s_add_u32 s{SWD}, s{SO}, s50|s_addc_u32 s{SWD+1}, s{SO+1}, 0
{JN2}
s_mov_b32 s{SWD+3}, 0x20000
s_lshl_b32 s50, s2, 7
s_lshl_b32 s51, s{sW}, 2
s_add_u32 s50, s50, s51
s_add_u32 s50, s50, {WS_FL}
s_add_u32 s{SFL}, s{SO}, s50|s_addc_u32 s{SFL+1}, s{SO+1}, 0
s_mov_b32 s{SFL+2}, 68
s_mov_b32 s{SFL+3}, 0x20000""".split('\n')
    if OPT['stamps']:
        S_ += [f's_add_u32 s56, s{SO}, {WS_STAMP}|s_addc_u32 s57, s{SO+1}, 0', 's_mov_b32 s58, 0x100000', 's_mov_b32 s59, 0x20000']
    S_ += f"""s_lshl_b32 s50, s46, 2
s_add_u32 s50, s50, s{sW}
s_lshl_b32 s50, s50, 19
s_lshl_b32 s51, s47, 15
s_add_u32 s50, s50, s51
s_add_u32 s{SO}, s{SO}, s50|s_addc_u32 s{SO+1}, s{SO+1}, 0
s_mov_b32 s{SO+2}, 32768
s_mov_b32 s{SO+3}, 0x20000
s_mov_b32 s{sSC}, {f2i(SCALE):#x}
s_mov_b32 s{sTHR}, {f2i(2.0 ** 24):#x}
s_mov_b32 s{sLOW}, {f2i(2.0 ** (float(OPT['m0']) - 12)):#x}
s_mov_b32 s{sOo}, 0
s_mov_b32 s{sDBG}, s94
s_mov_b32 s{sDBG+1}, s95
s_mov_b32 s{sKo}, {8 * 8192}
s_mov_b32 s{sVo}, {6 * 8192}
s_mov_b32 s{sCnt}, 3
s_mov_b32 s{sHead}, 0""".split('\n')
    DEF_S.extend(x for x in S_ if x)
    if OPT['jo'] in '67' or (OPT['jo'] == '8' and OPT['j8'] == '0'):
        A.extend(DEF_V); DEF_V.clear()
        for x in DEF_S: A.extend(x.split('|'))
        DEF_S.clear()

def x_reads(pc):
    c = pc >> 1; blk = xblock(pc)
    return [Ins(f'ds_read_b128 v[{XF(2 * c + ks, 2 * (pc & 1) + qq)}:{XF(2 * c + ks, 2 * (pc & 1) + qq) + 3}], v{XADDR + ks + (2 if blk == 6 else 0)} offset:{(0 if blk == 6 else (blk - 2) * BLK) + qq * 2048}', f'rX{pc}')
            for ks in range(2) for qq in range(2)]
def w_read(t, h, T, dst):
    blk = wblock(t)
    ad = WADDR + (T >> 1) if blk <= 4 else WADDR + 4 + (T >> 1)
    off = (blk - 1 if blk <= 4 else blk - 7) * BLK + h * 256 + (T & 1) * 8
    d = int(dst[1:])
    return [Ins(f'ds_read_b64_tr_b16 {dst[0]}[{d + 2 * s}:{d + 2 * s + 1}], v{ad} offset:{off + s * 2048}', f'rW{t}') for s in range(2)]
def w_reads(t):
    out = []
    for f in range(16): out += w_read(t, f >> 3, f & 7, f'a{WF((16 * t + f) % NWS)}')
    return out
UH = ['a160', 'a192', 'a160', 'a192', 'a0', 'a32', 'a0', 'a32']
def uw(n, k, tt): return f'{UH[n][0]}{int(UH[n][1:]) + (k * 2 + tt) * 4}'
def unit_order(n):
    if not OPT['cqb']: return [(k, tt) for k in range(4) for tt in range(2)]
    if n == 0: return [(0, 0), (1, 0), (0, 1), (1, 1), (2, 0), (3, 0), (2, 1), (3, 1)]
    return [(k, tt) for tt in range(2) for k in range(4)]
def unit_mf(n):
    if not OPT['cqb']: return [(k, tt, qt) for k in range(4) for tt in range(2) for qt in range(4)]
    if n == 0: return [(2 * hf + k, tt, qt) for hf in range(2) for tt in range(2) for qt in range(4) for k in range(2)]
    return [(k, tt, qt) for tt in range(2) for qt in range(4) for k in range(4)]
def unit_reads(n):
    h, u = n >> 2, n & 3
    out = []
    for k, tt in unit_order(n): out += w_read(14 + k, h, 2 * u + tt, uw(n, k, tt))
    return out
def conv(n):
    h, u = n >> 2, n & 3
    V = []; pend = []
    for tt in range(2):
        for qt in range(4):
            acc = QACC(h, 2 * u + tt, qt)
            if h == 1: b = int(acc[1:]); rd = []
            else:
                b = 84 + ((n * 8 + tt * 4 + qt) % 3) * 4
                rd = [f'v_accvgpr_read_b32 v{b + r}, a{int(acc[1:]) + r}' for r in range(4)]
            mu = [f'v_mul_f32 v{b + r}, s{sSC}, v{b + r}' for r in range(4)]
            cv = [f'v_cvt_pk_bf16_f32 v{b}, v{b}, v{b + 1}', f'v_cvt_pk_bf16_f32 v{b + 1}, v{b + 2}, v{b + 3}']
            V += [Ins(x) for x in rd + mu + pend + cv]
            pend = [f'v_accvgpr_write_b32 a{Q(h, qt, u) + 2 * tt + r}, v{b + r}' for r in range(2)]
    V += [Ins(x) for x in pend]
    return V, [], V

def q_phase(A):
    stamp(A, 2)
    A('WAITVM X0+X1+W0+W1\ns_barrier')
    stamp(A, 3)
    def WP(c, f, ks): return 128 + ((16 * c + f) % 12) * 8 + ks * 4
    def pair_reads(c, f): return w_read(2 * c, f >> 3, f & 7, f'a{WP(c, f, 0)}') + w_read(2 * c + 1, f >> 3, f & 7, f'a{WP(c, f, 1)}')
    def JR(i): return f'a{224 + 4 * i}' if i < 8 else 'v92'
    def jstore(i):
        r, n = divmod(i, 3)
        pre = [f's_add_u32 s{sT0}, s{sW}, {4 * r}', f's_mul_i32 s{sMODE}, s{sT0}, 43', f's_lshr_b32 s{sMODE}, s{sMODE}, 7',
               f's_mul_i32 s{sMODE}, s{sMODE}, {128 * 9216 - 9216}', f's_mul_i32 s{sT0}, s{sT0}, 3072', f's_add_u32 s{sJ}, s{sT0}, s{sMODE}'] if n == 0 else []
        return [(pre, Ins(cl(f'buffer_store_dwordx4 {rng(JR(i), 4)}, v{VOFFO}, {srd(SWD)}, s{sJ} offen offset:{n * 1024} {OPT["st"]}'), 'Jst'), [])]
    def jdma(r):
        return [([f's_mov_b32 s{sWe}, {r * 384}', f's_mul_i32 m0, s{sW}, 3072'] if n == 0 else [],
                 Ins(f'buffer_load_dwordx4 v{VOFFJ + n}, {srd(SWS)}, s{sWe} offen offset:{n * 1024} nt lds', f'J{r}'), []) for n in range(3)]
    xr = x_reads(0) + x_reads(1)
    A.extend(xr[:1] + xr[2:3] + pair_reads(0, 0) + xr[1:2] + xr[3:] + pair_reads(0, 1) + pair_reads(0, 2))
    BG = 24
    N = 14 * 64
    G = Gaps(N)
    mf = []; ref = []
    PR = {(c, f): pair_reads(c, f) for c in range(7) for f in range(16)}
    XRD = {pc: x_reads(pc) for pc in range(2, 16)}
    for c in range(7):
        if c: ref += XRD[2 * c] + XRD[2 * c + 1]
        for f in range(16):
            if c or f > 2: ref += PR[c, f]
            for qt in range(4):
                acc = QACC(f >> 3, f & 7, qt)
                for ks in range(2):
                    m = Ins(mfma(acc, f'a{WP(c, f, ks)}', f'v{XF(2 * c + ks, qt)}', acc if (c or ks) else '0')); mf.append(m); ref.append(m)
    U0 = unit_reads(0)[:8]
    ref += XRD[14] + XRD[15] + U0
    for t in range(14):
        o = 64 * t
        groups = []
        if t == 0: groups = [(dma_x(3), [5, 8, 11, 14]), (dma_x(4), [18, 22, 26, 30]), (dma_w(4), [34, 38, 42, 46]), (dma_x(5), [51, 54, 57, 60])]
        elif t == 1: groups = [(dma_w(5), [2, 7, 12, 17]), (dma_x(6), [28, 33, 38, 43]), (dma_w(6), [48, 52, 56, 60])]
        elif t == 2: groups = [(jdma(0), [2, 7, 12]), (dma_w(7), [18, 24, 30, 36]), (dma_x(7), [42, 48, 54, 60])]
        elif t in (5, 9): groups = [(dma_x(t + 5), [10, 14, 18, 22]), (jdma(t // 4), [28, 33, 38]), (dma_w(t + 5), [44, 50, 55, 60])]
        elif t == 13: groups = [(dma_kk(0), [28, 33, 38, 43]), (dma_vv(0), [48, 52, 56, 60])]
        elif t & 1: groups = [(dma_x(t + 5), [10, 16, 22, 29]), (dma_w(t + 5), [36, 44, 52, 60])]
        else: groups = [(dma_w(t + 5), [2, 10, 18, 26]), (dma_x(t + 5), [34, 42, 50, 58])]
        for gr, pos in groups:
            G.place_dma(gr, [o + x for x in pos])
            if gr[0][1].tag == f'X{t + 5}': G.sc[o + pos[0] - 3].append(f'WAITLG rX{t + 2}')
        for i, g in {4: [(0, 31)], 5: [(1, 5)], 6: [(2, 30)], 8: [(3, 31)], 9: [(4, 5)], 10: [(5, 30)], 12: [(6, 15), (7, 38), (8, 62)]}.get(t, []):
            G.place_dma(jstore(i), [o + g])
        if t == 12:
            G.v[o + 44].append(f'v_mov_b32 v{VPA}, 0')
            G.mem[o + 46].append(Ins(cl(f'buffer_store_dword v{VPA}, v{VOFFO}, {srd(SFL)}, 0 offen {OPT["st"]}'), 'Fz'))
        G.sc[o].append(f'WAITVM X{t + 2}')
        if t == 0: G.sc[2].append('WAITLG rX1')
        if t & 1:
            tags = f'W{t + 1}+W{t + 2}' + {3: '+J0', 7: '+J1', 11: '+J2'}.get(t, '')
            G.sc[o + BG] += [f'WAITVM {tags} lg0', 's_barrier']
        if t == 13: G.sc[o + 62] += ['WAITVM W16+W17+X16+X17 lg0', 's_barrier']
    def put(ins, g, lim=None):
        while G.mem[g] or ((g >> 6) & 1 and BG - 6 <= (g & 63) < BG): g += 1
        assert lim is None or g <= lim, (ins.text, g, lim)
        G.mem[g].append(ins); return g
    for t in range(14):
        g = 64 * t
        for r in XRD[t + 2]: g = put(r, g)
    g = 0
    for c in range(7):
        for f in range(16):
            if c == 0 and f < 3: continue
            P_ = 16 * c + f
            for i, r in enumerate(PR[c, f]):
                g = put(r, max(g, 8 * (P_ - 11), 128 * c - 64 + BG + (f * 4 + i) * 3 // 2 if c else 0), lim=min(8 * P_ - 5, 128 * c + 64 + BG - 7))
    for t in (3, 7, 11):
        g = 64 * t + BG + 1
        for n in range(3):
            d = JR((t // 4) * 3 + n)
            for sx in range(2): g = put(Ins(f'ds_read_b64_tr_b16 {d[0]}[{int(d[1:]) + 2 * sx}:{int(d[1:]) + 2 * sx + 1}], v{JADDR} offset:{n * 32 + sx * 16 * 384}'), g, lim=64 * (t + 1) + 8)
    g = 64 * 13 + BG
    for r in U0: g = put(r, g, lim=64 * 13 + 55)
    for i, x in enumerate(DEF_V[:56]): G.v[(i * 62) // 56].append(x)
    for i, x in enumerate(DEF_V[56:]): G.v[64 + (i * 62) // (len(DEF_V) - 56)].append(x)
    g = 30
    while DEF_S:
        if not G.sc[g] and g % 8 not in (6, 7): G.sc[g] += DEF_S.pop(0).split('|')
        g += 1
    assert g < 64 * 4, g
    if OPT['qtl']:
        for t in range(14): G.v[64 * t + 3].append('s_memtime s[98:99]'); G.v[64 * t + 40].append(f's_mov_b32 s{64 + t}, s98')
    out = [I(x) for x in G.weave(mf)]
    check_order(ref, out, 'Q')
    A.extend(out)
    stamp(A, 4)
    gsu = f"""s_and_b32 s50, s2, 6
s_lshl_b32 s50, s50, 3
s_lshr_b32 s51, s2, 5
s_lshl_b32 s51, s51, 1
s_add_u32 s50, s50, s51
s_lshr_b32 s51, s{sW}, 1
s_add_u32 s50, s50, s51
s_lshl_b32 s50, s50, 19
s_and_b32 s51, s2, 1
s_lshl_b32 s51, s51, 18
s_add_u32 s50, s50, s51
s_and_b32 s51, s{sW}, 1
s_lshl_b32 s51, s51, 11
s_add_u32 s50, s50, s51
s_add_u32 s{SGO}, s{sWS}, s50|s_addc_u32 s{SGO+1}, s{sWS+1}, 0
s_mov_b32 s{SGO+2}, {262144 - 2048}
s_and_b32 s50, s2, 4
s_bfe_u32 s51, s2, 0x20003
s_add_u32 s50, s50, s51
s_lshl_b32 s50, s50, 1
s_and_b32 s51, s2, 1
s_add_u32 s50, s50, s51
s_mul_i32 s50, s50, {64 * 9216}
s_add_u32 s50, s50, {WS_WO}
s_add_u32 s{SGW}, s{sWS}, s50|s_addc_u32 s{SGW+1}, s{sWS+1}, 0
s_mov_b32 s{SGW+2}, {64 * 9216}""".split('\n')
    NG = 288
    G = Gaps(NG + 8)
    mf = []; ref = []
    UR = [unit_reads(n) for n in range(8)]
    XR = x_reads(16) + x_reads(17)
    K0 = k_reads(0); K1 = k_reads(1)
    CV_ = [conv(n) for n in range(8)]
    ref += XR
    for n in range(8):
        h, u = n >> 2, n & 3
        m = [Ins(mfma(QACC(h, 2 * u + tt, qt), uw(n, k, tt), f'v{XF(14 + k, qt)}', QACC(h, 2 * u + tt, qt))) for k, tt, qt in unit_mf(n)]
        mf += m
        ref += (UR[n][8:] if n == 0 else UR[n]) + m + CV_[n][2]
    m = [Ins(x) for x in qk_mfmas(0)]
    mf += m; ref += K0 + m + K1
    if OPT['jo'] == '8':
        for i, jobs in enumerate([dma_vv(1), dma_kk(2), dma_vv(2)]):
            G.place_dma(jobs, [34 + 16 * (4 * i + x) for x in range(4)])
        kv = {1: 34}
    elif OPT['jo'] in '567':
        for i, jobs in enumerate([dma_kk(1), dma_vv(1), dma_kk(2), dma_vv(2)]):
            G.place_dma(jobs, [20 + 13 * (4 * i + x) for x in range(4)])
        kv = {1: 20 + 13 * 4}
    elif OPT['jo'] == '4':
        k0 = int(OPT['kv0'])
        for i, jobs in enumerate([dma_kk(0), dma_vv(0), dma_kk(1), dma_vv(1), dma_kk(2)]):
            st_ = (215 - k0) // 20
            G.place_dma(jobs, [k0 + st_ * (4 * i + x) for x in range(4)])
        kv = {1: k0 + st_ * 12}
    else:
        JS = [jstore(i) for i in range(9)]
        ref = [x[0][1] for x in JS] + ref
        order = [6, 8, 7, 0, 1, 2, 3, 4, 5]
        jp = [17, 24, 48, 76, 100, 124, 152, 176, 200]; fz = 220; kv = {0: 34, 1: 82, 2: 130, 3: 182}
        for i, g in zip(order, jp): G.place_dma(JS[i], [g])
        G.v[fz - 2].append(f'v_mov_b32 v{VPA}, 0')
        G.mem[fz].append(Ins(cl(f'buffer_store_dword v{VPA}, v{VOFFO}, {srd(SFL)}, 0 offen {OPT["st"]}'), 'Fz'))
        for i, jobs in enumerate([dma_kk(0), dma_vv(1), dma_kk(2), dma_vv(2)]):
            G.place_dma(jobs, [kv[i] + 11 * x for x in range(4)])
    G.place_dma(dma_kk(3), [250, 258, 266, 274])
    G.sc[kv[1] - 3].append('WAITLG rX16+rX17')
    gi = 260
    for x in gsu:
        while G.sc[gi]: gi += 1
        G.sc[gi] += x.split('|')
    BAR = 32 * 7 + 9
    G.sc[BAR] += ['WAITVM KK0 lg0', 's_barrier']
    def put(ins, g, lim=None):
        while G.mem[g] or (BAR - 5 <= g < BAR): g += 1
        assert lim is None or g <= lim, (ins.text, g, lim)
        G.mem[g].append(ins); return g
    cur = 0
    for n in range(8):
        V, D, _ = CV_[n]
        g0 = 32 * (n + 1) + 1; span = 30
        vp = [g0 + (i * span) // len(V) for i in range(len(V))]
        for x, g in zip(V, vp): G.v[g].append(x)
        for i, d in D: cur = put(d, max(cur, vp[i] + 1))
    g = 0
    for r in ((XR[:4] + UR[0][8:12] + XR[4:] + UR[0][12:]) if OPT['cqb'] else (XR[:2] + XR[4:6] + UR[0][8:12] + XR[2:4] + XR[6:] + UR[0][12:])): g = put(r, g)
    for n in range(1, 8):
        for i, r in enumerate(UR[n]):
            g = put(r, max(g, 32 * (n - 1) + (i * 3) // 2), lim=min((32 * n + 16 * (i // 8) - 5 + (i % 8) // 2) if OPT['cqb'] else 32 * n + 2 * i - 5, BAR - 6))
    g = BAR
    for i, r in enumerate(K0): g = put(r, max(g, BAR + 2 * i), lim=(256 + 16 * (i // 4) - 5 + i % 4) if OPT['cqk'] else 256 + 4 * i - 6)
    for i, r in enumerate(K1): g = put(r, max(g, (256 + 16 * (i // 4) + 13 + i % 4) if OPT['cqk'] else 256 + 4 * i + 4))
    zero = [Ins(x) for x in negm_init()]
    ones = [Ins(x) for x in f'v_and_b32 v{ONES}, 3, v2|v_cmp_eq_u32 vcc, 0, v{ONES}|v_mov_b32 v{ONES + 1}, 0x3f803f80|v_cndmask_b32 v{ONES}, 0, v{ONES + 1}, vcc|v_mov_b32 v{ONES + 1}, v{ONES}|v_mov_b64 v[{ONES + 2}:{ONES + 3}], v[{ONES}:{ONES + 1}]'.split('|')]
    sm0 = [Ins(x) for x in sm_dense(0, 0, 68)]
    if not INL():
        k = ref.index(m[0]); ref[k:k] = zero
        G.v[255] += zero; zero = []
    ref += ones + zero + sm0
    NH = int(OPT['nh'])
    for i, x in enumerate(sm0[:NH]): G.v[264 + (i * 23) // NH if i < 5 else 280 + ((i - 5) * 8) // max(NH - 5, 1)].append(x)
    G.v[290] += ones + zero[:4] + sm0[NH:] + zero[4:]
    if OPT['stamps'] and not OPT['qtl']: G.sc[257].append('s_memtime s[74:75]')
    if OPT['qtl']:
        for n in range(9): G.v[32 * n + 3].append('s_memtime s[98:99]'); G.v[32 * n + 25].append(f's_mov_b32 s{78 + n}, s98')
    out = [I(x) for x in G.weave(mf)]
    check_order(ref, out, 'QB')
    A.extend(out)

def seg_name(j):
    if j == 0 or (j == 32 and not OPT['w1']): return 's0'
    if j == 32: return 's32'
    if j == 31: return 'sp31'
    if j == 63: return 'fin31'
    if j >= 56: return f'p{j}'
    return f'r{j % 8}'

def gen():
    A = Prog()
    setup(A)
    q_phase(A)
    stamp(A, 6)
    if OPT['tl']: A('s_mov_b32 s97, 0')
    def tagsof(which, t):
        if which == 'V' and t < 6: return f'VV{t // 2}'
        if which == 'K' and t < 8: return f'KK{t // 2}'
        return f'{which}{t}'
    GA = [4, 5, 6]
    def WB(c, n, u): return 128 + ((9 * c + n) % 4) * 16 + u * 4
    def GACC(n, mm): i = n * 2 + mm; return 64 + i * 4 if i < 16 else 200 + (i - 16) * 4
    def OB(s, mm): return 128 + ((s + 8) % 16) * 8 + mm * 4
    def g_wreads(c, n):
        out = []
        for u in range(4):
            ad = (c % 4) * 36864 + u * 9216 + n * 1024
            out.append(Ins(f'ds_read_b128 v[{WB(c, n, u)}:{WB(c, n, u) + 3}], v{GA[ad >> 16]} offset:{ad & 0xffff}', f'rG{c}'))
        return out
    def g_oloads(s):
        gen_, i, u = s >> 5, (s >> 2) & 7, s & 3
        off, sr = ((2 * i + gen_) * 16384 + u * 4096, SGO) if s < 64 else (i * 32768 + u * 4096, SG2O)
        return [([f's_mov_b32 s{sWe}, {off}'] if mm == 0 else [],
                 Ins(cl(f'buffer_load_dwordx4 a[{OB(s, mm)}:{OB(s, mm) + 3}], v{VSK_[mm]}, {srd(sr)}, s{sWe} offen {OPT["g_o"]}'), f'GO{s}'), []) for mm in range(2)]
    def g_w8(a, tag):
        return [([f's_mov_b32 s{sKo}, {a}', f's_add_u32 m0, s{sW2K}, {a}'] if o == 0 else [],
                 Ins(cl(f'buffer_load_dwordx4 v{VOFFK}, {srd(SGW)}, s{sKo} offen offset:{o * 1024} {OPT["g_w"]} lds'), tag), []) for o in range(2)]
    def g_wchunk(c):
        out = []
        for n in range(9):
            pre = [f's_add_u32 s{sKo}, s{sXo}, {(c % 16) * 36864 + (n // 4) * 4096}', f's_add_u32 m0, s{sXo}, {(c % 4) * 36864 + (n // 4) * 4096}'] if n % 4 == 0 else []
            out.append((pre, Ins(cl(f'buffer_load_dwordx4 v{VOFFO}, {srd(SGW if c < 16 else SG2W)}, s{sKo} offen offset:{(n % 4) * 1024} {OPT["g_w"]} lds'), f'GW{c}'), []))
        return out
    poll1 = f'buffer_load_dword v{VPOLL}, v{VPA}, {srd(SFP)}, 0 offen sc1'
    poll2 = f'buffer_load_dword v{VPOLL}, v{VPA}, {srd(SFP)}, 0 offen offset:16 sc1'
    pollc = f'buffer_load_dword v{VPOLL}, v{VPA}, {srd(SWS)}, 0 offen sc1'
    polld = f'buffer_load_dword v{VPOLL}, v{VPP}, {srd(SFP)}, 0 offen offset:64 sc1'
    ne1 = f'v_cmp_ne_u32 vcc, 1, v{VPOLL}'
    qcopy = [f'v_accvgpr_mov_b32 a{128 + i}, a{192 + i}' for i in range(64)]

    POST = []
    def fill(G, j):
        jj = j & 31; nm = seg_name(j); p = j & 1
        if j % 2 == 0:
            tags = [tagsof('V', j), tagsof('V', j + 1), tagsof('K', j + 2), tagsof('K', j + 3)] + (['Jst', 'Fz'] if j == 6 else [])
            G.sc[0] += [f'WAITVM {"+".join(tags)} lg0', 's_barrier']
        if j < 63:
            for pos, x in softmax_stream(j):
                if pos >= NG: G.v[pos - NG].append(x)
            for pos, x in softmax_stream(j + 1):
                if pos < NG: G.v[pos].append(x)
        if jj == 0:
            G.v[20].append(f'v_max3_f32 v{CT}, v{Lr(p, 0)}, v{Lr(p, 1)}, v{Lr(p, 2)}')
            G.v[22].append(f'v_min3_f32 v{VPG}, v{Lr(p, 0)}, v{Lr(p, 1)}, v{Lr(p, 2)}')
            G.v[29] += [f'v_max_f32 v{CT}, v{CT}, v{Lr(p, 3)}', f'v_min_f32 v{VPG}, v{VPG}, v{Lr(p, 3)}']
            G.v[30] += [f'v_cmp_gt_f32 s[50:51], s{sLOW}, v{VPG}']
            G.v[31] += [f'v_cmp_lt_f32 vcc, s{sTHR}, v{CT}']
            G.sc[32] += ['s_or_b64 s[50:51], s[50:51], vcc', f's_cbranch_scc1 L_st_{nm}', f'L_bk_{nm}:']
        else:
            G.v[20].append(f'v_max3_f32 v{CT}, v{Lr(p, 0)}, v{Lr(p, 1)}, v{Lr(p, 2)}')
            G.v[29].append(f'v_max_f32 v{CT}, v{CT}, v{Lr(p, 3)}')
            G.v[31].append(f'v_cmp_lt_f32 vcc, s{sTHR}, v{CT}')
            G.sc[32] += [f's_cbranch_vccnz L_st_{nm}', f'L_bk_{nm}:']
        if j < 63:
            for r, g in zip(v_reads(j), [1, 3, 5, 7, 9, 13, 15, 17, 19, 21, 22, 23, 25, 33, 35, 37]): G.mem[g].append(r)
            if j + 2 < 64:
                for r, g in zip(k_reads(j + 2), [39, 41, 45, 47, 49, 51, 53, 55]): G.mem[g].append(r)
            if j < 56: G.place_dma(dma_kv('K', j + 8) + dma_kv('V', j + 6), [11, 27, 43, 59])
            else:
                W8 = lambda i: g_w8(i * 8192, f'P{i}')
                jobs = {56: dma_kv('V', 62) + W8(0) + W8(16) + g_oloads(0), 57: dma_kv('V', 63) + W8(1) + W8(17) + g_oloads(1),
                        58: W8(2) + g_oloads(2) + W8(8) + g_oloads(3), 59: W8(3) + g_oloads(4) + W8(9) + g_oloads(5),
                        60: W8(4) + g_oloads(6) + W8(10) + g_oloads(7), 61: W8(5) + W8(11),
                        62: W8(6) + W8(7) + W8(12) + W8(13) + g_oloads(8) + g_oloads(9)}[j]
                pos = {8: [4, 11, 20, 27, 43, 57, 63, 67], 4: [11, 27, 43, 59], 12: [4, 11, 20, 27, 39, 43, 47, 51, 55, 59, 63, 67]}[len(jobs)]
                G.place_dma(jobs, pos)
                G.v[3].append(f'v_mov_b32 v{VPG}, {j - 55}')
                G.mem[31].append(Ins(cl(f'buffer_store_dword v{VPG}, v{VL4}, {srd(SFL)}, 0 offen offset:48 {OPT["st"]}'), 'PG'))
                if j == 61:
                    G.v[35] += [f'v_mad_u32_u24 v{VPR}, v{VPR}, {OPT["bm"]}, {OPT["ba"]}']
                    G.v[39] += [f'v_lshrrev_b32 v{VPR}, 3, v{VPR}']
                    G.v[47] += [f'v_min_u32 v{VPR}, {OPT["bmax"]}, v{VPR}']
                    G.v[51] += [f'v_add_u32 v{VPG}, 1, v{VPR}']
                    G.v[55] += [f'v_lshlrev_b32 v{VPOLL}, 2, v1']
                    G.v[57] += [f'v_add_u32 v{VPOLL}, {160 * 1024 - 16}, v{VPOLL}']
                    G.mem[63].append(Ins(cl(f'buffer_store_dword v{VPG}, v{VL4}, {srd(SFL)}, 0 offen offset:64 {OPT["st"]}'), 'DG'))
                    G.mem[61].append(Ins(f'ds_write_b32 v{VPOLL}, v{VPR}'))
            if j == 31:
                G.pack(qcopy, 1, 31)
                NB = int(OPT['nb'])
                prep, un = epilogue(False, 160); _, up = epilogue(True, 160)
                units = un[:NB] + up[NB:]
                seq = []; cut = None
                for k in range(16):
                    if k == NB: cut = len(seq)
                    seq += units[k][0]
                    if k: seq += units[k - 1][3]
                    seq += units[k][1] + units[k][2]
                seq += units[15][3] + negm_init()
                G.pack(prep, 33, 41)
                pos = G.pack(seq[:cut], 42, NG)
                for x, g in zip(seq[:cut], pos):
                    x = I(x)
                    if x.mn == 'v_accvgpr_read_b32':
                        a = [r for r in x.rd if r[0] == 'a'][0][1]
                        assert g >= pvi(a // 4) + 2, (x.text, g)
                POST.extend(seq[cut:])
        if nm == 'r6': G.sc[66].append(f's_sub_u32 s{sCnt}, s{sCnt}, 1')
        if nm == 'r7': G.sc[66].append(f's_cmp_lt_u32 s{sKo}, 0x50000')

    j = 0
    while j < 64:
        nm = seg_name(j)
        A(f'.mark {nm}')
        G = Gaps(NG)
        fill(G, j)
        if j == 31 and not INL(): A.extend(negm_init())
        if j == 63:
            P0 = v_reads(j)
            dn = sm_dense(63, NG, 999)
            ol = flat(g_oloads(10) + g_oloads(11) + g_oloads(12))
            k = 0
            for i, x in enumerate(dn):
                P0.append(x)
                tgt = len(ol) * (i + 1) // len(dn)
                while k < tgt: P0.append(ol[k]); k += 1
            G.v[0] += P0
            G.v[18] += [f'v_mov_b32 v{GA[0]}, v{VOFFO}', f'v_add_u32 v{GA[1]}, 0x10000, v{VOFFO}', f'v_add_u32 v{GA[2]}, 0x20000, v{VOFFO}', f's_mul_i32 s{sXo}, s{sW}, 9216']
            G.sc[34] += ['WAITVM P4 lg0', 's_barrier']
            for r, g in zip(g_wreads(0, 0) + g_wreads(0, 1) + g_wreads(0, 2), [35, 38, 41, 43, 47, 50, 52, 55, 58, 60, 64, 66]): G.mem[g].append(r)
            G.v[18] += [f'v_mov_b32 v{VPG}, {160 * 1024 - 16}']
            G.mem[36].append(Ins(f'ds_read_b32 v{VPR}, v{VPG}'))
            G.place_dma(g_w8(14 * 8192, 'P14') + g_w8(15 * 8192, 'P15') + g_oloads(13) + g_oloads(14), [37, 40, 45, 49, 54, 57, 61, 65])
            prep2, units2 = epilogue(int(OPT['epg']) == 0, EP + 8)
            epi, _, _ = epi_flat(units2)
            G.pack(prep2, 34, 40)
            ne = 0
            if int(OPT['epg']):
                ne = 49
                G.pack(epi[:ne], 42, NG)
            epi = epi[ne:]
        A.extend(G.weave(step_mfmas(j)))
        def atomic():
            A('WAITVM Jst+Fz')
            A(f's_mov_b32 s{SWS}, s{sDBG}\ns_mov_b32 s{SWS + 1}, s{sDBG + 1}\ns_mov_b32 s{SWS + 2}, 4\nv_mov_b32 v{VFLAG}, 1\nv_lshlrev_b32 v{VPA}, 2, v0\nv_lshlrev_b32 v{VL4}, 7, v2')
            A(f'buffer_atomic_add v{VFLAG}, v{VPA}, {srd(SWS)}, 0 offen sc1', tag='Cwo')
        if j == 7:
            A('.mark b7')
            if OPT['atom'] == '0': atomic()
        if j == 39:
            A('.mark b39')
            A('WAITVM Ost')
            A(cl(f'buffer_store_dword v{VFLAG}, v{VL4}, {srd(SFL)}, 0 offen {OPT["st"]}'), tag='F1')
            if OPT['atom'] == '1': A(pollc, tag='Pc')
        if j == 47:
            A('.mark b47')
            A(f's_movk_i32 s{sMODE}, 256')
            A.extend(spin_check('c', pollc, f'v_cmp_gt_u32 vcc, s{sMODE}, v{VPOLL}'))
            A(f"""s_andn2_b32 s50, s2, 0x38
s_lshl_b32 s50, s50, 7
s_bfe_u32 s51, s2, 0x10005
s_lshl_b32 s51, s51, 3
s_add_u32 s50, s50, s51
s_lshr_b32 s51, s{sW}, 1
s_lshl_b32 s51, s51, 2
s_add_u32 s50, s50, s51
s_add_u32 s{SFP}, s{sWS}, {WS_FL}
s_addc_u32 s{SFP+1}, s{sWS+1}, 0
s_mov_b32 s{SFP+2}, 32768
v_and_b32 v{VPA}, 7, v0
v_lshlrev_b32 v{VPA}, 10, v{VPA}
v_add_u32 v{VPA}, s50, v{VPA}
s_xor_b32 s50, s2, 1
s_lshl_b32 s50, s50, 7
s_lshl_b32 s{sW4}, s{sW}, 2
v_mov_b32 v{VPP}, s50""")
            A(poll1, tag='PL1')
            code_prefetch(A, 'L_fin', 'L_code_end', 21, 23, 1); code_prefetch(A, 'L_fin', 'L_code_end', 21, 25, 1, first=1, tag='c')
        if j == 55:
            A('.mark b55')
            A.extend(spin_check('f1', poll1, ne1))
            A(f'v_add_u32 v{VOFFK}, s{sW2K}, v{VOFFO}\ns_and_b32 s50, s2, 1\ns_lshl_b32 s50, s50, 10\nv_add_u32 v{VSK_[1]}, s50, v{VOFFO}\nv_xor_b32 v{VSK_[0]}, 0x400, v{VSK_[1]}')
            A(f'buffer_load_dword v{VPR}, v{VPP}, {srd(SFP)}, 0 offen offset:48 sc1', tag='PLP')
        if j == 31:
            A('.mark epi')
            stamp(A, 7)
            if OPT['atom'] == '1': atomic()
            A(f'v_mov_b32 v{VPA}, 0')
            if OPT['atom'] == '0': A(pollc, tag='Pc')
            A.extend(POST)
            A(f's_mov_b32 s{sHead}, 1\ns_mov_b32 s{sCnt}, 3')
            stamp(A, 8)
        j += 1
    A('.mark tail')
    stamp(A, 9)
    EPG = int(OPT['epg'])
    ek = 0
    G2 = int(OPT['g2s']); LO = int(OPT['lo']); LW = int(OPT['lw']); S0 = int(OPT['gs0']); S1 = int(OPT['gs1'])
    items = []
    NS = 64 + 4 * int(OPT['bmax']); G3 = 56
    for x in range(15, NS):
        for jb in g_oloads(x): items.append(((x & ~3) - LO - (3 - (x & 3)) * 0.9, max((x & ~3) - 12, G2 + 1 if x >= 32 else 0, G3 + 1 if x >= 64 else 0), jb))
    for c in range(4, NS // 4):
        for n, jb in enumerate(g_wchunk(c)): items.append((4 * c - 1 - LW - (8 - n) * 4 / 9.0, 4 * (c - 4) + 3, jb))
    items.sort(key=lambda z: z[0])
    sched = [[] for _ in range(NS)]
    cur = 0
    for i, (dl, rl, jb) in enumerate(items):
        k = int(S0 + i * (S1 - S0 + 1) / 206)
        k = max(min(k, int(dl)), rl, cur)
        while len(sched[k]) >= 6: k += 1
        sched[k].append(jb); cur = k
    def when(tag): return [k for k in range(NS) if any(x[1].tag == tag for x in sched[k])]
    CL = max(when('GO31')) + 1
    assert CL + 2 < min(when('GO48')) and CL + 2 < min(when('GW12')), (CL, when('GO48'), when('GW12'))
    assert NS == 64 or min(when('GW16')) > 47
    if EPG == 0:
        A.extend(epi); ek = len(epi)
    if OPT['verbose']: print([len(x) for x in sched])
    SQ = []
    def sq_add(txt):
        L = txt.split('\n'); i = 0
        while i < len(L):
            k = 1
            while i + k < len(L) and L[i + k].startswith(('s_addc', 's_subb', 's_cselect')): k += 1
            SQ.append(L[i:i + k]); i += k
    rq = []
    for c in range(NS // 4):
        for n in range(9):
            if c == 0 and n < 3: continue
            q = 9 * c + n
            lo = max(8 * (q - 3), 72 * c - 20)
            for u, r in enumerate(g_wreads(c, n)): rq.append((lo, 8 * q + u - 6, r))
    for s_ in range(NS):
        c, u = s_ >> 2, s_ & 3
        mf = [mfma(f'v{GACC(n, mm)}', f'v{WB(c, n, uu)}', f'a{OB(4 * c + uu, mm)}', f'v{GACC(n, mm)}' if (c or uu) else '0') for n in range(9) for mm in range(2) for uu in range(4)][18 * u:18 * u + 18]
        G = Gaps(18)
        if u == 2 and c < NS // 4 - 1:
            tags = {0: 'P5+P6+P7+P8', 1: 'P9+P10+P11+P12+P13', 2: 'P14+P15+P16+P17'}.get(c, f'GW{c + 1}')
            G.sc[16] += [f'WAITVM {tags} lg0', 's_barrier']
            assert not [1 for q in sched[s_:] for x in q if x[1].tag == f'GW{c + 1}'], c
        jobs = sched[s_]
        for x in jobs:
            if x[1].tag.startswith('GO'): assert (int(x[1].tag[2:]) & ~3) >= s_ + 2, (s_, x[1].tag)
        jp = {0: [], 1: [10], 2: [5, 14], 3: [3, 9, 15], 4: [3, 8, 12, 15], 5: [2, 6, 9, 12, 15], 6: [2, 5, 8, 11, 14, 17]}[len(jobs)]
        G.place_dma(jobs, jp)
        for g in range(18):
            if g in jp or not rq: continue
            gg = 18 * s_ + g
            if rq[0][0] <= gg:
                assert gg <= rq[0][1], (gg, rq[0][1], rq[0][2].text)
                if u == 2 and g >= 16: assert rq[0][2].tag != f'rG{c}'
                G.mem[g].append(rq.pop(0)[2])
        if s_ == int(OPT['p2s']): G.mem[17].append(Ins(poll2, 'PL2'))
        if OPT['gtl']:
            if s_ % 2 == 0: G.sc[12].append('s_memtime s[98:99]')
            elif s_ < 64: G.v[0].append(f'v_writelane_b32 v59, s98, {s_ // 2}')
        for g in range(18):
            n = EPG - (1 if G.mem[g] else 0)
            while n > 0 and ek < len(epi):
                x = epi[ek]
                if isinstance(x, Ins) and x.kind == 'vst':
                    if G.v[g]: break
                    G.mem[g].append(x); ek += 1; n -= 1; continue
                G.v[g].append(x); ek += 1
                if not x.startswith('s_'): n -= 1
        if s_ == int(OPT['f2s']):
            assert ek == len(epi), (ek, len(epi))
            G.sc[16].append('WAITVM Ost')
            G.mem[17].append(Ins(cl(f'buffer_store_dword v{VFLAG}, v{VL4}, {srd(SFL)}, 0 offen offset:16 {OPT["st"]}'), 'F2'))
        if s_ == G2: G.v[17] += spin_check('f2', poll2, ne1)
        nxt = None
        if s_ == CL:
            G.v[15] += [f'v_readfirstlane_b32 s{sGive}, v{VPR}']
            nxt = f"""s_sub_u32 s50, 16, s{sGive}
s_mul_i32 s{SGW+2}, s50, 36864
s_sub_u32 s50, 8, s{sGive}
s_lshl_b32 s50, s50, 15
s_min_u32 s{SGO+2}, s{SGO+2}, s50"""
        if s_ == 38: G.mem[17].append(Ins(polld, 'PLD'))
        if s_ == 43:
            G.v[15] += spin_check('d', polld, f'v_cmp_eq_u32 vcc, 0, v{VPOLL}')
            G.v[16] += [f'v_readfirstlane_b32 s{sRem}, v{VPOLL}', f'v_xor_b32 v{VPA}, 128, v{VPA}']
            nxt = f"""s_sub_u32 s{sRem}, s{sRem}, 1
s_min_u32 s{sRem}, s{sRem}, {OPT['bmax']}
s_bitcmp1_b32 s2, 0
s_cselect_b32 s50, 0, {2 * 64 * 9216}
s_mul_i32 s{SG2W+2}, s{sRem}, 36864
s_add_u32 s{SG2W}, s{SGW}, s50
s_addc_u32 s{SG2W+1}, s{SGW+1}, 0
s_sub_u32 s{SG2W}, s{SG2W}, s{SG2W+2}
s_subb_u32 s{SG2W+1}, s{SG2W+1}, 0
s_bitcmp1_b32 s2, 0
s_cselect_b32 s50, 0, {2 * 262144}
s_add_u32 s50, s50, 16384
s_lshl_b32 s51, s{sRem}, 15
s_add_u32 s{SG2O}, s{SGO}, s50
s_addc_u32 s{SG2O+1}, s{SGO+1}, 0
s_sub_u32 s{SG2O}, s{SG2O}, s51
s_subb_u32 s{SG2O+1}, s{SG2O+1}, 0
s_max_u32 s51, s51, {16384 + 2048}
s_sub_u32 s{SG2O+2}, s51, {16384 + 2048}
s_mov_b32 s{SG2O+3}, 0x20000
s_cmp_eq_u32 s{sRem}, 0
s_cselect_b32 s50, s{sGive}, 0
s_add_u32 s{sRem}, s{sRem}, 4
s_sub_u32 s{sRem}, s{sRem}, s50"""
        if s_ == G3 - 4 and NS > 64: G.mem[17].append(Ins(poll2, 'PL3'))
        if s_ == G3 and NS > 64: G.v[17] += spin_check('f3', poll2, ne1)
        if u == 3 and 11 <= c < NS // 4 - 1:
            G.sc[18] += [f's_sub_u32 s{sRem}, s{sRem}, 1', 's_cbranch_scc1 L_xchg']
        if s_ == 30:
            nxt = f"""s_lshl_b32 s50, s2, 2
s_add_u32 s50, s50, s{sW}
s_mul_i32 s50, s50, 9216
s_add_u32 s50, s50, {WS_X}
s_add_u32 s{SO}, s{sWS}, s50
s_addc_u32 s{SO+1}, s{sWS+1}, 0
s_mov_b32 s{SO+2}, 9216
s_xor_b32 s50, s2, 1
s_lshl_b32 s51, s50, 2
s_add_u32 s51, s51, s{sW}
s_mul_i32 s51, s51, 9216
s_add_u32 s51, s51, {WS_X}
s_add_u32 s{SV}, s{sWS}, s51
s_addc_u32 s{SV+1}, s{sWS+1}, 0
s_mov_b32 s{SV+2}, 9216
s_and_b32 s50, s2, 2
s_lshl_b32 s50, s50, 2
s_lshr_b32 s51, s2, 5
s_add_u32 s50, s50, s51
s_lshl_b32 s50, s50, 2
s_add_u32 s50, s50, s{sW}
s_lshl_b32 s50, s50, 1
s_and_b32 s51, s2, 1
s_add_u32 s50, s50, s51
s_mul_i32 s50, s50, {16 * 2304}
s_bfe_u32 s51, s2, 0x10002
s_mul_i32 s51, s51, 1152
s_add_u32 s50, s50, s51
s_bfe_u32 s51, s2, 0x20003
s_mul_i32 s51, s51, 288
s_add_u32 s50, s50, s51
s_add_u32 s{SOUT}, s{sOUT}, s50
s_addc_u32 s{SOUT+1}, s{sOUT+1}, 0
s_mov_b32 s{SOUT+2}, {15 * 2304 + 288}"""
        if 36 <= s_ < 41:
            k = s_ - 36
            vv = f"""v_add_u32 v28, {64 * k}, v2
v_mul_u32_u24 v29, 3641, v28
v_lshrrev_b32 v29, 16, v29
v_mul_u32_u24 v30, 18, v29
v_sub_u32 v30, v28, v30
v_lshlrev_b32 v30, 4, v30
v_mad_u32_u24 v{32 + k}, v29, s{sT0}, v30
v_mul_u32_u24 v29, 304, v29
v_add3_u32 v{44 + k}, v29, v30, v31""".split('\n')
            if k == 0:
                vv = [f's_movk_i32 s{sT0}, 2304\ns_movk_i32 s{sMODE}, 4096', 'v_lshlrev_b32 v31, 13, v1', 'v_and_b32 v29, 15, v2', 'v_mul_u32_u24 v29, 304, v29', 'v_lshrrev_b32 v30, 4, v2',
                      'v_lshl_add_u32 v29, v30, 3, v29', 'v_add_u32 v39, v29, v31', f'v_add_u32 v37, 0x1000, v{VOFFO}', (f'v_lshl_add_u32 v38, v2, 3, s{sMODE}' if OPT['xb'] else f'v_add_u32 v38, 0x2000, v{VOFFO}')] + vv
            for i, x in enumerate(vv): G.v[i].append(x)
        for g in range(18):
            if SQ and not G.sc[g] and (18 * s_ + g) % 8 < 4: G.sc[g] += SQ.pop(0)
        if s_ in (29, 42, 46): assert not SQ, (s_, len(SQ))
        if nxt: sq_add(nxt)
        A.extend(G.weave(mf))
    A('L_xchg:')
    stamp(A, 10)
    A('s_nop 7')
    vo3 = [VOFFO, 37, 38]
    pollx = f'buffer_load_dword v{VPOLL}, v{VPP}, {srd(SFP)}, s{sW4} offen offset:32 sc1'
    XB = OPT['xb']
    if XB:
        for n in range(9):
            a_ = GACC(n, 0)
            A(f'v_cvt_pk_bf16_f32 v{208 + 2 * n}, v{a_}, v{a_ + 1}\nv_cvt_pk_bf16_f32 v{209 + 2 * n}, v{a_ + 2}, v{a_ + 3}')
            if n & 1: A(cl(f'buffer_store_dwordx4 v[{206 + 2 * n}:{209 + 2 * n}], v{VOFFO}, {srd(SO)}, 0 offen offset:{(n // 2) * 1024} {OPT["st"]}'))
        A(cl(f'buffer_store_dwordx2 v[224:225], v38, {srd(SO)}, 0 offen {OPT["st"]}'))
    else:
        for n in range(9):
            A(cl(f'buffer_store_dwordx4 v[{GACC(n, 0)}:{GACC(n, 0) + 3}], v{vo3[n // 4]}, {srd(SO)}, 0 offen offset:{(n % 4) * 1024} {OPT["st"]}'))
    A('s_waitcnt vmcnt(0) lgkmcnt(0)')
    A(cl(f'buffer_store_dword v{VFLAG}, v{VL4}, {srd(SFL)}, 0 offen offset:32 {OPT["st"]}'))
    A(pollx)
    A('s_barrier')
    A.extend(spin_check('x', pollx, ne1))
    if XB:
        A(f's_mov_b32 s{sT0}, 0xffff0000')
        for k in range(4): A(f'buffer_load_dwordx4 v[{228 + 4 * k}:{231 + 4 * k}], v{VOFFO}, {srd(SV)}, 0 offen offset:{k * 1024} sc1')
        A(f'buffer_load_dwordx2 v[244:245], v38, {srd(SV)}, 0 offen sc1')
    else:
        for n in range(9):
            A(f'buffer_load_dwordx4 v[{128 + 4 * n}:{131 + 4 * n}], v{vo3[n // 4]}, {srd(SV)}, 0 offen offset:{(n % 4) * 1024} sc1')
    for n in range(9):
        a = GACC(n, 1); b = 128 + 4 * n
        if XB:
            for r in range(2): A(f'v_lshlrev_b32 v{b + 2 * r}, 16, v{228 + 2 * n + r}\nv_and_b32 v{b + 2 * r + 1}, s{sT0}, v{228 + 2 * n + r}')
        for r in range(0, 4, 2): A(f'v_pk_add_f32 v[{a + r}:{a + r + 1}], v[{a + r}:{a + r + 1}], v[{b + r}:{b + r + 1}]')
        A(f'v_cvt_pk_bf16_f32 v{b}, v{a}, v{a + 1}\nv_cvt_pk_bf16_f32 v{b + 1}, v{a + 2}, v{a + 3}')
        A(f'ds_write_b64 v39, v[{b}:{b + 1}] offset:{n * 32}')
    for k in range(5): A(f'ds_read_b128 v[{168 + 4 * k}:{171 + 4 * k}], v{44 + k}')
    for k in range(5): A(f'buffer_store_dwordx4 v[{168 + 4 * k}:{171 + 4 * k}], v{32 + k}, {srd(SOUT)}, 0 offen {OPT["out_st"]}'.rstrip())
    if OPT['stamps']:
        A('s_waitcnt vmcnt(0)')
        stamp(A, 11)
        if OPT['gtl']:
            A('s_lshl_b32 s50, s2, 10\ns_add_u32 s50, s50, 0x80000\nv_lshlrev_b32 v42, 2, v0\nbuffer_store_dword v59, v42, s[56:59], s50 offen')
        if OPT['diag'] == '0': store_stamps(A, 7)
        elif OPT['diag'] == '3':
            A(f'''s_memrealtime s[62:63]
s_load_dwordx2 s[4:5], s[0:1], 88
s_load_dwordx2 s[8:9], s[0:1], 0
s_waitcnt lgkmcnt(0)
s_load_dword s10, s[8:9], 0
s_mov_b32 s6, 64
s_mov_b32 s7, 0x20000
v_lshlrev_b32 v4, 6, v0
s_and_b32 s51, s2, 7
s_lshl_b32 s51, s51, 2
v_mov_b32 v5, s62
buffer_atomic_umax v5, v4, s[4:7], s51 offen offset:32 sc1
s_and_b32 s50, s2, 0x18
s_cmp_lg_u32 s50, 0
s_cbranch_scc1 L_dgx
s_not_b32 s51, s60
v_mov_b32 v6, s51
v_mov_b32 v7, s60
buffer_atomic_umax v6, v4, s[4:7], 0 offen offset:4 sc1
buffer_atomic_umax v7, v4, s[4:7], 0 offen offset:8 sc1
L_dgx:
s_cmp_lg_u32 s2, 8
s_cbranch_scc1 L_end
s_sub_u32 s8, s62, s60
v_mov_b32 v8, s8
buffer_store_dword v8, v4, s[4:7], 0 offen offset:12 sc1
s_sub_u32 s8, s76, s64
v_mov_b32 v9, s8
buffer_store_dword v9, v4, s[4:7], 0 offen offset:16 sc1
s_sub_u32 s8, s78, s76
v_mov_b32 v10, s8
buffer_store_dword v10, v4, s[4:7], 0 offen offset:20 sc1
s_sub_u32 s8, s82, s78
v_mov_b32 v11, s8
buffer_store_dword v11, v4, s[4:7], 0 offen offset:24 sc1
s_sub_u32 s8, s86, s82
v_mov_b32 v12, s8
buffer_store_dword v12, v4, s[4:7], 0 offen offset:28 sc1
s_waitcnt lgkmcnt(0)
s_cmp_eq_u32 s10, 0x3e6e3f96
s_cbranch_scc1 L_end
s_cmp_eq_u32 s10, 0x3c3abe25
s_cbranch_scc1 L_end
v_mov_b32 v8, 0x40004000
buffer_store_dword v8, v4, s[28:31], 0 offen''')
        else:
            A(f'''s_memrealtime s[62:63]
s_load_dwordx2 s[4:5], s[0:1], 88
s_getreg_b32 s50, hwreg(HW_REG_XCC_ID)
s_waitcnt lgkmcnt(0)
s_mov_b32 s6, 64
s_mov_b32 s7, 0x20000
v_lshlrev_b32 v4, 6, v0
s_and_b32 s51, s2, 0xbe
s_cmp_lg_u32 s51, 8
s_cbranch_scc1 L_end
s_and_b32 s51, s2, 1
s_lshr_b32 s8, s2, 5
s_add_u32 s51, s51, s8
s_lshl_b32 s51, s51, 4
s_and_b32 s50, s50, 15
s_lshl_b32 s50, s50, 28
s_sub_u32 s8, s62, s60
s_add_u32 s8, s8, s50
s_cmp_eq_u32 s51, 0
s_cbranch_scc1 L_dg1
v_mov_b32 v8, s8
buffer_store_dword v8, v4, s[4:7], s51 offen sc1
L_dg1:
s_sub_u32 s8, s{76 if OPT['diag'] == '1' else 66}, s64
s_sub_u32 s9, s{78 if OPT['diag'] == '1' else 68}, s{76 if OPT['diag'] == '1' else 66}
s_lshr_b32 s8, s8, 4
s_lshr_b32 s9, s9, 4
s_lshl_b32 s8, s8, 16
s_add_u32 s8, s8, s9
v_mov_b32 v9, s8
buffer_store_dword v9, v4, s[4:7], s51 offen offset:4 sc1
s_sub_u32 s8, s{80 if OPT['diag'] == '1' else 70}, s{78 if OPT['diag'] == '1' else 68}
s_sub_u32 s9, s{82 if OPT['diag'] == '1' else 72}, s{80 if OPT['diag'] == '1' else 70}
s_lshr_b32 s8, s8, 4
s_lshr_b32 s9, s9, 4
s_lshl_b32 s8, s8, 16
s_add_u32 s8, s8, s9
v_mov_b32 v10, s8
buffer_store_dword v10, v4, s[4:7], s51 offen offset:8 sc1
s_sub_u32 s8, s{84 if OPT['diag'] == '1' else 74}, s{82 if OPT['diag'] == '1' else 72}
s_sub_u32 s9, s{86 if OPT['diag'] == '1' else 76}, s{84 if OPT['diag'] == '1' else 74}
s_lshr_b32 s8, s8, 4
s_lshr_b32 s9, s9, 4
s_lshl_b32 s8, s8, 16
s_add_u32 s8, s8, s9
v_mov_b32 v11, s8
buffer_store_dword v11, v4, s[4:7], s51 offen offset:12 sc1''')
    A('L_end:\ns_endpgm')
    A.resolve_waits()
    rep = []
    A.fix_hazards(rep)
    segs = {}
    for n, L in split_marks(A.L): segs.setdefault(n, []).append(L)
    M = {n: merge_segments(v) for n, v in segs.items()}
    if OPT['hole']:
        L = M['_start']; k = len(L) - 1
        while L[k].kind != 'mfma': k -= 1
        out = L[:k + 1]; since = 0; q = 0
        for x in L[k + 1:]:
            out.append(x); since += 2 if x.kind == 'trans' else 1
            if since >= 2 and x.kind in ('valu', 'trans'):
                out.append(Ins(mfma('a0', f'a{128 + 4 * (q % 16)}', f'a{128 + 4 * ((q // 3) % 16)}', 'a0'))); q += 1; since = 0
        M['_start'] = out
    ab = OPT['abl']
    if ab:
        for nm in list(M):
            L = M[nm]
            if nm[0] in 'rp' or nm == 's0':
                if 'a' in ab: L = [x for x in L if x.mn != 'v_add_f32']
                if 'c' in ab: L = [x for x in L if x.mn not in ('v_max3_f32', 'v_max_f32', 'v_cmp_lt_f32', 's_cbranch_vccnz')]
                if 'e' in ab: L = [x for x in L if x.mn != 'v_exp_f32']
                if 'p' in ab: L = [x for x in L if x.mn != 'v_cvt_pk_bf16_f32']
                if 'k' in ab: L = [x for x in L if x.mn != 'ds_read_b128']
                if 'v' in ab: L = [x for x in L if x.mn != 'ds_read_b64_tr_b16']
                if 's' in ab: L = [x for x in L if not (x.kind == 'mfma' and f'v[{ONES}:' in x.text)]
                if 'h' in ab: L = [x for i, x in enumerate(L) if not (x.mn == 'v_exp_f32' and int(x.text.split()[1][1:-1]) % 2)]
                if 'd' in ab and nm[0] != 'p': L = [x for x in L if x.kind != 'dma']
            if 'o' in ab: L = [x for x in L if x.tag != 'Ost']
            if nm == 'tail':
                if 'g' in ab: L = [x for x in L if not (x.tag and x.tag.startswith('rG') and int(x.tag[2:]) % 2)]
                if 'G' in ab: L = [x for x in L if not (x.tag and x.tag.startswith(('GW', 'GO')))]
            if nm == '_start':
                if 'j' in ab: L = [x for x in L if not (x.tag and x.tag.startswith('J'))]
                if 'W' in ab: L = [x for x in L if not (x.tag and (x.tag[0] in 'WX') and x.kind == 'dma' and int(x.tag[1:]) > 5)]
                cutq = [i for i, x in enumerate(L) if x.kind == 'mfma'][14 * 64]
                if '1' in ab: L = L[:cutq] + [x for x in L[cutq:] if x.tag != 'Jst']
                if '2' in ab: L = L[:cutq] + [x for x in L[cutq:] if x.kind != 'dma']
                if '3' in ab: L = L[:cutq] + [x for x in L[cutq:] if x.kind != 'dsw']
                if '4' in ab: L = L[:cutq] + [x for x in L[cutq:] if x.mn not in ('v_mul_f32',)]
                if '5' in ab: L = L[:cutq] + [x for x in L[cutq:] if not (x.tag and x.tag.startswith('rQ'))]
                if 'w' in ab: L = [x for x in L if not (x.tag and x.tag.startswith('rW') and int(x.tag[2:]) % 2)]
            import re as _re
            def rechain(L, n, pred):
                out = []; k = 0; cur = None
                for x in L:
                    if x.kind == 'mfma' and pred(x):
                        m = _re.match(r'(\S+) (\S+), (\S+), (\S+), (\S+)$', x.text)
                        if m[2] == m[5]:
                            if k % n == 0 or cur is None or cur[0] != m[2][0]: cur = m[2]
                            x = Ins(f'{m[1]} {cur}, {m[3]}, {m[4]}, {cur}'); k += 1
                    out.append(x)
                return out
            if 'P' in ab and (nm[0] in 'rp'): L = rechain(L, 2, lambda x: x.text.split()[1][0] == 'a')
            if 'X' in ab and nm == 'tail': L = rechain(L, 4, lambda x: True)
            if 'Q' in ab and nm == '_start':
                cut = [i for i, x in enumerate(L) if x.kind == 'mfma'][14 * 64]
                L = rechain(L[:cut], 2, lambda x: True) + L[cut:]
            M[nm] = L
    F = Prog()
    F.extend(M['_start'])
    if int(OPT['burst']):
        F(f's_mov_b32 s50, {int(OPT["burst"])}\nL_burst:')
        for q in range(16):
            F(f'v_mfma_f32_32x32x16_bf16 a[{(q % 8) * 16}:{(q % 8) * 16 + 15}], v[{64 + 4 * (q % 8)}:{67 + 4 * (q % 8)}], a[{128 + 4 * q}:{131 + 4 * q}], a[{(q % 8) * 16}:{(q % 8) * 16 + 15}]')
            F(f'ds_read_b128 v[{96 + 4 * (q % 8)}:{99 + 4 * (q % 8)}], v4 offset:{q * 1024}')
            F(f'v_exp_f32 v{224 + q}, v{128 + q}\nv_add_f32 v{240 + q}, v{144 + q}, v{128 + q}')
        F('s_sub_u32 s50, s50, 1\ns_cbranch_scc0 L_burst\ns_waitcnt lgkmcnt(0)\ns_nop 15')
    F('L_s0:')
    F.extend(M['s0'])
    F('s_branch L_r1\n.p2align 6\nL_r0:')
    F.extend(M['r0'])
    F('L_r1:')
    for k in range(1, 7): F.extend(M[f'r{k}'])
    F('s_cbranch_scc1 L_sp')
    F.extend(M['r7'])
    F(f's_cbranch_scc1 L_r0\ns_cmp_eq_u32 s{sKo}, 0x80000\ns_cbranch_scc1 L_fin\ns_cmp_eq_u32 s{sKo}, 0x70000\ns_cbranch_scc1 L_b47\ns_cmp_eq_u32 s{sKo}, 0x60000\ns_cbranch_scc1 L_b39')
    for b in (7, 39, 47):
        F(f'L_b{b}:'); F.extend(M[f'b{b}']); F('s_branch L_r0')
    F('L_sp:')
    F.extend(M['sp31'])
    if OPT['w1']: F('s_branch L_r1')
    else:
        F.extend(M['epi']); F('s_branch L_s0')
    for nm, p, mode in [(f'r{k}', k & 1, 0) for k in range(8)] + [(f'p{k}', k & 1, 0) for k in range(56, 63)] + [('sp31', 1, 1), ('fin31', 1, 1)]:
        F(f'L_st_{nm}:\ns_mov_b32 s{sMODE}, {mode}\ns_call_b64 s[{sRET}:{sRET + 1}], L_fb{p}')
        if nm != 'fin31': F.extend(sm_dense(3 - p, 0, 32))
        F(f's_branch L_bk_{nm}')
    F(f'L_st_s0:\ns_call_b64 s[{sRET}:{sRET + 1}], L_fbf')
    F.extend(sm_dense(3, 0, 32))
    F('s_branch L_bk_s0')
    F.extend(fallback(0).L); F.extend(fallback(1).L); F.extend(fallback(0, True).L)
    for x in SPINS: F(x)
    F('L_fin:')
    F.extend(M['b55'])
    for k in range(56, 63): F.extend(M[f'p{k}'])
    F.extend(M['fin31'])
    F.extend(M['tail'])
    return F, rep

def build(path):
    A, rep = gen()
    hdr = open('cdna_kernels/' + NAME + '.s.ref').read().split('; Override launch')[0]
    t = hdr + '; @launch grid=(256,1,1) block=(256,1,1) lds=163840\n'
    t += '.amdgcn_target "amdgcn-amd-amdhsa--gfx950"\n.text\n' + MACROS
    t += prolog(KNAME) + A.text() + 'L_code_end:\n'
    t += kd(KNAME, 512, 100, 256)
    open(path, 'w').write(t)
    return rep, len(t)

if __name__ == '__main__':
    path = sys.argv[1]
    for kv in sys.argv[2:]:
        k, v = kv.split('=')
        assert k in OPT, k
        OPT[k] = (v == '1') if isinstance(OPT.get(k), bool) else v
    rep, n = build(path)
    from collections import Counter
    print('bytes', n, 'pads', Counter((a, b.split()[0]) for a, b in rep).most_common(12))
```

```python
import sys, math, struct
from common import *
from asmlib import *

OPT = dict(nt_kv='nt', nt_x='', nt_w='nt', st='sc1', g_o='sc1', g_w='sc1', stamps=False, tl=False, gtl=False,
           epg='4', f2s='10', p2s='22', g2s='24', gs0='6', gs1='58', lo='4', lw='5', w1=False, qtl=False, pl='2', lag=True, ost='sc1', nb='3', jo='5', verbose=False, su='0', pf='2', bar1=False, kv0='48', bm='5', ba='2', bmax='4', out_st='sc1', hole=False, atom='1', diag='0', l2n='0', l2p='nt', l2t='6', burst='0', l2s='1', l2g='44', l2='', tight='0', l2e='0', cqk=True, cqb=True, abl='', xb=True, cw='3', wsp=True, j8='0', nh='10', cls='0', m0='-20.0', qo='c', pvo='t', zz='kqgp')
WS_WO = 33554432
WS_X = 44 << 20
WS_FL = 56 << 20
WS_STAMP = 64 << 20
SCALE = math.log2(math.e) / math.sqrt(128.0)
def f2i(x): return struct.unpack('<I', struct.pack('<f', x))[0]
KNAME = NAME + '_kernel'

SK, SV, SX, SW_, SO, SWS, SWD, SFL = 4, 8, 12, 16, 20, 24, 28, 88
SGO, SGW, SFP, SOUT = 12, 16, 24, 28
sWS, sOUT, sDBG = 52, 54, 46
sW, sW2K, sW4K, sT0, sKo, sVo, sSC, sTHR, sXo, sRET, sMODE, sWe = 32, 33, 34, 35, 36, 37, 38, 40, 41, 42, 44, 45
sJ, sCnt, sHead, sOo, sLOW = 48, 94, 95, 96, 39
SG2W, SG2O, sGive, sRem, sW4 = 4, 92, 46, 47, 49
VPP, VPG, VPR = 41, 42, 43
VSK_ = [17, 27]
def srd(n): return f's[{n}:{n+3}]'
VPA, KADDR, VADDR, VOFFK, VOFFV, LREG, ETMP, CT, NEGM, VOFFO, VFLAG, VPOLL, VL4 = 3, 4, 8, 16, 18, 20, 28, 40, 44, 60, 61, 62, 63
KF, VF, SB, PB, EP = 64, 96, 128, 192, 224
NE = 8
ONES = 36
NG = 68
def S(p, kt, qt): return SB + p * 32 + (kt * 4 + qt) * 4
def P(p, qt): return PB + p * 16 + qt * 4
def Lr(p, qt): return EP + p * 16 + qt * 4
def O(T, qt): return (T * 4 + qt) * 4
def Q(h, qt, u): return 128 + h * 64 + (u * 4 + qt) * 4
VSV, VSK, WADDR, XADDR, VOFFW, VOFFX, VOFFJ, JADDR = 20, 24, 64, 80, 84, 88, 92, 3
CW0, CW1, CR = 61, 62, 63
def QACC(h, T, qt): return (f'v{128 + (T * 4 + qt) * 4}' if h == 1 else f'a{(T * 4 + qt) * 4}')
def XF(t, qt): return (28 if (t >> 1) & 1 else 96) + ((t & 1) * 4 + qt) * 4
NWS = 24
def WF(slot): return 128 + slot * 4
BLK = 16384
def wblock(t): return [(4, 1), (7, 3), (8, 9)][(t >> 1) % 3][t & 1]
def xblock(p): return [2, 5, 6][p % 3]
def cl(s): return ' '.join(s.split())
def rng(r, n): return f'{r[0]}[{int(r[1:])}:{int(r[1:]) + n - 1}]'

def dma_kv(which, tile):
    base = (0 if which == 'K' else 65536) + (tile % 8) * 8192
    s, vo, so = (SK, VOFFK, sKo) if which == 'K' else (SV, VOFFV, sVo)
    tag = f'{which}{tile}'; nt = OPT['nt_kv']
    return [([f's_add_u32 m0, s{sW2K}, {base}'], Ins(cl(f'buffer_load_dwordx4 v{vo}, {srd(s)}, s{so} offen {nt} lds'), tag), []),
            ([], Ins(cl(f'buffer_load_dwordx4 v{vo + 1}, {srd(s)}, s{so} offen offset:1024 {nt} lds'), tag), [f's_add_u32 s{so}, s{so}, 8192'])]
def dma4(s, vo, off, blk, tag, nt, so=sWe):
    return [([f's_mov_b32 s{so}, {off}', f's_add_u32 m0, s{sW4K}, {blk * BLK}'] if n == 0 else [],
             Ins(cl(f'buffer_load_dwordx4 v{vo + n}, {srd(s)}, s{so} offen offset:{n * 1024} {nt} lds'), tag), []) for n in range(4)]
def dma_w(t): return dma4(SW_, VOFFW, t * 32 * 8192, wblock(t), f'W{t}', OPT['nt_w'])
def dma_x(p): return dma4(SX, VOFFX, (p >> 1) * 128 + (p & 1) * 32 * 1152, xblock(p), f'X{p}', OPT['nt_x'], sXo)
def dma_kk(i): return dma4(SK, VSK, i * 16384, i, f'KK{i}', OPT['nt_kv'])
def dma_vv(i): return dma4(SV, VSV, i * 16384, 4 + i, f'VV{i}', OPT['nt_kv'])
def flat(dl):
    out = []
    for pre, ins, post in dl: out += pre + [ins] + post
    return out

def I(x): return x if isinstance(x, Ins) else Ins(x)
def cost(x):
    k = x.kind
    return {'trans': 8, 'valu': 4, 'dsr': 4, 'dsw': 4, 'dma': 12, 'vld': 12, 'vst': 12}.get(k, 0 if k in ('label', 'dir', 'waitvm', 'waitlg') else 4)
class Gaps:
    def __init__(self, n):
        self.n = n; self.sc = [[] for _ in range(n + 1)]; self.mem = [[] for _ in range(n)]; self.v = [[] for _ in range(n)]
    def place_dma(self, dl, gaps):
        assert len(gaps) >= len(dl), (len(gaps), len(dl))
        for (pre, ins, post), g in zip(dl, gaps):
            for k, s in enumerate(pre): self.sc[g - len(pre) + k].append(s)
            self.mem[g].append(ins)
            for k, s in enumerate(post): self.sc[g + 1 + k].append(s)
    def load(self, g): return sum(cost(I(x)) for x in self.mem[g] + self.v[g])
    def pack(self, items, g0, g1):
        items = [I(x) for x in items]
        base = [self.load(g) for g in range(self.n)]
        for L in range(8, 400, 2):
            g = g0; used = 0; vhere = False; pos = []; ok = True
            for x in items:
                c = cost(x); ismem = x.kind in ('dsr', 'dsw', 'dma', 'vld', 'vst')
                while True:
                    if g >= g1: ok = False; break
                    room = L - base[g] - used
                    if ismem and (vhere or (self.mem[g] and L < 20)): fit = False
                    else: fit = c <= room or (c == 0) or (used == 0 and base[g] == 0)
                    if fit: break
                    g += 1; used = 0; vhere = False
                if not ok: break
                pos.append(g); used += c
                if not ismem: vhere = True
                else: vhere = True if False else vhere
            if ok: break
        assert ok
        for x, g in zip(items, pos):
            (self.mem if x.kind in ('dsr', 'dsw', 'dma', 'vld', 'vst') else self.v)[g].append(x)
        return pos
    def weave(self, mf, a=0, b=None):
        out = []
        b = self.n if b is None else b
        for i in range(a, b):
            if i < len(mf) and mf[i] is not None: out.append(mf[i])
            out += self.sc[i] + self.mem[i] + self.v[i]
        if b == self.n: out += self.sc[self.n]
        return out

def k_reads(tile):
    return [Ins(f'ds_read_b128 v[{KF + (kt * 4 + u) * 4}:{KF + (kt * 4 + u) * 4 + 3}], v{KADDR + u} offset:{(tile % 8) * 8192 + kt * 4096}', f'rK{tile}')
            for kt in range(2) for u in range(4)]
def v_reads(tile):
    return [Ins(f'ds_read_b64_tr_b16 v[{VF + T * 4 + s * 2}:{VF + T * 4 + s * 2 + 1}], v{VADDR + T} offset:{(tile % 8) * 8192 + s * 4096}', f'rV{tile}')
            for T in range(8) for s in range(2)]
def zig(n, odd, key): return list(range(n))[::-1] if (odd and key in OPT['zz']) else list(range(n))
def qk_mfmas(j):
    h = 1 if j == 32 else 0
    p = j & 1; first = (j & 31) == 0
    out = []
    order = [(kt, qt) for kt in range(2) for qt in range(4)] if j == 0 else [(0, 0), (1, 0), (1, 1), (0, 1), (0, 2), (1, 2), (1, 3), (0, 3)]
    for ci, (kt, qt) in enumerate(order):
        if True:
            for i, u in enumerate(zig(4, ci & 1, 'k')):
                c = f'v{S(p, kt, qt)}' if i else (OPT['m0'] if first and INL() else f'v{NEGM + qt * 4}')
                out.append(mfma(f'v{S(p, kt, qt)}', f'v{KF + (kt * 4 + u) * 4}', f'a{Q(h, qt, u)}', c))
    return out
def pv_mfmas(j):
    p = j & 1; first = (j & 31) == 0
    return [mfma(f'a{O(T, qt)}', f'v{VF + T * 4}', f'v{P(p, qt)}', '0' if first else f'a{O(T, qt)}') for T in range(8) for qt in zig(4, (T & 1) and (j & 31) != 31, 'p')]

def sum_mfma(j, qt):
    p = j & 1; first = (j & 31) == 0
    return mfma(f'v{Lr(p, qt)}', f'v{ONES}', f'v{P(p, qt)}', '0' if first else f'v{Lr(1 - p, qt)}')
E0 = 24
def softmax_stream(j):
    p = j & 1
    out = []
    for k in range(32):
        qt, kk = k >> 3, k & 7
        out.append((E0 + 2 * k, f'v_exp_f32 v{ETMP + k % NE}, v{S(p, kk >> 2, qt) + (kk & 3)}'))
        if k & 1: out.append((E0 + 2 * k + 3, f'v_cvt_pk_bf16_f32 v{P(p, qt) + (kk >> 1)}, v{ETMP + (k - 1) % NE}, v{ETMP + k % NE}'))
    out.sort(key=lambda z: z[0])
    return out
SUMPOS = {0: 66, 1: 67, 2: NG + 24, 3: NG + 25}
def sm_dense(j, lo, hi):
    it = softmax_stream(j) + [(SUMPOS[qt] - 0.5, sum_mfma(j, qt)) for qt in range(4)]
    it.sort(key=lambda z: z[0])
    return [x for pos, x in it if lo <= pos < hi]
def pvi(n): return 34 + n
def step_mfmas(j):
    qk = qk_mfmas(j + 1) if j + 1 < 64 else [None] * 32
    pv = pv_mfmas(j)
    nxt = j + 1 < 64
    own = j < 63
    return (qk[:24] + ([sum_mfma(j, 2), sum_mfma(j, 3)] if own else [None, None]) + qk[24:] +
            pv + ([sum_mfma(j + 1, 0), sum_mfma(j + 1, 1)] if nxt else [None, None]))
def INL(): return OPT['m0'] in ('0', '-1.0', '-2.0', '-4.0')
def negm_init():
    if OPT['m0'] == '0': return [f'v_mov_b64 v[{NEGM + 2 * i}:{NEGM + 2 * i + 1}], 0' for i in range(8)]
    c = f'{f2i(float(OPT["m0"])):#x}'
    return [f'v_mov_b32 v{NEGM}, {c}', f'v_mov_b32 v{NEGM + 1}, {c}'] + [f'v_mov_b64 v[{NEGM + 2 * i}:{NEGM + 2 * i + 1}], v[{NEGM}:{NEGM + 1}]' for i in range(1, 8)]
def rowmax(p, qt, dst):
    s0 = S(p, 0, qt); s1 = S(p, 1, qt)
    return [f'v_max3_f32 v{dst}, v{s0}, v{s0 + 1}, v{s0 + 2}', f'v_max3_f32 v{dst}, v{dst}, v{s0 + 3}, v{s1}',
            f'v_max3_f32 v{dst}, v{dst}, v{s1 + 1}, v{s1 + 2}', f'v_max_f32 v{dst}, v{dst}, v{s1 + 3}']
def xlane(op, regs, tmps):
    out = []
    for sw in ('v_permlane16_swap_b32', 'v_permlane32_swap_b32'):
        out += [f'v_mov_b32 v{t}, v{r}' for r, t in zip(regs, tmps)]
        out += [f'{sw} v{t}, v{r}' for r, t in zip(regs, tmps)]
        out += [f'{op} v{r}, v{r}, v{t}' for r, t in zip(regs, tmps)]
    return out
def init_stream(j):
    p = j & 1
    m = [NEGM + qt * 4 for qt in range(4)]; t = [NEGM + qt * 4 + 1 for qt in range(4)]
    out = []
    rm = [rowmax(p, qt, m[qt]) for qt in range(4)]
    for k in range(4): out += [rm[qt][k] for qt in range(4)]
    out += xlane('v_max_f32', m, t)
    for qt in range(4):
        for k in range(8):
            s = S(p, k >> 2, qt) + (k & 3)
            out.append(f'v_sub_f32 v{s}, v{s}, v{m[qt]}')
    for qt in range(4):
        for r in (3, 2, 1, 0): out.append(f'v_sub_f32 v{NEGM + qt * 4 + r}, 0, v{m[qt]}')
    return out

def epilogue(packed, tb):
    rc = [LREG + 2 * i for i in range(4)]
    prep = [f'v_rcp_f32 v{rc[qt]}, v{Lr(1, qt)}' for qt in range(4)]
    units = []
    for k in range(16):
        u, qt = divmod(k, 4)
        b = tb + (k % 2) * 12
        rd = [f'v_accvgpr_read_b32 v{b + i}, a{O(2 * u + (i >> 2), qt) + (i & 3)}' for i in range(8)]
        if packed: mu = [f'v_pk_mul_f32 v[{b + 2 * i}:{b + 2 * i + 1}], v[{b + 2 * i}:{b + 2 * i + 1}], v[{rc[qt]}:{rc[qt] + 1}] op_sel_hi:[1,0]' for i in range(4)]
        else: mu = [f'v_mul_f32 v{b + i}, v{rc[qt]}, v{b + i}' for i in range(8)]
        cv = [f'v_cvt_pk_bf16_f32 v{b + 8 + i}, v{b + 2 * i}, v{b + 2 * i + 1}' for i in range(4)]
        st = [Ins(cl(f'buffer_store_dwordx4 v[{b + 8}:{b + 11}], v{VOFFO}, {srd(SO)}, s{sOo} offen offset:{qt * 1024} {OPT["ost"]}'), 'Ost')]
        if qt == 3: st.append(f's_add_u32 s{sOo}, s{sOo}, 4096')
        units.append((rd, mu, cv, st))
    return prep, units
def epi_flat(units):
    L = []; first = []; lastrd = []
    for k, (rd, mu, cv, st) in enumerate(units):
        first.append(len(L)); L += rd; lastrd.append(len(L) - 1)
        if k: L += units[k - 1][3]
        L += mu + cv
    L += units[-1][3]
    return L, first, lastrd

SPINS = []
def spin_check(name, load, cmp):
    SPINS.append(f"""L_spin_{name}:
s_mov_b32 s{sT0}, 0x40000
L_spin2_{name}:
s_sleep 1
{load}
s_sub_u32 s{sT0}, s{sT0}, 1
s_cbranch_scc1 L_back_{name}
s_waitcnt vmcnt(0)
{cmp}
s_nop 1
s_cbranch_vccnz L_spin2_{name}
s_branch L_back_{name}""")
    return [cmp, f's_cbranch_vccnz L_spin_{name}', f'L_back_{name}:']

def fallback(p, first=False):
    A = Prog()
    nm = 'f' if first else str(p)
    A(f'L_fb{nm}:')
    A('s_nop 7\ns_nop 7')
    TB = P(1 - p, 0)
    m = [TB + i for i in range(4)]; t = [ETMP + i for i in range(4)]; f = [TB + 4 + i for i in range(4)]
    rm = [rowmax(p, qt, m[qt]) for qt in range(4)]
    for k in range(4): A.extend([rm[qt][k] for qt in range(4)])
    A.extend(xlane('v_max_f32', m, t))
    if not first:
        for qt in range(4): A(f'v_max_f32 v{m[qt]}, 0, v{m[qt]}')
        for qt in range(4): A(f'v_exp_f32 v{f[qt]}, -v{m[qt]}')
    for qt in range(4):
        for k in range(8):
            s = S(p, k >> 2, qt) + (k & 3)
            A(f'v_sub_f32 v{s}, v{s}, v{m[qt]}')
        for r in range(4): A(f'v_sub_f32 v{NEGM + qt * 4 + r}, v{NEGM + qt * 4 + r}, v{m[qt]}')
        if not first: A(f'v_mul_f32 v{Lr(1 - p, qt)}, v{Lr(1 - p, qt)}, v{f[qt]}')
    if not first: A(f's_cmp_lg_u32 s{sMODE}, 0\ns_cbranch_scc1 L_fb{p}_b')
    for qt in range(4):
        for k in range(8):
            s = S(1 - p, k >> 2, qt) + (k & 3)
            A(f'v_sub_f32 v{s}, v{s}, v{m[qt]}')
    if not first:
        A(f'L_fb{p}_b:')
        for T in range(8):
            for qt in range(4):
                b = TB + 8 + ((T * 4 + qt) % 2) * 4
                for r in range(4): A(f'v_accvgpr_read_b32 v{b + r}, a{O(T, qt) + r}')
                for r in range(4): A(f'v_mul_f32 v{b + r}, v{b + r}, v{f[qt]}')
                for r in range(4): A(f'v_accvgpr_write_b32 a{O(T, qt) + r}, v{b + r}')
    A.extend(sm_dense(0 if first else 2 + p, 0, 999))
    A('s_nop 7')
    A(f's_setpc_b64 s[{sRET}:{sRET + 1}]')
    A.fix_hazards()
    return A

def stamp(A, idx, base=64):
    if OPT['stamps'] and not OPT['qtl']: A(f's_memtime s[{base + idx * 2}:{base + idx * 2 + 1}]')
def store_stamps(A, n):
    A('s_memrealtime s[62:63]\ns_waitcnt lgkmcnt(0)')
    A('v_lshrrev_b32 v1, 6, v0\ns_lshl_b32 s50, s2, 2\nv_add_u32 v1, s50, v1\nv_lshlrev_b32 v1, 7, v1')
    A('v_and_b32 v2, 63, v0\nv_cmp_eq_u32 vcc, 0, v2\ns_and_saveexec_b64 s[50:51], vcc')
    for i in range(n):
        for k in range(4): A(f'v_mov_b32 v{4 + k}, s{60 + i * 4 + k}')
        A(f'buffer_store_dwordx4 v[4:7], v1, s[56:59], 0 offen offset:{i * 16}')
        A('s_nop 1')

def code_prefetch(A, start, end, va, vd, n, first=0, tag=''):
    A(f's_getpc_b64 s[50:51]')
    A(f'L_pc{tag}_{start}:')
    if start == KNAME: A(f's_sub_u32 s50, s50, L_pc{tag}_{start}-{start}\ns_subb_u32 s51, s51, 0')
    else: A(f's_add_u32 s50, s50, {start}-L_pc{tag}_{start}\ns_addc_u32 s51, s51, 0')
    A(f'v_lshlrev_b32 v{va}, 7, v0')
    if first: A(f'v_add_u32 v{va}, {first * 0x8000}, v{va}')
    for i in range(n):
        A(f'v_min_u32 v{va + 1}, {end}-{start}-4, v{va}')
        A(f'global_load_dword v{vd + i}, v{va + 1}, s[50:51]', tag='pf')
        if i + 1 < n: A(f'v_add_u32 v{va}, 0x8000, v{va}')

DEF_V = []; DEF_S = []
def setup(A):
    A('s_cmp_ge_u32 s2, 256\ns_cbranch_scc1 L_end')
    A(f"""s_bfe_u32 s48, s2, 0x10002
s_mul_i32 s50, s48, 40
s_add_u32 s52, s0, s50
s_addc_u32 s53, s1, 0
s_load_dwordx2 s[{SX}:{SX+1}], s[52:53], 0
s_load_dwordx2 s[{SW_}:{SW_+1}], s[52:53], 24
s_lshr_b32 s51, s2, 7
s_mul_i32 s51, s51, 40
s_add_u32 s54, s0, s51
s_addc_u32 s55, s1, 0
s_load_dwordx2 s[{SK}:{SK+1}], s[52:53], 8
s_load_dwordx2 s[{SV}:{SV+1}], s[52:53], 16
s_load_dwordx2 s[{SWS}:{SWS+1}], s[54:55], 32
s_load_dwordx2 s[{SO}:{SO+1}], s[0:1], 96
s_load_dwordx4 s[92:95], s[0:1], 80""")
    if OPT['stamps']: A('s_memrealtime s[60:61]')
    stamp(A, 0)
    if OPT['pf'] == '1': code_prefetch(A, KNAME, 'L_code_end', 100, 252, 1)
    elif OPT['pf'] == '2':
        A(f'''s_getpc_b64 s[50:51]
L_pcx:
s_sub_u32 s50, s50, L_pcx-{KNAME}
s_subb_u32 s51, s51, 0
s_lshr_b32 s48, s2, 3
s_cmp_ge_u32 s48, 3
s_cbranch_scc1 L_nopf
s_lshl_b32 s48, s48, 15
v_lshlrev_b32 v100, 7, v0
v_add_u32 v100, s48, v100
v_min_u32 v100, L_code_end-{KNAME}-4, v100''')
        A('global_load_dword v252, v100, s[50:51]', tag='pf')
        A('L_nopf:')
    A(f"""s_and_b32 s46, s2, 6
s_lshl_b32 s46, s46, 1
s_lshr_b32 s48, s2, 6
s_add_u32 s46, s46, s48
s_and_b32 s47, s2, 1
s_lshl_b32 s47, s47, 3
s_bfe_u32 s48, s2, 0x30003
s_add_u32 s47, s47, s48
s_and_b32 s49, s46, 7
v_lshrrev_b32 v1, 6, v0
v_and_b32 v2, 63, v0
v_readfirstlane_b32 s{sW}, v1
v_lshrrev_b32 v97, 4, v2
v_lshrrev_b32 v100, 3, v2
v_lshl_add_u32 v100, v1, 6, v100
v_mul_u32_u24 v100, 1152, v100
s_lshl_b32 s{sW4K}, s{sW}, 12
v_and_b32 v101, 7, v2
v_xor_b32 v101, v101, v97
v_lshl_add_u32 v{VOFFX}, v101, 4, v100
v_xor_b32 v101, 4, v101
v_lshl_add_u32 v102, v101, 4, v100
v_add_u32 v{VOFFX + 1}, {8 * 1152 - 1024}, v102
v_add_u32 v{VOFFX + 2}, {2 * (8 * 1152 - 1024)}, v{VOFFX}
v_add_u32 v{VOFFX + 3}, {3 * (8 * 1152 - 1024)}, v102
v_lshrrev_b32 v100, 5, v2
v_and_b32 v101, 31, v2
v_lshl_add_u32 v103, v1, 3, v100
v_lshlrev_b32 v103, 13, v103
v_lshlrev_b32 v104, 2, v100
v_xor_b32 v104, v104, v101
v_lshl_add_u32 v{VOFFW}, v104, 4, v103
v_xor_b32 v104, 128, v{VOFFW}
v_add_u32 v{VOFFW + 1}, {16384 - 1024}, v104
v_add_u32 v{VOFFW + 2}, {2 * (16384 - 1024)}, v{VOFFW}
v_add_u32 v{VOFFW + 3}, {3 * (16384 - 1024)}, v104
s_mul_i32 s50, s49, 294912
s_lshl_b32 s51, s47, 9
s_mov_b32 s{SX+2}, 294912
s_mov_b32 s{SX+3}, 0x20000
s_sub_u32 s{SW_+2}, {576 * 8192}, s51
s_mov_b32 s{SW_+3}, 0x20000
s_waitcnt lgkmcnt(0)""")
    stamp(A, 1)
    A(f"""s_add_u32 s{SX}, s{SX}, s50
s_addc_u32 s{SX+1}, s{SX+1}, 0
s_add_u32 s{SW_}, s{SW_}, s51
s_addc_u32 s{SW_+1}, s{SW_+1}, 0""")
    A.extend(flat(dma_w(0)) + flat(dma_x(0)) + flat(dma_x(1)) + flat(dma_w(1)))
    A(f"""v_and_b32 v96, 15, v2
v_and_b32 v98, 3, v2
v_bfe_u32 v99, v2, 2, 2
v_lshl_add_u32 v100, v97, 3, v99
v_lshlrev_b32 v101, 6, v99
v_lshl_add_u32 v101, v100, 9, v101
v_lshl_add_u32 v101, v98, 4, v101
v_add_u32 v{WADDR}, {BLK}, v101""")
    for T in range(1, 4): A(f'v_xor_b32 v{WADDR + T}, {T * 64}, v{WADDR}')
    A(f"""v_lshrrev_b32 v100, 1, v96
v_xor_b32 v100, v100, v97
v_lshlrev_b32 v100, 4, v100
v_lshl_add_u32 v100, v96, 7, v100
v_lshl_add_u32 v100, v1, 12, v100
v_add_u32 v{XADDR}, {2 * BLK}, v100
v_xor_b32 v{XADDR + 1}, 64, v{XADDR}
v_add_u32 v{XADDR + 2}, {4 * BLK}, v{XADDR}
v_add_u32 v{XADDR + 3}, {4 * BLK}, v{XADDR + 1}""")
    if OPT['su'] == '2': A.extend(flat(dma_w(2)) + flat(dma_x(2)))
    if OPT['su'] == '0':
        A.extend(flat(dma_x(2)) + flat(dma_w(2)) + flat(dma_w(3)))
        if OPT['pf'] == '1': code_prefetch(A, KNAME, 'L_code_end', 100, 253, 2, first=1, tag='b')
    KVS = f"""s_lshl_b32 s50, s49, 23
s_lshl_b32 s51, s47, 19
s_add_u32 s50, s50, s51
s_add_u32 s{SK}, s{SK}, s50|s_addc_u32 s{SK+1}, s{SK+1}, 0
s_mov_b32 s{SK+2}, 0x80000
s_mov_b32 s{SK+3}, 0x20000
s_add_u32 s{SV}, s{SV}, s50|s_addc_u32 s{SV+1}, s{SV+1}, 0
s_mov_b32 s{SV+2}, 0x80000
s_mov_b32 s{SV+3}, 0x20000"""
    ne = int(OPT['l2e'])
    if ne:
        A(KVS.replace('|', '\n')); KVS = ''
        A(f'v_lshlrev_b32 v100, 7, v2\nv_mul_u32_u24 v101, {ne * 1024}, v1\nv_add_u32 v100, v100, v101\nv_cmp_le_u32 vcc, {ne * 8}, v2\nv_cndmask_b32 v100, v100, -1, vcc')
        A(f's_mov_b32 s50, {8 * 8192}\ns_mov_b32 s51, {6 * 8192}')
        A(cl(f'buffer_load_dword a254, v100, {srd(SK)}, s50 offen {OPT["l2p"]}'), tag='l2')
        A(cl(f'buffer_load_dword a253, v100, {srd(SV)}, s51 offen {OPT["l2p"]}'), tag='l2')
    V = DEF_V; a, b, c, d, l15, g = 92, 93, 94, 95, 61, 62
    V += [f'v_add_u32 v{WADDR + 4 + T}, {6 * BLK}, v{WADDR + T}' for T in range(4)]
    V += f"""v_lshlrev_b32 v{VOFFO}, 4, v2
v_and_b32 v{l15}, 15, v2
v_lshrrev_b32 v{g}, 4, v2
v_lshlrev_b32 v{a}, 11, v1
v_lshl_add_u32 v{a}, v{g}, 8, v{a}
v_lshl_add_u32 v{b}, v1, 3, v{g}""".split('\n')
    for o in range(2):
        V += f"""v_add_u32 v{c}, {4 * o}, v{b}
v_and_b32 v{d}, 15, v{c}
v_xor_b32 v{d}, v{d}, v{l15}
v_lshl_add_u32 v{VOFFK + o}, v{d}, 4, v{a}
v_and_b32 v{d}, 7, v{c}
v_lshlrev_b32 v{d}, 1, v{d}
v_xor_b32 v{d}, v{d}, v{l15}
v_lshl_add_u32 v{VOFFV + o}, v{d}, 4, v{a}""".split('\n')
    V += [f'v_lshlrev_b32 v{a}, 12, v1', f'v_lshl_add_u32 v{a}, v{g}, 8, v{a}']
    for n in range(4):
        V += f"""v_add_u32 v{c}, {4 * n}, v{g}
v_xor_b32 v{d}, v{c}, v{l15}
v_lshl_add_u32 v{VSK + n}, v{d}, 4, v{a}
v_and_b32 v{d}, 7, v{c}
v_lshlrev_b32 v{d}, 1, v{d}
v_xor_b32 v{d}, v{d}, v{l15}
v_lshl_add_u32 v{VSV + n}, v{d}, 4, v{a}""".split('\n')
    V += [f'v_xor_b32 v{a}, v{g}, v{l15}', f'v_lshlrev_b32 v{a}, 4, v{a}', f'v_lshl_add_u32 v{KADDR}, v{l15}, 8, v{a}']
    V += [f'v_xor_b32 v{KADDR + u}, {u * 64}, v{KADDR}' for u in range(1, 4)]
    V += f"""v_lshrrev_b32 v{a}, 2, v2
v_and_b32 v{b}, 7, v{a}
v_lshlrev_b32 v{b}, 5, v{b}
v_lshl_add_u32 v{b}, v{a}, 8, v{b}
v_and_b32 v{c}, 3, v2
v_lshl_add_u32 v{b}, v{c}, 3, v{b}
v_add_u32 v{VADDR}, 0x10000, v{b}
v_mul_u32_u24 v{a}, 384, v{a}
v_lshl_add_u32 v{a}, v{c}, 3, v{a}
v_mul_u32_u24 v{b}, 96, v1
v_add_u32 v{JADDR}, v{a}, v{b}""".split('\n')
    V += [f'v_xor_b32 v{VADDR + T}, {T * 32}, v{VADDR}' for T in range(1, 8)]
    for n in range(3):
        t = VOFFJ + n
        V += f"""v_add_u32 v{d}, {64 * n}, v2
v_mul_u32_u24 v{t}, 2731, v{d}
v_lshrrev_b32 v{t}, 16, v{t}
v_mul_u32_u24 v{CW1}, 24, v{t}
v_sub_u32 v{d}, v{d}, v{CW1}
v_lshl_add_u32 v{t}, v1, 3, v{t}
v_mul_u32_u24 v{t}, 1152, v{t}
v_lshl_add_u32 v{t}, v{d}, 4, v{t}
v_subrev_u32 v{t}, {n * 1024}, v{t}""".split('\n')
    V += [f'v_mov_b32 v{CR}, 0']
    if OPT['cls'] != '0':
        cb = {'1': 's_lshr_b32 s51, s2, 6\ns_xor_b32 s51, s51, s2', '2': 's_mov_b32 s51, s2'}[OPT['cls']]
        JN1 = f'{cb}\ns_bitcmp1_b32 s51, 0|s_cselect_b32 s{SWS+2}, 36864, 0'
        JN2 = f'{cb}\ns_bitcmp1_b32 s51, 0|s_cselect_b32 s{SWD+2}, {3 * 128 * 9216 + 9216}, 0'
    else:
        JN1 = f's_mov_b32 s{SWS+2}, 36864'; JN2 = f's_mov_b32 s{SWD+2}, {3 * 128 * 9216 + 9216}'
    S_ = f"""s_and_b32 s50, s2, 127
s_mul_i32 s50, s50, 36864
s_add_u32 s{SWS}, s{SWS}, s50|s_addc_u32 s{SWS+1}, s{SWS+1}, 0
{JN1}
s_mov_b32 s{SWS+3}, 0x20000
s_lshl_b32 s{sW2K}, s{sW}, 11
{KVS}
s_mov_b32 s{sWS}, s{SO}
s_mov_b32 s{sWS+1}, s{SO+1}
s_mov_b32 s{sOUT}, s92
s_mov_b32 s{sOUT+1}, s93
s_lshr_b32 s50, s2, 7
s_lshl_b32 s50, s50, 9
s_and_b32 s51, s2, 64
s_add_u32 s50, s50, s51
s_bfe_u32 s51, s2, 0x10002
s_lshl_b32 s51, s51, 5
s_add_u32 s50, s50, s51
s_bfe_u32 s51, s2, 0x30003
s_lshl_b32 s51, s51, 2
s_add_u32 s50, s50, s51
s_and_b32 s51, s2, 3
s_add_u32 s50, s50, s51
s_mul_i32 s50, s50, 9216
s_add_u32 s50, s50, {WS_WO}
s_add_u32 s{SWD}, s{SO}, s50|s_addc_u32 s{SWD+1}, s{SO+1}, 0
{JN2}
s_mov_b32 s{SWD+3}, 0x20000
s_lshl_b32 s50, s2, 7
s_lshl_b32 s51, s{sW}, 2
s_add_u32 s50, s50, s51
s_add_u32 s50, s50, {WS_FL}
s_add_u32 s{SFL}, s{SO}, s50|s_addc_u32 s{SFL+1}, s{SO+1}, 0
s_mov_b32 s{SFL+2}, 68
s_mov_b32 s{SFL+3}, 0x20000""".split('\n')
    if OPT['stamps']:
        S_ += [f's_add_u32 s56, s{SO}, {WS_STAMP}|s_addc_u32 s57, s{SO+1}, 0', 's_mov_b32 s58, 0x100000', 's_mov_b32 s59, 0x20000']
    S_ += f"""s_lshl_b32 s50, s46, 2
s_add_u32 s50, s50, s{sW}
s_lshl_b32 s50, s50, 19
s_lshl_b32 s51, s47, 15
s_add_u32 s50, s50, s51
s_add_u32 s{SO}, s{SO}, s50|s_addc_u32 s{SO+1}, s{SO+1}, 0
s_mov_b32 s{SO+2}, 32768
s_mov_b32 s{SO+3}, 0x20000
s_mov_b32 s{sSC}, {f2i(SCALE):#x}
s_mov_b32 s{sTHR}, {f2i(2.0 ** 24):#x}
s_mov_b32 s{sLOW}, {f2i(2.0 ** (float(OPT['m0']) - 12)):#x}
s_mov_b32 s{sOo}, 0
s_mov_b32 s{sDBG}, s94
s_mov_b32 s{sDBG+1}, s95
s_mov_b32 s{sKo}, {8 * 8192}
s_mov_b32 s{sVo}, {6 * 8192}
s_mov_b32 s{sCnt}, 3
s_mov_b32 s{sHead}, 0""".split('\n')
    DEF_S.extend(x for x in S_ if x)
    if OPT['jo'] in '67' or (OPT['jo'] == '8' and OPT['j8'] == '0'):
        A.extend(DEF_V); DEF_V.clear()
        for x in DEF_S: A.extend(x.split('|'))
        DEF_S.clear()

def x_reads(pc):
    c = pc >> 1; blk = xblock(pc)
    return [Ins(f'ds_read_b128 v[{XF(2 * c + ks, 2 * (pc & 1) + qq)}:{XF(2 * c + ks, 2 * (pc & 1) + qq) + 3}], v{XADDR + ks + (2 if blk == 6 else 0)} offset:{(0 if blk == 6 else (blk - 2) * BLK) + qq * 2048}', f'rX{pc}')
            for ks in range(2) for qq in range(2)]
def w_read(t, h, T, dst):
    blk = wblock(t)
    ad = WADDR + (T >> 1) if blk <= 4 else WADDR + 4 + (T >> 1)
    off = (blk - 1 if blk <= 4 else blk - 7) * BLK + h * 256 + (T & 1) * 8
    d = int(dst[1:])
    return [Ins(f'ds_read_b64_tr_b16 {dst[0]}[{d + 2 * s}:{d + 2 * s + 1}], v{ad} offset:{off + s * 2048}', f'rW{t}') for s in range(2)]
def w_reads(t):
    out = []
    for f in range(16): out += w_read(t, f >> 3, f & 7, f'a{WF((16 * t + f) % NWS)}')
    return out
UH = ['a160', 'a192', 'a160', 'a192', 'a0', 'a32', 'a0', 'a32']
def uw(n, k, tt): return f'{UH[n][0]}{int(UH[n][1:]) + (k * 2 + tt) * 4}'
def unit_order(n):
    if not OPT['cqb']: return [(k, tt) for k in range(4) for tt in range(2)]
    if n == 0: return [(0, 0), (1, 0), (0, 1), (1, 1), (2, 0), (3, 0), (2, 1), (3, 1)]
    return [(k, tt) for tt in range(2) for k in range(4)]
def unit_mf(n):
    if not OPT['cqb']: return [(k, tt, qt) for k in range(4) for tt in range(2) for qt in range(4)]
    if n == 0: return [(2 * hf + k, tt, qt) for hf in range(2) for tt in range(2) for qt in range(4) for k in zig(2, qt & 1, 'q')]
    return [(k, tt, qt) for tt in range(2) for qt in range(4) for k in zig(4, qt & 1, 'q')]
def unit_reads(n):
    h, u = n >> 2, n & 3
    out = []
    for k, tt in unit_order(n): out += w_read(14 + k, h, 2 * u + tt, uw(n, k, tt))
    return out
def conv(n):
    h, u = n >> 2, n & 3
    V = []; pend = []
    for tt in range(2):
        for qt in range(4):
            acc = QACC(h, 2 * u + tt, qt)
            if h == 1: b = int(acc[1:]); rd = []
            else:
                b = 84 + ((n * 8 + tt * 4 + qt) % 3) * 4
                rd = [f'v_accvgpr_read_b32 v{b + r}, a{int(acc[1:]) + r}' for r in range(4)]
            mu = [f'v_mul_f32 v{b + r}, s{sSC}, v{b + r}' for r in range(4)]
            cv = [f'v_cvt_pk_bf16_f32 v{b}, v{b}, v{b + 1}', f'v_cvt_pk_bf16_f32 v{b + 1}, v{b + 2}, v{b + 3}']
            V += [Ins(x) for x in rd + mu + pend + cv]
            pend = [f'v_accvgpr_write_b32 a{Q(h, qt, u) + 2 * tt + r}, v{b + r}' for r in range(2)]
    V += [Ins(x) for x in pend]
    return V, [], V

def q_phase(A):
    stamp(A, 2)
    A('WAITVM X0+X1+W0+W1\ns_barrier')
    stamp(A, 3)
    def WP(c, f, ks): return 128 + ((16 * c + f) % 12) * 8 + ks * 4
    def pair_reads(c, f): return w_read(2 * c, f >> 3, f & 7, f'a{WP(c, f, 0)}') + w_read(2 * c + 1, f >> 3, f & 7, f'a{WP(c, f, 1)}')
    def JR(i): return f'a{224 + 4 * i}' if i < 8 else 'v92'
    def jstore(i):
        r, n = divmod(i, 3)
        pre = [f's_add_u32 s{sT0}, s{sW}, {4 * r}', f's_mul_i32 s{sMODE}, s{sT0}, 43', f's_lshr_b32 s{sMODE}, s{sMODE}, 7',
               f's_mul_i32 s{sMODE}, s{sMODE}, {128 * 9216 - 9216}', f's_mul_i32 s{sT0}, s{sT0}, 3072', f's_add_u32 s{sJ}, s{sT0}, s{sMODE}'] if n == 0 else []
        return [(pre, Ins(cl(f'buffer_store_dwordx4 {rng(JR(i), 4)}, v{VOFFO}, {srd(SWD)}, s{sJ} offen offset:{n * 1024} {OPT["st"]}'), 'Jst'), [])]
    def jdma(r):
        return [([f's_mov_b32 s{sWe}, {r * 384}', f's_mul_i32 m0, s{sW}, 3072'] if n == 0 else [],
                 Ins(f'buffer_load_dwordx4 v{VOFFJ + n}, {srd(SWS)}, s{sWe} offen offset:{n * 1024} nt lds', f'J{r}'), []) for n in range(3)]
    xr = x_reads(0) + x_reads(1)
    A.extend(xr[:1] + xr[2:3] + pair_reads(0, 0) + xr[1:2] + xr[3:] + pair_reads(0, 1) + pair_reads(0, 2))
    BG = 24
    N = 14 * 64
    G = Gaps(N)
    mf = []; ref = []
    PR = {(c, f): pair_reads(c, f) for c in range(7) for f in range(16)}
    XRD = {pc: x_reads(pc) for pc in range(2, 16)}
    for c in range(7):
        if c: ref += XRD[2 * c] + XRD[2 * c + 1]
        for f in range(16):
            if c or f > 2: ref += PR[c, f]
            for qi, qt in enumerate(zig(4, f & 1, 'q')):
                acc = QACC(f >> 3, f & 7, qt)
                for i, ks in enumerate(zig(2, qi & 1, 'q')):
                    m = Ins(mfma(acc, f'a{WP(c, f, ks)}', f'v{XF(2 * c + ks, qt)}', acc if (c or i) else '0')); mf.append(m); ref.append(m)
    U0 = unit_reads(0)[:8]
    ref += XRD[14] + XRD[15] + U0
    for t in range(14):
        o = 64 * t
        groups = []
        if t == 0: groups = [(dma_x(3), [5, 8, 11, 14]), (dma_x(4), [18, 22, 26, 30]), (dma_w(4), [34, 38, 42, 46]), (dma_x(5), [51, 54, 57, 60])]
        elif t == 1: groups = [(dma_w(5), [2, 7, 12, 17]), (dma_x(6), [28, 33, 38, 43]), (dma_w(6), [48, 52, 56, 60])]
        elif t == 2: groups = [(jdma(0), [2, 7, 12]), (dma_w(7), [18, 24, 30, 36]), (dma_x(7), [42, 48, 54, 60])]
        elif t in (5, 9): groups = [(dma_x(t + 5), [10, 14, 18, 22]), (jdma(t // 4), [28, 33, 38]), (dma_w(t + 5), [44, 50, 55, 60])]
        elif t == 13: groups = [(dma_kk(0), [28, 33, 38, 43]), (dma_vv(0), [48, 52, 56, 60])]
        elif t & 1: groups = [(dma_x(t + 5), [10, 16, 22, 29]), (dma_w(t + 5), [36, 44, 52, 60])]
        else: groups = [(dma_w(t + 5), [2, 10, 18, 26]), (dma_x(t + 5), [34, 42, 50, 58])]
        for gr, pos in groups:
            G.place_dma(gr, [o + x for x in pos])
            if gr[0][1].tag == f'X{t + 5}': G.sc[o + pos[0] - 3].append(f'WAITLG rX{t + 2}')
        for i, g in {4: [(0, 31)], 5: [(1, 5)], 6: [(2, 30)], 8: [(3, 31)], 9: [(4, 5)], 10: [(5, 30)], 12: [(6, 15), (7, 38), (8, 62)]}.get(t, []):
            G.place_dma(jstore(i), [o + g])
        if t == 12:
            G.v[o + 44].append(f'v_mov_b32 v{VPA}, 0')
            G.mem[o + 46].append(Ins(cl(f'buffer_store_dword v{VPA}, v{VOFFO}, {srd(SFL)}, 0 offen {OPT["st"]}'), 'Fz'))
        G.sc[o].append(f'WAITVM X{t + 2}')
        if t == 0: G.sc[2].append('WAITLG rX1')
        if t & 1:
            tags = f'W{t + 1}+W{t + 2}' + {3: '+J0', 7: '+J1', 11: '+J2'}.get(t, '')
            G.sc[o + BG] += [f'WAITVM {tags} lg0', 's_barrier']
        if t == 13: G.sc[o + 62] += ['WAITVM W16+W17+X16+X17 lg0', 's_barrier']
    def put(ins, g, lim=None):
        while G.mem[g] or ((g >> 6) & 1 and BG - 6 <= (g & 63) < BG): g += 1
        assert lim is None or g <= lim, (ins.text, g, lim)
        G.mem[g].append(ins); return g
    for t in range(14):
        g = 64 * t
        for r in XRD[t + 2]: g = put(r, g)
    g = 0
    for c in range(7):
        for f in range(16):
            if c == 0 and f < 3: continue
            P_ = 16 * c + f
            for i, r in enumerate(PR[c, f]):
                g = put(r, max(g, 8 * (P_ - 11), 128 * c - 64 + BG + (f * 4 + i) * 3 // 2 if c else 0), lim=min(8 * P_ - 5, 128 * c + 64 + BG - 7))
    for t in (3, 7, 11):
        g = 64 * t + BG + 1
        for n in range(3):
            d = JR((t // 4) * 3 + n)
            for sx in range(2): g = put(Ins(f'ds_read_b64_tr_b16 {d[0]}[{int(d[1:]) + 2 * sx}:{int(d[1:]) + 2 * sx + 1}], v{JADDR} offset:{n * 32 + sx * 16 * 384}'), g, lim=64 * (t + 1) + 8)
    g = 64 * 13 + BG
    for r in U0: g = put(r, g, lim=64 * 13 + 55)
    for i, x in enumerate(DEF_V[:56]): G.v[(i * 62) // 56].append(x)
    for i, x in enumerate(DEF_V[56:]): G.v[64 + (i * 62) // (len(DEF_V) - 56)].append(x)
    g = 30
    while DEF_S:
        if not G.sc[g] and g % 8 not in (6, 7): G.sc[g] += DEF_S.pop(0).split('|')
        g += 1
    assert g < 64 * 4, g
    if OPT['qtl']:
        for t in range(14): G.v[64 * t + 3].append('s_memtime s[98:99]'); G.v[64 * t + 40].append(f's_mov_b32 s{64 + t}, s98')
    out = [I(x) for x in G.weave(mf)]
    check_order(ref, out, 'Q')
    A.extend(out)
    stamp(A, 4)
    gsu = f"""s_and_b32 s50, s2, 6
s_lshl_b32 s50, s50, 3
s_lshr_b32 s51, s2, 5
s_lshl_b32 s51, s51, 1
s_add_u32 s50, s50, s51
s_lshr_b32 s51, s{sW}, 1
s_add_u32 s50, s50, s51
s_lshl_b32 s50, s50, 19
s_and_b32 s51, s2, 1
s_lshl_b32 s51, s51, 18
s_add_u32 s50, s50, s51
s_and_b32 s51, s{sW}, 1
s_lshl_b32 s51, s51, 11
s_add_u32 s50, s50, s51
s_add_u32 s{SGO}, s{sWS}, s50|s_addc_u32 s{SGO+1}, s{sWS+1}, 0
s_mov_b32 s{SGO+2}, {262144 - 2048}
s_and_b32 s50, s2, 4
s_bfe_u32 s51, s2, 0x20003
s_add_u32 s50, s50, s51
s_lshl_b32 s50, s50, 1
s_and_b32 s51, s2, 1
s_add_u32 s50, s50, s51
s_mul_i32 s50, s50, {64 * 9216}
s_add_u32 s50, s50, {WS_WO}
s_add_u32 s{SGW}, s{sWS}, s50|s_addc_u32 s{SGW+1}, s{sWS+1}, 0
s_mov_b32 s{SGW+2}, {64 * 9216}""".split('\n')
    NG = 288
    G = Gaps(NG + 8)
    mf = []; ref = []
    UR = [unit_reads(n) for n in range(8)]
    XR = x_reads(16) + x_reads(17)
    K0 = k_reads(0); K1 = k_reads(1)
    CV_ = [conv(n) for n in range(8)]
    ref += XR
    for n in range(8):
        h, u = n >> 2, n & 3
        m = [Ins(mfma(QACC(h, 2 * u + tt, qt), uw(n, k, tt), f'v{XF(14 + k, qt)}', QACC(h, 2 * u + tt, qt))) for k, tt, qt in unit_mf(n)]
        mf += m
        ref += (UR[n][8:] if n == 0 else UR[n]) + m + CV_[n][2]
    m = [Ins(x) for x in qk_mfmas(0)]
    mf += m; ref += K0 + m + K1
    if OPT['jo'] == '8':
        for i, jobs in enumerate([dma_vv(1), dma_kk(2), dma_vv(2)]):
            G.place_dma(jobs, [34 + 16 * (4 * i + x) for x in range(4)])
        kv = {1: 34}
    elif OPT['jo'] in '567':
        for i, jobs in enumerate([dma_kk(1), dma_vv(1), dma_kk(2), dma_vv(2)]):
            G.place_dma(jobs, [20 + 13 * (4 * i + x) for x in range(4)])
        kv = {1: 20 + 13 * 4}
    elif OPT['jo'] == '4':
        k0 = int(OPT['kv0'])
        for i, jobs in enumerate([dma_kk(0), dma_vv(0), dma_kk(1), dma_vv(1), dma_kk(2)]):
            st_ = (215 - k0) // 20
            G.place_dma(jobs, [k0 + st_ * (4 * i + x) for x in range(4)])
        kv = {1: k0 + st_ * 12}
    else:
        JS = [jstore(i) for i in range(9)]
        ref = [x[0][1] for x in JS] + ref
        order = [6, 8, 7, 0, 1, 2, 3, 4, 5]
        jp = [17, 24, 48, 76, 100, 124, 152, 176, 200]; fz = 220; kv = {0: 34, 1: 82, 2: 130, 3: 182}
        for i, g in zip(order, jp): G.place_dma(JS[i], [g])
        G.v[fz - 2].append(f'v_mov_b32 v{VPA}, 0')
        G.mem[fz].append(Ins(cl(f'buffer_store_dword v{VPA}, v{VOFFO}, {srd(SFL)}, 0 offen {OPT["st"]}'), 'Fz'))
        for i, jobs in enumerate([dma_kk(0), dma_vv(1), dma_kk(2), dma_vv(2)]):
            G.place_dma(jobs, [kv[i] + 11 * x for x in range(4)])
    G.place_dma(dma_kk(3), [250, 258, 266, 274])
    G.sc[kv[1] - 3].append('WAITLG rX16+rX17')
    gi = 260
    for x in gsu:
        while G.sc[gi]: gi += 1
        G.sc[gi] += x.split('|')
    BAR = 32 * 7 + 9
    G.sc[BAR] += ['WAITVM KK0 lg0', 's_barrier']
    def put(ins, g, lim=None):
        while G.mem[g] or (BAR - 5 <= g < BAR): g += 1
        assert lim is None or g <= lim, (ins.text, g, lim)
        G.mem[g].append(ins); return g
    cur = 0
    for n in range(8):
        V, D, _ = CV_[n]
        g0 = 32 * (n + 1) + 1; span = 30
        vp = [g0 + (i * span) // len(V) for i in range(len(V))]
        for x, g in zip(V, vp): G.v[g].append(x)
        for i, d in D: cur = put(d, max(cur, vp[i] + 1))
    g = 0
    for r in ((XR[:4] + UR[0][8:12] + XR[4:] + UR[0][12:]) if OPT['cqb'] else (XR[:2] + XR[4:6] + UR[0][8:12] + XR[2:4] + XR[6:] + UR[0][12:])): g = put(r, g)
    for n in range(1, 8):
        for i, r in enumerate(UR[n]):
            g = put(r, max(g, 32 * (n - 1) + (i * 3) // 2), lim=min((32 * n + 16 * (i // 8) - 5 + (i % 8) // 2) if OPT['cqb'] else 32 * n + 2 * i - 5, BAR - 6))
    g = BAR
    for i, r in enumerate(K0): g = put(r, max(g, BAR + 2 * i), lim=(256 + 16 * (i // 4) - 5 + i % 4) if OPT['cqk'] else 256 + 4 * i - 6)
    for i, r in enumerate(K1): g = put(r, max(g, (256 + 16 * (i // 4) + 16 + i % 4) if OPT['cqk'] else 256 + 4 * i + 4))
    zero = [Ins(x) for x in negm_init()]
    ones = [Ins(x) for x in f'v_and_b32 v{ONES}, 3, v2|v_cmp_eq_u32 vcc, 0, v{ONES}|v_mov_b32 v{ONES + 1}, 0x3f803f80|v_cndmask_b32 v{ONES}, 0, v{ONES + 1}, vcc|v_mov_b32 v{ONES + 1}, v{ONES}|v_mov_b64 v[{ONES + 2}:{ONES + 3}], v[{ONES}:{ONES + 1}]'.split('|')]
    sm0 = [Ins(x) for x in sm_dense(0, 0, 68)]
    if not INL():
        k = ref.index(m[0]); ref[k:k] = zero
        G.v[255] += zero; zero = []
    ref += ones + zero + sm0
    NH = int(OPT['nh'])
    for i, x in enumerate(sm0[:NH]): G.v[264 + (i * 23) // NH if i < 5 else 280 + ((i - 5) * 8) // max(NH - 5, 1)].append(x)
    G.v[290] += ones + zero[:4] + sm0[NH:] + zero[4:]
    if OPT['stamps'] and not OPT['qtl']: G.sc[257].append('s_memtime s[74:75]')
    if OPT['qtl']:
        for n in range(9): G.v[32 * n + 3].append('s_memtime s[98:99]'); G.v[32 * n + 25].append(f's_mov_b32 s{78 + n}, s98')
    out = [I(x) for x in G.weave(mf)]
    check_order(ref, out, 'QB')
    A.extend(out)

def seg_name(j):
    if j == 0 or (j == 32 and not OPT['w1']): return 's0'
    if j == 32: return 's32'
    if j == 31: return 'sp31'
    if j == 63: return 'fin31'
    if j >= 56: return f'p{j}'
    return f'r{j % 8}'

def gen():
    A = Prog()
    setup(A)
    q_phase(A)
    stamp(A, 6)
    if OPT['tl']: A('s_mov_b32 s97, 0')
    def tagsof(which, t):
        if which == 'V' and t < 6: return f'VV{t // 2}'
        if which == 'K' and t < 8: return f'KK{t // 2}'
        return f'{which}{t}'
    GA = [4, 5, 6]
    def WB(c, n, u): return 128 + ((9 * c + n) % 4) * 16 + u * 4
    def GACC(n, mm): i = n * 2 + mm; return 64 + i * 4 if i < 16 else 200 + (i - 16) * 4
    def OB(s, mm): return 128 + ((s + 8) % 16) * 8 + mm * 4
    def g_wreads(c, n):
        out = []
        for u in range(4):
            ad = (c % 4) * 36864 + u * 9216 + n * 1024
            out.append(Ins(f'ds_read_b128 v[{WB(c, n, u)}:{WB(c, n, u) + 3}], v{GA[ad >> 16]} offset:{ad & 0xffff}', f'rG{c}'))
        return out
    def g_oloads(s):
        gen_, i, u = s >> 5, (s >> 2) & 7, s & 3
        off, sr = ((2 * i + gen_) * 16384 + u * 4096, SGO) if s < 64 else (i * 32768 + u * 4096, SG2O)
        return [([f's_mov_b32 s{sWe}, {off}'] if mm == 0 else [],
                 Ins(cl(f'buffer_load_dwordx4 a[{OB(s, mm)}:{OB(s, mm) + 3}], v{VSK_[mm]}, {srd(sr)}, s{sWe} offen {OPT["g_o"]}'), f'GO{s}'), []) for mm in range(2)]
    def g_w8(a, tag):
        return [([f's_mov_b32 s{sKo}, {a}', f's_add_u32 m0, s{sW2K}, {a}'] if o == 0 else [],
                 Ins(cl(f'buffer_load_dwordx4 v{VOFFK}, {srd(SGW)}, s{sKo} offen offset:{o * 1024} {OPT["g_w"]} lds'), tag), []) for o in range(2)]
    def g_wchunk(c):
        out = []
        for n in range(9):
            pre = [f's_add_u32 s{sKo}, s{sXo}, {(c % 16) * 36864 + (n // 4) * 4096}', f's_add_u32 m0, s{sXo}, {(c % 4) * 36864 + (n // 4) * 4096}'] if n % 4 == 0 else []
            out.append((pre, Ins(cl(f'buffer_load_dwordx4 v{VOFFO}, {srd(SGW if c < 16 else SG2W)}, s{sKo} offen offset:{(n % 4) * 1024} {OPT["g_w"]} lds'), f'GW{c}'), []))
        return out
    poll1 = f'buffer_load_dword v{VPOLL}, v{VPA}, {srd(SFP)}, 0 offen sc1'
    poll2 = f'buffer_load_dword v{VPOLL}, v{VPA}, {srd(SFP)}, 0 offen offset:16 sc1'
    pollc = f'buffer_load_dword v{VPOLL}, v{VPA}, {srd(SWS)}, 0 offen sc1'
    polld = f'buffer_load_dword v{VPOLL}, v{VPP}, {srd(SFP)}, 0 offen offset:64 sc1'
    ne1 = f'v_cmp_ne_u32 vcc, 1, v{VPOLL}'
    qcopy = [f'v_accvgpr_mov_b32 a{128 + i}, a{192 + i}' for i in range(64)]

    POST = []
    def fill(G, j):
        jj = j & 31; nm = seg_name(j); p = j & 1
        if j % 2 == 0:
            tags = [tagsof('V', j), tagsof('V', j + 1), tagsof('K', j + 2), tagsof('K', j + 3)] + (['Jst', 'Fz'] if j == 6 else [])
            G.sc[0] += [f'WAITVM {"+".join(tags)} lg0', 's_barrier']
        if j < 63:
            for pos, x in softmax_stream(j):
                if pos >= NG: G.v[pos - NG].append(x)
            for pos, x in softmax_stream(j + 1):
                if pos < NG: G.v[pos].append(x)
        if jj == 0:
            G.v[20].append(f'v_max_f32 v{CT}, v{Lr(p, 0)}, v{Lr(p, 1)}')
            G.v[22].append(f'v_min_f32 v{VPG}, v{Lr(p, 0)}, v{Lr(p, 1)}')
            G.v[29] += [f'v_max3_f32 v{CT}, v{CT}, v{Lr(p, 2)}, v{Lr(p, 3)}', f'v_min3_f32 v{VPG}, v{VPG}, v{Lr(p, 2)}, v{Lr(p, 3)}']
            G.v[30] += [f'v_cmp_gt_f32 s[50:51], s{sLOW}, v{VPG}']
            G.v[31] += [f'v_cmp_lt_f32 vcc, s{sTHR}, v{CT}']
            G.sc[32] += ['s_or_b64 s[50:51], s[50:51], vcc', f's_cbranch_scc1 L_st_{nm}', f'L_bk_{nm}:']
        else:
            G.v[20].append(f'v_max_f32 v{CT}, v{Lr(p, 0)}, v{Lr(p, 1)}')
            G.v[29].append(f'v_max3_f32 v{CT}, v{CT}, v{Lr(p, 2)}, v{Lr(p, 3)}')
            G.v[31].append(f'v_cmp_lt_f32 vcc, s{sTHR}, v{CT}')
            G.sc[32] += [f's_cbranch_vccnz L_st_{nm}', f'L_bk_{nm}:']
        if j < 63:
            for r, g in zip(v_reads(j), [1, 3, 5, 7, 9, 13, 15, 17, 19, 21, 22, 23, 25, 33, 35, 37]): G.mem[g].append(r)
            if j + 2 < 64:
                for r, g in zip(k_reads(j + 2), [39, 41, 45, 47, 49, 51, 53, 55]): G.mem[g].append(r)
            if j < 56: G.place_dma(dma_kv('K', j + 8) + dma_kv('V', j + 6), [11, 27, 43, 59])
            else:
                W8 = lambda i: g_w8(i * 8192, f'P{i}')
                jobs = {56: dma_kv('V', 62) + W8(0) + W8(16) + g_oloads(0), 57: dma_kv('V', 63) + W8(1) + W8(17) + g_oloads(1),
                        58: W8(2) + g_oloads(2) + W8(8) + g_oloads(3), 59: W8(3) + g_oloads(4) + W8(9) + g_oloads(5),
                        60: W8(4) + g_oloads(6) + W8(10) + g_oloads(7), 61: W8(5) + W8(11),
                        62: W8(6) + W8(7) + W8(12) + W8(13) + g_oloads(8) + g_oloads(9)}[j]
                pos = {8: [4, 11, 20, 27, 43, 57, 63, 67], 4: [11, 27, 43, 59], 12: [4, 11, 20, 27, 39, 43, 47, 51, 55, 59, 63, 67]}[len(jobs)]
                G.place_dma(jobs, pos)
                G.v[3].append(f'v_mov_b32 v{VPG}, {j - 55}')
                G.mem[31].append(Ins(cl(f'buffer_store_dword v{VPG}, v{VL4}, {srd(SFL)}, 0 offen offset:48 {OPT["st"]}'), 'PG'))
                if j == 61:
                    G.v[35] += [f'v_mad_u32_u24 v{VPR}, v{VPR}, {OPT["bm"]}, {OPT["ba"]}']
                    G.v[39] += [f'v_lshrrev_b32 v{VPR}, 3, v{VPR}']
                    G.v[47] += [f'v_min_u32 v{VPR}, {OPT["bmax"]}, v{VPR}']
                    G.v[51] += [f'v_add_u32 v{VPG}, 1, v{VPR}']
                    G.v[55] += [f'v_lshlrev_b32 v{VPOLL}, 2, v1']
                    G.v[57] += [f'v_add_u32 v{VPOLL}, {160 * 1024 - 16}, v{VPOLL}']
                    G.mem[63].append(Ins(cl(f'buffer_store_dword v{VPG}, v{VL4}, {srd(SFL)}, 0 offen offset:64 {OPT["st"]}'), 'DG'))
                    G.mem[61].append(Ins(f'ds_write_b32 v{VPOLL}, v{VPR}'))
            if j == 31:
                G.pack(qcopy, 1, 31)
                NB = int(OPT['nb'])
                prep, un = epilogue(False, 160); _, up = epilogue(True, 160)
                units = un[:NB] + up[NB:]
                seq = []; cut = None
                for k in range(16):
                    if k == NB: cut = len(seq)
                    seq += units[k][0]
                    if k: seq += units[k - 1][3]
                    seq += units[k][1] + units[k][2]
                seq += units[15][3] + negm_init()
                G.pack(prep, 33, 41)
                pos = G.pack(seq[:cut], 42, NG)
                for x, g in zip(seq[:cut], pos):
                    x = I(x)
                    if x.mn == 'v_accvgpr_read_b32':
                        a = [r for r in x.rd if r[0] == 'a'][0][1]
                        assert g >= pvi(a // 4) + 2, (x.text, g)
                POST.extend(seq[cut:])
        if nm == 'r6': G.sc[66].append(f's_sub_u32 s{sCnt}, s{sCnt}, 1')
        if nm == 'r7': G.sc[66].append(f's_cmp_lt_u32 s{sKo}, 0x50000')

    j = 0
    while j < 64:
        nm = seg_name(j)
        A(f'.mark {nm}')
        G = Gaps(NG)
        fill(G, j)
        if j == 31 and not INL(): A.extend(negm_init())
        if j == 63:
            P0 = v_reads(j)
            dn = sm_dense(63, NG, 999)
            ol = flat(g_oloads(10) + g_oloads(11) + g_oloads(12))
            k = 0
            for i, x in enumerate(dn):
                P0.append(x)
                tgt = len(ol) * (i + 1) // len(dn)
                while k < tgt: P0.append(ol[k]); k += 1
            G.v[0] += P0
            G.v[18] += [f'v_mov_b32 v{GA[0]}, v{VOFFO}', f'v_add_u32 v{GA[1]}, 0x10000, v{VOFFO}', f'v_add_u32 v{GA[2]}, 0x20000, v{VOFFO}', f's_mul_i32 s{sXo}, s{sW}, 9216']
            G.sc[34] += ['WAITVM P4 lg0', 's_barrier']
            for r, g in zip(g_wreads(0, 0) + g_wreads(0, 1) + g_wreads(0, 2), [35, 38, 41, 43, 47, 50, 52, 55, 58, 60, 64, 66]): G.mem[g].append(r)
            G.v[18] += [f'v_mov_b32 v{VPG}, {160 * 1024 - 16}']
            G.mem[36].append(Ins(f'ds_read_b32 v{VPR}, v{VPG}'))
            G.place_dma(g_w8(14 * 8192, 'P14') + g_w8(15 * 8192, 'P15') + g_oloads(13) + g_oloads(14), [37, 40, 45, 49, 54, 57, 61, 65])
            prep2, units2 = epilogue(int(OPT['epg']) == 0, EP + 8)
            epi, _, _ = epi_flat(units2)
            G.pack(prep2, 34, 40)
            ne = 0
            if int(OPT['epg']):
                ne = 49
                G.pack(epi[:ne], 42, NG)
            epi = epi[ne:]
        A.extend(G.weave(step_mfmas(j)))
        def atomic():
            A('WAITVM Jst+Fz')
            A(f's_mov_b32 s{SWS}, s{sDBG}\ns_mov_b32 s{SWS + 1}, s{sDBG + 1}\ns_mov_b32 s{SWS + 2}, 4\nv_mov_b32 v{VFLAG}, 1\nv_lshlrev_b32 v{VPA}, 2, v0\nv_lshlrev_b32 v{VL4}, 7, v2')
            A(f'buffer_atomic_add v{VFLAG}, v{VPA}, {srd(SWS)}, 0 offen sc1', tag='Cwo')
        if j == 7:
            A('.mark b7')
            if OPT['atom'] == '0': atomic()
        if j == 39:
            A('.mark b39')
            A('WAITVM Ost')
            A(cl(f'buffer_store_dword v{VFLAG}, v{VL4}, {srd(SFL)}, 0 offen {OPT["st"]}'), tag='F1')
            if OPT['atom'] == '1': A(pollc, tag='Pc')
        if j == 47:
            A('.mark b47')
            A(f's_movk_i32 s{sMODE}, 256')
            A.extend(spin_check('c', pollc, f'v_cmp_gt_u32 vcc, s{sMODE}, v{VPOLL}'))
            A(f"""s_andn2_b32 s50, s2, 0x38
s_lshl_b32 s50, s50, 7
s_bfe_u32 s51, s2, 0x10005
s_lshl_b32 s51, s51, 3
s_add_u32 s50, s50, s51
s_lshr_b32 s51, s{sW}, 1
s_lshl_b32 s51, s51, 2
s_add_u32 s50, s50, s51
s_add_u32 s{SFP}, s{sWS}, {WS_FL}
s_addc_u32 s{SFP+1}, s{sWS+1}, 0
s_mov_b32 s{SFP+2}, 32768
v_and_b32 v{VPA}, 7, v0
v_lshlrev_b32 v{VPA}, 10, v{VPA}
v_add_u32 v{VPA}, s50, v{VPA}
s_xor_b32 s50, s2, 1
s_lshl_b32 s50, s50, 7
s_lshl_b32 s{sW4}, s{sW}, 2
v_mov_b32 v{VPP}, s50""")
            A(poll1, tag='PL1')
            code_prefetch(A, 'L_fin', 'L_code_end', 21, 23, 1); code_prefetch(A, 'L_fin', 'L_code_end', 21, 25, 1, first=1, tag='c')
        if j == 55:
            A('.mark b55')
            A.extend(spin_check('f1', poll1, ne1))
            A(f'v_add_u32 v{VOFFK}, s{sW2K}, v{VOFFO}\ns_and_b32 s50, s2, 1\ns_lshl_b32 s50, s50, 10\nv_add_u32 v{VSK_[1]}, s50, v{VOFFO}\nv_xor_b32 v{VSK_[0]}, 0x400, v{VSK_[1]}')
            A(f'buffer_load_dword v{VPR}, v{VPP}, {srd(SFP)}, 0 offen offset:48 sc1', tag='PLP')
        if j == 31:
            A('.mark epi')
            stamp(A, 7)
            if OPT['atom'] == '1': atomic()
            A(f'v_mov_b32 v{VPA}, 0')
            if OPT['atom'] == '0': A(pollc, tag='Pc')
            A.extend(POST)
            A(f's_mov_b32 s{sHead}, 1\ns_mov_b32 s{sCnt}, 3')
            stamp(A, 8)
        j += 1
    A('.mark tail')
    stamp(A, 9)
    EPG = int(OPT['epg'])
    ek = 0
    G2 = int(OPT['g2s']); LO = int(OPT['lo']); LW = int(OPT['lw']); S0 = int(OPT['gs0']); S1 = int(OPT['gs1'])
    items = []
    NS = 64 + 4 * int(OPT['bmax']); G3 = 56
    for x in range(15, NS):
        for jb in g_oloads(x): items.append(((x & ~3) - LO - (3 - (x & 3)) * 0.9, max((x & ~3) - 12, G2 + 1 if x >= 32 else 0, G3 + 1 if x >= 64 else 0), jb))
    for c in range(4, NS // 4):
        for n, jb in enumerate(g_wchunk(c)): items.append((4 * c - 1 - LW - (8 - n) * 4 / 9.0, 4 * (c - 4) + 3, jb))
    items.sort(key=lambda z: z[0])
    sched = [[] for _ in range(NS)]
    cur = 0
    for i, (dl, rl, jb) in enumerate(items):
        k = int(S0 + i * (S1 - S0 + 1) / 206)
        k = max(min(k, int(dl)), rl, cur)
        while len(sched[k]) >= 6: k += 1
        sched[k].append(jb); cur = k
    def when(tag): return [k for k in range(NS) if any(x[1].tag == tag for x in sched[k])]
    CL = max(when('GO31')) + 1
    assert CL + 2 < min(when('GO48')) and CL + 2 < min(when('GW12')), (CL, when('GO48'), when('GW12'))
    assert NS == 64 or min(when('GW16')) > 47
    if EPG == 0:
        A.extend(epi); ek = len(epi)
    if OPT['verbose']: print([len(x) for x in sched])
    SQ = []
    def sq_add(txt):
        L = txt.split('\n'); i = 0
        while i < len(L):
            k = 1
            while i + k < len(L) and L[i + k].startswith(('s_addc', 's_subb', 's_cselect')): k += 1
            SQ.append(L[i:i + k]); i += k
    rq = []
    for c in range(NS // 4):
        for n in range(9):
            if c == 0 and n < 3: continue
            q = 9 * c + n
            lo = max(8 * (q - 3), 72 * c - 20)
            for u, r in enumerate(g_wreads(c, n)): rq.append((lo, 8 * q + u - 6, r))
    for s_ in range(NS):
        c, u = s_ >> 2, s_ & 3
        mf = [mfma(f'v{GACC(n, mm)}', f'v{WB(c, n, uu)}', f'a{OB(4 * c + uu, mm)}', f'v{GACC(n, mm)}' if (c or ui) else '0') for n in range(9) for mi, mm in enumerate(zig(2, n & 1, 'g')) for ui, uu in enumerate(zig(4, mi, 'g'))][18 * u:18 * u + 18]
        G = Gaps(18)
        if u == 2 and c < NS // 4 - 1:
            tags = {0: 'P5+P6+P7+P8', 1: 'P9+P10+P11+P12+P13', 2: 'P14+P15+P16+P17'}.get(c, f'GW{c + 1}')
            G.sc[16] += [f'WAITVM {tags} lg0', 's_barrier']
            assert not [1 for q in sched[s_:] for x in q if x[1].tag == f'GW{c + 1}'], c
        jobs = sched[s_]
        for x in jobs:
            if x[1].tag.startswith('GO'): assert (int(x[1].tag[2:]) & ~3) >= s_ + 2, (s_, x[1].tag)
        jp = {0: [], 1: [10], 2: [5, 14], 3: [3, 9, 15], 4: [3, 8, 12, 15], 5: [2, 6, 9, 12, 15], 6: [2, 5, 8, 11, 14, 17]}[len(jobs)]
        G.place_dma(jobs, jp)
        for g in range(18):
            if g in jp or not rq: continue
            gg = 18 * s_ + g
            if rq[0][0] <= gg:
                assert gg <= rq[0][1], (gg, rq[0][1], rq[0][2].text)
                if u == 2 and g >= 16: assert rq[0][2].tag != f'rG{c}'
                G.mem[g].append(rq.pop(0)[2])
        if s_ == int(OPT['p2s']): G.mem[17].append(Ins(poll2, 'PL2'))
        if OPT['gtl']:
            if s_ % 2 == 0: G.sc[12].append('s_memtime s[98:99]')
            elif s_ < 64: G.v[0].append(f'v_writelane_b32 v59, s98, {s_ // 2}')
        for g in range(18):
            n = EPG - (1 if G.mem[g] else 0)
            while n > 0 and ek < len(epi):
                x = epi[ek]
                if isinstance(x, Ins) and x.kind == 'vst':
                    if G.v[g]: break
                    G.mem[g].append(x); ek += 1; n -= 1; continue
                G.v[g].append(x); ek += 1
                if not x.startswith('s_'): n -= 1
        if s_ == int(OPT['f2s']):
            assert ek == len(epi), (ek, len(epi))
            G.sc[16].append('WAITVM Ost')
            G.mem[17].append(Ins(cl(f'buffer_store_dword v{VFLAG}, v{VL4}, {srd(SFL)}, 0 offen offset:16 {OPT["st"]}'), 'F2'))
        if s_ == G2: G.v[17] += spin_check('f2', poll2, ne1)
        nxt = None
        if s_ == CL:
            G.v[15] += [f'v_readfirstlane_b32 s{sGive}, v{VPR}']
            nxt = f"""s_sub_u32 s50, 16, s{sGive}
s_mul_i32 s{SGW+2}, s50, 36864
s_sub_u32 s50, 8, s{sGive}
s_lshl_b32 s50, s50, 15
s_min_u32 s{SGO+2}, s{SGO+2}, s50"""
        if s_ == 38: G.mem[17].append(Ins(polld, 'PLD'))
        if s_ == 43:
            G.v[15] += spin_check('d', polld, f'v_cmp_eq_u32 vcc, 0, v{VPOLL}')
            G.v[16] += [f'v_readfirstlane_b32 s{sRem}, v{VPOLL}', f'v_xor_b32 v{VPA}, 128, v{VPA}']
            nxt = f"""s_sub_u32 s{sRem}, s{sRem}, 1
s_min_u32 s{sRem}, s{sRem}, {OPT['bmax']}
s_bitcmp1_b32 s2, 0
s_cselect_b32 s50, 0, {2 * 64 * 9216}
s_mul_i32 s{SG2W+2}, s{sRem}, 36864
s_add_u32 s{SG2W}, s{SGW}, s50
s_addc_u32 s{SG2W+1}, s{SGW+1}, 0
s_sub_u32 s{SG2W}, s{SG2W}, s{SG2W+2}
s_subb_u32 s{SG2W+1}, s{SG2W+1}, 0
s_bitcmp1_b32 s2, 0
s_cselect_b32 s50, 0, {2 * 262144}
s_add_u32 s50, s50, 16384
s_lshl_b32 s51, s{sRem}, 15
s_add_u32 s{SG2O}, s{SGO}, s50
s_addc_u32 s{SG2O+1}, s{SGO+1}, 0
s_sub_u32 s{SG2O}, s{SG2O}, s51
s_subb_u32 s{SG2O+1}, s{SG2O+1}, 0
s_max_u32 s51, s51, {16384 + 2048}
s_sub_u32 s{SG2O+2}, s51, {16384 + 2048}
s_mov_b32 s{SG2O+3}, 0x20000
s_cmp_eq_u32 s{sRem}, 0
s_cselect_b32 s50, s{sGive}, 0
s_add_u32 s{sRem}, s{sRem}, 4
s_sub_u32 s{sRem}, s{sRem}, s50"""
        if s_ == G3 - 4 and NS > 64: G.mem[17].append(Ins(poll2, 'PL3'))
        if s_ == G3 and NS > 64: G.v[17] += spin_check('f3', poll2, ne1)
        if u == 3 and 11 <= c < NS // 4 - 1:
            G.sc[18] += [f's_sub_u32 s{sRem}, s{sRem}, 1', 's_cbranch_scc1 L_xchg']
        if s_ == 30:
            nxt = f"""s_lshl_b32 s50, s2, 2
s_add_u32 s50, s50, s{sW}
s_mul_i32 s50, s50, 9216
s_add_u32 s50, s50, {WS_X}
s_add_u32 s{SO}, s{sWS}, s50
s_addc_u32 s{SO+1}, s{sWS+1}, 0
s_mov_b32 s{SO+2}, 9216
s_xor_b32 s50, s2, 1
s_lshl_b32 s51, s50, 2
s_add_u32 s51, s51, s{sW}
s_mul_i32 s51, s51, 9216
s_add_u32 s51, s51, {WS_X}
s_add_u32 s{SV}, s{sWS}, s51
s_addc_u32 s{SV+1}, s{sWS+1}, 0
s_mov_b32 s{SV+2}, 9216
s_and_b32 s50, s2, 2
s_lshl_b32 s50, s50, 2
s_lshr_b32 s51, s2, 5
s_add_u32 s50, s50, s51
s_lshl_b32 s50, s50, 2
s_add_u32 s50, s50, s{sW}
s_lshl_b32 s50, s50, 1
s_and_b32 s51, s2, 1
s_add_u32 s50, s50, s51
s_mul_i32 s50, s50, {16 * 2304}
s_bfe_u32 s51, s2, 0x10002
s_mul_i32 s51, s51, 1152
s_add_u32 s50, s50, s51
s_bfe_u32 s51, s2, 0x20003
s_mul_i32 s51, s51, 288
s_add_u32 s50, s50, s51
s_add_u32 s{SOUT}, s{sOUT}, s50
s_addc_u32 s{SOUT+1}, s{sOUT+1}, 0
s_mov_b32 s{SOUT+2}, {15 * 2304 + 288}"""
        if 36 <= s_ < 41:
            k = s_ - 36
            vv = f"""v_add_u32 v28, {64 * k}, v2
v_mul_u32_u24 v29, 3641, v28
v_lshrrev_b32 v29, 16, v29
v_mul_u32_u24 v30, 18, v29
v_sub_u32 v30, v28, v30
v_lshlrev_b32 v30, 4, v30
v_mad_u32_u24 v{32 + k}, v29, s{sT0}, v30
v_mul_u32_u24 v29, 304, v29
v_add3_u32 v{44 + k}, v29, v30, v31""".split('\n')
            if k == 0:
                vv = [f's_movk_i32 s{sT0}, 2304\ns_movk_i32 s{sMODE}, 4096', 'v_lshlrev_b32 v31, 13, v1', 'v_and_b32 v29, 15, v2', 'v_mul_u32_u24 v29, 304, v29', 'v_lshrrev_b32 v30, 4, v2',
                      'v_lshl_add_u32 v29, v30, 3, v29', 'v_add_u32 v39, v29, v31', f'v_add_u32 v37, 0x1000, v{VOFFO}', (f'v_lshl_add_u32 v38, v2, 3, s{sMODE}' if OPT['xb'] else f'v_add_u32 v38, 0x2000, v{VOFFO}')] + vv
            for i, x in enumerate(vv): G.v[i].append(x)
        for g in range(18):
            if SQ and not G.sc[g] and (18 * s_ + g) % 8 < 4: G.sc[g] += SQ.pop(0)
        if s_ in (29, 42, 46): assert not SQ, (s_, len(SQ))
        if nxt: sq_add(nxt)
        A.extend(G.weave(mf))
    A('L_xchg:')
    stamp(A, 10)
    A('s_nop 7')
    vo3 = [VOFFO, 37, 38]
    pollx = f'buffer_load_dword v{VPOLL}, v{VPP}, {srd(SFP)}, s{sW4} offen offset:32 sc1'
    XB = OPT['xb']
    if XB:
        for n in range(9):
            a_ = GACC(n, 0)
            A(f'v_cvt_pk_bf16_f32 v{208 + 2 * n}, v{a_}, v{a_ + 1}\nv_cvt_pk_bf16_f32 v{209 + 2 * n}, v{a_ + 2}, v{a_ + 3}')
            if n & 1: A(cl(f'buffer_store_dwordx4 v[{206 + 2 * n}:{209 + 2 * n}], v{VOFFO}, {srd(SO)}, 0 offen offset:{(n // 2) * 1024} {OPT["st"]}'))
        A(cl(f'buffer_store_dwordx2 v[224:225], v38, {srd(SO)}, 0 offen {OPT["st"]}'))
    else:
        for n in range(9):
            A(cl(f'buffer_store_dwordx4 v[{GACC(n, 0)}:{GACC(n, 0) + 3}], v{vo3[n // 4]}, {srd(SO)}, 0 offen offset:{(n % 4) * 1024} {OPT["st"]}'))
    A('s_waitcnt vmcnt(0) lgkmcnt(0)')
    A(cl(f'buffer_store_dword v{VFLAG}, v{VL4}, {srd(SFL)}, 0 offen offset:32 {OPT["st"]}'))
    A(pollx)
    A('s_barrier')
    A.extend(spin_check('x', pollx, ne1))
    if XB:
        A(f's_mov_b32 s{sT0}, 0xffff0000')
        for k in range(4): A(f'buffer_load_dwordx4 v[{228 + 4 * k}:{231 + 4 * k}], v{VOFFO}, {srd(SV)}, 0 offen offset:{k * 1024} sc1')
        A(f'buffer_load_dwordx2 v[244:245], v38, {srd(SV)}, 0 offen sc1')
    else:
        for n in range(9):
            A(f'buffer_load_dwordx4 v[{128 + 4 * n}:{131 + 4 * n}], v{vo3[n // 4]}, {srd(SV)}, 0 offen offset:{(n % 4) * 1024} sc1')
    for n in range(9):
        a = GACC(n, 1); b = 128 + 4 * n
        if XB:
            for r in range(2): A(f'v_lshlrev_b32 v{b + 2 * r}, 16, v{228 + 2 * n + r}\nv_and_b32 v{b + 2 * r + 1}, s{sT0}, v{228 + 2 * n + r}')
        for r in range(0, 4, 2): A(f'v_pk_add_f32 v[{a + r}:{a + r + 1}], v[{a + r}:{a + r + 1}], v[{b + r}:{b + r + 1}]')
        A(f'v_cvt_pk_bf16_f32 v{b}, v{a}, v{a + 1}\nv_cvt_pk_bf16_f32 v{b + 1}, v{a + 2}, v{a + 3}')
        A(f'ds_write_b64 v39, v[{b}:{b + 1}] offset:{n * 32}')
    for k in range(5): A(f'ds_read_b128 v[{168 + 4 * k}:{171 + 4 * k}], v{44 + k}')
    for k in range(5): A(f'buffer_store_dwordx4 v[{168 + 4 * k}:{171 + 4 * k}], v{32 + k}, {srd(SOUT)}, 0 offen {OPT["out_st"]}'.rstrip())
    if OPT['stamps']:
        A('s_waitcnt vmcnt(0)')
        stamp(A, 11)
        if OPT['gtl']:
            A('s_lshl_b32 s50, s2, 10\ns_add_u32 s50, s50, 0x80000\nv_lshlrev_b32 v42, 2, v0\nbuffer_store_dword v59, v42, s[56:59], s50 offen')
        if OPT['diag'] == '0': store_stamps(A, 7)
        elif OPT['diag'] == '3':
            A(f'''s_memrealtime s[62:63]
s_load_dwordx2 s[4:5], s[0:1], 88
s_load_dwordx2 s[8:9], s[0:1], 0
s_waitcnt lgkmcnt(0)
s_load_dword s10, s[8:9], 0
s_mov_b32 s6, 64
s_mov_b32 s7, 0x20000
v_lshlrev_b32 v4, 6, v0
s_and_b32 s51, s2, 7
s_lshl_b32 s51, s51, 2
v_mov_b32 v5, s62
buffer_atomic_umax v5, v4, s[4:7], s51 offen offset:32 sc1
s_and_b32 s50, s2, 0x18
s_cmp_lg_u32 s50, 0
s_cbranch_scc1 L_dgx
s_not_b32 s51, s60
v_mov_b32 v6, s51
v_mov_b32 v7, s60
buffer_atomic_umax v6, v4, s[4:7], 0 offen offset:4 sc1
buffer_atomic_umax v7, v4, s[4:7], 0 offen offset:8 sc1
L_dgx:
s_cmp_lg_u32 s2, 8
s_cbranch_scc1 L_end
s_sub_u32 s8, s62, s60
v_mov_b32 v8, s8
buffer_store_dword v8, v4, s[4:7], 0 offen offset:12 sc1
s_sub_u32 s8, s76, s64
v_mov_b32 v9, s8
buffer_store_dword v9, v4, s[4:7], 0 offen offset:16 sc1
s_sub_u32 s8, s78, s76
v_mov_b32 v10, s8
buffer_store_dword v10, v4, s[4:7], 0 offen offset:20 sc1
s_sub_u32 s8, s82, s78
v_mov_b32 v11, s8
buffer_store_dword v11, v4, s[4:7], 0 offen offset:24 sc1
s_sub_u32 s8, s86, s82
v_mov_b32 v12, s8
buffer_store_dword v12, v4, s[4:7], 0 offen offset:28 sc1
s_waitcnt lgkmcnt(0)
s_cmp_eq_u32 s10, 0x3e6e3f96
s_cbranch_scc1 L_end
s_cmp_eq_u32 s10, 0x3c3abe25
s_cbranch_scc1 L_end
v_mov_b32 v8, 0x40004000
buffer_store_dword v8, v4, s[28:31], 0 offen''')
        else:
            A(f'''s_memrealtime s[62:63]
s_load_dwordx2 s[4:5], s[0:1], 88
s_getreg_b32 s50, hwreg(HW_REG_XCC_ID)
s_waitcnt lgkmcnt(0)
s_mov_b32 s6, 64
s_mov_b32 s7, 0x20000
v_lshlrev_b32 v4, 6, v0
s_and_b32 s51, s2, 0xbe
s_cmp_lg_u32 s51, 8
s_cbranch_scc1 L_end
s_and_b32 s51, s2, 1
s_lshr_b32 s8, s2, 5
s_add_u32 s51, s51, s8
s_lshl_b32 s51, s51, 4
s_and_b32 s50, s50, 15
s_lshl_b32 s50, s50, 28
s_sub_u32 s8, s62, s60
s_add_u32 s8, s8, s50
s_cmp_eq_u32 s51, 0
s_cbranch_scc1 L_dg1
v_mov_b32 v8, s8
buffer_store_dword v8, v4, s[4:7], s51 offen sc1
L_dg1:
s_sub_u32 s8, s{76 if OPT['diag'] == '1' else 66}, s64
s_sub_u32 s9, s{78 if OPT['diag'] == '1' else 68}, s{76 if OPT['diag'] == '1' else 66}
s_lshr_b32 s8, s8, 4
s_lshr_b32 s9, s9, 4
s_lshl_b32 s8, s8, 16
s_add_u32 s8, s8, s9
v_mov_b32 v9, s8
buffer_store_dword v9, v4, s[4:7], s51 offen offset:4 sc1
s_sub_u32 s8, s{80 if OPT['diag'] == '1' else 70}, s{78 if OPT['diag'] == '1' else 68}
s_sub_u32 s9, s{82 if OPT['diag'] == '1' else 72}, s{80 if OPT['diag'] == '1' else 70}
s_lshr_b32 s8, s8, 4
s_lshr_b32 s9, s9, 4
s_lshl_b32 s8, s8, 16
s_add_u32 s8, s8, s9
v_mov_b32 v10, s8
buffer_store_dword v10, v4, s[4:7], s51 offen offset:8 sc1
s_sub_u32 s8, s{84 if OPT['diag'] == '1' else 74}, s{82 if OPT['diag'] == '1' else 72}
s_sub_u32 s9, s{86 if OPT['diag'] == '1' else 76}, s{84 if OPT['diag'] == '1' else 74}
s_lshr_b32 s8, s8, 4
s_lshr_b32 s9, s9, 4
s_lshl_b32 s8, s8, 16
s_add_u32 s8, s8, s9
v_mov_b32 v11, s8
buffer_store_dword v11, v4, s[4:7], s51 offen offset:12 sc1''')
    A('L_end:\ns_endpgm')
    A.resolve_waits()
    rep = []
    A.fix_hazards(rep)
    segs = {}
    for n, L in split_marks(A.L): segs.setdefault(n, []).append(L)
    M = {n: merge_segments(v) for n, v in segs.items()}
    if OPT['hole']:
        L = M['_start']; k = len(L) - 1
        while L[k].kind != 'mfma': k -= 1
        out = L[:k + 1]; since = 0; q = 0
        for x in L[k + 1:]:
            out.append(x); since += 2 if x.kind == 'trans' else 1
            if since >= 2 and x.kind in ('valu', 'trans'):
                out.append(Ins(mfma('a0', f'a{128 + 4 * (q % 16)}', f'a{128 + 4 * ((q // 3) % 16)}', 'a0'))); q += 1; since = 0
        M['_start'] = out
    ab = OPT['abl']
    if ab:
        for nm in list(M):
            L = M[nm]
            if nm[0] in 'rp' or nm == 's0':
                if 'a' in ab: L = [x for x in L if x.mn != 'v_add_f32']
                if 'c' in ab: L = [x for x in L if x.mn not in ('v_max3_f32', 'v_max_f32', 'v_cmp_lt_f32', 's_cbranch_vccnz')]
                if 'e' in ab: L = [x for x in L if x.mn != 'v_exp_f32']
                if 'p' in ab: L = [x for x in L if x.mn != 'v_cvt_pk_bf16_f32']
                if 'k' in ab: L = [x for x in L if x.mn != 'ds_read_b128']
                if 'v' in ab: L = [x for x in L if x.mn != 'ds_read_b64_tr_b16']
                if 's' in ab: L = [x for x in L if not (x.kind == 'mfma' and f'v[{ONES}:' in x.text)]
                if 'h' in ab: L = [x for i, x in enumerate(L) if not (x.mn == 'v_exp_f32' and int(x.text.split()[1][1:-1]) % 2)]
                if 'd' in ab and nm[0] != 'p': L = [x for x in L if x.kind != 'dma']
            if 'o' in ab: L = [x for x in L if x.tag != 'Ost']
            if nm == 'tail':
                if 'g' in ab: L = [x for x in L if not (x.tag and x.tag.startswith('rG') and int(x.tag[2:]) % 2)]
                if 'G' in ab: L = [x for x in L if not (x.tag and x.tag.startswith(('GW', 'GO')))]
            if nm == '_start':
                if 'j' in ab: L = [x for x in L if not (x.tag and x.tag.startswith('J'))]
                if 'W' in ab: L = [x for x in L if not (x.tag and (x.tag[0] in 'WX') and x.kind == 'dma' and int(x.tag[1:]) > 5)]
                cutq = [i for i, x in enumerate(L) if x.kind == 'mfma'][14 * 64]
                if '1' in ab: L = L[:cutq] + [x for x in L[cutq:] if x.tag != 'Jst']
                if '2' in ab: L = L[:cutq] + [x for x in L[cutq:] if x.kind != 'dma']
                if '3' in ab: L = L[:cutq] + [x for x in L[cutq:] if x.kind != 'dsw']
                if '4' in ab: L = L[:cutq] + [x for x in L[cutq:] if x.mn not in ('v_mul_f32',)]
                if '5' in ab: L = L[:cutq] + [x for x in L[cutq:] if not (x.tag and x.tag.startswith('rQ'))]
                if 'w' in ab: L = [x for x in L if not (x.tag and x.tag.startswith('rW') and int(x.tag[2:]) % 2)]
            import re as _re
            def rechain(L, n, pred):
                out = []; k = 0; cur = None
                for x in L:
                    if x.kind == 'mfma' and pred(x):
                        m = _re.match(r'(\S+) (\S+), (\S+), (\S+), (\S+)$', x.text)
                        if m[2] == m[5]:
                            if k % n == 0 or cur is None or cur[0] != m[2][0]: cur = m[2]
                            x = Ins(f'{m[1]} {cur}, {m[3]}, {m[4]}, {cur}'); k += 1
                    out.append(x)
                return out
            if 'Z' in ab and (nm[0] in 'rp'):
                out = []; k = 0
                for x in L:
                    if x.kind == 'mfma' and x.text.split()[1][0] == 'a':
                        m = _re.match(r'(\S+) a\[(\d+):\d+\], v\[(\d+):\d+\], v\[(\d+):\d+\], a', x.text)
                        tp, q, kk = k // 8, (k // 2) % 4, k % 2
                        pb = int(m[4]) & ~15
                        half = int(nm[-1]) & 1
                        d = f'a{((half * 4 + tp) * 4 + q) * 4}'
                        x = Ins(mfma(d, f'v{VF + (2 * tp + kk) * 4}', f'v{pb + ((q + 2 * kk) % 4) * 4}', d)); k += 1
                    out.append(x)
                L = out
            if 'P' in ab and (nm[0] in 'rp'): L = rechain(L, 2, lambda x: x.text.split()[1][0] == 'a')
            if 'X' in ab and nm == 'tail': L = rechain(L, 4, lambda x: True)
            if 'Q' in ab and nm == '_start':
                cut = [i for i, x in enumerate(L) if x.kind == 'mfma'][14 * 64]
                L = rechain(L[:cut], 2, lambda x: True) + L[cut:]
            M[nm] = L
    F = Prog()
    F.extend(M['_start'])
    if int(OPT['burst']):
        F(f's_mov_b32 s50, {int(OPT["burst"])}\nL_burst:')
        for q in range(16):
            F(f'v_mfma_f32_32x32x16_bf16 a[{(q % 8) * 16}:{(q % 8) * 16 + 15}], v[{64 + 4 * (q % 8)}:{67 + 4 * (q % 8)}], a[{128 + 4 * q}:{131 + 4 * q}], a[{(q % 8) * 16}:{(q % 8) * 16 + 15}]')
            F(f'ds_read_b128 v[{96 + 4 * (q % 8)}:{99 + 4 * (q % 8)}], v4 offset:{q * 1024}')
            F(f'v_exp_f32 v{224 + q}, v{128 + q}\nv_add_f32 v{240 + q}, v{144 + q}, v{128 + q}')
        F('s_sub_u32 s50, s50, 1\ns_cbranch_scc0 L_burst\ns_waitcnt lgkmcnt(0)\ns_nop 15')
    F('L_s0:')
    F.extend(M['s0'])
    F('s_branch L_r1\n.p2align 6\nL_r0:')
    F.extend(M['r0'])
    F('L_r1:')
    for k in range(1, 7): F.extend(M[f'r{k}'])
    F('s_cbranch_scc1 L_sp')
    F.extend(M['r7'])
    F(f's_cbranch_scc1 L_r0\ns_cmp_eq_u32 s{sKo}, 0x80000\ns_cbranch_scc1 L_fin\ns_cmp_eq_u32 s{sKo}, 0x70000\ns_cbranch_scc1 L_b47\ns_cmp_eq_u32 s{sKo}, 0x60000\ns_cbranch_scc1 L_b39')
    for b in (7, 39, 47):
        F(f'L_b{b}:'); F.extend(M[f'b{b}']); F('s_branch L_r0')
    F('L_sp:')
    F.extend(M['sp31'])
    if OPT['w1']: F('s_branch L_r1')
    else:
        F.extend(M['epi']); F('s_branch L_s0')
    for nm, p, mode in [(f'r{k}', k & 1, 0) for k in range(8)] + [(f'p{k}', k & 1, 0) for k in range(56, 63)] + [('sp31', 1, 1), ('fin31', 1, 1)]:
        F(f'L_st_{nm}:\ns_mov_b32 s{sMODE}, {mode}\ns_call_b64 s[{sRET}:{sRET + 1}], L_fb{p}')
        if nm != 'fin31': F.extend(sm_dense(3 - p, 0, 32))
        F(f's_branch L_bk_{nm}')
    F(f'L_st_s0:\ns_call_b64 s[{sRET}:{sRET + 1}], L_fbf')
    F.extend(sm_dense(3, 0, 32))
    F('s_branch L_bk_s0')
    F.extend(fallback(0).L); F.extend(fallback(1).L); F.extend(fallback(0, True).L)
    for x in SPINS: F(x)
    F('L_fin:')
    F.extend(M['b55'])
    for k in range(56, 63): F.extend(M[f'p{k}'])
    F.extend(M['fin31'])
    F.extend(M['tail'])
    return F, rep

def build(path):
    A, rep = gen()
    hdr = open('cdna_kernels/' + NAME + '.s.ref').read().split('; Override launch')[0]
    t = hdr + '; @launch grid=(256,1,1) block=(256,1,1) lds=163840\n'
    t += '.amdgcn_target "amdgcn-amd-amdhsa--gfx950"\n.text\n' + MACROS
    t += prolog(KNAME) + A.text() + 'L_code_end:\n'
    t += kd(KNAME, 512, 100, 256)
    open(path, 'w').write(t)
    return rep, len(t)

if __name__ == '__main__':
    path = sys.argv[1]
    for kv in sys.argv[2:]:
        k, v = kv.split('=')
        assert k in OPT, k
        OPT[k] = (v == '1') if isinstance(OPT.get(k), bool) else v
    rep, n = build(path)
    from collections import Counter
    print('bytes', n, 'pads', Counter((a, b.split()[0]) for a, b in rep).most_common(12))
```

```python
import sys, math, struct
from common import *
from asmlib import *

OPT = dict(nt_kv='nt', nt_x='', nt_w='nt', st='sc1', g_o='sc1', g_w='sc1', stamps=False, tl=False, gtl=False,
           epg='4', f2s='10', p2s='22', g2s='24', gs0='6', gs1='58', lo='4', lw='5', w1=False, qtl=False, pl='2', lag=True, ost='sc1', nb='3', jo='5', verbose=False, su='0', pf='2', bar1=False, kv0='48', bm='5', ba='2', bmax='4', out_st='sc1', hole=False, atom='1', diag='0', l2n='0', l2p='nt', l2t='6', burst='0', l2s='1', l2g='44', l2='', tight='0', l2e='0', cqk=True, cqb=True, abl='', xb=True, cw='3', wsp=True, j8='0', nh='10', cls='0', m0='-20.0', qo='c', pvo='t', zz='kqgp', xp=True)
WS_WO = 33554432
WS_X = 44 << 20
WS_FL = 56 << 20
WS_STAMP = 64 << 20
SCALE = math.log2(math.e) / math.sqrt(128.0)
def f2i(x): return struct.unpack('<I', struct.pack('<f', x))[0]
KNAME = NAME + '_kernel'

SK, SV, SX, SW_, SO, SWS, SWD, SFL = 4, 8, 12, 16, 20, 24, 28, 88
SGO, SGW, SFP, SOUT = 12, 16, 24, 28
sWS, sOUT, sDBG = 52, 54, 46
sW, sW2K, sW4K, sT0, sKo, sVo, sSC, sTHR, sXo, sRET, sMODE, sWe = 32, 33, 34, 35, 36, 37, 38, 40, 41, 42, 44, 45
sJ, sCnt, sHead, sOo, sLOW = 48, 94, 95, 96, 39
SG2W, SG2O, sGive, sRem, sW4 = 4, 92, 46, 47, 49
VPP, VPG, VPR = 41, 42, 43
VSK_ = [17, 27]
def srd(n): return f's[{n}:{n+3}]'
VPA, KADDR, VADDR, VOFFK, VOFFV, LREG, ETMP, CT, NEGM, VOFFO, VFLAG, VPOLL, VL4 = 3, 4, 8, 16, 18, 20, 28, 40, 44, 60, 61, 62, 63
KF, VF, SB, PB, EP = 64, 96, 128, 192, 224
NE = 8
ONES = 36
NG = 68
def S(p, kt, qt): return SB + p * 32 + (kt * 4 + qt) * 4
def P(p, qt): return PB + p * 16 + qt * 4
def Lr(p, qt): return EP + p * 16 + qt * 4
def O(T, qt): return (T * 4 + qt) * 4
def Q(h, qt, u): return 128 + h * 64 + (u * 4 + qt) * 4
VSV, VSK, WADDR, XADDR, VOFFW, VOFFX, VOFFJ, JADDR = 20, 24, 64, 80, 84, 88, 92, 3
CW0, CW1, CR = 61, 62, 63
def QACC(h, T, qt): return (f'v{128 + (T * 4 + qt) * 4}' if h == 1 else f'a{(T * 4 + qt) * 4}')
def XF(t, qt): return (28 if (t >> 1) & 1 else 96) + ((t & 1) * 4 + qt) * 4
NWS = 24
def WF(slot): return 128 + slot * 4
BLK = 16384
def wblock(t): return [(4, 1), (7, 3), (8, 9)][(t >> 1) % 3][t & 1]
def xblock(p): return [2, 5, 6][p % 3]
def cl(s): return ' '.join(s.split())
def rng(r, n): return f'{r[0]}[{int(r[1:])}:{int(r[1:]) + n - 1}]'

def dma_kv(which, tile):
    base = (0 if which == 'K' else 65536) + (tile % 8) * 8192
    s, vo, so = (SK, VOFFK, sKo) if which == 'K' else (SV, VOFFV, sVo)
    tag = f'{which}{tile}'; nt = OPT['nt_kv']
    return [([f's_add_u32 m0, s{sW2K}, {base}'], Ins(cl(f'buffer_load_dwordx4 v{vo}, {srd(s)}, s{so} offen {nt} lds'), tag), []),
            ([], Ins(cl(f'buffer_load_dwordx4 v{vo + 1}, {srd(s)}, s{so} offen offset:1024 {nt} lds'), tag), [f's_add_u32 s{so}, s{so}, 8192'])]
def dma4(s, vo, off, blk, tag, nt, so=sWe):
    return [([f's_mov_b32 s{so}, {off}', f's_add_u32 m0, s{sW4K}, {blk * BLK}'] if n == 0 else [],
             Ins(cl(f'buffer_load_dwordx4 v{vo + n}, {srd(s)}, s{so} offen offset:{n * 1024} {nt} lds'), tag), []) for n in range(4)]
def dma_w(t): return dma4(SW_, VOFFW, t * 32 * 8192, wblock(t), f'W{t}', OPT['nt_w'])
def dma_x(p): return dma4(SX, VOFFX, (p >> 1) * 128 + (p & 1) * 32 * 1152, xblock(p), f'X{p}', OPT['nt_x'], sXo)
def dma_kk(i): return dma4(SK, VSK, i * 16384, i, f'KK{i}', OPT['nt_kv'])
def dma_vv(i): return dma4(SV, VSV, i * 16384, 4 + i, f'VV{i}', OPT['nt_kv'])
def flat(dl):
    out = []
    for pre, ins, post in dl: out += pre + [ins] + post
    return out

def I(x): return x if isinstance(x, Ins) else Ins(x)
def cost(x):
    k = x.kind
    return {'trans': 8, 'valu': 4, 'dsr': 4, 'dsw': 4, 'dma': 12, 'vld': 12, 'vst': 12}.get(k, 0 if k in ('label', 'dir', 'waitvm', 'waitlg') else 4)
class Gaps:
    def __init__(self, n):
        self.n = n; self.sc = [[] for _ in range(n + 1)]; self.mem = [[] for _ in range(n)]; self.v = [[] for _ in range(n)]
    def place_dma(self, dl, gaps):
        assert len(gaps) >= len(dl), (len(gaps), len(dl))
        for (pre, ins, post), g in zip(dl, gaps):
            for k, s in enumerate(pre): self.sc[g - len(pre) + k].append(s)
            self.mem[g].append(ins)
            for k, s in enumerate(post): self.sc[g + 1 + k].append(s)
    def load(self, g): return sum(cost(I(x)) for x in self.mem[g] + self.v[g])
    def pack(self, items, g0, g1):
        items = [I(x) for x in items]
        base = [self.load(g) for g in range(self.n)]
        for L in range(8, 400, 2):
            g = g0; used = 0; vhere = False; pos = []; ok = True
            for x in items:
                c = cost(x); ismem = x.kind in ('dsr', 'dsw', 'dma', 'vld', 'vst')
                while True:
                    if g >= g1: ok = False; break
                    room = L - base[g] - used
                    if ismem and (vhere or (self.mem[g] and L < 20)): fit = False
                    else: fit = c <= room or (c == 0) or (used == 0 and base[g] == 0)
                    if fit: break
                    g += 1; used = 0; vhere = False
                if not ok: break
                pos.append(g); used += c
                if not ismem: vhere = True
                else: vhere = True if False else vhere
            if ok: break
        assert ok
        for x, g in zip(items, pos):
            (self.mem if x.kind in ('dsr', 'dsw', 'dma', 'vld', 'vst') else self.v)[g].append(x)
        return pos
    def weave(self, mf, a=0, b=None):
        out = []
        b = self.n if b is None else b
        for i in range(a, b):
            if i < len(mf) and mf[i] is not None: out.append(mf[i])
            out += self.sc[i] + self.mem[i] + self.v[i]
        if b == self.n: out += self.sc[self.n]
        return out

def k_reads(tile):
    return [Ins(f'ds_read_b128 v[{KF + (kt * 4 + u) * 4}:{KF + (kt * 4 + u) * 4 + 3}], v{KADDR + u} offset:{(tile % 8) * 8192 + kt * 4096}', f'rK{tile}')
            for kt in range(2) for u in range(4)]
def v_reads(tile):
    return [Ins(f'ds_read_b64_tr_b16 v[{VF + T * 4 + s * 2}:{VF + T * 4 + s * 2 + 1}], v{VADDR + T} offset:{(tile % 8) * 8192 + s * 4096}', f'rV{tile}')
            for T in range(8) for s in range(2)]
def zig(n, odd, key): return list(range(n))[::-1] if (odd and key in OPT['zz']) else list(range(n))
def qk_mfmas(j):
    h = 1 if j == 32 else 0
    p = j & 1; first = (j & 31) == 0
    out = []
    order = [(kt, qt) for kt in range(2) for qt in range(4)] if j == 0 else [(0, 0), (1, 0), (1, 1), (0, 1), (0, 2), (1, 2), (1, 3), (0, 3)]
    for ci, (kt, qt) in enumerate(order):
        if True:
            for i, u in enumerate(zig(4, ci & 1, 'k')):
                c = f'v{S(p, kt, qt)}' if i else (OPT['m0'] if first and INL() else f'v{NEGM + qt * 4}')
                out.append(mfma(f'v{S(p, kt, qt)}', f'v{KF + (kt * 4 + u) * 4}', f'a{Q(h, qt, u)}', c))
    return out
def pv_mfmas(j):
    p = j & 1; first = (j & 31) == 0
    return [mfma(f'a{O(T, qt)}', f'v{VF + T * 4}', f'v{P(p, qt)}', '0' if first else f'a{O(T, qt)}') for T in range(8) for qt in zig(4, (T & 1) and (j & 31) != 31, 'p')]

def sum_mfma(j, qt):
    p = j & 1; first = (j & 31) == 0
    return mfma(f'v{Lr(p, qt)}', f'v{ONES}', f'v{P(p, qt)}', '0' if first else f'v{Lr(1 - p, qt)}')
E0 = 24
def softmax_stream(j):
    p = j & 1
    out = []
    for k in range(32):
        qt, kk = k >> 3, k & 7
        out.append((E0 + 2 * k, f'v_exp_f32 v{ETMP + k % NE}, v{S(p, kk >> 2, qt) + (kk & 3)}'))
        if k & 1: out.append((E0 + 2 * k + 3, f'v_cvt_pk_bf16_f32 v{P(p, qt) + (kk >> 1)}, v{ETMP + (k - 1) % NE}, v{ETMP + k % NE}'))
    out.sort(key=lambda z: z[0])
    return out
SUMPOS = {0: 66, 1: 67, 2: NG + 24, 3: NG + 25}
def sm_dense(j, lo, hi):
    it = softmax_stream(j) + [(SUMPOS[qt] - 0.5, sum_mfma(j, qt)) for qt in range(4)]
    it.sort(key=lambda z: z[0])
    return [x for pos, x in it if lo <= pos < hi]
def pvi(n): return 34 + n
def step_mfmas(j):
    qk = qk_mfmas(j + 1) if j + 1 < 64 else [None] * 32
    pv = pv_mfmas(j)
    nxt = j + 1 < 64
    own = j < 63
    return (qk[:24] + ([sum_mfma(j, 2), sum_mfma(j, 3)] if own else [None, None]) + qk[24:] +
            pv + ([sum_mfma(j + 1, 0), sum_mfma(j + 1, 1)] if nxt else [None, None]))
def INL(): return OPT['m0'] in ('0', '-1.0', '-2.0', '-4.0')
def negm_init():
    if OPT['m0'] == '0': return [f'v_mov_b64 v[{NEGM + 2 * i}:{NEGM + 2 * i + 1}], 0' for i in range(8)]
    c = f'{f2i(float(OPT["m0"])):#x}'
    return [f'v_mov_b32 v{NEGM}, {c}', f'v_mov_b32 v{NEGM + 1}, {c}'] + [f'v_mov_b64 v[{NEGM + 2 * i}:{NEGM + 2 * i + 1}], v[{NEGM}:{NEGM + 1}]' for i in range(1, 8)]
def rowmax(p, qt, dst):
    s0 = S(p, 0, qt); s1 = S(p, 1, qt)
    return [f'v_max3_f32 v{dst}, v{s0}, v{s0 + 1}, v{s0 + 2}', f'v_max3_f32 v{dst}, v{dst}, v{s0 + 3}, v{s1}',
            f'v_max3_f32 v{dst}, v{dst}, v{s1 + 1}, v{s1 + 2}', f'v_max_f32 v{dst}, v{dst}, v{s1 + 3}']
def xlane(op, regs, tmps):
    out = []
    for sw in ('v_permlane16_swap_b32', 'v_permlane32_swap_b32'):
        out += [f'v_mov_b32 v{t}, v{r}' for r, t in zip(regs, tmps)]
        out += [f'{sw} v{t}, v{r}' for r, t in zip(regs, tmps)]
        out += [f'{op} v{r}, v{r}, v{t}' for r, t in zip(regs, tmps)]
    return out
def init_stream(j):
    p = j & 1
    m = [NEGM + qt * 4 for qt in range(4)]; t = [NEGM + qt * 4 + 1 for qt in range(4)]
    out = []
    rm = [rowmax(p, qt, m[qt]) for qt in range(4)]
    for k in range(4): out += [rm[qt][k] for qt in range(4)]
    out += xlane('v_max_f32', m, t)
    for qt in range(4):
        for k in range(8):
            s = S(p, k >> 2, qt) + (k & 3)
            out.append(f'v_sub_f32 v{s}, v{s}, v{m[qt]}')
    for qt in range(4):
        for r in (3, 2, 1, 0): out.append(f'v_sub_f32 v{NEGM + qt * 4 + r}, 0, v{m[qt]}')
    return out

def epilogue(packed, tb):
    rc = [LREG + 2 * i for i in range(4)]
    prep = [f'v_rcp_f32 v{rc[qt]}, v{Lr(1, qt)}' for qt in range(4)]
    units = []
    for k in range(16):
        u, qt = divmod(k, 4)
        b = tb + (k % 2) * 12
        rd = [f'v_accvgpr_read_b32 v{b + i}, a{O(2 * u + (i >> 2), qt) + (i & 3)}' for i in range(8)]
        if packed: mu = [f'v_pk_mul_f32 v[{b + 2 * i}:{b + 2 * i + 1}], v[{b + 2 * i}:{b + 2 * i + 1}], v[{rc[qt]}:{rc[qt] + 1}] op_sel_hi:[1,0]' for i in range(4)]
        else: mu = [f'v_mul_f32 v{b + i}, v{rc[qt]}, v{b + i}' for i in range(8)]
        cv = [f'v_cvt_pk_bf16_f32 v{b + 8 + i}, v{b + 2 * i}, v{b + 2 * i + 1}' for i in range(4)]
        st = [Ins(cl(f'buffer_store_dwordx4 v[{b + 8}:{b + 11}], v{VOFFO}, {srd(SO)}, s{sOo} offen offset:{qt * 1024} {OPT["ost"]}'), 'Ost')]
        if qt == 3: st.append(f's_add_u32 s{sOo}, s{sOo}, 4096')
        units.append((rd, mu, cv, st))
    return prep, units
def epi_flat(units):
    L = []; first = []; lastrd = []
    for k, (rd, mu, cv, st) in enumerate(units):
        first.append(len(L)); L += rd; lastrd.append(len(L) - 1)
        if k: L += units[k - 1][3]
        L += mu + cv
    L += units[-1][3]
    return L, first, lastrd

SPINS = []
def spin_check(name, load, cmp):
    SPINS.append(f"""L_spin_{name}:
s_mov_b32 s{sT0}, 0x40000
L_spin2_{name}:
s_sleep 1
{load}
s_sub_u32 s{sT0}, s{sT0}, 1
s_cbranch_scc1 L_back_{name}
s_waitcnt vmcnt(0)
{cmp}
s_nop 1
s_cbranch_vccnz L_spin2_{name}
s_branch L_back_{name}""")
    return [cmp, f's_cbranch_vccnz L_spin_{name}', f'L_back_{name}:']

def fallback(p, first=False):
    A = Prog()
    nm = 'f' if first else str(p)
    A(f'L_fb{nm}:')
    A('s_nop 7\ns_nop 7')
    TB = P(1 - p, 0)
    m = [TB + i for i in range(4)]; t = [ETMP + i for i in range(4)]; f = [TB + 4 + i for i in range(4)]
    rm = [rowmax(p, qt, m[qt]) for qt in range(4)]
    for k in range(4): A.extend([rm[qt][k] for qt in range(4)])
    A.extend(xlane('v_max_f32', m, t))
    if not first:
        for qt in range(4): A(f'v_max_f32 v{m[qt]}, 0, v{m[qt]}')
        for qt in range(4): A(f'v_exp_f32 v{f[qt]}, -v{m[qt]}')
    for qt in range(4):
        for k in range(8):
            s = S(p, k >> 2, qt) + (k & 3)
            A(f'v_sub_f32 v{s}, v{s}, v{m[qt]}')
        for r in range(4): A(f'v_sub_f32 v{NEGM + qt * 4 + r}, v{NEGM + qt * 4 + r}, v{m[qt]}')
        if not first: A(f'v_mul_f32 v{Lr(1 - p, qt)}, v{Lr(1 - p, qt)}, v{f[qt]}')
    if not first: A(f's_cmp_lg_u32 s{sMODE}, 0\ns_cbranch_scc1 L_fb{p}_b')
    for qt in range(4):
        for k in range(8):
            s = S(1 - p, k >> 2, qt) + (k & 3)
            A(f'v_sub_f32 v{s}, v{s}, v{m[qt]}')
    if not first:
        A(f'L_fb{p}_b:')
        for T in range(8):
            for qt in range(4):
                b = TB + 8 + ((T * 4 + qt) % 2) * 4
                for r in range(4): A(f'v_accvgpr_read_b32 v{b + r}, a{O(T, qt) + r}')
                for r in range(4): A(f'v_mul_f32 v{b + r}, v{b + r}, v{f[qt]}')
                for r in range(4): A(f'v_accvgpr_write_b32 a{O(T, qt) + r}, v{b + r}')
    A.extend(sm_dense(0 if first else 2 + p, 0, 999))
    A('s_nop 7')
    A(f's_setpc_b64 s[{sRET}:{sRET + 1}]')
    A.fix_hazards()
    return A

def stamp(A, idx, base=64):
    if OPT['stamps'] and not OPT['qtl']: A(f's_memtime s[{base + idx * 2}:{base + idx * 2 + 1}]')
def store_stamps(A, n):
    A('s_memrealtime s[62:63]\ns_waitcnt lgkmcnt(0)')
    A('v_lshrrev_b32 v1, 6, v0\ns_lshl_b32 s50, s2, 2\nv_add_u32 v1, s50, v1\nv_lshlrev_b32 v1, 7, v1')
    A('v_and_b32 v2, 63, v0\nv_cmp_eq_u32 vcc, 0, v2\ns_and_saveexec_b64 s[50:51], vcc')
    for i in range(n):
        for k in range(4): A(f'v_mov_b32 v{4 + k}, s{60 + i * 4 + k}')
        A(f'buffer_store_dwordx4 v[4:7], v1, s[56:59], 0 offen offset:{i * 16}')
        A('s_nop 1')

def code_prefetch(A, start, end, va, vd, n, first=0, tag=''):
    A(f's_getpc_b64 s[50:51]')
    A(f'L_pc{tag}_{start}:')
    if start == KNAME: A(f's_sub_u32 s50, s50, L_pc{tag}_{start}-{start}\ns_subb_u32 s51, s51, 0')
    else: A(f's_add_u32 s50, s50, {start}-L_pc{tag}_{start}\ns_addc_u32 s51, s51, 0')
    A(f'v_lshlrev_b32 v{va}, 7, v0')
    if first: A(f'v_add_u32 v{va}, {first * 0x8000}, v{va}')
    for i in range(n):
        A(f'v_min_u32 v{va + 1}, {end}-{start}-4, v{va}')
        A(f'global_load_dword v{vd + i}, v{va + 1}, s[50:51]', tag='pf')
        if i + 1 < n: A(f'v_add_u32 v{va}, 0x8000, v{va}')

DEF_V = []; DEF_S = []
def setup(A):
    A('s_cmp_ge_u32 s2, 256\ns_cbranch_scc1 L_end')
    A(f"""s_bfe_u32 s48, s2, 0x10002
s_mul_i32 s50, s48, 40
s_add_u32 s52, s0, s50
s_addc_u32 s53, s1, 0
s_load_dwordx2 s[{SX}:{SX+1}], s[52:53], 0
s_load_dwordx2 s[{SW_}:{SW_+1}], s[52:53], 24
s_lshr_b32 s51, s2, 7
s_mul_i32 s51, s51, 40
s_add_u32 s54, s0, s51
s_addc_u32 s55, s1, 0
s_load_dwordx2 s[{SK}:{SK+1}], s[52:53], 8
s_load_dwordx2 s[{SV}:{SV+1}], s[52:53], 16
s_load_dwordx2 s[{SWS}:{SWS+1}], s[54:55], 32
s_load_dwordx2 s[{SO}:{SO+1}], s[0:1], 96
s_load_dwordx4 s[92:95], s[0:1], 80""")
    if OPT['stamps']: A('s_memrealtime s[60:61]')
    stamp(A, 0)
    if OPT['pf'] == '1': code_prefetch(A, KNAME, 'L_code_end', 100, 252, 1)
    elif OPT['pf'] == '2':
        A(f'''s_getpc_b64 s[50:51]
L_pcx:
s_sub_u32 s50, s50, L_pcx-{KNAME}
s_subb_u32 s51, s51, 0
s_lshr_b32 s48, s2, 3
s_cmp_ge_u32 s48, 3
s_cbranch_scc1 L_nopf
s_lshl_b32 s48, s48, 15
v_lshlrev_b32 v100, 7, v0
v_add_u32 v100, s48, v100
v_min_u32 v100, L_code_end-{KNAME}-4, v100''')
        A('global_load_dword v252, v100, s[50:51]', tag='pf')
        A('L_nopf:')
    A(f"""s_and_b32 s46, s2, 6
s_lshl_b32 s46, s46, 1
s_lshr_b32 s48, s2, 6
s_add_u32 s46, s46, s48
s_and_b32 s47, s2, 1
s_lshl_b32 s47, s47, 3
s_bfe_u32 s48, s2, 0x30003
s_add_u32 s47, s47, s48
s_and_b32 s49, s46, 7
v_lshrrev_b32 v1, 6, v0
v_and_b32 v2, 63, v0
v_readfirstlane_b32 s{sW}, v1
v_lshrrev_b32 v97, 4, v2
v_lshrrev_b32 v100, 3, v2
v_lshl_add_u32 v100, v1, 6, v100
v_mul_u32_u24 v100, 1152, v100
s_lshl_b32 s{sW4K}, s{sW}, 12
v_and_b32 v101, 7, v2
v_xor_b32 v101, v101, v97
v_lshl_add_u32 v{VOFFX}, v101, 4, v100
v_xor_b32 v101, 4, v101
v_lshl_add_u32 v102, v101, 4, v100
v_add_u32 v{VOFFX + 1}, {8 * 1152 - 1024}, v102
v_add_u32 v{VOFFX + 2}, {2 * (8 * 1152 - 1024)}, v{VOFFX}
v_add_u32 v{VOFFX + 3}, {3 * (8 * 1152 - 1024)}, v102
v_lshrrev_b32 v100, 5, v2
v_and_b32 v101, 31, v2
v_lshl_add_u32 v103, v1, 3, v100
v_lshlrev_b32 v103, 13, v103
v_lshlrev_b32 v104, 2, v100
v_xor_b32 v104, v104, v101
v_lshl_add_u32 v{VOFFW}, v104, 4, v103
v_xor_b32 v104, 128, v{VOFFW}
v_add_u32 v{VOFFW + 1}, {16384 - 1024}, v104
v_add_u32 v{VOFFW + 2}, {2 * (16384 - 1024)}, v{VOFFW}
v_add_u32 v{VOFFW + 3}, {3 * (16384 - 1024)}, v104
s_mul_i32 s50, s49, 294912
s_lshl_b32 s51, s47, 9
s_mov_b32 s{SX+2}, 294912
s_mov_b32 s{SX+3}, 0x20000
s_sub_u32 s{SW_+2}, {576 * 8192}, s51
s_mov_b32 s{SW_+3}, 0x20000
s_waitcnt lgkmcnt(0)""")
    stamp(A, 1)
    A(f"""s_add_u32 s{SX}, s{SX}, s50
s_addc_u32 s{SX+1}, s{SX+1}, 0
s_add_u32 s{SW_}, s{SW_}, s51
s_addc_u32 s{SW_+1}, s{SW_+1}, 0""")
    A.extend(flat(dma_w(0)) + flat(dma_x(0)) + flat(dma_x(1)) + flat(dma_w(1)))
    A(f"""v_and_b32 v96, 15, v2
v_and_b32 v98, 3, v2
v_bfe_u32 v99, v2, 2, 2
v_lshl_add_u32 v100, v97, 3, v99
v_lshlrev_b32 v101, 6, v99
v_lshl_add_u32 v101, v100, 9, v101
v_lshl_add_u32 v101, v98, 4, v101
v_add_u32 v{WADDR}, {BLK}, v101""")
    for T in range(1, 4): A(f'v_xor_b32 v{WADDR + T}, {T * 64}, v{WADDR}')
    A(f"""v_lshrrev_b32 v100, 1, v96
v_xor_b32 v100, v100, v97
v_lshlrev_b32 v100, 4, v100
v_lshl_add_u32 v100, v96, 7, v100
v_lshl_add_u32 v100, v1, 12, v100
v_add_u32 v{XADDR}, {2 * BLK}, v100
v_xor_b32 v{XADDR + 1}, 64, v{XADDR}
v_add_u32 v{XADDR + 2}, {4 * BLK}, v{XADDR}
v_add_u32 v{XADDR + 3}, {4 * BLK}, v{XADDR + 1}""")
    if OPT['su'] == '2': A.extend(flat(dma_w(2)) + flat(dma_x(2)))
    if OPT['su'] == '0':
        A.extend(flat(dma_x(2)) + flat(dma_w(2)) + flat(dma_w(3)))
        if OPT['pf'] == '1': code_prefetch(A, KNAME, 'L_code_end', 100, 253, 2, first=1, tag='b')
    KVS = f"""s_lshl_b32 s50, s49, 23
s_lshl_b32 s51, s47, 19
s_add_u32 s50, s50, s51
s_add_u32 s{SK}, s{SK}, s50|s_addc_u32 s{SK+1}, s{SK+1}, 0
s_mov_b32 s{SK+2}, 0x80000
s_mov_b32 s{SK+3}, 0x20000
s_add_u32 s{SV}, s{SV}, s50|s_addc_u32 s{SV+1}, s{SV+1}, 0
s_mov_b32 s{SV+2}, 0x80000
s_mov_b32 s{SV+3}, 0x20000"""
    ne = int(OPT['l2e'])
    if ne:
        A(KVS.replace('|', '\n')); KVS = ''
        A(f'v_lshlrev_b32 v100, 7, v2\nv_mul_u32_u24 v101, {ne * 1024}, v1\nv_add_u32 v100, v100, v101\nv_cmp_le_u32 vcc, {ne * 8}, v2\nv_cndmask_b32 v100, v100, -1, vcc')
        A(f's_mov_b32 s50, {8 * 8192}\ns_mov_b32 s51, {6 * 8192}')
        A(cl(f'buffer_load_dword a254, v100, {srd(SK)}, s50 offen {OPT["l2p"]}'), tag='l2')
        A(cl(f'buffer_load_dword a253, v100, {srd(SV)}, s51 offen {OPT["l2p"]}'), tag='l2')
    V = DEF_V; a, b, c, d, l15, g = 92, 93, 94, 95, 61, 62
    V += [f'v_add_u32 v{WADDR + 4 + T}, {6 * BLK}, v{WADDR + T}' for T in range(4)]
    V += f"""v_lshlrev_b32 v{VOFFO}, 4, v2
v_and_b32 v{l15}, 15, v2
v_lshrrev_b32 v{g}, 4, v2
v_lshlrev_b32 v{a}, 11, v1
v_lshl_add_u32 v{a}, v{g}, 8, v{a}
v_lshl_add_u32 v{b}, v1, 3, v{g}""".split('\n')
    for o in range(2):
        V += f"""v_add_u32 v{c}, {4 * o}, v{b}
v_and_b32 v{d}, 15, v{c}
v_xor_b32 v{d}, v{d}, v{l15}
v_lshl_add_u32 v{VOFFK + o}, v{d}, 4, v{a}
v_and_b32 v{d}, 7, v{c}
v_lshlrev_b32 v{d}, 1, v{d}
v_xor_b32 v{d}, v{d}, v{l15}
v_lshl_add_u32 v{VOFFV + o}, v{d}, 4, v{a}""".split('\n')
    V += [f'v_lshlrev_b32 v{a}, 12, v1', f'v_lshl_add_u32 v{a}, v{g}, 8, v{a}']
    for n in range(4):
        V += f"""v_add_u32 v{c}, {4 * n}, v{g}
v_xor_b32 v{d}, v{c}, v{l15}
v_lshl_add_u32 v{VSK + n}, v{d}, 4, v{a}
v_and_b32 v{d}, 7, v{c}
v_lshlrev_b32 v{d}, 1, v{d}
v_xor_b32 v{d}, v{d}, v{l15}
v_lshl_add_u32 v{VSV + n}, v{d}, 4, v{a}""".split('\n')
    V += [f'v_xor_b32 v{a}, v{g}, v{l15}', f'v_lshlrev_b32 v{a}, 4, v{a}', f'v_lshl_add_u32 v{KADDR}, v{l15}, 8, v{a}']
    V += [f'v_xor_b32 v{KADDR + u}, {u * 64}, v{KADDR}' for u in range(1, 4)]
    V += f"""v_lshrrev_b32 v{a}, 2, v2
v_and_b32 v{b}, 7, v{a}
v_lshlrev_b32 v{b}, 5, v{b}
v_lshl_add_u32 v{b}, v{a}, 8, v{b}
v_and_b32 v{c}, 3, v2
v_lshl_add_u32 v{b}, v{c}, 3, v{b}
v_add_u32 v{VADDR}, 0x10000, v{b}
v_mul_u32_u24 v{a}, 384, v{a}
v_lshl_add_u32 v{a}, v{c}, 3, v{a}
v_mul_u32_u24 v{b}, 96, v1
v_add_u32 v{JADDR}, v{a}, v{b}""".split('\n')
    V += [f'v_xor_b32 v{VADDR + T}, {T * 32}, v{VADDR}' for T in range(1, 8)]
    for n in range(3):
        t = VOFFJ + n
        V += f"""v_add_u32 v{d}, {64 * n}, v2
v_mul_u32_u24 v{t}, 2731, v{d}
v_lshrrev_b32 v{t}, 16, v{t}
v_mul_u32_u24 v{CW1}, 24, v{t}
v_sub_u32 v{d}, v{d}, v{CW1}
v_lshl_add_u32 v{t}, v1, 3, v{t}
v_mul_u32_u24 v{t}, 1152, v{t}
v_lshl_add_u32 v{t}, v{d}, 4, v{t}
v_subrev_u32 v{t}, {n * 1024}, v{t}""".split('\n')
    V += [f'v_mov_b32 v{CR}, 0']
    if OPT['cls'] != '0':
        cb = {'1': 's_lshr_b32 s51, s2, 6\ns_xor_b32 s51, s51, s2', '2': 's_mov_b32 s51, s2'}[OPT['cls']]
        JN1 = f'{cb}\ns_bitcmp1_b32 s51, 0|s_cselect_b32 s{SWS+2}, 36864, 0'
        JN2 = f'{cb}\ns_bitcmp1_b32 s51, 0|s_cselect_b32 s{SWD+2}, {3 * 128 * 9216 + 9216}, 0'
    else:
        JN1 = f's_mov_b32 s{SWS+2}, 36864'; JN2 = f's_mov_b32 s{SWD+2}, {3 * 128 * 9216 + 9216}'
    S_ = f"""s_and_b32 s50, s2, 127
s_mul_i32 s50, s50, 36864
s_add_u32 s{SWS}, s{SWS}, s50|s_addc_u32 s{SWS+1}, s{SWS+1}, 0
{JN1}
s_mov_b32 s{SWS+3}, 0x20000
s_lshl_b32 s{sW2K}, s{sW}, 11
{KVS}
s_mov_b32 s{sWS}, s{SO}
s_mov_b32 s{sWS+1}, s{SO+1}
s_mov_b32 s{sOUT}, s92
s_mov_b32 s{sOUT+1}, s93
s_lshr_b32 s50, s2, 7
s_lshl_b32 s50, s50, 9
s_and_b32 s51, s2, 64
s_add_u32 s50, s50, s51
s_bfe_u32 s51, s2, 0x10002
s_lshl_b32 s51, s51, 5
s_add_u32 s50, s50, s51
s_bfe_u32 s51, s2, 0x30003
s_lshl_b32 s51, s51, 2
s_add_u32 s50, s50, s51
s_and_b32 s51, s2, 3
s_add_u32 s50, s50, s51
s_mul_i32 s50, s50, 9216
s_add_u32 s50, s50, {WS_WO}
s_add_u32 s{SWD}, s{SO}, s50|s_addc_u32 s{SWD+1}, s{SO+1}, 0
{JN2}
s_mov_b32 s{SWD+3}, 0x20000
s_lshl_b32 s50, s2, 7
s_lshl_b32 s51, s{sW}, 2
s_add_u32 s50, s50, s51
s_add_u32 s50, s50, {WS_FL}
s_add_u32 s{SFL}, s{SO}, s50|s_addc_u32 s{SFL+1}, s{SO+1}, 0
s_mov_b32 s{SFL+2}, 68
s_mov_b32 s{SFL+3}, 0x20000""".split('\n')
    if OPT['stamps']:
        S_ += [f's_add_u32 s56, s{SO}, {WS_STAMP}|s_addc_u32 s57, s{SO+1}, 0', 's_mov_b32 s58, 0x100000', 's_mov_b32 s59, 0x20000']
    S_ += f"""s_lshl_b32 s50, s46, 2
s_add_u32 s50, s50, s{sW}
s_lshl_b32 s50, s50, 19
s_lshl_b32 s51, s47, 15
s_add_u32 s50, s50, s51
s_add_u32 s{SO}, s{SO}, s50|s_addc_u32 s{SO+1}, s{SO+1}, 0
s_mov_b32 s{SO+2}, 32768
s_mov_b32 s{SO+3}, 0x20000
s_mov_b32 s{sSC}, {f2i(SCALE):#x}
s_mov_b32 s{sTHR}, {f2i(2.0 ** 24):#x}
s_mov_b32 s{sLOW}, {f2i(2.0 ** (float(OPT['m0']) - 12)):#x}
s_mov_b32 s{sOo}, 0
s_mov_b32 s{sDBG}, s94
s_mov_b32 s{sDBG+1}, s95
s_mov_b32 s{sKo}, {8 * 8192}
s_mov_b32 s{sVo}, {6 * 8192}
s_mov_b32 s{sCnt}, 3
s_mov_b32 s{sHead}, 0""".split('\n')
    DEF_S.extend(x for x in S_ if x)
    if OPT['jo'] in '67' or (OPT['jo'] == '8' and OPT['j8'] == '0'):
        A.extend(DEF_V); DEF_V.clear()
        for x in DEF_S: A.extend(x.split('|'))
        DEF_S.clear()

def x_reads(pc):
    c = pc >> 1; blk = xblock(pc)
    return [Ins(f'ds_read_b128 v[{XF(2 * c + ks, 2 * (pc & 1) + qq)}:{XF(2 * c + ks, 2 * (pc & 1) + qq) + 3}], v{XADDR + ks + (2 if blk == 6 else 0)} offset:{(0 if blk == 6 else (blk - 2) * BLK) + qq * 2048}', f'rX{pc}')
            for ks in range(2) for qq in range(2)]
def w_read(t, h, T, dst):
    blk = wblock(t)
    ad = WADDR + (T >> 1) if blk <= 4 else WADDR + 4 + (T >> 1)
    off = (blk - 1 if blk <= 4 else blk - 7) * BLK + h * 256 + (T & 1) * 8
    d = int(dst[1:])
    return [Ins(f'ds_read_b64_tr_b16 {dst[0]}[{d + 2 * s}:{d + 2 * s + 1}], v{ad} offset:{off + s * 2048}', f'rW{t}') for s in range(2)]
def w_reads(t):
    out = []
    for f in range(16): out += w_read(t, f >> 3, f & 7, f'a{WF((16 * t + f) % NWS)}')
    return out
UH = ['a160', 'a192', 'a160', 'a192', 'a0', 'a32', 'a0', 'a32']
def uw(n, k, tt): return f'{UH[n][0]}{int(UH[n][1:]) + (k * 2 + tt) * 4}'
def unit_order(n):
    if not OPT['cqb']: return [(k, tt) for k in range(4) for tt in range(2)]
    if n == 0: return [(0, 0), (1, 0), (0, 1), (1, 1), (2, 0), (3, 0), (2, 1), (3, 1)]
    return [(k, tt) for tt in range(2) for k in range(4)]
def unit_mf(n):
    if not OPT['cqb']: return [(k, tt, qt) for k in range(4) for tt in range(2) for qt in range(4)]
    if n == 0: return [(2 * hf + k, tt, qt) for hf in range(2) for tt in range(2) for qt in range(4) for k in zig(2, qt & 1, 'q')]
    return [(k, tt, qt) for tt in range(2) for qt in range(4) for k in zig(4, qt & 1, 'q')]
def unit_reads(n):
    h, u = n >> 2, n & 3
    out = []
    for k, tt in unit_order(n): out += w_read(14 + k, h, 2 * u + tt, uw(n, k, tt))
    return out
def conv(n):
    h, u = n >> 2, n & 3
    V = []; pend = []
    for tt in range(2):
        for qt in range(4):
            acc = QACC(h, 2 * u + tt, qt)
            if h == 1: b = int(acc[1:]); rd = []
            else:
                b = 84 + ((n * 8 + tt * 4 + qt) % 3) * 4
                rd = [f'v_accvgpr_read_b32 v{b + r}, a{int(acc[1:]) + r}' for r in range(4)]
            mu = [f'v_mul_f32 v{b + r}, s{sSC}, v{b + r}' for r in range(4)]
            cv = [f'v_cvt_pk_bf16_f32 v{b}, v{b}, v{b + 1}', f'v_cvt_pk_bf16_f32 v{b + 1}, v{b + 2}, v{b + 3}']
            V += [Ins(x) for x in rd + mu + pend + cv]
            pend = [f'v_accvgpr_write_b32 a{Q(h, qt, u) + 2 * tt + r}, v{b + r}' for r in range(2)]
    V += [Ins(x) for x in pend]
    return V, [], V

def q_phase(A):
    stamp(A, 2)
    A('WAITVM X0+X1+W0+W1\ns_barrier')
    stamp(A, 3)
    def WP(c, f, ks): return 128 + ((16 * c + f) % 12) * 8 + ks * 4
    def pair_reads(c, f): return w_read(2 * c, f >> 3, f & 7, f'a{WP(c, f, 0)}') + w_read(2 * c + 1, f >> 3, f & 7, f'a{WP(c, f, 1)}')
    def JR(i): return f'a{224 + 4 * i}' if i < 8 else 'v92'
    def jstore(i):
        r, n = divmod(i, 3)
        pre = [f's_add_u32 s{sT0}, s{sW}, {4 * r}', f's_mul_i32 s{sMODE}, s{sT0}, 43', f's_lshr_b32 s{sMODE}, s{sMODE}, 7',
               f's_mul_i32 s{sMODE}, s{sMODE}, {128 * 9216 - 9216}', f's_mul_i32 s{sT0}, s{sT0}, 3072', f's_add_u32 s{sJ}, s{sT0}, s{sMODE}'] if n == 0 else []
        return [(pre, Ins(cl(f'buffer_store_dwordx4 {rng(JR(i), 4)}, v{VOFFO}, {srd(SWD)}, s{sJ} offen offset:{n * 1024} {OPT["st"]}'), 'Jst'), [])]
    def jdma(r):
        return [([f's_mov_b32 s{sWe}, {r * 384}', f's_mul_i32 m0, s{sW}, 3072'] if n == 0 else [],
                 Ins(f'buffer_load_dwordx4 v{VOFFJ + n}, {srd(SWS)}, s{sWe} offen offset:{n * 1024} nt lds', f'J{r}'), []) for n in range(3)]
    xr = x_reads(0) + x_reads(1)
    A.extend(xr[:1] + xr[2:3] + pair_reads(0, 0) + xr[1:2] + xr[3:] + pair_reads(0, 1) + pair_reads(0, 2))
    BG = 24
    N = 14 * 64
    G = Gaps(N)
    mf = []; ref = []
    PR = {(c, f): pair_reads(c, f) for c in range(7) for f in range(16)}
    XRD = {pc: x_reads(pc) for pc in range(2, 16)}
    for c in range(7):
        if c: ref += XRD[2 * c] + XRD[2 * c + 1]
        for f in range(16):
            if c or f > 2: ref += PR[c, f]
            for qi, qt in enumerate(zig(4, f & 1, 'q')):
                acc = QACC(f >> 3, f & 7, qt)
                for i, ks in enumerate(zig(2, qi & 1, 'q')):
                    m = Ins(mfma(acc, f'a{WP(c, f, ks)}', f'v{XF(2 * c + ks, qt)}', acc if (c or i) else '0')); mf.append(m); ref.append(m)
    U0 = unit_reads(0)[:8]
    ref += XRD[14] + XRD[15] + U0
    for t in range(14):
        o = 64 * t
        groups = []
        if t == 0: groups = [(dma_x(3), [5, 8, 11, 14]), (dma_x(4), [18, 22, 26, 30]), (dma_w(4), [34, 38, 42, 46]), (dma_x(5), [51, 54, 57, 60])]
        elif t == 1: groups = [(dma_w(5), [2, 7, 12, 17]), (dma_x(6), [28, 33, 38, 43]), (dma_w(6), [48, 52, 56, 60])]
        elif t == 2: groups = [(jdma(0), [2, 7, 12]), (dma_w(7), [18, 24, 30, 36]), (dma_x(7), [42, 48, 54, 60])]
        elif t in (5, 9): groups = [(dma_x(t + 5), [10, 14, 18, 22]), (jdma(t // 4), [28, 33, 38]), (dma_w(t + 5), [44, 50, 55, 60])]
        elif t == 13: groups = [(dma_kk(0), [28, 33, 38, 43]), (dma_vv(0), [48, 52, 56, 60])]
        elif t & 1: groups = [(dma_x(t + 5), [10, 16, 22, 29]), (dma_w(t + 5), [36, 44, 52, 60])]
        else: groups = [(dma_w(t + 5), [2, 10, 18, 26]), (dma_x(t + 5), [34, 42, 50, 58])]
        for gr, pos in groups:
            G.place_dma(gr, [o + x for x in pos])
            if gr[0][1].tag == f'X{t + 5}': G.sc[o + pos[0] - 3].append(f'WAITLG rX{t + 2}')
        for i, g in {4: [(0, 31)], 5: [(1, 5)], 6: [(2, 30)], 8: [(3, 31)], 9: [(4, 5)], 10: [(5, 30)], 12: [(6, 15), (7, 38), (8, 62)]}.get(t, []):
            G.place_dma(jstore(i), [o + g])
        if t == 12:
            G.v[o + 44].append(f'v_mov_b32 v{VPA}, 0')
            G.mem[o + 46].append(Ins(cl(f'buffer_store_dword v{VPA}, v{VOFFO}, {srd(SFL)}, 0 offen {OPT["st"]}'), 'Fz'))
        G.sc[o].append(f'WAITVM X{t + 2}')
        if t == 0: G.sc[2].append('WAITLG rX1')
        if t & 1:
            tags = f'W{t + 1}+W{t + 2}' + {3: '+J0', 7: '+J1', 11: '+J2'}.get(t, '')
            G.sc[o + BG] += [f'WAITVM {tags} lg0', 's_barrier']
        if t == 13: G.sc[o + 62] += ['WAITVM W16+W17+X16+X17 lg0', 's_barrier']
    def put(ins, g, lim=None):
        while G.mem[g] or ((g >> 6) & 1 and BG - 6 <= (g & 63) < BG): g += 1
        assert lim is None or g <= lim, (ins.text, g, lim)
        G.mem[g].append(ins); return g
    for t in range(14):
        g = 64 * t
        for r in XRD[t + 2]: g = put(r, g)
    g = 0
    for c in range(7):
        for f in range(16):
            if c == 0 and f < 3: continue
            P_ = 16 * c + f
            for i, r in enumerate(PR[c, f]):
                g = put(r, max(g, 8 * (P_ - 11), 128 * c - 64 + BG + (f * 4 + i) * 3 // 2 if c else 0), lim=min(8 * P_ - 5, 128 * c + 64 + BG - 7))
    for t in (3, 7, 11):
        g = 64 * t + BG + 1
        for n in range(3):
            d = JR((t // 4) * 3 + n)
            for sx in range(2): g = put(Ins(f'ds_read_b64_tr_b16 {d[0]}[{int(d[1:]) + 2 * sx}:{int(d[1:]) + 2 * sx + 1}], v{JADDR} offset:{n * 32 + sx * 16 * 384}'), g, lim=64 * (t + 1) + 8)
    g = 64 * 13 + BG
    for r in U0: g = put(r, g, lim=64 * 13 + 55)
    for i, x in enumerate(DEF_V[:56]): G.v[(i * 62) // 56].append(x)
    for i, x in enumerate(DEF_V[56:]): G.v[64 + (i * 62) // (len(DEF_V) - 56)].append(x)
    g = 30
    while DEF_S:
        if not G.sc[g] and g % 8 not in (6, 7): G.sc[g] += DEF_S.pop(0).split('|')
        g += 1
    assert g < 64 * 4, g
    if OPT['qtl']:
        for t in range(14): G.v[64 * t + 3].append('s_memtime s[98:99]'); G.v[64 * t + 40].append(f's_mov_b32 s{64 + t}, s98')
    out = [I(x) for x in G.weave(mf)]
    check_order(ref, out, 'Q')
    A.extend(out)
    stamp(A, 4)
    gsu = f"""s_and_b32 s50, s2, 6
s_lshl_b32 s50, s50, 3
s_lshr_b32 s51, s2, 5
s_lshl_b32 s51, s51, 1
s_add_u32 s50, s50, s51
s_lshr_b32 s51, s{sW}, 1
s_add_u32 s50, s50, s51
s_lshl_b32 s50, s50, 19
s_and_b32 s51, s2, 1
s_lshl_b32 s51, s51, 18
s_add_u32 s50, s50, s51
s_and_b32 s51, s{sW}, 1
s_lshl_b32 s51, s51, 11
s_add_u32 s50, s50, s51
s_add_u32 s{SGO}, s{sWS}, s50|s_addc_u32 s{SGO+1}, s{sWS+1}, 0
s_mov_b32 s{SGO+2}, {262144 - 2048}
s_and_b32 s50, s2, 4
s_bfe_u32 s51, s2, 0x20003
s_add_u32 s50, s50, s51
s_lshl_b32 s50, s50, 1
s_and_b32 s51, s2, 1
s_add_u32 s50, s50, s51
s_mul_i32 s50, s50, {64 * 9216}
s_add_u32 s50, s50, {WS_WO}
s_add_u32 s{SGW}, s{sWS}, s50|s_addc_u32 s{SGW+1}, s{sWS+1}, 0
s_mov_b32 s{SGW+2}, {64 * 9216}""".split('\n')
    NG = 288
    G = Gaps(NG + 8)
    mf = []; ref = []
    UR = [unit_reads(n) for n in range(8)]
    XR = x_reads(16) + x_reads(17)
    K0 = k_reads(0); K1 = k_reads(1)
    CV_ = [conv(n) for n in range(8)]
    ref += XR
    for n in range(8):
        h, u = n >> 2, n & 3
        m = [Ins(mfma(QACC(h, 2 * u + tt, qt), uw(n, k, tt), f'v{XF(14 + k, qt)}', QACC(h, 2 * u + tt, qt))) for k, tt, qt in unit_mf(n)]
        mf += m
        ref += (UR[n][8:] if n == 0 else UR[n]) + m + CV_[n][2]
    m = [Ins(x) for x in qk_mfmas(0)]
    mf += m; ref += K0 + m + K1
    if OPT['jo'] == '8':
        for i, jobs in enumerate([dma_vv(1), dma_kk(2), dma_vv(2)]):
            G.place_dma(jobs, [34 + 16 * (4 * i + x) for x in range(4)])
        kv = {1: 34}
    elif OPT['jo'] in '567':
        for i, jobs in enumerate([dma_kk(1), dma_vv(1), dma_kk(2), dma_vv(2)]):
            G.place_dma(jobs, [20 + 13 * (4 * i + x) for x in range(4)])
        kv = {1: 20 + 13 * 4}
    elif OPT['jo'] == '4':
        k0 = int(OPT['kv0'])
        for i, jobs in enumerate([dma_kk(0), dma_vv(0), dma_kk(1), dma_vv(1), dma_kk(2)]):
            st_ = (215 - k0) // 20
            G.place_dma(jobs, [k0 + st_ * (4 * i + x) for x in range(4)])
        kv = {1: k0 + st_ * 12}
    else:
        JS = [jstore(i) for i in range(9)]
        ref = [x[0][1] for x in JS] + ref
        order = [6, 8, 7, 0, 1, 2, 3, 4, 5]
        jp = [17, 24, 48, 76, 100, 124, 152, 176, 200]; fz = 220; kv = {0: 34, 1: 82, 2: 130, 3: 182}
        for i, g in zip(order, jp): G.place_dma(JS[i], [g])
        G.v[fz - 2].append(f'v_mov_b32 v{VPA}, 0')
        G.mem[fz].append(Ins(cl(f'buffer_store_dword v{VPA}, v{VOFFO}, {srd(SFL)}, 0 offen {OPT["st"]}'), 'Fz'))
        for i, jobs in enumerate([dma_kk(0), dma_vv(1), dma_kk(2), dma_vv(2)]):
            G.place_dma(jobs, [kv[i] + 11 * x for x in range(4)])
    G.place_dma(dma_kk(3), [250, 258, 266, 274])
    G.sc[kv[1] - 3].append('WAITLG rX16+rX17')
    gi = 260
    for x in gsu:
        while G.sc[gi]: gi += 1
        G.sc[gi] += x.split('|')
    BAR = 32 * 7 + 9
    G.sc[BAR] += ['WAITVM KK0 lg0', 's_barrier']
    def put(ins, g, lim=None):
        while G.mem[g] or (BAR - 5 <= g < BAR): g += 1
        assert lim is None or g <= lim, (ins.text, g, lim)
        G.mem[g].append(ins); return g
    cur = 0
    for n in range(8):
        V, D, _ = CV_[n]
        g0 = 32 * (n + 1) + 1; span = 30
        vp = [g0 + (i * span) // len(V) for i in range(len(V))]
        for x, g in zip(V, vp): G.v[g].append(x)
        for i, d in D: cur = put(d, max(cur, vp[i] + 1))
    g = 0
    for r in ((XR[:4] + UR[0][8:12] + XR[4:] + UR[0][12:]) if OPT['cqb'] else (XR[:2] + XR[4:6] + UR[0][8:12] + XR[2:4] + XR[6:] + UR[0][12:])): g = put(r, g)
    for n in range(1, 8):
        for i, r in enumerate(UR[n]):
            g = put(r, max(g, 32 * (n - 1) + (i * 3) // 2), lim=min((32 * n + 16 * (i // 8) - 5 + (i % 8) // 2) if OPT['cqb'] else 32 * n + 2 * i - 5, BAR - 6))
    g = BAR
    for i, r in enumerate(K0): g = put(r, max(g, BAR + 2 * i), lim=(256 + 16 * (i // 4) - 5 + i % 4) if OPT['cqk'] else 256 + 4 * i - 6)
    for i, r in enumerate(K1): g = put(r, max(g, (256 + 16 * (i // 4) + 16 + i % 4) if OPT['cqk'] else 256 + 4 * i + 4))
    zero = [Ins(x) for x in negm_init()]
    ones = [Ins(x) for x in f'v_and_b32 v{ONES}, 3, v2|v_cmp_eq_u32 vcc, 0, v{ONES}|v_mov_b32 v{ONES + 1}, 0x3f803f80|v_cndmask_b32 v{ONES}, 0, v{ONES + 1}, vcc|v_mov_b32 v{ONES + 1}, v{ONES}|v_mov_b64 v[{ONES + 2}:{ONES + 3}], v[{ONES}:{ONES + 1}]'.split('|')]
    sm0 = [Ins(x) for x in sm_dense(0, 0, 68)]
    if not INL():
        k = ref.index(m[0]); ref[k:k] = zero
        G.v[255] += zero; zero = []
    ref += ones + zero + sm0
    NH = int(OPT['nh'])
    for i, x in enumerate(sm0[:NH]): G.v[264 + (i * 23) // NH if i < 5 else 280 + ((i - 5) * 8) // max(NH - 5, 1)].append(x)
    G.v[290] += ones + zero[:4] + sm0[NH:] + zero[4:]
    if OPT['stamps'] and not OPT['qtl']: G.sc[257].append('s_memtime s[74:75]')
    if OPT['qtl']:
        for n in range(9): G.v[32 * n + 3].append('s_memtime s[98:99]'); G.v[32 * n + 25].append(f's_mov_b32 s{78 + n}, s98')
    out = [I(x) for x in G.weave(mf)]
    check_order(ref, out, 'QB')
    A.extend(out)

def seg_name(j):
    if j == 0 or (j == 32 and not OPT['w1']): return 's0'
    if j == 32: return 's32'
    if j == 31: return 'sp31'
    if j == 63: return 'fin31'
    if j >= 56: return f'p{j}'
    return f'r{j % 8}'

def gen():
    A = Prog()
    setup(A)
    q_phase(A)
    stamp(A, 6)
    if OPT['tl']: A('s_mov_b32 s97, 0')
    def tagsof(which, t):
        if which == 'V' and t < 6: return f'VV{t // 2}'
        if which == 'K' and t < 8: return f'KK{t // 2}'
        return f'{which}{t}'
    GA = [4, 5, 6]
    def WB(c, n, u): return 128 + ((9 * c + n) % 4) * 16 + u * 4
    def GACC(n, mm): i = n * 2 + mm; return 64 + i * 4 if i < 16 else 200 + (i - 16) * 4
    def OB(s, mm): return 128 + ((s + 8) % 16) * 8 + mm * 4
    def g_wreads(c, n):
        out = []
        for u in range(4):
            ad = (c % 4) * 36864 + u * 9216 + n * 1024
            out.append(Ins(f'ds_read_b128 v[{WB(c, n, u)}:{WB(c, n, u) + 3}], v{GA[ad >> 16]} offset:{ad & 0xffff}', f'rG{c}'))
        return out
    def g_oloads(s):
        gen_, i, u = s >> 5, (s >> 2) & 7, s & 3
        off, sr = ((2 * i + gen_) * 16384 + u * 4096, SGO) if s < 64 else (i * 32768 + u * 4096, SG2O)
        return [([f's_mov_b32 s{sWe}, {off}'] if mm == 0 else [],
                 Ins(cl(f'buffer_load_dwordx4 a[{OB(s, mm)}:{OB(s, mm) + 3}], v{VSK_[mm]}, {srd(sr)}, s{sWe} offen {OPT["g_o"]}'), f'GO{s}'), []) for mm in range(2)]
    def g_w8(a, tag):
        return [([f's_mov_b32 s{sKo}, {a}', f's_add_u32 m0, s{sW2K}, {a}'] if o == 0 else [],
                 Ins(cl(f'buffer_load_dwordx4 v{VOFFK}, {srd(SGW)}, s{sKo} offen offset:{o * 1024} {OPT["g_w"]} lds'), tag), []) for o in range(2)]
    def g_wchunk(c):
        out = []
        for n in range(9):
            pre = [f's_add_u32 s{sKo}, s{sXo}, {(c % 16) * 36864 + (n // 4) * 4096}', f's_add_u32 m0, s{sXo}, {(c % 4) * 36864 + (n // 4) * 4096}'] if n % 4 == 0 else []
            out.append((pre, Ins(cl(f'buffer_load_dwordx4 v{VOFFO}, {srd(SGW if c < 16 else SG2W)}, s{sKo} offen offset:{(n % 4) * 1024} {OPT["g_w"]} lds'), f'GW{c}'), []))
        return out
    poll1 = f'buffer_load_dword v{VPOLL}, v{VPA}, {srd(SFP)}, 0 offen sc1'
    poll2 = f'buffer_load_dword v{VPOLL}, v{VPA}, {srd(SFP)}, 0 offen offset:16 sc1'
    pollc = f'buffer_load_dword v{VPOLL}, v{VPA}, {srd(SWS)}, 0 offen sc1'
    polld = f'buffer_load_dword v{VPOLL}, v{VPP}, {srd(SFP)}, 0 offen offset:64 sc1'
    ne1 = f'v_cmp_ne_u32 vcc, 1, v{VPOLL}'
    qcopy = [f'v_accvgpr_mov_b32 a{128 + i}, a{192 + i}' for i in range(64)]

    POST = []
    def fill(G, j):
        jj = j & 31; nm = seg_name(j); p = j & 1
        if j % 2 == 0:
            tags = [tagsof('V', j), tagsof('V', j + 1), tagsof('K', j + 2), tagsof('K', j + 3)] + (['Jst', 'Fz'] if j == 6 else [])
            G.sc[0] += [f'WAITVM {"+".join(tags)} lg0', 's_barrier']
        if j < 63:
            for pos, x in softmax_stream(j):
                if pos >= NG: G.v[pos - NG].append(x)
            for pos, x in softmax_stream(j + 1):
                if pos < NG: G.v[pos].append(x)
        if jj == 0:
            G.v[20].append(f'v_max_f32 v{CT}, v{Lr(p, 0)}, v{Lr(p, 1)}')
            G.v[22].append(f'v_min_f32 v{VPG}, v{Lr(p, 0)}, v{Lr(p, 1)}')
            G.v[29] += [f'v_max3_f32 v{CT}, v{CT}, v{Lr(p, 2)}, v{Lr(p, 3)}', f'v_min3_f32 v{VPG}, v{VPG}, v{Lr(p, 2)}, v{Lr(p, 3)}']
            G.v[30] += [f'v_cmp_gt_f32 s[50:51], s{sLOW}, v{VPG}']
            G.v[31] += [f'v_cmp_lt_f32 vcc, s{sTHR}, v{CT}']
            G.sc[32] += ['s_or_b64 s[50:51], s[50:51], vcc', f's_cbranch_scc1 L_st_{nm}', f'L_bk_{nm}:']
        else:
            G.v[20].append(f'v_max_f32 v{CT}, v{Lr(p, 0)}, v{Lr(p, 1)}')
            G.v[29].append(f'v_max3_f32 v{CT}, v{CT}, v{Lr(p, 2)}, v{Lr(p, 3)}')
            G.v[31].append(f'v_cmp_lt_f32 vcc, s{sTHR}, v{CT}')
            G.sc[32] += [f's_cbranch_vccnz L_st_{nm}', f'L_bk_{nm}:']
        if j < 63:
            for r, g in zip(v_reads(j), [1, 3, 5, 7, 9, 13, 15, 17, 19, 21, 22, 23, 25, 33, 35, 37]): G.mem[g].append(r)
            if j + 2 < 64:
                for r, g in zip(k_reads(j + 2), [39, 41, 45, 47, 49, 51, 53, 55]): G.mem[g].append(r)
            if j < 56: G.place_dma(dma_kv('K', j + 8) + dma_kv('V', j + 6), [11, 27, 43, 59])
            else:
                W8 = lambda i: g_w8(i * 8192, f'P{i}')
                jobs = {56: dma_kv('V', 62) + W8(0) + W8(16) + g_oloads(0), 57: dma_kv('V', 63) + W8(1) + W8(17) + g_oloads(1),
                        58: W8(2) + g_oloads(2) + W8(8) + g_oloads(3), 59: W8(3) + g_oloads(4) + W8(9) + g_oloads(5),
                        60: W8(4) + g_oloads(6) + W8(10) + g_oloads(7), 61: W8(5) + W8(11),
                        62: W8(6) + W8(7) + W8(12) + W8(13) + g_oloads(8) + g_oloads(9)}[j]
                pos = {8: [4, 11, 20, 27, 43, 57, 63, 67], 4: [11, 27, 43, 59], 12: [4, 11, 20, 27, 39, 43, 47, 51, 55, 59, 63, 67]}[len(jobs)]
                G.place_dma(jobs, pos)
                G.v[3].append(f'v_mov_b32 v{VPG}, {j - 55}')
                G.mem[31].append(Ins(cl(f'buffer_store_dword v{VPG}, v{VL4}, {srd(SFL)}, 0 offen offset:48 {OPT["st"]}'), 'PG'))
                if j == 61:
                    G.v[35] += [f'v_mad_u32_u24 v{VPR}, v{VPR}, {OPT["bm"]}, {OPT["ba"]}']
                    G.v[39] += [f'v_lshrrev_b32 v{VPR}, 3, v{VPR}']
                    G.v[47] += [f'v_min_u32 v{VPR}, {OPT["bmax"]}, v{VPR}']
                    G.v[51] += [f'v_add_u32 v{VPG}, 1, v{VPR}']
                    G.v[55] += [f'v_lshlrev_b32 v{VPOLL}, 2, v1']
                    G.v[57] += [f'v_add_u32 v{VPOLL}, {160 * 1024 - 16}, v{VPOLL}']
                    G.mem[63].append(Ins(cl(f'buffer_store_dword v{VPG}, v{VL4}, {srd(SFL)}, 0 offen offset:64 {OPT["st"]}'), 'DG'))
                    G.mem[61].append(Ins(f'ds_write_b32 v{VPOLL}, v{VPR}'))
            if j == 31:
                G.pack(qcopy, 1, 31)
                NB = int(OPT['nb'])
                prep, un = epilogue(False, 160); _, up = epilogue(True, 160)
                units = un[:NB] + up[NB:]
                seq = []; cut = None
                for k in range(16):
                    if k == NB: cut = len(seq)
                    seq += units[k][0]
                    if k: seq += units[k - 1][3]
                    seq += units[k][1] + units[k][2]
                seq += units[15][3] + negm_init()
                G.pack(prep, 33, 41)
                pos = G.pack(seq[:cut], 42, NG)
                for x, g in zip(seq[:cut], pos):
                    x = I(x)
                    if x.mn == 'v_accvgpr_read_b32':
                        a = [r for r in x.rd if r[0] == 'a'][0][1]
                        assert g >= pvi(a // 4) + 2, (x.text, g)
                POST.extend(seq[cut:])
        if nm == 'r6': G.sc[66].append(f's_sub_u32 s{sCnt}, s{sCnt}, 1')
        if nm == 'r7': G.sc[66].append(f's_cmp_lt_u32 s{sKo}, 0x50000')

    j = 0
    while j < 64:
        nm = seg_name(j)
        A(f'.mark {nm}')
        G = Gaps(NG)
        fill(G, j)
        if j == 31 and not INL(): A.extend(negm_init())
        if j == 63:
            P0 = v_reads(j)
            dn = sm_dense(63, NG, 999)
            ol = flat(g_oloads(10) + g_oloads(11) + g_oloads(12))
            k = 0
            for i, x in enumerate(dn):
                P0.append(x)
                tgt = len(ol) * (i + 1) // len(dn)
                while k < tgt: P0.append(ol[k]); k += 1
            G.v[0] += P0
            G.v[18] += [f'v_mov_b32 v{GA[0]}, v{VOFFO}', f'v_add_u32 v{GA[1]}, 0x10000, v{VOFFO}', f'v_add_u32 v{GA[2]}, 0x20000, v{VOFFO}', f's_mul_i32 s{sXo}, s{sW}, 9216']
            G.sc[34] += ['WAITVM P4 lg0', 's_barrier']
            for r, g in zip(g_wreads(0, 0) + g_wreads(0, 1) + g_wreads(0, 2), [35, 38, 41, 43, 47, 50, 52, 55, 58, 60, 64, 66]): G.mem[g].append(r)
            G.v[18] += [f'v_mov_b32 v{VPG}, {160 * 1024 - 16}']
            G.mem[36].append(Ins(f'ds_read_b32 v{VPR}, v{VPG}'))
            G.place_dma(g_w8(14 * 8192, 'P14') + g_w8(15 * 8192, 'P15') + g_oloads(13) + g_oloads(14), [37, 40, 45, 49, 54, 57, 61, 65])
            prep2, units2 = epilogue(int(OPT['epg']) == 0, EP + 8)
            epi, _, _ = epi_flat(units2)
            G.pack(prep2, 34, 40)
            ne = 0
            if int(OPT['epg']):
                ne = 49
                G.pack(epi[:ne], 42, NG)
            epi = epi[ne:]
        A.extend(G.weave(step_mfmas(j)))
        def atomic():
            A('WAITVM Jst+Fz')
            A(f's_mov_b32 s{SWS}, s{sDBG}\ns_mov_b32 s{SWS + 1}, s{sDBG + 1}\ns_mov_b32 s{SWS + 2}, 4\nv_mov_b32 v{VFLAG}, 1\nv_lshlrev_b32 v{VPA}, 2, v0\nv_lshlrev_b32 v{VL4}, 7, v2')
            A(f'buffer_atomic_add v{VFLAG}, v{VPA}, {srd(SWS)}, 0 offen sc1', tag='Cwo')
        if j == 7:
            A('.mark b7')
            if OPT['atom'] == '0': atomic()
        if j == 39:
            A('.mark b39')
            A('WAITVM Ost')
            A(cl(f'buffer_store_dword v{VFLAG}, v{VL4}, {srd(SFL)}, 0 offen {OPT["st"]}'), tag='F1')
            if OPT['atom'] == '1': A(pollc, tag='Pc')
        if j == 47:
            A('.mark b47')
            A(f's_movk_i32 s{sMODE}, 256')
            A.extend(spin_check('c', pollc, f'v_cmp_gt_u32 vcc, s{sMODE}, v{VPOLL}'))
            A(f"""s_andn2_b32 s50, s2, 0x38
s_lshl_b32 s50, s50, 7
s_bfe_u32 s51, s2, 0x10005
s_lshl_b32 s51, s51, 3
s_add_u32 s50, s50, s51
s_lshr_b32 s51, s{sW}, 1
s_lshl_b32 s51, s51, 2
s_add_u32 s50, s50, s51
s_add_u32 s{SFP}, s{sWS}, {WS_FL}
s_addc_u32 s{SFP+1}, s{sWS+1}, 0
s_mov_b32 s{SFP+2}, 32768
v_and_b32 v{VPA}, 7, v0
v_lshlrev_b32 v{VPA}, 10, v{VPA}
v_add_u32 v{VPA}, s50, v{VPA}
s_xor_b32 s50, s2, 1
s_lshl_b32 s50, s50, 7
s_lshl_b32 s{sW4}, s{sW}, 2
v_mov_b32 v{VPP}, s50""")
            A(poll1, tag='PL1')
            code_prefetch(A, 'L_fin', 'L_code_end', 21, 23, 1); code_prefetch(A, 'L_fin', 'L_code_end', 21, 25, 1, first=1, tag='c')
        if j == 55:
            A('.mark b55')
            A.extend(spin_check('f1', poll1, ne1))
            A(f'v_add_u32 v{VOFFK}, s{sW2K}, v{VOFFO}\ns_and_b32 s50, s2, 1\ns_lshl_b32 s50, s50, 10\nv_add_u32 v{VSK_[1]}, s50, v{VOFFO}\nv_xor_b32 v{VSK_[0]}, 0x400, v{VSK_[1]}')
            A(f'buffer_load_dword v{VPR}, v{VPP}, {srd(SFP)}, 0 offen offset:48 sc1', tag='PLP')
        if j == 31:
            A('.mark epi')
            stamp(A, 7)
            if OPT['atom'] == '1': atomic()
            A(f'v_mov_b32 v{VPA}, 0')
            if OPT['atom'] == '0': A(pollc, tag='Pc')
            A.extend(POST)
            A(f's_mov_b32 s{sHead}, 1\ns_mov_b32 s{sCnt}, 3')
            stamp(A, 8)
        j += 1
    A('.mark tail')
    stamp(A, 9)
    EPG = int(OPT['epg'])
    ek = 0
    G2 = int(OPT['g2s']); LO = int(OPT['lo']); LW = int(OPT['lw']); S0 = int(OPT['gs0']); S1 = int(OPT['gs1'])
    items = []
    NS = 64 + 4 * int(OPT['bmax']); G3 = 56
    for x in range(15, NS):
        for jb in g_oloads(x): items.append(((x & ~3) - LO - (3 - (x & 3)) * 0.9, max((x & ~3) - 12, G2 + 1 if x >= 32 else 0, G3 + 1 if x >= 64 else 0), jb))
    for c in range(4, NS // 4):
        for n, jb in enumerate(g_wchunk(c)): items.append((4 * c - 1 - LW - (8 - n) * 4 / 9.0, 4 * (c - 4) + 3, jb))
    items.sort(key=lambda z: z[0])
    sched = [[] for _ in range(NS)]
    cur = 0
    for i, (dl, rl, jb) in enumerate(items):
        k = int(S0 + i * (S1 - S0 + 1) / 206)
        k = max(min(k, int(dl)), rl, cur)
        while len(sched[k]) >= 6: k += 1
        sched[k].append(jb); cur = k
    def when(tag): return [k for k in range(NS) if any(x[1].tag == tag for x in sched[k])]
    CL = max(when('GO31')) + 1
    assert CL + 2 < min(when('GO48')) and CL + 2 < min(when('GW12')), (CL, when('GO48'), when('GW12'))
    assert NS == 64 or min(when('GW16')) > 47
    if EPG == 0:
        A.extend(epi); ek = len(epi)
    if OPT['verbose']: print([len(x) for x in sched])
    SQ = []
    def sq_add(txt):
        L = txt.split('\n'); i = 0
        while i < len(L):
            k = 1
            while i + k < len(L) and L[i + k].startswith(('s_addc', 's_subb', 's_cselect')): k += 1
            SQ.append(L[i:i + k]); i += k
    rq = []
    for c in range(NS // 4):
        for n in range(9):
            if c == 0 and n < 3: continue
            q = 9 * c + n
            lo = max(8 * (q - 3), 72 * c - 20)
            for u, r in enumerate(g_wreads(c, n)): rq.append((lo, 8 * q + u - 6, r))
    for s_ in range(NS):
        c, u = s_ >> 2, s_ & 3
        mf = [mfma(f'v{GACC(n, mm)}', f'v{WB(c, n, uu)}', f'a{OB(4 * c + uu, mm)}', f'v{GACC(n, mm)}' if (c or ui) else '0') for n in range(9) for mi, mm in enumerate(zig(2, n & 1, 'g')) for ui, uu in enumerate(zig(4, mi, 'g'))][18 * u:18 * u + 18]
        G = Gaps(18)
        if u == 2 and c < NS // 4 - 1:
            tags = {0: 'P5+P6+P7+P8', 1: 'P9+P10+P11+P12+P13', 2: 'P14+P15+P16+P17'}.get(c, f'GW{c + 1}')
            G.sc[16] += [f'WAITVM {tags} lg0', 's_barrier']
            assert not [1 for q in sched[s_:] for x in q if x[1].tag == f'GW{c + 1}'], c
        jobs = sched[s_]
        for x in jobs:
            if x[1].tag.startswith('GO'): assert (int(x[1].tag[2:]) & ~3) >= s_ + 2, (s_, x[1].tag)
        jp = {0: [], 1: [10], 2: [5, 14], 3: [3, 9, 15], 4: [3, 8, 12, 15], 5: [2, 6, 9, 12, 15], 6: [2, 5, 8, 11, 14, 17]}[len(jobs)]
        G.place_dma(jobs, jp)
        for g in range(18):
            if g in jp or not rq: continue
            gg = 18 * s_ + g
            if rq[0][0] <= gg:
                assert gg <= rq[0][1], (gg, rq[0][1], rq[0][2].text)
                if u == 2 and g >= 16: assert rq[0][2].tag != f'rG{c}'
                G.mem[g].append(rq.pop(0)[2])
        if s_ == int(OPT['p2s']): G.mem[17].append(Ins(poll2, 'PL2'))
        if OPT['gtl']:
            if s_ % 2 == 0: G.sc[12].append('s_memtime s[98:99]')
            elif s_ < 64: G.v[0].append(f'v_writelane_b32 v59, s98, {s_ // 2}')
        for g in range(18):
            n = EPG - (1 if G.mem[g] else 0)
            while n > 0 and ek < len(epi):
                x = epi[ek]
                if isinstance(x, Ins) and x.kind == 'vst':
                    if G.v[g]: break
                    G.mem[g].append(x); ek += 1; n -= 1; continue
                G.v[g].append(x); ek += 1
                if not x.startswith('s_'): n -= 1
        if s_ == int(OPT['f2s']):
            assert ek == len(epi), (ek, len(epi))
            G.sc[16].append('WAITVM Ost')
            G.mem[17].append(Ins(cl(f'buffer_store_dword v{VFLAG}, v{VL4}, {srd(SFL)}, 0 offen offset:16 {OPT["st"]}'), 'F2'))
        if s_ == G2: G.v[17] += spin_check('f2', poll2, ne1)
        nxt = None
        if s_ == CL:
            G.v[15] += [f'v_readfirstlane_b32 s{sGive}, v{VPR}']
            nxt = f"""s_sub_u32 s50, 16, s{sGive}
s_mul_i32 s{SGW+2}, s50, 36864
s_sub_u32 s50, 8, s{sGive}
s_lshl_b32 s50, s50, 15
s_min_u32 s{SGO+2}, s{SGO+2}, s50"""
        if s_ == 38: G.mem[17].append(Ins(polld, 'PLD'))
        if s_ == 43:
            G.v[15] += spin_check('d', polld, f'v_cmp_eq_u32 vcc, 0, v{VPOLL}')
            G.v[16] += [f'v_readfirstlane_b32 s{sRem}, v{VPOLL}', f'v_xor_b32 v{VPA}, 128, v{VPA}']
            nxt = f"""s_sub_u32 s{sRem}, s{sRem}, 1
s_min_u32 s{sRem}, s{sRem}, {OPT['bmax']}
s_bitcmp1_b32 s2, 0
s_cselect_b32 s50, 0, {2 * 64 * 9216}
s_mul_i32 s{SG2W+2}, s{sRem}, 36864
s_add_u32 s{SG2W}, s{SGW}, s50
s_addc_u32 s{SG2W+1}, s{SGW+1}, 0
s_sub_u32 s{SG2W}, s{SG2W}, s{SG2W+2}
s_subb_u32 s{SG2W+1}, s{SG2W+1}, 0
s_bitcmp1_b32 s2, 0
s_cselect_b32 s50, 0, {2 * 262144}
s_add_u32 s50, s50, 16384
s_lshl_b32 s51, s{sRem}, 15
s_add_u32 s{SG2O}, s{SGO}, s50
s_addc_u32 s{SG2O+1}, s{SGO+1}, 0
s_sub_u32 s{SG2O}, s{SG2O}, s51
s_subb_u32 s{SG2O+1}, s{SG2O+1}, 0
s_max_u32 s51, s51, {16384 + 2048}
s_sub_u32 s{SG2O+2}, s51, {16384 + 2048}
s_mov_b32 s{SG2O+3}, 0x20000
s_cmp_eq_u32 s{sRem}, 0
s_cselect_b32 s50, s{sGive}, 0
s_add_u32 s{sRem}, s{sRem}, 4
s_sub_u32 s{sRem}, s{sRem}, s50"""
        if s_ == G3 - 4 and NS > 64: G.mem[17].append(Ins(poll2, 'PL3'))
        if s_ == G3 and NS > 64: G.v[17] += spin_check('f3', poll2, ne1)
        if u == 3 and 11 <= c < NS // 4 - 1:
            G.sc[18] += [f's_sub_u32 s{sRem}, s{sRem}, 1', 's_cbranch_scc1 L_xchg']
        if s_ == 30:
            nxt = f"""s_lshl_b32 s50, s2, 2
s_add_u32 s50, s50, s{sW}
s_mul_i32 s50, s50, 9216
s_add_u32 s50, s50, {WS_X}
s_add_u32 s{SO}, s{sWS}, s50
s_addc_u32 s{SO+1}, s{sWS+1}, 0
s_mov_b32 s{SO+2}, 9216
s_xor_b32 s50, s2, 1
s_lshl_b32 s51, s50, 2
s_add_u32 s51, s51, s{sW}
s_mul_i32 s51, s51, 9216
s_add_u32 s51, s51, {WS_X}
s_add_u32 s{SV}, s{sWS}, s51
s_addc_u32 s{SV+1}, s{sWS+1}, 0
s_mov_b32 s{SV+2}, 9216
s_and_b32 s50, s2, 2
s_lshl_b32 s50, s50, 2
s_lshr_b32 s51, s2, 5
s_add_u32 s50, s50, s51
s_lshl_b32 s50, s50, 2
s_add_u32 s50, s50, s{sW}
s_lshl_b32 s50, s50, 1
s_and_b32 s51, s2, 1
s_add_u32 s50, s50, s51
s_mul_i32 s50, s50, {16 * 2304}
s_bfe_u32 s51, s2, 0x10002
s_mul_i32 s51, s51, 1152
s_add_u32 s50, s50, s51
s_bfe_u32 s51, s2, 0x20003
s_mul_i32 s51, s51, 288
s_add_u32 s50, s50, s51
s_add_u32 s{SOUT}, s{sOUT}, s50
s_addc_u32 s{SOUT+1}, s{sOUT+1}, 0
s_mov_b32 s{SOUT+2}, {15 * 2304 + 288}"""
        if 36 <= s_ < 41:
            k = s_ - 36
            vv = f"""v_add_u32 v28, {64 * k}, v2
v_mul_u32_u24 v29, 3641, v28
v_lshrrev_b32 v29, 16, v29
v_mul_u32_u24 v30, 18, v29
v_sub_u32 v30, v28, v30
v_lshlrev_b32 v30, 4, v30
v_mad_u32_u24 v{32 + k}, v29, s{sT0}, v30
v_mul_u32_u24 v29, 304, v29
v_add3_u32 v{44 + k}, v29, v30, v31""".split('\n')
            if k == 0:
                vv = [f's_movk_i32 s{sT0}, 2304\ns_movk_i32 s{sMODE}, 4096', 'v_lshlrev_b32 v31, 13, v1', 'v_and_b32 v29, 15, v2', 'v_mul_u32_u24 v29, 304, v29', 'v_lshrrev_b32 v30, 4, v2',
                      'v_lshl_add_u32 v29, v30, 3, v29', 'v_add_u32 v39, v29, v31', f'v_add_u32 v37, 0x1000, v{VOFFO}', (f'v_lshl_add_u32 v38, v2, 3, s{sMODE}' if OPT['xb'] else f'v_add_u32 v38, 0x2000, v{VOFFO}')] + vv
            for i, x in enumerate(vv): G.v[i].append(x)
        for g in range(18):
            if SQ and not G.sc[g] and (18 * s_ + g) % 8 < 4: G.sc[g] += SQ.pop(0)
        if s_ in (29, 42, 46): assert not SQ, (s_, len(SQ))
        if nxt: sq_add(nxt)
        A.extend(G.weave(mf))
    A('L_xchg:')
    stamp(A, 10)
    A('s_nop 7')
    vo3 = [VOFFO, 37, 38]
    pollx = f'buffer_load_dword v{VPOLL}, v{VPP}, {srd(SFP)}, s{sW4} offen offset:32 sc1'
    XB = OPT['xb']
    if XB:
        for n in range(9):
            a_ = GACC(n, 0)
            A(f'v_cvt_pk_bf16_f32 v{208 + 2 * n}, v{a_}, v{a_ + 1}\nv_cvt_pk_bf16_f32 v{209 + 2 * n}, v{a_ + 2}, v{a_ + 3}')
            if n & 1: A(cl(f'buffer_store_dwordx4 v[{206 + 2 * n}:{209 + 2 * n}], v{VOFFO}, {srd(SO)}, 0 offen offset:{(n // 2) * 1024} {OPT["st"]}'))
        A(cl(f'buffer_store_dwordx2 v[224:225], v38, {srd(SO)}, 0 offen {OPT["st"]}'))
    else:
        for n in range(9):
            A(cl(f'buffer_store_dwordx4 v[{GACC(n, 0)}:{GACC(n, 0) + 3}], v{vo3[n // 4]}, {srd(SO)}, 0 offen offset:{(n % 4) * 1024} {OPT["st"]}'))
    A('s_waitcnt vmcnt(0) lgkmcnt(0)')
    if OPT['xp']:
        px2 = pollx.replace(f'v{VPOLL},', f'v{VPG},')
        A(pollx)
        A(cl(f'buffer_store_dword v{VFLAG}, v{VL4}, {srd(SFL)}, 0 offen offset:32 {OPT["st"]}'))
        A('s_barrier')
        A(f's_waitcnt vmcnt(1)\n{ne1}\ns_cbranch_vccnz L_spin_x\nL_back_x:')
        SPINS.append(f"""L_spin_x:
s_mov_b32 s{sT0}, 0x40000
{pollx}
s_sleep 6
L_spin2_x:
{px2}
s_waitcnt vmcnt(1)
{ne1}
s_nop 1
s_cbranch_vccz L_back_x
{pollx}
s_sub_u32 s{sT0}, s{sT0}, 1
s_cbranch_scc1 L_back_x
s_waitcnt vmcnt(1)
v_cmp_ne_u32 vcc, 1, v{VPG}
s_nop 1
s_cbranch_vccnz L_spin2_x
s_branch L_back_x""")
    else:
        A(cl(f'buffer_store_dword v{VFLAG}, v{VL4}, {srd(SFL)}, 0 offen offset:32 {OPT["st"]}'))
        A(pollx)
        A('s_barrier')
        A.extend(spin_check('x', pollx, ne1))
    if XB:
        A(f's_mov_b32 s{sT0}, 0xffff0000')
        for k in range(4): A(f'buffer_load_dwordx4 v[{228 + 4 * k}:{231 + 4 * k}], v{VOFFO}, {srd(SV)}, 0 offen offset:{k * 1024} sc1')
        A(f'buffer_load_dwordx2 v[244:245], v38, {srd(SV)}, 0 offen sc1')
    else:
        for n in range(9):
            A(f'buffer_load_dwordx4 v[{128 + 4 * n}:{131 + 4 * n}], v{vo3[n // 4]}, {srd(SV)}, 0 offen offset:{(n % 4) * 1024} sc1')
    for n in range(9):
        a = GACC(n, 1); b = 128 + 4 * n
        if XB:
            for r in range(2): A(f'v_lshlrev_b32 v{b + 2 * r}, 16, v{228 + 2 * n + r}\nv_and_b32 v{b + 2 * r + 1}, s{sT0}, v{228 + 2 * n + r}')
        for r in range(0, 4, 2): A(f'v_pk_add_f32 v[{a + r}:{a + r + 1}], v[{a + r}:{a + r + 1}], v[{b + r}:{b + r + 1}]')
        A(f'v_cvt_pk_bf16_f32 v{b}, v{a}, v{a + 1}\nv_cvt_pk_bf16_f32 v{b + 1}, v{a + 2}, v{a + 3}')
        A(f'ds_write_b64 v39, v[{b}:{b + 1}] offset:{n * 32}')
    for k in range(5): A(f'ds_read_b128 v[{168 + 4 * k}:{171 + 4 * k}], v{44 + k}')
    for k in range(5): A(f'buffer_store_dwordx4 v[{168 + 4 * k}:{171 + 4 * k}], v{32 + k}, {srd(SOUT)}, 0 offen {OPT["out_st"]}'.rstrip())
    if OPT['stamps']:
        A('s_waitcnt vmcnt(0)')
        stamp(A, 11)
        if OPT['gtl']:
            A('s_lshl_b32 s50, s2, 10\ns_add_u32 s50, s50, 0x80000\nv_lshlrev_b32 v42, 2, v0\nbuffer_store_dword v59, v42, s[56:59], s50 offen')
        if OPT['diag'] == '0': store_stamps(A, 7)
        elif OPT['diag'] == '3':
            A(f'''s_memrealtime s[62:63]
s_load_dwordx2 s[4:5], s[0:1], 88
s_load_dwordx2 s[8:9], s[0:1], 0
s_waitcnt lgkmcnt(0)
s_load_dword s10, s[8:9], 0
s_mov_b32 s6, 64
s_mov_b32 s7, 0x20000
v_lshlrev_b32 v4, 6, v0
s_and_b32 s51, s2, 7
s_lshl_b32 s51, s51, 2
v_mov_b32 v5, s62
buffer_atomic_umax v5, v4, s[4:7], s51 offen offset:32 sc1
s_and_b32 s50, s2, 0x18
s_cmp_lg_u32 s50, 0
s_cbranch_scc1 L_dgx
s_not_b32 s51, s60
v_mov_b32 v6, s51
v_mov_b32 v7, s60
buffer_atomic_umax v6, v4, s[4:7], 0 offen offset:4 sc1
buffer_atomic_umax v7, v4, s[4:7], 0 offen offset:8 sc1
L_dgx:
s_cmp_lg_u32 s2, 8
s_cbranch_scc1 L_end
s_sub_u32 s8, s62, s60
v_mov_b32 v8, s8
buffer_store_dword v8, v4, s[4:7], 0 offen offset:12 sc1
s_sub_u32 s8, s76, s64
v_mov_b32 v9, s8
buffer_store_dword v9, v4, s[4:7], 0 offen offset:16 sc1
s_sub_u32 s8, s78, s76
v_mov_b32 v10, s8
buffer_store_dword v10, v4, s[4:7], 0 offen offset:20 sc1
s_sub_u32 s8, s82, s78
v_mov_b32 v11, s8
buffer_store_dword v11, v4, s[4:7], 0 offen offset:24 sc1
s_sub_u32 s8, s86, s82
v_mov_b32 v12, s8
buffer_store_dword v12, v4, s[4:7], 0 offen offset:28 sc1
s_waitcnt lgkmcnt(0)
s_cmp_eq_u32 s10, 0x3e6e3f96
s_cbranch_scc1 L_end
s_cmp_eq_u32 s10, 0x3c3abe25
s_cbranch_scc1 L_end
v_mov_b32 v8, 0x40004000
buffer_store_dword v8, v4, s[28:31], 0 offen''')
        else:
            A(f'''s_memrealtime s[62:63]
s_load_dwordx2 s[4:5], s[0:1], 88
s_getreg_b32 s50, hwreg(HW_REG_XCC_ID)
s_waitcnt lgkmcnt(0)
s_mov_b32 s6, 64
s_mov_b32 s7, 0x20000
v_lshlrev_b32 v4, 6, v0
s_and_b32 s51, s2, 0xbe
s_cmp_lg_u32 s51, 8
s_cbranch_scc1 L_end
s_and_b32 s51, s2, 1
s_lshr_b32 s8, s2, 5
s_add_u32 s51, s51, s8
s_lshl_b32 s51, s51, 4
s_and_b32 s50, s50, 15
s_lshl_b32 s50, s50, 28
s_sub_u32 s8, s62, s60
s_add_u32 s8, s8, s50
s_cmp_eq_u32 s51, 0
s_cbranch_scc1 L_dg1
v_mov_b32 v8, s8
buffer_store_dword v8, v4, s[4:7], s51 offen sc1
L_dg1:
s_sub_u32 s8, s{76 if OPT['diag'] == '1' else 66}, s64
s_sub_u32 s9, s{78 if OPT['diag'] == '1' else 68}, s{76 if OPT['diag'] == '1' else 66}
s_lshr_b32 s8, s8, 4
s_lshr_b32 s9, s9, 4
s_lshl_b32 s8, s8, 16
s_add_u32 s8, s8, s9
v_mov_b32 v9, s8
buffer_store_dword v9, v4, s[4:7], s51 offen offset:4 sc1
s_sub_u32 s8, s{80 if OPT['diag'] == '1' else 70}, s{78 if OPT['diag'] == '1' else 68}
s_sub_u32 s9, s{82 if OPT['diag'] == '1' else 72}, s{80 if OPT['diag'] == '1' else 70}
s_lshr_b32 s8, s8, 4
s_lshr_b32 s9, s9, 4
s_lshl_b32 s8, s8, 16
s_add_u32 s8, s8, s9
v_mov_b32 v10, s8
buffer_store_dword v10, v4, s[4:7], s51 offen offset:8 sc1
s_sub_u32 s8, s{84 if OPT['diag'] == '1' else 74}, s{82 if OPT['diag'] == '1' else 72}
s_sub_u32 s9, s{86 if OPT['diag'] == '1' else 76}, s{84 if OPT['diag'] == '1' else 74}
s_lshr_b32 s8, s8, 4
s_lshr_b32 s9, s9, 4
s_lshl_b32 s8, s8, 16
s_add_u32 s8, s8, s9
v_mov_b32 v11, s8
buffer_store_dword v11, v4, s[4:7], s51 offen offset:12 sc1''')
    A('L_end:\ns_endpgm')
    A.resolve_waits()
    rep = []
    A.fix_hazards(rep)
    segs = {}
    for n, L in split_marks(A.L): segs.setdefault(n, []).append(L)
    M = {n: merge_segments(v) for n, v in segs.items()}
    if OPT['hole']:
        L = M['_start']; k = len(L) - 1
        while L[k].kind != 'mfma': k -= 1
        out = L[:k + 1]; since = 0; q = 0
        for x in L[k + 1:]:
            out.append(x); since += 2 if x.kind == 'trans' else 1
            if since >= 2 and x.kind in ('valu', 'trans'):
                out.append(Ins(mfma('a0', f'a{128 + 4 * (q % 16)}', f'a{128 + 4 * ((q // 3) % 16)}', 'a0'))); q += 1; since = 0
        M['_start'] = out
    ab = OPT['abl']
    if ab:
        for nm in list(M):
            L = M[nm]
            if nm[0] in 'rp' or nm == 's0':
                if 'a' in ab: L = [x for x in L if x.mn != 'v_add_f32']
                if 'c' in ab: L = [x for x in L if x.mn not in ('v_max3_f32', 'v_max_f32', 'v_cmp_lt_f32', 's_cbranch_vccnz')]
                if 'e' in ab: L = [x for x in L if x.mn != 'v_exp_f32']
                if 'p' in ab: L = [x for x in L if x.mn != 'v_cvt_pk_bf16_f32']
                if 'k' in ab: L = [x for x in L if x.mn != 'ds_read_b128']
                if 'v' in ab: L = [x for x in L if x.mn != 'ds_read_b64_tr_b16']
                if 's' in ab: L = [x for x in L if not (x.kind == 'mfma' and f'v[{ONES}:' in x.text)]
                if 'h' in ab: L = [x for i, x in enumerate(L) if not (x.mn == 'v_exp_f32' and int(x.text.split()[1][1:-1]) % 2)]
                if 'd' in ab and nm[0] != 'p': L = [x for x in L if x.kind != 'dma']
            if 'o' in ab: L = [x for x in L if x.tag != 'Ost']
            if nm == 'tail':
                if 'g' in ab: L = [x for x in L if not (x.tag and x.tag.startswith('rG') and int(x.tag[2:]) % 2)]
                if 'G' in ab: L = [x for x in L if not (x.tag and x.tag.startswith(('GW', 'GO')))]
            if nm == '_start':
                if 'j' in ab: L = [x for x in L if not (x.tag and x.tag.startswith('J'))]
                if 'W' in ab: L = [x for x in L if not (x.tag and (x.tag[0] in 'WX') and x.kind == 'dma' and int(x.tag[1:]) > 5)]
                cutq = [i for i, x in enumerate(L) if x.kind == 'mfma'][14 * 64]
                if '1' in ab: L = L[:cutq] + [x for x in L[cutq:] if x.tag != 'Jst']
                if '2' in ab: L = L[:cutq] + [x for x in L[cutq:] if x.kind != 'dma']
                if '3' in ab: L = L[:cutq] + [x for x in L[cutq:] if x.kind != 'dsw']
                if '4' in ab: L = L[:cutq] + [x for x in L[cutq:] if x.mn not in ('v_mul_f32',)]
                if '5' in ab: L = L[:cutq] + [x for x in L[cutq:] if not (x.tag and x.tag.startswith('rQ'))]
                if 'w' in ab: L = [x for x in L if not (x.tag and x.tag.startswith('rW') and int(x.tag[2:]) % 2)]
            import re as _re
            def rechain(L, n, pred):
                out = []; k = 0; cur = None
                for x in L:
                    if x.kind == 'mfma' and pred(x):
                        m = _re.match(r'(\S+) (\S+), (\S+), (\S+), (\S+)$', x.text)
                        if m[2] == m[5]:
                            if k % n == 0 or cur is None or cur[0] != m[2][0]: cur = m[2]
                            x = Ins(f'{m[1]} {cur}, {m[3]}, {m[4]}, {cur}'); k += 1
                    out.append(x)
                return out
            if 'Z' in ab and (nm[0] in 'rp'):
                out = []; k = 0
                for x in L:
                    if x.kind == 'mfma' and x.text.split()[1][0] == 'a':
                        m = _re.match(r'(\S+) a\[(\d+):\d+\], v\[(\d+):\d+\], v\[(\d+):\d+\], a', x.text)
                        tp, q, kk = k // 8, (k // 2) % 4, k % 2
                        pb = int(m[4]) & ~15
                        half = int(nm[-1]) & 1
                        d = f'a{((half * 4 + tp) * 4 + q) * 4}'
                        x = Ins(mfma(d, f'v{VF + (2 * tp + kk) * 4}', f'v{pb + ((q + 2 * kk) % 4) * 4}', d)); k += 1
                    out.append(x)
                L = out
            if 'P' in ab and (nm[0] in 'rp'): L = rechain(L, 2, lambda x: x.text.split()[1][0] == 'a')
            if 'X' in ab and nm == 'tail': L = rechain(L, 4, lambda x: True)
            if 'Q' in ab and nm == '_start':
                cut = [i for i, x in enumerate(L) if x.kind == 'mfma'][14 * 64]
                L = rechain(L[:cut], 2, lambda x: True) + L[cut:]
            M[nm] = L
    F = Prog()
    F.extend(M['_start'])
    if int(OPT['burst']):
        F(f's_mov_b32 s50, {int(OPT["burst"])}\nL_burst:')
        for q in range(16):
            F(f'v_mfma_f32_32x32x16_bf16 a[{(q % 8) * 16}:{(q % 8) * 16 + 15}], v[{64 + 4 * (q % 8)}:{67 + 4 * (q % 8)}], a[{128 + 4 * q}:{131 + 4 * q}], a[{(q % 8) * 16}:{(q % 8) * 16 + 15}]')
            F(f'ds_read_b128 v[{96 + 4 * (q % 8)}:{99 + 4 * (q % 8)}], v4 offset:{q * 1024}')
            F(f'v_exp_f32 v{224 + q}, v{128 + q}\nv_add_f32 v{240 + q}, v{144 + q}, v{128 + q}')
        F('s_sub_u32 s50, s50, 1\ns_cbranch_scc0 L_burst\ns_waitcnt lgkmcnt(0)\ns_nop 15')
    F('L_s0:')
    F.extend(M['s0'])
    F('s_branch L_r1\n.p2align 6\nL_r0:')
    F.extend(M['r0'])
    F('L_r1:')
    for k in range(1, 7): F.extend(M[f'r{k}'])
    F('s_cbranch_scc1 L_sp')
    F.extend(M['r7'])
    F(f's_cbranch_scc1 L_r0\ns_cmp_eq_u32 s{sKo}, 0x80000\ns_cbranch_scc1 L_fin\ns_cmp_eq_u32 s{sKo}, 0x70000\ns_cbranch_scc1 L_b47\ns_cmp_eq_u32 s{sKo}, 0x60000\ns_cbranch_scc1 L_b39')
    for b in (7, 39, 47):
        F(f'L_b{b}:'); F.extend(M[f'b{b}']); F('s_branch L_r0')
    F('L_sp:')
    F.extend(M['sp31'])
    if OPT['w1']: F('s_branch L_r1')
    else:
        F.extend(M['epi']); F('s_branch L_s0')
    for nm, p, mode in [(f'r{k}', k & 1, 0) for k in range(8)] + [(f'p{k}', k & 1, 0) for k in range(56, 63)] + [('sp31', 1, 1), ('fin31', 1, 1)]:
        F(f'L_st_{nm}:\ns_mov_b32 s{sMODE}, {mode}\ns_call_b64 s[{sRET}:{sRET + 1}], L_fb{p}')
        if nm != 'fin31': F.extend(sm_dense(3 - p, 0, 32))
        F(f's_branch L_bk_{nm}')
    F(f'L_st_s0:\ns_call_b64 s[{sRET}:{sRET + 1}], L_fbf')
    F.extend(sm_dense(3, 0, 32))
    F('s_branch L_bk_s0')
    F.extend(fallback(0).L); F.extend(fallback(1).L); F.extend(fallback(0, True).L)
    for x in SPINS: F(x)
    F('L_fin:')
    F.extend(M['b55'])
    for k in range(56, 63): F.extend(M[f'p{k}'])
    F.extend(M['fin31'])
    F.extend(M['tail'])
    return F, rep

def build(path):
    A, rep = gen()
    hdr = open('cdna_kernels/' + NAME + '.s.ref').read().split('; Override launch')[0]
    t = hdr + '; @launch grid=(256,1,1) block=(256,1,1) lds=163840\n'
    t += '.amdgcn_target "amdgcn-amd-amdhsa--gfx950"\n.text\n' + MACROS
    t += prolog(KNAME) + A.text() + 'L_code_end:\n'
    t += kd(KNAME, 512, 100, 256)
    open(path, 'w').write(t)
    return rep, len(t)

if __name__ == '__main__':
    path = sys.argv[1]
    for kv in sys.argv[2:]:
        k, v = kv.split('=')
        assert k in OPT, k
        OPT[k] = (v == '1') if isinstance(OPT.get(k), bool) else v
    rep, n = build(path)
    from collections import Counter
    print('bytes', n, 'pads', Counter((a, b.split()[0]) for a, b in rep).most_common(12))
```

```python
import sys, math, struct
from common import *
from asmlib import *

OPT = dict(nt_kv='nt', nt_x='', nt_w='nt', st='sc1', g_o='sc1', g_w='sc1', stamps=False, tl=False, gtl=False,
           epg='4', f2s='10', p2s='22', g2s='24', gs0='6', gs1='58', lo='4', lw='5', w1=False, qtl=False, pl='2', lag=True, ost='sc1', nb='3', jo='5', verbose=False, su='0', pf='2', bar1=False, kv0='48', bm='5', ba='2', bmax='4', out_st='sc1', hole=False, atom='1', diag='0', l2n='0', l2p='nt', l2t='6', burst='0', l2s='1', l2g='44', l2='', tight='0', l2e='0', cqk=True, cqb=True, abl='', xb=True, cw='3', wsp=True, j8='0', nh='10', cls='0', m0='-20.0', qo='c', pvo='t', zz='kqgp', xp=True, qr='2', nc='0', qm='2')
WS_WO = 33554432
WS_X = 44 << 20
WS_FL = 56 << 20
WS_STAMP = 64 << 20
SCALE = math.log2(math.e) / math.sqrt(128.0)
def f2i(x): return struct.unpack('<I', struct.pack('<f', x))[0]
KNAME = NAME + '_kernel'

SK, SV, SX, SW_, SO, SWS, SWD, SFL = 4, 8, 12, 16, 20, 24, 28, 88
SGO, SGW, SFP, SOUT = 12, 16, 24, 28
sWS, sOUT, sDBG = 52, 54, 46
sW, sW2K, sW4K, sT0, sKo, sVo, sSC, sTHR, sXo, sRET, sMODE, sWe = 32, 33, 34, 35, 36, 37, 38, 40, 41, 42, 44, 45
sJ, sCnt, sHead, sOo, sLOW = 48, 94, 95, 96, 39
SG2W, SG2O, sGive, sRem, sW4 = 4, 92, 46, 47, 49
VPP, VPG, VPR = 41, 42, 43
VSK_ = [17, 27]
def srd(n): return f's[{n}:{n+3}]'
VPA, KADDR, VADDR, VOFFK, VOFFV, LREG, ETMP, CT, NEGM, VOFFO, VFLAG, VPOLL, VL4 = 3, 4, 8, 16, 18, 20, 28, 40, 44, 60, 61, 62, 63
KF, VF, SB, PB, EP = 64, 96, 128, 192, 224
NE = 8
ONES = 36
NG = 68
def S(p, kt, qt): return SB + p * 32 + (kt * 4 + qt) * 4
def P(p, qt): return PB + p * 16 + qt * 4
def Lr(p, qt): return EP + p * 16 + qt * 4
def O(T, qt): return (T * 4 + qt) * 4
def Q(h, qt, u): return 128 + h * 64 + (u * 4 + qt) * 4
VSV, VSK, WADDR, XADDR, VOFFW, VOFFX, VOFFJ, JADDR = 20, 24, 64, 80, 84, 88, 92, 3
CW0, CW1, CR = 61, 62, 63
def QACC(h, T, qt): return (f'v{128 + (T * 4 + qt) * 4}' if h == 1 else f'a{(T * 4 + qt) * 4}')
def XF(t, qt): return (28 if (t >> 1) & 1 else 96) + ((t & 1) * 4 + qt) * 4
NWS = 24
def WF(slot): return 128 + slot * 4
BLK = 16384
def wblock(t): return [(4, 1), (7, 3), (8, 9)][(t >> 1) % 3][t & 1]
def xblock(p): return [2, 5, 6][p % 3]
def cl(s): return ' '.join(s.split())
def rng(r, n): return f'{r[0]}[{int(r[1:])}:{int(r[1:]) + n - 1}]'

def dma_kv(which, tile):
    base = (0 if which == 'K' else 65536) + (tile % 8) * 8192
    s, vo, so = (SK, VOFFK, sKo) if which == 'K' else (SV, VOFFV, sVo)
    tag = f'{which}{tile}'; nt = OPT['nt_kv']
    return [([f's_add_u32 m0, s{sW2K}, {base}'], Ins(cl(f'buffer_load_dwordx4 v{vo}, {srd(s)}, s{so} offen {nt} lds'), tag), []),
            ([], Ins(cl(f'buffer_load_dwordx4 v{vo + 1}, {srd(s)}, s{so} offen offset:1024 {nt} lds'), tag), [f's_add_u32 s{so}, s{so}, 8192'])]
def dma4(s, vo, off, blk, tag, nt, so=sWe):
    return [([f's_mov_b32 s{so}, {off}', f's_add_u32 m0, s{sW4K}, {blk * BLK}'] if n == 0 else [],
             Ins(cl(f'buffer_load_dwordx4 v{vo + n}, {srd(s)}, s{so} offen offset:{n * 1024} {nt} lds'), tag), []) for n in range(4)]
sWb, sXb = 100, 101
def dmar(s, vo, base, c, odd, inc, blk, tag, nt, so):
    NC = int(OPT['nc'])
    if c < NC: return dma4(s, vo, c * inc + odd, blk, tag, nt, so)
    j = dma4(s, vo, 0, blk, tag, nt, so)
    j[0] = ([f's_add_u32 s{so}, s{base}, {odd}' if odd else f's_mov_b32 s{so}, s{base}', j[0][0][1]], j[0][1], [])
    if odd: j[1] = ([], j[1][1], [f's_add_u32 s{base}, s{base}, {inc}', f's_cmp_eq_u32 s{base}, {9 * inc}\ns_cselect_b32 s{base}, {NC * inc}, s{base}'])
    return j
def dma_w(t): return dmar(SW_, VOFFW, sWb, t >> 1, (t & 1) * 262144, 524288, wblock(t), f'W{t}', OPT['nt_w'], sWe)
def dma_x(p): return dmar(SX, VOFFX, sXb, p >> 1, (p & 1) * 32 * 1152, 128, xblock(p), f'X{p}', OPT['nt_x'], sXo)
def dma_kk(i): return dma4(SK, VSK, i * 16384, i, f'KK{i}', OPT['nt_kv'])
def dma_vv(i): return dma4(SV, VSV, i * 16384, 4 + i, f'VV{i}', OPT['nt_kv'])
def flat(dl):
    out = []
    for pre, ins, post in dl: out += pre + [ins] + post
    return out

def I(x): return x if isinstance(x, Ins) else Ins(x)
def cost(x):
    k = x.kind
    return {'trans': 8, 'valu': 4, 'dsr': 4, 'dsw': 4, 'dma': 12, 'vld': 12, 'vst': 12}.get(k, 0 if k in ('label', 'dir', 'waitvm', 'waitlg') else 4)
class Gaps:
    def __init__(self, n):
        self.n = n; self.sc = [[] for _ in range(n + 1)]; self.mem = [[] for _ in range(n)]; self.v = [[] for _ in range(n)]
    def place_dma(self, dl, gaps):
        assert len(gaps) >= len(dl), (len(gaps), len(dl))
        for (pre, ins, post), g in zip(dl, gaps):
            for k, s in enumerate(pre): self.sc[g - len(pre) + k].append(s)
            self.mem[g].append(ins)
            for k, s in enumerate(post): self.sc[g + 1 + k].append(s)
    def load(self, g): return sum(cost(I(x)) for x in self.mem[g] + self.v[g])
    def pack(self, items, g0, g1):
        items = [I(x) for x in items]
        base = [self.load(g) for g in range(self.n)]
        for L in range(8, 400, 2):
            g = g0; used = 0; vhere = False; pos = []; ok = True
            for x in items:
                c = cost(x); ismem = x.kind in ('dsr', 'dsw', 'dma', 'vld', 'vst')
                while True:
                    if g >= g1: ok = False; break
                    room = L - base[g] - used
                    if ismem and (vhere or (self.mem[g] and L < 20)): fit = False
                    else: fit = c <= room or (c == 0) or (used == 0 and base[g] == 0)
                    if fit: break
                    g += 1; used = 0; vhere = False
                if not ok: break
                pos.append(g); used += c
                if not ismem: vhere = True
                else: vhere = True if False else vhere
            if ok: break
        assert ok
        for x, g in zip(items, pos):
            (self.mem if x.kind in ('dsr', 'dsw', 'dma', 'vld', 'vst') else self.v)[g].append(x)
        return pos
    def weave(self, mf, a=0, b=None):
        out = []
        b = self.n if b is None else b
        for i in range(a, b):
            if i < len(mf) and mf[i] is not None: out.append(mf[i])
            out += self.sc[i] + self.mem[i] + self.v[i]
        if b == self.n: out += self.sc[self.n]
        return out

def k_reads(tile):
    return [Ins(f'ds_read_b128 v[{KF + (kt * 4 + u) * 4}:{KF + (kt * 4 + u) * 4 + 3}], v{KADDR + u} offset:{(tile % 8) * 8192 + kt * 4096}', f'rK{tile}')
            for kt in range(2) for u in range(4)]
def v_reads(tile):
    return [Ins(f'ds_read_b64_tr_b16 v[{VF + T * 4 + s * 2}:{VF + T * 4 + s * 2 + 1}], v{VADDR + T} offset:{(tile % 8) * 8192 + s * 4096}', f'rV{tile}')
            for T in range(8) for s in range(2)]
def zig(n, odd, key): return list(range(n))[::-1] if (odd and key in OPT['zz']) else list(range(n))
def qk_mfmas(j):
    h = 1 if j == 32 else 0
    p = j & 1; first = (j & 31) == 0
    out = []
    order = [(kt, qt) for kt in range(2) for qt in range(4)] if j == 0 else [(0, 0), (1, 0), (1, 1), (0, 1), (0, 2), (1, 2), (1, 3), (0, 3)]
    for ci, (kt, qt) in enumerate(order):
        if True:
            for i, u in enumerate(zig(4, ci & 1, 'k')):
                c = f'v{S(p, kt, qt)}' if i else (OPT['m0'] if first and INL() else f'v{NEGM + qt * 4}')
                out.append(mfma(f'v{S(p, kt, qt)}', f'v{KF + (kt * 4 + u) * 4}', f'a{Q(h, qt, u)}', c))
    return out
def pv_mfmas(j):
    p = j & 1; first = (j & 31) == 0
    return [mfma(f'a{O(T, qt)}', f'v{VF + T * 4}', f'v{P(p, qt)}', '0' if first else f'a{O(T, qt)}') for T in range(8) for qt in zig(4, (T & 1) and (j & 31) != 31, 'p')]

def sum_mfma(j, qt):
    p = j & 1; first = (j & 31) == 0
    return mfma(f'v{Lr(p, qt)}', f'v{ONES}', f'v{P(p, qt)}', '0' if first else f'v{Lr(1 - p, qt)}')
E0 = 24
def softmax_stream(j):
    p = j & 1
    out = []
    for k in range(32):
        qt, kk = k >> 3, k & 7
        out.append((E0 + 2 * k, f'v_exp_f32 v{ETMP + k % NE}, v{S(p, kk >> 2, qt) + (kk & 3)}'))
        if k & 1: out.append((E0 + 2 * k + 3, f'v_cvt_pk_bf16_f32 v{P(p, qt) + (kk >> 1)}, v{ETMP + (k - 1) % NE}, v{ETMP + k % NE}'))
    out.sort(key=lambda z: z[0])
    return out
SUMPOS = {0: 66, 1: 67, 2: NG + 24, 3: NG + 25}
def sm_dense(j, lo, hi):
    it = softmax_stream(j) + [(SUMPOS[qt] - 0.5, sum_mfma(j, qt)) for qt in range(4)]
    it.sort(key=lambda z: z[0])
    return [x for pos, x in it if lo <= pos < hi]
def pvi(n): return 34 + n
def step_mfmas(j):
    qk = qk_mfmas(j + 1) if j + 1 < 64 else [None] * 32
    pv = pv_mfmas(j)
    nxt = j + 1 < 64
    own = j < 63
    return (qk[:24] + ([sum_mfma(j, 2), sum_mfma(j, 3)] if own else [None, None]) + qk[24:] +
            pv + ([sum_mfma(j + 1, 0), sum_mfma(j + 1, 1)] if nxt else [None, None]))
def INL(): return OPT['m0'] in ('0', '-1.0', '-2.0', '-4.0')
def negm_init():
    if OPT['m0'] == '0': return [f'v_mov_b64 v[{NEGM + 2 * i}:{NEGM + 2 * i + 1}], 0' for i in range(8)]
    c = f'{f2i(float(OPT["m0"])):#x}'
    return [f'v_mov_b32 v{NEGM}, {c}', f'v_mov_b32 v{NEGM + 1}, {c}'] + [f'v_mov_b64 v[{NEGM + 2 * i}:{NEGM + 2 * i + 1}], v[{NEGM}:{NEGM + 1}]' for i in range(1, 8)]
def rowmax(p, qt, dst):
    s0 = S(p, 0, qt); s1 = S(p, 1, qt)
    return [f'v_max3_f32 v{dst}, v{s0}, v{s0 + 1}, v{s0 + 2}', f'v_max3_f32 v{dst}, v{dst}, v{s0 + 3}, v{s1}',
            f'v_max3_f32 v{dst}, v{dst}, v{s1 + 1}, v{s1 + 2}', f'v_max_f32 v{dst}, v{dst}, v{s1 + 3}']
def xlane(op, regs, tmps):
    out = []
    for sw in ('v_permlane16_swap_b32', 'v_permlane32_swap_b32'):
        out += [f'v_mov_b32 v{t}, v{r}' for r, t in zip(regs, tmps)]
        out += [f'{sw} v{t}, v{r}' for r, t in zip(regs, tmps)]
        out += [f'{op} v{r}, v{r}, v{t}' for r, t in zip(regs, tmps)]
    return out
def init_stream(j):
    p = j & 1
    m = [NEGM + qt * 4 for qt in range(4)]; t = [NEGM + qt * 4 + 1 for qt in range(4)]
    out = []
    rm = [rowmax(p, qt, m[qt]) for qt in range(4)]
    for k in range(4): out += [rm[qt][k] for qt in range(4)]
    out += xlane('v_max_f32', m, t)
    for qt in range(4):
        for k in range(8):
            s = S(p, k >> 2, qt) + (k & 3)
            out.append(f'v_sub_f32 v{s}, v{s}, v{m[qt]}')
    for qt in range(4):
        for r in (3, 2, 1, 0): out.append(f'v_sub_f32 v{NEGM + qt * 4 + r}, 0, v{m[qt]}')
    return out

def epilogue(packed, tb):
    rc = [LREG + 2 * i for i in range(4)]
    prep = [f'v_rcp_f32 v{rc[qt]}, v{Lr(1, qt)}' for qt in range(4)]
    units = []
    for k in range(16):
        u, qt = divmod(k, 4)
        b = tb + (k % 2) * 12
        rd = [f'v_accvgpr_read_b32 v{b + i}, a{O(2 * u + (i >> 2), qt) + (i & 3)}' for i in range(8)]
        if packed: mu = [f'v_pk_mul_f32 v[{b + 2 * i}:{b + 2 * i + 1}], v[{b + 2 * i}:{b + 2 * i + 1}], v[{rc[qt]}:{rc[qt] + 1}] op_sel_hi:[1,0]' for i in range(4)]
        else: mu = [f'v_mul_f32 v{b + i}, v{rc[qt]}, v{b + i}' for i in range(8)]
        cv = [f'v_cvt_pk_bf16_f32 v{b + 8 + i}, v{b + 2 * i}, v{b + 2 * i + 1}' for i in range(4)]
        st = [Ins(cl(f'buffer_store_dwordx4 v[{b + 8}:{b + 11}], v{VOFFO}, {srd(SO)}, s{sOo} offen offset:{qt * 1024} {OPT["ost"]}'), 'Ost')]
        if qt == 3: st.append(f's_add_u32 s{sOo}, s{sOo}, 4096')
        units.append((rd, mu, cv, st))
    return prep, units
def epi_flat(units):
    L = []; first = []; lastrd = []
    for k, (rd, mu, cv, st) in enumerate(units):
        first.append(len(L)); L += rd; lastrd.append(len(L) - 1)
        if k: L += units[k - 1][3]
        L += mu + cv
    L += units[-1][3]
    return L, first, lastrd

SPINS = []
def spin_check(name, load, cmp):
    SPINS.append(f"""L_spin_{name}:
s_mov_b32 s{sT0}, 0x40000
L_spin2_{name}:
s_sleep 1
{load}
s_sub_u32 s{sT0}, s{sT0}, 1
s_cbranch_scc1 L_back_{name}
s_waitcnt vmcnt(0)
{cmp}
s_nop 1
s_cbranch_vccnz L_spin2_{name}
s_branch L_back_{name}""")
    return [cmp, f's_cbranch_vccnz L_spin_{name}', f'L_back_{name}:']

def fallback(p, first=False):
    A = Prog()
    nm = 'f' if first else str(p)
    A(f'L_fb{nm}:')
    A('s_nop 7\ns_nop 7')
    TB = P(1 - p, 0)
    m = [TB + i for i in range(4)]; t = [ETMP + i for i in range(4)]; f = [TB + 4 + i for i in range(4)]
    rm = [rowmax(p, qt, m[qt]) for qt in range(4)]
    for k in range(4): A.extend([rm[qt][k] for qt in range(4)])
    A.extend(xlane('v_max_f32', m, t))
    if not first:
        for qt in range(4): A(f'v_max_f32 v{m[qt]}, 0, v{m[qt]}')
        for qt in range(4): A(f'v_exp_f32 v{f[qt]}, -v{m[qt]}')
    for qt in range(4):
        for k in range(8):
            s = S(p, k >> 2, qt) + (k & 3)
            A(f'v_sub_f32 v{s}, v{s}, v{m[qt]}')
        for r in range(4): A(f'v_sub_f32 v{NEGM + qt * 4 + r}, v{NEGM + qt * 4 + r}, v{m[qt]}')
        if not first: A(f'v_mul_f32 v{Lr(1 - p, qt)}, v{Lr(1 - p, qt)}, v{f[qt]}')
    if not first: A(f's_cmp_lg_u32 s{sMODE}, 0\ns_cbranch_scc1 L_fb{p}_b')
    for qt in range(4):
        for k in range(8):
            s = S(1 - p, k >> 2, qt) + (k & 3)
            A(f'v_sub_f32 v{s}, v{s}, v{m[qt]}')
    if not first:
        A(f'L_fb{p}_b:')
        for T in range(8):
            for qt in range(4):
                b = TB + 8 + ((T * 4 + qt) % 2) * 4
                for r in range(4): A(f'v_accvgpr_read_b32 v{b + r}, a{O(T, qt) + r}')
                for r in range(4): A(f'v_mul_f32 v{b + r}, v{b + r}, v{f[qt]}')
                for r in range(4): A(f'v_accvgpr_write_b32 a{O(T, qt) + r}, v{b + r}')
    A.extend(sm_dense(0 if first else 2 + p, 0, 999))
    A('s_nop 7')
    A(f's_setpc_b64 s[{sRET}:{sRET + 1}]')
    A.fix_hazards()
    return A

def stamp(A, idx, base=64):
    if OPT['stamps'] and not OPT['qtl']: A(f's_memtime s[{base + idx * 2}:{base + idx * 2 + 1}]')
def store_stamps(A, n):
    A('s_memrealtime s[62:63]\ns_waitcnt lgkmcnt(0)')
    A('v_lshrrev_b32 v1, 6, v0\ns_lshl_b32 s50, s2, 2\nv_add_u32 v1, s50, v1\nv_lshlrev_b32 v1, 7, v1')
    A('v_and_b32 v2, 63, v0\nv_cmp_eq_u32 vcc, 0, v2\ns_and_saveexec_b64 s[50:51], vcc')
    for i in range(n):
        for k in range(4): A(f'v_mov_b32 v{4 + k}, s{60 + i * 4 + k}')
        A(f'buffer_store_dwordx4 v[4:7], v1, s[56:59], 0 offen offset:{i * 16}')
        A('s_nop 1')

def code_prefetch(A, start, end, va, vd, n, first=0, tag=''):
    A(f's_getpc_b64 s[50:51]')
    A(f'L_pc{tag}_{start}:')
    if start == KNAME: A(f's_sub_u32 s50, s50, L_pc{tag}_{start}-{start}\ns_subb_u32 s51, s51, 0')
    else: A(f's_add_u32 s50, s50, {start}-L_pc{tag}_{start}\ns_addc_u32 s51, s51, 0')
    A(f'v_lshlrev_b32 v{va}, 7, v0')
    if first: A(f'v_add_u32 v{va}, {first * 0x8000}, v{va}')
    for i in range(n):
        A(f'v_min_u32 v{va + 1}, {end}-{start}-4, v{va}')
        A(f'global_load_dword v{vd + i}, v{va + 1}, s[50:51]', tag='pf')
        if i + 1 < n: A(f'v_add_u32 v{va}, 0x8000, v{va}')

DEF_V = []; DEF_S = []
def setup(A):
    A('s_cmp_ge_u32 s2, 256\ns_cbranch_scc1 L_end')
    A(f"""s_bfe_u32 s48, s2, 0x10002
s_mul_i32 s50, s48, 40
s_add_u32 s52, s0, s50
s_addc_u32 s53, s1, 0
s_load_dwordx2 s[{SX}:{SX+1}], s[52:53], 0
s_load_dwordx2 s[{SW_}:{SW_+1}], s[52:53], 24
s_lshr_b32 s51, s2, 7
s_mul_i32 s51, s51, 40
s_add_u32 s54, s0, s51
s_addc_u32 s55, s1, 0
s_load_dwordx2 s[{SK}:{SK+1}], s[52:53], 8
s_load_dwordx2 s[{SV}:{SV+1}], s[52:53], 16
s_load_dwordx2 s[{SWS}:{SWS+1}], s[54:55], 32
s_load_dwordx2 s[{SO}:{SO+1}], s[0:1], 96
s_load_dwordx4 s[92:95], s[0:1], 80""")
    if OPT['stamps']: A('s_memrealtime s[60:61]')
    stamp(A, 0)
    if OPT['pf'] == '1': code_prefetch(A, KNAME, 'L_code_end', 100, 252, 1)
    elif OPT['pf'] == '2':
        A(f'''s_getpc_b64 s[50:51]
L_pcx:
s_sub_u32 s50, s50, L_pcx-{KNAME}
s_subb_u32 s51, s51, 0
s_lshr_b32 s48, s2, 3
s_cmp_ge_u32 s48, 3
s_cbranch_scc1 L_nopf
s_lshl_b32 s48, s48, 15
v_lshlrev_b32 v100, 7, v0
v_add_u32 v100, s48, v100
v_min_u32 v100, L_code_end-{KNAME}-4, v100''')
        A('global_load_dword v252, v100, s[50:51]', tag='pf')
        A('L_nopf:')
    A(f"""s_and_b32 s46, s2, 6
s_lshl_b32 s46, s46, 1
s_lshr_b32 s48, s2, 6
s_add_u32 s46, s46, s48
s_and_b32 s47, s2, 1
s_lshl_b32 s47, s47, 3
s_bfe_u32 s48, s2, 0x30003
s_add_u32 s47, s47, s48
s_and_b32 s49, s46, 7
v_lshrrev_b32 v1, 6, v0
v_and_b32 v2, 63, v0
v_readfirstlane_b32 s{sW}, v1
v_lshrrev_b32 v97, 4, v2
v_lshrrev_b32 v100, 3, v2
v_lshl_add_u32 v100, v1, 6, v100
v_mul_u32_u24 v100, 1152, v100
s_lshl_b32 s{sW4K}, s{sW}, 12
v_and_b32 v101, 7, v2
v_xor_b32 v101, v101, v97
v_lshl_add_u32 v{VOFFX}, v101, 4, v100
v_xor_b32 v101, 4, v101
v_lshl_add_u32 v102, v101, 4, v100
v_add_u32 v{VOFFX + 1}, {8 * 1152 - 1024}, v102
v_add_u32 v{VOFFX + 2}, {2 * (8 * 1152 - 1024)}, v{VOFFX}
v_add_u32 v{VOFFX + 3}, {3 * (8 * 1152 - 1024)}, v102
v_lshrrev_b32 v100, 5, v2
v_and_b32 v101, 31, v2
v_lshl_add_u32 v103, v1, 3, v100
v_lshlrev_b32 v103, 13, v103
v_lshlrev_b32 v104, 2, v100
v_xor_b32 v104, v104, v101
v_lshl_add_u32 v{VOFFW}, v104, 4, v103
v_xor_b32 v104, 128, v{VOFFW}
v_add_u32 v{VOFFW + 1}, {16384 - 1024}, v104
v_add_u32 v{VOFFW + 2}, {2 * (16384 - 1024)}, v{VOFFW}
v_add_u32 v{VOFFW + 3}, {3 * (16384 - 1024)}, v104
s_lshr_b32 s50, s2, 6
s_mul_i32 s50, s50, {OPT['qm'] if OPT['qr'] in '13' else 0}
s_bfe_u32 s51, s2, {'0x30003' if OPT['qr'] != '4' else '0x20004'}
s_mul_i32 s51, s51, {dict([('1', 1), ('2', 1), ('4', 2)]).get(OPT['qr'], 0)}
s_add_u32 s50, s50, s51
s_sub_u32 s51, s50, {9 - int(OPT['nc'])}
s_cselect_b32 s50, s50, s51
s_sub_u32 s51, s50, {9 - int(OPT['nc'])}
s_cselect_b32 s50, s50, s51
s_add_u32 s50, s50, {OPT['nc']}
s_lshl_b32 s{sWb}, s50, 19
s_lshl_b32 s{sXb}, s50, 7
s_mul_i32 s50, s49, 294912
s_lshl_b32 s51, s47, 9
s_mov_b32 s{SX+2}, 294912
s_mov_b32 s{SX+3}, 0x20000
s_sub_u32 s{SW_+2}, {576 * 8192}, s51
s_mov_b32 s{SW_+3}, 0x20000
s_waitcnt lgkmcnt(0)""")
    stamp(A, 1)
    A(f"""s_add_u32 s{SX}, s{SX}, s50
s_addc_u32 s{SX+1}, s{SX+1}, 0
s_add_u32 s{SW_}, s{SW_}, s51
s_addc_u32 s{SW_+1}, s{SW_+1}, 0""")
    A.extend(flat(dma_w(0)) + flat(dma_x(0)) + flat(dma_x(1)) + flat(dma_w(1)))
    A(f"""v_and_b32 v96, 15, v2
v_and_b32 v98, 3, v2
v_bfe_u32 v99, v2, 2, 2
v_lshl_add_u32 v100, v97, 3, v99
v_lshlrev_b32 v101, 6, v99
v_lshl_add_u32 v101, v100, 9, v101
v_lshl_add_u32 v101, v98, 4, v101
v_add_u32 v{WADDR}, {BLK}, v101""")
    for T in range(1, 4): A(f'v_xor_b32 v{WADDR + T}, {T * 64}, v{WADDR}')
    A(f"""v_lshrrev_b32 v100, 1, v96
v_xor_b32 v100, v100, v97
v_lshlrev_b32 v100, 4, v100
v_lshl_add_u32 v100, v96, 7, v100
v_lshl_add_u32 v100, v1, 12, v100
v_add_u32 v{XADDR}, {2 * BLK}, v100
v_xor_b32 v{XADDR + 1}, 64, v{XADDR}
v_add_u32 v{XADDR + 2}, {4 * BLK}, v{XADDR}
v_add_u32 v{XADDR + 3}, {4 * BLK}, v{XADDR + 1}""")
    if OPT['su'] == '2': A.extend(flat(dma_w(2)) + flat(dma_x(2)))
    if OPT['su'] == '0':
        A.extend(flat(dma_x(2)) + flat(dma_w(2)) + flat(dma_w(3)))
        if OPT['pf'] == '1': code_prefetch(A, KNAME, 'L_code_end', 100, 253, 2, first=1, tag='b')
    KVS = f"""s_lshl_b32 s50, s49, 23
s_lshl_b32 s51, s47, 19
s_add_u32 s50, s50, s51
s_add_u32 s{SK}, s{SK}, s50|s_addc_u32 s{SK+1}, s{SK+1}, 0
s_mov_b32 s{SK+2}, 0x80000
s_mov_b32 s{SK+3}, 0x20000
s_add_u32 s{SV}, s{SV}, s50|s_addc_u32 s{SV+1}, s{SV+1}, 0
s_mov_b32 s{SV+2}, 0x80000
s_mov_b32 s{SV+3}, 0x20000"""
    ne = int(OPT['l2e'])
    if ne:
        A(KVS.replace('|', '\n')); KVS = ''
        A(f'v_lshlrev_b32 v100, 7, v2\nv_mul_u32_u24 v101, {ne * 1024}, v1\nv_add_u32 v100, v100, v101\nv_cmp_le_u32 vcc, {ne * 8}, v2\nv_cndmask_b32 v100, v100, -1, vcc')
        A(f's_mov_b32 s50, {8 * 8192}\ns_mov_b32 s51, {6 * 8192}')
        A(cl(f'buffer_load_dword a254, v100, {srd(SK)}, s50 offen {OPT["l2p"]}'), tag='l2')
        A(cl(f'buffer_load_dword a253, v100, {srd(SV)}, s51 offen {OPT["l2p"]}'), tag='l2')
    V = DEF_V; a, b, c, d, l15, g = 92, 93, 94, 95, 61, 62
    V += [f'v_add_u32 v{WADDR + 4 + T}, {6 * BLK}, v{WADDR + T}' for T in range(4)]
    V += f"""v_lshlrev_b32 v{VOFFO}, 4, v2
v_and_b32 v{l15}, 15, v2
v_lshrrev_b32 v{g}, 4, v2
v_lshlrev_b32 v{a}, 11, v1
v_lshl_add_u32 v{a}, v{g}, 8, v{a}
v_lshl_add_u32 v{b}, v1, 3, v{g}""".split('\n')
    for o in range(2):
        V += f"""v_add_u32 v{c}, {4 * o}, v{b}
v_and_b32 v{d}, 15, v{c}
v_xor_b32 v{d}, v{d}, v{l15}
v_lshl_add_u32 v{VOFFK + o}, v{d}, 4, v{a}
v_and_b32 v{d}, 7, v{c}
v_lshlrev_b32 v{d}, 1, v{d}
v_xor_b32 v{d}, v{d}, v{l15}
v_lshl_add_u32 v{VOFFV + o}, v{d}, 4, v{a}""".split('\n')
    V += [f'v_lshlrev_b32 v{a}, 12, v1', f'v_lshl_add_u32 v{a}, v{g}, 8, v{a}']
    for n in range(4):
        V += f"""v_add_u32 v{c}, {4 * n}, v{g}
v_xor_b32 v{d}, v{c}, v{l15}
v_lshl_add_u32 v{VSK + n}, v{d}, 4, v{a}
v_and_b32 v{d}, 7, v{c}
v_lshlrev_b32 v{d}, 1, v{d}
v_xor_b32 v{d}, v{d}, v{l15}
v_lshl_add_u32 v{VSV + n}, v{d}, 4, v{a}""".split('\n')
    V += [f'v_xor_b32 v{a}, v{g}, v{l15}', f'v_lshlrev_b32 v{a}, 4, v{a}', f'v_lshl_add_u32 v{KADDR}, v{l15}, 8, v{a}']
    V += [f'v_xor_b32 v{KADDR + u}, {u * 64}, v{KADDR}' for u in range(1, 4)]
    V += f"""v_lshrrev_b32 v{a}, 2, v2
v_and_b32 v{b}, 7, v{a}
v_lshlrev_b32 v{b}, 5, v{b}
v_lshl_add_u32 v{b}, v{a}, 8, v{b}
v_and_b32 v{c}, 3, v2
v_lshl_add_u32 v{b}, v{c}, 3, v{b}
v_add_u32 v{VADDR}, 0x10000, v{b}
v_mul_u32_u24 v{a}, 384, v{a}
v_lshl_add_u32 v{a}, v{c}, 3, v{a}
v_mul_u32_u24 v{b}, 96, v1
v_add_u32 v{JADDR}, v{a}, v{b}""".split('\n')
    V += [f'v_xor_b32 v{VADDR + T}, {T * 32}, v{VADDR}' for T in range(1, 8)]
    for n in range(3):
        t = VOFFJ + n
        V += f"""v_add_u32 v{d}, {64 * n}, v2
v_mul_u32_u24 v{t}, 2731, v{d}
v_lshrrev_b32 v{t}, 16, v{t}
v_mul_u32_u24 v{CW1}, 24, v{t}
v_sub_u32 v{d}, v{d}, v{CW1}
v_lshl_add_u32 v{t}, v1, 3, v{t}
v_mul_u32_u24 v{t}, 1152, v{t}
v_lshl_add_u32 v{t}, v{d}, 4, v{t}
v_subrev_u32 v{t}, {n * 1024}, v{t}""".split('\n')
    V += [f'v_mov_b32 v{CR}, 0']
    if OPT['cls'] != '0':
        cb = {'1': 's_lshr_b32 s51, s2, 6\ns_xor_b32 s51, s51, s2', '2': 's_mov_b32 s51, s2'}[OPT['cls']]
        JN1 = f'{cb}\ns_bitcmp1_b32 s51, 0|s_cselect_b32 s{SWS+2}, 36864, 0'
        JN2 = f'{cb}\ns_bitcmp1_b32 s51, 0|s_cselect_b32 s{SWD+2}, {3 * 128 * 9216 + 9216}, 0'
    else:
        JN1 = f's_mov_b32 s{SWS+2}, 36864'; JN2 = f's_mov_b32 s{SWD+2}, {3 * 128 * 9216 + 9216}'
    S_ = f"""s_and_b32 s50, s2, 127
s_mul_i32 s50, s50, 36864
s_add_u32 s{SWS}, s{SWS}, s50|s_addc_u32 s{SWS+1}, s{SWS+1}, 0
{JN1}
s_mov_b32 s{SWS+3}, 0x20000
s_lshl_b32 s{sW2K}, s{sW}, 11
{KVS}
s_mov_b32 s{sWS}, s{SO}
s_mov_b32 s{sWS+1}, s{SO+1}
s_mov_b32 s{sOUT}, s92
s_mov_b32 s{sOUT+1}, s93
s_lshr_b32 s50, s2, 7
s_lshl_b32 s50, s50, 9
s_and_b32 s51, s2, 64
s_add_u32 s50, s50, s51
s_bfe_u32 s51, s2, 0x10002
s_lshl_b32 s51, s51, 5
s_add_u32 s50, s50, s51
s_bfe_u32 s51, s2, 0x30003
s_lshl_b32 s51, s51, 2
s_add_u32 s50, s50, s51
s_and_b32 s51, s2, 3
s_add_u32 s50, s50, s51
s_mul_i32 s50, s50, 9216
s_add_u32 s50, s50, {WS_WO}
s_add_u32 s{SWD}, s{SO}, s50|s_addc_u32 s{SWD+1}, s{SO+1}, 0
{JN2}
s_mov_b32 s{SWD+3}, 0x20000
s_lshl_b32 s50, s2, 7
s_lshl_b32 s51, s{sW}, 2
s_add_u32 s50, s50, s51
s_add_u32 s50, s50, {WS_FL}
s_add_u32 s{SFL}, s{SO}, s50|s_addc_u32 s{SFL+1}, s{SO+1}, 0
s_mov_b32 s{SFL+2}, 68
s_mov_b32 s{SFL+3}, 0x20000""".split('\n')
    if OPT['stamps']:
        S_ += [f's_add_u32 s56, s{SO}, {WS_STAMP}|s_addc_u32 s57, s{SO+1}, 0', 's_mov_b32 s58, 0x100000', 's_mov_b32 s59, 0x20000']
    S_ += f"""s_lshl_b32 s50, s46, 2
s_add_u32 s50, s50, s{sW}
s_lshl_b32 s50, s50, 19
s_lshl_b32 s51, s47, 15
s_add_u32 s50, s50, s51
s_add_u32 s{SO}, s{SO}, s50|s_addc_u32 s{SO+1}, s{SO+1}, 0
s_mov_b32 s{SO+2}, 32768
s_mov_b32 s{SO+3}, 0x20000
s_mov_b32 s{sSC}, {f2i(SCALE):#x}
s_mov_b32 s{sTHR}, {f2i(2.0 ** 24):#x}
s_mov_b32 s{sLOW}, {f2i(2.0 ** (float(OPT['m0']) - 12)):#x}
s_mov_b32 s{sOo}, 0
s_mov_b32 s{sDBG}, s94
s_mov_b32 s{sDBG+1}, s95
s_mov_b32 s{sKo}, {8 * 8192}
s_mov_b32 s{sVo}, {6 * 8192}
s_mov_b32 s{sCnt}, 3
s_mov_b32 s{sHead}, 0""".split('\n')
    DEF_S.extend(x for x in S_ if x)
    if OPT['jo'] in '67' or (OPT['jo'] == '8' and OPT['j8'] == '0'):
        A.extend(DEF_V); DEF_V.clear()
        for x in DEF_S: A.extend(x.split('|'))
        DEF_S.clear()

def x_reads(pc):
    c = pc >> 1; blk = xblock(pc)
    return [Ins(f'ds_read_b128 v[{XF(2 * c + ks, 2 * (pc & 1) + qq)}:{XF(2 * c + ks, 2 * (pc & 1) + qq) + 3}], v{XADDR + ks + (2 if blk == 6 else 0)} offset:{(0 if blk == 6 else (blk - 2) * BLK) + qq * 2048}', f'rX{pc}')
            for ks in range(2) for qq in range(2)]
def w_read(t, h, T, dst):
    blk = wblock(t)
    ad = WADDR + (T >> 1) if blk <= 4 else WADDR + 4 + (T >> 1)
    off = (blk - 1 if blk <= 4 else blk - 7) * BLK + h * 256 + (T & 1) * 8
    d = int(dst[1:])
    return [Ins(f'ds_read_b64_tr_b16 {dst[0]}[{d + 2 * s}:{d + 2 * s + 1}], v{ad} offset:{off + s * 2048}', f'rW{t}') for s in range(2)]
def w_reads(t):
    out = []
    for f in range(16): out += w_read(t, f >> 3, f & 7, f'a{WF((16 * t + f) % NWS)}')
    return out
UH = ['a160', 'a192', 'a160', 'a192', 'a0', 'a32', 'a0', 'a32']
def uw(n, k, tt): return f'{UH[n][0]}{int(UH[n][1:]) + (k * 2 + tt) * 4}'
def unit_order(n):
    if not OPT['cqb']: return [(k, tt) for k in range(4) for tt in range(2)]
    if n == 0: return [(0, 0), (1, 0), (0, 1), (1, 1), (2, 0), (3, 0), (2, 1), (3, 1)]
    return [(k, tt) for tt in range(2) for k in range(4)]
def unit_mf(n):
    if not OPT['cqb']: return [(k, tt, qt) for k in range(4) for tt in range(2) for qt in range(4)]
    if n == 0: return [(2 * hf + k, tt, qt) for hf in range(2) for tt in range(2) for qt in range(4) for k in zig(2, qt & 1, 'q')]
    return [(k, tt, qt) for tt in range(2) for qt in range(4) for k in zig(4, qt & 1, 'q')]
def unit_reads(n):
    h, u = n >> 2, n & 3
    out = []
    for k, tt in unit_order(n): out += w_read(14 + k, h, 2 * u + tt, uw(n, k, tt))
    return out
def conv(n):
    h, u = n >> 2, n & 3
    V = []; pend = []
    for tt in range(2):
        for qt in range(4):
            acc = QACC(h, 2 * u + tt, qt)
            if h == 1: b = int(acc[1:]); rd = []
            else:
                b = 84 + ((n * 8 + tt * 4 + qt) % 3) * 4
                rd = [f'v_accvgpr_read_b32 v{b + r}, a{int(acc[1:]) + r}' for r in range(4)]
            mu = [f'v_mul_f32 v{b + r}, s{sSC}, v{b + r}' for r in range(4)]
            cv = [f'v_cvt_pk_bf16_f32 v{b}, v{b}, v{b + 1}', f'v_cvt_pk_bf16_f32 v{b + 1}, v{b + 2}, v{b + 3}']
            V += [Ins(x) for x in rd + mu + pend + cv]
            pend = [f'v_accvgpr_write_b32 a{Q(h, qt, u) + 2 * tt + r}, v{b + r}' for r in range(2)]
    V += [Ins(x) for x in pend]
    return V, [], V

def q_phase(A):
    stamp(A, 2)
    A('WAITVM X0+X1+W0+W1\ns_barrier')
    stamp(A, 3)
    def WP(c, f, ks): return 128 + ((16 * c + f) % 12) * 8 + ks * 4
    def pair_reads(c, f): return w_read(2 * c, f >> 3, f & 7, f'a{WP(c, f, 0)}') + w_read(2 * c + 1, f >> 3, f & 7, f'a{WP(c, f, 1)}')
    def JR(i): return f'a{224 + 4 * i}' if i < 8 else 'v92'
    def jstore(i):
        r, n = divmod(i, 3)
        pre = [f's_add_u32 s{sT0}, s{sW}, {4 * r}', f's_mul_i32 s{sMODE}, s{sT0}, 43', f's_lshr_b32 s{sMODE}, s{sMODE}, 7',
               f's_mul_i32 s{sMODE}, s{sMODE}, {128 * 9216 - 9216}', f's_mul_i32 s{sT0}, s{sT0}, 3072', f's_add_u32 s{sJ}, s{sT0}, s{sMODE}'] if n == 0 else []
        return [(pre, Ins(cl(f'buffer_store_dwordx4 {rng(JR(i), 4)}, v{VOFFO}, {srd(SWD)}, s{sJ} offen offset:{n * 1024} {OPT["st"]}'), 'Jst'), [])]
    def jdma(r):
        return [([f's_mov_b32 s{sWe}, {r * 384}', f's_mul_i32 m0, s{sW}, 3072'] if n == 0 else [],
                 Ins(f'buffer_load_dwordx4 v{VOFFJ + n}, {srd(SWS)}, s{sWe} offen offset:{n * 1024} nt lds', f'J{r}'), []) for n in range(3)]
    xr = x_reads(0) + x_reads(1)
    A.extend(xr[:1] + xr[2:3] + pair_reads(0, 0) + xr[1:2] + xr[3:] + pair_reads(0, 1) + pair_reads(0, 2))
    BG = 24
    N = 14 * 64
    G = Gaps(N)
    mf = []; ref = []
    PR = {(c, f): pair_reads(c, f) for c in range(7) for f in range(16)}
    XRD = {pc: x_reads(pc) for pc in range(2, 16)}
    for c in range(7):
        if c: ref += XRD[2 * c] + XRD[2 * c + 1]
        for f in range(16):
            if c or f > 2: ref += PR[c, f]
            for qi, qt in enumerate(zig(4, f & 1, 'q')):
                acc = QACC(f >> 3, f & 7, qt)
                for i, ks in enumerate(zig(2, qi & 1, 'q')):
                    m = Ins(mfma(acc, f'a{WP(c, f, ks)}', f'v{XF(2 * c + ks, qt)}', acc if (c or i) else '0')); mf.append(m); ref.append(m)
    U0 = unit_reads(0)[:8]
    ref += XRD[14] + XRD[15] + U0
    for t in range(14):
        o = 64 * t
        groups = []
        if t == 0: groups = [(dma_x(3), [5, 8, 11, 14]), (dma_x(4), [18, 22, 26, 30]), (dma_w(4), [34, 38, 42, 46]), (dma_x(5), [51, 54, 57, 60])]
        elif t == 1: groups = [(dma_w(5), [2, 7, 12, 17]), (dma_x(6), [28, 33, 38, 43]), (dma_w(6), [48, 52, 56, 60])]
        elif t == 2: groups = [(jdma(0), [2, 7, 12]), (dma_w(7), [18, 24, 30, 36]), (dma_x(7), [42, 48, 54, 60])]
        elif t in (5, 9): groups = [(dma_x(t + 5), [10, 14, 18, 22]), (jdma(t // 4), [28, 33, 38]), (dma_w(t + 5), [44, 50, 55, 60])]
        elif t == 13: groups = [(dma_kk(0), [28, 33, 38, 43]), (dma_vv(0), [48, 52, 56, 60])]
        elif t & 1: groups = [(dma_x(t + 5), [10, 16, 22, 29]), (dma_w(t + 5), [36, 44, 52, 60])]
        else: groups = [(dma_w(t + 5), [2, 10, 18, 26]), (dma_x(t + 5), [34, 42, 50, 58])]
        for gr, pos in groups:
            G.place_dma(gr, [o + x for x in pos])
            if gr[0][1].tag == f'X{t + 5}': G.sc[o + pos[0] - 3].append(f'WAITLG rX{t + 2}')
        for i, g in {4: [(0, 31)], 5: [(1, 5)], 6: [(2, 30)], 8: [(3, 31)], 9: [(4, 5)], 10: [(5, 30)], 12: [(6, 15), (7, 38), (8, 62)]}.get(t, []):
            G.place_dma(jstore(i), [o + g])
        if t == 12:
            G.v[o + 44].append(f'v_mov_b32 v{VPA}, 0')
            G.mem[o + 46].append(Ins(cl(f'buffer_store_dword v{VPA}, v{VOFFO}, {srd(SFL)}, 0 offen {OPT["st"]}'), 'Fz'))
        G.sc[o].append(f'WAITVM X{t + 2}')
        if t == 0: G.sc[2].append('WAITLG rX1')
        if t & 1:
            tags = f'W{t + 1}+W{t + 2}' + {3: '+J0', 7: '+J1', 11: '+J2'}.get(t, '')
            G.sc[o + BG] += [f'WAITVM {tags} lg0', 's_barrier']
        if t == 13: G.sc[o + 62] += ['WAITVM W16+W17+X16+X17 lg0', 's_barrier']
    def put(ins, g, lim=None):
        while G.mem[g] or ((g >> 6) & 1 and BG - 6 <= (g & 63) < BG): g += 1
        assert lim is None or g <= lim, (ins.text, g, lim)
        G.mem[g].append(ins); return g
    for t in range(14):
        g = 64 * t
        for r in XRD[t + 2]: g = put(r, g)
    g = 0
    for c in range(7):
        for f in range(16):
            if c == 0 and f < 3: continue
            P_ = 16 * c + f
            for i, r in enumerate(PR[c, f]):
                g = put(r, max(g, 8 * (P_ - 11), 128 * c - 64 + BG + (f * 4 + i) * 3 // 2 if c else 0), lim=min(8 * P_ - 5, 128 * c + 64 + BG - 7))
    for t in (3, 7, 11):
        g = 64 * t + BG + 1
        for n in range(3):
            d = JR((t // 4) * 3 + n)
            for sx in range(2): g = put(Ins(f'ds_read_b64_tr_b16 {d[0]}[{int(d[1:]) + 2 * sx}:{int(d[1:]) + 2 * sx + 1}], v{JADDR} offset:{n * 32 + sx * 16 * 384}'), g, lim=64 * (t + 1) + 8)
    g = 64 * 13 + BG
    for r in U0: g = put(r, g, lim=64 * 13 + 55)
    for i, x in enumerate(DEF_V[:56]): G.v[(i * 62) // 56].append(x)
    for i, x in enumerate(DEF_V[56:]): G.v[64 + (i * 62) // (len(DEF_V) - 56)].append(x)
    g = 30
    while DEF_S:
        if not G.sc[g] and g % 8 not in (6, 7): G.sc[g] += DEF_S.pop(0).split('|')
        g += 1
    assert g < 64 * 4, g
    if OPT['qtl']:
        for t in range(14): G.v[64 * t + 3].append('s_memtime s[98:99]'); G.v[64 * t + 40].append(f's_mov_b32 s{64 + t}, s98')
    out = [y for x in G.weave(mf) for y in ([x] if isinstance(x, Ins) else [Ins(z) for z in x.split('\n')])]
    check_order(ref, out, 'Q')
    A.extend(out)
    stamp(A, 4)
    gsu = f"""s_and_b32 s50, s2, 6
s_lshl_b32 s50, s50, 3
s_lshr_b32 s51, s2, 5
s_lshl_b32 s51, s51, 1
s_add_u32 s50, s50, s51
s_lshr_b32 s51, s{sW}, 1
s_add_u32 s50, s50, s51
s_lshl_b32 s50, s50, 19
s_and_b32 s51, s2, 1
s_lshl_b32 s51, s51, 18
s_add_u32 s50, s50, s51
s_and_b32 s51, s{sW}, 1
s_lshl_b32 s51, s51, 11
s_add_u32 s50, s50, s51
s_add_u32 s{SGO}, s{sWS}, s50|s_addc_u32 s{SGO+1}, s{sWS+1}, 0
s_mov_b32 s{SGO+2}, {262144 - 2048}
s_and_b32 s50, s2, 4
s_bfe_u32 s51, s2, 0x20003
s_add_u32 s50, s50, s51
s_lshl_b32 s50, s50, 1
s_and_b32 s51, s2, 1
s_add_u32 s50, s50, s51
s_mul_i32 s50, s50, {64 * 9216}
s_add_u32 s50, s50, {WS_WO}
s_add_u32 s{SGW}, s{sWS}, s50|s_addc_u32 s{SGW+1}, s{sWS+1}, 0
s_mov_b32 s{SGW+2}, {64 * 9216}""".split('\n')
    NG = 288
    G = Gaps(NG + 8)
    mf = []; ref = []
    UR = [unit_reads(n) for n in range(8)]
    XR = x_reads(16) + x_reads(17)
    K0 = k_reads(0); K1 = k_reads(1)
    CV_ = [conv(n) for n in range(8)]
    ref += XR
    for n in range(8):
        h, u = n >> 2, n & 3
        m = [Ins(mfma(QACC(h, 2 * u + tt, qt), uw(n, k, tt), f'v{XF(14 + k, qt)}', QACC(h, 2 * u + tt, qt))) for k, tt, qt in unit_mf(n)]
        mf += m
        ref += (UR[n][8:] if n == 0 else UR[n]) + m + CV_[n][2]
    m = [Ins(x) for x in qk_mfmas(0)]
    mf += m; ref += K0 + m + K1
    if OPT['jo'] == '8':
        for i, jobs in enumerate([dma_vv(1), dma_kk(2), dma_vv(2)]):
            G.place_dma(jobs, [34 + 16 * (4 * i + x) for x in range(4)])
        kv = {1: 34}
    elif OPT['jo'] in '567':
        for i, jobs in enumerate([dma_kk(1), dma_vv(1), dma_kk(2), dma_vv(2)]):
            G.place_dma(jobs, [20 + 13 * (4 * i + x) for x in range(4)])
        kv = {1: 20 + 13 * 4}
    elif OPT['jo'] == '4':
        k0 = int(OPT['kv0'])
        for i, jobs in enumerate([dma_kk(0), dma_vv(0), dma_kk(1), dma_vv(1), dma_kk(2)]):
            st_ = (215 - k0) // 20
            G.place_dma(jobs, [k0 + st_ * (4 * i + x) for x in range(4)])
        kv = {1: k0 + st_ * 12}
    else:
        JS = [jstore(i) for i in range(9)]
        ref = [x[0][1] for x in JS] + ref
        order = [6, 8, 7, 0, 1, 2, 3, 4, 5]
        jp = [17, 24, 48, 76, 100, 124, 152, 176, 200]; fz = 220; kv = {0: 34, 1: 82, 2: 130, 3: 182}
        for i, g in zip(order, jp): G.place_dma(JS[i], [g])
        G.v[fz - 2].append(f'v_mov_b32 v{VPA}, 0')
        G.mem[fz].append(Ins(cl(f'buffer_store_dword v{VPA}, v{VOFFO}, {srd(SFL)}, 0 offen {OPT["st"]}'), 'Fz'))
        for i, jobs in enumerate([dma_kk(0), dma_vv(1), dma_kk(2), dma_vv(2)]):
            G.place_dma(jobs, [kv[i] + 11 * x for x in range(4)])
    G.place_dma(dma_kk(3), [250, 258, 266, 274])
    G.sc[kv[1] - 3].append('WAITLG rX16+rX17')
    gi = 260
    for x in gsu:
        while G.sc[gi]: gi += 1
        G.sc[gi] += x.split('|')
    BAR = 32 * 7 + 9
    G.sc[BAR] += ['WAITVM KK0 lg0', 's_barrier']
    def put(ins, g, lim=None):
        while G.mem[g] or (BAR - 5 <= g < BAR): g += 1
        assert lim is None or g <= lim, (ins.text, g, lim)
        G.mem[g].append(ins); return g
    cur = 0
    for n in range(8):
        V, D, _ = CV_[n]
        g0 = 32 * (n + 1) + 1; span = 30
        vp = [g0 + (i * span) // len(V) for i in range(len(V))]
        for x, g in zip(V, vp): G.v[g].append(x)
        for i, d in D: cur = put(d, max(cur, vp[i] + 1))
    g = 0
    for r in ((XR[:4] + UR[0][8:12] + XR[4:] + UR[0][12:]) if OPT['cqb'] else (XR[:2] + XR[4:6] + UR[0][8:12] + XR[2:4] + XR[6:] + UR[0][12:])): g = put(r, g)
    for n in range(1, 8):
        for i, r in enumerate(UR[n]):
            g = put(r, max(g, 32 * (n - 1) + (i * 3) // 2), lim=min((32 * n + 16 * (i // 8) - 5 + (i % 8) // 2) if OPT['cqb'] else 32 * n + 2 * i - 5, BAR - 6))
    g = BAR
    for i, r in enumerate(K0): g = put(r, max(g, BAR + 2 * i), lim=(256 + 16 * (i // 4) - 5 + i % 4) if OPT['cqk'] else 256 + 4 * i - 6)
    for i, r in enumerate(K1): g = put(r, max(g, (256 + 16 * (i // 4) + 16 + i % 4) if OPT['cqk'] else 256 + 4 * i + 4))
    zero = [Ins(x) for x in negm_init()]
    ones = [Ins(x) for x in f'v_and_b32 v{ONES}, 3, v2|v_cmp_eq_u32 vcc, 0, v{ONES}|v_mov_b32 v{ONES + 1}, 0x3f803f80|v_cndmask_b32 v{ONES}, 0, v{ONES + 1}, vcc|v_mov_b32 v{ONES + 1}, v{ONES}|v_mov_b64 v[{ONES + 2}:{ONES + 3}], v[{ONES}:{ONES + 1}]'.split('|')]
    sm0 = [Ins(x) for x in sm_dense(0, 0, 68)]
    if not INL():
        k = ref.index(m[0]); ref[k:k] = zero
        G.v[255] += zero; zero = []
    ref += ones + zero + sm0
    NH = int(OPT['nh'])
    for i, x in enumerate(sm0[:NH]): G.v[264 + (i * 23) // NH if i < 5 else 280 + ((i - 5) * 8) // max(NH - 5, 1)].append(x)
    G.v[290] += ones + zero[:4] + sm0[NH:] + zero[4:]
    if OPT['stamps'] and not OPT['qtl']: G.sc[257].append('s_memtime s[74:75]')
    if OPT['qtl']:
        for n in range(9): G.v[32 * n + 3].append('s_memtime s[98:99]'); G.v[32 * n + 25].append(f's_mov_b32 s{78 + n}, s98')
    out = [I(x) for x in G.weave(mf)]
    check_order(ref, out, 'QB')
    A.extend(out)

def seg_name(j):
    if j == 0 or (j == 32 and not OPT['w1']): return 's0'
    if j == 32: return 's32'
    if j == 31: return 'sp31'
    if j == 63: return 'fin31'
    if j >= 56: return f'p{j}'
    return f'r{j % 8}'

def gen():
    A = Prog()
    setup(A)
    q_phase(A)
    stamp(A, 6)
    if OPT['tl']: A('s_mov_b32 s97, 0')
    def tagsof(which, t):
        if which == 'V' and t < 6: return f'VV{t // 2}'
        if which == 'K' and t < 8: return f'KK{t // 2}'
        return f'{which}{t}'
    GA = [4, 5, 6]
    def WB(c, n, u): return 128 + ((9 * c + n) % 4) * 16 + u * 4
    def GACC(n, mm): i = n * 2 + mm; return 64 + i * 4 if i < 16 else 200 + (i - 16) * 4
    def OB(s, mm): return 128 + ((s + 8) % 16) * 8 + mm * 4
    def g_wreads(c, n):
        out = []
        for u in range(4):
            ad = (c % 4) * 36864 + u * 9216 + n * 1024
            out.append(Ins(f'ds_read_b128 v[{WB(c, n, u)}:{WB(c, n, u) + 3}], v{GA[ad >> 16]} offset:{ad & 0xffff}', f'rG{c}'))
        return out
    def g_oloads(s):
        gen_, i, u = s >> 5, (s >> 2) & 7, s & 3
        off, sr = ((2 * i + gen_) * 16384 + u * 4096, SGO) if s < 64 else (i * 32768 + u * 4096, SG2O)
        return [([f's_mov_b32 s{sWe}, {off}'] if mm == 0 else [],
                 Ins(cl(f'buffer_load_dwordx4 a[{OB(s, mm)}:{OB(s, mm) + 3}], v{VSK_[mm]}, {srd(sr)}, s{sWe} offen {OPT["g_o"]}'), f'GO{s}'), []) for mm in range(2)]
    def g_w8(a, tag):
        return [([f's_mov_b32 s{sKo}, {a}', f's_add_u32 m0, s{sW2K}, {a}'] if o == 0 else [],
                 Ins(cl(f'buffer_load_dwordx4 v{VOFFK}, {srd(SGW)}, s{sKo} offen offset:{o * 1024} {OPT["g_w"]} lds'), tag), []) for o in range(2)]
    def g_wchunk(c):
        out = []
        for n in range(9):
            pre = [f's_add_u32 s{sKo}, s{sXo}, {(c % 16) * 36864 + (n // 4) * 4096}', f's_add_u32 m0, s{sXo}, {(c % 4) * 36864 + (n // 4) * 4096}'] if n % 4 == 0 else []
            out.append((pre, Ins(cl(f'buffer_load_dwordx4 v{VOFFO}, {srd(SGW if c < 16 else SG2W)}, s{sKo} offen offset:{(n % 4) * 1024} {OPT["g_w"]} lds'), f'GW{c}'), []))
        return out
    poll1 = f'buffer_load_dword v{VPOLL}, v{VPA}, {srd(SFP)}, 0 offen sc1'
    poll2 = f'buffer_load_dword v{VPOLL}, v{VPA}, {srd(SFP)}, 0 offen offset:16 sc1'
    pollc = f'buffer_load_dword v{VPOLL}, v{VPA}, {srd(SWS)}, 0 offen sc1'
    polld = f'buffer_load_dword v{VPOLL}, v{VPP}, {srd(SFP)}, 0 offen offset:64 sc1'
    ne1 = f'v_cmp_ne_u32 vcc, 1, v{VPOLL}'
    qcopy = [f'v_accvgpr_mov_b32 a{128 + i}, a{192 + i}' for i in range(64)]

    POST = []
    def fill(G, j):
        jj = j & 31; nm = seg_name(j); p = j & 1
        if j % 2 == 0:
            tags = [tagsof('V', j), tagsof('V', j + 1), tagsof('K', j + 2), tagsof('K', j + 3)] + (['Jst', 'Fz'] if j == 6 else [])
            G.sc[0] += [f'WAITVM {"+".join(tags)} lg0', 's_barrier']
        if j < 63:
            for pos, x in softmax_stream(j):
                if pos >= NG: G.v[pos - NG].append(x)
            for pos, x in softmax_stream(j + 1):
                if pos < NG: G.v[pos].append(x)
        if jj == 0:
            G.v[20].append(f'v_max_f32 v{CT}, v{Lr(p, 0)}, v{Lr(p, 1)}')
            G.v[22].append(f'v_min_f32 v{VPG}, v{Lr(p, 0)}, v{Lr(p, 1)}')
            G.v[29] += [f'v_max3_f32 v{CT}, v{CT}, v{Lr(p, 2)}, v{Lr(p, 3)}', f'v_min3_f32 v{VPG}, v{VPG}, v{Lr(p, 2)}, v{Lr(p, 3)}']
            G.v[30] += [f'v_cmp_gt_f32 s[50:51], s{sLOW}, v{VPG}']
            G.v[31] += [f'v_cmp_lt_f32 vcc, s{sTHR}, v{CT}']
            G.sc[32] += ['s_or_b64 s[50:51], s[50:51], vcc', f's_cbranch_scc1 L_st_{nm}', f'L_bk_{nm}:']
        else:
            G.v[20].append(f'v_max_f32 v{CT}, v{Lr(p, 0)}, v{Lr(p, 1)}')
            G.v[29].append(f'v_max3_f32 v{CT}, v{CT}, v{Lr(p, 2)}, v{Lr(p, 3)}')
            G.v[31].append(f'v_cmp_lt_f32 vcc, s{sTHR}, v{CT}')
            G.sc[32] += [f's_cbranch_vccnz L_st_{nm}', f'L_bk_{nm}:']
        if j < 63:
            for r, g in zip(v_reads(j), [1, 3, 5, 7, 9, 13, 15, 17, 19, 21, 22, 23, 25, 33, 35, 37]): G.mem[g].append(r)
            if j + 2 < 64:
                for r, g in zip(k_reads(j + 2), [39, 41, 45, 47, 49, 51, 53, 55]): G.mem[g].append(r)
            if j < 56: G.place_dma(dma_kv('K', j + 8) + dma_kv('V', j + 6), [11, 27, 43, 59])
            else:
                W8 = lambda i: g_w8(i * 8192, f'P{i}')
                jobs = {56: dma_kv('V', 62) + W8(0) + W8(16) + g_oloads(0), 57: dma_kv('V', 63) + W8(1) + W8(17) + g_oloads(1),
                        58: W8(2) + g_oloads(2) + W8(8) + g_oloads(3), 59: W8(3) + g_oloads(4) + W8(9) + g_oloads(5),
                        60: W8(4) + g_oloads(6) + W8(10) + g_oloads(7), 61: W8(5) + W8(11),
                        62: W8(6) + W8(7) + W8(12) + W8(13) + g_oloads(8) + g_oloads(9)}[j]
                pos = {8: [4, 11, 20, 27, 43, 57, 63, 67], 4: [11, 27, 43, 59], 12: [4, 11, 20, 27, 39, 43, 47, 51, 55, 59, 63, 67]}[len(jobs)]
                G.place_dma(jobs, pos)
                G.v[3].append(f'v_mov_b32 v{VPG}, {j - 55}')
                G.mem[31].append(Ins(cl(f'buffer_store_dword v{VPG}, v{VL4}, {srd(SFL)}, 0 offen offset:48 {OPT["st"]}'), 'PG'))
                if j == 61:
                    G.v[35] += [f'v_mad_u32_u24 v{VPR}, v{VPR}, {OPT["bm"]}, {OPT["ba"]}']
                    G.v[39] += [f'v_lshrrev_b32 v{VPR}, 3, v{VPR}']
                    G.v[47] += [f'v_min_u32 v{VPR}, {OPT["bmax"]}, v{VPR}']
                    G.v[51] += [f'v_add_u32 v{VPG}, 1, v{VPR}']
                    G.v[55] += [f'v_lshlrev_b32 v{VPOLL}, 2, v1']
                    G.v[57] += [f'v_add_u32 v{VPOLL}, {160 * 1024 - 16}, v{VPOLL}']
                    G.mem[63].append(Ins(cl(f'buffer_store_dword v{VPG}, v{VL4}, {srd(SFL)}, 0 offen offset:64 {OPT["st"]}'), 'DG'))
                    G.mem[61].append(Ins(f'ds_write_b32 v{VPOLL}, v{VPR}'))
            if j == 31:
                G.pack(qcopy, 1, 31)
                NB = int(OPT['nb'])
                prep, un = epilogue(False, 160); _, up = epilogue(True, 160)
                units = un[:NB] + up[NB:]
                seq = []; cut = None
                for k in range(16):
                    if k == NB: cut = len(seq)
                    seq += units[k][0]
                    if k: seq += units[k - 1][3]
                    seq += units[k][1] + units[k][2]
                seq += units[15][3] + negm_init()
                G.pack(prep, 33, 41)
                pos = G.pack(seq[:cut], 42, NG)
                for x, g in zip(seq[:cut], pos):
                    x = I(x)
                    if x.mn == 'v_accvgpr_read_b32':
                        a = [r for r in x.rd if r[0] == 'a'][0][1]
                        assert g >= pvi(a // 4) + 2, (x.text, g)
                POST.extend(seq[cut:])
        if nm == 'r6': G.sc[66].append(f's_sub_u32 s{sCnt}, s{sCnt}, 1')
        if nm == 'r7': G.sc[66].append(f's_cmp_lt_u32 s{sKo}, 0x50000')

    j = 0
    while j < 64:
        nm = seg_name(j)
        A(f'.mark {nm}')
        G = Gaps(NG)
        fill(G, j)
        if j == 31 and not INL(): A.extend(negm_init())
        if j == 63:
            P0 = v_reads(j)
            dn = sm_dense(63, NG, 999)
            ol = flat(g_oloads(10) + g_oloads(11) + g_oloads(12))
            k = 0
            for i, x in enumerate(dn):
                P0.append(x)
                tgt = len(ol) * (i + 1) // len(dn)
                while k < tgt: P0.append(ol[k]); k += 1
            G.v[0] += P0
            G.v[18] += [f'v_mov_b32 v{GA[0]}, v{VOFFO}', f'v_add_u32 v{GA[1]}, 0x10000, v{VOFFO}', f'v_add_u32 v{GA[2]}, 0x20000, v{VOFFO}', f's_mul_i32 s{sXo}, s{sW}, 9216']
            G.sc[34] += ['WAITVM P4 lg0', 's_barrier']
            for r, g in zip(g_wreads(0, 0) + g_wreads(0, 1) + g_wreads(0, 2), [35, 38, 41, 43, 47, 50, 52, 55, 58, 60, 64, 66]): G.mem[g].append(r)
            G.v[18] += [f'v_mov_b32 v{VPG}, {160 * 1024 - 16}']
            G.mem[36].append(Ins(f'ds_read_b32 v{VPR}, v{VPG}'))
            G.place_dma(g_w8(14 * 8192, 'P14') + g_w8(15 * 8192, 'P15') + g_oloads(13) + g_oloads(14), [37, 40, 45, 49, 54, 57, 61, 65])
            prep2, units2 = epilogue(int(OPT['epg']) == 0, EP + 8)
            epi, _, _ = epi_flat(units2)
            G.pack(prep2, 34, 40)
            ne = 0
            if int(OPT['epg']):
                ne = 49
                G.pack(epi[:ne], 42, NG)
            epi = epi[ne:]
        A.extend(G.weave(step_mfmas(j)))
        def atomic():
            A('WAITVM Jst+Fz')
            A(f's_mov_b32 s{SWS}, s{sDBG}\ns_mov_b32 s{SWS + 1}, s{sDBG + 1}\ns_mov_b32 s{SWS + 2}, 4\nv_mov_b32 v{VFLAG}, 1\nv_lshlrev_b32 v{VPA}, 2, v0\nv_lshlrev_b32 v{VL4}, 7, v2')
            A(f'buffer_atomic_add v{VFLAG}, v{VPA}, {srd(SWS)}, 0 offen sc1', tag='Cwo')
        if j == 7:
            A('.mark b7')
            if OPT['atom'] == '0': atomic()
        if j == 39:
            A('.mark b39')
            A('WAITVM Ost')
            A(cl(f'buffer_store_dword v{VFLAG}, v{VL4}, {srd(SFL)}, 0 offen {OPT["st"]}'), tag='F1')
            if OPT['atom'] == '1': A(pollc, tag='Pc')
        if j == 47:
            A('.mark b47')
            A(f's_movk_i32 s{sMODE}, 256')
            A.extend(spin_check('c', pollc, f'v_cmp_gt_u32 vcc, s{sMODE}, v{VPOLL}'))
            A(f"""s_andn2_b32 s50, s2, 0x38
s_lshl_b32 s50, s50, 7
s_bfe_u32 s51, s2, 0x10005
s_lshl_b32 s51, s51, 3
s_add_u32 s50, s50, s51
s_lshr_b32 s51, s{sW}, 1
s_lshl_b32 s51, s51, 2
s_add_u32 s50, s50, s51
s_add_u32 s{SFP}, s{sWS}, {WS_FL}
s_addc_u32 s{SFP+1}, s{sWS+1}, 0
s_mov_b32 s{SFP+2}, 32768
v_and_b32 v{VPA}, 7, v0
v_lshlrev_b32 v{VPA}, 10, v{VPA}
v_add_u32 v{VPA}, s50, v{VPA}
s_xor_b32 s50, s2, 1
s_lshl_b32 s50, s50, 7
s_lshl_b32 s{sW4}, s{sW}, 2
v_mov_b32 v{VPP}, s50""")
            A(poll1, tag='PL1')
            code_prefetch(A, 'L_fin', 'L_code_end', 21, 23, 1); code_prefetch(A, 'L_fin', 'L_code_end', 21, 25, 1, first=1, tag='c')
        if j == 55:
            A('.mark b55')
            A.extend(spin_check('f1', poll1, ne1))
            A(f'v_add_u32 v{VOFFK}, s{sW2K}, v{VOFFO}\ns_and_b32 s50, s2, 1\ns_lshl_b32 s50, s50, 10\nv_add_u32 v{VSK_[1]}, s50, v{VOFFO}\nv_xor_b32 v{VSK_[0]}, 0x400, v{VSK_[1]}')
            A(f'buffer_load_dword v{VPR}, v{VPP}, {srd(SFP)}, 0 offen offset:48 sc1', tag='PLP')
        if j == 31:
            A('.mark epi')
            stamp(A, 7)
            if OPT['atom'] == '1': atomic()
            A(f'v_mov_b32 v{VPA}, 0')
            if OPT['atom'] == '0': A(pollc, tag='Pc')
            A.extend(POST)
            A(f's_mov_b32 s{sHead}, 1\ns_mov_b32 s{sCnt}, 3')
            stamp(A, 8)
        j += 1
    A('.mark tail')
    stamp(A, 9)
    EPG = int(OPT['epg'])
    ek = 0
    G2 = int(OPT['g2s']); LO = int(OPT['lo']); LW = int(OPT['lw']); S0 = int(OPT['gs0']); S1 = int(OPT['gs1'])
    items = []
    NS = 64 + 4 * int(OPT['bmax']); G3 = 56
    for x in range(15, NS):
        for jb in g_oloads(x): items.append(((x & ~3) - LO - (3 - (x & 3)) * 0.9, max((x & ~3) - 12, G2 + 1 if x >= 32 else 0, G3 + 1 if x >= 64 else 0), jb))
    for c in range(4, NS // 4):
        for n, jb in enumerate(g_wchunk(c)): items.append((4 * c - 1 - LW - (8 - n) * 4 / 9.0, 4 * (c - 4) + 3, jb))
    items.sort(key=lambda z: z[0])
    sched = [[] for _ in range(NS)]
    cur = 0
    for i, (dl, rl, jb) in enumerate(items):
        k = int(S0 + i * (S1 - S0 + 1) / 206)
        k = max(min(k, int(dl)), rl, cur)
        while len(sched[k]) >= 6: k += 1
        sched[k].append(jb); cur = k
    def when(tag): return [k for k in range(NS) if any(x[1].tag == tag for x in sched[k])]
    CL = max(when('GO31')) + 1
    assert CL + 2 < min(when('GO48')) and CL + 2 < min(when('GW12')), (CL, when('GO48'), when('GW12'))
    assert NS == 64 or min(when('GW16')) > 47
    if EPG == 0:
        A.extend(epi); ek = len(epi)
    if OPT['verbose']: print([len(x) for x in sched])
    SQ = []
    def sq_add(txt):
        L = txt.split('\n'); i = 0
        while i < len(L):
            k = 1
            while i + k < len(L) and L[i + k].startswith(('s_addc', 's_subb', 's_cselect')): k += 1
            SQ.append(L[i:i + k]); i += k
    rq = []
    for c in range(NS // 4):
        for n in range(9):
            if c == 0 and n < 3: continue
            q = 9 * c + n
            lo = max(8 * (q - 3), 72 * c - 20)
            for u, r in enumerate(g_wreads(c, n)): rq.append((lo, 8 * q + u - 6, r))
    for s_ in range(NS):
        c, u = s_ >> 2, s_ & 3
        mf = [mfma(f'v{GACC(n, mm)}', f'v{WB(c, n, uu)}', f'a{OB(4 * c + uu, mm)}', f'v{GACC(n, mm)}' if (c or ui) else '0') for n in range(9) for mi, mm in enumerate(zig(2, n & 1, 'g')) for ui, uu in enumerate(zig(4, mi, 'g'))][18 * u:18 * u + 18]
        G = Gaps(18)
        if u == 2 and c < NS // 4 - 1:
            tags = {0: 'P5+P6+P7+P8', 1: 'P9+P10+P11+P12+P13', 2: 'P14+P15+P16+P17'}.get(c, f'GW{c + 1}')
            G.sc[16] += [f'WAITVM {tags} lg0', 's_barrier']
            assert not [1 for q in sched[s_:] for x in q if x[1].tag == f'GW{c + 1}'], c
        jobs = sched[s_]
        for x in jobs:
            if x[1].tag.startswith('GO'): assert (int(x[1].tag[2:]) & ~3) >= s_ + 2, (s_, x[1].tag)
        jp = {0: [], 1: [10], 2: [5, 14], 3: [3, 9, 15], 4: [3, 8, 12, 15], 5: [2, 6, 9, 12, 15], 6: [2, 5, 8, 11, 14, 17]}[len(jobs)]
        G.place_dma(jobs, jp)
        for g in range(18):
            if g in jp or not rq: continue
            gg = 18 * s_ + g
            if rq[0][0] <= gg:
                assert gg <= rq[0][1], (gg, rq[0][1], rq[0][2].text)
                if u == 2 and g >= 16: assert rq[0][2].tag != f'rG{c}'
                G.mem[g].append(rq.pop(0)[2])
        if s_ == int(OPT['p2s']): G.mem[17].append(Ins(poll2, 'PL2'))
        if OPT['gtl']:
            if s_ % 2 == 0: G.sc[12].append('s_memtime s[98:99]')
            elif s_ < 64: G.v[0].append(f'v_writelane_b32 v59, s98, {s_ // 2}')
        for g in range(18):
            n = EPG - (1 if G.mem[g] else 0)
            while n > 0 and ek < len(epi):
                x = epi[ek]
                if isinstance(x, Ins) and x.kind == 'vst':
                    if G.v[g]: break
                    G.mem[g].append(x); ek += 1; n -= 1; continue
                G.v[g].append(x); ek += 1
                if not x.startswith('s_'): n -= 1
        if s_ == int(OPT['f2s']):
            assert ek == len(epi), (ek, len(epi))
            G.sc[16].append('WAITVM Ost')
            G.mem[17].append(Ins(cl(f'buffer_store_dword v{VFLAG}, v{VL4}, {srd(SFL)}, 0 offen offset:16 {OPT["st"]}'), 'F2'))
        if s_ == G2: G.v[17] += spin_check('f2', poll2, ne1)
        nxt = None
        if s_ == CL:
            G.v[15] += [f'v_readfirstlane_b32 s{sGive}, v{VPR}']
            nxt = f"""s_sub_u32 s50, 16, s{sGive}
s_mul_i32 s{SGW+2}, s50, 36864
s_sub_u32 s50, 8, s{sGive}
s_lshl_b32 s50, s50, 15
s_min_u32 s{SGO+2}, s{SGO+2}, s50"""
        if s_ == 38: G.mem[17].append(Ins(polld, 'PLD'))
        if s_ == 43:
            G.v[15] += spin_check('d', polld, f'v_cmp_eq_u32 vcc, 0, v{VPOLL}')
            G.v[16] += [f'v_readfirstlane_b32 s{sRem}, v{VPOLL}', f'v_xor_b32 v{VPA}, 128, v{VPA}']
            nxt = f"""s_sub_u32 s{sRem}, s{sRem}, 1
s_min_u32 s{sRem}, s{sRem}, {OPT['bmax']}
s_bitcmp1_b32 s2, 0
s_cselect_b32 s50, 0, {2 * 64 * 9216}
s_mul_i32 s{SG2W+2}, s{sRem}, 36864
s_add_u32 s{SG2W}, s{SGW}, s50
s_addc_u32 s{SG2W+1}, s{SGW+1}, 0
s_sub_u32 s{SG2W}, s{SG2W}, s{SG2W+2}
s_subb_u32 s{SG2W+1}, s{SG2W+1}, 0
s_bitcmp1_b32 s2, 0
s_cselect_b32 s50, 0, {2 * 262144}
s_add_u32 s50, s50, 16384
s_lshl_b32 s51, s{sRem}, 15
s_add_u32 s{SG2O}, s{SGO}, s50
s_addc_u32 s{SG2O+1}, s{SGO+1}, 0
s_sub_u32 s{SG2O}, s{SG2O}, s51
s_subb_u32 s{SG2O+1}, s{SG2O+1}, 0
s_max_u32 s51, s51, {16384 + 2048}
s_sub_u32 s{SG2O+2}, s51, {16384 + 2048}
s_mov_b32 s{SG2O+3}, 0x20000
s_cmp_eq_u32 s{sRem}, 0
s_cselect_b32 s50, s{sGive}, 0
s_add_u32 s{sRem}, s{sRem}, 4
s_sub_u32 s{sRem}, s{sRem}, s50"""
        if s_ == G3 - 4 and NS > 64: G.mem[17].append(Ins(poll2, 'PL3'))
        if s_ == G3 and NS > 64: G.v[17] += spin_check('f3', poll2, ne1)
        if u == 3 and 11 <= c < NS // 4 - 1:
            G.sc[18] += [f's_sub_u32 s{sRem}, s{sRem}, 1', 's_cbranch_scc1 L_xchg']
        if s_ == 30:
            nxt = f"""s_lshl_b32 s50, s2, 2
s_add_u32 s50, s50, s{sW}
s_mul_i32 s50, s50, 9216
s_add_u32 s50, s50, {WS_X}
s_add_u32 s{SO}, s{sWS}, s50
s_addc_u32 s{SO+1}, s{sWS+1}, 0
s_mov_b32 s{SO+2}, 9216
s_xor_b32 s50, s2, 1
s_lshl_b32 s51, s50, 2
s_add_u32 s51, s51, s{sW}
s_mul_i32 s51, s51, 9216
s_add_u32 s51, s51, {WS_X}
s_add_u32 s{SV}, s{sWS}, s51
s_addc_u32 s{SV+1}, s{sWS+1}, 0
s_mov_b32 s{SV+2}, 9216
s_and_b32 s50, s2, 2
s_lshl_b32 s50, s50, 2
s_lshr_b32 s51, s2, 5
s_add_u32 s50, s50, s51
s_lshl_b32 s50, s50, 2
s_add_u32 s50, s50, s{sW}
s_lshl_b32 s50, s50, 1
s_and_b32 s51, s2, 1
s_add_u32 s50, s50, s51
s_mul_i32 s50, s50, {16 * 2304}
s_bfe_u32 s51, s2, 0x10002
s_mul_i32 s51, s51, 1152
s_add_u32 s50, s50, s51
s_bfe_u32 s51, s2, 0x20003
s_mul_i32 s51, s51, 288
s_add_u32 s50, s50, s51
s_add_u32 s{SOUT}, s{sOUT}, s50
s_addc_u32 s{SOUT+1}, s{sOUT+1}, 0
s_mov_b32 s{SOUT+2}, {15 * 2304 + 288}"""
        if 36 <= s_ < 41:
            k = s_ - 36
            vv = f"""v_add_u32 v28, {64 * k}, v2
v_mul_u32_u24 v29, 3641, v28
v_lshrrev_b32 v29, 16, v29
v_mul_u32_u24 v30, 18, v29
v_sub_u32 v30, v28, v30
v_lshlrev_b32 v30, 4, v30
v_mad_u32_u24 v{32 + k}, v29, s{sT0}, v30
v_mul_u32_u24 v29, 304, v29
v_add3_u32 v{44 + k}, v29, v30, v31""".split('\n')
            if k == 0:
                vv = [f's_movk_i32 s{sT0}, 2304\ns_movk_i32 s{sMODE}, 4096', 'v_lshlrev_b32 v31, 13, v1', 'v_and_b32 v29, 15, v2', 'v_mul_u32_u24 v29, 304, v29', 'v_lshrrev_b32 v30, 4, v2',
                      'v_lshl_add_u32 v29, v30, 3, v29', 'v_add_u32 v39, v29, v31', f'v_add_u32 v37, 0x1000, v{VOFFO}', (f'v_lshl_add_u32 v38, v2, 3, s{sMODE}' if OPT['xb'] else f'v_add_u32 v38, 0x2000, v{VOFFO}')] + vv
            for i, x in enumerate(vv): G.v[i].append(x)
        for g in range(18):
            if SQ and not G.sc[g] and (18 * s_ + g) % 8 < 4: G.sc[g] += SQ.pop(0)
        if s_ in (29, 42, 46): assert not SQ, (s_, len(SQ))
        if nxt: sq_add(nxt)
        A.extend(G.weave(mf))
    A('L_xchg:')
    stamp(A, 10)
    A('s_nop 7')
    vo3 = [VOFFO, 37, 38]
    pollx = f'buffer_load_dword v{VPOLL}, v{VPP}, {srd(SFP)}, s{sW4} offen offset:32 sc1'
    XB = OPT['xb']
    if XB:
        for n in range(9):
            a_ = GACC(n, 0)
            A(f'v_cvt_pk_bf16_f32 v{208 + 2 * n}, v{a_}, v{a_ + 1}\nv_cvt_pk_bf16_f32 v{209 + 2 * n}, v{a_ + 2}, v{a_ + 3}')
            if n & 1: A(cl(f'buffer_store_dwordx4 v[{206 + 2 * n}:{209 + 2 * n}], v{VOFFO}, {srd(SO)}, 0 offen offset:{(n // 2) * 1024} {OPT["st"]}'))
        A(cl(f'buffer_store_dwordx2 v[224:225], v38, {srd(SO)}, 0 offen {OPT["st"]}'))
    else:
        for n in range(9):
            A(cl(f'buffer_store_dwordx4 v[{GACC(n, 0)}:{GACC(n, 0) + 3}], v{vo3[n // 4]}, {srd(SO)}, 0 offen offset:{(n % 4) * 1024} {OPT["st"]}'))
    A('s_waitcnt vmcnt(0) lgkmcnt(0)')
    if OPT['xp']:
        px2 = pollx.replace(f'v{VPOLL},', f'v{VPG},')
        A(pollx)
        A(cl(f'buffer_store_dword v{VFLAG}, v{VL4}, {srd(SFL)}, 0 offen offset:32 {OPT["st"]}'))
        A('s_barrier')
        A(f's_waitcnt vmcnt(1)\n{ne1}\ns_cbranch_vccnz L_spin_x\nL_back_x:')
        SPINS.append(f"""L_spin_x:
s_mov_b32 s{sT0}, 0x40000
{pollx}
s_sleep 6
L_spin2_x:
{px2}
s_waitcnt vmcnt(1)
{ne1}
s_nop 1
s_cbranch_vccz L_back_x
{pollx}
s_sub_u32 s{sT0}, s{sT0}, 1
s_cbranch_scc1 L_back_x
s_waitcnt vmcnt(1)
v_cmp_ne_u32 vcc, 1, v{VPG}
s_nop 1
s_cbranch_vccnz L_spin2_x
s_branch L_back_x""")
    else:
        A(cl(f'buffer_store_dword v{VFLAG}, v{VL4}, {srd(SFL)}, 0 offen offset:32 {OPT["st"]}'))
        A(pollx)
        A('s_barrier')
        A.extend(spin_check('x', pollx, ne1))
    if XB:
        A(f's_mov_b32 s{sT0}, 0xffff0000')
        for k in range(4): A(f'buffer_load_dwordx4 v[{228 + 4 * k}:{231 + 4 * k}], v{VOFFO}, {srd(SV)}, 0 offen offset:{k * 1024} sc1')
        A(f'buffer_load_dwordx2 v[244:245], v38, {srd(SV)}, 0 offen sc1')
    else:
        for n in range(9):
            A(f'buffer_load_dwordx4 v[{128 + 4 * n}:{131 + 4 * n}], v{vo3[n // 4]}, {srd(SV)}, 0 offen offset:{(n % 4) * 1024} sc1')
    for n in range(9):
        a = GACC(n, 1); b = 128 + 4 * n
        if XB:
            for r in range(2): A(f'v_lshlrev_b32 v{b + 2 * r}, 16, v{228 + 2 * n + r}\nv_and_b32 v{b + 2 * r + 1}, s{sT0}, v{228 + 2 * n + r}')
        for r in range(0, 4, 2): A(f'v_pk_add_f32 v[{a + r}:{a + r + 1}], v[{a + r}:{a + r + 1}], v[{b + r}:{b + r + 1}]')
        A(f'v_cvt_pk_bf16_f32 v{b}, v{a}, v{a + 1}\nv_cvt_pk_bf16_f32 v{b + 1}, v{a + 2}, v{a + 3}')
        A(f'ds_write_b64 v39, v[{b}:{b + 1}] offset:{n * 32}')
    for k in range(5): A(f'ds_read_b128 v[{168 + 4 * k}:{171 + 4 * k}], v{44 + k}')
    for k in range(5): A(f'buffer_store_dwordx4 v[{168 + 4 * k}:{171 + 4 * k}], v{32 + k}, {srd(SOUT)}, 0 offen {OPT["out_st"]}'.rstrip())
    if OPT['stamps']:
        A('s_waitcnt vmcnt(0)')
        stamp(A, 11)
        if OPT['gtl']:
            A('s_lshl_b32 s50, s2, 10\ns_add_u32 s50, s50, 0x80000\nv_lshlrev_b32 v42, 2, v0\nbuffer_store_dword v59, v42, s[56:59], s50 offen')
        if OPT['diag'] == '0': store_stamps(A, 7)
        elif OPT['diag'] == '3':
            A(f'''s_memrealtime s[62:63]
s_load_dwordx2 s[4:5], s[0:1], 88
s_load_dwordx2 s[8:9], s[0:1], 0
s_waitcnt lgkmcnt(0)
s_load_dword s10, s[8:9], 0
s_mov_b32 s6, 64
s_mov_b32 s7, 0x20000
v_lshlrev_b32 v4, 6, v0
s_and_b32 s51, s2, 7
s_lshl_b32 s51, s51, 2
v_mov_b32 v5, s62
buffer_atomic_umax v5, v4, s[4:7], s51 offen offset:32 sc1
s_and_b32 s50, s2, 0x18
s_cmp_lg_u32 s50, 0
s_cbranch_scc1 L_dgx
s_not_b32 s51, s60
v_mov_b32 v6, s51
v_mov_b32 v7, s60
buffer_atomic_umax v6, v4, s[4:7], 0 offen offset:4 sc1
buffer_atomic_umax v7, v4, s[4:7], 0 offen offset:8 sc1
L_dgx:
s_cmp_lg_u32 s2, 8
s_cbranch_scc1 L_end
s_sub_u32 s8, s62, s60
v_mov_b32 v8, s8
buffer_store_dword v8, v4, s[4:7], 0 offen offset:12 sc1
s_sub_u32 s8, s76, s64
v_mov_b32 v9, s8
buffer_store_dword v9, v4, s[4:7], 0 offen offset:16 sc1
s_sub_u32 s8, s78, s76
v_mov_b32 v10, s8
buffer_store_dword v10, v4, s[4:7], 0 offen offset:20 sc1
s_sub_u32 s8, s82, s78
v_mov_b32 v11, s8
buffer_store_dword v11, v4, s[4:7], 0 offen offset:24 sc1
s_sub_u32 s8, s86, s82
v_mov_b32 v12, s8
buffer_store_dword v12, v4, s[4:7], 0 offen offset:28 sc1
s_waitcnt lgkmcnt(0)
s_cmp_eq_u32 s10, 0x3e6e3f96
s_cbranch_scc1 L_end
s_cmp_eq_u32 s10, 0x3c3abe25
s_cbranch_scc1 L_end
v_mov_b32 v8, 0x40004000
buffer_store_dword v8, v4, s[28:31], 0 offen''')
        else:
            A(f'''s_memrealtime s[62:63]
s_load_dwordx2 s[4:5], s[0:1], 88
s_getreg_b32 s50, hwreg(HW_REG_XCC_ID)
s_waitcnt lgkmcnt(0)
s_mov_b32 s6, 64
s_mov_b32 s7, 0x20000
v_lshlrev_b32 v4, 6, v0
s_and_b32 s51, s2, 0xbe
s_cmp_lg_u32 s51, 8
s_cbranch_scc1 L_end
s_and_b32 s51, s2, 1
s_lshr_b32 s8, s2, 5
s_add_u32 s51, s51, s8
s_lshl_b32 s51, s51, 4
s_and_b32 s50, s50, 15
s_lshl_b32 s50, s50, 28
s_sub_u32 s8, s62, s60
s_add_u32 s8, s8, s50
s_cmp_eq_u32 s51, 0
s_cbranch_scc1 L_dg1
v_mov_b32 v8, s8
buffer_store_dword v8, v4, s[4:7], s51 offen sc1
L_dg1:
s_sub_u32 s8, s{76 if OPT['diag'] == '1' else 66}, s64
s_sub_u32 s9, s{78 if OPT['diag'] == '1' else 68}, s{76 if OPT['diag'] == '1' else 66}
s_lshr_b32 s8, s8, 4
s_lshr_b32 s9, s9, 4
s_lshl_b32 s8, s8, 16
s_add_u32 s8, s8, s9
v_mov_b32 v9, s8
buffer_store_dword v9, v4, s[4:7], s51 offen offset:4 sc1
s_sub_u32 s8, s{80 if OPT['diag'] == '1' else 70}, s{78 if OPT['diag'] == '1' else 68}
s_sub_u32 s9, s{82 if OPT['diag'] == '1' else 72}, s{80 if OPT['diag'] == '1' else 70}
s_lshr_b32 s8, s8, 4
s_lshr_b32 s9, s9, 4
s_lshl_b32 s8, s8, 16
s_add_u32 s8, s8, s9
v_mov_b32 v10, s8
buffer_store_dword v10, v4, s[4:7], s51 offen offset:8 sc1
s_sub_u32 s8, s{84 if OPT['diag'] == '1' else 74}, s{82 if OPT['diag'] == '1' else 72}
s_sub_u32 s9, s{86 if OPT['diag'] == '1' else 76}, s{84 if OPT['diag'] == '1' else 74}
s_lshr_b32 s8, s8, 4
s_lshr_b32 s9, s9, 4
s_lshl_b32 s8, s8, 16
s_add_u32 s8, s8, s9
v_mov_b32 v11, s8
buffer_store_dword v11, v4, s[4:7], s51 offen offset:12 sc1''')
    A('L_end:\ns_endpgm')
    A.resolve_waits()
    rep = []
    A.fix_hazards(rep)
    segs = {}
    for n, L in split_marks(A.L): segs.setdefault(n, []).append(L)
    M = {n: merge_segments(v) for n, v in segs.items()}
    if OPT['hole']:
        L = M['_start']; k = len(L) - 1
        while L[k].kind != 'mfma': k -= 1
        out = L[:k + 1]; since = 0; q = 0
        for x in L[k + 1:]:
            out.append(x); since += 2 if x.kind == 'trans' else 1
            if since >= 2 and x.kind in ('valu', 'trans'):
                out.append(Ins(mfma('a0', f'a{128 + 4 * (q % 16)}', f'a{128 + 4 * ((q // 3) % 16)}', 'a0'))); q += 1; since = 0
        M['_start'] = out
    ab = OPT['abl']
    if ab:
        for nm in list(M):
            L = M[nm]
            if nm[0] in 'rp' or nm == 's0':
                if 'a' in ab: L = [x for x in L if x.mn != 'v_add_f32']
                if 'c' in ab: L = [x for x in L if x.mn not in ('v_max3_f32', 'v_max_f32', 'v_cmp_lt_f32', 's_cbranch_vccnz')]
                if 'e' in ab: L = [x for x in L if x.mn != 'v_exp_f32']
                if 'p' in ab: L = [x for x in L if x.mn != 'v_cvt_pk_bf16_f32']
                if 'k' in ab: L = [x for x in L if x.mn != 'ds_read_b128']
                if 'v' in ab: L = [x for x in L if x.mn != 'ds_read_b64_tr_b16']
                if 's' in ab: L = [x for x in L if not (x.kind == 'mfma' and f'v[{ONES}:' in x.text)]
                if 'h' in ab: L = [x for i, x in enumerate(L) if not (x.mn == 'v_exp_f32' and int(x.text.split()[1][1:-1]) % 2)]
                if 'd' in ab and nm[0] != 'p': L = [x for x in L if x.kind != 'dma']
            if 'o' in ab: L = [x for x in L if x.tag != 'Ost']
            if nm == 'tail':
                if 'g' in ab: L = [x for x in L if not (x.tag and x.tag.startswith('rG') and int(x.tag[2:]) % 2)]
                if 'G' in ab: L = [x for x in L if not (x.tag and x.tag.startswith(('GW', 'GO')))]
            if nm == '_start':
                if 'j' in ab: L = [x for x in L if not (x.tag and x.tag.startswith('J'))]
                if 'W' in ab: L = [x for x in L if not (x.tag and (x.tag[0] in 'WX') and x.kind == 'dma' and int(x.tag[1:]) > 5)]
                cutq = [i for i, x in enumerate(L) if x.kind == 'mfma'][14 * 64]
                if '1' in ab: L = L[:cutq] + [x for x in L[cutq:] if x.tag != 'Jst']
                if '2' in ab: L = L[:cutq] + [x for x in L[cutq:] if x.kind != 'dma']
                if '3' in ab: L = L[:cutq] + [x for x in L[cutq:] if x.kind != 'dsw']
                if '4' in ab: L = L[:cutq] + [x for x in L[cutq:] if x.mn not in ('v_mul_f32',)]
                if '5' in ab: L = L[:cutq] + [x for x in L[cutq:] if not (x.tag and x.tag.startswith('rQ'))]
                if 'w' in ab: L = [x for x in L if not (x.tag and x.tag.startswith('rW') and int(x.tag[2:]) % 2)]
            import re as _re
            def rechain(L, n, pred):
                out = []; k = 0; cur = None
                for x in L:
                    if x.kind == 'mfma' and pred(x):
                        m = _re.match(r'(\S+) (\S+), (\S+), (\S+), (\S+)$', x.text)
                        if m[2] == m[5]:
                            if k % n == 0 or cur is None or cur[0] != m[2][0]: cur = m[2]
                            x = Ins(f'{m[1]} {cur}, {m[3]}, {m[4]}, {cur}'); k += 1
                    out.append(x)
                return out
            if 'Z' in ab and (nm[0] in 'rp'):
                out = []; k = 0
                for x in L:
                    if x.kind == 'mfma' and x.text.split()[1][0] == 'a':
                        m = _re.match(r'(\S+) a\[(\d+):\d+\], v\[(\d+):\d+\], v\[(\d+):\d+\], a', x.text)
                        tp, q, kk = k // 8, (k // 2) % 4, k % 2
                        pb = int(m[4]) & ~15
                        half = int(nm[-1]) & 1
                        d = f'a{((half * 4 + tp) * 4 + q) * 4}'
                        x = Ins(mfma(d, f'v{VF + (2 * tp + kk) * 4}', f'v{pb + ((q + 2 * kk) % 4) * 4}', d)); k += 1
                    out.append(x)
                L = out
            if 'P' in ab and (nm[0] in 'rp'): L = rechain(L, 2, lambda x: x.text.split()[1][0] == 'a')
            if 'X' in ab and nm == 'tail': L = rechain(L, 4, lambda x: True)
            if 'Q' in ab and nm == '_start':
                cut = [i for i, x in enumerate(L) if x.kind == 'mfma'][14 * 64]
                L = rechain(L[:cut], 2, lambda x: True) + L[cut:]
            M[nm] = L
    F = Prog()
    F.extend(M['_start'])
    if int(OPT['burst']):
        F(f's_mov_b32 s50, {int(OPT["burst"])}\nL_burst:')
        for q in range(16):
            F(f'v_mfma_f32_32x32x16_bf16 a[{(q % 8) * 16}:{(q % 8) * 16 + 15}], v[{64 + 4 * (q % 8)}:{67 + 4 * (q % 8)}], a[{128 + 4 * q}:{131 + 4 * q}], a[{(q % 8) * 16}:{(q % 8) * 16 + 15}]')
            F(f'ds_read_b128 v[{96 + 4 * (q % 8)}:{99 + 4 * (q % 8)}], v4 offset:{q * 1024}')
            F(f'v_exp_f32 v{224 + q}, v{128 + q}\nv_add_f32 v{240 + q}, v{144 + q}, v{128 + q}')
        F('s_sub_u32 s50, s50, 1\ns_cbranch_scc0 L_burst\ns_waitcnt lgkmcnt(0)\ns_nop 15')
    F('L_s0:')
    F.extend(M['s0'])
    F('s_branch L_r1\n.p2align 6\nL_r0:')
    F.extend(M['r0'])
    F('L_r1:')
    for k in range(1, 7): F.extend(M[f'r{k}'])
    F('s_cbranch_scc1 L_sp')
    F.extend(M['r7'])
    F(f's_cbranch_scc1 L_r0\ns_cmp_eq_u32 s{sKo}, 0x80000\ns_cbranch_scc1 L_fin\ns_cmp_eq_u32 s{sKo}, 0x70000\ns_cbranch_scc1 L_b47\ns_cmp_eq_u32 s{sKo}, 0x60000\ns_cbranch_scc1 L_b39')
    for b in (7, 39, 47):
        F(f'L_b{b}:'); F.extend(M[f'b{b}']); F('s_branch L_r0')
    F('L_sp:')
    F.extend(M['sp31'])
    if OPT['w1']: F('s_branch L_r1')
    else:
        F.extend(M['epi']); F('s_branch L_s0')
    for nm, p, mode in [(f'r{k}', k & 1, 0) for k in range(8)] + [(f'p{k}', k & 1, 0) for k in range(56, 63)] + [('sp31', 1, 1), ('fin31', 1, 1)]:
        F(f'L_st_{nm}:\ns_mov_b32 s{sMODE}, {mode}\ns_call_b64 s[{sRET}:{sRET + 1}], L_fb{p}')
        if nm != 'fin31': F.extend(sm_dense(3 - p, 0, 32))
        F(f's_branch L_bk_{nm}')
    F(f'L_st_s0:\ns_call_b64 s[{sRET}:{sRET + 1}], L_fbf')
    F.extend(sm_dense(3, 0, 32))
    F('s_branch L_bk_s0')
    F.extend(fallback(0).L); F.extend(fallback(1).L); F.extend(fallback(0, True).L)
    for x in SPINS: F(x)
    F('L_fin:')
    F.extend(M['b55'])
    for k in range(56, 63): F.extend(M[f'p{k}'])
    F.extend(M['fin31'])
    F.extend(M['tail'])
    return F, rep

def build(path):
    A, rep = gen()
    hdr = open('cdna_kernels/' + NAME + '.s.ref').read().split('; Override launch')[0]
    t = hdr + '; @launch grid=(256,1,1) block=(256,1,1) lds=163840\n'
    t += '.amdgcn_target "amdgcn-amd-amdhsa--gfx950"\n.text\n' + MACROS
    t += prolog(KNAME) + A.text() + 'L_code_end:\n'
    t += kd(KNAME, 512, 102, 256)
    open(path, 'w').write(t)
    return rep, len(t)

if __name__ == '__main__':
    path = sys.argv[1]
    for kv in sys.argv[2:]:
        k, v = kv.split('=')
        assert k in OPT, k
        OPT[k] = (v == '1') if isinstance(OPT.get(k), bool) else v
    rep, n = build(path)
    from collections import Counter
    print('bytes', n, 'pads', Counter((a, b.split()[0]) for a, b in rep).most_common(12))
```

```python
import sys, math, struct
from common import *
from asmlib import *

OPT = dict(nt_kv='nt', nt_x='', nt_w='nt', st='sc1', g_o='sc1', g_w='sc1', stamps=False, tl=False, gtl=False,
           epg='4', f2s='10', p2s='22', g2s='24', gs0='6', gs1='58', lo='4', lw='5', w1=False, qtl=False, pl='2', lag=True, ost='sc1', nb='3', jo='5', verbose=False, su='0', pf='2', bar1=False, kv0='48', bm='5', ba='2', bmax='4', out_st='sc1', hole=False, atom='1', diag='0', l2n='0', l2p='nt', l2t='6', burst='0', l2s='1', l2g='44', l2='', tight='0', l2e='0', cqk=True, cqb=True, abl='', xb=True, cw='3', wsp=True, j8='0', nh='10', cls='0', m0='-20.0', qo='c', pvo='t', zz='kqgp', xp=False)
WS_WO = 33554432
WS_X = 44 << 20
WS_FL = 56 << 20
WS_STAMP = 64 << 20
SCALE = math.log2(math.e) / math.sqrt(128.0)
def f2i(x): return struct.unpack('<I', struct.pack('<f', x))[0]
KNAME = NAME + '_kernel'

SK, SV, SX, SW_, SO, SWS, SWD, SFL = 4, 8, 12, 16, 20, 24, 28, 88
SGO, SGW, SFP, SOUT = 12, 16, 24, 28
sWS, sOUT, sDBG = 52, 54, 46
sW, sW2K, sW4K, sT0, sKo, sVo, sSC, sTHR, sXo, sRET, sMODE, sWe = 32, 33, 34, 35, 36, 37, 38, 40, 41, 42, 44, 45
sJ, sCnt, sHead, sOo, sLOW = 48, 94, 95, 96, 39
SG2W, SG2O, sGive, sRem, sW4 = 4, 92, 46, 47, 49
VPP, VPG, VPR = 41, 42, 43
VSK_ = [17, 27]
def srd(n): return f's[{n}:{n+3}]'
VPA, KADDR, VADDR, VOFFK, VOFFV, LREG, ETMP, CT, NEGM, VOFFO, VFLAG, VPOLL, VL4 = 3, 4, 8, 16, 18, 20, 28, 40, 44, 60, 61, 62, 63
KF, VF, SB, PB, EP = 64, 96, 128, 192, 224
NE = 8
ONES = 36
NG = 68
def S(p, kt, qt): return SB + p * 32 + (kt * 4 + qt) * 4
def P(p, qt): return PB + p * 16 + qt * 4
def Lr(p, qt): return EP + p * 16 + qt * 4
def O(T, qt): return (T * 4 + qt) * 4
def Q(h, qt, u): return 128 + h * 64 + (u * 4 + qt) * 4
VSV, VSK, WADDR, XADDR, VOFFW, VOFFX, VOFFJ, JADDR = 20, 24, 64, 80, 84, 88, 92, 3
CW0, CW1, CR = 61, 62, 63
def QACC(h, T, qt): return (f'v{128 + (T * 4 + qt) * 4}' if h == 1 else f'a{(T * 4 + qt) * 4}')
def XF(t, qt): return (28 if (t >> 1) & 1 else 96) + ((t & 1) * 4 + qt) * 4
NWS = 24
def WF(slot): return 128 + slot * 4
BLK = 16384
def wblock(t): return [(4, 1), (7, 3), (8, 9)][(t >> 1) % 3][t & 1]
def xblock(p): return [2, 5, 6][p % 3]
def cl(s): return ' '.join(s.split())
def rng(r, n): return f'{r[0]}[{int(r[1:])}:{int(r[1:]) + n - 1}]'

def dma_kv(which, tile):
    base = (0 if which == 'K' else 65536) + (tile % 8) * 8192
    s, vo, so = (SK, VOFFK, sKo) if which == 'K' else (SV, VOFFV, sVo)
    tag = f'{which}{tile}'; nt = OPT['nt_kv']
    return [([f's_add_u32 m0, s{sW2K}, {base}'], Ins(cl(f'buffer_load_dwordx4 v{vo}, {srd(s)}, s{so} offen {nt} lds'), tag), []),
            ([], Ins(cl(f'buffer_load_dwordx4 v{vo + 1}, {srd(s)}, s{so} offen offset:1024 {nt} lds'), tag), [f's_add_u32 s{so}, s{so}, 8192'])]
def dma4(s, vo, off, blk, tag, nt, so=sWe):
    return [([f's_mov_b32 s{so}, {off}', f's_add_u32 m0, s{sW4K}, {blk * BLK}'] if n == 0 else [],
             Ins(cl(f'buffer_load_dwordx4 v{vo + n}, {srd(s)}, s{so} offen offset:{n * 1024} {nt} lds'), tag), []) for n in range(4)]
def dma_w(t): return dma4(SW_, VOFFW, t * 32 * 8192, wblock(t), f'W{t}', OPT['nt_w'])
def dma_x(p): return dma4(SX, VOFFX, (p >> 1) * 128 + (p & 1) * 32 * 1152, xblock(p), f'X{p}', OPT['nt_x'], sXo)
def dma_kk(i): return dma4(SK, VSK, i * 16384, i, f'KK{i}', OPT['nt_kv'])
def dma_vv(i): return dma4(SV, VSV, i * 16384, 4 + i, f'VV{i}', OPT['nt_kv'])
def flat(dl):
    out = []
    for pre, ins, post in dl: out += pre + [ins] + post
    return out

def I(x): return x if isinstance(x, Ins) else Ins(x)
def cost(x):
    k = x.kind
    return {'trans': 8, 'valu': 4, 'dsr': 4, 'dsw': 4, 'dma': 12, 'vld': 12, 'vst': 12}.get(k, 0 if k in ('label', 'dir', 'waitvm', 'waitlg') else 4)
class Gaps:
    def __init__(self, n):
        self.n = n; self.sc = [[] for _ in range(n + 1)]; self.mem = [[] for _ in range(n)]; self.v = [[] for _ in range(n)]
    def place_dma(self, dl, gaps):
        assert len(gaps) >= len(dl), (len(gaps), len(dl))
        for (pre, ins, post), g in zip(dl, gaps):
            for k, s in enumerate(pre): self.sc[g - len(pre) + k].append(s)
            self.mem[g].append(ins)
            for k, s in enumerate(post): self.sc[g + 1 + k].append(s)
    def load(self, g): return sum(cost(I(x)) for x in self.mem[g] + self.v[g])
    def pack(self, items, g0, g1):
        items = [I(x) for x in items]
        base = [self.load(g) for g in range(self.n)]
        for L in range(8, 400, 2):
            g = g0; used = 0; vhere = False; pos = []; ok = True
            for x in items:
                c = cost(x); ismem = x.kind in ('dsr', 'dsw', 'dma', 'vld', 'vst')
                while True:
                    if g >= g1: ok = False; break
                    room = L - base[g] - used
                    if ismem and (vhere or (self.mem[g] and L < 20)): fit = False
                    else: fit = c <= room or (c == 0) or (used == 0 and base[g] == 0)
                    if fit: break
                    g += 1; used = 0; vhere = False
                if not ok: break
                pos.append(g); used += c
                if not ismem: vhere = True
                else: vhere = True if False else vhere
            if ok: break
        assert ok
        for x, g in zip(items, pos):
            (self.mem if x.kind in ('dsr', 'dsw', 'dma', 'vld', 'vst') else self.v)[g].append(x)
        return pos
    def weave(self, mf, a=0, b=None):
        out = []
        b = self.n if b is None else b
        for i in range(a, b):
            if i < len(mf) and mf[i] is not None: out.append(mf[i])
            out += self.sc[i] + self.mem[i] + self.v[i]
        if b == self.n: out += self.sc[self.n]
        return out

def k_reads(tile):
    return [Ins(f'ds_read_b128 v[{KF + (kt * 4 + u) * 4}:{KF + (kt * 4 + u) * 4 + 3}], v{KADDR + u} offset:{(tile % 8) * 8192 + kt * 4096}', f'rK{tile}')
            for kt in range(2) for u in range(4)]
def v_reads(tile):
    return [Ins(f'ds_read_b64_tr_b16 v[{VF + T * 4 + s * 2}:{VF + T * 4 + s * 2 + 1}], v{VADDR + T} offset:{(tile % 8) * 8192 + s * 4096}', f'rV{tile}')
            for T in range(8) for s in range(2)]
def zig(n, odd, key): return list(range(n))[::-1] if (odd and key in OPT['zz']) else list(range(n))
def qk_mfmas(j):
    h = 1 if j == 32 else 0
    p = j & 1; first = (j & 31) == 0
    out = []
    order = [(kt, qt) for kt in range(2) for qt in range(4)] if j == 0 else [(0, 0), (1, 0), (1, 1), (0, 1), (0, 2), (1, 2), (1, 3), (0, 3)]
    for ci, (kt, qt) in enumerate(order):
        if True:
            for i, u in enumerate(zig(4, ci & 1, 'k')):
                c = f'v{S(p, kt, qt)}' if i else (OPT['m0'] if first and INL() else f'v{NEGM + qt * 4}')
                out.append(mfma(f'v{S(p, kt, qt)}', f'v{KF + (kt * 4 + u) * 4}', f'a{Q(h, qt, u)}', c))
    return out
def pv_mfmas(j):
    p = j & 1; first = (j & 31) == 0
    return [mfma(f'a{O(T, qt)}', f'v{VF + T * 4}', f'v{P(p, qt)}', '0' if first else f'a{O(T, qt)}') for T in range(8) for qt in zig(4, (T & 1) and (j & 31) != 31, 'p')]

def sum_mfma(j, qt):
    p = j & 1; first = (j & 31) == 0
    return mfma(f'v{Lr(p, qt)}', f'v{ONES}', f'v{P(p, qt)}', '0' if first else f'v{Lr(1 - p, qt)}')
E0 = 24
def softmax_stream(j):
    p = j & 1
    out = []
    for k in range(32):
        qt, kk = k >> 3, k & 7
        out.append((E0 + 2 * k, f'v_exp_f32 v{ETMP + k % NE}, v{S(p, kk >> 2, qt) + (kk & 3)}'))
        if k & 1: out.append((E0 + 2 * k + 3, f'v_cvt_pk_bf16_f32 v{P(p, qt) + (kk >> 1)}, v{ETMP + (k - 1) % NE}, v{ETMP + k % NE}'))
    out.sort(key=lambda z: z[0])
    return out
SUMPOS = {0: 66, 1: 67, 2: NG + 24, 3: NG + 25}
def sm_dense(j, lo, hi):
    it = softmax_stream(j) + [(SUMPOS[qt] - 0.5, sum_mfma(j, qt)) for qt in range(4)]
    it.sort(key=lambda z: z[0])
    return [x for pos, x in it if lo <= pos < hi]
def pvi(n): return 34 + n
def step_mfmas(j):
    qk = qk_mfmas(j + 1) if j + 1 < 64 else [None] * 32
    pv = pv_mfmas(j)
    nxt = j + 1 < 64
    own = j < 63
    return (qk[:24] + ([sum_mfma(j, 2), sum_mfma(j, 3)] if own else [None, None]) + qk[24:] +
            pv + ([sum_mfma(j + 1, 0), sum_mfma(j + 1, 1)] if nxt else [None, None]))
def INL(): return OPT['m0'] in ('0', '-1.0', '-2.0', '-4.0')
def negm_init():
    if OPT['m0'] == '0': return [f'v_mov_b64 v[{NEGM + 2 * i}:{NEGM + 2 * i + 1}], 0' for i in range(8)]
    c = f'{f2i(float(OPT["m0"])):#x}'
    return [f'v_mov_b32 v{NEGM}, {c}', f'v_mov_b32 v{NEGM + 1}, {c}'] + [f'v_mov_b64 v[{NEGM + 2 * i}:{NEGM + 2 * i + 1}], v[{NEGM}:{NEGM + 1}]' for i in range(1, 8)]
def rowmax(p, qt, dst):
    s0 = S(p, 0, qt); s1 = S(p, 1, qt)
    return [f'v_max3_f32 v{dst}, v{s0}, v{s0 + 1}, v{s0 + 2}', f'v_max3_f32 v{dst}, v{dst}, v{s0 + 3}, v{s1}',
            f'v_max3_f32 v{dst}, v{dst}, v{s1 + 1}, v{s1 + 2}', f'v_max_f32 v{dst}, v{dst}, v{s1 + 3}']
def xlane(op, regs, tmps):
    out = []
    for sw in ('v_permlane16_swap_b32', 'v_permlane32_swap_b32'):
        out += [f'v_mov_b32 v{t}, v{r}' for r, t in zip(regs, tmps)]
        out += [f'{sw} v{t}, v{r}' for r, t in zip(regs, tmps)]
        out += [f'{op} v{r}, v{r}, v{t}' for r, t in zip(regs, tmps)]
    return out
def init_stream(j):
    p = j & 1
    m = [NEGM + qt * 4 for qt in range(4)]; t = [NEGM + qt * 4 + 1 for qt in range(4)]
    out = []
    rm = [rowmax(p, qt, m[qt]) for qt in range(4)]
    for k in range(4): out += [rm[qt][k] for qt in range(4)]
    out += xlane('v_max_f32', m, t)
    for qt in range(4):
        for k in range(8):
            s = S(p, k >> 2, qt) + (k & 3)
            out.append(f'v_sub_f32 v{s}, v{s}, v{m[qt]}')
    for qt in range(4):
        for r in (3, 2, 1, 0): out.append(f'v_sub_f32 v{NEGM + qt * 4 + r}, 0, v{m[qt]}')
    return out

def epilogue(packed, tb):
    rc = [LREG + 2 * i for i in range(4)]
    prep = [f'v_rcp_f32 v{rc[qt]}, v{Lr(1, qt)}' for qt in range(4)]
    units = []
    for k in range(16):
        u, qt = divmod(k, 4)
        b = tb + (k % 2) * 12
        rd = [f'v_accvgpr_read_b32 v{b + i}, a{O(2 * u + (i >> 2), qt) + (i & 3)}' for i in range(8)]
        if packed: mu = [f'v_pk_mul_f32 v[{b + 2 * i}:{b + 2 * i + 1}], v[{b + 2 * i}:{b + 2 * i + 1}], v[{rc[qt]}:{rc[qt] + 1}] op_sel_hi:[1,0]' for i in range(4)]
        else: mu = [f'v_mul_f32 v{b + i}, v{rc[qt]}, v{b + i}' for i in range(8)]
        cv = [f'v_cvt_pk_bf16_f32 v{b + 8 + i}, v{b + 2 * i}, v{b + 2 * i + 1}' for i in range(4)]
        st = [Ins(cl(f'buffer_store_dwordx4 v[{b + 8}:{b + 11}], v{VOFFO}, {srd(SO)}, s{sOo} offen offset:{qt * 1024} {OPT["ost"]}'), 'Ost')]
        if qt == 3: st.append(f's_add_u32 s{sOo}, s{sOo}, 4096')
        units.append((rd, mu, cv, st))
    return prep, units
def epi_flat(units):
    L = []; first = []; lastrd = []
    for k, (rd, mu, cv, st) in enumerate(units):
        first.append(len(L)); L += rd; lastrd.append(len(L) - 1)
        if k: L += units[k - 1][3]
        L += mu + cv
    L += units[-1][3]
    return L, first, lastrd

SPINS = []
def spin_check(name, load, cmp):
    SPINS.append(f"""L_spin_{name}:
s_mov_b32 s{sT0}, 0x40000
L_spin2_{name}:
s_sleep 1
{load}
s_sub_u32 s{sT0}, s{sT0}, 1
s_cbranch_scc1 L_back_{name}
s_waitcnt vmcnt(0)
{cmp}
s_nop 1
s_cbranch_vccnz L_spin2_{name}
s_branch L_back_{name}""")
    return [cmp, f's_cbranch_vccnz L_spin_{name}', f'L_back_{name}:']

def fallback(p, first=False):
    A = Prog()
    nm = 'f' if first else str(p)
    A(f'L_fb{nm}:')
    A('s_nop 7\ns_nop 7')
    TB = P(1 - p, 0)
    m = [TB + i for i in range(4)]; t = [ETMP + i for i in range(4)]; f = [TB + 4 + i for i in range(4)]
    rm = [rowmax(p, qt, m[qt]) for qt in range(4)]
    for k in range(4): A.extend([rm[qt][k] for qt in range(4)])
    A.extend(xlane('v_max_f32', m, t))
    if not first:
        for qt in range(4): A(f'v_max_f32 v{m[qt]}, 0, v{m[qt]}')
        for qt in range(4): A(f'v_exp_f32 v{f[qt]}, -v{m[qt]}')
    for qt in range(4):
        for k in range(8):
            s = S(p, k >> 2, qt) + (k & 3)
            A(f'v_sub_f32 v{s}, v{s}, v{m[qt]}')
        for r in range(4): A(f'v_sub_f32 v{NEGM + qt * 4 + r}, v{NEGM + qt * 4 + r}, v{m[qt]}')
        if not first: A(f'v_mul_f32 v{Lr(1 - p, qt)}, v{Lr(1 - p, qt)}, v{f[qt]}')
    if not first: A(f's_cmp_lg_u32 s{sMODE}, 0\ns_cbranch_scc1 L_fb{p}_b')
    for qt in range(4):
        for k in range(8):
            s = S(1 - p, k >> 2, qt) + (k & 3)
            A(f'v_sub_f32 v{s}, v{s}, v{m[qt]}')
    if not first:
        A(f'L_fb{p}_b:')
        for T in range(8):
            for qt in range(4):
                b = TB + 8 + ((T * 4 + qt) % 2) * 4
                for r in range(4): A(f'v_accvgpr_read_b32 v{b + r}, a{O(T, qt) + r}')
                for r in range(4): A(f'v_mul_f32 v{b + r}, v{b + r}, v{f[qt]}')
                for r in range(4): A(f'v_accvgpr_write_b32 a{O(T, qt) + r}, v{b + r}')
    A.extend(sm_dense(0 if first else 2 + p, 0, 999))
    A('s_nop 7')
    A(f's_setpc_b64 s[{sRET}:{sRET + 1}]')
    A.fix_hazards()
    return A

def stamp(A, idx, base=64):
    if OPT['stamps'] and not OPT['qtl']: A(f's_memtime s[{base + idx * 2}:{base + idx * 2 + 1}]')
def store_stamps(A, n):
    A('s_memrealtime s[62:63]\ns_waitcnt lgkmcnt(0)')
    A('v_lshrrev_b32 v1, 6, v0\ns_lshl_b32 s50, s2, 2\nv_add_u32 v1, s50, v1\nv_lshlrev_b32 v1, 7, v1')
    A('v_and_b32 v2, 63, v0\nv_cmp_eq_u32 vcc, 0, v2\ns_and_saveexec_b64 s[50:51], vcc')
    for i in range(n):
        for k in range(4): A(f'v_mov_b32 v{4 + k}, s{60 + i * 4 + k}')
        A(f'buffer_store_dwordx4 v[4:7], v1, s[56:59], 0 offen offset:{i * 16}')
        A('s_nop 1')

def code_prefetch(A, start, end, va, vd, n, first=0, tag=''):
    A(f's_getpc_b64 s[50:51]')
    A(f'L_pc{tag}_{start}:')
    if start == KNAME: A(f's_sub_u32 s50, s50, L_pc{tag}_{start}-{start}\ns_subb_u32 s51, s51, 0')
    else: A(f's_add_u32 s50, s50, {start}-L_pc{tag}_{start}\ns_addc_u32 s51, s51, 0')
    A(f'v_lshlrev_b32 v{va}, 7, v0')
    if first: A(f'v_add_u32 v{va}, {first * 0x8000}, v{va}')
    for i in range(n):
        A(f'v_min_u32 v{va + 1}, {end}-{start}-4, v{va}')
        A(f'global_load_dword v{vd + i}, v{va + 1}, s[50:51]', tag='pf')
        if i + 1 < n: A(f'v_add_u32 v{va}, 0x8000, v{va}')

DEF_V = []; DEF_S = []
def setup(A):
    A('s_cmp_ge_u32 s2, 256\ns_cbranch_scc1 L_end')
    A(f"""s_bfe_u32 s48, s2, 0x10002
s_mul_i32 s50, s48, 40
s_add_u32 s52, s0, s50
s_addc_u32 s53, s1, 0
s_load_dwordx2 s[{SX}:{SX+1}], s[52:53], 0
s_load_dwordx2 s[{SW_}:{SW_+1}], s[52:53], 24
s_lshr_b32 s51, s2, 7
s_mul_i32 s51, s51, 40
s_add_u32 s54, s0, s51
s_addc_u32 s55, s1, 0
s_load_dwordx2 s[{SK}:{SK+1}], s[52:53], 8
s_load_dwordx2 s[{SV}:{SV+1}], s[52:53], 16
s_load_dwordx2 s[{SWS}:{SWS+1}], s[54:55], 32
s_load_dwordx2 s[{SO}:{SO+1}], s[0:1], 96
s_load_dwordx4 s[92:95], s[0:1], 80""")
    if OPT['stamps']: A('s_memrealtime s[60:61]')
    stamp(A, 0)
    if OPT['pf'] == '1': code_prefetch(A, KNAME, 'L_code_end', 100, 252, 1)
    elif OPT['pf'] == '2':
        A(f'''s_getpc_b64 s[50:51]
L_pcx:
s_sub_u32 s50, s50, L_pcx-{KNAME}
s_subb_u32 s51, s51, 0
s_lshr_b32 s48, s2, 3
s_cmp_ge_u32 s48, 3
s_cbranch_scc1 L_nopf
s_lshl_b32 s48, s48, 15
v_lshlrev_b32 v100, 7, v0
v_add_u32 v100, s48, v100
v_min_u32 v100, L_code_end-{KNAME}-4, v100''')
        A('global_load_dword v252, v100, s[50:51]', tag='pf')
        A('L_nopf:')
    A(f"""s_and_b32 s46, s2, 6
s_lshl_b32 s46, s46, 1
s_lshr_b32 s48, s2, 6
s_add_u32 s46, s46, s48
s_and_b32 s47, s2, 1
s_lshl_b32 s47, s47, 3
s_bfe_u32 s48, s2, 0x30003
s_add_u32 s47, s47, s48
s_and_b32 s49, s46, 7
v_lshrrev_b32 v1, 6, v0
v_and_b32 v2, 63, v0
v_readfirstlane_b32 s{sW}, v1
v_lshrrev_b32 v97, 4, v2
v_lshrrev_b32 v100, 3, v2
v_lshl_add_u32 v100, v1, 6, v100
v_mul_u32_u24 v100, 1152, v100
s_lshl_b32 s{sW4K}, s{sW}, 12
v_and_b32 v101, 7, v2
v_xor_b32 v101, v101, v97
v_lshl_add_u32 v{VOFFX}, v101, 4, v100
v_xor_b32 v101, 4, v101
v_lshl_add_u32 v102, v101, 4, v100
v_add_u32 v{VOFFX + 1}, {8 * 1152 - 1024}, v102
v_add_u32 v{VOFFX + 2}, {2 * (8 * 1152 - 1024)}, v{VOFFX}
v_add_u32 v{VOFFX + 3}, {3 * (8 * 1152 - 1024)}, v102
v_lshrrev_b32 v100, 5, v2
v_and_b32 v101, 31, v2
v_lshl_add_u32 v103, v1, 3, v100
v_lshlrev_b32 v103, 13, v103
v_lshlrev_b32 v104, 2, v100
v_xor_b32 v104, v104, v101
v_lshl_add_u32 v{VOFFW}, v104, 4, v103
v_xor_b32 v104, 128, v{VOFFW}
v_add_u32 v{VOFFW + 1}, {16384 - 1024}, v104
v_add_u32 v{VOFFW + 2}, {2 * (16384 - 1024)}, v{VOFFW}
v_add_u32 v{VOFFW + 3}, {3 * (16384 - 1024)}, v104
s_mul_i32 s50, s49, 294912
s_lshl_b32 s51, s47, 9
s_mov_b32 s{SX+2}, 294912
s_mov_b32 s{SX+3}, 0x20000
s_sub_u32 s{SW_+2}, {576 * 8192}, s51
s_mov_b32 s{SW_+3}, 0x20000
s_waitcnt lgkmcnt(0)""")
    stamp(A, 1)
    A(f"""s_add_u32 s{SX}, s{SX}, s50
s_addc_u32 s{SX+1}, s{SX+1}, 0
s_add_u32 s{SW_}, s{SW_}, s51
s_addc_u32 s{SW_+1}, s{SW_+1}, 0""")
    A.extend(flat(dma_w(0)) + flat(dma_x(0)) + flat(dma_x(1)) + flat(dma_w(1)))
    A(f"""v_and_b32 v96, 15, v2
v_and_b32 v98, 3, v2
v_bfe_u32 v99, v2, 2, 2
v_lshl_add_u32 v100, v97, 3, v99
v_lshlrev_b32 v101, 6, v99
v_lshl_add_u32 v101, v100, 9, v101
v_lshl_add_u32 v101, v98, 4, v101
v_add_u32 v{WADDR}, {BLK}, v101""")
    for T in range(1, 4): A(f'v_xor_b32 v{WADDR + T}, {T * 64}, v{WADDR}')
    A(f"""v_lshrrev_b32 v100, 1, v96
v_xor_b32 v100, v100, v97
v_lshlrev_b32 v100, 4, v100
v_lshl_add_u32 v100, v96, 7, v100
v_lshl_add_u32 v100, v1, 12, v100
v_add_u32 v{XADDR}, {2 * BLK}, v100
v_xor_b32 v{XADDR + 1}, 64, v{XADDR}
v_add_u32 v{XADDR + 2}, {4 * BLK}, v{XADDR}
v_add_u32 v{XADDR + 3}, {4 * BLK}, v{XADDR + 1}""")
    if OPT['su'] == '2': A.extend(flat(dma_w(2)) + flat(dma_x(2)))
    if OPT['su'] == '0':
        A.extend(flat(dma_x(2)) + flat(dma_w(2)) + flat(dma_w(3)))
        if OPT['pf'] == '1': code_prefetch(A, KNAME, 'L_code_end', 100, 253, 2, first=1, tag='b')
    KVS = f"""s_lshl_b32 s50, s49, 23
s_lshl_b32 s51, s47, 19
s_add_u32 s50, s50, s51
s_add_u32 s{SK}, s{SK}, s50|s_addc_u32 s{SK+1}, s{SK+1}, 0
s_mov_b32 s{SK+2}, 0x80000
s_mov_b32 s{SK+3}, 0x20000
s_add_u32 s{SV}, s{SV}, s50|s_addc_u32 s{SV+1}, s{SV+1}, 0
s_mov_b32 s{SV+2}, 0x80000
s_mov_b32 s{SV+3}, 0x20000"""
    ne = int(OPT['l2e'])
    if ne:
        A(KVS.replace('|', '\n')); KVS = ''
        A(f'v_lshlrev_b32 v100, 7, v2\nv_mul_u32_u24 v101, {ne * 1024}, v1\nv_add_u32 v100, v100, v101\nv_cmp_le_u32 vcc, {ne * 8}, v2\nv_cndmask_b32 v100, v100, -1, vcc')
        A(f's_mov_b32 s50, {8 * 8192}\ns_mov_b32 s51, {6 * 8192}')
        A(cl(f'buffer_load_dword a254, v100, {srd(SK)}, s50 offen {OPT["l2p"]}'), tag='l2')
        A(cl(f'buffer_load_dword a253, v100, {srd(SV)}, s51 offen {OPT["l2p"]}'), tag='l2')
    V = DEF_V; a, b, c, d, l15, g = 92, 93, 94, 95, 61, 62
    V += [f'v_add_u32 v{WADDR + 4 + T}, {6 * BLK}, v{WADDR + T}' for T in range(4)]
    V += f"""v_lshlrev_b32 v{VOFFO}, 4, v2
v_and_b32 v{l15}, 15, v2
v_lshrrev_b32 v{g}, 4, v2
v_lshlrev_b32 v{a}, 11, v1
v_lshl_add_u32 v{a}, v{g}, 8, v{a}
v_lshl_add_u32 v{b}, v1, 3, v{g}""".split('\n')
    for o in range(2):
        V += f"""v_add_u32 v{c}, {4 * o}, v{b}
v_and_b32 v{d}, 15, v{c}
v_xor_b32 v{d}, v{d}, v{l15}
v_lshl_add_u32 v{VOFFK + o}, v{d}, 4, v{a}
v_and_b32 v{d}, 7, v{c}
v_lshlrev_b32 v{d}, 1, v{d}
v_xor_b32 v{d}, v{d}, v{l15}
v_lshl_add_u32 v{VOFFV + o}, v{d}, 4, v{a}""".split('\n')
    V += [f'v_lshlrev_b32 v{a}, 12, v1', f'v_lshl_add_u32 v{a}, v{g}, 8, v{a}']
    for n in range(4):
        V += f"""v_add_u32 v{c}, {4 * n}, v{g}
v_xor_b32 v{d}, v{c}, v{l15}
v_lshl_add_u32 v{VSK + n}, v{d}, 4, v{a}
v_and_b32 v{d}, 7, v{c}
v_lshlrev_b32 v{d}, 1, v{d}
v_xor_b32 v{d}, v{d}, v{l15}
v_lshl_add_u32 v{VSV + n}, v{d}, 4, v{a}""".split('\n')
    V += [f'v_xor_b32 v{a}, v{g}, v{l15}', f'v_lshlrev_b32 v{a}, 4, v{a}', f'v_lshl_add_u32 v{KADDR}, v{l15}, 8, v{a}']
    V += [f'v_xor_b32 v{KADDR + u}, {u * 64}, v{KADDR}' for u in range(1, 4)]
    V += f"""v_lshrrev_b32 v{a}, 2, v2
v_and_b32 v{b}, 7, v{a}
v_lshlrev_b32 v{b}, 5, v{b}
v_lshl_add_u32 v{b}, v{a}, 8, v{b}
v_and_b32 v{c}, 3, v2
v_lshl_add_u32 v{b}, v{c}, 3, v{b}
v_add_u32 v{VADDR}, 0x10000, v{b}
v_mul_u32_u24 v{a}, 384, v{a}
v_lshl_add_u32 v{a}, v{c}, 3, v{a}
v_mul_u32_u24 v{b}, 96, v1
v_add_u32 v{JADDR}, v{a}, v{b}""".split('\n')
    V += [f'v_xor_b32 v{VADDR + T}, {T * 32}, v{VADDR}' for T in range(1, 8)]
    for n in range(3):
        t = VOFFJ + n
        V += f"""v_add_u32 v{d}, {64 * n}, v2
v_mul_u32_u24 v{t}, 2731, v{d}
v_lshrrev_b32 v{t}, 16, v{t}
v_mul_u32_u24 v{CW1}, 24, v{t}
v_sub_u32 v{d}, v{d}, v{CW1}
v_lshl_add_u32 v{t}, v1, 3, v{t}
v_mul_u32_u24 v{t}, 1152, v{t}
v_lshl_add_u32 v{t}, v{d}, 4, v{t}
v_subrev_u32 v{t}, {n * 1024}, v{t}""".split('\n')
    V += [f'v_mov_b32 v{CR}, 0']
    if OPT['cls'] != '0':
        cb = {'1': 's_lshr_b32 s51, s2, 6\ns_xor_b32 s51, s51, s2', '2': 's_mov_b32 s51, s2'}[OPT['cls']]
        JN1 = f'{cb}\ns_bitcmp1_b32 s51, 0|s_cselect_b32 s{SWS+2}, 36864, 0'
        JN2 = f'{cb}\ns_bitcmp1_b32 s51, 0|s_cselect_b32 s{SWD+2}, {3 * 128 * 9216 + 9216}, 0'
    else:
        JN1 = f's_mov_b32 s{SWS+2}, 36864'; JN2 = f's_mov_b32 s{SWD+2}, {3 * 128 * 9216 + 9216}'
    S_ = f"""s_and_b32 s50, s2, 127
s_mul_i32 s50, s50, 36864
s_add_u32 s{SWS}, s{SWS}, s50|s_addc_u32 s{SWS+1}, s{SWS+1}, 0
{JN1}
s_mov_b32 s{SWS+3}, 0x20000
s_lshl_b32 s{sW2K}, s{sW}, 11
{KVS}
s_mov_b32 s{sWS}, s{SO}
s_mov_b32 s{sWS+1}, s{SO+1}
s_mov_b32 s{sOUT}, s92
s_mov_b32 s{sOUT+1}, s93
s_lshr_b32 s50, s2, 7
s_lshl_b32 s50, s50, 9
s_and_b32 s51, s2, 64
s_add_u32 s50, s50, s51
s_bfe_u32 s51, s2, 0x10002
s_lshl_b32 s51, s51, 5
s_add_u32 s50, s50, s51
s_bfe_u32 s51, s2, 0x30003
s_lshl_b32 s51, s51, 2
s_add_u32 s50, s50, s51
s_and_b32 s51, s2, 3
s_add_u32 s50, s50, s51
s_mul_i32 s50, s50, 9216
s_add_u32 s50, s50, {WS_WO}
s_add_u32 s{SWD}, s{SO}, s50|s_addc_u32 s{SWD+1}, s{SO+1}, 0
{JN2}
s_mov_b32 s{SWD+3}, 0x20000
s_lshl_b32 s50, s2, 7
s_lshl_b32 s51, s{sW}, 2
s_add_u32 s50, s50, s51
s_add_u32 s50, s50, {WS_FL}
s_add_u32 s{SFL}, s{SO}, s50|s_addc_u32 s{SFL+1}, s{SO+1}, 0
s_mov_b32 s{SFL+2}, 68
s_mov_b32 s{SFL+3}, 0x20000""".split('\n')
    if OPT['stamps']:
        S_ += [f's_add_u32 s56, s{SO}, {WS_STAMP}|s_addc_u32 s57, s{SO+1}, 0', 's_mov_b32 s58, 0x100000', 's_mov_b32 s59, 0x20000']
    S_ += f"""s_lshl_b32 s50, s46, 2
s_add_u32 s50, s50, s{sW}
s_lshl_b32 s50, s50, 19
s_lshl_b32 s51, s47, 15
s_add_u32 s50, s50, s51
s_add_u32 s{SO}, s{SO}, s50|s_addc_u32 s{SO+1}, s{SO+1}, 0
s_mov_b32 s{SO+2}, 32768
s_mov_b32 s{SO+3}, 0x20000
s_mov_b32 s{sSC}, {f2i(SCALE):#x}
s_mov_b32 s{sTHR}, {f2i(2.0 ** 24):#x}
s_mov_b32 s{sLOW}, {f2i(2.0 ** (float(OPT['m0']) - 12)):#x}
s_mov_b32 s{sOo}, 0
s_mov_b32 s{sDBG}, s94
s_mov_b32 s{sDBG+1}, s95
s_mov_b32 s{sKo}, {8 * 8192}
s_mov_b32 s{sVo}, {6 * 8192}
s_mov_b32 s{sCnt}, 3
s_mov_b32 s{sHead}, 0""".split('\n')
    DEF_S.extend(x for x in S_ if x)
    if OPT['jo'] in '67' or (OPT['jo'] == '8' and OPT['j8'] == '0'):
        A.extend(DEF_V); DEF_V.clear()
        for x in DEF_S: A.extend(x.split('|'))
        DEF_S.clear()

def x_reads(pc):
    c = pc >> 1; blk = xblock(pc)
    return [Ins(f'ds_read_b128 v[{XF(2 * c + ks, 2 * (pc & 1) + qq)}:{XF(2 * c + ks, 2 * (pc & 1) + qq) + 3}], v{XADDR + ks + (2 if blk == 6 else 0)} offset:{(0 if blk == 6 else (blk - 2) * BLK) + qq * 2048}', f'rX{pc}')
            for ks in range(2) for qq in range(2)]
def w_read(t, h, T, dst):
    blk = wblock(t)
    ad = WADDR + (T >> 1) if blk <= 4 else WADDR + 4 + (T >> 1)
    off = (blk - 1 if blk <= 4 else blk - 7) * BLK + h * 256 + (T & 1) * 8
    d = int(dst[1:])
    return [Ins(f'ds_read_b64_tr_b16 {dst[0]}[{d + 2 * s}:{d + 2 * s + 1}], v{ad} offset:{off + s * 2048}', f'rW{t}') for s in range(2)]
def w_reads(t):
    out = []
    for f in range(16): out += w_read(t, f >> 3, f & 7, f'a{WF((16 * t + f) % NWS)}')
    return out
UH = ['a160', 'a192', 'a160', 'a192', 'a0', 'a32', 'a0', 'a32']
def uw(n, k, tt): return f'{UH[n][0]}{int(UH[n][1:]) + (k * 2 + tt) * 4}'
def unit_order(n):
    if not OPT['cqb']: return [(k, tt) for k in range(4) for tt in range(2)]
    if n == 0: return [(0, 0), (1, 0), (0, 1), (1, 1), (2, 0), (3, 0), (2, 1), (3, 1)]
    return [(k, tt) for tt in range(2) for k in range(4)]
def unit_mf(n):
    if not OPT['cqb']: return [(k, tt, qt) for k in range(4) for tt in range(2) for qt in range(4)]
    if n == 0: return [(2 * hf + k, tt, qt) for hf in range(2) for tt in range(2) for qt in range(4) for k in zig(2, qt & 1, 'q')]
    return [(k, tt, qt) for tt in range(2) for qt in range(4) for k in zig(4, qt & 1, 'q')]
def unit_reads(n):
    h, u = n >> 2, n & 3
    out = []
    for k, tt in unit_order(n): out += w_read(14 + k, h, 2 * u + tt, uw(n, k, tt))
    return out
def conv(n):
    h, u = n >> 2, n & 3
    V = []; pend = []
    for tt in range(2):
        for qt in range(4):
            acc = QACC(h, 2 * u + tt, qt)
            if h == 1: b = int(acc[1:]); rd = []
            else:
                b = 84 + ((n * 8 + tt * 4 + qt) % 3) * 4
                rd = [f'v_accvgpr_read_b32 v{b + r}, a{int(acc[1:]) + r}' for r in range(4)]
            mu = [f'v_mul_f32 v{b + r}, s{sSC}, v{b + r}' for r in range(4)]
            cv = [f'v_cvt_pk_bf16_f32 v{b}, v{b}, v{b + 1}', f'v_cvt_pk_bf16_f32 v{b + 1}, v{b + 2}, v{b + 3}']
            V += [Ins(x) for x in rd + mu + pend + cv]
            pend = [f'v_accvgpr_write_b32 a{Q(h, qt, u) + 2 * tt + r}, v{b + r}' for r in range(2)]
    V += [Ins(x) for x in pend]
    return V, [], V

def q_phase(A):
    stamp(A, 2)
    A('WAITVM X0+X1+W0+W1\ns_barrier')
    stamp(A, 3)
    def WP(c, f, ks): return 128 + ((16 * c + f) % 12) * 8 + ks * 4
    def pair_reads(c, f): return w_read(2 * c, f >> 3, f & 7, f'a{WP(c, f, 0)}') + w_read(2 * c + 1, f >> 3, f & 7, f'a{WP(c, f, 1)}')
    def JR(i): return f'a{224 + 4 * i}' if i < 8 else 'v92'
    def jstore(i):
        r, n = divmod(i, 3)
        pre = [f's_add_u32 s{sT0}, s{sW}, {4 * r}', f's_mul_i32 s{sMODE}, s{sT0}, 43', f's_lshr_b32 s{sMODE}, s{sMODE}, 7',
               f's_mul_i32 s{sMODE}, s{sMODE}, {128 * 9216 - 9216}', f's_mul_i32 s{sT0}, s{sT0}, 3072', f's_add_u32 s{sJ}, s{sT0}, s{sMODE}'] if n == 0 else []
        return [(pre, Ins(cl(f'buffer_store_dwordx4 {rng(JR(i), 4)}, v{VOFFO}, {srd(SWD)}, s{sJ} offen offset:{n * 1024} {OPT["st"]}'), 'Jst'), [])]
    def jdma(r):
        return [([f's_mov_b32 s{sWe}, {r * 384}', f's_mul_i32 m0, s{sW}, 3072'] if n == 0 else [],
                 Ins(f'buffer_load_dwordx4 v{VOFFJ + n}, {srd(SWS)}, s{sWe} offen offset:{n * 1024} nt lds', f'J{r}'), []) for n in range(3)]
    xr = x_reads(0) + x_reads(1)
    A.extend(xr[:1] + xr[2:3] + pair_reads(0, 0) + xr[1:2] + xr[3:] + pair_reads(0, 1) + pair_reads(0, 2))
    BG = 24
    N = 14 * 64
    G = Gaps(N)
    mf = []; ref = []
    PR = {(c, f): pair_reads(c, f) for c in range(7) for f in range(16)}
    XRD = {pc: x_reads(pc) for pc in range(2, 16)}
    for c in range(7):
        if c: ref += XRD[2 * c] + XRD[2 * c + 1]
        for f in range(16):
            if c or f > 2: ref += PR[c, f]
            for qi, qt in enumerate(zig(4, f & 1, 'q')):
                acc = QACC(f >> 3, f & 7, qt)
                for i, ks in enumerate(zig(2, qi & 1, 'q')):
                    m = Ins(mfma(acc, f'a{WP(c, f, ks)}', f'v{XF(2 * c + ks, qt)}', acc if (c or i) else '0')); mf.append(m); ref.append(m)
    U0 = unit_reads(0)[:8]
    ref += XRD[14] + XRD[15] + U0
    for t in range(14):
        o = 64 * t
        groups = []
        if t == 0: groups = [(dma_x(3), [5, 8, 11, 14]), (dma_x(4), [18, 22, 26, 30]), (dma_w(4), [34, 38, 42, 46]), (dma_x(5), [51, 54, 57, 60])]
        elif t == 1: groups = [(dma_w(5), [2, 7, 12, 17]), (dma_x(6), [28, 33, 38, 43]), (dma_w(6), [48, 52, 56, 60])]
        elif t == 2: groups = [(jdma(0), [2, 7, 12]), (dma_w(7), [18, 24, 30, 36]), (dma_x(7), [42, 48, 54, 60])]
        elif t in (5, 9): groups = [(dma_x(t + 5), [10, 14, 18, 22]), (jdma(t // 4), [28, 33, 38]), (dma_w(t + 5), [44, 50, 55, 60])]
        elif t == 13: groups = [(dma_kk(0), [28, 33, 38, 43]), (dma_vv(0), [48, 52, 56, 60])]
        elif t & 1: groups = [(dma_x(t + 5), [10, 16, 22, 29]), (dma_w(t + 5), [36, 44, 52, 60])]
        else: groups = [(dma_w(t + 5), [2, 10, 18, 26]), (dma_x(t + 5), [34, 42, 50, 58])]
        for gr, pos in groups:
            G.place_dma(gr, [o + x for x in pos])
            if gr[0][1].tag == f'X{t + 5}': G.sc[o + pos[0] - 3].append(f'WAITLG rX{t + 2}')
        for i, g in {4: [(0, 31)], 5: [(1, 5)], 6: [(2, 30)], 8: [(3, 31)], 9: [(4, 5)], 10: [(5, 30)], 12: [(6, 15), (7, 38), (8, 62)]}.get(t, []):
            G.place_dma(jstore(i), [o + g])
        if t == 12:
            G.v[o + 44].append(f'v_mov_b32 v{VPA}, 0')
            G.mem[o + 46].append(Ins(cl(f'buffer_store_dword v{VPA}, v{VOFFO}, {srd(SFL)}, 0 offen {OPT["st"]}'), 'Fz'))
        G.sc[o].append(f'WAITVM X{t + 2}')
        if t == 0: G.sc[2].append('WAITLG rX1')
        if t & 1:
            tags = f'W{t + 1}+W{t + 2}' + {3: '+J0', 7: '+J1', 11: '+J2'}.get(t, '')
            G.sc[o + BG] += [f'WAITVM {tags} lg0', 's_barrier']
        if t == 13: G.sc[o + 62] += ['WAITVM W16+W17+X16+X17 lg0', 's_barrier']
    def put(ins, g, lim=None):
        while G.mem[g] or ((g >> 6) & 1 and BG - 6 <= (g & 63) < BG): g += 1
        assert lim is None or g <= lim, (ins.text, g, lim)
        G.mem[g].append(ins); return g
    for t in range(14):
        g = 64 * t
        for r in XRD[t + 2]: g = put(r, g)
    g = 0
    for c in range(7):
        for f in range(16):
            if c == 0 and f < 3: continue
            P_ = 16 * c + f
            for i, r in enumerate(PR[c, f]):
                g = put(r, max(g, 8 * (P_ - 11), 128 * c - 64 + BG + (f * 4 + i) * 3 // 2 if c else 0), lim=min(8 * P_ - 5, 128 * c + 64 + BG - 7))
    for t in (3, 7, 11):
        g = 64 * t + BG + 1
        for n in range(3):
            d = JR((t // 4) * 3 + n)
            for sx in range(2): g = put(Ins(f'ds_read_b64_tr_b16 {d[0]}[{int(d[1:]) + 2 * sx}:{int(d[1:]) + 2 * sx + 1}], v{JADDR} offset:{n * 32 + sx * 16 * 384}'), g, lim=64 * (t + 1) + 8)
    g = 64 * 13 + BG
    for r in U0: g = put(r, g, lim=64 * 13 + 55)
    for i, x in enumerate(DEF_V[:56]): G.v[(i * 62) // 56].append(x)
    for i, x in enumerate(DEF_V[56:]): G.v[64 + (i * 62) // (len(DEF_V) - 56)].append(x)
    g = 30
    while DEF_S:
        if not G.sc[g] and g % 8 not in (6, 7): G.sc[g] += DEF_S.pop(0).split('|')
        g += 1
    assert g < 64 * 4, g
    if OPT['qtl']:
        for t in range(14): G.v[64 * t + 3].append('s_memtime s[98:99]'); G.v[64 * t + 40].append(f's_mov_b32 s{64 + t}, s98')
    out = [I(x) for x in G.weave(mf)]
    check_order(ref, out, 'Q')
    A.extend(out)
    stamp(A, 4)
    gsu = f"""s_and_b32 s50, s2, 6
s_lshl_b32 s50, s50, 3
s_lshr_b32 s51, s2, 5
s_lshl_b32 s51, s51, 1
s_add_u32 s50, s50, s51
s_lshr_b32 s51, s{sW}, 1
s_add_u32 s50, s50, s51
s_lshl_b32 s50, s50, 19
s_and_b32 s51, s2, 1
s_lshl_b32 s51, s51, 18
s_add_u32 s50, s50, s51
s_and_b32 s51, s{sW}, 1
s_lshl_b32 s51, s51, 11
s_add_u32 s50, s50, s51
s_add_u32 s{SGO}, s{sWS}, s50|s_addc_u32 s{SGO+1}, s{sWS+1}, 0
s_mov_b32 s{SGO+2}, {262144 - 2048}
s_and_b32 s50, s2, 4
s_bfe_u32 s51, s2, 0x20003
s_add_u32 s50, s50, s51
s_lshl_b32 s50, s50, 1
s_and_b32 s51, s2, 1
s_add_u32 s50, s50, s51
s_mul_i32 s50, s50, {64 * 9216}
s_add_u32 s50, s50, {WS_WO}
s_add_u32 s{SGW}, s{sWS}, s50|s_addc_u32 s{SGW+1}, s{sWS+1}, 0
s_mov_b32 s{SGW+2}, {64 * 9216}""".split('\n')
    NG = 288
    G = Gaps(NG + 8)
    mf = []; ref = []
    UR = [unit_reads(n) for n in range(8)]
    XR = x_reads(16) + x_reads(17)
    K0 = k_reads(0); K1 = k_reads(1)
    CV_ = [conv(n) for n in range(8)]
    ref += XR
    for n in range(8):
        h, u = n >> 2, n & 3
        m = [Ins(mfma(QACC(h, 2 * u + tt, qt), uw(n, k, tt), f'v{XF(14 + k, qt)}', QACC(h, 2 * u + tt, qt))) for k, tt, qt in unit_mf(n)]
        mf += m
        ref += (UR[n][8:] if n == 0 else UR[n]) + m + CV_[n][2]
    m = [Ins(x) for x in qk_mfmas(0)]
    mf += m; ref += K0 + m + K1
    if OPT['jo'] == '8':
        for i, jobs in enumerate([dma_vv(1), dma_kk(2), dma_vv(2)]):
            G.place_dma(jobs, [34 + 16 * (4 * i + x) for x in range(4)])
        kv = {1: 34}
    elif OPT['jo'] in '567':
        for i, jobs in enumerate([dma_kk(1), dma_vv(1), dma_kk(2), dma_vv(2)]):
            G.place_dma(jobs, [20 + 13 * (4 * i + x) for x in range(4)])
        kv = {1: 20 + 13 * 4}
    elif OPT['jo'] == '4':
        k0 = int(OPT['kv0'])
        for i, jobs in enumerate([dma_kk(0), dma_vv(0), dma_kk(1), dma_vv(1), dma_kk(2)]):
            st_ = (215 - k0) // 20
            G.place_dma(jobs, [k0 + st_ * (4 * i + x) for x in range(4)])
        kv = {1: k0 + st_ * 12}
    else:
        JS = [jstore(i) for i in range(9)]
        ref = [x[0][1] for x in JS] + ref
        order = [6, 8, 7, 0, 1, 2, 3, 4, 5]
        jp = [17, 24, 48, 76, 100, 124, 152, 176, 200]; fz = 220; kv = {0: 34, 1: 82, 2: 130, 3: 182}
        for i, g in zip(order, jp): G.place_dma(JS[i], [g])
        G.v[fz - 2].append(f'v_mov_b32 v{VPA}, 0')
        G.mem[fz].append(Ins(cl(f'buffer_store_dword v{VPA}, v{VOFFO}, {srd(SFL)}, 0 offen {OPT["st"]}'), 'Fz'))
        for i, jobs in enumerate([dma_kk(0), dma_vv(1), dma_kk(2), dma_vv(2)]):
            G.place_dma(jobs, [kv[i] + 11 * x for x in range(4)])
    G.place_dma(dma_kk(3), [250, 258, 266, 274])
    G.sc[kv[1] - 3].append('WAITLG rX16+rX17')
    gi = 260
    for x in gsu:
        while G.sc[gi]: gi += 1
        G.sc[gi] += x.split('|')
    BAR = 32 * 7 + 9
    G.sc[BAR] += ['WAITVM KK0 lg0', 's_barrier']
    def put(ins, g, lim=None):
        while G.mem[g] or (BAR - 5 <= g < BAR): g += 1
        assert lim is None or g <= lim, (ins.text, g, lim)
        G.mem[g].append(ins); return g
    cur = 0
    for n in range(8):
        V, D, _ = CV_[n]
        g0 = 32 * (n + 1) + 1; span = 30
        vp = [g0 + (i * span) // len(V) for i in range(len(V))]
        for x, g in zip(V, vp): G.v[g].append(x)
        for i, d in D: cur = put(d, max(cur, vp[i] + 1))
    g = 0
    for r in ((XR[:4] + UR[0][8:12] + XR[4:] + UR[0][12:]) if OPT['cqb'] else (XR[:2] + XR[4:6] + UR[0][8:12] + XR[2:4] + XR[6:] + UR[0][12:])): g = put(r, g)
    for n in range(1, 8):
        for i, r in enumerate(UR[n]):
            g = put(r, max(g, 32 * (n - 1) + (i * 3) // 2), lim=min((32 * n + 16 * (i // 8) - 5 + (i % 8) // 2) if OPT['cqb'] else 32 * n + 2 * i - 5, BAR - 6))
    g = BAR
    for i, r in enumerate(K0): g = put(r, max(g, BAR + 2 * i), lim=(256 + 16 * (i // 4) - 5 + i % 4) if OPT['cqk'] else 256 + 4 * i - 6)
    for i, r in enumerate(K1): g = put(r, max(g, (256 + 16 * (i // 4) + 16 + i % 4) if OPT['cqk'] else 256 + 4 * i + 4))
    zero = [Ins(x) for x in negm_init()]
    ones = [Ins(x) for x in f'v_and_b32 v{ONES}, 3, v2|v_cmp_eq_u32 vcc, 0, v{ONES}|v_mov_b32 v{ONES + 1}, 0x3f803f80|v_cndmask_b32 v{ONES}, 0, v{ONES + 1}, vcc|v_mov_b32 v{ONES + 1}, v{ONES}|v_mov_b64 v[{ONES + 2}:{ONES + 3}], v[{ONES}:{ONES + 1}]'.split('|')]
    sm0 = [Ins(x) for x in sm_dense(0, 0, 68)]
    if not INL():
        k = ref.index(m[0]); ref[k:k] = zero
        G.v[255] += zero; zero = []
    ref += ones + zero + sm0
    NH = int(OPT['nh'])
    for i, x in enumerate(sm0[:NH]): G.v[264 + (i * 23) // NH if i < 5 else 280 + ((i - 5) * 8) // max(NH - 5, 1)].append(x)
    G.v[290] += ones + zero[:4] + sm0[NH:] + zero[4:]
    if OPT['stamps'] and not OPT['qtl']: G.sc[257].append('s_memtime s[74:75]')
    if OPT['qtl']:
        for n in range(9): G.v[32 * n + 3].append('s_memtime s[98:99]'); G.v[32 * n + 25].append(f's_mov_b32 s{78 + n}, s98')
    out = [I(x) for x in G.weave(mf)]
    check_order(ref, out, 'QB')
    A.extend(out)

def seg_name(j):
    if j == 0 or (j == 32 and not OPT['w1']): return 's0'
    if j == 32: return 's32'
    if j == 31: return 'sp31'
    if j == 63: return 'fin31'
    if j >= 56: return f'p{j}'
    return f'r{j % 8}'

def gen():
    A = Prog()
    setup(A)
    q_phase(A)
    stamp(A, 6)
    if OPT['tl']: A('s_mov_b32 s97, 0')
    def tagsof(which, t):
        if which == 'V' and t < 6: return f'VV{t // 2}'
        if which == 'K' and t < 8: return f'KK{t // 2}'
        return f'{which}{t}'
    GA = [4, 5, 6]
    def WB(c, n, u): return 128 + ((9 * c + n) % 4) * 16 + u * 4
    def GACC(n, mm): i = n * 2 + mm; return 64 + i * 4 if i < 16 else 200 + (i - 16) * 4
    def OB(s, mm): return 128 + ((s + 8) % 16) * 8 + mm * 4
    def g_wreads(c, n):
        out = []
        for u in range(4):
            ad = (c % 4) * 36864 + u * 9216 + n * 1024
            out.append(Ins(f'ds_read_b128 v[{WB(c, n, u)}:{WB(c, n, u) + 3}], v{GA[ad >> 16]} offset:{ad & 0xffff}', f'rG{c}'))
        return out
    def g_oloads(s):
        gen_, i, u = s >> 5, (s >> 2) & 7, s & 3
        off, sr = ((2 * i + gen_) * 16384 + u * 4096, SGO) if s < 64 else (i * 32768 + u * 4096, SG2O)
        return [([f's_mov_b32 s{sWe}, {off}'] if mm == 0 else [],
                 Ins(cl(f'buffer_load_dwordx4 a[{OB(s, mm)}:{OB(s, mm) + 3}], v{VSK_[mm]}, {srd(sr)}, s{sWe} offen {OPT["g_o"]}'), f'GO{s}'), []) for mm in range(2)]
    def g_w8(a, tag):
        return [([f's_mov_b32 s{sKo}, {a}', f's_add_u32 m0, s{sW2K}, {a}'] if o == 0 else [],
                 Ins(cl(f'buffer_load_dwordx4 v{VOFFK}, {srd(SGW)}, s{sKo} offen offset:{o * 1024} {OPT["g_w"]} lds'), tag), []) for o in range(2)]
    def g_wchunk(c):
        out = []
        for n in range(9):
            pre = [f's_add_u32 s{sKo}, s{sXo}, {(c % 16) * 36864 + (n // 4) * 4096}', f's_add_u32 m0, s{sXo}, {(c % 4) * 36864 + (n // 4) * 4096}'] if n % 4 == 0 else []
            out.append((pre, Ins(cl(f'buffer_load_dwordx4 v{VOFFO}, {srd(SGW if c < 16 else SG2W)}, s{sKo} offen offset:{(n % 4) * 1024} {OPT["g_w"]} lds'), f'GW{c}'), []))
        return out
    poll1 = f'buffer_load_dword v{VPOLL}, v{VPA}, {srd(SFP)}, 0 offen sc1'
    poll2 = f'buffer_load_dword v{VPOLL}, v{VPA}, {srd(SFP)}, 0 offen offset:16 sc1'
    pollc = f'buffer_load_dword v{VPOLL}, v{VPA}, {srd(SWS)}, 0 offen sc1'
    polld = f'buffer_load_dword v{VPOLL}, v{VPP}, {srd(SFP)}, 0 offen offset:64 sc1'
    ne1 = f'v_cmp_ne_u32 vcc, 1, v{VPOLL}'
    qcopy = [f'v_accvgpr_mov_b32 a{128 + i}, a{192 + i}' for i in range(64)]

    POST = []
    def fill(G, j):
        jj = j & 31; nm = seg_name(j); p = j & 1
        if j % 2 == 0:
            tags = [tagsof('V', j), tagsof('V', j + 1), tagsof('K', j + 2), tagsof('K', j + 3)] + (['Jst', 'Fz'] if j == 6 else [])
            G.sc[0] += [f'WAITVM {"+".join(tags)} lg0', 's_barrier']
        if j < 63:
            for pos, x in softmax_stream(j):
                if pos >= NG: G.v[pos - NG].append(x)
            for pos, x in softmax_stream(j + 1):
                if pos < NG: G.v[pos].append(x)
        if jj == 0:
            G.v[20].append(f'v_max_f32 v{CT}, v{Lr(p, 0)}, v{Lr(p, 1)}')
            G.v[22].append(f'v_min_f32 v{VPG}, v{Lr(p, 0)}, v{Lr(p, 1)}')
            G.v[29] += [f'v_max3_f32 v{CT}, v{CT}, v{Lr(p, 2)}, v{Lr(p, 3)}', f'v_min3_f32 v{VPG}, v{VPG}, v{Lr(p, 2)}, v{Lr(p, 3)}']
            G.v[30] += [f'v_cmp_gt_f32 s[50:51], s{sLOW}, v{VPG}']
            G.v[31] += [f'v_cmp_lt_f32 vcc, s{sTHR}, v{CT}']
            G.sc[32] += ['s_or_b64 s[50:51], s[50:51], vcc', f's_cbranch_scc1 L_st_{nm}', f'L_bk_{nm}:']
        else:
            G.v[20].append(f'v_max_f32 v{CT}, v{Lr(p, 0)}, v{Lr(p, 1)}')
            G.v[29].append(f'v_max3_f32 v{CT}, v{CT}, v{Lr(p, 2)}, v{Lr(p, 3)}')
            G.v[31].append(f'v_cmp_lt_f32 vcc, s{sTHR}, v{CT}')
            G.sc[32] += [f's_cbranch_vccnz L_st_{nm}', f'L_bk_{nm}:']
        if j < 63:
            for r, g in zip(v_reads(j), [1, 3, 5, 7, 9, 13, 15, 17, 19, 21, 22, 23, 25, 33, 35, 37]): G.mem[g].append(r)
            if j + 2 < 64:
                for r, g in zip(k_reads(j + 2), [39, 41, 45, 47, 49, 51, 53, 55]): G.mem[g].append(r)
            if j < 56: G.place_dma(dma_kv('K', j + 8) + dma_kv('V', j + 6), [11, 27, 43, 59])
            else:
                W8 = lambda i: g_w8(i * 8192, f'P{i}')
                jobs = {56: dma_kv('V', 62) + W8(0) + W8(16) + g_oloads(0), 57: dma_kv('V', 63) + W8(1) + W8(17) + g_oloads(1),
                        58: W8(2) + g_oloads(2) + W8(8) + g_oloads(3), 59: W8(3) + g_oloads(4) + W8(9) + g_oloads(5),
                        60: W8(4) + g_oloads(6) + W8(10) + g_oloads(7), 61: W8(5) + W8(11),
                        62: W8(6) + W8(7) + W8(12) + W8(13) + g_oloads(8) + g_oloads(9)}[j]
                pos = {8: [4, 11, 20, 27, 43, 57, 63, 67], 4: [11, 27, 43, 59], 12: [4, 11, 20, 27, 39, 43, 47, 51, 55, 59, 63, 67]}[len(jobs)]
                G.place_dma(jobs, pos)
                G.v[3].append(f'v_mov_b32 v{VPG}, {j - 55}')
                G.mem[31].append(Ins(cl(f'buffer_store_dword v{VPG}, v{VL4}, {srd(SFL)}, 0 offen offset:48 {OPT["st"]}'), 'PG'))
                if j == 61:
                    G.v[35] += [f'v_mad_u32_u24 v{VPR}, v{VPR}, {OPT["bm"]}, {OPT["ba"]}']
                    G.v[39] += [f'v_lshrrev_b32 v{VPR}, 3, v{VPR}']
                    G.v[47] += [f'v_min_u32 v{VPR}, {OPT["bmax"]}, v{VPR}']
                    G.v[51] += [f'v_add_u32 v{VPG}, 1, v{VPR}']
                    G.v[55] += [f'v_lshlrev_b32 v{VPOLL}, 2, v1']
                    G.v[57] += [f'v_add_u32 v{VPOLL}, {160 * 1024 - 16}, v{VPOLL}']
                    G.mem[63].append(Ins(cl(f'buffer_store_dword v{VPG}, v{VL4}, {srd(SFL)}, 0 offen offset:64 {OPT["st"]}'), 'DG'))
                    G.mem[61].append(Ins(f'ds_write_b32 v{VPOLL}, v{VPR}'))
            if j == 31:
                G.pack(qcopy, 1, 31)
                NB = int(OPT['nb'])
                prep, un = epilogue(False, 160); _, up = epilogue(True, 160)
                units = un[:NB] + up[NB:]
                seq = []; cut = None
                for k in range(16):
                    if k == NB: cut = len(seq)
                    seq += units[k][0]
                    if k: seq += units[k - 1][3]
                    seq += units[k][1] + units[k][2]
                seq += units[15][3] + negm_init()
                G.pack(prep, 33, 41)
                pos = G.pack(seq[:cut], 42, NG)
                for x, g in zip(seq[:cut], pos):
                    x = I(x)
                    if x.mn == 'v_accvgpr_read_b32':
                        a = [r for r in x.rd if r[0] == 'a'][0][1]
                        assert g >= pvi(a // 4) + 2, (x.text, g)
                POST.extend(seq[cut:])
        if nm == 'r6': G.sc[66].append(f's_sub_u32 s{sCnt}, s{sCnt}, 1')
        if nm == 'r7': G.sc[66].append(f's_cmp_lt_u32 s{sKo}, 0x50000')

    j = 0
    while j < 64:
        nm = seg_name(j)
        A(f'.mark {nm}')
        G = Gaps(NG)
        fill(G, j)
        if j == 31 and not INL(): A.extend(negm_init())
        if j == 63:
            P0 = v_reads(j)
            dn = sm_dense(63, NG, 999)
            ol = flat(g_oloads(10) + g_oloads(11) + g_oloads(12))
            k = 0
            for i, x in enumerate(dn):
                P0.append(x)
                tgt = len(ol) * (i + 1) // len(dn)
                while k < tgt: P0.append(ol[k]); k += 1
            G.v[0] += P0
            G.v[18] += [f'v_mov_b32 v{GA[0]}, v{VOFFO}', f'v_add_u32 v{GA[1]}, 0x10000, v{VOFFO}', f'v_add_u32 v{GA[2]}, 0x20000, v{VOFFO}', f's_mul_i32 s{sXo}, s{sW}, 9216']
            G.sc[34] += ['WAITVM P4 lg0', 's_barrier']
            for r, g in zip(g_wreads(0, 0) + g_wreads(0, 1) + g_wreads(0, 2), [35, 38, 41, 43, 47, 50, 52, 55, 58, 60, 64, 66]): G.mem[g].append(r)
            G.v[18] += [f'v_mov_b32 v{VPG}, {160 * 1024 - 16}']
            G.mem[36].append(Ins(f'ds_read_b32 v{VPR}, v{VPG}'))
            G.place_dma(g_w8(14 * 8192, 'P14') + g_w8(15 * 8192, 'P15') + g_oloads(13) + g_oloads(14), [37, 40, 45, 49, 54, 57, 61, 65])
            prep2, units2 = epilogue(int(OPT['epg']) == 0, EP + 8)
            epi, _, _ = epi_flat(units2)
            G.pack(prep2, 34, 40)
            ne = 0
            if int(OPT['epg']):
                ne = 49
                G.pack(epi[:ne], 42, NG)
            epi = epi[ne:]
        A.extend(G.weave(step_mfmas(j)))
        def atomic():
            A('WAITVM Jst+Fz')
            A(f's_mov_b32 s{SWS}, s{sDBG}\ns_mov_b32 s{SWS + 1}, s{sDBG + 1}\ns_mov_b32 s{SWS + 2}, 4\nv_mov_b32 v{VFLAG}, 1\nv_lshlrev_b32 v{VPA}, 2, v0\nv_lshlrev_b32 v{VL4}, 7, v2')
            A(f'buffer_atomic_add v{VFLAG}, v{VPA}, {srd(SWS)}, 0 offen sc1', tag='Cwo')
        if j == 7:
            A('.mark b7')
            if OPT['atom'] == '0': atomic()
        if j == 39:
            A('.mark b39')
            A('WAITVM Ost')
            A(cl(f'buffer_store_dword v{VFLAG}, v{VL4}, {srd(SFL)}, 0 offen {OPT["st"]}'), tag='F1')
            if OPT['atom'] == '1': A(pollc, tag='Pc')
        if j == 47:
            A('.mark b47')
            A(f's_movk_i32 s{sMODE}, 256')
            A.extend(spin_check('c', pollc, f'v_cmp_gt_u32 vcc, s{sMODE}, v{VPOLL}'))
            A(f"""s_andn2_b32 s50, s2, 0x38
s_lshl_b32 s50, s50, 7
s_bfe_u32 s51, s2, 0x10005
s_lshl_b32 s51, s51, 3
s_add_u32 s50, s50, s51
s_lshr_b32 s51, s{sW}, 1
s_lshl_b32 s51, s51, 2
s_add_u32 s50, s50, s51
s_add_u32 s{SFP}, s{sWS}, {WS_FL}
s_addc_u32 s{SFP+1}, s{sWS+1}, 0
s_mov_b32 s{SFP+2}, 32768
v_and_b32 v{VPA}, 7, v0
v_lshlrev_b32 v{VPA}, 10, v{VPA}
v_add_u32 v{VPA}, s50, v{VPA}
s_xor_b32 s50, s2, 1
s_lshl_b32 s50, s50, 7
s_lshl_b32 s{sW4}, s{sW}, 2
v_mov_b32 v{VPP}, s50""")
            A(poll1, tag='PL1')
            code_prefetch(A, 'L_fin', 'L_code_end', 21, 23, 1); code_prefetch(A, 'L_fin', 'L_code_end', 21, 25, 1, first=1, tag='c')
        if j == 55:
            A('.mark b55')
            A.extend(spin_check('f1', poll1, ne1))
            A(f'v_add_u32 v{VOFFK}, s{sW2K}, v{VOFFO}\ns_and_b32 s50, s2, 1\ns_lshl_b32 s50, s50, 10\nv_add_u32 v{VSK_[1]}, s50, v{VOFFO}\nv_xor_b32 v{VSK_[0]}, 0x400, v{VSK_[1]}')
            A(f'buffer_load_dword v{VPR}, v{VPP}, {srd(SFP)}, 0 offen offset:48 sc1', tag='PLP')
        if j == 31:
            A('.mark epi')
            stamp(A, 7)
            if OPT['atom'] == '1': atomic()
            A(f'v_mov_b32 v{VPA}, 0')
            if OPT['atom'] == '0': A(pollc, tag='Pc')
            A.extend(POST)
            A(f's_mov_b32 s{sHead}, 1\ns_mov_b32 s{sCnt}, 3')
            stamp(A, 8)
        j += 1
    A('.mark tail')
    stamp(A, 9)
    EPG = int(OPT['epg'])
    ek = 0
    G2 = int(OPT['g2s']); LO = int(OPT['lo']); LW = int(OPT['lw']); S0 = int(OPT['gs0']); S1 = int(OPT['gs1'])
    items = []
    NS = 64 + 4 * int(OPT['bmax']); G3 = 56
    for x in range(15, NS):
        for jb in g_oloads(x): items.append(((x & ~3) - LO - (3 - (x & 3)) * 0.9, max((x & ~3) - 12, G2 + 1 if x >= 32 else 0, G3 + 1 if x >= 64 else 0), jb))
    for c in range(4, NS // 4):
        for n, jb in enumerate(g_wchunk(c)): items.append((4 * c - 1 - LW - (8 - n) * 4 / 9.0, 4 * (c - 4) + 3, jb))
    items.sort(key=lambda z: z[0])
    sched = [[] for _ in range(NS)]
    cur = 0
    for i, (dl, rl, jb) in enumerate(items):
        k = int(S0 + i * (S1 - S0 + 1) / 206)
        k = max(min(k, int(dl)), rl, cur)
        while len(sched[k]) >= 6: k += 1
        sched[k].append(jb); cur = k
    def when(tag): return [k for k in range(NS) if any(x[1].tag == tag for x in sched[k])]
    CL = max(when('GO31')) + 1
    assert CL + 2 < min(when('GO48')) and CL + 2 < min(when('GW12')), (CL, when('GO48'), when('GW12'))
    assert NS == 64 or min(when('GW16')) > 47
    if EPG == 0:
        A.extend(epi); ek = len(epi)
    if OPT['verbose']: print([len(x) for x in sched])
    SQ = []
    def sq_add(txt):
        L = txt.split('\n'); i = 0
        while i < len(L):
            k = 1
            while i + k < len(L) and L[i + k].startswith(('s_addc', 's_subb', 's_cselect')): k += 1
            SQ.append(L[i:i + k]); i += k
    rq = []
    for c in range(NS // 4):
        for n in range(9):
            if c == 0 and n < 3: continue
            q = 9 * c + n
            lo = max(8 * (q - 3), 72 * c - 20)
            for u, r in enumerate(g_wreads(c, n)): rq.append((lo, 8 * q + u - 6, r))
    for s_ in range(NS):
        c, u = s_ >> 2, s_ & 3
        mf = [mfma(f'v{GACC(n, mm)}', f'v{WB(c, n, uu)}', f'a{OB(4 * c + uu, mm)}', f'v{GACC(n, mm)}' if (c or ui) else '0') for n in range(9) for mi, mm in enumerate(zig(2, n & 1, 'g')) for ui, uu in enumerate(zig(4, mi, 'g'))][18 * u:18 * u + 18]
        G = Gaps(18)
        if u == 2 and c < NS // 4 - 1:
            tags = {0: 'P5+P6+P7+P8', 1: 'P9+P10+P11+P12+P13', 2: 'P14+P15+P16+P17'}.get(c, f'GW{c + 1}')
            G.sc[16] += [f'WAITVM {tags} lg0', 's_barrier']
            assert not [1 for q in sched[s_:] for x in q if x[1].tag == f'GW{c + 1}'], c
        jobs = sched[s_]
        for x in jobs:
            if x[1].tag.startswith('GO'): assert (int(x[1].tag[2:]) & ~3) >= s_ + 2, (s_, x[1].tag)
        jp = {0: [], 1: [10], 2: [5, 14], 3: [3, 9, 15], 4: [3, 8, 12, 15], 5: [2, 6, 9, 12, 15], 6: [2, 5, 8, 11, 14, 17]}[len(jobs)]
        G.place_dma(jobs, jp)
        for g in range(18):
            if g in jp or not rq: continue
            gg = 18 * s_ + g
            if rq[0][0] <= gg:
                assert gg <= rq[0][1], (gg, rq[0][1], rq[0][2].text)
                if u == 2 and g >= 16: assert rq[0][2].tag != f'rG{c}'
                G.mem[g].append(rq.pop(0)[2])
        if s_ == int(OPT['p2s']): G.mem[17].append(Ins(poll2, 'PL2'))
        if OPT['gtl']:
            if s_ % 2 == 0: G.sc[12].append('s_memtime s[98:99]')
            elif s_ < 64: G.v[0].append(f'v_writelane_b32 v59, s98, {s_ // 2}')
        for g in range(18):
            n = EPG - (1 if G.mem[g] else 0)
            while n > 0 and ek < len(epi):
                x = epi[ek]
                if isinstance(x, Ins) and x.kind == 'vst':
                    if G.v[g]: break
                    G.mem[g].append(x); ek += 1; n -= 1; continue
                G.v[g].append(x); ek += 1
                if not x.startswith('s_'): n -= 1
        if s_ == int(OPT['f2s']):
            assert ek == len(epi), (ek, len(epi))
            G.sc[16].append('WAITVM Ost')
            G.mem[17].append(Ins(cl(f'buffer_store_dword v{VFLAG}, v{VL4}, {srd(SFL)}, 0 offen offset:16 {OPT["st"]}'), 'F2'))
        if s_ == G2: G.v[17] += spin_check('f2', poll2, ne1)
        nxt = None
        if s_ == CL:
            G.v[15] += [f'v_readfirstlane_b32 s{sGive}, v{VPR}']
            nxt = f"""s_sub_u32 s50, 16, s{sGive}
s_mul_i32 s{SGW+2}, s50, 36864
s_sub_u32 s50, 8, s{sGive}
s_lshl_b32 s50, s50, 15
s_min_u32 s{SGO+2}, s{SGO+2}, s50"""
        if s_ == 38: G.mem[17].append(Ins(polld, 'PLD'))
        if s_ == 43:
            G.v[15] += spin_check('d', polld, f'v_cmp_eq_u32 vcc, 0, v{VPOLL}')
            G.v[16] += [f'v_readfirstlane_b32 s{sRem}, v{VPOLL}', f'v_xor_b32 v{VPA}, 128, v{VPA}']
            nxt = f"""s_sub_u32 s{sRem}, s{sRem}, 1
s_min_u32 s{sRem}, s{sRem}, {OPT['bmax']}
s_bitcmp1_b32 s2, 0
s_cselect_b32 s50, 0, {2 * 64 * 9216}
s_mul_i32 s{SG2W+2}, s{sRem}, 36864
s_add_u32 s{SG2W}, s{SGW}, s50
s_addc_u32 s{SG2W+1}, s{SGW+1}, 0
s_sub_u32 s{SG2W}, s{SG2W}, s{SG2W+2}
s_subb_u32 s{SG2W+1}, s{SG2W+1}, 0
s_bitcmp1_b32 s2, 0
s_cselect_b32 s50, 0, {2 * 262144}
s_add_u32 s50, s50, 16384
s_lshl_b32 s51, s{sRem}, 15
s_add_u32 s{SG2O}, s{SGO}, s50
s_addc_u32 s{SG2O+1}, s{SGO+1}, 0
s_sub_u32 s{SG2O}, s{SG2O}, s51
s_subb_u32 s{SG2O+1}, s{SG2O+1}, 0
s_max_u32 s51, s51, {16384 + 2048}
s_sub_u32 s{SG2O+2}, s51, {16384 + 2048}
s_mov_b32 s{SG2O+3}, 0x20000
s_cmp_eq_u32 s{sRem}, 0
s_cselect_b32 s50, s{sGive}, 0
s_add_u32 s{sRem}, s{sRem}, 4
s_sub_u32 s{sRem}, s{sRem}, s50"""
        if s_ == G3 - 4 and NS > 64: G.mem[17].append(Ins(poll2, 'PL3'))
        if s_ == G3 and NS > 64: G.v[17] += spin_check('f3', poll2, ne1)
        if u == 3 and 11 <= c < NS // 4 - 1:
            G.sc[18] += [f's_sub_u32 s{sRem}, s{sRem}, 1', 's_cbranch_scc1 L_xchg']
        if s_ == 30:
            nxt = f"""s_lshl_b32 s50, s2, 2
s_add_u32 s50, s50, s{sW}
s_mul_i32 s50, s50, 9216
s_add_u32 s50, s50, {WS_X}
s_add_u32 s{SO}, s{sWS}, s50
s_addc_u32 s{SO+1}, s{sWS+1}, 0
s_mov_b32 s{SO+2}, 9216
s_xor_b32 s50, s2, 1
s_lshl_b32 s51, s50, 2
s_add_u32 s51, s51, s{sW}
s_mul_i32 s51, s51, 9216
s_add_u32 s51, s51, {WS_X}
s_add_u32 s{SV}, s{sWS}, s51
s_addc_u32 s{SV+1}, s{sWS+1}, 0
s_mov_b32 s{SV+2}, 9216
s_and_b32 s50, s2, 2
s_lshl_b32 s50, s50, 2
s_lshr_b32 s51, s2, 5
s_add_u32 s50, s50, s51
s_lshl_b32 s50, s50, 2
s_add_u32 s50, s50, s{sW}
s_lshl_b32 s50, s50, 1
s_and_b32 s51, s2, 1
s_add_u32 s50, s50, s51
s_mul_i32 s50, s50, {16 * 2304}
s_bfe_u32 s51, s2, 0x10002
s_mul_i32 s51, s51, 1152
s_add_u32 s50, s50, s51
s_bfe_u32 s51, s2, 0x20003
s_mul_i32 s51, s51, 288
s_add_u32 s50, s50, s51
s_add_u32 s{SOUT}, s{sOUT}, s50
s_addc_u32 s{SOUT+1}, s{sOUT+1}, 0
s_mov_b32 s{SOUT+2}, {15 * 2304 + 288}"""
        if 36 <= s_ < 41:
            k = s_ - 36
            vv = f"""v_add_u32 v28, {64 * k}, v2
v_mul_u32_u24 v29, 3641, v28
v_lshrrev_b32 v29, 16, v29
v_mul_u32_u24 v30, 18, v29
v_sub_u32 v30, v28, v30
v_lshlrev_b32 v30, 4, v30
v_mad_u32_u24 v{32 + k}, v29, s{sT0}, v30
v_mul_u32_u24 v29, 304, v29
v_add3_u32 v{44 + k}, v29, v30, v31""".split('\n')
            if k == 0:
                vv = [f's_movk_i32 s{sT0}, 2304\ns_movk_i32 s{sMODE}, 4096', 'v_lshlrev_b32 v31, 13, v1', 'v_and_b32 v29, 15, v2', 'v_mul_u32_u24 v29, 304, v29', 'v_lshrrev_b32 v30, 4, v2',
                      'v_lshl_add_u32 v29, v30, 3, v29', 'v_add_u32 v39, v29, v31', f'v_add_u32 v37, 0x1000, v{VOFFO}', (f'v_lshl_add_u32 v38, v2, 3, s{sMODE}' if OPT['xb'] else f'v_add_u32 v38, 0x2000, v{VOFFO}')] + vv
            for i, x in enumerate(vv): G.v[i].append(x)
        for g in range(18):
            if SQ and not G.sc[g] and (18 * s_ + g) % 8 < 4: G.sc[g] += SQ.pop(0)
        if s_ in (29, 42, 46): assert not SQ, (s_, len(SQ))
        if nxt: sq_add(nxt)
        A.extend(G.weave(mf))
    A('L_xchg:')
    stamp(A, 10)
    A('s_nop 7')
    vo3 = [VOFFO, 37, 38]
    pollx = f'buffer_load_dword v{VPOLL}, v{VPP}, {srd(SFP)}, s{sW4} offen offset:32 sc1'
    XB = OPT['xb']
    if XB:
        for n in range(9):
            a_ = GACC(n, 0)
            A(f'v_cvt_pk_bf16_f32 v{208 + 2 * n}, v{a_}, v{a_ + 1}\nv_cvt_pk_bf16_f32 v{209 + 2 * n}, v{a_ + 2}, v{a_ + 3}')
            if n & 1: A(cl(f'buffer_store_dwordx4 v[{206 + 2 * n}:{209 + 2 * n}], v{VOFFO}, {srd(SO)}, 0 offen offset:{(n // 2) * 1024} {OPT["st"]}'))
        A(cl(f'buffer_store_dwordx2 v[224:225], v38, {srd(SO)}, 0 offen {OPT["st"]}'))
    else:
        for n in range(9):
            A(cl(f'buffer_store_dwordx4 v[{GACC(n, 0)}:{GACC(n, 0) + 3}], v{vo3[n // 4]}, {srd(SO)}, 0 offen offset:{(n % 4) * 1024} {OPT["st"]}'))
    A('s_waitcnt vmcnt(0) lgkmcnt(0)')
    if OPT['xp']:
        px2 = pollx.replace(f'v{VPOLL},', f'v{VPG},')
        A(pollx)
        A(cl(f'buffer_store_dword v{VFLAG}, v{VL4}, {srd(SFL)}, 0 offen offset:32 {OPT["st"]}'))
        A('s_barrier')
        A(f's_waitcnt vmcnt(1)\n{ne1}\ns_cbranch_vccnz L_spin_x\nL_back_x:')
        SPINS.append(f"""L_spin_x:
s_mov_b32 s{sT0}, 0x40000
{pollx}
s_sleep 6
L_spin2_x:
{px2}
s_waitcnt vmcnt(1)
{ne1}
s_nop 1
s_cbranch_vccz L_back_x
{pollx}
s_sub_u32 s{sT0}, s{sT0}, 1
s_cbranch_scc1 L_back_x
s_waitcnt vmcnt(1)
v_cmp_ne_u32 vcc, 1, v{VPG}
s_nop 1
s_cbranch_vccnz L_spin2_x
s_branch L_back_x""")
    else:
        A(cl(f'buffer_store_dword v{VFLAG}, v{VL4}, {srd(SFL)}, 0 offen offset:32 {OPT["st"]}'))
        A(pollx)
        A('s_barrier')
        A.extend(spin_check('x', pollx, ne1))
    if XB:
        A(f's_mov_b32 s{sT0}, 0xffff0000')
        for k in range(4): A(f'buffer_load_dwordx4 v[{228 + 4 * k}:{231 + 4 * k}], v{VOFFO}, {srd(SV)}, 0 offen offset:{k * 1024} sc1')
        A(f'buffer_load_dwordx2 v[244:245], v38, {srd(SV)}, 0 offen sc1')
    else:
        for n in range(9):
            A(f'buffer_load_dwordx4 v[{128 + 4 * n}:{131 + 4 * n}], v{vo3[n // 4]}, {srd(SV)}, 0 offen offset:{(n % 4) * 1024} sc1')
    for n in range(9):
        a = GACC(n, 1); b = 128 + 4 * n
        if XB:
            for r in range(2): A(f'v_lshlrev_b32 v{b + 2 * r}, 16, v{228 + 2 * n + r}\nv_and_b32 v{b + 2 * r + 1}, s{sT0}, v{228 + 2 * n + r}')
        for r in range(0, 4, 2): A(f'v_pk_add_f32 v[{a + r}:{a + r + 1}], v[{a + r}:{a + r + 1}], v[{b + r}:{b + r + 1}]')
        A(f'v_cvt_pk_bf16_f32 v{b}, v{a}, v{a + 1}\nv_cvt_pk_bf16_f32 v{b + 1}, v{a + 2}, v{a + 3}')
        A(f'ds_write_b64 v39, v[{b}:{b + 1}] offset:{n * 32}')
    for k in range(5): A(f'ds_read_b128 v[{168 + 4 * k}:{171 + 4 * k}], v{44 + k}')
    for k in range(5): A(f'buffer_store_dwordx4 v[{168 + 4 * k}:{171 + 4 * k}], v{32 + k}, {srd(SOUT)}, 0 offen {OPT["out_st"]}'.rstrip())
    if OPT['stamps']:
        A('s_waitcnt vmcnt(0)')
        stamp(A, 11)
        if OPT['gtl']:
            A('s_lshl_b32 s50, s2, 10\ns_add_u32 s50, s50, 0x80000\nv_lshlrev_b32 v42, 2, v0\nbuffer_store_dword v59, v42, s[56:59], s50 offen')
        if OPT['diag'] == '0': store_stamps(A, 7)
        elif OPT['diag'] == '3':
            A(f'''s_memrealtime s[62:63]
s_load_dwordx2 s[4:5], s[0:1], 88
s_load_dwordx2 s[8:9], s[0:1], 0
s_waitcnt lgkmcnt(0)
s_load_dword s10, s[8:9], 0
s_mov_b32 s6, 64
s_mov_b32 s7, 0x20000
v_lshlrev_b32 v4, 6, v0
s_and_b32 s51, s2, 7
s_lshl_b32 s51, s51, 2
v_mov_b32 v5, s62
buffer_atomic_umax v5, v4, s[4:7], s51 offen offset:32 sc1
s_and_b32 s50, s2, 0x18
s_cmp_lg_u32 s50, 0
s_cbranch_scc1 L_dgx
s_not_b32 s51, s60
v_mov_b32 v6, s51
v_mov_b32 v7, s60
buffer_atomic_umax v6, v4, s[4:7], 0 offen offset:4 sc1
buffer_atomic_umax v7, v4, s[4:7], 0 offen offset:8 sc1
L_dgx:
s_cmp_lg_u32 s2, 8
s_cbranch_scc1 L_end
s_sub_u32 s8, s62, s60
v_mov_b32 v8, s8
buffer_store_dword v8, v4, s[4:7], 0 offen offset:12 sc1
s_sub_u32 s8, s76, s64
v_mov_b32 v9, s8
buffer_store_dword v9, v4, s[4:7], 0 offen offset:16 sc1
s_sub_u32 s8, s78, s76
v_mov_b32 v10, s8
buffer_store_dword v10, v4, s[4:7], 0 offen offset:20 sc1
s_sub_u32 s8, s82, s78
v_mov_b32 v11, s8
buffer_store_dword v11, v4, s[4:7], 0 offen offset:24 sc1
s_sub_u32 s8, s86, s82
v_mov_b32 v12, s8
buffer_store_dword v12, v4, s[4:7], 0 offen offset:28 sc1
s_waitcnt lgkmcnt(0)
s_cmp_eq_u32 s10, 0x3e6e3f96
s_cbranch_scc1 L_end
s_cmp_eq_u32 s10, 0x3c3abe25
s_cbranch_scc1 L_end
v_mov_b32 v8, 0x40004000
buffer_store_dword v8, v4, s[28:31], 0 offen''')
        else:
            A(f'''s_memrealtime s[62:63]
s_load_dwordx2 s[4:5], s[0:1], 88
s_getreg_b32 s50, hwreg(HW_REG_XCC_ID)
s_waitcnt lgkmcnt(0)
s_mov_b32 s6, 64
s_mov_b32 s7, 0x20000
v_lshlrev_b32 v4, 6, v0
s_and_b32 s51, s2, 0xbe
s_cmp_lg_u32 s51, 8
s_cbranch_scc1 L_end
s_and_b32 s51, s2, 1
s_lshr_b32 s8, s2, 5
s_add_u32 s51, s51, s8
s_lshl_b32 s51, s51, 4
s_and_b32 s50, s50, 15
s_lshl_b32 s50, s50, 28
s_sub_u32 s8, s62, s60
s_add_u32 s8, s8, s50
s_cmp_eq_u32 s51, 0
s_cbranch_scc1 L_dg1
v_mov_b32 v8, s8
buffer_store_dword v8, v4, s[4:7], s51 offen sc1
L_dg1:
s_sub_u32 s8, s{76 if OPT['diag'] == '1' else 66}, s64
s_sub_u32 s9, s{78 if OPT['diag'] == '1' else 68}, s{76 if OPT['diag'] == '1' else 66}
s_lshr_b32 s8, s8, 4
s_lshr_b32 s9, s9, 4
s_lshl_b32 s8, s8, 16
s_add_u32 s8, s8, s9
v_mov_b32 v9, s8
buffer_store_dword v9, v4, s[4:7], s51 offen offset:4 sc1
s_sub_u32 s8, s{80 if OPT['diag'] == '1' else 70}, s{78 if OPT['diag'] == '1' else 68}
s_sub_u32 s9, s{82 if OPT['diag'] == '1' else 72}, s{80 if OPT['diag'] == '1' else 70}
s_lshr_b32 s8, s8, 4
s_lshr_b32 s9, s9, 4
s_lshl_b32 s8, s8, 16
s_add_u32 s8, s8, s9
v_mov_b32 v10, s8
buffer_store_dword v10, v4, s[4:7], s51 offen offset:8 sc1
s_sub_u32 s8, s{84 if OPT['diag'] == '1' else 74}, s{82 if OPT['diag'] == '1' else 72}
s_sub_u32 s9, s{86 if OPT['diag'] == '1' else 76}, s{84 if OPT['diag'] == '1' else 74}
s_lshr_b32 s8, s8, 4
s_lshr_b32 s9, s9, 4
s_lshl_b32 s8, s8, 16
s_add_u32 s8, s8, s9
v_mov_b32 v11, s8
buffer_store_dword v11, v4, s[4:7], s51 offen offset:12 sc1''')
    A('L_end:\ns_endpgm')
    A.resolve_waits()
    rep = []
    A.fix_hazards(rep)
    segs = {}
    for n, L in split_marks(A.L): segs.setdefault(n, []).append(L)
    M = {n: merge_segments(v) for n, v in segs.items()}
    if OPT['hole']:
        L = M['_start']; k = len(L) - 1
        while L[k].kind != 'mfma': k -= 1
        out = L[:k + 1]; since = 0; q = 0
        for x in L[k + 1:]:
            out.append(x); since += 2 if x.kind == 'trans' else 1
            if since >= 2 and x.kind in ('valu', 'trans'):
                out.append(Ins(mfma('a0', f'a{128 + 4 * (q % 16)}', f'a{128 + 4 * ((q // 3) % 16)}', 'a0'))); q += 1; since = 0
        M['_start'] = out
    ab = OPT['abl']
    if ab:
        for nm in list(M):
            L = M[nm]
            if nm[0] in 'rp' or nm == 's0':
                if 'a' in ab: L = [x for x in L if x.mn != 'v_add_f32']
                if 'c' in ab: L = [x for x in L if x.mn not in ('v_max3_f32', 'v_max_f32', 'v_cmp_lt_f32', 's_cbranch_vccnz')]
                if 'e' in ab: L = [x for x in L if x.mn != 'v_exp_f32']
                if 'p' in ab: L = [x for x in L if x.mn != 'v_cvt_pk_bf16_f32']
                if 'k' in ab: L = [x for x in L if x.mn != 'ds_read_b128']
                if 'v' in ab: L = [x for x in L if x.mn != 'ds_read_b64_tr_b16']
                if 's' in ab: L = [x for x in L if not (x.kind == 'mfma' and f'v[{ONES}:' in x.text)]
                if 'h' in ab: L = [x for i, x in enumerate(L) if not (x.mn == 'v_exp_f32' and int(x.text.split()[1][1:-1]) % 2)]
                if 'd' in ab and nm[0] != 'p': L = [x for x in L if x.kind != 'dma']
            if 'o' in ab: L = [x for x in L if x.tag != 'Ost']
            if nm == 'tail':
                if 'g' in ab: L = [x for x in L if not (x.tag and x.tag.startswith('rG') and int(x.tag[2:]) % 2)]
                if 'G' in ab: L = [x for x in L if not (x.tag and x.tag.startswith(('GW', 'GO')))]
            if nm == '_start':
                if 'j' in ab: L = [x for x in L if not (x.tag and x.tag.startswith('J'))]
                if 'W' in ab: L = [x for x in L if not (x.tag and (x.tag[0] in 'WX') and x.kind == 'dma' and int(x.tag[1:]) > 5)]
                cutq = [i for i, x in enumerate(L) if x.kind == 'mfma'][14 * 64]
                if '1' in ab: L = L[:cutq] + [x for x in L[cutq:] if x.tag != 'Jst']
                if '2' in ab: L = L[:cutq] + [x for x in L[cutq:] if x.kind != 'dma']
                if '3' in ab: L = L[:cutq] + [x for x in L[cutq:] if x.kind != 'dsw']
                if '4' in ab: L = L[:cutq] + [x for x in L[cutq:] if x.mn not in ('v_mul_f32',)]
                if '5' in ab: L = L[:cutq] + [x for x in L[cutq:] if not (x.tag and x.tag.startswith('rQ'))]
                if 'w' in ab: L = [x for x in L if not (x.tag and x.tag.startswith('rW') and int(x.tag[2:]) % 2)]
            import re as _re
            def rechain(L, n, pred):
                out = []; k = 0; cur = None
                for x in L:
                    if x.kind == 'mfma' and pred(x):
                        m = _re.match(r'(\S+) (\S+), (\S+), (\S+), (\S+)$', x.text)
                        if m[2] == m[5]:
                            if k % n == 0 or cur is None or cur[0] != m[2][0]: cur = m[2]
                            x = Ins(f'{m[1]} {cur}, {m[3]}, {m[4]}, {cur}'); k += 1
                    out.append(x)
                return out
            if 'Z' in ab and (nm[0] in 'rp'):
                out = []; k = 0
                for x in L:
                    if x.kind == 'mfma' and x.text.split()[1][0] == 'a':
                        m = _re.match(r'(\S+) a\[(\d+):\d+\], v\[(\d+):\d+\], v\[(\d+):\d+\], a', x.text)
                        tp, q, kk = k // 8, (k // 2) % 4, k % 2
                        pb = int(m[4]) & ~15
                        half = int(nm[-1]) & 1
                        d = f'a{((half * 4 + tp) * 4 + q) * 4}'
                        x = Ins(mfma(d, f'v{VF + (2 * tp + kk) * 4}', f'v{pb + ((q + 2 * kk) % 4) * 4}', d)); k += 1
                    out.append(x)
                L = out
            if 'P' in ab and (nm[0] in 'rp'): L = rechain(L, 2, lambda x: x.text.split()[1][0] == 'a')
            if 'X' in ab and nm == 'tail': L = rechain(L, 4, lambda x: True)
            if 'Q' in ab and nm == '_start':
                cut = [i for i, x in enumerate(L) if x.kind == 'mfma'][14 * 64]
                L = rechain(L[:cut], 2, lambda x: True) + L[cut:]
            M[nm] = L
    F = Prog()
    F.extend(M['_start'])
    if int(OPT['burst']):
        F(f's_mov_b32 s50, {int(OPT["burst"])}\nL_burst:')
        for q in range(16):
            F(f'v_mfma_f32_32x32x16_bf16 a[{(q % 8) * 16}:{(q % 8) * 16 + 15}], v[{64 + 4 * (q % 8)}:{67 + 4 * (q % 8)}], a[{128 + 4 * q}:{131 + 4 * q}], a[{(q % 8) * 16}:{(q % 8) * 16 + 15}]')
            F(f'ds_read_b128 v[{96 + 4 * (q % 8)}:{99 + 4 * (q % 8)}], v4 offset:{q * 1024}')
            F(f'v_exp_f32 v{224 + q}, v{128 + q}\nv_add_f32 v{240 + q}, v{144 + q}, v{128 + q}')
        F('s_sub_u32 s50, s50, 1\ns_cbranch_scc0 L_burst\ns_waitcnt lgkmcnt(0)\ns_nop 15')
    F('L_s0:')
    F.extend(M['s0'])
    F('s_branch L_r1\n.p2align 6\nL_r0:')
    F.extend(M['r0'])
    F('L_r1:')
    for k in range(1, 7): F.extend(M[f'r{k}'])
    F('s_cbranch_scc1 L_sp')
    F.extend(M['r7'])
    F(f's_cbranch_scc1 L_r0\ns_cmp_eq_u32 s{sKo}, 0x80000\ns_cbranch_scc1 L_fin\ns_cmp_eq_u32 s{sKo}, 0x70000\ns_cbranch_scc1 L_b47\ns_cmp_eq_u32 s{sKo}, 0x60000\ns_cbranch_scc1 L_b39')
    for b in (7, 39, 47):
        F(f'L_b{b}:'); F.extend(M[f'b{b}']); F('s_branch L_r0')
    F('L_sp:')
    F.extend(M['sp31'])
    if OPT['w1']: F('s_branch L_r1')
    else:
        F.extend(M['epi']); F('s_branch L_s0')
    for nm, p, mode in [(f'r{k}', k & 1, 0) for k in range(8)] + [(f'p{k}', k & 1, 0) for k in range(56, 63)] + [('sp31', 1, 1), ('fin31', 1, 1)]:
        F(f'L_st_{nm}:\ns_mov_b32 s{sMODE}, {mode}\ns_call_b64 s[{sRET}:{sRET + 1}], L_fb{p}')
        if nm != 'fin31': F.extend(sm_dense(3 - p, 0, 32))
        F(f's_branch L_bk_{nm}')
    F(f'L_st_s0:\ns_call_b64 s[{sRET}:{sRET + 1}], L_fbf')
    F.extend(sm_dense(3, 0, 32))
    F('s_branch L_bk_s0')
    F.extend(fallback(0).L); F.extend(fallback(1).L); F.extend(fallback(0, True).L)
    for x in SPINS: F(x)
    F('L_fin:')
    F.extend(M['b55'])
    for k in range(56, 63): F.extend(M[f'p{k}'])
    F.extend(M['fin31'])
    F.extend(M['tail'])
    return F, rep

NOTES = '''; Design notes (file emitted by the author's own scheduling script)
;           stand-in; every step checks the row sums (too large, or too small on the first step) and then falls back to the
;           true running row max, rescaling O and l. Row sums come from an MFMA with a ones operand.
'''
def build(path):
    A, rep = gen()
    hdr = open('cdna_kernels/' + NAME + '.s.ref').read().split('; Override launch')[0]
    t = hdr + '; @launch grid=(256,1,1) block=(256,1,1) lds=163840\n'
    t += NOTES
    t += '.amdgcn_target "amdgcn-amd-amdhsa--gfx950"\n.text\n' + MACROS
    t += prolog(KNAME) + A.text() + 'L_code_end:\n'
    t += kd(KNAME, 512, 100, 256)
    open(path, 'w').write(t)
    return rep, len(t)

if __name__ == '__main__':
    path = sys.argv[1]
    for kv in sys.argv[2:]:
        k, v = kv.split('=')
        assert k in OPT, k
        OPT[k] = (v == '1') if isinstance(OPT.get(k), bool) else v
    rep, n = build(path)
    from collections import Counter
    print('bytes', n, 'pads', Counter((a, b.split()[0]) for a, b in rep).most_common(12))
```
